```python
import torch

def _softmax(x, axis=-1):
    return torch.softmax(x, dim=axis)
def _gelu(x):
    return torch.nn.functional.gelu(x, approximate="tanh")
def _silu(x):
    return torch.nn.functional.silu(x)
def _sigmoid(x):
    return torch.sigmoid(x)
def _layernorm(x, axis=-1, eps=1e-5):
    m = x.mean(dim=axis, keepdim=True)
    v = x.var(dim=axis, keepdim=True, unbiased=False)
    return (x - m) / torch.sqrt(v + eps)
def _scatter_add(tgt, idx, src, axis=0):
    return tgt.clone().index_add_(axis, idx, src)
def _segment_sum(src, seg, n):
    out = torch.zeros((n,) + src.shape[1:], dtype=src.dtype)
    return out.index_add_(0, seg, src)
def _pad(x, pw):
    flat = tuple(v for pair in reversed(pw) for v in pair)
    return torch.nn.functional.pad(x, flat)

kernel_name = 'sequential_preLN__sliding_local_dilated__glu_gated_geglu__prompt'

def setup_inputs():

    _w = (lambda a: (lambda t: t.to(torch.bfloat16) if t.is_floating_point() else t)(torch.as_tensor(a)))
    def _A_setup():
        B, S, D = 1, 2048, 1024
        return {
            "x": _w((lambda *s: torch.randn(*s, dtype=torch.bfloat16) * 0.05)(B, S, D)),
            "wqkv": _w((lambda *s: torch.randn(*s, dtype=torch.bfloat16) * 0.05)(D, 3 * D)),
            "wo": _w((lambda *s: torch.randn(*s, dtype=torch.bfloat16) * 0.05)(D, D)),
        }
    _A_in = _A_setup()

    def _B_setup():
        B, S, Dm, Df = 1, 2048, 1024, 3584
        return {
            "x": _w((lambda *s: torch.randn(*s, dtype=torch.bfloat16) * 0.05)(B, S, Dm)),
            "w_gate": _w((lambda *s: torch.randn(*s, dtype=torch.bfloat16) * 0.8)(Dm, Df) * (Dm ** -0.5)),
            "w_up": _w((lambda *s: torch.randn(*s, dtype=torch.bfloat16) * 0.8)(Dm, Df) * (Dm ** -0.5)),
            "w_down": _w((lambda *s: torch.randn(*s, dtype=torch.bfloat16) * 0.8)(Df, Dm) * (Df ** -0.5)),
        }
    _B_in = _B_setup()

    return {
        "A_x": _A_in["x"],
        "A_wqkv": _A_in["wqkv"],
        "A_wo": _A_in["wo"],
        "B_x": _B_in["x"],
        "B_w_gate": _B_in["w_gate"],
        "B_w_up": _B_in["w_up"],
        "B_w_down": _B_in["w_down"],
    }

def reference(A_x, A_wqkv, A_wo, B_x, B_w_gate, B_w_up, B_w_down):
    def _A_ref(x, wqkv, wo):
        B, S, D = x.shape
        H = 32; Dh = D // H
        W, dil = 8, 2
        qkv = (lambda x, *d: x.permute(*d))((x @ wqkv).reshape(B, S, 3, H, Dh), 2, 0, 3, 1, 4)
        q, k, v = qkv[0], qkv[1], qkv[2]
        scale = Dh ** -0.5
        pos = torch.arange(S)
        off = torch.arange(W) * dil
        idx = pos[:, None] - off[None, :]
        mask = idx >= 0
        idx_c = torch.where(mask, idx, 0).reshape(-1)
        kg = k[:, :, idx_c, :].reshape(B, H, S, W, Dh)
        vg = v[:, :, idx_c, :].reshape(B, H, S, W, Dh)
        logits = torch.einsum("bhsd,bhswd->bhsw", q, kg) * scale
        logits = torch.where(mask[None, None, :, :], logits, -1e9)
        attn = _softmax(logits, axis=-1)
        o = torch.einsum("bhsw,bhswd->bhsd", attn, vg)
        return (lambda x, *d: x.permute(*d))(o, 0, 2, 1, 3).reshape(B, S, D) @ wo

    def _B_ref(x, w_gate, w_up, w_down):
        g = torch.einsum("bsd,df->bsf", x, w_gate)
        u = torch.einsum("bsd,df->bsf", x, w_up)
        h = _gelu(g) * u
        return torch.einsum("bsf,fd->bsd", h, w_down)

    x = A_x
    h = x + _A_ref(_layernorm(x, axis=-1), A_wqkv, A_wo)
    h2 = h + _B_ref(_layernorm(h, axis=-1), B_w_gate, B_w_up, B_w_down)
    return h2
```

```python
WS_O   = 0
WS_H   = 4 << 20
WS_HH  = 8 << 20
WS_ST2 = 24 << 20
WS_ST1 = 25 << 20
WS_CS  = 26 << 20
WS_BYTES = 268435456

KA_X, KA_WQKV, KA_WO, KA_BX, KA_WG, KA_WU, KA_WD, KA_OUT, KA_DBG, KA_WS = [8*i for i in range(10)]


class Asm:
    def __init__(self):
        self.L = []
        self.uid = 0
    def __call__(self, s):
        for line in s.split("\n"):
            line = line.strip()
            if line:
                self.L.append(line)
    def label(self, base="L"):
        self.uid += 1
        return f"{base}_{self.uid}"
    def comment(self, s):
        self.L.append("; " + s)
    def text(self):
        return "\n".join(self.L) + "\n"


def kernel_header(a, name):
    a(f".globl {name}")
    a(".p2align 8")
    a(f".type {name},@function")
    a(f"{name}:")


def kernel_desc(name, vgpr, sgpr, accum):
    return f""".p2align 6
.amdhsa_kernel {name}
  .amdhsa_next_free_vgpr {vgpr}
  .amdhsa_next_free_sgpr {sgpr}
  .amdhsa_accum_offset {accum}
  .amdhsa_group_segment_fixed_size 0
  .amdhsa_kernarg_size 80
  .amdhsa_user_sgpr_count 2
  .amdhsa_user_sgpr_kernarg_segment_ptr 1
  .amdhsa_system_sgpr_workgroup_id_x 1
  .amdhsa_float_denorm_mode_32 3
  .amdhsa_float_denorm_mode_16_64 3
.end_amdhsa_kernel
"""


def srd(a, d, base, nbytes, add_lo=None, add_imm=0):
    if add_lo is not None:
        a(f"s_add_u32 s{d}, s{base}, s{add_lo}")
        a(f"s_addc_u32 s{d+1}, s{base+1}, 0")
        if add_imm:
            a(f"s_add_u32 s{d}, s{d}, {add_imm}")
            a(f"s_addc_u32 s{d+1}, s{d+1}, 0")
    elif add_imm:
        a(f"s_add_u32 s{d}, s{base}, {add_imm}")
        a(f"s_addc_u32 s{d+1}, s{base+1}, 0")
    else:
        a(f"s_mov_b32 s{d}, s{base}")
        a(f"s_mov_b32 s{d+1}, s{base+1}")
    a(f"s_mov_b32 s{d+2}, {nbytes}")
    a(f"s_mov_b32 s{d+3}, 0x20000")


def interleave(main, fill, start=0, every=1):
    out = []
    fi = 0
    for i, m in enumerate(main):
        out.append(m)
        if i >= start and (i - start) % every == 0 and fi < len(fill):
            out.append(fill[fi]); fi += 1
    out.extend(fill[fi:])
    return out


import os
STAMP = bool(os.environ.get("STAMP"))
TMH = os.environ.get("TMH", "1") == "1"
TM = os.environ.get("TM", "1") == "1"
def stamp(a, idx):
    if not STAMP: return
    b = 64 + 4*idx
    a(f"s_memtime s[{b}:{b+1}]")
    a(f"s_memrealtime s[{b+2}:{b+3}]")
    a("s_waitcnt lgkmcnt(0)")

WS_DBG = 28 << 20
KIDX = [0]
def stamp_flush(a, n, wave_sgpr, v0=12):
    if not STAMP: return
    L = a.label("Lsf")
    a(f"s_cmp_lg_u32 s{wave_sgpr}, {int(os.environ.get('STAMP_WAVE', '0'))}")
    a(f"s_cbranch_scc1 {L}")
    a(f"s_load_dwordx2 s[96:97], s[0:1], {KA_WS}")
    a("s_waitcnt lgkmcnt(0)")
    a(f"s_add_u32 s96, s96, {WS_DBG + KIDX[0]*65536}")
    a("s_addc_u32 s97, s97, 0")
    KIDX[0] += 1
    a("s_mov_b32 s98, 65536")
    a("s_mov_b32 s99, 0x20000")
    a("s_lshl_b32 s94, s2, 6")
    a(f"v_mov_b32 v{v0+2}, s94")
    for i in range(n):
        b = 64 + 4*i
        a(f"v_mov_b32 v{v0}, s{b}")
        a(f"v_mov_b32 v{v0+1}, s{b+2}")
        a(f"buffer_store_dwordx2 v[{v0}:{v0+1}], v{v0+2}, s[96:99], 0 offen offset:{8*i}")
        a("s_nop 1")
    a(f"{L}:")

STF = os.environ.get("STF", "")

WS_FLG = 27 << 20
FLG = {"o": (0, 16), "h": (16, 16), "hh": (32, 32), "cs": (48, 224)}

def flag_srd(a, d, ws_pair=32):
    srd(a, d, ws_pair, 72*128, add_imm=WS_FLG)

def flag_signal(a, d, kind, idx_sgpr, v=5):
    a(f"s_add_u32 s43, s{idx_sgpr}, {FLG[kind][0]}")
    a("s_lshl_b32 s43, s43, 7")
    a(f"v_mov_b32 v{v}, s43")
    a(f"v_mov_b32 v{v+1}, 1")
    a("s_mov_b64 exec, 1")
    a(f"buffer_atomic_add v{v+1}, v{v}, s[{d}:{d+3}], 0 offen sc1")
    a("s_mov_b64 exec, -1")

def flag_poll(a, d, kind, msgpr, v=8, lane=1):
    base, target = FLG[kind]
    if kind in ("o", "cs"): a(f"s_add_u32 s43, s{msgpr}, {base}")
    elif kind == "h":
        a(f"s_lshl_b32 s43, s{msgpr}, 1"); a(f"s_add_u32 s43, s43, {base}")
    else:
        a(f"s_lshr_b32 s43, s{msgpr}, 1"); a(f"s_add_u32 s43, s43, {base}")
    a("s_lshl_b32 s43, s43, 7")
    if kind == "h":
        a(f"v_and_b32 v{v}, 1, v{lane}")
        a(f"v_lshlrev_b32 v{v}, 7, v{v}")
        a(f"v_add_u32 v{v}, s43, v{v}")
    else:
        a(f"v_mov_b32 v{v}, s43")
    Lp = a.label("Lpoll"); Lo = a.label("Lpok")
    a("s_mov_b32 s41, 0x10000")
    a(f"{Lp}:")
    a(f"buffer_load_dword v{v+1}, v{v}, s[{d}:{d+3}], 0 offen sc1")
    a("s_waitcnt vmcnt(0)")
    a(f"v_mov_b32 v{v+2}, {target}")
    a(f"v_cmp_ne_u32 vcc, v{v+2}, v{v+1}")
    a("s_nop 4")
    a(f"s_cbranch_vccz {Lo}")
    a("s_sub_u32 s41, s41, 1")
    a("s_cmp_lg_u32 s41, 0")
    a(f"s_cbranch_scc1 {Lp}")
    a(f"{Lo}:")


def pf_g2_w(a, W_ka, K, groups, sd, v, vd, lane=1):
    a(f"s_load_dwordx2 s[{sd+4}:{sd+5}], s[0:1], {W_ka}")
    a("s_bfe_u32 s43, s2, 0x10002")
    a("s_lshl_b32 s43, s43, 3")
    a("s_lshr_b32 s44, s2, 5")
    a("s_add_u32 s43, s43, s44")
    a("s_lshl_b32 s43, s43, 7")
    a("s_bfe_u32 s44, s2, 0x20003")
    a("s_lshl_b32 s44, s44, 4")
    a(f"v_and_b32 v{v}, 15, v{lane}")
    a(f"v_add_u32 v{v}, s44, v{v}")
    a(f"v_lshrrev_b32 v{vd}, 4, v{lane}")
    a(f"v_lshl_add_u32 v{v}, v{vd}, 6, v{v}")
    a(f"v_lshlrev_b32 v{v}, 11, v{v}")
    a("s_waitcnt lgkmcnt(0)")
    srd(a, sd, sd+4, K*2048 - 1920, add_lo=43)
    for g in groups:
        a(f"s_mov_b32 s43, {g*524288}")
        a(f"buffer_load_dword v{vd}, v{v}, s[{sd}:{sd+3}], s43 offen")
    return len(groups)

def pf_k3_w(a, nst, sd, v, vd, lane=1):
    a(f"s_load_dwordx4 s[{sd+8}:{sd+11}], s[0:1], {KA_WG}")
    a("s_bfe_u32 s43, s2, 0x20001")
    a("s_lshl_b32 s43, s43, 3")
    a("s_lshr_b32 s44, s2, 5")
    a("s_add_u32 s43, s43, s44")
    a("s_mul_i32 s43, s43, 224")
    a("s_bfe_u32 s44, s2, 0x20003")
    a("s_lshl_b32 s44, s44, 4")
    a("s_waitcnt lgkmcnt(0)")
    srd(a, sd, sd+8, 1023*7168 + 224, add_lo=43)
    srd(a, sd+4, sd+10, 1023*7168 + 224, add_lo=43)
    n = 0
    for i in range(nst*48//64):
        a(f"v_add_u32 v{v}, {64*i}, v{lane}")
        a(f"v_mul_u32_u24 v{vd}, 21846, v{v}")
        a(f"v_lshrrev_b32 v{vd}, 16, v{vd}")
        a(f"v_mul_u32_u24 v{v+1}, 3, v{vd}")
        a(f"v_sub_u32 v{v}, v{v}, v{v+1}")
        a(f"v_mul_u32_u24 v{v}, 108, v{v}")
        a(f"v_lshrrev_b32 v{v+1}, 4, v{vd}")
        a(f"v_and_b32 v{vd}, 15, v{vd}")
        a(f"v_lshl_add_u32 v{vd}, v{v+1}, 6, v{vd}")
        a(f"v_add_u32 v{vd}, s44, v{vd}")
        a(f"v_mul_u32_u24 v{vd}, 7168, v{vd}")
        a(f"v_add_u32 v{v}, v{v}, v{vd}")
        a(f"buffer_load_dword v{vd+2}, v{v}, s[{sd}:{sd+3}], 0 offen")
        a(f"buffer_load_dword v{vd+2}, v{v}, s[{sd+4}:{sd+7}], 0 offen")
        n += 2
    return n


CS_NF = 28
def cs_setup(a, Lno, sd, va):
    a("s_lshr_b32 s43, s2, 1")
    a("s_cmp_ge_u32 s43, 112")
    a(f"s_cbranch_scc1 {Lno}")
    a("s_and_b32 s44, s2, 1")
    a("s_lshl_b32 s45, s44, 3")
    a(f"s_add_u32 s45, s45, {KA_WG}")
    a(f"s_load_dwordx2 s[{sd+4}:{sd+5}], s[0:1], s45")
    a("s_mul_i32 s45, s43, 2341")
    a("s_lshr_b32 s45, s45, 16")
    a("s_mul_i32 s46, s45, 28")
    a("s_sub_u32 s46, s43, s46")
    a(f"v_lshrrev_b32 v{va}, 4, v1")
    a("s_lshl_b32 s43, s45, 8")
    a(f"v_add_u32 v{va}, s43, v{va}")
    a(f"v_mul_u32_u24 v{va}, 7168, v{va}")
    a(f"v_and_b32 v{va+1}, 15, v1")
    a(f"v_lshl_add_u32 v{va}, v{va+1}, 4, v{va}")
    a("s_lshl_b32 s43, s46, 8")
    a(f"v_add_u32 v{va}, s43, v{va}")
    a("s_waitcnt lgkmcnt(0)")
    srd(a, sd, sd+4, 7340032)

def cs_issue(a, n, sd, va):
    i = n % CS_NF
    a(f"s_mov_b32 s43, {n*4*7168}")
    a(f"buffer_load_dwordx4 v[{128+4*i}:{128+4*i+3}], v{va}, s[{sd}:{sd+3}], s43 offen")


DYN = int(os.environ.get("DYN", "0"))
def flag_tile_signal(a, d, m_sgpr, n_sgpr, v=5):
    a(f"s_add_u32 s43, s{m_sgpr}, 64")
    a("s_lshl_b32 s43, s43, 7")
    a(f"s_lshl_b32 s44, s{n_sgpr}, 2")
    a("s_add_u32 s43, s43, s44")
    a(f"v_mov_b32 v{v}, s43")
    a(f"v_mov_b32 v{v+1}, 1")
    a("s_mov_b64 exec, 1")
    a(f"buffer_store_dword v{v+1}, v{v}, s[{d}:{d+3}], 0 offen sc1")
    a("s_mov_b64 exec, -1")
```

```python
import os, struct
from common import *

NS = 3
XB_ = 18432
STG1 = XB_ + 3*8192
RST = NS*STG1
CSUM = RST + 1152
LST = CSUM
LDS_K1 = CSUM + 768
QKV = 0
QP = 400
OST = 61440

def fh(x): return "0x%08x" % struct.unpack("<I", struct.pack("<f", x))[0]

VGPR_K1 = 240
def phase_k1(a, Ld, signal=None, last=True, cspre=False):
    strip = os.environ.get("K1_STRIP", "")
    nst = 16
    SF = " sc1" if signal is not None else ""
    stamp(a, 0)
    a(f"s_load_dwordx4 s[4:7], s[0:1], {KA_X}")
    a(f"s_load_dwordx2 s[32:33], s[0:1], {KA_WS}")
    a("s_and_b32 s3, s2, 7")
    a("s_lshr_b32 s42, s2, 3")
    a("s_and_b32 s34, s3, 1")
    a("s_lshl_b32 s34, s34, 3")
    a("s_and_b32 s48, s42, 7")
    a("s_add_u32 s34, s34, s48")
    a("s_lshr_b32 s35, s3, 1")
    a("s_lshr_b32 s49, s42, 3")
    if os.environ.get("NSPREAD", "0") == "1":
        a("s_lshl_b32 s43, s49, 2")
        a("s_add_u32 s35, s35, s43")
    else:
        a("s_lshl_b32 s35, s35, 2")
        a("s_add_u32 s35, s35, s49")
    if os.environ.get("K1_SAME"):
        a("s_mov_b32 s34, 1"); a("s_mov_b32 s35, 0")
    a("v_lshrrev_b32 v12, 6, v0")
    a("v_and_b32 v1, 63, v0")
    a("v_readfirstlane_b32 s36, v12")
    a("s_lshl_b32 s43, s35, 7")
    a("s_lshl_b32 s44, s34, 18")
    a("s_add_u32 s45, s44, s43")
    if TM:
        a("s_lshl_b32 s45, s35, 18")
        a("s_lshl_b32 s44, s34, 14")
        a("s_add_u32 s45, s45, s44")
    a("s_lshl_b32 s50, s34, 7")
    a("s_sub_u32 s50, s50, 16")
    a("s_waitcnt lgkmcnt(0)")
    srd(a, 8, 4, 2048*2048)
    srd(a, 12, 6, 1023*6144 + 4096 + 128, add_lo=43)
    srd(a, 16, 32, 16384 if TM else 127*2048 + 128, add_lo=45, add_imm=WS_O)
    Lprod = a.label("Lprod"); Lpf = a.label("Lpf"); Latt = a.label("Latt")
    a("v_and_b32 v12, 15, v1")
    a("v_lshrrev_b32 v13, 4, v1")
    a("s_cmp_ge_u32 s36, 4")
    a(f"s_cbranch_scc1 {Lprod}")

    a("v_lshrrev_b32 v16, 1, v12")
    a("v_xor_b32 v15, v13, v16")
    a("v_lshlrev_b32 v15, 4, v15")
    a("v_lshl_add_u32 v2, v12, 7, v15")
    a("v_xor_b32 v3, 64, v2")
    a(f"v_add_u32 v4, {2*STG1}, v2")
    a(f"v_add_u32 v5, {2*STG1}, v3")
    a("v_lshrrev_b32 v15, 2, v12")
    a("v_and_b32 v16, 3, v1")
    a("v_lshl_add_u32 v19, v13, 3, v15")
    a("v_lshlrev_b32 v19, 7, v19")
    a("v_and_b32 v15, 2, v15")
    a("v_and_b32 v17, 1, v13")
    a("v_lshl_add_u32 v15, v17, 2, v15")
    a("v_lshrrev_b32 v17, 1, v16")
    a("s_lshl_b32 s43, s36, 1")
    a("v_add_u32 v17, s43, v17")
    a("v_xor_b32 v15, v15, v17")
    a("v_lshl_add_u32 v19, v15, 4, v19")
    a("v_and_b32 v16, 1, v16")
    a("v_lshl_add_u32 v19, v16, 3, v19")
    for sl in range(3):
        a(f"v_add_u32 v{6+sl}, {XB_ + sl*STG1}, v19")
    ACC = 128
    def accreg(seg, mt):
        return ACC + 36*seg + 4*mt
    for i in range(108): a(f"v_mov_b32 v{ACC+i}, 0")
    SET = [32, 80]
    def reads(s, kk, base):
        sl = s % NS
        xb = (2 + kk) if sl < 2 else (4 + kk)
        xo = (sl % 2)*STG1 if sl < 2 else 0
        def xr(mt): return f"ds_read_b128 v[{base+4*mt}:{base+4*mt+3}], v{xb} offset:{xo + mt*2048}"
        def wr(sg, h): return f"ds_read_b64_tr_b16 v[{base+36+4*sg+2*h}:{base+36+4*sg+2*h+1}], v{6+sl} offset:{sg*8192 + kk*4096 + h*512}"
        return [xr(0), wr(1,0), wr(1,1), wr(2,0), wr(2,1), wr(0,0), wr(0,1)] + [xr(m) for m in range(1, 9)]
    def mfmas(base):
        r = []
        for mt in range(9):
            for sg in (1, 2, 0):
                acc = accreg(sg, mt)
                r.append(f"v_mfma_f32_16x16x32_bf16 v[{acc}:{acc+3}], v[{base+36+4*sg}:{base+36+4*sg+3}], v[{base+4*mt}:{base+4*mt+3}], v[{acc}:{acc+3}]")
        return r
    def emit(seq):
        for i in seq:
            if "m" in strip and i.startswith("v_mfma"): continue
            if "r" in strip and i.startswith("ds_read"): continue
            a(i)
    a("s_barrier")
    stamp(a, 1)
    for i in reads(0, 0, SET[0]): a(i)
    def cstage(s, last):
        a("s_waitcnt lgkmcnt(0)")
        emit(interleave(mfmas(SET[0]), reads(s, 1, SET[1]), 0, 1))
        a("s_waitcnt lgkmcnt(0)")
        a("s_barrier")
        emit(interleave(mfmas(SET[1]), [] if last else reads(s+1, 0, SET[0]), 0, 1))
    if os.environ.get("STAMP2"):
        for s in range(nst):
            cstage(s, s == nst-1)
            a(f"s_memrealtime s[{64+2*s}:{65+2*s}]")
        a("s_waitcnt lgkmcnt(0)")
        Lq = a.label("Lq")
        a("s_cmp_lg_u32 s36, 0")
        a(f"s_cbranch_scc1 {Lq}")
        a(f"s_add_u32 s96, s32, {WS_DBG}")
        a("s_addc_u32 s97, s33, 0")
        a("s_mov_b32 s98, 65536")
        a("s_mov_b32 s99, 0x20000")
        a("s_lshl_b32 s43, s2, 6")
        a("v_mov_b32 v14, s43")
        for s in range(16):
            a(f"v_mov_b32 v15, s{64+2*s}")
            a(f"buffer_store_dword v15, v14, s[96:99], 0 offen offset:{4*s}")
            a("s_nop 1")
        a(f"{Lq}:")
    else:
        nl = (nst-1)//NS
        a(f"s_mov_b32 s41, {nl}")
        Ll = a.label("Lcl")
        a(f"{Ll}:")
        for s in range(NS): cstage(s, False)
        a("s_sub_u32 s41, s41, 1")
        a("s_cmp_lg_u32 s41, 0")
        a(f"s_cbranch_scc1 {Ll}")
        for s in range(nl*NS, nst): cstage(s, s == nst-1)
    stamp(a, 2)
    a("s_barrier")
    a(f"v_lshlrev_b32 v14, 3, v12")
    a(f"v_add_u32 v14, {RST}, v14")
    for mt in range(9):
        a(f"ds_read_b64 v[{32+2*mt}:{33+2*mt}], v14 offset:{mt*128}")
    for sg in range(3):
        for r in range(4):
            a(f"v_mov_b32_dpp v{52+4*sg+r}, v{accreg(sg,0)+r} row_newbcast:0 row_mask:0xf bank_mask:0xf")
    a(f"v_mul_u32_u24 v14, {QP}, v12")
    a("v_lshl_add_u32 v14, v13, 3, v14")
    a("s_lshl_b32 s43, s36, 5")
    a("v_add_u32 v14, s43, v14")
    a("s_waitcnt lgkmcnt(0)")
    for mt in range(9):
        for sg in ((1, 2) if mt == 0 else (0, 1, 2)):
            acc = accreg(sg, mt)
            for r in range(4):
                a(f"v_fma_f32 v{acc+r}, -v{32+2*mt}, v{52+4*sg+r}, v{acc+r}")
            for r in range(4):
                a(f"v_mul_f32 v{acc+r}, v{33+2*mt}, v{acc+r}")
            a(f"v_cvt_pk_bf16_f32 v{acc}, v{acc}, v{acc+1}")
            a(f"v_cvt_pk_bf16_f32 v{acc+1}, v{acc+2}, v{acc+3}")
            a(f"ds_write_b64 v14, v[{acc}:{acc+1}] offset:{QKV + mt*16*QP + sg*128}")
    a("s_waitcnt lgkmcnt(0)")
    a(f"s_branch {Latt}")

    a(f"{Lprod}:")
    PST = os.environ.get("STAMP_WAVE", "0") != "0"
    a("s_sub_u32 s47, s36, 4")
    a("s_lshl_b32 s43, s34, 7")
    a("s_lshl_b32 s44, s35, 3")
    a("s_add_u32 s43, s43, s44")
    a("s_mov_b32 s63, s43")
    a("s_lshl_b32 s44, s47, 1")
    a("s_add_u32 s51, s43, s44")
    a("v_lshlrev_b32 v10, 4, v1")
    srd(a, 20, 32, 2048*8, add_imm=WS_ST1)
    def rows_load(srow, dst=96, add=0):
        a(f"s_lshl_b32 s43, s{srow}, 11")
        if add: a(f"s_add_u32 s43, s43, {add*2048}")
        for q in range(4):
            a(f"buffer_load_dwordx4 v[{dst+4*q}:{dst+4*q+3}], v10, s[8:11], s43 offen offset:{q*1024}")
    def rows_stats(srcb=96):
        for r in range(2):
            sa, qa = 116+4*r, 118+4*r
            for i in range(8):
                src = srcb + 8*r + i
                t = 124 + 2*(i & 1)
                a(f"v_lshlrev_b32 v{t}, 16, v{src}")
                a(f"v_and_b32 v{t+1}, 0xffff0000, v{src}")
                if i == 0:
                    a(f"v_mov_b32 v{sa}, v{t}"); a(f"v_mov_b32 v{sa+1}, v{t+1}")
                    a(f"v_mul_f32 v{qa}, v{t}, v{t}"); a(f"v_mul_f32 v{qa+1}, v{t+1}, v{t+1}")
                else:
                    a(f"v_add_f32 v{sa}, v{sa}, v{t}"); a(f"v_add_f32 v{sa+1}, v{sa+1}, v{t+1}")
                    a(f"v_fmac_f32 v{qa}, v{t}, v{t}"); a(f"v_fmac_f32 v{qa+1}, v{t+1}, v{t+1}")
        R = [116, 118, 120, 122]
        for x in R: a(f"v_add_f32 v{x}, v{x}, v{x+1}")
        a("s_nop 0")
        for sh in (8, 4, 2, 1):
            for x in R: a(f"v_add_f32_dpp v{x}, v{x}, v{x} row_ror:{sh} row_mask:0xf bank_mask:0xf")
        for sw in ("16", "32"):
            for x in R: a(f"v_mov_b32 v{x+1}, v{x}")
            a("s_nop 0")
            for x in R: a(f"v_permlane{sw}_swap_b32 v{x}, v{x+1}")
            for x in R: a(f"v_add_f32 v{x}, v{x}, v{x+1}")
        for r in range(2):
            sv, qv, o = 116+4*r, 118+4*r, 112+2*r
            a(f"v_mul_f32 v{o}, 0x3a800000, v{sv}")
            a(f"v_mul_f32 v{o+1}, 0x3a800000, v{qv}")
            a(f"v_fma_f32 v{o+1}, -v{o}, v{o}, v{o+1}")
            a(f"v_max_f32 v{o+1}, 0, v{o+1}")
            a(f"v_add_f32 v{o+1}, 0x3727c5ac, v{o+1}")
            a(f"v_rsq_f32 v{o+1}, v{o+1}")
        a("s_nop 0")
    def epi_pf():
        if os.environ.get("K1_EPF", "0") != "1": return
        a(f"s_load_dwordx4 s[24:27], s[0:1], {KA_WG}")
        a("v_lshlrev_b32 v15, 7, v1")
        a("s_mul_i32 s43, s2, 28672")
        a("s_lshl_b32 s44, s47, 13")
        a("s_add_u32 s43, s43, s44")
        a("v_add_u32 v15, s43, v15")
        a("s_waitcnt lgkmcnt(0)")
        srd(a, 88, 24, 7340032)
        srd(a, 84, 26, 7340032)
        a("buffer_load_dword v30, v15, s[88:91], 0 offen")
        a("buffer_load_dword v31, v15, s[84:87], 0 offen")
    def rows_local():
        a("s_lshl_b32 s43, s47, 4")
        a(f"s_add_u32 s43, s43, {LST}")
        a("v_mov_b32 v11, s43")
        a("ds_write_b128 v11, v[112:115]")
        a("s_waitcnt lgkmcnt(0)")
    def rows_publish(q):
        a("s_lshl_b32 s43, s63, 3")
        a("v_mov_b32 v11, s43")
        a("s_mov_b64 exec, 1")
        a(f"buffer_store_dwordx4 v[112:115], v11, s[20:23], 0 offen offset:{16*q} sc1")
        a("s_mov_b64 exec, -1")
        a("s_nop 0")
    a("s_cmp_eq_u32 s47, 3")
    a(f"s_cbranch_scc1 {Lpf}")
    if PST: stamp(a, 1)
    a("v_lshrrev_b32 v14, 3, v1")
    a("v_and_b32 v15, 7, v1")
    a("v_and_b32 v16, 2, v14")
    a("v_xor_b32 v16, v15, v16")
    a("v_lshlrev_b32 v16, 4, v16")
    a("v_mul_u32_u24 v17, 6144, v14")
    a("s_lshl_b32 s43, s47, 11")
    a("v_add3_u32 v2, v17, v16, s43")
    a("v_xor_b32 v3, 64, v2")
    a("v_lshrrev_b32 v16, 1, v14")
    a("v_xor_b32 v16, v15, v16")
    a("v_lshlrev_b32 v16, 4, v16")
    a("s_lshl_b32 s43, s47, 3")
    a("s_add_u32 s43, s43, s50")
    a("v_add_u32 v17, s43, v14")
    a("s_and_b32 s44, s47, 1")
    a("s_lshl_b32 s44, s44, 6")
    for i in range(6):
        a(f"v_add_u32 v18, {24*i}, v17")
        a("v_max_i32 v18, 0, v18")
        a("v_lshl_add_u32 v18, v18, 11, v16")
        a("v_xor_b32 v18, s44, v18")
        if i & 1: a(f"v_xor_b32 v{4+i}, 64, v18")
        else: a(f"v_mov_b32 v{4+i}, v18")
    a("s_lshl_b32 s39, s47, 10")
    a("s_lshl_b32 s40, s47, 13")
    a(f"s_add_u32 s40, s40, {XB_}")
    a("s_mov_b32 s37, 0")
    a("s_mov_b32 s38, 0")
    a("s_bfm_b64 s[60:61], 56, 8")
    a("s_cmp_eq_u32 s47, 0")
    a("s_cselect_b64 s[60:61], s[60:61], -1")
    def dma(slot):
        for i in range(6):
            a(f"s_add_u32 m0, s39, {slot*STG1 + i*3072}")
            a("s_mov_b64 exec, s[60:61]" if i == 0 else "s_nop 0")
            if "d" not in strip: a(f"buffer_load_dwordx4 v{4+i}, s[8:11], s37 offen lds")
            if i == 0: a("s_mov_b64 exec, -1")
        for j in range(8):
            a(f"s_add_u32 m0, s40, {slot*STG1 + j*1024}")
            a(f"s_add_u32 s43, s38, {8*j*6144}")
            if "d" not in strip: a(f"buffer_load_dwordx4 v{2+(j&1)}, s[12:15], s43 offen lds")
        a("s_add_u32 s37, s37, 128")
        a(f"s_add_u32 s38, s38, {64*6144}")
    if PST: stamp(a, 2)
    for sl in range(NS): dma(sl)
    rows_load(51)
    if PST: stamp(a, 3)
    a(f"s_waitcnt vmcnt({14*(NS-1) + 4})")
    if PST: stamp(a, 4)
    a("s_barrier")
    def pstage(s, do_dma, vm, extra=None):
        if do_dma: dma((s+2) % NS)
        if extra: extra()
        if vm is not None: a(f"s_waitcnt vmcnt({vm})")
        a("s_barrier")
    pstage(0, False, 14 + 4)
    pstage(1, True, 14)
    def loc():
        rows_stats(); rows_local()
    pstage(2, True, 14, loc)
    pstage(3, True, 14)
    a(f"s_mov_b32 s41, 3")
    Lp = a.label("Lpl")
    a(f"{Lp}:")
    for s in range(4, 7): pstage(s, True, 14)
    a("s_sub_u32 s41, s41, 1")
    a("s_cmp_lg_u32 s41, 0")
    a(f"s_cbranch_scc1 {Lp}")
    pstage(13, True, 14)
    pstage(14, False, 0)
    epi_pf()
    pstage(15, False, None)
    a("s_barrier")
    a(f"s_branch {Latt}")

    a(f"{Lpf}:")
    PF = os.environ.get("K1_PF", "1") == "1"
    PFON = [PF]
    MPF = os.environ.get("K1_MPF", "1") == "1"
    a(f"s_load_dwordx2 s[24:25], s[0:1], {KA_WO}")
    a(f"s_load_dwordx2 s[26:27], s[0:1], {KA_DBG}")
    rows_load(51)
    a("v_min_u32 v14, 23, v1")
    a("v_lshrrev_b32 v15, 3, v14")
    a(f"v_mul_u32_u24 v15, {STG1}, v15")
    a("v_and_b32 v14, 7, v14")
    a("v_lshl_add_u32 v15, v14, 4, v15")
    for i in range(4): a(f"v_mov_b32 v{32+i}, 0x3f803f80")
    a("ds_write_b128 v15, v[32:35]")
    a("s_mul_i32 s43, s49, 36")
    a("s_add_u32 s43, s43, s50")
    a("v_min_u32 v14, 35, v1")
    a("v_add_u32 v14, s43, v14")
    a("v_max_i32 v14, 0, v14")
    a("v_lshlrev_b32 v2, 11, v14")
    HALF = os.environ.get("K1_HALF", "0") == "1"
    a(f"v_min_u32 v14, {11 if HALF else 23}, v1")
    a("v_mul_u32_u24 v15, 21846, v14")
    a("v_lshrrev_b32 v15, 16, v15")
    a("v_mul_u32_u24 v16, 3, v15")
    a("v_sub_u32 v16, v14, v16")
    a("s_lshl_b32 s43, s48, 3")
    if HALF:
        a("s_and_b32 s44, s2, 1")
        a("s_lshl_b32 s44, s44, 2")
        a("s_add_u32 s43, s43, s44")
    a("v_add_u32 v15, s43, v15")
    a("v_mul_u32_u24 v15, 6144, v15")
    a("v_lshl_add_u32 v3, v16, 11, v15")
    PD = int(os.environ.get("K1_PD", "4"))
    PF64 = os.environ.get("PF64", "0") == "1"
    vm = []
    def wait_for(tag):
        idx = max(i for i, t in enumerate(vm) if t == tag)
        a(f"s_waitcnt vmcnt({len(vm) - 1 - idx})")
    def l2pf(st):
        if not PFON[0] or st >= nst: return
        if os.environ.get("K1_NOX", "1") != "1":
            a(f"s_mov_b32 s43, {st*128}")
            a(f"buffer_load_dword v30, v2, s[8:11], s43 offen"); vm.append("pf")
        if PF64: a(f"buffer_load_dword v30, v2, s[8:11], s43 offen offset:64"); vm.append("pf")
        a(f"s_mov_b32 s43, {st*64*6144}")
        a(f"buffer_load_dword v31, v3, s[12:15], s43 offen"); vm.append("pf")
        if PF64: a(f"buffer_load_dword v31, v3, s[12:15], s43 offen offset:64"); vm.append("pf")
    a("s_waitcnt lgkmcnt(0)")
    srd(a, 52, 24, 2097152)
    srd(a, 56, 26, 256)
    a("v_lshlrev_b32 v14, 7, v1")
    a("s_lshl_b32 s43, s2, 13")
    a("v_add_u32 v4, s43, v14")
    Lz = a.label("Lz")
    a("s_or_b32 s43, s34, s35")
    a("s_cmp_lg_u32 s43, 0")
    a(f"s_cbranch_scc1 {Lz}")
    flag_srd(a, 84)
    a("v_mov_b32 v5, 0")
    a("buffer_store_dword v5, v14, s[84:87], 0 offen sc1")
    for i in range(4): a(f"v_mov_b32 v{36+i}, 0")
    a("v_lshlrev_b32 v5, 4, v1")
    a("s_movk_i32 s43, 0x2000")
    a("buffer_store_dwordx4 v[36:39], v5, s[84:87], s43 offen sc1")
    a("s_waitcnt vmcnt(0)")
    a(f"{Lz}:")
    vm.append("rows")
    WB = os.environ.get("K1_WB", "")
    def wblast():
        for i in range(5):
            a(f"v_add_u32 v14, {64*i}, v1")
            a("v_min_u32 v14, 311, v14")
            a("v_mul_u32_u24 v15, 2731, v14")
            a("v_lshrrev_b32 v15, 16, v15")
            a("v_mul_u32_u24 v16, 24, v15")
            a("v_sub_u32 v14, v14, v16")
            a("v_mul_u32_u24 v16, 21846, v14")
            a("v_lshrrev_b32 v16, 16, v16")
            a("v_mul_u32_u24 v17, 3, v16")
            a("v_sub_u32 v14, v14, v17")
            a("v_lshl_add_u32 v16, v15, 6, v16")
            a("s_lshl_b32 s43, s48, 3")
            a("s_add_u32 s43, s43, 192")
            a("v_add_u32 v16, s43, v16")
            a("v_mul_u32_u24 v16, 6144, v16")
            a("v_lshl_add_u32 v16, v14, 11, v16")
            a("buffer_load_dword v31, v16, s[12:15], 0 offen"); vm.append("pf")
    if WB == "pre": wblast()
    TLB = int(os.environ.get("K1_TLB", "0"))
    def tlbwarm():
        a(f"s_load_dwordx4 s[64:67], s[0:1], {KA_WG}")
        a(f"s_load_dwordx4 s[68:71], s[0:1], {KA_WD}")
        a(f"v_lshlrev_b32 v14, {TLB}, v1")
        a("s_waitcnt lgkmcnt(0)")
        for (b, n) in ((64, 7340032), (66, 7340032), (68, 7340032), (70, 4194304), (32, 30 << 20), (24, 2097152)):
            srd(a, 72, b, n)
            for q in range((n >> TLB) // 64 + 1):
                a(f"s_mov_b32 s43, {q*64 << TLB}")
                a("buffer_load_dword v31, v14, s[72:75], s43 offen"); vm.append("pf")
    a("s_barrier")
    if TLB: tlbwarm()
    if os.environ.get("ICW", "0") == "1":
        a("s_getpc_b64 s[64:65]")
        a("s_lshr_b32 s43, s2, 3")
        a("s_lshl_b32 s43, s43, 11")
        a("v_and_b32 v14, 15, v1")
        a("v_lshl_add_u32 v14, v14, 7, s43")
        a(f"v_min_u32 v14, {int(os.environ.get('ICW_MAX', '45000'))}, v14")
        a("global_load_dword v31, v14, s[64:65]"); vm.append("pf")
    if WB == "post": wblast()
    if WB: PFON[0] = False
    GS = int(os.environ.get("K1_GS", "10"))
    SS = int(os.environ.get("K1_SS", "7"))
    PFN = int(os.environ.get("K1_PFN", "4"))
    Lgd = a.label("Lgd")
    nxt = [3]
    for s in range(nst):
        if s == 2:
            wait_for("rows")
            rows_stats(); rows_local()
        if s == 3:
            a("v_lshlrev_b32 v5, 4, v1")
            a("v_and_b32 v5, 63, v5")
            a(f"v_add_u32 v6, {LST}, v5")
            a("ds_read_b128 v[112:115], v6")
            a("s_lshl_b32 s43, s63, 3")
            a("v_add_u32 v5, s43, v5")
            a("s_waitcnt lgkmcnt(0)")
            a("s_mov_b64 exec, 15")
            a(f"buffer_store_dwordx4 v[112:115], v5, s[20:23], 0 offen sc1"); vm.append("store")
            a("s_mov_b64 exec, -1")
        if s < SS - 2:
            for q in range(PFN):
                l2pf(nxt[0]); nxt[0] += 1
        if MPF and s == 15:
            if last:
                a(f"buffer_load_dword v30, v4, s[52:55], 0 offen"); vm.append("pf")
            else:
                n = pf_g2_w(a, KA_WO, 1024, [0, 1, 2, 3], 84, 29, 30); vm.extend(["pf"]*n)
                if cspre:
                    Lnj = a.label("Lnj")
                    cs_setup(a, Lnj, 84, 28)
                    for q in range(CS_NF): cs_issue(a, q, 84, 28)
                    a(f"{Lnj}:")
        if s == SS:
            a("s_waitcnt vmcnt(0)")
            a("s_lshl_b32 s43, s34, 4")
            a("s_add_u32 s43, s43, s35")
            a("v_mov_b32 v5, s43")
            a("v_mov_b32 v6, 1")
            a("s_mov_b64 exec, 1")
            a("buffer_store_byte v6, v5, s[56:59], 0 offen sc1"); vm.append("at")
            a("s_mov_b64 exec, -1")
        if s == GS:
            a("s_lshl_b32 s43, s34, 4")
            a("s_sub_u32 s44, s43, 4")
            a("s_max_i32 s44, s44, 0")
            a("v_lshl_add_u32 v5, v1, 2, s43")
            a("v_mov_b32 v6, s44")
            a("v_cmp_gt_u32 vcc, 4, v1")
            a("s_nop 1")
            a("v_cndmask_b32 v5, v6, v5, vcc")
            a("v_cmp_eq_u32 vcc, 5, v1")
            a("s_nop 1")
            a("v_cndmask_b32 v5, v5, 0, vcc")
            a("buffer_load_dword v6, v5, s[56:59], 0 offen sc1"); vm.append("poll")
        if s == GS + 2:
            Lpoll = a.label("Lpoll"); Lok = a.label("Lok"); Lfb = a.label("Lfb")
            a("s_mov_b32 s41, 200")
            a("s_mov_b32 s62, 0")
            wait_for("poll")
            a(f"{Lpoll}:")
            a("v_and_b32 v6, 0x01010101, v6")
            a("v_cmp_ne_u32 vcc, 0x01010101, v6")
            a("s_nop 4")
            a(f"s_cbranch_vccz {Lok}")
            a("buffer_load_dword v6, v5, s[56:59], 0 offen sc1")
            a("s_waitcnt vmcnt(0)")
            a("s_sub_u32 s41, s41, 1")
            a("s_cmp_lg_u32 s41, 0")
            a(f"s_cbranch_scc1 {Lpoll}")
            a("s_mov_b32 s41, 0")
            a(f"{Lfb}:")
            a("s_add_u32 s62, s50, s41")
            a("s_max_i32 s62, s62, 0")
            rows_load(62)
            a("s_waitcnt vmcnt(0)")
            rows_stats()
            a("s_lshl_b32 s43, s41, 3")
            a(f"s_add_u32 s43, s43, {RST}")
            a("v_mov_b32 v5, s43")
            a("ds_write_b128 v5, v[112:115]")
            a("s_add_u32 s41, s41, 2")
            a("s_cmp_lt_u32 s41, 144")
            a(f"s_cbranch_scc1 {Lfb}")
            a("s_mov_b32 s62, 1")
            Lz0 = a.label("Lz0")
            a("v_mov_b32 v5, 0")
            a("s_mov_b32 s41, 0x10000")
            a(f"{Lz0}:")
            a("buffer_load_ubyte v6, v5, s[56:59], 0 offen sc1")
            a("s_waitcnt vmcnt(0)")
            a("v_cmp_eq_u32 vcc, 0, v6")
            a("s_nop 4")
            a(f"s_cbranch_vccz {Lok}")
            a("s_sub_u32 s41, s41, 1")
            a("s_cmp_lg_u32 s41, 0")
            a(f"s_cbranch_scc1 {Lz0}")
            a(f"{Lok}:")
            for q in range(3):
                a(f"v_add_u32 v5, {64*q}, v1")
                a("v_min_u32 v5, 143, v5")
                a(f"v_lshlrev_b32 v{20+q}, 3, v5")
                a("v_add_u32 v5, s50, v5")
                a("v_max_i32 v5, 0, v5")
                a("v_lshlrev_b32 v5, 3, v5")
                a(f"buffer_load_dwordx2 v[{32+2*q}:{33+2*q}], v5, s[20:23], 0 offen sc1"); vm.append("gather")
        if s == GS + 4:
            wait_for("gather")
            a("s_cmp_eq_u32 s62, 1")
            a(f"s_cbranch_scc1 {Lgd}")
            for q in range(3):
                a(f"v_add_u32 v{20+q}, {RST}, v{20+q}")
                a(f"ds_write_b64 v{20+q}, v[{32+2*q}:{33+2*q}]")
            a(f"{Lgd}:")
            a("s_waitcnt lgkmcnt(0)")
        a("s_barrier")
    a("s_barrier")

    a(f"{Latt}:")
    a("s_barrier")
    if not PST: stamp(a, 3)
    a("s_and_b32 s43, s36, 1")
    a("s_lshr_b32 s44, s36, 1")
    a("s_and_b32 s44, s44, 1")
    a("s_lshr_b32 s45, s36, 2")
    a("v_lshlrev_b32 v14, 2, v13")
    a("v_sub_u32 v14, v12, v14")
    for r in range(4):
        a(f"v_subrev_u32 v15, {r}, v14")
        a(f"v_cmp_ge_u32 s[{52+2*r}:{53+2*r}], 7, v15")
        a(f"v_add_u32 v15, 16, v15")
        a(f"v_cmp_ge_u32 s[{84+2*r}:{85+2*r}], 7, v15")
    a("s_lshl_b32 s46, s45, 6")
    a("s_add_u32 s46, s46, s44")
    a("s_add_u32 s46, s46, 16")
    a("v_lshl_add_u32 v14, v12, 1, s46")
    a("s_lshl_b32 s47, s43, 6")
    a("v_lshl_add_u32 v15, v13, 4, s47")
    a(f"v_mad_u32_u24 v2, v14, s60, v15") if False else None
    a(f"v_mul_u32_u24 v2, {QP}, v14")
    a("v_add_u32 v2, v2, v15")
    a("v_subrev_u32 v16, 32, v14")
    a("v_max_i32 v16, 0, v16")
    a(f"v_mul_u32_u24 v3, {QP}, v16")
    a("v_add_u32 v3, v3, v15")
    a("v_lshrrev_b32 v16, 2, v12")
    a("v_lshl_add_u32 v16, v13, 2, v16")
    a("v_lshl_add_u32 v16, v16, 1, s46")
    a("v_and_b32 v17, 3, v1")
    a("v_lshl_add_u32 v17, v17, 3, s47")
    a(f"v_mul_u32_u24 v4, {QP}, v16")
    a("v_add_u32 v4, v4, v17")
    a("v_subrev_u32 v16, 32, v16")
    a("v_max_i32 v16, 0, v16")
    a(f"v_mul_u32_u24 v5, {QP}, v16")
    a("v_add_u32 v5, v5, v17")
    a("v_subrev_u32 v16, 16, v14")
    a("v_lshlrev_b32 v16, 11, v16")
    a("v_lshl_add_u32 v16, v13, 3, v16")
    a("v_add_u32 v6, s47, v16")
    a("v_add_u32 v7, 0x10000, v6")
    a("v_mov_b32 v8, 0xff800000")
    CS = (32 ** -0.5) * 1.4426950408889634
    a(f"s_mov_b32 s61, {fh(CS)}")
    a("s_or_b32 s62, s34, s45")
    U = 32*QP
    for u in range(2):
        B = 32 + 48*u
        uo = u*U
        a(f"ds_read_b128 v[{B}:{B+3}], v2 offset:{QKV + uo}")
        a(f"ds_read_b128 v[{B+4}:{B+7}], v2 offset:{QKV + uo + 128}")
        if u == 0: a(f"ds_read_b128 v[{B+8}:{B+11}], v3 offset:{QKV + 128}")
        else: a(f"ds_read_b128 v[{B+8}:{B+11}], v2 offset:{QKV + 128}")
        for dh in range(2):
            if u == 0: a(f"ds_read_b64_tr_b16 v[{B+12+4*dh}:{B+13+4*dh}], v5 offset:{QKV + 256 + dh*32}")
            else: a(f"ds_read_b64_tr_b16 v[{B+12+4*dh}:{B+13+4*dh}], v4 offset:{QKV + 256 + dh*32}")
            a(f"ds_read_b64_tr_b16 v[{B+14+4*dh}:{B+15+4*dh}], v4 offset:{QKV + uo + 256 + dh*32}")
    for u in range(2):
        B = 32 + 48*u
        a(f"s_waitcnt lgkmcnt({11 if u == 0 else 4})")
        a(f"v_mfma_f32_16x16x32_bf16 v[{B+20}:{B+23}], v[{B+8}:{B+11}], v[{B}:{B+3}], 0")
        a(f"v_mfma_f32_16x16x32_bf16 v[{B+24}:{B+27}], v[{B+4}:{B+7}], v[{B}:{B+3}], 0")
    a("s_nop 4")
    for u in range(2):
        B = 32 + 48*u
        S = B + 20
        if u == 0:
            a("s_cmp_lg_u32 s62, 0")
            for r in range(4): a(f"s_cselect_b64 s[{92}:{93}], s[{84+2*r}:{85+2*r}], 0\nv_cndmask_b32 v{S+r}, v8, v{S+r}, s[92:93]")
        else:
            for r in range(4): a(f"v_cndmask_b32 v{S+r}, v8, v{S+r}, s[{84+2*r}:{85+2*r}]")
        for r in range(4): a(f"v_cndmask_b32 v{S+4+r}, v8, v{S+4+r}, s[{52+2*r}:{53+2*r}]")
        M = B + 28; T = B + 29
        a(f"v_max3_f32 v{M}, v{S}, v{S+1}, v{S+2}")
        a(f"v_max3_f32 v{M}, v{M}, v{S+3}, v{S+4}")
        a(f"v_max3_f32 v{M}, v{M}, v{S+5}, v{S+6}")
        a(f"v_max_f32 v{M}, v{M}, v{S+7}")
        for sw in ("32", "16"):
            a(f"v_mov_b32 v{T}, v{M}")
            a("s_nop 1")
            a(f"v_permlane{sw}_swap_b32 v{M}, v{T}")
            a(f"v_max_f32 v{M}, v{M}, v{T}")
        a(f"v_mul_f32 v{M}, s61, v{M}")
        for r in range(8): a(f"v_fma_f32 v{S+r}, v{S+r}, s61, -v{M}")
        for r in range(8): a(f"v_exp_f32 v{S+r}, v{S+r}")
        a("s_nop 0")
        a(f"v_add_f32 v{M}, v{S}, v{S+1}")
        for r in range(2, 8): a(f"v_add_f32 v{M}, v{M}, v{S+r}")
        P = B + 32
        for q in range(4): a(f"v_cvt_pk_bf16_f32 v{P+q}, v{S+2*q}, v{S+2*q+1}")
        for sw in ("32", "16"):
            a(f"v_mov_b32 v{T}, v{M}")
            a("s_nop 1")
            a(f"v_permlane{sw}_swap_b32 v{M}, v{T}")
            a(f"v_add_f32 v{M}, v{M}, v{T}")
        a(f"v_rcp_f32 v{M}, v{M}")
        a("s_waitcnt lgkmcnt(0)")
        O = B + 36
        for dh in range(2):
            a(f"v_mfma_f32_16x16x32_bf16 v[{O+4*dh}:{O+4*dh+3}], v[{B+12+4*dh}:{B+15+4*dh}], v[{P}:{P+3}], 0")
    a("v_subrev_u32 v16, 16, v14")
    a("v_mul_u32_u24 v16, 144, v16")
    a("v_lshl_add_u32 v16, v13, 3, v16")
    a(f"s_add_u32 s43, s47, {OST}")
    a("v_add_u32 v6, s43, v16")
    a("v_lshrrev_b32 v16, 3, v1")
    a("s_lshl_b32 s43, s36, 4")
    a("v_add_u32 v16, s43, v16")
    a("v_and_b32 v17, 7, v1")
    a("v_mul_u32_u24 v7, 144, v16")
    a("v_lshl_add_u32 v7, v17, 4, v7")
    a(f"v_add_u32 v7, {OST}, v7")
    a(f"v_lshlrev_b32 v9, {7 if TM else 11}, v16")
    a("v_lshl_add_u32 v9, v17, 4, v9")
    for u in range(2):
        B = 32 + 48*u
        M = B + 28; O = B + 36
        for dh in range(2):
            for r in range(4): a(f"v_mul_f32 v{O+4*dh+r}, v{M}, v{O+4*dh+r}")
            a(f"v_cvt_pk_bf16_f32 v{O+4*dh}, v{O+4*dh}, v{O+4*dh+1}")
            a(f"v_cvt_pk_bf16_f32 v{O+4*dh+1}, v{O+4*dh+2}, v{O+4*dh+3}")
            a(f"ds_write_b64 v6, v[{O+4*dh}:{O+4*dh+1}] offset:{u*32*144 + dh*32}")
    a("s_waitcnt lgkmcnt(0)")
    a("s_barrier")
    for i in range(2):
        a(f"ds_read_b128 v[{32+4*i}:{32+4*i+3}], v7 offset:{i*8*144}")
    a(f"s_movk_i32 s43, {1024 if TM else 0x4000}")
    a("s_waitcnt lgkmcnt(1)")
    a(f"buffer_store_dwordx4 v[32:35], v9, s[16:19], 0 offen{SF}")
    a("s_waitcnt lgkmcnt(0)")
    a(f"buffer_store_dwordx4 v[36:39], v9, s[16:19], s43 offen{SF}")
    if STAMP:
        a("s_waitcnt vmcnt(0)")
        if not PST: stamp(a, 4)
        stamp_flush(a, 5, 36)
    if last:
        a(f"s_branch {Ld}")
    else:
        a("s_waitcnt vmcnt(0)")
        a("s_barrier")
        Ls = a.label("Lsig")
        a("s_cmp_lg_u32 s36, 0")
        a(f"s_cbranch_scc1 {Ls}")
        flag_srd(a, 56)
        flag_signal(a, 56, signal, 34)
        a(f"{Ls}:")
```

```python
import os
from common import *

NSX = int(os.environ.get("K3_NSX", "3"))
XSLOT = 32768
WIMG = 14336
WUP = WIMG + 16
WSLOT = 28704
WBASE = NSX * XSLOT
STATS = WBASE + 2*WSLOT
CSF = STATS + 2048
LDS_K3 = CSF + 1024
CSP = 0
STG = 20480

def early_w(a):
    a(f"s_load_dwordx4 s[72:75], s[0:1], {KA_WG}")
    a("s_bfe_u32 s43, s2, 0x20001")
    a("s_lshl_b32 s43, s43, 3")
    a("s_lshr_b32 s44, s2, 5")
    a("s_add_u32 s43, s43, s44")
    a("s_mul_i32 s43, s43, 224")
    a("s_waitcnt lgkmcnt(0)")
    srd(a, 64, 72, 1023*7168 + 224, add_lo=43)
    srd(a, 68, 74, 1023*7168 + 224, add_lo=43)
    Le = a.label("Lew")
    for rep in range(2):
        a(f"s_add_u32 s44, s36, {4*rep - 4}")
        if rep == 1:
            a("s_cmp_ge_u32 s44, 7")
            a(f"s_cbranch_scc1 {Le}")
        a("s_lshl_b32 s43, s44, 6")
        a("v_add_u32 v12, s43, v1")
        a("v_mul_u32_u24 v13, 4682, v12")
        a("v_lshrrev_b32 v13, 16, v13")
        a("v_mul_u32_u24 v14, 14, v13")
        a("v_sub_u32 v14, v12, v14")
        a("v_and_b32 v15, 0x13, v13")
        a("v_bfe_u32 v16, v13, 2, 1")
        a("v_bfe_u32 v17, v13, 3, 1")
        a("v_lshl_add_u32 v15, v16, 3, v15")
        a("v_lshl_add_u32 v15, v17, 2, v15")
        a("v_mul_u32_u24 v15, 7168, v15")
        a(f"v_lshl_add_u32 v{10+rep}, v14, 4, v15")
        a("s_lshl_b32 s44, s44, 10")
        a(f"s_add_u32 s44, s44, {WBASE}")
        for st in range(2):
            for (img, half) in ((0,0), (1,0), (0,1), (1,1)):
                a(f"s_add_u32 m0, s44, {st*WSLOT + img*WUP + half*7168}")
                a(f"s_mov_b32 s43, {(st*64 + half*32)*7168}")
                a(f"buffer_load_dwordx4 v{10+rep}, s[{64+4*img}:{67+4*img}], s43 offen lds")
    a(f"{Le}:")

EARLYW = os.environ.get("EARLYW", "1") == "1"
VGPR_K3 = 240
AG = os.environ.get("K3_AGPR", "0") == "1"
def phase_k3(a, Ld, wait=None, signal=None, last=True, cspre=False):
    strip = os.environ.get("K3_STRIP", "")
    nst = 16
    XF = " sc1" if wait else ""
    SF = " sc1" if signal is not None else ""
    stamp(a, 0)
    a(f"s_load_dwordx2 s[32:33], s[0:1], {KA_WS}")
    a(f"s_load_dwordx4 s[4:7], s[0:1], {KA_WG}")
    a("s_and_b32 s3, s2, 7")
    a("s_lshr_b32 s42, s2, 3")
    a("s_and_b32 s34, s3, 1")
    a("s_lshl_b32 s34, s34, 2")
    a("s_and_b32 s48, s42, 3")
    a("s_add_u32 s34, s34, s48")
    a("s_lshr_b32 s35, s3, 1")
    a("s_lshr_b32 s49, s42, 2")
    if os.environ.get("NSPREAD3", "0") == "1":
        a("s_lshl_b32 s43, s49, 2")
        a("s_add_u32 s35, s35, s43")
    else:
        a("s_lshl_b32 s35, s35, 3")
        a("s_add_u32 s35, s35, s49")
    a("v_lshrrev_b32 v12, 6, v0")
    a("v_and_b32 v1, 63, v0")
    a("v_readfirstlane_b32 s36, v12")
    a("s_mul_i32 s43, s35, 224")
    a(f"s_lshl_b32 s44, s34, {15 if TM else 19}")
    a("s_lshl_b32 s45, s34, 15")
    a("s_mul_i32 s46, s34, %d" % (256*7168))
    a("s_add_u32 s46, s46, s43")
    a("s_waitcnt lgkmcnt(0)")
    srd(a, 8, 32, (15*262144 + 32768) if TM else 256*2048, add_lo=44, add_imm=WS_H)
    srd(a, 12, 4, 1023*7168 + 224, add_lo=43)
    srd(a, 16, 6, 1023*7168 + 224, add_lo=43)
    srd(a, 20, 32, 256*128, add_lo=45, add_imm=WS_ST2)
    if TMH:
        a("s_lshl_b32 s46, s34, 15")
        srd(a, 24, 32, 55*262144 + 32768, add_lo=46, add_imm=WS_HH)
    else:
        srd(a, 24, 32, 255*7168 + 224, add_lo=46, add_imm=WS_HH)
    a("s_and_b32 s47, s36, 1")
    a("s_lshr_b32 s46, s36, 1")
    CSPRE = cspre
    if wait or signal is not None: flag_srd(a, 60)
    a("v_lshrrev_b32 v12, 3, v1")
    a("v_and_b32 v13, 7, v1")
    a("v_lshrrev_b32 v14, 1, v12")
    a("v_xor_b32 v14, v13, v14")
    a("v_lshlrev_b32 v14, 4, v14")
    XP = 7 if TM else 11
    XADV = 262144 if TM else 128
    a(f"v_lshl_add_u32 v14, v12, {XP}, v14")
    a(f"s_lshl_b32 s43, s36, {XP+5}")
    a("v_add_u32 v2, s43, v14")
    a("v_xor_b32 v3, 64, v2")
    a(f"v_add_u32 v3, {8 << XP}, v3")
    a(f"v_add_u32 v4, {16 << XP}, v2")
    a(f"v_add_u32 v5, {16 << XP}, v3")
    a("s_lshl_b32 s43, s36, 6")
    a("v_add_u32 v12, s43, v1")
    a("v_mul_u32_u24 v13, 4682, v12")
    a("v_lshrrev_b32 v13, 16, v13")
    a("v_mul_u32_u24 v14, 14, v13")
    a("v_sub_u32 v14, v12, v14")
    a("v_and_b32 v15, 0x13, v13")
    a("v_bfe_u32 v16, v13, 2, 1")
    a("v_bfe_u32 v17, v13, 3, 1")
    a("v_lshl_add_u32 v15, v16, 3, v15")
    a("v_lshl_add_u32 v15, v17, 2, v15")
    a("v_mul_u32_u24 v15, 7168, v15")
    a("v_lshl_add_u32 v6, v14, 4, v15")
    a("s_lshl_b32 s39, s36, 12")
    a("s_lshl_b32 s40, s36, 10")
    a(f"s_add_u32 s40, s40, {WBASE}")
    a("s_cmp_lt_u32 s36, 7")
    a("s_cselect_b32 s50, 1, 0")
    BASE = [0]
    a("s_mov_b32 s54, 0")
    a("s_mov_b32 s55, 0")
    def dmaX(s):
        slot = s % NSX
        g = []
        for i in range(4):
            g.append([f"s_add_u32 m0, s39, {slot*XSLOT + i*1024}", f"s_add_u32 s37, s54, {(s-BASE[0])*XADV}",
                      f"buffer_load_dwordx4 v{2+i}, s[8:11], s37 offen{XF} lds"])
        return g
    def dmaW(s):
        slot = s % 2
        L = a.label("Lnw")
        g = []
        for i, (img, half) in enumerate(((0,0), (1,0), (0,1), (1,1))):
            sr = "s[12:15]" if img == 0 else "s[16:19]"
            g.append([f"s_add_u32 m0, s40, {slot*WSLOT + img*WUP + half*7168}", f"s_add_u32 s38, s55, {((s-BASE[0])*64 + half*32)*7168}",
                      f"buffer_load_dwordx4 v6, {sr}, s38 offen lds"])
        return g
    def emitW(s):
        L = a.label("Lnw")
        a("s_cmp_eq_u32 s50, 0")
        a(f"s_cbranch_scc1 {L}")
        for g in dmaW(s):
            for i in g: a(i)
        a(f"{L}:")
    def emitX(s):
        for g in dmaX(s):
            for i in g: a(i)
    if wait:
        if not EARLYW:
            emitW(0); emitW(1)
    else:
        emitW(0); emitX(0)
    a("v_and_b32 v12, 15, v1")
    a("v_lshrrev_b32 v13, 4, v1")
    a("v_lshrrev_b32 v16, 1, v12")
    a("v_xor_b32 v15, v13, v16")
    a("v_lshlrev_b32 v15, 4, v15")
    a("v_lshl_add_u32 v15, v12, 7, v15")
    a("s_lshl_b32 s43, s46, 13")
    a("v_add_u32 v8, s43, v15")
    a("v_xor_b32 v9, 64, v8")
    a("v_add_u32 v10, 0x10000, v8")
    a("v_add_u32 v11, 0x10000, v9")
    a("v_lshrrev_b32 v15, 2, v12")
    a("v_and_b32 v16, 3, v1")
    a("v_lshrrev_b32 v17, 1, v13")
    a("v_lshl_add_u32 v15, v17, 4, v15")
    a("v_and_b32 v17, 1, v13")
    a("v_lshl_add_u32 v15, v17, 2, v15")
    a("v_mul_u32_u24 v15, 224, v15")
    a("v_lshrrev_b32 v17, 1, v16")
    a(f"v_mul_u32_u24 v17, {WUP}, v17")
    a("v_and_b32 v16, 1, v16")
    a("v_lshl_add_u32 v15, v16, 3, v15")
    a("s_mul_i32 s43, s47, 112")
    a(f"s_add_u32 s43, s43, {WBASE}")
    a("v_add3_u32 v7, v15, v17, s43")
    ACC = 128
    K3PD = int(os.environ.get("K3_PD", "6"))
    a("v_min_u32 v14, 5, v1")
    a("v_mul_u32_u24 v15, 21846, v14")
    a("v_lshrrev_b32 v15, 16, v15")
    a("v_mul_u32_u24 v16, 3, v15")
    a("v_sub_u32 v16, v14, v16")
    a("v_mul_u32_u24 v16, 108, v16")
    a("s_lshl_b32 s43, s48, 4")
    a("s_lshl_b32 s44, s36, 1")
    a("s_add_u32 s43, s43, s44")
    a("v_add_u32 v15, s43, v15")
    a("v_mul_u32_u24 v15, 7168, v15")
    a("v_add_u32 v30, v15, v16")
    def pf1(st):
        if os.environ.get("K3_NOPF"): st = 100
        a(f"s_add_u32 s38, s55, {(st-BASE[0])*64*7168}")
        a("buffer_load_dword v29, v30, s[12:15], s38 offen")
        a("buffer_load_dword v29, v30, s[16:19], s38 offen")
    LATE = bool(wait) and NSX == 3 and os.environ.get("K3_LATE", "1") == "1"
    a(f"v_lshlrev_b32 v28, {4 if LATE else 6}, v0")
    def stats_loads(force=False):
        if LATE and not force: return
        for i in range(4):
            if LATE:
                a(f"s_mov_b32 s43, {i*8192}")
                a(f"buffer_load_dwordx4 v[{12+4*i}:{12+4*i+3}], v28, s[20:23], s43 offen{XF}")
            else:
                a(f"buffer_load_dwordx4 v[{12+4*i}:{12+4*i+3}], v28, s[20:23], 0 offen offset:{16*i}{XF}")
    if wait:
        for st in range(2, K3PD-1): pf1(st)
        for i in range(112): a(f"v_accvgpr_write_b32 a{i}, 0" if AG else f"v_mov_b32 v{ACC+i}, 0")
        Lnp = a.label("Lnp")
        a("s_cmp_lg_u32 s36, 7")
        a(f"s_cbranch_scc1 {Lnp}")
        flag_poll(a, 60, 'h', 34, v=12)
        if CSPRE:
            a("s_lshr_b32 s43, s2, 1")
            a("s_cmp_ge_u32 s43, 112")
            a(f"s_cbranch_scc1 {Lnp}")
            a("s_mov_b32 s44, 0")
            flag_signal(a, 60, "cs", 44, v=12)
        a(f"{Lnp}:")
        a("s_barrier")
        if os.environ.get("STAMP3"): stamp(a, 3)
        emitX(0); stats_loads()
        for s in range(1, NSX): emitX(s)
        pf1(K3PD-1)
    else:
        stats_loads()
        for i in range(112): a(f"v_accvgpr_write_b32 a{i}, 0" if AG else f"v_mov_b32 v{ACC+i}, 0")
        for st in range(2, K3PD-1): pf1(st)
        emitW(1)
        for s in range(1, NSX): emitX(s)
        pf1(K3PD-1)
    NPF0 = 2*(K3PD-2)
    def ln2_stats_late():
        for q in range(4):
            b = 12 + 4*q
            a(f"v_add_f32 v{b}, v{b}, v{b+2}")
            a(f"v_add_f32 v{b+1}, v{b+1}, v{b+3}")
        for dpp in ("quad_perm:[1,0,3,2]", "quad_perm:[2,3,0,1]", "row_half_mirror"):
            for q in range(4):
                b = 12 + 4*q
                a(f"v_add_f32_dpp v{b}, v{b}, v{b} {dpp} row_mask:0xf bank_mask:0xf")
                a(f"v_add_f32_dpp v{b+1}, v{b+1}, v{b+1} {dpp} row_mask:0xf bank_mask:0xf")
        a("v_lshrrev_b32 v28, 3, v0")
        a("v_lshlrev_b32 v28, 3, v28")
        a(f"v_add_u32 v28, {STATS}, v28")
        for q in range(4):
            b = 12 + 4*q
            a(f"v_mul_f32 v{b}, 0x3a800000, v{b}")
            a(f"v_mul_f32 v{b+1}, 0x3a800000, v{b+1}")
            a(f"v_fma_f32 v{b+1}, -v{b}, v{b}, v{b+1}")
            a(f"v_max_f32 v{b+1}, 0, v{b+1}")
            a(f"v_add_f32 v{b+1}, 0x3727c5ac, v{b+1}")
            a(f"v_rsq_f32 v{b+1}, v{b+1}")
        a("s_nop 0")
        for q in range(4):
            b = 12 + 4*q
            a(f"ds_write_b64 v28, v[{b}:{b+1}] offset:{q*512}")
    def ln2_stats():
        a("v_add_f32 v12, v12, v14")
        a("v_add_f32 v13, v13, v15")
        for i in range(2, 8):
            a(f"v_add_f32 v12, v12, v{12+2*i}")
            a(f"v_add_f32 v13, v13, v{13+2*i}")
        a("s_nop 1")
        a("v_add_f32_dpp v14, v12, v12 quad_perm:[1,0,3,2] row_mask:0xf bank_mask:0xf")
        a("v_add_f32_dpp v15, v13, v13 quad_perm:[1,0,3,2] row_mask:0xf bank_mask:0xf")
        a("v_mul_f32 v14, 0x3a800000, v14")
        a("v_mul_f32 v15, 0x3a800000, v15")
        a("v_fma_f32 v15, -v14, v14, v15")
        a("v_max_f32 v15, 0, v15")
        a("v_add_f32 v15, 0x3727c5ac, v15")
        a("v_rsq_f32 v15, v15")
        a("v_lshrrev_b32 v12, 1, v0")
        a("v_lshlrev_b32 v12, 3, v12")
        a(f"v_add_u32 v12, {STATS}, v12")
        a(f"ds_write_b64 v12, v[14:15]")
    if CSPRE:
        pass
    else:
        for i in range(7): a(f"v_mov_b32 v{120+i}, 0")
        a("s_mov_b32 s51, 0x3f803f80")
    if wait:
        a(f"s_waitcnt vmcnt({(0 if LATE else 4) + 4*(NSX-1) + 2}) lgkmcnt(0)")
    else:
        L7 = a.label("L7"); L7e = a.label("L7e")
        a("s_cmp_eq_u32 s50, 0")
        a(f"s_cbranch_scc1 {L7}")
        a(f"s_waitcnt vmcnt({8 + 4*(NSX-1) + NPF0}) lgkmcnt(0)")
        a(f"s_branch {L7e}")
        a(f"{L7}:")
        a(f"s_waitcnt vmcnt({4 + 4*(NSX-1) + NPF0}) lgkmcnt(0)")
        a(f"{L7e}:")
    a("s_barrier")
    stamp(a, 1)
    SET = [32, 76]
    def reads(s, kk, base):
        xs = s % NSX
        xb = (8 + kk) if xs < 2 else (10 + kk)
        xo = (xs % 2) * XSLOT
        wo = (s % 2)*WSLOT + kk*7168
        def xr(mt): return f"ds_read_b128 v[{base+4*mt}:{base+4*mt+3}], v{xb} offset:{xo + mt*2048}"
        def wr(t, h): return f"ds_read_b64_tr_b16 v[{base+16+4*t+2*h}:{base+16+4*t+2*h+1}], v7 offset:{wo + h*1792 + t*16}"
        r = [xr(0), wr(0,0), wr(0,1), xr(1), xr(2), xr(3)]
        for t in range(1, 7): r += [wr(t,0), wr(t,1)]
        return r
    def mfmas(base):
        r = []
        for t in range(7):
            for mt in range(4):
                acc = ACC + (t*4+mt)*4
                if AG: r.append(f"v_mfma_f32_16x16x32_bf16 a[{acc-128}:{acc-125}], v[{base+16+4*t}:{base+16+4*t+3}], v[{base+4*mt}:{base+4*mt+3}], a[{acc-128}:{acc-125}]")
                else: r.append(f"v_mfma_f32_16x16x32_bf16 v[{acc}:{acc+3}], v[{base+16+4*t}:{base+16+4*t+3}], v[{base+4*mt}:{base+4*mt+3}], v[{acc}:{acc+3}]")
        return r
    def colsum(step, base):
        if "c" in strip or CSPRE: return
        L = a.label("Lcs")
        a(f"s_cmp_lg_u32 s46, {step & 3}")
        a(f"s_cbranch_scc1 {L}")
        for j in range(4):
            for t in range(7):
                a(f"v_dot2_f32_bf16 v{120+t}, v{base+16+4*t+j}, s51, v{120+t}")
        a(f"{L}:")
    def mpf():
        if os.environ.get("K3_MPF", "1") == "1":
            Lm = a.label("Lmpf")
            a("s_cmp_ge_u32 s36, 4")
            a(f"s_cbranch_scc1 {Lm}")
            a(f"s_load_dwordx2 s[28:29], s[0:1], {KA_WD}")
            a("v_lshlrev_b32 v31, 7, v1")
            a("s_mul_i32 s43, s2, 28672")
            a("s_lshl_b32 s44, s36, 13")
            a("s_add_u32 s43, s43, s44")
            a("v_add_u32 v31, s43, v31")
            a("s_waitcnt lgkmcnt(0)")
            srd(a, 56, 28, 7340032)
            a("buffer_load_dword v29, v31, s[56:59], 0 offen")
            a(f"{Lm}:")
        if not last and os.environ.get("X34", "0") == "1":
            Lm = a.label("Lmpf")
            a("s_cmp_lg_u32 s36, 7")
            a(f"s_cbranch_scc1 {Lm}")
            pf_g2_w(a, KA_WD, 3584, list(range(int(os.environ.get("X34_N", "2")))), 84, 31, 29)
            a(f"{Lm}:")
    def emit(seq):
        for i in seq:
            if "m" in strip and i.startswith("v_mfma"): continue
            if "r" in strip and i.startswith("ds_read"): continue
            if "d" in strip and i.startswith("buffer_load"): continue
            a(i)
    for i in reads(0, 0, SET[0]): a(i)
    TAIL0 = [0]
    def stage(s, nout, inloop):
        a("s_waitcnt lgkmcnt(0)")
        m = mfmas(SET[0]); rd = reads(s, 1, SET[1])
        emit(interleave(m, rd, 0, 1))
        colsum(2*s, SET[0])
        lastst = (s == nst-1)
        if lastst:
            if LATE:
                a("s_waitcnt vmcnt(0)")
                ln2_stats_late()
            a("s_waitcnt lgkmcnt(0)")
        else: a(f"s_waitcnt vmcnt({nout}) lgkmcnt(0)")
        a("s_barrier")
        if not LATE and s == (TAIL0[0] if CSPRE else nst-2): ln2_stats()
        m = mfmas(SET[1])
        rd = [] if lastst else reads(s+1, 0, SET[0])
        seq = interleave(m[:20], rd, 0, 1)
        if s + 2 < nst:
            emit(seq[:8]); seq = seq[8:]
            if "d" not in strip: emitW(s+2)
        xg = dmaX(s+NSX) if s + NSX < nst else []
        out = list(seq)
        for i, mm in enumerate(m[20:]):
            out.append(mm)
            if i % 2 == 0 and i//2 < len(xg): out.extend(xg[i//2])
        emit(out)
        if inloop: pf1(s + K3PD)
        if not last and not inloop and s == TAIL0[0]: mpf()
        colsum(2*s+1, SET[1])
        CG = nst-4 if LATE else nst-3
        if CSPRE and not inloop and s in (CG, CG+1):
            Lg = a.label("Lcsg")
            a("s_cmp_lg_u32 s36, 7")
            a(f"s_cbranch_scc1 {Lg}")
            if s == CG:
                a("s_mov_b32 s44, 0")
                flag_poll(a, 60, "cs", 44, v=12)
                a("v_min_u32 v12, 55, v1")
                a("v_cmp_le_u32 vcc, 28, v12")
                a("v_subrev_u32 v13, 28, v12")
                a("s_mul_i32 s43, s35, 448")
                a("v_cndmask_b32 v13, v12, v13, vcc")
                a("v_mov_b32 v14, 0")
                a("v_mov_b32 v15, 14336")
                a("v_cndmask_b32 v14, v14, v15, vcc")
                a("v_lshl_add_u32 v14, v13, 4, v14")
                a("v_add_u32 v14, s43, v14")
                a("v_lshrrev_b32 v15, 1, v13")
                a("v_and_b32 v13, 1, v13")
                a("v_lshlrev_b32 v15, 6, v15")
                a("v_lshl_add_u32 v15, v13, 4, v15")
                a("v_mov_b32 v13, 0")
                a("v_mov_b32 v12, 32")
                a("v_cndmask_b32 v13, v13, v12, vcc")
                a("v_add_u32 v15, v15, v13")
                a(f"v_add_u32 v31, {CSF}, v15")
                srd(a, 84, 32, 8*14336, add_imm=WS_CS)
                for q in range(4):
                    a(f"s_mov_b32 s43, {q*28672}")
                    a(f"buffer_load_dwordx4 v[{16+4*q if q < 3 else 120}:{19+4*q if q < 3 else 123}], v14, s[84:87], s43 offen sc1")
            elif s == CG+1:
                a("s_waitcnt vmcnt(0)")
                for r in range(4):
                    a(f"v_add_f32 v{16+r}, v{16+r}, v{20+r}")
                    a(f"v_add_f32 v{24+r}, v{24+r}, v{120+r}")
                for r in range(4): a(f"v_add_f32 v{16+r}, v{16+r}, v{24+r}")
                a("ds_write_b128 v31, v[16:19]")
                a("s_waitcnt lgkmcnt(0)")
            a(f"{Lg}:")
        if LATE and not inloop and s == nst-3: stats_loads(force=True)
    P = 2 if NSX == 2 else 6
    nloop = (nst - NSX) // P
    TAIL0[0] = nloop*P
    a(f"s_mov_b32 s41, {nloop}")
    Ll = a.label("Lk3")
    a(f"{Ll}:")
    for s in range(P): stage(s, 4*(NSX-2) + 2, True)
    a(f"s_add_u32 s54, s54, {P*XADV}")
    a(f"s_add_u32 s55, s55, {P*64*7168}")
    a("s_sub_u32 s41, s41, 1")
    a("s_cmp_lg_u32 s41, 0")
    a(f"s_cbranch_scc1 {Ll}")
    BASE[0] = nloop*P
    for s in range(nloop*P, nst):
        nout = (4 if (NSX == 3 and s+2 < nst) else 0) + (2 if s == nloop*P else 0)
        stage(s, nout, False)
    stamp(a, 2)
    if last: mpf()
    a("v_and_b32 v12, 15, v1")
    a("v_lshrrev_b32 v13, 4, v1")
    if not CSPRE:
        a("v_lshlrev_b32 v14, 6, v12")
        a("v_lshl_add_u32 v14, v13, 2, v14")
        a("s_mul_i32 s43, s47, 7168")
        a("s_lshl_b32 s44, s46, 4")
        a("s_add_u32 s43, s43, s44")
        a("v_add_u32 v14, s43, v14")
        for t in range(7):
            a(f"ds_write_b32 v14, v{120+t} offset:{CSP + t*1024}")
        a("s_waitcnt lgkmcnt(0)")
        a("s_barrier")
        Lc = a.label("Lc")
        a("v_cmp_gt_u32 vcc, 224, v0")
        a("s_and_saveexec_b64 s[52:53], vcc")
        a(f"s_cbranch_execz {Lc}")
        a("v_lshlrev_b32 v14, 6, v0")
        for i in range(4):
            a(f"ds_read_b128 v[{32+4*i}:{32+4*i+3}], v14 offset:{CSP + 16*i}")
        a("s_waitcnt lgkmcnt(0)")
        for i in range(1, 16):
            a(f"v_add_f32 v32, v32, v{32+i}")
        a("v_lshlrev_b32 v14, 2, v0")
        a(f"v_add_u32 v14, {CSF}, v14")
        a(f"ds_write_b32 v14, v32")
        a("s_waitcnt lgkmcnt(0)")
        a(f"{Lc}:")
        a("s_mov_b64 exec, s[52:53]")
        a("s_barrier")
    a("s_lshl_b32 s43, s46, 9")
    a(f"s_add_u32 s43, s43, {STATS}")
    a("v_lshl_add_u32 v15, v12, 3, s43")
    for mt in range(4):
        a(f"ds_read_b64 v[{16+2*mt}:{17+2*mt}], v15 offset:{mt*128}")
    a("s_mul_i32 s43, s47, 448")
    a(f"s_add_u32 s43, s43, {CSF}")
    a("v_lshl_add_u32 v14, v13, 4, s43")
    for t in range(7):
        a(f"ds_read_b128 v[{32+4*t}:{32+4*t+3}], v14 offset:{t*64}")
    a("s_waitcnt lgkmcnt(7)")
    C0 = -2.0*0.7978845608028654*1.4426950408889634
    C1 = C0*0.044715
    import struct
    def fh(x): return "0x%08x" % struct.unpack("<I", struct.pack("<f", x))[0]
    a("v_cmp_gt_u32 vcc, 32, v1")
    a("s_nop 1")
    for p in range(2):
        ra, rb = 17+4*p, 19+4*p
        a(f"v_cndmask_b32 v24, v{rb}, v{ra}, vcc")
        a("v_mul_f32 v25, v24, v24")
        a(f"v_mul_f32 v{64+3*p}, {fh(C0)}, v24")
        a(f"v_mul_f32 v26, {fh(C1)}, v24")
        a(f"v_mul_f32 v{65+3*p}, v26, v25")
        a(f"v_rcp_f32 v{66+3*p}, v25")
    WGS = TMH and os.environ.get("K3_WGS", "1") == "1"
    if WGS:
        RP = 240
        a("v_lshrrev_b32 v24, 5, v1")
        a("v_lshl_add_u32 v24, v24, 4, v12")
        a("s_lshl_b32 s43, s46, 6")
        a("v_add_u32 v24, s43, v24")
        a(f"v_mul_u32_u24 v24, {RP}, v24")
        a("v_and_b32 v25, 1, v13")
        a("v_lshl_add_u32 v24, v25, 3, v24")
        a("s_mul_i32 s43, s47, 112")
        a(f"s_add_u32 s43, s43, {STG}")
        a("v_add_u32 v27, s43, v24")
        a("s_mul_i32 s45, s35, 14")
        a("s_sub_u32 s52, 0, s45")
        a("s_and_b32 s52, s52, 7")
        CH = os.environ.get("K3_CH", "1") == "1"
        if CH:
            a("s_lshl_b32 s44, s46, 6")
            a("s_lshl_b32 s53, s47, 4")
            a("s_add_u32 s44, s44, s53")
            for i in range(4):
                if i < 2:
                    a("v_lshrrev_b32 v25, 3, v1")
                    a(f"v_add_u32 v25, {8*i}, v25")
                    a("v_and_b32 v26, 7, v1")
                    a("v_add_u32 v26, s52, v26")
                else:
                    a(f"v_add_u32 v24, {64*(i-2)}, v1")
                    a("v_min_u32 v24, 95, v24")
                    a("v_mul_u32_u24 v25, 10923, v24")
                    a("v_lshrrev_b32 v25, 16, v25")
                    a("v_mul_u32_u24 v26, 6, v25")
                    a("v_sub_u32 v26, v24, v26")
                    a("v_add_u32 v24, 8, v26")
                    a("v_cmp_gt_u32 vcc, s52, v26")
                    a("s_nop 1")
                    a("v_cndmask_b32 v26, v24, v26, vcc")
                a("v_add_u32 v25, s44, v25")
                a(f"v_mul_u32_u24 v24, {RP}, v25")
                a("v_lshl_add_u32 v24, v26, 4, v24")
                a(f"v_add_u32 v{80+i}, {STG}, v24")
                a("v_add_u32 v26, s45, v26")
                a("v_lshrrev_b32 v24, 3, v26")
                a("v_lshlrev_b32 v24, 18, v24")
                a("v_and_b32 v26, 7, v26")
                a("v_lshl_add_u32 v24, v26, 4, v24")
                a(f"v_lshl_add_u32 v{88+i}, v25, 7, v24")
        else:
            a("s_lshl_b32 s44, s36, 5")
            for i in range(7):
                if i < 4:
                    a("v_lshrrev_b32 v25, 3, v1")
                    a(f"v_add_u32 v25, {8*i}, v25")
                    a("v_and_b32 v26, 7, v1")
                    a("v_add_u32 v26, s52, v26")
                else:
                    a(f"v_add_u32 v24, {64*(i-4)}, v1")
                    a("v_mul_u32_u24 v25, 10923, v24")
                    a("v_lshrrev_b32 v25, 16, v25")
                    a("v_mul_u32_u24 v26, 6, v25")
                    a("v_sub_u32 v26, v24, v26")
                    a("v_add_u32 v24, 8, v26")
                    a("v_cmp_gt_u32 vcc, s52, v26")
                    a("s_nop 1")
                    a("v_cndmask_b32 v26, v24, v26, vcc")
                a("v_add_u32 v25, s44, v25")
                a(f"v_mul_u32_u24 v24, {RP}, v25")
                a("v_lshl_add_u32 v24, v26, 4, v24")
                a(f"v_add_u32 v{80+i}, {STG}, v24")
                a("v_add_u32 v26, s45, v26")
                a("v_lshrrev_b32 v24, 3, v26")
                a("v_lshlrev_b32 v24, 18, v24")
                a("v_and_b32 v26, 7, v26")
                a("v_lshl_add_u32 v24, v26, 4, v24")
                a(f"v_lshl_add_u32 v{88+i}, v25, 7, v24")
        a("s_waitcnt lgkmcnt(0)")
        T = 72
        for p in range(2):
            for t in range(7):
                A0 = ACC + (t*4 + 2*p)*4; A1 = A0 + 4
                m0, m1 = 16+4*p, 18+4*p
                k0, k1, irs = 64+3*p, 65+3*p, 66+3*p
                for r in range(4):
                    a(f"v_fma_f32 v{A0+r}, -v{m0}, v{32+4*t+r}, v{A0+r}")
                    a(f"v_fma_f32 v{A1+r}, -v{m1}, v{32+4*t+r}, v{A1+r}")
                a("s_nop 0")
                for r in range(4):
                    a(f"v_permlane32_swap_b32 v{A0+r}, v{A1+r}")
                for r in range(4): a(f"v_mul_f32 v{T+r}, v{A0+r}, v{A0+r}")
                for r in range(4): a(f"v_fma_f32 v{T+r}, v{T+r}, v{k1}, v{k0}")
                for r in range(4): a(f"v_mul_f32 v{T+r}, v{T+r}, v{A0+r}")
                for r in range(4): a(f"v_exp_f32 v{T+r}, v{T+r}")
                for r in range(4): a(f"v_mul_f32 v{A1+r}, v{A0+r}, v{A1+r}")
                for r in range(4): a(f"v_fma_f32 v{T+r}, v{T+r}, v{irs}, v{irs}")
                for r in range(4): a(f"v_rcp_f32 v{T+r}, v{T+r}")
                a("s_nop 0")
                for r in range(4): a(f"v_mul_f32 v{A1+r}, v{A1+r}, v{T+r}")
                a(f"v_cvt_pk_bf16_f32 v{A0}, v{A1}, v{A1+1}")
                a(f"v_cvt_pk_bf16_f32 v{A0+1}, v{A1+2}, v{A1+3}")
                a(f"ds_write_b64 v27, v[{A0}:{A0+1}] offset:{p*32*RP + t*16}")
                if CH and p == 1 and t == 0:
                    a("s_waitcnt lgkmcnt(1)")
                    for i in range(4):
                        a(f"buffer_store_dwordx4 v[{96+4*i}:{96+4*i+3}], v{88+i}, s[24:27], 0 offen{SF}")
                    a("s_mov_b64 exec, -1")
            if CH:
                a("s_waitcnt lgkmcnt(0)")
                a("s_barrier")
                for i in range(4):
                    a(f"ds_read_b128 v[{96+16*p+4*i}:{96+16*p+4*i+3}], v{80+i} offset:{p*32*RP}")
        if not os.environ.get("STAMP3"): stamp(a, 3)
        if CH:
            a("s_movk_i32 s43, 4096")
            for i in range(4):
                a(f"s_waitcnt lgkmcnt({3-i})")
                a(f"buffer_store_dwordx4 v[{112+4*i}:{112+4*i+3}], v{88+i}, s[24:27], s43 offen{SF}")
            a("s_mov_b64 exec, -1")
        else:
          a("s_waitcnt lgkmcnt(0)")
          a("s_barrier")
        for i in range(0 if CH else 7):
            a(f"ds_read_b128 v[{96+4*i}:{96+4*i+3}], v{80+i}")
        for i in range(0 if CH else 7):
            a(f"s_waitcnt lgkmcnt({6-i})")
            a(f"buffer_store_dwordx4 v[{96+4*i}:{96+4*i+3}], v{88+i}, s[24:27], 0 offen{SF}")
    else:
        a("v_lshrrev_b32 v24, 5, v1")
        a("v_lshl_add_u32 v24, v24, 4, v12")
        a("v_mul_u32_u24 v24, 144, v24")
        a("v_and_b32 v25, 1, v13")
        a("v_lshl_add_u32 v24, v25, 3, v24")
        a("s_mul_i32 s43, s36, 9216")
        a(f"s_add_u32 s43, s43, {STG}")
        a("v_add_u32 v27, s43, v24")
        a("s_waitcnt lgkmcnt(0)")
        T = 72
        if TMH:
            a("s_lshl_b32 s44, s46, 13")
            a("s_mul_i32 s45, s35, 14")
            a("s_mul_i32 s52, s47, 7")
            a("s_add_u32 s45, s45, s52")
        else:
            a("s_lshl_b32 s44, s46, 6")
            a("s_mul_i32 s44, s44, 7168")
            a("s_mul_i32 s45, s47, 112")
            a("s_add_u32 s44, s44, s45")
        for i in range(7):
            a(f"v_add_u32 v24, {64*i}, v1")
            a("v_mul_u32_u24 v25, 9363, v24")
            a("v_lshrrev_b32 v25, 16, v25")
            a("v_mul_u32_u24 v26, 7, v25")
            a("v_sub_u32 v26, v24, v26")
            a("v_mul_u32_u24 v24, 144, v25")
            a("v_lshl_add_u32 v24, v26, 4, v24")
            a(f"v_add_u32 v{80+i}, s43, v24")
            if TMH:
                a("v_add_u32 v26, s45, v26")
                a("v_lshrrev_b32 v24, 3, v26")
                a("v_lshlrev_b32 v24, 18, v24")
                a("v_and_b32 v26, 7, v26")
                a("v_lshl_add_u32 v24, v26, 4, v24")
                a(f"v_lshl_add_u32 v{88+i}, v25, 7, v24")
            else:
                a("v_mul_u32_u24 v24, 7168, v25")
                a(f"v_lshl_add_u32 v{88+i}, v26, 4, v24")
        def flush(lo, hi, dst, SF=SF):
            a("s_waitcnt lgkmcnt(0)")
            for i in range(lo, hi):
                a(f"ds_read_b128 v[{dst+4*(i-lo)}:{dst+4*(i-lo)+3}], v{80+i}")
            return [(f"s_waitcnt lgkmcnt({hi-1-i})" if False else None,
                     f"buffer_store_dwordx4 v[{dst+4*(i-lo)}:{dst+4*(i-lo)+3}], v{88+i}, s[24:27], s44 offen{SF}") for i in range(lo, hi)]
        pend = []
        for p in range(2):
            for t in range(7):
                A0 = ACC + (t*4 + 2*p)*4; A1 = A0 + 4
                if AG:
                    for r in range(8): a(f"v_accvgpr_read_b32 v{2+r}, a{A0-128+r}")
                    A0 = 2; A1 = 6
                m0, m1 = 16+4*p, 18+4*p
                k0, k1, irs = 64+3*p, 65+3*p, 66+3*p
                for r in range(4):
                    a(f"v_fma_f32 v{A0+r}, -v{m0}, v{32+4*t+r}, v{A0+r}")
                    a(f"v_fma_f32 v{A1+r}, -v{m1}, v{32+4*t+r}, v{A1+r}")
                a("s_nop 0")
                for r in range(4):
                    a(f"v_permlane32_swap_b32 v{A0+r}, v{A1+r}")
                for r in range(4): a(f"v_mul_f32 v{T+r}, v{A0+r}, v{A0+r}")
                for r in range(4): a(f"v_fma_f32 v{T+r}, v{T+r}, v{k1}, v{k0}")
                for r in range(4): a(f"v_mul_f32 v{T+r}, v{T+r}, v{A0+r}")
                for r in range(4): a(f"v_exp_f32 v{T+r}, v{T+r}")
                for r in range(4): a(f"v_mul_f32 v{A1+r}, v{A0+r}, v{A1+r}")
                for r in range(4): a(f"v_fma_f32 v{T+r}, v{T+r}, v{irs}, v{irs}")
                for r in range(4): a(f"v_rcp_f32 v{T+r}, v{T+r}")
                if pend and t == 0:
                    a("s_waitcnt lgkmcnt(0)")
                    for _, st in pend: a(st)
                    pend = []
                else:
                    a("s_nop 0")
                for r in range(4): a(f"v_mul_f32 v{A1+r}, v{A1+r}, v{T+r}")
                a(f"v_cvt_pk_bf16_f32 v{A0}, v{A1}, v{A1+1}")
                a(f"v_cvt_pk_bf16_f32 v{A0+1}, v{A1+2}, v{A1+3}")
                a(f"ds_write_b64 v27, v[{A0}:{A0+1}] offset:{p*32*144 + t*16}")
            if p == 0:
                pend = flush(0, 3, 96, SF=os.environ.get('K3_SF0', SF))
        if not os.environ.get("STAMP3"): stamp(a, 3)
        pend = flush(3, 7, 108)
        for i, (_, st) in enumerate(pend):
            a(f"s_waitcnt lgkmcnt({3-i})")
            a(st)
    if STAMP:
        a("s_waitcnt vmcnt(0)")
        stamp(a, 4)
        stamp_flush(a, 5, 36)
    if last:
        a(f"s_branch {Ld}")
    else:
        a("s_waitcnt vmcnt(0)")
        a("s_barrier")
        if signal is not None:
            Ls = a.label("Lsig")
            a("s_cmp_lg_u32 s36, 0")
            a(f"s_cbranch_scc1 {Ls}")
            if DYN: flag_tile_signal(a, 60, 34, 35)
            else: flag_signal(a, 60, signal, 34)
            a(f"{Ls}:")
```

```python
import os
from common import *

STG = 24576
NP = 3
VGPR_G2 = 176
SCH = 158720

def phase_g2(a, Ld, K, A_src, W_ka, R_src, O_src, stats, wait=None, signal=None, last=True, PF=None, tail_hook=None, NS=4, NOX=False, NOW=False, NP=3, csjob=False, A_tm=False, R_tm=False, O_tm=False, dyn=False):
    nst = K // 64
    if PF is None: PF = int(os.environ.get('G2_PF', '12'))
    UN = NS if NS % 2 == 0 else 2*NS
    pitchA = 128 if A_tm else K * 2
    XADV = 262144 if A_tm else 128
    XF = " sc1" if wait else ""
    SF = " sc1" if signal else ""
    Lend = a.label("Lg2end")
    stamp(a, 0)
    a(f"s_load_dwordx2 s[32:33], s[0:1], {KA_WS}")
    a(f"s_load_dwordx2 s[6:7], s[0:1], {W_ka}")
    def ptr(src, reg):
        if src[0] == 'ka':
            a(f"s_load_dwordx2 s[{reg}:{reg+1}], s[0:1], {src[1]}")
    ptr(A_src, 4); ptr(R_src, 28); ptr(O_src, 30)
    a("s_and_b32 s3, s2, 7")
    a("s_lshr_b32 s42, s2, 3")
    a("s_and_b32 s34, s3, 1")
    a("s_lshl_b32 s34, s34, 1")
    a("s_bfe_u32 s43, s3, 0x10001")
    a("s_add_u32 s34, s34, s43")
    a("s_lshl_b32 s34, s34, 2")
    a("s_and_b32 s48, s42, 3")
    a("s_add_u32 s34, s34, s48")
    a("s_lshr_b32 s35, s3, 2")
    a("s_lshr_b32 s49, s42, 2")
    a("s_lshl_b32 s35, s35, 3")
    a("s_add_u32 s35, s35, s49")
    a("v_lshrrev_b32 v12, 6, v0")
    a("v_and_b32 v1, 63, v0")
    a("v_readfirstlane_b32 s36, v12")
    a("s_waitcnt lgkmcnt(0)")
    def ptr2(src, reg):
        if src[0] == 'ws':
            a(f"s_add_u32 s{reg}, s32, {src[1]}")
            a(f"s_addc_u32 s{reg+1}, s33, 0")
    ptr2(A_src, 4); ptr2(R_src, 28); ptr2(O_src, 30)
    a(f"s_mul_i32 s43, s34, {128*pitchA}")
    srd(a, 8, 4, ((nst-1)*XADV + 16384) if A_tm else 128*pitchA, add_lo=43)
    a("s_lshl_b32 s43, s35, 7")
    srd(a, 12, 6, K*2048 - 1920, add_lo=43)
    if wait or signal: flag_srd(a, 56)
    Lprod = a.label("Lprod"); Lpf = a.label("Lpf")
    a("s_cmp_ge_u32 s36, 4")
    a(f"s_cbranch_scc1 {Lprod}")

    nbar = [0]
    def bar():
        a("s_barrier"); nbar[0] += 1
    a("s_lshl_b32 s44, s34, 18")
    a("s_add_u32 s43, s43, s44")
    a("s_lshl_b32 s44, s35, 18")
    a("s_lshl_b32 s45, s34, 14")
    a("s_add_u32 s44, s44, s45")
    srd(a, 16, 28, 16384 if R_tm else 128*2048 - 1920, add_lo=44 if R_tm else 43)
    srd(a, 20, 30, 16384 if O_tm else 128*2048 - 1920, add_lo=44 if O_tm else 43)
    if stats:
        a("s_lshl_b32 s43, s34, 14")
        a("s_lshl_b32 s44, s35, 3")
        a("s_add_u32 s43, s43, s44")
        srd(a, 24, 32, 128*128 - 120, add_lo=43, add_imm=WS_ST2)
    a("s_lshr_b32 s45, s36, 1")
    a("s_and_b32 s46, s36, 1")
    a("v_and_b32 v12, 15, v1")
    a("v_lshrrev_b32 v13, 4, v1")
    a("s_lshl_b32 s43, s46, 6")
    a("s_lshl_b32 s44, s45, 5")
    a("s_add_u32 s43, s43, s44")
    a("v_add_u32 v14, s43, v12")
    a(f"v_lshlrev_b32 v15, {7 if R_tm else 11}, v14")
    a("v_lshlrev_b32 v16, 3, v13")
    a("v_add_u32 v11, v15, v16")
    a(f"v_add_u32 v17, {2048 if R_tm else 0x8000}, v11")
    RES = 160
    a("v_lshlrev_b32 v18, 7, v14")
    nsg = (NS + 1)//2
    XB = 2; WB = 20
    assert 2*nsg <= 8 and 4*nsg <= 12
    a("s_lshl_b32 s43, s45, 2")
    a("v_add_u32 v15, s43, v13")
    a("v_lshrrev_b32 v16, 1, v12")
    a("v_xor_b32 v15, v15, v16")
    a("v_lshlrev_b32 v15, 4, v15")
    a("v_lshl_add_u32 v15, v12, 7, v15")
    a("s_lshl_b32 s43, s46, 13")
    a("s_lshl_b32 s44, s45, 12")
    a("s_add_u32 s43, s43, s44")
    a(f"v_add_u32 v{XB}, s43, v15")
    a(f"v_xor_b32 v{XB+1}, 0x1000, v{XB}")
    for sg in range(1, nsg):
        a(f"v_add_u32 v{XB+2*sg}, {sg*2*STG}, v{XB}")
        a(f"v_add_u32 v{XB+2*sg+1}, {sg*2*STG}, v{XB+1}")
    a("v_lshrrev_b32 v15, 2, v12")
    a("v_and_b32 v16, 3, v1")
    a("v_lshl_add_u32 v19, v13, 3, v15")
    a("s_lshl_b32 s43, s45, 5")
    a("v_add_u32 v19, s43, v19")
    a("v_lshlrev_b32 v19, 7, v19")
    a("v_and_b32 v15, 2, v15")
    a("v_and_b32 v10, 1, v13")
    a("v_lshl_add_u32 v15, v10, 2, v15")
    a("v_lshrrev_b32 v10, 1, v16")
    a("v_xor_b32 v15, v15, v10")
    a("v_lshl_add_u32 v19, v15, 4, v19")
    a("v_and_b32 v16, 1, v16")
    a("v_lshl_add_u32 v19, v16, 3, v19")
    a(f"v_add_u32 v{WB}, 16384, v19")
    for nt in range(1, 4):
        a(f"v_xor_b32 v{WB+nt}, {32*nt}, v{WB}")
    for sg in range(1, nsg):
        for nt in range(4):
            a(f"v_add_u32 v{WB+4*sg+nt}, {sg*2*STG}, v{WB+nt}")
    ACC = 96
    for i in range(64):
        a(f"v_mov_b32 v{ACC+i}, 0")
    SET = [32, 64]
    def reads(slot, base):
        sg, so = slot >> 1, (slot & 1)*STG
        def xr(mt): return f"ds_read_b128 v[{base+4*mt}:{base+4*mt+3}], v{XB+2*sg+(mt>>1)} offset:{so + (mt&1)*2048}"
        def wr(nt, h): return f"ds_read_b64_tr_b16 v[{base+16+4*nt+2*h}:{base+16+4*nt+2*h+1}], v{WB+4*sg+nt} offset:{so + h*512}"
        return [xr(0), wr(0,0), wr(0,1), wr(1,0), wr(1,1), xr(1), wr(2,0), wr(2,1), wr(3,0), wr(3,1), xr(2), xr(3)]
    def mfmas(base):
        r = []
        for mt in range(4):
            for nt in range(4):
                acc = ACC + (mt*4+nt)*4
                r.append(f"v_mfma_f32_16x16x32_bf16 v[{acc}:{acc+3}], v[{base+16+4*nt}:{base+16+4*nt+3}], v[{base+4*mt}:{base+4*mt+3}], v[{acc}:{acc+3}]")
        return r
    if wait: bar()
    if os.environ.get("STAMP3"): stamp(a, 3)
    bar()
    stamp(a, 1)
    for i in reads(0, SET[0]): a(i)
    a("v_lshrrev_b32 v11, 3, v1")
    a("s_lshl_b32 s43, s46, 6")
    a("s_lshl_b32 s44, s45, 5")
    a("s_add_u32 s43, s43, s44")
    a("v_add_u32 v11, s43, v11")
    a("v_and_b32 v17, 7, v1")
    a(f"v_lshlrev_b32 v10, {7 if R_tm else 11}, v11")
    a("v_lshl_add_u32 v10, v17, 4, v10")
    for i in range(4):
        a(f"s_mov_b32 s43, {i*8*(128 if R_tm else 2048)}")
        a(f"buffer_load_dwordx4 v[{RES+4*i}:{RES+4*i+3}], v10, s[16:19], s43 offen")
    def cstage(s, lastst=False):
        cur, nxt = SET[s & 1], SET[(s+1) & 1]
        a("s_waitcnt lgkmcnt(0)")
        a("s_barrier")
        m = mfmas(cur)
        rd = [] if lastst else reads((s+1) % NS, nxt)
        for i in range(16):
            a(m[i])
            if i < len(rd): a(rd[i])
    nfull = (nst - 1) // UN
    if nfull > 0:
        a(f"s_mov_b32 s41, {nfull}")
        Ll = a.label("Lcl")
        a(f"{Ll}:")
        for s in range(UN): cstage(s)
        a("s_sub_u32 s41, s41, 1")
        a("s_cmp_lg_u32 s41, 0")
        a(f"s_cbranch_scc1 {Ll}")
    for s in range(nfull*UN, nst):
        cstage(s, lastst=(s == nst-1))
    nbar[0] += nst
    stamp(a, 2)
    FP = 272
    a("v_and_b32 v12, 15, v1")
    a(f"v_mul_u32_u24 v12, {FP}, v12")
    a("v_lshrrev_b32 v13, 4, v1")
    a("v_lshl_add_u32 v12, v13, 4, v12")
    a(f"s_mul_i32 s43, s36, {64*FP}")
    a(f"s_mul_i32 s44, s45, {32*FP}")
    a("s_add_u32 s47, s43, s44")
    a("v_add_u32 v13, s47, v12")
    a(f"s_xor_b32 s44, s44, {32*FP}")
    a("s_add_u32 s47, s43, s44")
    a("v_add_u32 v14, s47, v12")
    for mt in range(4):
        for nt in range(4):
            acc = ACC + (mt*4+nt)*4
            a(f"ds_write_b128 v{13 if mt < 2 else 14}, v[{acc}:{acc+3}] offset:{(mt&1)*16*FP + nt*64}")
    a("v_and_b32 v15, 63, v11")
    a(f"v_mul_u32_u24 v15, {FP}, v15")
    a("v_lshl_add_u32 v15, v17, 5, v15")
    a(f"s_mul_i32 s43, s46, {64*FP}")
    a("v_add_u32 v15, s43, v15")
    a(f"v_lshlrev_b32 v13, {7 if O_tm else 11}, v11")
    a("v_lshl_add_u32 v13, v17, 4, v13")
    a("s_waitcnt lgkmcnt(0)")
    bar()
    for i in range(4):
        for half in range(2):
            for q in range(2):
                r = 32 + i*16 + half*8 + q*4
                a(f"ds_read_b128 v[{r}:{r+3}], v15 offset:{half*128*FP + i*8*FP + q*16}")
        if i == 2: a("s_waitcnt lgkmcnt(8)")
    a("s_waitcnt vmcnt(0)")
    PK = 96
    for i in range(4):
        b = 32 + i*16; rs = RES + 4*i
        a(f"s_waitcnt lgkmcnt({max(0, 12-4*i) if i else 12})" if False else f"s_waitcnt lgkmcnt({12-4*i})")
        for c in range(8): a(f"v_add_f32 v{b+c}, v{b+c}, v{b+8+c}")
        for d in range(4):
            a(f"v_lshlrev_b32 v{b+8+2*d}, 16, v{rs+d}")
            a(f"v_and_b32 v{b+9+2*d}, 0xffff0000, v{rs+d}")
        for c in range(8): a(f"v_add_f32 v{b+c}, v{b+c}, v{b+8+c}")
        for d in range(4): a(f"v_cvt_pk_bf16_f32 v{PK+4*i+d}, v{b+2*d}, v{b+2*d+1}")
        a(f"s_mov_b32 s43, {i*8*(128 if O_tm else 2048)}")
        a(f"buffer_store_dwordx4 v[{PK+4*i}:{PK+4*i+3}], v13, s[20:23], s43 offen{SF}")
    if stats:
        for i in range(4):
            s1, s2 = 112+2*i, 113+2*i
            for d in range(4):
                src = PK + 4*i + d
                a(f"v_lshlrev_b32 v120, 16, v{src}")
                a(f"v_and_b32 v121, 0xffff0000, v{src}")
                if d == 0:
                    a(f"v_add_f32 v{s1}, v120, v121")
                    a(f"v_mul_f32 v{s2}, v120, v120")
                else:
                    a(f"v_add_f32 v{s1}, v{s1}, v120")
                    a(f"v_add_f32 v{s1}, v{s1}, v121")
                    a(f"v_fmac_f32 v{s2}, v120, v120")
                a(f"v_fmac_f32 v{s2}, v121, v121")
        a("s_nop 1")
        for dpp in ("quad_perm:[1,0,3,2]", "quad_perm:[2,3,0,1]", "row_half_mirror"):
            for x in range(112, 120):
                a(f"v_add_f32_dpp v{x}, v{x}, v{x} {dpp} row_mask:0xf bank_mask:0xf")
        a("v_lshlrev_b32 v12, 7, v11")
        a("s_mov_b32 s44, 0x01010101")
        a("s_mov_b32 s45, 0x01010101")
        a("s_mov_b64 exec, s[44:45]")
        for i in range(4):
            a(f"buffer_store_dwordx2 v[{112+2*i}:{113+2*i}], v12, s[24:27], 0 offen offset:{i*1024}{SF}")
        a("s_mov_b64 exec, -1")
    if STAMP:
        if not os.environ.get("STAMP3"): stamp(a, 3)
        a("s_waitcnt vmcnt(0)")
        stamp(a, 4)
        stamp_flush(a, 5, 36, v0=90)
    if last:
        a(f"s_branch {Ld}")
    else:
        a("s_waitcnt vmcnt(0)")
        bar()
        if signal is not None:
            a("s_cmp_lg_u32 s36, 0")
            a(f"s_cbranch_scc1 {Lend}")
            flag_signal(a, 56, signal, 34)
        a(f"s_branch {Lend}")
    NB = nbar[0]

    a(f"{Lprod}:")
    a("s_sub_u32 s47, s36, 4")
    if NP == 3:
        a("s_cmp_eq_u32 s47, 3")
        a(f"s_cbranch_scc1 {Lpf}")
    a("v_lshrrev_b32 v12, 3, v1")
    a("v_and_b32 v13, 7, v1")
    a("v_and_b32 v14, 2, v12")
    a("v_xor_b32 v14, v13, v14")
    a("v_lshlrev_b32 v14, 4, v14")
    a("v_lshl_add_u32 v4, v12, 11, v14")
    a("v_xor_b32 v5, 64, v4")
    a("v_lshrrev_b32 v14, 1, v12")
    a("v_xor_b32 v14, v13, v14")
    a("v_lshlrev_b32 v14, 4, v14")
    a(f"s_mov_b32 s43, {pitchA}")
    a("v_mul_lo_u32 v15, v12, s43")
    a("v_add_u32 v2, v15, v14")
    a("v_xor_b32 v3, 64, v2")
    npi = 24 // NP
    items = [("w", j) for j in range(8)] + [("x", j) for j in range(16)]
    Lp = [a.label("Lp") for _ in range(NP)]
    for p in range(1, NP):
        a(f"s_cmp_eq_u32 s47, {p}")
        a(f"s_cbranch_scc1 {Lp[p]}")
    for p in range(NP):
        a(f"{Lp[p]}:")
        nb = 0
        mine = items[p::NP]
        for i, (t, j) in enumerate(mine):
            if t == "x": a(f"v_add_u32 v{16+i}, {8*j*pitchA}, v{2 + (j&1)}")
            else: a(f"v_add_u32 v{16+i}, {8*j*2048}, v{4 + (j&1)}")
        vm = []
        def one(i, slot, sx, sw_):
            t, j = mine[i]
            if t == "x":
                a(f"s_mov_b32 m0, {slot*STG + j*1024}")
                a("s_nop 0")
                a(f"buffer_load_dwordx4 v{16+i}, s[8:11], {sx} offen{XF} lds")
            else:
                a(f"s_mov_b32 m0, {slot*STG + 16384 + j*1024}")
                a("s_nop 0")
                a(f"buffer_load_dwordx4 v{16+i}, s[12:15], {sw_} offen lds")
        def dma(slot):
            for i in range(npi): one(i, slot, "s37", "s38")
            if dyn != 1:
                a(f"s_add_u32 s37, s37, {XADV}")
                a("s_add_u32 s38, s38, 131072")
        def sch_read(slot):
            a(f"ds_read_b32 v6, v7 offset:{slot*4}")
        def sch_use():
            a("s_waitcnt lgkmcnt(0)")
            a("v_readfirstlane_b32 s44, v6")
            a("s_lshl_b32 s37, s44, 18")
            a("s_lshl_b32 s38, s44, 17")
        def wait_stage(st):
            idx = max(i for i, t in enumerate(vm) if t == st)
            a(f"s_waitcnt vmcnt({len(vm)-1-idx})")
        if dyn == 1:
            assert A_tm and NP == 3
            a(f"v_mov_b32 v7, {SCH}")
            a("s_barrier"); nb += 1
            for st in range(NS):
                sch_read(st); sch_use()
                dma(st); vm += [st]*npi
        elif wait:
            for st in range(NS):
                a(f"s_mov_b32 s38, {st*131072}")
                for i in range(npi):
                    if mine[i][0] == "w": one(i, st, None, "s38"); vm.append(-1)
            if p == 0 and dyn != 2:
                flag_poll(a, 56, wait, 34, v=8)
                vm = []
            a("s_barrier"); nb += 1
            for st in range(NS):
                a(f"s_mov_b32 s37, {st*XADV}")
                for i in range(npi):
                    if mine[i][0] == "x": one(i, st, "s37", None); vm.append(st)
            a(f"s_mov_b32 s37, {NS*XADV}")
            a(f"s_mov_b32 s38, {NS*131072}")
        else:
            a("s_mov_b32 s37, 0")
            a("s_mov_b32 s38, 0")
            for st in range(NS):
                dma(st); vm += [st]*npi
        wait_stage(0)
        a("s_barrier"); nb += 1
        ndma = nst - NS
        def pstage_exact(s):
            if dyn == 1 and s < ndma: sch_read(NS + (s % NS))
            wait_stage(s+1)
            if dyn == 1 and s < ndma: sch_use()
            a("s_barrier")
            if s < ndma:
                dma(s % NS); vm.extend([s+NS]*npi)
        s = 0
        while s < min(NS, nst-1):
            pstage_exact(s); s += 1; nb += 1
        nl = max(0, (ndma - s)) // NS
        if nl > 0:
            a(f"s_mov_b32 s41, {nl}")
            Ll = a.label("Lpl")
            a(f"{Ll}:")
            for q in range(NS):
                if dyn == 1: sch_read(NS + ((s+q) % NS))
                a(f"s_waitcnt vmcnt({npi*(NS-2)})")
                if dyn == 1: sch_use()
                a("s_barrier")
                dma((s+q) % NS)
            a("s_sub_u32 s41, s41, 1")
            a("s_cmp_lg_u32 s41, 0")
            a(f"s_cbranch_scc1 {Ll}")
            for q in range(nl*NS): vm.extend([s+q+NS]*npi)
            s += nl*NS; nb += nl*NS
        while s < nst-1:
            pstage_exact(s); s += 1; nb += 1
        if last:
            a(f"s_branch {Ld}")
        else:
            if tail_hook: tail_hook(a)
            for q in range(NB - nb): a("s_barrier")
            a(f"s_branch {Lend}")
    a(f"{Lpf}:")
    nb = 0
    if dyn:
        a("s_lshr_b32 s43, s34, 1")
        a("s_add_u32 s43, s43, 64")
        a("s_lshl_b32 s43, s43, 7")
        a("v_and_b32 v8, 31, v1")
        a("v_lshl_add_u32 v8, v8, 2, s43")
        a("v_min_u32 v14, 55, v1")
        a("v_lshlrev_b32 v12, 2, v14")
        a("v_mul_u32_u24 v12, 9363, v12")
        a("v_lshrrev_b32 v12, 16, v12")
        a("v_lshlrev_b32 v13, 4, v14")
        a("v_add_u32 v13, 15, v13")
        a("v_mul_u32_u24 v13, 2341, v13")
        a("v_lshrrev_b32 v13, 16, v13")
        a(f"v_mov_b32 v7, {SCH}")
        a("s_mov_b64 s[62:63], 0")
        a("s_bfm_b64 s[60:61], 56, 0")
        def poll_issue():
            a("buffer_load_dword v9, v8, s[56:59], 0 offen sc1")
        def upd():
            a("s_waitcnt vmcnt(0)")
            a("v_cmp_ne_u32 vcc, 0, v9")
            a("s_nop 4")
            a("s_mov_b32 s52, vcc_lo")
            a("v_lshrrev_b32_e64 v10, v12, s52")
            a("v_lshrrev_b32_e64 v11, v13, s52")
            a("v_and_b32 v10, v10, v11")
            a("v_and_b32 v10, 1, v10")
            a("v_cmp_ne_u32 vcc, 0, v10")
            a("s_nop 4")
            a("s_and_b64 s[54:55], vcc, s[60:61]")
        def pick(entry):
            Lr = a.label("Lpk"); Lg = a.label("Lpg")
            a("s_mov_b32 s41, 0x10000")
            a(f"{Lr}:")
            if dyn == 2:
                a("s_andn2_b64 s[50:51], s[60:61], s[62:63]")
                a("s_ff1_i32_b64 s44, s[50:51]")
                a("s_bitcmp1_b64 s[54:55], s44")
            else:
                a("s_andn2_b64 s[50:51], s[54:55], s[62:63]")
            a(f"s_cbranch_scc1 {Lg}")
            poll_issue(); upd()
            a("s_mov_b32 s49, 0")
            a("s_sub_u32 s41, s41, 1")
            a("s_cmp_lg_u32 s41, 0")
            a(f"s_cbranch_scc1 {Lr}")
            a("s_andn2_b64 s[50:51], s[60:61], s[62:63]")
            a(f"{Lg}:")
            a("s_ff1_i32_b64 s44, s[50:51]")
            a("s_bitset1_b64 s[62:63], s44")
            a("v_mov_b32 v6, s44")
            a(f"ds_write_b32 v7, v6 offset:{entry*4}")
        poll_issue(); upd()
        a("s_mov_b32 s49, 0")
        if dyn == 2:
            a("v_and_b32 v14, 15, v1")
            a("v_lshrrev_b32 v15, 4, v1")
            a("s_lshl_b32 s43, s48, 4")
            a("v_add_u32 v14, s43, v14")
            a("v_lshl_add_u32 v14, v15, 6, v14")
            a("v_lshlrev_b32 v3, 11, v14")
        for k in range(NS): pick(k)
        if dyn == 1: pick(NS + 0)
        a("s_waitcnt lgkmcnt(0)")
        a("s_barrier")
        a("s_barrier")
        def step(entry):
            Ls = a.label("Lsk"); Li = a.label("Lsi")
            a("s_cmp_eq_u64 s[54:55], s[60:61]")
            a(f"s_cbranch_scc1 {Ls}")
            a("s_cmp_eq_u32 s49, 0")
            a(f"s_cbranch_scc1 {Li}")
            a("s_add_u32 s49, s49, 1")
            a("s_cmp_lt_u32 s49, 4")
            a(f"s_cbranch_scc1 {Ls}")
            upd()
            a(f"{Li}:")
            poll_issue()
            a("s_mov_b32 s49, 1")
            a(f"{Ls}:")
            pick(entry)
            a("s_waitcnt lgkmcnt(0)")
            a("s_barrier")
        njs = nst - NS - (1 if dyn == 1 else 0)
        nl = njs // NS
        a(f"s_mov_b32 s48, {nl}")
        Ll = a.label("Lsch")
        a(f"{Ll}:")
        for q in range(NS): step(NS + ((q+1) % NS))
        a("s_sub_u32 s48, s48, 1")
        a("s_cmp_lg_u32 s48, 0")
        a(f"s_cbranch_scc1 {Ll}")
        for j in range(nl*NS, njs): step(NS + ((j+1) % NS))
        assert last
        a(f"s_branch {Ld}")
    if csjob:
        Lno = a.label("Lnojob")
        cs_setup(a, Lno, 50+2, 4)
        a("s_lshl_b32 s47, s45, 1")
        a("s_add_u32 s47, s47, s44")
        a("s_mul_i32 s47, s47, 14336")
        a("s_lshl_b32 s48, s46, 9")
        a("s_add_u32 s47, s47, s48")
        a("v_lshl_add_u32 v5, v5, 5, s47")
        srd(a, 60, 32, 8*14336, add_imm=WS_CS)
        for i in range(8): a(f"v_mov_b32 v{16+i}, 0")
        NF = CS_NF
        pre1 = csjob == "pre"
        issued = [NF if pre1 else 0]; done = [0]; base = [NF if pre1 else 0]
        def issue():
            cs_issue(a, issued[0], 52, 4); issued[0] += 1
        def proc():
            i = done[0] % NF
            if done[0] >= base[0]: a(f"s_waitcnt vmcnt({issued[0] - done[0] - 1})")
            for d in range(4):
                a(f"v_lshlrev_b32 v{24+2*d}, 16, v{128+4*i+d}")
                a(f"v_and_b32 v{25+2*d}, 0xffff0000, v{128+4*i+d}")
            done[0] += 1
            if issued[0] < 64: issue()
            for d in range(8):
                a(f"v_add_f32 v{16+d}, v{16+d}, v{24+d}")
        if pre1:
            for i in range(NF): proc()
        else:
            for i in range(NF): issue()
        C1 = int(os.environ.get("CS_C1", "4")); C2 = int(os.environ.get("CS_C2", "12"))
        jb = 0
        for q in range(NB):
            st = q - (2 if wait else 1)
            if C1 <= st < C1 + 4:
                for _ in range(7): proc()
            if C2 <= st < C2 + 4:
                for _ in range(9):
                    if done[0] < 64: proc()
            if q == NB - 2:
                assert done[0] == 64
                for sw in ("16", "32"):
                    for d in range(8): a(f"v_mov_b32 v{24+d}, v{16+d}")
                    a("s_nop 0")
                    for d in range(8): a(f"v_permlane{sw}_swap_b32 v{16+d}, v{24+d}")
                    for d in range(8): a(f"v_add_f32 v{16+d}, v{16+d}, v{24+d}")
                a("s_mov_b64 exec, 0xffff")
                a("buffer_store_dwordx4 v[16:19], v5, s[60:63], 0 offen sc1")
                a("buffer_store_dwordx4 v[20:23], v5, s[60:63], 0 offen offset:16 sc1")
                a("s_mov_b64 exec, -1")
                a("s_nop 1")
                if tail_hook: tail_hook(a)
            a("s_barrier")
        a(f"s_branch {Lend}")
        a(f"{Lno}:")
    if PF:
        G = int(os.environ.get("G2_PG", "4"))
        a("v_and_b32 v12, 15, v1")
        a("v_lshrrev_b32 v13, 4, v1")
        a(f"v_min_u32 v13, {G-1}, v13")
        a("s_lshl_b32 s43, s49, 4")
        a("v_add_u32 v14, s43, v12")
        a(f"s_mov_b32 s43, {pitchA}")
        a("v_mul_lo_u32 v14, v14, s43")
        a(f"v_lshl_add_u32 v2, v13, {18 if A_tm else 7}, v14")
        a("s_lshl_b32 s43, s48, 4")
        a("v_add_u32 v14, s43, v12")
        a("v_lshl_add_u32 v14, v13, 6, v14")
        a("v_lshlrev_b32 v3, 11, v14")
        def pfx(g):
            if NOX: return
            a(f"s_mov_b32 s37, {g*XADV*G}")
            a(f"buffer_load_dword v8, v2, s[8:11], s37 offen{XF}")
        def pfw(g):
            if NOW: return
            a(f"s_mov_b32 s38, {g*131072*G}")
            a(f"buffer_load_dword v9, v3, s[12:15], s38 offen")
        ngrp = nst // G
        pre = min(ngrp, (PF + G - 1)//G)
        PFW = int(os.environ.get("G2_PFW", str(PF)))
        prew = min(ngrp, (PFW + G - 1)//G)
        start = NS // G
        if wait:
            for g in range(start, prew): pfw(g)
            a("s_barrier"); nb += 1
            a("s_barrier"); nb += 1
            for g in range(start, pre): pfx(g)
        else:
            for g in range(start, prew): pfw(g)
            for g in range(start, pre): pfx(g)
            a("s_barrier"); nb += 1
        for i in range(ngrp - min(pre, prew)):
            for q in range(G): a("s_barrier"); nb += 1
            if prew + i < ngrp: pfw(prew + i)
            if pre + i < ngrp: pfx(pre + i)
    if last:
        a(f"s_branch {Ld}")
    else:
        XS = int(os.environ.get("X23_AT", "6"))
        for q in range(NB - nb):
            if q == XS and os.environ.get("X23", "0") == "1":
                pf_k3_w(a, int(os.environ.get("X23_N", "4")), 64, 10, 12)
            if tail_hook and q == NB - nb - 3:
                a("s_waitcnt vmcnt(0)")
                tail_hook(a)
            a("s_barrier")
        if not tail_hook: a("s_waitcnt vmcnt(0)")
    a(f"{Lend}:")
```

```python
import sys, os
sys.path.insert(0, os.path.dirname(__file__))
from common import *
import pg2, k1, k3

HEADER = open("sequential_preLN__sliding_local_dilated__glu_gated_geglu__prompt.s.ref").read().split("; Override launch")[0]

CSJ = os.environ.get("CSJOB", "1") == "1"
CSPRE1 = os.environ.get("CSPRE1", "1") == "1"
DEF = {"K2": "4,1,1,3", "K4": "6,1,0,3"}
def cfg(k):
    ns, nox, now, np_ = [int(x) for x in os.environ.get(k + "_CFG", DEF[k]).split(",")]
    return dict(NS=ns, NOX=bool(nox), NOW=bool(now), NP=np_)

def build(spec, path):
    a = Asm()
    launches = []; descs = []
    groups = [g.split("+") for g in spec.split(",")]
    fused_any = any(len(g) > 1 for g in groups)
    for g in groups:
        name = "".join(g) + "_kernel"
        single = len(groups) == 1 and os.environ.get("SINGLE", "0") == "1"
        if single: name = "sequential_preLN__sliding_local_dilated__glu_gated_geglu__prompt_kernel"
        kernel_header(a, name)
        Ld = a.label("Ldone")
        a("s_cmp_ge_u32 s2, 256")
        a(f"s_cbranch_scc1 {Ld}")
        lds = 0; vg = 0
        for i, k in enumerate(g):
            last = (i == len(g)-1)
            prev = g[i-1] if i else None
            if k == "k1":
                k1.phase_k1(a, Ld, signal=None if last else 'o', last=last, cspre=(CSJ and CSPRE1 and len(g) == 4))
                lds = max(lds, k1.LDS_K1); vg = max(vg, k1.VGPR_K1)
            elif k == "k2":
                pg2.phase_g2(a, Ld, 1024, ('ws', WS_O), KA_WO, ('ka', KA_X), ('ws', WS_H), True,
                             wait='o' if prev else None, signal=None if last else 'h', last=last,
                             tail_hook=(k3.early_w if (not last and k3.EARLYW) else None), csjob=(('pre' if (CSPRE1 and len(g) == 4) else 'here') if (CSJ and not last) else False), A_tm=TM, O_tm=TM, **cfg('K2'))
                lds = max(lds, cfg('K2')['NS']*pg2.STG); vg = max(vg, pg2.VGPR_G2)
            elif k == "k3":
                k3.phase_k3(a, Ld, wait='h' if prev else None, signal=None if last else 'hh', last=last, cspre=bool(CSJ and prev))
                lds = max(lds, k3.LDS_K3); vg = max(vg, k3.VGPR_K3)
            elif k == "k4":
                pg2.phase_g2(a, Ld, 3584, ('ws', WS_HH), KA_WD, ('ws', WS_H), ('ka', KA_OUT), False,
                             wait='hh' if prev else None, last=last, R_tm=TM, A_tm=TMH, dyn=(DYN if prev else 0), **cfg('K4'))
                lds = max(lds, cfg('K4')['NS']*pg2.STG); vg = max(vg, pg2.VGPR_G2)
        a(f"{Ld}:")
        a("s_endpgm")
        descs.append(kernel_desc(name, vg, 100, 128 if (g == ["k3"] and k3.AG) else vg))
        if single: launches.append(f"; @launch grid=(256,1,1) block=(512,1,1) lds={lds}")
        else: launches.append(f"; @launch kernel={name} grid=(256,1,1) block=(512,1,1) lds={lds}")
    out = HEADER + "\n".join(launches) + "\n" + '.amdgcn_target "amdgcn-amd-amdhsa--gfx950"\n.text\n' + a.text()
    out += '.section .rodata,"a"\n' + "".join(descs)
    open(path, "w").write(out)

if __name__ == "__main__":
    build(sys.argv[1], sys.argv[2])
```

```python
WS_O   = 0
WS_H   = 4 << 20
WS_HH  = 8 << 20
WS_ST2 = 24 << 20
WS_ST1 = 25 << 20
WS_CS  = 26 << 20
WS_BYTES = 268435456

KA_X, KA_WQKV, KA_WO, KA_BX, KA_WG, KA_WU, KA_WD, KA_OUT, KA_DBG, KA_WS = [8*i for i in range(10)]


class Asm:
    def __init__(self):
        self.L = []
        self.uid = 0
    def __call__(self, s):
        for line in s.split("\n"):
            line = line.strip()
            if line:
                self.L.append(line)
    def label(self, base="L"):
        self.uid += 1
        return f"{base}_{self.uid}"
    def comment(self, s):
        self.L.append("; " + s)
    def text(self):
        return "\n".join(self.L) + "\n"


def kernel_header(a, name):
    a(f".globl {name}")
    a(".p2align 8")
    a(f".type {name},@function")
    a(f"{name}:")


def kernel_desc(name, vgpr, sgpr, accum):
    return f""".p2align 6
.amdhsa_kernel {name}
  .amdhsa_next_free_vgpr {vgpr}
  .amdhsa_next_free_sgpr {sgpr}
  .amdhsa_accum_offset {accum}
  .amdhsa_group_segment_fixed_size 0
  .amdhsa_kernarg_size 80
  .amdhsa_user_sgpr_count 2
  .amdhsa_user_sgpr_kernarg_segment_ptr 1
  .amdhsa_system_sgpr_workgroup_id_x 1
  .amdhsa_float_denorm_mode_32 3
  .amdhsa_float_denorm_mode_16_64 3
.end_amdhsa_kernel
"""


def srd(a, d, base, nbytes, add_lo=None, add_imm=0):
    if add_lo is not None:
        a(f"s_add_u32 s{d}, s{base}, s{add_lo}")
        a(f"s_addc_u32 s{d+1}, s{base+1}, 0")
        if add_imm:
            a(f"s_add_u32 s{d}, s{d}, {add_imm}")
            a(f"s_addc_u32 s{d+1}, s{d+1}, 0")
    elif add_imm:
        a(f"s_add_u32 s{d}, s{base}, {add_imm}")
        a(f"s_addc_u32 s{d+1}, s{base+1}, 0")
    else:
        a(f"s_mov_b32 s{d}, s{base}")
        a(f"s_mov_b32 s{d+1}, s{base+1}")
    a(f"s_mov_b32 s{d+2}, {nbytes}")
    a(f"s_mov_b32 s{d+3}, 0x20000")


def interleave(main, fill, start=0, every=1):
    out = []
    fi = 0
    for i, m in enumerate(main):
        out.append(m)
        if i >= start and (i - start) % every == 0 and fi < len(fill):
            out.append(fill[fi]); fi += 1
    out.extend(fill[fi:])
    return out


import os
STAMP = bool(os.environ.get("STAMP"))
REG = 49152
SLOT = 24576
STATS = 147456
CSF = 148480
DBG = 150528
LDS_TOTAL = 151552
WS_DBG = 28 << 20
HH_M = 448 * 2048

def stamp_init(a):
    if not STAMP: return
    a("s_lshl_b32 s96, s36, 7")
    a(f"s_add_u32 s96, s96, {DBG}")
    a("v_mov_b32 v26, s96")
STAMPC = os.environ.get("STAMPC", "")
def stampc(a, kind, idx):
    if kind != STAMPC or not 0 <= idx < 32: return
    a("s_memtime s[96:97]")
    a("s_waitcnt lgkmcnt(0)")
    a("v_mov_b32 v24, s96")
    a(f"ds_write_b32 v26, v24 offset:{4*idx}")
def stamp(a, idx):
    if not STAMP or STAMPC: return
    a("s_memtime s[96:97]")
    a("s_memrealtime s[98:99]")
    a("s_waitcnt lgkmcnt(0)")
    a("v_mov_b32 v24, s96")
    a("v_mov_b32 v25, s98")
    a(f"ds_write_b64 v26, v[24:25] offset:{8*idx}")
def stamp_flush(a):
    if not STAMP: return
    a("s_waitcnt lgkmcnt(0)")
    a("v_and_b32 v24, 31, v1")
    a("v_lshlrev_b32 v24, 2, v24")
    a("v_add_u32 v25, v26, v24")
    a("ds_read_b32 v25, v25")
    a(f"s_add_u32 s96, s32, {WS_DBG}")
    a("s_addc_u32 s97, s33, 0")
    a("s_mov_b32 s98, 262144")
    a("s_mov_b32 s99, 0x20000")
    a("s_lshl_b32 s94, s2, 3")
    a("s_add_u32 s94, s94, s36")
    a("s_lshl_b32 s94, s94, 7")
    a("s_waitcnt lgkmcnt(0)")
    a("buffer_store_dword v25, v24, s[96:99], s94 offen")

WS_FLG = 27 << 20
FLG = {"o": (0, 16), "h": (16, 16), "hha0": (32, 16), "hha1": (48, 16), "hhb": (64, 16), "cs": (80, 224)}

def flag_srd(a, d, ws_pair=32):
    srd(a, d, ws_pair, 128*128, add_imm=WS_FLG)

def flag_addr(a, kind, idx_sgpr, v):
    if idx_sgpr is None: a(f"v_mov_b32 v{v}, {FLG[kind][0] << 7}")
    else:
        a(f"s_add_u32 s43, s{idx_sgpr}, {FLG[kind][0]}")
        a("s_lshl_b32 s43, s43, 7")
        a(f"v_mov_b32 v{v}, s43")

def flag_signal(a, d, kind, idx_sgpr, v=5):
    flag_addr(a, kind, idx_sgpr, v)
    a(f"v_mov_b32 v{v+1}, 1")
    a("s_mov_b64 exec, 1")
    a(f"buffer_atomic_add v{v+1}, v{v}, s[{d}:{d+3}], 0 offen sc1")
    a("s_mov_b64 exec, -1")

def flag_poll_issue(a, d, kind, idx_sgpr, v=8):
    flag_addr(a, kind, idx_sgpr, v)
    a(f"v_mov_b32 v{v+2}, {FLG[kind][1]}")
    a(f"buffer_load_dword v{v+1}, v{v}, s[{d}:{d+3}], 0 offen sc1")

def flag_poll_finish(a, d, v=8):
    Lp = a.label("Lpoll"); Lo = a.label("Lpok")
    a("s_mov_b32 s41, 0x10000")
    a(f"{Lp}:")
    a("s_waitcnt vmcnt(0)")
    a(f"v_cmp_ne_u32 vcc, v{v+2}, v{v+1}")
    a("s_nop 4")
    a(f"s_cbranch_vccz {Lo}")
    a(f"buffer_load_dword v{v+1}, v{v}, s[{d}:{d+3}], 0 offen sc1")
    a("s_sub_u32 s41, s41, 1")
    a("s_cmp_lg_u32 s41, 0")
    a(f"s_cbranch_scc1 {Lp}")
    a("s_waitcnt vmcnt(0)")
    a(f"{Lo}:")

def flag_poll(a, d, kind, idx_sgpr, v=8):
    flag_poll_issue(a, d, kind, idx_sgpr, v)
    flag_poll_finish(a, d, v)

MX = int(os.environ.get("MX", "4"))
def mapping(a):
    lg = MX.bit_length() - 1
    a("s_and_b32 s3, s2, 7")
    a("s_lshr_b32 s42, s2, 3")
    a(f"s_and_b32 s48, s42, {MX-1}")
    a(f"s_lshr_b32 s49, s42, {lg}")
    a(f"s_and_b32 s34, s3, {16//MX - 1}")
    a(f"s_lshl_b32 s34, s34, {lg}")
    a("s_add_u32 s34, s34, s48")
    a(f"s_lshr_b32 s35, s3, {4-lg}")
    a(f"s_lshl_b32 s35, s35, {5-lg}")
    a("s_add_u32 s35, s35, s49")

def pf_w64(a, W_ka, K, groups, sd, v, vd, lane=1):
    per = 64 // MX
    lgp = per.bit_length() - 1
    a(f"s_load_dwordx2 s[{sd+4}:{sd+5}], s[0:1], {W_ka}")
    a("s_lshl_b32 s43, s35, 7")
    a(f"s_lshl_b32 s44, s48, {lgp}")
    a(f"v_and_b32 v{v}, {per-1}, v{lane}")
    a(f"v_add_u32 v{v}, s44, v{v}")
    a(f"v_lshrrev_b32 v19, {lgp}, v{lane}")
    a(f"v_lshl_add_u32 v{v}, v19, 6, v{v}")
    a(f"v_lshlrev_b32 v{v}, 11, v{v}")
    a("s_waitcnt lgkmcnt(0)")
    srd(a, sd, sd+4, K*2048 - 1920, add_lo=43)
    for g in groups: pf_w64_issue(a, g, sd, v, vd)
    return len(groups)
def pf_w64_issue(a, g, sd, v, vd):
    a(f"s_mov_b32 s43, {g*MX*131072}")
    a(f"buffer_load_dword v{vd}, v{v}, s[{sd}:{sd+3}], s43 offen")

CS_NF = 32
def cs_setup(a, Lno, sd, va):
    a("s_lshr_b32 s43, s2, 1")
    a("s_cmp_ge_u32 s43, 112")
    a(f"s_cbranch_scc1 {Lno}")
    a("s_and_b32 s44, s2, 1")
    a("s_lshl_b32 s45, s44, 3")
    a(f"s_add_u32 s45, s45, {KA_WG}")
    a(f"s_load_dwordx2 s[{sd+4}:{sd+5}], s[0:1], s45")
    a("s_mul_i32 s45, s43, 2341")
    a("s_lshr_b32 s45, s45, 16")
    a("s_mul_i32 s46, s45, 28")
    a("s_sub_u32 s46, s43, s46")
    a(f"v_lshrrev_b32 v{va}, 4, v1")
    a("s_lshl_b32 s43, s45, 8")
    a(f"v_add_u32 v{va}, s43, v{va}")
    a(f"v_mul_u32_u24 v{va}, 7168, v{va}")
    a(f"v_and_b32 v{va+1}, 15, v1")
    a(f"v_lshl_add_u32 v{va}, v{va+1}, 4, v{va}")
    a("s_lshl_b32 s43, s46, 8")
    a(f"v_add_u32 v{va}, s43, v{va}")
    a("s_waitcnt lgkmcnt(0)")
    srd(a, sd, sd+4, 7340032)

def cs_issue(a, n, sd, va):
    i = n % CS_NF
    a(f"s_mov_b32 s43, {n*4*7168}")
    a(f"buffer_load_dwordx4 v[{128+4*i}:{128+4*i+3}], v{va}, s[{sd}:{sd+3}], s43 offen")
```

```python
import os, struct
from common import *

NS = 3
XB_ = 18432
STG1 = XB_ + 3*8192
RST = NS*STG1
CSUM = RST + 1152
LST = CSUM
LDS_K1 = CSUM + 768
QKV = 0
QP = 400

def fh(x): return "0x%08x" % struct.unpack("<I", struct.pack("<f", x))[0]

VGPR_K1 = 240
def phase_k1(a):
    strip = os.environ.get("K1_STRIP", "")
    nst = 16
    a(f"s_load_dwordx4 s[4:7], s[0:1], {KA_X}")
    a(f"s_load_dwordx2 s[32:33], s[0:1], {KA_WS}")
    mapping(a)
    a("v_lshrrev_b32 v12, 6, v0")
    a("v_and_b32 v1, 63, v0")
    a("v_readfirstlane_b32 s36, v12")
    a("s_nop 3")
    stamp_init(a)
    stamp(a, 0)
    a("s_lshl_b32 s43, s35, 7")
    a("s_lshl_b32 s44, s34, 18")
    a("s_lshl_b32 s45, s35, 14")
    a("s_add_u32 s45, s45, s44")
    a("s_lshl_b32 s50, s34, 7")
    a("s_sub_u32 s50, s50, 16")
    a("s_waitcnt lgkmcnt(0)")
    srd(a, 8, 4, 2048*2048)
    srd(a, 12, 6, 1023*6144 + 4096 + 128, add_lo=43)
    srd(a, 16, 32, 16384, add_lo=45, add_imm=WS_O)
    Lprod = a.label("Lprod"); Lpf = a.label("Lpf"); Latt = a.label("Latt")
    a("v_and_b32 v12, 15, v1")
    a("v_lshrrev_b32 v13, 4, v1")
    a("s_cmp_ge_u32 s36, 4")
    a(f"s_cbranch_scc1 {Lprod}")

    a("v_lshrrev_b32 v16, 1, v12")
    a("v_xor_b32 v15, v13, v16")
    a("v_lshlrev_b32 v15, 4, v15")
    a("v_lshl_add_u32 v2, v12, 7, v15")
    a("v_xor_b32 v3, 64, v2")
    a(f"v_add_u32 v4, {2*STG1}, v2")
    a(f"v_add_u32 v5, {2*STG1}, v3")
    a("v_lshrrev_b32 v15, 2, v12")
    a("v_and_b32 v16, 3, v1")
    a("v_lshl_add_u32 v19, v13, 3, v15")
    a("v_lshlrev_b32 v19, 7, v19")
    a("v_and_b32 v15, 2, v15")
    a("v_and_b32 v17, 1, v13")
    a("v_lshl_add_u32 v15, v17, 2, v15")
    a("v_lshrrev_b32 v17, 1, v16")
    a("s_lshl_b32 s43, s36, 1")
    a("v_add_u32 v17, s43, v17")
    a("v_xor_b32 v15, v15, v17")
    a("v_lshl_add_u32 v19, v15, 4, v19")
    a("v_and_b32 v16, 1, v16")
    a("v_lshl_add_u32 v19, v16, 3, v19")
    for sl in range(3):
        a(f"v_add_u32 v{6+sl}, {XB_ + sl*STG1}, v19")
    ACC = 128
    def accreg(seg, mt):
        return ACC + 36*seg + 4*mt
    for i in range(108): a(f"v_mov_b32 v{ACC+i}, 0")
    SET = [32, 80]
    def reads(s, kk, base):
        sl = s % NS
        xb = (2 + kk) if sl < 2 else (4 + kk)
        xo = (sl % 2)*STG1 if sl < 2 else 0
        def xr(mt): return f"ds_read_b128 v[{base+4*mt}:{base+4*mt+3}], v{xb} offset:{xo + mt*2048}"
        def wr(sg, h): return f"ds_read_b64_tr_b16 v[{base+36+4*sg+2*h}:{base+36+4*sg+2*h+1}], v{6+sl} offset:{sg*8192 + kk*4096 + h*512}"
        return [xr(0), wr(1,0), wr(1,1), wr(2,0), wr(2,1), wr(0,0), wr(0,1)] + [xr(m) for m in range(1, 9)]
    def mfmas(base):
        r = []
        for mt in range(9):
            for sg in (1, 2, 0):
                acc = accreg(sg, mt)
                r.append(f"v_mfma_f32_16x16x32_bf16 v[{acc}:{acc+3}], v[{base+36+4*sg}:{base+36+4*sg+3}], v[{base+4*mt}:{base+4*mt+3}], v[{acc}:{acc+3}]")
        return r
    def emit(seq):
        for i in seq:
            if "m" in strip and i.startswith("v_mfma"): continue
            if "r" in strip and i.startswith("ds_read"): continue
            a(i)
    a("s_barrier")
    stamp(a, 1)
    for i in reads(0, 0, SET[0]): a(i)
    def cstage(s, last):
        a("s_waitcnt lgkmcnt(0)")
        emit(interleave(mfmas(SET[0]), reads(s, 1, SET[1]), 0, 1))
        a("s_waitcnt lgkmcnt(0)")
        a("s_barrier")
        emit(interleave(mfmas(SET[1]), [] if last else reads(s+1, 0, SET[0]), 0, 1))
    nl = (nst-1)//NS
    a(f"s_mov_b32 s41, {nl}")
    Ll = a.label("Lcl")
    a(f"{Ll}:")
    for s in range(NS): cstage(s, False)
    a("s_sub_u32 s41, s41, 1")
    a("s_cmp_lg_u32 s41, 0")
    a(f"s_cbranch_scc1 {Ll}")
    for s in range(nl*NS, nst): cstage(s, s == nst-1)
    stamp(a, 2)
    a("s_barrier")
    a(f"v_lshlrev_b32 v14, 3, v12")
    a(f"v_add_u32 v14, {RST}, v14")
    for mt in range(9):
        a(f"ds_read_b64 v[{32+2*mt}:{33+2*mt}], v14 offset:{mt*128}")
    for sg in range(3):
        for r in range(4):
            a(f"v_mov_b32_dpp v{52+4*sg+r}, v{accreg(sg,0)+r} row_newbcast:0 row_mask:0xf bank_mask:0xf")
    a(f"v_mul_u32_u24 v14, {QP}, v12")
    a("v_lshl_add_u32 v14, v13, 3, v14")
    a("s_lshl_b32 s43, s36, 5")
    a("v_add_u32 v14, s43, v14")
    a("s_waitcnt lgkmcnt(0)")
    for mt in range(9):
        for sg in ((1, 2) if mt == 0 else (0, 1, 2)):
            acc = accreg(sg, mt)
            for r in (0, 2):
                a(f"v_pk_fma_f32 v[{acc+r}:{acc+r+1}], v[{32+2*mt}:{33+2*mt}], v[{52+4*sg+r}:{53+4*sg+r}], v[{acc+r}:{acc+r+1}] op_sel_hi:[0,1,1] neg_lo:[1,0,0] neg_hi:[1,0,0]")
            for r in (0, 2):
                a(f"v_pk_mul_f32 v[{acc+r}:{acc+r+1}], v[{32+2*mt}:{33+2*mt}], v[{acc+r}:{acc+r+1}] op_sel:[1,0] op_sel_hi:[1,1]")
            a(f"v_cvt_pk_bf16_f32 v{acc}, v{acc}, v{acc+1}")
            a(f"v_cvt_pk_bf16_f32 v{acc+1}, v{acc+2}, v{acc+3}")
            a(f"ds_write_b64 v14, v[{acc}:{acc+1}] offset:{QKV + mt*16*QP + sg*128}")
    a("s_waitcnt lgkmcnt(0)")
    a(f"s_branch {Latt}")

    a(f"{Lprod}:")
    a("s_sub_u32 s47, s36, 4")
    a("s_lshl_b32 s43, s34, 7")
    a("s_lshl_b32 s44, s35, 3")
    a("s_add_u32 s43, s43, s44")
    a("s_mov_b32 s63, s43")
    a("s_lshl_b32 s44, s47, 1")
    a("s_add_u32 s51, s43, s44")
    a("v_lshlrev_b32 v10, 4, v1")
    srd(a, 20, 32, 2048*8, add_imm=WS_ST1)
    def rows_load(srow, dst=96, add=0):
        a(f"s_lshl_b32 s43, s{srow}, 11")
        if add: a(f"s_add_u32 s43, s43, {add*2048}")
        for q in range(4):
            a(f"buffer_load_dwordx4 v[{dst+4*q}:{dst+4*q+3}], v10, s[8:11], s43 offen offset:{q*1024}")
    def rows_stats(srcb=96):
        for r in range(2):
            sa, qa = 116+4*r, 118+4*r
            for i in range(8):
                src = srcb + 8*r + i
                t = 124 + 2*(i & 1)
                a(f"v_lshlrev_b32 v{t}, 16, v{src}")
                a(f"v_and_b32 v{t+1}, 0xffff0000, v{src}")
                if i == 0:
                    a(f"v_mov_b32 v{sa}, v{t}"); a(f"v_mov_b32 v{sa+1}, v{t+1}")
                    a(f"v_mul_f32 v{qa}, v{t}, v{t}"); a(f"v_mul_f32 v{qa+1}, v{t+1}, v{t+1}")
                else:
                    a(f"v_add_f32 v{sa}, v{sa}, v{t}"); a(f"v_add_f32 v{sa+1}, v{sa+1}, v{t+1}")
                    a(f"v_fmac_f32 v{qa}, v{t}, v{t}"); a(f"v_fmac_f32 v{qa+1}, v{t+1}, v{t+1}")
        R = [116, 118, 120, 122]
        for x in R: a(f"v_add_f32 v{x}, v{x}, v{x+1}")
        a("s_nop 0")
        for sh in (8, 4, 2, 1):
            for x in R: a(f"v_add_f32_dpp v{x}, v{x}, v{x} row_ror:{sh} row_mask:0xf bank_mask:0xf")
        for sw in ("16", "32"):
            for x in R: a(f"v_mov_b32 v{x+1}, v{x}")
            a("s_nop 0")
            for x in R: a(f"v_permlane{sw}_swap_b32 v{x}, v{x+1}")
            for x in R: a(f"v_add_f32 v{x}, v{x}, v{x+1}")
        for r in range(2):
            sv, qv, o = 116+4*r, 118+4*r, 112+2*r
            a(f"v_mul_f32 v{o}, 0x3a800000, v{sv}")
            a(f"v_mul_f32 v{o+1}, 0x3a800000, v{qv}")
            a(f"v_fma_f32 v{o+1}, -v{o}, v{o}, v{o+1}")
            a(f"v_max_f32 v{o+1}, 0, v{o+1}")
            a(f"v_add_f32 v{o+1}, 0x3727c5ac, v{o+1}")
            a(f"v_rsq_f32 v{o+1}, v{o+1}")
        a("s_nop 0")
    def rows_local():
        a("s_lshl_b32 s43, s47, 4")
        a(f"s_add_u32 s43, s43, {LST}")
        a("v_mov_b32 v11, s43")
        a("ds_write_b128 v11, v[112:115]")
        a("s_waitcnt lgkmcnt(0)")
    a("s_cmp_eq_u32 s47, 3")
    a(f"s_cbranch_scc1 {Lpf}")
    a("v_lshrrev_b32 v14, 3, v1")
    a("v_and_b32 v15, 7, v1")
    a("v_and_b32 v16, 2, v14")
    a("v_xor_b32 v16, v15, v16")
    a("v_lshlrev_b32 v16, 4, v16")
    a("v_mul_u32_u24 v17, 6144, v14")
    a("s_lshl_b32 s43, s47, 11")
    a("v_add3_u32 v2, v17, v16, s43")
    a("v_xor_b32 v3, 64, v2")
    a("v_lshrrev_b32 v16, 1, v14")
    a("v_xor_b32 v16, v15, v16")
    a("v_lshlrev_b32 v16, 4, v16")
    a("s_lshl_b32 s43, s47, 3")
    a("s_add_u32 s43, s43, s50")
    a("v_add_u32 v17, s43, v14")
    a("s_and_b32 s44, s47, 1")
    a("s_lshl_b32 s44, s44, 6")
    for i in range(6):
        a(f"v_add_u32 v18, {24*i}, v17")
        a("v_max_i32 v18, 0, v18")
        a("v_lshl_add_u32 v18, v18, 11, v16")
        a("v_xor_b32 v18, s44, v18")
        if i & 1: a(f"v_xor_b32 v{4+i}, 64, v18")
        else: a(f"v_mov_b32 v{4+i}, v18")
    a("s_lshl_b32 s39, s47, 10")
    a("s_lshl_b32 s40, s47, 13")
    a(f"s_add_u32 s40, s40, {XB_}")
    a("s_mov_b32 s37, 0")
    a("s_mov_b32 s38, 0")
    a("s_bfm_b64 s[60:61], 56, 8")
    a("s_cmp_eq_u32 s47, 0")
    a("s_cselect_b64 s[60:61], s[60:61], -1")
    def dma(slot):
        for i in range(6):
            a(f"s_add_u32 m0, s39, {slot*STG1 + i*3072}")
            a("s_mov_b64 exec, s[60:61]" if i == 0 else "s_nop 0")
            if "d" not in strip: a(f"buffer_load_dwordx4 v{4+i}, s[8:11], s37 offen lds")
            if i == 0: a("s_mov_b64 exec, -1")
        for j in range(8):
            a(f"s_add_u32 m0, s40, {slot*STG1 + j*1024}")
            a(f"s_add_u32 s43, s38, {8*j*6144}")
            if "d" not in strip: a(f"buffer_load_dwordx4 v{2+(j&1)}, s[12:15], s43 offen lds")
        a("s_add_u32 s37, s37, 128")
        a(f"s_add_u32 s38, s38, {64*6144}")
    for sl in range(NS): dma(sl)
    rows_load(51)
    a(f"s_waitcnt vmcnt({14*(NS-1) + 4})")
    a("s_barrier")
    def pstage(s, do_dma, vm, extra=None):
        if do_dma: dma((s+2) % NS)
        if extra: extra()
        if vm is not None: a(f"s_waitcnt vmcnt({vm})")
        a("s_barrier")
    pstage(0, False, 14 + 4)
    pstage(1, True, 14)
    def loc():
        rows_stats(); rows_local()
    pstage(2, True, 14, loc)
    pstage(3, True, 14)
    a(f"s_mov_b32 s41, 3")
    Lp = a.label("Lpl")
    a(f"{Lp}:")
    for s in range(4, 7): pstage(s, True, 14)
    a("s_sub_u32 s41, s41, 1")
    a("s_cmp_lg_u32 s41, 0")
    a(f"s_cbranch_scc1 {Lp}")
    pstage(13, True, 14)
    pstage(14, False, 0)
    pstage(15, False, None)
    a("s_barrier")
    a(f"s_branch {Latt}")

    a(f"{Lpf}:")
    PFM = os.environ.get("K1_PF", "mall0")
    PF = PFM == "l2"
    a(f"s_load_dwordx2 s[26:27], s[0:1], {KA_DBG}")
    rows_load(51)
    a("v_min_u32 v14, 23, v1")
    a("v_lshrrev_b32 v15, 3, v14")
    a(f"v_mul_u32_u24 v15, {STG1}, v15")
    a("v_and_b32 v14, 7, v14")
    a("v_lshl_add_u32 v15, v14, 4, v15")
    for i in range(4): a(f"v_mov_b32 v{32+i}, 0x3f803f80")
    a("ds_write_b128 v15, v[32:35]")
    PER = 64 // MX
    NPI = (3*PER + 63) // 64
    for q in range(NPI):
        a(f"v_add_u32 v14, {64*q}, v1")
        a(f"v_min_u32 v14, {3*PER-1}, v14")
        a("v_mul_u32_u24 v15, 21846, v14")
        a("v_lshrrev_b32 v15, 16, v15")
        a("v_mul_u32_u24 v16, 3, v15")
        a("v_sub_u32 v16, v14, v16")
        a(f"s_mul_i32 s43, s48, {PER}")
        a("v_add_u32 v15, s43, v15")
        a("v_mul_u32_u24 v15, 6144, v15")
        a(f"v_lshl_add_u32 v{2+q}, v16, 11, v15")
    vm = []
    def wait_for(tag):
        idx = max(i for i, t in enumerate(vm) if t == tag)
        a(f"s_waitcnt vmcnt({len(vm) - 1 - idx})")
    def l2pf(st):
        if not PF or st >= nst: return
        a(f"s_mov_b32 s43, {st*64*6144}")
        for q in range(NPI):
            a(f"buffer_load_dword v31, v{2+q}, s[12:15], s43 offen"); vm.append("pf")
    a("s_waitcnt lgkmcnt(0)")
    srd(a, 56, 26, 256)
    a("v_lshlrev_b32 v14, 7, v1")
    Lz = a.label("Lz")
    a("s_or_b32 s43, s34, s35")
    a("s_cmp_lg_u32 s43, 0")
    a(f"s_cbranch_scc1 {Lz}")
    flag_srd(a, 84)
    a("v_mov_b32 v5, 0")
    a("buffer_store_dword v5, v14, s[84:87], 0 offen sc1")
    a("s_movk_i32 s43, 0x2000")
    a("buffer_store_dword v5, v14, s[84:87], s43 offen sc1")
    a("s_waitcnt vmcnt(0)")
    a(f"{Lz}:")
    vm.append("rows")
    def mallpf():
        srd(a, 84, 6, 6291456)
        a("s_mul_i32 s43, s2, 24576")
        for q in range(3):
            a(f"buffer_load_dword v31, v14, s[84:87], s43 offen"); vm.append("pf")
            if q < 2: a("s_add_u32 s43, s43, 8192")
    if PFM == "mall0": mallpf()
    stampc(a, "k1", 0)
    a("s_barrier")
    if PFM == "mall1": mallpf()
    stampc(a, "k1", 1)
    GS = int(os.environ.get("K1_GS", "10"))
    SS = int(os.environ.get("K1_SS", "7"))
    PFN = int(os.environ.get("K1_PFN", "4"))
    CS0 = int(os.environ.get("K1_CS0", "14")); WOP = int(os.environ.get("K1_WOP", "13")); WOM = os.environ.get("K1_WOM", "mall")
    Lgd = a.label("Lgd")
    nxt = [3]
    for s in range(nst):
        if s == 2:
            wait_for("rows")
            rows_stats(); rows_local()
        if s == 3:
            a("v_lshlrev_b32 v5, 4, v1")
            a("v_and_b32 v5, 63, v5")
            a(f"v_add_u32 v6, {LST}, v5")
            a("ds_read_b128 v[112:115], v6")
            a("s_lshl_b32 s43, s63, 3")
            a("v_add_u32 v5, s43, v5")
            a("s_waitcnt lgkmcnt(0)")
            a("s_mov_b64 exec, 15")
            a(f"buffer_store_dwordx4 v[112:115], v5, s[20:23], 0 offen sc1"); vm.append("store")
            a("s_mov_b64 exec, -1")
        if s < SS - 2:
            for q in range(PFN):
                l2pf(nxt[0]); nxt[0] += 1
        if s == WOP:
            if WOM == "l2":
                n = pf_w64(a, KA_WO, 1024, list(range(16//MX)), 84, 29, 30); vm.extend(["pf"]*n)
            elif WOM == "mall":
                a(f"s_load_dwordx2 s[88:89], s[0:1], {KA_WO}")
                a("v_lshlrev_b32 v29, 7, v1")
                a("s_lshl_b32 s43, s2, 13")
                a("s_waitcnt lgkmcnt(0)")
                srd(a, 84, 88, 2097152)
                a("buffer_load_dword v30, v29, s[84:87], s43 offen"); vm.append("pf")
        if s == SS:
            a("s_waitcnt vmcnt(0)")
            a("s_lshl_b32 s43, s34, 4")
            a("s_add_u32 s43, s43, s35")
            a("v_mov_b32 v5, s43")
            a("v_mov_b32 v6, 1")
            a("s_mov_b64 exec, 1")
            a("buffer_store_byte v6, v5, s[56:59], 0 offen sc1"); vm.append("at")
            a("s_mov_b64 exec, -1")
        if s == GS:
            a("s_lshl_b32 s43, s34, 4")
            a("s_sub_u32 s44, s43, 4")
            a("s_max_i32 s44, s44, 0")
            a("v_lshl_add_u32 v5, v1, 2, s43")
            a("v_mov_b32 v6, s44")
            a("v_cmp_gt_u32 vcc, 4, v1")
            a("s_nop 1")
            a("v_cndmask_b32 v5, v6, v5, vcc")
            a("v_cmp_eq_u32 vcc, 5, v1")
            a("s_nop 1")
            a("v_cndmask_b32 v5, v5, 0, vcc")
            a("buffer_load_dword v6, v5, s[56:59], 0 offen sc1"); vm.append("poll")
        if s == GS + 2:
            Lpoll = a.label("Lpoll"); Lok = a.label("Lok"); Lfb = a.label("Lfb")
            a("s_mov_b32 s41, 200")
            a("s_mov_b32 s62, 0")
            wait_for("poll")
            a(f"{Lpoll}:")
            a("v_and_b32 v6, 0x01010101, v6")
            a("v_cmp_ne_u32 vcc, 0x01010101, v6")
            a("s_nop 4")
            a(f"s_cbranch_vccz {Lok}")
            a("buffer_load_dword v6, v5, s[56:59], 0 offen sc1")
            a("s_waitcnt vmcnt(0)")
            a("s_sub_u32 s41, s41, 1")
            a("s_cmp_lg_u32 s41, 0")
            a(f"s_cbranch_scc1 {Lpoll}")
            a("s_mov_b32 s41, 0")
            a(f"{Lfb}:")
            a("s_add_u32 s62, s50, s41")
            a("s_max_i32 s62, s62, 0")
            rows_load(62)
            a("s_waitcnt vmcnt(0)")
            rows_stats()
            a("s_lshl_b32 s43, s41, 3")
            a(f"s_add_u32 s43, s43, {RST}")
            a("v_mov_b32 v5, s43")
            a("ds_write_b128 v5, v[112:115]")
            a("s_add_u32 s41, s41, 2")
            a("s_cmp_lt_u32 s41, 144")
            a(f"s_cbranch_scc1 {Lfb}")
            a("s_mov_b32 s62, 1")
            Lz0 = a.label("Lz0")
            a("v_mov_b32 v5, 0")
            a("s_mov_b32 s41, 0x10000")
            a(f"{Lz0}:")
            a("buffer_load_ubyte v6, v5, s[56:59], 0 offen sc1")
            a("s_waitcnt vmcnt(0)")
            a("v_cmp_eq_u32 vcc, 0, v6")
            a("s_nop 4")
            a(f"s_cbranch_vccz {Lok}")
            a("s_sub_u32 s41, s41, 1")
            a("s_cmp_lg_u32 s41, 0")
            a(f"s_cbranch_scc1 {Lz0}")
            a(f"{Lok}:")
            for q in range(3):
                a(f"v_add_u32 v5, {64*q}, v1")
                a("v_min_u32 v5, 143, v5")
                a(f"v_lshlrev_b32 v{20+q}, 3, v5")
                a("v_add_u32 v5, s50, v5")
                a("v_max_i32 v5, 0, v5")
                a("v_lshlrev_b32 v5, 3, v5")
                a(f"buffer_load_dwordx2 v[{32+2*q}:{33+2*q}], v5, s[20:23], 0 offen sc1"); vm.append("gather")
        if s == GS + 4:
            wait_for("gather")
            a("s_cmp_eq_u32 s62, 1")
            a(f"s_cbranch_scc1 {Lgd}")
            for q in range(3):
                a(f"v_add_u32 v{20+q}, {RST}, v{20+q}")
                a(f"ds_write_b64 v{20+q}, v[{32+2*q}:{33+2*q}]")
            a(f"{Lgd}:")
            a("s_waitcnt lgkmcnt(0)")
        if s in (CS0, CS0+1):
            Lnj = a.label("Lnj")
            cs_setup(a, Lnj, 84, 28)
            for q in range(16*(s-CS0), 16*(s-CS0+1)): cs_issue(a, q, 84, 28)
            a(f"{Lnj}:")
        a("s_barrier")
        stampc(a, "k1", s+2)
    a("s_barrier")
    stampc(a, "k1", 18)

    a(f"{Latt}:")
    a("s_barrier")
    stampc(a, "k1", 19)
    stamp(a, 3)
    a("s_and_b32 s43, s36, 1")
    a("s_lshr_b32 s44, s36, 1")
    a("s_and_b32 s44, s44, 1")
    a("s_lshr_b32 s45, s36, 2")
    a("v_lshlrev_b32 v14, 2, v13")
    a("v_sub_u32 v14, v12, v14")
    for r in range(4):
        a(f"v_subrev_u32 v15, {r}, v14")
        a(f"v_cmp_ge_u32 s[{52+2*r}:{53+2*r}], 7, v15")
        a(f"v_add_u32 v15, 16, v15")
        a(f"v_cmp_ge_u32 s[{84+2*r}:{85+2*r}], 7, v15")
    a("s_lshl_b32 s46, s45, 6")
    a("s_add_u32 s46, s46, s44")
    a("s_add_u32 s46, s46, 16")
    a("v_lshl_add_u32 v14, v12, 1, s46")
    a("s_lshl_b32 s47, s43, 6")
    a("v_lshl_add_u32 v15, v13, 4, s47")
    a(f"v_mul_u32_u24 v2, {QP}, v14")
    a("v_add_u32 v2, v2, v15")
    a("v_subrev_u32 v16, 32, v14")
    a("v_max_i32 v16, 0, v16")
    a(f"v_mul_u32_u24 v3, {QP}, v16")
    a("v_add_u32 v3, v3, v15")
    a("v_lshrrev_b32 v16, 2, v12")
    a("v_lshl_add_u32 v16, v13, 2, v16")
    a("v_lshl_add_u32 v16, v16, 1, s46")
    a("v_and_b32 v17, 3, v1")
    a("v_lshl_add_u32 v17, v17, 3, s47")
    a(f"v_mul_u32_u24 v4, {QP}, v16")
    a("v_add_u32 v4, v4, v17")
    a("v_subrev_u32 v16, 32, v16")
    a("v_max_i32 v16, 0, v16")
    a(f"v_mul_u32_u24 v5, {QP}, v16")
    a("v_add_u32 v5, v5, v17")
    a("s_lshl_b32 s60, s43, 13")
    a("s_lshl_b32 s61, s45, 10")
    a("s_add_u32 s60, s60, s61")
    a("s_lshl_b32 s61, s44, 8")
    a("s_add_u32 s60, s60, s61")
    a("v_lshlrev_b32 v6, 11, v13")
    a("v_lshl_add_u32 v6, v12, 4, v6")
    a("v_add_u32 v6, s60, v6")
    a("v_mov_b32 v8, 0xff800000")
    CS = (32 ** -0.5) * 1.4426950408889634
    a(f"s_mov_b32 s61, {fh(CS)}")
    a("s_or_b32 s62, s34, s45")
    U = 32*QP
    for u in range(2):
        B = 32 + 48*u
        uo = u*U
        a(f"ds_read_b128 v[{B}:{B+3}], v2 offset:{QKV + uo}")
        a(f"ds_read_b128 v[{B+4}:{B+7}], v2 offset:{QKV + uo + 128}")
        if u == 0: a(f"ds_read_b128 v[{B+8}:{B+11}], v3 offset:{QKV + 128}")
        else: a(f"ds_read_b128 v[{B+8}:{B+11}], v2 offset:{QKV + 128}")
        for dh in range(2):
            if u == 0: a(f"ds_read_b64_tr_b16 v[{B+12+4*dh}:{B+13+4*dh}], v5 offset:{QKV + 256 + dh*32}")
            else: a(f"ds_read_b64_tr_b16 v[{B+12+4*dh}:{B+13+4*dh}], v4 offset:{QKV + 256 + dh*32}")
            a(f"ds_read_b64_tr_b16 v[{B+14+4*dh}:{B+15+4*dh}], v4 offset:{QKV + uo + 256 + dh*32}")
    for u in range(2):
        B = 32 + 48*u
        a(f"s_waitcnt lgkmcnt({11 if u == 0 else 4})")
        a(f"v_mfma_f32_16x16x32_bf16 v[{B+20}:{B+23}], v[{B+8}:{B+11}], v[{B}:{B+3}], 0")
        a(f"v_mfma_f32_16x16x32_bf16 v[{B+24}:{B+27}], v[{B+4}:{B+7}], v[{B}:{B+3}], 0")
    a("s_nop 4")
    for u in range(2):
        B = 32 + 48*u
        S = B + 20
        if u == 0:
            a("s_cmp_lg_u32 s62, 0")
            for r in range(4): a(f"s_cselect_b64 s[{92}:{93}], s[{84+2*r}:{85+2*r}], 0\nv_cndmask_b32 v{S+r}, v8, v{S+r}, s[92:93]")
        else:
            for r in range(4): a(f"v_cndmask_b32 v{S+r}, v8, v{S+r}, s[{84+2*r}:{85+2*r}]")
        for r in range(4): a(f"v_cndmask_b32 v{S+4+r}, v8, v{S+4+r}, s[{52+2*r}:{53+2*r}]")
        M = B + 28; T = B + 29
        a(f"v_max3_f32 v{M}, v{S}, v{S+1}, v{S+2}")
        a(f"v_max3_f32 v{M}, v{M}, v{S+3}, v{S+4}")
        a(f"v_max3_f32 v{M}, v{M}, v{S+5}, v{S+6}")
        a(f"v_max_f32 v{M}, v{M}, v{S+7}")
        for sw in ("32", "16"):
            a(f"v_mov_b32 v{T}, v{M}")
            a("s_nop 1")
            a(f"v_permlane{sw}_swap_b32 v{M}, v{T}")
            a(f"v_max_f32 v{M}, v{M}, v{T}")
        a(f"v_mul_f32 v{M}, s61, v{M}")
        for r in range(8): a(f"v_fma_f32 v{S+r}, v{S+r}, s61, -v{M}")
        for r in range(8): a(f"v_exp_f32 v{S+r}, v{S+r}")
        a("s_nop 0")
        a(f"v_add_f32 v{M}, v{S}, v{S+1}")
        for r in range(2, 8): a(f"v_add_f32 v{M}, v{M}, v{S+r}")
        P = B + 32
        for q in range(4): a(f"v_cvt_pk_bf16_f32 v{P+q}, v{S+2*q}, v{S+2*q+1}")
        for sw in ("32", "16"):
            a(f"v_mov_b32 v{T}, v{M}")
            a("s_nop 1")
            a(f"v_permlane{sw}_swap_b32 v{M}, v{T}")
            a(f"v_add_f32 v{M}, v{M}, v{T}")
        a(f"v_rcp_f32 v{M}, v{M}")
        a("s_waitcnt lgkmcnt(0)")
        O = B + 36
        for dh in range(2):
            a(f"v_mfma_f32_16x16x32_bf16 v[{O+4*dh}:{O+4*dh+3}], v[{B+12+4*dh}:{B+15+4*dh}], v[{P}:{P+3}], 0")
    a("s_nop 4")
    for u in range(2):
        B = 32 + 48*u
        M = B + 28; O = B + 36
        for r in range(8): a(f"v_mul_f32 v{O+r}, v{M}, v{O+r}")
        for q in range(4): a(f"v_cvt_pk_bf16_f32 v{O+q}, v{O+2*q}, v{O+2*q+1}")
        a(f"buffer_store_dwordx4 v[{O}:{O+3}], v6, s[16:19], 0 offen offset:{512*u} sc1")
    stamp(a, 4)
    a("s_waitcnt vmcnt(0)")
    a("s_barrier")
    flag_srd(a, 56)
    Ls = a.label("Lsig")
    a("s_cmp_lg_u32 s36, 0")
    a(f"s_cbranch_scc1 {Ls}")
    flag_signal(a, 56, "o", 34)
    a(f"{Ls}:")
    stamp(a, 5)
    stampc(a, "k1", 20)
```

```python
import os, struct
from common import *

def fh(x): return "0x%08x" % struct.unpack("<I", struct.pack("<f", x))[0]
def env(k, d): return int(os.environ.get(k, str(d)))

C0_ = -2.0*0.7978845608028654*1.4426950408889634
C1_ = C0_*0.044715
XF = os.environ.get("XF", " sc1")
SET = [32, 80]
ACC = 128
NST4 = 56


class VM:
    def __init__(self, a): self.a = a; self.q = []
    def add(self, tag, n=1): self.q += [tag]*n
    def cnt(self, tag):
        idx = max(i for i, t in enumerate(self.q) if t == tag)
        return len(self.q) - 1 - idx
    def wait(self, tag):
        n = self.cnt(tag); assert n <= 63, n
        return f"s_waitcnt vmcnt({n})"
    def reset(self): self.q = []


def spread(main, items):
    out = []
    n, k = len(main), len(items)
    j = 0
    for i in range(n + 1):
        while j < k and j*n <= i*k:
            out += items[j]; j += 1
        if i < n: out.append(main[i])
    while j < k: out += items[j]; j += 1
    return out


def lane_ig(a):
    a("v_and_b32 v17, 15, v1")
    a("v_lshrrev_b32 v18, 4, v1")


def g2_addrs():
    r = []
    r.append("v_lshlrev_b32 v19, 11, v18")
    r.append("v_lshl_add_u32 v19, v17, 4, v19")
    r.append("s_lshl_b32 s43, s36, 9")
    r.append("v_add_u32 v2, s43, v19")
    r.append(f"v_add_u32 v3, {REG}, v2")
    r.append(f"v_add_u32 v4, {2*REG}, v2")
    r.append("v_lshrrev_b32 v19, 2, v17")
    r.append("v_lshl_add_u32 v20, v18, 2, v19")
    r.append("v_bfe_u32 v21, v20, 1, 2")
    r.append("v_lshlrev_b32 v20, 7, v20")
    r.append("v_lshl_add_u32 v20, v21, 5, v20")
    r.append("v_and_b32 v19, 3, v1")
    r.append("v_lshl_add_u32 v20, v19, 3, v20")
    r.append("v_add_u32 v5, 16384, v20")
    for t in range(1, 4): r.append(f"v_xor_b32 v{5+t}, {32*t}, v5")
    for rg in range(1, 3):
        for t in range(4): r.append(f"v_add_u32 v{5+4*rg+t}, {rg*REG}, v{5+t}")
    return r

def g2_reads(slot, base):
    rg, so = slot >> 1, (slot & 1)*SLOT
    def xr(kb, tl): return f"ds_read_b128 v[{base+(kb*2+tl)*4}:{base+(kb*2+tl)*4+3}], v{2+rg} offset:{so + kb*8192 + tl*256}"
    def wr(kb, t, h):
        d = base + 16 + (kb*4+t)*4 + 2*h
        return f"ds_read_b64_tr_b16 v[{d}:{d+1}], v{5+4*rg+t} offset:{so + kb*4096 + h*2048}"
    r = []
    for kb in range(2):
        r += [xr(kb, 0), wr(kb, 0, 0), wr(kb, 0, 1), wr(kb, 1, 0), wr(kb, 1, 1), xr(kb, 1), wr(kb, 2, 0), wr(kb, 2, 1), wr(kb, 3, 0), wr(kb, 3, 1)]
    return r

def g2_mfmas(base):
    r = []
    for kb in range(2):
        for tl in range(2):
            for t in range(4):
                acc = ACC + (tl*4+t)*4
                w = base + 16 + (kb*4+t)*4; x = base + (kb*2+tl)*4
                r.append(f"v_mfma_f32_16x16x32_bf16 v[{acc}:{acc+3}], v[{w}:{w+3}], v[{x}:{x+3}], v[{acc}:{acc+3}]")
    return r

def g2_stage(a, s, slot_next, pre=None):
    a("s_waitcnt lgkmcnt(0)" if pre is None else f"s_waitcnt vmcnt({pre}) lgkmcnt(0)")
    a("s_barrier")
    m = g2_mfmas(SET[s & 1])
    rd = [] if slot_next is None else g2_reads(slot_next, SET[(s+1) & 1])
    k = 0
    for i in range(16):
        a(m[i])
        for q in range(2 if i < 6 else 1):
            if k < len(rd): a(rd[k]); k += 1

def g2_loop(a, s0, nst, off, pres={}):
    s = s0
    while s in pres or (s % 6 != 0 and False):
        g2_stage(a, s, (s+1+off) % 6, pres[s]); s += 1
    nl = (nst - 1 - s)//6
    if nl > 0:
        L = a.label("Lg2")
        a(f"s_mov_b32 s41, {nl}")
        a(f"{L}:")
        for q in range(6): g2_stage(a, s+q, (s+q+1+off) % 6)
        a("s_sub_u32 s41, s41, 1")
        a("s_cmp_lg_u32 s41, 0")
        a(f"s_cbranch_scc1 {L}")
        s += 6*nl
    while s < nst:
        g2_stage(a, s, None if s == nst-1 else (s+1+off) % 6); s += 1


def k3_addrs(nj, t0):
    r = []
    r.append("v_lshlrev_b32 v19, 11, v18")
    r.append("v_lshl_add_u32 v19, v17, 4, v19")
    r.append("s_lshl_b32 s43, s46, 10")
    r.append("v_add_u32 v2, s43, v19")
    r.append(f"v_add_u32 v3, {REG}, v2")
    r.append(f"v_add_u32 v4, {2*REG}, v2")
    r.append("v_lshrrev_b32 v19, 2, v17")
    r.append("v_lshl_add_u32 v20, v18, 2, v19")
    r.append("v_and_b32 v21, 7, v20")
    r.append("v_lshlrev_b32 v20, 8, v20")
    r.append("v_and_b32 v19, 3, v1")
    r.append("v_lshl_add_u32 v20, v19, 3, v20")
    for j in range(nj):
        r.append(f"s_add_u32 s43, s{t0}, {j}")
        r.append("v_xor_b32 v19, s43, v21")
        r.append(f"v_lshl_add_u32 v{5+j}, v19, 5, v20")
    for rg in range(1, 3):
        for j in range(nj): r.append(f"v_add_u32 v{5+4*rg+j}, {rg*REG}, v{5+j}")
    return r

def k3_acc(nj, mat, j, tl): return ACC + ((mat*nj + j)*4 + tl)*4

def k3_reads(nj, sig, kk, base):
    rg = (sig + 2) % 3
    def xr(tl): return f"ds_read_b128 v[{base+4*tl}:{base+4*tl+3}], v{2+rg} offset:{kk*8192 + tl*256}"
    def wr(mat, j, h):
        d = base + 16 + (mat*nj+j)*4 + 2*h
        return f"ds_read_b64_tr_b16 v[{d}:{d+1}], v{5+4*rg+j} offset:{16384*(1+mat) + kk*8192 + h*4096}"
    r = [xr(0), wr(0, 0, 0), wr(0, 0, 1), xr(1), xr(2), xr(3), wr(1, 0, 0), wr(1, 0, 1)]
    for j in range(1, nj): r += [wr(0, j, 0), wr(0, j, 1), wr(1, j, 0), wr(1, j, 1)]
    return r

def k3_mfmas(nj, base):
    r = []
    for j in range(nj):
        for mat in range(2):
            for tl in range(4):
                acc = k3_acc(nj, mat, j, tl)
                w = base + 16 + (mat*nj+j)*4; x = base + 4*tl
                r.append(f"v_mfma_f32_16x16x32_bf16 v[{acc}:{acc+3}], v[{w}:{w+3}], v[{x}:{x+3}], v[{acc}:{acc+3}]")
    return r

def k3_half1(a, nj, sig, vmw=None):
    a("s_waitcnt lgkmcnt(0)")
    for i in interleave(k3_mfmas(nj, SET[0]), k3_reads(nj, sig, 1, SET[1])): a(i)
    a("s_waitcnt lgkmcnt(0)" if vmw is None else f"s_waitcnt vmcnt({vmw}) lgkmcnt(0)")
    a("s_barrier")
def k3_half2(a, nj, sig):
    for i in interleave(k3_mfmas(nj, SET[1]), k3_reads(nj, sig+1, 0, SET[0])): a(i)

def k3_consumer(a, nj, sig0, vmw):
    L = a.label("Lk3")
    a("s_mov_b32 s41, 5")
    a(f"{L}:")
    for q in range(3):
        k3_half1(a, nj, sig0+q, vmw[q] if q < len(vmw) else None)
        k3_half2(a, nj, sig0+q)
    a("s_sub_u32 s41, s41, 1")
    a("s_cmp_lg_u32 s41, 0")
    a(f"s_cbranch_scc1 {L}")
    k3_half1(a, nj, sig0+15)


def k3_dma_setup(part, psg, vE=22):
    r = []
    if part == 0: r.append("s_lshl_b32 s43, s35, 8")
    else:
        r.append("s_mul_i32 s43, s35, 192")
        r.append("s_and_b32 s43, s43, 0xffffff80")
        r.append("s_add_u32 s43, s43, 4096")
    r.append(f"s_cmp_eq_u32 s{psg}, 1")
    r.append("s_cselect_b32 s8, s4, s6")
    r.append("s_cselect_b32 s9, s5, s7")
    r.append("s_sub_u32 s10, 7340032, s43")
    r.append("s_lshl_b32 s44, s34, 18")
    r.append(f"s_add_u32 s44, s44, {WS_H}")
    r.append("s_movk_i32 s38, 28672")
    r.append(f"s_cmp_eq_u32 s{psg}, 0")
    r.append("s_cselect_b32 s8, s32, s8")
    r.append("s_cselect_b32 s9, s33, s9")
    r.append("s_cselect_b32 s10, 262144, s10")
    r.append("s_cselect_b32 s43, s44, s43")
    r.append("s_cselect_b32 s38, 1024, s38")
    r.append("s_cselect_b32 s45, 0, -1")
    r.append("s_add_u32 s8, s8, s43")
    r.append("s_addc_u32 s9, s9, 0")
    r.append("s_mov_b32 s11, 0x20000")
    r.append("s_sub_u32 s37, 0, s38")
    r.append(f"s_lshl_b32 s39, s{psg}, 14")
    r.append("v_lshrrev_b32 v19, 4, v1")
    r.append("v_lshlrev_b32 v20, 5, v19")
    r.append("v_mul_u32_u24 v19, 6912, v19")
    r.append("v_and_b32 v19, s45, v19")
    r.append("v_and_b32 v20, s45, v20")
    r.append("v_lshlrev_b32 v21, 4, v1")
    r.append("v_xor_b32 v21, v21, v20")
    r.append(f"v_add_u32 v{vE}, v21, v19")
    r.append("s_and_b32 s45, s45, 128")
    r.append(f"v_xor_b32 v{vE+1}, s45, v{vE}")
    return r

def k3_items(sig, vE=22):
    rg = (sig + 2) % 3
    return [[f"s_add_u32 m0, s39, {rg*REG + j*1024}", "s_add_u32 s37, s37, s38",
             f"buffer_load_dwordx4 v{vE + (j & 1)}, s[8:11], s37 offen{XF} lds"] for j in range(16)]

def g2_dma_setup(psg, A_off, A_mul, A_bytes, K, wreg, vA=21, hop=8):
    r = []
    r.append(f"s_mul_i32 s44, s34, {A_mul}")
    r.append(f"s_lshl_b32 s39, s{psg}, 13")
    r.append("s_add_u32 s44, s44, s39")
    r.append(f"s_add_u32 s44, s44, {A_off}")
    r.append("s_lshl_b32 s43, s35, 7")
    r.append(f"s_mov_b32 s10, {A_bytes - 8192}")
    r.append("s_movk_i32 s38, 1024")
    r.append("s_movk_i32 s40, 9216")
    r.append(f"s_cmp_eq_u32 s{psg}, 2")
    r.append(f"s_cselect_b32 s8, s{wreg}, s32")
    r.append(f"s_cselect_b32 s9, s{wreg+1}, s33")
    r.append(f"s_cselect_b32 s10, {K*2048 - 1920}, s10")
    r.append("s_cselect_b32 s43, s43, s44")
    r.append("s_cselect_b32 s38, 16384, s38")
    r.append(f"s_cselect_b32 s40, {hop*2048}, s40")
    r.append(f"s_cselect_b32 s55, {hop*2048}, s38")
    r.append("s_cselect_b32 s45, -1, 0")
    r.append("s_add_u32 s8, s8, s43")
    r.append("s_addc_u32 s9, s9, 0")
    r.append("s_mov_b32 s11, 0x20000")
    r.append("s_sub_u32 s37, 0, s40")
    r.append("v_lshrrev_b32 v19, 3, v1")
    r.append("v_mul_u32_u24 v19, 1920, v19")
    r.append("v_lshrrev_b32 v20, 4, v1")
    r.append("v_lshlrev_b32 v20, 5, v20")
    r.append("v_and_b32 v19, s45, v19")
    r.append("v_and_b32 v20, s45, v20")
    r.append(f"v_lshlrev_b32 v{vA}, 4, v1")
    r.append(f"v_xor_b32 v{vA}, v{vA}, v20")
    r.append(f"v_add_u32 v{vA}, v{vA}, v19")
    return r

def g2_items(slot, vA=21, wrows=None):
    r = []
    for k in range(8):
        if wrows is None: inc = f"s_add_u32 s37, s37, s{40 if k == 0 else 55 if k == 4 else 38}"
        else: inc = f"s_add_u32 s37, s37, {(wrows[k]*2048) & 0xffffffff}"
        r.append([f"s_add_u32 m0, s39, {slot*SLOT + k*1024}", inc, f"buffer_load_dwordx4 v{vA}, s[8:11], s37 offen{XF} lds"])
    return r

def wd_row(item):
    if item < 256:
        s, k = item >> 3, item & 7
        return 128*(s & 15) + 32*(s >> 4) + 64*(k >> 2) + 8*(k & 3)
    q = item - 256
    return 2048 + 96*(q // 12) + [0, 8, 16, 24, 48, 56, 64, 72, 32, 80, 40, 88][q % 12]


CSR = 48
TT = 80
def epi_reads(nj, csbase):
    rd = []
    rd.append("s_lshl_b32 s43, s46, 9")
    rd.append(f"s_add_u32 s43, s43, {STATS}")
    rd.append("v_lshl_add_u32 v19, v17, 3, s43")
    for tl in range(4): rd.append(f"ds_read_b64 v[{TT+2*tl}:{TT+2*tl+1}], v19 offset:{tl*128}")
    rd.append(f"s_mul_i32 s43, s47, {nj*64}")
    rd.append(f"s_add_u32 s43, s43, {CSF + csbase*4}")
    rd.append("v_lshl_add_u32 v19, v18, 4, s43")
    for mat in range(2):
        for j in range(nj):
            d = CSR + (mat*nj+j)*4
            rd.append(f"ds_read_b128 v[{d}:{d+3}], v19 offset:{mat*896 + j*64}")
    return rd
def epi_consts(KB, mean=True):
    c = []
    for tl in range(4):
        mn, rs = TT+2*tl, TT+2*tl+1
        if mean: c.append(f"v_mov_b32 v{KB+tl}, v{mn}")
        c.append(f"v_mul_f32 v{TT+8}, v{rs}, v{rs}")
        c.append(f"v_mul_f32 v{KB+4+tl}, {fh(C0_)}, v{rs}")
        c.append(f"v_mul_f32 v{TT+9}, {fh(C1_)}, v{rs}")
        c.append(f"v_rcp_f32 v{KB+12+tl}, v{TT+8}")
        c.append(f"v_mul_f32 v{KB+8+tl}, v{TT+9}, v{TT+8}")
    return c

def epi_group(nj, tl, j, out, KB, ln=True):
    G = k3_acc(nj, 0, j, tl); U = k3_acc(nj, 1, j, tl)
    cg = CSR + j*4; cu = CSR + (nj+j)*4
    KM, K0, K1, KI = KB+tl, KB+4+tl, KB+8+tl, KB+12+tl
    T = TT + 4*(j & 1)
    r = []
    if ln:
        for q in range(4): r.append(f"v_fma_f32 v{G+q}, -v{KM}, v{cg+q}, v{G+q}")
        for q in range(4): r.append(f"v_fma_f32 v{U+q}, -v{KM}, v{cu+q}, v{U+q}")
    for q in range(4): r.append(f"v_mul_f32 v{T+q}, v{G+q}, v{G+q}")
    for q in range(4): r.append(f"v_fma_f32 v{T+q}, v{T+q}, v{K1}, v{K0}")
    for q in range(4): r.append(f"v_mul_f32 v{T+q}, v{T+q}, v{G+q}")
    for q in range(4): r.append(f"v_exp_f32 v{T+q}, v{T+q}")
    for q in range(4): r.append(f"v_mul_f32 v{U+q}, v{G+q}, v{U+q}")
    for q in range(4): r.append(f"v_fma_f32 v{T+q}, v{T+q}, v{KI}, v{KI}")
    for q in range(4): r.append(f"v_rcp_f32 v{T+q}, v{T+q}")
    for q in range(4): r.append(f"v_mul_f32 v{U+q}, v{U+q}, v{T+q}")
    r.append(f"v_cvt_pk_bf16_f32 v{out}, v{U}, v{U+1}")
    r.append(f"v_cvt_pk_bf16_f32 v{out+1}, v{U+2}, v{U+3}")
    return r

ST = "#ST "
KA, KBB = 32, 224
def epi_a():
    r = []
    for q in range(2):
        for tl in range(4):
            o = 96 + 4*tl
            r += epi_group(4, tl, 2*q, o, KA) + epi_group(4, tl, 2*q+1, o+2, KA)
            r.append(ST + f"{q}buffer_store_dwordx4 v[{o}:{o+3}], v27, s[24:27], {'s53' if q else '0'} offen offset:{tl*256} sc1")
    return r
def epi_b():
    r = []
    for tp in range(2):
        lo = 112 + 4*tp
        for tl in (2*tp, 2*tp+1):
            o = 96 + 4*tl
            r += epi_group(3, tl, 0, o, KBB, False) + epi_group(3, tl, 1, o+2, KBB, False)
            r.append(ST + f"0buffer_store_dwordx4 v[{o}:{o+3}], v27, s[24:27], 0 offen offset:{tl*256} sc1")
            r += epi_group(3, tl, 2, lo + 2*(tl & 1), KBB, False)
        r.append("s_nop 1")
        r.append(f"v_permlane32_swap_b32 v{lo}, v{lo+2}")
        r.append(f"v_permlane32_swap_b32 v{lo+1}, v{lo+3}")
        r.append(ST + f"0buffer_store_dwordx4 v[{lo}:{lo+3}], v28, s[24:27], 0 offen offset:{tp*512} sc1")
    return r

def epi_store_setup(part):
    r = []
    r.append(f"s_mul_i32 s43, s34, {HH_M}")
    r.append(f"s_mul_i32 s44, s35, {16384 if part == 0 else 24576}")
    r.append("s_add_u32 s43, s43, s44")
    r.append(f"s_add_u32 s43, s43, {WS_HH + (0 if part == 0 else 524288)}")
    r.append("s_add_u32 s24, s32, s43")
    r.append("s_addc_u32 s25, s33, 0")
    r.append(f"s_mov_b32 s26, {262144 + 16384 if part == 0 else 24576}")
    r.append("s_mov_b32 s27, 0x20000")
    r.append("s_mov_b32 s53, 262144")
    r.append("s_lshl_b32 s43, s47, 13")
    r.append("s_lshl_b32 s44, s46, 10")
    r.append("s_add_u32 s43, s43, s44")
    r.append("v_lshlrev_b32 v19, 11, v18")
    r.append("v_lshl_add_u32 v19, v17, 4, v19")
    r.append("v_add_u32 v27, s43, v19")
    if part == 1:
        r.append("s_lshl_b32 s43, s47, 12")
        r.append("s_add_u32 s43, s43, s44")
        r.append("s_add_u32 s43, s43, 16384")
        r.append("v_and_b32 v19, 1, v18")
        r.append("v_lshlrev_b32 v19, 11, v19")
        r.append("v_lshrrev_b32 v20, 1, v18")
        r.append("v_lshl_add_u32 v19, v20, 8, v19")
        r.append("v_lshl_add_u32 v19, v17, 4, v19")
        r.append("v_add_u32 v28, s43, v19")
    return r

STRIP = os.environ.get("STRIP", "").split(",")
def strip(lst, key):
    return [("s_nop 0" if key in STRIP else i) for i in lst]
_k3_mfmas, _k3_reads, _k3_items, _g2_mfmas, _g2_reads, _g2_items = k3_mfmas, k3_reads, k3_items, g2_mfmas, g2_reads, g2_items
def k3_mfmas(*x): return strip(_k3_mfmas(*x), "m3")
def k3_reads(*x): return strip(_k3_reads(*x), "r3")
def g2_mfmas(*x): return strip(_g2_mfmas(*x), "m4")
def g2_reads(*x): return strip(_g2_reads(*x), "r4")
def k3_items(*x, **k):
    r = _k3_items(*x, **k)
    if "d3" in STRIP: r = [g[:2] + ["s_nop 0 ;buffer_load lds"] for g in r]
    if "h3" in STRIP: r[0][1] = "s_mov_b32 s37, 0"
    return r
def g2_items(*x, **k):
    r = _g2_items(*x, **k)
    if "d4" in STRIP: r = [g[:2] + ["s_nop 0 ;buffer_load lds"] for g in r]
    if "h4" in STRIP: r[0][1] = "s_mov_b32 s37, 0x20000"
    return r

def emit(a, vm, seq, tag):
    for i in seq:
        if i.startswith(ST):
            a(i[len(ST)+1:]); vm.add("st" + i[len(ST)])
        else:
            a(i)
            if "buffer_load" in i and i.endswith("lds"): vm.add(tag)
            elif i.startswith("buffer_"): vm.add("x")

def st_last(seq):
    if not env("STLAST", 1): return seq
    return [i for i in seq if not i.startswith(ST)] + [i for i in seq if i.startswith(ST)]
def chunks(lst, n):
    return [lst[len(lst)*k//n:len(lst)*(k+1)//n] for k in range(n)]
def flat(g): return sum(g, [])
def last_with(cs, tag): return max(k for k, c in enumerate(cs) if any(i.startswith(ST + tag) for i in c))


def phase_234(a, Ld):
    PRIO = env("PRIO", 1)
    LG1 = a.label("LG1")
    a(f"s_load_dwordx4 s[4:7], s[0:1], {KA_WG}")
    a(f"s_load_dwordx2 s[28:29], s[0:1], {KA_WO}")
    a(f"s_load_dwordx4 s[60:63], s[0:1], {KA_WD}")
    a(f"s_load_dwordx2 s[30:31], s[0:1], {KA_X}")
    lane_ig(a)
    a("s_lshr_b32 s46, s36, 1")
    a("s_and_b32 s46, s46, 1")
    a("s_and_b32 s47, s36, 1")
    a("s_and_b32 s51, s36, 3")
    a("s_waitcnt lgkmcnt(0)")
    a("s_cmp_ge_u32 s36, 4")
    a(f"s_cbranch_scc1 {LG1}")

    a("s_lshl_b32 s43, s34, 18")
    a("s_lshl_b32 s44, s35, 7")
    a("s_add_u32 s43, s43, s44")
    srd(a, 16, 30, 127*2048 + 128, add_lo=43)
    a("s_lshl_b32 s43, s36, 5")
    a("v_lshl_add_u32 v19, v17, 1, s43")
    a("v_lshlrev_b32 v19, 11, v19")
    a("v_lshl_add_u32 v23, v18, 3, v19")
    for tl in range(2):
        for t in range(4):
            d = 160 + (tl*4+t)*2
            a(f"buffer_load_dwordx2 v[{d}:{d+1}], v23, s[16:19], 0 offen offset:{tl*2048 + t*32}")
    for i in g2_addrs(): a(i)
    a("s_lshl_b32 s43, s34, 18")
    a("s_lshl_b32 s44, s35, 14")
    a("s_add_u32 s43, s43, s44")
    srd(a, 20, 32, 16384, add_lo=43, add_imm=WS_H)
    a("s_lshl_b32 s43, s34, 14")
    a("s_lshl_b32 s44, s35, 10")
    a("s_add_u32 s43, s43, s44")
    srd(a, 24, 32, 1024, add_lo=43, add_imm=WS_ST2)
    a("s_movk_i32 s50, 0x2000")
    a("s_mov_b32 s52, 0x3f803f80")
    a("v_lshrrev_b32 v19, 1, v18")
    a("v_lshl_add_u32 v19, v19, 4, v17")
    a("s_lshl_b32 s43, s36, 5")
    a("v_add_u32 v19, s43, v19")
    a("v_and_b32 v20, 1, v18")
    a("v_lshlrev_b32 v20, 2, v20")
    a("v_lshl_add_u32 v22, v19, 3, v20")
    a("s_waitcnt vmcnt(0)")
    for k in range(8):
        for h in range(2):
            a(f"v_lshlrev_b32 v{ACC+4*k+2*h}, 16, v{160+2*k+h}")
            a(f"v_and_b32 v{ACC+4*k+2*h+1}, 0xffff0000, v{160+2*k+h}")
    def o_first_setup():
        a("s_lshl_b32 s43, s34, 18")
        srd(a, 12, 32, 262144, add_lo=43, add_imm=WS_O)
        a("v_lshlrev_b32 v21, 4, v1")
        a("s_lshl_b32 s54, s36, 11")
    def o_first():
        for sg in range(2):
            for e in range(2):
                a(f"s_add_u32 m0, s54, {sg*SLOT + e*1024}")
                a(f"s_add_u32 s43, s54, {sg*16384 + e*1024}")
                a(f"buffer_load_dwordx4 v21, s[12:15], s43 offen{XF} lds")
    o_first_setup()
    a("s_barrier")
    o_first()
    a("s_waitcnt vmcnt(2)")
    a("s_barrier")
    stamp(a, 6)
    for i in g2_reads(0, SET[0]): a(i)
    g2_loop(a, 0, 16, 0, pres={0: 0, 1: None})
    stamp(a, 7)
    a("s_nop 4")
    P = 96
    for tl in range(2):
        for kb in range(2):
            o = P + (tl*2+kb)*4
            for hf in range(2):
                s = ACC + (tl*4 + 2*kb + hf)*4
                a(f"v_cvt_pk_bf16_f32 v{o+2*hf}, v{s}, v{s+1}")
                a(f"v_cvt_pk_bf16_f32 v{o+2*hf+1}, v{s+2}, v{s+3}")
            a(f"buffer_store_dwordx4 v[{o}:{o+3}], v2, s[20:23], {'s50' if kb else '0'} offen offset:{tl*256} sc1")
    for q in range(8):
        for tl in range(2):
            src = P + tl*8 + q
            a(f"v_dot2_f32_bf16 v{112+2*tl}, v{src}, s52, {'0' if q == 0 else 'v%d' % (112+2*tl)}")
            a(f"v_dot2_f32_bf16 v{113+2*tl}, v{src}, v{src}, {'0' if q == 0 else 'v%d' % (113+2*tl)}")
    a("s_nop 2")
    a("v_permlane32_swap_b32 v112, v114")
    a("v_permlane32_swap_b32 v113, v115")
    a("v_add_f32 v112, v112, v114")
    a("v_add_f32 v113, v113, v115")
    a("s_nop 1")
    a("v_permlane16_swap_b32 v112, v113")
    a("v_add_f32 v112, v112, v113")
    a("buffer_store_dword v112, v22, s[24:27], 0 offen sc1")
    a("s_waitcnt vmcnt(0)")
    a("s_barrier")
    Ls = a.label("Lsig")
    a("s_cmp_lg_u32 s36, 0")
    a(f"s_cbranch_scc1 {Ls}")
    flag_signal(a, 56, "h", 34, v=19)
    a(f"{Ls}:")
    stamp(a, 8)
    a("s_lshl_b32 s53, s47, 2")
    for i in k3_addrs(4, 53): a(i)
    for i in range(128): a(f"v_mov_b32 v{ACC+i}, 0")
    for i in k3_dma_setup(1, 51) + ["s_mul_i32 s43, s38, 32", "s_add_u32 s37, s37, s43"]: a(i)
    for i in epi_store_setup(0): a(i)
    def out_setup():
        r = ["s_lshl_b32 s43, s34, 18", "s_lshl_b32 s44, s35, 7", "s_add_u32 s43, s43, s44",
             "s_add_u32 s16, s62, s43", "s_addc_u32 s17, s63, 0", f"s_mov_b32 s18, {127*2048 + 128}", "s_mov_b32 s19, 0x20000",
             "s_lshl_b32 s43, s36, 5", "v_lshl_add_u32 v19, v17, 1, s43", "v_lshlrev_b32 v19, 11, v19",
             "v_and_b32 v20, 1, v18", "v_lshl_add_u32 v19, v20, 5, v19", "v_lshrrev_b32 v20, 1, v18", "v_lshl_add_u32 v28, v20, 4, v19"]
        return r
    for i in out_setup(): a(i)
    def x_first_setup():
        a("s_lshl_b32 s43, s34, 18")
        srd(a, 12, 32, 262144, add_lo=43, add_imm=WS_H)
        a("v_lshlrev_b32 v21, 4, v1")
        a("s_lshl_b32 s54, s36, 11")
    def x_first():
        for sg in range(3):
            for e in range(2):
                a(f"s_add_u32 m0, s54, {((sg+2) % 3)*REG + e*1024}")
                a(f"s_add_u32 s43, s54, {sg*16384 + e*1024}")
                a(f"buffer_load_dwordx4 v21, s[12:15], s43 offen{XF} lds")
    x_first_setup()
    a("s_barrier")
    x_first()
    a("s_waitcnt vmcnt(4)")
    a("s_barrier")
    stamp(a, 9)
    if PRIO: a("s_setprio 1")
    for i in k3_reads(4, 0, 0, SET[0]): a(i)
    k3_consumer(a, 4, 0, [2, 0])
    stamp(a, 10)
    EA = epi_a()
    if "e" in STRIP: EA = [i for i in EA if i.startswith(ST)]
    ea = chunks(EA, env("EA_N", 14))
    SIG_A0 = 16 + last_with(ea, "0") + 2
    SIG_A1 = 16 + last_with(ea, "1") + 2
    HL = SIG_A0 - 1
    assert 16 + len(ea) <= 31 and SIG_A0 <= 28 and HL <= 27 and SIG_A1 != 28
    L3h = a.label("L3h"); LK4 = a.label("LK4")
    RD = 192
    def resid_loads():
        r = ["v_lshlrev_b32 v19, 11, v18", "v_lshl_add_u32 v19, v17, 4, v19", "s_lshl_b32 s43, s36, 9", f"v_add_u32 v{RD+16}, s43, v19"]
        for tl in range(2):
            for kb in range(2):
                d = RD + (tl*2+kb)*4
                r.append(f"buffer_load_dwordx4 v[{d}:{d+3}], v{RD+16}, s[20:23], {'s50' if kb else '0'} offen offset:{tl*256} sc1")
        return r
    def resid_unpack():
        r = []
        for k in range(4):
            for q in range(4):
                r.append(f"v_lshlrev_b32 v{ACC+8*k+2*q}, 16, v{RD+4*k+q}")
                r.append(f"v_and_b32 v{ACC+8*k+2*q+1}, 0xffff0000, v{RD+4*k+q}")
        return r
    extra = {HL: resid_loads(), 17: g2_addrs()[:14], 18: g2_addrs()[14:], HL+3: resid_unpack()[:16], HL+4: resid_unpack()[16:]}
    assert HL + 4 <= 30 and HL > 19
    a("s_cmp_eq_u32 s36, 3")
    a(f"s_cbranch_scc1 {L3h}")
    for helper in (False, True):
        vm = VM(a)
        if helper: a(f"{L3h}:")
        m = k3_mfmas(4, SET[1])
        emit(a, vm, m if helper else spread(m, k3_items(18)), 18)
        if PRIO: a("s_setprio 0")
        emit(a, vm, epi_reads(4, 0) + ["s_waitcnt lgkmcnt(0)"] + epi_consts(KA), None)
        if helper and env("K3PF", 0):
            k3pf = K3PF(a, 1)
            k3pf.setup()
            for s in range(3, env("K3PD", 6)): k3pf.issue(s)
        a("s_barrier")
        if helper: stampc(a, "k3", 16)
        for sig in range(16, 31):
            body = (list(ea[sig-16]) if sig-16 < len(ea) else []) + extra.get(sig, [])
            if helper:
                if sig == SIG_A0: flag_signal(a, 56, "hha0", 34, v=21)
                if sig == SIG_A1: flag_signal(a, 56, "hha1", 34, v=21)
                if sig == 28: flag_poll_issue(a, 56, "hha0", 34, v=21)
                if env("K3PF", 0) and sig - 16 + env("K3PD", 6) < 16: k3pf.issue(sig - 16 + env("K3PD", 6))
                if sig == 25 and env("K4PF", 0):
                    pf_w64(a, KA_WD, 3584, list(range(env("K4PF0", 0), env("K4PF", 0)//MX)), 80, 29, 30)
                emit(a, vm, body, None)
                if sig == SIG_A0 - 1: a(vm.wait("st0"))
                if sig == SIG_A1 - 1: a(vm.wait("st1"))
                if sig == HL + 2: a(vm.wait("x"))
                if sig == 28: flag_poll_finish(a, 56, v=21)
            else:
                if sig + 3 <= 31:
                    emit(a, vm, st_last(spread(body, k3_items(sig+3))), sig+3)
                else:
                    if sig == 29:
                        emit(a, vm, g2_dma_setup(51, WS_HH, HH_M, HH_M, 3584, 60, hop=40), None)
                    s4 = 2*(sig - 29)
                    h = len(body)//2
                    emit(a, vm, spread(body[:h], g2_items((s4+2) % 6)), ("k4", s4))
                    emit(a, vm, spread(body[h:], g2_items((s4+3) % 6)), ("k4", s4+1))
                w = vm.cnt(sig+2) if sig + 2 <= 31 else vm.cnt(("k4", 1))
                if sig == SIG_A0 - 1: w = min(w, vm.cnt("st0"))
                if sig == SIG_A1 - 1: w = min(w, vm.cnt("st1"))
                if sig == HL + 2: w = min(w, vm.cnt("x"))
                a(f"s_waitcnt vmcnt({w})")
                if sig == 30: W1 = vm.cnt(("k4", 2))
            a("s_barrier")
            if helper: stampc(a, "k3", sig+1)
        if not helper: a(f"s_branch {LK4}")
    a(f"{LK4}:")
    stamp(a, 11)
    if PRIO: a("s_setprio 1")
    for i in g2_reads(2, SET[0]): a(i)
    g2_loop(a, 0, NST4, 2, pres={0: None, 1: W1, 2: 0})
    stamp(a, 12)
    a("s_nop 4")
    for tl in range(2):
        for kb in range(2):
            o = P + (tl*2+kb)*4
            for hf in range(2):
                s = ACC + (tl*4 + 2*kb + hf)*4
                a(f"v_cvt_pk_bf16_f32 v{o+2*hf}, v{s}, v{s+1}")
                a(f"v_cvt_pk_bf16_f32 v{o+2*hf+1}, v{s+2}, v{s+3}")
    for tl in range(2):
        for kb in range(2):
            o = P + (tl*2+kb)*4
            a(f"v_permlane16_swap_b32 v{o}, v{o+2}")
            a(f"v_permlane16_swap_b32 v{o+1}, v{o+3}")
            a(f"buffer_store_dwordx4 v[{o}:{o+3}], v28, s[16:19], 0 offen offset:{tl*2048 + kb*64}")
    if STAMP:
        a("s_waitcnt vmcnt(0)")
        stamp(a, 13)
        stamp_flush(a)
    a(f"s_branch {Ld}")

    a(f"{LG1}:")
    L7 = a.label("L7"); LK3b = a.label("LK3b"); LP3 = a.label("LP3")
    a("s_cmp_eq_u32 s36, 7")
    a(f"s_cbranch_scc1 {L7}")
    for i in g2_dma_setup(51, WS_O, 262144, 262144, 1024, 28, vA=23): a(i)
    o_first_setup()
    Lp = [a.label("Lp") for _ in range(3)]
    for p in range(1, 3):
        a(f"s_cmp_eq_u32 s51, {p}")
        a(f"s_cbranch_scc1 {Lp[p]}")
    for p in range(3):
        a(f"{Lp[p]}:")
        vm = VM(a)
        def st2(s): emit(a, vm, flat(g2_items(s % 6, vA=23)), s)
        if p == 2:
            for s in range(6): st2(s)
        if p == 0: flag_poll(a, 56, "o", 34, v=12)
        a("s_barrier")
        o_first(); vm.add(0, 2); vm.add(1, 2)
        if p < 2:
            a("s_add_u32 s37, s37, 32768")
            for s in range(2, 6): st2(s)
        a(vm.wait(0))
        a("s_barrier")
        for s in range(16):
            if s < 15: a(vm.wait(s+1))
            a("s_barrier")
            if s + 6 < 16: st2(s+6)
            if s == 10:
                for i in k3_dma_setup(0, 51): a(i)
            if s in (11, 13)[:env("EW", 2)] and p > 0:
                emit(a, vm, flat(k3_items((s-11)//2)), "w%d" % ((s-11)//2))
        a("s_barrier")
        if p == 0:
            a("s_mul_i32 s43, s38, 48")
            a("s_add_u32 s37, s37, s43")
            flag_poll(a, 56, "h", 34, v=12)
        else:
            for w in range(env("EW", 2), 3): emit(a, vm, flat(k3_items(w)), "w")
        if p < 2: a(f"s_branch {LP3}")
    a(f"{LP3}:")
    x_first_setup()
    a("s_barrier")
    x_first()
    a("s_waitcnt vmcnt(4)")
    a("s_barrier")
    a("s_waitcnt vmcnt(2)")
    a("s_barrier")
    def pst(sig, body=[], pre=[], post=[]):
        for i in pre + spread(body, k3_items(sig+3)) + post: a(i)
        a("s_waitcnt vmcnt(16)")
        a("s_barrier")
    L = a.label("Lp3")
    a("s_mov_b32 s41, 3")
    a(f"{L}:")
    for sig in range(3): pst(sig)
    a("s_sub_u32 s41, s41, 1")
    a("s_cmp_lg_u32 s41, 0")
    a(f"s_cbranch_scc1 {L}")
    bs = ["s_and_b32 s53, s35, 1", "s_lshl_b32 s53, s53, 1", "s_mul_i32 s43, s47, 3", "s_add_u32 s53, s53, s43"] + k3_addrs(3, 53)
    binit = []
    for mat in range(2):
        for j in range(3):
            for tl in range(4):
                for q in range(4):
                    binit.append(f"v_mul_f32 v{k3_acc(3, mat, j, tl)+q}, -v{TT+2*tl}, v{CSR+(mat*3+j)*4+q}")
    bi = chunks(binit, 3)
    BODY = {9: bs + epi_reads(3, 128), 10: ["s_waitcnt lgkmcnt(0)"] + epi_consts(KBB, False) + epi_store_setup(1), 11: bi[0], 12: bi[1], 13: bi[2]}
    k4set = g2_dma_setup(51, WS_HH, HH_M, HH_M, 3584, 60, hop=40) + \
        ["s_mul_i32 s43, s38, 6", "s_add_u32 s43, s43, s40", "s_add_u32 s43, s43, s55", "s_lshl_b32 s43, s43, 2", "s_add_u32 s37, s37, s43",
         f"s_and_b32 s54, s45, {(-2048 + 32)*2048 & 0xffffffff}"]
    for sig in range(9, 15):
        pst(sig, BODY.get(sig, []), pre=k3_dma_setup(1, 51) if sig == 13 else [], post=k4set if sig == 14 else [])
    a(f"s_branch {LK3b}")

    a(f"{L7}:")
    NB2 = 19
    Lno = a.label("Lnojob"); Lcs = a.label("Lcsd")
    stampc(a, "k2", 0)
    cs_setup(a, Lno, 64, 4)
    a("s_lshl_b32 s55, s45, 1")
    a("s_add_u32 s55, s55, s44")
    a("s_mul_i32 s55, s55, 14336")
    a("s_lshl_b32 s45, s46, 9")
    a("s_add_u32 s55, s55, s45")
    a("v_lshl_add_u32 v5, v5, 5, s55")
    srd(a, 72, 32, 8*14336, add_imm=WS_CS)
    for i in range(8): a(f"v_mov_b32 v{32+i}, 0")
    NF = CS_NF
    issued = [NF]; done = [0]; nowait = [False]
    def issue():
        cs_issue(a, issued[0], 64, 4); issued[0] += 1
    def proc():
        i = done[0] % NF
        if done[0] >= NF and not nowait[0]: a(f"s_waitcnt vmcnt({issued[0] - done[0] - 1})")
        for d in range(4):
            a(f"v_lshlrev_b32 v{40+2*d}, 16, v{128+4*i+d}")
            a(f"v_and_b32 v{41+2*d}, 0xffff0000, v{128+4*i+d}")
        done[0] += 1
        if issued[0] < 64: issue()
        for d in range(8):
            a(f"v_add_f32 v{32+d}, v{32+d}, v{40+d}")
    def mpf():
        if env("MPF", 1):
            a("s_mul_i32 s43, s2, 28672")
            srd(a, 76, 60, 28672, add_lo=43)
            a("v_lshlrev_b32 v19, 7, v1")
            for q in range(4):
                a(f"s_mov_b32 s43, {q*8192}")
                a("buffer_load_dword v30, v19, s[76:79], s43 offen")
    for i in range(64 - NF): proc()
    o_first_setup()
    for q in range(NB2):
        if q == 1:
            o_first()
            a("s_waitcnt vmcnt(2)")
        if q == 2: a("s_waitcnt vmcnt(0)")
        a("s_barrier")
        stampc(a, "k2", q+1)
    mpf()
    nowait[0] = True
    while done[0] < 64: proc()
    for sw in ("16", "32"):
        for d in range(8): a(f"v_mov_b32 v{40+d}, v{32+d}")
        a("s_nop 0")
        for d in range(8): a(f"v_permlane{sw}_swap_b32 v{32+d}, v{40+d}")
        for d in range(8): a(f"v_add_f32 v{32+d}, v{32+d}, v{40+d}")
    a("s_mov_b64 exec, 0xffff")
    a("buffer_store_dwordx4 v[32:35], v5, s[72:75], 0 offen sc1")
    a("buffer_store_dwordx4 v[36:39], v5, s[72:75], 0 offen offset:16 sc1")
    a("s_mov_b64 exec, -1")
    a("s_waitcnt vmcnt(0)")
    flag_signal(a, 56, "cs", None, v=12)
    a(f"s_branch {Lcs}")
    a(f"{Lno}:")
    o_first_setup()
    for q in range(NB2):
        if q == 1:
            o_first()
            a("s_waitcnt vmcnt(2)")
        if q == 2: a("s_waitcnt vmcnt(0)")
        a("s_barrier")
        stampc(a, "k2", q+1)
    mpf()
    a(f"{Lcs}:")
    a("s_mov_b32 s46, 1")
    x_first_setup()
    k3pf = K3PF(a, 0)
    PD = env("K3PD", 6)
    if env("K3PF", 0) or env("K3PF0", 0):
        k3pf.setup()
        for s in range(3, max(PD, env("K3PF0", 0))): k3pf.issue(s)
    a("s_lshl_b32 s43, s34, 14")
    srd(a, 64, 32, 16384, add_lo=43, add_imm=WS_ST2)
    srd(a, 72, 32, 8*14336, add_imm=WS_CS)
    a("s_barrier")
    stampc(a, "k2", 20)
    x_first()
    a("s_waitcnt vmcnt(4)")
    a("s_barrier")
    stampc(a, "k2", 21)
    stampc(a, "k3", 31)
    a("s_waitcnt vmcnt(2)")
    a("s_barrier")
    stampc(a, "k3", 0)
    STL = env("STL", 1); CSP = STL + 3
    for sig in range(15):
        if sig == 0:
            a("s_waitcnt vmcnt(0)")
        if sig == STL + 1: flag_poll_issue(a, 56, "cs", None, v=12)
        if sig == STL:
            for n in range(16):
                a(f"s_mov_b32 s43, {n*1024}")
                a(f"buffer_load_dwordx4 v[{128+4*n}:{128+4*n+3}], v21, s[64:67], s43 offen sc1")
        if env("K3PF", 0) and sig >= 1:
            if sig + PD - 1 < 16: k3pf.issue(sig + PD - 1)
            elif sig + PD - 1 == 16:
                k3pf.part = 1; k3pf.setup()
            if 16 <= sig + PD - 1 < 19: k3pf.issue(sig + PD - 1 - 16)
        if sig == CSP:
            flag_poll_finish(a, 56, v=12)
            a("v_min_u32 v12, 55, v1")
            a("v_lshlrev_b32 v13, 4, v12")
            a("s_lshl_b32 s43, s35, 9")
            a("s_mul_i32 s44, s35, 384")
            a(f"s_add_u32 s44, s44, {8192 - 512}")
            a("v_mov_b32 v14, s44")
            a("v_mov_b32 v15, s43")
            a("v_cmp_gt_u32 vcc, 32, v12")
            a("s_nop 1")
            a("v_cndmask_b32 v14, v14, v15, vcc")
            a("v_add_u32 v14, v14, v13")
            a(f"v_add_u32 v13, {CSF}, v13")
            for mat in range(2):
                for sl in range(4):
                    d = 192 + (mat*4+sl)*4
                    a(f"s_mov_b32 s43, {(sl*2+mat)*14336}")
                    a(f"buffer_load_dwordx4 v[{d}:{d+3}], v14, s[72:75], s43 offen sc1")
        if sig == CSP + 1:
            for n in range(1, 16):
                for q in range(4): a(f"v_add_f32 v{128+q}, v{128+q}, v{128+4*n+q}")
            for b in (128, 130):
                a(f"v_mul_f32 v{b}, 0x3a800000, v{b}")
                a(f"v_mul_f32 v{b+1}, 0x3a800000, v{b+1}")
                a(f"v_fma_f32 v{b+1}, -v{b}, v{b}, v{b+1}")
                a(f"v_max_f32 v{b+1}, 0, v{b+1}")
                a(f"v_add_f32 v{b+1}, 0x3727c5ac, v{b+1}")
                a(f"v_rsq_f32 v{b+1}, v{b+1}")
            a(f"v_add_u32 v19, {STATS}, v21")
            a("ds_write_b128 v19, v[128:131]")
        if sig == CSP + 3:
            a("s_waitcnt vmcnt(0)")
            for mat in range(2):
                b = 192 + mat*16
                for q in range(4):
                    a(f"v_add_f32 v{b+q}, v{b+q}, v{b+4+q}")
                    a(f"v_add_f32 v{b+8+q}, v{b+8+q}, v{b+12+q}")
                for q in range(4): a(f"v_add_f32 v{b+q}, v{b+q}, v{b+8+q}")
                a(f"ds_write_b128 v13, v[{b}:{b+3}] offset:{mat*896}")
            a("s_waitcnt lgkmcnt(0)")
            assert sig < 9
        for i in BODY.get(sig, []): a(i)
        a("s_barrier")
        stampc(a, "k3", sig+1)

    a(f"{LK3b}:")
    stamp(a, 10)
    if PRIO: a("s_setprio 1")
    for i in k3_reads(3, 16, 0, SET[0]): a(i)
    k3_consumer(a, 3, 16, [0])
    stamp(a, 11)
    EB = epi_b()
    if "e" in STRIP: EB = [i for i in EB if i.startswith(ST)]
    eb = chunks(EB, env("EB_N", 14))
    SIG_B = last_with(eb, "0") + env("SIGB_D", 3)
    POLL_A1 = 9; POLL_B = env("POLL_B", 25)
    L7b = a.label("L7b")
    a("s_cmp_eq_u32 s36, 7")
    a(f"s_cbranch_scc1 {L7b}")
    for helper in (False, True):
        vm = VM(a)
        if helper: a(f"{L7b}:")
        m = k3_mfmas(3, SET[1])
        if not helper:
            emit(a, vm, spread(m[:12], g2_items(0)), 4)
            emit(a, vm, spread(m[12:], g2_items(1)), 5)
        else:
            if SIG_A1 == 31: flag_signal(a, 56, "hha1", 34, v=21)
            emit(a, vm, m, None)
        if PRIO: a("s_setprio 0")
        a("s_barrier")
        if helper:
            stampc(a, "k4", 0)
            KPF = env("K4PF", 0)
            if KPF: pf_w64(a, KA_WD, 3584, [], 80, 29, 30)
            for s in range(NST4 - 1):
                if s == 2 and SIG_A1 > 31: flag_signal(a, 56, "hha1", 34, v=21)
                if s == SIG_B: flag_signal(a, 56, "hhb", 34, v=21)
                if s == POLL_A1 - env("PLEAD", 3): flag_poll_issue(a, 56, "hha1", 34, v=21)
                if s == POLL_B - env("PLEAD", 3): flag_poll_issue(a, 56, "hhb", 34, v=21)
                if KPF and s % MX == 0 and (s + KPF)//MX < NST4//MX: pf_w64_issue(a, (s + KPF)//MX, 80, 29, 30)
                if s < len(eb): emit(a, vm, eb[s], None)
                if s == SIG_B - 1: a("s_waitcnt vmcnt(0)")
                if s in (POLL_A1, POLL_B): flag_poll_finish(a, 56, v=21)
                if s == POLL_B: stamp(a, 12)
                if s == POLL_B + 1 and not KPF and STAMPC != "k4": break
                a("s_barrier")
                if s % 2 == 1: stampc(a, "k4", (s+1)//2)
            stamp_flush(a)
            a(f"s_branch {Ld}")
        else:
            def pslice(s, body, wrows=None, steady=False):
                if s + 6 == 16: a("s_add_u32 s37, s37, s54")
                if s + 6 < NST4: emit(a, vm, st_last(spread(body, g2_items((s+8) % 6, wrows=wrows))), s+6)
                w = vm.cnt(s+2) if s + 2 >= 4 else 63
                if steady: w = 32
                if s == SIG_B - 1: w = min(w, vm.cnt("st0"))
                if w < 63: a(f"s_waitcnt vmcnt({w})")
                a("s_barrier")
            s = 0
            while s < max(len(eb), SIG_B, 11) or s % 6 != 2:
                pslice(s, eb[s] if s < len(eb) else []); s += 1
            assert s <= 26
            nl = (26 - s)//6
            if nl:
                L = a.label("Lp4")
                a(f"s_mov_b32 s41, {nl}")
                a(f"{L}:")
                for q in range(6): pslice(s+q, [], steady=True)
                a("s_sub_u32 s41, s41, 1")
                a("s_cmp_lg_u32 s41, 0")
                a(f"s_cbranch_scc1 {L}")
                for q in range(6, 6*nl): vm.add(s+q+6, 8)
                s += 6*nl
            assert s == 26
            LW = a.label("LW4")
            a("s_cmp_eq_u32 s51, 2")
            a(f"s_cbranch_scc1 {LW}")
            q0 = list(vm.q)
            for isw in (False, True):
                vm.q = list(q0)
                if isw: a(f"{LW}:")
                L = a.label("Lp4")
                a("s_mov_b32 s41, 4")
                a(f"{L}:")
                for q in range(6):
                    it0 = (26+q+6)*8
                    wr = [wd_row(it0+k) - wd_row(it0+k-1) for k in range(8)] if isw else None
                    if isw and q == 0: assert wr[0] == wd_row(it0+48) - wd_row(it0+47)
                    pslice(26+q, [], wr, steady=True)
                a("s_sub_u32 s41, s41, 1")
                a("s_cmp_lg_u32 s41, 0")
                a(f"s_cbranch_scc1 {L}")
                for q in range(6, 24): vm.add(26+q+6, 8)
                for s in range(50, 54): pslice(s, [])
                if STAMP:
                    stamp(a, 12)
                    stamp_flush(a)
                a(f"s_branch {Ld}")


NXS = 32 // MX
class XPF:
    G = NXS // 2
    def __init__(self, a, off, mul, sd=68, v=23):
        self.a = a; self.off = off; self.mul = mul; self.sd = sd; self.v = v
    def setup(self):
        a = self.a; v = self.v
        per = 128 // NXS
        a(f"s_mul_i32 s43, s34, {self.mul}")
        srd(a, self.sd, 32, self.mul, add_lo=43, add_imm=self.off)
        a(f"v_and_b32 v{v}, {per-1}, v1")
        a(f"s_mul_i32 s43, s49, {per}")
        a(f"v_add_u32 v{v}, s43, v{v}")
        a(f"v_lshlrev_b32 v{v}, 7, v{v}")
        a(f"v_lshrrev_b32 v19, {per.bit_length()-1}, v1")
        a(f"v_lshl_add_u32 v{v}, v19, 14, v{v}")
    def issue(self, st):
        a = self.a
        a(f"s_mov_b32 s43, {st*16384}")
        a(f"buffer_load_dword v30, v{self.v}, s[{self.sd}:{self.sd+3}], s43 offen sc1")


class K3PF:
    def __init__(self, a, part): self.a = a; self.part = part
    def setup(self):
        a = self.a
        if self.part == 0: a("s_lshl_b32 s43, s35, 8")
        else:
            a("s_mul_i32 s43, s35, 192")
            a("s_and_b32 s43, s43, 0xffffff80")
            a("s_add_u32 s43, s43, 4096")
        a("s_sub_u32 s44, 7340032, s43")
        for d, b in ((88, 4), (92, 6)):
            a(f"s_add_u32 s{d}, s{b}, s43")
            a(f"s_addc_u32 s{d+1}, s{b+1}, 0")
            a(f"s_mov_b32 s{d+2}, s44")
            a(f"s_mov_b32 s{d+3}, 0x20000")
        per = 64 // MX
        a("v_lshrrev_b32 v31, 1, v1")
        a(f"v_min_u32 v31, {min(per, 32)-1}, v31")
        a(f"s_mul_i32 s43, s48, {per}")
        a("v_add_u32 v31, s43, v31")
        a("v_mul_u32_u24 v31, 7168, v31")
        a("v_and_b32 v19, 1, v1")
        a("v_lshl_add_u32 v31, v19, 7, v31")
    def issue(self, st):
        a = self.a
        a(f"s_mov_b32 s43, {st*64*7168}")
        a("buffer_load_dword v30, v31, s[88:91], s43 offen")
        a("buffer_load_dword v30, v31, s[92:95], s43 offen")
```

```python
import sys, os
sys.path.insert(0, os.path.dirname(__file__))
from common import *
import k1, p234

HEADER = open("sequential_preLN__sliding_local_dilated__glu_gated_geglu__prompt.s.ref").read().split("; Override launch")[0]

def build(path, aslist):
    a = Asm()
    name = "f_kernel" if aslist else "sequential_preLN__sliding_local_dilated__glu_gated_geglu__prompt_kernel"
    kernel_header(a, name)
    Ld = a.label("Ldone")
    a("s_cmp_ge_u32 s2, 256")
    a(f"s_cbranch_scc1 {Ld}")
    k1.phase_k1(a)
    p234.phase_234(a, Ld)
    a(f"{Ld}:")
    a("s_endpgm")
    desc = kernel_desc(name, 256, 100, 256)
    k = f"kernel={name} " if aslist else ""
    out = HEADER + f"; @launch {k}grid=(256,1,1) block=(512,1,1) lds={LDS_TOTAL}\n" + '.amdgcn_target "amdgcn-amd-amdhsa--gfx950"\n.text\n' + a.text()
    out += '.section .rodata,"a"\n' + desc
    open(path, "w").write(out)

if __name__ == "__main__":
    build(sys.argv[1], len(sys.argv) > 2)
```

```python
WS_O   = 0
WS_H   = 4 << 20
WS_HH  = 8 << 20
WS_ST2 = 24 << 20
WS_ST1 = 25 << 20
WS_CS  = 26 << 20
WS_BYTES = 268435456

KA_X, KA_WQKV, KA_WO, KA_BX, KA_WG, KA_WU, KA_WD, KA_OUT, KA_DBG, KA_WS = [8*i for i in range(10)]


class Asm:
    def __init__(self):
        self.L = []
        self.uid = 0
    def __call__(self, s):
        for line in s.split("\n"):
            line = line.strip()
            if line:
                self.L.append(line)
    def label(self, base="L"):
        self.uid += 1
        return f"{base}_{self.uid}"
    def comment(self, s):
        self.L.append("; " + s)
    def text(self):
        return "\n".join(self.L) + "\n"


def kernel_header(a, name):
    a(f".globl {name}")
    a(".p2align 8")
    a(f".type {name},@function")
    a(f"{name}:")


def kernel_desc(name, vgpr, sgpr, accum):
    return f""".p2align 6
.amdhsa_kernel {name}
  .amdhsa_next_free_vgpr {vgpr}
  .amdhsa_next_free_sgpr {sgpr}
  .amdhsa_accum_offset {accum}
  .amdhsa_group_segment_fixed_size 0
  .amdhsa_kernarg_size 80
  .amdhsa_user_sgpr_count 2
  .amdhsa_user_sgpr_kernarg_segment_ptr 1
  .amdhsa_system_sgpr_workgroup_id_x 1
  .amdhsa_float_denorm_mode_32 3
  .amdhsa_float_denorm_mode_16_64 3
.end_amdhsa_kernel
"""


def srd(a, d, base, nbytes, add_lo=None, add_imm=0):
    if add_lo is not None:
        a(f"s_add_u32 s{d}, s{base}, s{add_lo}")
        a(f"s_addc_u32 s{d+1}, s{base+1}, 0")
        if add_imm:
            a(f"s_add_u32 s{d}, s{d}, {add_imm}")
            a(f"s_addc_u32 s{d+1}, s{d+1}, 0")
    elif add_imm:
        a(f"s_add_u32 s{d}, s{base}, {add_imm}")
        a(f"s_addc_u32 s{d+1}, s{base+1}, 0")
    else:
        a(f"s_mov_b32 s{d}, s{base}")
        a(f"s_mov_b32 s{d+1}, s{base+1}")
    a(f"s_mov_b32 s{d+2}, {nbytes}")
    a(f"s_mov_b32 s{d+3}, 0x20000")


def interleave(main, fill, start=0, every=1):
    out = []
    fi = 0
    for i, m in enumerate(main):
        out.append(m)
        if i >= start and (i - start) % every == 0 and fi < len(fill):
            out.append(fill[fi]); fi += 1
    out.extend(fill[fi:])
    return out


import os
STAMP = bool(os.environ.get("STAMP"))
REG = 49152
SLOT = 24576
STATS = 147456
CSF = 148480
DBG = 150528
LDS_TOTAL = 151552
WS_DBG = 28 << 20
HH_M = 448 * 2048

def stamp_init(a):
    if not STAMP: return
    a("s_lshl_b32 s96, s36, 7")
    a(f"s_add_u32 s96, s96, {DBG}")
    a("v_mov_b32 v26, s96")
STAMPC = os.environ.get("STAMPC", "")
def stampc(a, kind, idx):
    if kind != STAMPC or not 0 <= idx < 32: return
    a("s_memtime s[96:97]")
    a("s_waitcnt lgkmcnt(0)")
    a("v_mov_b32 v24, s96")
    a(f"ds_write_b32 v26, v24 offset:{4*idx}")
def stamp(a, idx):
    if not STAMP or STAMPC: return
    a("s_memtime s[96:97]")
    a("s_memrealtime s[98:99]")
    a("s_waitcnt lgkmcnt(0)")
    a("v_mov_b32 v24, s96")
    a("v_mov_b32 v25, s98")
    a(f"ds_write_b64 v26, v[24:25] offset:{8*idx}")
def stamp_flush(a):
    if not STAMP: return
    a("s_waitcnt lgkmcnt(0)")
    a("v_and_b32 v24, 31, v1")
    a("v_lshlrev_b32 v24, 2, v24")
    a("v_add_u32 v25, v26, v24")
    a("ds_read_b32 v25, v25")
    a(f"s_add_u32 s96, s32, {WS_DBG}")
    a("s_addc_u32 s97, s33, 0")
    a("s_mov_b32 s98, 262144")
    a("s_mov_b32 s99, 0x20000")
    a("s_lshl_b32 s94, s2, 3")
    a("s_add_u32 s94, s94, s36")
    a("s_lshl_b32 s94, s94, 7")
    a("s_waitcnt lgkmcnt(0)")
    a("buffer_store_dword v25, v24, s[96:99], s94 offen")

WS_FLG = 27 << 20
FLG = {"o": (0, 16), "h": (16, 16), "hha0": (32, 16), "hha1": (48, 16), "hhb": (64, 16), "cs": (80, 224)}

def flag_srd(a, d, ws_pair=32):
    srd(a, d, ws_pair, 128*128, add_imm=WS_FLG)

def flag_addr(a, kind, idx_sgpr, v):
    if idx_sgpr is None: a(f"v_mov_b32 v{v}, {FLG[kind][0] << 7}")
    else:
        a(f"s_add_u32 s43, s{idx_sgpr}, {FLG[kind][0]}")
        a("s_lshl_b32 s43, s43, 7")
        a(f"v_mov_b32 v{v}, s43")

def flag_signal(a, d, kind, idx_sgpr, v=5):
    flag_addr(a, kind, idx_sgpr, v)
    a(f"v_mov_b32 v{v+1}, 1")
    a("s_mov_b64 exec, 1")
    a(f"buffer_atomic_add v{v+1}, v{v}, s[{d}:{d+3}], 0 offen sc1")
    a("s_mov_b64 exec, -1")

def flag_poll_issue(a, d, kind, idx_sgpr, v=8):
    flag_addr(a, kind, idx_sgpr, v)
    a(f"v_mov_b32 v{v+2}, {FLG[kind][1]}")
    a(f"buffer_load_dword v{v+1}, v{v}, s[{d}:{d+3}], 0 offen sc1")

def flag_poll_finish(a, d, v=8, first=0):
    Lp = a.label("Lpoll"); Lo = a.label("Lpok"); Lf = a.label("Lpf")
    a("s_mov_b32 s41, 0x10000")
    if first:
        a(f"s_waitcnt vmcnt({first})")
        a(f"s_branch {Lf}")
    a(f"{Lp}:")
    a("s_waitcnt vmcnt(0)")
    a(f"{Lf}:")
    a(f"v_cmp_ne_u32 vcc, v{v+2}, v{v+1}")
    a("s_nop 4")
    a(f"s_cbranch_vccz {Lo}")
    a(f"buffer_load_dword v{v+1}, v{v}, s[{d}:{d+3}], 0 offen sc1")
    a("s_sub_u32 s41, s41, 1")
    a("s_cmp_lg_u32 s41, 0")
    a(f"s_cbranch_scc1 {Lp}")
    a("s_waitcnt vmcnt(0)")
    a(f"{Lo}:")

def flag_poll(a, d, kind, idx_sgpr, v=8):
    NP = int(os.environ.get("NPOLL", "4"))
    if NP <= 1:
        flag_poll_issue(a, d, kind, idx_sgpr, v)
        flag_poll_finish(a, d, v)
        return
    flag_addr(a, kind, idx_sgpr, v)
    a(f"v_mov_b32 v{v+1}, {FLG[kind][1]}")
    Lp = a.label("Lpoll"); Lo = a.label("Lpok")
    a("s_mov_b32 s41, 0x8000")
    for q in range(NP - 1):
        a(f"buffer_load_dword v{v+2+q}, v{v}, s[{d}:{d+3}], 0 offen sc1")
        a(f"s_sleep {int(os.environ.get('PSLEEP', '3'))}")
    a(f"{Lp}:")
    for q in range(NP):
        a(f"buffer_load_dword v{v+2+(q+NP-1) % NP}, v{v}, s[{d}:{d+3}], 0 offen sc1")
        a(f"s_waitcnt vmcnt({NP-1})")
        a(f"v_cmp_ne_u32 vcc, v{v+1}, v{v+2+q}")
        a("s_nop 4")
        a(f"s_cbranch_vccz {Lo}")
    a("s_sub_u32 s41, s41, 1")
    a("s_cmp_lg_u32 s41, 0")
    a(f"s_cbranch_scc1 {Lp}")
    a(f"{Lo}:")

MX = int(os.environ.get("MX", "4"))
def mapping(a):
    lg = MX.bit_length() - 1
    a("s_and_b32 s3, s2, 7")
    a("s_lshr_b32 s42, s2, 3")
    if os.environ.get("MAPSWAP"):
        a(f"s_lshr_b32 s48, s42, {5-lg}")
        a(f"s_and_b32 s49, s42, {32//MX-1}")
    else:
        a(f"s_and_b32 s48, s42, {MX-1}")
        a(f"s_lshr_b32 s49, s42, {lg}")
    a(f"s_and_b32 s34, s3, {16//MX - 1}")
    a(f"s_lshl_b32 s34, s34, {lg}")
    a("s_add_u32 s34, s34, s48")
    a(f"s_lshr_b32 s35, s3, {4-lg}")
    a(f"s_lshl_b32 s35, s35, {5-lg}")
    a("s_add_u32 s35, s35, s49")

def pf_w64(a, W_ka, K, groups, sd, v, vd, lane=1):
    per = 64 // MX
    lgp = per.bit_length() - 1
    a(f"s_load_dwordx2 s[{sd+4}:{sd+5}], s[0:1], {W_ka}")
    a("s_lshl_b32 s43, s35, 7")
    a(f"s_lshl_b32 s44, s48, {lgp}")
    a(f"v_and_b32 v{v}, {per-1}, v{lane}")
    a(f"v_add_u32 v{v}, s44, v{v}")
    a(f"v_lshrrev_b32 v19, {lgp}, v{lane}")
    a(f"v_lshl_add_u32 v{v}, v19, 6, v{v}")
    a(f"v_lshlrev_b32 v{v}, 11, v{v}")
    a("s_waitcnt lgkmcnt(0)")
    srd(a, sd, sd+4, K*2048 - 1920, add_lo=43)
    for g in groups: pf_w64_issue(a, g, sd, v, vd)
    return len(groups)
def pf_w64_issue(a, g, sd, v, vd):
    a(f"s_mov_b32 s43, {g*MX*131072}")
    a(f"buffer_load_dword v{vd}, v{v}, s[{sd}:{sd+3}], s43 offen")

CS_NF = 32
def cs_setup(a, Lno, sd, va):
    a("s_lshr_b32 s43, s2, 5")
    a("s_cmp_eq_u32 s43, 3")
    a(f"s_cbranch_scc1 {Lno}")
    a("s_cmp_gt_u32 s43, 3")
    a("s_cselect_b32 s43, 32, 0")
    a("s_sub_u32 s43, s2, s43")
    a("s_lshr_b32 s43, s43, 1")
    a("s_and_b32 s44, s2, 1")
    a("s_lshl_b32 s45, s44, 3")
    a(f"s_add_u32 s45, s45, {KA_WG}")
    a(f"s_load_dwordx2 s[{sd+4}:{sd+5}], s[0:1], s45")
    a("s_mul_i32 s45, s43, 2341")
    a("s_lshr_b32 s45, s45, 16")
    a("s_mul_i32 s46, s45, 28")
    a("s_sub_u32 s46, s43, s46")
    a(f"v_lshrrev_b32 v{va}, 4, v1")
    a("s_lshl_b32 s43, s45, 8")
    a(f"v_add_u32 v{va}, s43, v{va}")
    a(f"v_mul_u32_u24 v{va}, 7168, v{va}")
    a(f"v_and_b32 v{va+1}, 15, v1")
    a(f"v_lshl_add_u32 v{va}, v{va+1}, 4, v{va}")
    a("s_lshl_b32 s43, s46, 8")
    a(f"v_add_u32 v{va}, s43, v{va}")
    a("s_waitcnt lgkmcnt(0)")
    srd(a, sd, sd+4, 7340032)

def cs_issue(a, n, sd, va):
    i = n % CS_NF
    a(f"s_mov_b32 s43, {n*4*7168}")
    a(f"buffer_load_dwordx4 v[{128+4*i}:{128+4*i+3}], v{va}, s[{sd}:{sd+3}], s43 offen")


SPE = int(os.environ.get("K1_SPE", "13"))
SPR = 36
def cs_sbase(a, Lno, d, wsg):
    a("s_lshr_b32 s43, s2, 5")
    a("s_cmp_eq_u32 s43, 3")
    a(f"s_cbranch_scc1 {Lno}")
    a("s_cmp_gt_u32 s43, 3")
    a("s_cselect_b32 s43, 32, 0")
    a("s_sub_u32 s43, s2, s43")
    a("s_lshr_b32 s43, s43, 1")
    a("s_and_b32 s44, s2, 1")
    a("s_lshl_b32 s44, s44, 3")
    a(f"s_add_u32 s44, s44, {KA_WG}")
    a(f"s_load_dwordx2 s[{d}:{d+1}], s[0:1], s44")
    a("s_mul_i32 s45, s43, 2341")
    a("s_lshr_b32 s45, s45, 16")
    a("s_mul_i32 s46, s45, 28")
    a("s_sub_u32 s46, s43, s46")
    a("s_lshl_b32 s45, s45, 8")
    a(f"s_mul_i32 s44, s{wsg}, {SPR}")
    a("s_add_u32 s45, s45, s44")
    a("s_add_u32 s45, s45, 128")
    a("s_mul_i32 s45, s45, 7168")
    a("s_lshl_b32 s46, s46, 8")
    a("s_add_u32 s45, s45, s46")
    a("s_waitcnt lgkmcnt(0)")
    a(f"s_add_u32 s{d}, s{d}, s45")
    a(f"s_addc_u32 s{d+1}, s{d+1}, 0")

NPS = int(os.environ.get("K1_NPS", "2"))
def cs_spre(a, n, d0=64, nd=16):
    if not NPS: return
    for r in range(n):
        for q in range(4): a(f"s_load_dword s{d0 + (4*r+q) % nd}, s[80:81], {r*7168 + q*64}")
    a(f"s_add_u32 s80, s80, {n*7168}")
    a("s_addc_u32 s81, s81, 0")

WS_X = 32 << 20
XFLG = 12288
def xflag_addr(a, v, flip):
    a("s_lshl_b32 s43, s34, 4")
    a("s_add_u32 s43, s43, s35")
    if flip: a("s_xor_b32 s43, s43, 1")
    a("s_lshl_b32 s43, s43, 2")
    a(f"s_add_u32 s43, s43, {XFLG}")
    a(f"v_mov_b32 v{v}, s43")
```

```python
import os, struct
from common import *

NS = 3
XB_ = 18432
STG1 = XB_ + 3*8192
RST = NS*STG1
CSUM = RST + 1152
LST = CSUM
LDS_K1 = CSUM + 768
QKV = 0
QP = 400

def fh(x): return "0x%08x" % struct.unpack("<I", struct.pack("<f", x))[0]

VGPR_K1 = 240
def phase_k1(a):
    strip = os.environ.get("K1_STRIP", "")
    nst = 16
    a(f"s_load_dwordx4 s[4:7], s[0:1], {KA_X}")
    a(f"s_load_dwordx2 s[32:33], s[0:1], {KA_WS}")
    a(f"s_load_dwordx2 s[80:81], s[0:1], {KA_WG}")
    mapping(a)
    a("v_lshrrev_b32 v12, 6, v0")
    a("v_and_b32 v1, 63, v0")
    a("v_readfirstlane_b32 s36, v12")
    a("s_nop 3")
    stamp_init(a)
    stamp(a, 0)
    a("s_lshl_b32 s43, s35, 7")
    a("s_lshl_b32 s44, s34, 18")
    a("s_lshl_b32 s45, s35, 14")
    a("s_add_u32 s45, s45, s44")
    a("s_lshl_b32 s50, s34, 7")
    a("s_sub_u32 s50, s50, 16")
    a("s_waitcnt lgkmcnt(0)")
    srd(a, 8, 4, 2048*2048)
    srd(a, 12, 6, 1023*6144 + 4096 + 128, add_lo=43)
    srd(a, 16, 32, 16384, add_lo=45, add_imm=WS_O)
    Lprod = a.label("Lprod"); Lpf = a.label("Lpf"); Latt = a.label("Latt")
    a("v_and_b32 v12, 15, v1")
    a("v_lshrrev_b32 v13, 4, v1")
    a("s_cmp_ge_u32 s36, 4")
    a(f"s_cbranch_scc1 {Lprod}")

    def att_setup():
        a("s_and_b32 s43, s36, 1")
        a("s_lshr_b32 s44, s36, 1")
        a("s_and_b32 s44, s44, 1")
        a("s_lshr_b32 s45, s36, 2")
        a("v_lshlrev_b32 v14, 2, v13")
        a("v_sub_u32 v14, v12, v14")
        for r in range(4):
            a(f"v_subrev_u32 v15, {r}, v14")
            a(f"v_cmp_ge_u32 s[{52+2*r}:{53+2*r}], 7, v15")
            a(f"v_add_u32 v15, 16, v15")
            a(f"v_cmp_ge_u32 s[{84+2*r}:{85+2*r}], 7, v15")
        a("s_lshl_b32 s46, s45, 6")
        a("s_add_u32 s46, s46, s44")
        a("s_add_u32 s46, s46, 16")
        a("v_lshl_add_u32 v14, v12, 1, s46")
        a("s_lshl_b32 s47, s43, 6")
        a("v_lshl_add_u32 v15, v13, 4, s47")
        a(f"v_mul_u32_u24 v20, {QP}, v14")
        a("v_add_u32 v20, v20, v15")
        a("v_subrev_u32 v16, 32, v14")
        a("v_max_i32 v16, 0, v16")
        a(f"v_mul_u32_u24 v21, {QP}, v16")
        a("v_add_u32 v21, v21, v15")
        a("v_lshrrev_b32 v16, 2, v12")
        a("v_lshl_add_u32 v16, v13, 2, v16")
        a("v_lshl_add_u32 v16, v16, 1, s46")
        a("v_and_b32 v17, 3, v1")
        a("v_lshl_add_u32 v17, v17, 3, s47")
        a(f"v_mul_u32_u24 v22, {QP}, v16")
        a("v_add_u32 v22, v22, v17")
        a("v_subrev_u32 v16, 32, v16")
        a("v_max_i32 v16, 0, v16")
        a(f"v_mul_u32_u24 v23, {QP}, v16")
        a("v_add_u32 v23, v23, v17")
        a("s_lshl_b32 s60, s43, 13")
        a("s_lshl_b32 s61, s45, 10")
        a("s_add_u32 s60, s60, s61")
        a("s_lshl_b32 s61, s44, 8")
        a("s_add_u32 s60, s60, s61")
        a("v_lshlrev_b32 v27, 11, v13")
        a("v_lshl_add_u32 v27, v12, 4, v27")
        a("v_add_u32 v27, s60, v27")
        a("v_mov_b32 v28, 0xff800000")
        CS = (32 ** -0.5) * 1.4426950408889634
        a(f"s_mov_b32 s61, {fh(CS)}")
        a("s_nop 2")
        a("s_or_b32 s62, s34, s45")
        a("s_cmp_lg_u32 s62, 0")
        for r in range(4): a(f"s_cselect_b64 s[{64+2*r}:{65+2*r}], s[{84+2*r}:{85+2*r}], 0")

    a("v_lshrrev_b32 v16, 1, v12")
    a("v_xor_b32 v15, v13, v16")
    a("v_lshlrev_b32 v15, 4, v15")
    a("v_lshl_add_u32 v2, v12, 7, v15")
    a("v_xor_b32 v3, 64, v2")
    a(f"v_add_u32 v4, {2*STG1}, v2")
    a(f"v_add_u32 v5, {2*STG1}, v3")
    a("v_lshrrev_b32 v15, 2, v12")
    a("v_and_b32 v16, 3, v1")
    a("v_lshl_add_u32 v19, v13, 3, v15")
    a("v_lshlrev_b32 v19, 7, v19")
    a("v_and_b32 v15, 2, v15")
    a("v_and_b32 v17, 1, v13")
    a("v_lshl_add_u32 v15, v17, 2, v15")
    a("v_lshrrev_b32 v17, 1, v16")
    a("s_lshl_b32 s43, s36, 1")
    a("v_add_u32 v17, s43, v17")
    a("v_xor_b32 v15, v15, v17")
    a("v_lshl_add_u32 v19, v15, 4, v19")
    a("v_and_b32 v16, 1, v16")
    a("v_lshl_add_u32 v19, v16, 3, v19")
    for sl in range(3):
        a(f"v_add_u32 v{6+sl}, {XB_ + sl*STG1}, v19")
    ACC = 128
    def accreg(seg, mt):
        return ACC + 36*seg + 4*mt
    for i in range(108): a(f"v_mov_b32 v{ACC+i}, 0")
    SET = [32, 80]
    def reads(s, kk, base):
        sl = s % NS
        xb = (2 + kk) if sl < 2 else (4 + kk)
        xo = (sl % 2)*STG1 if sl < 2 else 0
        def xr(mt): return f"ds_read_b128 v[{base+4*mt}:{base+4*mt+3}], v{xb} offset:{xo + mt*2048}"
        def wr(sg, h): return f"ds_read_b64_tr_b16 v[{base+36+4*sg+2*h}:{base+36+4*sg+2*h+1}], v{6+sl} offset:{sg*8192 + kk*4096 + h*512}"
        return [xr(0), wr(1,0), wr(1,1), wr(2,0), wr(2,1), wr(0,0), wr(0,1)] + [xr(m) for m in range(1, 9)]
    def mfmas(base):
        r = []
        for mt in range(9):
            for sg in (1, 2, 0):
                acc = accreg(sg, mt)
                r.append(f"v_mfma_f32_16x16x32_bf16 v[{acc}:{acc+3}], v[{base+36+4*sg}:{base+36+4*sg+3}], v[{base+4*mt}:{base+4*mt+3}], v[{acc}:{acc+3}]")
        return r
    def emit(seq):
        for i in seq:
            if "m" in strip and i.startswith("v_mfma"): continue
            if "r" in strip and i.startswith("ds_read"): continue
            a(i)
    att_setup()
    a(f"v_lshlrev_b32 v9, 3, v12")
    a(f"v_add_u32 v9, {RST}, v9")
    a(f"v_mul_u32_u24 v14, {QP}, v12")
    a("v_lshl_add_u32 v14, v13, 3, v14")
    a("s_lshl_b32 s43, s36, 5")
    a("v_add_u32 v14, s43, v14")
    a("s_barrier")
    stamp(a, 1)
    for i in reads(0, 0, SET[0]): a(i)
    def cstage(s, last):
        a("s_waitcnt lgkmcnt(0)")
        emit(interleave(mfmas(SET[0]), reads(s, 1, SET[1]), 0, 1))
        a("s_waitcnt lgkmcnt(0)")
        a("s_barrier")
        emit(interleave(mfmas(SET[1]), [f"ds_read_b64 v[{32+2*mt}:{33+2*mt}], v9 offset:{mt*128}" for mt in range(9)] if last else reads(s+1, 0, SET[0]), 0, 1))
    nl = (nst-1)//NS
    a(f"s_mov_b32 s41, {nl}")
    Ll = a.label("Lcl")
    a(f"{Ll}:")
    for s in range(NS): cstage(s, False)
    a("s_sub_u32 s41, s41, 1")
    a("s_cmp_lg_u32 s41, 0")
    a(f"s_cbranch_scc1 {Ll}")
    for s in range(nl*NS, nst): cstage(s, s == nst-1)
    stamp(a, 2)
    for sg in range(3):
        for r in range(4):
            a(f"v_mov_b32_dpp v{52+4*sg+r}, v{accreg(sg,0)+r} row_newbcast:0 row_mask:0xf bank_mask:0xf")
    a("s_waitcnt lgkmcnt(0)")
    for mt in range(9):
        for sg in ((1, 2) if mt == 0 else (0, 1, 2)):
            acc = accreg(sg, mt)
            for r in (0, 2):
                a(f"v_pk_fma_f32 v[{acc+r}:{acc+r+1}], v[{32+2*mt}:{33+2*mt}], v[{52+4*sg+r}:{53+4*sg+r}], v[{acc+r}:{acc+r+1}] op_sel_hi:[0,1,1] neg_lo:[1,0,0] neg_hi:[1,0,0]")
            for r in (0, 2):
                a(f"v_pk_mul_f32 v[{acc+r}:{acc+r+1}], v[{32+2*mt}:{33+2*mt}], v[{acc+r}:{acc+r+1}] op_sel:[1,0] op_sel_hi:[1,1]")
            a(f"v_cvt_pk_bf16_f32 v{acc}, v{acc}, v{acc+1}")
            a(f"v_cvt_pk_bf16_f32 v{acc+1}, v{acc+2}, v{acc+3}")
            a(f"ds_write_b64 v14, v[{acc}:{acc+1}] offset:{QKV + mt*16*QP + sg*128}")
    a("s_waitcnt lgkmcnt(0)")
    a(f"s_branch {Latt}")

    a(f"{Lprod}:")
    a("s_sub_u32 s47, s36, 4")
    a("s_lshl_b32 s43, s34, 7")
    a("s_lshl_b32 s44, s35, 3")
    a("s_add_u32 s43, s43, s44")
    a("s_mov_b32 s63, s43")
    a("s_lshl_b32 s44, s47, 1")
    a("s_add_u32 s51, s43, s44")
    a("v_lshlrev_b32 v10, 4, v1")
    srd(a, 20, 32, 2048*8, add_imm=WS_ST1)
    def rows_load(srow, dst=96, add=0):
        a(f"s_lshl_b32 s43, s{srow}, 11")
        if add: a(f"s_add_u32 s43, s43, {add*2048}")
        for q in range(4):
            a(f"buffer_load_dwordx4 v[{dst+4*q}:{dst+4*q+3}], v10, s[8:11], s43 offen offset:{q*1024}")
    def rows_stats(srcb=96):
        for r in range(2):
            sa, qa = 116+4*r, 118+4*r
            for i in range(8):
                src = srcb + 8*r + i
                t = 124 + 2*(i & 1)
                a(f"v_lshlrev_b32 v{t}, 16, v{src}")
                a(f"v_and_b32 v{t+1}, 0xffff0000, v{src}")
                if i == 0:
                    a(f"v_mov_b32 v{sa}, v{t}"); a(f"v_mov_b32 v{sa+1}, v{t+1}")
                    a(f"v_mul_f32 v{qa}, v{t}, v{t}"); a(f"v_mul_f32 v{qa+1}, v{t+1}, v{t+1}")
                else:
                    a(f"v_add_f32 v{sa}, v{sa}, v{t}"); a(f"v_add_f32 v{sa+1}, v{sa+1}, v{t+1}")
                    a(f"v_fmac_f32 v{qa}, v{t}, v{t}"); a(f"v_fmac_f32 v{qa+1}, v{t+1}, v{t+1}")
        R = [116, 118, 120, 122]
        for x in R: a(f"v_add_f32 v{x}, v{x}, v{x+1}")
        a("s_nop 0")
        for sh in (8, 4, 2, 1):
            for x in R: a(f"v_add_f32_dpp v{x}, v{x}, v{x} row_ror:{sh} row_mask:0xf bank_mask:0xf")
        for sw in ("16", "32"):
            for x in R: a(f"v_mov_b32 v{x+1}, v{x}")
            a("s_nop 0")
            for x in R: a(f"v_permlane{sw}_swap_b32 v{x}, v{x+1}")
            for x in R: a(f"v_add_f32 v{x}, v{x}, v{x+1}")
        for r in range(2):
            sv, qv, o = 116+4*r, 118+4*r, 112+2*r
            a(f"v_mul_f32 v{o}, 0x3a800000, v{sv}")
            a(f"v_mul_f32 v{o+1}, 0x3a800000, v{qv}")
            a(f"v_fma_f32 v{o+1}, -v{o}, v{o}, v{o+1}")
            a(f"v_max_f32 v{o+1}, 0, v{o+1}")
            a(f"v_add_f32 v{o+1}, 0x3727c5ac, v{o+1}")
            a(f"v_rsq_f32 v{o+1}, v{o+1}")
        a("s_nop 0")
    def rows_local():
        a("s_lshl_b32 s43, s47, 4")
        a(f"s_add_u32 s43, s43, {LST}")
        a("v_mov_b32 v11, s43")
        a("ds_write_b128 v11, v[112:115]")
        a("s_waitcnt lgkmcnt(0)")
    def spre_setup():
        if not NPS: return
        Lj = a.label("Lsj")
        cs_sbase(a, Lj, 80, 47)
        a(f"{Lj}:")
    def spre(n=2): cs_spre(a, n)
    a("s_cmp_eq_u32 s47, 3")
    a(f"s_cbranch_scc1 {Lpf}")
    a("v_lshrrev_b32 v14, 3, v1")
    a("v_and_b32 v15, 7, v1")
    a("v_and_b32 v16, 2, v14")
    a("v_xor_b32 v16, v15, v16")
    a("v_lshlrev_b32 v16, 4, v16")
    a("v_mul_u32_u24 v17, 6144, v14")
    a("s_lshl_b32 s43, s47, 11")
    a("v_add3_u32 v2, v17, v16, s43")
    a("v_xor_b32 v3, 64, v2")
    a("v_lshrrev_b32 v16, 1, v14")
    a("v_xor_b32 v16, v15, v16")
    a("v_lshlrev_b32 v16, 4, v16")
    a("s_lshl_b32 s43, s47, 3")
    a("s_add_u32 s43, s43, s50")
    a("v_add_u32 v17, s43, v14")
    a("s_and_b32 s44, s47, 1")
    a("s_lshl_b32 s44, s44, 6")
    for i in range(6):
        a(f"v_add_u32 v18, {24*i}, v17")
        a("v_max_i32 v18, 0, v18")
        a("v_lshl_add_u32 v18, v18, 11, v16")
        a("v_xor_b32 v18, s44, v18")
        if i & 1: a(f"v_xor_b32 v{4+i}, 64, v18")
        else: a(f"v_mov_b32 v{4+i}, v18")
    a("s_lshl_b32 s39, s47, 10")
    a("s_lshl_b32 s40, s47, 13")
    a(f"s_add_u32 s40, s40, {XB_}")
    a("s_mov_b32 s37, 0")
    a("s_mov_b32 s38, 0")
    a("s_bfm_b64 s[60:61], 56, 8")
    a("s_cmp_eq_u32 s47, 0")
    a("s_cselect_b64 s[60:61], s[60:61], -1")
    def dma(slot):
        for i in range(6):
            a(f"s_add_u32 m0, s39, {slot*STG1 + i*3072}")
            a("s_mov_b64 exec, s[60:61]" if i == 0 else "s_nop 0")
            if "d" not in strip: a(f"buffer_load_dwordx4 v{4+i}, s[8:11], s37 offen lds")
            if i == 0: a("s_mov_b64 exec, -1")
        for j in range(8):
            a(f"s_add_u32 m0, s40, {slot*STG1 + j*1024}")
            a(f"s_add_u32 s43, s38, {8*j*6144}")
            if "d" not in strip: a(f"buffer_load_dwordx4 v{2+(j&1)}, s[12:15], s43 offen lds")
        a("s_add_u32 s37, s37, 128")
        a(f"s_add_u32 s38, s38, {64*6144}")
    for sl in range(NS): dma(sl)
    rows_load(51)
    a(f"s_waitcnt vmcnt({14*(NS-1) + 4})")
    a("s_barrier")
    def pstage(s, do_dma, vm, extra=None):
        if do_dma: dma((s+2) % NS)
        if extra: extra()
        if 3 <= s <= int(os.environ.get("K1_SPE", "13")): spre()
        if vm is not None: a(f"s_waitcnt vmcnt({vm})")
        a("s_barrier")
    spre_setup()
    pstage(0, False, 14 + 4)
    pstage(1, True, 14)
    def loc():
        rows_stats(); rows_local()
    pstage(2, True, 14, loc)
    pstage(3, True, 14)
    a(f"s_mov_b32 s41, 3")
    Lp = a.label("Lpl")
    a(f"{Lp}:")
    for s in range(4, 7): pstage(s, True, 14)
    a("s_sub_u32 s41, s41, 1")
    a("s_cmp_lg_u32 s41, 0")
    a(f"s_cbranch_scc1 {Lp}")
    pstage(13, True, 14)
    pstage(14, False, 0)
    pstage(15, False, None)
    a("s_waitcnt lgkmcnt(0)")
    att_setup()
    a(f"s_branch {Latt}")

    a(f"{Lpf}:")
    PFM = os.environ.get("K1_PF", "mall1")
    PF = PFM == "l2"
    a(f"s_load_dwordx2 s[26:27], s[0:1], {KA_DBG}")
    rows_load(51)
    a("v_min_u32 v14, 23, v1")
    a("v_lshrrev_b32 v15, 3, v14")
    a(f"v_mul_u32_u24 v15, {STG1}, v15")
    a("v_and_b32 v14, 7, v14")
    a("v_lshl_add_u32 v15, v14, 4, v15")
    for i in range(4): a(f"v_mov_b32 v{32+i}, 0x3f803f80")
    a("ds_write_b128 v15, v[32:35]")
    PER = 64 // MX
    NPI = (3*PER + 63) // 64
    for q in range(NPI):
        a(f"v_add_u32 v14, {64*q}, v1")
        a(f"v_min_u32 v14, {3*PER-1}, v14")
        a("v_mul_u32_u24 v15, 21846, v14")
        a("v_lshrrev_b32 v15, 16, v15")
        a("v_mul_u32_u24 v16, 3, v15")
        a("v_sub_u32 v16, v14, v16")
        a(f"s_mul_i32 s43, s48, {PER}")
        a("v_add_u32 v15, s43, v15")
        a("v_mul_u32_u24 v15, 6144, v15")
        a(f"v_lshl_add_u32 v{2+q}, v16, 11, v15")
    vm = []
    def wait_for(tag):
        idx = max(i for i, t in enumerate(vm) if t == tag)
        a(f"s_waitcnt vmcnt({len(vm) - 1 - idx})")
    def l2pf(st):
        if not PF or st >= nst: return
        a(f"s_mov_b32 s43, {st*64*6144}")
        for q in range(NPI):
            a(f"buffer_load_dword v31, v{2+q}, s[12:15], s43 offen"); vm.append("pf")
    a("s_waitcnt lgkmcnt(0)")
    srd(a, 56, 26, 256)
    a("v_lshlrev_b32 v14, 7, v1")
    Lz = a.label("Lz")
    a("s_or_b32 s43, s34, s35")
    a("s_cmp_lg_u32 s43, 0")
    a(f"s_cbranch_scc1 {Lz}")
    flag_srd(a, 84)
    a("v_mov_b32 v5, 0")
    a("buffer_store_dword v5, v14, s[84:87], 0 offen sc1")
    a("s_movk_i32 s43, 0x2000")
    a("buffer_store_dword v5, v14, s[84:87], s43 offen sc1")
    for i in range(4): a(f"v_mov_b32 v{36+i}, 0")
    a("v_lshlrev_b32 v5, 4, v1")
    a(f"s_movk_i32 s43, {XFLG}")
    a("buffer_store_dwordx4 v[36:39], v5, s[84:87], s43 offen sc1")
    a("s_waitcnt vmcnt(0)")
    a(f"{Lz}:")
    vm.append("rows")
    def mallpf():
        srd(a, 84, 6, 6291456)
        a("s_mul_i32 s43, s2, 24576")
        for q in range(3):
            a(f"buffer_load_dword v31, v14, s[84:87], s43 offen"); vm.append("pf")
            if q < 2: a("s_add_u32 s43, s43, 8192")
    def slowpf():
        srd(a, 84, 6, 6291456)
        a("s_lshr_b32 s44, s2, 3")
        if SPF & 1:
            a("s_and_b32 s43, s35, 8")
            a("s_or_b32 s43, s43, 3")
            a("s_lshl_b32 s43, s43, 7")
            a("s_mul_i32 s45, s44, %d" % (32*6144))
            a("s_add_u32 s43, s43, s45")
            for q in range(2):
                a(f"v_add_u32 v15, {64*q}, v1")
                a("v_min_u32 v15, 95, v15")
                a("v_mul_u32_u24 v16, 21846, v15")
                a("v_lshrrev_b32 v16, 16, v16")
                a("v_mul_u32_u24 v17, 3, v16")
                a("v_sub_u32 v15, v15, v17")
                a("v_mul_u32_u24 v16, 6144, v16")
                a("v_lshl_add_u32 v15, v15, 11, v16")
                a("buffer_load_dword v31, v15, s[84:87], s43 offen"); vm.append("pf")
        if SPF & 2:
            a("s_xor_b32 s43, s63, 64")
            a("s_lshl_b32 s43, s43, 11")
            a("buffer_load_dword v31, v14, s[8:11], s43 offen"); vm.append("pf")
            a("s_add_u32 s43, s43, 8192")
            a("buffer_load_dword v31, v14, s[8:11], s43 offen"); vm.append("pf")
    SPF = int(os.environ.get("K1_SPF", "3"))
    if os.environ.get("K1_SPF_FIRST"): slowpf()
    if PFM == "mall0": mallpf()
    if not os.environ.get("K1_SPF_FIRST"): slowpf()
    stampc(a, "k1", 0)
    a("s_barrier")
    if PFM == "mall1": mallpf()
    stampc(a, "k1", 1)
    GS = int(os.environ.get("K1_GS", "10"))
    SS = int(os.environ.get("K1_SS", "7"))
    PFN = int(os.environ.get("K1_PFN", "4"))
    CS0 = int(os.environ.get("K1_CS0", "14")); WOP = int(os.environ.get("K1_WOP", "13")); WOM = os.environ.get("K1_WOM", "mall")
    Lgd = a.label("Lgd")
    nxt = [3]
    for s in range(nst):
        if s == 0: spre_setup()
        if s == 2:
            wait_for("rows")
            rows_stats(); rows_local()
        if s == 3:
            a("v_lshlrev_b32 v5, 4, v1")
            a("v_and_b32 v5, 63, v5")
            a(f"v_add_u32 v6, {LST}, v5")
            a("ds_read_b128 v[112:115], v6")
            a("s_lshl_b32 s43, s63, 3")
            a("v_add_u32 v5, s43, v5")
            a("s_waitcnt lgkmcnt(0)")
            a("s_mov_b64 exec, 15")
            a(f"buffer_store_dwordx4 v[112:115], v5, s[20:23], 0 offen sc1"); vm.append("store")
            a("s_mov_b64 exec, -1")
        if s < SS - 2:
            for q in range(PFN):
                l2pf(nxt[0]); nxt[0] += 1
        if s == int(os.environ.get("K1_X11", "99")):
            a(f"s_andn2_b32 s43, s34, {MX-1}")
            a("s_lshl_b32 s43, s43, 7")
            a("s_lshr_b32 s44, s2, 3")
            a("s_mul_i32 s44, s44, 17")
            a("s_add_u32 s43, s43, s44")
            a("s_sub_u32 s43, s43, 16")
            a("v_min_u32 v15, 16, v1")
            a("v_add_u32 v15, s43, v15")
            a("v_max_i32 v15, 0, v15")
            a("v_lshlrev_b32 v15, 11, v15")
            a("buffer_load_dword v31, v15, s[8:11], 0 offen offset:1408"); vm.append("pf")
        if s == WOP:
            if WOM == "l2":
                n = pf_w64(a, KA_WO, 1024, list(range(16//MX)), 84, 29, 30); vm.extend(["pf"]*n)
            elif WOM == "mall":
                a(f"s_load_dwordx2 s[88:89], s[0:1], {KA_WO}")
                a("v_lshlrev_b32 v29, 7, v1")
                a("s_lshl_b32 s43, s2, 13")
                a("s_waitcnt lgkmcnt(0)")
                srd(a, 84, 88, 2097152)
                a("buffer_load_dword v30, v29, s[84:87], s43 offen"); vm.append("pf")
                if int(os.environ.get("K2_SPF", "1")):
                    a("v_and_b32 v29, 31, v1")
                    a("v_lshlrev_b32 v29, 11, v29")
                    a("s_and_b32 s43, s35, 8")
                    a("s_or_b32 s43, s43, 3")
                    a("s_lshl_b32 s43, s43, 7")
                    a("s_lshr_b32 s44, s2, 3")
                    a("s_lshl_b32 s44, s44, 16")
                    a("s_add_u32 s43, s43, s44")
                    a("buffer_load_dword v30, v29, s[84:87], s43 offen"); vm.append("pf")
        if s == SS:
            a("s_waitcnt vmcnt(0)")
            a("s_lshl_b32 s43, s34, 4")
            a("s_add_u32 s43, s43, s35")
            a("v_mov_b32 v5, s43")
            a("v_mov_b32 v6, 1")
            a("s_mov_b64 exec, 1")
            a("buffer_store_byte v6, v5, s[56:59], 0 offen sc1"); vm.append("at")
            a("s_mov_b64 exec, -1")
        if s == GS:
            a("s_lshl_b32 s43, s34, 4")
            a("s_sub_u32 s44, s43, 4")
            a("s_max_i32 s44, s44, 0")
            a("v_lshl_add_u32 v5, v1, 2, s43")
            a("v_mov_b32 v6, s44")
            a("v_cmp_gt_u32 vcc, 4, v1")
            a("s_nop 1")
            a("v_cndmask_b32 v5, v6, v5, vcc")
            a("v_cmp_eq_u32 vcc, 5, v1")
            a("s_nop 1")
            a("v_cndmask_b32 v5, v5, 0, vcc")
            a("buffer_load_dword v6, v5, s[56:59], 0 offen sc1"); vm.append("poll")
        if s == GS + 2:
            Lpoll = a.label("Lpoll"); Lok = a.label("Lok"); Lfb = a.label("Lfb")
            a("s_mov_b32 s41, 200")
            a("s_mov_b32 s62, 0")
            wait_for("poll")
            a(f"{Lpoll}:")
            a("v_and_b32 v6, 0x01010101, v6")
            a("v_cmp_ne_u32 vcc, 0x01010101, v6")
            a("s_nop 4")
            a(f"s_cbranch_vccz {Lok}")
            a("buffer_load_dword v6, v5, s[56:59], 0 offen sc1")
            a("s_waitcnt vmcnt(0)")
            a("s_sub_u32 s41, s41, 1")
            a("s_cmp_lg_u32 s41, 0")
            a(f"s_cbranch_scc1 {Lpoll}")
            a("s_mov_b32 s41, 0")
            a(f"{Lfb}:")
            a("s_add_u32 s62, s50, s41")
            a("s_max_i32 s62, s62, 0")
            rows_load(62)
            a("s_waitcnt vmcnt(0)")
            rows_stats()
            a("s_lshl_b32 s43, s41, 3")
            a(f"s_add_u32 s43, s43, {RST}")
            a("v_mov_b32 v5, s43")
            a("ds_write_b128 v5, v[112:115]")
            a("s_add_u32 s41, s41, 2")
            a("s_cmp_lt_u32 s41, 144")
            a(f"s_cbranch_scc1 {Lfb}")
            a("s_mov_b32 s62, 1")
            Lz0 = a.label("Lz0")
            a("v_mov_b32 v5, 0")
            a("s_mov_b32 s41, 0x10000")
            a(f"{Lz0}:")
            a("buffer_load_ubyte v6, v5, s[56:59], 0 offen sc1")
            a("s_waitcnt vmcnt(0)")
            a("v_cmp_eq_u32 vcc, 0, v6")
            a("s_nop 4")
            a(f"s_cbranch_vccz {Lok}")
            a("s_sub_u32 s41, s41, 1")
            a("s_cmp_lg_u32 s41, 0")
            a(f"s_cbranch_scc1 {Lz0}")
            a(f"{Lok}:")
            for q in range(3):
                a(f"v_add_u32 v5, {64*q}, v1")
                a("v_min_u32 v5, 143, v5")
                a(f"v_lshlrev_b32 v{20+q}, 3, v5")
                a("v_add_u32 v5, s50, v5")
                a("v_max_i32 v5, 0, v5")
                a("v_lshlrev_b32 v5, 3, v5")
                a(f"buffer_load_dwordx2 v[{32+2*q}:{33+2*q}], v5, s[20:23], 0 offen sc1"); vm.append("gather")
        if s == GS + 4:
            wait_for("gather")
            a("s_cmp_eq_u32 s62, 1")
            a(f"s_cbranch_scc1 {Lgd}")
            for q in range(3):
                a(f"v_add_u32 v{20+q}, {RST}, v{20+q}")
                a(f"ds_write_b64 v{20+q}, v[{32+2*q}:{33+2*q}]")
            a(f"{Lgd}:")
            a("s_waitcnt lgkmcnt(0)")
        if s in (CS0, CS0+1):
            Lnj = a.label("Lnj")
            cs_setup(a, Lnj, 84, 28)
            for q in range(16*(s-CS0), 16*(s-CS0+1)): cs_issue(a, q, 84, 28)
            a(f"{Lnj}:")
        if 3 <= s <= 13 and s not in (WOP - 1, GS + 3) and STAMPC != "k1": spre()
        a("s_barrier")
        stampc(a, "k1", s+2)
    stampc(a, "k1", 18)
    a("s_waitcnt lgkmcnt(0)")
    att_setup()

    a(f"{Latt}:")
    a("s_barrier")
    stampc(a, "k1", 19)
    stamp(a, 3)
    U = 32*QP
    for u in range(2):
        B = 32 + 48*u
        uo = u*U
        a(f"ds_read_b128 v[{B}:{B+3}], v20 offset:{QKV + uo}")
        a(f"ds_read_b128 v[{B+4}:{B+7}], v20 offset:{QKV + uo + 128}")
        if u == 0: a(f"ds_read_b128 v[{B+8}:{B+11}], v21 offset:{QKV + 128}")
        else: a(f"ds_read_b128 v[{B+8}:{B+11}], v20 offset:{QKV + 128}")
    for u in range(2):
        B = 32 + 48*u
        uo = u*U
        for dh in range(2):
            if u == 0: a(f"ds_read_b64_tr_b16 v[{B+12+4*dh}:{B+13+4*dh}], v23 offset:{QKV + 256 + dh*32}")
            else: a(f"ds_read_b64_tr_b16 v[{B+12+4*dh}:{B+13+4*dh}], v22 offset:{QKV + 256 + dh*32}")
            a(f"ds_read_b64_tr_b16 v[{B+14+4*dh}:{B+15+4*dh}], v22 offset:{QKV + uo + 256 + dh*32}")
    for u in range(2):
        B = 32 + 48*u
        a(f"s_waitcnt lgkmcnt({11 if u == 0 else 8})")
        a(f"v_mfma_f32_16x16x32_bf16 v[{B+20}:{B+23}], v[{B+8}:{B+11}], v[{B}:{B+3}], 0")
        a(f"v_mfma_f32_16x16x32_bf16 v[{B+24}:{B+27}], v[{B+4}:{B+7}], v[{B}:{B+3}], 0")
    a("s_nop 7")
    def soft(u):
        B = 32 + 48*u
        S = B + 20; M = B + 28; T = B + 29; P = B + 32
        r_ = []
        am = 64 if u == 0 else 84
        for r in range(4): r_.append(f"v_cndmask_b32 v{S+r}, v28, v{S+r}, s[{am+2*r}:{am+2*r+1}]")
        for r in range(4): r_.append(f"v_cndmask_b32 v{S+4+r}, v28, v{S+4+r}, s[{52+2*r}:{53+2*r}]")
        r_.append(f"v_max3_f32 v{M}, v{S}, v{S+1}, v{S+2}")
        r_.append(f"v_max3_f32 v{T}, v{S+3}, v{S+4}, v{S+5}")
        r_.append(f"v_max3_f32 v{M}, v{M}, v{S+6}, v{S+7}")
        r_.append(f"v_max_f32 v{M}, v{M}, v{T}")
        for sw in ("32", "16"):
            r_.append(f"v_mov_b32 v{T}, v{M}")
            r_.append("s_nop 0")
            r_.append(f"v_permlane{sw}_swap_b32 v{M}, v{T}")
            r_.append(f"v_max_f32 v{M}, v{M}, v{T}")
        r_.append(f"v_mul_f32 v{M}, s61, v{M}")
        for r in range(8): r_.append(f"v_fma_f32 v{S+r}, v{S+r}, s61, -v{M}")
        for r in range(8): r_.append(f"v_exp_f32 v{S+r}, v{S+r}")
        for q in range(4): r_.append(f"v_cvt_pk_bf16_f32 v{P+q}, v{S+2*q}, v{S+2*q+1}")
        return r_
    def zip2(x, y):
        for i, j in zip(x, y):
            a(i)
            if not (i == j and i.startswith("s_nop")): a(j)
    zip2(soft(0), soft(1))
    a("s_waitcnt lgkmcnt(0)")
    for u in range(2):
        B = 32 + 48*u
        for dh in range(2):
            a(f"v_mfma_f32_16x16x32_bf16 v[{B+36+4*dh}:{B+39+4*dh}], v[{B+12+4*dh}:{B+15+4*dh}], v[{B+32}:{B+35}], 0")
    def rsum(u):
        B = 32 + 48*u
        S = B + 20; M = B + 28; T = B + 29
        r_ = [f"v_add_f32 v{M}, v{S}, v{S+1}", f"v_add_f32 v{T}, v{S+2}, v{S+3}", f"v_add_f32 v{S+4}, v{S+4}, v{S+5}", f"v_add_f32 v{S+6}, v{S+6}, v{S+7}",
              f"v_add_f32 v{M}, v{M}, v{T}", f"v_add_f32 v{S+4}, v{S+4}, v{S+6}", f"v_add_f32 v{M}, v{M}, v{S+4}"]
        for sw in ("32", "16"):
            r_.append(f"v_mov_b32 v{T}, v{M}")
            r_.append("s_nop 0")
            r_.append(f"v_permlane{sw}_swap_b32 v{M}, v{T}")
            r_.append(f"v_add_f32 v{M}, v{M}, v{T}")
        r_.append(f"v_rcp_f32 v{M}, v{M}")
        return r_
    zip2(rsum(0), rsum(1))
    a("s_nop 0")
    for u in range(2):
        B = 32 + 48*u
        M = B + 28; O = B + 36
        for r in range(0, 8, 2): a(f"v_pk_mul_f32 v[{O+r}:{O+r+1}], v[{M}:{M+1}], v[{O+r}:{O+r+1}] op_sel_hi:[0,1]")
        for q in range(4): a(f"v_cvt_pk_bf16_f32 v{O+q}, v{O+2*q}, v{O+2*q+1}")
        a(f"buffer_store_dwordx4 v[{O}:{O+3}], v27, s[16:19], 0 offen offset:{512*u} sc1")
    stamp(a, 4)
    a("s_waitcnt vmcnt(0)")
    a("s_barrier")
    flag_srd(a, 56)
    Ls = a.label("Lsig")
    a("s_cmp_lg_u32 s36, 0")
    a(f"s_cbranch_scc1 {Ls}")
    flag_signal(a, 56, "o", 34)
    a(f"{Ls}:")
    stamp(a, 5)
    stampc(a, "k1", 20)
```

```python
import os, struct
from common import *

def fh(x): return "0x%08x" % struct.unpack("<I", struct.pack("<f", x))[0]
def env(k, d): return int(os.environ.get(k, str(d)))

C0_ = -2.0*0.7978845608028654*1.4426950408889634
C1_ = C0_*0.044715
XF = os.environ.get("XF", " sc1")
SET = [32, 80]
ACC = 128
NST4 = 56


class VM:
    def __init__(self, a): self.a = a; self.q = []
    def add(self, tag, n=1): self.q += [tag]*n
    def cnt(self, tag):
        idx = max(i for i, t in enumerate(self.q) if t == tag)
        return len(self.q) - 1 - idx
    def wait(self, tag):
        n = self.cnt(tag); assert n <= 63, n
        return f"s_waitcnt vmcnt({n})"
    def reset(self): self.q = []


def spread(main, items, frac=100):
    if frac < 100:
        c = len(main)*frac//100
        return spread(main[:c], items) + main[c:]
    out = []
    n, k = len(main), len(items)
    j = 0
    for i in range(n + 1):
        while j < k and j*n <= i*k:
            out += items[j]; j += 1
        if i < n: out.append(main[i])
    while j < k: out += items[j]; j += 1
    return out


def lane_ig(a):
    a("v_and_b32 v17, 15, v1")
    a("v_lshrrev_b32 v18, 4, v1")


def g2_addrs():
    r = []
    r.append("v_lshlrev_b32 v19, 11, v18")
    r.append("v_lshl_add_u32 v19, v17, 4, v19")
    r.append("s_lshl_b32 s43, s36, 9")
    r.append("v_add_u32 v2, s43, v19")
    r.append(f"v_add_u32 v3, {REG}, v2")
    r.append(f"v_add_u32 v4, {2*REG}, v2")
    r.append("v_lshrrev_b32 v19, 2, v17")
    r.append("v_lshl_add_u32 v20, v18, 2, v19")
    r.append("v_bfe_u32 v21, v20, 1, 2")
    r.append("v_lshlrev_b32 v20, 7, v20")
    r.append("v_lshl_add_u32 v20, v21, 5, v20")
    r.append("v_and_b32 v19, 3, v1")
    r.append("v_lshl_add_u32 v20, v19, 3, v20")
    r.append("v_add_u32 v5, 16384, v20")
    for t in range(1, 4): r.append(f"v_xor_b32 v{5+t}, {32*t}, v5")
    for rg in range(1, 3):
        for t in range(4): r.append(f"v_add_u32 v{5+4*rg+t}, {rg*REG}, v{5+t}")
    return r

def g2_reads(slot, base):
    rg, so = slot >> 1, (slot & 1)*SLOT
    def xr(kb, tl): return f"ds_read_b128 v[{base+(kb*2+tl)*4}:{base+(kb*2+tl)*4+3}], v{2+rg} offset:{so + kb*8192 + tl*256}"
    def wr(kb, t, h):
        d = base + 16 + (kb*4+t)*4 + 2*h
        return f"ds_read_b64_tr_b16 v[{d}:{d+1}], v{5+4*rg+t} offset:{so + kb*4096 + h*2048}"
    r = []
    for kb in range(2):
        r += [xr(kb, 0), wr(kb, 0, 0), wr(kb, 0, 1), wr(kb, 1, 0), wr(kb, 1, 1), xr(kb, 1), wr(kb, 2, 0), wr(kb, 2, 1), wr(kb, 3, 0), wr(kb, 3, 1)]
    return r

def g2_mfmas(base):
    r = []
    for kb in range(2):
        for tl in range(2):
            for t in range(4):
                acc = ACC + (tl*4+t)*4
                w = base + 16 + (kb*4+t)*4; x = base + (kb*2+tl)*4
                r.append(f"v_mfma_f32_16x16x32_bf16 v[{acc}:{acc+3}], v[{w}:{w+3}], v[{x}:{x+3}], v[{acc}:{acc+3}]")
    return r

def g2_stage(a, s, slot_next, pre=None):
    a("s_waitcnt lgkmcnt(0)" if pre is None else f"s_waitcnt vmcnt({pre}) lgkmcnt(0)")
    a("s_barrier")
    m = g2_mfmas(SET[s & 1])
    rd = [] if slot_next is None else g2_reads(slot_next, SET[(s+1) & 1])
    k = 0
    for i in range(16):
        a(m[i])
        for q in range(2 if i < 6 else 1):
            if k < len(rd): a(rd[k]); k += 1

def g2_loop(a, s0, nst, off, pres={}):
    s = s0
    while s in pres or (s % 6 != 0 and False):
        g2_stage(a, s, (s+1+off) % 6, pres[s]); s += 1
    nl = (nst - 1 - s)//6
    if nl > 0:
        L = a.label("Lg2")
        a(f"s_mov_b32 s41, {nl}")
        a(f"{L}:")
        for q in range(6): g2_stage(a, s+q, (s+q+1+off) % 6)
        a("s_sub_u32 s41, s41, 1")
        a("s_cmp_lg_u32 s41, 0")
        a(f"s_cbranch_scc1 {L}")
        s += 6*nl
    while s < nst:
        g2_stage(a, s, None if s == nst-1 else (s+1+off) % 6); s += 1


def k3_addrs(nj, t0):
    r = []
    r.append("v_lshlrev_b32 v19, 11, v18")
    r.append("v_lshl_add_u32 v19, v17, 4, v19")
    r.append("s_lshl_b32 s43, s46, 10")
    r.append("v_add_u32 v2, s43, v19")
    r.append(f"v_add_u32 v3, {REG}, v2")
    r.append(f"v_add_u32 v4, {2*REG}, v2")
    r.append("v_lshrrev_b32 v19, 2, v17")
    r.append("v_lshl_add_u32 v20, v18, 2, v19")
    r.append("v_and_b32 v21, 7, v20")
    r.append("v_lshlrev_b32 v20, 8, v20")
    r.append("v_and_b32 v19, 3, v1")
    r.append("v_lshl_add_u32 v20, v19, 3, v20")
    for j in range(nj):
        r.append(f"s_add_u32 s43, s{t0}, {j}")
        r.append("v_xor_b32 v19, s43, v21")
        r.append(f"v_lshl_add_u32 v{5+j}, v19, 5, v20")
    for rg in range(1, 3):
        for j in range(nj): r.append(f"v_add_u32 v{5+4*rg+j}, {rg*REG}, v{5+j}")
    return r

def k3_acc(nj, mat, j, tl): return ACC + ((mat*nj + j)*4 + tl)*4

def k3_reads(nj, sig, kk, base):
    rg = (sig + 2) % 3
    def xr(tl): return f"ds_read_b128 v[{base+4*tl}:{base+4*tl+3}], v{2+rg} offset:{kk*8192 + tl*256}"
    def wr(mat, j, h):
        d = base + 16 + (mat*nj+j)*4 + 2*h
        return f"ds_read_b64_tr_b16 v[{d}:{d+1}], v{5+4*rg+j} offset:{16384*(1+mat) + kk*8192 + h*4096}"
    r = [xr(0), wr(0, 0, 0), wr(0, 0, 1), xr(1), xr(2), xr(3), wr(1, 0, 0), wr(1, 0, 1)]
    for j in range(1, nj): r += [wr(0, j, 0), wr(0, j, 1), wr(1, j, 0), wr(1, j, 1)]
    return r

def k3_mfmas(nj, base):
    r = []
    for j in range(nj):
        for mat in range(2):
            for tl in range(4):
                acc = k3_acc(nj, mat, j, tl)
                w = base + 16 + (mat*nj+j)*4; x = base + 4*tl
                r.append(f"v_mfma_f32_16x16x32_bf16 v[{acc}:{acc+3}], v[{w}:{w+3}], v[{x}:{x+3}], v[{acc}:{acc+3}]")
    return r

def k3_half1(a, nj, sig, vmw=None):
    a("s_waitcnt lgkmcnt(0)")
    for i in interleave(k3_mfmas(nj, SET[0]), k3_reads(nj, sig, 1, SET[1])): a(i)
    a("s_waitcnt lgkmcnt(0)" if vmw is None else f"s_waitcnt vmcnt({vmw}) lgkmcnt(0)")
    a("s_barrier")
def k3_half2(a, nj, sig):
    for i in interleave(k3_mfmas(nj, SET[1]), k3_reads(nj, sig+1, 0, SET[0])): a(i)

def k3_consumer(a, nj, sig0, vmw):
    L = a.label("Lk3")
    a("s_mov_b32 s41, 5")
    a(f"{L}:")
    for q in range(3):
        k3_half1(a, nj, sig0+q, vmw[q] if q < len(vmw) else None)
        k3_half2(a, nj, sig0+q)
    a("s_sub_u32 s41, s41, 1")
    a("s_cmp_lg_u32 s41, 0")
    a(f"s_cbranch_scc1 {L}")
    k3_half1(a, nj, sig0+15)


def k3_dma_setup(part, psg, vE=22):
    r = []
    if part == 0: r.append("s_lshl_b32 s43, s35, 8")
    else:
        r.append("s_mul_i32 s43, s35, 192")
        r.append("s_and_b32 s43, s43, 0xffffff80")
        r.append("s_add_u32 s43, s43, 4096")
    r.append(f"s_cmp_eq_u32 s{psg}, 1")
    r.append("s_cselect_b32 s8, s4, s6")
    r.append("s_cselect_b32 s9, s5, s7")
    r.append("s_sub_u32 s10, 7340032, s43")
    r.append("s_lshl_b32 s44, s34, 18")
    r.append(f"s_add_u32 s44, s44, {WS_H}")
    r.append("s_movk_i32 s38, 28672")
    r.append(f"s_cmp_eq_u32 s{psg}, 0")
    r.append("s_cselect_b32 s8, s32, s8")
    r.append("s_cselect_b32 s9, s33, s9")
    r.append("s_cselect_b32 s10, 262144, s10")
    r.append("s_cselect_b32 s43, s44, s43")
    r.append("s_cselect_b32 s38, 1024, s38")
    r.append("s_cselect_b32 s45, 0, -1")
    r.append("s_add_u32 s8, s8, s43")
    r.append("s_addc_u32 s9, s9, 0")
    r.append("s_mov_b32 s11, 0x20000")
    r.append("s_sub_u32 s37, 0, s38")
    r.append(f"s_lshl_b32 s39, s{psg}, 14")
    r.append("v_lshrrev_b32 v19, 4, v1")
    r.append("v_lshlrev_b32 v20, 5, v19")
    r.append("v_mul_u32_u24 v19, 6912, v19")
    r.append("v_and_b32 v19, s45, v19")
    r.append("v_and_b32 v20, s45, v20")
    r.append("v_lshlrev_b32 v21, 4, v1")
    r.append("v_xor_b32 v21, v21, v20")
    r.append(f"v_add_u32 v{vE}, v21, v19")
    r.append("s_and_b32 s45, s45, 128")
    r.append(f"v_xor_b32 v{vE+1}, s45, v{vE}")
    return r

def k3_items(sig, vE=22):
    rg = (sig + 2) % 3
    return [[f"s_add_u32 m0, s39, {rg*REG + j*1024}", "s_add_u32 s37, s37, s38",
             f"buffer_load_dwordx4 v{vE + (j & 1)}, s[8:11], s37 offen{XF} lds"] for j in range(16)]

def g2_dma_setup(psg, A_off, A_mul, A_bytes, K, wreg, vA=21, hop=8):
    r = []
    r.append(f"s_mul_i32 s44, s34, {A_mul}")
    r.append(f"s_lshl_b32 s39, s{psg}, 13")
    r.append("s_add_u32 s44, s44, s39")
    r.append(f"s_add_u32 s44, s44, {A_off}")
    r.append("s_lshl_b32 s43, s35, 7")
    r.append(f"s_mov_b32 s10, {A_bytes - 8192}")
    r.append("s_movk_i32 s38, 1024")
    r.append("s_movk_i32 s40, 9216")
    r.append(f"s_cmp_eq_u32 s{psg}, 2")
    r.append(f"s_cselect_b32 s8, s{wreg}, s32")
    r.append(f"s_cselect_b32 s9, s{wreg+1}, s33")
    r.append(f"s_cselect_b32 s10, {K*2048 - 1920}, s10")
    r.append("s_cselect_b32 s43, s43, s44")
    r.append("s_cselect_b32 s38, 16384, s38")
    r.append(f"s_cselect_b32 s40, {hop*2048}, s40")
    r.append(f"s_cselect_b32 s55, {hop*2048}, s38")
    r.append("s_cselect_b32 s45, -1, 0")
    r.append("s_add_u32 s8, s8, s43")
    r.append("s_addc_u32 s9, s9, 0")
    r.append("s_mov_b32 s11, 0x20000")
    r.append("s_sub_u32 s37, 0, s40")
    r.append("v_lshrrev_b32 v19, 3, v1")
    r.append("v_mul_u32_u24 v19, 1920, v19")
    r.append("v_lshrrev_b32 v20, 4, v1")
    r.append("v_lshlrev_b32 v20, 5, v20")
    r.append("v_and_b32 v19, s45, v19")
    r.append("v_and_b32 v20, s45, v20")
    r.append(f"v_lshlrev_b32 v{vA}, 4, v1")
    r.append(f"v_xor_b32 v{vA}, v{vA}, v20")
    r.append(f"v_add_u32 v{vA}, v{vA}, v19")
    return r

def g2_items(slot, vA=21, wrows=None):
    r = []
    for k in range(8):
        if wrows is None: inc = f"s_add_u32 s37, s37, s{40 if k == 0 else 55 if k == 4 else 38}"
        else: inc = f"s_add_u32 s37, s37, {(wrows[k]*2048) & 0xffffffff}"
        r.append([f"s_add_u32 m0, s39, {slot*SLOT + k*1024}", inc, f"buffer_load_dwordx4 v{vA}, s[8:11], s37 offen{XF} lds"])
    return r

def wd_row(item):
    if item < 256:
        s, k = item >> 3, item & 7
        return 128*(s & 15) + 32*(s >> 4) + 64*(k >> 2) + 8*(k & 3)
    q = item - 256
    return 2048 + 96*(q // 12) + [0, 8, 16, 24, 48, 56, 64, 72, 32, 80, 40, 88][q % 12]


CSR = 48
TT = 80
def epi_reads(nj, csbase):
    rd = []
    rd.append("s_lshl_b32 s43, s46, 9")
    rd.append(f"s_add_u32 s43, s43, {STATS}")
    rd.append("v_lshl_add_u32 v19, v17, 3, s43")
    for tl in range(4): rd.append(f"ds_read_b64 v[{TT+2*tl}:{TT+2*tl+1}], v19 offset:{tl*128}")
    rd.append(f"s_mul_i32 s43, s47, {nj*64}")
    rd.append(f"s_add_u32 s43, s43, {CSF + csbase*4}")
    rd.append("v_lshl_add_u32 v19, v18, 4, s43")
    for mat in range(2):
        for j in range(nj):
            d = CSR + (mat*nj+j)*4
            rd.append(f"ds_read_b128 v[{d}:{d+3}], v19 offset:{mat*896 + j*64}")
    return rd
def epi_consts(KB, mean=True):
    c = []
    for tl in range(4):
        mn, rs = TT+2*tl, TT+2*tl+1
        if mean: c.append(f"v_mov_b32 v{KB+tl}, v{mn}")
        c.append(f"v_mul_f32 v{TT+8}, v{rs}, v{rs}")
        c.append(f"v_mul_f32 v{KB+4+tl}, {fh(C0_)}, v{rs}")
        c.append(f"v_mul_f32 v{TT+9}, {fh(C1_)}, v{rs}")
        c.append(f"v_rcp_f32 v{KB+12+tl}, v{TT+8}")
        c.append(f"v_mul_f32 v{KB+8+tl}, v{TT+9}, v{TT+8}")
    return c

def epi_group(nj, tl, j, out, KB, ln=True):
    G = k3_acc(nj, 0, j, tl); U = k3_acc(nj, 1, j, tl)
    cg = CSR + j*4; cu = CSR + (nj+j)*4
    KM, K0, K1, KI = KB+tl, KB+4+tl, KB+8+tl, KB+12+tl
    T = TT + 4*(j & 1)
    r = []
    if ln:
        for q in range(4): r.append(f"v_fma_f32 v{G+q}, -v{KM}, v{cg+q}, v{G+q}")
        for q in range(4): r.append(f"v_fma_f32 v{U+q}, -v{KM}, v{cu+q}, v{U+q}")
    for q in range(4): r.append(f"v_mul_f32 v{T+q}, v{G+q}, v{G+q}")
    for q in range(4): r.append(f"v_fma_f32 v{T+q}, v{T+q}, v{K1}, v{K0}")
    for q in range(4): r.append(f"v_mul_f32 v{T+q}, v{T+q}, v{G+q}")
    for q in range(4): r.append(f"v_exp_f32 v{T+q}, v{T+q}")
    for q in range(4): r.append(f"v_mul_f32 v{U+q}, v{G+q}, v{U+q}")
    for q in range(4): r.append(f"v_fma_f32 v{T+q}, v{T+q}, v{KI}, v{KI}")
    for q in range(4): r.append(f"v_rcp_f32 v{T+q}, v{T+q}")
    for q in range(4): r.append(f"v_mul_f32 v{U+q}, v{U+q}, v{T+q}")
    r.append(f"v_cvt_pk_bf16_f32 v{out}, v{U}, v{U+1}")
    r.append(f"v_cvt_pk_bf16_f32 v{out+1}, v{U+2}, v{U+3}")
    return r

ST = "#ST "
KA, KBB = 32, 224
def epi_a():
    r = []
    for q in range(2):
        for tl in range(4):
            o = 96 + 4*tl
            r += epi_group(4, tl, 2*q, o, KA) + epi_group(4, tl, 2*q+1, o+2, KA)
            r.append(ST + f"{q}buffer_store_dwordx4 v[{o}:{o+3}], v27, s[24:27], {'s53' if q else '0'} offen offset:{tl*256} sc1")
    return r
def epi_b():
    r = []
    for tp in range(2):
        lo = 112 + 4*tp
        for tl in (2*tp, 2*tp+1):
            o = 96 + 4*tl
            r += epi_group(3, tl, 0, o, KBB, False) + epi_group(3, tl, 1, o+2, KBB, False)
            r.append(ST + f"0buffer_store_dwordx4 v[{o}:{o+3}], v27, s[24:27], 0 offen offset:{tl*256} sc1")
            r += epi_group(3, tl, 2, lo + 2*(tl & 1), KBB, False)
        r.append("s_nop 1")
        r.append(f"v_permlane32_swap_b32 v{lo}, v{lo+2}")
        r.append(f"v_permlane32_swap_b32 v{lo+1}, v{lo+3}")
        r.append(ST + f"0buffer_store_dwordx4 v[{lo}:{lo+3}], v28, s[24:27], 0 offen offset:{tp*512} sc1")
    return r

def epi_store_setup(part):
    r = []
    r.append(f"s_mul_i32 s43, s34, {HH_M}")
    r.append(f"s_mul_i32 s44, s35, {16384 if part == 0 else 24576}")
    r.append("s_add_u32 s43, s43, s44")
    r.append(f"s_add_u32 s43, s43, {WS_HH + (0 if part == 0 else 524288)}")
    r.append("s_add_u32 s24, s32, s43")
    r.append("s_addc_u32 s25, s33, 0")
    r.append(f"s_mov_b32 s26, {262144 + 16384 if part == 0 else 24576}")
    r.append("s_mov_b32 s27, 0x20000")
    r.append("s_mov_b32 s53, 262144")
    r.append("s_lshl_b32 s43, s47, 13")
    r.append("s_lshl_b32 s44, s46, 10")
    r.append("s_add_u32 s43, s43, s44")
    r.append("v_lshlrev_b32 v19, 11, v18")
    r.append("v_lshl_add_u32 v19, v17, 4, v19")
    r.append("v_add_u32 v27, s43, v19")
    if part == 1:
        r.append("s_lshl_b32 s43, s47, 12")
        r.append("s_add_u32 s43, s43, s44")
        r.append("s_add_u32 s43, s43, 16384")
        r.append("v_and_b32 v19, 1, v18")
        r.append("v_lshlrev_b32 v19, 11, v19")
        r.append("v_lshrrev_b32 v20, 1, v18")
        r.append("v_lshl_add_u32 v19, v20, 8, v19")
        r.append("v_lshl_add_u32 v19, v17, 4, v19")
        r.append("v_add_u32 v28, s43, v19")
    return r

STRIP = os.environ.get("STRIP", "").split(",")
def strip(lst, key):
    return [("s_nop 0" if key in STRIP else i) for i in lst]
_k3_mfmas, _k3_reads, _k3_items, _g2_mfmas, _g2_reads, _g2_items = k3_mfmas, k3_reads, k3_items, g2_mfmas, g2_reads, g2_items
def k3_mfmas(*x): return strip(_k3_mfmas(*x), "m3")
def k3_reads(*x): return strip(_k3_reads(*x), "r3")
def g2_mfmas(*x): return strip(_g2_mfmas(*x), "m4")
def g2_reads(*x): return strip(_g2_reads(*x), "r4")
def k3_items(*x, **k):
    r = _k3_items(*x, **k)
    if "d3" in STRIP: r = [g[:2] + ["s_nop 0 ;buffer_load lds"] for g in r]
    if "h3" in STRIP: r[0][1] = "s_mov_b32 s37, 0"
    return r
def g2_items(*x, **k):
    r = _g2_items(*x, **k)
    if "d4" in STRIP: r = [g[:2] + ["s_nop 0 ;buffer_load lds"] for g in r]
    if "h4" in STRIP: r[0][1] = "s_mov_b32 s37, 0x20000"
    return r


T1 = env("T1", 4); LB = env("LB", 6)
A0B = (16 - T1)//2
PA1 = T1 + A0B; PB = PA1 + 8; EB4 = PB + LB; NP4 = EB4 + 24 - 2*LB
assert T1 % 2 == 0 and LB % 3 == 0
SX, SW = [32, 96], [64, 160]
AK, AS, RECV = 128, 192, 224
def both(pos): return T1 <= pos < EB4
def k4_stage_of(pos, kh):
    if pos < T1: return pos
    if pos < PA1: return T1 + A0B*kh + pos - T1
    if pos < PB: return 16 + 8*kh + pos - PA1
    if pos < EB4: return 32 + LB*kh + pos - PB
    return 32 + 2*LB + pos - EB4
def k4_addrs():
    r = []
    r.append("v_lshlrev_b32 v19, 11, v18")
    r.append("v_lshl_add_u32 v19, v17, 4, v19")
    r.append("s_lshl_b32 s43, s46, 10")
    r.append("v_add_u32 v2, s43, v19")
    r.append("v_add_u32 v3, 0x10000, v2")
    r.append("v_lshrrev_b32 v19, 2, v17")
    r.append("v_lshl_add_u32 v20, v18, 2, v19")
    r.append("v_bfe_u32 v21, v20, 1, 2")
    r.append("s_lshl_b32 s43, s47, 1")
    r.append("v_xor_b32 v21, s43, v21")
    r.append("v_lshlrev_b32 v20, 7, v20")
    r.append("v_lshl_add_u32 v20, v21, 5, v20")
    r.append("v_and_b32 v19, 3, v1")
    r.append("v_lshl_add_u32 v20, v19, 3, v20")
    r.append("v_add_u32 v5, 16384, v20")
    r.append("v_xor_b32 v6, 32, v5")
    r.append("v_add_u32 v7, 0x10000, v5")
    r.append("v_add_u32 v8, 0x10000, v6")
    r.append("s_lshl_b32 s43, s36, 13")
    r.append("v_lshl_add_u32 v9, v1, 4, s43")
    r.append("s_mov_b32 s54, 0x10000")
    r.append("s_movk_i32 s52, 0x1000")
    return r
def k4_reads(pos):
    slot = (pos + 2) % 4; hi, so = slot >> 1, (slot & 1)*32768
    bx, bw = SX[pos & 1], SW[pos & 1]
    def xr(kb, tl): return f"ds_read_b128 v[{bx+(kb*4+tl)*4}:{bx+(kb*4+tl)*4+3}], v{2+hi} offset:{so + kb*8192 + tl*256}"
    def wr(c, kb, e, h):
        d = bw + ((c*2+kb)*2+e)*4 + 2*h
        return f"ds_read_b64_tr_b16 v[{d}:{d+1}], v{5+2*hi+e} offset:{so + c*8192 + kb*4096 + h*2048}"
    r = []
    for kb in range(2):
        w = [wr(c, kb, e, h) for c in range(2 if both(pos) else 1) for e in range(2) for h in range(2)]
        r += interleave(w, [xr(kb, tl) for tl in range(4)])
    return strip(r, "r4")
def k4_mfmas(pos):
    bx, bw = SX[pos & 1], SW[pos & 1]
    r = []
    for kb in range(2):
        for tl in range(4):
            for c in range(2 if both(pos) else 1):
                for e in range(2):
                    acc = (AS if c else AK) + (tl*2+e)*4
                    w = bw + ((c*2+kb)*2+e)*4; x = bx + (kb*4+tl)*4
                    r.append(f"v_mfma_f32_16x16x32_bf16 v[{acc}:{acc+3}], v[{w}:{w+3}], v[{x}:{x+3}], v[{acc}:{acc+3}]")
    return strip(r, "m4")
def k4_stage(a, pos, pre=None, extra=[]):
    a("s_waitcnt lgkmcnt(0)" if pre is None else f"s_waitcnt vmcnt({pre}) lgkmcnt(0)")
    a("s_barrier")
    rd = k4_reads(pos+1) if pos + 1 < NP4 else []
    seq = interleave(k4_mfmas(pos), rd)
    if extra: seq = seq[:8] + spread(seq[8:], [[i] for i in extra])
    for i in seq: a(i)
def k4_dma_setup(first, vA=21):
    r = []
    r.append(f"s_mul_i32 s44, s34, {HH_M}")
    r.append("s_lshl_b32 s39, s51, 13")
    r.append("s_add_u32 s44, s44, s39")
    r.append(f"s_add_u32 s44, s44, {WS_HH}")
    r.append("s_and_b32 s43, s51, 1")
    r.append("s_xor_b32 s43, s43, s35")
    r.append("s_lshl_b32 s43, s43, 7")
    r.append(f"s_mov_b32 s10, {HH_M - 8192}")
    r.append("s_movk_i32 s38, 1024")
    r.append("s_movk_i32 s40, 9216")
    r.append("s_movk_i32 s37, 0x4000")
    r.append("s_cmp_ge_u32 s51, 2")
    r.append("s_cselect_b32 s8, s60, s32")
    r.append("s_cselect_b32 s9, s61, s33")
    r.append(f"s_cselect_b32 s10, {3584*2048 - 1920}, s10")
    r.append("s_cselect_b32 s43, s43, s44")
    r.append("s_cselect_b32 s38, 16384, s38")
    r.append(f"s_cselect_b32 s40, {40*2048}, s40")
    r.append(f"s_cselect_b32 s55, {40*2048}, s38")
    r.append(f"s_cselect_b32 s37, {128*2048}, s37")
    r.append("s_cselect_b32 s45, -1, 0")
    r.append("s_add_u32 s8, s8, s43")
    r.append("s_addc_u32 s9, s9, 0")
    r.append("s_mov_b32 s11, 0x20000")
    r.append("s_and_b32 s53, s35, 1")
    r.append(f"s_mul_i32 s54, s53, {A0B}")
    r.append("s_mul_i32 s54, s54, s37")
    r.append(f"s_mul_i32 s29, s53, {8 - A0B}")
    r.append(f"s_add_u32 s29, s29, {A0B}")
    r.append("s_mul_i32 s29, s29, s37")
    r.append(f"s_and_b32 s43, s45, {((32 - 2048)*2048) & 0xffffffff}")
    r.append("s_add_u32 s29, s29, s43")
    r.append(f"s_mul_i32 s37, s37, {first}")
    r.append("s_sub_u32 s37, s37, s40")
    r.append("v_lshrrev_b32 v19, 3, v1")
    r.append("v_mul_u32_u24 v19, 1920, v19")
    r.append("v_lshrrev_b32 v20, 4, v1")
    r.append("v_lshlrev_b32 v20, 5, v20")
    r.append("v_and_b32 v19, s45, v19")
    r.append("v_and_b32 v20, s45, v20")
    r.append(f"v_lshlrev_b32 v{vA}, 4, v1")
    r.append(f"v_xor_b32 v{vA}, v{vA}, v20")
    r.append(f"v_add_u32 v{vA}, v{vA}, v19")
    return r
def k4_items(pos, kind=None, vA=21):
    slot = (pos + 2) % 4
    r = []
    for k in range(8):
        if kind is None: inc = f"s_add_u32 s37, s37, s{40 if k == 0 else 55 if k == 4 else 38}"
        else:
            st = k4_stage_of(pos, 0)
            off = st*16384 + k*1024 if kind == 'x' else wd_row(8*st + k)*2048
            inc = f"s_add_u32 s37, s40, {off}" if pos < EB4 else f"s_mov_b32 s37, {off}"
        g = [f"s_add_u32 m0, s39, {slot*32768 + k*1024}", inc, f"buffer_load_dwordx4 v{vA}, s[8:11], s37 offen{XF} lds"]
        if "d4" in STRIP: g[2] = "s_nop 0 ;buffer_load lds"
        r.append(g)
    if kind is None and pos == T1: r[0] = ["s_add_u32 s37, s37, s54"] + r[0]
    if kind is None and pos == PA1: r[0] = ["s_add_u32 s37, s37, s29"] + r[0]
    return r


def emit(a, vm, seq, tag):
    for i in seq:
        if i.startswith(ST):
            a(i[len(ST)+1:]); vm.add("st" + i[len(ST)])
        else:
            a(i)
            if "buffer_load" in i and i.endswith("lds"): vm.add(tag)
            elif i.startswith("buffer_"): vm.add("x")

def st_last(seq):
    if not env("STLAST", 1): return seq
    return [i for i in seq if not i.startswith(ST)] + [i for i in seq if i.startswith(ST)]
def chunks(lst, n):
    return [lst[len(lst)*k//n:len(lst)*(k+1)//n] for k in range(n)]
def flat(g): return sum(g, [])
def last_with(cs, tag): return max(k for k, c in enumerate(cs) if any(i.startswith(ST + tag) for i in c))


def phase_234(a, Ld):
    PRIO = env("PRIO", 1)
    XSN = env("XSN", 1)
    XSIG = EB4 + XSN + env("XSD", 2); XRCV = NP4 - env("XRD", 3)
    LG1 = a.label("LG1")
    a(f"s_load_dwordx4 s[4:7], s[0:1], {KA_WG}")
    a(f"s_load_dwordx2 s[28:29], s[0:1], {KA_WO}")
    a(f"s_load_dwordx4 s[60:63], s[0:1], {KA_WD}")
    a(f"s_load_dwordx2 s[30:31], s[0:1], {KA_X}")
    lane_ig(a)
    a("s_lshr_b32 s46, s36, 1")
    a("s_and_b32 s46, s46, 1")
    a("s_and_b32 s47, s36, 1")
    a("s_and_b32 s51, s36, 3")
    a("s_waitcnt lgkmcnt(0)")
    a("s_cmp_ge_u32 s36, 4")
    a(f"s_cbranch_scc1 {LG1}")

    a("s_lshl_b32 s43, s34, 18")
    a("s_lshl_b32 s44, s35, 7")
    a("s_add_u32 s43, s43, s44")
    srd(a, 16, 30, 127*2048 + 128, add_lo=43)
    a("s_lshl_b32 s43, s36, 5")
    a("v_lshl_add_u32 v19, v17, 1, s43")
    a("v_lshlrev_b32 v19, 11, v19")
    a("v_lshl_add_u32 v23, v18, 3, v19")
    for tl in range(2):
        for t in range(4):
            d = 160 + (tl*4+t)*2
            a(f"buffer_load_dwordx2 v[{d}:{d+1}], v23, s[16:19], 0 offen offset:{tl*2048 + t*32}")
    for i in g2_addrs(): a(i)
    a("s_lshl_b32 s43, s34, 18")
    a("s_lshl_b32 s44, s35, 14")
    a("s_add_u32 s43, s43, s44")
    srd(a, 20, 32, 16384, add_lo=43, add_imm=WS_H)
    a("s_lshl_b32 s43, s34, 14")
    a("s_lshl_b32 s44, s35, 10")
    a("s_add_u32 s43, s43, s44")
    srd(a, 24, 32, 1024, add_lo=43, add_imm=WS_ST2)
    a("s_movk_i32 s50, 0x2000")
    a("s_mov_b32 s52, 0x3f803f80")
    a("v_lshrrev_b32 v19, 1, v18")
    a("v_lshl_add_u32 v19, v19, 4, v17")
    a("s_lshl_b32 s43, s36, 5")
    a("v_add_u32 v19, s43, v19")
    a("v_and_b32 v20, 1, v18")
    a("v_lshlrev_b32 v20, 2, v20")
    a("v_lshl_add_u32 v22, v19, 3, v20")
    a("s_waitcnt vmcnt(0)")
    for k in range(8):
        for h in range(2):
            a(f"v_lshlrev_b32 v{ACC+4*k+2*h}, 16, v{160+2*k+h}")
            a(f"v_and_b32 v{ACC+4*k+2*h+1}, 0xffff0000, v{160+2*k+h}")
    def o_first_setup():
        a("s_lshl_b32 s43, s34, 18")
        srd(a, 12, 32, 262144, add_lo=43, add_imm=WS_O)
        a("v_lshlrev_b32 v21, 4, v1")
        a("s_lshl_b32 s54, s36, 11")
    def o_first():
        for sg in range(2):
            for e in range(2):
                a(f"s_add_u32 m0, s54, {sg*SLOT + e*1024}")
                a(f"s_add_u32 s43, s54, {sg*16384 + e*1024}")
                a(f"buffer_load_dwordx4 v21, s[12:15], s43 offen{XF} lds")
    o_first_setup()
    a("s_barrier")
    o_first()
    a("s_waitcnt vmcnt(2)")
    a("s_barrier")
    stamp(a, 6)
    for i in g2_reads(0, SET[0]): a(i)
    g2_loop(a, 0, 16, 0, pres={0: 0, 1: None})
    stamp(a, 7)
    a("s_nop 4")
    P = 96
    for tl in range(2):
        for kb in range(2):
            o = P + (tl*2+kb)*4
            for hf in range(2):
                s = ACC + (tl*4 + 2*kb + hf)*4
                a(f"v_cvt_pk_bf16_f32 v{o+2*hf}, v{s}, v{s+1}")
                a(f"v_cvt_pk_bf16_f32 v{o+2*hf+1}, v{s+2}, v{s+3}")
            a(f"buffer_store_dwordx4 v[{o}:{o+3}], v2, s[20:23], {'s50' if kb else '0'} offen offset:{tl*256} sc1")
    for q in range(8):
        for tl in range(2):
            src = P + tl*8 + q
            a(f"v_dot2_f32_bf16 v{112+2*tl}, v{src}, s52, {'0' if q == 0 else 'v%d' % (112+2*tl)}")
            a(f"v_dot2_f32_bf16 v{113+2*tl}, v{src}, v{src}, {'0' if q == 0 else 'v%d' % (113+2*tl)}")
    a("s_nop 2")
    a("v_permlane32_swap_b32 v112, v114")
    a("v_permlane32_swap_b32 v113, v115")
    a("v_add_f32 v112, v112, v114")
    a("v_add_f32 v113, v113, v115")
    a("s_nop 1")
    a("v_permlane16_swap_b32 v112, v113")
    a("v_add_f32 v112, v112, v113")
    a("buffer_store_dword v112, v22, s[24:27], 0 offen sc1")
    a("s_waitcnt vmcnt(0)")
    a("s_barrier")
    Ls = a.label("Lsig")
    a("s_cmp_lg_u32 s36, 0")
    a(f"s_cbranch_scc1 {Ls}")
    flag_signal(a, 56, "h", 34, v=19)
    a(f"{Ls}:")
    stamp(a, 8)
    a("s_lshl_b32 s53, s47, 2")
    for i in k3_addrs(4, 53): a(i)
    for i in range(128): a(f"v_mov_b32 v{ACC+i}, 0")
    for i in k3_dma_setup(1, 51) + ["s_mul_i32 s43, s38, 32", "s_add_u32 s37, s37, s43"]: a(i)
    for i in epi_store_setup(0): a(i)
    def out_setup():
        r = ["s_lshl_b32 s43, s34, 18", "s_lshl_b32 s44, s35, 7", "s_add_u32 s43, s43, s44",
             "s_add_u32 s16, s62, s43", "s_addc_u32 s17, s63, 0", f"s_mov_b32 s18, {127*2048 + 128}", "s_mov_b32 s19, 0x20000",
             "s_lshl_b32 s43, s46, 6", "v_lshl_add_u32 v19, v17, 1, s43", "v_lshlrev_b32 v19, 11, v19",
             "v_and_b32 v20, 1, v18", "v_lshl_add_u32 v19, v20, 5, v19", "v_lshrrev_b32 v20, 1, v18", "v_lshl_add_u32 v19, v20, 4, v19",
             "s_lshl_b32 s43, s47, 6", "v_add_u32 v28, s43, v19"]
        for d, flip in ((64, 0), (68, 1)):
            r += ["s_lshl_b32 s43, s34, 4", "s_add_u32 s43, s43, s35", f"s_xor_b32 s43, s43, {flip}", "s_lshl_b32 s43, s43, 15", f"s_add_u32 s43, s43, {WS_X}",
                  f"s_add_u32 s{d}, s32, s43", f"s_addc_u32 s{d+1}, s33, 0", f"s_mov_b32 s{d+2}, 32768", f"s_mov_b32 s{d+3}, 0x20000"]
        return r
    for i in out_setup(): a(i)
    def x_first_setup():
        a("s_lshl_b32 s43, s34, 18")
        srd(a, 12, 32, 262144, add_lo=43, add_imm=WS_H)
        a("v_lshlrev_b32 v21, 4, v1")
        a("s_lshl_b32 s54, s36, 11")
    def x_first():
        for sg in range(3):
            for e in range(2):
                a(f"s_add_u32 m0, s54, {((sg+2) % 3)*REG + e*1024}")
                a(f"s_add_u32 s43, s54, {sg*16384 + e*1024}")
                a(f"buffer_load_dwordx4 v21, s[12:15], s43 offen{XF} lds")
    x_first_setup()
    a("s_barrier")
    x_first()
    a("s_waitcnt vmcnt(4)")
    a("s_barrier")
    stamp(a, 9)
    if PRIO: a("s_setprio 1")
    for i in k3_reads(4, 0, 0, SET[0]): a(i)
    k3_consumer(a, 4, 0, [2, 0])
    stamp(a, 10)
    EA = epi_a()
    if "e" in STRIP: EA = [i for i in EA if i.startswith(ST)]
    ea = chunks(EA, env("EA_N", 13))
    SIG_A0 = 16 + last_with(ea, "0") + 2
    SIG_A1 = 16 + last_with(ea, "1") + 2
    HL = SIG_A0 - 1
    assert 16 + len(ea) <= 31 and SIG_A0 <= 28 and HL <= 27 and SIG_A1 in (29, 30)
    L3h = a.label("L3h"); LK4 = a.label("LK4")
    RD = 192
    def resid_loads():
        r = ["v_lshlrev_b32 v19, 11, v18", "v_lshl_add_u32 v19, v17, 4, v19", "s_lshl_b32 s43, s46, 10", "s_lshl_b32 s44, s47, 13",
             f"v_add3_u32 v{RD+16}, v19, s43, 0", f"v_add_u32 v{RD+16}, s44, v{RD+16}"]
        for tl in range(4):
            r.append(f"buffer_load_dwordx4 v[{RD+4*tl}:{RD+4*tl+3}], v{RD+16}, s[20:23], 0 offen offset:{tl*256} sc1")
        return r
    def resid_unpack():
        r = []
        for k in range(4):
            for q in range(4):
                r.append(f"v_lshlrev_b32 v{ACC+8*k+2*q}, 16, v{RD+4*k+q}")
                r.append(f"v_and_b32 v{ACC+8*k+2*q+1}, 0xffff0000, v{RD+4*k+q}")
        return r
    extra = {HL: resid_loads(), 17: k4_addrs(), 29: resid_unpack(), 30: [f"v_mov_b32 v{AS+i}, 0" for i in range(32)]}
    assert HL + 2 <= 28 and HL > 19
    a("s_cmp_eq_u32 s36, 3")
    a(f"s_cbranch_scc1 {L3h}")
    for helper in (False, True):
        vm = VM(a)
        if helper: a(f"{L3h}:")
        m = k3_mfmas(4, SET[1])
        emit(a, vm, m if helper else spread(m, k3_items(18)), 18)
        if PRIO: a("s_setprio 0")
        emit(a, vm, epi_reads(4, 0) + ["s_waitcnt lgkmcnt(0)"] + epi_consts(KA), None)
        if helper and env("K3PF", 0):
            k3pf = K3PF(a, 1)
            k3pf.setup()
            for s in range(3, env("K3PD", 6)): k3pf.issue(s)
        a("s_barrier")
        if helper: stampc(a, "k3", 16)
        for sig in range(16, 31):
            body = (list(ea[sig-16]) if sig-16 < len(ea) else []) + extra.get(sig, [])
            if helper:
                if sig == SIG_A0: flag_signal(a, 56, "hha0", 34, v=21)
                if sig == SIG_A1: flag_signal(a, 56, "hha1", 34, v=22)
                if sig == 28: flag_poll_issue(a, 56, "hha0", 34, v=21)
                if env("K3PF", 0) and sig - 16 + env("K3PD", 6) < 16: k3pf.issue(sig - 16 + env("K3PD", 6))
                if env("K3_SPF", 1) and sig == env("S3C", 18):
                    sp = SPF3(a); sp.setup(1); sp.issue(8)
                if env("K4_SPF", 1) and sig == env("S4A", 25):
                    sp = SPF4(a); sp.setup(); sp.issue(0)
                if sig == 25 and env("K4PF", 0):
                    pf_w64(a, KA_WD, 3584, list(range(env("K4PF0", 0), env("K4PF", 0)//MX)), 80, 29, 30)
                assert T1 >= 4
                emit(a, vm, body, None)
                if sig == SIG_A0 - 1: a(vm.wait("st0"))
                if sig == SIG_A1 - 1: a(vm.wait("st1"))
                if sig == HL + 2: a(vm.wait("x"))
                if sig == 28: flag_poll_finish(a, 56, v=21)
            else:
                if sig + 3 <= 31:
                    emit(a, vm, st_last(spread(body, k3_items(sig+3), env("FR3", 100))), sig+3)
                else:
                    if sig == 29: emit(a, vm, k4_dma_setup(0), None)
                    emit(a, vm, spread(body, k4_items(sig - 29)), ("k4", sig - 29))
                w = vm.cnt(sig+2) if sig + 2 <= 31 else vm.cnt(("k4", 0))
                if sig == SIG_A0 - 1: w = min(w, vm.cnt("st0"))
                if sig == SIG_A1 - 1: w = min(w, vm.cnt("st1"))
                if sig == HL + 2: w = min(w, vm.cnt("x"))
                a(f"s_waitcnt vmcnt({w})")
            a("s_barrier")
            if helper: stampc(a, "k3", sig+1)
        if not helper: a(f"s_branch {LK4}")
    a(f"{LK4}:")
    stamp(a, 11)
    if PRIO: a("s_setprio 1")
    for i in k4_reads(0): a(i)
    a("s_mov_b32 s54, 0x10000")
    XB = env("XBF", 1)
    def xch(op, reg, sd, n=8):
        return [f"buffer_{op}_dwordx4 v[{reg+4*t}:{reg+4*t+3}], v9, s[{sd}:{sd+3}], {'s52' if t >= 4 else '0'} offen offset:{(t & 3)*1024} sc1" for t in range(n)]
    if XB:
        st_ = xch("store", RECV, 64, 4)
        xs = chunks([[f"v_cvt_pk_bf16_f32 v{RECV+4*tl+q}, v{AS+8*tl+2*q}, v{AS+8*tl+2*q+1}" for q in range(4)] + [st_[tl]] for tl in range(4)], XSN)
        xs = [flat(c) for c in xs]
        xl = xch("load", AS, 68, 4)
        xu = ["s_waitcnt vmcnt(0)"]
        for k in range(16): xu += [f"v_lshlrev_b32 v{RECV+2*k}, 16, v{AS+k}", f"v_and_b32 v{RECV+2*k+1}, 0xffff0000, v{AS+k}"]
    else:
        xs = chunks(xch("store", AS, 64), XSN); xl = xch("load", RECV, 68); xu = []
    pos = 0
    while pos < NP4:
        if pos == T1:
            nl = (EB4 - 1 - T1)//4
            L = a.label("Lk4")
            a(f"s_mov_b32 s41, {nl}")
            a(f"{L}:")
            for q in range(4): k4_stage(a, pos + q)
            a("s_sub_u32 s41, s41, 1")
            a("s_cmp_lg_u32 s41, 0")
            a(f"s_cbranch_scc1 {L}")
            pos += 4*nl
        k4_stage(a, pos, pre=0 if pos in (0, XSIG) else None,
                 extra=xs[pos - EB4] if EB4 <= pos < EB4 + XSN else xl if pos == XRCV else xu if pos == NP4 - 1 else [])
        pos += 1
    stamp(a, 12)
    a("s_waitcnt vmcnt(0)")
    a("s_nop 4")
    for tl in range(4):
        b = AK + 8*tl; o = 32 + 4*tl
        for q in range(0, 8, 2): a(f"v_pk_add_f32 v[{b+q}:{b+q+1}], v[{b+q}:{b+q+1}], v[{RECV+8*tl+q}:{RECV+8*tl+q+1}]")
        for q in range(4): a(f"v_cvt_pk_bf16_f32 v{o+q}, v{b+2*q}, v{b+2*q+1}")
    for tl in range(4):
        o = 32 + 4*tl
        a(f"v_permlane16_swap_b32 v{o}, v{o+2}")
        a(f"v_permlane16_swap_b32 v{o+1}, v{o+3}")
        a(f"buffer_store_dwordx4 v[{o}:{o+3}], v28, s[16:19], {'s54' if tl >= 2 else '0'} offen offset:{(tl & 1)*2048}")
    if STAMP:
        a("s_waitcnt vmcnt(0)")
        stamp(a, 13)
        stamp_flush(a)
    a(f"s_branch {Ld}")

    a(f"{LG1}:")
    L7 = a.label("L7"); LK3b = a.label("LK3b"); LP3 = a.label("LP3")
    a("s_cmp_eq_u32 s36, 7")
    a(f"s_cbranch_scc1 {L7}")
    for i in g2_dma_setup(51, WS_O, 262144, 262144, 1024, 28, vA=23): a(i)
    o_first_setup()
    Lp = [a.label("Lp") for _ in range(3)]
    for p in range(1, 3):
        a(f"s_cmp_eq_u32 s51, {p}")
        a(f"s_cbranch_scc1 {Lp[p]}")
    for p in range(3):
        a(f"{Lp[p]}:")
        vm = VM(a)
        def st2(s): emit(a, vm, flat(g2_items(s % 6, vA=23)), s)
        if p == 2:
            for s in range(6): st2(s)
        cs_spre(a, 36 - 2*(env("K1_SPE", 13) - 2))
        if p == 0: flag_poll(a, 56, "o", 34, v=8)
        a("s_barrier")
        o_first(); vm.add(0, 2); vm.add(1, 2)
        if p < 2:
            a("s_add_u32 s37, s37, 32768")
            for s in range(2, 6): st2(s)
        a(vm.wait(0))
        a("s_barrier")
        for s in range(16):
            if s < 15: a(vm.wait(s+1))
            a("s_barrier")
            if s + 6 < 16: st2(s+6)
            if s == 10:
                for i in k3_dma_setup(0, 51): a(i)
            if s in (11, 13)[:env("EW", 2)] and p > 0:
                emit(a, vm, flat(k3_items((s-11)//2)), "w%d" % ((s-11)//2))
        a("s_barrier")
        if p == 0:
            a("s_mul_i32 s43, s38, 48")
            a("s_add_u32 s37, s37, s43")
            flag_poll(a, 56, "h", 34, v=8)
        else:
            for w in range(env("EW", 2), 3): emit(a, vm, flat(k3_items(w)), "w")
        if p < 2: a(f"s_branch {LP3}")
    a(f"{LP3}:")
    x_first_setup()
    a("s_barrier")
    x_first()
    a("s_waitcnt vmcnt(4)")
    a("s_barrier")
    a("s_waitcnt vmcnt(2)")
    a("s_barrier")
    SWD = env("SWD", 1)
    wd_base = ["s_mul_i32 s43, s2, 28672", "s_mul_i32 s44, s51, 7168", "s_add_u32 s43, s43, s44", "s_add_u32 s80, s60, s43", "s_addc_u32 s81, s61, 0"]
    def swd(sig, w7=False):
        n = 9 if sig <= 8 else 8 if 10 <= sig <= 12 else 7 if sig == 13 else 0
        if w7: n = 0 if sig in (6, 9) or sig > 12 else 11 if sig <= 8 else 8
        if not SWD or not n: return []
        return [f"s_load_dword s{64+q}, s[80:81], {64*q}" for q in range(n)] + [f"s_add_u32 s80, s80, {64*n}", "s_addc_u32 s81, s81, 0"]
    for i in wd_base: a(i)
    def pst(sig, body=[], pre=[], post=[]):
        for i in pre + spread(body, k3_items(sig+3)) + post + swd(sig): a(i)
        a("s_waitcnt vmcnt(16)")
        a("s_barrier")
    L = a.label("Lp3")
    a("s_mov_b32 s41, 3")
    a(f"{L}:")
    for sig in range(3): pst(sig)
    a("s_sub_u32 s41, s41, 1")
    a("s_cmp_lg_u32 s41, 0")
    a(f"s_cbranch_scc1 {L}")
    bs = ["s_and_b32 s53, s35, 1", "s_lshl_b32 s53, s53, 1", "s_mul_i32 s43, s47, 3", "s_add_u32 s53, s53, s43"] + k3_addrs(3, 53)
    binit = []
    for mat in range(2):
        for j in range(3):
            for tl in range(4):
                for q in range(4):
                    binit.append(f"v_mul_f32 v{k3_acc(3, mat, j, tl)+q}, -v{TT+2*tl}, v{CSR+(mat*3+j)*4+q}")
    bi = chunks(binit, 3)
    BODY = {9: bs + epi_reads(3, 128), 10: ["s_waitcnt lgkmcnt(0)"] + epi_consts(KBB, False), 11: bi[0], 12: bi[1], 13: bi[2]}
    k4set = k4_dma_setup(2)
    for sig in range(9, 15):
        pst(sig, BODY.get(sig, []), pre=k3_dma_setup(1, 51) if sig == 13 else [], post={14: k4set, 10: epi_store_setup(1)}.get(sig, []))
    a(f"s_branch {LK3b}")

    a(f"{L7}:")
    NB2 = 19
    Lno = a.label("Lnojob"); Lcs = a.label("Lcsd")
    stampc(a, "k2", 0)
    cs_setup(a, Lno, 64, 4)
    a("s_lshl_b32 s55, s45, 1")
    a("s_add_u32 s55, s55, s44")
    a("s_mul_i32 s55, s55, 14336")
    a("s_lshl_b32 s45, s46, 9")
    a("s_add_u32 s55, s55, s45")
    a("v_lshl_add_u32 v5, v5, 5, s55")
    srd(a, 72, 32, 8*14336, add_imm=WS_CS)
    for i in range(8): a(f"v_mov_b32 v{32+i}, 0")
    NF = CS_NF
    a("s_mov_b32 s52, 0x00003f80")
    a("s_mov_b32 s53, 0x3f800000")
    def proc(n):
        for d in range(4):
            for h in range(2):
                a(f"v_dot2_f32_bf16 v{32+2*d+h}, v{128+4*(n % NF)+d}, s{52+h}, v{32+2*d+h}")
    def mpf():
        if env("MPF", 0):
            a("s_mul_i32 s43, s2, 28672")
            srd(a, 76, 60, 28672, add_lo=43)
            a("v_lshlrev_b32 v19, 7, v1")
            for q in range(4):
                a(f"s_mov_b32 s43, {q*8192}")
                a("buffer_load_dword v30, v19, s[76:79], s43 offen")
    if STAMPC != "k1": cs_spre(a, 2, 82, 6)
    for n in range(NF): proc(n)
    o_first_setup()
    CL0 = env("CS_L0", 1); CLN = env("CS_LN", 4); CPD = env("CS_PD", 5)
    nl = NF // CLN
    LATE = CPD > 16
    assert LATE or CL0 + nl + CPD <= 17
    def cs_finish():
        a("s_nop 2")
        for sw in ("16", "32"):
            for d in range(8): a(f"v_mov_b32 v{40+d}, v{32+d}")
            a("s_nop 0")
            for d in range(8): a(f"v_permlane{sw}_swap_b32 v{32+d}, v{40+d}")
            for d in range(8): a(f"v_add_f32 v{32+d}, v{32+d}, v{40+d}")
        a("s_mov_b64 exec, 0xffff")
        a("buffer_store_dwordx4 v[32:35], v5, s[72:75], 0 offen sc1")
        a("buffer_store_dwordx4 v[36:39], v5, s[72:75], 0 offen offset:16 sc1")
        a("s_mov_b64 exec, -1")
    for q in range(NB2):
        st = q - 3
        if q == 1:
            o_first()
            a("s_waitcnt vmcnt(2)")
        if q == 2: a("s_waitcnt vmcnt(0)")
        if CL0 <= st < CL0 + nl:
            for n in range(CLN): cs_issue(a, NF + (st-CL0)*CLN + n, 64, 4)
        if CL0 + CPD <= st < CL0 + CPD + nl:
            b = st - CL0 - CPD
            a(f"s_waitcnt vmcnt({CLN*min(CPD, nl - 1 - b)})")
            for n in range(CLN): proc(b*CLN + n)
        if st == CL0 + CPD + nl - 1: cs_finish()
        a("s_barrier")
        stampc(a, "k2", q+1)
    if LATE:
        a("s_waitcnt vmcnt(0)")
        for n in range(NF): proc(n)
        cs_finish()
    a("s_waitcnt vmcnt(0)")
    flag_signal(a, 56, "cs", None, v=12)
    mpf()
    a(f"s_branch {Lcs}")
    a(f"{Lno}:")
    o_first_setup()
    for q in range(NB2):
        if q == 1:
            o_first()
            a("s_waitcnt vmcnt(2)")
        if q == 2: a("s_waitcnt vmcnt(0)")
        a("s_barrier")
        stampc(a, "k2", q+1)
    mpf()
    a(f"{Lcs}:")
    a("s_mov_b32 s46, 1")
    x_first_setup()
    k3pf = K3PF(a, 0)
    PD = env("K3PD", 6)
    if env("K3PF", 0) or env("K3PF0", 0):
        k3pf.setup()
        for s in range(3, max(PD, env("K3PF0", 0))): k3pf.issue(s)
    S3 = env("K3_SPF", 1); S4 = env("K4_SPF", 1)
    sp3 = SPF3(a)
    if S3:
        sp3.setup(0); sp3.issue(3)
    a("s_lshl_b32 s43, s34, 14")
    srd(a, 64, 32, 16384, add_lo=43, add_imm=WS_ST2)
    srd(a, 72, 32, 8*14336, add_imm=WS_CS)
    a("s_barrier")
    stampc(a, "k2", 20)
    x_first()
    a("s_waitcnt vmcnt(4)")
    a("s_barrier")
    stampc(a, "k2", 21)
    stampc(a, "k3", 31)
    a("s_waitcnt vmcnt(2)")
    a("s_barrier")
    stampc(a, "k3", 0)
    def w7dst(i):
        if not i.startswith("s_load_dword"): return i
        q = int(i.split()[1][1:-1]) - 64
        return i.replace(f"s{64+q},", f"s{82 + q % 6},")
    STL = env("STL", 1); CSP = STL + 3
    for sig in range(15):
        if sig == 0:
            a("s_waitcnt vmcnt(0)")
        if S3 and sig == env("S3A", 5): sp3.issue(11)
        if S3 and sig == env("S3B", 10):
            sp3.setup(1); sp3.issue(0)
        if sig == STL + 1: flag_poll_issue(a, 56, "cs", None, v=12)
        if sig == STL:
            for n in range(16):
                a(f"s_mov_b32 s43, {n*1024}")
                a(f"buffer_load_dwordx4 v[{128+4*n}:{128+4*n+3}], v21, s[64:67], s43 offen sc1")
        if env("K3PF", 0) and sig >= 1:
            if sig + PD - 1 < 16: k3pf.issue(sig + PD - 1)
            elif sig + PD - 1 == 16:
                k3pf.part = 1; k3pf.setup()
            if 16 <= sig + PD - 1 < 19: k3pf.issue(sig + PD - 1 - 16)
        if sig == CSP:
            flag_poll_finish(a, 56, v=12)
            a("v_min_u32 v12, 55, v1")
            a("v_lshlrev_b32 v13, 4, v12")
            a("s_lshl_b32 s43, s35, 9")
            a("s_mul_i32 s44, s35, 384")
            a(f"s_add_u32 s44, s44, {8192 - 512}")
            a("v_mov_b32 v14, s44")
            a("v_mov_b32 v15, s43")
            a("v_cmp_gt_u32 vcc, 32, v12")
            a("s_nop 1")
            a("v_cndmask_b32 v14, v14, v15, vcc")
            a("v_add_u32 v14, v14, v13")
            a(f"v_add_u32 v13, {CSF}, v13")
            for mat in range(2):
                for sl in range(4):
                    d = 192 + (mat*4+sl)*4
                    a(f"s_mov_b32 s43, {(sl*2+mat)*14336}")
                    a(f"buffer_load_dwordx4 v[{d}:{d+3}], v14, s[72:75], s43 offen sc1")
        if sig == CSP + 1:
            for n in range(1, 16):
                for q in range(4): a(f"v_add_f32 v{128+q}, v{128+q}, v{128+4*n+q}")
            for b in (128, 130):
                a(f"v_mul_f32 v{b}, 0x3a800000, v{b}")
                a(f"v_mul_f32 v{b+1}, 0x3a800000, v{b+1}")
                a(f"v_fma_f32 v{b+1}, -v{b}, v{b}, v{b+1}")
                a(f"v_max_f32 v{b+1}, 0, v{b+1}")
                a(f"v_add_f32 v{b+1}, 0x3727c5ac, v{b+1}")
                a(f"v_rsq_f32 v{b+1}, v{b+1}")
            a(f"v_add_u32 v19, {STATS}, v21")
            a("ds_write_b128 v19, v[128:131]")
        if sig == CSP + 3:
            a("s_waitcnt vmcnt(0)")
            for mat in range(2):
                b = 192 + mat*16
                for q in range(4):
                    a(f"v_add_f32 v{b+q}, v{b+q}, v{b+4+q}")
                    a(f"v_add_f32 v{b+8+q}, v{b+8+q}, v{b+12+q}")
                for q in range(4): a(f"v_add_f32 v{b+q}, v{b+q}, v{b+8+q}")
                a(f"ds_write_b128 v13, v[{b}:{b+3}] offset:{mat*896}")
            a("s_waitcnt lgkmcnt(0)")
            assert sig < 9
        for i in BODY.get(sig, []) + (epi_store_setup(1) if sig == 10 else []) + (wd_base if sig == 0 else []) + (k4set if sig == 14 else []): a(i)
        assert CSP + 2 == 6
        if STAMPC != "k3":
            for i in swd(sig, True): a(w7dst(i))
        a("s_barrier")
        stampc(a, "k3", sig+1)

    a(f"{LK3b}:")
    stamp(a, 10)
    if PRIO: a("s_setprio 1")
    for i in k3_reads(3, 16, 0, SET[0]): a(i)
    k3_consumer(a, 3, 16, [0])
    stamp(a, 11)
    EB = epi_b()
    if "e" in STRIP: EB = [i for i in EB if i.startswith(ST)]
    eb = chunks(EB, env("EB_N", 8))
    SIG_B = last_with(eb, "0") + env("SIGB_D", 2)
    POLL_A1 = PA1 - 5; POLL_B = PB - 5
    UNI = PB - 4
    assert len(eb) <= UNI and SIG_B < POLL_B
    L7b = a.label("L7b")
    a("s_cmp_eq_u32 s36, 7")
    a(f"s_cbranch_scc1 {L7b}")
    for helper in (False, True):
        vm = VM(a)
        if helper: a(f"{L7b}:")
        m = k3_mfmas(3, SET[1])
        if helper:
            emit(a, vm, m, None)
            a(f"s_mul_i32 s43, s38, {16*(T1-2)}")
            a("s_add_u32 s37, s37, s43")
        else:
            emit(a, vm, spread(m[:12], k4_items(2)), 2)
            emit(a, vm, spread(m[12:], k4_items(3)), 3)
        if PRIO: a("s_setprio 0")
        a("s_barrier")
        if helper: stampc(a, "k4", 0 - env("K4O", 0))
        def pslice(s, kind):
            body = eb[s] if s < len(eb) else []
            dma = both(s + 4) if helper else s + 4 < NP4
            if helper:
                if s == SIG_B: flag_signal(a, 56, "hhb", 34, v=10); vm.add("f")
                if s == POLL_A1 - env("PLA", 2): flag_poll_issue(a, 56, "hha1", 34, v=10); vm.add("p")
                if s == POLL_B - env("PLB", 2): flag_poll_issue(a, 56, "hhb", 34, v=10); vm.add("p")
                if env("K4_SPF", 1):
                    if s == 0: sp4.setup()
                    for G, at in ((1, PA1 - env("S4B", 9)), (2, PB - env("S4C", 8)), (3, EB4 - env("S4D", 4))):
                        if s == at: sp4.issue(G); vm.add("f")
                if s == XSIG:
                    xflag_addr(a, 10, 0)
                    a("v_mov_b32 v11, 1")
                    a("s_mov_b64 exec, 1")
                    a("buffer_store_dword v11, v10, s[56:59], 0 offen sc1"); vm.add("f")
                    a("s_mov_b64 exec, -1")
                if s == XRCV - 1 - env("PLX", 2):
                    xflag_addr(a, 10, 1)
                    a("v_mov_b32 v12, 1")
                    a("buffer_load_dword v11, v10, s[56:59], 0 offen sc1"); vm.add("p")
            if s == UNI: a(f"s_mul_i32 s40, s53, {LB*16384 if kind == 'x' else LB*64*2048}")
            emit(a, vm, st_last(spread(body, k4_items(s+4, kind if s >= UNI else None), env("FR4", 100))) if dma else body, s+4)
            w = vm.cnt(s+2) if (both(s + 2) if helper else s + 2 < NP4) else 63
            if s == SIG_B - 1: w = min(w, vm.cnt("st0"))
            if w < 63: a(f"s_waitcnt vmcnt({w})")
            if helper and s in (POLL_A1, POLL_B, XRCV - 1): flag_poll_finish(a, 56, v=10, first=vm.cnt("p"))
            a("s_barrier")
            if helper: stampc(a, "k4", s+1 - env("K4O", 0))
        if helper:
            sp4 = SPF4(a)
            for s in range(NP4 - 1 if STAMPC == "k4" else XRCV): pslice(s, 'w')
            stamp(a, 12)
            stamp_flush(a)
            a(f"s_branch {Ld}")
        else:
            for s in range(UNI): pslice(s, None)
            LW = a.label("LW4")
            a("s_cmp_eq_u32 s51, 2")
            a(f"s_cbranch_scc1 {LW}")
            q0 = list(vm.q)
            for kind in ('x', 'w'):
                vm.q = list(q0)
                if kind == 'w': a(f"{LW}:")
                for s in range(UNI, NP4 - 2): pslice(s, kind)
                if STAMP:
                    stamp(a, 12)
                    stamp_flush(a)
                a(f"s_branch {Ld}")


NXS = 32 // MX
class XPF:
    G = NXS // 2
    def __init__(self, a, off, mul, sd=68, v=23):
        self.a = a; self.off = off; self.mul = mul; self.sd = sd; self.v = v
    def setup(self):
        a = self.a; v = self.v
        per = 128 // NXS
        a(f"s_mul_i32 s43, s34, {self.mul}")
        srd(a, self.sd, 32, self.mul, add_lo=43, add_imm=self.off)
        a(f"v_and_b32 v{v}, {per-1}, v1")
        a(f"s_mul_i32 s43, s49, {per}")
        a(f"v_add_u32 v{v}, s43, v{v}")
        a(f"v_lshlrev_b32 v{v}, 7, v{v}")
        a(f"v_lshrrev_b32 v19, {per.bit_length()-1}, v1")
        a(f"v_lshl_add_u32 v{v}, v19, 14, v{v}")
    def issue(self, st):
        a = self.a
        a(f"s_mov_b32 s43, {st*16384}")
        a(f"buffer_load_dword v30, v{self.v}, s[{self.sd}:{self.sd+3}], s43 offen sc1")


class K3PF:
    def __init__(self, a, part): self.a = a; self.part = part
    def setup(self):
        a = self.a
        if self.part == 0: a("s_lshl_b32 s43, s35, 8")
        else:
            a("s_mul_i32 s43, s35, 192")
            a("s_and_b32 s43, s43, 0xffffff80")
            a("s_add_u32 s43, s43, 4096")
        a("s_sub_u32 s44, 7340032, s43")
        for d, b in ((88, 4), (92, 6)):
            a(f"s_add_u32 s{d}, s{b}, s43")
            a(f"s_addc_u32 s{d+1}, s{b+1}, 0")
            a(f"s_mov_b32 s{d+2}, s44")
            a(f"s_mov_b32 s{d+3}, 0x20000")
        per = 64 // MX
        a("v_lshrrev_b32 v31, 1, v1")
        a(f"v_min_u32 v31, {min(per, 32)-1}, v31")
        a(f"s_mul_i32 s43, s48, {per}")
        a("v_add_u32 v31, s43, v31")
        a("v_mul_u32_u24 v31, 7168, v31")
        a("v_and_b32 v19, 1, v1")
        a("v_lshl_add_u32 v31, v19, 7, v31")
    def issue(self, st):
        a = self.a
        a(f"s_mov_b32 s43, {st*64*7168}")
        a("buffer_load_dword v30, v31, s[88:91], s43 offen")
        a("buffer_load_dword v30, v31, s[92:95], s43 offen")


class SPF3:
    def __init__(self, a): self.a = a
    def setup(self, part):
        a = self.a
        for d, b in ((88, 4), (92, 6)): srd(a, d, b, 7340032)
        a("s_lshr_b32 s43, s35, 3")
        if part == 0:
            a("s_lshl_b32 s43, s43, 11")
            a("s_add_u32 s43, s43, 384")
            a("s_movk_i32 s44, 1024")
        else:
            a("s_lshl_b32 s44, s43, 10")
            a("s_xor_b32 s44, s44, 1024")
            a("s_lshl_b32 s43, s43, 11")
            a(f"s_add_u32 s43, s43, {35*128}")
        a("s_lshr_b32 s45, s2, 3")
        a("s_mul_i32 s45, s45, 14336")
        a("s_add_u32 s43, s43, s45")
        a("v_and_b32 v19, 1, v1")
        a("v_mul_lo_u32 v31, v19, s44")
        a("v_bfe_u32 v19, v1, 1, 1")
        a("v_mul_u32_u24 v19, 7168, v19")
        a("v_add3_u32 v31, v31, v19, s43")
        a("v_bfe_u32 v19, v1, 2, 3")
        a(f"v_mul_u32_u24 v19, {64*7168}, v19")
        a("v_add_u32 v31, v31, v19")
    def issue(self, st):
        a = self.a
        a(f"s_mov_b32 s43, {st*64*7168}")
        a("buffer_load_dword v30, v31, s[88:91], s43 offen")
        a("buffer_load_dword v30, v31, s[92:95], s43 offen")


class SPF4:
    def __init__(self, a): self.a = a
    def setup(self):
        a = self.a
        srd(a, 80, 60, 7340032)
        a("v_and_b32 v29, 31, v1")
        a("v_lshlrev_b32 v29, 11, v29")
        a("s_and_b32 s43, s35, 8")
        a("s_or_b32 s43, s43, 3")
        a("s_lshl_b32 s43, s43, 7")
        a("v_add_u32 v29, s43, v29")
    def issue(self, G):
        a = self.a
        a("s_lshr_b32 s44, s2, 3")
        if G == 3: a("s_and_b32 s44, s44, 15")
        a(f"s_lshl_b32 s44, s44, {17 if G < 2 else 16}")
        a(f"s_add_u32 s43, s44, {[0, 32, 2048, 3072][G]*2048}")
        a("buffer_load_dword v30, v29, s[80:83], s43 offen")
```

```python
import os, struct
from common import *

NS = 3
XB_ = 18432
STG1 = XB_ + 3*8192
RST = NS*STG1
CSUM = RST + 1152
LST = CSUM
LDS_K1 = CSUM + 768
QKV = 0
QP = 400

def fh(x): return "0x%08x" % struct.unpack("<I", struct.pack("<f", x))[0]

VGPR_K1 = 240
def phase_k1(a):
    strip = os.environ.get("K1_STRIP", "")
    nst = 16
    a(f"s_load_dwordx4 s[4:7], s[0:1], {KA_X}")
    a(f"s_load_dwordx2 s[32:33], s[0:1], {KA_WS}")
    a(f"s_load_dwordx2 s[80:81], s[0:1], {KA_WG}")
    mapping(a)
    a("v_lshrrev_b32 v12, 6, v0")
    a("v_and_b32 v1, 63, v0")
    a("v_readfirstlane_b32 s36, v12")
    a("s_nop 3")
    stamp_init(a)
    stamp(a, 0)
    a("s_lshl_b32 s43, s35, 7")
    a("s_lshl_b32 s44, s34, 18")
    a("s_lshl_b32 s45, s35, 14")
    a("s_add_u32 s45, s45, s44")
    a("s_lshl_b32 s50, s34, 7")
    a("s_sub_u32 s50, s50, 16")
    a("s_waitcnt lgkmcnt(0)")
    srd(a, 8, 4, 2048*2048)
    srd(a, 12, 6, 1023*6144 + 4096 + 128, add_lo=43)
    srd(a, 16, 32, 16384, add_lo=45, add_imm=WS_O)
    Lprod = a.label("Lprod"); Lpf = a.label("Lpf"); Latt = a.label("Latt")
    a("v_and_b32 v12, 15, v1")
    a("v_lshrrev_b32 v13, 4, v1")
    a("s_cmp_ge_u32 s36, 4")
    a(f"s_cbranch_scc1 {Lprod}")

    def att_setup():
        a("s_and_b32 s43, s36, 1")
        a("s_lshr_b32 s44, s36, 1")
        a("s_and_b32 s44, s44, 1")
        a("s_lshr_b32 s45, s36, 2")
        a("v_lshlrev_b32 v14, 2, v13")
        a("v_sub_u32 v14, v12, v14")
        for r in range(4):
            a(f"v_subrev_u32 v15, {r}, v14")
            a(f"v_cmp_ge_u32 s[{52+2*r}:{53+2*r}], 7, v15")
            a(f"v_add_u32 v15, 16, v15")
            a(f"v_cmp_ge_u32 s[{84+2*r}:{85+2*r}], 7, v15")
        a("s_lshl_b32 s46, s45, 6")
        a("s_add_u32 s46, s46, s44")
        a("s_add_u32 s46, s46, 16")
        a("v_lshl_add_u32 v14, v12, 1, s46")
        a("s_lshl_b32 s47, s43, 6")
        a("v_lshl_add_u32 v15, v13, 4, s47")
        a(f"v_mul_u32_u24 v20, {QP}, v14")
        a("v_add_u32 v20, v20, v15")
        a("v_subrev_u32 v16, 32, v14")
        a("v_max_i32 v16, 0, v16")
        a(f"v_mul_u32_u24 v21, {QP}, v16")
        a("v_add_u32 v21, v21, v15")
        a("v_lshrrev_b32 v16, 2, v12")
        a("v_lshl_add_u32 v16, v13, 2, v16")
        a("v_lshl_add_u32 v16, v16, 1, s46")
        a("v_and_b32 v17, 3, v1")
        a("v_lshl_add_u32 v17, v17, 3, s47")
        a(f"v_mul_u32_u24 v22, {QP}, v16")
        a("v_add_u32 v22, v22, v17")
        a("v_subrev_u32 v16, 32, v16")
        a("v_max_i32 v16, 0, v16")
        a(f"v_mul_u32_u24 v23, {QP}, v16")
        a("v_add_u32 v23, v23, v17")
        a("s_lshl_b32 s60, s43, 13")
        a("s_lshl_b32 s61, s45, 10")
        a("s_add_u32 s60, s60, s61")
        a("s_lshl_b32 s61, s44, 8")
        a("s_add_u32 s60, s60, s61")
        a("v_lshlrev_b32 v27, 11, v13")
        a("v_lshl_add_u32 v27, v12, 4, v27")
        a("v_add_u32 v27, s60, v27")
        a("v_mov_b32 v28, 0xff800000")
        CS = (32 ** -0.5) * 1.4426950408889634
        a(f"s_mov_b32 s61, {fh(CS)}")
        a("s_nop 2")
        a("s_or_b32 s62, s34, s45")
        a("s_cmp_lg_u32 s62, 0")
        for r in range(4): a(f"s_cselect_b64 s[{64+2*r}:{65+2*r}], s[{84+2*r}:{85+2*r}], 0")

    if int(os.environ.get("K1_SPF", "6")) & 4:
        Lsp = a.label("Lsp")
        a("s_cmp_ge_u32 s36, 2")
        a(f"s_cbranch_scc1 {Lsp}")
        srd(a, 84, 6, 6291456)
        a("s_and_b32 s43, s35, 8")
        a("s_or_b32 s43, s43, 3")
        a("s_lshl_b32 s43, s43, 7")
        a("s_lshr_b32 s44, s2, 3")
        a("s_mul_i32 s44, s44, %d" % (32*6144))
        a("s_add_u32 s43, s43, s44")
        a("s_lshl_b32 s44, s36, 6")
        a("v_add_u32 v15, s44, v1")
        a("v_min_u32 v15, 95, v15")
        a("v_mul_u32_u24 v16, 21846, v15")
        a("v_lshrrev_b32 v16, 16, v16")
        a("v_mul_u32_u24 v17, 3, v16")
        a("v_sub_u32 v15, v15, v17")
        a("v_mul_u32_u24 v16, 6144, v16")
        a("v_lshl_add_u32 v15, v15, 11, v16")
        a("buffer_load_dword v31, v15, s[84:87], s43 offen")
        a(f"{Lsp}:")
    a("v_lshrrev_b32 v16, 1, v12")
    a("v_xor_b32 v15, v13, v16")
    a("v_lshlrev_b32 v15, 4, v15")
    a("v_lshl_add_u32 v2, v12, 7, v15")
    a("v_xor_b32 v3, 64, v2")
    a(f"v_add_u32 v4, {2*STG1}, v2")
    a(f"v_add_u32 v5, {2*STG1}, v3")
    a("v_lshrrev_b32 v15, 2, v12")
    a("v_and_b32 v16, 3, v1")
    a("v_lshl_add_u32 v19, v13, 3, v15")
    a("v_lshlrev_b32 v19, 7, v19")
    a("v_and_b32 v15, 2, v15")
    a("v_and_b32 v17, 1, v13")
    a("v_lshl_add_u32 v15, v17, 2, v15")
    a("v_lshrrev_b32 v17, 1, v16")
    a("s_lshl_b32 s43, s36, 1")
    a("v_add_u32 v17, s43, v17")
    a("v_xor_b32 v15, v15, v17")
    a("v_lshl_add_u32 v19, v15, 4, v19")
    a("v_and_b32 v16, 1, v16")
    a("v_lshl_add_u32 v19, v16, 3, v19")
    for sl in range(3):
        a(f"v_add_u32 v{6+sl}, {XB_ + sl*STG1}, v19")
    ACC = 128
    def accreg(seg, mt):
        return ACC + 36*seg + 4*mt
    for i in range(108): a(f"v_mov_b32 v{ACC+i}, 0")
    SET = [32, 80]
    def reads(s, kk, base):
        sl = s % NS
        xb = (2 + kk) if sl < 2 else (4 + kk)
        xo = (sl % 2)*STG1 if sl < 2 else 0
        def xr(mt): return f"ds_read_b128 v[{base+4*mt}:{base+4*mt+3}], v{xb} offset:{xo + mt*2048}"
        def wr(sg, h): return f"ds_read_b64_tr_b16 v[{base+36+4*sg+2*h}:{base+36+4*sg+2*h+1}], v{6+sl} offset:{sg*8192 + kk*4096 + h*512}"
        return [xr(0), wr(1,0), wr(1,1), wr(2,0), wr(2,1), wr(0,0), wr(0,1)] + [xr(m) for m in range(1, 9)]
    def mfmas(base):
        r = []
        for mt in range(9):
            for sg in (1, 2, 0):
                acc = accreg(sg, mt)
                r.append(f"v_mfma_f32_16x16x32_bf16 v[{acc}:{acc+3}], v[{base+36+4*sg}:{base+36+4*sg+3}], v[{base+4*mt}:{base+4*mt+3}], v[{acc}:{acc+3}]")
        return r
    def emit(seq):
        for i in seq:
            if "m" in strip and i.startswith("v_mfma"): continue
            if "r" in strip and i.startswith("ds_read"): continue
            a(i)
    att_setup()
    a(f"v_lshlrev_b32 v9, 3, v12")
    a(f"v_add_u32 v9, {RST}, v9")
    a(f"v_mul_u32_u24 v14, {QP}, v12")
    a("v_lshl_add_u32 v14, v13, 3, v14")
    a("s_lshl_b32 s43, s36, 5")
    a("v_add_u32 v14, s43, v14")
    a("s_barrier")
    stamp(a, 1)
    for i in reads(0, 0, SET[0]): a(i)
    def cstage(s, last):
        a("s_waitcnt lgkmcnt(0)")
        emit(interleave(mfmas(SET[0]), reads(s, 1, SET[1]), 0, 1))
        a("s_waitcnt lgkmcnt(0)")
        a("s_barrier")
        emit(interleave(mfmas(SET[1]), [f"ds_read_b64 v[{32+2*mt}:{33+2*mt}], v9 offset:{mt*128}" for mt in range(9)] if last else reads(s+1, 0, SET[0]), 0, 1))
    nl = (nst-1)//NS
    a(f"s_mov_b32 s41, {nl}")
    Ll = a.label("Lcl")
    a(f"{Ll}:")
    for s in range(NS): cstage(s, False)
    a("s_sub_u32 s41, s41, 1")
    a("s_cmp_lg_u32 s41, 0")
    a(f"s_cbranch_scc1 {Ll}")
    for s in range(nl*NS, nst): cstage(s, s == nst-1)
    stamp(a, 2)
    for sg in range(3):
        for r in range(4):
            a(f"v_mov_b32_dpp v{52+4*sg+r}, v{accreg(sg,0)+r} row_newbcast:0 row_mask:0xf bank_mask:0xf")
    a("s_waitcnt lgkmcnt(0)")
    for mt in range(9):
        for sg in ((1, 2) if mt == 0 else (0, 1, 2)):
            acc = accreg(sg, mt)
            for r in (0, 2):
                a(f"v_pk_fma_f32 v[{acc+r}:{acc+r+1}], v[{32+2*mt}:{33+2*mt}], v[{52+4*sg+r}:{53+4*sg+r}], v[{acc+r}:{acc+r+1}] op_sel_hi:[0,1,1] neg_lo:[1,0,0] neg_hi:[1,0,0]")
            for r in (0, 2):
                a(f"v_pk_mul_f32 v[{acc+r}:{acc+r+1}], v[{32+2*mt}:{33+2*mt}], v[{acc+r}:{acc+r+1}] op_sel:[1,0] op_sel_hi:[1,1]")
            a(f"v_cvt_pk_bf16_f32 v{acc}, v{acc}, v{acc+1}")
            a(f"v_cvt_pk_bf16_f32 v{acc+1}, v{acc+2}, v{acc+3}")
            a(f"ds_write_b64 v14, v[{acc}:{acc+1}] offset:{QKV + mt*16*QP + sg*128}")
    a("s_waitcnt lgkmcnt(0)")
    a(f"s_branch {Latt}")

    a(f"{Lprod}:")
    a("s_sub_u32 s47, s36, 4")
    a("s_lshl_b32 s43, s34, 7")
    a("s_lshl_b32 s44, s35, 3")
    a("s_add_u32 s43, s43, s44")
    a("s_mov_b32 s63, s43")
    a("s_lshl_b32 s44, s47, 1")
    a("s_add_u32 s51, s43, s44")
    a("v_lshlrev_b32 v10, 4, v1")
    srd(a, 20, 32, 2048*8, add_imm=WS_ST1)
    def rows_load(srow, dst=96, add=0):
        a(f"s_lshl_b32 s43, s{srow}, 11")
        if add: a(f"s_add_u32 s43, s43, {add*2048}")
        for q in range(4):
            a(f"buffer_load_dwordx4 v[{dst+4*q}:{dst+4*q+3}], v10, s[8:11], s43 offen offset:{q*1024}")
    def rows_stats(srcb=96):
        for r in range(2):
            sa, qa = 116+4*r, 118+4*r
            for i in range(8):
                src = srcb + 8*r + i
                t = 124 + 2*(i & 1)
                a(f"v_lshlrev_b32 v{t}, 16, v{src}")
                a(f"v_and_b32 v{t+1}, 0xffff0000, v{src}")
                if i == 0:
                    a(f"v_mov_b32 v{sa}, v{t}"); a(f"v_mov_b32 v{sa+1}, v{t+1}")
                    a(f"v_mul_f32 v{qa}, v{t}, v{t}"); a(f"v_mul_f32 v{qa+1}, v{t+1}, v{t+1}")
                else:
                    a(f"v_add_f32 v{sa}, v{sa}, v{t}"); a(f"v_add_f32 v{sa+1}, v{sa+1}, v{t+1}")
                    a(f"v_fmac_f32 v{qa}, v{t}, v{t}"); a(f"v_fmac_f32 v{qa+1}, v{t+1}, v{t+1}")
        R = [116, 118, 120, 122]
        for x in R: a(f"v_add_f32 v{x}, v{x}, v{x+1}")
        a("s_nop 0")
        for sh in (8, 4, 2, 1):
            for x in R: a(f"v_add_f32_dpp v{x}, v{x}, v{x} row_ror:{sh} row_mask:0xf bank_mask:0xf")
        for sw in ("16", "32"):
            for x in R: a(f"v_mov_b32 v{x+1}, v{x}")
            a("s_nop 0")
            for x in R: a(f"v_permlane{sw}_swap_b32 v{x}, v{x+1}")
            for x in R: a(f"v_add_f32 v{x}, v{x}, v{x+1}")
        for r in range(2):
            sv, qv, o = 116+4*r, 118+4*r, 112+2*r
            a(f"v_mul_f32 v{o}, 0x3a800000, v{sv}")
            a(f"v_mul_f32 v{o+1}, 0x3a800000, v{qv}")
            a(f"v_fma_f32 v{o+1}, -v{o}, v{o}, v{o+1}")
            a(f"v_max_f32 v{o+1}, 0, v{o+1}")
            a(f"v_add_f32 v{o+1}, 0x3727c5ac, v{o+1}")
            a(f"v_rsq_f32 v{o+1}, v{o+1}")
        a("s_nop 0")
    def rows_local():
        a("s_lshl_b32 s43, s47, 4")
        a(f"s_add_u32 s43, s43, {LST}")
        a("v_mov_b32 v11, s43")
        a("ds_write_b128 v11, v[112:115]")
        a("s_waitcnt lgkmcnt(0)")
    def spre_setup():
        if not NPS: return
        Lj = a.label("Lsj")
        cs_sbase(a, Lj, 80, 47)
        a(f"{Lj}:")
    def spre(n=2): cs_spre(a, n)
    a("s_cmp_eq_u32 s47, 3")
    a(f"s_cbranch_scc1 {Lpf}")
    a("v_lshrrev_b32 v14, 3, v1")
    a("v_and_b32 v15, 7, v1")
    a("v_and_b32 v16, 2, v14")
    a("v_xor_b32 v16, v15, v16")
    a("v_lshlrev_b32 v16, 4, v16")
    a("v_mul_u32_u24 v17, 6144, v14")
    a("s_lshl_b32 s43, s47, 11")
    a("v_add3_u32 v2, v17, v16, s43")
    a("v_xor_b32 v3, 64, v2")
    a("v_lshrrev_b32 v16, 1, v14")
    a("v_xor_b32 v16, v15, v16")
    a("v_lshlrev_b32 v16, 4, v16")
    a("s_lshl_b32 s43, s47, 3")
    a("s_add_u32 s43, s43, s50")
    a("v_add_u32 v17, s43, v14")
    a("s_and_b32 s44, s47, 1")
    a("s_lshl_b32 s44, s44, 6")
    for i in range(6):
        a(f"v_add_u32 v18, {24*i}, v17")
        a("v_max_i32 v18, 0, v18")
        a("v_lshl_add_u32 v18, v18, 11, v16")
        a("v_xor_b32 v18, s44, v18")
        if i & 1: a(f"v_xor_b32 v{4+i}, 64, v18")
        else: a(f"v_mov_b32 v{4+i}, v18")
    a("s_lshl_b32 s39, s47, 10")
    a("s_lshl_b32 s40, s47, 13")
    a(f"s_add_u32 s40, s40, {XB_}")
    a("s_mov_b32 s37, 0")
    a("s_mov_b32 s38, 0")
    a("s_bfm_b64 s[60:61], 56, 8")
    a("s_cmp_eq_u32 s47, 0")
    a("s_cselect_b64 s[60:61], s[60:61], -1")
    def dma(slot):
        for i in range(6):
            a(f"s_add_u32 m0, s39, {slot*STG1 + i*3072}")
            a("s_mov_b64 exec, s[60:61]" if i == 0 else "s_nop 0")
            if "d" not in strip: a(f"buffer_load_dwordx4 v{4+i}, s[8:11], s37 offen lds")
            if i == 0: a("s_mov_b64 exec, -1")
        for j in range(8):
            a(f"s_add_u32 m0, s40, {slot*STG1 + j*1024}")
            a(f"s_add_u32 s43, s38, {8*j*6144}")
            if "d" not in strip: a(f"buffer_load_dwordx4 v{2+(j&1)}, s[12:15], s43 offen lds")
        a("s_add_u32 s37, s37, 128")
        a(f"s_add_u32 s38, s38, {64*6144}")
    for sl in range(NS): dma(sl)
    rows_load(51)
    a(f"s_waitcnt vmcnt({14*(NS-1) + 4})")
    a("s_barrier")
    def pstage(s, do_dma, vm, extra=None):
        if do_dma: dma((s+2) % NS)
        if extra: extra()
        if SPS <= s <= SPE: spre()
        if vm is not None: a(f"s_waitcnt vmcnt({vm})")
        a("s_barrier")
    spre_setup()
    pstage(0, False, 14 + 4)
    pstage(1, True, 14)
    def loc():
        rows_stats(); rows_local()
    pstage(2, True, 14, loc)
    pstage(3, True, 14)
    a(f"s_mov_b32 s41, 2")
    Lp = a.label("Lpl")
    a(f"{Lp}:")
    for s in range(4, 7): pstage(s, True, 14)
    a("s_sub_u32 s41, s41, 1")
    a("s_cmp_lg_u32 s41, 0")
    a(f"s_cbranch_scc1 {Lp}")
    assert SPE >= 9 and SPS <= 4
    for s in range(10, 14): pstage(s, True, 14)
    pstage(14, False, 0)
    pstage(15, False, None)
    a("s_waitcnt lgkmcnt(0)")
    att_setup()
    a(f"s_branch {Latt}")

    a(f"{Lpf}:")
    PFM = os.environ.get("K1_PF", "mall1")
    PF = PFM == "l2"
    a(f"s_load_dwordx2 s[26:27], s[0:1], {KA_DBG}")
    rows_load(51)
    a("v_min_u32 v14, 23, v1")
    a("v_lshrrev_b32 v15, 3, v14")
    a(f"v_mul_u32_u24 v15, {STG1}, v15")
    a("v_and_b32 v14, 7, v14")
    a("v_lshl_add_u32 v15, v14, 4, v15")
    for i in range(4): a(f"v_mov_b32 v{32+i}, 0x3f803f80")
    a("ds_write_b128 v15, v[32:35]")
    PER = 64 // MX
    NPI = (3*PER + 63) // 64
    for q in range(NPI):
        a(f"v_add_u32 v14, {64*q}, v1")
        a(f"v_min_u32 v14, {3*PER-1}, v14")
        a("v_mul_u32_u24 v15, 21846, v14")
        a("v_lshrrev_b32 v15, 16, v15")
        a("v_mul_u32_u24 v16, 3, v15")
        a("v_sub_u32 v16, v14, v16")
        a(f"s_mul_i32 s43, s48, {PER}")
        a("v_add_u32 v15, s43, v15")
        a("v_mul_u32_u24 v15, 6144, v15")
        a(f"v_lshl_add_u32 v{2+q}, v16, 11, v15")
    vm = []
    def wait_for(tag):
        idx = max(i for i, t in enumerate(vm) if t == tag)
        a(f"s_waitcnt vmcnt({len(vm) - 1 - idx})")
    def l2pf(st):
        if not PF or st >= nst: return
        a(f"s_mov_b32 s43, {st*64*6144}")
        for q in range(NPI):
            a(f"buffer_load_dword v31, v{2+q}, s[12:15], s43 offen"); vm.append("pf")
    a("s_waitcnt lgkmcnt(0)")
    srd(a, 56, 26, 256)
    a("v_lshlrev_b32 v14, 7, v1")
    Lz = a.label("Lz")
    a("s_or_b32 s43, s34, s35")
    a("s_cmp_lg_u32 s43, 0")
    a(f"s_cbranch_scc1 {Lz}")
    flag_srd(a, 84)
    a("v_mov_b32 v5, 0")
    a("buffer_store_dword v5, v14, s[84:87], 0 offen sc1")
    a("s_movk_i32 s43, 0x2000")
    a("buffer_store_dword v5, v14, s[84:87], s43 offen sc1")
    for i in range(4): a(f"v_mov_b32 v{36+i}, 0")
    a("v_lshlrev_b32 v5, 4, v1")
    a(f"s_movk_i32 s43, {XFLG}")
    a("buffer_store_dwordx4 v[36:39], v5, s[84:87], s43 offen sc1")
    a("s_waitcnt vmcnt(0)")
    a(f"{Lz}:")
    vm.append("rows")
    def mallpf():
        srd(a, 84, 6, 6291456)
        a("s_mul_i32 s43, s2, 24576")
        for q in range(3):
            a(f"buffer_load_dword v31, v14, s[84:87], s43 offen"); vm.append("pf")
            if q < 2: a("s_add_u32 s43, s43, 8192")
    def slowpf():
        srd(a, 84, 6, 6291456)
        a("s_lshr_b32 s44, s2, 3")
        if SPF & 1:
            a("s_and_b32 s43, s35, 8")
            a("s_or_b32 s43, s43, 3")
            a("s_lshl_b32 s43, s43, 7")
            a("s_mul_i32 s45, s44, %d" % (32*6144))
            a("s_add_u32 s43, s43, s45")
            for q in range(2):
                a(f"v_add_u32 v15, {64*q}, v1")
                a("v_min_u32 v15, 95, v15")
                a("v_mul_u32_u24 v16, 21846, v15")
                a("v_lshrrev_b32 v16, 16, v16")
                a("v_mul_u32_u24 v17, 3, v16")
                a("v_sub_u32 v15, v15, v17")
                a("v_mul_u32_u24 v16, 6144, v16")
                a("v_lshl_add_u32 v15, v15, 11, v16")
                a("buffer_load_dword v31, v15, s[84:87], s43 offen"); vm.append("pf")
        if SPF & 2:
            a("s_xor_b32 s43, s63, 64")
            a("s_lshl_b32 s43, s43, 11")
            a("buffer_load_dword v31, v14, s[8:11], s43 offen"); vm.append("pf")
            a("s_add_u32 s43, s43, 8192")
            a("buffer_load_dword v31, v14, s[8:11], s43 offen"); vm.append("pf")
    SPF = int(os.environ.get("K1_SPF", "6"))
    SPAT = int(os.environ.get("K1_SPAT", "0"))
    if PFM == "mall0": mallpf()
    if SPAT < 0: slowpf()
    stampc(a, "k1", 0)
    a("s_barrier")
    MST = int(os.environ.get("K1_MST", "1"))
    if PFM == "mall1" and not MST: mallpf()
    stampc(a, "k1", 1)
    GS = int(os.environ.get("K1_GS", "10"))
    SS = int(os.environ.get("K1_SS", "7"))
    PFN = int(os.environ.get("K1_PFN", "4"))
    CS0 = int(os.environ.get("K1_CS0", "14")); WOP = int(os.environ.get("K1_WOP", "13")); WOM = os.environ.get("K1_WOM", "mall")
    Lgd = a.label("Lgd")
    nxt = [3]
    for s in range(nst):
        if PFM == "mall1" and MST and s in (0, MST):
            Lm = a.label("Lm")
            a("s_cmp_ge_u32 s2, 128")
            a(f"s_cbranch_scc{1 if s == 0 else 0} {Lm}")
            n0 = len(vm); mallpf(); del vm[n0:]
            a(f"{Lm}:")
        if s == SPAT: slowpf()
        if s == 0: spre_setup()
        if s == 2:
            wait_for("rows")
            rows_stats(); rows_local()
        if s == 3:
            a("v_lshlrev_b32 v5, 4, v1")
            a("v_and_b32 v5, 63, v5")
            a(f"v_add_u32 v6, {LST}, v5")
            a("ds_read_b128 v[112:115], v6")
            a("s_lshl_b32 s43, s63, 3")
            a("v_add_u32 v5, s43, v5")
            a("s_waitcnt lgkmcnt(0)")
            a("s_mov_b64 exec, 15")
            a(f"buffer_store_dwordx4 v[112:115], v5, s[20:23], 0 offen sc1"); vm.append("store")
            a("s_mov_b64 exec, -1")
        if s < SS - 2:
            for q in range(PFN):
                l2pf(nxt[0]); nxt[0] += 1
        if s == int(os.environ.get("K1_X11", "99")):
            a(f"s_andn2_b32 s43, s34, {MX-1}")
            a("s_lshl_b32 s43, s43, 7")
            a("s_lshr_b32 s44, s2, 3")
            a("s_mul_i32 s44, s44, 17")
            a("s_add_u32 s43, s43, s44")
            a("s_sub_u32 s43, s43, 16")
            a("v_min_u32 v15, 16, v1")
            a("v_add_u32 v15, s43, v15")
            a("v_max_i32 v15, 0, v15")
            a("v_lshlrev_b32 v15, 11, v15")
            a("buffer_load_dword v31, v15, s[8:11], 0 offen offset:1408"); vm.append("pf")
        if s == WOP:
            if WOM == "l2":
                n = pf_w64(a, KA_WO, 1024, list(range(16//MX)), 84, 29, 30); vm.extend(["pf"]*n)
            elif WOM == "mall":
                a(f"s_load_dwordx2 s[88:89], s[0:1], {KA_WO}")
                a("v_lshlrev_b32 v29, 7, v1")
                a("s_lshl_b32 s43, s2, 13")
                a("s_waitcnt lgkmcnt(0)")
                srd(a, 84, 88, 2097152)
                a("buffer_load_dword v30, v29, s[84:87], s43 offen"); vm.append("pf")
                if int(os.environ.get("K2_SPF", "1")):
                    a("v_and_b32 v29, 31, v1")
                    a("v_lshlrev_b32 v29, 11, v29")
                    a("s_and_b32 s43, s35, 8")
                    a("s_or_b32 s43, s43, 3")
                    a("s_lshl_b32 s43, s43, 7")
                    a("s_lshr_b32 s44, s2, 3")
                    a("s_lshl_b32 s44, s44, 16")
                    a("s_add_u32 s43, s43, s44")
                    a("buffer_load_dword v30, v29, s[84:87], s43 offen"); vm.append("pf")
        if s == SS:
            a("s_waitcnt vmcnt(0)")
            a("s_lshl_b32 s43, s34, 4")
            a("s_add_u32 s43, s43, s35")
            a("v_mov_b32 v5, s43")
            a("v_mov_b32 v6, 1")
            a("s_mov_b64 exec, 1")
            a("buffer_store_byte v6, v5, s[56:59], 0 offen sc1"); vm.append("at")
            a("s_mov_b64 exec, -1")
        if s == GS:
            a("s_lshl_b32 s43, s34, 4")
            a("s_sub_u32 s44, s43, 4")
            a("s_max_i32 s44, s44, 0")
            a("v_lshl_add_u32 v5, v1, 2, s43")
            a("v_mov_b32 v6, s44")
            a("v_cmp_gt_u32 vcc, 4, v1")
            a("s_nop 1")
            a("v_cndmask_b32 v5, v6, v5, vcc")
            a("v_cmp_eq_u32 vcc, 5, v1")
            a("s_nop 1")
            a("v_cndmask_b32 v5, v5, 0, vcc")
            a("buffer_load_dword v6, v5, s[56:59], 0 offen sc1"); vm.append("poll")
        if s == GS + 2:
            Lpoll = a.label("Lpoll"); Lok = a.label("Lok"); Lfb = a.label("Lfb")
            a("s_mov_b32 s41, 200")
            a("s_mov_b32 s62, 0")
            wait_for("poll")
            a(f"{Lpoll}:")
            a("v_and_b32 v6, 0x01010101, v6")
            a("v_cmp_ne_u32 vcc, 0x01010101, v6")
            a("s_nop 4")
            a(f"s_cbranch_vccz {Lok}")
            a("buffer_load_dword v6, v5, s[56:59], 0 offen sc1")
            a("s_waitcnt vmcnt(0)")
            a("s_sub_u32 s41, s41, 1")
            a("s_cmp_lg_u32 s41, 0")
            a(f"s_cbranch_scc1 {Lpoll}")
            a("s_mov_b32 s41, 0")
            a(f"{Lfb}:")
            a("s_add_u32 s62, s50, s41")
            a("s_max_i32 s62, s62, 0")
            rows_load(62)
            a("s_waitcnt vmcnt(0)")
            rows_stats()
            a("s_lshl_b32 s43, s41, 3")
            a(f"s_add_u32 s43, s43, {RST}")
            a("v_mov_b32 v5, s43")
            a("ds_write_b128 v5, v[112:115]")
            a("s_add_u32 s41, s41, 2")
            a("s_cmp_lt_u32 s41, 144")
            a(f"s_cbranch_scc1 {Lfb}")
            a("s_mov_b32 s62, 1")
            Lz0 = a.label("Lz0")
            a("v_mov_b32 v5, 0")
            a("s_mov_b32 s41, 0x10000")
            a(f"{Lz0}:")
            a("buffer_load_ubyte v6, v5, s[56:59], 0 offen sc1")
            a("s_waitcnt vmcnt(0)")
            a("v_cmp_eq_u32 vcc, 0, v6")
            a("s_nop 4")
            a(f"s_cbranch_vccz {Lok}")
            a("s_sub_u32 s41, s41, 1")
            a("s_cmp_lg_u32 s41, 0")
            a(f"s_cbranch_scc1 {Lz0}")
            a(f"{Lok}:")
            for q in range(3):
                a(f"v_add_u32 v5, {64*q}, v1")
                a("v_min_u32 v5, 143, v5")
                a(f"v_lshlrev_b32 v{20+q}, 3, v5")
                a("v_add_u32 v5, s50, v5")
                a("v_max_i32 v5, 0, v5")
                a("v_lshlrev_b32 v5, 3, v5")
                a(f"buffer_load_dwordx2 v[{32+2*q}:{33+2*q}], v5, s[20:23], 0 offen sc1"); vm.append("gather")
        if s == GS + 4:
            wait_for("gather")
            a("s_cmp_eq_u32 s62, 1")
            a(f"s_cbranch_scc1 {Lgd}")
            for q in range(3):
                a(f"v_add_u32 v{20+q}, {RST}, v{20+q}")
                a(f"ds_write_b64 v{20+q}, v[{32+2*q}:{33+2*q}]")
            a(f"{Lgd}:")
            a("s_waitcnt lgkmcnt(0)")
        if s in (CS0, CS0+1):
            Lnj = a.label("Lnj")
            cs_setup(a, Lnj, 84, 28)
            for q in range(16*(s-CS0), 16*(s-CS0+1)): cs_issue(a, q, 84, 28)
            a(f"{Lnj}:")
        if SPS <= s <= (11 if CSM == "d" else SPE) and STAMPC != "k1": spre()
        a("s_barrier")
        stampc(a, "k1", s+2)
    stampc(a, "k1", 18)
    a("s_waitcnt lgkmcnt(0)")
    att_setup()

    a(f"{Latt}:")
    a("s_barrier")
    stampc(a, "k1", 19)
    stamp(a, 3)
    U = 32*QP
    for u in range(2):
        B = 32 + 48*u
        uo = u*U
        a(f"ds_read_b128 v[{B}:{B+3}], v20 offset:{QKV + uo}")
        a(f"ds_read_b128 v[{B+4}:{B+7}], v20 offset:{QKV + uo + 128}")
        if u == 0: a(f"ds_read_b128 v[{B+8}:{B+11}], v21 offset:{QKV + 128}")
        else: a(f"ds_read_b128 v[{B+8}:{B+11}], v20 offset:{QKV + 128}")
    for u in range(2):
        B = 32 + 48*u
        uo = u*U
        for dh in range(2):
            if u == 0: a(f"ds_read_b64_tr_b16 v[{B+12+4*dh}:{B+13+4*dh}], v23 offset:{QKV + 256 + dh*32}")
            else: a(f"ds_read_b64_tr_b16 v[{B+12+4*dh}:{B+13+4*dh}], v22 offset:{QKV + 256 + dh*32}")
            a(f"ds_read_b64_tr_b16 v[{B+14+4*dh}:{B+15+4*dh}], v22 offset:{QKV + uo + 256 + dh*32}")
    for u in range(2):
        B = 32 + 48*u
        a(f"s_waitcnt lgkmcnt({11 if u == 0 else 8})")
        a(f"v_mfma_f32_16x16x32_bf16 v[{B+20}:{B+23}], v[{B+8}:{B+11}], v[{B}:{B+3}], 0")
        a(f"v_mfma_f32_16x16x32_bf16 v[{B+24}:{B+27}], v[{B+4}:{B+7}], v[{B}:{B+3}], 0")
    a("s_nop 7")
    def soft(u):
        B = 32 + 48*u
        S = B + 20; M = B + 28; T = B + 29; P = B + 32
        r_ = []
        am = 64 if u == 0 else 84
        for r in range(4): r_.append(f"v_cndmask_b32 v{S+r}, v28, v{S+r}, s[{am+2*r}:{am+2*r+1}]")
        for r in range(4): r_.append(f"v_cndmask_b32 v{S+4+r}, v28, v{S+4+r}, s[{52+2*r}:{53+2*r}]")
        r_.append(f"v_max3_f32 v{M}, v{S}, v{S+1}, v{S+2}")
        r_.append(f"v_max3_f32 v{T}, v{S+3}, v{S+4}, v{S+5}")
        r_.append(f"v_max3_f32 v{M}, v{M}, v{S+6}, v{S+7}")
        r_.append(f"v_max_f32 v{M}, v{M}, v{T}")
        for sw in ("32", "16"):
            r_.append(f"v_mov_b32 v{T}, v{M}")
            r_.append("s_nop 0")
            r_.append(f"v_permlane{sw}_swap_b32 v{M}, v{T}")
            r_.append(f"v_max_f32 v{M}, v{M}, v{T}")
        r_.append(f"v_mul_f32 v{M}, s61, v{M}")
        for r in range(8): r_.append(f"v_fma_f32 v{S+r}, v{S+r}, s61, -v{M}")
        for r in range(8): r_.append(f"v_exp_f32 v{S+r}, v{S+r}")
        for q in range(4): r_.append(f"v_cvt_pk_bf16_f32 v{P+q}, v{S+2*q}, v{S+2*q+1}")
        return r_
    def zip2(x, y):
        for i, j in zip(x, y):
            a(i)
            if not (i == j and i.startswith("s_nop")): a(j)
    zip2(soft(0), soft(1))
    a("s_waitcnt lgkmcnt(0)")
    for u in range(2):
        B = 32 + 48*u
        for dh in range(2):
            a(f"v_mfma_f32_16x16x32_bf16 v[{B+36+4*dh}:{B+39+4*dh}], v[{B+12+4*dh}:{B+15+4*dh}], v[{B+32}:{B+35}], 0")
    def rsum(u):
        B = 32 + 48*u
        S = B + 20; M = B + 28; T = B + 29
        r_ = [f"v_add_f32 v{M}, v{S}, v{S+1}", f"v_add_f32 v{T}, v{S+2}, v{S+3}", f"v_add_f32 v{S+4}, v{S+4}, v{S+5}", f"v_add_f32 v{S+6}, v{S+6}, v{S+7}",
              f"v_add_f32 v{M}, v{M}, v{T}", f"v_add_f32 v{S+4}, v{S+4}, v{S+6}", f"v_add_f32 v{M}, v{M}, v{S+4}"]
        for sw in ("32", "16"):
            r_.append(f"v_mov_b32 v{T}, v{M}")
            r_.append("s_nop 0")
            r_.append(f"v_permlane{sw}_swap_b32 v{M}, v{T}")
            r_.append(f"v_add_f32 v{M}, v{M}, v{T}")
        r_.append(f"v_rcp_f32 v{M}, v{M}")
        return r_
    zip2(rsum(0), rsum(1))
    a("s_nop 0")
    for u in range(2):
        B = 32 + 48*u
        M = B + 28; O = B + 36
        for r in range(0, 8, 2): a(f"v_pk_mul_f32 v[{O+r}:{O+r+1}], v[{M}:{M+1}], v[{O+r}:{O+r+1}] op_sel_hi:[0,1]")
        for q in range(4): a(f"v_cvt_pk_bf16_f32 v{O+q}, v{O+2*q}, v{O+2*q+1}")
        a(f"buffer_store_dwordx4 v[{O}:{O+3}], v27, s[16:19], 0 offen offset:{512*u} sc1")
    stamp(a, 4)
    a("s_waitcnt vmcnt(0)")
    a("s_barrier")
    flag_srd(a, 56)
    Ls = a.label("Lsig")
    a("s_cmp_lg_u32 s36, 0")
    a(f"s_cbranch_scc1 {Ls}")
    flag_signal(a, 56, "o", 34)
    a(f"{Ls}:")
    stamp(a, 5)
    stampc(a, "k1", 20)
```

```python
import os, struct
from common import *

def fh(x): return "0x%08x" % struct.unpack("<I", struct.pack("<f", x))[0]
def env(k, d): return int(os.environ.get(k, str(d)))

C0_ = -2.0*0.7978845608028654*1.4426950408889634
C1_ = C0_*0.044715
XF = os.environ.get("XF", " sc1")
SET = [32, 80]
ACC = 128
NST4 = 56


class VM:
    def __init__(self, a): self.a = a; self.q = []
    def add(self, tag, n=1): self.q += [tag]*n
    def cnt(self, tag):
        idx = max(i for i, t in enumerate(self.q) if t == tag)
        return len(self.q) - 1 - idx
    def wait(self, tag):
        n = self.cnt(tag); assert n <= 63, n
        return f"s_waitcnt vmcnt({n})"
    def reset(self): self.q = []


def spread(main, items, frac=100):
    if frac < 100:
        c = len(main)*frac//100
        return spread(main[:c], items) + main[c:]
    out = []
    n, k = len(main), len(items)
    j = 0
    for i in range(n + 1):
        while j < k and j*n <= i*k:
            out += items[j]; j += 1
        if i < n: out.append(main[i])
    while j < k: out += items[j]; j += 1
    return out


def lane_ig(a):
    a("v_and_b32 v17, 15, v1")
    a("v_lshrrev_b32 v18, 4, v1")


def g2_addrs():
    r = []
    r.append("v_lshlrev_b32 v19, 11, v18")
    r.append("v_lshl_add_u32 v19, v17, 4, v19")
    r.append("s_lshl_b32 s43, s36, 9")
    r.append("v_add_u32 v2, s43, v19")
    r.append(f"v_add_u32 v3, {REG}, v2")
    r.append(f"v_add_u32 v4, {2*REG}, v2")
    r.append("v_lshrrev_b32 v19, 2, v17")
    r.append("v_lshl_add_u32 v20, v18, 2, v19")
    r.append("v_bfe_u32 v21, v20, 1, 2")
    r.append("v_lshlrev_b32 v20, 7, v20")
    r.append("v_lshl_add_u32 v20, v21, 5, v20")
    r.append("v_and_b32 v19, 3, v1")
    r.append("v_lshl_add_u32 v20, v19, 3, v20")
    r.append("v_add_u32 v5, 16384, v20")
    for t in range(1, 4): r.append(f"v_xor_b32 v{5+t}, {32*t}, v5")
    for rg in range(1, 3):
        for t in range(4): r.append(f"v_add_u32 v{5+4*rg+t}, {rg*REG}, v{5+t}")
    return r

def g2_reads(slot, base):
    rg, so = slot >> 1, (slot & 1)*SLOT
    def xr(kb, tl): return f"ds_read_b128 v[{base+(kb*2+tl)*4}:{base+(kb*2+tl)*4+3}], v{2+rg} offset:{so + kb*8192 + tl*256}"
    def wr(kb, t, h):
        d = base + 16 + (kb*4+t)*4 + 2*h
        return f"ds_read_b64_tr_b16 v[{d}:{d+1}], v{5+4*rg+t} offset:{so + kb*4096 + h*2048}"
    r = []
    for kb in range(2):
        r += [xr(kb, 0), wr(kb, 0, 0), wr(kb, 0, 1), wr(kb, 1, 0), wr(kb, 1, 1), xr(kb, 1), wr(kb, 2, 0), wr(kb, 2, 1), wr(kb, 3, 0), wr(kb, 3, 1)]
    return r

def g2_mfmas(base):
    r = []
    for kb in range(2):
        for tl in range(2):
            for t in range(4):
                acc = ACC + (tl*4+t)*4
                w = base + 16 + (kb*4+t)*4; x = base + (kb*2+tl)*4
                r.append(f"v_mfma_f32_16x16x32_bf16 v[{acc}:{acc+3}], v[{w}:{w+3}], v[{x}:{x+3}], v[{acc}:{acc+3}]")
    return r

def g2_stage(a, s, slot_next, pre=None):
    a("s_waitcnt lgkmcnt(0)" if pre is None else f"s_waitcnt vmcnt({pre}) lgkmcnt(0)")
    a("s_barrier")
    m = g2_mfmas(SET[s & 1])
    rd = [] if slot_next is None else g2_reads(slot_next, SET[(s+1) & 1])
    k = 0
    for i in range(16):
        a(m[i])
        for q in range(2 if i < 6 else 1):
            if k < len(rd): a(rd[k]); k += 1

def g2_loop(a, s0, nst, off, pres={}):
    s = s0
    while s in pres or (s % 6 != 0 and False):
        g2_stage(a, s, (s+1+off) % 6, pres[s]); s += 1
    nl = (nst - 1 - s)//6
    if nl > 0:
        L = a.label("Lg2")
        a(f"s_mov_b32 s41, {nl}")
        a(f"{L}:")
        for q in range(6): g2_stage(a, s+q, (s+q+1+off) % 6)
        a("s_sub_u32 s41, s41, 1")
        a("s_cmp_lg_u32 s41, 0")
        a(f"s_cbranch_scc1 {L}")
        s += 6*nl
    while s < nst:
        g2_stage(a, s, None if s == nst-1 else (s+1+off) % 6); s += 1


def k3_addrs(nj, t0):
    r = []
    r.append("v_lshlrev_b32 v19, 11, v18")
    r.append("v_lshl_add_u32 v19, v17, 4, v19")
    r.append("s_lshl_b32 s43, s46, 10")
    r.append("v_add_u32 v2, s43, v19")
    r.append(f"v_add_u32 v3, {REG}, v2")
    r.append(f"v_add_u32 v4, {2*REG}, v2")
    r.append("v_lshrrev_b32 v19, 2, v17")
    r.append("v_lshl_add_u32 v20, v18, 2, v19")
    r.append("v_and_b32 v21, 7, v20")
    r.append("v_lshlrev_b32 v20, 8, v20")
    r.append("v_and_b32 v19, 3, v1")
    r.append("v_lshl_add_u32 v20, v19, 3, v20")
    for j in range(nj):
        r.append(f"s_add_u32 s43, s{t0}, {j}")
        r.append("v_xor_b32 v19, s43, v21")
        r.append(f"v_lshl_add_u32 v{5+j}, v19, 5, v20")
    for rg in range(1, 3):
        for j in range(nj): r.append(f"v_add_u32 v{5+4*rg+j}, {rg*REG}, v{5+j}")
    return r

def k3_acc(nj, mat, j, tl): return ACC + ((mat*nj + j)*4 + tl)*4

def k3_reads(nj, sig, kk, base):
    rg = (sig + 2) % 3
    def xr(tl): return f"ds_read_b128 v[{base+4*tl}:{base+4*tl+3}], v{2+rg} offset:{kk*8192 + tl*256}"
    def wr(mat, j, h):
        d = base + 16 + (mat*nj+j)*4 + 2*h
        return f"ds_read_b64_tr_b16 v[{d}:{d+1}], v{5+4*rg+j} offset:{16384*(1+mat) + kk*8192 + h*4096}"
    r = [xr(0), wr(0, 0, 0), wr(0, 0, 1), xr(1), xr(2), xr(3), wr(1, 0, 0), wr(1, 0, 1)]
    for j in range(1, nj): r += [wr(0, j, 0), wr(0, j, 1), wr(1, j, 0), wr(1, j, 1)]
    return r

def k3_mfmas(nj, base):
    r = []
    order = [(j, mat, tl) for j in range(nj) for mat in range(2) for tl in range(4)]
    if env("MORD", 2) == 1: order = [(j, mat, tl) for tl in range(4) for j in range(nj) for mat in range(2)]
    if env("MORD", 2) == 2:
        order = [(j, mat, tl if (2*j + mat) % 2 == 0 else 3 - tl) for j in range(nj) for mat in range(2) for tl in range(4)]
    for (j, mat, tl) in order:
        if True:
            if True:
                acc = k3_acc(nj, mat, j, tl)
                w = base + 16 + (mat*nj+j)*4; x = base + 4*tl
                r.append(f"v_mfma_f32_16x16x32_bf16 v[{acc}:{acc+3}], v[{w}:{w+3}], v[{x}:{x+3}], v[{acc}:{acc+3}]")
    return r

def k3_half1(a, nj, sig, vmw=None):
    a("s_waitcnt lgkmcnt(0)")
    for i in interleave(k3_mfmas(nj, SET[0]), k3_reads(nj, sig, 1, SET[1])): a(i)
    a("s_waitcnt lgkmcnt(0)" if vmw is None else f"s_waitcnt vmcnt({vmw}) lgkmcnt(0)")
    a("s_barrier")
def k3_half2(a, nj, sig):
    for i in interleave(k3_mfmas(nj, SET[1]), k3_reads(nj, sig+1, 0, SET[0])): a(i)

def k3_consumer(a, nj, sig0, vmw, n=16):
    L = a.label("Lk3")
    a(f"s_mov_b32 s41, {(n-1)//3}")
    a(f"{L}:")
    for q in range(3):
        k3_half1(a, nj, sig0+q, vmw[q] if q < len(vmw) else None)
        k3_half2(a, nj, sig0+q)
    a("s_sub_u32 s41, s41, 1")
    a("s_cmp_lg_u32 s41, 0")
    a(f"s_cbranch_scc1 {L}")
    for q in range((n-1)//3*3, n-1):
        k3_half1(a, nj, sig0+q)
        k3_half2(a, nj, sig0+q)
    k3_half1(a, nj, sig0+n-1)


def k3_dma_setup(part, psg, vE=22, first=0):
    r = []
    if part == 0: r.append("s_lshl_b32 s43, s35, 8")
    else:
        r.append("s_mul_i32 s43, s35, 192")
        r.append("s_and_b32 s43, s43, 0xffffff80")
        r.append("s_add_u32 s43, s43, 4096")
    r.append(f"s_cmp_eq_u32 s{psg}, 1")
    r.append("s_cselect_b32 s8, s4, s6")
    r.append("s_cselect_b32 s9, s5, s7")
    r.append("s_sub_u32 s10, 7340032, s43")
    r.append("s_lshl_b32 s44, s34, 18")
    r.append(f"s_add_u32 s44, s44, {WS_H}")
    r.append("s_movk_i32 s38, 28672")
    r.append(f"s_cmp_eq_u32 s{psg}, 0")
    r.append("s_cselect_b32 s8, s32, s8")
    r.append("s_cselect_b32 s9, s33, s9")
    r.append("s_cselect_b32 s10, 262144, s10")
    r.append("s_cselect_b32 s43, s44, s43")
    r.append("s_cselect_b32 s38, 1024, s38")
    r.append("s_cselect_b32 s45, 0, -1")
    r.append("s_add_u32 s8, s8, s43")
    r.append("s_addc_u32 s9, s9, 0")
    r.append("s_mov_b32 s11, 0x20000")
    r.append("s_lshl_b32 s40, s38, 4")
    r.append(f"s_add_u32 s42, s35, {first + 15}")
    r.append(f"s_lshl_b32 s39, s{psg}, 14")
    r.append("v_lshrrev_b32 v19, 4, v1")
    r.append("v_lshlrev_b32 v20, 5, v19")
    r.append("v_mul_u32_u24 v19, 6912, v19")
    r.append("v_and_b32 v19, s45, v19")
    r.append("v_and_b32 v20, s45, v20")
    r.append("v_lshlrev_b32 v21, 4, v1")
    r.append("v_xor_b32 v21, v21, v20")
    r.append(f"v_add_u32 v{vE}, v21, v19")
    r.append("s_and_b32 s45, s45, 128")
    r.append(f"v_xor_b32 v{vE+1}, s45, v{vE}")
    return r

def k3_items(sig, vE=22):
    rg = (sig + 2) % 3
    r = [[f"s_add_u32 m0, s39, {rg*REG + j*1024}", "s_add_u32 s37, s37, s38",
          f"buffer_load_dwordx4 v{vE + (j & 1)}, s[8:11], s37 offen{XF} lds"] for j in range(16)]
    r[0] = ["s_add_u32 s42, s42, 1", "s_and_b32 s42, s42, 15", r[0][0], "s_mul_i32 s37, s42, s40", r[0][2]]
    return r

def g2_dma_setup(psg, A_off, A_mul, A_bytes, K, wreg, vA=21, hop=8):
    r = []
    r.append(f"s_mul_i32 s44, s34, {A_mul}")
    r.append(f"s_lshl_b32 s39, s{psg}, 13")
    r.append("s_add_u32 s44, s44, s39")
    r.append(f"s_add_u32 s44, s44, {A_off}")
    r.append("s_lshl_b32 s43, s35, 7")
    r.append(f"s_mov_b32 s10, {A_bytes - 8192}")
    r.append("s_movk_i32 s38, 1024")
    r.append("s_movk_i32 s40, 9216")
    r.append(f"s_cmp_eq_u32 s{psg}, 2")
    r.append(f"s_cselect_b32 s8, s{wreg}, s32")
    r.append(f"s_cselect_b32 s9, s{wreg+1}, s33")
    r.append(f"s_cselect_b32 s10, {K*2048 - 1920}, s10")
    r.append("s_cselect_b32 s43, s43, s44")
    r.append("s_cselect_b32 s38, 16384, s38")
    r.append(f"s_cselect_b32 s40, {hop*2048}, s40")
    r.append(f"s_cselect_b32 s55, {hop*2048}, s38")
    r.append("s_cselect_b32 s45, -1, 0")
    r.append("s_add_u32 s8, s8, s43")
    r.append("s_addc_u32 s9, s9, 0")
    r.append("s_mov_b32 s11, 0x20000")
    r.append("s_sub_u32 s37, 0, s40")
    r.append("v_lshrrev_b32 v19, 3, v1")
    r.append("v_mul_u32_u24 v19, 1920, v19")
    r.append("v_lshrrev_b32 v20, 4, v1")
    r.append("v_lshlrev_b32 v20, 5, v20")
    r.append("v_and_b32 v19, s45, v19")
    r.append("v_and_b32 v20, s45, v20")
    r.append(f"v_lshlrev_b32 v{vA}, 4, v1")
    r.append(f"v_xor_b32 v{vA}, v{vA}, v20")
    r.append(f"v_add_u32 v{vA}, v{vA}, v19")
    return r

def g2_items(slot, vA=21, wrows=None):
    r = []
    for k in range(8):
        if wrows is None: inc = f"s_add_u32 s37, s37, s{40 if k == 0 else 55 if k == 4 else 38}"
        else: inc = f"s_add_u32 s37, s37, {(wrows[k]*2048) & 0xffffffff}"
        r.append([f"s_add_u32 m0, s39, {slot*SLOT + k*1024}", inc, f"buffer_load_dwordx4 v{vA}, s[8:11], s37 offen{XF} lds"])
    return r

def wd_row(item):
    if item < 256:
        s, k = item >> 3, item & 7
        return 128*(s & 15) + 32*(s >> 4) + 64*(k >> 2) + 8*(k & 3)
    q = item - 256
    return 2048 + 96*(q // 12) + [0, 8, 16, 24, 48, 56, 64, 72, 32, 80, 40, 88][q % 12]


CSR = 48
TT = 80
def epi_reads(nj, csbase):
    rd = []
    rd.append("s_lshl_b32 s43, s46, 9")
    rd.append(f"s_add_u32 s43, s43, {STATS}")
    rd.append("v_lshl_add_u32 v19, v17, 3, s43")
    for tl in range(4): rd.append(f"ds_read_b64 v[{TT+2*tl}:{TT+2*tl+1}], v19 offset:{tl*128}")
    rd.append(f"s_mul_i32 s43, s47, {nj*64}")
    rd.append(f"s_add_u32 s43, s43, {CSF + csbase*4}")
    rd.append("v_lshl_add_u32 v19, v18, 4, s43")
    for mat in range(2):
        for j in range(nj):
            d = CSR + (mat*nj+j)*4
            rd.append(f"ds_read_b128 v[{d}:{d+3}], v19 offset:{mat*896 + j*64}")
    return rd
def epi_consts(KB, mean=True):
    c = []
    for tl in range(4):
        mn, rs = TT+2*tl, TT+2*tl+1
        if mean: c.append(f"v_mov_b32 v{KB+tl}, v{mn}")
        c.append(f"v_mul_f32 v{TT+8}, v{rs}, v{rs}")
        c.append(f"v_mul_f32 v{KB+4+tl}, {fh(C0_)}, v{rs}")
        c.append(f"v_mul_f32 v{TT+9}, {fh(C1_)}, v{rs}")
        c.append(f"v_rcp_f32 v{KB+12+tl}, v{TT+8}")
        c.append(f"v_mul_f32 v{KB+8+tl}, v{TT+9}, v{TT+8}")
    return c

def epi_group(nj, tl, j, out, KB, ln=True):
    G = k3_acc(nj, 0, j, tl); U = k3_acc(nj, 1, j, tl)
    cg = CSR + j*4; cu = CSR + (nj+j)*4
    KM, K0, K1, KI = KB+tl, KB+4+tl, KB+8+tl, KB+12+tl
    T = TT + 4*(j & 1)
    r = []
    if ln:
        for q in range(4): r.append(f"v_fma_f32 v{G+q}, -v{KM}, v{cg+q}, v{G+q}")
        for q in range(4): r.append(f"v_fma_f32 v{U+q}, -v{KM}, v{cu+q}, v{U+q}")
    for q in range(4): r.append(f"v_mul_f32 v{T+q}, v{G+q}, v{G+q}")
    for q in range(4): r.append(f"v_fma_f32 v{T+q}, v{T+q}, v{K1}, v{K0}")
    for q in range(4): r.append(f"v_mul_f32 v{T+q}, v{T+q}, v{G+q}")
    for q in range(4): r.append(f"v_exp_f32 v{T+q}, v{T+q}")
    for q in range(4): r.append(f"v_mul_f32 v{U+q}, v{G+q}, v{U+q}")
    for q in range(4): r.append(f"v_fma_f32 v{T+q}, v{T+q}, v{KI}, v{KI}")
    for q in range(4): r.append(f"v_rcp_f32 v{T+q}, v{T+q}")
    for q in range(4): r.append(f"v_mul_f32 v{U+q}, v{U+q}, v{T+q}")
    r.append(f"v_cvt_pk_bf16_f32 v{out}, v{U}, v{U+1}")
    r.append(f"v_cvt_pk_bf16_f32 v{out+1}, v{U+2}, v{U+3}")
    return r

ST = "#ST "
KA, KBB = 32, 224
def epi_a():
    r = []
    for q in range(2):
        for tl in range(4):
            o = 96 + 4*tl
            r += epi_group(4, tl, 2*q, o, KA) + epi_group(4, tl, 2*q+1, o+2, KA)
            r.append(ST + f"{q}buffer_store_dwordx4 v[{o}:{o+3}], v27, s[24:27], {'s53' if q else '0'} offen offset:{tl*256} sc1")
    return r
def epi_b():
    r = []
    for tp in range(2):
        lo = 112 + 4*tp
        for tl in (2*tp, 2*tp+1):
            o = 96 + 4*tl
            r += epi_group(3, tl, 0, o, KBB, False) + epi_group(3, tl, 1, o+2, KBB, False)
            r.append(ST + f"0buffer_store_dwordx4 v[{o}:{o+3}], v27, s[24:27], 0 offen offset:{tl*256} sc1")
            r += epi_group(3, tl, 2, lo + 2*(tl & 1), KBB, False)
        r.append("s_nop 1")
        r.append(f"v_permlane32_swap_b32 v{lo}, v{lo+2}")
        r.append(f"v_permlane32_swap_b32 v{lo+1}, v{lo+3}")
        r.append(ST + f"0buffer_store_dwordx4 v[{lo}:{lo+3}], v28, s[24:27], 0 offen offset:{tp*512} sc1")
    return r

def epi_store_setup(part):
    r = []
    r.append(f"s_mul_i32 s43, s34, {HH_M}")
    r.append(f"s_mul_i32 s44, s35, {16384 if part == 0 else 24576}")
    r.append("s_add_u32 s43, s43, s44")
    r.append(f"s_add_u32 s43, s43, {WS_HH + (0 if part == 0 else 524288)}")
    r.append("s_add_u32 s24, s32, s43")
    r.append("s_addc_u32 s25, s33, 0")
    r.append(f"s_mov_b32 s26, {262144 + 16384 if part == 0 else 24576}")
    r.append("s_mov_b32 s27, 0x20000")
    r.append("s_mov_b32 s53, 262144")
    r.append("s_lshl_b32 s43, s47, 13")
    r.append("s_lshl_b32 s44, s46, 10")
    r.append("s_add_u32 s43, s43, s44")
    r.append("v_lshlrev_b32 v19, 11, v18")
    r.append("v_lshl_add_u32 v19, v17, 4, v19")
    r.append("v_add_u32 v27, s43, v19")
    if part == 1:
        r.append("s_lshl_b32 s43, s47, 12")
        r.append("s_add_u32 s43, s43, s44")
        r.append("s_add_u32 s43, s43, 16384")
        r.append("v_and_b32 v19, 1, v18")
        r.append("v_lshlrev_b32 v19, 11, v19")
        r.append("v_lshrrev_b32 v20, 1, v18")
        r.append("v_lshl_add_u32 v19, v20, 8, v19")
        r.append("v_lshl_add_u32 v19, v17, 4, v19")
        r.append("v_add_u32 v28, s43, v19")
    return r

STRIP = os.environ.get("STRIP", "").split(",")
def strip(lst, key):
    return [("s_nop 0" if key in STRIP else i) for i in lst]
_k3_mfmas, _k3_reads, _k3_items, _g2_mfmas, _g2_reads, _g2_items = k3_mfmas, k3_reads, k3_items, g2_mfmas, g2_reads, g2_items
def k3_mfmas(*x): return strip(_k3_mfmas(*x), "m3")
def k3_reads(*x): return strip(_k3_reads(*x), "r3")
def g2_mfmas(*x): return strip(_g2_mfmas(*x), "m4")
def g2_reads(*x): return strip(_g2_reads(*x), "r4")
def k3_items(*x, **k):
    r = _k3_items(*x, **k)
    if "d3" in STRIP: r = [g[:-1] + ["s_nop 0 ;buffer_load lds"] for g in r]
    if "h3" in STRIP: r[0][3] = "s_mov_b32 s37, 0"
    return r
def g2_items(*x, **k):
    r = _g2_items(*x, **k)
    if "d4" in STRIP: r = [g[:2] + ["s_nop 0 ;buffer_load lds"] for g in r]
    if "h4" in STRIP: r[0][1] = "s_mov_b32 s37, 0x20000"
    return r


T1 = env("T1", 4); LB = env("LB", 6)
A0B = (16 - T1)//2
PA1 = T1 + A0B; PB = PA1 + 8; EB4 = PB + LB; NP4 = EB4 + 24 - 2*LB
assert T1 % 2 == 0 and LB % 3 == 0
SX, SW = [32, 96], [64, 160]
AK, AS, RECV = 128, 192, 224
def both(pos): return T1 <= pos < EB4
def k4_stage_of(pos, kh):
    if pos < T1: return pos
    if pos < PA1: return T1 + A0B*kh + pos - T1
    if pos < PB: return 16 + 8*kh + pos - PA1
    if pos < EB4: return 32 + LB*kh + pos - PB
    return 32 + 2*LB + pos - EB4
def k4_addrs():
    r = []
    r.append("v_lshlrev_b32 v19, 11, v18")
    r.append("v_lshl_add_u32 v19, v17, 4, v19")
    r.append("s_lshl_b32 s43, s46, 10")
    r.append("v_add_u32 v2, s43, v19")
    r.append("v_add_u32 v3, 0x10000, v2")
    r.append("v_lshrrev_b32 v19, 2, v17")
    r.append("v_lshl_add_u32 v20, v18, 2, v19")
    r.append("v_bfe_u32 v21, v20, 1, 2")
    r.append("s_lshl_b32 s43, s47, 1")
    r.append("v_xor_b32 v21, s43, v21")
    r.append("v_lshlrev_b32 v20, 7, v20")
    r.append("v_lshl_add_u32 v20, v21, 5, v20")
    r.append("v_and_b32 v19, 3, v1")
    r.append("v_lshl_add_u32 v20, v19, 3, v20")
    r.append("v_add_u32 v5, 16384, v20")
    r.append("v_xor_b32 v6, 32, v5")
    r.append("v_add_u32 v7, 0x10000, v5")
    r.append("v_add_u32 v8, 0x10000, v6")
    r.append("s_lshl_b32 s43, s36, 13")
    r.append("v_lshl_add_u32 v9, v1, 4, s43")
    r.append("s_mov_b32 s54, 0x10000")
    r.append("s_movk_i32 s52, 0x1000")
    return r
def k4_reads(pos):
    slot = (pos + 2) % 4; hi, so = slot >> 1, (slot & 1)*32768
    bx, bw = SX[pos & 1], SW[pos & 1]
    def xr(kb, tl): return f"ds_read_b128 v[{bx+(kb*4+tl)*4}:{bx+(kb*4+tl)*4+3}], v{2+hi} offset:{so + kb*8192 + tl*256}"
    def wr(c, kb, e, h):
        d = bw + ((c*2+kb)*2+e)*4 + 2*h
        return f"ds_read_b64_tr_b16 v[{d}:{d+1}], v{5+2*hi+e} offset:{so + c*8192 + kb*4096 + h*2048}"
    r = []
    for kb in range(2):
        w = [wr(c, kb, e, h) for c in range(2 if both(pos) else 1) for e in range(2) for h in range(2)]
        r += interleave(w, [xr(kb, tl) for tl in range(4)])
    return strip(r, "r4")
def k4_mfmas(pos):
    bx, bw = SX[pos & 1], SW[pos & 1]
    r = []
    for kb in range(2):
        for tl in range(4):
            for c in range(2 if both(pos) else 1):
                for e in range(2):
                    acc = (AS if c else AK) + (tl*2+e)*4
                    w = bw + ((c*2+kb)*2+e)*4; x = bx + (kb*4+tl)*4
                    r.append(f"v_mfma_f32_16x16x32_bf16 v[{acc}:{acc+3}], v[{w}:{w+3}], v[{x}:{x+3}], v[{acc}:{acc+3}]")
    return strip(r, "m4")
def k4_stage(a, pos, pre=None, extra=[]):
    a("s_waitcnt lgkmcnt(0)" if pre is None else f"s_waitcnt vmcnt({pre}) lgkmcnt(0)")
    a("s_barrier")
    rd = k4_reads(pos+1) if pos + 1 < NP4 else []
    seq = interleave(k4_mfmas(pos), rd)
    if extra: seq = seq[:8] + spread(seq[8:], [[i] for i in extra])
    for i in seq: a(i)
def k4_dma_setup(first, vA=21):
    r = []
    r.append(f"s_mul_i32 s44, s34, {HH_M}")
    r.append("s_lshl_b32 s39, s51, 13")
    r.append("s_add_u32 s44, s44, s39")
    r.append(f"s_add_u32 s44, s44, {WS_HH}")
    r.append("s_and_b32 s43, s51, 1")
    r.append("s_xor_b32 s43, s43, s35")
    r.append("s_lshl_b32 s43, s43, 7")
    r.append(f"s_mov_b32 s10, {HH_M - 8192}")
    r.append("s_movk_i32 s38, 1024")
    r.append("s_movk_i32 s40, 9216")
    r.append("s_movk_i32 s37, 0x4000")
    r.append("s_cmp_ge_u32 s51, 2")
    r.append("s_cselect_b32 s8, s60, s32")
    r.append("s_cselect_b32 s9, s61, s33")
    r.append(f"s_cselect_b32 s10, {3584*2048 - 1920}, s10")
    r.append("s_cselect_b32 s43, s43, s44")
    r.append("s_cselect_b32 s38, 16384, s38")
    r.append(f"s_cselect_b32 s40, {40*2048}, s40")
    r.append(f"s_cselect_b32 s55, {40*2048}, s38")
    r.append(f"s_cselect_b32 s37, {128*2048}, s37")
    r.append("s_cselect_b32 s45, -1, 0")
    r.append("s_add_u32 s8, s8, s43")
    r.append("s_addc_u32 s9, s9, 0")
    r.append("s_mov_b32 s11, 0x20000")
    r.append("s_and_b32 s53, s35, 1")
    r.append(f"s_mul_i32 s54, s53, {A0B}")
    r.append("s_mul_i32 s54, s54, s37")
    r.append(f"s_mul_i32 s29, s53, {8 - A0B}")
    r.append(f"s_add_u32 s29, s29, {A0B}")
    r.append("s_mul_i32 s29, s29, s37")
    r.append(f"s_and_b32 s43, s45, {((32 - 2048)*2048) & 0xffffffff}")
    r.append("s_add_u32 s29, s29, s43")
    r.append(f"s_mul_i32 s37, s37, {first}")
    r.append("s_sub_u32 s37, s37, s40")
    r.append("v_lshrrev_b32 v19, 3, v1")
    r.append("v_mul_u32_u24 v19, 1920, v19")
    r.append("v_lshrrev_b32 v20, 4, v1")
    r.append("v_lshlrev_b32 v20, 5, v20")
    r.append("v_and_b32 v19, s45, v19")
    r.append("v_and_b32 v20, s45, v20")
    r.append(f"v_lshlrev_b32 v{vA}, 4, v1")
    r.append(f"v_xor_b32 v{vA}, v{vA}, v20")
    r.append(f"v_add_u32 v{vA}, v{vA}, v19")
    return r
def k4_items(pos, kind=None, vA=21):
    slot = (pos + 2) % 4
    r = []
    for k in range(8):
        if kind is None: inc = f"s_add_u32 s37, s37, s{40 if k == 0 else 55 if k == 4 else 38}"
        else:
            st = k4_stage_of(pos, 0)
            off = st*16384 + k*1024 if kind == 'x' else wd_row(8*st + k)*2048
            inc = f"s_add_u32 s37, s40, {off}" if pos < EB4 else f"s_mov_b32 s37, {off}"
        g = [f"s_add_u32 m0, s39, {slot*32768 + k*1024}", inc, f"buffer_load_dwordx4 v{vA}, s[8:11], s37 offen{XF} lds"]
        if "d4" in STRIP: g[2] = "s_nop 0 ;buffer_load lds"
        r.append(g)
    if kind is None and pos == T1: r[0] = ["s_add_u32 s37, s37, s54"] + r[0]
    if kind is None and pos == PA1: r[0] = ["s_add_u32 s37, s37, s29"] + r[0]
    return r


def emit(a, vm, seq, tag):
    for i in seq:
        if i.startswith(ST):
            a(i[len(ST)+1:]); vm.add("st" + i[len(ST)])
        else:
            a(i)
            if "buffer_load" in i and i.endswith("lds"): vm.add(tag)
            elif i.startswith("buffer_"): vm.add("x")

def st_last(seq):
    if not env("STLAST", 1): return seq
    return [i for i in seq if not i.startswith(ST)] + [i for i in seq if i.startswith(ST)]
def chunks(lst, n):
    return [lst[len(lst)*k//n:len(lst)*(k+1)//n] for k in range(n)]
def flat(g): return sum(g, [])
def last_with(cs, tag): return max(k for k, c in enumerate(cs) if any(i.startswith(ST + tag) for i in c))


def phase_234(a, Ld):
    PRIO = env("PRIO", 1)
    XSN = env("XSN", 1)
    XSIG = EB4 + XSN + env("XSD", 2); XRCV = NP4 - env("XRD", 3)
    LG1 = a.label("LG1")
    a(f"s_load_dwordx4 s[4:7], s[0:1], {KA_WG}")
    a(f"s_load_dwordx2 s[28:29], s[0:1], {KA_WO}")
    a(f"s_load_dwordx4 s[60:63], s[0:1], {KA_WD}")
    a(f"s_load_dwordx2 s[30:31], s[0:1], {KA_X}")
    lane_ig(a)
    a("s_lshr_b32 s46, s36, 1")
    a("s_and_b32 s46, s46, 1")
    a("s_and_b32 s47, s36, 1")
    a("s_and_b32 s51, s36, 3")
    a("s_waitcnt lgkmcnt(0)")
    a("s_cmp_ge_u32 s36, 4")
    a(f"s_cbranch_scc1 {LG1}")

    a("s_lshl_b32 s43, s34, 18")
    a("s_lshl_b32 s44, s35, 7")
    a("s_add_u32 s43, s43, s44")
    srd(a, 16, 30, 127*2048 + 128, add_lo=43)
    a("s_lshl_b32 s43, s36, 5")
    a("v_lshl_add_u32 v19, v17, 1, s43")
    a("v_lshlrev_b32 v19, 11, v19")
    a("v_lshl_add_u32 v23, v18, 3, v19")
    for tl in range(2):
        for t in range(4):
            d = 160 + (tl*4+t)*2
            a(f"buffer_load_dwordx2 v[{d}:{d+1}], v23, s[16:19], 0 offen offset:{tl*2048 + t*32}")
    for i in g2_addrs(): a(i)
    a("s_lshl_b32 s43, s34, 18")
    a("s_lshl_b32 s44, s35, 14")
    a("s_add_u32 s43, s43, s44")
    srd(a, 20, 32, 16384, add_lo=43, add_imm=WS_H)
    a("s_lshl_b32 s43, s34, 14")
    a("s_lshl_b32 s44, s35, 10")
    a("s_add_u32 s43, s43, s44")
    srd(a, 24, 32, 1024, add_lo=43, add_imm=WS_ST2)
    a("s_movk_i32 s50, 0x2000")
    a("s_mov_b32 s52, 0x3f803f80")
    a("v_lshrrev_b32 v19, 1, v18")
    a("v_lshl_add_u32 v19, v19, 4, v17")
    a("s_lshl_b32 s43, s36, 5")
    a("v_add_u32 v19, s43, v19")
    a("v_and_b32 v20, 1, v18")
    a("v_lshlrev_b32 v20, 2, v20")
    a("v_lshl_add_u32 v22, v19, 3, v20")
    a("s_waitcnt vmcnt(0)")
    for k in range(8):
        for h in range(2):
            a(f"v_lshlrev_b32 v{ACC+4*k+2*h}, 16, v{160+2*k+h}")
            a(f"v_and_b32 v{ACC+4*k+2*h+1}, 0xffff0000, v{160+2*k+h}")
    def o_first_setup():
        a("s_lshl_b32 s43, s34, 18")
        srd(a, 12, 32, 262144, add_lo=43, add_imm=WS_O)
        a("v_lshlrev_b32 v21, 4, v1")
        a("s_lshl_b32 s54, s36, 11")
    def o_first():
        for sg in range(2):
            for e in range(2):
                a(f"s_add_u32 m0, s54, {sg*SLOT + e*1024}")
                a(f"s_add_u32 s43, s54, {sg*16384 + e*1024}")
                a(f"buffer_load_dwordx4 v21, s[12:15], s43 offen{XF} lds")
    o_first_setup()
    a("s_barrier")
    o_first()
    a("s_waitcnt vmcnt(2)")
    a("s_barrier")
    stamp(a, 6)
    for i in g2_reads(0, SET[0]): a(i)
    g2_loop(a, 0, 16, 0, pres={0: 0, 1: None})
    stamp(a, 7)
    a("s_nop 4")
    P = 96
    for tl in range(2):
        for kb in range(2):
            o = P + (tl*2+kb)*4
            for hf in range(2):
                s = ACC + (tl*4 + 2*kb + hf)*4
                a(f"v_cvt_pk_bf16_f32 v{o+2*hf}, v{s}, v{s+1}")
                a(f"v_cvt_pk_bf16_f32 v{o+2*hf+1}, v{s+2}, v{s+3}")
            a(f"buffer_store_dwordx4 v[{o}:{o+3}], v2, s[20:23], {'s50' if kb else '0'} offen offset:{tl*256} sc1")
            a(f"ds_write_b128 v4, v[{o}:{o+3}] offset:{kb*8192 + tl*256}")
    for q in range(8):
        for tl in range(2):
            src = P + tl*8 + q
            a(f"v_dot2_f32_bf16 v{112+2*tl}, v{src}, s52, {'0' if q == 0 else 'v%d' % (112+2*tl)}")
            a(f"v_dot2_f32_bf16 v{113+2*tl}, v{src}, v{src}, {'0' if q == 0 else 'v%d' % (113+2*tl)}")
    a("s_nop 2")
    a("v_permlane32_swap_b32 v112, v114")
    a("v_permlane32_swap_b32 v113, v115")
    a("v_add_f32 v112, v112, v114")
    a("v_add_f32 v113, v113, v115")
    a("s_nop 1")
    a("v_permlane16_swap_b32 v112, v113")
    a("v_add_f32 v112, v112, v113")
    a("buffer_store_dword v112, v22, s[24:27], 0 offen sc1")
    a("s_waitcnt vmcnt(0) lgkmcnt(0)")
    a("s_barrier")
    Ls = a.label("Lsig")
    a("s_cmp_lg_u32 s36, 0")
    a(f"s_cbranch_scc1 {Ls}")
    flag_signal(a, 56, "h", 34, v=19)
    a(f"{Ls}:")
    stamp(a, 8)
    a("s_lshl_b32 s53, s47, 2")
    for i in k3_addrs(4, 53): a(i)
    for i in range(128): a(f"v_mov_b32 v{ACC+i}, 0")
    for i in k3_dma_setup(1, 51, first=2): a(i)
    for i in epi_store_setup(0): a(i)
    def out_setup():
        r = ["s_lshl_b32 s43, s34, 18", "s_lshl_b32 s44, s35, 7", "s_add_u32 s43, s43, s44",
             "s_add_u32 s16, s62, s43", "s_addc_u32 s17, s63, 0", f"s_mov_b32 s18, {127*2048 + 128}", "s_mov_b32 s19, 0x20000",
             "s_lshl_b32 s43, s46, 6", "v_lshl_add_u32 v19, v17, 1, s43", "v_lshlrev_b32 v19, 11, v19",
             "v_and_b32 v20, 1, v18", "v_lshl_add_u32 v19, v20, 5, v19", "v_lshrrev_b32 v20, 1, v18", "v_lshl_add_u32 v19, v20, 4, v19",
             "s_lshl_b32 s43, s47, 6", "v_add_u32 v28, s43, v19"]
        for d, flip in ((64, 0), (68, 1)):
            r += ["s_lshl_b32 s43, s34, 4", "s_add_u32 s43, s43, s35", f"s_xor_b32 s43, s43, {flip}", "s_lshl_b32 s43, s43, 15", f"s_add_u32 s43, s43, {WS_X}",
                  f"s_add_u32 s{d}, s32, s43", f"s_addc_u32 s{d+1}, s33, 0", f"s_mov_b32 s{d+2}, 32768", f"s_mov_b32 s{d+3}, 0x20000"]
        return r
    for i in out_setup(): a(i)
    def x_first_setup():
        a("s_lshl_b32 s43, s34, 18")
        srd(a, 12, 32, 262144, add_lo=43, add_imm=WS_H)
        a("v_lshlrev_b32 v21, 4, v1")
        a("s_lshl_b32 s54, s36, 11")
        for sg in (1, 2):
            a(f"s_add_u32 s43, s35, {sg}")
            a("s_and_b32 s43, s43, 15")
            a("s_lshl_b32 s43, s43, 14")
            a(f"s_add_u32 s{29+sg}, s43, s54")
    def x_first():
        for sg in (1, 2):
            for e in range(2):
                a(f"s_add_u32 m0, s54, {((sg+2) % 3)*REG + e*1024}")
                a(f"s_add_u32 s43, s{29+sg}, {e*1024}")
                a(f"buffer_load_dwordx4 v21, s[12:15], s43 offen{XF} lds")
    x_first_setup()
    for i in k3_reads(4, 0, 0, SET[0]): a(i)
    a("s_waitcnt lgkmcnt(0)")
    for i in interleave(k3_mfmas(4, SET[0]), k3_reads(4, 0, 1, SET[1])): a(i)
    a("s_waitcnt lgkmcnt(0)")
    for i in k3_mfmas(4, SET[1]): a(i)
    a("s_barrier")
    x_first()
    a("s_waitcnt vmcnt(2)")
    a("s_barrier")
    stamp(a, 9)
    if PRIO: a("s_setprio 1")
    for i in k3_reads(4, 1, 0, SET[0]): a(i)
    k3_consumer(a, 4, 1, [0], n=15)
    stamp(a, 10)
    EA = epi_a()
    if "e" in STRIP: EA = [i for i in EA if i.startswith(ST)]
    ea = chunks(EA, env("EA_N", 13))
    SIG_A0 = 16 + last_with(ea, "0") + 2
    SIG_A1 = 16 + last_with(ea, "1") + 2
    HL = SIG_A0 - 1
    assert 16 + len(ea) <= 31 and SIG_A0 <= 28 and HL <= 27 and SIG_A1 in (29, 30)
    L3h = a.label("L3h"); LK4 = a.label("LK4")
    RD = 192
    def resid_loads():
        r = ["v_lshlrev_b32 v19, 11, v18", "v_lshl_add_u32 v19, v17, 4, v19", "s_lshl_b32 s43, s46, 10", "s_lshl_b32 s44, s47, 13",
             f"v_add3_u32 v{RD+16}, v19, s43, 0", f"v_add_u32 v{RD+16}, s44, v{RD+16}"]
        for tl in range(4):
            r.append(f"buffer_load_dwordx4 v[{RD+4*tl}:{RD+4*tl+3}], v{RD+16}, s[20:23], 0 offen offset:{tl*256} sc1")
        return r
    def resid_unpack():
        r = []
        for k in range(4):
            for q in range(4):
                r.append(f"v_lshlrev_b32 v{ACC+8*k+2*q}, 16, v{RD+4*k+q}")
                r.append(f"v_and_b32 v{ACC+8*k+2*q+1}, 0xffff0000, v{RD+4*k+q}")
        return r
    extra = {HL: resid_loads(), 17: k4_addrs(), 29: resid_unpack(), 30: [f"v_mov_b32 v{AS+i}, 0" for i in range(32)]}
    assert HL + 2 <= 28 and HL > 19
    a("s_cmp_eq_u32 s36, 3")
    a(f"s_cbranch_scc1 {L3h}")
    for helper in (False, True):
        vm = VM(a)
        if helper: a(f"{L3h}:")
        m = k3_mfmas(4, SET[1])
        emit(a, vm, m if helper else spread(m, k3_items(18)), 18)
        if PRIO: a("s_setprio 0")
        emit(a, vm, epi_reads(4, 0) + ["s_waitcnt lgkmcnt(0)"] + epi_consts(KA), None)
        if helper and env("K3PF", 0):
            k3pf = K3PF(a, 1)
            k3pf.setup()
            for s in range(3, env("K3PD", 6)): k3pf.issue(s)
        a("s_barrier")
        if helper: stampc(a, "k3", 16)
        for sig in range(16, 31):
            body = (list(ea[sig-16]) if sig-16 < len(ea) else []) + extra.get(sig, [])
            if helper:
                if sig == SIG_A0: flag_signal(a, 56, "hha0", 34, v=21)
                if sig == SIG_A1: flag_signal(a, 56, "hha1", 34, v=22)
                if sig == 28: flag_poll_issue(a, 56, "hha0", 34, v=21)
                if env("K3PF", 0) and sig - 16 + env("K3PD", 6) < 16: k3pf.issue(sig - 16 + env("K3PD", 6))
                if env("K3_SPF", 1) and sig == env("S3C", 18):
                    sp = SPF3(a); sp.setup(1); sp.issue(8)
                if env("K4_SPF", 1) and sig == env("S4A", 25):
                    sp = SPF4(a); sp.setup(); sp.issue(0)
                if sig == 25 and env("K4PF", 0):
                    pf_w64(a, KA_WD, 3584, list(range(env("K4PF0", 0), env("K4PF", 0)//MX)), 80, 29, 30)
                assert T1 >= 4
                emit(a, vm, body, None)
                if sig == SIG_A0 - 1: a(vm.wait("st0"))
                if sig == SIG_A1 - 1: a(vm.wait("st1"))
                if sig == HL + 2: a(vm.wait("x"))
                if sig == 28: flag_poll_finish(a, 56, v=21)
            else:
                if sig + 3 <= 31:
                    emit(a, vm, st_last(spread(body, k3_items(sig+3), env("FR3", 100))), sig+3)
                else:
                    if sig == 29: emit(a, vm, k4_dma_setup(0), None)
                    emit(a, vm, spread(body, k4_items(sig - 29)), ("k4", sig - 29))
                w = vm.cnt(sig+2) if sig + 2 <= 31 else vm.cnt(("k4", 0))
                if sig == SIG_A0 - 1: w = min(w, vm.cnt("st0"))
                if sig == SIG_A1 - 1: w = min(w, vm.cnt("st1"))
                if sig == HL + 2: w = min(w, vm.cnt("x"))
                a(f"s_waitcnt vmcnt({w})")
            a("s_barrier")
            if helper: stampc(a, "k3", sig+1)
        if not helper: a(f"s_branch {LK4}")
    a(f"{LK4}:")
    stamp(a, 11)
    if PRIO: a("s_setprio 1")
    for i in k4_reads(0): a(i)
    a("s_mov_b32 s54, 0x10000")
    XB = env("XBF", 1)
    def xch(op, reg, sd, n=8):
        return [f"buffer_{op}_dwordx4 v[{reg+4*t}:{reg+4*t+3}], v9, s[{sd}:{sd+3}], {'s52' if t >= 4 else '0'} offen offset:{(t & 3)*1024} sc1" for t in range(n)]
    if XB:
        st_ = xch("store", RECV, 64, 4)
        xs = chunks([[f"v_cvt_pk_bf16_f32 v{RECV+4*tl+q}, v{AS+8*tl+2*q}, v{AS+8*tl+2*q+1}" for q in range(4)] + [st_[tl]] for tl in range(4)], XSN)
        xs = [flat(c) for c in xs]
        xl = xch("load", AS, 68, 4)
        xu = ["s_waitcnt vmcnt(0)"]
        for k in range(16): xu += [f"v_lshlrev_b32 v{RECV+2*k}, 16, v{AS+k}", f"v_and_b32 v{RECV+2*k+1}, 0xffff0000, v{AS+k}"]
    else:
        xs = chunks(xch("store", AS, 64), XSN); xl = xch("load", RECV, 68); xu = []
    pos = 0
    while pos < NP4:
        if pos == T1:
            nl = (EB4 - 1 - T1)//4
            L = a.label("Lk4")
            a(f"s_mov_b32 s41, {nl}")
            a(f"{L}:")
            for q in range(4): k4_stage(a, pos + q)
            a("s_sub_u32 s41, s41, 1")
            a("s_cmp_lg_u32 s41, 0")
            a(f"s_cbranch_scc1 {L}")
            pos += 4*nl
        k4_stage(a, pos, pre=0 if pos in (0, XSIG) else None,
                 extra=xs[pos - EB4] if EB4 <= pos < EB4 + XSN else xl if pos == XRCV else xu if pos == NP4 - 1 else [])
        pos += 1
    stamp(a, 12)
    a("s_waitcnt vmcnt(0)")
    a("s_nop 4")
    for tl in range(4):
        b = AK + 8*tl; o = 32 + 4*tl
        for q in range(0, 8, 2): a(f"v_pk_add_f32 v[{b+q}:{b+q+1}], v[{b+q}:{b+q+1}], v[{RECV+8*tl+q}:{RECV+8*tl+q+1}]")
        for q in range(4): a(f"v_cvt_pk_bf16_f32 v{o+q}, v{b+2*q}, v{b+2*q+1}")
    for tl in range(4):
        o = 32 + 4*tl
        a(f"v_permlane16_swap_b32 v{o}, v{o+2}")
        a(f"v_permlane16_swap_b32 v{o+1}, v{o+3}")
        a(f"buffer_store_dwordx4 v[{o}:{o+3}], v28, s[16:19], {'s54' if tl >= 2 else '0'} offen offset:{(tl & 1)*2048}")
    if STAMP:
        a("s_waitcnt vmcnt(0)")
        stamp(a, 13)
        stamp_flush(a)
    a(f"s_branch {Ld}")

    a(f"{LG1}:")
    L7 = a.label("L7"); LK3b = a.label("LK3b"); LP3 = a.label("LP3")
    a("s_cmp_eq_u32 s36, 7")
    a(f"s_cbranch_scc1 {L7}")
    for i in g2_dma_setup(51, WS_O, 262144, 262144, 1024, 28, vA=23): a(i)
    o_first_setup()
    Lp = [a.label("Lp") for _ in range(3)]
    for p in range(1, 3):
        a(f"s_cmp_eq_u32 s51, {p}")
        a(f"s_cbranch_scc1 {Lp[p]}")
    for p in range(3):
        a(f"{Lp[p]}:")
        vm = VM(a)
        def st2(s): emit(a, vm, flat(g2_items(s % 6, vA=23)), s)
        if p == 2:
            for s in range(6): st2(s)
        cs_spre(a, 3)
        if p == 0: flag_poll(a, 56, "o", 34, v=8)
        a("s_barrier")
        o_first(); vm.add(0, 2); vm.add(1, 2)
        if p < 2:
            a("s_add_u32 s37, s37, 32768")
            for s in range(2, 6): st2(s)
        a(vm.wait(0))
        a("s_barrier")
        for s in range(16):
            if s < 15: a(vm.wait(s+1))
            a("s_barrier")
            if s + 6 < 16: st2(s+6)
            rest = SPR - 3 - 2*(SPE - 2) - s*env("CS_RPS", 2)
            if rest > 0: cs_spre(a, min(rest, env("CS_RPS", 2)))
            if s == 10:
                for i in k3_dma_setup(0, 51): a(i)
            if s in (11, 13)[:env("EW", 2)] and p > 0:
                emit(a, vm, flat(k3_items((s-11)//2)), "w%d" % ((s-11)//2))
        if p > 0: a(vm.wait("w0"))
        a("s_barrier")
        if p == 0:
            a("s_add_u32 s42, s42, 3")
            flag_poll(a, 56, "h", 34, v=8)
        else:
            for w in range(env("EW", 2), 3): emit(a, vm, flat(k3_items(w)), "w")
        if p < 2: a(f"s_branch {LP3}")
    a(f"{LP3}:")
    SWD = env("SWD", 1)
    wd_base = ["s_mul_i32 s43, s2, 28672", "s_mul_i32 s44, s51, 7168", "s_add_u32 s43, s43, s44", "s_add_u32 s80, s60, s43", "s_addc_u32 s81, s61, 0"]
    def swd(sig, w7=False):
        n = 9 if sig <= 8 else 8 if 10 <= sig <= 12 else 7 if sig == 13 else 0
        if w7: n = 0 if sig in (6, 9) or sig > 12 else 11 if sig <= 8 else 8
        if not SWD or not n: return []
        return [f"s_load_dword s{64+q}, s[80:81], {64*q}" for q in range(n)] + [f"s_add_u32 s80, s80, {64*n}", "s_addc_u32 s81, s81, 0"]
    for i in wd_base: a(i)
    x_first_setup()
    a("s_barrier")
    x_first()
    for i in flat(k3_items(3)) + swd(0): a(i)
    a("s_waitcnt vmcnt(18)")
    a("s_barrier")
    a("s_waitcnt vmcnt(16)")
    a("s_barrier")
    def pst(sig, body=[], pre=[], post=[]):
        for i in pre + spread(body, k3_items(sig+3)) + post + swd(sig): a(i)
        a("s_waitcnt vmcnt(16)")
        a("s_barrier")
    L = a.label("Lp3")
    a("s_mov_b32 s41, 2")
    a(f"{L}:")
    for sig in range(1, 4): pst(sig)
    a("s_sub_u32 s41, s41, 1")
    a("s_cmp_lg_u32 s41, 0")
    a(f"s_cbranch_scc1 {L}")
    pst(7); pst(8)
    bs = ["s_and_b32 s53, s35, 1", "s_lshl_b32 s53, s53, 1", "s_mul_i32 s43, s47, 3", "s_add_u32 s53, s53, s43"] + k3_addrs(3, 53)
    binit = []
    for mat in range(2):
        for j in range(3):
            for tl in range(4):
                for q in range(4):
                    binit.append(f"v_mul_f32 v{k3_acc(3, mat, j, tl)+q}, -v{TT+2*tl}, v{CSR+(mat*3+j)*4+q}")
    bi = chunks(binit, 3)
    BODY = {9: bs + epi_reads(3, 128), 10: ["s_waitcnt lgkmcnt(0)"] + epi_consts(KBB, False), 11: bi[0], 12: bi[1], 13: bi[2]}
    k4set = k4_dma_setup(2)
    for sig in range(9, 15):
        pst(sig, BODY.get(sig, []), pre=k3_dma_setup(1, 51) if sig == 13 else [], post={14: k4set, 10: epi_store_setup(1)}.get(sig, []))
    a(f"s_branch {LK3b}")

    a(f"{L7}:")
    NB2 = 19
    Lno = a.label("Lnojob"); Lcs = a.label("Lcsd")
    stampc(a, "k2", 0)
    cs_setup(a, Lno, 64, 4)
    a("s_lshl_b32 s55, s45, 1")
    a("s_add_u32 s55, s55, s44")
    a("s_mul_i32 s55, s55, 14336")
    a("s_lshl_b32 s45, s46, 9")
    a("s_add_u32 s55, s55, s45")
    a("v_lshl_add_u32 v5, v5, 5, s55")
    srd(a, 72, 32, 8*14336, add_imm=WS_CS)
    for i in range(8): a(f"v_mov_b32 v{32+i}, 0")
    NF = CS_NF
    a("s_mov_b32 s52, 0x00003f80")
    a("s_mov_b32 s53, 0x3f800000")
    def proc(n):
        for d in range(4):
            for h in range(2):
                a(f"v_dot2_f32_bf16 v{32+2*d+h}, v{128+4*(n % NF)+d}, s{52+h}, v{32+2*d+h}")
    def mpf():
        if env("MPF", 0):
            a("s_mul_i32 s43, s2, 28672")
            srd(a, 76, 60, 28672, add_lo=43)
            a("v_lshlrev_b32 v19, 7, v1")
            for q in range(4):
                a(f"s_mov_b32 s43, {q*8192}")
                a("buffer_load_dword v30, v19, s[76:79], s43 offen")
    if STAMPC != "k1": cs_spre(a, 2, 82, 6)
    for n in range(NF): proc(n)
    o_first_setup()
    CL0 = env("CS_L0", 1); CLN = env("CS_LN", 4); CPD = env("CS_PD", 5)
    lim = 2*(SPE - 2) + 3 + env("CS_LIM", 99)
    early = [q for q in range(NF) if all((4*q + r) % SPR < lim for r in range(4))]
    early.sort(key=lambda q: max(max(0, (4*q + r) % SPR - 2*(SPE - 2) - 2) for r in range(4)))
    early = early[:len(early)//CLN*CLN]
    late = [q for q in range(NF) if q not in early]
    nl = len(early)//CLN
    assert CL0 + nl + CPD <= 17
    def ld2(slot, q):
        a(f"s_mov_b32 s43, {(NF + q)*4*7168}")
        a(f"buffer_load_dwordx4 v[{128+4*slot}:{128+4*slot+3}], v4, s[64:67], s43 offen")
    def cs_finish():
        a("s_nop 2")
        for sw in ("16", "32"):
            for d in range(8): a(f"v_mov_b32 v{40+d}, v{32+d}")
            a("s_nop 0")
            for d in range(8): a(f"v_permlane{sw}_swap_b32 v{32+d}, v{40+d}")
            for d in range(8): a(f"v_add_f32 v{32+d}, v{32+d}, v{40+d}")
        a("s_mov_b64 exec, 0xffff")
        a("buffer_store_dwordx4 v[32:35], v5, s[72:75], 0 offen sc1")
        a("buffer_store_dwordx4 v[36:39], v5, s[72:75], 0 offen offset:16 sc1")
        a("s_mov_b64 exec, -1")
    for q in range(NB2):
        st = q - 3
        if q == 1:
            o_first()
            a("s_waitcnt vmcnt(2)")
        if q == 2: a("s_waitcnt vmcnt(0)")
        if CL0 <= st < CL0 + nl:
            for n in range(CLN): ld2((st-CL0)*CLN + n, early[(st-CL0)*CLN + n])
        if CL0 + CPD <= st < CL0 + CPD + nl:
            b = st - CL0 - CPD
            a(f"s_waitcnt vmcnt({CLN*min(CPD, nl - 1 - b)})")
            for n in range(CLN): proc(b*CLN + n)
        if not late and st == CL0 + CPD + nl - 1: cs_finish()
        if st == env("CS_LT", 16) - 1:
            for n, qq in enumerate(late): ld2(len(early) + n, qq)
        a("s_barrier")
        stampc(a, "k2", q+1)
    if env("CS_LT", 16) > 16:
        for n, qq in enumerate(late): ld2(len(early) + n, qq)
    if late:
        a("s_waitcnt vmcnt(0)")
        for n in range(len(late)): proc(len(early) + n)
        cs_finish()
    a("s_waitcnt vmcnt(0)")
    flag_signal(a, 56, "cs", None, v=12)
    mpf()
    a(f"s_branch {Lcs}")
    a(f"{Lno}:")
    o_first_setup()
    for q in range(NB2):
        if q == 1:
            o_first()
            a("s_waitcnt vmcnt(2)")
        if q == 2: a("s_waitcnt vmcnt(0)")
        a("s_barrier")
        stampc(a, "k2", q+1)
    mpf()
    a(f"{Lcs}:")
    a("s_mov_b32 s46, 1")
    x_first_setup()
    k3pf = K3PF(a, 0)
    PD = env("K3PD", 6)
    if env("K3PF", 0) or env("K3PF0", 0):
        k3pf.setup()
        for s in range(3, max(PD, env("K3PF0", 0))): k3pf.issue(s)
    S3 = env("K3_SPF", 1); S4 = env("K4_SPF", 1)
    sp3 = SPF3(a)
    if S3:
        sp3.setup(0); sp3.issue(3)
    a("s_lshl_b32 s43, s34, 14")
    srd(a, 64, 32, 16384, add_lo=43, add_imm=WS_ST2)
    srd(a, 72, 32, 8*14336, add_imm=WS_CS)
    a("s_barrier")
    stampc(a, "k2", 20)
    x_first()
    a("s_waitcnt vmcnt(2)")
    a("s_barrier")
    stampc(a, "k2", 21)
    stampc(a, "k3", 31)
    stampc(a, "k3", 0)
    def w7dst(i):
        if not i.startswith("s_load_dword"): return i
        q = int(i.split()[1][1:-1]) - 64
        return i.replace(f"s{64+q},", f"s{82 + q % 6},")
    STL = env("STL", 1); CSP = STL + 3
    for sig in range(15):
        if sig == 0:
            a("s_waitcnt vmcnt(0)")
        if S3 and sig == env("S3A", 5): sp3.issue(8)
        if S3 and sig == env("S3B", 10):
            sp3.setup(1); sp3.issue(0)
        if sig == STL + 1: flag_poll_issue(a, 56, "cs", None, v=12)
        if sig == STL:
            for n in range(16):
                a(f"s_mov_b32 s43, {n*1024}")
                a(f"buffer_load_dwordx4 v[{128+4*n}:{128+4*n+3}], v21, s[64:67], s43 offen sc1")
        if env("K3PF", 0) and sig >= 1:
            if sig + PD - 1 < 16: k3pf.issue(sig + PD - 1)
            elif sig + PD - 1 == 16:
                k3pf.part = 1; k3pf.setup()
            if 16 <= sig + PD - 1 < 19: k3pf.issue(sig + PD - 1 - 16)
        if sig == CSP:
            flag_poll_finish(a, 56, v=12)
            a("v_min_u32 v12, 55, v1")
            a("v_lshlrev_b32 v13, 4, v12")
            a("s_lshl_b32 s43, s35, 9")
            a("s_mul_i32 s44, s35, 384")
            a(f"s_add_u32 s44, s44, {8192 - 512}")
            a("v_mov_b32 v14, s44")
            a("v_mov_b32 v15, s43")
            a("v_cmp_gt_u32 vcc, 32, v12")
            a("s_nop 1")
            a("v_cndmask_b32 v14, v14, v15, vcc")
            a("v_add_u32 v14, v14, v13")
            a(f"v_add_u32 v13, {CSF}, v13")
            for mat in range(2):
                for sl in range(4):
                    d = 192 + (mat*4+sl)*4
                    a(f"s_mov_b32 s43, {(sl*2+mat)*14336}")
                    a(f"buffer_load_dwordx4 v[{d}:{d+3}], v14, s[72:75], s43 offen sc1")
        if sig == CSP + 1:
            for n in range(1, 16):
                for q in range(4): a(f"v_add_f32 v{128+q}, v{128+q}, v{128+4*n+q}")
            for b in (128, 130):
                a(f"v_mul_f32 v{b}, 0x3a800000, v{b}")
                a(f"v_mul_f32 v{b+1}, 0x3a800000, v{b+1}")
                a(f"v_fma_f32 v{b+1}, -v{b}, v{b}, v{b+1}")
                a(f"v_max_f32 v{b+1}, 0, v{b+1}")
                a(f"v_add_f32 v{b+1}, 0x3727c5ac, v{b+1}")
                a(f"v_rsq_f32 v{b+1}, v{b+1}")
            a(f"v_add_u32 v19, {STATS}, v21")
            a("ds_write_b128 v19, v[128:131]")
        if sig == CSP + 3:
            a("s_waitcnt vmcnt(0)")
            for mat in range(2):
                b = 192 + mat*16
                for q in range(4):
                    a(f"v_add_f32 v{b+q}, v{b+q}, v{b+4+q}")
                    a(f"v_add_f32 v{b+8+q}, v{b+8+q}, v{b+12+q}")
                for q in range(4): a(f"v_add_f32 v{b+q}, v{b+q}, v{b+8+q}")
                a(f"ds_write_b128 v13, v[{b}:{b+3}] offset:{mat*896}")
            a("s_waitcnt lgkmcnt(0)")
            assert sig < 9
        for i in BODY.get(sig, []) + (epi_store_setup(1) if sig == 10 else []) + (wd_base if sig == 0 else []) + (k4set if sig == 14 else []): a(i)
        assert CSP + 2 == 6
        if STAMPC != "k3":
            for i in swd(sig, True): a(w7dst(i))
        a("s_barrier")
        stampc(a, "k3", sig+1)

    a(f"{LK3b}:")
    stamp(a, 10)
    if PRIO: a("s_setprio 1")
    for i in k3_reads(3, 16, 0, SET[0]): a(i)
    k3_consumer(a, 3, 16, [0])
    stamp(a, 11)
    EB = epi_b()
    if "e" in STRIP: EB = [i for i in EB if i.startswith(ST)]
    eb = chunks(EB, env("EB_N", 8))
    SIG_B = last_with(eb, "0") + env("SIGB_D", 2)
    POLL_A1 = PA1 - 5; POLL_B = PB - 5
    UNI = PB - 4
    assert len(eb) <= UNI and SIG_B < POLL_B
    L7b = a.label("L7b")
    a("s_cmp_eq_u32 s36, 7")
    a(f"s_cbranch_scc1 {L7b}")
    for helper in (False, True):
        vm = VM(a)
        if helper: a(f"{L7b}:")
        m = k3_mfmas(3, SET[1])
        if helper:
            emit(a, vm, m, None)
            a(f"s_mul_i32 s43, s38, {16*(T1-2)}")
            a("s_add_u32 s37, s37, s43")
        else:
            emit(a, vm, spread(m[:12], k4_items(2)), 2)
            emit(a, vm, spread(m[12:], k4_items(3)), 3)
        if PRIO: a("s_setprio 0")
        a("s_barrier")
        if helper: stampc(a, "k4", 0 - env("K4O", 0))
        def pslice(s, kind):
            body = eb[s] if s < len(eb) else []
            dma = both(s + 4) if helper else s + 4 < NP4
            if helper:
                if s == SIG_B: flag_signal(a, 56, "hhb", 34, v=10); vm.add("f")
                if s == POLL_A1 - env("PLA", 2): flag_poll_issue(a, 56, "hha1", 34, v=10); vm.add("p")
                if s == POLL_B - env("PLB", 2): flag_poll_issue(a, 56, "hhb", 34, v=10); vm.add("p")
                if env("K4_SPF", 1):
                    if s == 0: sp4.setup()
                    for G, at in ((1, PA1 - env("S4B", 9)), (2, PB - env("S4C", 8)), (3, EB4 - env("S4D", 4))):
                        if s == at: sp4.issue(G); vm.add("f")
                if s == XSIG:
                    xflag_addr(a, 10, 0)
                    a("v_mov_b32 v11, 1")
                    a("s_mov_b64 exec, 1")
                    a("buffer_store_dword v11, v10, s[56:59], 0 offen sc1"); vm.add("f")
                    a("s_mov_b64 exec, -1")
                if s == XRCV - 1 - env("PLX", 2):
                    xflag_addr(a, 10, 1)
                    a("v_mov_b32 v12, 1")
                    a("buffer_load_dword v11, v10, s[56:59], 0 offen sc1"); vm.add("p")
            if s == UNI: a(f"s_mul_i32 s40, s53, {LB*16384 if kind == 'x' else LB*64*2048}")
            emit(a, vm, st_last(spread(body, k4_items(s+4, kind if s >= UNI else None), env("FR4", 100))) if dma else body, s+4)
            w = vm.cnt(s+2) if (both(s + 2) if helper else s + 2 < NP4) else 63
            if s == SIG_B - 1: w = min(w, vm.cnt("st0"))
            if w < 63: a(f"s_waitcnt vmcnt({w})")
            if helper and s in (POLL_A1, POLL_B, XRCV - 1): flag_poll_finish(a, 56, v=10, first=vm.cnt("p"))
            a("s_barrier")
            if helper: stampc(a, "k4", s+1 - env("K4O", 0))
        if helper:
            sp4 = SPF4(a)
            for s in range(NP4 - 1 if STAMPC == "k4" else XRCV): pslice(s, 'w')
            stamp(a, 12)
            stamp_flush(a)
            a(f"s_branch {Ld}")
        else:
            for s in range(UNI): pslice(s, None)
            LW = a.label("LW4")
            a("s_cmp_eq_u32 s51, 2")
            a(f"s_cbranch_scc1 {LW}")
            q0 = list(vm.q)
            for kind in ('x', 'w'):
                vm.q = list(q0)
                if kind == 'w': a(f"{LW}:")
                for s in range(UNI, NP4 - 2): pslice(s, kind)
                if STAMP:
                    stamp(a, 12)
                    stamp_flush(a)
                a(f"s_branch {Ld}")


NXS = 32 // MX
class XPF:
    G = NXS // 2
    def __init__(self, a, off, mul, sd=68, v=23):
        self.a = a; self.off = off; self.mul = mul; self.sd = sd; self.v = v
    def setup(self):
        a = self.a; v = self.v
        per = 128 // NXS
        a(f"s_mul_i32 s43, s34, {self.mul}")
        srd(a, self.sd, 32, self.mul, add_lo=43, add_imm=self.off)
        a(f"v_and_b32 v{v}, {per-1}, v1")
        a(f"s_mul_i32 s43, s49, {per}")
        a(f"v_add_u32 v{v}, s43, v{v}")
        a(f"v_lshlrev_b32 v{v}, 7, v{v}")
        a(f"v_lshrrev_b32 v19, {per.bit_length()-1}, v1")
        a(f"v_lshl_add_u32 v{v}, v19, 14, v{v}")
    def issue(self, st):
        a = self.a
        a(f"s_mov_b32 s43, {st*16384}")
        a(f"buffer_load_dword v30, v{self.v}, s[{self.sd}:{self.sd+3}], s43 offen sc1")


class K3PF:
    def __init__(self, a, part): self.a = a; self.part = part
    def setup(self):
        a = self.a
        if self.part == 0: a("s_lshl_b32 s43, s35, 8")
        else:
            a("s_mul_i32 s43, s35, 192")
            a("s_and_b32 s43, s43, 0xffffff80")
            a("s_add_u32 s43, s43, 4096")
        a("s_sub_u32 s44, 7340032, s43")
        for d, b in ((88, 4), (92, 6)):
            a(f"s_add_u32 s{d}, s{b}, s43")
            a(f"s_addc_u32 s{d+1}, s{b+1}, 0")
            a(f"s_mov_b32 s{d+2}, s44")
            a(f"s_mov_b32 s{d+3}, 0x20000")
        per = 64 // MX
        a("v_lshrrev_b32 v31, 1, v1")
        a(f"v_min_u32 v31, {min(per, 32)-1}, v31")
        a(f"s_mul_i32 s43, s48, {per}")
        a("v_add_u32 v31, s43, v31")
        a("v_mul_u32_u24 v31, 7168, v31")
        a("v_and_b32 v19, 1, v1")
        a("v_lshl_add_u32 v31, v19, 7, v31")
    def issue(self, st):
        a = self.a
        a(f"s_mov_b32 s43, {st*64*7168}")
        a("buffer_load_dword v30, v31, s[88:91], s43 offen")
        a("buffer_load_dword v30, v31, s[92:95], s43 offen")


class SPF3:
    def __init__(self, a): self.a = a
    def setup(self, part):
        a = self.a
        for d, b in ((88, 4), (92, 6)): srd(a, d, b, 7340032)
        a("s_lshr_b32 s43, s35, 3")
        a("v_and_b32 v19, 1, v1")
        a("v_bfe_u32 v23, v1, 2, 3")
        if part == 0:
            a("s_lshl_b32 s44, s43, 3")
            a("s_add_u32 s44, s44, 1")
            a("v_lshl_add_u32 v23, v19, 2, v23")
            a("v_add_u32 v23, s44, v23")
            a("s_lshl_b32 s43, s43, 11")
            a("s_add_u32 s43, s43, 384")
            a("s_movk_i32 s44, 1024")
        else:
            a("s_mul_i32 s44, s43, 10")
            a("s_add_u32 s44, s44, 2")
            a("v_add_u32 v23, s44, v23")
            a("s_lshl_b32 s44, s43, 2")
            a("s_sub_u32 s44, 5, s44")
            a("v_mad_u32_u24 v23, v19, s44, v23")
            a("s_lshl_b32 s44, s43, 10")
            a("s_xor_b32 s44, s44, 1024")
            a("s_lshl_b32 s43, s43, 11")
            a(f"s_add_u32 s43, s43, {35*128}")
        a("s_lshr_b32 s45, s2, 3")
        a("s_mul_i32 s45, s45, 14336")
        a("s_add_u32 s43, s43, s45")
        a("v_mul_lo_u32 v31, v19, s44")
        a("v_bfe_u32 v19, v1, 1, 1")
        a("v_mul_u32_u24 v19, 7168, v19")
        a("v_add3_u32 v31, v31, v19, s43")
    def issue(self, st):
        a = self.a
        a(f"v_add_u32 v19, {st}, v23")
        a("v_and_b32 v19, 15, v19")
        a(f"v_mul_u32_u24 v19, {64*7168}, v19")
        a("v_add_u32 v19, v19, v31")
        a("buffer_load_dword v30, v19, s[88:91], 0 offen")
        a("buffer_load_dword v30, v19, s[92:95], 0 offen")


class SPF4:
    def __init__(self, a): self.a = a
    def setup(self):
        a = self.a
        srd(a, 80, 60, 7340032)
        a("v_and_b32 v29, 31, v1")
        a("v_lshlrev_b32 v29, 11, v29")
        a("s_and_b32 s43, s35, 8")
        a("s_or_b32 s43, s43, 3")
        a("s_lshl_b32 s43, s43, 7")
        a("v_add_u32 v29, s43, v29")
    def issue(self, G):
        a = self.a
        a("s_lshr_b32 s44, s2, 3")
        if G == 3: a("s_and_b32 s44, s44, 15")
        a(f"s_lshl_b32 s44, s44, {17 if G < 2 else 16}")
        a(f"s_add_u32 s43, s44, {[0, 32, 2048, 3072][G]*2048}")
        a("buffer_load_dword v30, v29, s[80:83], s43 offen")
```

```python
WS_O   = 0
WS_H   = 4 << 20
WS_HH  = 8 << 20
WS_ST2 = 24 << 20
WS_ST1 = 25 << 20
WS_CS  = 26 << 20
WS_BYTES = 268435456

KA_X, KA_WQKV, KA_WO, KA_BX, KA_WG, KA_WU, KA_WD, KA_OUT, KA_DBG, KA_WS = [8*i for i in range(10)]


class Asm:
    def __init__(self):
        self.L = []
        self.uid = 0
    def __call__(self, s):
        for line in s.split("\n"):
            line = line.strip()
            if line:
                self.L.append(line)
    def label(self, base="L"):
        self.uid += 1
        return f"{base}_{self.uid}"
    def comment(self, s):
        self.L.append("; " + s)
    def text(self):
        return "\n".join(self.L) + "\n"


def kernel_header(a, name):
    a(f".globl {name}")
    a(".p2align 8")
    a(f".type {name},@function")
    a(f"{name}:")


def kernel_desc(name, vgpr, sgpr, accum):
    return f""".p2align 6
.amdhsa_kernel {name}
  .amdhsa_next_free_vgpr {vgpr}
  .amdhsa_next_free_sgpr {sgpr}
  .amdhsa_accum_offset {accum}
  .amdhsa_group_segment_fixed_size 0
  .amdhsa_kernarg_size 80
  .amdhsa_user_sgpr_count 2
  .amdhsa_user_sgpr_kernarg_segment_ptr 1
  .amdhsa_system_sgpr_workgroup_id_x 1
  .amdhsa_float_denorm_mode_32 3
  .amdhsa_float_denorm_mode_16_64 3
.end_amdhsa_kernel
"""


def srd(a, d, base, nbytes, add_lo=None, add_imm=0):
    if add_lo is not None:
        a(f"s_add_u32 s{d}, s{base}, s{add_lo}")
        a(f"s_addc_u32 s{d+1}, s{base+1}, 0")
        if add_imm:
            a(f"s_add_u32 s{d}, s{d}, {add_imm}")
            a(f"s_addc_u32 s{d+1}, s{d+1}, 0")
    elif add_imm:
        a(f"s_add_u32 s{d}, s{base}, {add_imm}")
        a(f"s_addc_u32 s{d+1}, s{base+1}, 0")
    else:
        a(f"s_mov_b32 s{d}, s{base}")
        a(f"s_mov_b32 s{d+1}, s{base+1}")
    a(f"s_mov_b32 s{d+2}, {nbytes}")
    a(f"s_mov_b32 s{d+3}, 0x20000")


def interleave(main, fill, start=0, every=1):
    out = []
    fi = 0
    for i, m in enumerate(main):
        out.append(m)
        if i >= start and (i - start) % every == 0 and fi < len(fill):
            out.append(fill[fi]); fi += 1
    out.extend(fill[fi:])
    return out


import os
STAMP = bool(os.environ.get("STAMP"))
REG = 49152
SLOT = 24576
STATS = 147456
CSF = 148480
DBG = 150528
LDS_TOTAL = 151552
WS_DBG = 28 << 20
HH_M = 448 * 2048

def stamp_init(a):
    if not STAMP: return
    a("s_lshl_b32 s96, s36, 7")
    a(f"s_add_u32 s96, s96, {DBG}")
    a("v_mov_b32 v26, s96")
STAMPC = os.environ.get("STAMPC", "")
def stampc(a, kind, idx):
    if kind != STAMPC or not 0 <= idx < 32: return
    a("s_memtime s[96:97]")
    a("s_waitcnt lgkmcnt(0)")
    a("v_mov_b32 v24, s96")
    a(f"ds_write_b32 v26, v24 offset:{4*idx}")
def stamp(a, idx):
    if not STAMP or STAMPC: return
    a("s_memtime s[96:97]")
    a("s_memrealtime s[98:99]")
    a("s_waitcnt lgkmcnt(0)")
    a("v_mov_b32 v24, s96")
    a("v_mov_b32 v25, s98")
    a(f"ds_write_b64 v26, v[24:25] offset:{8*idx}")
def stamp_flush(a):
    if not STAMP: return
    a("s_waitcnt lgkmcnt(0)")
    a("v_and_b32 v24, 31, v1")
    a("v_lshlrev_b32 v24, 2, v24")
    a("v_add_u32 v25, v26, v24")
    a("ds_read_b32 v25, v25")
    a(f"s_add_u32 s96, s32, {WS_DBG}")
    a("s_addc_u32 s97, s33, 0")
    a("s_mov_b32 s98, 262144")
    a("s_mov_b32 s99, 0x20000")
    a("s_lshl_b32 s94, s2, 3")
    a("s_add_u32 s94, s94, s36")
    a("s_lshl_b32 s94, s94, 7")
    a("s_waitcnt lgkmcnt(0)")
    a("buffer_store_dword v25, v24, s[96:99], s94 offen")

WS_FLG = 27 << 20
FLG = {"o": (0, 16), "h": (16, 16), "hha0": (32, 16), "hha1": (48, 16), "hhb": (64, 16), "cs": (80, 224)}

def flag_srd(a, d, ws_pair=32):
    srd(a, d, ws_pair, 128*128, add_imm=WS_FLG)

def flag_addr(a, kind, idx_sgpr, v):
    if idx_sgpr is None: a(f"v_mov_b32 v{v}, {FLG[kind][0] << 7}")
    else:
        a(f"s_add_u32 s43, s{idx_sgpr}, {FLG[kind][0]}")
        a("s_lshl_b32 s43, s43, 7")
        a(f"v_mov_b32 v{v}, s43")

def flag_signal(a, d, kind, idx_sgpr, v=5):
    flag_addr(a, kind, idx_sgpr, v)
    a(f"v_mov_b32 v{v+1}, 1")
    a("s_mov_b64 exec, 1")
    a(f"buffer_atomic_add v{v+1}, v{v}, s[{d}:{d+3}], 0 offen sc1")
    a("s_mov_b64 exec, -1")

def flag_poll_issue(a, d, kind, idx_sgpr, v=8):
    flag_addr(a, kind, idx_sgpr, v)
    a(f"v_mov_b32 v{v+2}, {FLG[kind][1]}")
    a(f"buffer_load_dword v{v+1}, v{v}, s[{d}:{d+3}], 0 offen sc1")

def flag_poll_finish(a, d, v=8, first=0):
    Lp = a.label("Lpoll"); Lo = a.label("Lpok"); Lf = a.label("Lpf")
    a("s_mov_b32 s41, 0x10000")
    if first:
        a(f"s_waitcnt vmcnt({first})")
        a(f"s_branch {Lf}")
    a(f"{Lp}:")
    a("s_waitcnt vmcnt(0)")
    a(f"{Lf}:")
    a(f"v_cmp_ne_u32 vcc, v{v+2}, v{v+1}")
    a("s_nop 4")
    a(f"s_cbranch_vccz {Lo}")
    a(f"buffer_load_dword v{v+1}, v{v}, s[{d}:{d+3}], 0 offen sc1")
    a("s_sub_u32 s41, s41, 1")
    a("s_cmp_lg_u32 s41, 0")
    a(f"s_cbranch_scc1 {Lp}")
    a("s_waitcnt vmcnt(0)")
    a(f"{Lo}:")

def flag_poll(a, d, kind, idx_sgpr, v=8):
    NP = int(os.environ.get("NPOLL", "4"))
    if NP <= 1:
        flag_poll_issue(a, d, kind, idx_sgpr, v)
        flag_poll_finish(a, d, v)
        return
    flag_addr(a, kind, idx_sgpr, v)
    a(f"v_mov_b32 v{v+1}, {FLG[kind][1]}")
    Lp = a.label("Lpoll"); Lo = a.label("Lpok")
    a("s_mov_b32 s41, 0x8000")
    for q in range(NP - 1):
        a(f"buffer_load_dword v{v+2+q}, v{v}, s[{d}:{d+3}], 0 offen sc1")
        a(f"s_sleep {int(os.environ.get('PSLEEP', '3'))}")
    a(f"{Lp}:")
    for q in range(NP):
        a(f"buffer_load_dword v{v+2+(q+NP-1) % NP}, v{v}, s[{d}:{d+3}], 0 offen sc1")
        a(f"s_waitcnt vmcnt({NP-1})")
        a(f"v_cmp_ne_u32 vcc, v{v+1}, v{v+2+q}")
        a("s_nop 4")
        a(f"s_cbranch_vccz {Lo}")
    a("s_sub_u32 s41, s41, 1")
    a("s_cmp_lg_u32 s41, 0")
    a(f"s_cbranch_scc1 {Lp}")
    a(f"{Lo}:")

MX = int(os.environ.get("MX", "4"))
def mapping(a):
    lg = MX.bit_length() - 1
    a("s_and_b32 s3, s2, 7")
    a("s_lshr_b32 s42, s2, 3")
    if os.environ.get("MAPSWAP"):
        a(f"s_lshr_b32 s48, s42, {5-lg}")
        a(f"s_and_b32 s49, s42, {32//MX-1}")
    else:
        a(f"s_and_b32 s48, s42, {MX-1}")
        a(f"s_lshr_b32 s49, s42, {lg}")
    a(f"s_and_b32 s34, s3, {16//MX - 1}")
    a(f"s_lshl_b32 s34, s34, {lg}")
    a("s_add_u32 s34, s34, s48")
    a(f"s_lshr_b32 s35, s3, {4-lg}")
    a(f"s_lshl_b32 s35, s35, {5-lg}")
    a("s_add_u32 s35, s35, s49")

def pf_w64(a, W_ka, K, groups, sd, v, vd, lane=1):
    per = 64 // MX
    lgp = per.bit_length() - 1
    a(f"s_load_dwordx2 s[{sd+4}:{sd+5}], s[0:1], {W_ka}")
    a("s_lshl_b32 s43, s35, 7")
    a(f"s_lshl_b32 s44, s48, {lgp}")
    a(f"v_and_b32 v{v}, {per-1}, v{lane}")
    a(f"v_add_u32 v{v}, s44, v{v}")
    a(f"v_lshrrev_b32 v19, {lgp}, v{lane}")
    a(f"v_lshl_add_u32 v{v}, v19, 6, v{v}")
    a(f"v_lshlrev_b32 v{v}, 11, v{v}")
    a("s_waitcnt lgkmcnt(0)")
    srd(a, sd, sd+4, K*2048 - 1920, add_lo=43)
    for g in groups: pf_w64_issue(a, g, sd, v, vd)
    return len(groups)
def pf_w64_issue(a, g, sd, v, vd):
    a(f"s_mov_b32 s43, {g*MX*131072}")
    a(f"buffer_load_dword v{vd}, v{v}, s[{sd}:{sd+3}], s43 offen")

CS_NF = 32
def cs_setup(a, Lno, sd, va):
    a("s_lshr_b32 s43, s2, 5")
    a("s_cmp_eq_u32 s43, 3")
    a(f"s_cbranch_scc1 {Lno}")
    a("s_cmp_gt_u32 s43, 3")
    a("s_cselect_b32 s43, 32, 0")
    a("s_sub_u32 s43, s2, s43")
    a("s_lshr_b32 s43, s43, 1")
    a("s_and_b32 s44, s2, 1")
    a("s_lshl_b32 s45, s44, 3")
    a(f"s_add_u32 s45, s45, {KA_WG}")
    a(f"s_load_dwordx2 s[{sd+4}:{sd+5}], s[0:1], s45")
    a("s_mul_i32 s45, s43, 2341")
    a("s_lshr_b32 s45, s45, 16")
    a("s_mul_i32 s46, s45, 28")
    a("s_sub_u32 s46, s43, s46")
    a(f"v_lshrrev_b32 v{va}, 4, v1")
    a("s_lshl_b32 s43, s45, 8")
    a(f"v_add_u32 v{va}, s43, v{va}")
    a(f"v_mul_u32_u24 v{va}, 7168, v{va}")
    a(f"v_and_b32 v{va+1}, 15, v1")
    a(f"v_lshl_add_u32 v{va}, v{va+1}, 4, v{va}")
    a("s_lshl_b32 s43, s46, 8")
    a(f"v_add_u32 v{va}, s43, v{va}")
    a("s_waitcnt lgkmcnt(0)")
    srd(a, sd, sd+4, 7340032)

def cs_issue(a, n, sd, va):
    i = n % CS_NF
    a(f"s_mov_b32 s43, {n*4*7168}")
    a(f"buffer_load_dwordx4 v[{128+4*i}:{128+4*i+3}], v{va}, s[{sd}:{sd+3}], s43 offen")


CSM = os.environ.get("CSM", "e")
SPE = int(os.environ.get("K1_SPE", "13" if CSM == "d" else "11"))
SPS = int(os.environ.get("K1_SPS", "3"))
SPR = 36 if CSM == "d" else 2*(SPE - SPS + 1)
def cs_sbase(a, Lno, d, wsg):
    a("s_lshr_b32 s43, s2, 5")
    a("s_cmp_eq_u32 s43, 3")
    a(f"s_cbranch_scc1 {Lno}")
    a("s_cmp_gt_u32 s43, 3")
    a("s_cselect_b32 s43, 32, 0")
    a("s_sub_u32 s43, s2, s43")
    a("s_lshr_b32 s43, s43, 1")
    a("s_and_b32 s44, s2, 1")
    a("s_lshl_b32 s44, s44, 3")
    a(f"s_add_u32 s44, s44, {KA_WG}")
    a(f"s_load_dwordx2 s[{d}:{d+1}], s[0:1], s44")
    a("s_mul_i32 s45, s43, 2341")
    a("s_lshr_b32 s45, s45, 16")
    a("s_mul_i32 s46, s45, 28")
    a("s_sub_u32 s46, s43, s46")
    a("s_lshl_b32 s45, s45, 8")
    a(f"s_mul_i32 s44, s{wsg}, {SPR}")
    a("s_add_u32 s45, s45, s44")
    a(f"s_add_u32 s45, s45, {128 if CSM == 'd' else 256 - 4*SPR}")
    a("s_mul_i32 s45, s45, 7168")
    a("s_lshl_b32 s46, s46, 8")
    a("s_add_u32 s45, s45, s46")
    a("s_waitcnt lgkmcnt(0)")
    a(f"s_add_u32 s{d}, s{d}, s45")
    a(f"s_addc_u32 s{d+1}, s{d+1}, 0")

NPS = int(os.environ.get("K1_NPS", "0"))
def cs_spre(a, n, d0=64, nd=16):
    if not NPS: return
    for r in range(n):
        for q in range(4): a(f"s_load_dword s{d0 + (4*r+q) % nd}, s[80:81], {r*7168 + q*64}")
    a(f"s_add_u32 s80, s80, {n*7168}")
    a("s_addc_u32 s81, s81, 0")

WS_X = 32 << 20
XFLG = 12288
def xflag_addr(a, v, flip):
    a("s_lshl_b32 s43, s34, 4")
    a("s_add_u32 s43, s43, s35")
    if flip: a("s_xor_b32 s43, s43, 1")
    a("s_lshl_b32 s43, s43, 2")
    a(f"s_add_u32 s43, s43, {XFLG}")
    a(f"v_mov_b32 v{v}, s43")
```

```python
import os, struct
from common import *

def fh(x): return "0x%08x" % struct.unpack("<I", struct.pack("<f", x))[0]
def env(k, d): return int(os.environ.get(k, str(d)))

C0_ = -2.0*0.7978845608028654*1.4426950408889634
C1_ = C0_*0.044715
XF = os.environ.get("XF", " sc1")
SET = [32, 80]
ACC = 128
NST4 = 56


class VM:
    def __init__(self, a): self.a = a; self.q = []
    def add(self, tag, n=1): self.q += [tag]*n
    def cnt(self, tag):
        idx = max(i for i, t in enumerate(self.q) if t == tag)
        return len(self.q) - 1 - idx
    def wait(self, tag):
        n = self.cnt(tag); assert n <= 63, n
        return f"s_waitcnt vmcnt({n})"
    def reset(self): self.q = []


def spread(main, items, frac=100):
    if frac < 100:
        c = len(main)*frac//100
        return spread(main[:c], items) + main[c:]
    out = []
    n, k = len(main), len(items)
    j = 0
    for i in range(n + 1):
        while j < k and j*n <= i*k:
            out += items[j]; j += 1
        if i < n: out.append(main[i])
    while j < k: out += items[j]; j += 1
    return out


def lane_ig(a):
    a("v_and_b32 v17, 15, v1")
    a("v_lshrrev_b32 v18, 4, v1")


def g2_addrs():
    r = []
    r.append("v_lshlrev_b32 v19, 11, v18")
    r.append("v_lshl_add_u32 v19, v17, 4, v19")
    r.append("s_lshl_b32 s43, s36, 9")
    r.append("v_add_u32 v2, s43, v19")
    r.append(f"v_add_u32 v3, {REG}, v2")
    r.append(f"v_add_u32 v4, {2*REG}, v2")
    r.append("v_lshrrev_b32 v19, 2, v17")
    r.append("v_lshl_add_u32 v20, v18, 2, v19")
    r.append("v_bfe_u32 v21, v20, 1, 2")
    r.append("v_lshlrev_b32 v20, 7, v20")
    r.append("v_lshl_add_u32 v20, v21, 5, v20")
    r.append("v_and_b32 v19, 3, v1")
    r.append("v_lshl_add_u32 v20, v19, 3, v20")
    r.append("v_add_u32 v5, 16384, v20")
    for t in range(1, 4): r.append(f"v_xor_b32 v{5+t}, {32*t}, v5")
    for rg in range(1, 3):
        for t in range(4): r.append(f"v_add_u32 v{5+4*rg+t}, {rg*REG}, v{5+t}")
    return r

def g2_reads(slot, base):
    rg, so = slot >> 1, (slot & 1)*SLOT
    def xr(kb, tl): return f"ds_read_b128 v[{base+(kb*2+tl)*4}:{base+(kb*2+tl)*4+3}], v{2+rg} offset:{so + kb*8192 + tl*256}"
    def wr(kb, t, h):
        d = base + 16 + (kb*4+t)*4 + 2*h
        return f"ds_read_b64_tr_b16 v[{d}:{d+1}], v{5+4*rg+t} offset:{so + kb*4096 + h*2048}"
    r = []
    for kb in range(2):
        r += [xr(kb, 0), wr(kb, 0, 0), wr(kb, 0, 1), wr(kb, 1, 0), wr(kb, 1, 1), xr(kb, 1), wr(kb, 2, 0), wr(kb, 2, 1), wr(kb, 3, 0), wr(kb, 3, 1)]
    return r

def g2_mfmas(base):
    r = []
    for kb in range(2):
        for tl in range(2):
            for t in range(4):
                acc = ACC + (tl*4+t)*4
                w = base + 16 + (kb*4+t)*4; x = base + (kb*2+tl)*4
                r.append(f"v_mfma_f32_16x16x32_bf16 v[{acc}:{acc+3}], v[{w}:{w+3}], v[{x}:{x+3}], v[{acc}:{acc+3}]")
    return r

def g2_stage(a, s, slot_next, pre=None):
    a("s_waitcnt lgkmcnt(0)" if pre is None else f"s_waitcnt vmcnt({pre}) lgkmcnt(0)")
    a("s_barrier")
    m = g2_mfmas(SET[s & 1])
    rd = [] if slot_next is None else g2_reads(slot_next, SET[(s+1) & 1])
    k = 0
    for i in range(16):
        a(m[i])
        for q in range(2 if i < 6 else 1):
            if k < len(rd): a(rd[k]); k += 1

def g2_loop(a, s0, nst, off, pres={}):
    s = s0
    while s in pres or (s % 6 != 0 and False):
        g2_stage(a, s, (s+1+off) % 6, pres[s]); s += 1
    nl = (nst - 1 - s)//6
    if nl > 0:
        L = a.label("Lg2")
        a(f"s_mov_b32 s41, {nl}")
        a(f"{L}:")
        for q in range(6): g2_stage(a, s+q, (s+q+1+off) % 6)
        a("s_sub_u32 s41, s41, 1")
        a("s_cmp_lg_u32 s41, 0")
        a(f"s_cbranch_scc1 {L}")
        s += 6*nl
    while s < nst:
        g2_stage(a, s, None if s == nst-1 else (s+1+off) % 6); s += 1


def k3_addrs(nj, t0):
    r = []
    r.append("v_lshlrev_b32 v19, 11, v18")
    r.append("v_lshl_add_u32 v19, v17, 4, v19")
    r.append("s_lshl_b32 s43, s46, 10")
    r.append("v_add_u32 v2, s43, v19")
    r.append(f"v_add_u32 v3, {REG}, v2")
    r.append(f"v_add_u32 v4, {2*REG}, v2")
    r.append("v_lshrrev_b32 v19, 2, v17")
    r.append("v_lshl_add_u32 v20, v18, 2, v19")
    r.append("v_and_b32 v21, 7, v20")
    r.append("v_lshlrev_b32 v20, 8, v20")
    r.append("v_and_b32 v19, 3, v1")
    r.append("v_lshl_add_u32 v20, v19, 3, v20")
    for j in range(nj):
        r.append(f"s_add_u32 s43, s{t0}, {j}")
        r.append("v_xor_b32 v19, s43, v21")
        r.append(f"v_lshl_add_u32 v{5+j}, v19, 5, v20")
    for rg in range(1, 3):
        for j in range(nj): r.append(f"v_add_u32 v{5+4*rg+j}, {rg*REG}, v{5+j}")
    return r

def k3_acc(nj, mat, j, tl): return ACC + ((mat*nj + j)*4 + tl)*4

def k3_reads(nj, sig, kk, base):
    rg = (sig + 2) % 3
    def xr(tl): return f"ds_read_b128 v[{base+4*tl}:{base+4*tl+3}], v{2+rg} offset:{kk*8192 + tl*256}"
    def wr(mat, j, h):
        d = base + 16 + (mat*nj+j)*4 + 2*h
        return f"ds_read_b64_tr_b16 v[{d}:{d+1}], v{5+4*rg+j} offset:{16384*(1+mat) + kk*8192 + h*4096}"
    r = [xr(0), wr(0, 0, 0), wr(0, 0, 1), xr(1), xr(2), xr(3), wr(1, 0, 0), wr(1, 0, 1)]
    for j in range(1, nj): r += [wr(0, j, 0), wr(0, j, 1), wr(1, j, 0), wr(1, j, 1)]
    return r

def k3_mfmas(nj, base):
    r = []
    order = [(j, mat, tl) for j in range(nj) for mat in range(2) for tl in range(4)]
    if env("MORD", 2) == 1: order = [(j, mat, tl) for tl in range(4) for j in range(nj) for mat in range(2)]
    if env("MORD", 2) == 2:
        order = [(j, mat, tl if (2*j + mat) % 2 == 0 else 3 - tl) for j in range(nj) for mat in range(2) for tl in range(4)]
    for (j, mat, tl) in order:
        if True:
            if True:
                acc = k3_acc(nj, mat, j, tl)
                w = base + 16 + (mat*nj+j)*4; x = base + 4*tl
                r.append(f"v_mfma_f32_16x16x32_bf16 v[{acc}:{acc+3}], v[{w}:{w+3}], v[{x}:{x+3}], v[{acc}:{acc+3}]")
    return r

def k3_half1(a, nj, sig, vmw=None):
    a("s_waitcnt lgkmcnt(0)")
    for i in interleave(k3_mfmas(nj, SET[0]), k3_reads(nj, sig, 1, SET[1])): a(i)
    a("s_waitcnt lgkmcnt(0)" if vmw is None else f"s_waitcnt vmcnt({vmw}) lgkmcnt(0)")
    a("s_barrier")
def k3_half2(a, nj, sig):
    for i in interleave(k3_mfmas(nj, SET[1]), k3_reads(nj, sig+1, 0, SET[0])): a(i)

def k3_consumer(a, nj, sig0, vmw, n=16):
    L = a.label("Lk3")
    a(f"s_mov_b32 s41, {(n-1)//3}")
    a(f"{L}:")
    for q in range(3):
        k3_half1(a, nj, sig0+q, vmw[q] if q < len(vmw) else None)
        k3_half2(a, nj, sig0+q)
    a("s_sub_u32 s41, s41, 1")
    a("s_cmp_lg_u32 s41, 0")
    a(f"s_cbranch_scc1 {L}")
    for q in range((n-1)//3*3, n-1):
        k3_half1(a, nj, sig0+q)
        k3_half2(a, nj, sig0+q)
    k3_half1(a, nj, sig0+n-1)


def k3_dma_setup(part, psg, vE=22, first=0):
    r = []
    if part == 0: r.append("s_lshl_b32 s43, s35, 8")
    else:
        r.append("s_mul_i32 s43, s35, 192")
        r.append("s_and_b32 s43, s43, 0xffffff80")
        r.append("s_add_u32 s43, s43, 4096")
    r.append(f"s_cmp_eq_u32 s{psg}, 1")
    r.append("s_cselect_b32 s8, s4, s6")
    r.append("s_cselect_b32 s9, s5, s7")
    r.append("s_sub_u32 s10, 7340032, s43")
    r.append("s_lshl_b32 s44, s34, 18")
    r.append(f"s_add_u32 s44, s44, {WS_H}")
    r.append("s_movk_i32 s38, 28672")
    r.append(f"s_cmp_eq_u32 s{psg}, 0")
    r.append("s_cselect_b32 s8, s32, s8")
    r.append("s_cselect_b32 s9, s33, s9")
    r.append("s_cselect_b32 s10, 262144, s10")
    r.append("s_cselect_b32 s43, s44, s43")
    r.append("s_cselect_b32 s38, 1024, s38")
    r.append("s_cselect_b32 s45, 0, -1")
    r.append("s_add_u32 s8, s8, s43")
    r.append("s_addc_u32 s9, s9, 0")
    r.append("s_mov_b32 s11, 0x20000")
    r.append("s_lshl_b32 s40, s38, 4")
    r.append(f"s_add_u32 s42, s35, {first + 15}")
    r.append(f"s_lshl_b32 s39, s{psg}, 14")
    r.append("v_lshrrev_b32 v19, 4, v1")
    r.append("v_lshlrev_b32 v20, 5, v19")
    r.append("v_mul_u32_u24 v19, 6912, v19")
    r.append("v_and_b32 v19, s45, v19")
    r.append("v_and_b32 v20, s45, v20")
    r.append("v_lshlrev_b32 v21, 4, v1")
    r.append("v_xor_b32 v21, v21, v20")
    r.append(f"v_add_u32 v{vE}, v21, v19")
    r.append("s_and_b32 s45, s45, 128")
    r.append(f"v_xor_b32 v{vE+1}, s45, v{vE}")
    return r

def k3_items(sig, vE=22):
    rg = (sig + 2) % 3
    r = [[f"s_add_u32 m0, s39, {rg*REG + j*1024}", "s_add_u32 s37, s37, s38",
          f"buffer_load_dwordx4 v{vE + (j & 1)}, s[8:11], s37 offen{XF} lds"] for j in range(16)]
    r[0] = ["s_add_u32 s42, s42, 1", "s_and_b32 s42, s42, 15", r[0][0], "s_mul_i32 s37, s42, s40", r[0][2]]
    return r

def g2_dma_setup(psg, A_off, A_mul, A_bytes, K, wreg, vA=21, hop=8):
    r = []
    r.append(f"s_mul_i32 s44, s34, {A_mul}")
    r.append(f"s_lshl_b32 s39, s{psg}, 13")
    r.append("s_add_u32 s44, s44, s39")
    r.append(f"s_add_u32 s44, s44, {A_off}")
    r.append("s_lshl_b32 s43, s35, 7")
    r.append(f"s_mov_b32 s10, {A_bytes - 8192}")
    r.append("s_movk_i32 s38, 1024")
    r.append("s_movk_i32 s40, 9216")
    r.append(f"s_cmp_eq_u32 s{psg}, 2")
    r.append(f"s_cselect_b32 s8, s{wreg}, s32")
    r.append(f"s_cselect_b32 s9, s{wreg+1}, s33")
    r.append(f"s_cselect_b32 s10, {K*2048 - 1920}, s10")
    r.append("s_cselect_b32 s43, s43, s44")
    r.append("s_cselect_b32 s38, 16384, s38")
    r.append(f"s_cselect_b32 s40, {hop*2048}, s40")
    r.append(f"s_cselect_b32 s55, {hop*2048}, s38")
    r.append("s_cselect_b32 s45, -1, 0")
    r.append("s_add_u32 s8, s8, s43")
    r.append("s_addc_u32 s9, s9, 0")
    r.append("s_mov_b32 s11, 0x20000")
    r.append("s_sub_u32 s37, 0, s40")
    r.append("v_lshrrev_b32 v19, 3, v1")
    r.append("v_mul_u32_u24 v19, 1920, v19")
    r.append("v_lshrrev_b32 v20, 4, v1")
    r.append("v_lshlrev_b32 v20, 5, v20")
    r.append("v_and_b32 v19, s45, v19")
    r.append("v_and_b32 v20, s45, v20")
    r.append(f"v_lshlrev_b32 v{vA}, 4, v1")
    r.append(f"v_xor_b32 v{vA}, v{vA}, v20")
    r.append(f"v_add_u32 v{vA}, v{vA}, v19")
    return r

def g2_items(slot, vA=21, wrows=None):
    r = []
    for k in range(8):
        if wrows is None: inc = f"s_add_u32 s37, s37, s{40 if k == 0 else 55 if k == 4 else 38}"
        else: inc = f"s_add_u32 s37, s37, {(wrows[k]*2048) & 0xffffffff}"
        r.append([f"s_add_u32 m0, s39, {slot*SLOT + k*1024}", inc, f"buffer_load_dwordx4 v{vA}, s[8:11], s37 offen{XF} lds"])
    return r

def wd_row(item):
    if item < 256:
        s, k = item >> 3, item & 7
        return 128*(s & 15) + 32*(s >> 4) + 64*(k >> 2) + 8*(k & 3)
    q = item - 256
    return 2048 + 96*(q // 12) + [0, 8, 16, 24, 48, 56, 64, 72, 32, 80, 40, 88][q % 12]


CSR = 48
TT = 80
def epi_reads(nj, csbase):
    rd = []
    rd.append("s_lshl_b32 s43, s46, 9")
    rd.append(f"s_add_u32 s43, s43, {STATS}")
    rd.append("v_lshl_add_u32 v19, v17, 3, s43")
    for tl in range(4): rd.append(f"ds_read_b64 v[{TT+2*tl}:{TT+2*tl+1}], v19 offset:{tl*128}")
    rd.append(f"s_mul_i32 s43, s47, {nj*64}")
    rd.append(f"s_add_u32 s43, s43, {CSF + csbase*4}")
    rd.append("v_lshl_add_u32 v19, v18, 4, s43")
    for mat in range(2):
        for j in range(nj):
            d = CSR + (mat*nj+j)*4
            rd.append(f"ds_read_b128 v[{d}:{d+3}], v19 offset:{mat*896 + j*64}")
    return rd
def epi_consts(KB, mean=True):
    c = []
    for tl in range(4):
        mn, rs = TT+2*tl, TT+2*tl+1
        if mean: c.append(f"v_mov_b32 v{KB+tl}, v{mn}")
        c.append(f"v_mul_f32 v{TT+8}, v{rs}, v{rs}")
        c.append(f"v_mul_f32 v{KB+4+tl}, {fh(C0_)}, v{rs}")
        c.append(f"v_mul_f32 v{TT+9}, {fh(C1_)}, v{rs}")
        c.append(f"v_rcp_f32 v{KB+12+tl}, v{TT+8}")
        c.append(f"v_mul_f32 v{KB+8+tl}, v{TT+9}, v{TT+8}")
    return c

def epi_group(nj, tl, j, out, KB, ln=True):
    G = k3_acc(nj, 0, j, tl); U = k3_acc(nj, 1, j, tl)
    cg = CSR + j*4; cu = CSR + (nj+j)*4
    KM, K0, K1, KI = KB+tl, KB+4+tl, KB+8+tl, KB+12+tl
    T = TT + 4*(j & 1)
    r = []
    if ln:
        for q in range(4): r.append(f"v_fma_f32 v{G+q}, -v{KM}, v{cg+q}, v{G+q}")
        for q in range(4): r.append(f"v_fma_f32 v{U+q}, -v{KM}, v{cu+q}, v{U+q}")
    for q in range(4): r.append(f"v_mul_f32 v{T+q}, v{G+q}, v{G+q}")
    for q in range(4): r.append(f"v_fma_f32 v{T+q}, v{T+q}, v{K1}, v{K0}")
    for q in range(4): r.append(f"v_mul_f32 v{T+q}, v{T+q}, v{G+q}")
    for q in range(4): r.append(f"v_exp_f32 v{T+q}, v{T+q}")
    for q in range(4): r.append(f"v_mul_f32 v{U+q}, v{G+q}, v{U+q}")
    for q in range(4): r.append(f"v_fma_f32 v{T+q}, v{T+q}, v{KI}, v{KI}")
    for q in range(4): r.append(f"v_rcp_f32 v{T+q}, v{T+q}")
    for q in range(4): r.append(f"v_mul_f32 v{U+q}, v{U+q}, v{T+q}")
    r.append(f"v_cvt_pk_bf16_f32 v{out}, v{U}, v{U+1}")
    r.append(f"v_cvt_pk_bf16_f32 v{out+1}, v{U+2}, v{U+3}")
    return r

ST = "#ST "
KA, KBB = 32, 224
def epi_a():
    r = []
    for q in range(2):
        for tl in range(4):
            o = 96 + 4*tl
            r += epi_group(4, tl, 2*q, o, KA) + epi_group(4, tl, 2*q+1, o+2, KA)
            r.append(ST + f"{q}buffer_store_dwordx4 v[{o}:{o+3}], v27, s[24:27], {'s53' if q else '0'} offen offset:{tl*256} sc1")
    return r
def epi_b():
    r = []
    for tp in range(2):
        lo = 112 + 4*tp
        for tl in (2*tp, 2*tp+1):
            o = 96 + 4*tl
            r += epi_group(3, tl, 0, o, KBB, False) + epi_group(3, tl, 1, o+2, KBB, False)
            r.append(ST + f"0buffer_store_dwordx4 v[{o}:{o+3}], v27, s[24:27], 0 offen offset:{tl*256} sc1")
            r += epi_group(3, tl, 2, lo + 2*(tl & 1), KBB, False)
        r.append("s_nop 1")
        r.append(f"v_permlane32_swap_b32 v{lo}, v{lo+2}")
        r.append(f"v_permlane32_swap_b32 v{lo+1}, v{lo+3}")
        r.append(ST + f"0buffer_store_dwordx4 v[{lo}:{lo+3}], v28, s[24:27], 0 offen offset:{tp*512} sc1")
    return r

def epi_store_setup(part):
    r = []
    r.append(f"s_mul_i32 s43, s34, {HH_M}")
    r.append(f"s_mul_i32 s44, s35, {16384 if part == 0 else 24576}")
    r.append("s_add_u32 s43, s43, s44")
    r.append(f"s_add_u32 s43, s43, {WS_HH + (0 if part == 0 else 524288)}")
    r.append("s_add_u32 s24, s32, s43")
    r.append("s_addc_u32 s25, s33, 0")
    r.append(f"s_mov_b32 s26, {262144 + 16384 if part == 0 else 24576}")
    r.append("s_mov_b32 s27, 0x20000")
    r.append("s_mov_b32 s53, 262144")
    r.append("s_lshl_b32 s43, s47, 13")
    r.append("s_lshl_b32 s44, s46, 10")
    r.append("s_add_u32 s43, s43, s44")
    r.append("v_lshlrev_b32 v19, 11, v18")
    r.append("v_lshl_add_u32 v19, v17, 4, v19")
    r.append("v_add_u32 v27, s43, v19")
    if part == 1:
        r.append("s_lshl_b32 s43, s47, 12")
        r.append("s_add_u32 s43, s43, s44")
        r.append("s_add_u32 s43, s43, 16384")
        r.append("v_and_b32 v19, 1, v18")
        r.append("v_lshlrev_b32 v19, 11, v19")
        r.append("v_lshrrev_b32 v20, 1, v18")
        r.append("v_lshl_add_u32 v19, v20, 8, v19")
        r.append("v_lshl_add_u32 v19, v17, 4, v19")
        r.append("v_add_u32 v28, s43, v19")
    return r

STRIP = os.environ.get("STRIP", "").split(",")
def strip(lst, key):
    return [("s_nop 0" if key in STRIP else i) for i in lst]
_k3_mfmas, _k3_reads, _k3_items, _g2_mfmas, _g2_reads, _g2_items = k3_mfmas, k3_reads, k3_items, g2_mfmas, g2_reads, g2_items
def k3_mfmas(*x): return strip(_k3_mfmas(*x), "m3")
def k3_reads(*x): return strip(_k3_reads(*x), "r3")
def g2_mfmas(*x): return strip(_g2_mfmas(*x), "m4")
def g2_reads(*x): return strip(_g2_reads(*x), "r4")
def k3_items(*x, **k):
    r = _k3_items(*x, **k)
    if "d3" in STRIP: r = [g[:-1] + ["s_nop 0 ;buffer_load lds"] for g in r]
    if "h3" in STRIP: r[0][3] = "s_mov_b32 s37, 0"
    return r
def g2_items(*x, **k):
    r = _g2_items(*x, **k)
    if "d4" in STRIP: r = [g[:2] + ["s_nop 0 ;buffer_load lds"] for g in r]
    if "h4" in STRIP: r[0][1] = "s_mov_b32 s37, 0x20000"
    return r


T1 = env("T1", 4); LB = env("LB", 6)
A0B = (16 - T1)//2
PA1 = T1 + A0B; PB = PA1 + 8; EB4 = PB + LB; NP4 = EB4 + 24 - 2*LB
assert T1 % 2 == 0 and LB % 3 == 0
SX, SW = [32, 96], [64, 160]
AK, AS, RECV = 128, 192, 224
def both(pos): return T1 <= pos < EB4
def k4_stage_of(pos, kh):
    if pos < T1: return pos
    if pos < PA1: return T1 + A0B*kh + pos - T1
    if pos < PB: return 16 + 8*kh + pos - PA1
    if pos < EB4: return 32 + LB*kh + pos - PB
    return 32 + 2*LB + pos - EB4
def k4_addrs():
    r = []
    r.append("v_lshlrev_b32 v19, 11, v18")
    r.append("v_lshl_add_u32 v19, v17, 4, v19")
    r.append("s_lshl_b32 s43, s46, 10")
    r.append("v_add_u32 v2, s43, v19")
    r.append("v_add_u32 v3, 0x10000, v2")
    r.append("v_lshrrev_b32 v19, 2, v17")
    r.append("v_lshl_add_u32 v20, v18, 2, v19")
    r.append("v_bfe_u32 v21, v20, 1, 2")
    r.append("s_lshl_b32 s43, s47, 1")
    r.append("v_xor_b32 v21, s43, v21")
    r.append("v_lshlrev_b32 v20, 7, v20")
    r.append("v_lshl_add_u32 v20, v21, 5, v20")
    r.append("v_and_b32 v19, 3, v1")
    r.append("v_lshl_add_u32 v20, v19, 3, v20")
    r.append("v_add_u32 v5, 16384, v20")
    r.append("v_xor_b32 v6, 32, v5")
    r.append("v_add_u32 v7, 0x10000, v5")
    r.append("v_add_u32 v8, 0x10000, v6")
    r.append("s_lshl_b32 s43, s36, 13")
    r.append("v_lshl_add_u32 v9, v1, 4, s43")
    r.append("s_mov_b32 s54, 0x10000")
    r.append("s_movk_i32 s52, 0x1000")
    return r
def k4_reads(pos):
    slot = (pos + 2) % 4; hi, so = slot >> 1, (slot & 1)*32768
    bx, bw = SX[pos & 1], SW[pos & 1]
    def xr(kb, tl): return f"ds_read_b128 v[{bx+(kb*4+tl)*4}:{bx+(kb*4+tl)*4+3}], v{2+hi} offset:{so + kb*8192 + tl*256}"
    def wr(c, kb, e, h):
        d = bw + ((c*2+kb)*2+e)*4 + 2*h
        return f"ds_read_b64_tr_b16 v[{d}:{d+1}], v{5+2*hi+e} offset:{so + c*8192 + kb*4096 + h*2048}"
    r = []
    for kb in range(2):
        w = [wr(c, kb, e, h) for c in range(2 if both(pos) else 1) for e in range(2) for h in range(2)]
        r += interleave(w, [xr(kb, tl) for tl in range(4)])
    return strip(r, "r4")
def k4_mfmas(pos):
    bx, bw = SX[pos & 1], SW[pos & 1]
    r = []
    for kb in range(2):
        for tl in range(4):
            for c in range(2 if both(pos) else 1):
                for e in range(2):
                    acc = (AS if c else AK) + (tl*2+e)*4
                    w = bw + ((c*2+kb)*2+e)*4; x = bx + (kb*4+tl)*4
                    r.append(f"v_mfma_f32_16x16x32_bf16 v[{acc}:{acc+3}], v[{w}:{w+3}], v[{x}:{x+3}], v[{acc}:{acc+3}]")
    return strip(r, "m4")
def k4_stage(a, pos, pre=None, extra=[]):
    a("s_waitcnt lgkmcnt(0)" if pre is None else f"s_waitcnt vmcnt({pre}) lgkmcnt(0)")
    a("s_barrier")
    rd = k4_reads(pos+1) if pos + 1 < NP4 else []
    seq = interleave(k4_mfmas(pos), rd)
    if extra: seq = seq[:8] + spread(seq[8:], [[i] for i in extra])
    for i in seq: a(i)
def k4_dma_setup(first, vA=21):
    r = []
    r.append(f"s_mul_i32 s44, s34, {HH_M}")
    r.append("s_lshl_b32 s39, s51, 13")
    r.append("s_add_u32 s44, s44, s39")
    r.append(f"s_add_u32 s44, s44, {WS_HH}")
    r.append("s_and_b32 s43, s51, 1")
    r.append("s_xor_b32 s43, s43, s35")
    r.append("s_lshl_b32 s43, s43, 7")
    r.append(f"s_mov_b32 s10, {HH_M - 8192}")
    r.append("s_movk_i32 s38, 1024")
    r.append("s_movk_i32 s40, 9216")
    r.append("s_movk_i32 s37, 0x4000")
    r.append("s_cmp_ge_u32 s51, 2")
    r.append("s_cselect_b32 s8, s60, s32")
    r.append("s_cselect_b32 s9, s61, s33")
    r.append(f"s_cselect_b32 s10, {3584*2048 - 1920}, s10")
    r.append("s_cselect_b32 s43, s43, s44")
    r.append("s_cselect_b32 s38, 16384, s38")
    r.append(f"s_cselect_b32 s40, {40*2048}, s40")
    r.append(f"s_cselect_b32 s55, {40*2048}, s38")
    r.append(f"s_cselect_b32 s37, {128*2048}, s37")
    r.append("s_cselect_b32 s45, -1, 0")
    r.append("s_add_u32 s8, s8, s43")
    r.append("s_addc_u32 s9, s9, 0")
    r.append("s_mov_b32 s11, 0x20000")
    r.append("s_and_b32 s53, s35, 1")
    r.append(f"s_mul_i32 s54, s53, {A0B}")
    r.append("s_mul_i32 s54, s54, s37")
    r.append(f"s_mul_i32 s29, s53, {8 - A0B}")
    r.append(f"s_add_u32 s29, s29, {A0B}")
    r.append("s_mul_i32 s29, s29, s37")
    r.append(f"s_and_b32 s43, s45, {((32 - 2048)*2048) & 0xffffffff}")
    r.append("s_add_u32 s29, s29, s43")
    r.append(f"s_mul_i32 s37, s37, {first}")
    r.append("s_sub_u32 s37, s37, s40")
    r.append("v_lshrrev_b32 v19, 3, v1")
    r.append("v_mul_u32_u24 v19, 1920, v19")
    r.append("v_lshrrev_b32 v20, 4, v1")
    r.append("v_lshlrev_b32 v20, 5, v20")
    r.append("v_and_b32 v19, s45, v19")
    r.append("v_and_b32 v20, s45, v20")
    r.append(f"v_lshlrev_b32 v{vA}, 4, v1")
    r.append(f"v_xor_b32 v{vA}, v{vA}, v20")
    r.append(f"v_add_u32 v{vA}, v{vA}, v19")
    return r
def k4_items(pos, kind=None, vA=21):
    slot = (pos + 2) % 4
    r = []
    for k in range(8):
        if kind is None: inc = f"s_add_u32 s37, s37, s{40 if k == 0 else 55 if k == 4 else 38}"
        else:
            st = k4_stage_of(pos, 0)
            off = st*16384 + k*1024 if kind == 'x' else wd_row(8*st + k)*2048
            inc = f"s_add_u32 s37, s40, {off}" if pos < EB4 else f"s_mov_b32 s37, {off}"
        g = [f"s_add_u32 m0, s39, {slot*32768 + k*1024}", inc, f"buffer_load_dwordx4 v{vA}, s[8:11], s37 offen{XF} lds"]
        if "d4" in STRIP: g[2] = "s_nop 0 ;buffer_load lds"
        r.append(g)
    if kind is None and pos == T1: r[0] = ["s_add_u32 s37, s37, s54"] + r[0]
    if kind is None and pos == PA1: r[0] = ["s_add_u32 s37, s37, s29"] + r[0]
    return r


def emit(a, vm, seq, tag):
    for i in seq:
        if i.startswith(ST):
            a(i[len(ST)+1:]); vm.add("st" + i[len(ST)])
        else:
            a(i)
            if "buffer_load" in i and i.endswith("lds"): vm.add(tag)
            elif i.startswith("buffer_"): vm.add("x")

def st_last(seq):
    if not env("STLAST", 1): return seq
    return [i for i in seq if not i.startswith(ST)] + [i for i in seq if i.startswith(ST)]
def chunks(lst, n):
    return [lst[len(lst)*k//n:len(lst)*(k+1)//n] for k in range(n)]
def flat(g): return sum(g, [])
def last_with(cs, tag): return max(k for k, c in enumerate(cs) if any(i.startswith(ST + tag) for i in c))


def phase_234(a, Ld):
    PRIO = env("PRIO", 1)
    XSN = env("XSN", 1)
    XSIG = EB4 + XSN + env("XSD", 2); XRCV = NP4 - env("XRD", 3)
    LG1 = a.label("LG1")
    a(f"s_load_dwordx4 s[4:7], s[0:1], {KA_WG}")
    a(f"s_load_dwordx2 s[28:29], s[0:1], {KA_WO}")
    a(f"s_load_dwordx4 s[60:63], s[0:1], {KA_WD}")
    a(f"s_load_dwordx2 s[30:31], s[0:1], {KA_X}")
    lane_ig(a)
    a("s_lshr_b32 s46, s36, 1")
    a("s_and_b32 s46, s46, 1")
    a("s_and_b32 s47, s36, 1")
    a("s_and_b32 s51, s36, 3")
    a("s_waitcnt lgkmcnt(0)")
    a("s_cmp_ge_u32 s36, 4")
    a(f"s_cbranch_scc1 {LG1}")

    a("s_lshl_b32 s43, s34, 18")
    a("s_lshl_b32 s44, s35, 7")
    a("s_add_u32 s43, s43, s44")
    srd(a, 16, 30, 127*2048 + 128, add_lo=43)
    a("s_lshl_b32 s43, s36, 5")
    a("v_lshl_add_u32 v19, v17, 1, s43")
    a("v_lshlrev_b32 v19, 11, v19")
    a("v_lshl_add_u32 v23, v18, 3, v19")
    for tl in range(2):
        for t in range(4):
            d = 160 + (tl*4+t)*2
            a(f"buffer_load_dwordx2 v[{d}:{d+1}], v23, s[16:19], 0 offen offset:{tl*2048 + t*32}")
    for i in g2_addrs(): a(i)
    a("s_lshl_b32 s43, s34, 18")
    a("s_lshl_b32 s44, s35, 14")
    a("s_add_u32 s43, s43, s44")
    srd(a, 20, 32, 16384, add_lo=43, add_imm=WS_H)
    a("s_lshl_b32 s43, s34, 14")
    a("s_lshl_b32 s44, s35, 10")
    a("s_add_u32 s43, s43, s44")
    srd(a, 24, 32, 1024, add_lo=43, add_imm=WS_ST2)
    a("s_movk_i32 s50, 0x2000")
    a("s_mov_b32 s52, 0x3f803f80")
    a("v_lshrrev_b32 v19, 1, v18")
    a("v_lshl_add_u32 v19, v19, 4, v17")
    a("s_lshl_b32 s43, s36, 5")
    a("v_add_u32 v19, s43, v19")
    a("v_and_b32 v20, 1, v18")
    a("v_lshlrev_b32 v20, 2, v20")
    a("v_lshl_add_u32 v22, v19, 3, v20")
    a("s_waitcnt vmcnt(0)")
    for k in range(8):
        for h in range(2):
            a(f"v_lshlrev_b32 v{ACC+4*k+2*h}, 16, v{160+2*k+h}")
            a(f"v_and_b32 v{ACC+4*k+2*h+1}, 0xffff0000, v{160+2*k+h}")
    def o_first_setup():
        a("s_lshl_b32 s43, s34, 18")
        srd(a, 12, 32, 262144, add_lo=43, add_imm=WS_O)
        a("v_lshlrev_b32 v21, 4, v1")
        a("s_lshl_b32 s54, s36, 11")
    def o_first():
        for sg in range(2):
            for e in range(2):
                a(f"s_add_u32 m0, s54, {sg*SLOT + e*1024}")
                a(f"s_add_u32 s43, s54, {sg*16384 + e*1024}")
                a(f"buffer_load_dwordx4 v21, s[12:15], s43 offen{XF} lds")
    o_first_setup()
    a("s_barrier")
    o_first()
    a("s_waitcnt vmcnt(2)")
    a("s_barrier")
    stamp(a, 6)
    for i in g2_reads(0, SET[0]): a(i)
    g2_loop(a, 0, 16, 0, pres={0: 0, 1: None})
    stamp(a, 7)
    a("s_nop 4")
    P = 96
    for tl in range(2):
        for kb in range(2):
            o = P + (tl*2+kb)*4
            for hf in range(2):
                s = ACC + (tl*4 + 2*kb + hf)*4
                a(f"v_cvt_pk_bf16_f32 v{o+2*hf}, v{s}, v{s+1}")
                a(f"v_cvt_pk_bf16_f32 v{o+2*hf+1}, v{s+2}, v{s+3}")
            a(f"buffer_store_dwordx4 v[{o}:{o+3}], v2, s[20:23], {'s50' if kb else '0'} offen offset:{tl*256} sc1")
            a(f"ds_write_b128 v4, v[{o}:{o+3}] offset:{kb*8192 + tl*256}")
    for q in range(8):
        for tl in range(2):
            src = P + tl*8 + q
            a(f"v_dot2_f32_bf16 v{112+2*tl}, v{src}, s52, {'0' if q == 0 else 'v%d' % (112+2*tl)}")
            a(f"v_dot2_f32_bf16 v{113+2*tl}, v{src}, v{src}, {'0' if q == 0 else 'v%d' % (113+2*tl)}")
    a("s_nop 2")
    a("v_permlane32_swap_b32 v112, v114")
    a("v_permlane32_swap_b32 v113, v115")
    a("v_add_f32 v112, v112, v114")
    a("v_add_f32 v113, v113, v115")
    a("s_nop 1")
    a("v_permlane16_swap_b32 v112, v113")
    a("v_add_f32 v112, v112, v113")
    a("buffer_store_dword v112, v22, s[24:27], 0 offen sc1")
    a("s_waitcnt vmcnt(0) lgkmcnt(0)")
    a("s_barrier")
    Ls = a.label("Lsig")
    a("s_cmp_lg_u32 s36, 0")
    a(f"s_cbranch_scc1 {Ls}")
    flag_signal(a, 56, "h", 34, v=19)
    a(f"{Ls}:")
    stamp(a, 8)
    a("s_lshl_b32 s53, s47, 2")
    for i in k3_addrs(4, 53): a(i)
    for i in range(128): a(f"v_mov_b32 v{ACC+i}, 0")
    for i in k3_dma_setup(1, 51, first=2): a(i)
    for i in epi_store_setup(0): a(i)
    def out_setup():
        r = ["s_lshl_b32 s43, s34, 18", "s_lshl_b32 s44, s35, 7", "s_add_u32 s43, s43, s44",
             "s_add_u32 s16, s62, s43", "s_addc_u32 s17, s63, 0", f"s_mov_b32 s18, {127*2048 + 128}", "s_mov_b32 s19, 0x20000",
             "s_lshl_b32 s43, s46, 6", "v_lshl_add_u32 v19, v17, 1, s43", "v_lshlrev_b32 v19, 11, v19",
             "v_and_b32 v20, 1, v18", "v_lshl_add_u32 v19, v20, 5, v19", "v_lshrrev_b32 v20, 1, v18", "v_lshl_add_u32 v19, v20, 4, v19",
             "s_lshl_b32 s43, s47, 6", "v_add_u32 v28, s43, v19"]
        for d, flip in ((64, 0), (68, 1)):
            r += ["s_lshl_b32 s43, s34, 4", "s_add_u32 s43, s43, s35", f"s_xor_b32 s43, s43, {flip}", "s_lshl_b32 s43, s43, 15", f"s_add_u32 s43, s43, {WS_X}",
                  f"s_add_u32 s{d}, s32, s43", f"s_addc_u32 s{d+1}, s33, 0", f"s_mov_b32 s{d+2}, 32768", f"s_mov_b32 s{d+3}, 0x20000"]
        return r
    for i in out_setup(): a(i)
    def x_first_setup():
        a("s_lshl_b32 s43, s34, 18")
        srd(a, 12, 32, 262144, add_lo=43, add_imm=WS_H)
        a("v_lshlrev_b32 v21, 4, v1")
        a("s_lshl_b32 s54, s36, 11")
        for sg in (1, 2):
            a(f"s_add_u32 s43, s35, {sg}")
            a("s_and_b32 s43, s43, 15")
            a("s_lshl_b32 s43, s43, 14")
            a(f"s_add_u32 s{29+sg}, s43, s54")
    def x_first():
        for sg in (1, 2):
            for e in range(2):
                a(f"s_add_u32 m0, s54, {((sg+2) % 3)*REG + e*1024}")
                a(f"s_add_u32 s43, s{29+sg}, {e*1024}")
                a(f"buffer_load_dwordx4 v21, s[12:15], s43 offen{XF} lds")
    x_first_setup()
    for i in k3_reads(4, 0, 0, SET[0]): a(i)
    a("s_waitcnt lgkmcnt(0)")
    for i in interleave(k3_mfmas(4, SET[0]), k3_reads(4, 0, 1, SET[1])): a(i)
    a("s_waitcnt lgkmcnt(0)")
    for i in k3_mfmas(4, SET[1]): a(i)
    a("s_barrier")
    x_first()
    a("s_waitcnt vmcnt(2)")
    a("s_barrier")
    stamp(a, 9)
    if PRIO: a("s_setprio 1")
    for i in k3_reads(4, 1, 0, SET[0]): a(i)
    k3_consumer(a, 4, 1, [0], n=15)
    stamp(a, 10)
    EA = epi_a()
    if "e" in STRIP: EA = [i for i in EA if i.startswith(ST)]
    ea = chunks(EA, env("EA_N", 13))
    SIG_A0 = 16 + last_with(ea, "0") + 2
    SIG_A1 = 16 + last_with(ea, "1") + 2
    HL = SIG_A0 - 1
    assert 16 + len(ea) <= 31 and SIG_A0 <= 28 and HL <= 27 and SIG_A1 in (29, 30)
    L3h = a.label("L3h"); LK4 = a.label("LK4")
    RD = 192
    def resid_loads():
        r = ["v_lshlrev_b32 v19, 11, v18", "v_lshl_add_u32 v19, v17, 4, v19", "s_lshl_b32 s43, s46, 10", "s_lshl_b32 s44, s47, 13",
             f"v_add3_u32 v{RD+16}, v19, s43, 0", f"v_add_u32 v{RD+16}, s44, v{RD+16}"]
        for tl in range(4):
            r.append(f"buffer_load_dwordx4 v[{RD+4*tl}:{RD+4*tl+3}], v{RD+16}, s[20:23], 0 offen offset:{tl*256} sc1")
        return r
    def resid_unpack():
        r = []
        for k in range(4):
            for q in range(4):
                r.append(f"v_lshlrev_b32 v{ACC+8*k+2*q}, 16, v{RD+4*k+q}")
                r.append(f"v_and_b32 v{ACC+8*k+2*q+1}, 0xffff0000, v{RD+4*k+q}")
        return r
    extra = {HL: resid_loads(), 17: k4_addrs(), 29: resid_unpack(), 30: [f"v_mov_b32 v{AS+i}, 0" for i in range(32)]}
    assert HL + 2 <= 28 and HL > 19
    a("s_cmp_eq_u32 s36, 3")
    a(f"s_cbranch_scc1 {L3h}")
    for helper in (False, True):
        vm = VM(a)
        if helper: a(f"{L3h}:")
        m = k3_mfmas(4, SET[1])
        emit(a, vm, m if helper else spread(m, k3_items(18)), 18)
        if PRIO: a("s_setprio 0")
        emit(a, vm, epi_reads(4, 0) + ["s_waitcnt lgkmcnt(0)"] + epi_consts(KA), None)
        if helper and env("K3PF", 0):
            k3pf = K3PF(a, 1)
            k3pf.setup()
            for s in range(3, env("K3PD", 6)): k3pf.issue(s)
        a("s_barrier")
        if helper: stampc(a, "k3", 16)
        for sig in range(16, 31):
            body = (list(ea[sig-16]) if sig-16 < len(ea) else []) + extra.get(sig, [])
            if helper:
                if sig == SIG_A0: flag_signal(a, 56, "hha0", 34, v=21)
                if sig == SIG_A1: flag_signal(a, 56, "hha1", 34, v=22)
                if sig == 28: flag_poll_issue(a, 56, "hha0", 34, v=21)
                if env("K3PF", 0) and sig - 16 + env("K3PD", 6) < 16: k3pf.issue(sig - 16 + env("K3PD", 6))
                if env("K3_SPF", 1) and sig == env("S3C", 18):
                    sp = SPF3(a); sp.setup(1); sp.issue(8)
                if env("K4_SPF", 1) and sig == env("S4A", 25):
                    sp = SPF4(a); sp.setup(); sp.issue(0)
                if sig == 25 and env("K4PF", 0):
                    pf_w64(a, KA_WD, 3584, list(range(env("K4PF0", 0), env("K4PF", 0)//MX)), 80, 29, 30)
                assert T1 >= 4
                emit(a, vm, body, None)
                if sig == SIG_A0 - 1: a(vm.wait("st0"))
                if sig == SIG_A1 - 1: a(vm.wait("st1"))
                if sig == HL + 2: a(vm.wait("x"))
                if sig == 28: flag_poll_finish(a, 56, v=21)
            else:
                if sig + 3 <= 31:
                    emit(a, vm, st_last(spread(body, k3_items(sig+3), env("FR3", 100))), sig+3)
                else:
                    if sig == 29: emit(a, vm, k4_dma_setup(0), None)
                    emit(a, vm, spread(body, k4_items(sig - 29)), ("k4", sig - 29))
                w = vm.cnt(sig+2) if sig + 2 <= 31 else vm.cnt(("k4", 0))
                if sig == SIG_A0 - 1: w = min(w, vm.cnt("st0"))
                if sig == SIG_A1 - 1: w = min(w, vm.cnt("st1"))
                if sig == HL + 2: w = min(w, vm.cnt("x"))
                a(f"s_waitcnt vmcnt({w})")
            a("s_barrier")
            if helper: stampc(a, "k3", sig+1)
        if not helper: a(f"s_branch {LK4}")
    a(f"{LK4}:")
    stamp(a, 11)
    if PRIO: a("s_setprio 1")
    for i in k4_reads(0): a(i)
    a("s_mov_b32 s54, 0x10000")
    XB = env("XBF", 1)
    def xch(op, reg, sd, n=8):
        return [f"buffer_{op}_dwordx4 v[{reg+4*t}:{reg+4*t+3}], v9, s[{sd}:{sd+3}], {'s52' if t >= 4 else '0'} offen offset:{(t & 3)*1024} sc1" for t in range(n)]
    if XB:
        st_ = xch("store", RECV, 64, 4)
        xs = chunks([[f"v_cvt_pk_bf16_f32 v{RECV+4*tl+q}, v{AS+8*tl+2*q}, v{AS+8*tl+2*q+1}" for q in range(4)] + [st_[tl]] for tl in range(4)], XSN)
        xs = [flat(c) for c in xs]
        xl = xch("load", AS, 68, 4)
        xu = ["s_waitcnt vmcnt(0)"]
        for k in range(16): xu += [f"v_lshlrev_b32 v{RECV+2*k}, 16, v{AS+k}", f"v_and_b32 v{RECV+2*k+1}, 0xffff0000, v{AS+k}"]
    else:
        xs = chunks(xch("store", AS, 64), XSN); xl = xch("load", RECV, 68); xu = []
    pos = 0
    while pos < NP4:
        if pos == T1:
            nl = (EB4 - 1 - T1)//4
            L = a.label("Lk4")
            a(f"s_mov_b32 s41, {nl}")
            a(f"{L}:")
            for q in range(4): k4_stage(a, pos + q)
            a("s_sub_u32 s41, s41, 1")
            a("s_cmp_lg_u32 s41, 0")
            a(f"s_cbranch_scc1 {L}")
            pos += 4*nl
        k4_stage(a, pos, pre=0 if pos in (0, XSIG) else None,
                 extra=xs[pos - EB4] if EB4 <= pos < EB4 + XSN else xl if pos == XRCV else xu if pos == NP4 - 1 else [])
        pos += 1
    stamp(a, 12)
    a("s_waitcnt vmcnt(0)")
    a("s_nop 4")
    for tl in range(4):
        b = AK + 8*tl; o = 32 + 4*tl
        for q in range(0, 8, 2): a(f"v_pk_add_f32 v[{b+q}:{b+q+1}], v[{b+q}:{b+q+1}], v[{RECV+8*tl+q}:{RECV+8*tl+q+1}]")
        for q in range(4): a(f"v_cvt_pk_bf16_f32 v{o+q}, v{b+2*q}, v{b+2*q+1}")
    for tl in range(4):
        o = 32 + 4*tl
        a(f"v_permlane16_swap_b32 v{o}, v{o+2}")
        a(f"v_permlane16_swap_b32 v{o+1}, v{o+3}")
        a(f"buffer_store_dwordx4 v[{o}:{o+3}], v28, s[16:19], {'s54' if tl >= 2 else '0'} offen offset:{(tl & 1)*2048}")
    if STAMP:
        a("s_waitcnt vmcnt(0)")
        stamp(a, 13)
        stamp_flush(a)
    a(f"s_branch {Ld}")

    a(f"{LG1}:")
    L7 = a.label("L7"); LK3b = a.label("LK3b"); LP3 = a.label("LP3")
    a("s_cmp_eq_u32 s36, 7")
    a(f"s_cbranch_scc1 {L7}")
    for i in g2_dma_setup(51, WS_O, 262144, 262144, 1024, 28, vA=23): a(i)
    o_first_setup()
    Lp = [a.label("Lp") for _ in range(3)]
    for p in range(1, 3):
        a(f"s_cmp_eq_u32 s51, {p}")
        a(f"s_cbranch_scc1 {Lp[p]}")
    for p in range(3):
        a(f"{Lp[p]}:")
        vm = VM(a)
        def st2(s): emit(a, vm, flat(g2_items(s % 6, vA=23)), s)
        if p == 2:
            for s in range(6): st2(s)
        if CSM == "d": cs_spre(a, 3)
        if p == 0: flag_poll(a, 56, "o", 34, v=8)
        a("s_barrier")
        o_first(); vm.add(0, 2); vm.add(1, 2)
        if p < 2:
            a("s_add_u32 s37, s37, 32768")
            for s in range(2, 6): st2(s)
        a(vm.wait(0))
        a("s_barrier")
        for s in range(16):
            if s < 15: a(vm.wait(s+1))
            a("s_barrier")
            if s + 6 < 16: st2(s+6)
            rest = SPR - 3 - 2*(SPE - 2) - s*env("CS_RPS", 2)
            if rest > 0 and CSM == "d": cs_spre(a, min(rest, env("CS_RPS", 2)))
            if s == 10:
                for i in k3_dma_setup(0, 51): a(i)
            if s in (11, 13)[:env("EW", 2)] and p > 0:
                emit(a, vm, flat(k3_items((s-11)//2)), "w%d" % ((s-11)//2))
        if p > 0: a(vm.wait("w0"))
        a("s_barrier")
        if p == 0:
            a("s_add_u32 s42, s42, 3")
            flag_poll(a, 56, "h", 34, v=8)
        else:
            for w in range(env("EW", 2), 3): emit(a, vm, flat(k3_items(w)), "w")
        if p < 2: a(f"s_branch {LP3}")
    a(f"{LP3}:")
    SWD = env("SWD", 1)
    wd_base = ["s_mul_i32 s43, s2, 28672", "s_mul_i32 s44, s51, 7168", "s_add_u32 s43, s43, s44", "s_add_u32 s80, s60, s43", "s_addc_u32 s81, s61, 0"]
    def swd(sig, w7=False):
        n = 9 if sig <= 8 else 8 if 10 <= sig <= 12 else 7 if sig == 13 else 0
        if w7: n = 0 if sig in (6, 9) or sig > 12 else 11 if sig <= 8 else 8
        if not SWD or not n: return []
        return [f"s_load_dword s{64+q}, s[80:81], {64*q}" for q in range(n)] + [f"s_add_u32 s80, s80, {64*n}", "s_addc_u32 s81, s81, 0"]
    for i in wd_base: a(i)
    x_first_setup()
    a("s_barrier")
    x_first()
    for i in flat(k3_items(3)) + swd(0): a(i)
    a("s_waitcnt vmcnt(18)")
    a("s_barrier")
    a("s_waitcnt vmcnt(16)")
    a("s_barrier")
    def pst(sig, body=[], pre=[], post=[]):
        for i in pre + spread(body, k3_items(sig+3)) + post + swd(sig): a(i)
        a("s_waitcnt vmcnt(16)")
        a("s_barrier")
    L = a.label("Lp3")
    a("s_mov_b32 s41, 2")
    a(f"{L}:")
    for sig in range(1, 4): pst(sig)
    a("s_sub_u32 s41, s41, 1")
    a("s_cmp_lg_u32 s41, 0")
    a(f"s_cbranch_scc1 {L}")
    pst(7); pst(8)
    bs = ["s_and_b32 s53, s35, 1", "s_lshl_b32 s53, s53, 1", "s_mul_i32 s43, s47, 3", "s_add_u32 s53, s53, s43"] + k3_addrs(3, 53)
    binit = []
    for mat in range(2):
        for j in range(3):
            for tl in range(4):
                for q in range(4):
                    binit.append(f"v_mul_f32 v{k3_acc(3, mat, j, tl)+q}, -v{TT+2*tl}, v{CSR+(mat*3+j)*4+q}")
    bi = chunks(binit, 3)
    BODY = {9: bs + epi_reads(3, 128), 10: ["s_waitcnt lgkmcnt(0)"] + epi_consts(KBB, False), 11: bi[0], 12: bi[1], 13: bi[2]}
    k4set = k4_dma_setup(2)
    for sig in range(9, 15):
        pst(sig, BODY.get(sig, []), pre=k3_dma_setup(1, 51) if sig == 13 else [], post={14: k4set, 10: epi_store_setup(1)}.get(sig, []))
    a(f"s_branch {LK3b}")

    a(f"{L7}:")
    NB2 = 19
    Lno = a.label("Lnojob"); Lcs = a.label("Lcsd")
    stampc(a, "k2", 0)
    cs_setup(a, Lno, 64, 4)
    a("s_lshl_b32 s55, s45, 1")
    a("s_add_u32 s55, s55, s44")
    a("s_mul_i32 s55, s55, 14336")
    a("s_lshl_b32 s45, s46, 9")
    a("s_add_u32 s55, s55, s45")
    a("v_lshl_add_u32 v5, v5, 5, s55")
    srd(a, 72, 32, 8*14336, add_imm=WS_CS)
    for i in range(8): a(f"v_mov_b32 v{32+i}, 0")
    NF = CS_NF
    a("s_mov_b32 s52, 0x00003f80")
    a("s_mov_b32 s53, 0x3f800000")
    def proc(n):
        for d in range(4):
            for h in range(2):
                a(f"v_dot2_f32_bf16 v{32+2*d+h}, v{128+4*(n % NF)+d}, s{52+h}, v{32+2*d+h}")
    def mpf():
        if env("MPF", 0):
            a("s_mul_i32 s43, s2, 28672")
            srd(a, 76, 60, 28672, add_lo=43)
            a("v_lshlrev_b32 v19, 7, v1")
            for q in range(4):
                a(f"s_mov_b32 s43, {q*8192}")
                a("buffer_load_dword v30, v19, s[76:79], s43 offen")
    if STAMPC != "k1" and CSM == "d": cs_spre(a, 2, 82, 6)
    for n in range(NF):
        proc(n)
        if CSM == "e": cs_issue(a, NF + n, 64, 4)
    o_first_setup()
    CL0 = env("CS_L0", 1); CLN = env("CS_LN", 4); CPD = env("CS_PD", 5)
    lim = 2*(SPE - 2) + 3 + env("CS_LIM", 99)
    early = [q for q in range(NF) if all((4*q + r) % SPR < lim for r in range(4))]
    early.sort(key=lambda q: max(max(0, (4*q + r) % SPR - 2*(SPE - 2) - 2) for r in range(4)))
    early = early[:len(early)//CLN*CLN]
    late = [q for q in range(NF) if q not in early]
    nl = len(early)//CLN
    assert CL0 + nl + CPD <= 17
    def ld2(slot, q):
        a(f"s_mov_b32 s43, {(NF + q)*4*7168}")
        a(f"buffer_load_dwordx4 v[{128+4*slot}:{128+4*slot+3}], v4, s[64:67], s43 offen")
    def cs_finish():
        a("s_nop 2")
        for sw in ("16", "32"):
            for d in range(8): a(f"v_mov_b32 v{40+d}, v{32+d}")
            a("s_nop 0")
            for d in range(8): a(f"v_permlane{sw}_swap_b32 v{32+d}, v{40+d}")
            for d in range(8): a(f"v_add_f32 v{32+d}, v{32+d}, v{40+d}")
        a("s_mov_b64 exec, 0xffff")
        a("buffer_store_dwordx4 v[32:35], v5, s[72:75], 0 offen sc1")
        a("buffer_store_dwordx4 v[36:39], v5, s[72:75], 0 offen offset:16 sc1")
        a("s_mov_b64 exec, -1")
    for q in range(NB2):
        st = q - 3
        if q == 1:
            o_first()
            a("s_waitcnt vmcnt(2)")
        if q == 2: a("s_waitcnt vmcnt(0)")
        if CL0 <= st < CL0 + nl and CSM == "d":
            for n in range(CLN): ld2((st-CL0)*CLN + n, early[(st-CL0)*CLN + n])
        if CL0 + CPD <= st < CL0 + CPD + nl:
            b = st - CL0 - CPD
            if CSM == "d": a(f"s_waitcnt vmcnt({CLN*min(CPD, nl - 1 - b)})")
            for n in range(CLN): proc(b*CLN + n)
        if not late and st == CL0 + CPD + nl - 1: cs_finish()
        if st == env("CS_LT", 16) - 1:
            for n, qq in enumerate(late): ld2(len(early) + n, qq)
        a("s_barrier")
        stampc(a, "k2", q+1)
    if env("CS_LT", 16) > 16:
        for n, qq in enumerate(late): ld2(len(early) + n, qq)
    if late:
        a("s_waitcnt vmcnt(0)")
        for n in range(len(late)): proc(len(early) + n)
        cs_finish()
    a("s_waitcnt vmcnt(0)")
    flag_signal(a, 56, "cs", None, v=12)
    mpf()
    a(f"s_branch {Lcs}")
    a(f"{Lno}:")
    o_first_setup()
    for q in range(NB2):
        if q == 1:
            o_first()
            a("s_waitcnt vmcnt(2)")
        if q == 2: a("s_waitcnt vmcnt(0)")
        a("s_barrier")
        stampc(a, "k2", q+1)
    mpf()
    a(f"{Lcs}:")
    a("s_mov_b32 s46, 1")
    x_first_setup()
    k3pf = K3PF(a, 0)
    PD = env("K3PD", 6)
    if env("K3PF", 0) or env("K3PF0", 0):
        k3pf.setup()
        for s in range(3, max(PD, env("K3PF0", 0))): k3pf.issue(s)
    S3 = env("K3_SPF", 1); S4 = env("K4_SPF", 1)
    sp3 = SPF3(a)
    if S3:
        sp3.setup(0); sp3.issue(3)
    a("s_lshl_b32 s43, s34, 14")
    srd(a, 64, 32, 16384, add_lo=43, add_imm=WS_ST2)
    srd(a, 72, 32, 8*14336, add_imm=WS_CS)
    a("s_barrier")
    stampc(a, "k2", 20)
    x_first()
    a("s_waitcnt vmcnt(2)")
    a("s_barrier")
    stampc(a, "k2", 21)
    stampc(a, "k3", 31)
    stampc(a, "k3", 0)
    def w7dst(i):
        if not i.startswith("s_load_dword"): return i
        q = int(i.split()[1][1:-1]) - 64
        return i.replace(f"s{64+q},", f"s{82 + q % 6},")
    STL = env("STL", 1); CSP = STL + 3
    for sig in range(15):
        if sig == 0:
            a("s_waitcnt vmcnt(0)")
        if S3 and sig == env("S3A", 5): sp3.issue(8)
        if S3 and sig == env("S3B", 10):
            sp3.setup(1); sp3.issue(0)
        if sig == STL + 1: flag_poll_issue(a, 56, "cs", None, v=12)
        if sig == STL:
            for n in range(16):
                a(f"s_mov_b32 s43, {n*1024}")
                a(f"buffer_load_dwordx4 v[{128+4*n}:{128+4*n+3}], v21, s[64:67], s43 offen sc1")
        if env("K3PF", 0) and sig >= 1:
            if sig + PD - 1 < 16: k3pf.issue(sig + PD - 1)
            elif sig + PD - 1 == 16:
                k3pf.part = 1; k3pf.setup()
            if 16 <= sig + PD - 1 < 19: k3pf.issue(sig + PD - 1 - 16)
        if sig == CSP:
            flag_poll_finish(a, 56, v=12)
            a("v_min_u32 v12, 55, v1")
            a("v_lshlrev_b32 v13, 4, v12")
            a("s_lshl_b32 s43, s35, 9")
            a("s_mul_i32 s44, s35, 384")
            a(f"s_add_u32 s44, s44, {8192 - 512}")
            a("v_mov_b32 v14, s44")
            a("v_mov_b32 v15, s43")
            a("v_cmp_gt_u32 vcc, 32, v12")
            a("s_nop 1")
            a("v_cndmask_b32 v14, v14, v15, vcc")
            a("v_add_u32 v14, v14, v13")
            a(f"v_add_u32 v13, {CSF}, v13")
            for mat in range(2):
                for sl in range(4):
                    d = 192 + (mat*4+sl)*4
                    a(f"s_mov_b32 s43, {(sl*2+mat)*14336}")
                    a(f"buffer_load_dwordx4 v[{d}:{d+3}], v14, s[72:75], s43 offen sc1")
        if sig == CSP + 1:
            for n in range(1, 16):
                for q in range(4): a(f"v_add_f32 v{128+q}, v{128+q}, v{128+4*n+q}")
            for b in (128, 130):
                a(f"v_mul_f32 v{b}, 0x3a800000, v{b}")
                a(f"v_mul_f32 v{b+1}, 0x3a800000, v{b+1}")
                a(f"v_fma_f32 v{b+1}, -v{b}, v{b}, v{b+1}")
                a(f"v_max_f32 v{b+1}, 0, v{b+1}")
                a(f"v_add_f32 v{b+1}, 0x3727c5ac, v{b+1}")
                a(f"v_rsq_f32 v{b+1}, v{b+1}")
            a(f"v_add_u32 v19, {STATS}, v21")
            a("ds_write_b128 v19, v[128:131]")
        if sig == CSP + 3:
            a("s_waitcnt vmcnt(0)")
            for mat in range(2):
                b = 192 + mat*16
                for q in range(4):
                    a(f"v_add_f32 v{b+q}, v{b+q}, v{b+4+q}")
                    a(f"v_add_f32 v{b+8+q}, v{b+8+q}, v{b+12+q}")
                for q in range(4): a(f"v_add_f32 v{b+q}, v{b+q}, v{b+8+q}")
                a(f"ds_write_b128 v13, v[{b}:{b+3}] offset:{mat*896}")
            a("s_waitcnt lgkmcnt(0)")
            assert sig < 9
        for i in BODY.get(sig, []) + (epi_store_setup(1) if sig == 10 else []) + (wd_base if sig == 0 else []) + (k4set if sig == 14 else []): a(i)
        assert CSP + 2 == 6
        if STAMPC != "k3":
            for i in swd(sig, True): a(w7dst(i))
        a("s_barrier")
        stampc(a, "k3", sig+1)

    a(f"{LK3b}:")
    stamp(a, 10)
    if PRIO: a("s_setprio 1")
    for i in k3_reads(3, 16, 0, SET[0]): a(i)
    k3_consumer(a, 3, 16, [0])
    stamp(a, 11)
    EB = epi_b()
    if "e" in STRIP: EB = [i for i in EB if i.startswith(ST)]
    eb = chunks(EB, env("EB_N", 8))
    SIG_B = last_with(eb, "0") + env("SIGB_D", 2)
    POLL_A1 = PA1 - 5; POLL_B = PB - 5
    UNI = PB - 4
    assert len(eb) <= UNI and SIG_B < POLL_B
    L7b = a.label("L7b")
    a("s_cmp_eq_u32 s36, 7")
    a(f"s_cbranch_scc1 {L7b}")
    for helper in (False, True):
        vm = VM(a)
        if helper: a(f"{L7b}:")
        m = k3_mfmas(3, SET[1])
        if helper:
            emit(a, vm, m, None)
            a(f"s_mul_i32 s43, s38, {16*(T1-2)}")
            a("s_add_u32 s37, s37, s43")
        else:
            emit(a, vm, spread(m[:12], k4_items(2)), 2)
            emit(a, vm, spread(m[12:], k4_items(3)), 3)
        if PRIO: a("s_setprio 0")
        a("s_barrier")
        if helper: stampc(a, "k4", 0 - env("K4O", 0))
        def pslice(s, kind):
            body = eb[s] if s < len(eb) else []
            dma = both(s + 4) if helper else s + 4 < NP4
            if helper:
                if s == SIG_B: flag_signal(a, 56, "hhb", 34, v=10); vm.add("f")
                if s == POLL_A1 - env("PLA", 2): flag_poll_issue(a, 56, "hha1", 34, v=10); vm.add("p")
                if s == POLL_B - env("PLB", 2): flag_poll_issue(a, 56, "hhb", 34, v=10); vm.add("p")
                if env("K4_SPF", 1):
                    if s == 0: sp4.setup()
                    for G, at in ((1, PA1 - env("S4B", 9)), (2, PB - env("S4C", 8)), (3, EB4 - env("S4D", 4))):
                        if s == at: sp4.issue(G); vm.add("f")
                if s == XSIG:
                    xflag_addr(a, 10, 0)
                    a("v_mov_b32 v11, 1")
                    a("s_mov_b64 exec, 1")
                    a("buffer_store_dword v11, v10, s[56:59], 0 offen sc1"); vm.add("f")
                    a("s_mov_b64 exec, -1")
                if s == XRCV - 1 - env("PLX", 2):
                    xflag_addr(a, 10, 1)
                    a("v_mov_b32 v12, 1")
                    a("buffer_load_dword v11, v10, s[56:59], 0 offen sc1"); vm.add("p")
            if s == UNI: a(f"s_mul_i32 s40, s53, {LB*16384 if kind == 'x' else LB*64*2048}")
            emit(a, vm, st_last(spread(body, k4_items(s+4, kind if s >= UNI else None), env("FR4", 100))) if dma else body, s+4)
            w = vm.cnt(s+2) if (both(s + 2) if helper else s + 2 < NP4) else 63
            if s == SIG_B - 1: w = min(w, vm.cnt("st0"))
            if w < 63: a(f"s_waitcnt vmcnt({w})")
            if helper and s in (POLL_A1, POLL_B, XRCV - 1): flag_poll_finish(a, 56, v=10, first=vm.cnt("p"))
            a("s_barrier")
            if helper: stampc(a, "k4", s+1 - env("K4O", 0))
        if helper:
            sp4 = SPF4(a)
            for s in range(NP4 - 1 if STAMPC == "k4" else XRCV): pslice(s, 'w')
            stamp(a, 12)
            stamp_flush(a)
            a(f"s_branch {Ld}")
        else:
            for s in range(UNI): pslice(s, None)
            LW = a.label("LW4")
            a("s_cmp_eq_u32 s51, 2")
            a(f"s_cbranch_scc1 {LW}")
            q0 = list(vm.q)
            for kind in ('x', 'w'):
                vm.q = list(q0)
                if kind == 'w': a(f"{LW}:")
                for s in range(UNI, NP4 - 2): pslice(s, kind)
                if STAMP:
                    stamp(a, 12)
                    stamp_flush(a)
                a(f"s_branch {Ld}")


NXS = 32 // MX
class XPF:
    G = NXS // 2
    def __init__(self, a, off, mul, sd=68, v=23):
        self.a = a; self.off = off; self.mul = mul; self.sd = sd; self.v = v
    def setup(self):
        a = self.a; v = self.v
        per = 128 // NXS
        a(f"s_mul_i32 s43, s34, {self.mul}")
        srd(a, self.sd, 32, self.mul, add_lo=43, add_imm=self.off)
        a(f"v_and_b32 v{v}, {per-1}, v1")
        a(f"s_mul_i32 s43, s49, {per}")
        a(f"v_add_u32 v{v}, s43, v{v}")
        a(f"v_lshlrev_b32 v{v}, 7, v{v}")
        a(f"v_lshrrev_b32 v19, {per.bit_length()-1}, v1")
        a(f"v_lshl_add_u32 v{v}, v19, 14, v{v}")
    def issue(self, st):
        a = self.a
        a(f"s_mov_b32 s43, {st*16384}")
        a(f"buffer_load_dword v30, v{self.v}, s[{self.sd}:{self.sd+3}], s43 offen sc1")


class K3PF:
    def __init__(self, a, part): self.a = a; self.part = part
    def setup(self):
        a = self.a
        if self.part == 0: a("s_lshl_b32 s43, s35, 8")
        else:
            a("s_mul_i32 s43, s35, 192")
            a("s_and_b32 s43, s43, 0xffffff80")
            a("s_add_u32 s43, s43, 4096")
        a("s_sub_u32 s44, 7340032, s43")
        for d, b in ((88, 4), (92, 6)):
            a(f"s_add_u32 s{d}, s{b}, s43")
            a(f"s_addc_u32 s{d+1}, s{b+1}, 0")
            a(f"s_mov_b32 s{d+2}, s44")
            a(f"s_mov_b32 s{d+3}, 0x20000")
        per = 64 // MX
        a("v_lshrrev_b32 v31, 1, v1")
        a(f"v_min_u32 v31, {min(per, 32)-1}, v31")
        a(f"s_mul_i32 s43, s48, {per}")
        a("v_add_u32 v31, s43, v31")
        a("v_mul_u32_u24 v31, 7168, v31")
        a("v_and_b32 v19, 1, v1")
        a("v_lshl_add_u32 v31, v19, 7, v31")
    def issue(self, st):
        a = self.a
        a(f"s_mov_b32 s43, {st*64*7168}")
        a("buffer_load_dword v30, v31, s[88:91], s43 offen")
        a("buffer_load_dword v30, v31, s[92:95], s43 offen")


class SPF3:
    def __init__(self, a): self.a = a
    def setup(self, part):
        a = self.a
        for d, b in ((88, 4), (92, 6)): srd(a, d, b, 7340032)
        a("s_lshr_b32 s43, s35, 3")
        a("v_and_b32 v19, 1, v1")
        a("v_bfe_u32 v23, v1, 2, 3")
        if part == 0:
            a("s_lshl_b32 s44, s43, 3")
            a("s_add_u32 s44, s44, 1")
            a("v_lshl_add_u32 v23, v19, 2, v23")
            a("v_add_u32 v23, s44, v23")
            a("s_lshl_b32 s43, s43, 11")
            a("s_add_u32 s43, s43, 384")
            a("s_movk_i32 s44, 1024")
        else:
            a("s_mul_i32 s44, s43, 10")
            a("s_add_u32 s44, s44, 2")
            a("v_add_u32 v23, s44, v23")
            a("s_lshl_b32 s44, s43, 2")
            a("s_sub_u32 s44, 5, s44")
            a("v_mad_u32_u24 v23, v19, s44, v23")
            a("s_lshl_b32 s44, s43, 10")
            a("s_xor_b32 s44, s44, 1024")
            a("s_lshl_b32 s43, s43, 11")
            a(f"s_add_u32 s43, s43, {35*128}")
        a("s_lshr_b32 s45, s2, 3")
        a("s_mul_i32 s45, s45, 14336")
        a("s_add_u32 s43, s43, s45")
        a("v_mul_lo_u32 v31, v19, s44")
        a("v_bfe_u32 v19, v1, 1, 1")
        a("v_mul_u32_u24 v19, 7168, v19")
        a("v_add3_u32 v31, v31, v19, s43")
    def issue(self, st):
        a = self.a
        a(f"v_add_u32 v19, {st}, v23")
        a("v_and_b32 v19, 15, v19")
        a(f"v_mul_u32_u24 v19, {64*7168}, v19")
        a("v_add_u32 v19, v19, v31")
        a("buffer_load_dword v30, v19, s[88:91], 0 offen")
        a("buffer_load_dword v30, v19, s[92:95], 0 offen")


class SPF4:
    def __init__(self, a): self.a = a
    def setup(self):
        a = self.a
        srd(a, 80, 60, 7340032)
        a("v_and_b32 v29, 31, v1")
        a("v_lshlrev_b32 v29, 11, v29")
        a("s_and_b32 s43, s35, 8")
        a("s_or_b32 s43, s43, 3")
        a("s_lshl_b32 s43, s43, 7")
        a("v_add_u32 v29, s43, v29")
    def issue(self, G):
        a = self.a
        a("s_lshr_b32 s44, s2, 3")
        if G == 3: a("s_and_b32 s44, s44, 15")
        a(f"s_lshl_b32 s44, s44, {17 if G < 2 else 16}")
        a(f"s_add_u32 s43, s44, {[0, 32, 2048, 3072][G]*2048}")
        a("buffer_load_dword v30, v29, s[80:83], s43 offen")
```

```python
import sys, os
sys.path.insert(0, os.path.dirname(__file__))
from common import *
import k1, p234

HEADER = open("sequential_preLN__sliding_local_dilated__glu_gated_geglu__prompt.s.ref").read().split("; Override launch")[0]

def build(path, aslist):
    a = Asm()
    name = "f_kernel" if aslist else "sequential_preLN__sliding_local_dilated__glu_gated_geglu__prompt_kernel"
    kernel_header(a, name)
    Ld = a.label("Ldone")
    a("s_cmp_ge_u32 s2, 256")
    a(f"s_cbranch_scc1 {Ld}")
    if os.environ.get("PROBE"):
        ka, nb = [int(x) for x in os.environ["PROBE"].split(",")]
        a(f"s_load_dwordx2 s[4:5], s[0:1], {ka}")
        a(f"s_mul_i32 s3, s2, {nb//256}")
        a("v_lshlrev_b32 v1, 7, v0")
        a("s_waitcnt lgkmcnt(0)")
        srd(a, 8, 4, nb//256, add_lo=3)
        a("buffer_load_dword v2, v1, s[8:11], 0 offen")
        a("s_waitcnt vmcnt(0)")
        a("s_barrier")
    k1.phase_k1(a)
    p234.phase_234(a, Ld)
    a(f"{Ld}:")
    a("s_endpgm")
    desc = kernel_desc(name, 256, 100, 256)
    k = f"kernel={name} " if aslist else ""
    out = HEADER + f"; @launch {k}grid=(256,1,1) block=(512,1,1) lds={LDS_TOTAL}\n" + '.amdgcn_target "amdgcn-amd-amdhsa--gfx950"\n.text\n' + a.text()
    out += '.section .rodata,"a"\n' + desc
    open(path, "w").write(out)

if __name__ == "__main__":
    build(sys.argv[1], len(sys.argv) > 2)
```

```python
WS_O   = 0
WS_H   = 4 << 20
WS_HH  = 8 << 20
WS_ST2 = 24 << 20
WS_ST1 = 25 << 20
WS_CS  = 26 << 20
WS_BYTES = 268435456

KA_X, KA_WQKV, KA_WO, KA_BX, KA_WG, KA_WU, KA_WD, KA_OUT, KA_DBG, KA_WS = [8*i for i in range(10)]


class Asm:
    def __init__(self):
        self.L = []
        self.uid = 0
    def __call__(self, s):
        for line in s.split("\n"):
            line = line.strip()
            if line:
                self.L.append(line)
    def label(self, base="L"):
        self.uid += 1
        return f"{base}_{self.uid}"
    def comment(self, s):
        self.L.append("; " + s)
    def text(self):
        return "\n".join(self.L) + "\n"


def kernel_header(a, name):
    a(f".globl {name}")
    a(".p2align 8")
    a(f".type {name},@function")
    a(f"{name}:")


def kernel_desc(name, vgpr, sgpr, accum):
    return f""".p2align 6
.amdhsa_kernel {name}
  .amdhsa_next_free_vgpr {vgpr}
  .amdhsa_next_free_sgpr {sgpr}
  .amdhsa_accum_offset {accum}
  .amdhsa_group_segment_fixed_size 0
  .amdhsa_kernarg_size 80
  .amdhsa_user_sgpr_count 2
  .amdhsa_user_sgpr_kernarg_segment_ptr 1
  .amdhsa_system_sgpr_workgroup_id_x 1
  .amdhsa_float_denorm_mode_32 3
  .amdhsa_float_denorm_mode_16_64 3
.end_amdhsa_kernel
"""


def srd(a, d, base, nbytes, add_lo=None, add_imm=0):
    if add_lo is not None:
        a(f"s_add_u32 s{d}, s{base}, s{add_lo}")
        a(f"s_addc_u32 s{d+1}, s{base+1}, 0")
        if add_imm:
            a(f"s_add_u32 s{d}, s{d}, {add_imm}")
            a(f"s_addc_u32 s{d+1}, s{d+1}, 0")
    elif add_imm:
        a(f"s_add_u32 s{d}, s{base}, {add_imm}")
        a(f"s_addc_u32 s{d+1}, s{base+1}, 0")
    else:
        a(f"s_mov_b32 s{d}, s{base}")
        a(f"s_mov_b32 s{d+1}, s{base+1}")
    a(f"s_mov_b32 s{d+2}, {nbytes}")
    a(f"s_mov_b32 s{d+3}, 0x20000")


def interleave(main, fill, start=0, every=1):
    out = []
    fi = 0
    for i, m in enumerate(main):
        out.append(m)
        if i >= start and (i - start) % every == 0 and fi < len(fill):
            out.append(fill[fi]); fi += 1
    out.extend(fill[fi:])
    return out


import os
STAMP = bool(os.environ.get("STAMP"))
REG = 49152
SLOT = 24576
STATS = 147456
CSF = 148480
DBG = 150528
LDS_TOTAL = 151552
WS_DBG = 28 << 20
HH_M = 448 * 2048

def stamp_init(a):
    if not STAMP: return
    a("s_lshl_b32 s96, s36, 7")
    a(f"s_add_u32 s96, s96, {DBG}")
    a("v_mov_b32 v26, s96")
STAMPC = os.environ.get("STAMPC", "")
def stampc(a, kind, idx):
    if kind != STAMPC or not 0 <= idx < 32: return
    a("s_memtime s[96:97]")
    a("s_waitcnt lgkmcnt(0)")
    a("v_mov_b32 v24, s96")
    a(f"ds_write_b32 v26, v24 offset:{4*idx}")
def stamp(a, idx):
    if not STAMP or STAMPC: return
    a("s_memtime s[96:97]")
    a("s_memrealtime s[98:99]")
    a("s_waitcnt lgkmcnt(0)")
    a("v_mov_b32 v24, s96")
    a("v_mov_b32 v25, s98")
    a(f"ds_write_b64 v26, v[24:25] offset:{8*idx}")
def stamp_flush(a):
    if not STAMP: return
    a("s_waitcnt lgkmcnt(0)")
    a("v_and_b32 v24, 31, v1")
    a("v_lshlrev_b32 v24, 2, v24")
    a("v_add_u32 v25, v26, v24")
    a("ds_read_b32 v25, v25")
    a(f"s_add_u32 s96, s32, {WS_DBG}")
    a("s_addc_u32 s97, s33, 0")
    a("s_mov_b32 s98, 262144")
    a("s_mov_b32 s99, 0x20000")
    a("s_lshl_b32 s94, s2, 3")
    a("s_add_u32 s94, s94, s36")
    a("s_lshl_b32 s94, s94, 7")
    a("s_waitcnt lgkmcnt(0)")
    a("buffer_store_dword v25, v24, s[96:99], s94 offen")

WS_FLG = 27 << 20
FLG = {"o": (0, 16), "h": (16, 16), "hha0": (32, 16), "hha1": (48, 16), "hhb": (64, 16), "cs": (96, 8), "ln": (80, 16)}

def flag_srd(a, d, ws_pair=32):
    srd(a, d, ws_pair, 256*128, add_imm=WS_FLG)

def flag_addr(a, kind, idx_sgpr, v):
    if idx_sgpr is None: a(f"v_mov_b32 v{v}, {FLG[kind][0] << 7}")
    else:
        a(f"s_add_u32 s43, s{idx_sgpr}, {FLG[kind][0]}")
        a("s_lshl_b32 s43, s43, 7")
        a(f"v_mov_b32 v{v}, s43")

def flag_signal(a, d, kind, idx_sgpr, v=5):
    flag_addr(a, kind, idx_sgpr, v)
    a(f"v_mov_b32 v{v+1}, 1")
    a("s_mov_b64 exec, 1")
    a(f"buffer_atomic_add v{v+1}, v{v}, s[{d}:{d+3}], 0 offen sc1")
    a("s_mov_b64 exec, -1")

def flag_poll_issue(a, d, kind, idx_sgpr, v=8):
    flag_addr(a, kind, idx_sgpr, v)
    a(f"v_mov_b32 v{v+2}, {FLG[kind][1]}")
    a(f"buffer_load_dword v{v+1}, v{v}, s[{d}:{d+3}], 0 offen sc1")

def flag_poll_finish(a, d, v=8, first=0):
    Lp = a.label("Lpoll"); Lo = a.label("Lpok"); Lf = a.label("Lpf")
    a("s_mov_b32 s41, 0x10000")
    if first:
        a(f"s_waitcnt vmcnt({first})")
        a(f"s_branch {Lf}")
    a(f"{Lp}:")
    a("s_waitcnt vmcnt(0)")
    a(f"{Lf}:")
    a(f"v_cmp_ne_u32 vcc, v{v+2}, v{v+1}")
    a("s_nop 4")
    a(f"s_cbranch_vccz {Lo}")
    a(f"buffer_load_dword v{v+1}, v{v}, s[{d}:{d+3}], 0 offen sc1")
    a("s_sub_u32 s41, s41, 1")
    a("s_cmp_lg_u32 s41, 0")
    a(f"s_cbranch_scc1 {Lp}")
    a("s_waitcnt vmcnt(0)")
    a(f"{Lo}:")

def flag_poll(a, d, kind, idx_sgpr, v=8):
    NP = int(os.environ.get("NPOLL", "1"))
    if NP <= 1:
        flag_poll_issue(a, d, kind, idx_sgpr, v)
        flag_poll_finish(a, d, v)
        return
    flag_addr(a, kind, idx_sgpr, v)
    a(f"v_mov_b32 v{v+1}, {FLG[kind][1]}")
    Lp = a.label("Lpoll"); Lo = a.label("Lpok")
    a("s_mov_b32 s41, 0x8000")
    for q in range(NP - 1):
        a(f"buffer_load_dword v{v+2+q}, v{v}, s[{d}:{d+3}], 0 offen sc1")
        a(f"s_sleep {int(os.environ.get('PSLEEP', '3'))}")
    a(f"{Lp}:")
    for q in range(NP):
        a(f"buffer_load_dword v{v+2+(q+NP-1) % NP}, v{v}, s[{d}:{d+3}], 0 offen sc1")
        a(f"s_waitcnt vmcnt({NP-1})")
        a(f"v_cmp_ne_u32 vcc, v{v+1}, v{v+2+q}")
        a("s_nop 4")
        a(f"s_cbranch_vccz {Lo}")
    a("s_sub_u32 s41, s41, 1")
    a("s_cmp_lg_u32 s41, 0")
    a(f"s_cbranch_scc1 {Lp}")
    a(f"{Lo}:")

MX = int(os.environ.get("MX", "4"))
def mapping(a):
    lg = MX.bit_length() - 1
    a("s_and_b32 s3, s2, 7")
    a("s_lshr_b32 s42, s2, 3")
    if os.environ.get("MAPSWAP"):
        a(f"s_lshr_b32 s48, s42, {5-lg}")
        a(f"s_and_b32 s49, s42, {32//MX-1}")
    else:
        a(f"s_and_b32 s48, s42, {MX-1}")
        a(f"s_lshr_b32 s49, s42, {lg}")
    a(f"s_and_b32 s34, s3, {16//MX - 1}")
    a(f"s_lshl_b32 s34, s34, {lg}")
    a("s_add_u32 s34, s34, s48")
    a(f"s_lshr_b32 s35, s3, {4-lg}")
    a(f"s_lshl_b32 s35, s35, {5-lg}")
    a("s_add_u32 s35, s35, s49")

def pf_w64(a, W_ka, K, groups, sd, v, vd, lane=1):
    per = 64 // MX
    lgp = per.bit_length() - 1
    a(f"s_load_dwordx2 s[{sd+4}:{sd+5}], s[0:1], {W_ka}")
    a("s_lshl_b32 s43, s35, 7")
    a(f"s_lshl_b32 s44, s48, {lgp}")
    a(f"v_and_b32 v{v}, {per-1}, v{lane}")
    a(f"v_add_u32 v{v}, s44, v{v}")
    a(f"v_lshrrev_b32 v19, {lgp}, v{lane}")
    a(f"v_lshl_add_u32 v{v}, v19, 6, v{v}")
    a(f"v_lshlrev_b32 v{v}, 11, v{v}")
    a("s_waitcnt lgkmcnt(0)")
    srd(a, sd, sd+4, K*2048 - 1920, add_lo=43)
    for g in groups: pf_w64_issue(a, g, sd, v, vd)
    return len(groups)
def pf_w64_issue(a, g, sd, v, vd):
    a(f"s_mov_b32 s43, {g*MX*131072}")
    a(f"buffer_load_dword v{vd}, v{v}, s[{sd}:{sd+3}], s43 offen")

CS_NF = 32
def cs_setup(a, Lno, sd, va):
    a("s_lshr_b32 s43, s2, 5")
    a("s_cmp_eq_u32 s43, 3")
    a(f"s_cbranch_scc1 {Lno}")
    a("s_cmp_gt_u32 s43, 3")
    a("s_cselect_b32 s43, 32, 0")
    a("s_sub_u32 s43, s2, s43")
    a("s_lshr_b32 s43, s43, 1")
    a("s_and_b32 s44, s2, 1")
    a("s_lshl_b32 s45, s44, 3")
    a(f"s_add_u32 s45, s45, {KA_WG}")
    a(f"s_load_dwordx2 s[{sd+4}:{sd+5}], s[0:1], s45")
    a("s_mul_i32 s45, s43, 2341")
    a("s_lshr_b32 s45, s45, 16")
    a("s_mul_i32 s46, s45, 28")
    a("s_sub_u32 s46, s43, s46")
    a(f"v_lshrrev_b32 v{va}, 4, v1")
    a("s_lshl_b32 s43, s45, 8")
    a(f"v_add_u32 v{va}, s43, v{va}")
    a(f"v_mul_u32_u24 v{va}, 7168, v{va}")
    a(f"v_and_b32 v{va+1}, 15, v1")
    a(f"v_lshl_add_u32 v{va}, v{va+1}, 4, v{va}")
    a("s_lshl_b32 s43, s46, 8")
    a(f"v_add_u32 v{va}, s43, v{va}")
    a("s_waitcnt lgkmcnt(0)")
    srd(a, sd, sd+4, 7340032)

def cs_issue(a, n, sd, va):
    i = n % CS_NF
    a(f"s_mov_b32 s43, {n*4*7168}")
    a(f"buffer_load_dwordx4 v[{128+4*i}:{128+4*i+3}], v{va}, s[{sd}:{sd+3}], s43 offen")


CSM = os.environ.get("CSM", "e")
SPE = int(os.environ.get("K1_SPE", "13" if CSM == "d" else "12"))
SPS = int(os.environ.get("K1_SPS", "4"))
SPR = 36 if CSM == "d" else 2*(SPE - SPS + 1)
def cs_sbase(a, Lno, d, wsg):
    a("s_lshr_b32 s43, s2, 5")
    a("s_cmp_eq_u32 s43, 3")
    a(f"s_cbranch_scc1 {Lno}")
    a("s_cmp_gt_u32 s43, 3")
    a("s_cselect_b32 s43, 32, 0")
    a("s_sub_u32 s43, s2, s43")
    a("s_lshr_b32 s43, s43, 1")
    a("s_and_b32 s44, s2, 1")
    a("s_lshl_b32 s44, s44, 3")
    a(f"s_add_u32 s44, s44, {KA_WG}")
    a(f"s_load_dwordx2 s[{d}:{d+1}], s[0:1], s44")
    a("s_mul_i32 s45, s43, 2341")
    a("s_lshr_b32 s45, s45, 16")
    a("s_mul_i32 s46, s45, 28")
    a("s_sub_u32 s46, s43, s46")
    a("s_lshl_b32 s45, s45, 8")
    a(f"s_mul_i32 s44, s{wsg}, {SPR}")
    a("s_add_u32 s45, s45, s44")
    a(f"s_add_u32 s45, s45, {128 if CSM == 'd' else 256 - 4*SPR}")
    a("s_mul_i32 s45, s45, 7168")
    a("s_lshl_b32 s46, s46, 8")
    a("s_add_u32 s45, s45, s46")
    a("s_waitcnt lgkmcnt(0)")
    a(f"s_add_u32 s{d}, s{d}, s45")
    a(f"s_addc_u32 s{d+1}, s{d+1}, 0")

NPS = int(os.environ.get("K1_NPS", "2"))
def cs_spre(a, n, d0=64, nd=16):
    if not NPS: return
    for r in range(n):
        for q in range(4): a(f"s_load_dword s{d0 + (4*r+q) % nd}, s[80:81], {r*7168 + q*64}")
    a(f"s_add_u32 s80, s80, {n*7168}")
    a("s_addc_u32 s81, s81, 0")

WS_X = 32 << 20
XFLG = 128
def xflag_addr(a, v, flip):
    a("s_lshl_b32 s43, s34, 4")
    a("s_add_u32 s43, s43, s35")
    if flip: a("s_xor_b32 s43, s43, 1")
    a("s_and_b32 s44, s43, 1")
    a("s_lshl_b32 s44, s44, 2")
    a("s_lshr_b32 s43, s43, 1")
    a(f"s_add_u32 s43, s43, {XFLG}")
    a("s_lshl_b32 s43, s43, 7")
    a("s_add_u32 s43, s43, s44")
    a(f"v_mov_b32 v{v}, s43")
```

```python
import os, struct
from common import *

NS = 3
XB_ = 18432
STG1 = XB_ + 3*8192
RST = NS*STG1
CSUM = RST + 1152
LST = CSUM
LDS_K1 = CSUM + 768
QKV = 0
QP = 400

def fh(x): return "0x%08x" % struct.unpack("<I", struct.pack("<f", x))[0]

VGPR_K1 = 240
def phase_k1(a):
    strip = os.environ.get("K1_STRIP", "")
    nst = 16
    a(f"s_load_dwordx4 s[4:7], s[0:1], {KA_X}")
    a(f"s_load_dwordx2 s[32:33], s[0:1], {KA_WS}")
    a(f"s_load_dwordx2 s[80:81], s[0:1], {KA_WG}")
    mapping(a)
    a("v_lshrrev_b32 v12, 6, v0")
    a("v_and_b32 v1, 63, v0")
    a("v_readfirstlane_b32 s36, v12")
    a("s_nop 3")
    stamp_init(a)
    stamp(a, 0)
    a("s_lshl_b32 s43, s35, 7")
    a("s_lshl_b32 s44, s34, 18")
    a("s_lshl_b32 s45, s35, 14")
    a("s_add_u32 s45, s45, s44")
    a("s_lshl_b32 s50, s34, 7")
    a("s_sub_u32 s50, s50, 16")
    a("s_waitcnt lgkmcnt(0)")
    srd(a, 8, 4, 2048*2048)
    srd(a, 12, 6, 1023*6144 + 4096 + 128, add_lo=43)
    srd(a, 16, 32, 16384, add_lo=45, add_imm=WS_O)
    Lprod = a.label("Lprod"); Lpf = a.label("Lpf"); Latt = a.label("Latt")
    a("v_and_b32 v12, 15, v1")
    a("v_lshrrev_b32 v13, 4, v1")
    a("s_cmp_ge_u32 s36, 4")
    a(f"s_cbranch_scc1 {Lprod}")

    def att_setup():
        a("s_and_b32 s43, s36, 1")
        a("s_lshr_b32 s44, s36, 1")
        a("s_and_b32 s44, s44, 1")
        a("s_lshr_b32 s45, s36, 2")
        a("v_lshlrev_b32 v14, 2, v13")
        a("v_sub_u32 v14, v12, v14")
        for r in range(4):
            a(f"v_subrev_u32 v15, {r}, v14")
            a(f"v_cmp_ge_u32 s[{52+2*r}:{53+2*r}], 7, v15")
            a(f"v_add_u32 v15, 16, v15")
            a(f"v_cmp_ge_u32 s[{84+2*r}:{85+2*r}], 7, v15")
        a("s_lshl_b32 s46, s45, 6")
        a("s_add_u32 s46, s46, s44")
        a("s_add_u32 s46, s46, 16")
        a("v_lshl_add_u32 v14, v12, 1, s46")
        a("s_lshl_b32 s47, s43, 6")
        a("v_lshl_add_u32 v15, v13, 4, s47")
        a(f"v_mul_u32_u24 v20, {QP}, v14")
        a("v_add_u32 v20, v20, v15")
        a("v_subrev_u32 v16, 32, v14")
        a("v_max_i32 v16, 0, v16")
        a(f"v_mul_u32_u24 v21, {QP}, v16")
        a("v_add_u32 v21, v21, v15")
        a("v_lshrrev_b32 v16, 2, v12")
        a("v_lshl_add_u32 v16, v13, 2, v16")
        a("v_lshl_add_u32 v16, v16, 1, s46")
        a("v_and_b32 v17, 3, v1")
        a("v_lshl_add_u32 v17, v17, 3, s47")
        a(f"v_mul_u32_u24 v22, {QP}, v16")
        a("v_add_u32 v22, v22, v17")
        a("v_subrev_u32 v16, 32, v16")
        a("v_max_i32 v16, 0, v16")
        a(f"v_mul_u32_u24 v23, {QP}, v16")
        a("v_add_u32 v23, v23, v17")
        a("s_lshl_b32 s60, s43, 13")
        a("s_lshl_b32 s61, s45, 10")
        a("s_add_u32 s60, s60, s61")
        a("s_lshl_b32 s61, s44, 8")
        a("s_add_u32 s60, s60, s61")
        a("v_lshlrev_b32 v27, 11, v13")
        a("v_lshl_add_u32 v27, v12, 4, v27")
        a("v_add_u32 v27, s60, v27")
        a("v_mov_b32 v28, 0xff800000")
        CS = (32 ** -0.5) * 1.4426950408889634
        a(f"s_mov_b32 s61, {fh(CS)}")
        a("s_nop 2")
        a("s_or_b32 s62, s34, s45")
        a("s_cmp_lg_u32 s62, 0")
        for r in range(4): a(f"s_cselect_b64 s[{64+2*r}:{65+2*r}], s[{84+2*r}:{85+2*r}], 0")

    if int(os.environ.get("K1_SPF", "6")) & 4:
        Lsp = a.label("Lsp")
        a("s_cmp_ge_u32 s36, 2")
        a(f"s_cbranch_scc1 {Lsp}")
        srd(a, 84, 6, 6291456)
        a("s_and_b32 s43, s35, 8")
        a("s_or_b32 s43, s43, 3")
        a("s_lshl_b32 s43, s43, 7")
        a("s_lshr_b32 s44, s2, 3")
        a("s_mul_i32 s44, s44, %d" % (32*6144))
        a("s_add_u32 s43, s43, s44")
        a("s_lshl_b32 s44, s36, 6")
        a("v_add_u32 v15, s44, v1")
        a("v_min_u32 v15, 95, v15")
        a("v_mul_u32_u24 v16, 21846, v15")
        a("v_lshrrev_b32 v16, 16, v16")
        a("v_mul_u32_u24 v17, 3, v16")
        a("v_sub_u32 v15, v15, v17")
        a("v_mul_u32_u24 v16, 6144, v16")
        a("v_lshl_add_u32 v15, v15, 11, v16")
        a("buffer_load_dword v31, v15, s[84:87], s43 offen")
        a(f"{Lsp}:")
    a("v_lshrrev_b32 v16, 1, v12")
    a("v_xor_b32 v15, v13, v16")
    a("v_lshlrev_b32 v15, 4, v15")
    a("v_lshl_add_u32 v2, v12, 7, v15")
    a("v_xor_b32 v3, 64, v2")
    a(f"v_add_u32 v4, {2*STG1}, v2")
    a(f"v_add_u32 v5, {2*STG1}, v3")
    a("v_lshrrev_b32 v15, 2, v12")
    a("v_and_b32 v16, 3, v1")
    a("v_lshl_add_u32 v19, v13, 3, v15")
    a("v_lshlrev_b32 v19, 7, v19")
    a("v_and_b32 v15, 2, v15")
    a("v_and_b32 v17, 1, v13")
    a("v_lshl_add_u32 v15, v17, 2, v15")
    a("v_lshrrev_b32 v17, 1, v16")
    a("s_lshl_b32 s43, s36, 1")
    a("v_add_u32 v17, s43, v17")
    a("v_xor_b32 v15, v15, v17")
    a("v_lshl_add_u32 v19, v15, 4, v19")
    a("v_and_b32 v16, 1, v16")
    a("v_lshl_add_u32 v19, v16, 3, v19")
    for sl in range(3):
        a(f"v_add_u32 v{6+sl}, {XB_ + sl*STG1}, v19")
    ACC = 128
    def accreg(seg, mt):
        return ACC + 36*seg + 4*mt
    for i in range(108): a(f"v_mov_b32 v{ACC+i}, 0")
    SET = [32, 80]
    def reads(s, kk, base):
        sl = s % NS
        xb = (2 + kk) if sl < 2 else (4 + kk)
        xo = (sl % 2)*STG1 if sl < 2 else 0
        def xr(mt): return f"ds_read_b128 v[{base+4*mt}:{base+4*mt+3}], v{xb} offset:{xo + mt*2048}"
        def wr(sg, h): return f"ds_read_b64_tr_b16 v[{base+36+4*sg+2*h}:{base+36+4*sg+2*h+1}], v{6+sl} offset:{sg*8192 + kk*4096 + h*512}"
        return [xr(0), wr(1,0), wr(1,1), wr(2,0), wr(2,1), wr(0,0), wr(0,1)] + [xr(m) for m in range(1, 9)]
    def mfmas(base):
        r = []
        for mt in range(9):
            for sg in (1, 2, 0):
                acc = accreg(sg, mt)
                r.append(f"v_mfma_f32_16x16x32_bf16 v[{acc}:{acc+3}], v[{base+36+4*sg}:{base+36+4*sg+3}], v[{base+4*mt}:{base+4*mt+3}], v[{acc}:{acc+3}]")
        return r
    def emit(seq):
        for i in seq:
            if "m" in strip and i.startswith("v_mfma"): continue
            if "r" in strip and i.startswith("ds_read"): continue
            a(i)
    att_setup()
    a(f"v_lshlrev_b32 v9, 3, v12")
    a(f"v_add_u32 v9, {RST}, v9")
    a(f"v_mul_u32_u24 v14, {QP}, v12")
    a("v_lshl_add_u32 v14, v13, 3, v14")
    a("s_lshl_b32 s43, s36, 5")
    a("v_add_u32 v14, s43, v14")
    a("s_barrier")
    stamp(a, 1)
    for i in reads(0, 0, SET[0]): a(i)
    def cstage(s, last):
        a("s_waitcnt lgkmcnt(0)")
        emit(interleave(mfmas(SET[0]), reads(s, 1, SET[1]), 0, 1))
        a("s_waitcnt lgkmcnt(0)")
        a("s_barrier")
        emit(interleave(mfmas(SET[1]), [f"ds_read_b64 v[{32+2*mt}:{33+2*mt}], v9 offset:{mt*128}" for mt in range(9)] if last else reads(s+1, 0, SET[0]), 0, 1))
    nl = (nst-1)//NS
    a(f"s_mov_b32 s41, {nl}")
    Ll = a.label("Lcl")
    a(f"{Ll}:")
    for s in range(NS): cstage(s, False)
    a("s_sub_u32 s41, s41, 1")
    a("s_cmp_lg_u32 s41, 0")
    a(f"s_cbranch_scc1 {Ll}")
    for s in range(nl*NS, nst): cstage(s, s == nst-1)
    stamp(a, 2)
    for sg in range(3):
        for r in range(4):
            a(f"v_mov_b32_dpp v{52+4*sg+r}, v{accreg(sg,0)+r} row_newbcast:0 row_mask:0xf bank_mask:0xf")
    a("s_waitcnt lgkmcnt(0)")
    for mt in range(9):
        for sg in ((1, 2) if mt == 0 else (0, 1, 2)):
            acc = accreg(sg, mt)
            for r in (0, 2):
                a(f"v_pk_fma_f32 v[{acc+r}:{acc+r+1}], v[{32+2*mt}:{33+2*mt}], v[{52+4*sg+r}:{53+4*sg+r}], v[{acc+r}:{acc+r+1}] op_sel_hi:[0,1,1] neg_lo:[1,0,0] neg_hi:[1,0,0]")
            for r in (0, 2):
                a(f"v_pk_mul_f32 v[{acc+r}:{acc+r+1}], v[{32+2*mt}:{33+2*mt}], v[{acc+r}:{acc+r+1}] op_sel:[1,0] op_sel_hi:[1,1]")
            a(f"v_cvt_pk_bf16_f32 v{acc}, v{acc}, v{acc+1}")
            a(f"v_cvt_pk_bf16_f32 v{acc+1}, v{acc+2}, v{acc+3}")
            a(f"ds_write_b64 v14, v[{acc}:{acc+1}] offset:{QKV + mt*16*QP + sg*128}")
    a("s_waitcnt lgkmcnt(0)")
    a(f"s_branch {Latt}")

    a(f"{Lprod}:")
    a("s_sub_u32 s47, s36, 4")
    a("s_lshl_b32 s43, s34, 7")
    a("s_lshl_b32 s44, s35, 3")
    a("s_add_u32 s43, s43, s44")
    a("s_mov_b32 s63, s43")
    a("s_lshl_b32 s44, s47, 1")
    a("s_add_u32 s51, s43, s44")
    a("v_lshlrev_b32 v10, 4, v1")
    srd(a, 20, 32, 2048*8, add_imm=WS_ST1)
    def rows_load(srow, dst=96, add=0):
        a(f"s_lshl_b32 s43, s{srow}, 11")
        if add: a(f"s_add_u32 s43, s43, {add*2048}")
        for q in range(4):
            a(f"buffer_load_dwordx4 v[{dst+4*q}:{dst+4*q+3}], v10, s[8:11], s43 offen offset:{q*1024}")
    def rows_stats_l(srcb=96):
        o = []
        R = [116, 118, 120, 122]
        for i in range(8):
            for r in range(2):
                src = srcb + 8*r + i
                o.append(f"v_dot2_f32_bf16 v{116+4*r}, v{src}, s53, {'0' if i == 0 else 'v%d' % (116+4*r)}")
                o.append(f"v_dot2_f32_bf16 v{118+4*r}, v{src}, v{src}, {'0' if i == 0 else 'v%d' % (118+4*r)}")
        o.append("s_nop 2")
        for sh in (8, 4, 2, 1):
            for x in R: o.append(f"v_add_f32_dpp v{x}, v{x}, v{x} row_ror:{sh} row_mask:0xf bank_mask:0xf")
        for sw in ("16", "32"):
            for x in R: o.append(f"v_mov_b32 v{x+1}, v{x}")
            o.append("s_nop 0")
            for x in R: o.append(f"v_permlane{sw}_swap_b32 v{x}, v{x+1}")
            for x in R: o.append(f"v_add_f32 v{x}, v{x}, v{x+1}")
        for r in range(2):
            sv, qv, d = 116+4*r, 118+4*r, 112+2*r
            o.append(f"v_mul_f32 v{d}, 0x3a800000, v{sv}")
            o.append(f"v_mul_f32 v{d+1}, 0x3a800000, v{qv}")
            o.append(f"v_fma_f32 v{d+1}, -v{d}, v{d}, v{d+1}")
            o.append(f"v_max_f32 v{d+1}, 0, v{d+1}")
            o.append(f"v_add_f32 v{d+1}, 0x3727c5ac, v{d+1}")
            o.append(f"v_rsq_f32 v{d+1}, v{d+1}")
        o.append("s_nop 0")
        return o
    def rows_stats(part=None):
        l = rows_stats_l()
        for i in (l if part is None else l[:41] if part == 0 else l[41:]): a(i)
    a("s_mov_b32 s53, 0x3f803f80")
    def rows_local():
        a("s_lshl_b32 s43, s47, 4")
        a(f"s_add_u32 s43, s43, {LST}")
        a("v_mov_b32 v11, s43")
        a("ds_write_b128 v11, v[112:115]")
        a("s_waitcnt lgkmcnt(0)")
    def spre_setup():
        if not NPS: return
        Lj = a.label("Lsj")
        cs_sbase(a, Lj, 80, 47)
        a(f"{Lj}:")
    def spre(n=2): cs_spre(a, n)
    a("s_cmp_eq_u32 s47, 3")
    a(f"s_cbranch_scc1 {Lpf}")
    a("v_lshrrev_b32 v14, 3, v1")
    a("v_and_b32 v15, 7, v1")
    a("v_and_b32 v16, 2, v14")
    a("v_xor_b32 v16, v15, v16")
    a("v_lshlrev_b32 v16, 4, v16")
    a("v_mul_u32_u24 v17, 6144, v14")
    a("s_lshl_b32 s43, s47, 11")
    a("v_add3_u32 v2, v17, v16, s43")
    a("v_xor_b32 v3, 64, v2")
    a("v_lshrrev_b32 v16, 1, v14")
    a("v_xor_b32 v16, v15, v16")
    a("v_lshlrev_b32 v16, 4, v16")
    a("s_lshl_b32 s43, s47, 3")
    a("s_add_u32 s43, s43, s50")
    a("v_add_u32 v17, s43, v14")
    a("s_and_b32 s44, s47, 1")
    a("s_lshl_b32 s44, s44, 6")
    for i in range(6):
        a(f"v_add_u32 v18, {24*i}, v17")
        a("v_max_i32 v18, 0, v18")
        a("v_lshl_add_u32 v18, v18, 11, v16")
        a("v_xor_b32 v18, s44, v18")
        if i & 1: a(f"v_xor_b32 v{4+i}, 64, v18")
        else: a(f"v_mov_b32 v{4+i}, v18")
    a("s_lshl_b32 s39, s47, 10")
    a("s_lshl_b32 s40, s47, 13")
    a(f"s_add_u32 s40, s40, {XB_}")
    a("s_mov_b32 s37, 0")
    a("s_mov_b32 s38, 0")
    a("s_bfm_b64 s[60:61], 56, 8")
    a("s_cmp_eq_u32 s47, 0")
    a("s_cselect_b64 s[60:61], s[60:61], -1")
    def dma(slot):
        xs, ws = [], []
        for i in range(6):
            g = [f"s_add_u32 m0, s39, {slot*STG1 + i*3072}", "s_mov_b64 exec, s[60:61]" if i == 0 else "s_nop 0",
                 f"buffer_load_dwordx4 v{4+i}, s[8:11], s37 offen lds"]
            if i == 0: g.append("s_mov_b64 exec, -1")
            xs.append(g)
        for j in range(8):
            ws.append([f"s_add_u32 m0, s40, {slot*STG1 + j*1024}", f"s_add_u32 s43, s38, {8*j*6144}",
                       f"buffer_load_dwordx4 v{2+(j&1)}, s[12:15], s43 offen lds"])
        for g in (interleave(ws, xs) if int(os.environ.get("K1_ILV", "0")) else xs + ws):
            for i in g: a(i)
        a("s_add_u32 s37, s37, 128")
        a(f"s_add_u32 s38, s38, {64*6144}")
    for sl in range(NS): dma(sl)
    rows_load(51)
    a(f"s_waitcnt vmcnt({14*(NS-1) + 4})")
    a("s_barrier")
    def pstage(s, do_dma, vm, extra=None):
        if do_dma: dma((s+2) % NS)
        if extra: extra()
        if SPS <= s <= SPE: spre()
        if vm is not None: a(f"s_waitcnt vmcnt({vm})")
        a("s_barrier")
    spre_setup()
    pstage(0, False, 14 + 4)
    pstage(1, True, 14)
    def loc():
        rows_stats(1); rows_local()
    pstage(2, True, 14, lambda: rows_stats(0))
    pstage(3, True, 14, loc)
    a(f"s_mov_b32 s41, 2")
    Lp = a.label("Lpl")
    a(f"{Lp}:")
    for s in range(4, 7): pstage(s, True, 14)
    a("s_sub_u32 s41, s41, 1")
    a("s_cmp_lg_u32 s41, 0")
    a(f"s_cbranch_scc1 {Lp}")
    assert SPE >= 9 and SPS <= 4
    for s in range(10, 14): pstage(s, True, 14)
    pstage(14, False, 0)
    pstage(15, False, None)
    a("s_waitcnt lgkmcnt(0)")
    att_setup()
    a(f"s_branch {Latt}")

    a(f"{Lpf}:")
    PFM = os.environ.get("K1_PF", "mall1")
    PF = PFM == "l2"
    a(f"s_load_dwordx2 s[26:27], s[0:1], {KA_DBG}")
    Lz = a.label("Lz")
    a("s_or_b32 s43, s34, s35")
    a("s_cmp_lg_u32 s43, 0")
    a(f"s_cbranch_scc1 {Lz}")
    flag_srd(a, 84)
    a("v_lshlrev_b32 v14, 7, v1")
    a("v_mov_b32 v36, 0")
    a("v_mov_b32 v37, 0")
    for q in range(4):
        a(f"s_mov_b32 s43, {q*8192}")
        a("buffer_store_dwordx2 v[36:37], v14, s[84:87], s43 offen sc1")
    a(f"{Lz}:")
    rows_load(51)
    a("v_min_u32 v14, 23, v1")
    a("v_lshrrev_b32 v15, 3, v14")
    a(f"v_mul_u32_u24 v15, {STG1}, v15")
    a("v_and_b32 v14, 7, v14")
    a("v_lshl_add_u32 v15, v14, 4, v15")
    for i in range(4): a(f"v_mov_b32 v{32+i}, 0x3f803f80")
    a("ds_write_b128 v15, v[32:35]")
    PER = 64 // MX
    NPI = (3*PER + 63) // 64
    for q in range(NPI):
        a(f"v_add_u32 v14, {64*q}, v1")
        a(f"v_min_u32 v14, {3*PER-1}, v14")
        a("v_mul_u32_u24 v15, 21846, v14")
        a("v_lshrrev_b32 v15, 16, v15")
        a("v_mul_u32_u24 v16, 3, v15")
        a("v_sub_u32 v16, v14, v16")
        a(f"s_mul_i32 s43, s48, {PER}")
        a("v_add_u32 v15, s43, v15")
        a("v_mul_u32_u24 v15, 6144, v15")
        a(f"v_lshl_add_u32 v{2+q}, v16, 11, v15")
    vm = []
    def wait_for(tag):
        idx = max(i for i, t in enumerate(vm) if t == tag)
        a(f"s_waitcnt vmcnt({len(vm) - 1 - idx})")
    def l2pf(st):
        if not PF or st >= nst: return
        a(f"s_mov_b32 s43, {st*64*6144}")
        for q in range(NPI):
            a(f"buffer_load_dword v31, v{2+q}, s[12:15], s43 offen"); vm.append("pf")
    a("s_waitcnt lgkmcnt(0)")
    srd(a, 56, 26, 256)
    a("v_lshlrev_b32 v14, 7, v1")
    vm.append("rows")
    def mallpf():
        srd(a, 84, 6, 6291456)
        a("s_mul_i32 s43, s2, 24576")
        for q in range(3):
            a(f"buffer_load_dword v31, v14, s[84:87], s43 offen"); vm.append("pf")
            if q < 2: a("s_add_u32 s43, s43, 8192")
    def slowpf():
        srd(a, 84, 6, 6291456)
        a("s_lshr_b32 s44, s2, 3")
        if SPF & 1:
            a("s_and_b32 s43, s35, 8")
            a("s_or_b32 s43, s43, 3")
            a("s_lshl_b32 s43, s43, 7")
            a("s_mul_i32 s45, s44, %d" % (32*6144))
            a("s_add_u32 s43, s43, s45")
            for q in range(2):
                a(f"v_add_u32 v15, {64*q}, v1")
                a("v_min_u32 v15, 95, v15")
                a("v_mul_u32_u24 v16, 21846, v15")
                a("v_lshrrev_b32 v16, 16, v16")
                a("v_mul_u32_u24 v17, 3, v16")
                a("v_sub_u32 v15, v15, v17")
                a("v_mul_u32_u24 v16, 6144, v16")
                a("v_lshl_add_u32 v15, v15, 11, v16")
                a("buffer_load_dword v31, v15, s[84:87], s43 offen"); vm.append("pf")
        if SPF & 2:
            a("s_xor_b32 s43, s63, 64")
            a("s_lshl_b32 s43, s43, 11")
            a("buffer_load_dword v31, v14, s[8:11], s43 offen"); vm.append("pf")
            a("s_add_u32 s43, s43, 8192")
            a("buffer_load_dword v31, v14, s[8:11], s43 offen"); vm.append("pf")
    SPF = int(os.environ.get("K1_SPF", "6"))
    SPAT = int(os.environ.get("K1_SPAT", "0"))
    if PFM == "mall0": mallpf()
    if SPAT < 0: slowpf()
    stampc(a, "k1", 0)
    a("s_barrier")
    MST = int(os.environ.get("K1_MST", "1"))
    if PFM == "mall1" and not MST: mallpf()
    stampc(a, "k1", 1)
    GS = int(os.environ.get("K1_GS", "10"))
    SS = int(os.environ.get("K1_SS", "7"))
    PFN = int(os.environ.get("K1_PFN", "4"))
    CS0 = int(os.environ.get("K1_CS0", "14")); WOP = int(os.environ.get("K1_WOP", "13")); WOM = os.environ.get("K1_WOM", "mall")
    Lgd = a.label("Lgd")
    nxt = [3]
    for s in range(nst):
        if PFM == "mall1" and MST and s in (0, MST):
            Lm = a.label("Lm")
            a("s_cmp_ge_u32 s2, 128")
            a(f"s_cbranch_scc{1 if s == 0 else 0} {Lm}")
            n0 = len(vm); mallpf(); del vm[n0:]
            a(f"{Lm}:")
        if s == SPAT: slowpf()
        if s == 0: spre_setup()
        if s == 2:
            wait_for("rows")
            Lz = a.label("Lz")
            a("s_or_b32 s43, s34, s35")
            a("s_cmp_lg_u32 s43, 0")
            a(f"s_cbranch_scc1 {Lz}")
            a("s_waitcnt vmcnt(0)")
            a("v_mov_b32 v5, 1")
            a("v_mov_b32 v6, 0")
            a("s_mov_b64 exec, 1")
            a("buffer_store_dword v5, v6, s[56:59], 0 offen sc1")
            a("s_mov_b64 exec, -1")
            a(f"{Lz}:")
            rows_stats(0)
        if s == 3:
            rows_stats(1); rows_local()
        if s == 4:
            a("v_lshlrev_b32 v5, 4, v1")
            a("v_and_b32 v5, 63, v5")
            a(f"v_add_u32 v6, {LST}, v5")
            a("ds_read_b128 v[112:115], v6")
            a("s_lshl_b32 s43, s63, 3")
            a("v_add_u32 v5, s43, v5")
            a("s_waitcnt lgkmcnt(0)")
            a("s_mov_b64 exec, 15")
            a(f"buffer_store_dwordx4 v[112:115], v5, s[20:23], 0 offen sc1"); vm.append("store")
            a("s_mov_b64 exec, -1")
        if s < SS - 2:
            for q in range(PFN):
                l2pf(nxt[0]); nxt[0] += 1
        if s == int(os.environ.get("K1_X11", "99")):
            a(f"s_andn2_b32 s43, s34, {MX-1}")
            a("s_lshl_b32 s43, s43, 7")
            a("s_lshr_b32 s44, s2, 3")
            a("s_mul_i32 s44, s44, 17")
            a("s_add_u32 s43, s43, s44")
            a("s_sub_u32 s43, s43, 16")
            a("v_min_u32 v15, 16, v1")
            a("v_add_u32 v15, s43, v15")
            a("v_max_i32 v15, 0, v15")
            a("v_lshlrev_b32 v15, 11, v15")
            a("buffer_load_dword v31, v15, s[8:11], 0 offen offset:1408"); vm.append("pf")
        if s == WOP:
            if WOM == "l2":
                n = pf_w64(a, KA_WO, 1024, list(range(16//MX)), 84, 29, 30); vm.extend(["pf"]*n)
            elif WOM == "mall":
                a(f"s_load_dwordx2 s[88:89], s[0:1], {KA_WO}")
                a("v_lshlrev_b32 v29, 7, v1")
                a("s_lshl_b32 s43, s2, 13")
                a("s_waitcnt lgkmcnt(0)")
                srd(a, 84, 88, 2097152)
                a("buffer_load_dword v30, v29, s[84:87], s43 offen"); vm.append("pf")
                if int(os.environ.get("K2_SPF", "1")):
                    a("v_and_b32 v29, 31, v1")
                    a("v_lshlrev_b32 v29, 11, v29")
                    a("s_and_b32 s43, s35, 8")
                    a("s_or_b32 s43, s43, 3")
                    a("s_lshl_b32 s43, s43, 7")
                    a("s_lshr_b32 s44, s2, 3")
                    a("s_lshl_b32 s44, s44, 16")
                    a("s_add_u32 s43, s43, s44")
                    a("buffer_load_dword v30, v29, s[84:87], s43 offen"); vm.append("pf")
        if s == SS - 2:
            a("v_mov_b32 v7, 0")
            a("v_mov_b32 v9, 1")
            a("buffer_load_dword v8, v7, s[56:59], 0 offen sc1"); vm.append("z")
        if s == SS:
            flag_poll_finish(a, 56, v=7)
            flag_srd(a, 56)
            flag_signal(a, 56, "ln", 34); vm.append("at")
        if s == GS:
            a("s_sub_u32 s44, s34, 1")
            a("s_max_i32 s44, s44, 0")
            a("v_mov_b32 v5, s44")
            a("v_mov_b32 v6, s34")
            a("v_cmp_eq_u32 vcc, 0, v1")
            a("s_nop 1")
            a("v_cndmask_b32 v5, v5, v6, vcc")
            a(f"v_add_u32 v5, {FLG['ln'][0]}, v5")
            a("v_lshlrev_b32 v5, 7, v5")
            a("buffer_load_dword v6, v5, s[56:59], 0 offen sc1"); vm.append("poll")
        if s == GS + 2:
            Lpoll = a.label("Lpoll"); Lok = a.label("Lok"); Lfb = a.label("Lfb")
            a("s_mov_b32 s41, 200")
            a("s_mov_b32 s62, 0")
            wait_for("poll")
            a(f"{Lpoll}:")
            a("v_cmp_ne_u32 vcc, 16, v6")
            a("s_nop 4")
            a(f"s_cbranch_vccz {Lok}")
            a("buffer_load_dword v6, v5, s[56:59], 0 offen sc1")
            a("s_waitcnt vmcnt(0)")
            a("s_sub_u32 s41, s41, 1")
            a("s_cmp_lg_u32 s41, 0")
            a(f"s_cbranch_scc1 {Lpoll}")
            a("s_mov_b32 s41, 0")
            a(f"{Lfb}:")
            a("s_add_u32 s62, s50, s41")
            a("s_max_i32 s62, s62, 0")
            rows_load(62)
            a("s_waitcnt vmcnt(0)")
            rows_stats()
            a("s_lshl_b32 s43, s41, 3")
            a(f"s_add_u32 s43, s43, {RST}")
            a("v_mov_b32 v5, s43")
            a("ds_write_b128 v5, v[112:115]")
            a("s_add_u32 s41, s41, 2")
            a("s_cmp_lt_u32 s41, 144")
            a(f"s_cbranch_scc1 {Lfb}")
            a("s_mov_b32 s62, 1")
            a(f"{Lok}:")
            for q in range(3):
                a(f"v_add_u32 v5, {64*q}, v1")
                a("v_min_u32 v5, 143, v5")
                a(f"v_lshlrev_b32 v{20+q}, 3, v5")
                a("v_add_u32 v5, s50, v5")
                a("v_max_i32 v5, 0, v5")
                a("v_lshlrev_b32 v5, 3, v5")
                a(f"buffer_load_dwordx2 v[{32+2*q}:{33+2*q}], v5, s[20:23], 0 offen sc1"); vm.append("gather")
        if s == GS + 4:
            wait_for("gather")
            a("s_cmp_eq_u32 s62, 1")
            a(f"s_cbranch_scc1 {Lgd}")
            for q in range(3):
                a(f"v_add_u32 v{20+q}, {RST}, v{20+q}")
                a(f"ds_write_b64 v{20+q}, v[{32+2*q}:{33+2*q}]")
            a(f"{Lgd}:")
            a("s_waitcnt lgkmcnt(0)")
        if s in (CS0, CS0+1):
            Lnj = a.label("Lnj")
            cs_setup(a, Lnj, 84, 28)
            for q in range(16*(s-CS0), 16*(s-CS0+1)): cs_issue(a, q, 84, 28)
            a(f"{Lnj}:")
        if 4 <= s <= (11 if CSM == "d" else SPE) and STAMPC != "k1": spre()
        a("s_barrier")
        stampc(a, "k1", s+2)
    stampc(a, "k1", 18)
    a("s_waitcnt lgkmcnt(0)")
    att_setup()

    a(f"{Latt}:")
    a("s_barrier")
    stampc(a, "k1", 19)
    stamp(a, 3)
    U = 32*QP
    for u in range(2):
        B = 32 + 48*u
        uo = u*U
        a(f"ds_read_b128 v[{B}:{B+3}], v20 offset:{QKV + uo}")
        a(f"ds_read_b128 v[{B+4}:{B+7}], v20 offset:{QKV + uo + 128}")
        if u == 0: a(f"ds_read_b128 v[{B+8}:{B+11}], v21 offset:{QKV + 128}")
        else: a(f"ds_read_b128 v[{B+8}:{B+11}], v20 offset:{QKV + 128}")
    for u in range(2):
        B = 32 + 48*u
        uo = u*U
        for dh in range(2):
            if u == 0: a(f"ds_read_b64_tr_b16 v[{B+12+4*dh}:{B+13+4*dh}], v23 offset:{QKV + 256 + dh*32}")
            else: a(f"ds_read_b64_tr_b16 v[{B+12+4*dh}:{B+13+4*dh}], v22 offset:{QKV + 256 + dh*32}")
            a(f"ds_read_b64_tr_b16 v[{B+14+4*dh}:{B+15+4*dh}], v22 offset:{QKV + uo + 256 + dh*32}")
    for u in range(2):
        B = 32 + 48*u
        a(f"s_waitcnt lgkmcnt({11 if u == 0 else 8})")
        a(f"v_mfma_f32_16x16x32_bf16 v[{B+20}:{B+23}], v[{B+8}:{B+11}], v[{B}:{B+3}], 0")
        a(f"v_mfma_f32_16x16x32_bf16 v[{B+24}:{B+27}], v[{B+4}:{B+7}], v[{B}:{B+3}], 0")
    a("s_nop 7")
    def soft(u):
        B = 32 + 48*u
        S = B + 20; M = B + 28; T = B + 29; P = B + 32
        r_ = []
        am = 64 if u == 0 else 84
        for r in range(4): r_.append(f"v_cndmask_b32 v{S+r}, v28, v{S+r}, s[{am+2*r}:{am+2*r+1}]")
        for r in range(4): r_.append(f"v_cndmask_b32 v{S+4+r}, v28, v{S+4+r}, s[{52+2*r}:{53+2*r}]")
        r_.append(f"v_max3_f32 v{M}, v{S}, v{S+1}, v{S+2}")
        r_.append(f"v_max3_f32 v{T}, v{S+3}, v{S+4}, v{S+5}")
        r_.append(f"v_max3_f32 v{M}, v{M}, v{S+6}, v{S+7}")
        r_.append(f"v_max_f32 v{M}, v{M}, v{T}")
        for sw in ("32", "16"):
            r_.append(f"v_mov_b32 v{T}, v{M}")
            r_.append("s_nop 0")
            r_.append(f"v_permlane{sw}_swap_b32 v{M}, v{T}")
            r_.append(f"v_max_f32 v{M}, v{M}, v{T}")
        r_.append(f"v_mul_f32 v{M}, s61, v{M}")
        for r in range(8): r_.append(f"v_fma_f32 v{S+r}, v{S+r}, s61, -v{M}")
        for r in range(8): r_.append(f"v_exp_f32 v{S+r}, v{S+r}")
        for q in range(4): r_.append(f"v_cvt_pk_bf16_f32 v{P+q}, v{S+2*q}, v{S+2*q+1}")
        return r_
    def zip2(x, y):
        for i, j in zip(x, y):
            a(i)
            if not (i == j and i.startswith("s_nop")): a(j)
    zip2(soft(0), soft(1))
    a("s_waitcnt lgkmcnt(0)")
    for u in range(2):
        B = 32 + 48*u
        for dh in range(2):
            a(f"v_mfma_f32_16x16x32_bf16 v[{B+36+4*dh}:{B+39+4*dh}], v[{B+12+4*dh}:{B+15+4*dh}], v[{B+32}:{B+35}], 0")
    def rsum(u):
        B = 32 + 48*u
        S = B + 20; M = B + 28; T = B + 29
        r_ = [f"v_add_f32 v{M}, v{S}, v{S+1}", f"v_add_f32 v{T}, v{S+2}, v{S+3}", f"v_add_f32 v{S+4}, v{S+4}, v{S+5}", f"v_add_f32 v{S+6}, v{S+6}, v{S+7}",
              f"v_add_f32 v{M}, v{M}, v{T}", f"v_add_f32 v{S+4}, v{S+4}, v{S+6}", f"v_add_f32 v{M}, v{M}, v{S+4}"]
        for sw in ("32", "16"):
            r_.append(f"v_mov_b32 v{T}, v{M}")
            r_.append("s_nop 0")
            r_.append(f"v_permlane{sw}_swap_b32 v{M}, v{T}")
            r_.append(f"v_add_f32 v{M}, v{M}, v{T}")
        r_.append(f"v_rcp_f32 v{M}, v{M}")
        return r_
    zip2(rsum(0), rsum(1))
    a("s_nop 0")
    for u in range(2):
        B = 32 + 48*u
        M = B + 28; O = B + 36
        for r in range(0, 8, 2): a(f"v_pk_mul_f32 v[{O+r}:{O+r+1}], v[{M}:{M+1}], v[{O+r}:{O+r+1}] op_sel_hi:[0,1]")
        for q in range(4): a(f"v_cvt_pk_bf16_f32 v{O+q}, v{O+2*q}, v{O+2*q+1}")
        a(f"buffer_store_dwordx4 v[{O}:{O+3}], v27, s[16:19], 0 offen offset:{512*u} sc1")
    stamp(a, 4)
    a("s_waitcnt vmcnt(0)")
    a("s_barrier")
    flag_srd(a, 56)
    Ls = a.label("Lsig")
    a("s_cmp_lg_u32 s36, 0")
    a(f"s_cbranch_scc1 {Ls}")
    flag_signal(a, 56, "o", 34)
    a(f"{Ls}:")
    stamp(a, 5)
    stampc(a, "k1", 20)
```

```python
import os, struct
from common import *

def fh(x): return "0x%08x" % struct.unpack("<I", struct.pack("<f", x))[0]
def env(k, d): return int(os.environ.get(k, str(d)))

C0_ = -2.0*0.7978845608028654*1.4426950408889634
C1_ = C0_*0.044715
XF = os.environ.get("XF", " sc1")
SET = [32, 80]
ACC = 128
NST4 = 56


class VM:
    def __init__(self, a): self.a = a; self.q = []
    def add(self, tag, n=1): self.q += [tag]*n
    def cnt(self, tag):
        idx = max(i for i, t in enumerate(self.q) if t == tag)
        return len(self.q) - 1 - idx
    def wait(self, tag):
        n = self.cnt(tag); assert n <= 63, n
        return f"s_waitcnt vmcnt({n})"
    def reset(self): self.q = []


def spread(main, items, frac=100):
    if frac < 100:
        c = len(main)*frac//100
        return spread(main[:c], items) + main[c:]
    out = []
    n, k = len(main), len(items)
    j = 0
    for i in range(n + 1):
        while j < k and j*n <= i*k:
            out += items[j]; j += 1
        if i < n: out.append(main[i])
    while j < k: out += items[j]; j += 1
    return out


def lane_ig(a):
    a("v_and_b32 v17, 15, v1")
    a("v_lshrrev_b32 v18, 4, v1")


def g2_addrs():
    r = []
    r.append("v_lshlrev_b32 v19, 11, v18")
    r.append("v_lshl_add_u32 v19, v17, 4, v19")
    r.append("s_lshl_b32 s43, s36, 9")
    r.append("v_add_u32 v2, s43, v19")
    r.append(f"v_add_u32 v3, {REG}, v2")
    r.append(f"v_add_u32 v4, {2*REG}, v2")
    r.append("v_lshrrev_b32 v19, 2, v17")
    r.append("v_lshl_add_u32 v20, v18, 2, v19")
    r.append("v_bfe_u32 v21, v20, 1, 2")
    r.append("v_lshlrev_b32 v20, 7, v20")
    r.append("v_lshl_add_u32 v20, v21, 5, v20")
    r.append("v_and_b32 v19, 3, v1")
    r.append("v_lshl_add_u32 v20, v19, 3, v20")
    r.append("v_add_u32 v5, 16384, v20")
    for t in range(1, 4): r.append(f"v_xor_b32 v{5+t}, {32*t}, v5")
    for rg in range(1, 3):
        for t in range(4): r.append(f"v_add_u32 v{5+4*rg+t}, {rg*REG}, v{5+t}")
    return r

def g2_reads(slot, base):
    rg, so = slot >> 1, (slot & 1)*SLOT
    def xr(kb, tl): return f"ds_read_b128 v[{base+(kb*2+tl)*4}:{base+(kb*2+tl)*4+3}], v{2+rg} offset:{so + kb*8192 + tl*256}"
    def wr(kb, t, h):
        d = base + 16 + (kb*4+t)*4 + 2*h
        return f"ds_read_b64_tr_b16 v[{d}:{d+1}], v{5+4*rg+t} offset:{so + kb*4096 + h*2048}"
    r = []
    for kb in range(2):
        r += [xr(kb, 0), wr(kb, 0, 0), wr(kb, 0, 1), wr(kb, 1, 0), wr(kb, 1, 1), xr(kb, 1), wr(kb, 2, 0), wr(kb, 2, 1), wr(kb, 3, 0), wr(kb, 3, 1)]
    return r

def g2_mfmas(base):
    r = []
    for kb in range(2):
        for tl in range(2):
            for t in range(4):
                acc = ACC + (tl*4+t)*4
                w = base + 16 + (kb*4+t)*4; x = base + (kb*2+tl)*4
                r.append(f"v_mfma_f32_16x16x32_bf16 v[{acc}:{acc+3}], v[{w}:{w+3}], v[{x}:{x+3}], v[{acc}:{acc+3}]")
    return r

def g2_stage(a, s, slot_next, pre=None):
    a("s_waitcnt lgkmcnt(0)" if pre is None else f"s_waitcnt vmcnt({pre}) lgkmcnt(0)")
    a("s_barrier")
    m = g2_mfmas(SET[s & 1])
    rd = [] if slot_next is None else g2_reads(slot_next, SET[(s+1) & 1])
    k = 0
    for i in range(16):
        a(m[i])
        for q in range(2 if i < 6 else 1):
            if k < len(rd): a(rd[k]); k += 1

def g2_loop(a, s0, nst, off, pres={}):
    s = s0
    while s in pres or (s % 6 != 0 and False):
        g2_stage(a, s, (s+1+off) % 6, pres[s]); s += 1
    nl = (nst - 1 - s)//6
    if nl > 0:
        L = a.label("Lg2")
        a(f"s_mov_b32 s41, {nl}")
        a(f"{L}:")
        for q in range(6): g2_stage(a, s+q, (s+q+1+off) % 6)
        a("s_sub_u32 s41, s41, 1")
        a("s_cmp_lg_u32 s41, 0")
        a(f"s_cbranch_scc1 {L}")
        s += 6*nl
    while s < nst:
        g2_stage(a, s, None if s == nst-1 else (s+1+off) % 6); s += 1


def k3_addrs(nj, t0):
    r = []
    r.append("v_lshlrev_b32 v19, 11, v18")
    r.append("v_lshl_add_u32 v19, v17, 4, v19")
    r.append("s_lshl_b32 s43, s46, 10")
    r.append("v_add_u32 v2, s43, v19")
    r.append(f"v_add_u32 v3, {REG}, v2")
    r.append(f"v_add_u32 v4, {2*REG}, v2")
    r.append("v_lshrrev_b32 v19, 2, v17")
    r.append("v_lshl_add_u32 v20, v18, 2, v19")
    r.append("v_and_b32 v21, 7, v20")
    r.append("v_lshlrev_b32 v20, 8, v20")
    r.append("v_and_b32 v19, 3, v1")
    r.append("v_lshl_add_u32 v20, v19, 3, v20")
    for j in range(nj):
        r.append(f"s_add_u32 s43, s{t0}, {j}")
        r.append("v_xor_b32 v19, s43, v21")
        r.append(f"v_lshl_add_u32 v{5+j}, v19, 5, v20")
    for rg in range(1, 3):
        for j in range(nj): r.append(f"v_add_u32 v{5+4*rg+j}, {rg*REG}, v{5+j}")
    return r

def k3_acc(nj, mat, j, tl): return ACC + ((mat*nj + j)*4 + tl)*4

def k3_reads(nj, sig, kk, base):
    rg = (sig + 2) % 3
    def xr(tl): return f"ds_read_b128 v[{base+4*tl}:{base+4*tl+3}], v{2+rg} offset:{kk*8192 + tl*256}"
    def wr(mat, j, h):
        d = base + 16 + (mat*nj+j)*4 + 2*h
        return f"ds_read_b64_tr_b16 v[{d}:{d+1}], v{5+4*rg+j} offset:{16384*(1+mat) + kk*8192 + h*4096}"
    r = [xr(0), wr(0, 0, 0), wr(0, 0, 1), xr(1), xr(2), xr(3), wr(1, 0, 0), wr(1, 0, 1)]
    for j in range(1, nj): r += [wr(0, j, 0), wr(0, j, 1), wr(1, j, 0), wr(1, j, 1)]
    return r

def k3_mfmas(nj, base):
    r = []
    order = [(j, mat, tl) for j in range(nj) for mat in range(2) for tl in range(4)]
    if env("MORD", 2) == 1: order = [(j, mat, tl) for tl in range(4) for j in range(nj) for mat in range(2)]
    if env("MORD", 2) == 2:
        order = [(j, mat, tl if (2*j + mat) % 2 == 0 else 3 - tl) for j in range(nj) for mat in range(2) for tl in range(4)]
    for (j, mat, tl) in order:
        if True:
            if True:
                acc = k3_acc(nj, mat, j, tl)
                w = base + 16 + (mat*nj+j)*4; x = base + 4*tl
                r.append(f"v_mfma_f32_16x16x32_bf16 v[{acc}:{acc+3}], v[{w}:{w+3}], v[{x}:{x+3}], v[{acc}:{acc+3}]")
    return r

def k3_half1(a, nj, sig, vmw=None):
    a("s_waitcnt lgkmcnt(0)")
    for i in interleave(k3_mfmas(nj, SET[0]), k3_reads(nj, sig, 1, SET[1])): a(i)
    a("s_waitcnt lgkmcnt(0)" if vmw is None else f"s_waitcnt vmcnt({vmw}) lgkmcnt(0)")
    a("s_barrier")
def k3_half2(a, nj, sig):
    for i in interleave(k3_mfmas(nj, SET[1]), k3_reads(nj, sig+1, 0, SET[0])): a(i)

def k3_consumer(a, nj, sig0, vmw, n=16):
    L = a.label("Lk3")
    a(f"s_mov_b32 s41, {(n-1)//3}")
    a(f"{L}:")
    for q in range(3):
        k3_half1(a, nj, sig0+q, vmw[q] if q < len(vmw) else None)
        k3_half2(a, nj, sig0+q)
    a("s_sub_u32 s41, s41, 1")
    a("s_cmp_lg_u32 s41, 0")
    a(f"s_cbranch_scc1 {L}")
    for q in range((n-1)//3*3, n-1):
        k3_half1(a, nj, sig0+q)
        k3_half2(a, nj, sig0+q)
    k3_half1(a, nj, sig0+n-1)


def k3_dma_setup(part, psg, vE=22, first=0):
    r = []
    if part == 0: r.append("s_lshl_b32 s43, s35, 8")
    else:
        r.append("s_mul_i32 s43, s35, 192")
        r.append("s_and_b32 s43, s43, 0xffffff80")
        r.append("s_add_u32 s43, s43, 4096")
    r.append(f"s_cmp_eq_u32 s{psg}, 1")
    r.append("s_cselect_b32 s8, s4, s6")
    r.append("s_cselect_b32 s9, s5, s7")
    r.append("s_sub_u32 s10, 7340032, s43")
    r.append("s_lshl_b32 s44, s34, 18")
    r.append(f"s_add_u32 s44, s44, {WS_H}")
    r.append("s_movk_i32 s38, 28672")
    r.append(f"s_cmp_eq_u32 s{psg}, 0")
    r.append("s_cselect_b32 s8, s32, s8")
    r.append("s_cselect_b32 s9, s33, s9")
    r.append("s_cselect_b32 s10, 262144, s10")
    r.append("s_cselect_b32 s43, s44, s43")
    r.append("s_cselect_b32 s38, 1024, s38")
    r.append("s_cselect_b32 s45, 0, -1")
    r.append("s_add_u32 s8, s8, s43")
    r.append("s_addc_u32 s9, s9, 0")
    r.append("s_mov_b32 s11, 0x20000")
    r.append("s_lshl_b32 s40, s38, 4")
    r.append(f"s_add_u32 s42, s35, {first + 15}")
    r.append(f"s_lshl_b32 s39, s{psg}, 14")
    r.append("v_lshrrev_b32 v19, 4, v1")
    r.append("v_lshlrev_b32 v20, 5, v19")
    r.append("v_mul_u32_u24 v19, 6912, v19")
    r.append("v_and_b32 v19, s45, v19")
    r.append("v_and_b32 v20, s45, v20")
    r.append("v_lshlrev_b32 v21, 4, v1")
    r.append("v_xor_b32 v21, v21, v20")
    r.append(f"v_add_u32 v{vE}, v21, v19")
    r.append("s_and_b32 s45, s45, 128")
    r.append(f"v_xor_b32 v{vE+1}, s45, v{vE}")
    return r

def k3_items(sig, vE=22):
    rg = (sig + 2) % 3
    r = [[f"s_add_u32 m0, s39, {rg*REG + j*1024}", "s_add_u32 s37, s37, s38",
          f"buffer_load_dwordx4 v{vE + (j & 1)}, s[8:11], s37 offen{XF} lds"] for j in range(16)]
    r[0] = ["s_add_u32 s42, s42, 1", "s_and_b32 s42, s42, 15", r[0][0], "s_mul_i32 s37, s42, s40", r[0][2]]
    return r

def g2_dma_setup(psg, A_off, A_mul, A_bytes, K, wreg, vA=21, hop=8):
    r = []
    r.append(f"s_mul_i32 s44, s34, {A_mul}")
    r.append(f"s_lshl_b32 s39, s{psg}, 13")
    r.append("s_add_u32 s44, s44, s39")
    r.append(f"s_add_u32 s44, s44, {A_off}")
    r.append("s_lshl_b32 s43, s35, 7")
    r.append(f"s_mov_b32 s10, {A_bytes - 8192}")
    r.append("s_movk_i32 s38, 1024")
    r.append("s_movk_i32 s40, 9216")
    r.append(f"s_cmp_eq_u32 s{psg}, 2")
    r.append(f"s_cselect_b32 s8, s{wreg}, s32")
    r.append(f"s_cselect_b32 s9, s{wreg+1}, s33")
    r.append(f"s_cselect_b32 s10, {K*2048 - 1920}, s10")
    r.append("s_cselect_b32 s43, s43, s44")
    r.append("s_cselect_b32 s38, 16384, s38")
    r.append(f"s_cselect_b32 s40, {hop*2048}, s40")
    r.append(f"s_cselect_b32 s55, {hop*2048}, s38")
    r.append("s_cselect_b32 s45, -1, 0")
    r.append("s_add_u32 s8, s8, s43")
    r.append("s_addc_u32 s9, s9, 0")
    r.append("s_mov_b32 s11, 0x20000")
    r.append("s_sub_u32 s37, 0, s40")
    r.append("v_lshrrev_b32 v19, 3, v1")
    r.append("v_mul_u32_u24 v19, 1920, v19")
    r.append("v_lshrrev_b32 v20, 4, v1")
    r.append("v_lshlrev_b32 v20, 5, v20")
    r.append("v_and_b32 v19, s45, v19")
    r.append("v_and_b32 v20, s45, v20")
    r.append(f"v_lshlrev_b32 v{vA}, 4, v1")
    r.append(f"v_xor_b32 v{vA}, v{vA}, v20")
    r.append(f"v_add_u32 v{vA}, v{vA}, v19")
    return r

def g2_items(slot, vA=21, wrows=None):
    r = []
    for k in range(8):
        if wrows is None: inc = f"s_add_u32 s37, s37, s{40 if k == 0 else 55 if k == 4 else 38}"
        else: inc = f"s_add_u32 s37, s37, {(wrows[k]*2048) & 0xffffffff}"
        r.append([f"s_add_u32 m0, s39, {slot*SLOT + k*1024}", inc, f"buffer_load_dwordx4 v{vA}, s[8:11], s37 offen{XF} lds"])
    return r

def wd_row(item):
    if item < 256:
        s, k = item >> 3, item & 7
        return 128*(s & 15) + 32*(s >> 4) + 64*(k >> 2) + 8*(k & 3)
    q = item - 256
    return 2048 + 96*(q // 12) + [0, 8, 16, 24, 48, 56, 64, 72, 32, 80, 40, 88][q % 12]


CSR = 48
TT = 80
def epi_reads(nj, csbase):
    rd = []
    rd.append("s_lshl_b32 s43, s46, 9")
    rd.append(f"s_add_u32 s43, s43, {STATS}")
    rd.append("v_lshl_add_u32 v19, v17, 3, s43")
    for tl in range(4): rd.append(f"ds_read_b64 v[{TT+2*tl}:{TT+2*tl+1}], v19 offset:{tl*128}")
    rd.append(f"s_mul_i32 s43, s47, {nj*64}")
    rd.append(f"s_add_u32 s43, s43, {CSF + csbase*4}")
    rd.append("v_lshl_add_u32 v19, v18, 4, s43")
    for mat in range(2):
        for j in range(nj):
            d = CSR + (mat*nj+j)*4
            rd.append(f"ds_read_b128 v[{d}:{d+3}], v19 offset:{mat*896 + j*64}")
    return rd
def epi_consts(KB, mean=True):
    c = []
    for tl in range(4):
        mn, rs = TT+2*tl, TT+2*tl+1
        if mean: c.append(f"v_mov_b32 v{KB+tl}, v{mn}")
        c.append(f"v_mul_f32 v{TT+8}, v{rs}, v{rs}")
        c.append(f"v_mul_f32 v{KB+4+tl}, {fh(C0_)}, v{rs}")
        c.append(f"v_mul_f32 v{TT+9}, {fh(C1_)}, v{rs}")
        c.append(f"v_rcp_f32 v{KB+12+tl}, v{TT+8}")
        c.append(f"v_mul_f32 v{KB+8+tl}, v{TT+9}, v{TT+8}")
    return c

def epi_group(nj, tl, j, out, KB, ln=True):
    G = k3_acc(nj, 0, j, tl); U = k3_acc(nj, 1, j, tl)
    cg = CSR + j*4; cu = CSR + (nj+j)*4
    KM, K0, K1, KI = KB+tl, KB+4+tl, KB+8+tl, KB+12+tl
    T = TT + 4*(j & 1)
    r = []
    if ln:
        for q in range(4): r.append(f"v_fma_f32 v{G+q}, -v{KM}, v{cg+q}, v{G+q}")
        for q in range(4): r.append(f"v_fma_f32 v{U+q}, -v{KM}, v{cu+q}, v{U+q}")
    for q in range(4): r.append(f"v_mul_f32 v{T+q}, v{G+q}, v{G+q}")
    for q in range(4): r.append(f"v_fma_f32 v{T+q}, v{T+q}, v{K1}, v{K0}")
    for q in range(4): r.append(f"v_mul_f32 v{T+q}, v{T+q}, v{G+q}")
    for q in range(4): r.append(f"v_exp_f32 v{T+q}, v{T+q}")
    for q in range(4): r.append(f"v_mul_f32 v{U+q}, v{G+q}, v{U+q}")
    for q in range(4): r.append(f"v_fma_f32 v{T+q}, v{T+q}, v{KI}, v{KI}")
    for q in range(4): r.append(f"v_rcp_f32 v{T+q}, v{T+q}")
    for q in range(4): r.append(f"v_mul_f32 v{U+q}, v{U+q}, v{T+q}")
    r.append(f"v_cvt_pk_bf16_f32 v{out}, v{U}, v{U+1}")
    r.append(f"v_cvt_pk_bf16_f32 v{out+1}, v{U+2}, v{U+3}")
    return r

ST = "#ST "
KA, KBB = 32, 224
def epi_a():
    r = []
    for q in range(2):
        for tl in range(4):
            o = 96 + 4*tl
            r += epi_group(4, tl, 2*q, o, KA) + epi_group(4, tl, 2*q+1, o+2, KA)
            r.append(ST + f"{q}buffer_store_dwordx4 v[{o}:{o+3}], v27, s[24:27], {'s53' if q else '0'} offen offset:{tl*256} sc1")
    return r
def epi_b():
    r = []
    for tp in range(2):
        lo = 112 + 4*tp
        for tl in (2*tp, 2*tp+1):
            o = 96 + 4*tl
            r += epi_group(3, tl, 0, o, KBB, False) + epi_group(3, tl, 1, o+2, KBB, False)
            r.append(ST + f"0buffer_store_dwordx4 v[{o}:{o+3}], v27, s[24:27], 0 offen offset:{tl*256} sc1")
            r += epi_group(3, tl, 2, lo + 2*(tl & 1), KBB, False)
        r.append("s_nop 1")
        r.append(f"v_permlane32_swap_b32 v{lo}, v{lo+2}")
        r.append(f"v_permlane32_swap_b32 v{lo+1}, v{lo+3}")
        r.append(ST + f"0buffer_store_dwordx4 v[{lo}:{lo+3}], v28, s[24:27], 0 offen offset:{tp*512} sc1")
    return r

def epi_store_setup(part):
    r = []
    r.append(f"s_mul_i32 s43, s34, {HH_M}")
    r.append(f"s_mul_i32 s44, s35, {16384 if part == 0 else 24576}")
    r.append("s_add_u32 s43, s43, s44")
    r.append(f"s_add_u32 s43, s43, {WS_HH + (0 if part == 0 else 524288)}")
    r.append("s_add_u32 s24, s32, s43")
    r.append("s_addc_u32 s25, s33, 0")
    r.append(f"s_mov_b32 s26, {262144 + 16384 if part == 0 else 24576}")
    r.append("s_mov_b32 s27, 0x20000")
    r.append("s_mov_b32 s53, 262144")
    r.append("s_lshl_b32 s43, s47, 13")
    r.append("s_lshl_b32 s44, s46, 10")
    r.append("s_add_u32 s43, s43, s44")
    r.append("v_lshlrev_b32 v19, 11, v18")
    r.append("v_lshl_add_u32 v19, v17, 4, v19")
    r.append("v_add_u32 v27, s43, v19")
    if part == 1:
        r.append("s_lshl_b32 s43, s47, 12")
        r.append("s_add_u32 s43, s43, s44")
        r.append("s_add_u32 s43, s43, 16384")
        r.append("v_and_b32 v19, 1, v18")
        r.append("v_lshlrev_b32 v19, 11, v19")
        r.append("v_lshrrev_b32 v20, 1, v18")
        r.append("v_lshl_add_u32 v19, v20, 8, v19")
        r.append("v_lshl_add_u32 v19, v17, 4, v19")
        r.append("v_add_u32 v28, s43, v19")
    return r

STRIP = os.environ.get("STRIP", "").split(",")
def strip(lst, key):
    return [("s_nop 0" if key in STRIP else i) for i in lst]
_k3_mfmas, _k3_reads, _k3_items, _g2_mfmas, _g2_reads, _g2_items = k3_mfmas, k3_reads, k3_items, g2_mfmas, g2_reads, g2_items
def k3_mfmas(*x): return strip(_k3_mfmas(*x), "m3")
def k3_reads(*x): return strip(_k3_reads(*x), "r3")
def g2_mfmas(*x): return strip(_g2_mfmas(*x), "m4")
def g2_reads(*x): return strip(_g2_reads(*x), "r4")
def k3_items(*x, **k):
    r = _k3_items(*x, **k)
    if "d3" in STRIP: r = [g[:-1] + ["s_nop 0 ;buffer_load lds"] for g in r]
    if "h3" in STRIP: r[0][3] = "s_mov_b32 s37, 0"
    return r
def g2_items(*x, **k):
    r = _g2_items(*x, **k)
    if "d4" in STRIP: r = [g[:2] + ["s_nop 0 ;buffer_load lds"] for g in r]
    if "h4" in STRIP: r[0][1] = "s_mov_b32 s37, 0x20000"
    return r


T1 = env("T1", 4); LB = env("LB", 6)
A0B = (16 - T1)//2
PA1 = T1 + A0B; PB = PA1 + 8; EB4 = PB + LB; NP4 = EB4 + 24 - 2*LB
assert T1 % 2 == 0 and LB % 3 == 0
SX, SW = [32, 96], [64, 160]
AK, AS, RECV = 128, 192, 224
def both(pos): return T1 <= pos < EB4
def k4_stage_of(pos, kh):
    if pos < T1: return pos
    if pos < PA1: return T1 + A0B*kh + pos - T1
    if pos < PB: return 16 + 8*kh + pos - PA1
    if pos < EB4: return 32 + LB*kh + pos - PB
    return 32 + 2*LB + pos - EB4
def k4_addrs():
    r = []
    r.append("v_lshlrev_b32 v19, 11, v18")
    r.append("v_lshl_add_u32 v19, v17, 4, v19")
    r.append("s_lshl_b32 s43, s46, 10")
    r.append("v_add_u32 v2, s43, v19")
    r.append("v_add_u32 v3, 0x10000, v2")
    r.append("v_lshrrev_b32 v19, 2, v17")
    r.append("v_lshl_add_u32 v20, v18, 2, v19")
    r.append("v_bfe_u32 v21, v20, 1, 2")
    r.append("s_lshl_b32 s43, s47, 1")
    r.append("v_xor_b32 v21, s43, v21")
    r.append("v_lshlrev_b32 v20, 7, v20")
    r.append("v_lshl_add_u32 v20, v21, 5, v20")
    r.append("v_and_b32 v19, 3, v1")
    r.append("v_lshl_add_u32 v20, v19, 3, v20")
    r.append("v_add_u32 v5, 16384, v20")
    r.append("v_xor_b32 v6, 32, v5")
    r.append("v_add_u32 v7, 0x10000, v5")
    r.append("v_add_u32 v8, 0x10000, v6")
    r.append("s_lshl_b32 s43, s36, 13")
    r.append("v_lshl_add_u32 v9, v1, 4, s43")
    r.append("s_mov_b32 s54, 0x10000")
    r.append("s_movk_i32 s52, 0x1000")
    return r
def k4_reads(pos):
    slot = (pos + 2) % 4; hi, so = slot >> 1, (slot & 1)*32768
    bx, bw = SX[pos & 1], SW[pos & 1]
    def xr(kb, tl): return f"ds_read_b128 v[{bx+(kb*4+tl)*4}:{bx+(kb*4+tl)*4+3}], v{2+hi} offset:{so + kb*8192 + tl*256}"
    def wr(c, kb, e, h):
        d = bw + ((c*2+kb)*2+e)*4 + 2*h
        return f"ds_read_b64_tr_b16 v[{d}:{d+1}], v{5+2*hi+e} offset:{so + c*8192 + kb*4096 + h*2048}"
    r = []
    for kb in range(2):
        w = [wr(c, kb, e, h) for c in range(2 if both(pos) else 1) for e in range(2) for h in range(2)]
        r += interleave(w, [xr(kb, tl) for tl in range(4)])
    return strip(r, "r4")
def k4_mfmas(pos):
    bx, bw = SX[pos & 1], SW[pos & 1]
    r = []
    for kb in range(2):
        for tl in range(4):
            for c in range(2 if both(pos) else 1):
                for e in range(2):
                    acc = (AS if c else AK) + (tl*2+e)*4
                    w = bw + ((c*2+kb)*2+e)*4; x = bx + (kb*4+tl)*4
                    r.append(f"v_mfma_f32_16x16x32_bf16 v[{acc}:{acc+3}], v[{w}:{w+3}], v[{x}:{x+3}], v[{acc}:{acc+3}]")
    return strip(r, "m4")
def k4_stage(a, pos, pre=None, extra=[]):
    a("s_waitcnt lgkmcnt(0)" if pre is None else f"s_waitcnt vmcnt({pre}) lgkmcnt(0)")
    a("s_barrier")
    rd = k4_reads(pos+1) if pos + 1 < NP4 else []
    seq = interleave(k4_mfmas(pos), rd)
    if extra: seq = seq[:8] + spread(seq[8:], [[i] for i in extra])
    for i in seq: a(i)
def k4_dma_setup(first, vA=21):
    r = []
    r.append(f"s_mul_i32 s44, s34, {HH_M}")
    r.append("s_lshl_b32 s39, s51, 13")
    r.append("s_add_u32 s44, s44, s39")
    r.append(f"s_add_u32 s44, s44, {WS_HH}")
    r.append("s_and_b32 s43, s51, 1")
    r.append("s_xor_b32 s43, s43, s35")
    r.append("s_lshl_b32 s43, s43, 7")
    r.append(f"s_mov_b32 s10, {HH_M - 8192}")
    r.append("s_movk_i32 s38, 1024")
    r.append("s_movk_i32 s40, 9216")
    r.append("s_movk_i32 s37, 0x4000")
    r.append("s_cmp_ge_u32 s51, 2")
    r.append("s_cselect_b32 s8, s60, s32")
    r.append("s_cselect_b32 s9, s61, s33")
    r.append(f"s_cselect_b32 s10, {3584*2048 - 1920}, s10")
    r.append("s_cselect_b32 s43, s43, s44")
    r.append("s_cselect_b32 s38, 16384, s38")
    r.append(f"s_cselect_b32 s40, {40*2048}, s40")
    r.append(f"s_cselect_b32 s55, {40*2048}, s38")
    r.append(f"s_cselect_b32 s37, {128*2048}, s37")
    r.append("s_cselect_b32 s45, -1, 0")
    r.append("s_add_u32 s8, s8, s43")
    r.append("s_addc_u32 s9, s9, 0")
    r.append("s_mov_b32 s11, 0x20000")
    r.append("s_and_b32 s53, s35, 1")
    r.append(f"s_mul_i32 s54, s53, {A0B}")
    r.append("s_mul_i32 s54, s54, s37")
    r.append(f"s_mul_i32 s29, s53, {8 - A0B}")
    r.append(f"s_add_u32 s29, s29, {A0B}")
    r.append("s_mul_i32 s29, s29, s37")
    r.append(f"s_and_b32 s43, s45, {((32 - 2048)*2048) & 0xffffffff}")
    r.append("s_add_u32 s29, s29, s43")
    r.append(f"s_mul_i32 s37, s37, {first}")
    r.append("s_sub_u32 s37, s37, s40")
    r.append("v_lshrrev_b32 v19, 3, v1")
    r.append("v_mul_u32_u24 v19, 1920, v19")
    r.append("v_lshrrev_b32 v20, 4, v1")
    r.append("v_lshlrev_b32 v20, 5, v20")
    r.append("v_and_b32 v19, s45, v19")
    r.append("v_and_b32 v20, s45, v20")
    r.append(f"v_lshlrev_b32 v{vA}, 4, v1")
    r.append(f"v_xor_b32 v{vA}, v{vA}, v20")
    r.append(f"v_add_u32 v{vA}, v{vA}, v19")
    return r
def k4_items(pos, kind=None, vA=21):
    slot = (pos + 2) % 4
    r = []
    for k in range(8):
        if kind is None: inc = f"s_add_u32 s37, s37, s{40 if k == 0 else 55 if k == 4 else 38}"
        else:
            st = k4_stage_of(pos, 0)
            off = st*16384 + k*1024 if kind == 'x' else wd_row(8*st + k)*2048
            inc = f"s_add_u32 s37, s40, {off}" if pos < EB4 else f"s_mov_b32 s37, {off}"
        g = [f"s_add_u32 m0, s39, {slot*32768 + k*1024}", inc, f"buffer_load_dwordx4 v{vA}, s[8:11], s37 offen{XF} lds"]
        if "d4" in STRIP: g[2] = "s_nop 0 ;buffer_load lds"
        r.append(g)
    if kind is None and pos == T1: r[0] = ["s_add_u32 s37, s37, s54"] + r[0]
    if kind is None and pos == PA1: r[0] = ["s_add_u32 s37, s37, s29"] + r[0]
    return r


def emit(a, vm, seq, tag):
    for i in seq:
        if i.startswith(ST):
            t = i[len(ST)+1:]
            if "st" in STRIP: t = "s_nop 0"
            if "stp" in STRIP: t = t.replace(" sc1", "")
            a(t); vm.add("st" + i[len(ST)])
        else:
            a(i)
            if "buffer_load" in i and i.endswith("lds"): vm.add(tag)
            elif i.startswith("buffer_"): vm.add("x")

def st_last(seq):
    if not env("STLAST", 1): return seq
    return [i for i in seq if not i.startswith(ST)] + [i for i in seq if i.startswith(ST)]
def chunks(lst, n):
    return [lst[len(lst)*k//n:len(lst)*(k+1)//n] for k in range(n)]
def flat(g): return sum(g, [])
def last_with(cs, tag): return max(k for k, c in enumerate(cs) if any(i.startswith(ST + tag) for i in c))


def phase_234(a, Ld):
    PRIO = env("PRIO", 1)
    XSN = env("XSN", 1)
    XSIG = EB4 + XSN + env("XSD", 2); XRCV = NP4 - env("XRD", 3)
    LG1 = a.label("LG1")
    a(f"s_load_dwordx4 s[4:7], s[0:1], {KA_WG}")
    a(f"s_load_dwordx2 s[28:29], s[0:1], {KA_WO}")
    a(f"s_load_dwordx4 s[60:63], s[0:1], {KA_WD}")
    a(f"s_load_dwordx2 s[30:31], s[0:1], {KA_X}")
    lane_ig(a)
    a("s_lshr_b32 s46, s36, 1")
    a("s_and_b32 s46, s46, 1")
    a("s_and_b32 s47, s36, 1")
    a("s_and_b32 s51, s36, 3")
    a("s_waitcnt lgkmcnt(0)")
    a("s_cmp_ge_u32 s36, 4")
    a(f"s_cbranch_scc1 {LG1}")

    a("s_lshl_b32 s43, s34, 18")
    a("s_lshl_b32 s44, s35, 7")
    a("s_add_u32 s43, s43, s44")
    srd(a, 16, 30, 127*2048 + 128, add_lo=43)
    a("s_lshl_b32 s43, s36, 5")
    a("v_lshl_add_u32 v19, v17, 1, s43")
    a("v_lshlrev_b32 v19, 11, v19")
    a("v_lshl_add_u32 v23, v18, 3, v19")
    for tl in range(2):
        for t in range(4):
            d = 160 + (tl*4+t)*2
            a(f"buffer_load_dwordx2 v[{d}:{d+1}], v23, s[16:19], 0 offen offset:{tl*2048 + t*32}")
    for i in g2_addrs(): a(i)
    a("s_lshl_b32 s43, s34, 18")
    a("s_lshl_b32 s44, s35, 14")
    a("s_add_u32 s43, s43, s44")
    srd(a, 20, 32, 16384, add_lo=43, add_imm=WS_H)
    a("s_lshl_b32 s43, s34, 14")
    a("s_lshl_b32 s44, s35, 10")
    a("s_add_u32 s43, s43, s44")
    srd(a, 24, 32, 1024, add_lo=43, add_imm=WS_ST2)
    a("s_movk_i32 s50, 0x2000")
    a("s_mov_b32 s52, 0x3f803f80")
    a("v_lshrrev_b32 v19, 1, v18")
    a("v_lshl_add_u32 v19, v19, 4, v17")
    a("s_lshl_b32 s43, s36, 5")
    a("v_add_u32 v19, s43, v19")
    a("v_and_b32 v20, 1, v18")
    a("v_lshlrev_b32 v20, 2, v20")
    a("v_lshl_add_u32 v22, v19, 3, v20")
    a("s_waitcnt vmcnt(0)")
    for k in range(8):
        for h in range(2):
            a(f"v_lshlrev_b32 v{ACC+4*k+2*h}, 16, v{160+2*k+h}")
            a(f"v_and_b32 v{ACC+4*k+2*h+1}, 0xffff0000, v{160+2*k+h}")
    def o_first_setup():
        a("s_lshl_b32 s43, s34, 18")
        srd(a, 12, 32, 262144, add_lo=43, add_imm=WS_O)
        a("v_lshlrev_b32 v21, 4, v1")
        a("s_lshl_b32 s54, s36, 11")
    def o_first():
        for sg in range(2):
            for e in range(2):
                a(f"s_add_u32 m0, s54, {sg*SLOT + e*1024}")
                a(f"s_add_u32 s43, s54, {sg*16384 + e*1024}")
                a(f"buffer_load_dwordx4 v21, s[12:15], s43 offen{XF} lds")
    o_first_setup()
    a("s_barrier")
    o_first()
    a("s_waitcnt vmcnt(2)")
    a("s_barrier")
    stamp(a, 6)
    for i in g2_reads(0, SET[0]): a(i)
    g2_loop(a, 0, 16, 0, pres={0: 0, 1: None})
    stamp(a, 7)
    a("s_nop 4")
    P = 96
    for tl in range(2):
        for kb in range(2):
            o = P + (tl*2+kb)*4
            for hf in range(2):
                s = ACC + (tl*4 + 2*kb + hf)*4
                a(f"v_cvt_pk_bf16_f32 v{o+2*hf}, v{s}, v{s+1}")
                a(f"v_cvt_pk_bf16_f32 v{o+2*hf+1}, v{s+2}, v{s+3}")
            a(f"buffer_store_dwordx4 v[{o}:{o+3}], v2, s[20:23], {'s50' if kb else '0'} offen offset:{tl*256} sc1")
            a(f"ds_write_b128 v4, v[{o}:{o+3}] offset:{kb*8192 + tl*256}")
    for q in range(8):
        for tl in range(2):
            src = P + tl*8 + q
            a(f"v_dot2_f32_bf16 v{112+2*tl}, v{src}, s52, {'0' if q == 0 else 'v%d' % (112+2*tl)}")
            a(f"v_dot2_f32_bf16 v{113+2*tl}, v{src}, v{src}, {'0' if q == 0 else 'v%d' % (113+2*tl)}")
    a("s_nop 2")
    a("v_permlane32_swap_b32 v112, v114")
    a("v_permlane32_swap_b32 v113, v115")
    a("v_add_f32 v112, v112, v114")
    a("v_add_f32 v113, v113, v115")
    a("s_nop 1")
    a("v_permlane16_swap_b32 v112, v113")
    a("v_add_f32 v112, v112, v113")
    a("buffer_store_dword v112, v22, s[24:27], 0 offen sc1")
    a("s_waitcnt vmcnt(0) lgkmcnt(0)")
    a("s_barrier")
    Ls = a.label("Lsig")
    a("s_cmp_lg_u32 s36, 0")
    a(f"s_cbranch_scc1 {Ls}")
    flag_signal(a, 56, "h", 34, v=19)
    a(f"{Ls}:")
    stamp(a, 8)
    a("s_lshl_b32 s53, s47, 2")
    for i in k3_addrs(4, 53): a(i)
    for i in range(128): a(f"v_mov_b32 v{ACC+i}, 0")
    for i in k3_dma_setup(1, 51, first=2): a(i)
    for i in epi_store_setup(0): a(i)
    def out_setup():
        r = ["s_lshl_b32 s43, s34, 18", "s_lshl_b32 s44, s35, 7", "s_add_u32 s43, s43, s44",
             "s_add_u32 s16, s62, s43", "s_addc_u32 s17, s63, 0", f"s_mov_b32 s18, {127*2048 + 128}", "s_mov_b32 s19, 0x20000",
             "s_lshl_b32 s43, s46, 6", "v_lshl_add_u32 v19, v17, 1, s43", "v_lshlrev_b32 v19, 11, v19",
             "v_and_b32 v20, 1, v18", "v_lshl_add_u32 v19, v20, 5, v19", "v_lshrrev_b32 v20, 1, v18", "v_lshl_add_u32 v19, v20, 4, v19",
             "s_lshl_b32 s43, s47, 6", "v_add_u32 v28, s43, v19"]
        for d, flip in ((64, 0), (68, 1)):
            r += ["s_lshl_b32 s43, s34, 4", "s_add_u32 s43, s43, s35", f"s_xor_b32 s43, s43, {flip}", "s_lshl_b32 s43, s43, 15", f"s_add_u32 s43, s43, {WS_X}",
                  f"s_add_u32 s{d}, s32, s43", f"s_addc_u32 s{d+1}, s33, 0", f"s_mov_b32 s{d+2}, 32768", f"s_mov_b32 s{d+3}, 0x20000"]
        return r
    for i in out_setup(): a(i)
    def x_first_setup():
        a("s_lshl_b32 s43, s34, 18")
        srd(a, 12, 32, 262144, add_lo=43, add_imm=WS_H)
        a("v_lshlrev_b32 v21, 4, v1")
        a("s_lshl_b32 s54, s36, 11")
        for sg in (1, 2):
            a(f"s_add_u32 s43, s35, {sg}")
            a("s_and_b32 s43, s43, 15")
            a("s_lshl_b32 s43, s43, 14")
            a(f"s_add_u32 s{29+sg}, s43, s54")
    def x_first():
        for sg in (1, 2):
            for e in range(2):
                a(f"s_add_u32 m0, s54, {((sg+2) % 3)*REG + e*1024}")
                a(f"s_add_u32 s43, s{29+sg}, {e*1024}")
                a(f"buffer_load_dwordx4 v21, s[12:15], s43 offen{XF} lds")
    x_first_setup()
    for i in k3_reads(4, 0, 0, SET[0]): a(i)
    a("s_waitcnt lgkmcnt(0)")
    for i in interleave(k3_mfmas(4, SET[0]), k3_reads(4, 0, 1, SET[1])): a(i)
    a("s_waitcnt lgkmcnt(0)")
    for i in k3_mfmas(4, SET[1]): a(i)
    a("s_barrier")
    x_first()
    a("s_waitcnt vmcnt(2)")
    a("s_barrier")
    stamp(a, 9)
    if PRIO: a("s_setprio 1")
    for i in k3_reads(4, 1, 0, SET[0]): a(i)
    k3_consumer(a, 4, 1, [0], n=15)
    stamp(a, 10)
    EA = epi_a()
    def batch(l, nb):
        return flat([[i for i in c if not i.startswith(ST)] + [i for i in c if i.startswith(ST)] for c in chunks(l, nb)])
    if env("STBA", 0): EA = batch(EA, env("STBA", 0))
    if "e" in STRIP: EA = [i for i in EA if i.startswith(ST)]
    ea = chunks(EA, env("EA_N", 13))
    SIG_A0 = 16 + last_with(ea, "0") + 2
    SIG_A1 = 16 + last_with(ea, "1") + 2
    HL = SIG_A0 - 1
    assert 16 + len(ea) <= 31 and SIG_A0 <= 28 and HL <= 27 and SIG_A1 in (29, 30)
    L3h = a.label("L3h"); LK4 = a.label("LK4")
    RD = 192
    def resid_loads():
        r = ["v_lshlrev_b32 v19, 11, v18", "v_lshl_add_u32 v19, v17, 4, v19", "s_lshl_b32 s43, s46, 10", "s_lshl_b32 s44, s47, 13",
             f"v_add3_u32 v{RD+16}, v19, s43, 0", f"v_add_u32 v{RD+16}, s44, v{RD+16}"]
        for tl in range(4):
            r.append(f"buffer_load_dwordx4 v[{RD+4*tl}:{RD+4*tl+3}], v{RD+16}, s[20:23], 0 offen offset:{tl*256} sc1")
        return r
    def resid_unpack():
        r = []
        for k in range(4):
            for q in range(4):
                r.append(f"v_lshlrev_b32 v{ACC+8*k+2*q}, 16, v{RD+4*k+q}")
                r.append(f"v_and_b32 v{ACC+8*k+2*q+1}, 0xffff0000, v{RD+4*k+q}")
        return r
    extra = {HL: resid_loads(), 17: k4_addrs(), 29: resid_unpack(), 30: [f"v_mov_b32 v{AS+i}, 0" for i in range(32)]}
    assert HL + 2 <= 28 and HL > 19
    a("s_cmp_eq_u32 s36, 3")
    a(f"s_cbranch_scc1 {L3h}")
    for helper in (False, True):
        vm = VM(a)
        if helper: a(f"{L3h}:")
        m = k3_mfmas(4, SET[1])
        emit(a, vm, m if helper else spread(m, k3_items(18)), 18)
        if PRIO: a("s_setprio 0")
        emit(a, vm, epi_reads(4, 0) + ["s_waitcnt lgkmcnt(0)"] + epi_consts(KA), None)
        if helper and env("K3PF", 0):
            k3pf = K3PF(a, 1)
            k3pf.setup()
            for s in range(3, env("K3PD", 6)): k3pf.issue(s)
        a("s_barrier")
        if helper: stampc(a, "k3", 16)
        for sig in range(16, 31):
            body = (list(ea[sig-16]) if sig-16 < len(ea) else []) + extra.get(sig, [])
            if helper:
                if sig == SIG_A0: flag_signal(a, 56, "hha0", 34, v=21)
                if sig == SIG_A1: flag_signal(a, 56, "hha1", 34, v=22)
                if sig == 28: flag_poll_issue(a, 56, "hha0", 34, v=21)
                if env("K3PF", 0) and sig - 16 + env("K3PD", 6) < 16: k3pf.issue(sig - 16 + env("K3PD", 6))
                if env("K3_SPF", 1) and sig == env("S3C", 18):
                    sp = SPF3(a); sp.setup(1); sp.issue(8)
                if env("K4_SPF", 1) and sig == env("S4A", 25):
                    sp = SPF4(a); sp.setup(); sp.issue(0)
                if sig == 25 and env("K4PF", 0):
                    pf_w64(a, KA_WD, 3584, list(range(env("K4PF0", 0), env("K4PF", 0)//MX)), 80, 29, 30)
                assert T1 >= 4
                emit(a, vm, body, None)
                if sig == SIG_A0 - 1: a(vm.wait("st0"))
                if sig == SIG_A1 - 1: a(vm.wait("st1"))
                if sig == HL + 2: a(vm.wait("x"))
                if sig == 28: flag_poll_finish(a, 56, v=21)
            else:
                if sig + 3 <= 31:
                    emit(a, vm, st_last(spread(body, k3_items(sig+3), env("FR3", 100))), sig+3)
                else:
                    if sig == 29: emit(a, vm, k4_dma_setup(0), None)
                    emit(a, vm, spread(body, k4_items(sig - 29)), ("k4", sig - 29))
                w = vm.cnt(sig+2) if sig + 2 <= 31 else vm.cnt(("k4", 0))
                if sig == SIG_A0 - 1: w = min(w, vm.cnt("st0"))
                if sig == SIG_A1 - 1: w = min(w, vm.cnt("st1"))
                if sig == HL + 2: w = min(w, vm.cnt("x"))
                a(f"s_waitcnt vmcnt({w})")
            a("s_barrier")
            if helper: stampc(a, "k3", sig+1)
        if not helper: a(f"s_branch {LK4}")
    a(f"{LK4}:")
    stamp(a, 11)
    if PRIO: a("s_setprio 1")
    for i in k4_reads(0): a(i)
    a("s_mov_b32 s54, 0x10000")
    XB = env("XBF", 1)
    def xch(op, reg, sd, n=8):
        return [f"buffer_{op}_dwordx4 v[{reg+4*t}:{reg+4*t+3}], v9, s[{sd}:{sd+3}], {'s52' if t >= 4 else '0'} offen offset:{(t & 3)*1024} sc1" for t in range(n)]
    if XB:
        st_ = xch("store", RECV, 64, 4)
        xs = chunks([[f"v_cvt_pk_bf16_f32 v{RECV+4*tl+q}, v{AS+8*tl+2*q}, v{AS+8*tl+2*q+1}" for q in range(4)] + [st_[tl]] for tl in range(4)], XSN)
        xs = [flat(c) for c in xs]
        xl = xch("load", AS, 68, 4)
        xu = ["s_waitcnt vmcnt(0)"]
        for k in range(16): xu += [f"v_lshlrev_b32 v{RECV+2*k}, 16, v{AS+k}", f"v_and_b32 v{RECV+2*k+1}, 0xffff0000, v{AS+k}"]
    else:
        xs = chunks(xch("store", AS, 64), XSN); xl = xch("load", RECV, 68); xu = []
    pos = 0
    while pos < NP4:
        if pos == T1:
            nl = (EB4 - 1 - T1)//4
            L = a.label("Lk4")
            a(f"s_mov_b32 s41, {nl}")
            a(f"{L}:")
            for q in range(4): k4_stage(a, pos + q)
            a("s_sub_u32 s41, s41, 1")
            a("s_cmp_lg_u32 s41, 0")
            a(f"s_cbranch_scc1 {L}")
            pos += 4*nl
        k4_stage(a, pos, pre=0 if pos in (0, XSIG) else None,
                 extra=xs[pos - EB4] if EB4 <= pos < EB4 + XSN else xl if pos == XRCV else xu if pos == NP4 - 1 else [])
        pos += 1
    stamp(a, 12)
    a("s_waitcnt vmcnt(0)")
    a("s_nop 4")
    for tl in range(4):
        b = AK + 8*tl; o = 32 + 4*tl
        for q in range(0, 8, 2): a(f"v_pk_add_f32 v[{b+q}:{b+q+1}], v[{b+q}:{b+q+1}], v[{RECV+8*tl+q}:{RECV+8*tl+q+1}]")
        for q in range(4): a(f"v_cvt_pk_bf16_f32 v{o+q}, v{b+2*q}, v{b+2*q+1}")
    for tl in range(4):
        o = 32 + 4*tl
        a(f"v_permlane16_swap_b32 v{o}, v{o+2}")
        a(f"v_permlane16_swap_b32 v{o+1}, v{o+3}")
        a(f"buffer_store_dwordx4 v[{o}:{o+3}], v28, s[16:19], {'s54' if tl >= 2 else '0'} offen offset:{(tl & 1)*2048}")
    if STAMP:
        a("s_waitcnt vmcnt(0)")
        stamp(a, 13)
        stamp_flush(a)
    a(f"s_branch {Ld}")

    a(f"{LG1}:")
    L7 = a.label("L7"); LK3b = a.label("LK3b"); LP3 = a.label("LP3")
    a("s_cmp_eq_u32 s36, 7")
    a(f"s_cbranch_scc1 {L7}")
    for i in g2_dma_setup(51, WS_O, 262144, 262144, 1024, 28, vA=23): a(i)
    o_first_setup()
    Lp = [a.label("Lp") for _ in range(3)]
    for p in range(1, 3):
        a(f"s_cmp_eq_u32 s51, {p}")
        a(f"s_cbranch_scc1 {Lp[p]}")
    for p in range(3):
        a(f"{Lp[p]}:")
        vm = VM(a)
        def st2(s): emit(a, vm, flat(g2_items(s % 6, vA=23)), s)
        if p == 2:
            for s in range(6): st2(s)
        if CSM == "d": cs_spre(a, 3)
        if p == 0: flag_poll(a, 56, "o", 34, v=8)
        a("s_barrier")
        o_first(); vm.add(0, 2); vm.add(1, 2)
        if p < 2:
            a("s_add_u32 s37, s37, 32768")
            for s in range(2, 6): st2(s)
        a(vm.wait(0))
        a("s_barrier")
        for s in range(16):
            if s < 15: a(vm.wait(s+1))
            a("s_barrier")
            if s + 6 < 16: st2(s+6)
            rest = SPR - 3 - 2*(SPE - 2) - s*env("CS_RPS", 2)
            if rest > 0 and CSM == "d": cs_spre(a, min(rest, env("CS_RPS", 2)))
            if s == 10:
                for i in k3_dma_setup(0, 51): a(i)
            if s in (11, 13)[:env("EW", 2)] and p > 0:
                emit(a, vm, flat(k3_items((s-11)//2)), "w%d" % ((s-11)//2))
        if p > 0: a(vm.wait("w0"))
        a("s_barrier")
        if p == 0:
            a("s_add_u32 s42, s42, 3")
            flag_poll(a, 56, "h", 34, v=8)
        else:
            for w in range(env("EW", 2), 3): emit(a, vm, flat(k3_items(w)), "w")
        if p < 2: a(f"s_branch {LP3}")
    a(f"{LP3}:")
    SWD = env("SWD", 1)
    wd_base = ["s_mul_i32 s43, s2, 28672", "s_mul_i32 s44, s51, 7168", "s_add_u32 s43, s43, s44", "s_add_u32 s80, s60, s43", "s_addc_u32 s81, s61, 0"]
    def swd(sig, w7=False):
        n = 9 if sig <= 8 else 8 if 10 <= sig <= 12 else 7 if sig == 13 else 0
        if w7: n = 0 if sig in (6, 9) or sig > 12 else 11 if sig <= 8 else 8
        if not SWD or not n: return []
        return [f"s_load_dword s{64+q}, s[80:81], {64*q}" for q in range(n)] + [f"s_add_u32 s80, s80, {64*n}", "s_addc_u32 s81, s81, 0"]
    for i in wd_base: a(i)
    x_first_setup()
    a("s_barrier")
    x_first()
    for i in flat(k3_items(3)) + swd(0): a(i)
    a("s_waitcnt vmcnt(18)")
    a("s_barrier")
    a("s_waitcnt vmcnt(16)")
    a("s_barrier")
    def pst(sig, body=[], pre=[], post=[]):
        for i in pre + spread(body, k3_items(sig+3)) + post + swd(sig): a(i)
        a("s_waitcnt vmcnt(16)")
        a("s_barrier")
    L = a.label("Lp3")
    a("s_mov_b32 s41, 2")
    a(f"{L}:")
    for sig in range(1, 4): pst(sig)
    a("s_sub_u32 s41, s41, 1")
    a("s_cmp_lg_u32 s41, 0")
    a(f"s_cbranch_scc1 {L}")
    pst(7); pst(8)
    bs = ["s_and_b32 s53, s35, 1", "s_lshl_b32 s53, s53, 1", "s_mul_i32 s43, s47, 3", "s_add_u32 s53, s53, s43"] + k3_addrs(3, 53)
    binit = []
    for mat in range(2):
        for j in range(3):
            for tl in range(4):
                for q in range(4):
                    binit.append(f"v_mul_f32 v{k3_acc(3, mat, j, tl)+q}, -v{TT+2*tl}, v{CSR+(mat*3+j)*4+q}")
    bi = chunks(binit, 3)
    BODY = {9: bs + epi_reads(3, 128), 10: ["s_waitcnt lgkmcnt(0)"] + epi_consts(KBB, False), 11: bi[0], 12: bi[1], 13: bi[2]}
    k4set = k4_dma_setup(2)
    for sig in range(9, 15):
        pst(sig, BODY.get(sig, []), pre=k3_dma_setup(1, 51) if sig == 13 else [], post={14: k4set, 10: epi_store_setup(1)}.get(sig, []))
    a(f"s_branch {LK3b}")

    a(f"{L7}:")
    NB2 = 19
    Lno = a.label("Lnojob"); Lcs = a.label("Lcsd")
    stampc(a, "k2", 0)
    cs_setup(a, Lno, 64, 4)
    a("s_lshl_b32 s55, s45, 1")
    a("s_add_u32 s55, s55, s44")
    a("s_mul_i32 s55, s55, 14336")
    a("s_lshl_b32 s45, s46, 9")
    a("s_mov_b32 s50, s46")
    a("s_add_u32 s55, s55, s45")
    a("v_lshl_add_u32 v5, v5, 5, s55")
    srd(a, 72, 32, 8*14336, add_imm=WS_CS)
    for i in range(8): a(f"v_mov_b32 v{32+i}, 0")
    NF = CS_NF
    a("s_mov_b32 s52, 0x00003f80")
    a("s_mov_b32 s53, 0x3f800000")
    def proc(n):
        for d in range(4):
            for h in range(2):
                a(f"v_dot2_f32_bf16 v{32+2*d+h}, v{128+4*(n % NF)+d}, s{52+h}, v{32+2*d+h}")
    def mpf():
        if env("MPF", 0):
            a("s_mul_i32 s43, s2, 28672")
            srd(a, 76, 60, 28672, add_lo=43)
            a("v_lshlrev_b32 v19, 7, v1")
            for q in range(4):
                a(f"s_mov_b32 s43, {q*8192}")
                a("buffer_load_dword v30, v19, s[76:79], s43 offen")
    if STAMPC != "k1" and CSM == "d": cs_spre(a, 2, 82, 6)
    for n in range(NF):
        proc(n)
        if CSM == "e": cs_issue(a, NF + n, 64, 4)
    o_first_setup()
    CL0 = env("CS_L0", 1); CLN = env("CS_LN", 4); CPD = env("CS_PD", 5)
    lim = 2*(SPE - 2) + 3 + env("CS_LIM", 99)
    early = [q for q in range(NF) if all((4*q + r) % SPR < lim for r in range(4))]
    early.sort(key=lambda q: max(max(0, (4*q + r) % SPR - 2*(SPE - 2) - 2) for r in range(4)))
    early = early[:len(early)//CLN*CLN]
    late = [q for q in range(NF) if q not in early]
    nl = len(early)//CLN
    assert CL0 + nl + CPD <= 17
    def ld2(slot, q):
        a(f"s_mov_b32 s43, {(NF + q)*4*7168}")
        a(f"buffer_load_dwordx4 v[{128+4*slot}:{128+4*slot+3}], v4, s[64:67], s43 offen")
    def cs_finish():
        a("s_nop 2")
        for sw in ("16", "32"):
            for d in range(8): a(f"v_mov_b32 v{40+d}, v{32+d}")
            a("s_nop 0")
            for d in range(8): a(f"v_permlane{sw}_swap_b32 v{32+d}, v{40+d}")
            for d in range(8): a(f"v_add_f32 v{32+d}, v{32+d}, v{40+d}")
        a("s_mov_b64 exec, 0xffff")
        a("buffer_store_dwordx4 v[32:35], v5, s[72:75], 0 offen sc1")
        a("buffer_store_dwordx4 v[36:39], v5, s[72:75], 0 offen offset:16 sc1")
        a("s_mov_b64 exec, -1")
    for q in range(NB2):
        st = q - 3
        if q == 1:
            o_first()
            a("s_waitcnt vmcnt(2)")
        if q == 2: a("s_waitcnt vmcnt(0)")
        if CL0 <= st < CL0 + nl and CSM == "d":
            for n in range(CLN): ld2((st-CL0)*CLN + n, early[(st-CL0)*CLN + n])
        if CL0 + CPD <= st < CL0 + CPD + nl:
            b = st - CL0 - CPD
            if CSM == "d": a(f"s_waitcnt vmcnt({CLN*min(CPD, nl - 1 - b)})")
            for n in range(CLN): proc(b*CLN + n)
        if not late and st == CL0 + CPD + nl - 1: cs_finish()
        if st == env("CS_LT", 16) - 1:
            for n, qq in enumerate(late): ld2(len(early) + n, qq)
        a("s_barrier")
        stampc(a, "k2", q+1)
    if env("CS_LT", 16) > 16:
        for n, qq in enumerate(late): ld2(len(early) + n, qq)
    if late:
        a("s_waitcnt vmcnt(0)")
        for n in range(len(late)): proc(len(early) + n)
        cs_finish()
    a("s_waitcnt vmcnt(0)")
    flag_signal(a, 56, "cs", 50, v=12)
    mpf()
    a(f"s_branch {Lcs}")
    a(f"{Lno}:")
    o_first_setup()
    for q in range(NB2):
        if q == 1:
            o_first()
            a("s_waitcnt vmcnt(2)")
        if q == 2: a("s_waitcnt vmcnt(0)")
        a("s_barrier")
        stampc(a, "k2", q+1)
    mpf()
    a(f"{Lcs}:")
    a("s_mov_b32 s46, 1")
    x_first_setup()
    k3pf = K3PF(a, 0)
    PD = env("K3PD", 6)
    if env("K3PF", 0) or env("K3PF0", 0):
        k3pf.setup()
        for s in range(3, max(PD, env("K3PF0", 0))): k3pf.issue(s)
    S3 = env("K3_SPF", 1); S4 = env("K4_SPF", 1)
    sp3 = SPF3(a)
    if S3:
        sp3.setup(0); sp3.issue(3)
    a("s_lshl_b32 s43, s34, 14")
    srd(a, 64, 32, 16384, add_lo=43, add_imm=WS_ST2)
    srd(a, 72, 32, 8*14336, add_imm=WS_CS)
    a("s_barrier")
    stampc(a, "k2", 20)
    x_first()
    a("s_waitcnt vmcnt(2)")
    a("s_barrier")
    stampc(a, "k2", 21)
    stampc(a, "k3", 31)
    stampc(a, "k3", 0)
    def w7dst(i):
        if not i.startswith("s_load_dword"): return i
        q = int(i.split()[1][1:-1]) - 64
        return i.replace(f"s{64+q},", f"s{82 + q % 6},")
    STL = env("STL", 1); CSP = STL + 3
    for sig in range(15):
        if sig == 0:
            a("s_waitcnt vmcnt(0)")
        if S3 and sig == env("S3A", 5): sp3.issue(8)
        if S3 and sig == env("S3B", 10):
            sp3.setup(1); sp3.issue(0)
        if sig == STL + 1:
            a("s_mul_i32 s43, s35, 96")
            a("s_add_u32 s44, s43, 95")
            a("s_lshr_b32 s43, s43, 7")
            a("s_lshr_b32 s44, s44, 7")
            a("s_add_u32 s43, s43, 16")
            a("s_add_u32 s44, s44, 16")
            a("v_mov_b32 v12, s44")
            a("v_writelane_b32 v12, s35, 0")
            a("v_writelane_b32 v12, s43, 1")
            a(f"v_add_u32 v12, {FLG['cs'][0]}, v12")
            a("v_lshlrev_b32 v12, 7, v12")
            a(f"v_mov_b32 v14, {FLG['cs'][1]}")
            a("buffer_load_dword v13, v12, s[56:59], 0 offen sc1")
        if sig == STL:
            for n in range(16):
                a(f"s_mov_b32 s43, {n*1024}")
                a(f"buffer_load_dwordx4 v[{128+4*n}:{128+4*n+3}], v21, s[64:67], s43 offen sc1")
        if env("K3PF", 0) and sig >= 1:
            if sig + PD - 1 < 16: k3pf.issue(sig + PD - 1)
            elif sig + PD - 1 == 16:
                k3pf.part = 1; k3pf.setup()
            if 16 <= sig + PD - 1 < 19: k3pf.issue(sig + PD - 1 - 16)
        if sig == CSP:
            flag_poll_finish(a, 56, v=12)
            a("v_min_u32 v12, 55, v1")
            a("v_lshlrev_b32 v13, 4, v12")
            a("s_lshl_b32 s43, s35, 9")
            a("s_mul_i32 s44, s35, 384")
            a(f"s_add_u32 s44, s44, {8192 - 512}")
            a("v_mov_b32 v14, s44")
            a("v_mov_b32 v15, s43")
            a("v_cmp_gt_u32 vcc, 32, v12")
            a("s_nop 1")
            a("v_cndmask_b32 v14, v14, v15, vcc")
            a("v_add_u32 v14, v14, v13")
            a(f"v_add_u32 v13, {CSF}, v13")
            for mat in range(2):
                for sl in range(4):
                    d = 192 + (mat*4+sl)*4
                    a(f"s_mov_b32 s43, {(sl*2+mat)*14336}")
                    a(f"buffer_load_dwordx4 v[{d}:{d+3}], v14, s[72:75], s43 offen sc1")
        if sig == CSP + 1:
            for n in range(1, 16):
                for q in range(4): a(f"v_add_f32 v{128+q}, v{128+q}, v{128+4*n+q}")
            for b in (128, 130):
                a(f"v_mul_f32 v{b}, 0x3a800000, v{b}")
                a(f"v_mul_f32 v{b+1}, 0x3a800000, v{b+1}")
                a(f"v_fma_f32 v{b+1}, -v{b}, v{b}, v{b+1}")
                a(f"v_max_f32 v{b+1}, 0, v{b+1}")
                a(f"v_add_f32 v{b+1}, 0x3727c5ac, v{b+1}")
                a(f"v_rsq_f32 v{b+1}, v{b+1}")
            a(f"v_add_u32 v19, {STATS}, v21")
            a("ds_write_b128 v19, v[128:131]")
        if sig == CSP + 3:
            a("s_waitcnt vmcnt(0)")
            for mat in range(2):
                b = 192 + mat*16
                for q in range(4):
                    a(f"v_add_f32 v{b+q}, v{b+q}, v{b+4+q}")
                    a(f"v_add_f32 v{b+8+q}, v{b+8+q}, v{b+12+q}")
                for q in range(4): a(f"v_add_f32 v{b+q}, v{b+q}, v{b+8+q}")
                a(f"ds_write_b128 v13, v[{b}:{b+3}] offset:{mat*896}")
            a("s_waitcnt lgkmcnt(0)")
            assert sig < 9
        for i in BODY.get(sig, []) + (epi_store_setup(1) if sig == 10 else []) + (wd_base if sig == 0 else []) + (k4set if sig == 14 else []): a(i)
        assert CSP + 2 == 6
        if STAMPC != "k3":
            for i in swd(sig, True): a(w7dst(i))
        a("s_barrier")
        stampc(a, "k3", sig+1)

    a(f"{LK3b}:")
    stamp(a, 10)
    if PRIO: a("s_setprio 1")
    for i in k3_reads(3, 16, 0, SET[0]): a(i)
    k3_consumer(a, 3, 16, [0])
    stamp(a, 11)
    EB = epi_b()
    if env("STBB", 0): EB = batch(EB, env("STBB", 0))
    if "e" in STRIP: EB = [i for i in EB if i.startswith(ST)]
    eb = chunks(EB, env("EB_N", 8))
    SIG_B = last_with(eb, "0") + env("SIGB_D", 2)
    POLL_A1 = PA1 - 5; POLL_B = PB - 5
    UNI = PB - 4
    assert len(eb) <= UNI and SIG_B < POLL_B
    L7b = a.label("L7b")
    a("s_cmp_eq_u32 s36, 7")
    a(f"s_cbranch_scc1 {L7b}")
    for helper in (False, True):
        vm = VM(a)
        if helper: a(f"{L7b}:")
        m = k3_mfmas(3, SET[1])
        if helper:
            emit(a, vm, m, None)
            a(f"s_mul_i32 s43, s38, {16*(T1-2)}")
            a("s_add_u32 s37, s37, s43")
        else:
            emit(a, vm, spread(m[:12], k4_items(2)), 2)
            emit(a, vm, spread(m[12:], k4_items(3)), 3)
        if PRIO: a("s_setprio 0")
        a("s_barrier")
        if helper: stampc(a, "k4", 0 - env("K4O", 0))
        def pslice(s, kind):
            body = eb[s] if s < len(eb) else []
            dma = both(s + 4) if helper else s + 4 < NP4
            if helper:
                if s == SIG_B: flag_signal(a, 56, "hhb", 34, v=10); vm.add("f")
                if s == POLL_A1 - env("PLA", 2): flag_poll_issue(a, 56, "hha1", 34, v=10); vm.add("p")
                if s == POLL_B - env("PLB", 2): flag_poll_issue(a, 56, "hhb", 34, v=10); vm.add("p")
                if env("K4_SPF", 1):
                    if s == 0: sp4.setup()
                    for G, at in ((1, PA1 - env("S4B", 9)), (2, PB - env("S4C", 8)), (3, EB4 - env("S4D", 4))):
                        if s == at: sp4.issue(G); vm.add("f")
                if s == XSIG:
                    xflag_addr(a, 10, 0)
                    a("v_mov_b32 v11, 1")
                    a("s_mov_b64 exec, 1")
                    a("buffer_store_dword v11, v10, s[56:59], 0 offen sc1"); vm.add("f")
                    a("s_mov_b64 exec, -1")
                if s == XRCV - 1 - env("PLX", 2):
                    xflag_addr(a, 10, 1)
                    a("v_mov_b32 v12, 1")
                    a("buffer_load_dword v11, v10, s[56:59], 0 offen sc1"); vm.add("p")
            if s == UNI: a(f"s_mul_i32 s40, s53, {LB*16384 if kind == 'x' else LB*64*2048}")
            emit(a, vm, st_last(spread(body, k4_items(s+4, kind if s >= UNI else None), env("FR4", 100))) if dma else body, s+4)
            w = vm.cnt(s+2) if (both(s + 2) if helper else s + 2 < NP4) else 63
            if s == SIG_B - 1: w = min(w, vm.cnt("st0"))
            if w < 63: a(f"s_waitcnt vmcnt({w})")
            if helper and s in (POLL_A1, POLL_B, XRCV - 1): flag_poll_finish(a, 56, v=10, first=vm.cnt("p"))
            a("s_barrier")
            if helper: stampc(a, "k4", s+1 - env("K4O", 0))
        if helper:
            sp4 = SPF4(a)
            for s in range(NP4 - 1 if STAMPC == "k4" else XRCV): pslice(s, 'w')
            stamp(a, 12)
            stamp_flush(a)
            a(f"s_branch {Ld}")
        else:
            for s in range(UNI): pslice(s, None)
            LW = a.label("LW4")
            a("s_cmp_eq_u32 s51, 2")
            a(f"s_cbranch_scc1 {LW}")
            q0 = list(vm.q)
            for kind in ('x', 'w'):
                vm.q = list(q0)
                if kind == 'w': a(f"{LW}:")
                for s in range(UNI, NP4 - 2): pslice(s, kind)
                if STAMP:
                    stamp(a, 12)
                    stamp_flush(a)
                a(f"s_branch {Ld}")


NXS = 32 // MX
class XPF:
    G = NXS // 2
    def __init__(self, a, off, mul, sd=68, v=23):
        self.a = a; self.off = off; self.mul = mul; self.sd = sd; self.v = v
    def setup(self):
        a = self.a; v = self.v
        per = 128 // NXS
        a(f"s_mul_i32 s43, s34, {self.mul}")
        srd(a, self.sd, 32, self.mul, add_lo=43, add_imm=self.off)
        a(f"v_and_b32 v{v}, {per-1}, v1")
        a(f"s_mul_i32 s43, s49, {per}")
        a(f"v_add_u32 v{v}, s43, v{v}")
        a(f"v_lshlrev_b32 v{v}, 7, v{v}")
        a(f"v_lshrrev_b32 v19, {per.bit_length()-1}, v1")
        a(f"v_lshl_add_u32 v{v}, v19, 14, v{v}")
    def issue(self, st):
        a = self.a
        a(f"s_mov_b32 s43, {st*16384}")
        a(f"buffer_load_dword v30, v{self.v}, s[{self.sd}:{self.sd+3}], s43 offen sc1")


class K3PF:
    def __init__(self, a, part): self.a = a; self.part = part
    def setup(self):
        a = self.a
        if self.part == 0: a("s_lshl_b32 s43, s35, 8")
        else:
            a("s_mul_i32 s43, s35, 192")
            a("s_and_b32 s43, s43, 0xffffff80")
            a("s_add_u32 s43, s43, 4096")
        a("s_sub_u32 s44, 7340032, s43")
        for d, b in ((88, 4), (92, 6)):
            a(f"s_add_u32 s{d}, s{b}, s43")
            a(f"s_addc_u32 s{d+1}, s{b+1}, 0")
            a(f"s_mov_b32 s{d+2}, s44")
            a(f"s_mov_b32 s{d+3}, 0x20000")
        per = 64 // MX
        a("v_lshrrev_b32 v31, 1, v1")
        a(f"v_min_u32 v31, {min(per, 32)-1}, v31")
        a(f"s_mul_i32 s43, s48, {per}")
        a("v_add_u32 v31, s43, v31")
        a("v_mul_u32_u24 v31, 7168, v31")
        a("v_and_b32 v19, 1, v1")
        a("v_lshl_add_u32 v31, v19, 7, v31")
    def issue(self, st):
        a = self.a
        a(f"s_mov_b32 s43, {st*64*7168}")
        a("buffer_load_dword v30, v31, s[88:91], s43 offen")
        a("buffer_load_dword v30, v31, s[92:95], s43 offen")


class SPF3:
    def __init__(self, a): self.a = a
    def setup(self, part):
        a = self.a
        for d, b in ((88, 4), (92, 6)): srd(a, d, b, 7340032)
        a("s_lshr_b32 s43, s35, 3")
        a("v_and_b32 v19, 1, v1")
        a("v_bfe_u32 v23, v1, 2, 3")
        if part == 0:
            a("s_lshl_b32 s44, s43, 3")
            a("s_add_u32 s44, s44, 1")
            a("v_lshl_add_u32 v23, v19, 2, v23")
            a("v_add_u32 v23, s44, v23")
            a("s_lshl_b32 s43, s43, 11")
            a("s_add_u32 s43, s43, 384")
            a("s_movk_i32 s44, 1024")
        else:
            a("s_mul_i32 s44, s43, 10")
            a("s_add_u32 s44, s44, 2")
            a("v_add_u32 v23, s44, v23")
            a("s_lshl_b32 s44, s43, 2")
            a("s_sub_u32 s44, 5, s44")
            a("v_mad_u32_u24 v23, v19, s44, v23")
            a("s_lshl_b32 s44, s43, 10")
            a("s_xor_b32 s44, s44, 1024")
            a("s_lshl_b32 s43, s43, 11")
            a(f"s_add_u32 s43, s43, {35*128}")
        a("s_lshr_b32 s45, s2, 3")
        a("s_mul_i32 s45, s45, 14336")
        a("s_add_u32 s43, s43, s45")
        a("v_mul_lo_u32 v31, v19, s44")
        a("v_bfe_u32 v19, v1, 1, 1")
        a("v_mul_u32_u24 v19, 7168, v19")
        a("v_add3_u32 v31, v31, v19, s43")
    def issue(self, st):
        a = self.a
        a(f"v_add_u32 v19, {st}, v23")
        a("v_and_b32 v19, 15, v19")
        a(f"v_mul_u32_u24 v19, {64*7168}, v19")
        a("v_add_u32 v19, v19, v31")
        a("buffer_load_dword v30, v19, s[88:91], 0 offen")
        a("buffer_load_dword v30, v19, s[92:95], 0 offen")


class SPF4:
    def __init__(self, a): self.a = a
    def setup(self):
        a = self.a
        srd(a, 80, 60, 7340032)
        a("v_and_b32 v29, 31, v1")
        a("v_lshlrev_b32 v29, 11, v29")
        a("s_and_b32 s43, s35, 8")
        a("s_or_b32 s43, s43, 3")
        a("s_lshl_b32 s43, s43, 7")
        a("v_add_u32 v29, s43, v29")
    def issue(self, G):
        a = self.a
        a("s_lshr_b32 s44, s2, 3")
        if G == 3: a("s_and_b32 s44, s44, 15")
        a(f"s_lshl_b32 s44, s44, {17 if G < 2 else 16}")
        a(f"s_add_u32 s43, s44, {[0, 32, 2048, 3072][G]*2048}")
        a("buffer_load_dword v30, v29, s[80:83], s43 offen")
```

```python
import os, struct
from common import *

NS = 3
XB_ = 18432
STG1 = XB_ + 3*8192
RST = NS*STG1
CSUM = RST + 1152
LST = CSUM
LDS_K1 = CSUM + 768
QKV = 0
QP = 400

def fh(x): return "0x%08x" % struct.unpack("<I", struct.pack("<f", x))[0]

VGPR_K1 = 240
def phase_k1(a):
    strip = os.environ.get("K1_STRIP", "")
    nst = 16
    a(f"s_load_dwordx4 s[4:7], s[0:1], {KA_X}")
    a(f"s_load_dwordx2 s[32:33], s[0:1], {KA_WS}")
    a(f"s_load_dwordx2 s[80:81], s[0:1], {KA_WG}")
    mapping(a)
    a("v_lshrrev_b32 v12, 6, v0")
    a("v_and_b32 v1, 63, v0")
    a("v_readfirstlane_b32 s36, v12")
    a("s_nop 3")
    stamp_init(a)
    stamp(a, 0)
    a("s_lshl_b32 s44, s34, 18")
    a("s_lshl_b32 s45, s35, 14")
    a("s_add_u32 s45, s45, s44")
    a("s_lshl_b32 s50, s34, 7")
    a("s_sub_u32 s50, s50, 16")
    a("s_and_b32 s47, s36, 3")
    a("s_lshl_b32 s43, s34, 7")
    a("s_lshl_b32 s44, s35, 3")
    a("s_add_u32 s43, s43, s44")
    a("s_mov_b32 s63, s43")
    a("s_lshl_b32 s44, s47, 1")
    a("s_add_u32 s51, s43, s44")
    a("v_lshlrev_b32 v10, 4, v1")
    a("v_lshrrev_b32 v14, 3, v1")
    a("v_and_b32 v15, 7, v1")
    a("v_and_b32 v16, 2, v14")
    a("v_xor_b32 v16, v15, v16")
    a("v_lshlrev_b32 v16, 4, v16")
    a("v_mul_u32_u24 v17, 6144, v14")
    a("s_lshl_b32 s43, s47, 11")
    a("v_add3_u32 v2, v17, v16, s43")
    a("v_xor_b32 v3, 64, v2")
    a("v_lshrrev_b32 v16, 1, v14")
    a("v_xor_b32 v16, v15, v16")
    a("v_lshlrev_b32 v16, 4, v16")
    a("s_lshl_b32 s43, s47, 3")
    a("s_add_u32 s43, s43, s50")
    a("v_add_u32 v17, s43, v14")
    a("s_and_b32 s44, s47, 1")
    a("s_lshl_b32 s44, s44, 6")
    for i in range(6):
        a(f"v_add_u32 v18, {24*i}, v17")
        a("v_max_i32 v18, 0, v18")
        a("v_lshl_add_u32 v18, v18, 11, v16")
        a("v_xor_b32 v18, s44, v18")
        if i & 1: a(f"v_xor_b32 v{4+i}, 64, v18")
        else: a(f"v_mov_b32 v{4+i}, v18")
    a("s_lshl_b32 s39, s47, 10")
    a("s_lshl_b32 s40, s47, 13")
    a(f"s_add_u32 s40, s40, {XB_}")
    a("s_mov_b32 s37, 0")
    a("s_mov_b32 s38, 0")
    a("s_bfm_b64 s[60:61], 56, 8")
    a("s_cmp_eq_u32 s47, 0")
    a("s_cselect_b64 s[60:61], s[60:61], -1")
    a("s_mov_b32 s53, 0x3f803f80")
    a("v_and_b32 v12, 15, v1")
    a("v_lshrrev_b32 v13, 4, v1")
    a("s_lshl_b32 s43, s35, 7")
    a("s_waitcnt lgkmcnt(0)")
    srd(a, 8, 4, 2048*2048)
    srd(a, 12, 6, 1023*6144 + 4096 + 128, add_lo=43)
    srd(a, 16, 32, 16384, add_lo=45, add_imm=WS_O)
    srd(a, 20, 32, 2048*8, add_imm=WS_ST1)
    Lcons = a.label("Lcons"); Lpf = a.label("Lpf"); Latt = a.label("Latt")
    a("s_cmp_lt_u32 s36, 4")
    a(f"s_cbranch_scc1 {Lcons}")
    a("s_cmp_eq_u32 s36, 7")
    a(f"s_cbranch_scc1 {Lpf}")
    a(";@@CONS")
    a(f"{Lcons}:")

    def att_setup():
        a("s_and_b32 s43, s36, 1")
        a("s_lshr_b32 s44, s36, 1")
        a("s_and_b32 s44, s44, 1")
        a("s_lshr_b32 s45, s36, 2")
        a("v_lshlrev_b32 v14, 2, v13")
        a("v_sub_u32 v14, v12, v14")
        for r in range(4):
            a(f"v_subrev_u32 v15, {r}, v14")
            a(f"v_cmp_ge_u32 s[{52+2*r}:{53+2*r}], 7, v15")
            a(f"v_add_u32 v15, 16, v15")
            a(f"v_cmp_ge_u32 s[{84+2*r}:{85+2*r}], 7, v15")
        a("s_lshl_b32 s46, s45, 6")
        a("s_add_u32 s46, s46, s44")
        a("s_add_u32 s46, s46, 16")
        a("v_lshl_add_u32 v14, v12, 1, s46")
        a("s_lshl_b32 s47, s43, 6")
        a("v_lshl_add_u32 v15, v13, 4, s47")
        a(f"v_mul_u32_u24 v20, {QP}, v14")
        a("v_add_u32 v20, v20, v15")
        a("v_subrev_u32 v16, 32, v14")
        a("v_max_i32 v16, 0, v16")
        a(f"v_mul_u32_u24 v21, {QP}, v16")
        a("v_add_u32 v21, v21, v15")
        a("v_lshrrev_b32 v16, 2, v12")
        a("v_lshl_add_u32 v16, v13, 2, v16")
        a("v_lshl_add_u32 v16, v16, 1, s46")
        a("v_and_b32 v17, 3, v1")
        a("v_lshl_add_u32 v17, v17, 3, s47")
        a(f"v_mul_u32_u24 v22, {QP}, v16")
        a("v_add_u32 v22, v22, v17")
        a("v_subrev_u32 v16, 32, v16")
        a("v_max_i32 v16, 0, v16")
        a(f"v_mul_u32_u24 v23, {QP}, v16")
        a("v_add_u32 v23, v23, v17")
        a("s_lshl_b32 s60, s43, 13")
        a("s_lshl_b32 s61, s45, 10")
        a("s_add_u32 s60, s60, s61")
        a("s_lshl_b32 s61, s44, 8")
        a("s_add_u32 s60, s60, s61")
        a("v_lshlrev_b32 v27, 11, v13")
        a("v_lshl_add_u32 v27, v12, 4, v27")
        a("v_add_u32 v27, s60, v27")
        a("v_mov_b32 v28, 0xff800000")
        CS = (32 ** -0.5) * 1.4426950408889634
        a(f"s_mov_b32 s61, {fh(CS)}")
        a("s_nop 2")
        a("s_or_b32 s62, s34, s45")
        a("s_cmp_lg_u32 s62, 0")
        for r in range(4): a(f"s_cselect_b64 s[{64+2*r}:{65+2*r}], s[{84+2*r}:{85+2*r}], 0")

    if int(os.environ.get("K1_SPF", "4")) & 4:
        Lsp = a.label("Lsp")
        a("s_cmp_ge_u32 s36, 2")
        a(f"s_cbranch_scc1 {Lsp}")
        srd(a, 84, 6, 6291456)
        a("s_and_b32 s43, s35, 8")
        a("s_or_b32 s43, s43, 3")
        a("s_lshl_b32 s43, s43, 7")
        a("s_lshr_b32 s44, s2, 3")
        a("s_mul_i32 s44, s44, %d" % (32*6144))
        a("s_add_u32 s43, s43, s44")
        a("s_lshl_b32 s44, s36, 6")
        a("v_add_u32 v15, s44, v1")
        a("v_min_u32 v15, 95, v15")
        a("v_mul_u32_u24 v16, 21846, v15")
        a("v_lshrrev_b32 v16, 16, v16")
        a("v_mul_u32_u24 v17, 3, v16")
        a("v_sub_u32 v15, v15, v17")
        a("v_mul_u32_u24 v16, 6144, v16")
        a("v_lshl_add_u32 v15, v15, 11, v16")
        a("buffer_load_dword v31, v15, s[84:87], s43 offen")
        a(f"{Lsp}:")
    a("v_lshrrev_b32 v16, 1, v12")
    a("v_xor_b32 v15, v13, v16")
    a("v_lshlrev_b32 v15, 4, v15")
    a("v_lshl_add_u32 v2, v12, 7, v15")
    a("v_xor_b32 v3, 64, v2")
    a(f"v_add_u32 v4, {2*STG1}, v2")
    a(f"v_add_u32 v5, {2*STG1}, v3")
    a("v_lshrrev_b32 v15, 2, v12")
    a("v_and_b32 v16, 3, v1")
    a("v_lshl_add_u32 v19, v13, 3, v15")
    a("v_lshlrev_b32 v19, 7, v19")
    a("v_and_b32 v15, 2, v15")
    a("v_and_b32 v17, 1, v13")
    a("v_lshl_add_u32 v15, v17, 2, v15")
    a("v_lshrrev_b32 v17, 1, v16")
    a("s_lshl_b32 s43, s36, 1")
    a("v_add_u32 v17, s43, v17")
    a("v_xor_b32 v15, v15, v17")
    a("v_lshl_add_u32 v19, v15, 4, v19")
    a("v_and_b32 v16, 1, v16")
    a("v_lshl_add_u32 v19, v16, 3, v19")
    for sl in range(3):
        a(f"v_add_u32 v{6+sl}, {XB_ + sl*STG1}, v19")
    ACC = 128
    def accreg(seg, mt):
        return ACC + 36*seg + 4*mt
    for i in range(108): a(f"v_mov_b32 v{ACC+i}, 0")
    SET = [32, 80]
    def reads(s, kk, base):
        sl = s % NS
        xb = (2 + kk) if sl < 2 else (4 + kk)
        xo = (sl % 2)*STG1 if sl < 2 else 0
        def xr(mt): return f"ds_read_b128 v[{base+4*mt}:{base+4*mt+3}], v{xb} offset:{xo + mt*2048}"
        def wr(sg, h): return f"ds_read_b64_tr_b16 v[{base+36+4*sg+2*h}:{base+36+4*sg+2*h+1}], v{6+sl} offset:{sg*8192 + kk*4096 + h*512}"
        return [xr(0), wr(1,0), wr(1,1), wr(2,0), wr(2,1), wr(0,0), wr(0,1)] + [xr(m) for m in range(1, 9)]
    def mfmas(base):
        r = []
        for mt in range(9):
            for sg in (1, 2, 0):
                acc = accreg(sg, mt)
                r.append(f"v_mfma_f32_16x16x32_bf16 v[{acc}:{acc+3}], v[{base+36+4*sg}:{base+36+4*sg+3}], v[{base+4*mt}:{base+4*mt+3}], v[{acc}:{acc+3}]")
        return r
    def emit(seq):
        for i in seq:
            if "m" in strip and i.startswith("v_mfma"): continue
            if "r" in strip and i.startswith("ds_read"): continue
            a(i)
    att_setup()
    a(f"v_lshlrev_b32 v9, 3, v12")
    a(f"v_add_u32 v9, {RST}, v9")
    a(f"v_mul_u32_u24 v14, {QP}, v12")
    a("v_lshl_add_u32 v14, v13, 3, v14")
    a("s_lshl_b32 s43, s36, 5")
    a("v_add_u32 v14, s43, v14")
    a("s_barrier")
    stamp(a, 1)
    for i in reads(0, 0, SET[0]): a(i)
    def cstage(s, last):
        a("s_waitcnt lgkmcnt(0)")
        emit(interleave(mfmas(SET[0]), reads(s, 1, SET[1]), 0, 1))
        a("s_waitcnt lgkmcnt(0)")
        a("s_barrier")
        emit(interleave(mfmas(SET[1]), [f"ds_read_b64 v[{32+2*mt}:{33+2*mt}], v9 offset:{mt*128}" for mt in range(9)] if last else reads(s+1, 0, SET[0]), 0, 1))
    nl = (nst-1)//NS
    a(f"s_mov_b32 s41, {nl}")
    Ll = a.label("Lcl")
    a(f"{Ll}:")
    for s in range(NS): cstage(s, False)
    a("s_sub_u32 s41, s41, 1")
    a("s_cmp_lg_u32 s41, 0")
    a(f"s_cbranch_scc1 {Ll}")
    for s in range(nl*NS, nst): cstage(s, s == nst-1)
    stamp(a, 2)
    for sg in range(3):
        for r in range(4):
            a(f"v_mov_b32_dpp v{52+4*sg+r}, v{accreg(sg,0)+r} row_newbcast:0 row_mask:0xf bank_mask:0xf")
    a("s_waitcnt lgkmcnt(0)")
    for mt in range(9):
        for sg in ((1, 2) if mt == 0 else (0, 1, 2)):
            acc = accreg(sg, mt)
            for r in (0, 2):
                a(f"v_pk_fma_f32 v[{acc+r}:{acc+r+1}], v[{32+2*mt}:{33+2*mt}], v[{52+4*sg+r}:{53+4*sg+r}], v[{acc+r}:{acc+r+1}] op_sel_hi:[0,1,1] neg_lo:[1,0,0] neg_hi:[1,0,0]")
            for r in (0, 2):
                a(f"v_pk_mul_f32 v[{acc+r}:{acc+r+1}], v[{32+2*mt}:{33+2*mt}], v[{acc+r}:{acc+r+1}] op_sel:[1,0] op_sel_hi:[1,1]")
            a(f"v_cvt_pk_bf16_f32 v{acc}, v{acc}, v{acc+1}")
            a(f"v_cvt_pk_bf16_f32 v{acc+1}, v{acc+2}, v{acc+3}")
            a(f"ds_write_b64 v14, v[{acc}:{acc+1}] offset:{QKV + mt*16*QP + sg*128}")
    a("s_waitcnt lgkmcnt(0)")
    a(f"s_branch {Latt}")

    a(";@@PROD")
    def rows_load(srow, dst=96, add=0):
        a(f"s_lshl_b32 s43, s{srow}, 11")
        if add: a(f"s_add_u32 s43, s43, {add*2048}")
        for q in range(4):
            a(f"buffer_load_dwordx4 v[{dst+4*q}:{dst+4*q+3}], v10, s[8:11], s43 offen offset:{q*1024}")
    def rows_stats_l(srcb=96):
        o = []
        R = [116, 118, 120, 122]
        for r in range(2):
            sa, qa = 116+4*r, 118+4*r
            for i in range(8):
                src = srcb + 8*r + i
                t = 124 + 2*(i & 1)
                o.append(f"v_lshlrev_b32 v{t if i else sa}, 16, v{src}")
                o.append(f"v_and_b32 v{t+1 if i else sa+1}, 0xffff0000, v{src}")
                if i == 0:
                    o.append(f"v_mul_f32 v{qa}, v{sa}, v{sa}"); o.append(f"v_mul_f32 v{qa+1}, v{sa+1}, v{sa+1}")
                else:
                    o.append(f"v_add_f32 v{sa}, v{sa}, v{t}"); o.append(f"v_add_f32 v{sa+1}, v{sa+1}, v{t+1}")
                    o.append(f"v_fmac_f32 v{qa}, v{t}, v{t}"); o.append(f"v_fmac_f32 v{qa+1}, v{t+1}, v{t+1}")
        for x in R: o.append(f"v_add_f32 v{x}, v{x}, v{x+1}")
        for sh in (8, 4, 2, 1):
            for x in R: o.append(f"v_add_f32_dpp v{x}, v{x}, v{x} row_ror:{sh} row_mask:0xf bank_mask:0xf")
        for sw in ("16", "32"):
            for x in R: o.append(f"v_mov_b32 v{x+1}, v{x}")
            o.append("s_nop 0")
            for x in R: o.append(f"v_permlane{sw}_swap_b32 v{x}, v{x+1}")
            for x in R: o.append(f"v_add_f32 v{x}, v{x}, v{x+1}")
        for r in range(2):
            sv, qv, d = 116+4*r, 118+4*r, 112+2*r
            o.append(f"v_mul_f32 v{d}, 0x3a800000, v{sv}")
            o.append(f"v_mul_f32 v{d+1}, 0x3a800000, v{qv}")
            o.append(f"v_fma_f32 v{d+1}, -v{d}, v{d}, v{d+1}")
            o.append(f"v_max_f32 v{d+1}, 0, v{d+1}")
            o.append(f"v_add_f32 v{d+1}, 0x3727c5ac, v{d+1}")
            o.append(f"v_rsq_f32 v{d+1}, v{d+1}")
        o.append("s_nop 0")
        return o
    def rows_stats(part=None):
        l = rows_stats_l()
        for i in (l if part is None else l[len(l)*part//3:len(l)*(part+1)//3]): a(i)
    def rows_local():
        a("s_lshl_b32 s43, s47, 4")
        a(f"s_add_u32 s43, s43, {LST}")
        a("v_mov_b32 v11, s43")
        a("ds_write_b128 v11, v[112:115]")
        a("s_waitcnt lgkmcnt(0)")
    HYB = os.environ.get("K1_PF", "mall1") == "hyb"
    def wpre(s):
        if not HYB or s > 4: return
        if s == 0:
            a("s_mul_i32 s43, s2, 10752")
            a("s_mul_i32 s44, s47, 2688")
            a("s_add_u32 s43, s43, s44")
            a(f"s_add_u32 s43, s43, {576*6144}")
            a("s_add_u32 s82, s6, s43")
            a("s_addc_u32 s83, s7, 0")
        lo = [0, 10, 18, 26, 34, 42]
        for q in range(lo[s], lo[s+1]): a(f"s_load_dword s{64 + q % 16}, s[82:83], {64*q}")
    def spre_setup():
        if not NPS: return
        Lj = a.label("Lsj")
        cs_sbase(a, Lj, 80, 47)
        a(f"{Lj}:")
    def spre(n=2): cs_spre(a, n)
    def dma(slot, lo=0, hi=14):
        xs, ws = [], []
        for i in range(6):
            g = [f"s_add_u32 m0, s39, {slot*STG1 + i*3072}", "s_mov_b64 exec, s[60:61]" if i == 0 else "s_nop 0",
                 f"buffer_load_dwordx4 v{4+i}, s[8:11], s37 offen lds"]
            if i == 0: g.append("s_mov_b64 exec, -1")
            xs.append(g)
        for j in range(8):
            ws.append([f"s_add_u32 m0, s40, {slot*STG1 + j*1024}", f"s_add_u32 s43, s38, {8*j*6144}",
                       f"buffer_load_dwordx4 v{2+(j&1)}, s[12:15], s43 offen lds"])
        gs = interleave(ws, xs) if int(os.environ.get("K1_ILV", "0")) else xs + ws
        for g in gs[lo:hi]:
            for i in g: a(i)
        if hi == 14:
            a("s_add_u32 s37, s37, 128")
            a(f"s_add_u32 s38, s38, {64*6144}")
    stamp(a, 1)
    E0 = int(os.environ.get("K1_E0", "14"))
    dma(0); dma(1, 0, E0)
    stamp(a, 2)
    a(f"s_waitcnt vmcnt({E0})")
    a("s_barrier")
    if E0 < 14: dma(1, E0, 14)
    dma(2)
    rows_load(51)
    def pstage(s, do_dma, vm, extra=None):
        if do_dma: dma((s+2) % NS)
        if extra: extra()
        wpre(s)
        if SPS <= s <= SPE: spre()
        if vm is not None: a(f"s_waitcnt vmcnt({vm})")
        a("s_barrier")
    spre_setup()
    pstage(0, False, 14 + 4)
    pstage(1, True, 14)
    def loc():
        rows_stats(2); rows_local()
    pstage(2, True, 14, lambda: rows_stats(0))
    pstage(3, True, 14, lambda: rows_stats(1))
    pstage(4, True, 14, loc)
    a(f"s_mov_b32 s41, 2")
    Lp = a.label("Lpl")
    a(f"{Lp}:")
    for s in range(5, 8): pstage(s, True, 14)
    a("s_sub_u32 s41, s41, 1")
    a("s_cmp_lg_u32 s41, 0")
    a(f"s_cbranch_scc1 {Lp}")
    assert SPE >= 10 and SPS <= 5
    for s in range(11, 14): pstage(s, True, 14)
    pstage(14, False, 0)
    pstage(15, False, None)
    a("s_waitcnt lgkmcnt(0)")
    att_setup()
    a(f"s_branch {Latt}")

    a(";@@W7")
    a(f"{Lpf}:")
    PFM = os.environ.get("K1_PF", "mall1")
    PF = PFM == "l2"
    a(f"s_load_dwordx2 s[26:27], s[0:1], {KA_DBG}")
    Lz = a.label("Lz")
    a("s_or_b32 s43, s34, s35")
    a("s_cmp_lg_u32 s43, 0")
    a(f"s_cbranch_scc1 {Lz}")
    flag_srd(a, 84)
    a("v_lshlrev_b32 v14, 7, v1")
    a("v_mov_b32 v36, 0")
    a("v_mov_b32 v37, 0")
    for q in range(4):
        a(f"s_mov_b32 s43, {q*8192}")
        a("buffer_store_dwordx2 v[36:37], v14, s[84:87], s43 offen sc1")
    a(f"{Lz}:")
    rows_load(51)
    a("v_min_u32 v14, 23, v1")
    a("v_lshrrev_b32 v15, 3, v14")
    a(f"v_mul_u32_u24 v15, {STG1}, v15")
    a("v_and_b32 v14, 7, v14")
    a("v_lshl_add_u32 v15, v14, 4, v15")
    for i in range(4): a(f"v_mov_b32 v{32+i}, 0x3f803f80")
    a("ds_write_b128 v15, v[32:35]")
    PER = 64 // MX
    NPI = (3*PER + 63) // 64
    for q in range(NPI):
        a(f"v_add_u32 v14, {64*q}, v1")
        a(f"v_min_u32 v14, {3*PER-1}, v14")
        a("v_mul_u32_u24 v15, 21846, v14")
        a("v_lshrrev_b32 v15, 16, v15")
        a("v_mul_u32_u24 v16, 3, v15")
        a("v_sub_u32 v16, v14, v16")
        a(f"s_mul_i32 s43, s48, {PER}")
        a("v_add_u32 v15, s43, v15")
        a("v_mul_u32_u24 v15, 6144, v15")
        a(f"v_lshl_add_u32 v{2+q}, v16, 11, v15")
    vm = []
    def wait_for(tag):
        idx = max(i for i, t in enumerate(vm) if t == tag)
        a(f"s_waitcnt vmcnt({len(vm) - 1 - idx})")
    def l2pf(st):
        if not PF or st >= nst: return
        a(f"s_mov_b32 s43, {st*64*6144}")
        for q in range(NPI):
            a(f"buffer_load_dword v31, v{2+q}, s[12:15], s43 offen"); vm.append("pf")
    a("s_waitcnt lgkmcnt(0)")
    srd(a, 56, 26, 256)
    a("v_lshlrev_b32 v14, 7, v1")
    vm.append("rows")
    def mallpf():
        srd(a, 84, 6, 6291456)
        a("s_mul_i32 s43, s2, 24576")
        for q in range(3):
            a(f"buffer_load_dword v31, v14, s[84:87], s43 offen"); vm.append("pf")
            if q < 2: a("s_add_u32 s43, s43, 8192")
    def slowpf():
        srd(a, 84, 6, 6291456)
        a("s_lshr_b32 s44, s2, 3")
        if SPF & 1:
            a("s_and_b32 s43, s35, 8")
            a("s_or_b32 s43, s43, 3")
            a("s_lshl_b32 s43, s43, 7")
            a("s_mul_i32 s45, s44, %d" % (32*6144))
            a("s_add_u32 s43, s43, s45")
            for q in range(2):
                a(f"v_add_u32 v15, {64*q}, v1")
                a("v_min_u32 v15, 95, v15")
                a("v_mul_u32_u24 v16, 21846, v15")
                a("v_lshrrev_b32 v16, 16, v16")
                a("v_mul_u32_u24 v17, 3, v16")
                a("v_sub_u32 v15, v15, v17")
                a("v_mul_u32_u24 v16, 6144, v16")
                a("v_lshl_add_u32 v15, v15, 11, v16")
                a("buffer_load_dword v31, v15, s[84:87], s43 offen"); vm.append("pf")
        if SPF & 2:
            a("s_xor_b32 s43, s63, 64")
            a("s_lshl_b32 s43, s43, 11")
            a("buffer_load_dword v31, v14, s[8:11], s43 offen"); vm.append("pf")
            a("s_add_u32 s43, s43, 8192")
            a("buffer_load_dword v31, v14, s[8:11], s43 offen"); vm.append("pf")
    SPF = int(os.environ.get("K1_SPF", "4"))
    SPAT = int(os.environ.get("K1_SPAT", "0"))
    if PFM == "mall0": mallpf()
    if SPAT < 0: slowpf()
    stampc(a, "k1", 0)
    a("s_barrier")
    def mallpf2():
        srd(a, 84, 6, 6291456)
        a("s_mul_i32 s43, s2, 9216")
        a(f"s_add_u32 s43, s43, {192*6144}")
        a("buffer_load_dword v31, v14, s[84:87], s43 offen"); vm.append("pf")
        a("v_min_u32 v15, 7, v1")
        a("v_lshlrev_b32 v15, 7, v15")
        a("s_add_u32 s43, s43, 8192")
        a("buffer_load_dword v31, v15, s[84:87], s43 offen"); vm.append("pf")
    if PFM == "hyb": mallpf2()
    MST = int(os.environ.get("K1_MST", "1"))
    if PFM == "mall1" and not MST: mallpf()
    stampc(a, "k1", 1)
    GS = int(os.environ.get("K1_GS", "10"))
    SS = int(os.environ.get("K1_SS", "7"))
    PFN = int(os.environ.get("K1_PFN", "4"))
    CS0 = int(os.environ.get("K1_CS0", "14")); WOP = int(os.environ.get("K1_WOP", "13")); WOM = os.environ.get("K1_WOM", "mall")
    Lgd = a.label("Lgd")
    nxt = [3]
    for s in range(nst):
        if PFM == "mall1" and MST and s in (0, MST):
            Lm = a.label("Lm")
            a("s_cmp_ge_u32 s2, 128")
            a(f"s_cbranch_scc{1 if s == 0 else 0} {Lm}")
            n0 = len(vm); mallpf(); del vm[n0:]
            a(f"{Lm}:")
        if s == SPAT: slowpf()
        if s == 0: spre_setup()
        if s == 2:
            wait_for("rows")
            Lz = a.label("Lz")
            a("s_or_b32 s43, s34, s35")
            a("s_cmp_lg_u32 s43, 0")
            a(f"s_cbranch_scc1 {Lz}")
            a("s_waitcnt vmcnt(0)")
            a("v_mov_b32 v5, 1")
            a("v_mov_b32 v6, 0")
            a("s_mov_b64 exec, 1")
            a("buffer_store_dword v5, v6, s[56:59], 0 offen sc1")
            a("s_mov_b64 exec, -1")
            a(f"{Lz}:")
            rows_stats(0)
        if s == 3: rows_stats(1)
        if s == 4:
            rows_stats(2); rows_local()
        if s == 5:
            a("v_lshlrev_b32 v5, 4, v1")
            a("v_and_b32 v5, 63, v5")
            a(f"v_add_u32 v6, {LST}, v5")
            a("ds_read_b128 v[112:115], v6")
            a("s_lshl_b32 s43, s63, 3")
            a("v_add_u32 v5, s43, v5")
            a("s_waitcnt lgkmcnt(0)")
            a("s_mov_b64 exec, 15")
            a(f"buffer_store_dwordx4 v[112:115], v5, s[20:23], 0 offen sc1"); vm.append("store")
            a("s_mov_b64 exec, -1")
        if s < SS - 2:
            for q in range(PFN):
                l2pf(nxt[0]); nxt[0] += 1
        if s == int(os.environ.get("K1_X11", "99")):
            a(f"s_andn2_b32 s43, s34, {MX-1}")
            a("s_lshl_b32 s43, s43, 7")
            a("s_lshr_b32 s44, s2, 3")
            a("s_mul_i32 s44, s44, 17")
            a("s_add_u32 s43, s43, s44")
            a("s_sub_u32 s43, s43, 16")
            a("v_min_u32 v15, 16, v1")
            a("v_add_u32 v15, s43, v15")
            a("v_max_i32 v15, 0, v15")
            a("v_lshlrev_b32 v15, 11, v15")
            a("buffer_load_dword v31, v15, s[8:11], 0 offen offset:1408"); vm.append("pf")
        if s == WOP:
            if WOM == "l2":
                n = pf_w64(a, KA_WO, 1024, list(range(16//MX)), 84, 29, 30); vm.extend(["pf"]*n)
            elif WOM == "mall":
                a(f"s_load_dwordx2 s[88:89], s[0:1], {KA_WO}")
                a("v_lshlrev_b32 v29, 7, v1")
                a("s_lshl_b32 s43, s2, 13")
                a("s_waitcnt lgkmcnt(0)")
                srd(a, 84, 88, 2097152)
                a("buffer_load_dword v30, v29, s[84:87], s43 offen"); vm.append("pf")
                if int(os.environ.get("K2_SPF", "1")):
                    a("v_and_b32 v29, 31, v1")
                    a("v_lshlrev_b32 v29, 11, v29")
                    a("s_and_b32 s43, s35, 8")
                    a("s_or_b32 s43, s43, 3")
                    a("s_lshl_b32 s43, s43, 7")
                    a("s_lshr_b32 s44, s2, 3")
                    a("s_lshl_b32 s44, s44, 16")
                    a("s_add_u32 s43, s43, s44")
                    a("buffer_load_dword v30, v29, s[84:87], s43 offen"); vm.append("pf")
        if s == SS - 2:
            a("v_mov_b32 v7, 0")
            a("v_mov_b32 v9, 1")
            a("buffer_load_dword v8, v7, s[56:59], 0 offen sc1"); vm.append("z")
        if s == SS:
            flag_poll_finish(a, 56, v=7)
            flag_srd(a, 56)
            flag_signal(a, 56, "ln", 34); vm.append("at")
        if s == GS:
            a("s_sub_u32 s44, s34, 1")
            a("s_max_i32 s44, s44, 0")
            a("v_mov_b32 v5, s44")
            a("v_mov_b32 v6, s34")
            a("v_cmp_eq_u32 vcc, 0, v1")
            a("s_nop 1")
            a("v_cndmask_b32 v5, v5, v6, vcc")
            a(f"v_add_u32 v5, {FLG['ln'][0]}, v5")
            a("v_lshlrev_b32 v5, 7, v5")
            a("buffer_load_dword v6, v5, s[56:59], 0 offen sc1"); vm.append("poll")
        if s == GS + 2:
            Lpoll = a.label("Lpoll"); Lok = a.label("Lok"); Lfb = a.label("Lfb")
            a("s_mov_b32 s41, 200")
            a("s_mov_b32 s62, 0")
            wait_for("poll")
            a(f"{Lpoll}:")
            a("v_cmp_ne_u32 vcc, 16, v6")
            a("s_nop 4")
            a(f"s_cbranch_vccz {Lok}")
            a("buffer_load_dword v6, v5, s[56:59], 0 offen sc1")
            a("s_waitcnt vmcnt(0)")
            a("s_sub_u32 s41, s41, 1")
            a("s_cmp_lg_u32 s41, 0")
            a(f"s_cbranch_scc1 {Lpoll}")
            a("s_mov_b32 s41, 0")
            a(f"{Lfb}:")
            a("s_add_u32 s62, s50, s41")
            a("s_max_i32 s62, s62, 0")
            rows_load(62)
            a("s_waitcnt vmcnt(0)")
            rows_stats()
            a("s_lshl_b32 s43, s41, 3")
            a(f"s_add_u32 s43, s43, {RST}")
            a("v_mov_b32 v5, s43")
            a("ds_write_b128 v5, v[112:115]")
            a("s_add_u32 s41, s41, 2")
            a("s_cmp_lt_u32 s41, 144")
            a(f"s_cbranch_scc1 {Lfb}")
            a("s_mov_b32 s62, 1")
            a(f"{Lok}:")
            for q in range(3):
                a(f"v_add_u32 v5, {64*q}, v1")
                a("v_min_u32 v5, 143, v5")
                a(f"v_lshlrev_b32 v{20+q}, 3, v5")
                a("v_add_u32 v5, s50, v5")
                a("v_max_i32 v5, 0, v5")
                a("v_lshlrev_b32 v5, 3, v5")
                a(f"buffer_load_dwordx2 v[{32+2*q}:{33+2*q}], v5, s[20:23], 0 offen sc1"); vm.append("gather")
        if s == GS + 4:
            wait_for("gather")
            a("s_cmp_eq_u32 s62, 1")
            a(f"s_cbranch_scc1 {Lgd}")
            for q in range(3):
                a(f"v_add_u32 v{20+q}, {RST}, v{20+q}")
                a(f"ds_write_b64 v{20+q}, v[{32+2*q}:{33+2*q}]")
            a(f"{Lgd}:")
            a("s_waitcnt lgkmcnt(0)")
        if s in (CS0, CS0+1):
            Lnj = a.label("Lnj")
            cs_setup(a, Lnj, 84, 28)
            for q in range(16*(s-CS0), 16*(s-CS0+1)): cs_issue(a, q, 84, 28)
            a(f"{Lnj}:")
        if STAMPC != "k1": wpre(s)
        if max(5, SPS) <= s <= (11 if CSM == "d" else SPE) and STAMPC != "k1": spre()
        a("s_barrier")
        stampc(a, "k1", s+2)
    stampc(a, "k1", 18)
    a("s_waitcnt lgkmcnt(0)")
    att_setup()

    a(f"{Latt}:")
    a("s_barrier")
    stampc(a, "k1", 19)
    stamp(a, 3)
    U = 32*QP
    for u in range(2):
        B = 32 + 48*u
        uo = u*U
        a(f"ds_read_b128 v[{B}:{B+3}], v20 offset:{QKV + uo}")
        a(f"ds_read_b128 v[{B+4}:{B+7}], v20 offset:{QKV + uo + 128}")
        if u == 0: a(f"ds_read_b128 v[{B+8}:{B+11}], v21 offset:{QKV + 128}")
        else: a(f"ds_read_b128 v[{B+8}:{B+11}], v20 offset:{QKV + 128}")
    for u in range(2):
        B = 32 + 48*u
        uo = u*U
        for dh in range(2):
            if u == 0: a(f"ds_read_b64_tr_b16 v[{B+12+4*dh}:{B+13+4*dh}], v23 offset:{QKV + 256 + dh*32}")
            else: a(f"ds_read_b64_tr_b16 v[{B+12+4*dh}:{B+13+4*dh}], v22 offset:{QKV + 256 + dh*32}")
            a(f"ds_read_b64_tr_b16 v[{B+14+4*dh}:{B+15+4*dh}], v22 offset:{QKV + uo + 256 + dh*32}")
    for u in range(2):
        B = 32 + 48*u
        a(f"s_waitcnt lgkmcnt({11 if u == 0 else 8})")
        a(f"v_mfma_f32_16x16x32_bf16 v[{B+20}:{B+23}], v[{B+8}:{B+11}], v[{B}:{B+3}], 0")
        a(f"v_mfma_f32_16x16x32_bf16 v[{B+24}:{B+27}], v[{B+4}:{B+7}], v[{B}:{B+3}], 0")
    a("s_nop 7")
    def soft(u):
        B = 32 + 48*u
        S = B + 20; M = B + 28; T = B + 29; P = B + 32
        r_ = []
        am = 64 if u == 0 else 84
        for r in range(4): r_.append(f"v_cndmask_b32 v{S+r}, v28, v{S+r}, s[{am+2*r}:{am+2*r+1}]")
        for r in range(4): r_.append(f"v_cndmask_b32 v{S+4+r}, v28, v{S+4+r}, s[{52+2*r}:{53+2*r}]")
        r_.append(f"v_max3_f32 v{M}, v{S}, v{S+1}, v{S+2}")
        r_.append(f"v_max3_f32 v{T}, v{S+3}, v{S+4}, v{S+5}")
        r_.append(f"v_max3_f32 v{M}, v{M}, v{S+6}, v{S+7}")
        r_.append(f"v_max_f32 v{M}, v{M}, v{T}")
        for sw in ("32", "16"):
            r_.append(f"v_mov_b32 v{T}, v{M}")
            r_.append("s_nop 0")
            r_.append(f"v_permlane{sw}_swap_b32 v{M}, v{T}")
            r_.append(f"v_max_f32 v{M}, v{M}, v{T}")
        r_.append(f"v_mul_f32 v{M}, s61, v{M}")
        for r in range(8): r_.append(f"v_fma_f32 v{S+r}, v{S+r}, s61, -v{M}")
        for r in range(8): r_.append(f"v_exp_f32 v{S+r}, v{S+r}")
        for q in range(4): r_.append(f"v_cvt_pk_bf16_f32 v{P+q}, v{S+2*q}, v{S+2*q+1}")
        return r_
    def zip2(x, y):
        for i, j in zip(x, y):
            a(i)
            if not (i == j and i.startswith("s_nop")): a(j)
    zip2(soft(0), soft(1))
    a("s_waitcnt lgkmcnt(0)")
    for u in range(2):
        B = 32 + 48*u
        for dh in range(2):
            a(f"v_mfma_f32_16x16x32_bf16 v[{B+36+4*dh}:{B+39+4*dh}], v[{B+12+4*dh}:{B+15+4*dh}], v[{B+32}:{B+35}], 0")
    def rsum(u):
        B = 32 + 48*u
        S = B + 20; M = B + 28; T = B + 29
        r_ = [f"v_add_f32 v{M}, v{S}, v{S+1}", f"v_add_f32 v{T}, v{S+2}, v{S+3}", f"v_add_f32 v{S+4}, v{S+4}, v{S+5}", f"v_add_f32 v{S+6}, v{S+6}, v{S+7}",
              f"v_add_f32 v{M}, v{M}, v{T}", f"v_add_f32 v{S+4}, v{S+4}, v{S+6}", f"v_add_f32 v{M}, v{M}, v{S+4}"]
        for sw in ("32", "16"):
            r_.append(f"v_mov_b32 v{T}, v{M}")
            r_.append("s_nop 0")
            r_.append(f"v_permlane{sw}_swap_b32 v{M}, v{T}")
            r_.append(f"v_add_f32 v{M}, v{M}, v{T}")
        r_.append(f"v_rcp_f32 v{M}, v{M}")
        return r_
    zip2(rsum(0), rsum(1))
    a("s_nop 0")
    for u in range(2):
        B = 32 + 48*u
        M = B + 28; O = B + 36
        for r in range(0, 8, 2): a(f"v_pk_mul_f32 v[{O+r}:{O+r+1}], v[{M}:{M+1}], v[{O+r}:{O+r+1}] op_sel_hi:[0,1]")
        for q in range(4): a(f"v_cvt_pk_bf16_f32 v{O+q}, v{O+2*q}, v{O+2*q+1}")
        a(f"buffer_store_dwordx4 v[{O}:{O+3}], v27, s[16:19], 0 offen offset:{512*u} sc1")
    stamp(a, 4)
    a("s_waitcnt vmcnt(0)")
    a("s_barrier")
    for u in range(2):
        a(f"ds_write_b128 v27, v[{68+48*u}:{71+48*u}] offset:{512*u}")
    flag_srd(a, 56)
    Ls = a.label("Lsig")
    a("s_cmp_lg_u32 s36, 0")
    a(f"s_cbranch_scc1 {Ls}")
    flag_signal(a, 56, "o", 34)
    a(f"{Ls}:")
    stamp(a, 5)
    stampc(a, "k1", 20)
    ic, ip, iw = a.L.index(";@@CONS"), a.L.index(";@@PROD"), a.L.index(";@@W7")
    a.L[ic:iw] = a.L[ip:iw] + a.L[ic:ip]
```

```python
import os, struct
from common import *

def fh(x): return "0x%08x" % struct.unpack("<I", struct.pack("<f", x))[0]
def env(k, d): return int(os.environ.get(k, str(d)))

C0_ = -2.0*0.7978845608028654*1.4426950408889634
C1_ = C0_*0.044715
NBM = env("NBM", 1)
XF = os.environ.get("XF", " sc1")
SET = [32, 80]
ACC = 128
NST4 = 56


class VM:
    def __init__(self, a): self.a = a; self.q = []
    def add(self, tag, n=1): self.q += [tag]*n
    def cnt(self, tag):
        idx = max(i for i, t in enumerate(self.q) if t == tag)
        return len(self.q) - 1 - idx
    def wait(self, tag):
        return f"s_waitcnt vmcnt({min(63, self.cnt(tag))})"
    def reset(self): self.q = []


def spread(main, items, frac=100):
    if frac < 100:
        c = len(main)*frac//100
        return spread(main[:c], items) + main[c:]
    out = []
    n, k = len(main), len(items)
    j = 0
    for i in range(n + 1):
        while j < k and j*n <= i*k:
            out += items[j]; j += 1
        if i < n: out.append(main[i])
    while j < k: out += items[j]; j += 1
    return out


def lane_ig(a):
    a("v_and_b32 v17, 15, v1")
    a("v_lshrrev_b32 v18, 4, v1")


def g2_addrs():
    r = []
    r.append("v_lshlrev_b32 v19, 11, v18")
    r.append("v_lshl_add_u32 v19, v17, 4, v19")
    r.append("s_lshl_b32 s43, s36, 9")
    r.append("v_add_u32 v2, s43, v19")
    r.append(f"v_add_u32 v3, {REG}, v2")
    r.append(f"v_add_u32 v4, {2*REG}, v2")
    r.append("v_lshrrev_b32 v19, 2, v17")
    r.append("v_lshl_add_u32 v20, v18, 2, v19")
    r.append("v_bfe_u32 v21, v20, 1, 2")
    r.append("v_lshlrev_b32 v20, 7, v20")
    r.append("v_lshl_add_u32 v20, v21, 5, v20")
    r.append("v_and_b32 v19, 3, v1")
    r.append("v_lshl_add_u32 v20, v19, 3, v20")
    r.append("v_add_u32 v5, 16384, v20")
    for t in range(1, 4): r.append(f"v_xor_b32 v{5+t}, {32*t}, v5")
    for rg in range(1, 3):
        for t in range(4): r.append(f"v_add_u32 v{5+4*rg+t}, {rg*REG}, v{5+t}")
    return r

def g2_reads(slot, base):
    rg, so = slot >> 1, (slot & 1)*SLOT
    def xr(kb, tl): return f"ds_read_b128 v[{base+(kb*2+tl)*4}:{base+(kb*2+tl)*4+3}], v{2+rg} offset:{so + kb*8192 + tl*256}"
    def wr(kb, t, h):
        d = base + 16 + (kb*4+t)*4 + 2*h
        return f"ds_read_b64_tr_b16 v[{d}:{d+1}], v{5+4*rg+t} offset:{so + kb*4096 + h*2048}"
    r = []
    for kb in range(2):
        r += [xr(kb, 0), wr(kb, 0, 0), wr(kb, 0, 1), wr(kb, 1, 0), wr(kb, 1, 1), xr(kb, 1), wr(kb, 2, 0), wr(kb, 2, 1), wr(kb, 3, 0), wr(kb, 3, 1)]
    return r

def g2_mfmas(base):
    r = []
    for kb in range(2):
        for tl in range(2):
            for t in range(4):
                acc = ACC + (tl*4+t)*4
                w = base + 16 + (kb*4+t)*4; x = base + (kb*2+tl)*4
                r.append(f"v_mfma_f32_16x16x32_bf16 v[{acc}:{acc+3}], v[{w}:{w+3}], v[{x}:{x+3}], v[{acc}:{acc+3}]")
    return r

def g2_stage(a, s, slot_next, pre=None):
    a("s_waitcnt lgkmcnt(0)" if pre is None else f"s_waitcnt vmcnt({pre}) lgkmcnt(0)")
    a("s_barrier")
    m = g2_mfmas(SET[s & 1])
    rd = [] if slot_next is None else g2_reads(slot_next, SET[(s+1) & 1])
    k = 0
    for i in range(16):
        a(m[i])
        for q in range(2 if i < 6 else 1):
            if k < len(rd): a(rd[k]); k += 1

def g2_loop(a, s0, nst, off, pres={}):
    s = s0
    while s in pres or (s % 6 != 0 and False):
        g2_stage(a, s, (s+1+off) % 6, pres[s]); s += 1
    nl = (nst - 1 - s)//6
    if nl > 0:
        L = a.label("Lg2")
        a(f"s_mov_b32 s41, {nl}")
        a(f"{L}:")
        for q in range(6): g2_stage(a, s+q, (s+q+1+off) % 6)
        a("s_sub_u32 s41, s41, 1")
        a("s_cmp_lg_u32 s41, 0")
        a(f"s_cbranch_scc1 {L}")
        s += 6*nl
    while s < nst:
        g2_stage(a, s, None if s == nst-1 else (s+1+off) % 6); s += 1


def k2_addrs():
    r = g2_addrs()
    r = [i for i in r if not i.startswith("v_add_u32 v3,")][:16]
    r = [i.replace("v_add_u32 v5, 16384,", "v_add_u32 v5, 0x10000,") for i in r]
    return r + [f"v_add_u32 v{9+t}, 0x10000, v{5+t}" for t in range(4)]
def k2_reads(s):
    base = SET[s & 1]; xo = (s % 4)*16384; ws = s % 10
    def xr(kb, tl): return f"ds_read_b128 v[{base+(kb*2+tl)*4}:{base+(kb*2+tl)*4+3}], v2 offset:{xo + kb*8192 + tl*256}"
    def wr(kb, t, h):
        d = base + 16 + (kb*4+t)*4 + 2*h
        return f"ds_read_b64_tr_b16 v[{d}:{d+1}], v{5 + 4*(ws >> 3) + t} offset:{(ws & 7)*8192 + kb*4096 + h*2048}"
    r = []
    for kb in range(2):
        r += [xr(kb, 0), wr(kb, 0, 0), wr(kb, 0, 1), wr(kb, 1, 0), wr(kb, 1, 1), xr(kb, 1), wr(kb, 2, 0), wr(kb, 2, 1), wr(kb, 3, 0), wr(kb, 3, 1)]
    return r
def k2_items(s, isw, vA=23):
    m0 = 65536 - 16384 + (s % 10)*8192 if isw else (s % 4)*16384
    r = [[f"s_add_u32 m0, s39, {m0 + k*1024}", "s_add_u32 s37, s37, s38", f"buffer_load_dwordx4 v{vA}, s[8:11], s37 offen{XF} lds"] for k in range(8)]
    r[0] = ["s_add_u32 s42, s42, 1", "s_and_b32 s42, s42, 15", r[0][0], f"s_lshl_b32 s37, s42, {17 if isw else 14}", r[0][2]]
    return r


def k3_addrs(nj, t0):
    r = []
    r.append("v_lshlrev_b32 v19, 11, v18")
    r.append("v_lshl_add_u32 v19, v17, 4, v19")
    r.append("s_lshl_b32 s43, s46, 10")
    r.append("v_add_u32 v2, s43, v19")
    r.append(f"v_add_u32 v3, {REG}, v2")
    r.append(f"v_add_u32 v4, {2*REG}, v2")
    r.append("v_lshrrev_b32 v19, 2, v17")
    r.append("v_lshl_add_u32 v20, v18, 2, v19")
    r.append("v_and_b32 v21, 7, v20")
    r.append("v_lshlrev_b32 v20, 8, v20")
    r.append("v_and_b32 v19, 3, v1")
    r.append("v_lshl_add_u32 v20, v19, 3, v20")
    for j in range(nj):
        r.append(f"s_add_u32 s43, s{t0}, {j}")
        r.append("v_xor_b32 v19, s43, v21")
        r.append(f"v_lshl_add_u32 v{5+j}, v19, 5, v20")
    for rg in range(1, 3):
        for j in range(nj): r.append(f"v_add_u32 v{5+4*rg+j}, {rg*REG}, v{5+j}")
    return r

def k3_acc(nj, mat, j, tl): return ACC + ((mat*nj + j)*4 + tl)*4

def k3_reads(nj, sig, kk, base):
    rg = (sig + 2) % 3
    def xr(tl): return f"ds_read_b128 v[{base+4*tl}:{base+4*tl+3}], v{2+rg} offset:{kk*8192 + tl*256}"
    def wr(mat, j, h):
        d = base + 16 + (mat*nj+j)*4 + 2*h
        return f"ds_read_b64_tr_b16 v[{d}:{d+1}], v{5+4*rg+j} offset:{16384*(1+mat) + kk*8192 + h*4096}"
    r = [xr(0), wr(0, 0, 0), wr(0, 0, 1), xr(1), xr(2), xr(3), wr(1, 0, 0), wr(1, 0, 1)]
    for j in range(1, nj): r += [wr(0, j, 0), wr(0, j, 1), wr(1, j, 0), wr(1, j, 1)]
    return r

def k3_mfmas(nj, base):
    r = []
    order = [(j, mat, tl) for j in range(nj) for mat in range(2) for tl in range(4)]
    if env("MORD", 2) == 1: order = [(j, mat, tl) for tl in range(4) for j in range(nj) for mat in range(2)]
    if env("MORD", 2) == 2:
        order = [(j, mat, tl if (2*j + mat) % 2 == 0 else 3 - tl) for j in range(nj) for mat in range(2) for tl in range(4)]
    for (j, mat, tl) in order:
        if True:
            if True:
                acc = k3_acc(nj, mat, j, tl)
                w = base + 16 + (mat*nj+j)*4; x = base + 4*tl
                r.append(f"v_mfma_f32_16x16x32_bf16 v[{acc}:{acc+3}], v[{w}:{w+3}], v[{x}:{x+3}], v[{acc}:{acc+3}]")
    return r

def k3_half1(a, nj, sig, vmw=None):
    a("s_waitcnt lgkmcnt(0)")
    for i in interleave(k3_mfmas(nj, SET[0]), k3_reads(nj, sig, 1, SET[1])): a(i)
    a("s_waitcnt lgkmcnt(0)" if vmw is None else f"s_waitcnt vmcnt({vmw}) lgkmcnt(0)")
    a("s_barrier")
def k3_half2(a, nj, sig):
    for i in interleave(k3_mfmas(nj, SET[1]), k3_reads(nj, sig+1, 0, SET[0])): a(i)

def k3_consumer(a, nj, sig0, vmw, n=16):
    L = a.label("Lk3")
    a(f"s_mov_b32 s41, {(n-1)//3}")
    a(f"{L}:")
    for q in range(3):
        k3_half1(a, nj, sig0+q, vmw[q] if q < len(vmw) else None)
        k3_half2(a, nj, sig0+q)
    a("s_sub_u32 s41, s41, 1")
    a("s_cmp_lg_u32 s41, 0")
    a(f"s_cbranch_scc1 {L}")
    for q in range((n-1)//3*3, n-1):
        k3_half1(a, nj, sig0+q)
        k3_half2(a, nj, sig0+q)
    k3_half1(a, nj, sig0+n-1)


def k3_dma_setup(part, psg, vE=22, first=0):
    r = []
    if part == 0: r.append("s_lshl_b32 s43, s35, 8")
    else:
        r.append("s_mul_i32 s43, s49, 192")
        r.append("s_and_b32 s43, s43, 0xffffff80")
        r.append("s_add_u32 s43, s43, 4096")
    r.append(f"s_cmp_eq_u32 s{psg}, 1")
    r.append("s_cselect_b32 s8, s4, s6")
    r.append("s_cselect_b32 s9, s5, s7")
    r.append("s_sub_u32 s10, 7340032, s43")
    r.append("s_lshl_b32 s44, s34, 18")
    r.append(f"s_add_u32 s44, s44, {WS_H}")
    r.append("s_movk_i32 s38, 28672")
    r.append(f"s_cmp_eq_u32 s{psg}, 0")
    r.append("s_cselect_b32 s8, s32, s8")
    r.append("s_cselect_b32 s9, s33, s9")
    r.append("s_cselect_b32 s10, 262144, s10")
    r.append("s_cselect_b32 s43, s44, s43")
    r.append("s_cselect_b32 s38, 1024, s38")
    r.append("s_cselect_b32 s45, 0, -1")
    r.append("s_add_u32 s8, s8, s43")
    r.append("s_addc_u32 s9, s9, 0")
    r.append("s_mov_b32 s11, 0x20000")
    r.append("s_lshl_b32 s40, s38, 4")
    r.append(f"s_add_u32 s42, s35, {first + 15}")
    r.append(f"s_lshl_b32 s39, s{psg}, 14")
    r.append("v_lshrrev_b32 v19, 4, v1")
    r.append("v_lshlrev_b32 v20, 5, v19")
    r.append("v_mul_u32_u24 v19, 6912, v19")
    r.append("v_and_b32 v19, s45, v19")
    r.append("v_and_b32 v20, s45, v20")
    r.append("v_lshlrev_b32 v21, 4, v1")
    r.append("v_xor_b32 v21, v21, v20")
    r.append(f"v_add_u32 v{vE}, v21, v19")
    r.append("s_and_b32 s45, s45, 128")
    r.append(f"v_xor_b32 v{vE+1}, s45, v{vE}")
    return r

def k3_items(sig, vE=22):
    rg = (sig + 2) % 3
    r = [[f"s_add_u32 m0, s39, {rg*REG + j*1024}", "s_add_u32 s37, s37, s38",
          f"buffer_load_dwordx4 v{vE + (j & 1)}, s[8:11], s37 offen{XF} lds"] for j in range(16)]
    r[0] = ["s_add_u32 s42, s42, 1", "s_and_b32 s42, s42, 15", r[0][0], "s_mul_i32 s37, s42, s40", r[0][2]]
    return r

def g2_dma_setup(psg, A_off, A_mul, A_bytes, K, wreg, vA=21, hop=8):
    r = []
    r.append(f"s_mul_i32 s44, s34, {A_mul}")
    r.append(f"s_lshl_b32 s39, s{psg}, 13")
    r.append("s_add_u32 s44, s44, s39")
    r.append(f"s_add_u32 s44, s44, {A_off}")
    r.append("s_lshl_b32 s43, s35, 7")
    r.append(f"s_mov_b32 s10, {A_bytes - 8192}")
    r.append("s_movk_i32 s38, 1024")
    r.append("s_movk_i32 s40, 9216")
    r.append(f"s_cmp_eq_u32 s{psg}, 2")
    r.append(f"s_cselect_b32 s8, s{wreg}, s32")
    r.append(f"s_cselect_b32 s9, s{wreg+1}, s33")
    r.append(f"s_cselect_b32 s10, {K*2048 - 1920}, s10")
    r.append("s_cselect_b32 s43, s43, s44")
    r.append("s_cselect_b32 s38, 16384, s38")
    r.append(f"s_cselect_b32 s40, {hop*2048}, s40")
    r.append(f"s_cselect_b32 s55, {hop*2048}, s38")
    r.append("s_cselect_b32 s45, -1, 0")
    r.append("s_add_u32 s8, s8, s43")
    r.append("s_addc_u32 s9, s9, 0")
    r.append("s_mov_b32 s11, 0x20000")
    r.append("s_sub_u32 s37, 0, s40")
    r.append("v_lshrrev_b32 v19, 3, v1")
    r.append("v_mul_u32_u24 v19, 1920, v19")
    r.append("v_lshrrev_b32 v20, 4, v1")
    r.append("v_lshlrev_b32 v20, 5, v20")
    r.append("v_and_b32 v19, s45, v19")
    r.append("v_and_b32 v20, s45, v20")
    r.append(f"v_lshlrev_b32 v{vA}, 4, v1")
    r.append(f"v_xor_b32 v{vA}, v{vA}, v20")
    r.append(f"v_add_u32 v{vA}, v{vA}, v19")
    return r

def g2_items(slot, vA=21, wrows=None):
    r = []
    for k in range(8):
        if wrows is None: inc = f"s_add_u32 s37, s37, s{40 if k == 0 else 55 if k == 4 else 38}"
        else: inc = f"s_add_u32 s37, s37, {(wrows[k]*2048) & 0xffffffff}"
        r.append([f"s_add_u32 m0, s39, {slot*SLOT + k*1024}", inc, f"buffer_load_dwordx4 v{vA}, s[8:11], s37 offen{XF} lds"])
    return r

def wd_row(item):
    if item < 256:
        s, k = item >> 3, item & 7
        return 128*(s & 15) + 32*(s >> 4) + 64*(k >> 2) + 8*(k & 3)
    q = item - 256
    return 2048 + 96*(q // 12) + [0, 8, 16, 24, 48, 56, 64, 72, 32, 80, 40, 88][q % 12]


CSR = 48
TT = 80
def epi_reads(nj, csbase):
    rd = []
    rd.append("s_lshl_b32 s43, s46, 9")
    rd.append(f"s_add_u32 s43, s43, {STATS}")
    rd.append("v_lshl_add_u32 v19, v17, 3, s43")
    for tl in range(4): rd.append(f"ds_read_b64 v[{TT+2*tl}:{TT+2*tl+1}], v19 offset:{tl*128}")
    rd.append(f"s_mul_i32 s43, s47, {nj*64}")
    rd.append(f"s_add_u32 s43, s43, {CSF + csbase*4}")
    rd.append("v_lshl_add_u32 v19, v18, 4, s43")
    for mat in range(2):
        for j in range(nj):
            d = CSR + (mat*nj+j)*4
            rd.append(f"ds_read_b128 v[{d}:{d+3}], v19 offset:{mat*896 + j*64}")
    return rd
def epi_consts(KB, mean=True):
    c = []
    for tl in range(4):
        mn, rs = TT+2*tl, TT+2*tl+1
        if mean: c.append(f"v_mov_b32 v{KB+tl}, v{mn}")
        c.append(f"v_mul_f32 v{TT+8}, v{rs}, v{rs}")
        c.append(f"v_mul_f32 v{KB+4+tl}, {fh(C0_)}, v{rs}")
        c.append(f"v_mul_f32 v{TT+9}, {fh(C1_)}, v{rs}")
        c.append(f"v_rcp_f32 v{KB+12+tl}, v{TT+8}")
        c.append(f"v_mul_f32 v{KB+8+tl}, v{TT+9}, v{TT+8}")
    return c

def epi_group(nj, tl, j, out, KB, ln=True):
    G = k3_acc(nj, 0, j, tl); U = k3_acc(nj, 1, j, tl)
    cg = CSR + j*4; cu = CSR + (nj+j)*4
    KM, K0, K1, KI = KB+tl, KB+4+tl, KB+8+tl, KB+12+tl
    T = TT + 4*(j & 1)
    r = []
    if ln:
        for q in range(4): r.append(f"v_fma_f32 v{G+q}, -v{KM}, v{cg+q}, v{G+q}")
        for q in range(4): r.append(f"v_fma_f32 v{U+q}, -v{KM}, v{cu+q}, v{U+q}")
    for q in range(4): r.append(f"v_mul_f32 v{T+q}, v{G+q}, v{G+q}")
    for q in range(4): r.append(f"v_fma_f32 v{T+q}, v{T+q}, v{K1}, v{K0}")
    for q in range(4): r.append(f"v_mul_f32 v{T+q}, v{T+q}, v{G+q}")
    for q in range(4): r.append(f"v_exp_f32 v{T+q}, v{T+q}")
    for q in range(4): r.append(f"v_mul_f32 v{U+q}, v{G+q}, v{U+q}")
    for q in range(4): r.append(f"v_fma_f32 v{T+q}, v{T+q}, v{KI}, v{KI}")
    for q in range(4): r.append(f"v_rcp_f32 v{T+q}, v{T+q}")
    for q in range(4): r.append(f"v_mul_f32 v{U+q}, v{U+q}, v{T+q}")
    r.append(f"v_cvt_pk_bf16_f32 v{out}, v{U}, v{U+1}")
    r.append(f"v_cvt_pk_bf16_f32 v{out+1}, v{U+2}, v{U+3}")
    return r

ST = "#ST "
KA, KBB = 32, 224
def epi_a():
    r = []
    for q in range(2):
        for tl in range(4):
            o = 96 + 4*tl
            r += epi_group(4, tl, 2*q, o, KA) + epi_group(4, tl, 2*q+1, o+2, KA)
            r.append(ST + f"{q}buffer_store_dwordx4 v[{o}:{o+3}], v27, s[24:27], {'s53' if q else '0'} offen offset:{tl*256} sc1")
    return r
def epi_b():
    r = []
    for tp in range(2):
        lo = 112 + 4*tp
        for tl in (2*tp, 2*tp+1):
            o = 96 + 4*tl
            r += epi_group(3, tl, 0, o, KBB, False) + epi_group(3, tl, 1, o+2, KBB, False)
            r.append(ST + f"0buffer_store_dwordx4 v[{o}:{o+3}], v27, s[24:27], 0 offen offset:{tl*256} sc1")
            r += epi_group(3, tl, 2, lo + 2*(tl & 1), KBB, False)
        r.append("s_nop 1")
        r.append(f"v_permlane32_swap_b32 v{lo}, v{lo+2}")
        r.append(f"v_permlane32_swap_b32 v{lo+1}, v{lo+3}")
        r.append(ST + f"0buffer_store_dwordx4 v[{lo}:{lo+3}], v28, s[24:27], 0 offen offset:{tp*512} sc1")
    return r

def epi_store_setup(part):
    r = []
    r.append(f"s_mul_i32 s43, s34, {HH_M}")
    r.append(f"s_mul_i32 s44, s{35 if part == 0 else 49}, {16384 if part == 0 else 24576}")
    r.append("s_add_u32 s43, s43, s44")
    r.append(f"s_add_u32 s43, s43, {WS_HH + (0 if part == 0 else 524288)}")
    r.append("s_add_u32 s24, s32, s43")
    r.append("s_addc_u32 s25, s33, 0")
    r.append(f"s_mov_b32 s26, {262144 + 16384 if part == 0 else 24576}")
    r.append("s_mov_b32 s27, 0x20000")
    r.append("s_mov_b32 s53, 262144")
    r.append("s_lshl_b32 s43, s47, 13")
    r.append("s_lshl_b32 s44, s46, 10")
    r.append("s_add_u32 s43, s43, s44")
    r.append("v_lshlrev_b32 v19, 11, v18")
    r.append("v_lshl_add_u32 v19, v17, 4, v19")
    r.append("v_add_u32 v27, s43, v19")
    if part == 1:
        r.append("s_lshl_b32 s43, s47, 12")
        r.append("s_add_u32 s43, s43, s44")
        r.append("s_add_u32 s43, s43, 16384")
        r.append("v_and_b32 v19, 1, v18")
        r.append("v_lshlrev_b32 v19, 11, v19")
        r.append("v_lshrrev_b32 v20, 1, v18")
        r.append("v_lshl_add_u32 v19, v20, 8, v19")
        r.append("v_lshl_add_u32 v19, v17, 4, v19")
        r.append("v_add_u32 v28, s43, v19")
    return r

STRIP = os.environ.get("STRIP", "").split(",")
def strip(lst, key):
    return [("s_nop 0" if key in STRIP else i) for i in lst]
_k3_mfmas, _k3_reads, _k3_items, _g2_mfmas, _g2_reads, _g2_items = k3_mfmas, k3_reads, k3_items, g2_mfmas, g2_reads, g2_items
def k3_mfmas(*x): return strip(_k3_mfmas(*x), "m3")
def k3_reads(*x): return strip(_k3_reads(*x), "r3")
def g2_mfmas(*x): return strip(_g2_mfmas(*x), "m4")
def g2_reads(*x): return strip(_g2_reads(*x), "r4")
def k3_items(*x, **k):
    r = _k3_items(*x, **k)
    if "d3" in STRIP: r = [g[:-1] + ["s_nop 0 ;buffer_load lds"] for g in r]
    if "h3" in STRIP: r[0][3] = "s_mov_b32 s37, 0"
    return r
def g2_items(*x, **k):
    r = _g2_items(*x, **k)
    if "d4" in STRIP: r = [g[:2] + ["s_nop 0 ;buffer_load lds"] for g in r]
    if "h4" in STRIP: r[0][1] = "s_mov_b32 s37, 0x20000"
    return r


T1 = env("T1", 4); LB = env("LB", 6)
H4 = env("H4", 0)
HH = env("HH", 0)
assert not HH or (T1 == 4 and not H4)
A0B = (16 - T1)//2
PA1 = T1 + A0B; PB = PA1 + 8; EB4 = PB + LB; NP4 = EB4 + 24 - 2*LB
assert T1 % 2 == 0 and LB % 3 == 0
SX, SW = [32, 96], [64, 160]
AK, AS, RECV = 128, 192, 224
def both(pos): return T1 <= pos < EB4
def k4_stage_of(pos, kh):
    if pos < T1: return pos
    if pos < PA1: return T1 + A0B*kh + pos - T1
    if pos < PB: return 16 + 8*kh + pos - PA1
    if pos < EB4: return 32 + LB*kh + pos - PB
    return 32 + 2*LB + pos - EB4
def k4_addrs():
    r = []
    r.append("v_lshlrev_b32 v19, 11, v18")
    r.append("v_lshl_add_u32 v19, v17, 4, v19")
    r.append("s_lshl_b32 s43, s46, 10")
    r.append("v_add_u32 v2, s43, v19")
    r.append("v_add_u32 v3, 0x10000, v2")
    r.append("v_lshrrev_b32 v19, 2, v17")
    r.append("v_lshl_add_u32 v20, v18, 2, v19")
    r.append("v_bfe_u32 v21, v20, 1, 2")
    r.append("s_lshl_b32 s43, s47, 1")
    r.append("v_xor_b32 v21, s43, v21")
    r.append("v_lshlrev_b32 v20, 7, v20")
    r.append("v_lshl_add_u32 v20, v21, 5, v20")
    r.append("v_and_b32 v19, 3, v1")
    r.append("v_lshl_add_u32 v20, v19, 3, v20")
    r.append("v_add_u32 v5, 16384, v20")
    r.append("v_xor_b32 v6, 32, v5")
    r.append("v_add_u32 v7, 0x10000, v5")
    r.append("v_add_u32 v8, 0x10000, v6")
    r.append("s_lshl_b32 s43, s36, 13")
    r.append("v_lshl_add_u32 v9, v1, 4, s43")
    r.append("s_mov_b32 s54, 0x10000")
    r.append("s_movk_i32 s52, 0x1000")
    return r
def k4_reads(pos):
    slot = (pos + 2) % 4; hi, so = slot >> 1, (slot & 1)*32768
    bx, bw = SX[pos & 1], SW[pos & 1]
    def xr(kb, tl): return f"ds_read_b128 v[{bx+(kb*4+tl)*4}:{bx+(kb*4+tl)*4+3}], v{2+hi} offset:{so + kb*8192 + tl*256}"
    def wr(c, kb, e, h):
        d = bw + ((c*2+kb)*2+e)*4 + 2*h
        return f"ds_read_b64_tr_b16 v[{d}:{d+1}], v{5+2*hi+e} offset:{so + c*8192 + kb*4096 + h*2048}"
    r = []
    for kb in range(2):
        w = [wr(c, kb, e, h) for c in range(2 if both(pos) else 1) for e in range(2) for h in range(2)]
        r += interleave(w, [xr(kb, tl) for tl in range(4)])
    return strip(r, "r4")
def k4_mfmas(pos):
    bx, bw = SX[pos & 1], SW[pos & 1]
    r = []
    for kb in range(2):
        for tl in range(4):
            for c in range(2 if both(pos) else 1):
                for e in range(2):
                    acc = (AS if c else AK) + (tl*2+e)*4
                    w = bw + ((c*2+kb)*2+e)*4; x = bx + (kb*4+tl)*4
                    r.append(f"v_mfma_f32_16x16x32_bf16 v[{acc}:{acc+3}], v[{w}:{w+3}], v[{x}:{x+3}], v[{acc}:{acc+3}]")
    return strip(r, "m4")
def k4_half(pos, hi):
    it = k4_items(pos)
    if not hi: return it[:3] + [it[3] + ["s_add_u32 s37, s37, s28"]]
    return [it[0][:-3] + ["s_add_u32 s37, s37, s28"] + it[4]] + it[5:]
def k4_masked(pos):
    it = k4_items(pos)
    if both(pos): return it
    return [g[:-1] + ["s_mov_b64 exec, s[72:73]", g[-1], "s_mov_b64 exec, -1"] for g in it]
def k4_stage(a, pos, pre=None, extra=[], items=None):
    a("s_waitcnt lgkmcnt(0)" if pre is None else f"s_waitcnt vmcnt({pre}) lgkmcnt(0)")
    a("s_barrier")
    rd = k4_reads(pos+1) if pos + 1 < NP4 else []
    seq = interleave(k4_mfmas(pos), rd)
    if items: seq = seq[:2] + spread(seq[2:], items, env("FRH", 80))
    if extra: seq = seq[:8] + spread(seq[8:], [[i] for i in extra])
    for i in seq: a(i)
def k4_dma_setup(first, vA=21):
    r = []
    r.append(f"s_mul_i32 s44, s34, {HH_M}")
    r.append("s_lshl_b32 s39, s51, 13")
    r.append("s_add_u32 s44, s44, s39")
    r.append(f"s_add_u32 s44, s44, {WS_HH}")
    r.append("s_and_b32 s43, s51, 1")
    r.append("s_xor_b32 s43, s43, s35")
    r.append("s_lshl_b32 s43, s43, 7")
    r.append(f"s_mov_b32 s10, {HH_M - 8192}")
    r.append("s_movk_i32 s38, 1024")
    r.append("s_movk_i32 s40, 9216")
    r.append("s_movk_i32 s37, 0x4000")
    r.append("s_cmp_ge_u32 s51, 2")
    r.append("s_cselect_b32 s8, s60, s32")
    r.append("s_cselect_b32 s9, s61, s33")
    r.append(f"s_cselect_b32 s10, {3584*2048 - 1920}, s10")
    r.append("s_cselect_b32 s43, s43, s44")
    r.append("s_cselect_b32 s38, 16384, s38")
    r.append(f"s_cselect_b32 s40, {40*2048}, s40")
    r.append(f"s_cselect_b32 s55, {40*2048}, s38")
    r.append(f"s_cselect_b32 s37, {128*2048}, s37")
    r.append("s_cselect_b32 s45, -1, 0")
    r.append("s_add_u32 s8, s8, s43")
    r.append("s_addc_u32 s9, s9, 0")
    r.append("s_mov_b32 s11, 0x20000")
    r.append("s_and_b32 s53, s35, 1")
    r.append(f"s_mul_i32 s54, s53, {A0B}")
    r.append("s_mul_i32 s54, s54, s37")
    r.append(f"s_mul_i32 s29, s53, {8 - A0B}")
    r.append(f"s_add_u32 s29, s29, {A0B}")
    r.append("s_mul_i32 s29, s29, s37")
    r.append(f"s_and_b32 s43, s45, {((32 - 2048)*2048) & 0xffffffff}")
    r.append("s_add_u32 s29, s29, s43")
    r.append(f"s_mul_i32 s37, s37, {first}")
    r.append("s_sub_u32 s37, s37, s40")
    r.append("v_lshrrev_b32 v19, 3, v1")
    r.append("v_mul_u32_u24 v19, 1920, v19")
    r.append("v_lshrrev_b32 v20, 4, v1")
    r.append("v_lshlrev_b32 v20, 5, v20")
    r.append("v_and_b32 v19, s45, v19")
    r.append("v_and_b32 v20, s45, v20")
    r.append(f"v_lshlrev_b32 v{vA}, 4, v1")
    r.append(f"v_xor_b32 v{vA}, v{vA}, v20")
    r.append(f"v_add_u32 v{vA}, v{vA}, v19")
    return r
def k4_items(pos, kind=None, vA=21):
    slot = (pos + 2) % 4
    r = []
    for k in range(8):
        if kind is None: inc = f"s_add_u32 s37, s37, s{40 if k == 0 else 55 if k == 4 else 38}"
        else:
            st = k4_stage_of(pos, 0)
            off = st*16384 + k*1024 if kind == 'x' else wd_row(8*st + k)*2048
            inc = f"s_add_u32 s37, s40, {off}" if pos < EB4 else f"s_mov_b32 s37, {off}"
        g = [f"s_add_u32 m0, s39, {slot*32768 + k*1024}", inc, f"buffer_load_dwordx4 v{vA}, s[8:11], s37 offen{XF} lds"]
        if "d4" in STRIP: g[2] = "s_nop 0 ;buffer_load lds"
        r.append(g)
    if kind is None and pos == T1: r[0] = ["s_add_u32 s37, s37, s54"] + r[0]
    if kind is None and pos == PA1: r[0] = ["s_add_u32 s37, s37, s29"] + r[0]
    return r


def emit(a, vm, seq, tag):
    for i in seq:
        if i.startswith(ST):
            t = i[len(ST)+1:]
            if "st" in STRIP: t = "s_nop 0"
            if "stp" in STRIP: t = t.replace(" sc1", "")
            a(t); vm.add("st" + i[len(ST)])
        else:
            a(i)
            if "buffer_load" in i and i.endswith("lds"): vm.add(tag)
            elif i.startswith("buffer_"): vm.add("x")

def st_last(seq):
    if not env("STLAST", 1): return seq
    return [i for i in seq if not i.startswith(ST)] + [i for i in seq if i.startswith(ST)]
def chunks(lst, n):
    return [lst[len(lst)*k//n:len(lst)*(k+1)//n] for k in range(n)]
def flat(g): return sum(g, [])
def last_with(cs, tag): return max(k for k, c in enumerate(cs) if any(i.startswith(ST + tag) for i in c))


def phase_234(a, Ld):
    PRIO = env("PRIO", 1)
    XSN = env("XSN", 1)
    XSIG = EB4 + XSN + env("XSD", 2); XRCV = NP4 - env("XRD", 3)
    LG1 = a.label("LG1")
    a(f"s_load_dwordx4 s[4:7], s[0:1], {KA_WG}")
    a(f"s_load_dwordx2 s[28:29], s[0:1], {KA_WO}")
    a(f"s_load_dwordx4 s[60:63], s[0:1], {KA_WD}")
    a(f"s_load_dwordx2 s[30:31], s[0:1], {KA_X}")
    lane_ig(a)
    a("s_lshr_b32 s46, s36, 1")
    a("s_and_b32 s46, s46, 1")
    a("s_and_b32 s47, s36, 1")
    a("s_and_b32 s51, s36, 3")
    if NBM:
        a("s_bfe_u32 s49, s35, 0x20001")
        a("s_lshl_b32 s49, s49, 2")
        a("s_lshr_b32 s43, s35, 3")
        a("s_lshl_b32 s43, s43, 1")
        a("s_add_u32 s49, s49, s43")
        a("s_and_b32 s43, s35, 1")
        a("s_add_u32 s49, s49, s43")
    else:
        a("s_mov_b32 s49, s35")
    a("s_waitcnt lgkmcnt(0)")
    a("s_cmp_ge_u32 s36, 4")
    a(f"s_cbranch_scc1 {LG1}")

    a("s_lshl_b32 s43, s34, 18")
    a("s_lshl_b32 s44, s35, 7")
    a("s_add_u32 s43, s43, s44")
    srd(a, 16, 30, 127*2048 + 128, add_lo=43)
    a("s_lshl_b32 s43, s36, 5")
    a("v_lshl_add_u32 v19, v17, 1, s43")
    a("v_lshlrev_b32 v19, 11, v19")
    a("v_and_b32 v20, 1, v18")
    a("v_lshl_add_u32 v19, v20, 5, v19")
    a("v_lshrrev_b32 v20, 1, v18")
    a("v_lshl_add_u32 v23, v20, 4, v19")
    for tl in range(2):
        for kb in range(2):
            d = 160 + (tl*2+kb)*4
            a(f"buffer_load_dwordx4 v[{d}:{d+3}], v23, s[16:19], 0 offen offset:{tl*2048 + kb*64}")
    for i in k2_addrs(): a(i)
    a("s_lshl_b32 s43, s34, 18")
    a("s_lshl_b32 s44, s35, 14")
    a("s_add_u32 s43, s43, s44")
    srd(a, 20, 32, 16384, add_lo=43, add_imm=WS_H)
    a("s_lshl_b32 s43, s34, 14")
    a("s_lshl_b32 s44, s35, 10")
    a("s_add_u32 s43, s43, s44")
    srd(a, 24, 32, 1024, add_lo=43, add_imm=WS_ST2)
    a("s_movk_i32 s50, 0x2000")
    a("v_lshrrev_b32 v19, 1, v18")
    a("v_lshl_add_u32 v19, v19, 4, v17")
    a("s_lshl_b32 s43, s36, 5")
    a("v_add_u32 v19, s43, v19")
    a("v_and_b32 v20, 1, v18")
    a("v_lshlrev_b32 v20, 2, v20")
    a("v_lshl_add_u32 v22, v19, 3, v20")
    a("s_waitcnt vmcnt(0)")
    for k in range(4):
        a(f"v_permlane16_swap_b32 v{160+4*k}, v{162+4*k}")
        a(f"v_permlane16_swap_b32 v{161+4*k}, v{163+4*k}")
    for k in range(8):
        for h in range(2):
            a(f"v_lshlrev_b32 v{ACC+4*k+2*h}, 16, v{160+2*k+h}")
            a(f"v_and_b32 v{ACC+4*k+2*h+1}, 0xffff0000, v{160+2*k+h}")
    def o_first_setup():
        a("s_lshl_b32 s43, s34, 18")
        srd(a, 12, 32, 262144, add_lo=43, add_imm=WS_O)
        a("v_lshlrev_b32 v21, 4, v1")
        a("s_lshl_b32 s54, s36, 11")
        for sg in (1, 2):
            a(f"s_add_u32 s43, s35, {sg}")
            a("s_and_b32 s43, s43, 15")
            a("s_lshl_b32 s43, s43, 14")
            a(f"s_add_u32 s{29+sg}, s43, s54")
    def o_first():
        for sg in (1, 2):
            for e in range(2):
                a(f"s_add_u32 m0, s54, {sg*16384 + e*1024}")
                a(f"s_add_u32 s43, s{29+sg}, {e*1024}")
                a(f"buffer_load_dwordx4 v21, s[12:15], s43 offen{XF} lds")
    o_first_setup()
    a("s_waitcnt lgkmcnt(0)")
    a("s_barrier")
    for i in k2_reads(0): a(i)
    a("s_waitcnt lgkmcnt(0)")
    for i in g2_mfmas(SET[0]): a(i)
    a("s_barrier")
    o_first()
    a("s_waitcnt vmcnt(2)")
    a("s_barrier")
    stamp(a, 6)
    for i in k2_reads(1): a(i)
    for st in range(1, 16):
        a("s_waitcnt vmcnt(0) lgkmcnt(0)" if st == 1 else "s_waitcnt lgkmcnt(0)")
        a("s_barrier")
        m = g2_mfmas(SET[st & 1]); rd = k2_reads(st+1) if st < 15 else []
        for i in spread(rd, [[x] for x in m], 100) if rd else m: a(i)
    stamp(a, 7)
    a("s_nop 4")
    P = 96
    for tl in range(2):
        for kb in range(2):
            o = P + (tl*2+kb)*4
            for hf in range(2):
                s = ACC + (tl*4 + 2*kb + hf)*4
                a(f"v_cvt_pk_bf16_f32 v{o+2*hf}, v{s}, v{s+1}")
                a(f"v_cvt_pk_bf16_f32 v{o+2*hf+1}, v{s+2}, v{s+3}")
            a(f"buffer_store_dwordx4 v[{o}:{o+3}], v2, s[20:23], {'s50' if kb else '0'} offen offset:{tl*256} sc1")
            a(f"ds_write_b128 v4, v[{o}:{o+3}] offset:{kb*8192 + tl*256}")
    for q in range(8):
        for tl in range(2):
            x = ACC + 16*tl + 2*q; sm = 116 + 4*tl; sq = sm + 2
            if q == 0:
                a(f"v_pk_mul_f32 v[{sq}:{sq+1}], v[{x}:{x+1}], v[{x}:{x+1}]")
            else:
                a(f"v_pk_fma_f32 v[{sq}:{sq+1}], v[{x}:{x+1}], v[{x}:{x+1}], v[{sq}:{sq+1}]")
                y = ACC + 16*tl if q == 1 else sm
                a(f"v_pk_add_f32 v[{sm}:{sm+1}], v[{x}:{x+1}], v[{y}:{y+1}]")
    for tl in range(2):
        a(f"v_add_f32 v{112+2*tl}, v{116+4*tl}, v{117+4*tl}")
        a(f"v_add_f32 v{113+2*tl}, v{118+4*tl}, v{119+4*tl}")
    a("s_nop 1")
    a("v_permlane32_swap_b32 v112, v114")
    a("v_permlane32_swap_b32 v113, v115")
    a("v_add_f32 v112, v112, v114")
    a("v_add_f32 v113, v113, v115")
    a("s_nop 1")
    a("v_permlane16_swap_b32 v112, v113")
    a("v_add_f32 v112, v112, v113")
    a("buffer_store_dword v112, v22, s[24:27], 0 offen sc1")
    a("s_waitcnt vmcnt(0) lgkmcnt(0)")
    a("s_barrier")
    Ls = a.label("Lsig")
    a("s_cmp_lg_u32 s36, 0")
    a(f"s_cbranch_scc1 {Ls}")
    flag_signal(a, 56, "h", 34, v=19)
    a(f"{Ls}:")
    stamp(a, 8)
    a("s_lshl_b32 s53, s47, 2")
    for i in k3_addrs(4, 53): a(i)
    for i in range(128): a(f"v_mov_b32 v{ACC+i}, 0")
    for i in k3_dma_setup(1, 51, first=2): a(i)
    for i in epi_store_setup(0): a(i)
    def out_setup():
        r = ["s_lshl_b32 s43, s34, 18", "s_lshl_b32 s44, s35, 7", "s_add_u32 s43, s43, s44",
             "s_add_u32 s16, s62, s43", "s_addc_u32 s17, s63, 0", f"s_mov_b32 s18, {127*2048 + 128}", "s_mov_b32 s19, 0x20000",
             "s_lshl_b32 s43, s46, 6", "v_lshl_add_u32 v19, v17, 1, s43", "v_lshlrev_b32 v19, 11, v19",
             "v_and_b32 v20, 1, v18", "v_lshl_add_u32 v19, v20, 5, v19", "v_lshrrev_b32 v20, 1, v18", "v_lshl_add_u32 v19, v20, 4, v19",
             "s_lshl_b32 s43, s47, 6", "v_add_u32 v28, s43, v19"]
        for d, flip in ((64, 0), (68, 1)):
            r += ["s_lshl_b32 s43, s34, 4", "s_add_u32 s43, s43, s35", f"s_xor_b32 s43, s43, {flip}", "s_lshl_b32 s43, s43, 15", f"s_add_u32 s43, s43, {WS_X}",
                  f"s_add_u32 s{d}, s32, s43", f"s_addc_u32 s{d+1}, s33, 0", f"s_mov_b32 s{d+2}, 32768", f"s_mov_b32 s{d+3}, 0x20000"]
        return r
    for i in out_setup(): a(i)
    def x_first_setup():
        a("s_lshl_b32 s43, s34, 18")
        srd(a, 12, 32, 262144, add_lo=43, add_imm=WS_H)
        a("v_lshlrev_b32 v21, 4, v1")
        a("s_lshl_b32 s54, s36, 11")
        for sg in (1, 2):
            a(f"s_add_u32 s43, s35, {sg}")
            a("s_and_b32 s43, s43, 15")
            a("s_lshl_b32 s43, s43, 14")
            a(f"s_add_u32 s{29+sg}, s43, s54")
    def x_first():
        for sg in (1, 2):
            for e in range(2):
                a(f"s_add_u32 m0, s54, {((sg+2) % 3)*REG + e*1024}")
                a(f"s_add_u32 s43, s{29+sg}, {e*1024}")
                a(f"buffer_load_dwordx4 v21, s[12:15], s43 offen{XF} lds")
    x_first_setup()
    for i in k3_reads(4, 0, 0, SET[0]): a(i)
    a("s_waitcnt lgkmcnt(0)")
    for i in interleave(k3_mfmas(4, SET[0]), k3_reads(4, 0, 1, SET[1])): a(i)
    a("s_waitcnt lgkmcnt(0)")
    for i in k3_mfmas(4, SET[1]): a(i)
    a("s_barrier")
    x_first()
    a("s_waitcnt vmcnt(2)")
    a("s_barrier")
    stamp(a, 9)
    if PRIO: a("s_setprio 1")
    for i in k3_reads(4, 1, 0, SET[0]): a(i)
    k3_consumer(a, 4, 1, [0], n=15)
    stamp(a, 10)
    EA = epi_a()
    def batch(l, nb):
        return flat([[i for i in c if not i.startswith(ST)] + [i for i in c if i.startswith(ST)] for c in chunks(l, nb)])
    if env("STBA", 0): EA = batch(EA, env("STBA", 0))
    if "e" in STRIP: EA = [i for i in EA if i.startswith(ST)]
    ea = chunks(EA, env("EA_N", 13))
    SIG_A0 = 16 + last_with(ea, "0") + 2
    SIG_A1 = 16 + last_with(ea, "1") + 2
    HL = SIG_A0 - 1
    assert 16 + len(ea) <= 31 and SIG_A0 <= 28 and HL <= 27 and SIG_A1 in (29, 30)
    L3h = a.label("L3h"); LK4 = a.label("LK4")
    RD = 192
    def resid_loads():
        r = ["v_lshlrev_b32 v19, 11, v18", "v_lshl_add_u32 v19, v17, 4, v19", "s_lshl_b32 s43, s46, 10", "s_lshl_b32 s44, s47, 13",
             f"v_add3_u32 v{RD+16}, v19, s43, 0", f"v_add_u32 v{RD+16}, s44, v{RD+16}"]
        for tl in range(4):
            r.append(f"buffer_load_dwordx4 v[{RD+4*tl}:{RD+4*tl+3}], v{RD+16}, s[20:23], 0 offen offset:{tl*256} sc1")
        return r
    def resid_unpack():
        r = []
        for k in range(4):
            for q in range(4):
                r.append(f"v_lshlrev_b32 v{ACC+8*k+2*q}, 16, v{RD+4*k+q}")
                r.append(f"v_and_b32 v{ACC+8*k+2*q+1}, 0xffff0000, v{RD+4*k+q}")
        return r
    extra = {HL: resid_loads(), 17: k4_addrs(), 29: resid_unpack(), 30: [f"v_mov_b32 v{AS+i}, 0" for i in range(32)]}
    assert HL + 2 <= 28 and HL > 19
    a("s_cmp_eq_u32 s36, 3")
    a(f"s_cbranch_scc1 {L3h}")
    for helper in (False, True):
        vm = VM(a)
        if helper: a(f"{L3h}:")
        m = k3_mfmas(4, SET[1])
        emit(a, vm, m if helper else spread(m, k3_items(18)), 18)
        if PRIO: a("s_setprio 0")
        emit(a, vm, epi_reads(4, 0) + ["s_waitcnt lgkmcnt(0)"] + epi_consts(KA), None)
        if helper and env("K3PF", 0):
            k3pf = K3PF(a, 1)
            k3pf.setup()
            for s in range(3, env("K3PD", 6)): k3pf.issue(s)
        a("s_barrier")
        if helper: stampc(a, "k3", 16)
        for sig in range(16, 31):
            body = (list(ea[sig-16]) if sig-16 < len(ea) else []) + extra.get(sig, [])
            if helper:
                if sig == SIG_A0: flag_signal(a, 56, "hha0", 34, v=21)
                if sig == SIG_A1: flag_signal(a, 56, "hha1", 34, v=22)
                if sig == 28: flag_poll_issue(a, 56, "hha0", 34, v=21)
                if env("K3PF", 0) and sig - 16 + env("K3PD", 6) < 16: k3pf.issue(sig - 16 + env("K3PD", 6))
                if env("K3_SPF", 1) and sig == env("S3C", 18):
                    sp = SPF3(a); sp.setup(1); sp.issue(8)
                if env("K4_SPF", 1) and sig == env("S4A", 25):
                    sp = SPF4(a); sp.setup(); sp.issue(0)
                if sig == 25 and env("K4PF", 0):
                    pf_w64(a, KA_WD, 3584, list(range(env("K4PF0", 0), env("K4PF", 0)//MX)), 80, 29, 30)
                assert T1 >= 4
                if sig == 29 and HH:
                    emit(a, vm, k4_dma_setup(4) + ["s_mul_i32 s28, s38, 3", "s_add_u32 s28, s28, s55"], None)
                if sig == 29 and H4:
                    emit(a, vm, k4_dma_setup(2), None)
                    a("s_mov_b64 s[72:73], 0")
                emit(a, vm, body, None)
                if sig == SIG_A0 - 1: a(vm.wait("st0"))
                if sig == SIG_A1 - 1: a(vm.wait("st1"))
                if sig == HL + 2: a(vm.wait("x"))
                if sig == 28: flag_poll_finish(a, 56, v=21)
            else:
                if sig + 3 <= 31:
                    emit(a, vm, st_last(spread(body, k3_items(sig+3), env("FR3", 100))), sig+3)
                else:
                    if sig == 29:
                        emit(a, vm, k4_dma_setup(0), None)
                        a("s_mov_b64 s[72:73], -1")
                    emit(a, vm, spread(body, k4_items(sig - 29)), ("k4", sig - 29))
                if sig == 30 and HH:
                    emit(a, vm, ["s_mul_i32 s28, s38, 3", "s_add_u32 s28, s28, s55", "s_mul_i32 s43, s38, 3", "s_add_u32 s43, s43, s40", "s_add_u32 s43, s43, s28",
                                 "s_lshl_b32 s43, s43, 1", "s_add_u32 s37, s37, s43"], None)
                w = vm.cnt(sig+2) if sig + 2 <= 31 else vm.cnt(("k4", 0))
                if sig == SIG_A0 - 1: w = min(w, vm.cnt("st0"))
                if sig == SIG_A1 - 1: w = min(w, vm.cnt("st1"))
                if sig == HL + 2: w = min(w, vm.cnt("x"))
                a(f"s_waitcnt vmcnt({w})")
            a("s_barrier")
            if helper: stampc(a, "k3", sig+1)
        if not helper: a(f"s_branch {LK4}")
    a(f"{LK4}:")
    stamp(a, 11)
    if PRIO: a("s_setprio 1")
    for i in k4_reads(0): a(i)
    if H4:
        for i in flat(k4_masked(2) + k4_masked(3)): a(i)
    XB = env("XBF", 1)
    def xch(op, reg, sd, n=8):
        return [f"buffer_{op}_dwordx4 v[{reg+4*t}:{reg+4*t+3}], v9, s[{sd}:{sd+3}], {'s52' if t >= 4 else '0'} offen offset:{(t & 3)*1024} sc1" for t in range(n)]
    if XB:
        st_ = xch("store", RECV, 64, 4)
        xs = chunks([[f"v_cvt_pk_bf16_f32 v{RECV+4*tl+q}, v{AS+8*tl+2*q}, v{AS+8*tl+2*q+1}" for q in range(4)] + [st_[tl]] for tl in range(4)], XSN)
        xs = [flat(c) for c in xs]
        xl = xch("load", AS, 68, 4)
        xu = ["s_waitcnt vmcnt(0)"]
        for k in range(16): xu += [f"v_lshlrev_b32 v{RECV+2*k}, 16, v{AS+k}", f"v_and_b32 v{RECV+2*k+1}, 0xffff0000, v{AS+k}"]
    else:
        xs = chunks(xch("store", AS, 64), XSN); xl = xch("load", RECV, 68); xu = []
    pos = 0
    R0 = max(T1, H4 + 3, HH + 3 if HH else 0)
    def pre4(pos):
        if pos == XSIG: return 0
        if HH and 3 <= pos <= HH + 2: return 4*(min(pos + 3, HH + 3) - (pos + 1))
        if not H4: return 0 if pos == 0 else None
        if pos <= H4: return 16
        return {H4 + 1: 8, H4 + 2: 0}.get(pos)
    while pos < NP4:
        if pos == R0:
            nl = (EB4 - 1 - R0)//4
            L = a.label("Lk4")
            a(f"s_mov_b32 s41, {nl}")
            a(f"{L}:")
            for q in range(4): k4_stage(a, pos + q)
            a("s_sub_u32 s41, s41, 1")
            a("s_cmp_lg_u32 s41, 0")
            a(f"s_cbranch_scc1 {L}")
            pos += 4*nl
        if pos == EB4: a("s_mov_b32 s54, 0x10000")
        k4_stage(a, pos, pre=pre4(pos), items=k4_masked(pos + 4) if pos < H4 else k4_half(pos + 4, 0) if pos < HH else None,
                 extra=xs[pos - EB4] if EB4 <= pos < EB4 + XSN else xl if pos == XRCV else xu if pos == NP4 - 1 else [])
        pos += 1
    stamp(a, 12)
    a("s_waitcnt vmcnt(0)")
    a("s_nop 4")
    for tl in range(4):
        b = AK + 8*tl; o = 32 + 4*tl
        for q in range(0, 8, 2): a(f"v_pk_add_f32 v[{b+q}:{b+q+1}], v[{b+q}:{b+q+1}], v[{RECV+8*tl+q}:{RECV+8*tl+q+1}]")
        for q in range(4): a(f"v_cvt_pk_bf16_f32 v{o+q}, v{b+2*q}, v{b+2*q+1}")
    for tl in range(4):
        o = 32 + 4*tl
        a(f"v_permlane16_swap_b32 v{o}, v{o+2}")
        a(f"v_permlane16_swap_b32 v{o+1}, v{o+3}")
        a(f"buffer_store_dwordx4 v[{o}:{o+3}], v28, s[16:19], {'s54' if tl >= 2 else '0'} offen offset:{(tl & 1)*2048}{os.environ.get('OSF', '')}")
    if STAMP:
        a("s_waitcnt vmcnt(0)")
        stamp(a, 13)
        stamp_flush(a)
    a(f"s_branch {Ld}")

    a(f"{LG1}:")
    L7 = a.label("L7"); LK3b = a.label("LK3b"); LP3 = a.label("LP3")
    a("s_cmp_eq_u32 s36, 7")
    a(f"s_cbranch_scc1 {L7}")
    for i in g2_dma_setup(51, WS_O, 262144, 262144, 1024, 28, vA=23): a(i)
    o_first_setup()
    Lp = [a.label("Lp") for _ in range(3)]
    for p in range(1, 3):
        a(f"s_cmp_eq_u32 s51, {p}")
        a(f"s_cbranch_scc1 {Lp[p]}")
    for p in range(3):
        a(f"{Lp[p]}:")
        vm = VM(a)
        def st2(s): emit(a, vm, flat(k2_items(s, p == 2)), s)
        if p == 2:
            a("s_add_u32 s42, s35, 15")
            for s in range(min(8, env("K2_WE", 6))): st2(s)
            a(vm.wait(0))
        else:
            a("s_add_u32 s42, s35, 2")
        a("s_waitcnt lgkmcnt(0)")
        a("s_barrier")
        WE = env("K2_WE", 6)
        if p == 2:
            for s in range(8, WE): st2(s)
        if CSM == "d": cs_spre(a, 3)
        if p == 0: flag_poll(a, 56, "o", 34, v=8)
        a("s_barrier")
        o_first(); vm.add(1, 2); vm.add(2, 2)
        if p < 2: st2(3); st2(4)
        else: st2(WE)
        a(vm.wait(1))
        a("s_barrier")
        for s in range(1, 16):
            if s < 15: a(vm.wait(s+1))
            a("s_barrier")
            nx = s + (WE if p == 2 else 4)
            if nx < 16: st2(nx)
            rest = SPR - 3 - 2*(SPE - 2) - (s-1)*env("CS_RPS", 2)
            if rest > 0 and CSM == "d": cs_spre(a, min(rest, env("CS_RPS", 2)))
            if s == 11:
                for i in k3_dma_setup(0, 51): a(i)
            if s in (12, 14)[:env("EW", 2)] and p > 0:
                emit(a, vm, flat(k3_items((s-12)//2)), "w%d" % ((s-12)//2))
        if p > 0: a(vm.wait("w0"))
        a("s_barrier")
        if p == 0:
            a("s_add_u32 s42, s42, 3")
            flag_poll(a, 56, "h", 34, v=8)
        else:
            for w in range(env("EW", 2), 3): emit(a, vm, flat(k3_items(w)), "w")
        if p < 2: a(f"s_branch {LP3}")
    a(f"{LP3}:")
    SWD = env("SWD", 1)
    wd_base = ["s_mul_i32 s43, s2, 28672", "s_mul_i32 s44, s51, 7168", "s_add_u32 s43, s43, s44", "s_add_u32 s80, s60, s43", "s_addc_u32 s81, s61, 0"]
    def swd(sig, w7=False):
        n = 9 if sig <= 8 else 8 if 10 <= sig <= 12 else 7 if sig == 13 else 0
        if w7: n = 0 if sig in (6, 9) or sig > 12 else 11 if sig <= 8 else 8
        if not SWD or not n: return []
        return [f"s_load_dword s{64+q}, s[80:81], {64*q}" for q in range(n)] + [f"s_add_u32 s80, s80, {64*n}", "s_addc_u32 s81, s81, 0"]
    for i in wd_base: a(i)
    x_first_setup()
    a("s_barrier")
    x_first()
    for i in flat(k3_items(3)) + swd(0): a(i)
    a("s_waitcnt vmcnt(18)")
    a("s_barrier")
    a("s_waitcnt vmcnt(16)")
    a("s_barrier")
    def pst(sig, body=[], pre=[], post=[]):
        for i in pre + spread(body, k3_items(sig+3)) + post + swd(sig): a(i)
        a("s_waitcnt vmcnt(16)")
        a("s_barrier")
    L = a.label("Lp3")
    a("s_mov_b32 s41, 2")
    a(f"{L}:")
    for sig in range(1, 4): pst(sig)
    a("s_sub_u32 s41, s41, 1")
    a("s_cmp_lg_u32 s41, 0")
    a(f"s_cbranch_scc1 {L}")
    pst(7); pst(8)
    bs = ["s_and_b32 s53, s35, 1", "s_lshl_b32 s53, s53, 1", "s_mul_i32 s43, s47, 3", "s_add_u32 s53, s53, s43"] + k3_addrs(3, 53)
    binit = []
    for mat in range(2):
        for j in range(3):
            for tl in range(4):
                for q in range(4):
                    binit.append(f"v_mul_f32 v{k3_acc(3, mat, j, tl)+q}, -v{TT+2*tl}, v{CSR+(mat*3+j)*4+q}")
    bi = chunks(binit, 3)
    BODY = {9: bs + epi_reads(3, 128), 10: ["s_waitcnt lgkmcnt(0)"] + epi_consts(KBB, False), 11: bi[0], 12: bi[1], 13: bi[2]}
    k4set = k4_dma_setup(2 if not H4 else H4 + 4)
    if HH: k4set += ["s_mul_i32 s28, s38, 3", "s_add_u32 s28, s28, s40"]
    if H4:
        assert T1 <= H4 + 4 <= PA1
        if H4 + 4 > T1: k4set += ["s_add_u32 s37, s37, s54"]
    for sig in range(9, 15):
        pst(sig, BODY.get(sig, []), pre=k3_dma_setup(1, 51) if sig == 13 else [], post={14: k4set, 10: epi_store_setup(1)}.get(sig, []))
    a(f"s_branch {LK3b}")

    a(f"{L7}:")
    NB2 = 18
    Lno = a.label("Lnojob"); Lcs = a.label("Lcsd")
    W7L = env("W7L", 1)
    if not W7L: a("s_barrier")
    stampc(a, "k2", 0)
    cs_setup(a, Lno, 64, 4)
    a("s_lshl_b32 s55, s45, 1")
    a("s_add_u32 s55, s55, s44")
    a("s_mul_i32 s55, s55, 14336")
    a("s_lshl_b32 s45, s46, 9")
    a("s_mov_b32 s50, s46")
    a("s_add_u32 s55, s55, s45")
    a("v_lshl_add_u32 v5, v5, 5, s55")
    srd(a, 72, 32, 8*14336, add_imm=WS_CS)
    for i in range(8): a(f"v_mov_b32 v{32+i}, 0")
    NF = CS_NF
    def proc(n, pk=True):
        t = 40 + 8*(n & 1)
        for d in range(4):
            a(f"v_lshlrev_b32 v{t+2*d}, 16, v{128+4*(n % NF)+d}")
            a(f"v_and_b32 v{t+2*d+1}, 0xffff0000, v{128+4*(n % NF)+d}")
        if pk:
            for d in range(4): a(f"v_pk_add_f32 v[{32+2*d}:{33+2*d}], v[{32+2*d}:{33+2*d}], v[{t+2*d}:{t+2*d+1}]")
        else:
            for d in range(8): a(f"v_add_f32 v{32+d}, v{32+d}, v{t+d}")
    def mpf():
        if env("MPF", 0):
            a("s_mul_i32 s43, s2, 28672")
            srd(a, 76, 60, 28672, add_lo=43)
            a("v_lshlrev_b32 v19, 7, v1")
            for q in range(4):
                a(f"s_mov_b32 s43, {q*8192}")
                a("buffer_load_dword v30, v19, s[76:79], s43 offen")
    if STAMPC != "k1" and CSM == "d": cs_spre(a, 2, 82, 6)
    for n in range(NF):
        proc(n)
        if CSM == "e": cs_issue(a, NF + n, 64, 4)
    if W7L: a("s_barrier")
    o_first_setup()
    CL0 = env("CS_L0", 1); CLN = env("CS_LN", 4); CPD = env("CS_PD", 0)
    lim = 2*(SPE - 2) + 3 + env("CS_LIM", 99)
    early = [q for q in range(NF) if all((4*q + r) % SPR < lim for r in range(4))]
    early.sort(key=lambda q: max(max(0, (4*q + r) % SPR - 2*(SPE - 2) - 2) for r in range(4)))
    early = early[:len(early)//CLN*CLN]
    late = [q for q in range(NF) if q not in early]
    nl = len(early)//CLN
    assert CL0 + nl + CPD <= 16
    def ld2(slot, q):
        a(f"s_mov_b32 s43, {(NF + q)*4*7168}")
        a(f"buffer_load_dwordx4 v[{128+4*slot}:{128+4*slot+3}], v4, s[64:67], s43 offen")
    def cs_finish():
        a("s_nop 2")
        for sw in ("16", "32"):
            for d in range(8): a(f"v_mov_b32 v{40+d}, v{32+d}")
            a("s_nop 0")
            for d in range(8): a(f"v_permlane{sw}_swap_b32 v{32+d}, v{40+d}")
            for d in range(8): a(f"v_add_f32 v{32+d}, v{32+d}, v{40+d}")
        a("s_mov_b64 exec, 0xffff")
        a("buffer_store_dwordx4 v[32:35], v5, s[72:75], 0 offen sc1")
        a("buffer_store_dwordx4 v[36:39], v5, s[72:75], 0 offen offset:16 sc1")
        a("s_mov_b64 exec, -1")
    for q in range(NB2):
        st = q - 2
        if q == 1:
            o_first()
            a("s_waitcnt vmcnt(2)")
        if q == 2: a("s_waitcnt vmcnt(0)")
        if CL0 <= st < CL0 + nl and CSM == "d":
            for n in range(CLN): ld2((st-CL0)*CLN + n, early[(st-CL0)*CLN + n])
        if CL0 + CPD <= st < CL0 + CPD + nl:
            b = st - CL0 - CPD
            if CSM == "d": a(f"s_waitcnt vmcnt({CLN*min(CPD, nl - 1 - b)})")
            for n in range(CLN): proc(b*CLN + n, env("CS_PK", 1))
        if not late and st == CL0 + CPD + nl: cs_finish()
        if st == env("CS_LT", 16) - 1:
            for n, qq in enumerate(late): ld2(len(early) + n, qq)
        a("s_barrier")
        stampc(a, "k2", q+1)
    if env("CS_LT", 16) > 16:
        for n, qq in enumerate(late): ld2(len(early) + n, qq)
    if not late and CL0 + CPD + nl == 16: cs_finish()
    if late:
        a("s_waitcnt vmcnt(0)")
        for n in range(len(late)): proc(len(early) + n)
        cs_finish()
    a("s_waitcnt vmcnt(0)")
    flag_signal(a, 56, "cs", 50, v=12)
    mpf()
    a(f"s_branch {Lcs}")
    a(f"{Lno}:")
    if W7L: a("s_barrier")
    o_first_setup()
    for q in range(NB2):
        if q == 1:
            o_first()
            a("s_waitcnt vmcnt(2)")
        if q == 2: a("s_waitcnt vmcnt(0)")
        a("s_barrier")
        stampc(a, "k2", q+1)
    mpf()
    a(f"{Lcs}:")
    a("s_mov_b32 s46, 1")
    x_first_setup()
    k3pf = K3PF(a, 0)
    PD = env("K3PD", 6)
    if env("K3PF", 0) or env("K3PF0", 0):
        k3pf.setup()
        for s in range(3, max(PD, env("K3PF0", 0))): k3pf.issue(s)
    S3 = env("K3_SPF", 1); S4 = env("K4_SPF", 1)
    sp3 = SPF3(a)
    if S3:
        sp3.setup(0); sp3.issue(3)
    a("s_lshl_b32 s43, s34, 14")
    srd(a, 64, 32, 16384, add_lo=43, add_imm=WS_ST2)
    srd(a, 72, 32, 8*14336, add_imm=WS_CS)
    a("s_barrier")
    stampc(a, "k2", 20)
    x_first()
    a("s_waitcnt vmcnt(2)")
    a("s_barrier")
    stampc(a, "k2", 21)
    stampc(a, "k3", 31)
    stampc(a, "k3", 0)
    def w7dst(i):
        if not i.startswith("s_load_dword"): return i
        q = int(i.split()[1][1:-1]) - 64
        return i.replace(f"s{64+q},", f"s{82 + q % 6},")
    STL = env("STL", 1); CSP = STL + 3
    for sig in range(15):
        if sig == 0:
            a("s_waitcnt vmcnt(0)")
        if S3 and sig == env("S3A", 5): sp3.issue(8)
        if S3 and sig == env("S3B", 10):
            sp3.setup(1); sp3.issue(0)
        if sig == STL + 1:
            a("s_mul_i32 s43, s49, 96")
            a("s_add_u32 s44, s43, 95")
            a("s_lshr_b32 s43, s43, 7")
            a("s_lshr_b32 s44, s44, 7")
            a("s_add_u32 s43, s43, 16")
            a("s_add_u32 s44, s44, 16")
            a("v_mov_b32 v12, s44")
            a("v_writelane_b32 v12, s35, 0")
            a("v_writelane_b32 v12, s43, 1")
            a(f"v_add_u32 v12, {FLG['cs'][0]}, v12")
            a("v_lshlrev_b32 v12, 7, v12")
            a(f"v_mov_b32 v14, {FLG['cs'][1]}")
            a("buffer_load_dword v13, v12, s[56:59], 0 offen sc1")
        if sig == STL:
            for n in range(16):
                a(f"s_mov_b32 s43, {n*1024}")
                a(f"buffer_load_dwordx4 v[{128+4*n}:{128+4*n+3}], v21, s[64:67], s43 offen sc1")
        if env("K3PF", 0) and sig >= 1:
            if sig + PD - 1 < 16: k3pf.issue(sig + PD - 1)
            elif sig + PD - 1 == 16:
                k3pf.part = 1; k3pf.setup()
            if 16 <= sig + PD - 1 < 19: k3pf.issue(sig + PD - 1 - 16)
        if sig == CSP:
            flag_poll_finish(a, 56, v=12)
            a("v_min_u32 v12, 55, v1")
            a("v_lshlrev_b32 v13, 4, v12")
            a("s_lshl_b32 s43, s35, 9")
            a("s_mul_i32 s44, s49, 384")
            a(f"s_add_u32 s44, s44, {8192 - 512}")
            a("v_mov_b32 v14, s44")
            a("v_mov_b32 v15, s43")
            a("v_cmp_gt_u32 vcc, 32, v12")
            a("s_nop 1")
            a("v_cndmask_b32 v14, v14, v15, vcc")
            a("v_add_u32 v14, v14, v13")
            a(f"v_add_u32 v13, {CSF}, v13")
            for mat in range(2):
                for sl in range(4):
                    d = 192 + (mat*4+sl)*4
                    a(f"s_mov_b32 s43, {(sl*2+mat)*14336}")
                    a(f"buffer_load_dwordx4 v[{d}:{d+3}], v14, s[72:75], s43 offen sc1")
        if sig == CSP + 1:
            for n in range(1, 16):
                for q in range(4): a(f"v_add_f32 v{128+q}, v{128+q}, v{128+4*n+q}")
            for b in (128, 130):
                a(f"v_mul_f32 v{b}, 0x3a800000, v{b}")
                a(f"v_mul_f32 v{b+1}, 0x3a800000, v{b+1}")
                a(f"v_fma_f32 v{b+1}, -v{b}, v{b}, v{b+1}")
                a(f"v_max_f32 v{b+1}, 0, v{b+1}")
                a(f"v_add_f32 v{b+1}, 0x3727c5ac, v{b+1}")
                a(f"v_rsq_f32 v{b+1}, v{b+1}")
            a(f"v_add_u32 v19, {STATS}, v21")
            a("ds_write_b128 v19, v[128:131]")
        if sig == CSP + 3:
            a("s_waitcnt vmcnt(0)")
            for mat in range(2):
                b = 192 + mat*16
                for q in range(4):
                    a(f"v_add_f32 v{b+q}, v{b+q}, v{b+4+q}")
                    a(f"v_add_f32 v{b+8+q}, v{b+8+q}, v{b+12+q}")
                for q in range(4): a(f"v_add_f32 v{b+q}, v{b+q}, v{b+8+q}")
                a(f"ds_write_b128 v13, v[{b}:{b+3}] offset:{mat*896}")
            a("s_waitcnt lgkmcnt(0)")
            assert sig < 9
        for i in BODY.get(sig, []) + (epi_store_setup(1) if sig == 10 else []) + (wd_base if sig == 0 else []) + (k4set if sig == 14 else []): a(i)
        assert CSP + 2 == 6
        if STAMPC != "k3":
            for i in swd(sig, True): a(w7dst(i))
        a("s_barrier")
        stampc(a, "k3", sig+1)

    a(f"{LK3b}:")
    stamp(a, 10)
    if PRIO: a("s_setprio 1")
    for i in k3_reads(3, 16, 0, SET[0]): a(i)
    k3_consumer(a, 3, 16, [0])
    stamp(a, 11)
    EB = epi_b()
    if env("STBB", 0): EB = batch(EB, env("STBB", 0))
    if "e" in STRIP: EB = [i for i in EB if i.startswith(ST)]
    eb = chunks(EB, env("EB_N", 8))
    SIG_B = last_with(eb, "0") + env("SIGB_D", 2)
    POLL_A1 = PA1 - 5; POLL_B = PB - 5
    UNI = PB - 4
    assert len(eb) <= UNI and SIG_B < POLL_B
    L7b = a.label("L7b")
    a("s_cmp_eq_u32 s36, 7")
    a(f"s_cbranch_scc1 {L7b}")
    for helper in (False, True):
        vm = VM(a)
        if helper: a(f"{L7b}:")
        m = k3_mfmas(3, SET[1])
        if H4: emit(a, vm, m, None)
        elif helper:
            emit(a, vm, m, None)
            a(f"s_mul_i32 s43, s38, {16*(T1-2)}")
            a("s_add_u32 s37, s37, s43")
        else:
            emit(a, vm, spread(m[:12], k4_items(2)), 2)
            emit(a, vm, spread(m[12:], k4_items(3)), 3)
        if PRIO: a("s_setprio 0")
        a("s_barrier")
        if helper: stampc(a, "k4", 0 - env("K4O", 0))
        def pslice(s, kind):
            body = eb[s] if s < len(eb) else []
            dma = (both(s + 4) if helper else s + 4 < NP4) and s >= H4
            if helper:
                if s == SIG_B: flag_signal(a, 56, "hhb", 34, v=10); vm.add("f")
                if s == POLL_A1 - env("PLA", 2): flag_poll_issue(a, 56, "hha1", 34, v=10); vm.add("p")
                if s == POLL_B - env("PLB", 2): flag_poll_issue(a, 56, "hhb", 34, v=10); vm.add("p")
                if env("K4_SPF", 1):
                    if s == 0: sp4.setup()
                    for G, at in ((1, PA1 - env("S4B", 9)), (2, PB - env("S4C", 8)), (3, EB4 - env("S4D", 4))):
                        if s == at: sp4.issue(G); vm.add("f")
                if s == XSIG:
                    xflag_addr(a, 10, 0)
                    a("v_mov_b32 v11, 1")
                    a("s_mov_b64 exec, 1")
                    a("buffer_store_dword v11, v10, s[56:59], 0 offen sc1"); vm.add("f")
                    a("s_mov_b64 exec, -1")
                if s == XRCV - 1 - env("PLX", 2):
                    xflag_addr(a, 10, 1)
                    a("v_mov_b32 v12, 1")
                    a("buffer_load_dword v11, v10, s[56:59], 0 offen sc1"); vm.add("p")
            if s == UNI: a(f"s_mul_i32 s40, s53, {LB*16384 if kind == 'x' else LB*64*2048}")
            emit(a, vm, st_last(spread(body, k4_half(s+4, 1) if s < HH else k4_items(s+4, kind if s >= UNI else None), env("FR4", 100))) if dma else body, s+4)
            w = vm.cnt(s+2) if s + 2 in vm.q else 63
            if s == SIG_B - 1: w = min(w, vm.cnt("st0"))
            if w < 63: a(f"s_waitcnt vmcnt({w})")
            if helper and s in (POLL_A1, POLL_B, XRCV - 1): flag_poll_finish(a, 56, v=10, first=vm.cnt("p"))
            a("s_barrier")
            if helper: stampc(a, "k4", s+1 - env("K4O", 0))
        if helper:
            sp4 = SPF4(a)
            for s in range(NP4 - 1 if STAMPC == "k4" else XRCV): pslice(s, 'w')
            stamp(a, 12)
            stamp_flush(a)
            a(f"s_branch {Ld}")
        else:
            for s in range(UNI): pslice(s, None)
            LW = a.label("LW4")
            a("s_cmp_eq_u32 s51, 2")
            a(f"s_cbranch_scc1 {LW}")
            q0 = list(vm.q)
            for kind in ('x', 'w'):
                vm.q = list(q0)
                if kind == 'w': a(f"{LW}:")
                for s in range(UNI, NP4 - 2): pslice(s, kind)
                if STAMP:
                    stamp(a, 12)
                    stamp_flush(a)
                a(f"s_branch {Ld}")


NXS = 32 // MX
class XPF:
    G = NXS // 2
    def __init__(self, a, off, mul, sd=68, v=23):
        self.a = a; self.off = off; self.mul = mul; self.sd = sd; self.v = v
    def setup(self):
        a = self.a; v = self.v
        per = 128 // NXS
        a(f"s_mul_i32 s43, s34, {self.mul}")
        srd(a, self.sd, 32, self.mul, add_lo=43, add_imm=self.off)
        a(f"v_and_b32 v{v}, {per-1}, v1")
        a(f"s_mul_i32 s43, s49, {per}")
        a(f"v_add_u32 v{v}, s43, v{v}")
        a(f"v_lshlrev_b32 v{v}, 7, v{v}")
        a(f"v_lshrrev_b32 v19, {per.bit_length()-1}, v1")
        a(f"v_lshl_add_u32 v{v}, v19, 14, v{v}")
    def issue(self, st):
        a = self.a
        a(f"s_mov_b32 s43, {st*16384}")
        a(f"buffer_load_dword v30, v{self.v}, s[{self.sd}:{self.sd+3}], s43 offen sc1")


class K3PF:
    def __init__(self, a, part): self.a = a; self.part = part
    def setup(self):
        a = self.a
        if self.part == 0: a("s_lshl_b32 s43, s35, 8")
        else:
            a("s_mul_i32 s43, s49, 192")
            a("s_and_b32 s43, s43, 0xffffff80")
            a("s_add_u32 s43, s43, 4096")
        a("s_sub_u32 s44, 7340032, s43")
        for d, b in ((88, 4), (92, 6)):
            a(f"s_add_u32 s{d}, s{b}, s43")
            a(f"s_addc_u32 s{d+1}, s{b+1}, 0")
            a(f"s_mov_b32 s{d+2}, s44")
            a(f"s_mov_b32 s{d+3}, 0x20000")
        per = 64 // MX
        a("v_lshrrev_b32 v31, 1, v1")
        a(f"v_min_u32 v31, {min(per, 32)-1}, v31")
        a(f"s_mul_i32 s43, s48, {per}")
        a("v_add_u32 v31, s43, v31")
        a("v_mul_u32_u24 v31, 7168, v31")
        a("v_and_b32 v19, 1, v1")
        a("v_lshl_add_u32 v31, v19, 7, v31")
    def issue(self, st):
        a = self.a
        a(f"s_mov_b32 s43, {st*64*7168}")
        a("buffer_load_dword v30, v31, s[88:91], s43 offen")
        a("buffer_load_dword v30, v31, s[92:95], s43 offen")


class SPF3:
    def __init__(self, a): self.a = a
    def setup(self, part):
        a = self.a
        for d, b in ((88, 4), (92, 6)): srd(a, d, b, 7340032)
        a("s_lshr_b32 s43, s35, 3")
        a("v_and_b32 v19, 1, v1")
        a("v_bfe_u32 v23, v1, 2, 3")
        if part == 0:
            a("s_lshl_b32 s44, s43, 3")
            a("s_add_u32 s44, s44, 1")
            a("v_lshl_add_u32 v23, v19, 2, v23")
            a("v_add_u32 v23, s44, v23")
            a("s_lshl_b32 s43, s43, 11")
            a("s_add_u32 s43, s43, 384")
            a("s_movk_i32 s44, 1024")
        elif NBM:
            a("s_lshl_b32 s44, s43, 1")
            a("s_add_u32 s44, s44, 6")
            a("v_add_u32 v23, s44, v23")
            a("s_lshl_b32 s44, s43, 1")
            a("s_add_u32 s44, s44, 1")
            a("v_mad_u32_u24 v23, v19, s44, v23")
            a("s_lshl_b32 s44, s43, 10")
            a("s_lshl_b32 s43, s43, 11")
            a(f"s_sub_u32 s43, {51*128}, s43")
        else:
            a("s_mul_i32 s44, s43, 10")
            a("s_add_u32 s44, s44, 2")
            a("v_add_u32 v23, s44, v23")
            a("s_lshl_b32 s44, s43, 2")
            a("s_sub_u32 s44, 5, s44")
            a("v_mad_u32_u24 v23, v19, s44, v23")
            a("s_lshl_b32 s44, s43, 10")
            a("s_xor_b32 s44, s44, 1024")
            a("s_lshl_b32 s43, s43, 11")
            a(f"s_add_u32 s43, s43, {35*128}")
        a("s_lshr_b32 s45, s2, 3")
        a("s_mul_i32 s45, s45, 14336")
        a("s_add_u32 s43, s43, s45")
        a("v_mul_lo_u32 v31, v19, s44")
        a("v_bfe_u32 v19, v1, 1, 1")
        a("v_mul_u32_u24 v19, 7168, v19")
        a("v_add3_u32 v31, v31, v19, s43")
    def issue(self, st):
        a = self.a
        a(f"v_add_u32 v19, {st}, v23")
        a("v_and_b32 v19, 15, v19")
        a(f"v_mul_u32_u24 v19, {64*7168}, v19")
        a("v_add_u32 v19, v19, v31")
        a("buffer_load_dword v30, v19, s[88:91], 0 offen")
        a("buffer_load_dword v30, v19, s[92:95], 0 offen")


class SPF4:
    def __init__(self, a): self.a = a
    def setup(self):
        a = self.a
        srd(a, 80, 60, 7340032)
        a("v_and_b32 v29, 31, v1")
        a("v_lshlrev_b32 v29, 11, v29")
        a("s_and_b32 s43, s35, 8")
        a("s_or_b32 s43, s43, 3")
        a("s_lshl_b32 s43, s43, 7")
        a("v_add_u32 v29, s43, v29")
    def issue(self, G):
        a = self.a
        a("s_lshr_b32 s44, s2, 3")
        if G == 3: a("s_and_b32 s44, s44, 15")
        a(f"s_lshl_b32 s44, s44, {17 if G < 2 else 16}")
        a(f"s_add_u32 s43, s44, {[0, 32, 2048, 3072][G]*2048}")
        a("buffer_load_dword v30, v29, s[80:83], s43 offen")
```

```python
WS_O   = 0
WS_H   = 4 << 20
WS_HH  = 8 << 20
WS_ST2 = 24 << 20
WS_ST1 = 25 << 20
WS_CS  = 26 << 20
WS_BYTES = 268435456

KA_X, KA_WQKV, KA_WO, KA_BX, KA_WG, KA_WU, KA_WD, KA_OUT, KA_DBG, KA_WS = [8*i for i in range(10)]


class Asm:
    def __init__(self):
        self.L = []
        self.uid = 0
    def __call__(self, s):
        for line in s.split("\n"):
            line = line.strip()
            if line:
                self.L.append(line)
    def label(self, base="L"):
        self.uid += 1
        return f"{base}_{self.uid}"
    def comment(self, s):
        self.L.append("; " + s)
    def text(self):
        return "\n".join(self.L) + "\n"


def kernel_header(a, name):
    a(f".globl {name}")
    a(".p2align 8")
    a(f".type {name},@function")
    a(f"{name}:")


def kernel_desc(name, vgpr, sgpr, accum):
    return f""".p2align 6
.amdhsa_kernel {name}
  .amdhsa_next_free_vgpr {vgpr}
  .amdhsa_next_free_sgpr {sgpr}
  .amdhsa_accum_offset {accum}
  .amdhsa_group_segment_fixed_size 0
  .amdhsa_kernarg_size 80
  .amdhsa_user_sgpr_count 2
  .amdhsa_user_sgpr_kernarg_segment_ptr 1
  .amdhsa_system_sgpr_workgroup_id_x 1
  .amdhsa_float_denorm_mode_32 3
  .amdhsa_float_denorm_mode_16_64 3
.end_amdhsa_kernel
"""


def srd(a, d, base, nbytes, add_lo=None, add_imm=0):
    if add_lo is not None:
        a(f"s_add_u32 s{d}, s{base}, s{add_lo}")
        a(f"s_addc_u32 s{d+1}, s{base+1}, 0")
        if add_imm:
            a(f"s_add_u32 s{d}, s{d}, {add_imm}")
            a(f"s_addc_u32 s{d+1}, s{d+1}, 0")
    elif add_imm:
        a(f"s_add_u32 s{d}, s{base}, {add_imm}")
        a(f"s_addc_u32 s{d+1}, s{base+1}, 0")
    else:
        a(f"s_mov_b32 s{d}, s{base}")
        a(f"s_mov_b32 s{d+1}, s{base+1}")
    a(f"s_mov_b32 s{d+2}, {nbytes}")
    a(f"s_mov_b32 s{d+3}, 0x20000")


def interleave(main, fill, start=0, every=1):
    out = []
    fi = 0
    for i, m in enumerate(main):
        out.append(m)
        if i >= start and (i - start) % every == 0 and fi < len(fill):
            out.append(fill[fi]); fi += 1
    out.extend(fill[fi:])
    return out


import os
STAMP = bool(os.environ.get("STAMP"))
REG = 49152
SLOT = 24576
STATS = 147456
CSF = 148480
DBG = 150528
LDS_TOTAL = 151552
WS_DBG = 28 << 20
HH_M = 448 * 2048

def stamp_init(a):
    if not STAMP: return
    a("s_lshl_b32 s96, s36, 7")
    a(f"s_add_u32 s96, s96, {DBG}")
    a("v_mov_b32 v26, s96")
STAMPC = os.environ.get("STAMPC", "")
def stampc(a, kind, idx):
    if kind != STAMPC or not 0 <= idx < 32: return
    a("s_memtime s[96:97]")
    a("s_waitcnt lgkmcnt(0)")
    a("v_mov_b32 v24, s96")
    a(f"ds_write_b32 v26, v24 offset:{4*idx}")
def stamp(a, idx):
    if not STAMP or STAMPC: return
    a("s_memtime s[96:97]")
    a("s_memrealtime s[98:99]")
    a("s_waitcnt lgkmcnt(0)")
    a("v_mov_b32 v24, s96")
    a("v_mov_b32 v25, s98")
    a(f"ds_write_b64 v26, v[24:25] offset:{8*idx}")
def stamp_flush(a):
    if not STAMP: return
    a("s_waitcnt lgkmcnt(0)")
    a("v_and_b32 v24, 31, v1")
    a("v_lshlrev_b32 v24, 2, v24")
    a("v_add_u32 v25, v26, v24")
    a("ds_read_b32 v25, v25")
    a(f"s_add_u32 s96, s32, {WS_DBG}")
    a("s_addc_u32 s97, s33, 0")
    a("s_mov_b32 s98, 262144")
    a("s_mov_b32 s99, 0x20000")
    a("s_lshl_b32 s94, s2, 3")
    a("s_add_u32 s94, s94, s36")
    a("s_lshl_b32 s94, s94, 7")
    a("s_waitcnt lgkmcnt(0)")
    a("buffer_store_dword v25, v24, s[96:99], s94 offen")

WS_FLG = 27 << 20
FLG = {"o": (0, 16), "h": (16, 16), "hha0": (32, 16), "hha1": (48, 16), "hhb": (64, 16), "cs": (96, 8), "ln": (80, 16)}

def flag_srd(a, d, ws_pair=32):
    srd(a, d, ws_pair, 256*128, add_imm=WS_FLG)

def flag_addr(a, kind, idx_sgpr, v):
    if idx_sgpr is None: a(f"v_mov_b32 v{v}, {FLG[kind][0] << 7}")
    else:
        a(f"s_add_u32 s43, s{idx_sgpr}, {FLG[kind][0]}")
        a("s_lshl_b32 s43, s43, 7")
        a(f"v_mov_b32 v{v}, s43")

def flag_signal(a, d, kind, idx_sgpr, v=5):
    flag_addr(a, kind, idx_sgpr, v)
    a(f"v_mov_b32 v{v+1}, 1")
    a("s_mov_b64 exec, 1")
    a(f"buffer_atomic_add v{v+1}, v{v}, s[{d}:{d+3}], 0 offen sc1")
    a("s_mov_b64 exec, -1")

def flag_poll_issue(a, d, kind, idx_sgpr, v=8):
    flag_addr(a, kind, idx_sgpr, v)
    a(f"v_mov_b32 v{v+2}, {FLG[kind][1]}")
    a(f"buffer_load_dword v{v+1}, v{v}, s[{d}:{d+3}], 0 offen sc1")

def flag_poll_finish(a, d, v=8, first=0):
    Lp = a.label("Lpoll"); Lo = a.label("Lpok"); Lf = a.label("Lpf")
    a("s_mov_b32 s41, 0x10000")
    if first:
        a(f"s_waitcnt vmcnt({first})")
        a(f"s_branch {Lf}")
    a(f"{Lp}:")
    a("s_waitcnt vmcnt(0)")
    a(f"{Lf}:")
    a(f"v_cmp_ne_u32 vcc, v{v+2}, v{v+1}")
    a("s_nop 4")
    a(f"s_cbranch_vccz {Lo}")
    a(f"buffer_load_dword v{v+1}, v{v}, s[{d}:{d+3}], 0 offen sc1")
    a("s_sub_u32 s41, s41, 1")
    a("s_cmp_lg_u32 s41, 0")
    a(f"s_cbranch_scc1 {Lp}")
    a("s_waitcnt vmcnt(0)")
    a(f"{Lo}:")

def flag_poll(a, d, kind, idx_sgpr, v=8):
    NP = int(os.environ.get("NPOLL", "1"))
    if NP <= 1:
        flag_poll_issue(a, d, kind, idx_sgpr, v)
        flag_poll_finish(a, d, v)
        return
    flag_addr(a, kind, idx_sgpr, v)
    a(f"v_mov_b32 v{v+1}, {FLG[kind][1]}")
    Lp = a.label("Lpoll"); Lo = a.label("Lpok")
    a("s_mov_b32 s41, 0x8000")
    for q in range(NP - 1):
        a(f"buffer_load_dword v{v+2+q}, v{v}, s[{d}:{d+3}], 0 offen sc1")
        a(f"s_sleep {int(os.environ.get('PSLEEP', '3'))}")
    a(f"{Lp}:")
    for q in range(NP):
        a(f"buffer_load_dword v{v+2+(q+NP-1) % NP}, v{v}, s[{d}:{d+3}], 0 offen sc1")
        a(f"s_waitcnt vmcnt({NP-1})")
        a(f"v_cmp_ne_u32 vcc, v{v+1}, v{v+2+q}")
        a("s_nop 4")
        a(f"s_cbranch_vccz {Lo}")
    a("s_sub_u32 s41, s41, 1")
    a("s_cmp_lg_u32 s41, 0")
    a(f"s_cbranch_scc1 {Lp}")
    a(f"{Lo}:")

MX = int(os.environ.get("MX", "4"))
def mapping(a):
    lg = MX.bit_length() - 1
    a("s_and_b32 s3, s2, 7")
    a("s_lshr_b32 s42, s2, 3")
    if os.environ.get("MAPSWAP"):
        a(f"s_lshr_b32 s48, s42, {5-lg}")
        a(f"s_and_b32 s49, s42, {32//MX-1}")
    else:
        a(f"s_and_b32 s48, s42, {MX-1}")
        a(f"s_lshr_b32 s49, s42, {lg}")
    a(f"s_and_b32 s34, s3, {16//MX - 1}")
    a(f"s_lshl_b32 s34, s34, {lg}")
    a("s_add_u32 s34, s34, s48")
    a(f"s_lshr_b32 s35, s3, {4-lg}")
    a(f"s_lshl_b32 s35, s35, {5-lg}")
    a("s_add_u32 s35, s35, s49")

def pf_w64(a, W_ka, K, groups, sd, v, vd, lane=1):
    per = 64 // MX
    lgp = per.bit_length() - 1
    a(f"s_load_dwordx2 s[{sd+4}:{sd+5}], s[0:1], {W_ka}")
    a("s_lshl_b32 s43, s35, 7")
    a(f"s_lshl_b32 s44, s48, {lgp}")
    a(f"v_and_b32 v{v}, {per-1}, v{lane}")
    a(f"v_add_u32 v{v}, s44, v{v}")
    a(f"v_lshrrev_b32 v19, {lgp}, v{lane}")
    a(f"v_lshl_add_u32 v{v}, v19, 6, v{v}")
    a(f"v_lshlrev_b32 v{v}, 11, v{v}")
    a("s_waitcnt lgkmcnt(0)")
    srd(a, sd, sd+4, K*2048 - 1920, add_lo=43)
    for g in groups: pf_w64_issue(a, g, sd, v, vd)
    return len(groups)
def pf_w64_issue(a, g, sd, v, vd):
    a(f"s_mov_b32 s43, {g*MX*131072}")
    a(f"buffer_load_dword v{vd}, v{v}, s[{sd}:{sd+3}], s43 offen")

CS_NF = 32
def cs_setup(a, Lno, sd, va, ptrs=False):
    a("s_lshr_b32 s43, s2, 5")
    a("s_cmp_eq_u32 s43, 3")
    a(f"s_cbranch_scc1 {Lno}")
    a("s_cmp_gt_u32 s43, 3")
    a("s_cselect_b32 s43, 32, 0")
    a("s_sub_u32 s43, s2, s43")
    a("s_lshr_b32 s43, s43, 1")
    a("s_and_b32 s44, s2, 1")
    if ptrs:
        a("s_cmp_eq_u32 s44, 0")
        a(f"s_cselect_b32 s{sd+4}, s4, s6")
        a(f"s_cselect_b32 s{sd+5}, s5, s7")
    else:
        a("s_lshl_b32 s45, s44, 3")
        a(f"s_add_u32 s45, s45, {KA_WG}")
        a(f"s_load_dwordx2 s[{sd+4}:{sd+5}], s[0:1], s45")
    a("s_mul_i32 s45, s43, 2341")
    a("s_lshr_b32 s45, s45, 16")
    a("s_mul_i32 s46, s45, 28")
    a("s_sub_u32 s46, s43, s46")
    a(f"v_lshrrev_b32 v{va}, 4, v1")
    a("s_lshl_b32 s43, s45, 8")
    a(f"v_add_u32 v{va}, s43, v{va}")
    a(f"v_mul_u32_u24 v{va}, 7168, v{va}")
    a(f"v_and_b32 v{va+1}, 15, v1")
    a(f"v_lshl_add_u32 v{va}, v{va+1}, 4, v{va}")
    a("s_lshl_b32 s43, s46, 8")
    a(f"v_add_u32 v{va}, s43, v{va}")
    if not ptrs: a("s_waitcnt lgkmcnt(0)")
    srd(a, sd, sd+4, 7340032)

def cs_issue(a, n, sd, va):
    i = n % CS_NF
    a(f"s_mov_b32 s43, {n*4*7168}")
    a(f"buffer_load_dwordx4 v[{128+4*i}:{128+4*i+3}], v{va}, s[{sd}:{sd+3}], s43 offen")


CSM = os.environ.get("CSM", "e")
SPE = int(os.environ.get("K1_SPE", "13" if CSM == "d" else "12"))
SPS = int(os.environ.get("K1_SPS", "4"))
SPR = 36 if CSM == "d" else 2*(SPE - SPS + 1)
def cs_sbase(a, Lno, d, wsg):
    a("s_lshr_b32 s43, s2, 5")
    a("s_cmp_eq_u32 s43, 3")
    a(f"s_cbranch_scc1 {Lno}")
    a("s_cmp_gt_u32 s43, 3")
    a("s_cselect_b32 s43, 32, 0")
    a("s_sub_u32 s43, s2, s43")
    a("s_lshr_b32 s43, s43, 1")
    a("s_and_b32 s44, s2, 1")
    a("s_lshl_b32 s44, s44, 3")
    a(f"s_add_u32 s44, s44, {KA_WG}")
    a(f"s_load_dwordx2 s[{d}:{d+1}], s[0:1], s44")
    a("s_mul_i32 s45, s43, 2341")
    a("s_lshr_b32 s45, s45, 16")
    a("s_mul_i32 s46, s45, 28")
    a("s_sub_u32 s46, s43, s46")
    a("s_lshl_b32 s45, s45, 8")
    a(f"s_mul_i32 s44, s{wsg}, {SPR}")
    a("s_add_u32 s45, s45, s44")
    a(f"s_add_u32 s45, s45, {128 if CSM == 'd' else 256 - 4*SPR}")
    a("s_mul_i32 s45, s45, 7168")
    a("s_lshl_b32 s46, s46, 8")
    a("s_add_u32 s45, s45, s46")
    a("s_waitcnt lgkmcnt(0)")
    a(f"s_add_u32 s{d}, s{d}, s45")
    a(f"s_addc_u32 s{d+1}, s{d+1}, 0")

NPS = int(os.environ.get("K1_NPS", "2"))
def cs_spre(a, n, d0=64, nd=16):
    if not NPS: return
    for r in range(n):
        for q in range(4): a(f"s_load_dword s{d0 + (4*r+q) % nd}, s[80:81], {r*7168 + q*64}")
    a(f"s_add_u32 s80, s80, {n*7168}")
    a("s_addc_u32 s81, s81, 0")

WS_X = 32 << 20
XFLG = 128
def xflag_addr(a, v, flip):
    a("s_lshl_b32 s43, s34, 4")
    a("s_add_u32 s43, s43, s35")
    if flip: a("s_xor_b32 s43, s43, 1")
    a("s_and_b32 s44, s43, 1")
    a("s_lshl_b32 s44, s44, 2")
    a("s_lshr_b32 s43, s43, 1")
    a(f"s_add_u32 s43, s43, {XFLG}")
    a("s_lshl_b32 s43, s43, 7")
    a("s_add_u32 s43, s43, s44")
    a(f"v_mov_b32 v{v}, s43")


KNAME = [None, None]
def code_warm(a, sp=84, v=15, vd=31):
    L = a.label("Lpc")
    a(f"s_getpc_b64 s[{sp}:{sp+1}]")
    a(f"{L}:")
    a(f"s_sub_u32 s{sp}, s{sp}, {L}-{KNAME[0]}")
    a(f"s_subb_u32 s{sp+1}, s{sp+1}, 0")
    a("s_lshr_b32 s43, s2, 3")
    a("s_mul_i32 s43, s43, 3840")
    a(f"v_min_u32 v{v}, 29, v1")
    a(f"v_lshl_add_u32 v{v}, v{v}, 7, s43")
    a(f"v_min_u32 v{v}, {KNAME[1]}-{KNAME[0]}, v{v}")
    a(f"global_load_dword v{vd}, v{v}, s[{sp}:{sp+1}]")
ICW = [int(x) for x in os.environ.get("ICW", "2,10,105,122").split(",") if x]
```

```python
import os, struct
from common import *

NS = 3
XB_ = 18432
STG1 = XB_ + 3*8192
RST = NS*STG1
CSUM = RST + 1152
LST = CSUM
LDS_K1 = CSUM + 768
QKV = 0
QP = 400

def fh(x): return "0x%08x" % struct.unpack("<I", struct.pack("<f", x))[0]

VGPR_K1 = 240
def phase_k1(a):
    strip = os.environ.get("K1_STRIP", "")
    nst = 16
    a(f"s_load_dwordx4 s[4:7], s[0:1], {KA_X}")
    a(f"s_load_dwordx2 s[32:33], s[0:1], {KA_WS}")
    a(f"s_load_dwordx2 s[80:81], s[0:1], {KA_WG}")
    mapping(a)
    a("v_lshrrev_b32 v12, 6, v0")
    a("v_and_b32 v1, 63, v0")
    a("v_readfirstlane_b32 s36, v12")
    a("s_nop 3")
    stamp_init(a)
    stamp(a, 0)
    a("s_lshl_b32 s44, s34, 18")
    a("s_lshl_b32 s45, s35, 14")
    a("s_add_u32 s45, s45, s44")
    a("s_lshl_b32 s50, s34, 7")
    a("s_sub_u32 s50, s50, 16")
    a("s_and_b32 s47, s36, 3")
    a("s_lshl_b32 s43, s34, 7")
    a("s_lshl_b32 s44, s35, 3")
    a("s_add_u32 s43, s43, s44")
    a("s_mov_b32 s63, s43")
    a("s_lshl_b32 s44, s47, 1")
    a("s_add_u32 s51, s43, s44")
    a("v_lshlrev_b32 v10, 4, v1")
    a("v_lshrrev_b32 v14, 3, v1")
    a("v_and_b32 v15, 7, v1")
    a("v_and_b32 v16, 2, v14")
    a("v_xor_b32 v16, v15, v16")
    a("v_lshlrev_b32 v16, 4, v16")
    a("v_mul_u32_u24 v17, 6144, v14")
    a("s_lshl_b32 s43, s47, 11")
    a("v_add3_u32 v2, v17, v16, s43")
    a("v_xor_b32 v3, 64, v2")
    a("v_lshrrev_b32 v16, 1, v14")
    a("v_xor_b32 v16, v15, v16")
    a("v_lshlrev_b32 v16, 4, v16")
    a("s_lshl_b32 s43, s47, 3")
    a("s_add_u32 s43, s43, s50")
    a("v_add_u32 v17, s43, v14")
    a("s_and_b32 s44, s47, 1")
    a("s_lshl_b32 s44, s44, 6")
    for i in range(6):
        a(f"v_add_u32 v18, {24*i}, v17")
        a("v_max_i32 v18, 0, v18")
        a("v_lshl_add_u32 v18, v18, 11, v16")
        a("v_xor_b32 v18, s44, v18")
        if i & 1: a(f"v_xor_b32 v{4+i}, 64, v18")
        else: a(f"v_mov_b32 v{4+i}, v18")
    a("s_lshl_b32 s39, s47, 10")
    a("s_lshl_b32 s40, s47, 13")
    a(f"s_add_u32 s40, s40, {XB_}")
    a("s_mov_b32 s37, 0")
    a("s_mov_b32 s38, 0")
    a("s_bfm_b64 s[60:61], 56, 8")
    a("s_cmp_eq_u32 s47, 0")
    a("s_cselect_b64 s[60:61], s[60:61], -1")
    a("s_mov_b32 s53, 0x3f803f80")
    a("v_and_b32 v12, 15, v1")
    a("v_lshrrev_b32 v13, 4, v1")
    a("s_lshl_b32 s43, s35, 7")
    a("s_waitcnt lgkmcnt(0)")
    srd(a, 8, 4, 2048*2048)
    srd(a, 12, 6, 1023*6144 + 4096 + 128, add_lo=43)
    srd(a, 16, 32, 16384, add_lo=45, add_imm=WS_O)
    srd(a, 20, 32, 2048*8, add_imm=WS_ST1)
    Lcons = a.label("Lcons"); Lpf = a.label("Lpf"); Latt = a.label("Latt")
    a("s_cmp_lt_u32 s36, 4")
    a(f"s_cbranch_scc1 {Lcons}")
    a("s_cmp_eq_u32 s36, 7")
    a(f"s_cbranch_scc1 {Lpf}")
    a(";@@CONS")
    a(f"{Lcons}:")

    def att_setup():
        a("s_and_b32 s43, s36, 1")
        a("s_lshr_b32 s44, s36, 1")
        a("s_and_b32 s44, s44, 1")
        a("s_lshr_b32 s45, s36, 2")
        a("v_lshlrev_b32 v14, 2, v13")
        a("v_sub_u32 v14, v12, v14")
        for r in range(4):
            a(f"v_subrev_u32 v15, {r}, v14")
            a(f"v_cmp_ge_u32 s[{52+2*r}:{53+2*r}], 7, v15")
            a(f"v_add_u32 v15, 16, v15")
            a(f"v_cmp_ge_u32 s[{84+2*r}:{85+2*r}], 7, v15")
        a("s_lshl_b32 s46, s45, 6")
        a("s_add_u32 s46, s46, s44")
        a("s_add_u32 s46, s46, 16")
        a("v_lshl_add_u32 v14, v12, 1, s46")
        a("s_lshl_b32 s47, s43, 6")
        a("v_lshl_add_u32 v15, v13, 4, s47")
        a(f"v_mul_u32_u24 v20, {QP}, v14")
        a("v_add_u32 v20, v20, v15")
        a("v_subrev_u32 v16, 32, v14")
        a("v_max_i32 v16, 0, v16")
        a(f"v_mul_u32_u24 v21, {QP}, v16")
        a("v_add_u32 v21, v21, v15")
        a("v_lshrrev_b32 v16, 2, v12")
        a("v_lshl_add_u32 v16, v13, 2, v16")
        a("v_lshl_add_u32 v16, v16, 1, s46")
        a("v_and_b32 v17, 3, v1")
        a("v_lshl_add_u32 v17, v17, 3, s47")
        a(f"v_mul_u32_u24 v22, {QP}, v16")
        a("v_add_u32 v22, v22, v17")
        a("v_subrev_u32 v16, 32, v16")
        a("v_max_i32 v16, 0, v16")
        a(f"v_mul_u32_u24 v23, {QP}, v16")
        a("v_add_u32 v23, v23, v17")
        a("s_lshl_b32 s60, s43, 13")
        a("s_lshl_b32 s61, s45, 10")
        a("s_add_u32 s60, s60, s61")
        a("s_lshl_b32 s61, s44, 8")
        a("s_add_u32 s60, s60, s61")
        a("v_lshlrev_b32 v27, 11, v13")
        a("v_lshl_add_u32 v27, v12, 4, v27")
        a("v_add_u32 v27, s60, v27")
        a("v_mov_b32 v28, 0xff800000")
        CS = (32 ** -0.5) * 1.4426950408889634
        a(f"s_mov_b32 s61, {fh(CS)}")
        a("s_nop 2")
        a("s_or_b32 s62, s34, s45")
        a("s_cmp_lg_u32 s62, 0")
        for r in range(4): a(f"s_cselect_b64 s[{64+2*r}:{65+2*r}], s[{84+2*r}:{85+2*r}], 0")

    if int(os.environ.get("K1_SPF", "4")) & 4:
        Lsp = a.label("Lsp")
        a("s_cmp_ge_u32 s36, 2")
        a(f"s_cbranch_scc1 {Lsp}")
        srd(a, 84, 6, 6291456)
        a("s_and_b32 s43, s35, 8")
        a("s_or_b32 s43, s43, 3")
        a("s_lshl_b32 s43, s43, 7")
        a("s_lshr_b32 s44, s2, 3")
        a("s_mul_i32 s44, s44, %d" % (32*6144))
        a("s_add_u32 s43, s43, s44")
        a("s_lshl_b32 s44, s36, 6")
        a("v_add_u32 v15, s44, v1")
        a("v_min_u32 v15, 95, v15")
        a("v_mul_u32_u24 v16, 21846, v15")
        a("v_lshrrev_b32 v16, 16, v16")
        a("v_mul_u32_u24 v17, 3, v16")
        a("v_sub_u32 v15, v15, v17")
        a("v_mul_u32_u24 v16, 6144, v16")
        a("v_lshl_add_u32 v15, v15, 11, v16")
        a("buffer_load_dword v31, v15, s[84:87], s43 offen")
        a(f"{Lsp}:")
    a("v_lshrrev_b32 v16, 1, v12")
    a("v_xor_b32 v15, v13, v16")
    a("v_lshlrev_b32 v15, 4, v15")
    a("v_lshl_add_u32 v2, v12, 7, v15")
    a("v_xor_b32 v3, 64, v2")
    a(f"v_add_u32 v4, {2*STG1}, v2")
    a(f"v_add_u32 v5, {2*STG1}, v3")
    a("v_lshrrev_b32 v15, 2, v12")
    a("v_and_b32 v16, 3, v1")
    a("v_lshl_add_u32 v19, v13, 3, v15")
    a("v_lshlrev_b32 v19, 7, v19")
    a("v_and_b32 v15, 2, v15")
    a("v_and_b32 v17, 1, v13")
    a("v_lshl_add_u32 v15, v17, 2, v15")
    a("v_lshrrev_b32 v17, 1, v16")
    a("s_lshl_b32 s43, s36, 1")
    a("v_add_u32 v17, s43, v17")
    a("v_xor_b32 v15, v15, v17")
    a("v_lshl_add_u32 v19, v15, 4, v19")
    a("v_and_b32 v16, 1, v16")
    a("v_lshl_add_u32 v19, v16, 3, v19")
    for sl in range(3):
        a(f"v_add_u32 v{6+sl}, {XB_ + sl*STG1}, v19")
    ACC = 128
    def accreg(seg, mt):
        return ACC + 36*seg + 4*mt
    for i in range(108): a(f"v_mov_b32 v{ACC+i}, 0")
    SET = [32, 80]
    def reads(s, kk, base):
        sl = s % NS
        xb = (2 + kk) if sl < 2 else (4 + kk)
        xo = (sl % 2)*STG1 if sl < 2 else 0
        def xr(mt): return f"ds_read_b128 v[{base+4*mt}:{base+4*mt+3}], v{xb} offset:{xo + mt*2048}"
        def wr(sg, h): return f"ds_read_b64_tr_b16 v[{base+36+4*sg+2*h}:{base+36+4*sg+2*h+1}], v{6+sl} offset:{sg*8192 + kk*4096 + h*512}"
        return [xr(0), wr(1,0), wr(1,1), wr(2,0), wr(2,1), wr(0,0), wr(0,1)] + [xr(m) for m in range(1, 9)]
    def mfmas(base):
        r = []
        for mt in range(9):
            for sg in (1, 2, 0):
                acc = accreg(sg, mt)
                r.append(f"v_mfma_f32_16x16x32_bf16 v[{acc}:{acc+3}], v[{base+36+4*sg}:{base+36+4*sg+3}], v[{base+4*mt}:{base+4*mt+3}], v[{acc}:{acc+3}]")
        return r
    def emit(seq):
        for i in seq:
            if "m" in strip and i.startswith("v_mfma"): continue
            if "r" in strip and i.startswith("ds_read"): continue
            a(i)
    att_setup()
    a(f"v_lshlrev_b32 v9, 3, v12")
    a(f"v_add_u32 v9, {RST}, v9")
    a(f"v_mul_u32_u24 v14, {QP}, v12")
    a("v_lshl_add_u32 v14, v13, 3, v14")
    a("s_lshl_b32 s43, s36, 5")
    a("v_add_u32 v14, s43, v14")
    a("s_barrier")
    stamp(a, 1)
    for i in reads(0, 0, SET[0]): a(i)
    def ln_group(mt, sg, pk):
        acc = accreg(sg, mt); r_ = []
        if pk:
            for r in (0, 2):
                r_.append(f"v_pk_fma_f32 v[{acc+r}:{acc+r+1}], v[{32+2*mt}:{33+2*mt}], v[{52+4*sg+r}:{53+4*sg+r}], v[{acc+r}:{acc+r+1}] op_sel_hi:[0,1,1] neg_lo:[1,0,0] neg_hi:[1,0,0]")
            for r in (0, 2):
                r_.append(f"v_pk_mul_f32 v[{acc+r}:{acc+r+1}], v[{32+2*mt}:{33+2*mt}], v[{acc+r}:{acc+r+1}] op_sel:[1,0] op_sel_hi:[1,1]")
        else:
            for r in range(4): r_.append(f"v_fma_f32 v{acc+r}, -v{32+2*mt}, v{52+4*sg+r}, v{acc+r}")
            for r in range(4): r_.append(f"v_mul_f32 v{acc+r}, v{33+2*mt}, v{acc+r}")
        r_.append(f"v_cvt_pk_bf16_f32 v{acc}, v{acc}, v{acc+1}")
        r_.append(f"v_cvt_pk_bf16_f32 v{acc+1}, v{acc+2}, v{acc+3}")
        r_.append(f"ds_write_b64 v14, v[{acc}:{acc+1}] offset:{QKV + mt*16*QP + sg*128}")
        return r_
    GROUPS = [(mt, sg) for mt in range(9) for sg in ((1, 2) if mt == 0 else (0, 1, 2))]
    NEARLY = int(os.environ.get("K1_LNE", "3"))
    bc = [f"v_mov_b32_dpp v{52+4*sg+r}, v{accreg(sg,0)+r} row_newbcast:0 row_mask:0xf bank_mask:0xf" for sg in range(3) for r in range(4)]
    def cstage(s, last):
        a("s_waitcnt lgkmcnt(0)")
        emit(interleave(mfmas(SET[0]), reads(s, 1, SET[1]), 0, 1))
        a("s_waitcnt lgkmcnt(0)")
        a("s_barrier")
        if not last:
            emit(interleave(mfmas(SET[1]), reads(s+1, 0, SET[0]), 0, 1))
            return
        m = mfmas(SET[1])
        emit(interleave(m[:9], [f"ds_read_b64 v[{32+2*mt}:{33+2*mt}], v9 offset:{mt*128}" for mt in range(9)]))
        fill = bc + ["s_waitcnt lgkmcnt(0)"] + sum((ln_group(mt, sg, False) for mt, sg in GROUPS[:NEARLY]), [])
        for i, x in enumerate(m[9:]):
            a(x)
            for y in fill[2*i:2*i+2]: a(y)
        for y in fill[2*len(m[9:]):]: a(y)
    nl = (nst-1)//NS
    a(f"s_mov_b32 s41, {nl}")
    Ll = a.label("Lcl")
    a(f"{Ll}:")
    for s in range(NS): cstage(s, False)
    a("s_sub_u32 s41, s41, 1")
    a("s_cmp_lg_u32 s41, 0")
    a(f"s_cbranch_scc1 {Ll}")
    for s in range(nl*NS, nst): cstage(s, s == nst-1)
    stamp(a, 2)
    for mt, sg in GROUPS[NEARLY:]:
        for i in ln_group(mt, sg, True): a(i)
    a("s_lshl_b32 s43, s36, 5")
    a("v_lshl_add_u32 v15, v12, 1, s43")
    a("v_lshlrev_b32 v15, 11, v15")
    a("v_and_b32 v16, 1, v13")
    a("v_lshl_add_u32 v15, v16, 5, v15")
    a("v_lshrrev_b32 v16, 1, v13")
    a("v_lshl_add_u32 v15, v16, 4, v15")
    a("s_lshl_b32 s43, s34, 18")
    a("s_lshl_b32 s44, s35, 7")
    a("s_add_u32 s43, s43, s44")
    a("s_waitcnt lgkmcnt(0)")
    for tl in range(2):
        for kb in range(2):
            d = 160 + (tl*2+kb)*4
            a(f"buffer_load_dwordx4 v[{d}:{d+3}], v15, s[8:11], s43 offen offset:{tl*2048 + kb*64}")
    a("s_waitcnt lgkmcnt(0)")
    a(f"s_branch {Latt}")

    a(";@@PROD")
    def rows_load(srow, dst=96, add=0):
        a(f"s_lshl_b32 s43, s{srow}, 11")
        if add: a(f"s_add_u32 s43, s43, {add*2048}")
        for q in range(4):
            a(f"buffer_load_dwordx4 v[{dst+4*q}:{dst+4*q+3}], v10, s[8:11], s43 offen offset:{q*1024}")
    def rows_stats_l(srcb=96):
        o = []
        R = [116, 118, 120, 122]
        for r in range(2):
            sa, qa = 116+4*r, 118+4*r
            for i in range(8):
                src = srcb + 8*r + i
                t = 124 + 2*(i & 1)
                o.append(f"v_lshlrev_b32 v{t if i else sa}, 16, v{src}")
                o.append(f"v_and_b32 v{t+1 if i else sa+1}, 0xffff0000, v{src}")
                if i == 0:
                    o.append(f"v_mul_f32 v{qa}, v{sa}, v{sa}"); o.append(f"v_mul_f32 v{qa+1}, v{sa+1}, v{sa+1}")
                else:
                    o.append(f"v_add_f32 v{sa}, v{sa}, v{t}"); o.append(f"v_add_f32 v{sa+1}, v{sa+1}, v{t+1}")
                    o.append(f"v_fmac_f32 v{qa}, v{t}, v{t}"); o.append(f"v_fmac_f32 v{qa+1}, v{t+1}, v{t+1}")
        for x in R: o.append(f"v_add_f32 v{x}, v{x}, v{x+1}")
        for sh in (8, 4, 2, 1):
            for x in R: o.append(f"v_add_f32_dpp v{x}, v{x}, v{x} row_ror:{sh} row_mask:0xf bank_mask:0xf")
        for sw in ("16", "32"):
            for x in R: o.append(f"v_mov_b32 v{x+1}, v{x}")
            o.append("s_nop 0")
            for x in R: o.append(f"v_permlane{sw}_swap_b32 v{x}, v{x+1}")
            for x in R: o.append(f"v_add_f32 v{x}, v{x}, v{x+1}")
        for r in range(2):
            sv, qv, d = 116+4*r, 118+4*r, 112+2*r
            o.append(f"v_mul_f32 v{d}, 0x3a800000, v{sv}")
            o.append(f"v_mul_f32 v{d+1}, 0x3a800000, v{qv}")
            o.append(f"v_fma_f32 v{d+1}, -v{d}, v{d}, v{d+1}")
            o.append(f"v_max_f32 v{d+1}, 0, v{d+1}")
            o.append(f"v_add_f32 v{d+1}, 0x3727c5ac, v{d+1}")
            o.append(f"v_rsq_f32 v{d+1}, v{d+1}")
        o.append("s_nop 0")
        return o
    def rows_stats(part=None):
        l = rows_stats_l()
        for i in (l if part is None else l[len(l)*part//3:len(l)*(part+1)//3]): a(i)
    def rows_local():
        a("s_lshl_b32 s43, s47, 4")
        a(f"s_add_u32 s43, s43, {LST}")
        a("v_mov_b32 v11, s43")
        a("ds_write_b128 v11, v[112:115]")
        a("s_waitcnt lgkmcnt(0)")
    HYB = os.environ.get("K1_PF", "mall1") == "hyb"
    def wpre(s):
        if not HYB or s > 4: return
        if s == 0:
            a("s_mul_i32 s43, s2, 10752")
            a("s_mul_i32 s44, s47, 2688")
            a("s_add_u32 s43, s43, s44")
            a(f"s_add_u32 s43, s43, {576*6144}")
            a("s_add_u32 s82, s6, s43")
            a("s_addc_u32 s83, s7, 0")
        lo = [0, 10, 18, 26, 34, 42]
        for q in range(lo[s], lo[s+1]): a(f"s_load_dword s{64 + q % 16}, s[82:83], {64*q}")
    def spre_setup():
        if not NPS: return
        Lj = a.label("Lsj")
        cs_sbase(a, Lj, 80, 47)
        a(f"{Lj}:")
    def spre(n=2): cs_spre(a, n)
    def dma(slot, lo=0, hi=14):
        xs, ws = [], []
        for i in range(6):
            g = [f"s_add_u32 m0, s39, {slot*STG1 + i*3072}", "s_mov_b64 exec, s[60:61]" if i == 0 else "s_nop 0",
                 f"buffer_load_dwordx4 v{4+i}, s[8:11], s37 offen lds"]
            if i == 0: g.append("s_mov_b64 exec, -1")
            xs.append(g)
        for j in range(8):
            ws.append([f"s_add_u32 m0, s40, {slot*STG1 + j*1024}", f"s_add_u32 s43, s38, {8*j*6144}",
                       f"buffer_load_dwordx4 v{2+(j&1)}, s[12:15], s43 offen lds"])
        gs = interleave(ws, xs) if int(os.environ.get("K1_ILV", "0")) else xs + ws
        for g in gs[lo:hi]:
            for i in g: a(i)
        if hi == 14:
            a("s_add_u32 s37, s37, 128")
            a(f"s_add_u32 s38, s38, {64*6144}")
    stamp(a, 1)
    E0 = int(os.environ.get("K1_E0", "14"))
    dma(0); dma(1, 0, E0)
    stamp(a, 2)
    a(f"s_waitcnt vmcnt({E0})")
    a("s_barrier")
    if E0 < 14: dma(1, E0, 14)
    dma(2)
    RW = int(os.environ.get("K1_RW", "0"))
    POI = int(os.environ.get("POI", "13")) if int(os.environ.get("SPEC3", "0")) else -9
    def pstage(s, do_dma, vm, extra=None):
        if do_dma: dma((s+2) % NS)
        if s == RW: rows_load(51)
        if s in (RW+2, RW+3, RW+4): rows_stats(s - RW - 2)
        if s == RW+4: rows_local()
        if s == 0: spre_setup()
        if s == POI:
            srd(a, 24, 16, 16384, add_imm=WS_H - WS_O)
            for i in range(4): a(f"v_mov_b32 v{128+i}, -1")
            a("s_mul_i32 s43, s47, 5120")
            for q in range(6):
                if q == 4: a("s_add_u32 s43, s43, 4096")
                a(f"buffer_store_dwordx4 v[128:131], v10, s[24:27], s43 offen offset:{(q & 3)*1024} sc1")
        if vm is not None and s in (POI, POI + 1): vm += 6
        wpre(s)
        if max(SPS, RW+4) <= s <= SPE: spre()
        if vm is not None: a(f"s_waitcnt vmcnt({vm + (4 if s == RW else 0)})")
        a("s_barrier")
    for s in range(14): pstage(s, s > 0, 14)
    pstage(14, False, 0)
    pstage(15, False, None)
    a("s_waitcnt lgkmcnt(0)")
    att_setup()
    a(f"s_branch {Latt}")

    a(";@@W7")
    a(f"{Lpf}:")
    PFM = os.environ.get("K1_PF", "mall1")
    PF = PFM == "l2"
    a(f"s_load_dwordx2 s[26:27], s[0:1], {KA_DBG}")
    Lz = a.label("Lz")
    a("s_or_b32 s43, s34, s35")
    a("s_cmp_lg_u32 s43, 0")
    a(f"s_cbranch_scc1 {Lz}")
    flag_srd(a, 84)
    a("v_lshlrev_b32 v14, 7, v1")
    a("v_mov_b32 v36, 0")
    a("v_mov_b32 v37, 0")
    for q in range(4):
        a(f"s_mov_b32 s43, {q*8192}")
        a("buffer_store_dwordx2 v[36:37], v14, s[84:87], s43 offen sc1")
    a(f"{Lz}:")
    if RW == 0: rows_load(51)
    a("v_min_u32 v14, 23, v1")
    a("v_lshrrev_b32 v15, 3, v14")
    a(f"v_mul_u32_u24 v15, {STG1}, v15")
    a("v_and_b32 v14, 7, v14")
    a("v_lshl_add_u32 v15, v14, 4, v15")
    for i in range(4): a(f"v_mov_b32 v{32+i}, 0x3f803f80")
    a("ds_write_b128 v15, v[32:35]")
    PER = 64 // MX
    NPI = (3*PER + 63) // 64
    for q in range(NPI):
        a(f"v_add_u32 v14, {64*q}, v1")
        a(f"v_min_u32 v14, {3*PER-1}, v14")
        a("v_mul_u32_u24 v15, 21846, v14")
        a("v_lshrrev_b32 v15, 16, v15")
        a("v_mul_u32_u24 v16, 3, v15")
        a("v_sub_u32 v16, v14, v16")
        a(f"s_mul_i32 s43, s48, {PER}")
        a("v_add_u32 v15, s43, v15")
        a("v_mul_u32_u24 v15, 6144, v15")
        a(f"v_lshl_add_u32 v{2+q}, v16, 11, v15")
    vm = []
    def wait_for(tag):
        idx = max(i for i, t in enumerate(vm) if t == tag)
        a(f"s_waitcnt vmcnt({len(vm) - 1 - idx})")
    def l2pf(st):
        if not PF or st >= nst: return
        a(f"s_mov_b32 s43, {st*64*6144}")
        for q in range(NPI):
            a(f"buffer_load_dword v31, v{2+q}, s[12:15], s43 offen"); vm.append("pf")
    a("s_waitcnt lgkmcnt(0)")
    srd(a, 56, 26, 256)
    a("v_lshlrev_b32 v14, 7, v1")
    vm.append("rows")
    def mallpf():
        srd(a, 84, 6, 6291456)
        a("s_mul_i32 s43, s2, 24576")
        for q in range(3):
            a(f"buffer_load_dword v31, v14, s[84:87], s43 offen"); vm.append("pf")
            if q < 2: a("s_add_u32 s43, s43, 8192")
    def slowpf():
        srd(a, 84, 6, 6291456)
        a("s_lshr_b32 s44, s2, 3")
        if SPF & 1:
            a("s_and_b32 s43, s35, 8")
            a("s_or_b32 s43, s43, 3")
            a("s_lshl_b32 s43, s43, 7")
            a("s_mul_i32 s45, s44, %d" % (32*6144))
            a("s_add_u32 s43, s43, s45")
            for q in range(2):
                a(f"v_add_u32 v15, {64*q}, v1")
                a("v_min_u32 v15, 95, v15")
                a("v_mul_u32_u24 v16, 21846, v15")
                a("v_lshrrev_b32 v16, 16, v16")
                a("v_mul_u32_u24 v17, 3, v16")
                a("v_sub_u32 v15, v15, v17")
                a("v_mul_u32_u24 v16, 6144, v16")
                a("v_lshl_add_u32 v15, v15, 11, v16")
                a("buffer_load_dword v31, v15, s[84:87], s43 offen"); vm.append("pf")
        if SPF & 2:
            a("s_xor_b32 s43, s63, 64")
            a("s_lshl_b32 s43, s43, 11")
            a("buffer_load_dword v31, v14, s[8:11], s43 offen"); vm.append("pf")
            a("s_add_u32 s43, s43, 8192")
            a("buffer_load_dword v31, v14, s[8:11], s43 offen"); vm.append("pf")
    SPF = int(os.environ.get("K1_SPF", "4"))
    SPAT = int(os.environ.get("K1_SPAT", "0"))
    if PFM == "mall0": mallpf()
    if SPAT < 0: slowpf()
    stampc(a, "k1", 0)
    a("s_barrier")
    def mallpf2():
        srd(a, 84, 6, 6291456)
        a("s_mul_i32 s43, s2, 9216")
        a(f"s_add_u32 s43, s43, {192*6144}")
        a("buffer_load_dword v31, v14, s[84:87], s43 offen"); vm.append("pf")
        a("v_min_u32 v15, 7, v1")
        a("v_lshlrev_b32 v15, 7, v15")
        a("s_add_u32 s43, s43, 8192")
        a("buffer_load_dword v31, v15, s[84:87], s43 offen"); vm.append("pf")
    if PFM == "hyb": mallpf2()
    MST = int(os.environ.get("K1_MST", "1"))
    if PFM == "mall1" and not MST: mallpf()
    stampc(a, "k1", 1)
    GS = int(os.environ.get("K1_GS", "10" if RW < 2 else "11"))
    SS = int(os.environ.get("K1_SS", str(7 + RW)))
    PFN = int(os.environ.get("K1_PFN", "4"))
    CS0 = int(os.environ.get("K1_CS0", "14")); WOP = int(os.environ.get("K1_WOP", "13")); WOM = os.environ.get("K1_WOM", "mall")
    Lgd = a.label("Lgd")
    nxt = [3]
    for s in range(nst):
        if PFM == "mall1" and MST and s in (0, MST):
            Lm = a.label("Lm")
            a("s_cmp_ge_u32 s2, 128")
            a(f"s_cbranch_scc{1 if s == 0 else 0} {Lm}")
            n0 = len(vm); mallpf(); del vm[n0:]
            a(f"{Lm}:")
        if s in ICW:
            code_warm(a, 88); vm.append("pf")
        if s == SPAT: slowpf()
        if s == 0: spre_setup()
        if s == RW and RW > 0:
            rows_load(51); vm.extend(["rows"]*4)
        if s == 2:
            Lz = a.label("Lz")
            a("s_or_b32 s43, s34, s35")
            a("s_cmp_lg_u32 s43, 0")
            a(f"s_cbranch_scc1 {Lz}")
            a("s_waitcnt vmcnt(0)")
            a("v_mov_b32 v5, 1")
            a("v_mov_b32 v6, 0")
            a("s_mov_b64 exec, 1")
            a("buffer_store_dword v5, v6, s[56:59], 0 offen sc1")
            a("s_mov_b64 exec, -1")
            a(f"{Lz}:")
        if s == RW + 2:
            wait_for("rows")
            rows_stats(0)
        if s == RW + 3: rows_stats(1)
        if s == RW + 4:
            rows_stats(2); rows_local()
        if s == RW + 5:
            a("v_lshlrev_b32 v5, 4, v1")
            a("v_and_b32 v5, 63, v5")
            a(f"v_add_u32 v6, {LST}, v5")
            a("ds_read_b128 v[112:115], v6")
            a("s_lshl_b32 s43, s63, 3")
            a("v_add_u32 v5, s43, v5")
            a("s_waitcnt lgkmcnt(0)")
            a("s_mov_b64 exec, 15")
            a(f"buffer_store_dwordx4 v[112:115], v5, s[20:23], 0 offen sc1"); vm.append("store")
            a("s_mov_b64 exec, -1")
        if s < SS - 2:
            for q in range(PFN):
                l2pf(nxt[0]); nxt[0] += 1
        if s == int(os.environ.get("K1_X11", "99")):
            a(f"s_andn2_b32 s43, s34, {MX-1}")
            a("s_lshl_b32 s43, s43, 7")
            a("s_lshr_b32 s44, s2, 3")
            a("s_mul_i32 s44, s44, 17")
            a("s_add_u32 s43, s43, s44")
            a("s_sub_u32 s43, s43, 16")
            a("v_min_u32 v15, 16, v1")
            a("v_add_u32 v15, s43, v15")
            a("v_max_i32 v15, 0, v15")
            a("v_lshlrev_b32 v15, 11, v15")
            a("buffer_load_dword v31, v15, s[8:11], 0 offen offset:1408"); vm.append("pf")
        if s == WOP:
            if WOM == "l2":
                n = pf_w64(a, KA_WO, 1024, list(range(16//MX)), 84, 29, 30); vm.extend(["pf"]*n)
            elif WOM == "mall":
                a(f"s_load_dwordx2 s[88:89], s[0:1], {KA_WO}")
                a("v_lshlrev_b32 v29, 7, v1")
                a("s_lshl_b32 s43, s2, 13")
                a("s_waitcnt lgkmcnt(0)")
                srd(a, 84, 88, 2097152)
                a("buffer_load_dword v30, v29, s[84:87], s43 offen"); vm.append("pf")
                if int(os.environ.get("K2_SPF", "1")):
                    a("v_and_b32 v29, 31, v1")
                    a("v_lshlrev_b32 v29, 11, v29")
                    a("s_and_b32 s43, s35, 8")
                    a("s_or_b32 s43, s43, 3")
                    a("s_lshl_b32 s43, s43, 7")
                    a("s_lshr_b32 s44, s2, 3")
                    a("s_lshl_b32 s44, s44, 16")
                    a("s_add_u32 s43, s43, s44")
                    a("buffer_load_dword v30, v29, s[84:87], s43 offen"); vm.append("pf")
        if s == SS - 2:
            a("v_mov_b32 v7, 0")
            a("v_mov_b32 v9, 1")
            a("buffer_load_dword v8, v7, s[56:59], 0 offen sc1"); vm.append("z")
        if s == SS:
            flag_poll_finish(a, 56, v=7)
            flag_srd(a, 56)
            flag_signal(a, 56, "ln", 34); vm.append("at")
        if s == GS:
            a("s_sub_u32 s44, s34, 1")
            a("s_max_i32 s44, s44, 0")
            a("v_mov_b32 v5, s44")
            a("v_mov_b32 v6, s34")
            a("v_cmp_eq_u32 vcc, 0, v1")
            a("s_nop 1")
            a("v_cndmask_b32 v5, v5, v6, vcc")
            a(f"v_add_u32 v5, {FLG['ln'][0]}, v5")
            a("v_lshlrev_b32 v5, 7, v5")
            a("buffer_load_dword v6, v5, s[56:59], 0 offen sc1"); vm.append("poll")
        if s == GS + 2:
            Lpoll = a.label("Lpoll"); Lok = a.label("Lok"); Lfb = a.label("Lfb")
            a("s_mov_b32 s41, 200")
            a("s_mov_b32 s62, 0")
            wait_for("poll")
            a(f"{Lpoll}:")
            a("v_cmp_ne_u32 vcc, 16, v6")
            a("s_nop 4")
            a(f"s_cbranch_vccz {Lok}")
            a("buffer_load_dword v6, v5, s[56:59], 0 offen sc1")
            a("s_waitcnt vmcnt(0)")
            a("s_sub_u32 s41, s41, 1")
            a("s_cmp_lg_u32 s41, 0")
            a(f"s_cbranch_scc1 {Lpoll}")
            a("s_mov_b32 s41, 0")
            a(f"{Lfb}:")
            a("s_add_u32 s62, s50, s41")
            a("s_max_i32 s62, s62, 0")
            rows_load(62)
            a("s_waitcnt vmcnt(0)")
            rows_stats()
            a("s_lshl_b32 s43, s41, 3")
            a(f"s_add_u32 s43, s43, {RST}")
            a("v_mov_b32 v5, s43")
            a("ds_write_b128 v5, v[112:115]")
            a("s_add_u32 s41, s41, 2")
            a("s_cmp_lt_u32 s41, 144")
            a(f"s_cbranch_scc1 {Lfb}")
            a("s_mov_b32 s62, 1")
            a(f"{Lok}:")
            for q in range(3):
                a(f"v_add_u32 v5, {64*q}, v1")
                a("v_min_u32 v5, 143, v5")
                a(f"v_lshlrev_b32 v{20+q}, 3, v5")
                a("v_add_u32 v5, s50, v5")
                a("v_max_i32 v5, 0, v5")
                a("v_lshlrev_b32 v5, 3, v5")
                a(f"buffer_load_dwordx2 v[{32+2*q}:{33+2*q}], v5, s[20:23], 0 offen sc1"); vm.append("gather")
        if s == GS + 4:
            wait_for("gather")
            a("s_cmp_eq_u32 s62, 1")
            a(f"s_cbranch_scc1 {Lgd}")
            for q in range(3):
                a(f"v_add_u32 v{20+q}, {RST}, v{20+q}")
                a(f"ds_write_b64 v{20+q}, v[{32+2*q}:{33+2*q}]")
            a(f"{Lgd}:")
            a("s_waitcnt lgkmcnt(0)")
        if s in (CS0, CS0+1):
            Lnj = a.label("Lnj")
            cs_setup(a, Lnj, 84, 28)
            for q in range(16*(s-CS0), 16*(s-CS0+1)): cs_issue(a, q, 84, 28)
            a(f"{Lnj}:")
        if STAMPC != "k1": wpre(s)
        if max(RW + 5, SPS) <= s <= (11 if CSM == "d" else SPE) and STAMPC != "k1": spre()
        a("s_barrier")
        stampc(a, "k1", s+2)
    stampc(a, "k1", 18)
    a("s_waitcnt lgkmcnt(0)")
    att_setup()

    a(f"{Latt}:")
    a("s_barrier")
    stampc(a, "k1", 19)
    stamp(a, 3)
    U = 32*QP
    for u in range(2):
        B = 32 + 48*u
        uo = u*U
        a(f"ds_read_b128 v[{B}:{B+3}], v20 offset:{QKV + uo}")
        a(f"ds_read_b128 v[{B+4}:{B+7}], v20 offset:{QKV + uo + 128}")
        if u == 0: a(f"ds_read_b128 v[{B+8}:{B+11}], v21 offset:{QKV + 128}")
        else: a(f"ds_read_b128 v[{B+8}:{B+11}], v20 offset:{QKV + 128}")
    for u in range(2):
        B = 32 + 48*u
        uo = u*U
        for dh in range(2):
            if u == 0: a(f"ds_read_b64_tr_b16 v[{B+12+4*dh}:{B+13+4*dh}], v23 offset:{QKV + 256 + dh*32}")
            else: a(f"ds_read_b64_tr_b16 v[{B+12+4*dh}:{B+13+4*dh}], v22 offset:{QKV + 256 + dh*32}")
            a(f"ds_read_b64_tr_b16 v[{B+14+4*dh}:{B+15+4*dh}], v22 offset:{QKV + uo + 256 + dh*32}")
    for u in range(2):
        B = 32 + 48*u
        a(f"s_waitcnt lgkmcnt({11 if u == 0 else 8})")
        a(f"v_mfma_f32_16x16x32_bf16 v[{B+20}:{B+23}], v[{B+8}:{B+11}], v[{B}:{B+3}], 0")
        a(f"v_mfma_f32_16x16x32_bf16 v[{B+24}:{B+27}], v[{B+4}:{B+7}], v[{B}:{B+3}], 0")
    a("s_nop 7")
    def soft(u):
        B = 32 + 48*u
        S = B + 20; M = B + 28; T = B + 29; P = B + 32
        r_ = []
        am = 64 if u == 0 else 84
        for r in range(4): r_.append(f"v_cndmask_b32 v{S+r}, v28, v{S+r}, s[{am+2*r}:{am+2*r+1}]")
        for r in range(4): r_.append(f"v_cndmask_b32 v{S+4+r}, v28, v{S+4+r}, s[{52+2*r}:{53+2*r}]")
        r_.append(f"v_max3_f32 v{M}, v{S}, v{S+1}, v{S+2}")
        r_.append(f"v_max3_f32 v{T}, v{S+3}, v{S+4}, v{S+5}")
        r_.append(f"v_max3_f32 v{M}, v{M}, v{S+6}, v{S+7}")
        r_.append(f"v_max_f32 v{M}, v{M}, v{T}")
        for sw in ("32", "16"):
            r_.append(f"v_mov_b32 v{T}, v{M}")
            r_.append("s_nop 0")
            r_.append(f"v_permlane{sw}_swap_b32 v{M}, v{T}")
            r_.append(f"v_max_f32 v{M}, v{M}, v{T}")
        r_.append(f"v_mul_f32 v{M}, s61, v{M}")
        for r in range(8): r_.append(f"v_fma_f32 v{S+r}, v{S+r}, s61, -v{M}")
        for r in range(8): r_.append(f"v_exp_f32 v{S+r}, v{S+r}")
        for q in range(4): r_.append(f"v_cvt_pk_bf16_f32 v{P+q}, v{S+2*q}, v{S+2*q+1}")
        return r_
    def zip2(x, y):
        for i, j in zip(x, y):
            a(i)
            if not (i == j and i.startswith("s_nop")): a(j)
    zip2(soft(0), soft(1))
    a("s_waitcnt lgkmcnt(0)")
    for u in range(2):
        B = 32 + 48*u
        for dh in range(2):
            a(f"v_mfma_f32_16x16x32_bf16 v[{B+36+4*dh}:{B+39+4*dh}], v[{B+12+4*dh}:{B+15+4*dh}], v[{B+32}:{B+35}], 0")
    a(f"s_load_dwordx4 s[4:7], s[0:1], {KA_WG}")
    a(f"s_load_dwordx2 s[28:29], s[0:1], {KA_WO}")
    a(f"s_load_dwordx4 s[60:63], s[0:1], {KA_WD}")
    def rsum(u):
        B = 32 + 48*u
        S = B + 20; M = B + 28; T = B + 29
        r_ = [f"v_add_f32 v{M}, v{S}, v{S+1}", f"v_add_f32 v{T}, v{S+2}, v{S+3}", f"v_add_f32 v{S+4}, v{S+4}, v{S+5}", f"v_add_f32 v{S+6}, v{S+6}, v{S+7}",
              f"v_add_f32 v{M}, v{M}, v{T}", f"v_add_f32 v{S+4}, v{S+4}, v{S+6}", f"v_add_f32 v{M}, v{M}, v{S+4}"]
        for sw in ("32", "16"):
            r_.append(f"v_mov_b32 v{T}, v{M}")
            r_.append("s_nop 0")
            r_.append(f"v_permlane{sw}_swap_b32 v{M}, v{T}")
            r_.append(f"v_add_f32 v{M}, v{M}, v{T}")
        r_.append(f"v_rcp_f32 v{M}, v{M}")
        return r_
    zip2(rsum(0), rsum(1))
    a("s_nop 0")
    for u in range(2):
        B = 32 + 48*u
        M = B + 28; O = B + 36
        for r in range(0, 8, 2): a(f"v_pk_mul_f32 v[{O+r}:{O+r+1}], v[{M}:{M+1}], v[{O+r}:{O+r+1}] op_sel_hi:[0,1]")
        for q in range(4): a(f"v_cvt_pk_bf16_f32 v{O+q}, v{O+2*q}, v{O+2*q+1}")
        a(f"buffer_store_dwordx4 v[{O}:{O+3}], v27, s[16:19], 0 offen offset:{512*u} sc1")
    stamp(a, 4)
    ic, ip, iw = a.L.index(";@@CONS"), a.L.index(";@@PROD"), a.L.index(";@@W7")
    a.L[ic:iw] = a.L[ip:iw] + a.L[ic:ip]
```

```python
import os, struct
from common import *

def fh(x): return "0x%08x" % struct.unpack("<I", struct.pack("<f", x))[0]
def env(k, d): return int(os.environ.get(k, str(d)))

C0_ = -2.0*0.7978845608028654*1.4426950408889634
C1_ = C0_*0.044715
NBM = env("NBM", 1)
XF = os.environ.get("XF", " sc1")
SET = [32, 80]
ACC = 128
NST4 = 56


class VM:
    def __init__(self, a): self.a = a; self.q = []
    def add(self, tag, n=1): self.q += [tag]*n
    def cnt(self, tag):
        idx = max(i for i, t in enumerate(self.q) if t == tag)
        return len(self.q) - 1 - idx
    def wait(self, tag):
        return f"s_waitcnt vmcnt({min(63, self.cnt(tag))})"
    def reset(self): self.q = []


def spread(main, items, frac=100):
    if frac < 100:
        c = len(main)*frac//100
        return spread(main[:c], items) + main[c:]
    out = []
    n, k = len(main), len(items)
    j = 0
    for i in range(n + 1):
        while j < k and j*n <= i*k:
            out += items[j]; j += 1
        if i < n: out.append(main[i])
    while j < k: out += items[j]; j += 1
    return out


def lane_ig(a):
    a("v_and_b32 v17, 15, v1")
    a("v_lshrrev_b32 v18, 4, v1")


def g2_addrs():
    r = []
    r.append("v_lshlrev_b32 v19, 11, v18")
    r.append("v_lshl_add_u32 v19, v17, 4, v19")
    r.append("s_lshl_b32 s43, s36, 9")
    r.append("v_add_u32 v2, s43, v19")
    r.append(f"v_add_u32 v3, {REG}, v2")
    r.append(f"v_add_u32 v4, {2*REG}, v2")
    r.append("v_lshrrev_b32 v19, 2, v17")
    r.append("v_lshl_add_u32 v20, v18, 2, v19")
    r.append("v_bfe_u32 v21, v20, 1, 2")
    r.append("v_lshlrev_b32 v20, 7, v20")
    r.append("v_lshl_add_u32 v20, v21, 5, v20")
    r.append("v_and_b32 v19, 3, v1")
    r.append("v_lshl_add_u32 v20, v19, 3, v20")
    r.append("v_add_u32 v5, 16384, v20")
    for t in range(1, 4): r.append(f"v_xor_b32 v{5+t}, {32*t}, v5")
    for rg in range(1, 3):
        for t in range(4): r.append(f"v_add_u32 v{5+4*rg+t}, {rg*REG}, v{5+t}")
    return r

def g2_reads(slot, base):
    rg, so = slot >> 1, (slot & 1)*SLOT
    def xr(kb, tl): return f"ds_read_b128 v[{base+(kb*2+tl)*4}:{base+(kb*2+tl)*4+3}], v{2+rg} offset:{so + kb*8192 + tl*256}"
    def wr(kb, t, h):
        d = base + 16 + (kb*4+t)*4 + 2*h
        return f"ds_read_b64_tr_b16 v[{d}:{d+1}], v{5+4*rg+t} offset:{so + kb*4096 + h*2048}"
    r = []
    for kb in range(2):
        r += [xr(kb, 0), wr(kb, 0, 0), wr(kb, 0, 1), wr(kb, 1, 0), wr(kb, 1, 1), xr(kb, 1), wr(kb, 2, 0), wr(kb, 2, 1), wr(kb, 3, 0), wr(kb, 3, 1)]
    return r

def g2_mfmas(base):
    r = []
    for kb in range(2):
        for tl in range(2):
            for t in range(4):
                acc = ACC + (tl*4+t)*4
                w = base + 16 + (kb*4+t)*4; x = base + (kb*2+tl)*4
                r.append(f"v_mfma_f32_16x16x32_bf16 v[{acc}:{acc+3}], v[{w}:{w+3}], v[{x}:{x+3}], v[{acc}:{acc+3}]")
    return r

def g2_stage(a, s, slot_next, pre=None):
    a("s_waitcnt lgkmcnt(0)" if pre is None else f"s_waitcnt vmcnt({pre}) lgkmcnt(0)")
    a("s_barrier")
    m = g2_mfmas(SET[s & 1])
    rd = [] if slot_next is None else g2_reads(slot_next, SET[(s+1) & 1])
    k = 0
    for i in range(16):
        a(m[i])
        for q in range(2 if i < 6 else 1):
            if k < len(rd): a(rd[k]); k += 1

def g2_loop(a, s0, nst, off, pres={}):
    s = s0
    while s in pres or (s % 6 != 0 and False):
        g2_stage(a, s, (s+1+off) % 6, pres[s]); s += 1
    nl = (nst - 1 - s)//6
    if nl > 0:
        L = a.label("Lg2")
        a(f"s_mov_b32 s41, {nl}")
        a(f"{L}:")
        for q in range(6): g2_stage(a, s+q, (s+q+1+off) % 6)
        a("s_sub_u32 s41, s41, 1")
        a("s_cmp_lg_u32 s41, 0")
        a(f"s_cbranch_scc1 {L}")
        s += 6*nl
    while s < nst:
        g2_stage(a, s, None if s == nst-1 else (s+1+off) % 6); s += 1


def k2_addrs():
    r = g2_addrs()
    r = [i for i in r if not i.startswith("v_add_u32 v3,")][:16]
    r = [i.replace("v_add_u32 v5, 16384,", "v_add_u32 v5, 0x10000,") for i in r]
    return r + [f"v_add_u32 v{9+t}, 0x10000, v{5+t}" for t in range(4)]
def k2_reads(s):
    base = SET[s & 1]; xo = (s % 4)*16384; ws = s % 10
    def xr(kb, tl): return f"ds_read_b128 v[{base+(kb*2+tl)*4}:{base+(kb*2+tl)*4+3}], v2 offset:{xo + kb*8192 + tl*256}"
    def wr(kb, t, h):
        d = base + 16 + (kb*4+t)*4 + 2*h
        return f"ds_read_b64_tr_b16 v[{d}:{d+1}], v{5 + 4*(ws >> 3) + t} offset:{(ws & 7)*8192 + kb*4096 + h*2048}"
    r = []
    for kb in range(2):
        r += [xr(kb, 0), wr(kb, 0, 0), wr(kb, 0, 1), wr(kb, 1, 0), wr(kb, 1, 1), xr(kb, 1), wr(kb, 2, 0), wr(kb, 2, 1), wr(kb, 3, 0), wr(kb, 3, 1)]
    return r
def k2_items(s, isw, vA=23):
    m0 = 65536 - 16384 + (s % 10)*8192 if isw else (s % 4)*16384
    r = [[f"s_add_u32 m0, s39, {m0 + k*1024}", "s_add_u32 s37, s37, s38", f"buffer_load_dwordx4 v{vA}, s[8:11], s37 offen{XF} lds"] for k in range(8)]
    r[0] = ["s_add_u32 s42, s42, 1", "s_and_b32 s42, s42, 15", r[0][0], f"s_lshl_b32 s37, s42, {17 if isw else 14}", r[0][2]]
    return r


def k3_addrs(nj, t0):
    r = []
    r.append("v_lshlrev_b32 v19, 11, v18")
    r.append("v_lshl_add_u32 v19, v17, 4, v19")
    r.append("s_lshl_b32 s43, s46, 10")
    r.append("v_add_u32 v2, s43, v19")
    r.append(f"v_add_u32 v3, {REG}, v2")
    r.append(f"v_add_u32 v4, {2*REG}, v2")
    r.append("v_lshrrev_b32 v19, 2, v17")
    r.append("v_lshl_add_u32 v20, v18, 2, v19")
    r.append("v_and_b32 v21, 7, v20")
    r.append("v_lshlrev_b32 v20, 8, v20")
    r.append("v_and_b32 v19, 3, v1")
    r.append("v_lshl_add_u32 v20, v19, 3, v20")
    for j in range(nj):
        r.append(f"s_add_u32 s43, s{t0}, {j}")
        r.append("v_xor_b32 v19, s43, v21")
        r.append(f"v_lshl_add_u32 v{5+j}, v19, 5, v20")
    for rg in range(1, 3):
        for j in range(nj): r.append(f"v_add_u32 v{5+4*rg+j}, {rg*REG}, v{5+j}")
    return r

def k3_acc(nj, mat, j, tl): return ACC + ((mat*nj + j)*4 + tl)*4

def k3_reads(nj, sig, kk, base):
    rg = (sig + 2) % 3
    def xr(tl): return f"ds_read_b128 v[{base+4*tl}:{base+4*tl+3}], v{2+rg} offset:{kk*8192 + tl*256}"
    def wr(mat, j, h):
        d = base + 16 + (mat*nj+j)*4 + 2*h
        return f"ds_read_b64_tr_b16 v[{d}:{d+1}], v{5+4*rg+j} offset:{16384*(1+mat) + kk*8192 + h*4096}"
    r = [xr(0), wr(0, 0, 0), wr(0, 0, 1), xr(1), xr(2), xr(3), wr(1, 0, 0), wr(1, 0, 1)]
    for j in range(1, nj): r += [wr(0, j, 0), wr(0, j, 1), wr(1, j, 0), wr(1, j, 1)]
    return r

def k3_mfmas(nj, base):
    r = []
    order = [(j, mat, tl) for j in range(nj) for mat in range(2) for tl in range(4)]
    if env("MORD", 2) == 1: order = [(j, mat, tl) for tl in range(4) for j in range(nj) for mat in range(2)]
    if env("MORD", 2) == 2:
        order = [(j, mat, tl if (2*j + mat) % 2 == 0 else 3 - tl) for j in range(nj) for mat in range(2) for tl in range(4)]
    for (j, mat, tl) in order:
        if True:
            if True:
                acc = k3_acc(nj, mat, j, tl)
                w = base + 16 + (mat*nj+j)*4; x = base + 4*tl
                r.append(f"v_mfma_f32_16x16x32_bf16 v[{acc}:{acc+3}], v[{w}:{w+3}], v[{x}:{x+3}], v[{acc}:{acc+3}]")
    return r

def chk_ops(regs, t=19):
    r = [f"v_max3_u32 v{t}, v{regs[0]}, v{regs[1]}, v{regs[2]}"]
    rest = regs[3:]
    while len(rest) >= 2:
        r.append(f"v_max3_u32 v{t}, v{t}, v{rest[0]}, v{rest[1]}"); rest = rest[2:]
    if rest: r.append(f"v_max_u32 v{t}, v{t}, v{rest[0]}")
    r.append(f"v_cmp_eq_u32 vcc, -1, v{t}")
    return r
def chk_fix(a, regs, pre, loads):
    Lo = a.label("Lok"); Lr = a.label("Lre")
    a(f"s_cbranch_vccz {Lo}")
    for i in pre: a(i)
    a("s_mov_b32 s45, 0x20000")
    a(f"{Lr}:")
    for i in loads: a(i)
    a("s_waitcnt vmcnt(0)")
    for i in chk_ops(regs): a(i)
    a("s_sub_u32 s45, s45, 1")
    a("s_cmp_eq_u32 s45, 0")
    a(f"s_cbranch_scc1 {Lo}")
    a("s_nop 2")
    a(f"s_cbranch_vccnz {Lr}")
    a(f"{Lo}:")
def k3_fix(a, sig, kk, base):
    chk_fix(a, list(range(base, base+16)),
            [f"s_add_u32 s44, s35, {sig}", "s_and_b32 s44, s44, 15", "s_lshl_b32 s44, s44, 14", f"s_add_u32 s44, s44, {kk*8192}"],
            [f"buffer_load_dwordx4 v[{base+4*tl}:{base+4*tl+3}], v2, s[12:15], s44 offen offset:{tl*256} sc1" for tl in range(4)])
def k3_half_chk(a, nj, cur, sig, kk, nxt):
    m = k3_mfmas(nj, cur); rd = k3_reads(nj, sig, kk, nxt)
    for i in interleave(m[:len(rd)], rd): a(i)
    a(f"s_waitcnt lgkmcnt({len(rd) - 6})")
    for i in interleave(m[len(rd):], chk_ops(list(range(nxt, nxt+16)))): a(i)
    a("s_nop 1")
    k3_fix(a, sig, kk, nxt)

def k3_half1(a, nj, sig, vmw=None):
    a("s_waitcnt lgkmcnt(0)")
    for i in interleave(k3_mfmas(nj, SET[0]), k3_reads(nj, sig, 1, SET[1])): a(i)
    a("s_waitcnt lgkmcnt(0)" if vmw is None else f"s_waitcnt vmcnt({vmw}) lgkmcnt(0)")
    a("s_barrier")
def k3_half2(a, nj, sig):
    for i in interleave(k3_mfmas(nj, SET[1]), k3_reads(nj, sig+1, 0, SET[0])): a(i)

def k3_consumer(a, nj, sig0, vmw, n=16):
    L = a.label("Lk3")
    a(f"s_mov_b32 s41, {(n-1)//3}")
    a(f"{L}:")
    for q in range(3):
        k3_half1(a, nj, sig0+q, vmw[q] if q < len(vmw) else None)
        k3_half2(a, nj, sig0+q)
    a("s_sub_u32 s41, s41, 1")
    a("s_cmp_lg_u32 s41, 0")
    a(f"s_cbranch_scc1 {L}")
    for q in range((n-1)//3*3, n-1):
        k3_half1(a, nj, sig0+q)
        k3_half2(a, nj, sig0+q)
    k3_half1(a, nj, sig0+n-1)


def k3_dma_setup(part, psg, vE=22, first=0):
    r = []
    if part == 0: r.append("s_lshl_b32 s43, s35, 8")
    else:
        r.append("s_mul_i32 s43, s49, 192")
        r.append("s_and_b32 s43, s43, 0xffffff80")
        r.append("s_add_u32 s43, s43, 4096")
    r.append(f"s_cmp_eq_u32 s{psg}, 1")
    r.append("s_cselect_b32 s8, s4, s6")
    r.append("s_cselect_b32 s9, s5, s7")
    r.append("s_sub_u32 s10, 7340032, s43")
    r.append("s_lshl_b32 s44, s34, 18")
    r.append(f"s_add_u32 s44, s44, {WS_H}")
    r.append("s_movk_i32 s38, 28672")
    r.append(f"s_cmp_eq_u32 s{psg}, 0")
    r.append("s_cselect_b32 s8, s32, s8")
    r.append("s_cselect_b32 s9, s33, s9")
    r.append("s_cselect_b32 s10, 262144, s10")
    r.append("s_cselect_b32 s43, s44, s43")
    r.append("s_cselect_b32 s38, 1024, s38")
    r.append("s_cselect_b32 s45, 0, -1")
    r.append("s_add_u32 s8, s8, s43")
    r.append("s_addc_u32 s9, s9, 0")
    r.append("s_mov_b32 s11, 0x20000")
    r.append("s_lshl_b32 s40, s38, 4")
    r.append(f"s_add_u32 s42, s35, {first + 15}")
    r.append(f"s_lshl_b32 s39, s{psg}, 14")
    r.append("v_lshrrev_b32 v19, 4, v1")
    r.append("v_lshlrev_b32 v20, 5, v19")
    r.append("v_mul_u32_u24 v19, 6912, v19")
    r.append("v_and_b32 v19, s45, v19")
    r.append("v_and_b32 v20, s45, v20")
    r.append("v_lshlrev_b32 v21, 4, v1")
    r.append("v_xor_b32 v21, v21, v20")
    r.append(f"v_add_u32 v{vE}, v21, v19")
    r.append("s_and_b32 s45, s45, 128")
    r.append(f"v_xor_b32 v{vE+1}, s45, v{vE}")
    return r

def k3_items(sig, vE=22):
    rg = (sig + 2) % 3
    r = [[f"s_add_u32 m0, s39, {rg*REG + j*1024}", "s_add_u32 s37, s37, s38",
          f"buffer_load_dwordx4 v{vE + (j & 1)}, s[8:11], s37 offen{XF} lds"] for j in range(16)]
    r[0] = ["s_add_u32 s42, s42, 1", "s_and_b32 s42, s42, 15", r[0][0], "s_mul_i32 s37, s42, s40", r[0][2]]
    return r

def g2_dma_setup(psg, A_off, A_mul, A_bytes, K, wreg, vA=21, hop=8):
    r = []
    r.append(f"s_mul_i32 s44, s34, {A_mul}")
    r.append(f"s_lshl_b32 s39, s{psg}, 13")
    r.append("s_add_u32 s44, s44, s39")
    r.append(f"s_add_u32 s44, s44, {A_off}")
    r.append("s_lshl_b32 s43, s35, 7")
    r.append(f"s_mov_b32 s10, {A_bytes - 8192}")
    r.append("s_movk_i32 s38, 1024")
    r.append("s_movk_i32 s40, 9216")
    r.append(f"s_cmp_eq_u32 s{psg}, 2")
    r.append(f"s_cselect_b32 s8, s{wreg}, s32")
    r.append(f"s_cselect_b32 s9, s{wreg+1}, s33")
    r.append(f"s_cselect_b32 s10, {K*2048 - 1920}, s10")
    r.append("s_cselect_b32 s43, s43, s44")
    r.append("s_cselect_b32 s38, 16384, s38")
    r.append(f"s_cselect_b32 s40, {hop*2048}, s40")
    r.append(f"s_cselect_b32 s55, {hop*2048}, s38")
    r.append("s_cselect_b32 s45, -1, 0")
    r.append("s_add_u32 s8, s8, s43")
    r.append("s_addc_u32 s9, s9, 0")
    r.append("s_mov_b32 s11, 0x20000")
    r.append("s_sub_u32 s37, 0, s40")
    r.append("v_lshrrev_b32 v19, 3, v1")
    r.append("v_mul_u32_u24 v19, 1920, v19")
    r.append("v_lshrrev_b32 v20, 4, v1")
    r.append("v_lshlrev_b32 v20, 5, v20")
    r.append("v_and_b32 v19, s45, v19")
    r.append("v_and_b32 v20, s45, v20")
    r.append(f"v_lshlrev_b32 v{vA}, 4, v1")
    r.append(f"v_xor_b32 v{vA}, v{vA}, v20")
    r.append(f"v_add_u32 v{vA}, v{vA}, v19")
    return r

def g2_items(slot, vA=21, wrows=None):
    r = []
    for k in range(8):
        if wrows is None: inc = f"s_add_u32 s37, s37, s{40 if k == 0 else 55 if k == 4 else 38}"
        else: inc = f"s_add_u32 s37, s37, {(wrows[k]*2048) & 0xffffffff}"
        r.append([f"s_add_u32 m0, s39, {slot*SLOT + k*1024}", inc, f"buffer_load_dwordx4 v{vA}, s[8:11], s37 offen{XF} lds"])
    return r

def wd_row(item):
    if item < 256:
        s, k = item >> 3, item & 7
        return 128*(s & 15) + 32*(s >> 4) + 64*(k >> 2) + 8*(k & 3)
    q = item - 256
    return 2048 + 96*(q // 12) + [0, 8, 16, 24, 48, 56, 64, 72, 32, 80, 40, 88][q % 12]


CSR = 48
TT = 80
def epi_reads(nj, csbase, TT=TT):
    rd = []
    rd.append("s_lshl_b32 s43, s46, 9")
    rd.append(f"s_add_u32 s43, s43, {STATS}")
    rd.append("v_lshl_add_u32 v19, v17, 3, s43")
    for tl in range(4): rd.append(f"ds_read_b64 v[{TT+2*tl}:{TT+2*tl+1}], v19 offset:{tl*128}")
    rd.append(f"s_mul_i32 s43, s47, {nj*64}")
    rd.append(f"s_add_u32 s43, s43, {CSF + csbase*4}")
    rd.append("v_lshl_add_u32 v19, v18, 4, s43")
    for mat in range(2):
        for j in range(nj):
            d = CSR + (mat*nj+j)*4
            rd.append(f"ds_read_b128 v[{d}:{d+3}], v19 offset:{mat*896 + j*64}")
    return rd
def epi_consts(KB, mean=True, SR=TT):
    c = []
    for tl in range(4):
        mn, rs = SR+2*tl, SR+2*tl+1
        if mean: c.append(f"v_mov_b32 v{KB+tl}, v{mn}")
        c.append(f"v_mul_f32 v{TT+8}, v{rs}, v{rs}")
        c.append(f"v_mul_f32 v{KB+4+tl}, {fh(C0_)}, v{rs}")
        c.append(f"v_mul_f32 v{TT+9}, {fh(C1_)}, v{rs}")
        c.append(f"v_rcp_f32 v{KB+12+tl}, v{TT+8}")
        c.append(f"v_mul_f32 v{KB+8+tl}, v{TT+9}, v{TT+8}")
    return c

def epi_group(nj, tl, j, out, KB, ln=True):
    G = k3_acc(nj, 0, j, tl); U = k3_acc(nj, 1, j, tl)
    cg = CSR + j*4; cu = CSR + (nj+j)*4
    KM, K0, K1, KI = KB+tl, KB+4+tl, KB+8+tl, KB+12+tl
    T = TT + 4*(j & 1)
    r = []
    if ln:
        for q in range(4): r.append(f"v_fma_f32 v{G+q}, -v{KM}, v{cg+q}, v{G+q}")
        for q in range(4): r.append(f"v_fma_f32 v{U+q}, -v{KM}, v{cu+q}, v{U+q}")
    for q in range(4): r.append(f"v_mul_f32 v{T+q}, v{G+q}, v{G+q}")
    for q in range(4): r.append(f"v_fma_f32 v{T+q}, v{T+q}, v{K1}, v{K0}")
    for q in range(4): r.append(f"v_mul_f32 v{T+q}, v{T+q}, v{G+q}")
    for q in range(4): r.append(f"v_exp_f32 v{T+q}, v{T+q}")
    for q in range(4): r.append(f"v_mul_f32 v{U+q}, v{G+q}, v{U+q}")
    for q in range(4): r.append(f"v_fma_f32 v{T+q}, v{T+q}, v{KI}, v{KI}")
    for q in range(4): r.append(f"v_rcp_f32 v{T+q}, v{T+q}")
    for q in range(4): r.append(f"v_mul_f32 v{U+q}, v{U+q}, v{T+q}")
    r.append(f"v_cvt_pk_bf16_f32 v{out}, v{U}, v{U+1}")
    r.append(f"v_cvt_pk_bf16_f32 v{out+1}, v{U+2}, v{U+3}")
    return r

ST = "#ST "
KA, KBB = 32, 224
def epi_a():
    r = []
    for q in range(2):
        for tl in range(4):
            o = 96 + 4*tl
            r += epi_group(4, tl, 2*q, o, KA) + epi_group(4, tl, 2*q+1, o+2, KA)
            r.append(ST + f"{q}buffer_store_dwordx4 v[{o}:{o+3}], v27, s[24:27], {'s53' if q else '0'} offen offset:{tl*256} sc1")
    return r
def epi_b():
    r = []
    for tp in range(2):
        lo = 112 + 4*tp
        for tl in (2*tp, 2*tp+1):
            o = 96 + 4*tl
            r += epi_group(3, tl, 0, o, KBB, False) + epi_group(3, tl, 1, o+2, KBB, False)
            r.append(ST + f"0buffer_store_dwordx4 v[{o}:{o+3}], v27, s[24:27], 0 offen offset:{tl*256} sc1")
            r += epi_group(3, tl, 2, lo + 2*(tl & 1), KBB, False)
        r.append("s_nop 1")
        r.append(f"v_permlane32_swap_b32 v{lo}, v{lo+2}")
        r.append(f"v_permlane32_swap_b32 v{lo+1}, v{lo+3}")
        r.append(ST + f"0buffer_store_dwordx4 v[{lo}:{lo+3}], v28, s[24:27], 0 offen offset:{tp*512} sc1")
    return r

def epi_store_setup(part):
    r = []
    r.append(f"s_mul_i32 s43, s34, {HH_M}")
    r.append(f"s_mul_i32 s44, s{35 if part == 0 else 49}, {16384 if part == 0 else 24576}")
    r.append("s_add_u32 s43, s43, s44")
    r.append(f"s_add_u32 s43, s43, {WS_HH + (0 if part == 0 else 524288)}")
    r.append("s_add_u32 s24, s32, s43")
    r.append("s_addc_u32 s25, s33, 0")
    r.append(f"s_mov_b32 s26, {262144 + 16384 if part == 0 else 24576}")
    r.append("s_mov_b32 s27, 0x20000")
    r.append("s_mov_b32 s53, 262144")
    r.append("s_lshl_b32 s43, s47, 13")
    r.append("s_lshl_b32 s44, s46, 10")
    r.append("s_add_u32 s43, s43, s44")
    r.append("v_lshlrev_b32 v19, 11, v18")
    r.append("v_lshl_add_u32 v19, v17, 4, v19")
    r.append("v_add_u32 v27, s43, v19")
    if part == 1:
        r.append("s_lshl_b32 s43, s47, 12")
        r.append("s_add_u32 s43, s43, s44")
        r.append("s_add_u32 s43, s43, 16384")
        r.append("v_and_b32 v19, 1, v18")
        r.append("v_lshlrev_b32 v19, 11, v19")
        r.append("v_lshrrev_b32 v20, 1, v18")
        r.append("v_lshl_add_u32 v19, v20, 8, v19")
        r.append("v_lshl_add_u32 v19, v17, 4, v19")
        r.append("v_add_u32 v28, s43, v19")
    return r

STRIP = os.environ.get("STRIP", "").split(",")
def strip(lst, key):
    return [("s_nop 0" if key in STRIP else i) for i in lst]
_k3_mfmas, _k3_reads, _k3_items, _g2_mfmas, _g2_reads, _g2_items = k3_mfmas, k3_reads, k3_items, g2_mfmas, g2_reads, g2_items
def k3_mfmas(*x): return strip(_k3_mfmas(*x), "m3")
def k3_reads(*x): return strip(_k3_reads(*x), "r3")
def g2_mfmas(*x): return strip(_g2_mfmas(*x), "m4")
def g2_reads(*x): return strip(_g2_reads(*x), "r4")
def k3_items(*x, **k):
    r = _k3_items(*x, **k)
    if "d3" in STRIP: r = [g[:-1] + ["s_nop 0 ;buffer_load lds"] for g in r]
    if "h3" in STRIP: r[0][3] = "s_mov_b32 s37, 0"
    return r
def g2_items(*x, **k):
    r = _g2_items(*x, **k)
    if "d4" in STRIP: r = [g[:2] + ["s_nop 0 ;buffer_load lds"] for g in r]
    if "h4" in STRIP: r[0][1] = "s_mov_b32 s37, 0x20000"
    return r


T1 = env("T1", 4); LB = env("LB", 6)
H4 = env("H4", 0)
HH = env("HH", 0)
assert not HH or (T1 == 4 and not H4)
A0B = (16 - T1)//2
PA1 = T1 + A0B; PB = PA1 + 8; EB4 = PB + LB; NP4 = EB4 + 24 - 2*LB
assert T1 % 2 == 0 and LB % 3 == 0
SX, SW = [32, 96], [64, 160]
AK, AS, RECV = 128, 192, 224
def both(pos): return T1 <= pos < EB4
def k4_stage_of(pos, kh):
    if pos < T1: return pos
    if pos < PA1: return T1 + A0B*kh + pos - T1
    if pos < PB: return 16 + 8*kh + pos - PA1
    if pos < EB4: return 32 + LB*kh + pos - PB
    return 32 + 2*LB + pos - EB4
def k4_addrs():
    r = []
    r.append("v_lshlrev_b32 v19, 11, v18")
    r.append("v_lshl_add_u32 v19, v17, 4, v19")
    r.append("s_lshl_b32 s43, s46, 10")
    r.append("v_add_u32 v2, s43, v19")
    r.append("v_add_u32 v3, 0x10000, v2")
    r.append("v_lshrrev_b32 v19, 2, v17")
    r.append("v_lshl_add_u32 v20, v18, 2, v19")
    r.append("v_bfe_u32 v21, v20, 1, 2")
    r.append("s_lshl_b32 s43, s47, 1")
    r.append("v_xor_b32 v21, s43, v21")
    r.append("v_lshlrev_b32 v20, 7, v20")
    r.append("v_lshl_add_u32 v20, v21, 5, v20")
    r.append("v_and_b32 v19, 3, v1")
    r.append("v_lshl_add_u32 v20, v19, 3, v20")
    r.append("v_add_u32 v5, 16384, v20")
    r.append("v_xor_b32 v6, 32, v5")
    r.append("v_add_u32 v7, 0x10000, v5")
    r.append("v_add_u32 v8, 0x10000, v6")
    r.append("s_lshl_b32 s43, s36, 13")
    r.append("v_lshl_add_u32 v9, v1, 4, s43")
    r.append("s_mov_b32 s54, 0x10000")
    r.append("s_movk_i32 s52, 0x1000")
    return r
def k4_reads(pos):
    slot = (pos + 2) % 4; hi, so = slot >> 1, (slot & 1)*32768
    bx, bw = SX[pos & 1], SW[pos & 1]
    def xr(kb, tl): return f"ds_read_b128 v[{bx+(kb*4+tl)*4}:{bx+(kb*4+tl)*4+3}], v{2+hi} offset:{so + kb*8192 + tl*256}"
    def wr(c, kb, e, h):
        d = bw + ((c*2+kb)*2+e)*4 + 2*h
        return f"ds_read_b64_tr_b16 v[{d}:{d+1}], v{5+2*hi+e} offset:{so + c*8192 + kb*4096 + h*2048}"
    r = []
    for kb in range(2):
        w = [wr(c, kb, e, h) for c in range(2 if both(pos) else 1) for e in range(2) for h in range(2)]
        r += interleave(w, [xr(kb, tl) for tl in range(4)])
    return strip(r, "r4")
def k4_mfmas(pos):
    bx, bw = SX[pos & 1], SW[pos & 1]
    r = []
    for kb in range(2):
        for tl in range(4):
            for c in range(2 if both(pos) else 1):
                for e in range(2):
                    acc = (AS if c else AK) + (tl*2+e)*4
                    w = bw + ((c*2+kb)*2+e)*4; x = bx + (kb*4+tl)*4
                    r.append(f"v_mfma_f32_16x16x32_bf16 v[{acc}:{acc+3}], v[{w}:{w+3}], v[{x}:{x+3}], v[{acc}:{acc+3}]")
    return strip(r, "m4")
def k4_half(pos, hi):
    it = k4_items(pos)
    if not hi: return it[:3] + [it[3] + ["s_add_u32 s37, s37, s28"]]
    return [it[0][:-3] + ["s_add_u32 s37, s37, s28"] + it[4]] + it[5:]
def k4_masked(pos):
    it = k4_items(pos)
    if both(pos): return it
    return [g[:-1] + ["s_mov_b64 exec, s[72:73]", g[-1], "s_mov_b64 exec, -1"] for g in it]
def k4_stage(a, pos, pre=None, extra=[], items=None):
    a("s_waitcnt lgkmcnt(0)" if pre is None else f"s_waitcnt vmcnt({pre}) lgkmcnt(0)")
    a("s_barrier")
    rd = k4_reads(pos+1) if pos + 1 < NP4 else []
    seq = interleave(k4_mfmas(pos), rd)
    if items: seq = seq[:2] + spread(seq[2:], items, env("FRH", 80))
    if extra: seq = seq[:8] + spread(seq[8:], [[i] for i in extra])
    for i in seq: a(i)
def k4_dma_setup(first, vA=21):
    r = []
    r.append(f"s_mul_i32 s44, s34, {HH_M}")
    r.append("s_lshl_b32 s39, s51, 13")
    r.append("s_add_u32 s44, s44, s39")
    r.append(f"s_add_u32 s44, s44, {WS_HH}")
    r.append("s_and_b32 s43, s51, 1")
    r.append("s_xor_b32 s43, s43, s35")
    r.append("s_lshl_b32 s43, s43, 7")
    r.append(f"s_mov_b32 s10, {HH_M - 8192}")
    r.append("s_movk_i32 s38, 1024")
    r.append("s_movk_i32 s40, 9216")
    r.append("s_movk_i32 s37, 0x4000")
    r.append("s_cmp_ge_u32 s51, 2")
    r.append("s_cselect_b32 s8, s60, s32")
    r.append("s_cselect_b32 s9, s61, s33")
    r.append(f"s_cselect_b32 s10, {3584*2048 - 1920}, s10")
    r.append("s_cselect_b32 s43, s43, s44")
    r.append("s_cselect_b32 s38, 16384, s38")
    r.append(f"s_cselect_b32 s40, {40*2048}, s40")
    r.append(f"s_cselect_b32 s55, {40*2048}, s38")
    r.append(f"s_cselect_b32 s37, {128*2048}, s37")
    r.append("s_cselect_b32 s45, -1, 0")
    r.append("s_add_u32 s8, s8, s43")
    r.append("s_addc_u32 s9, s9, 0")
    r.append("s_mov_b32 s11, 0x20000")
    r.append("s_and_b32 s53, s35, 1")
    r.append(f"s_mul_i32 s54, s53, {A0B}")
    r.append("s_mul_i32 s54, s54, s37")
    r.append(f"s_mul_i32 s29, s53, {8 - A0B}")
    r.append(f"s_add_u32 s29, s29, {A0B}")
    r.append("s_mul_i32 s29, s29, s37")
    r.append(f"s_and_b32 s43, s45, {((32 - 2048)*2048) & 0xffffffff}")
    r.append("s_add_u32 s29, s29, s43")
    r.append(f"s_mul_i32 s37, s37, {first}")
    r.append("s_sub_u32 s37, s37, s40")
    r.append("v_lshrrev_b32 v19, 3, v1")
    r.append("v_mul_u32_u24 v19, 1920, v19")
    r.append("v_lshrrev_b32 v20, 4, v1")
    r.append("v_lshlrev_b32 v20, 5, v20")
    r.append("v_and_b32 v19, s45, v19")
    r.append("v_and_b32 v20, s45, v20")
    r.append(f"v_lshlrev_b32 v{vA}, 4, v1")
    r.append(f"v_xor_b32 v{vA}, v{vA}, v20")
    r.append(f"v_add_u32 v{vA}, v{vA}, v19")
    return r
def k4_items(pos, kind=None, vA=21):
    slot = (pos + 2) % 4
    r = []
    for k in range(8):
        if kind is None: inc = f"s_add_u32 s37, s37, s{40 if k == 0 else 55 if k == 4 else 38}"
        else:
            st = k4_stage_of(pos, 0)
            off = st*16384 + k*1024 if kind == 'x' else wd_row(8*st + k)*2048
            inc = f"s_add_u32 s37, s40, {off}" if pos < EB4 else f"s_mov_b32 s37, {off}"
        g = [f"s_add_u32 m0, s39, {slot*32768 + k*1024}", inc, f"buffer_load_dwordx4 v{vA}, s[8:11], s37 offen{XF} lds"]
        if "d4" in STRIP: g[2] = "s_nop 0 ;buffer_load lds"
        r.append(g)
    if kind is None and pos == T1: r[0] = ["s_add_u32 s37, s37, s54"] + r[0]
    if kind is None and pos == PA1: r[0] = ["s_add_u32 s37, s37, s29"] + r[0]
    return r


def emit(a, vm, seq, tag):
    for i in seq:
        if i.startswith(ST):
            t = i[len(ST)+1:]
            if "st" in STRIP: t = "s_nop 0"
            if "stp" in STRIP: t = t.replace(" sc1", "")
            a(t); vm.add("st" + i[len(ST)])
        else:
            a(i)
            if "buffer_load" in i and i.endswith("lds"): vm.add(tag)
            elif i.startswith("buffer_"): vm.add("x")

def st_last(seq):
    if not env("STLAST", 1): return seq
    return [i for i in seq if not i.startswith(ST)] + [i for i in seq if i.startswith(ST)]
def chunks(lst, n):
    return [lst[len(lst)*k//n:len(lst)*(k+1)//n] for k in range(n)]
def flat(g): return sum(g, [])
def last_with(cs, tag): return max(k for k, c in enumerate(cs) if any(i.startswith(ST + tag) for i in c))


def phase_234(a, Ld):
    PRIO = env("PRIO", 1)
    SPEC3 = env("SPEC3", 0); NV3 = env("NV3", 7)
    XSN = env("XSN", 1)
    XSIG = EB4 + XSN + env("XSD", 2); XRCV = NP4 - env("XRD", 3)
    LG1 = a.label("LG1")
    def k1_tail(young, signal=False):
        a(f"s_waitcnt vmcnt({young})")
        a("s_barrier")
        if signal: flag_signal(a, 56, "o", 34, v=13)
        for u in range(2):
            a(f"ds_write_b128 v27, v[{68+48*u}:{71+48*u}] offset:{512*u}")
        stamp(a, 5)
        stampc(a, "k1", 20)
    flag_srd(a, 56)
    lane_ig(a)
    a("s_lshr_b32 s46, s36, 1")
    a("s_and_b32 s46, s46, 1")
    a("s_and_b32 s47, s36, 1")
    a("s_and_b32 s51, s36, 3")
    if NBM:
        a("s_bfe_u32 s49, s35, 0x20001")
        a("s_lshl_b32 s49, s49, 2")
        a("s_lshr_b32 s43, s35, 3")
        a("s_lshl_b32 s43, s43, 1")
        a("s_add_u32 s49, s49, s43")
        a("s_and_b32 s43, s35, 1")
        a("s_add_u32 s49, s49, s43")
    else:
        a("s_mov_b32 s49, s35")
    a("s_waitcnt lgkmcnt(0)")
    a("s_cmp_ge_u32 s36, 4")
    a(f"s_cbranch_scc1 {LG1}")

    def o_first_setup():
        a("s_lshl_b32 s43, s34, 18")
        srd(a, 12, 32, 262144, add_lo=43, add_imm=WS_O)
        a("v_lshlrev_b32 v21, 4, v1")
        a("s_lshl_b32 s54, s36, 11")
        for sg in (1, 2):
            a(f"s_add_u32 s43, s35, {sg}")
            a("s_and_b32 s43, s43, 15")
            a("s_lshl_b32 s43, s43, 14")
            a(f"s_add_u32 s{29+sg}, s43, s54")
    def o_first():
        for sg in (1, 2):
            for e in range(2):
                a(f"s_add_u32 m0, s54, {sg*16384 + e*1024}")
                a(f"s_add_u32 s43, s{29+sg}, {e*1024}")
                a(f"buffer_load_dwordx4 v21, s[12:15], s43 offen{XF} lds")
    for i in k2_addrs(): a(i)
    a("s_lshl_b32 s43, s34, 18")
    a("s_lshl_b32 s44, s35, 14")
    a("s_add_u32 s43, s43, s44")
    srd(a, 20, 32, 16384, add_lo=43, add_imm=WS_H)
    a("s_lshl_b32 s43, s34, 14")
    a("s_lshl_b32 s44, s35, 10")
    a("s_add_u32 s43, s43, s44")
    srd(a, 24, 32, 1024, add_lo=43, add_imm=WS_ST2)
    a("s_movk_i32 s50, 0x2000")
    a("v_lshrrev_b32 v19, 1, v18")
    a("v_lshl_add_u32 v19, v19, 4, v17")
    a("s_lshl_b32 s43, s36, 5")
    a("v_add_u32 v19, s43, v19")
    a("v_and_b32 v20, 1, v18")
    a("v_lshlrev_b32 v20, 2, v20")
    a("v_lshl_add_u32 v22, v19, 3, v20")
    o_first_setup()
    k1_tail(0)
    for k in range(4):
        a(f"v_permlane16_swap_b32 v{160+4*k}, v{162+4*k}")
        a(f"v_permlane16_swap_b32 v{161+4*k}, v{163+4*k}")
    for k in range(8):
        for h in range(2):
            a(f"v_lshlrev_b32 v{ACC+4*k+2*h}, 16, v{160+2*k+h}")
            a(f"v_and_b32 v{ACC+4*k+2*h+1}, 0xffff0000, v{160+2*k+h}")
    a("s_waitcnt lgkmcnt(0)")
    a("s_barrier")
    o_first()
    for i in k2_reads(0): a(i)
    a("s_waitcnt lgkmcnt(0)")
    for i in g2_mfmas(SET[0]): a(i)
    a("s_waitcnt vmcnt(2)")
    a("s_barrier")
    stamp(a, 6)
    for i in k2_reads(1): a(i)
    for st in range(1, 16):
        a("s_waitcnt vmcnt(0) lgkmcnt(0)" if st == 1 else "s_waitcnt lgkmcnt(0)")
        a("s_barrier")
        m = g2_mfmas(SET[st & 1]); rd = k2_reads(st+1) if st < 15 else []
        for i in spread(rd, [[x] for x in m], 100) if rd else m: a(i)
    stamp(a, 7)
    a("s_nop 4")
    P = 96
    for tl in range(2):
        for kb in range(2):
            o = P + (tl*2+kb)*4
            for hf in range(2):
                s = ACC + (tl*4 + 2*kb + hf)*4
                a(f"v_cvt_pk_bf16_f32 v{o+2*hf}, v{s}, v{s+1}")
                a(f"v_cvt_pk_bf16_f32 v{o+2*hf+1}, v{s+2}, v{s+3}")
            a(f"buffer_store_dwordx4 v[{o}:{o+3}], v2, s[20:23], {'s50' if kb else '0'} offen offset:{tl*256} sc1")
            a(f"ds_write_b128 v4, v[{o}:{o+3}] offset:{kb*8192 + tl*256}")
    for q in range(8):
        for tl in range(2):
            x = ACC + 16*tl + 2*q; sm = 116 + 4*tl; sq = sm + 2
            if q == 0:
                a(f"v_pk_mul_f32 v[{sq}:{sq+1}], v[{x}:{x+1}], v[{x}:{x+1}]")
            else:
                a(f"v_pk_fma_f32 v[{sq}:{sq+1}], v[{x}:{x+1}], v[{x}:{x+1}], v[{sq}:{sq+1}]")
                y = ACC + 16*tl if q == 1 else sm
                a(f"v_pk_add_f32 v[{sm}:{sm+1}], v[{x}:{x+1}], v[{y}:{y+1}]")
    for tl in range(2):
        a(f"v_add_f32 v{112+2*tl}, v{116+4*tl}, v{117+4*tl}")
        a(f"v_add_f32 v{113+2*tl}, v{118+4*tl}, v{119+4*tl}")
    a("s_nop 1")
    a("v_permlane32_swap_b32 v112, v114")
    a("v_permlane32_swap_b32 v113, v115")
    a("v_add_f32 v112, v112, v114")
    a("v_add_f32 v113, v113, v115")
    a("s_nop 1")
    a("v_permlane16_swap_b32 v112, v113")
    a("v_add_f32 v112, v112, v113")
    a("buffer_store_dword v112, v22, s[24:27], 0 offen sc1")
    if SPEC3:
        a("s_waitcnt lgkmcnt(0)")
        a("s_barrier")
        stamp(a, 8)
    else:
        a("s_waitcnt vmcnt(0) lgkmcnt(0)")
        a("s_barrier")
        Ls = a.label("Lsig")
        a("s_cmp_lg_u32 s36, 0")
        a(f"s_cbranch_scc1 {Ls}")
        flag_signal(a, 56, "h", 34, v=19)
        a(f"{Ls}:")
        if env("OPF", 2) & 2:
            Lo = a.label("Lopf")
            a("s_cmp_lt_u32 s36, 2")
            a(f"s_cbranch_scc1 {Lo}")
            a("s_and_b32 s43, s36, 1")
            a("s_lshl_b32 s43, s43, 13")
            a("v_lshlrev_b32 v19, 7, v1")
            a("buffer_load_dword v31, v19, s[20:23], s43 offen sc1")
            a(f"{Lo}:")
        stamp(a, 8)

    a("s_lshl_b32 s53, s47, 2")
    for i in k3_addrs(4, 53): a(i)
    def stage0():
        for i in k3_reads(4, 0, 0, SET[0]): a(i)
        a("s_waitcnt lgkmcnt(0)")
        for i in interleave([x[:x.rindex(",")] + ", 0" if x.startswith("v_mfma") else x for x in k3_mfmas(4, SET[0])], k3_reads(4, 0, 1, SET[1])): a(i)
        a("s_waitcnt lgkmcnt(0)")
        for i in k3_mfmas(4, SET[1]): a(i)
    stage0()
    for i in k3_dma_setup(1, 51, first=2): a(i)
    for i in epi_store_setup(0): a(i)
    def out_setup():
        r = ["s_lshl_b32 s43, s34, 18", "s_lshl_b32 s44, s35, 7", "s_add_u32 s43, s43, s44",
             "s_add_u32 s16, s62, s43", "s_addc_u32 s17, s63, 0", f"s_mov_b32 s18, {127*2048 + 128}", "s_mov_b32 s19, 0x20000",
             "s_lshl_b32 s43, s46, 6", "v_lshl_add_u32 v19, v17, 1, s43", "v_lshlrev_b32 v19, 11, v19",
             "v_and_b32 v20, 1, v18", "v_lshl_add_u32 v19, v20, 5, v19", "v_lshrrev_b32 v20, 1, v18", "v_lshl_add_u32 v19, v20, 4, v19",
             "s_lshl_b32 s43, s47, 6", "v_add_u32 v28, s43, v19"]
        for d, flip in ((64, 0), (68, 1)):
            r += ["s_lshl_b32 s43, s34, 4", "s_add_u32 s43, s43, s35", f"s_xor_b32 s43, s43, {flip}", "s_lshl_b32 s43, s43, 15", f"s_add_u32 s43, s43, {WS_X}",
                  f"s_add_u32 s{d}, s32, s43", f"s_addc_u32 s{d+1}, s33, 0", f"s_mov_b32 s{d+2}, 32768", f"s_mov_b32 s{d+3}, 0x20000"]
        return r
    for i in out_setup(): a(i)
    def x_first_setup():
        a("s_lshl_b32 s43, s34, 18")
        srd(a, 12, 32, 262144, add_lo=43, add_imm=WS_H)
        a("v_lshlrev_b32 v21, 4, v1")
        a("s_lshl_b32 s54, s36, 11")
        for sg in (1, 2):
            a(f"s_add_u32 s43, s35, {sg}")
            a("s_and_b32 s43, s43, 15")
            a("s_lshl_b32 s43, s43, 14")
            a(f"s_add_u32 s{29+sg}, s43, s54")
    def x_first():
        for sg in (1, 2):
            for e in range(2):
                a(f"s_add_u32 m0, s54, {((sg+2) % 3)*REG + e*1024}")
                a(f"s_add_u32 s43, s{29+sg}, {e*1024}")
                a(f"buffer_load_dwordx4 v21, s[12:15], s43 offen{XF} lds")
    x_first_setup()
    if SPEC3:
        a("s_waitcnt vmcnt(0)")
        a("s_barrier")
        stamp(a, 9)
        if PRIO: a("s_setprio 1")
        for i in k3_reads(4, 1, 0, SET[0]): a(i)
        a("s_waitcnt lgkmcnt(14)")
        for i in chk_ops(list(range(SET[0], SET[0]+16))): a(i)
        a("s_nop 4")
        k3_fix(a, 1, 0, SET[0])
        for sg in range(1, NV3 + 1):
            a("s_waitcnt lgkmcnt(0)")
            k3_half_chk(a, 4, SET[0], sg, 1, SET[1])
            a("s_waitcnt lgkmcnt(0)")
            a("s_barrier")
            if sg < NV3: k3_half_chk(a, 4, SET[1], sg+1, 0, SET[0])
            else: k3_half2(a, 4, sg)
        k3_consumer(a, 4, NV3 + 1, [], n=15 - NV3)
    else:
        a("s_barrier")
        x_first()
        a("s_waitcnt vmcnt(2)")
        a("s_barrier")
        stamp(a, 9)
        if PRIO: a("s_setprio 1")
        for i in k3_reads(4, 1, 0, SET[0]): a(i)
        k3_consumer(a, 4, 1, [0], n=15)
    stamp(a, 10)
    EA = epi_a()
    def batch(l, nb):
        return flat([[i for i in c if not i.startswith(ST)] + [i for i in c if i.startswith(ST)] for c in chunks(l, nb)])
    if env("STBA", 0): EA = batch(EA, env("STBA", 0))
    if "e" in STRIP: EA = [i for i in EA if i.startswith(ST)]
    ea = chunks(EA, env("EA_N", 13))
    SIG_A0 = 16 + last_with(ea, "0") + 2
    SIG_A1 = 16 + last_with(ea, "1") + 2
    HL = SIG_A0 - 1
    assert 16 + len(ea) <= 31 and SIG_A0 <= 28 and HL <= 27 and SIG_A1 in (29, 30)
    L3h = a.label("L3h"); LK4 = a.label("LK4")
    RD = 192
    def resid_loads():
        r = ["v_lshlrev_b32 v19, 11, v18", "v_lshl_add_u32 v19, v17, 4, v19", "s_lshl_b32 s43, s46, 10", "s_lshl_b32 s44, s47, 13",
             f"v_add3_u32 v{RD+16}, v19, s43, 0", f"v_add_u32 v{RD+16}, s44, v{RD+16}"]
        for tl in range(4):
            r.append(f"buffer_load_dwordx4 v[{RD+4*tl}:{RD+4*tl+3}], v{RD+16}, s[20:23], 0 offen offset:{tl*256} sc1")
        return r
    def resid_unpack():
        r = []
        for k in range(4):
            for q in range(4):
                r.append(f"v_lshlrev_b32 v{ACC+8*k+2*q}, 16, v{RD+4*k+q}")
                r.append(f"v_and_b32 v{ACC+8*k+2*q+1}, 0xffff0000, v{RD+4*k+q}")
        return r
    extra = {HL: resid_loads(), 17: k4_addrs(), 29: resid_unpack(), 30: [f"v_mov_b32 v{AS+i}, 0" for i in range(32)]}
    assert HL + 2 <= 28 and HL > 19
    a("s_cmp_eq_u32 s36, 3")
    a(f"s_cbranch_scc1 {L3h}")
    for helper in (False, True):
        vm = VM(a)
        if helper: a(f"{L3h}:")
        m = k3_mfmas(4, SET[1])
        if env("ERI", 1):
            m = interleave(m, epi_reads(4, 0, TT=2))
            emit(a, vm, m if helper else spread(m, k3_items(18)), 18)
            if PRIO: a("s_setprio 0")
            emit(a, vm, ["s_waitcnt lgkmcnt(0)"] + epi_consts(KA, SR=2), None)
        else:
            emit(a, vm, m if helper else spread(m, k3_items(18)), 18)
            if PRIO: a("s_setprio 0")
            emit(a, vm, epi_reads(4, 0) + ["s_waitcnt lgkmcnt(0)"] + epi_consts(KA), None)
        if helper and env("K3PF", 0):
            k3pf = K3PF(a, 1)
            k3pf.setup()
            for s in range(3, env("K3PD", 6)): k3pf.issue(s)
        a("s_barrier")
        if helper: stampc(a, "k3", 16)
        for sig in range(16, 31):
            body = (list(ea[sig-16]) if sig-16 < len(ea) else []) + extra.get(sig, [])
            if helper:
                if sig == SIG_A0: flag_signal(a, 56, "hha0", 34, v=21)
                if sig == SIG_A1: flag_signal(a, 56, "hha1", 34, v=22)
                if sig == env("PA0", 27): flag_poll_issue(a, 56, "hha0", 34, v=21); vm.add("p")
                if env("K3PF", 0) and sig - 16 + env("K3PD", 6) < 16: k3pf.issue(sig - 16 + env("K3PD", 6))
                if 100 + sig in ICW: code_warm(a, 78, 19, 30)
                if sig == 30: warm_jump(a, ("L7b", 0))
                if env("K3_SPF", 1) and sig == env("S3C", 18):
                    sp = SPF3(a); sp.setup(1); sp.issue(8)
                if env("K4_SPF", 1) and sig == env("S4A", 25):
                    sp = SPF4(a); sp.setup(); sp.issue(0)
                if sig == 25 and env("K4PF", 0):
                    pf_w64(a, KA_WD, 3584, list(range(env("K4PF0", 0), env("K4PF", 0)//MX)), 80, 29, 30)
                assert T1 >= 4
                if sig == 29 and HH:
                    emit(a, vm, k4_dma_setup(4) + ["s_mul_i32 s28, s38, 3", "s_add_u32 s28, s28, s55"], None)
                if sig == 29 and H4:
                    emit(a, vm, k4_dma_setup(2), None)
                    a("s_mov_b64 s[72:73], 0")
                emit(a, vm, body, None)
                if sig == SIG_A0 - 1: a(vm.wait("st0"))
                if sig == SIG_A1 - 1: a(vm.wait("st1"))
                if sig == HL + 2: a(vm.wait("x"))
                if sig == 28: flag_poll_finish(a, 56, v=21, first=vm.cnt("p"))
            else:
                if sig + 3 <= 31:
                    emit(a, vm, st_last(spread(body, k3_items(sig+3), env("FR3", 100))), sig+3)
                else:
                    if sig == 29:
                        emit(a, vm, k4_dma_setup(0), None)
                        a("s_mov_b64 s[72:73], -1")
                    emit(a, vm, spread(body, k4_items(sig - 29)), ("k4", sig - 29))
                if sig == 30 and HH:
                    emit(a, vm, ["s_mul_i32 s28, s38, 3", "s_add_u32 s28, s28, s55", "s_mul_i32 s43, s38, 3", "s_add_u32 s43, s43, s40", "s_add_u32 s43, s43, s28",
                                 "s_lshl_b32 s43, s43, 1", "s_add_u32 s37, s37, s43"], None)
                w = vm.cnt(sig+2) if sig + 2 <= 31 else vm.cnt(("k4", 0))
                if sig == SIG_A0 - 1: w = min(w, vm.cnt("st0"))
                if sig == SIG_A1 - 1: w = min(w, vm.cnt("st1"))
                if sig == HL + 2: w = min(w, vm.cnt("x"))
                a(f"s_waitcnt vmcnt({w})")
            a("s_barrier")
            if helper: stampc(a, "k3", sig+1)
        if not helper: a(f"s_branch {LK4}")
    a(f"{LK4}:")
    stamp(a, 11)
    if PRIO: a("s_setprio 1")
    for i in k4_reads(0): a(i)
    if H4:
        for i in flat(k4_masked(2) + k4_masked(3)): a(i)
    XB = env("XBF", 1)
    def xch(op, reg, sd, n=8):
        return [f"buffer_{op}_dwordx4 v[{reg+4*t}:{reg+4*t+3}], v9, s[{sd}:{sd+3}], {'s52' if t >= 4 else '0'} offen offset:{(t & 3)*1024} sc1" for t in range(n)]
    if XB:
        st_ = xch("store", RECV, 64, 4)
        xs = chunks([[f"v_cvt_pk_bf16_f32 v{RECV+4*tl+q}, v{AS+8*tl+2*q}, v{AS+8*tl+2*q+1}" for q in range(4)] + [st_[tl]] for tl in range(4)], XSN)
        xs = [flat(c) for c in xs]
        xl = xch("load", AS, 68, 4)
        xu = ["s_waitcnt vmcnt(0)"]
        for k in range(16): xu += [f"v_lshlrev_b32 v{RECV+2*k}, 16, v{AS+k}", f"v_and_b32 v{RECV+2*k+1}, 0xffff0000, v{AS+k}"]
    else:
        xs = chunks(xch("store", AS, 64), XSN); xl = xch("load", RECV, 68); xu = []
    pos = 0
    R0 = max(T1, H4 + 3, HH + 3 if HH else 0)
    def pre4(pos):
        if pos == XSIG: return 0
        if HH and 3 <= pos <= HH + 2: return 4*(min(pos + 3, HH + 3) - (pos + 1))
        if not H4: return 0 if pos == 0 else None
        if pos <= H4: return 16
        return {H4 + 1: 8, H4 + 2: 0}.get(pos)
    while pos < NP4:
        if pos == R0:
            nl = (EB4 - 1 - R0)//4
            L = a.label("Lk4")
            a(f"s_mov_b32 s41, {nl}")
            a(f"{L}:")
            for q in range(4): k4_stage(a, pos + q)
            a("s_sub_u32 s41, s41, 1")
            a("s_cmp_lg_u32 s41, 0")
            a(f"s_cbranch_scc1 {L}")
            pos += 4*nl
        if pos == EB4: a("s_mov_b32 s54, 0x10000")
        k4_stage(a, pos, pre=pre4(pos), items=k4_masked(pos + 4) if pos < H4 else k4_half(pos + 4, 0) if pos < HH else None,
                 extra=xs[pos - EB4] if EB4 <= pos < EB4 + XSN else xl if pos == XRCV else xu if pos == NP4 - 1 else [])
        pos += 1
    stamp(a, 12)
    a("s_waitcnt vmcnt(0)")
    a("s_nop 4")
    for tl in range(4):
        b = AK + 8*tl; o = 32 + 4*tl
        for q in range(0, 8, 2): a(f"v_pk_add_f32 v[{b+q}:{b+q+1}], v[{b+q}:{b+q+1}], v[{RECV+8*tl+q}:{RECV+8*tl+q+1}]")
        for q in range(4): a(f"v_cvt_pk_bf16_f32 v{o+q}, v{b+2*q}, v{b+2*q+1}")
    for tl in range(4):
        o = 32 + 4*tl
        a(f"v_permlane16_swap_b32 v{o}, v{o+2}")
        a(f"v_permlane16_swap_b32 v{o+1}, v{o+3}")
        a(f"buffer_store_dwordx4 v[{o}:{o+3}], v28, s[16:19], {'s54' if tl >= 2 else '0'} offen offset:{(tl & 1)*2048}{os.environ.get('OSF', '')}")
    if STAMP:
        a("s_waitcnt vmcnt(0)")
        stamp(a, 13)
        stamp_flush(a)
    a(f"s_branch {Ld}")

    a(f"{LG1}:")
    L7 = a.label("L7"); LK3b = a.label("LK3b"); LP3 = a.label("LP3")
    a("s_cmp_eq_u32 s36, 7")
    a(f"s_cbranch_scc1 {L7}")
    for i in g2_dma_setup(51, WS_O, 262144, 262144, 1024, 28, vA=23): a(i)
    o_first_setup()
    Lp = [a.label("Lp") for _ in range(3)]
    for p in range(1, 3):
        a(f"s_cmp_eq_u32 s51, {p}")
        a(f"s_cbranch_scc1 {Lp[p]}")
    for p in range(3):
        a(f"{Lp[p]}:")
        vm = VM(a)
        def st2(s): emit(a, vm, flat(k2_items(s, p == 2)), s)
        a(f"s_add_u32 s42, s35, {15 if p == 2 else 2}")
        k1_tail(0, p == 1)
        WE = env("K2_WE", 4)
        wn_ = [0]
        def wst(upto, n):
            while wn_[0] <= min(upto, 15) and n > 0:
                st2(wn_[0]); wn_[0] += 1; n -= 1
        if p == 2: wst(9, WE)
        stamp(a, 6)
        if p == 0: flag_poll(a, 56, "o", 34, v=8)
        if p == 2: a(vm.wait(0))
        a("s_waitcnt lgkmcnt(0)")
        stamp(a, 7)
        a("s_barrier")
        stamp(a, 8)
        o_first(); vm.add(1, 2); vm.add(2, 2)
        if p < 2: st2(3)
        else: wst(9, 1)
        a(vm.wait(1))
        a("s_barrier")
        stamp(a, 9)
        if p < 2: st2(4)
        else: wst(9, 1)
        for s in range(1, 16):
            if s < 15: a(vm.wait(s+1))
            a("s_barrier")
            if p == 2: wst(s + 9, env("K2_WN", 1))
            elif s + 4 < 16: st2(s + 4)
            rest = SPR - 3 - 2*(SPE - 2) - (s-1)*env("CS_RPS", 2)
            if rest > 0 and CSM == "d": cs_spre(a, min(rest, env("CS_RPS", 2)))
            if s == 11:
                assert p < 2 or wn_[0] == 16
                for i in k3_dma_setup(0, 51): a(i)
            if s in (12, 14)[:env("EW", 2)] and p > 0:
                emit(a, vm, flat(k3_items((s-12)//2)), "w%d" % ((s-12)//2))
        if p > 0: a(vm.wait("w0"))
        a("s_barrier")
        if p == 0 and SPEC3:
            for q in range(env("SPD3", 1)):
                flag_poll_issue(a, 56, "h", 34, v=8)
                a("s_waitcnt vmcnt(0)")
            a("s_add_u32 s42, s42, 1")
            for w in (1, 2): emit(a, vm, flat(k3_items(w)), "w")
        elif p == 0:
            a("s_add_u32 s42, s42, 3")
            flag_poll(a, 56, "h", 34, v=8)
        else:
            for w in range(env("EW", 2), 3): emit(a, vm, flat(k3_items(w)), "w")
        if p < 2: a(f"s_branch {LP3}")
    a(f"{LP3}:")
    SWD = env("SWD", 1)
    W7SKIP = max(7, NV3 if SPEC3 else 0) - 1
    wd_base = ["s_mul_i32 s43, s2, 28672", "s_mul_i32 s44, s51, 7168", "s_add_u32 s43, s43, s44", "s_add_u32 s80, s60, s43", "s_addc_u32 s81, s61, 0"]
    def swd(sig, w7=False):
        n = 9 if sig <= 8 else 8 if 10 <= sig <= 12 else 7 if sig == 13 else 0
        if w7: n = 0 if sig in (W7SKIP, 9) or sig > 12 else 11 if sig <= 8 else 8
        if not SWD or not n: return []
        return [f"s_load_dword s{64+q}, s[80:81], {64*q}" for q in range(n)] + [f"s_add_u32 s80, s80, {64*n}", "s_addc_u32 s81, s81, 0"]
    for i in wd_base: a(i)
    if SPEC3:
        assert env("EW", 2) == 2
        a("s_waitcnt vmcnt(16)")
        a("s_barrier")
        for i in flat(k3_items(3)) + swd(0): a(i)
        a("s_waitcnt vmcnt(16)")
        a("s_barrier")
    else:
        x_first_setup()
        a("s_barrier")
        x_first()
        for i in flat(k3_items(3)) + swd(0): a(i)
        a("s_waitcnt vmcnt(18)")
        a("s_barrier")
        a("s_waitcnt vmcnt(16)")
        a("s_barrier")
    def pst(sig, body=[], pre=[], post=[]):
        for i in pre + spread(body, k3_items(sig+3)) + post + swd(sig): a(i)
        a("s_waitcnt vmcnt(16)")
        a("s_barrier")
    L = a.label("Lp3")
    a("s_mov_b32 s41, 2")
    a(f"{L}:")
    for sig in range(1, 4): pst(sig)
    a("s_sub_u32 s41, s41, 1")
    a("s_cmp_lg_u32 s41, 0")
    a(f"s_cbranch_scc1 {L}")
    pst(7); pst(8)
    bs = ["s_and_b32 s53, s35, 1", "s_lshl_b32 s53, s53, 1", "s_mul_i32 s43, s47, 3", "s_add_u32 s53, s53, s43"] + k3_addrs(3, 53)
    binit = []
    for mat in range(2):
        for j in range(3):
            for tl in range(4):
                for q in range(4):
                    binit.append(f"v_mul_f32 v{k3_acc(3, mat, j, tl)+q}, -v{TT+2*tl}, v{CSR+(mat*3+j)*4+q}")
    bi = chunks(binit, 3)
    BODY = {9: bs + epi_reads(3, 128), 10: ["s_waitcnt lgkmcnt(0)"] + epi_consts(KBB, False), 11: bi[0], 12: bi[1], 13: bi[2]}
    k4set = k4_dma_setup(2 if not H4 else H4 + 4)
    if HH: k4set += ["s_mul_i32 s28, s38, 3", "s_add_u32 s28, s28, s40"]
    if H4:
        assert T1 <= H4 + 4 <= PA1
        if H4 + 4 > T1: k4set += ["s_add_u32 s37, s37, s54"]
    for sig in range(9, 15):
        pst(sig, BODY.get(sig, []), pre=k3_dma_setup(1, 51) if sig == 13 else [], post={14: k4set, 10: epi_store_setup(1)}.get(sig, []))
    a(f"s_branch {LK3b}")

    a(f"{L7}:")
    NB2 = 18
    Lno = a.label("Lnojob"); Lcs = a.label("Lcsd")
    stampc(a, "k2", 0)
    cs_setup(a, Lno, 64, 4, ptrs=True)
    EREG = [56, 60, 64] + list(range(72, 116, 4)) + [120, 124]
    def ld2(reg, q):
        a(f"s_mov_b32 s43, {q*4*7168}")
        a(f"buffer_load_dwordx4 v[{reg}:{reg+3}], v4, s[64:67], s43 offen")
    a("s_lshl_b32 s55, s45, 1")
    a("s_add_u32 s55, s55, s44")
    a("s_mul_i32 s55, s55, 14336")
    a("s_lshl_b32 s45, s46, 9")
    a("s_mov_b32 s50, s46")
    a("s_add_u32 s55, s55, s45")
    a("v_lshl_add_u32 v5, v5, 5, s55")
    srd(a, 72, 32, 8*14336, add_imm=WS_CS)
    for i in range(8): a(f"v_mov_b32 v{32+i}, 0")
    o_first_setup()
    k1_tail(0)
    EAT = env("CS_EAT", -2)
    if EAT == -2:
        for n in range(16): ld2(EREG[n], 32 + n)
    npr = [0]
    def proc(reg):
        t = 40 + 8*(npr[0] & 1); npr[0] += 1
        for d in range(4):
            a(f"v_lshlrev_b32 v{t+2*d}, 16, v{reg+d}")
            a(f"v_and_b32 v{t+2*d+1}, 0xffff0000, v{reg+d}")
        for d in range(4): a(f"v_pk_add_f32 v[{32+2*d}:{33+2*d}], v[{32+2*d}:{33+2*d}], v[{t+2*d}:{t+2*d+1}]")
    def mpf():
        if env("MPF", 0):
            a("s_mul_i32 s43, s2, 28672")
            srd(a, 76, 60, 28672, add_lo=43)
            a("v_lshlrev_b32 v19, 7, v1")
            for q in range(4):
                a(f"s_mov_b32 s43, {q*8192}")
                a("buffer_load_dword v30, v19, s[76:79], s43 offen")
    def cs_finish():
        a("s_nop 2")
        for sw in ("16", "32"):
            for d in range(8): a(f"v_mov_b32 v{40+d}, v{32+d}")
            a("s_nop 0")
            for d in range(8): a(f"v_permlane{sw}_swap_b32 v{32+d}, v{40+d}")
            for d in range(8): a(f"v_add_f32 v{32+d}, v{32+d}, v{40+d}")
        a("s_mov_b64 exec, 0xffff")
        a("buffer_store_dwordx4 v[32:35], v5, s[72:75], 0 offen sc1")
        a("buffer_store_dwordx4 v[36:39], v5, s[72:75], 0 offen offset:16 sc1")
        a("s_mov_b64 exec, -1")
    LT = env("CS_LT", 7); PRE = env("CS_PRE", 8); CLN = env("CS_LN", 4)
    todo = [128 + 4*n for n in range(32)] + EREG
    for r in todo[:PRE]: proc(r)
    todo = todo[PRE:]
    a("s_waitcnt lgkmcnt(0)")
    stamp(a, 7)
    for q in range(NB2):
        st = q - 2
        if q == 1:
            o_first()
            a("s_waitcnt vmcnt(2)")
        if q == 2: a("s_waitcnt vmcnt(0)")
        if st == EAT and EAT >= 0:
            for n in range(16): ld2(EREG[n], 32 + n)
        if EAT >= 0 and todo and todo[0] == EREG[0]: a(f"s_waitcnt vmcnt({16 if st > LT else 0})")
        if st == LT:
            assert npr[0] >= 16
            for n in range(16): ld2(128 + 4*n, 48 + n)
        elif st >= 1:
            if not todo and st >= LT + 4 and npr[0] == 48:
                a("s_waitcnt vmcnt(0)")
                todo = [128 + 4*n for n in range(16)]
            for r in todo[:CLN]: proc(r)
            todo = todo[CLN:]
        a("s_barrier")
        stampc(a, "k2", q+1)
    if npr[0] == 48:
        a("s_waitcnt vmcnt(0)")
        todo = [128 + 4*n for n in range(16)]
    for r in todo: proc(r)
    assert npr[0] == 64
    cs_finish()
    a("s_waitcnt vmcnt(0)")
    flag_signal(a, 56, "cs", 50, v=12)
    mpf()
    a(f"s_branch {Lcs}")
    a(f"{Lno}:")
    o_first_setup()
    k1_tail(0)
    a("s_waitcnt lgkmcnt(0)")
    for q in range(NB2):
        if q == 1:
            o_first()
            a("s_waitcnt vmcnt(2)")
        if q == 2: a("s_waitcnt vmcnt(0)")
        a("s_barrier")
        stampc(a, "k2", q+1)
    mpf()
    a(f"{Lcs}:")
    a("s_mov_b32 s46, 1")
    x_first_setup()
    k3pf = K3PF(a, 0)
    PD = env("K3PD", 6)
    if env("K3PF", 0) or env("K3PF0", 0):
        k3pf.setup()
        for s in range(3, max(PD, env("K3PF0", 0))): k3pf.issue(s)
    S3 = env("K3_SPF", 1); S4 = env("K4_SPF", 1)
    sp3 = SPF3(a)
    if S3:
        sp3.setup(0); sp3.issue(3)
    a("s_lshl_b32 s43, s34, 14")
    srd(a, 64, 32, 16384, add_lo=43, add_imm=WS_ST2)
    srd(a, 72, 32, 8*14336, add_imm=WS_CS)
    if not SPEC3:
        a("s_barrier")
        stampc(a, "k2", 20)
        x_first()
        a("s_waitcnt vmcnt(2)")
    a("s_barrier")
    stampc(a, "k2", 21)
    stampc(a, "k3", 31)
    stampc(a, "k3", 0)
    def w7dst(i):
        if not i.startswith("s_load_dword"): return i
        q = int(i.split()[1][1:-1]) - 64
        return i.replace(f"s{64+q},", f"s{82 + q % 6},")
    STL = env("STL", 1); CSP = STL + 3
    for sig in range(15):
        if sig == 0:
            if SPEC3: flag_signal(a, 56, "h", 34, v=8)
            else: a("s_waitcnt vmcnt(0)")
        if SPEC3 and sig == NV3 - 3 - env("PL3", 1): flag_poll_issue(a, 56, "h", 34, v=8)
        if SPEC3 and sig == NV3 - 3: flag_poll_finish(a, 56, v=8)
        if 100 + sig in ICW: code_warm(a, 78, 19, 30)
        if sig == 14: warm_jump(a, ("L3h", 0))
        if S3 and sig == env("S3A", 5): sp3.issue(8)
        if S3 and sig == env("S3B", 10):
            sp3.setup(1); sp3.issue(0)
        if sig == STL + 1:
            a("s_mul_i32 s43, s49, 96")
            a("s_add_u32 s44, s43, 95")
            a("s_lshr_b32 s43, s43, 7")
            a("s_lshr_b32 s44, s44, 7")
            a("s_add_u32 s43, s43, 16")
            a("s_add_u32 s44, s44, 16")
            a("v_mov_b32 v12, s44")
            a("v_writelane_b32 v12, s35, 0")
            a("v_writelane_b32 v12, s43, 1")
            a(f"v_add_u32 v12, {FLG['cs'][0]}, v12")
            a("v_lshlrev_b32 v12, 7, v12")
            a(f"v_mov_b32 v14, {FLG['cs'][1]}")
            a("buffer_load_dword v13, v12, s[56:59], 0 offen sc1")
        if sig == (NV3 - 2 if SPEC3 else STL):
            for n in range(16):
                a(f"s_mov_b32 s43, {n*1024}")
                a(f"buffer_load_dwordx4 v[{128+4*n}:{128+4*n+3}], v21, s[64:67], s43 offen sc1")
        if env("K3PF", 0) and sig >= 1:
            if sig + PD - 1 < 16: k3pf.issue(sig + PD - 1)
            elif sig + PD - 1 == 16:
                k3pf.part = 1; k3pf.setup()
            if 16 <= sig + PD - 1 < 19: k3pf.issue(sig + PD - 1 - 16)
        if sig == CSP:
            flag_poll_finish(a, 56, v=12)
            a("v_min_u32 v12, 55, v1")
            a("v_lshlrev_b32 v13, 4, v12")
            a("s_lshl_b32 s43, s35, 9")
            a("s_mul_i32 s44, s49, 384")
            a(f"s_add_u32 s44, s44, {8192 - 512}")
            a("v_mov_b32 v14, s44")
            a("v_mov_b32 v15, s43")
            a("v_cmp_gt_u32 vcc, 32, v12")
            a("s_nop 1")
            a("v_cndmask_b32 v14, v14, v15, vcc")
            a("v_add_u32 v14, v14, v13")
            a(f"v_add_u32 v13, {CSF}, v13")
            for mat in range(2):
                for sl in range(4):
                    d = 192 + (mat*4+sl)*4
                    a(f"s_mov_b32 s43, {(sl*2+mat)*14336}")
                    a(f"buffer_load_dwordx4 v[{d}:{d+3}], v14, s[72:75], s43 offen sc1")
        SRD_ = max(CSP + 1, NV3) if SPEC3 else CSP + 1
        LAST_ = max(CSP + 3, SRD_)
        if sig == SRD_:
            if SPEC3: a("s_waitcnt vmcnt(0)")
            for n in range(1, 16):
                for q in range(4): a(f"v_add_f32 v{128+q}, v{128+q}, v{128+4*n+q}")
            for b in (128, 130):
                a(f"v_mul_f32 v{b}, 0x3a800000, v{b}")
                a(f"v_mul_f32 v{b+1}, 0x3a800000, v{b+1}")
                a(f"v_fma_f32 v{b+1}, -v{b}, v{b}, v{b+1}")
                a(f"v_max_f32 v{b+1}, 0, v{b+1}")
                a(f"v_add_f32 v{b+1}, 0x3727c5ac, v{b+1}")
                a(f"v_rsq_f32 v{b+1}, v{b+1}")
            a(f"v_add_u32 v19, {STATS}, v21")
            a("ds_write_b128 v19, v[128:131]")
        if sig == (CSP + 3 if SRD_ != CSP + 3 else CSP + 2):
            a("s_waitcnt vmcnt(0)" if not (SPEC3 and NV3 - 2 > CSP) else "s_waitcnt vmcnt(16)")
            for mat in range(2):
                b = 192 + mat*16
                for q in range(4):
                    a(f"v_add_f32 v{b+q}, v{b+q}, v{b+4+q}")
                    a(f"v_add_f32 v{b+8+q}, v{b+8+q}, v{b+12+q}")
                for q in range(4): a(f"v_add_f32 v{b+q}, v{b+q}, v{b+8+q}")
                a(f"ds_write_b128 v13, v[{b}:{b+3}] offset:{mat*896}")
        if sig == LAST_:
            a("s_waitcnt lgkmcnt(0)")
            assert sig < 9
        for i in BODY.get(sig, []) + (epi_store_setup(1) if sig == 10 else []) + (wd_base if sig == 0 else []) + (k4set if sig == 14 else []): a(i)
        assert LAST_ - 1 == W7SKIP
        if STAMPC != "k3":
            for i in swd(sig, True): a(w7dst(i))
        a("s_barrier")
        stampc(a, "k3", sig+1)

    a(f"{LK3b}:")
    stamp(a, 10)
    if PRIO: a("s_setprio 1")
    for i in k3_reads(3, 16, 0, SET[0]): a(i)
    k3_consumer(a, 3, 16, [0])
    stamp(a, 11)
    EB = epi_b()
    if env("STBB", 0): EB = batch(EB, env("STBB", 0))
    if "e" in STRIP: EB = [i for i in EB if i.startswith(ST)]
    eb = chunks(EB, env("EB_N", 8))
    SIG_B = last_with(eb, "0") + env("SIGB_D", 2)
    POLL_A1 = PA1 - 5; POLL_B = PB - 5
    UNI = PB - 4
    assert len(eb) <= UNI and SIG_B < POLL_B
    L7b = a.label("L7b")
    a("s_cmp_eq_u32 s36, 7")
    a(f"s_cbranch_scc1 {L7b}")
    for helper in (False, True):
        vm = VM(a)
        if helper: a(f"{L7b}:")
        m = k3_mfmas(3, SET[1])
        if H4: emit(a, vm, m, None)
        elif helper:
            emit(a, vm, m, None)
            a(f"s_mul_i32 s43, s38, {16*(T1-2)}")
            a("s_add_u32 s37, s37, s43")
        else:
            emit(a, vm, spread(m[:12], k4_items(2)), 2)
            emit(a, vm, spread(m[12:], k4_items(3)), 3)
        if PRIO: a("s_setprio 0")
        a("s_barrier")
        if helper: stampc(a, "k4", 0 - env("K4O", 0))
        def pslice(s, kind):
            body = eb[s] if s < len(eb) else []
            dma = (both(s + 4) if helper else s + 4 < NP4) and s >= H4
            if helper:
                if s == UNI - 1: warm_jump(a, ("LW4", 0))
                if s == SIG_B: flag_signal(a, 56, "hhb", 34, v=10); vm.add("f")
                if s == POLL_A1 - env("PLA", 2): flag_poll_issue(a, 56, "hha1", 34, v=10); vm.add("p")
                if s == POLL_B - env("PLB", 2): flag_poll_issue(a, 56, "hhb", 34, v=10); vm.add("p")
                if env("K4_SPF", 1):
                    if s == 0: sp4.setup()
                    for G, at in ((1, PA1 - env("S4B", 9)), (2, PB - env("S4C", 8)), (3, EB4 - env("S4D", 4))):
                        if s == at: sp4.issue(G); vm.add("f")
                if s == XSIG:
                    xflag_addr(a, 10, 0)
                    a("v_mov_b32 v11, 1")
                    a("s_mov_b64 exec, 1")
                    a("buffer_store_dword v11, v10, s[56:59], 0 offen sc1"); vm.add("f")
                    a("s_mov_b64 exec, -1")
                if s == XRCV - 1 - env("PLX", 2):
                    xflag_addr(a, 10, 1)
                    a("v_mov_b32 v12, 1")
                    a("buffer_load_dword v11, v10, s[56:59], 0 offen sc1"); vm.add("p")
            if s == UNI: a(f"s_mul_i32 s40, s53, {LB*16384 if kind == 'x' else LB*64*2048}")
            emit(a, vm, st_last(spread(body, k4_half(s+4, 1) if s < HH else k4_items(s+4, kind if s >= UNI else None), env("FR4", 100))) if dma else body, s+4)
            w = vm.cnt(s+2) if s + 2 in vm.q else 63
            if s == SIG_B - 1: w = min(w, vm.cnt("st0"))
            if w < 63: a(f"s_waitcnt vmcnt({w})")
            if helper and s in (POLL_A1, POLL_B, XRCV - 1): flag_poll_finish(a, 56, v=10, first=vm.cnt("p"))
            a("s_barrier")
            if helper: stampc(a, "k4", s+1 - env("K4O", 0))
        if helper:
            sp4 = SPF4(a)
            for s in range(NP4 - 1 if STAMPC == "k4" else XRCV): pslice(s, 'w')
            stamp(a, 12)
            stamp_flush(a)
            a(f"s_branch {Ld}")
        else:
            for s in range(UNI): pslice(s, None)
            LW = a.label("LW4")
            a("s_cmp_eq_u32 s51, 2")
            a(f"s_cbranch_scc1 {LW}")
            q0 = list(vm.q)
            for kind in ('x', 'w'):
                vm.q = list(q0)
                if kind == 'w': a(f"{LW}:")
                for s in range(UNI, NP4 - 2): pslice(s, kind)
                if STAMP:
                    stamp(a, 12)
                    stamp_flush(a)
                a(f"s_branch {Ld}")


NXS = 32 // MX
class XPF:
    G = NXS // 2
    def __init__(self, a, off, mul, sd=68, v=23):
        self.a = a; self.off = off; self.mul = mul; self.sd = sd; self.v = v
    def setup(self):
        a = self.a; v = self.v
        per = 128 // NXS
        a(f"s_mul_i32 s43, s34, {self.mul}")
        srd(a, self.sd, 32, self.mul, add_lo=43, add_imm=self.off)
        a(f"v_and_b32 v{v}, {per-1}, v1")
        a(f"s_mul_i32 s43, s49, {per}")
        a(f"v_add_u32 v{v}, s43, v{v}")
        a(f"v_lshlrev_b32 v{v}, 7, v{v}")
        a(f"v_lshrrev_b32 v19, {per.bit_length()-1}, v1")
        a(f"v_lshl_add_u32 v{v}, v19, 14, v{v}")
    def issue(self, st):
        a = self.a
        a(f"s_mov_b32 s43, {st*16384}")
        a(f"buffer_load_dword v30, v{self.v}, s[{self.sd}:{self.sd+3}], s43 offen sc1")


class K3PF:
    def __init__(self, a, part): self.a = a; self.part = part
    def setup(self):
        a = self.a
        if self.part == 0: a("s_lshl_b32 s43, s35, 8")
        else:
            a("s_mul_i32 s43, s49, 192")
            a("s_and_b32 s43, s43, 0xffffff80")
            a("s_add_u32 s43, s43, 4096")
        a("s_sub_u32 s44, 7340032, s43")
        for d, b in ((88, 4), (92, 6)):
            a(f"s_add_u32 s{d}, s{b}, s43")
            a(f"s_addc_u32 s{d+1}, s{b+1}, 0")
            a(f"s_mov_b32 s{d+2}, s44")
            a(f"s_mov_b32 s{d+3}, 0x20000")
        per = 64 // MX
        a("v_lshrrev_b32 v31, 1, v1")
        a(f"v_min_u32 v31, {min(per, 32)-1}, v31")
        a(f"s_mul_i32 s43, s48, {per}")
        a("v_add_u32 v31, s43, v31")
        a("v_mul_u32_u24 v31, 7168, v31")
        a("v_and_b32 v19, 1, v1")
        a("v_lshl_add_u32 v31, v19, 7, v31")
    def issue(self, st):
        a = self.a
        a(f"s_mov_b32 s43, {st*64*7168}")
        a("buffer_load_dword v30, v31, s[88:91], s43 offen")
        a("buffer_load_dword v30, v31, s[92:95], s43 offen")


class SPF3:
    def __init__(self, a): self.a = a
    def setup(self, part):
        a = self.a
        for d, b in ((88, 4), (92, 6)): srd(a, d, b, 7340032)
        a("s_lshr_b32 s43, s35, 3")
        a("v_and_b32 v19, 1, v1")
        a("v_bfe_u32 v23, v1, 2, 3")
        if part == 0:
            a("s_lshl_b32 s44, s43, 3")
            a("s_add_u32 s44, s44, 1")
            a("v_lshl_add_u32 v23, v19, 2, v23")
            a("v_add_u32 v23, s44, v23")
            a("s_lshl_b32 s43, s43, 11")
            a("s_add_u32 s43, s43, 384")
            a("s_movk_i32 s44, 1024")
        elif NBM:
            a("s_lshl_b32 s44, s43, 1")
            a("s_add_u32 s44, s44, 6")
            a("v_add_u32 v23, s44, v23")
            a("s_lshl_b32 s44, s43, 1")
            a("s_add_u32 s44, s44, 1")
            a("v_mad_u32_u24 v23, v19, s44, v23")
            a("s_lshl_b32 s44, s43, 10")
            a("s_lshl_b32 s43, s43, 11")
            a(f"s_sub_u32 s43, {51*128}, s43")
        else:
            a("s_mul_i32 s44, s43, 10")
            a("s_add_u32 s44, s44, 2")
            a("v_add_u32 v23, s44, v23")
            a("s_lshl_b32 s44, s43, 2")
            a("s_sub_u32 s44, 5, s44")
            a("v_mad_u32_u24 v23, v19, s44, v23")
            a("s_lshl_b32 s44, s43, 10")
            a("s_xor_b32 s44, s44, 1024")
            a("s_lshl_b32 s43, s43, 11")
            a(f"s_add_u32 s43, s43, {35*128}")
        a("s_lshr_b32 s45, s2, 3")
        a("s_mul_i32 s45, s45, 14336")
        a("s_add_u32 s43, s43, s45")
        a("v_mul_lo_u32 v31, v19, s44")
        a("v_bfe_u32 v19, v1, 1, 1")
        a("v_mul_u32_u24 v19, 7168, v19")
        a("v_add3_u32 v31, v31, v19, s43")
    def issue(self, st):
        a = self.a
        a(f"v_add_u32 v19, {st}, v23")
        a("v_and_b32 v19, 15, v19")
        a(f"v_mul_u32_u24 v19, {64*7168}, v19")
        a("v_add_u32 v19, v19, v31")
        a("buffer_load_dword v30, v19, s[88:91], 0 offen")
        a("buffer_load_dword v30, v19, s[92:95], 0 offen")


class SPF4:
    def __init__(self, a): self.a = a
    def setup(self):
        a = self.a
        srd(a, 80, 60, 7340032)
        a("v_and_b32 v29, 31, v1")
        a("v_lshlrev_b32 v29, 11, v29")
        a("s_and_b32 s43, s35, 8")
        a("s_or_b32 s43, s43, 3")
        a("s_lshl_b32 s43, s43, 7")
        a("v_add_u32 v29, s43, v29")
    def issue(self, G):
        a = self.a
        a("s_lshr_b32 s44, s2, 3")
        if G == 3: a("s_and_b32 s44, s44, 15")
        a(f"s_lshl_b32 s44, s44, {17 if G < 2 else 16}")
        a(f"s_add_u32 s43, s44, {[0, 32, 2048, 3072][G]*2048}")
        a("buffer_load_dword v30, v29, s[80:83], s43 offen")
```

```python
import sys, os
sys.path.insert(0, os.path.dirname(__file__))
from common import *
import k1, p234

HEADER = open("sequential_preLN__sliding_local_dilated__glu_gated_geglu__prompt.s.ref").read().split("; Override launch")[0]

def build(path, aslist):
    a = Asm()
    name = "f_kernel" if aslist else "sequential_preLN__sliding_local_dilated__glu_gated_geglu__prompt_kernel"
    kernel_header(a, name)
    Ld = a.label("Ldone")
    KNAME[0], KNAME[1] = name, Ld
    a("s_cmp_ge_u32 s2, 256")
    a(f"s_cbranch_scc1 {Ld}")
    for i in range(int(os.environ.get("PAD", "0"))): a("s_nop 0")
    if os.environ.get("PROBE"):
        ka, nb = [int(x) for x in os.environ["PROBE"].split(",")]
        a(f"s_load_dwordx2 s[4:5], s[0:1], {ka}")
        a(f"s_mul_i32 s3, s2, {nb//256}")
        a("v_lshlrev_b32 v1, 7, v0")
        a("s_waitcnt lgkmcnt(0)")
        srd(a, 8, 4, nb//256, add_lo=3)
        a("buffer_load_dword v2, v1, s[8:11], 0 offen")
        a("s_waitcnt vmcnt(0)")
        a("s_barrier")
    if os.environ.get("DELAY"):
        bit, n = [int(x) for x in os.environ["DELAY"].split(",")]
        a(f"s_bitcmp1_b32 s2, {bit}")
        a("s_cbranch_scc0 Lnodelay")
        a(f"s_mov_b32 s3, {n}")
        a("Ldelay:")
        a("s_sleep 8")
        a("s_sub_u32 s3, s3, 1")
        a("s_cmp_lg_u32 s3, 0")
        a("s_cbranch_scc1 Ldelay")
        a("Lnodelay:")
    k1.phase_k1(a)
    p234.phase_234(a, Ld)
    a(f"{Ld}:")
    a("s_endpgm")
    desc = kernel_desc(name, 256, 100, 256)
    k = f"kernel={name} " if aslist else ""
    out = HEADER + f"; @launch {k}grid=(256,1,1) block=(512,1,1) lds={LDS_TOTAL}\n" + '.amdgcn_target "amdgcn-amd-amdhsa--gfx950"\n.text\n' + a.text()
    out += '.section .rodata,"a"\n' + desc
    open(path, "w").write(out)

if __name__ == "__main__":
    build(sys.argv[1], len(sys.argv) > 2)
```

```python
WS_O   = 0
WS_H   = 4 << 20
WS_HH  = 8 << 20
WS_ST2 = 24 << 20
WS_ST1 = 25 << 20
WS_CS  = 26 << 20
WS_BYTES = 268435456

KA_X, KA_WQKV, KA_WO, KA_BX, KA_WG, KA_WU, KA_WD, KA_OUT, KA_DBG, KA_WS = [8*i for i in range(10)]


class Asm:
    def __init__(self):
        self.L = []
        self.uid = 0
    def __call__(self, s):
        for line in s.split("\n"):
            line = line.strip()
            if line:
                self.L.append(line)
    def label(self, base="L"):
        self.uid += 1
        return f"{base}_{self.uid}"
    def comment(self, s):
        self.L.append("; " + s)
    def text(self):
        return "\n".join(self.L) + "\n"


def kernel_header(a, name):
    a(f".globl {name}")
    a(".p2align 8")
    a(f".type {name},@function")
    a(f"{name}:")


def kernel_desc(name, vgpr, sgpr, accum):
    return f""".p2align 6
.amdhsa_kernel {name}
  .amdhsa_next_free_vgpr {vgpr}
  .amdhsa_next_free_sgpr {sgpr}
  .amdhsa_accum_offset {accum}
  .amdhsa_group_segment_fixed_size 0
  .amdhsa_kernarg_size 80
  .amdhsa_user_sgpr_count 2
  .amdhsa_user_sgpr_kernarg_segment_ptr 1
  .amdhsa_system_sgpr_workgroup_id_x 1
  .amdhsa_float_denorm_mode_32 3
  .amdhsa_float_denorm_mode_16_64 3
.end_amdhsa_kernel
"""


def srd(a, d, base, nbytes, add_lo=None, add_imm=0):
    if add_lo is not None:
        a(f"s_add_u32 s{d}, s{base}, s{add_lo}")
        a(f"s_addc_u32 s{d+1}, s{base+1}, 0")
        if add_imm:
            a(f"s_add_u32 s{d}, s{d}, {add_imm}")
            a(f"s_addc_u32 s{d+1}, s{d+1}, 0")
    elif add_imm:
        a(f"s_add_u32 s{d}, s{base}, {add_imm}")
        a(f"s_addc_u32 s{d+1}, s{base+1}, 0")
    else:
        a(f"s_mov_b32 s{d}, s{base}")
        a(f"s_mov_b32 s{d+1}, s{base+1}")
    a(f"s_mov_b32 s{d+2}, {nbytes}")
    a(f"s_mov_b32 s{d+3}, 0x20000")


def interleave(main, fill, start=0, every=1):
    out = []
    fi = 0
    for i, m in enumerate(main):
        out.append(m)
        if i >= start and (i - start) % every == 0 and fi < len(fill):
            out.append(fill[fi]); fi += 1
    out.extend(fill[fi:])
    return out


import os
STAMP = bool(os.environ.get("STAMP"))
REG = 49152
SLOT = 24576
STATS = 147456
CSF = 148480
DBG = 150528
LDS_TOTAL = 151552
WS_DBG = 28 << 20
HH_M = 448 * 2048

def stamp_init(a):
    if not STAMP: return
    a("s_lshl_b32 s96, s36, 7")
    a(f"s_add_u32 s96, s96, {DBG}")
    a("v_mov_b32 v26, s96")
STAMPC = os.environ.get("STAMPC", "")
def stampc(a, kind, idx):
    if kind != STAMPC or not 0 <= idx < 32: return
    a("s_memtime s[96:97]")
    a("s_waitcnt lgkmcnt(0)")
    a("v_mov_b32 v24, s96")
    a(f"ds_write_b32 v26, v24 offset:{4*idx}")
def stamp(a, idx):
    if not STAMP or STAMPC: return
    a("s_memtime s[96:97]")
    a("s_memrealtime s[98:99]")
    a("s_waitcnt lgkmcnt(0)")
    a("v_mov_b32 v24, s96")
    a("v_mov_b32 v25, s98")
    a(f"ds_write_b64 v26, v[24:25] offset:{8*idx}")
def stamp_flush(a):
    if not STAMP: return
    a("s_waitcnt lgkmcnt(0)")
    a("v_and_b32 v24, 31, v1")
    a("v_lshlrev_b32 v24, 2, v24")
    a("v_add_u32 v25, v26, v24")
    a("ds_read_b32 v25, v25")
    a(f"s_add_u32 s96, s32, {WS_DBG}")
    a("s_addc_u32 s97, s33, 0")
    a("s_mov_b32 s98, 262144")
    a("s_mov_b32 s99, 0x20000")
    a("s_lshl_b32 s94, s2, 3")
    a("s_add_u32 s94, s94, s36")
    a("s_lshl_b32 s94, s94, 7")
    a("s_waitcnt lgkmcnt(0)")
    a("buffer_store_dword v25, v24, s[96:99], s94 offen")

WS_FLG = 27 << 20
FLG = {"o": (0, 16), "h": (16, 16), "hha0": (32, 16), "hha1": (48, 16), "hhb": (64, 16), "cs": (96, 8), "ln": (80, 16)}

def flag_srd(a, d, ws_pair=32):
    srd(a, d, ws_pair, 256*128, add_imm=WS_FLG)

def flag_addr(a, kind, idx_sgpr, v):
    if idx_sgpr is None: a(f"v_mov_b32 v{v}, {FLG[kind][0] << 7}")
    else:
        a(f"s_add_u32 s43, s{idx_sgpr}, {FLG[kind][0]}")
        a("s_lshl_b32 s43, s43, 7")
        a(f"v_mov_b32 v{v}, s43")

def flag_signal(a, d, kind, idx_sgpr, v=5):
    flag_addr(a, kind, idx_sgpr, v)
    a(f"v_mov_b32 v{v+1}, 1")
    a("s_mov_b64 exec, 1")
    a(f"buffer_atomic_add v{v+1}, v{v}, s[{d}:{d+3}], 0 offen sc1")
    a("s_mov_b64 exec, -1")

def flag_poll_issue(a, d, kind, idx_sgpr, v=8):
    flag_addr(a, kind, idx_sgpr, v)
    a(f"v_mov_b32 v{v+2}, {FLG[kind][1]}")
    a(f"buffer_load_dword v{v+1}, v{v}, s[{d}:{d+3}], 0 offen sc1")

def flag_poll_finish(a, d, v=8, first=0):
    Lp = a.label("Lpoll"); Lo = a.label("Lpok"); Lf = a.label("Lpf")
    a("s_mov_b32 s41, 0x10000")
    if first:
        a(f"s_waitcnt vmcnt({first})")
        a(f"s_branch {Lf}")
    a(f"{Lp}:")
    a("s_waitcnt vmcnt(0)")
    a(f"{Lf}:")
    a(f"v_cmp_ne_u32 vcc, v{v+2}, v{v+1}")
    a("s_nop 4")
    a(f"s_cbranch_vccz {Lo}")
    a(f"buffer_load_dword v{v+1}, v{v}, s[{d}:{d+3}], 0 offen sc1")
    a("s_sub_u32 s41, s41, 1")
    a("s_cmp_lg_u32 s41, 0")
    a(f"s_cbranch_scc1 {Lp}")
    a("s_waitcnt vmcnt(0)")
    a(f"{Lo}:")

def flag_poll(a, d, kind, idx_sgpr, v=8):
    NP = int(os.environ.get("NPOLL", "1"))
    if NP <= 1:
        flag_poll_issue(a, d, kind, idx_sgpr, v)
        flag_poll_finish(a, d, v)
        return
    flag_addr(a, kind, idx_sgpr, v)
    a(f"v_mov_b32 v{v+1}, {FLG[kind][1]}")
    Lp = a.label("Lpoll"); Lo = a.label("Lpok")
    a("s_mov_b32 s41, 0x8000")
    for q in range(NP - 1):
        a(f"buffer_load_dword v{v+2+q}, v{v}, s[{d}:{d+3}], 0 offen sc1")
        a(f"s_sleep {int(os.environ.get('PSLEEP', '3'))}")
    a(f"{Lp}:")
    for q in range(NP):
        a(f"buffer_load_dword v{v+2+(q+NP-1) % NP}, v{v}, s[{d}:{d+3}], 0 offen sc1")
        a(f"s_waitcnt vmcnt({NP-1})")
        a(f"v_cmp_ne_u32 vcc, v{v+1}, v{v+2+q}")
        a("s_nop 4")
        a(f"s_cbranch_vccz {Lo}")
    a("s_sub_u32 s41, s41, 1")
    a("s_cmp_lg_u32 s41, 0")
    a(f"s_cbranch_scc1 {Lp}")
    a(f"{Lo}:")

MX = int(os.environ.get("MX", "4"))
def mapping(a):
    lg = MX.bit_length() - 1
    a("s_and_b32 s3, s2, 7")
    a("s_lshr_b32 s42, s2, 3")
    if os.environ.get("MAPSWAP"):
        a(f"s_lshr_b32 s48, s42, {5-lg}")
        a(f"s_and_b32 s49, s42, {32//MX-1}")
    else:
        a(f"s_and_b32 s48, s42, {MX-1}")
        a(f"s_lshr_b32 s49, s42, {lg}")
    a(f"s_and_b32 s34, s3, {16//MX - 1}")
    a(f"s_lshl_b32 s34, s34, {lg}")
    a("s_add_u32 s34, s34, s48")
    a(f"s_lshr_b32 s35, s3, {4-lg}")
    a(f"s_lshl_b32 s35, s35, {5-lg}")
    a("s_add_u32 s35, s35, s49")

def pf_w64(a, W_ka, K, groups, sd, v, vd, lane=1):
    per = 64 // MX
    lgp = per.bit_length() - 1
    a(f"s_load_dwordx2 s[{sd+4}:{sd+5}], s[0:1], {W_ka}")
    a("s_lshl_b32 s43, s35, 7")
    a(f"s_lshl_b32 s44, s48, {lgp}")
    a(f"v_and_b32 v{v}, {per-1}, v{lane}")
    a(f"v_add_u32 v{v}, s44, v{v}")
    a(f"v_lshrrev_b32 v19, {lgp}, v{lane}")
    a(f"v_lshl_add_u32 v{v}, v19, 6, v{v}")
    a(f"v_lshlrev_b32 v{v}, 11, v{v}")
    a("s_waitcnt lgkmcnt(0)")
    srd(a, sd, sd+4, K*2048 - 1920, add_lo=43)
    for g in groups: pf_w64_issue(a, g, sd, v, vd)
    return len(groups)
def pf_w64_issue(a, g, sd, v, vd):
    a(f"s_mov_b32 s43, {g*MX*131072}")
    a(f"buffer_load_dword v{vd}, v{v}, s[{sd}:{sd+3}], s43 offen")

CS_NF = 32
def cs_setup(a, Lno, sd, va, ptrs=False):
    a("s_lshr_b32 s43, s2, 5")
    a("s_cmp_eq_u32 s43, 3")
    a(f"s_cbranch_scc1 {Lno}")
    a("s_cmp_gt_u32 s43, 3")
    a("s_cselect_b32 s43, 32, 0")
    a("s_sub_u32 s43, s2, s43")
    a("s_lshr_b32 s43, s43, 1")
    a("s_and_b32 s44, s2, 1")
    if ptrs:
        a("s_cmp_eq_u32 s44, 0")
        a(f"s_cselect_b32 s{sd+4}, s4, s6")
        a(f"s_cselect_b32 s{sd+5}, s5, s7")
    else:
        a("s_lshl_b32 s45, s44, 3")
        a(f"s_add_u32 s45, s45, {KA_WG}")
        a(f"s_load_dwordx2 s[{sd+4}:{sd+5}], s[0:1], s45")
    a("s_mul_i32 s45, s43, 2341")
    a("s_lshr_b32 s45, s45, 16")
    a("s_mul_i32 s46, s45, 28")
    a("s_sub_u32 s46, s43, s46")
    a(f"v_lshrrev_b32 v{va}, 4, v1")
    a("s_lshl_b32 s43, s45, 8")
    a(f"v_add_u32 v{va}, s43, v{va}")
    a(f"v_mul_u32_u24 v{va}, 7168, v{va}")
    a(f"v_and_b32 v{va+1}, 15, v1")
    a(f"v_lshl_add_u32 v{va}, v{va+1}, 4, v{va}")
    a("s_lshl_b32 s43, s46, 8")
    a(f"v_add_u32 v{va}, s43, v{va}")
    if not ptrs: a("s_waitcnt lgkmcnt(0)")
    srd(a, sd, sd+4, 7340032)

def cs_issue(a, n, sd, va):
    i = n % CS_NF
    a(f"s_mov_b32 s43, {n*4*7168}")
    a(f"buffer_load_dwordx4 v[{128+4*i}:{128+4*i+3}], v{va}, s[{sd}:{sd+3}], s43 offen")


CSM = os.environ.get("CSM", "e")
SPE = int(os.environ.get("K1_SPE", "13" if CSM == "d" else "12"))
SPS = int(os.environ.get("K1_SPS", "4"))
SPR = 36 if CSM == "d" else 2*(SPE - SPS + 1)
def cs_sbase(a, Lno, d, wsg):
    a("s_lshr_b32 s43, s2, 5")
    a("s_cmp_eq_u32 s43, 3")
    a(f"s_cbranch_scc1 {Lno}")
    a("s_cmp_gt_u32 s43, 3")
    a("s_cselect_b32 s43, 32, 0")
    a("s_sub_u32 s43, s2, s43")
    a("s_lshr_b32 s43, s43, 1")
    a("s_and_b32 s44, s2, 1")
    a("s_lshl_b32 s44, s44, 3")
    a(f"s_add_u32 s44, s44, {KA_WG}")
    a(f"s_load_dwordx2 s[{d}:{d+1}], s[0:1], s44")
    a("s_mul_i32 s45, s43, 2341")
    a("s_lshr_b32 s45, s45, 16")
    a("s_mul_i32 s46, s45, 28")
    a("s_sub_u32 s46, s43, s46")
    a("s_lshl_b32 s45, s45, 8")
    a(f"s_mul_i32 s44, s{wsg}, {SPR}")
    a("s_add_u32 s45, s45, s44")
    a(f"s_add_u32 s45, s45, {128 if CSM == 'd' else 256 - 4*SPR}")
    a("s_mul_i32 s45, s45, 7168")
    a("s_lshl_b32 s46, s46, 8")
    a("s_add_u32 s45, s45, s46")
    a("s_waitcnt lgkmcnt(0)")
    a(f"s_add_u32 s{d}, s{d}, s45")
    a(f"s_addc_u32 s{d+1}, s{d+1}, 0")

NPS = int(os.environ.get("K1_NPS", "2"))
def cs_spre(a, n, d0=64, nd=16):
    if not NPS: return
    for r in range(n):
        for q in range(4): a(f"s_load_dword s{d0 + (4*r+q) % nd}, s[80:81], {r*7168 + q*64}")
    a(f"s_add_u32 s80, s80, {n*7168}")
    a("s_addc_u32 s81, s81, 0")

WS_X = 32 << 20
XFLG = 128
def xflag_addr(a, v, flip):
    a("s_lshl_b32 s43, s34, 4")
    a("s_add_u32 s43, s43, s35")
    if flip: a("s_xor_b32 s43, s43, 1")
    a("s_and_b32 s44, s43, 1")
    a("s_lshl_b32 s44, s44, 2")
    a("s_lshr_b32 s43, s43, 1")
    a(f"s_add_u32 s43, s43, {XFLG}")
    a("s_lshl_b32 s43, s43, 7")
    a("s_add_u32 s43, s43, s44")
    a(f"v_mov_b32 v{v}, s43")


KNAME = [None, None]
def code_warm(a, sp=84, v=15, vd=31):
    L = a.label("Lpc")
    a(f"s_getpc_b64 s[{sp}:{sp+1}]")
    a(f"{L}:")
    a(f"s_sub_u32 s{sp}, s{sp}, {L}-{KNAME[0]}")
    a(f"s_subb_u32 s{sp+1}, s{sp+1}, 0")
    a("s_lshr_b32 s43, s2, 3")
    a("s_mul_i32 s43, s43, 3840")
    a(f"v_min_u32 v{v}, 29, v1")
    a(f"v_lshl_add_u32 v{v}, v{v}, 7, s43")
    a(f"v_min_u32 v{v}, {KNAME[1]}-{KNAME[0]}, v{v}")
    a(f"global_load_dword v{vd}, v{v}, s[{sp}:{sp+1}]")
ICW = [int(x) for x in os.environ.get("ICW", "2,10,105,122").split(",") if x]

WARM = []
def warm_jump(a, target):
    if not int(os.environ.get("WJ", "1")): return
    w = a.label("Lw"); r = a.label("Lr")
    a(f"s_branch {w}")
    a(f"{r}:")
    WARM.append((target, w, r))
def warm_place(a):
    for t, w, r in WARM:
        i = [k for k, l in enumerate(a.L) if l.endswith(":") and l[:-1].rsplit("_", 1)[0] == t[0]][t[1]]
        assert a.L[i-1].startswith("s_branch"), a.L[i-1]
        a.L[i:i] = [".p2align 6", f"{w}:", f"s_branch {r}", "s_nop 0"]
```

```python
import os, struct
from common import *

NS = 3
XB_ = 18432
STG1 = XB_ + 3*8192
RST = NS*STG1
CSUM = RST + 1152
LST = CSUM
LDS_K1 = CSUM + 768
QKV = 0
QP = 400

def fh(x): return "0x%08x" % struct.unpack("<I", struct.pack("<f", x))[0]

VGPR_K1 = 240
def phase_k1(a):
    strip = os.environ.get("K1_STRIP", "")
    nst = 16
    a(f"s_load_dwordx4 s[4:7], s[0:1], {KA_X}")
    a(f"s_load_dwordx2 s[32:33], s[0:1], {KA_WS}")
    a(f"s_load_dwordx2 s[80:81], s[0:1], {KA_WG}")
    mapping(a)
    a("v_lshrrev_b32 v12, 6, v0")
    a("v_and_b32 v1, 63, v0")
    a("v_readfirstlane_b32 s36, v12")
    a("s_nop 3")
    stamp_init(a)
    stamp(a, 0)
    a("s_lshl_b32 s44, s34, 18")
    a("s_lshl_b32 s45, s35, 14")
    a("s_add_u32 s45, s45, s44")
    a("s_lshl_b32 s50, s34, 7")
    a("s_sub_u32 s50, s50, 16")
    a("s_and_b32 s47, s36, 3")
    a("s_lshl_b32 s43, s34, 7")
    a("s_lshl_b32 s44, s35, 3")
    a("s_add_u32 s43, s43, s44")
    a("s_mov_b32 s63, s43")
    a("s_lshl_b32 s44, s47, 1")
    a("s_add_u32 s51, s43, s44")
    a("v_lshlrev_b32 v10, 4, v1")
    a("v_lshrrev_b32 v14, 3, v1")
    a("v_and_b32 v15, 7, v1")
    a("v_and_b32 v16, 2, v14")
    a("v_xor_b32 v16, v15, v16")
    a("v_lshlrev_b32 v16, 4, v16")
    a("v_mul_u32_u24 v17, 6144, v14")
    a("s_lshl_b32 s43, s47, 11")
    a("v_add3_u32 v2, v17, v16, s43")
    a("v_xor_b32 v3, 64, v2")
    a("v_lshrrev_b32 v16, 1, v14")
    a("v_xor_b32 v16, v15, v16")
    a("v_lshlrev_b32 v16, 4, v16")
    a("s_lshl_b32 s43, s47, 3")
    a("s_add_u32 s43, s43, s50")
    a("v_add_u32 v17, s43, v14")
    a("s_and_b32 s44, s47, 1")
    a("s_lshl_b32 s44, s44, 6")
    for i in range(6):
        a(f"v_add_u32 v18, {24*i}, v17")
        a("v_max_i32 v18, 0, v18")
        a("v_lshl_add_u32 v18, v18, 11, v16")
        a("v_xor_b32 v18, s44, v18")
        if i & 1: a(f"v_xor_b32 v{4+i}, 64, v18")
        else: a(f"v_mov_b32 v{4+i}, v18")
    a("s_lshl_b32 s39, s47, 10")
    a("s_lshl_b32 s40, s47, 13")
    a(f"s_add_u32 s40, s40, {XB_}")
    a("s_mov_b32 s37, 0")
    a("s_mov_b32 s38, 0")
    a("s_bfm_b64 s[60:61], 56, 8")
    a("s_cmp_eq_u32 s47, 0")
    a("s_cselect_b64 s[60:61], s[60:61], -1")
    a("s_mov_b32 s53, 0x3f803f80")
    a("v_and_b32 v12, 15, v1")
    a("v_lshrrev_b32 v13, 4, v1")
    a("s_lshl_b32 s43, s35, 7")
    a("s_waitcnt lgkmcnt(0)")
    srd(a, 8, 4, 2048*2048)
    srd(a, 12, 6, 1023*6144 + 4096 + 128, add_lo=43)
    srd(a, 16, 32, 16384, add_lo=45, add_imm=WS_O)
    srd(a, 20, 32, 2048*8, add_imm=WS_ST1)
    Lcons = a.label("Lcons"); Lpf = a.label("Lpf"); Latt = a.label("Latt")
    a("s_cmp_lt_u32 s36, 4")
    a(f"s_cbranch_scc1 {Lcons}")
    a("s_cmp_eq_u32 s36, 7")
    a(f"s_cbranch_scc1 {Lpf}")
    a(";@@CONS")
    a(f"{Lcons}:")

    def att_setup():
        a("s_and_b32 s43, s36, 1")
        a("s_lshr_b32 s44, s36, 1")
        a("s_and_b32 s44, s44, 1")
        a("s_lshr_b32 s45, s36, 2")
        a("v_lshlrev_b32 v14, 2, v13")
        a("v_sub_u32 v14, v12, v14")
        for r in range(4):
            a(f"v_subrev_u32 v15, {r}, v14")
            a(f"v_cmp_ge_u32 s[{52+2*r}:{53+2*r}], 7, v15")
            a(f"v_add_u32 v15, 16, v15")
            a(f"v_cmp_ge_u32 s[{84+2*r}:{85+2*r}], 7, v15")
        a("s_lshl_b32 s46, s45, 6")
        a("s_add_u32 s46, s46, s44")
        a("s_add_u32 s46, s46, 16")
        a("v_lshl_add_u32 v14, v12, 1, s46")
        a("s_lshl_b32 s47, s43, 6")
        a("v_lshl_add_u32 v15, v13, 4, s47")
        a(f"v_mul_u32_u24 v20, {QP}, v14")
        a("v_add_u32 v20, v20, v15")
        a("v_subrev_u32 v16, 32, v14")
        a("v_max_i32 v16, 0, v16")
        a(f"v_mul_u32_u24 v21, {QP}, v16")
        a("v_add_u32 v21, v21, v15")
        a("v_lshrrev_b32 v16, 2, v12")
        a("v_lshl_add_u32 v16, v13, 2, v16")
        a("v_lshl_add_u32 v16, v16, 1, s46")
        a("v_and_b32 v17, 3, v1")
        a("v_lshl_add_u32 v17, v17, 3, s47")
        a(f"v_mul_u32_u24 v22, {QP}, v16")
        a("v_add_u32 v22, v22, v17")
        a("v_subrev_u32 v16, 32, v16")
        a("v_max_i32 v16, 0, v16")
        a(f"v_mul_u32_u24 v23, {QP}, v16")
        a("v_add_u32 v23, v23, v17")
        a("s_lshl_b32 s60, s43, 13")
        a("s_lshl_b32 s61, s45, 10")
        a("s_add_u32 s60, s60, s61")
        a("s_lshl_b32 s61, s44, 8")
        a("s_add_u32 s60, s60, s61")
        a("v_lshlrev_b32 v27, 11, v13")
        a("v_lshl_add_u32 v27, v12, 4, v27")
        a("v_add_u32 v27, s60, v27")
        a("v_mov_b32 v28, 0xff800000")
        CS = (32 ** -0.5) * 1.4426950408889634
        a(f"s_mov_b32 s61, {fh(CS)}")
        a("s_nop 2")
        a("s_or_b32 s62, s34, s45")
        a("s_cmp_lg_u32 s62, 0")
        for r in range(4): a(f"s_cselect_b64 s[{64+2*r}:{65+2*r}], s[{84+2*r}:{85+2*r}], 0")

    if int(os.environ.get("K1_SPF", "4")) & 4:
        Lsp = a.label("Lsp")
        a("s_cmp_ge_u32 s36, 2")
        a(f"s_cbranch_scc1 {Lsp}")
        srd(a, 84, 6, 6291456)
        a("s_and_b32 s43, s35, 8")
        a("s_or_b32 s43, s43, 3")
        a("s_lshl_b32 s43, s43, 7")
        a("s_lshr_b32 s44, s2, 3")
        a("s_mul_i32 s44, s44, %d" % (32*6144))
        a("s_add_u32 s43, s43, s44")
        a("s_lshl_b32 s44, s36, 6")
        a("v_add_u32 v15, s44, v1")
        a("v_min_u32 v15, 95, v15")
        a("v_mul_u32_u24 v16, 21846, v15")
        a("v_lshrrev_b32 v16, 16, v16")
        a("v_mul_u32_u24 v17, 3, v16")
        a("v_sub_u32 v15, v15, v17")
        a("v_mul_u32_u24 v16, 6144, v16")
        a("v_lshl_add_u32 v15, v15, 11, v16")
        a("buffer_load_dword v31, v15, s[84:87], s43 offen")
        a(f"{Lsp}:")
    a("v_lshrrev_b32 v16, 1, v12")
    a("v_xor_b32 v15, v13, v16")
    a("v_lshlrev_b32 v15, 4, v15")
    a("v_lshl_add_u32 v2, v12, 7, v15")
    a("v_xor_b32 v3, 64, v2")
    a(f"v_add_u32 v4, {2*STG1}, v2")
    a(f"v_add_u32 v5, {2*STG1}, v3")
    a("v_lshrrev_b32 v15, 2, v12")
    a("v_and_b32 v16, 3, v1")
    a("v_lshl_add_u32 v19, v13, 3, v15")
    a("v_lshlrev_b32 v19, 7, v19")
    a("v_and_b32 v15, 2, v15")
    a("v_and_b32 v17, 1, v13")
    a("v_lshl_add_u32 v15, v17, 2, v15")
    a("v_lshrrev_b32 v17, 1, v16")
    a("s_lshl_b32 s43, s36, 1")
    a("v_add_u32 v17, s43, v17")
    a("v_xor_b32 v15, v15, v17")
    a("v_lshl_add_u32 v19, v15, 4, v19")
    a("v_and_b32 v16, 1, v16")
    a("v_lshl_add_u32 v19, v16, 3, v19")
    for sl in range(3):
        a(f"v_add_u32 v{6+sl}, {XB_ + sl*STG1}, v19")
    ACC = 128
    def accreg(seg, mt):
        return ACC + 36*seg + 4*mt
    for i in range(108): a(f"v_mov_b32 v{ACC+i}, 0")
    SET = [32, 80]
    def reads(s, kk, base):
        sl = s % NS
        xb = (2 + kk) if sl < 2 else (4 + kk)
        xo = (sl % 2)*STG1 if sl < 2 else 0
        def xr(mt): return f"ds_read_b128 v[{base+4*mt}:{base+4*mt+3}], v{xb} offset:{xo + mt*2048}"
        def wr(sg, h): return f"ds_read_b64_tr_b16 v[{base+36+4*sg+2*h}:{base+36+4*sg+2*h+1}], v{6+sl} offset:{sg*8192 + kk*4096 + h*512}"
        return [xr(0), wr(1,0), wr(1,1), wr(2,0), wr(2,1), wr(0,0), wr(0,1)] + [xr(m) for m in range(1, 9)]
    def mfmas(base):
        r = []
        for mt in range(9):
            for sg in (1, 2, 0):
                acc = accreg(sg, mt)
                r.append(f"v_mfma_f32_16x16x32_bf16 v[{acc}:{acc+3}], v[{base+36+4*sg}:{base+36+4*sg+3}], v[{base+4*mt}:{base+4*mt+3}], v[{acc}:{acc+3}]")
        return r
    def emit(seq):
        for i in seq:
            if "m" in strip and i.startswith("v_mfma"): continue
            if "r" in strip and i.startswith("ds_read"): continue
            a(i)
    att_setup()
    a(f"v_lshlrev_b32 v9, 3, v12")
    a(f"v_add_u32 v9, {RST}, v9")
    a(f"v_mul_u32_u24 v14, {QP}, v12")
    a("v_lshl_add_u32 v14, v13, 3, v14")
    a("s_lshl_b32 s43, s36, 5")
    a("v_add_u32 v14, s43, v14")
    a("s_barrier")
    stamp(a, 1)
    for i in reads(0, 0, SET[0]): a(i)
    def ln_group(mt, sg, pk):
        acc = accreg(sg, mt); r_ = []
        if pk:
            for r in (0, 2):
                r_.append(f"v_pk_fma_f32 v[{acc+r}:{acc+r+1}], v[{32+2*mt}:{33+2*mt}], v[{52+4*sg+r}:{53+4*sg+r}], v[{acc+r}:{acc+r+1}] op_sel_hi:[0,1,1] neg_lo:[1,0,0] neg_hi:[1,0,0]")
            for r in (0, 2):
                r_.append(f"v_pk_mul_f32 v[{acc+r}:{acc+r+1}], v[{32+2*mt}:{33+2*mt}], v[{acc+r}:{acc+r+1}] op_sel:[1,0] op_sel_hi:[1,1]")
        else:
            for r in range(4): r_.append(f"v_fma_f32 v{acc+r}, -v{32+2*mt}, v{52+4*sg+r}, v{acc+r}")
            for r in range(4): r_.append(f"v_mul_f32 v{acc+r}, v{33+2*mt}, v{acc+r}")
        r_.append(f"v_cvt_pk_bf16_f32 v{acc}, v{acc}, v{acc+1}")
        r_.append(f"v_cvt_pk_bf16_f32 v{acc+1}, v{acc+2}, v{acc+3}")
        r_.append(f"ds_write_b64 v14, v[{acc}:{acc+1}] offset:{QKV + mt*16*QP + sg*128}")
        return r_
    GROUPS = [(mt, sg) for mt in range(9) for sg in ((1, 2) if mt == 0 else (0, 1, 2))]
    NEARLY = int(os.environ.get("K1_LNE", "3"))
    bc = [f"v_mov_b32_dpp v{52+4*sg+r}, v{accreg(sg,0)+r} row_newbcast:0 row_mask:0xf bank_mask:0xf" for sg in range(3) for r in range(4)]
    def cstage(s, last):
        a("s_waitcnt lgkmcnt(0)")
        emit(interleave(mfmas(SET[0]), reads(s, 1, SET[1]), 0, 1))
        a("s_waitcnt lgkmcnt(0)")
        a("s_barrier")
        if not last:
            emit(interleave(mfmas(SET[1]), reads(s+1, 0, SET[0]), 0, 1))
            return
        m = mfmas(SET[1])
        emit(interleave(m[:9], [f"ds_read_b64 v[{32+2*mt}:{33+2*mt}], v9 offset:{mt*128}" for mt in range(9)]))
        fill = bc + ["s_waitcnt lgkmcnt(0)"] + sum((ln_group(mt, sg, False) for mt, sg in GROUPS[:NEARLY]), [])
        for i, x in enumerate(m[9:]):
            a(x)
            for y in fill[2*i:2*i+2]: a(y)
        for y in fill[2*len(m[9:]):]: a(y)
    nl = (nst-1)//NS
    a(f"s_mov_b32 s41, {nl}")
    Ll = a.label("Lcl")
    a(f"{Ll}:")
    for s in range(NS): cstage(s, False)
    a("s_sub_u32 s41, s41, 1")
    a("s_cmp_lg_u32 s41, 0")
    a(f"s_cbranch_scc1 {Ll}")
    for s in range(nl*NS, nst): cstage(s, s == nst-1)
    stamp(a, 2)
    for mt, sg in GROUPS[NEARLY:]:
        for i in ln_group(mt, sg, True): a(i)
    a("s_lshl_b32 s43, s36, 5")
    a("v_lshl_add_u32 v15, v12, 1, s43")
    a("v_lshlrev_b32 v15, 11, v15")
    a("v_and_b32 v16, 1, v13")
    a("v_lshl_add_u32 v15, v16, 5, v15")
    a("v_lshrrev_b32 v16, 1, v13")
    a("v_lshl_add_u32 v15, v16, 4, v15")
    a("s_lshl_b32 s43, s34, 18")
    a("s_lshl_b32 s44, s35, 7")
    a("s_add_u32 s43, s43, s44")
    a("s_waitcnt lgkmcnt(0)")
    for tl in range(2):
        for kb in range(2):
            d = 160 + (tl*2+kb)*4
            a(f"buffer_load_dwordx4 v[{d}:{d+3}], v15, s[8:11], s43 offen offset:{tl*2048 + kb*64}")
    a("s_waitcnt lgkmcnt(0)")
    a(f"s_branch {Latt}")

    a(";@@PROD")
    def rows_load(srow, dst=96, add=0):
        a(f"s_lshl_b32 s43, s{srow}, 11")
        if add: a(f"s_add_u32 s43, s43, {add*2048}")
        for q in range(4):
            a(f"buffer_load_dwordx4 v[{dst+4*q}:{dst+4*q+3}], v10, s[8:11], s43 offen offset:{q*1024}")
    def rows_stats_l(srcb=96):
        o = []
        R = [116, 118, 120, 122]
        for r in range(2):
            sa, qa = 116+4*r, 118+4*r
            for i in range(8):
                src = srcb + 8*r + i
                t = 124 + 2*(i & 1)
                o.append(f"v_lshlrev_b32 v{t if i else sa}, 16, v{src}")
                o.append(f"v_and_b32 v{t+1 if i else sa+1}, 0xffff0000, v{src}")
                if i == 0:
                    o.append(f"v_mul_f32 v{qa}, v{sa}, v{sa}"); o.append(f"v_mul_f32 v{qa+1}, v{sa+1}, v{sa+1}")
                else:
                    o.append(f"v_add_f32 v{sa}, v{sa}, v{t}"); o.append(f"v_add_f32 v{sa+1}, v{sa+1}, v{t+1}")
                    o.append(f"v_fmac_f32 v{qa}, v{t}, v{t}"); o.append(f"v_fmac_f32 v{qa+1}, v{t+1}, v{t+1}")
        for x in R: o.append(f"v_add_f32 v{x}, v{x}, v{x+1}")
        for sh in (8, 4, 2, 1):
            for x in R: o.append(f"v_add_f32_dpp v{x}, v{x}, v{x} row_ror:{sh} row_mask:0xf bank_mask:0xf")
        for sw in ("16", "32"):
            for x in R: o.append(f"v_mov_b32 v{x+1}, v{x}")
            o.append("s_nop 0")
            for x in R: o.append(f"v_permlane{sw}_swap_b32 v{x}, v{x+1}")
            for x in R: o.append(f"v_add_f32 v{x}, v{x}, v{x+1}")
        for r in range(2):
            sv, qv, d = 116+4*r, 118+4*r, 112+2*r
            o.append(f"v_mul_f32 v{d}, 0x3a800000, v{sv}")
            o.append(f"v_mul_f32 v{d+1}, 0x3a800000, v{qv}")
            o.append(f"v_fma_f32 v{d+1}, -v{d}, v{d}, v{d+1}")
            o.append(f"v_max_f32 v{d+1}, 0, v{d+1}")
            o.append(f"v_add_f32 v{d+1}, 0x3727c5ac, v{d+1}")
            o.append(f"v_rsq_f32 v{d+1}, v{d+1}")
        o.append("s_nop 0")
        return o
    def rows_stats(part=None):
        l = rows_stats_l()
        for i in (l if part is None else l[len(l)*part//3:len(l)*(part+1)//3]): a(i)
    def rows_local():
        a("s_lshl_b32 s43, s47, 4")
        a(f"s_add_u32 s43, s43, {LST}")
        a("v_mov_b32 v11, s43")
        a("ds_write_b128 v11, v[112:115]")
        a("s_waitcnt lgkmcnt(0)")
    HYB = os.environ.get("K1_PF", "mall1") == "hyb"
    def wpre(s):
        if not HYB or s > 4: return
        if s == 0:
            a("s_mul_i32 s43, s2, 10752")
            a("s_mul_i32 s44, s47, 2688")
            a("s_add_u32 s43, s43, s44")
            a(f"s_add_u32 s43, s43, {576*6144}")
            a("s_add_u32 s82, s6, s43")
            a("s_addc_u32 s83, s7, 0")
        lo = [0, 10, 18, 26, 34, 42]
        for q in range(lo[s], lo[s+1]): a(f"s_load_dword s{64 + q % 16}, s[82:83], {64*q}")
    def spre_setup():
        if not NPS: return
        Lj = a.label("Lsj")
        cs_sbase(a, Lj, 80, 47)
        a(f"{Lj}:")
    def spre(n=2): cs_spre(a, n)
    def dma(slot, lo=0, hi=14):
        xs, ws = [], []
        for i in range(6):
            g = [f"s_add_u32 m0, s39, {slot*STG1 + i*3072}", "s_mov_b64 exec, s[60:61]" if i == 0 else "s_nop 0",
                 f"buffer_load_dwordx4 v{4+i}, s[8:11], s37 offen lds"]
            if i == 0: g.append("s_mov_b64 exec, -1")
            xs.append(g)
        for j in range(8):
            ws.append([f"s_add_u32 m0, s40, {slot*STG1 + j*1024}", f"s_add_u32 s43, s38, {8*j*6144}",
                       f"buffer_load_dwordx4 v{2+(j&1)}, s[12:15], s43 offen lds"])
        gs = interleave(ws, xs) if int(os.environ.get("K1_ILV", "0")) else xs + ws
        for g in gs[lo:hi]:
            for i in g: a(i)
        if hi == 14:
            a("s_add_u32 s37, s37, 128")
            a(f"s_add_u32 s38, s38, {64*6144}")
    stamp(a, 1)
    E0 = int(os.environ.get("K1_E0", "14"))
    dma(0); dma(1, 0, E0)
    stamp(a, 2)
    a(f"s_waitcnt vmcnt({E0})")
    a("s_barrier")
    if E0 < 14: dma(1, E0, 14)
    dma(2)
    RW = int(os.environ.get("K1_RW", "0"))
    POI = int(os.environ.get("POI", "13")) if int(os.environ.get("SPEC3", "0")) else -9
    def pstage(s, do_dma, vm, extra=None):
        if do_dma: dma((s+2) % NS)
        if s == RW: rows_load(51)
        if s in (RW+2, RW+3, RW+4): rows_stats(s - RW - 2)
        if s == RW+4: rows_local()
        if s == 0: spre_setup()
        if s == POI:
            srd(a, 24, 16, 16384, add_imm=WS_H - WS_O)
            for i in range(4): a(f"v_mov_b32 v{128+i}, -1")
            a("s_mul_i32 s43, s47, 5120")
            for q in range(6):
                if q == 4: a("s_add_u32 s43, s43, 4096")
                a(f"buffer_store_dwordx4 v[128:131], v10, s[24:27], s43 offen offset:{(q & 3)*1024} sc1")
        if vm is not None and s in (POI, POI + 1): vm += 6
        wpre(s)
        if max(SPS, RW+4) <= s <= SPE: spre()
        if vm is not None: a(f"s_waitcnt vmcnt({vm + (4 if s == RW else 0)})")
        a("s_barrier")
    for s in range(14): pstage(s, s > 0, 14)
    pstage(14, False, 0)
    pstage(15, False, None)
    Lw4 = a.label("Lx"); Lw5 = a.label("Lx"); Lwe = a.label("Lx")
    a("s_cmp_eq_u32 s47, 0")
    a(f"s_cbranch_scc1 {Lw4}")
    a("s_cmp_eq_u32 s47, 1")
    a(f"s_cbranch_scc1 {Lw5}")
    warm_jump(a, ("Lp", 2))
    a(f"s_branch {Lwe}")
    a(f"{Lw5}:")
    warm_jump(a, ("Lp", 1))
    a(f"s_branch {Lwe}")
    a(f"{Lw4}:")
    warm_jump(a, ("LG1", 0))
    a(f"{Lwe}:")
    a("s_waitcnt lgkmcnt(0)")
    att_setup()
    a(f"s_branch {Latt}")

    a(";@@W7")
    a(f"{Lpf}:")
    PFM = os.environ.get("K1_PF", "mall1")
    PF = PFM == "l2"
    a(f"s_load_dwordx2 s[26:27], s[0:1], {KA_DBG}")
    Lz = a.label("Lz")
    a("s_or_b32 s43, s34, s35")
    a("s_cmp_lg_u32 s43, 0")
    a(f"s_cbranch_scc1 {Lz}")
    flag_srd(a, 84)
    a("v_lshlrev_b32 v14, 7, v1")
    a("v_mov_b32 v36, 0")
    a("v_mov_b32 v37, 0")
    for q in range(4):
        a(f"s_mov_b32 s43, {q*8192}")
        a("buffer_store_dwordx2 v[36:37], v14, s[84:87], s43 offen sc1")
    a(f"{Lz}:")
    if RW == 0: rows_load(51)
    a("v_min_u32 v14, 23, v1")
    a("v_lshrrev_b32 v15, 3, v14")
    a(f"v_mul_u32_u24 v15, {STG1}, v15")
    a("v_and_b32 v14, 7, v14")
    a("v_lshl_add_u32 v15, v14, 4, v15")
    for i in range(4): a(f"v_mov_b32 v{32+i}, 0x3f803f80")
    a("ds_write_b128 v15, v[32:35]")
    PER = 64 // MX
    NPI = (3*PER + 63) // 64
    for q in range(NPI):
        a(f"v_add_u32 v14, {64*q}, v1")
        a(f"v_min_u32 v14, {3*PER-1}, v14")
        a("v_mul_u32_u24 v15, 21846, v14")
        a("v_lshrrev_b32 v15, 16, v15")
        a("v_mul_u32_u24 v16, 3, v15")
        a("v_sub_u32 v16, v14, v16")
        a(f"s_mul_i32 s43, s48, {PER}")
        a("v_add_u32 v15, s43, v15")
        a("v_mul_u32_u24 v15, 6144, v15")
        a(f"v_lshl_add_u32 v{2+q}, v16, 11, v15")
    vm = []
    def wait_for(tag):
        idx = max(i for i, t in enumerate(vm) if t == tag)
        a(f"s_waitcnt vmcnt({len(vm) - 1 - idx})")
    def l2pf(st):
        if not PF or st >= nst: return
        a(f"s_mov_b32 s43, {st*64*6144}")
        for q in range(NPI):
            a(f"buffer_load_dword v31, v{2+q}, s[12:15], s43 offen"); vm.append("pf")
    a("s_waitcnt lgkmcnt(0)")
    srd(a, 56, 26, 256)
    a("v_lshlrev_b32 v14, 7, v1")
    vm.append("rows")
    def mallpf():
        srd(a, 84, 6, 6291456)
        a("s_mul_i32 s43, s2, 24576")
        for q in range(3):
            a(f"buffer_load_dword v31, v14, s[84:87], s43 offen"); vm.append("pf")
            if q < 2: a("s_add_u32 s43, s43, 8192")
    def slowpf():
        srd(a, 84, 6, 6291456)
        a("s_lshr_b32 s44, s2, 3")
        if SPF & 1:
            a("s_and_b32 s43, s35, 8")
            a("s_or_b32 s43, s43, 3")
            a("s_lshl_b32 s43, s43, 7")
            a("s_mul_i32 s45, s44, %d" % (32*6144))
            a("s_add_u32 s43, s43, s45")
            for q in range(2):
                a(f"v_add_u32 v15, {64*q}, v1")
                a("v_min_u32 v15, 95, v15")
                a("v_mul_u32_u24 v16, 21846, v15")
                a("v_lshrrev_b32 v16, 16, v16")
                a("v_mul_u32_u24 v17, 3, v16")
                a("v_sub_u32 v15, v15, v17")
                a("v_mul_u32_u24 v16, 6144, v16")
                a("v_lshl_add_u32 v15, v15, 11, v16")
                a("buffer_load_dword v31, v15, s[84:87], s43 offen"); vm.append("pf")
        if SPF & 2:
            a("s_xor_b32 s43, s63, 64")
            a("s_lshl_b32 s43, s43, 11")
            a("buffer_load_dword v31, v14, s[8:11], s43 offen"); vm.append("pf")
            a("s_add_u32 s43, s43, 8192")
            a("buffer_load_dword v31, v14, s[8:11], s43 offen"); vm.append("pf")
    SPF = int(os.environ.get("K1_SPF", "4"))
    SPAT = int(os.environ.get("K1_SPAT", "0"))
    if PFM == "mall0": mallpf()
    if SPAT < 0: slowpf()
    stampc(a, "k1", 0)
    a("s_barrier")
    def mallpf2():
        srd(a, 84, 6, 6291456)
        a("s_mul_i32 s43, s2, 9216")
        a(f"s_add_u32 s43, s43, {192*6144}")
        a("buffer_load_dword v31, v14, s[84:87], s43 offen"); vm.append("pf")
        a("v_min_u32 v15, 7, v1")
        a("v_lshlrev_b32 v15, 7, v15")
        a("s_add_u32 s43, s43, 8192")
        a("buffer_load_dword v31, v15, s[84:87], s43 offen"); vm.append("pf")
    if PFM == "hyb": mallpf2()
    MST = int(os.environ.get("K1_MST", "1"))
    if PFM == "mall1" and not MST: mallpf()
    stampc(a, "k1", 1)
    GS = int(os.environ.get("K1_GS", "10" if RW < 2 else "11"))
    SS = int(os.environ.get("K1_SS", str(7 + RW)))
    PFN = int(os.environ.get("K1_PFN", "4"))
    CS0 = int(os.environ.get("K1_CS0", "14")); WOP = int(os.environ.get("K1_WOP", "13")); WOM = os.environ.get("K1_WOM", "mall")
    Lgd = a.label("Lgd")
    nxt = [3]
    for s in range(nst):
        if PFM == "mall1" and MST and s in (0, MST):
            Lm = a.label("Lm")
            a("s_cmp_ge_u32 s2, 128")
            a(f"s_cbranch_scc{1 if s == 0 else 0} {Lm}")
            n0 = len(vm); mallpf(); del vm[n0:]
            a(f"{Lm}:")
        if s in ICW:
            code_warm(a, 88); vm.append("pf")
        if s == SPAT: slowpf()
        if s == 0: spre_setup()
        if s == RW and RW > 0:
            rows_load(51); vm.extend(["rows"]*4)
        if s == 2:
            Lz = a.label("Lz")
            a("s_or_b32 s43, s34, s35")
            a("s_cmp_lg_u32 s43, 0")
            a(f"s_cbranch_scc1 {Lz}")
            a("s_waitcnt vmcnt(0)")
            a("v_mov_b32 v5, 1")
            a("v_mov_b32 v6, 0")
            a("s_mov_b64 exec, 1")
            a("buffer_store_dword v5, v6, s[56:59], 0 offen sc1")
            a("s_mov_b64 exec, -1")
            a(f"{Lz}:")
        if s == RW + 2:
            wait_for("rows")
            rows_stats(0)
        if s == RW + 3: rows_stats(1)
        if s == RW + 4:
            rows_stats(2); rows_local()
        if s == RW + 5:
            a("v_lshlrev_b32 v5, 4, v1")
            a("v_and_b32 v5, 63, v5")
            a(f"v_add_u32 v6, {LST}, v5")
            a("ds_read_b128 v[112:115], v6")
            a("s_lshl_b32 s43, s63, 3")
            a("v_add_u32 v5, s43, v5")
            a("s_waitcnt lgkmcnt(0)")
            a("s_mov_b64 exec, 15")
            a(f"buffer_store_dwordx4 v[112:115], v5, s[20:23], 0 offen sc1"); vm.append("store")
            a("s_mov_b64 exec, -1")
        if s < SS - 2:
            for q in range(PFN):
                l2pf(nxt[0]); nxt[0] += 1
        if s == int(os.environ.get("K1_X11", "99")):
            a(f"s_andn2_b32 s43, s34, {MX-1}")
            a("s_lshl_b32 s43, s43, 7")
            a("s_lshr_b32 s44, s2, 3")
            a("s_mul_i32 s44, s44, 17")
            a("s_add_u32 s43, s43, s44")
            a("s_sub_u32 s43, s43, 16")
            a("v_min_u32 v15, 16, v1")
            a("v_add_u32 v15, s43, v15")
            a("v_max_i32 v15, 0, v15")
            a("v_lshlrev_b32 v15, 11, v15")
            a("buffer_load_dword v31, v15, s[8:11], 0 offen offset:1408"); vm.append("pf")
        if s == WOP:
            if WOM == "l2":
                n = pf_w64(a, KA_WO, 1024, list(range(16//MX)), 84, 29, 30); vm.extend(["pf"]*n)
            elif WOM == "mall":
                a(f"s_load_dwordx2 s[88:89], s[0:1], {KA_WO}")
                a("v_lshlrev_b32 v29, 7, v1")
                a("s_lshl_b32 s43, s2, 13")
                a("s_waitcnt lgkmcnt(0)")
                srd(a, 84, 88, 2097152)
                a("buffer_load_dword v30, v29, s[84:87], s43 offen"); vm.append("pf")
                if int(os.environ.get("K2_SPF", "1")):
                    a("v_and_b32 v29, 31, v1")
                    a("v_lshlrev_b32 v29, 11, v29")
                    a("s_and_b32 s43, s35, 8")
                    a("s_or_b32 s43, s43, 3")
                    a("s_lshl_b32 s43, s43, 7")
                    a("s_lshr_b32 s44, s2, 3")
                    a("s_lshl_b32 s44, s44, 16")
                    a("s_add_u32 s43, s43, s44")
                    a("buffer_load_dword v30, v29, s[84:87], s43 offen"); vm.append("pf")
        if s == SS - 2:
            a("v_mov_b32 v7, 0")
            a("v_mov_b32 v9, 1")
            a("buffer_load_dword v8, v7, s[56:59], 0 offen sc1"); vm.append("z")
        if s == SS:
            flag_poll_finish(a, 56, v=7)
            flag_srd(a, 56)
            flag_signal(a, 56, "ln", 34); vm.append("at")
        if s == GS:
            a("s_sub_u32 s44, s34, 1")
            a("s_max_i32 s44, s44, 0")
            a("v_mov_b32 v5, s44")
            a("v_mov_b32 v6, s34")
            a("v_cmp_eq_u32 vcc, 0, v1")
            a("s_nop 1")
            a("v_cndmask_b32 v5, v5, v6, vcc")
            a(f"v_add_u32 v5, {FLG['ln'][0]}, v5")
            a("v_lshlrev_b32 v5, 7, v5")
            a("buffer_load_dword v6, v5, s[56:59], 0 offen sc1"); vm.append("poll")
        if s == GS + 2:
            Lpoll = a.label("Lpoll"); Lok = a.label("Lok"); Lfb = a.label("Lfb")
            a("s_mov_b32 s41, 200")
            a("s_mov_b32 s62, 0")
            wait_for("poll")
            a(f"{Lpoll}:")
            a("v_cmp_ne_u32 vcc, 16, v6")
            a("s_nop 4")
            a(f"s_cbranch_vccz {Lok}")
            a("buffer_load_dword v6, v5, s[56:59], 0 offen sc1")
            a("s_waitcnt vmcnt(0)")
            a("s_sub_u32 s41, s41, 1")
            a("s_cmp_lg_u32 s41, 0")
            a(f"s_cbranch_scc1 {Lpoll}")
            a("s_mov_b32 s41, 0")
            a(f"{Lfb}:")
            a("s_add_u32 s62, s50, s41")
            a("s_max_i32 s62, s62, 0")
            rows_load(62)
            a("s_waitcnt vmcnt(0)")
            rows_stats()
            a("s_lshl_b32 s43, s41, 3")
            a(f"s_add_u32 s43, s43, {RST}")
            a("v_mov_b32 v5, s43")
            a("ds_write_b128 v5, v[112:115]")
            a("s_add_u32 s41, s41, 2")
            a("s_cmp_lt_u32 s41, 144")
            a(f"s_cbranch_scc1 {Lfb}")
            a("s_mov_b32 s62, 1")
            a(f"{Lok}:")
            for q in range(3):
                a(f"v_add_u32 v5, {64*q}, v1")
                a("v_min_u32 v5, 143, v5")
                a(f"v_lshlrev_b32 v{20+q}, 3, v5")
                a("v_add_u32 v5, s50, v5")
                a("v_max_i32 v5, 0, v5")
                a("v_lshlrev_b32 v5, 3, v5")
                a(f"buffer_load_dwordx2 v[{32+2*q}:{33+2*q}], v5, s[20:23], 0 offen sc1"); vm.append("gather")
        if s == GS + 4:
            wait_for("gather")
            a("s_cmp_eq_u32 s62, 1")
            a(f"s_cbranch_scc1 {Lgd}")
            for q in range(3):
                a(f"v_add_u32 v{20+q}, {RST}, v{20+q}")
                a(f"ds_write_b64 v{20+q}, v[{32+2*q}:{33+2*q}]")
            a(f"{Lgd}:")
            a("s_waitcnt lgkmcnt(0)")
        if s in (CS0, CS0+1):
            Lnj = a.label("Lnj")
            cs_setup(a, Lnj, 84, 28)
            for q in range(16*(s-CS0), 16*(s-CS0+1)): cs_issue(a, q, 84, 28)
            a(f"{Lnj}:")
        if STAMPC != "k1": wpre(s)
        if max(RW + 5, SPS) <= s <= (11 if CSM == "d" else SPE) and STAMPC != "k1": spre()
        a("s_barrier")
        stampc(a, "k1", s+2)
    stampc(a, "k1", 18)
    warm_jump(a, ("L7", 0))
    a("s_waitcnt lgkmcnt(0)")
    att_setup()

    a(f"{Latt}:")
    a("s_barrier")
    stampc(a, "k1", 19)
    stamp(a, 3)
    U = 32*QP
    for u in range(2):
        B = 32 + 48*u
        uo = u*U
        a(f"ds_read_b128 v[{B}:{B+3}], v20 offset:{QKV + uo}")
        a(f"ds_read_b128 v[{B+4}:{B+7}], v20 offset:{QKV + uo + 128}")
        if u == 0: a(f"ds_read_b128 v[{B+8}:{B+11}], v21 offset:{QKV + 128}")
        else: a(f"ds_read_b128 v[{B+8}:{B+11}], v20 offset:{QKV + 128}")
    for u in range(2):
        B = 32 + 48*u
        uo = u*U
        for dh in range(2):
            if u == 0: a(f"ds_read_b64_tr_b16 v[{B+12+4*dh}:{B+13+4*dh}], v23 offset:{QKV + 256 + dh*32}")
            else: a(f"ds_read_b64_tr_b16 v[{B+12+4*dh}:{B+13+4*dh}], v22 offset:{QKV + 256 + dh*32}")
            a(f"ds_read_b64_tr_b16 v[{B+14+4*dh}:{B+15+4*dh}], v22 offset:{QKV + uo + 256 + dh*32}")
    for u in range(2):
        B = 32 + 48*u
        a(f"s_waitcnt lgkmcnt({11 if u == 0 else 8})")
        a(f"v_mfma_f32_16x16x32_bf16 v[{B+20}:{B+23}], v[{B+8}:{B+11}], v[{B}:{B+3}], 0")
        a(f"v_mfma_f32_16x16x32_bf16 v[{B+24}:{B+27}], v[{B+4}:{B+7}], v[{B}:{B+3}], 0")
    a("s_nop 7")
    def soft(u):
        B = 32 + 48*u
        S = B + 20; M = B + 28; T = B + 29; P = B + 32
        r_ = []
        am = 64 if u == 0 else 84
        for r in range(4): r_.append(f"v_cndmask_b32 v{S+r}, v28, v{S+r}, s[{am+2*r}:{am+2*r+1}]")
        for r in range(4): r_.append(f"v_cndmask_b32 v{S+4+r}, v28, v{S+4+r}, s[{52+2*r}:{53+2*r}]")
        r_.append(f"v_max3_f32 v{M}, v{S}, v{S+1}, v{S+2}")
        r_.append(f"v_max3_f32 v{T}, v{S+3}, v{S+4}, v{S+5}")
        r_.append(f"v_max3_f32 v{M}, v{M}, v{S+6}, v{S+7}")
        r_.append(f"v_max_f32 v{M}, v{M}, v{T}")
        for sw in ("32", "16"):
            r_.append(f"v_mov_b32 v{T}, v{M}")
            r_.append("s_nop 0")
            r_.append(f"v_permlane{sw}_swap_b32 v{M}, v{T}")
            r_.append(f"v_max_f32 v{M}, v{M}, v{T}")
        r_.append(f"v_mul_f32 v{M}, s61, v{M}")
        for r in range(8): r_.append(f"v_fma_f32 v{S+r}, v{S+r}, s61, -v{M}")
        for r in range(8): r_.append(f"v_exp_f32 v{S+r}, v{S+r}")
        for q in range(4): r_.append(f"v_cvt_pk_bf16_f32 v{P+q}, v{S+2*q}, v{S+2*q+1}")
        return r_
    def zip2(x, y):
        for i, j in zip(x, y):
            a(i)
            if not (i == j and i.startswith("s_nop")): a(j)
    zip2(soft(0), soft(1))
    a("s_waitcnt lgkmcnt(0)")
    for u in range(2):
        B = 32 + 48*u
        for dh in range(2):
            a(f"v_mfma_f32_16x16x32_bf16 v[{B+36+4*dh}:{B+39+4*dh}], v[{B+12+4*dh}:{B+15+4*dh}], v[{B+32}:{B+35}], 0")
    a(f"s_load_dwordx4 s[4:7], s[0:1], {KA_WG}")
    a(f"s_load_dwordx2 s[28:29], s[0:1], {KA_WO}")
    a(f"s_load_dwordx4 s[60:63], s[0:1], {KA_WD}")
    def rsum(u):
        B = 32 + 48*u
        S = B + 20; M = B + 28; T = B + 29
        r_ = [f"v_add_f32 v{M}, v{S}, v{S+1}", f"v_add_f32 v{T}, v{S+2}, v{S+3}", f"v_add_f32 v{S+4}, v{S+4}, v{S+5}", f"v_add_f32 v{S+6}, v{S+6}, v{S+7}",
              f"v_add_f32 v{M}, v{M}, v{T}", f"v_add_f32 v{S+4}, v{S+4}, v{S+6}", f"v_add_f32 v{M}, v{M}, v{S+4}"]
        for sw in ("32", "16"):
            r_.append(f"v_mov_b32 v{T}, v{M}")
            r_.append("s_nop 0")
            r_.append(f"v_permlane{sw}_swap_b32 v{M}, v{T}")
            r_.append(f"v_add_f32 v{M}, v{M}, v{T}")
        r_.append(f"v_rcp_f32 v{M}, v{M}")
        return r_
    zip2(rsum(0), rsum(1))
    a("s_nop 0")
    for u in range(2):
        B = 32 + 48*u
        M = B + 28; O = B + 36
        for r in range(0, 8, 2): a(f"v_pk_mul_f32 v[{O+r}:{O+r+1}], v[{M}:{M+1}], v[{O+r}:{O+r+1}] op_sel_hi:[0,1]")
        for q in range(4): a(f"v_cvt_pk_bf16_f32 v{O+q}, v{O+2*q}, v{O+2*q+1}")
        a(f"buffer_store_dwordx4 v[{O}:{O+3}], v27, s[16:19], 0 offen offset:{512*u} sc1")
    stamp(a, 4)
    ic, ip, iw = a.L.index(";@@CONS"), a.L.index(";@@PROD"), a.L.index(";@@W7")
    a.L[ic:iw] = a.L[ip:iw] + a.L[ic:ip]
```

```python
import sys, os
sys.path.insert(0, os.path.dirname(__file__))
from common import *
import k1, p234

HEADER = open("sequential_preLN__sliding_local_dilated__glu_gated_geglu__prompt.s.ref").read().split("; Override launch")[0]

def parity(a, desc, R):
    import subprocess, re
    src = '.amdgcn_target "amdgcn-amd-amdhsa--gfx950"\n.text\n' + "\n".join(l for l in a.L if not l.startswith(".p2align") or l == ".p2align 8") + '\n.section .rodata,"a"\n' + desc
    open("par.s", "w").write(src)
    subprocess.run(["clang", "-x", "assembler", "-target", "amdgcn-amd-amdhsa", "-mcpu=gfx950", "-c", "par.s", "-o", "par.o"], check=True)
    dis = subprocess.run(["llvm-objdump", "-d", "--mcpu=gfx950", "par.o"], capture_output=True, text=True).stdout
    sizes = [4*len(l.split("//")[1].split(":")[1].split()) for l in dis.split("\n") if "//" in l and l.startswith("\t")]
    isin = lambda l: not (l.endswith(":") or l.startswith(".") or l.startswith(";"))
    idx = [i for i, l in enumerate(a.L) if isin(l)]
    assert len(idx) == len(sizes), (len(idx), len(sizes))
    sz = dict(zip(idx, sizes))
    OK = ("v_mul_f32", "v_add_f32", "v_exp_f32", "v_rcp_f32", "v_mov_b32", "v_max_f32", "v_lshlrev_b32", "v_lshrrev_b32", "v_add_u32", "v_and_b32", "v_xor_b32", "v_sub_u32", "v_fmac_f32")
    out = []; ph = 0; last8 = -1; nw = nn = 0
    n = len(a.L)
    for i, l in enumerate(a.L):
        if l.startswith(".p2align"):
            ph = 0; last8 = len(out); out.append(l); continue
        if i not in sz: out.append(l); continue
        if sz[i] == 8 and ph == 4:
            r = 0; j = i
            while j < n and (j not in sz and not a.L[j].startswith(".p2align") or sz.get(j) == 8):
                r += j in sz; j += 1
            if r >= R:
                c = [k for k in range(last8 + 1, len(out)) if out[k].split(" ")[0] in OK and "dpp" not in out[k] and "row_" not in out[k]]
                if c:
                    op, rest = out[c[-1]].split(" ", 1); out[c[-1]] = op + "_e64 " + rest; ph = 0; nw += 1
                elif r >= 2*R and not out[last8].startswith(("s_branch", "s_cbranch")):
                    out.insert(last8 + 1, "s_nop 0"); ph = 0; nn += 1
        out.append(l)
        ph = (ph + sz[i]) % 8
        if sz[i] % 8 == 0 or l.startswith(("s_branch", "s_cbranch")): last8 = len(out) - 1
    a.L[:] = out
    sys.stderr.write(f"parity: {nw} widened, {nn} nops\n")

def build(path, aslist):
    a = Asm()
    name = "f_kernel" if aslist else "sequential_preLN__sliding_local_dilated__glu_gated_geglu__prompt_kernel"
    kernel_header(a, name)
    Ld = a.label("Ldone")
    KNAME[0], KNAME[1] = name, Ld
    a("s_cmp_ge_u32 s2, 256")
    a(f"s_cbranch_scc1 {Ld}")
    for i in range(int(os.environ.get("PAD", "0"))): a("s_nop 0")
    if os.environ.get("PROBE"):
        ka, nb = [int(x) for x in os.environ["PROBE"].split(",")]
        a(f"s_load_dwordx2 s[4:5], s[0:1], {ka}")
        a(f"s_mul_i32 s3, s2, {nb//256}")
        a("v_lshlrev_b32 v1, 7, v0")
        a("s_waitcnt lgkmcnt(0)")
        srd(a, 8, 4, nb//256, add_lo=3)
        a("buffer_load_dword v2, v1, s[8:11], 0 offen")
        a("s_waitcnt vmcnt(0)")
        a("s_barrier")
    if os.environ.get("DELAY"):
        bit, n = [int(x) for x in os.environ["DELAY"].split(",")]
        a(f"s_bitcmp1_b32 s2, {bit}")
        a("s_cbranch_scc0 Lnodelay")
        a(f"s_mov_b32 s3, {n}")
        a("Ldelay:")
        a("s_sleep 8")
        a("s_sub_u32 s3, s3, 1")
        a("s_cmp_lg_u32 s3, 0")
        a("s_cbranch_scc1 Ldelay")
        a("Lnodelay:")
    k1.phase_k1(a)
    p234.phase_234(a, Ld)
    assert a.L[-1].startswith("s_branch")
    a.L += COLD
    warm_place(a)
    SH = os.environ.get("SH", "").split(",")
    if os.environ.get("REG8", "1") == "1":
        import re
        regs = ["Lcons", "Latt", "Lcl", "Lk3", "Lk4", "Lp3", "L3h", "LK4", "LG1", "Lp", "LP3", "L7", "Lcsd", "LK3b", "L7b", "LW4"]
        out = []; cnt = {}
        for l in a.L:
            m = re.match(r"^(\w+?)_\d+:$", l)
            if m and m.group(1) in regs:
                k = m.group(1) + str(cnt.get(m.group(1), 0)); cnt[m.group(1)] = cnt.get(m.group(1), 0) + 1
                out.append(".p2align 3")
                if k in SH: out.append("s_nop 0")
            out.append(l)
        a.L[:] = out
    AL = os.environ.get("AL", "")
    if AL:
        import re
        pat = []
        if "loop" in AL: pat += ["Lk3", "Lk4", "Lcl", "Lp3", "Lg2"]
        if "role" in AL: pat += ["Lcons", "Lpf_3", "Latt", "L3h", "LK4", "LG1", "Lp", "LP3", "L7", "LK3b", "L7b", "LW4", "Lnojob", "Lcsd"]
        out = []
        for l in a.L:
            m = re.match(r"^(\w+?)_\d+:$", l)
            if m and (m.group(1) in pat or l[:-1] in pat): out.append(f".p2align {os.environ.get('ALN', '6')}")
            out.append(l)
        a.L[:] = out
    a(f"{Ld}:")
    a("s_endpgm")
    desc = kernel_desc(name, 256, 100, 256)
    R = int(os.environ.get("PAR", "0"))
    if R: parity(a, desc, R)
    k = f"kernel={name} " if aslist else ""
    out = HEADER + f"; @launch {k}grid=(256,1,1) block=(512,1,1) lds={LDS_TOTAL}\n" + '.amdgcn_target "amdgcn-amd-amdhsa--gfx950"\n.text\n' + a.text()
    out += '.section .rodata,"a"\n' + desc
    open(path, "w").write(out)

if __name__ == "__main__":
    build(sys.argv[1], len(sys.argv) > 2)
```

```python
import os, struct
from common import *

NS = 3
XB_ = 18432
STG1 = XB_ + 3*8192
RST = NS*STG1
CSUM = RST + 1152
LST = CSUM
LDS_K1 = CSUM + 768
QKV = 0
QP = 400

def fh(x): return "0x%08x" % struct.unpack("<I", struct.pack("<f", x))[0]

VGPR_K1 = 240
def phase_k1(a):
    strip = os.environ.get("K1_STRIP", "")
    nst = 16
    a(f"s_load_dwordx4 s[4:7], s[0:1], {KA_X}")
    a(f"s_load_dwordx2 s[32:33], s[0:1], {KA_WS}")
    a(f"s_load_dwordx2 s[80:81], s[0:1], {KA_WG}")
    mapping(a)
    a("v_lshrrev_b32 v12, 6, v0")
    a("v_and_b32 v1, 63, v0")
    a("v_readfirstlane_b32 s36, v12")
    a("s_nop 3")
    stamp_init(a)
    stamp(a, 0)
    a("s_lshl_b32 s44, s34, 18")
    a("s_lshl_b32 s45, s35, 14")
    a("s_add_u32 s45, s45, s44")
    a("s_lshl_b32 s50, s34, 7")
    a("s_sub_u32 s50, s50, 16")
    a("s_and_b32 s47, s36, 3")
    a("s_lshl_b32 s43, s34, 7")
    a("s_lshl_b32 s44, s35, 3")
    a("s_add_u32 s43, s43, s44")
    a("s_mov_b32 s63, s43")
    a("s_lshl_b32 s44, s47, 1")
    a("s_add_u32 s51, s43, s44")
    a("v_lshlrev_b32 v10, 4, v1")
    a("v_lshrrev_b32 v14, 3, v1")
    a("v_and_b32 v15, 7, v1")
    a("v_and_b32 v16, 2, v14")
    a("v_xor_b32 v16, v15, v16")
    a("v_lshlrev_b32 v16, 4, v16")
    a("v_mul_u32_u24 v17, 6144, v14")
    a("s_lshl_b32 s43, s47, 11")
    a("v_add3_u32 v2, v17, v16, s43")
    a("v_xor_b32 v3, 64, v2")
    a("v_lshrrev_b32 v16, 1, v14")
    a("v_xor_b32 v16, v15, v16")
    a("v_lshlrev_b32 v16, 4, v16")
    a("s_lshl_b32 s43, s47, 3")
    a("s_add_u32 s43, s43, s50")
    a("v_add_u32 v17, s43, v14")
    a("s_and_b32 s44, s47, 1")
    a("s_lshl_b32 s44, s44, 6")
    for i in range(6):
        a(f"v_add_u32 v18, {24*i}, v17")
        a("v_max_i32 v18, 0, v18")
        a("v_lshl_add_u32 v18, v18, 11, v16")
        a("v_xor_b32 v18, s44, v18")
        if i & 1: a(f"v_xor_b32 v{4+i}, 64, v18")
        else: a(f"v_mov_b32 v{4+i}, v18")
    a("s_lshl_b32 s39, s47, 10")
    a("s_lshl_b32 s40, s47, 13")
    a(f"s_add_u32 s40, s40, {XB_}")
    a("s_mov_b32 s37, 0")
    a("s_mov_b32 s38, 0")
    a("s_bfm_b64 s[60:61], 56, 8")
    a("s_cmp_eq_u32 s47, 0")
    a("s_cselect_b64 s[60:61], s[60:61], -1")
    a("s_mov_b32 s53, 0x3f803f80")
    a("v_and_b32 v12, 15, v1")
    a("v_lshrrev_b32 v13, 4, v1")
    a("s_lshl_b32 s43, s35, 7")
    a("s_waitcnt lgkmcnt(0)")
    srd(a, 8, 4, 2048*2048)
    srd(a, 12, 6, 1023*6144 + 4096 + 128, add_lo=43)
    srd(a, 16, 32, 16384, add_lo=45, add_imm=WS_O)
    srd(a, 20, 32, 2048*8, add_imm=WS_ST1)
    Lcons = a.label("Lcons"); Lpf = a.label("Lpf"); Latt = a.label("Latt")
    a("s_cmp_lt_u32 s36, 4")
    a(f"s_cbranch_scc1 {Lcons}")
    a("s_cmp_eq_u32 s36, 7")
    a(f"s_cbranch_scc1 {Lpf}")
    a(";@@CONS")
    a(f"{Lcons}:")

    SP2 = int(os.environ.get("K1_SP2", "3"))
    def att_setup():
        a("s_and_b32 s43, s36, 1")
        a("s_lshr_b32 s44, s36, 1")
        a("s_and_b32 s44, s44, 1")
        a("s_lshr_b32 s45, s36, 2")
        a("v_lshlrev_b32 v14, 2, v13")
        a("v_sub_u32 v14, v12, v14")
        for r in range(4):
            a(f"v_subrev_u32 v15, {r}, v14")
            a(f"v_cmp_ge_u32 s[{52+2*r}:{53+2*r}], 7, v15")
            a(f"v_add_u32 v15, 16, v15")
            a(f"v_cmp_ge_u32 s[{84+2*r}:{85+2*r}], 7, v15")
        a("s_lshl_b32 s46, s45, 6")
        a("s_add_u32 s46, s46, s44")
        a("s_add_u32 s46, s46, 16")
        a("v_lshl_add_u32 v14, v12, 1, s46")
        a("s_lshl_b32 s47, s43, 6")
        a("v_lshl_add_u32 v15, v13, 4, s47")
        a(f"v_mul_u32_u24 v20, {QP}, v14")
        a("v_add_u32 v20, v20, v15")
        a("v_subrev_u32 v16, 32, v14")
        a("v_max_i32 v16, 0, v16")
        a(f"v_mul_u32_u24 v21, {QP}, v16")
        a("v_add_u32 v21, v21, v15")
        a("v_lshrrev_b32 v16, 2, v12")
        a("v_lshl_add_u32 v16, v13, 2, v16")
        a("v_lshl_add_u32 v16, v16, 1, s46")
        a("v_and_b32 v17, 3, v1")
        a("v_lshl_add_u32 v17, v17, 3, s47")
        a(f"v_mul_u32_u24 v22, {QP}, v16")
        a("v_add_u32 v22, v22, v17")
        a("v_subrev_u32 v16, 32, v16")
        a("v_max_i32 v16, 0, v16")
        a(f"v_mul_u32_u24 v23, {QP}, v16")
        a("v_add_u32 v23, v23, v17")
        a("s_lshl_b32 s60, s43, 13")
        a("s_lshl_b32 s61, s45, 10")
        a("s_add_u32 s60, s60, s61")
        a("s_lshl_b32 s61, s44, 8")
        a("s_add_u32 s60, s60, s61")
        a("v_lshlrev_b32 v27, 11, v13")
        a("v_lshl_add_u32 v27, v12, 4, v27")
        a("v_add_u32 v27, s60, v27")
        a("v_mov_b32 v28, 0xff800000")
        CS = (32 ** -0.5) * 1.4426950408889634
        a(f"s_mov_b32 s61, {fh(CS)}")
        a("s_nop 2")
        a("s_or_b32 s62, s34, s45")
        a("s_cmp_lg_u32 s62, 0")
        for r in range(4): a(f"s_cselect_b64 s[{64+2*r}:{65+2*r}], s[{84+2*r}:{85+2*r}], 0")

    if int(os.environ.get("K1_SPF", "4")) & 4:
        Lsp = a.label("Lsp")
        a("s_cmp_ge_u32 s36, 2")
        a(f"s_cbranch_scc1 {Lsp}")
        if SP2 >= 0:
            a("s_cmp_ge_u32 s2, 128")
            a(f"s_cbranch_scc1 {Lsp}")
        srd(a, 84, 6, 6291456)
        a("s_and_b32 s43, s35, 8")
        a("s_or_b32 s43, s43, 3")
        a("s_lshl_b32 s43, s43, 7")
        a("s_lshr_b32 s44, s2, 3")
        a("s_mul_i32 s44, s44, %d" % (32*6144))
        a("s_add_u32 s43, s43, s44")
        a("s_lshl_b32 s44, s36, 6")
        a("v_add_u32 v15, s44, v1")
        a("v_min_u32 v15, 95, v15")
        a("v_mul_u32_u24 v16, 21846, v15")
        a("v_lshrrev_b32 v16, 16, v16")
        a("v_mul_u32_u24 v17, 3, v16")
        a("v_sub_u32 v15, v15, v17")
        a("v_mul_u32_u24 v16, 6144, v16")
        a("v_lshl_add_u32 v15, v15, 11, v16")
        a("buffer_load_dword v31, v15, s[84:87], s43 offen")
        a(f"{Lsp}:")
    a("v_lshrrev_b32 v16, 1, v12")
    a("v_xor_b32 v15, v13, v16")
    a("v_lshlrev_b32 v15, 4, v15")
    a("v_lshl_add_u32 v2, v12, 7, v15")
    a("v_xor_b32 v3, 64, v2")
    a(f"v_add_u32 v4, {2*STG1}, v2")
    a(f"v_add_u32 v5, {2*STG1}, v3")
    a("v_lshrrev_b32 v15, 2, v12")
    a("v_and_b32 v16, 3, v1")
    a("v_lshl_add_u32 v19, v13, 3, v15")
    a("v_lshlrev_b32 v19, 7, v19")
    a("v_and_b32 v15, 2, v15")
    a("v_and_b32 v17, 1, v13")
    a("v_lshl_add_u32 v15, v17, 2, v15")
    a("v_lshrrev_b32 v17, 1, v16")
    a("s_lshl_b32 s43, s36, 1")
    a("v_add_u32 v17, s43, v17")
    a("v_xor_b32 v15, v15, v17")
    a("v_lshl_add_u32 v19, v15, 4, v19")
    a("v_and_b32 v16, 1, v16")
    a("v_lshl_add_u32 v19, v16, 3, v19")
    for sl in range(3):
        a(f"v_add_u32 v{6+sl}, {XB_ + sl*STG1}, v19")
    ACC = 128
    def accreg(seg, mt):
        return ACC + 36*seg + 4*mt
    for i in range(108): a(f"v_mov_b32 v{ACC+i}, 0")
    SET = [32, 80]
    def reads(s, kk, base):
        sl = s % NS
        xb = (2 + kk) if sl < 2 else (4 + kk)
        xo = (sl % 2)*STG1 if sl < 2 else 0
        def xr(mt): return f"ds_read_b128 v[{base+4*mt}:{base+4*mt+3}], v{xb} offset:{xo + mt*2048}"
        def wr(sg, h): return f"ds_read_b64_tr_b16 v[{base+36+4*sg+2*h}:{base+36+4*sg+2*h+1}], v{6+sl} offset:{sg*8192 + kk*4096 + h*512}"
        return [xr(0), wr(1,0), wr(1,1), wr(2,0), wr(2,1), wr(0,0), wr(0,1)] + [xr(m) for m in range(1, 9)]
    def mfmas(base):
        r = []
        for mt in range(9):
            for sg in (1, 2, 0):
                acc = accreg(sg, mt)
                r.append(f"v_mfma_f32_16x16x32_bf16 v[{acc}:{acc+3}], v[{base+36+4*sg}:{base+36+4*sg+3}], v[{base+4*mt}:{base+4*mt+3}], v[{acc}:{acc+3}]")
        return r
    def emit(seq):
        for i in seq:
            if "m" in strip and i.startswith("v_mfma"): continue
            if "r" in strip and i.startswith("ds_read"): continue
            a(i)
    att_setup()
    a("s_lshl_b32 s43, s36, 5")
    a("s_add_u32 s43, s43, 16")
    a("v_lshl_add_u32 v10, v12, 1, s43")
    a("v_lshlrev_b32 v10, 7, v10")
    a("v_and_b32 v16, 1, v13")
    a("v_lshlrev_b32 v16, 1, v16")
    a("v_lshrrev_b32 v17, 1, v13")
    a("v_add_u32 v16, v16, v17")
    a("v_and_b32 v17, 7, v12")
    a("v_xor_b32 v16, v16, v17")
    a("v_lshl_add_u32 v10, v16, 4, v10")
    a("s_mov_b32 s42, s35")
    a(f"v_lshlrev_b32 v9, 3, v12")
    a(f"v_add_u32 v9, {RST}, v9")
    a(f"v_mul_u32_u24 v14, {QP}, v12")
    a("v_lshl_add_u32 v14, v13, 3, v14")
    a("s_lshl_b32 s43, s36, 5")
    a("v_add_u32 v14, s43, v14")
    a("s_barrier")
    stamp(a, 1)
    for i in reads(0, 0, SET[0]): a(i)
    def ln_group(mt, sg, pk):
        acc = accreg(sg, mt); r_ = []
        if pk:
            for r in (0, 2):
                r_.append(f"v_pk_fma_f32 v[{acc+r}:{acc+r+1}], v[{32+2*mt}:{33+2*mt}], v[{52+4*sg+r}:{53+4*sg+r}], v[{acc+r}:{acc+r+1}] op_sel_hi:[0,1,1] neg_lo:[1,0,0] neg_hi:[1,0,0]")
            for r in (0, 2):
                r_.append(f"v_pk_mul_f32 v[{acc+r}:{acc+r+1}], v[{32+2*mt}:{33+2*mt}], v[{acc+r}:{acc+r+1}] op_sel:[1,0] op_sel_hi:[1,1]")
        else:
            for r in range(4): r_.append(f"v_fma_f32 v{acc+r}, -v{32+2*mt}, v{52+4*sg+r}, v{acc+r}")
            for r in range(4): r_.append(f"v_mul_f32 v{acc+r}, v{33+2*mt}, v{acc+r}")
        r_.append(f"v_cvt_pk_bf16_f32 v{acc}, v{acc}, v{acc+1}")
        r_.append(f"v_cvt_pk_bf16_f32 v{acc+1}, v{acc+2}, v{acc+3}")
        r_.append(f"ds_write_b64 v14, v[{acc}:{acc+1}] offset:{QKV + mt*16*QP + sg*128}")
        return r_
    GROUPS = [(mt, sg) for mt in range(9) for sg in ((1, 2) if mt == 0 else (0, 1, 2))]
    NEARLY = int(os.environ.get("K1_LNE", "3"))
    bc = [f"v_mov_b32_dpp v{52+4*sg+r}, v{accreg(sg,0)+r} row_newbcast:0 row_mask:0xf bank_mask:0xf" for sg in range(3) for r in range(4)]
    def xres(s):
        L = a.label("Lxr")
        a("s_sub_u32 s42, s42, 1")
        a(f"s_cbranch_scc0 {L}")
        a(f"v_add_u32 v15, {(s % NS)*STG1}, v10")
        a("v_xor_b32 v16, 64, v15")
        for tl in range(2):
            for kb in range(2):
                d = 240 + (tl*2+kb)*4
                a(f"ds_read_b128 v[{d}:{d+3}], v{15+kb} offset:{tl*128}")
        a(f"{L}:")
    def cstage(s, last):
        xres(s)
        a("s_waitcnt lgkmcnt(0)")
        emit(interleave(mfmas(SET[0]), reads(s, 1, SET[1]), 0, 1))
        a("s_waitcnt lgkmcnt(0)")
        a("s_barrier")
        if not last:
            emit(interleave(mfmas(SET[1]), reads(s+1, 0, SET[0]), 0, 1))
            return
        m = mfmas(SET[1])
        emit(interleave(m[:9], [f"ds_read_b64 v[{32+2*mt}:{33+2*mt}], v9 offset:{mt*128}" for mt in range(9)]))
        fill = bc + ["s_waitcnt lgkmcnt(0)"] + sum((ln_group(mt, sg, False) for mt, sg in GROUPS[:NEARLY]), [])
        for i, x in enumerate(m[9:]):
            a(x)
            for y in fill[2*i:2*i+2]: a(y)
        for y in fill[2*len(m[9:]):]: a(y)
    nl = (nst-1)//NS
    a(f"s_mov_b32 s41, {nl}")
    Ll = a.label("Lcl")
    a(f"{Ll}:")
    for s in range(NS): cstage(s, False)
    a("s_sub_u32 s41, s41, 1")
    a("s_cmp_lg_u32 s41, 0")
    a(f"s_cbranch_scc1 {Ll}")
    for s in range(nl*NS, nst): cstage(s, s == nst-1)
    stamp(a, 2)
    for mt, sg in GROUPS[NEARLY:]:
        for i in ln_group(mt, sg, True): a(i)
    a("s_waitcnt lgkmcnt(0)")
    a(f"s_branch {Latt}")

    a(";@@PROD")
    def rows_load(srow, dst=96, add=0):
        a(f"s_lshl_b32 s43, s{srow}, 11")
        if add: a(f"s_add_u32 s43, s43, {add*2048}")
        for q in range(4):
            a(f"buffer_load_dwordx4 v[{dst+4*q}:{dst+4*q+3}], v10, s[8:11], s43 offen offset:{q*1024}")
    def rows_stats_l(srcb=96):
        o = []
        R = [116, 118, 120, 122]
        for r in range(2):
            sa, qa = 116+4*r, 118+4*r
            for i in range(8):
                src = srcb + 8*r + i
                t = 124 + 2*(i & 1)
                o.append(f"v_lshlrev_b32 v{t if i else sa}, 16, v{src}")
                o.append(f"v_and_b32 v{t+1 if i else sa+1}, 0xffff0000, v{src}")
                if i == 0:
                    o.append(f"v_mul_f32 v{qa}, v{sa}, v{sa}"); o.append(f"v_mul_f32 v{qa+1}, v{sa+1}, v{sa+1}")
                else:
                    o.append(f"v_add_f32 v{sa}, v{sa}, v{t}"); o.append(f"v_add_f32 v{sa+1}, v{sa+1}, v{t+1}")
                    o.append(f"v_fmac_f32 v{qa}, v{t}, v{t}"); o.append(f"v_fmac_f32 v{qa+1}, v{t+1}, v{t+1}")
        for x in R: o.append(f"v_add_f32 v{x}, v{x}, v{x+1}")
        for sh in (8, 4, 2, 1):
            for x in R: o.append(f"v_add_f32_dpp v{x}, v{x}, v{x} row_ror:{sh} row_mask:0xf bank_mask:0xf")
        for sw in ("16", "32"):
            for x in R: o.append(f"v_mov_b32 v{x+1}, v{x}")
            o.append("s_nop 0")
            for x in R: o.append(f"v_permlane{sw}_swap_b32 v{x}, v{x+1}")
            for x in R: o.append(f"v_add_f32 v{x}, v{x}, v{x+1}")
        for r in range(2):
            sv, qv, d = 116+4*r, 118+4*r, 112+2*r
            o.append(f"v_mul_f32 v{d}, 0x3a800000, v{sv}")
            o.append(f"v_mul_f32 v{d+1}, 0x3a800000, v{qv}")
            o.append(f"v_fma_f32 v{d+1}, -v{d}, v{d}, v{d+1}")
            o.append(f"v_max_f32 v{d+1}, 0, v{d+1}")
            o.append(f"v_add_f32 v{d+1}, 0x3727c5ac, v{d+1}")
            o.append(f"v_rsq_f32 v{d+1}, v{d+1}")
        o.append("s_nop 0")
        return o
    def rows_stats(part=None):
        l = rows_stats_l()
        for i in (l if part is None else l[len(l)*part//3:len(l)*(part+1)//3]): a(i)
    def rows_local():
        a("s_lshl_b32 s43, s47, 4")
        a(f"s_add_u32 s43, s43, {LST}")
        a("v_mov_b32 v11, s43")
        a("ds_write_b128 v11, v[112:115]")
        a("s_waitcnt lgkmcnt(0)")
    HYB = os.environ.get("K1_PF", "mall1") == "hyb"
    def wpre(s):
        if not HYB or s > 4: return
        if s == 0:
            a("s_mul_i32 s43, s2, 10752")
            a("s_mul_i32 s44, s47, 2688")
            a("s_add_u32 s43, s43, s44")
            a(f"s_add_u32 s43, s43, {576*6144}")
            a("s_add_u32 s82, s6, s43")
            a("s_addc_u32 s83, s7, 0")
        lo = [0, 10, 18, 26, 34, 42]
        for q in range(lo[s], lo[s+1]): a(f"s_load_dword s{64 + q % 16}, s[82:83], {64*q}")
    def spre_setup():
        if not NPS: return
        Lj = a.label("Lsj")
        cs_sbase(a, Lj, 80, 47)
        a(f"{Lj}:")
    def spre(n=2): cs_spre(a, n)
    def dma(slot, lo=0, hi=14):
        xs, ws = [], []
        for i in range(6):
            g = [f"s_add_u32 m0, s39, {slot*STG1 + i*3072}", "s_mov_b64 exec, s[60:61]" if i == 0 else "s_nop 0",
                 f"buffer_load_dwordx4 v{4+i}, s[8:11], s37 offen lds"]
            if i == 0: g.append("s_mov_b64 exec, -1")
            xs.append(g)
        for j in range(8):
            ws.append([f"s_add_u32 m0, s40, {slot*STG1 + j*1024}", f"s_add_u32 s43, s38, {8*j*6144}",
                       f"buffer_load_dwordx4 v{2+(j&1)}, s[12:15], s43 offen lds"])
        gs = interleave(ws, xs) if int(os.environ.get("K1_ILV", "0")) else xs + ws
        for g in gs[lo:hi]:
            for i in g: a(i)
        if hi == 14:
            a("s_add_u32 s37, s37, 128")
            a(f"s_add_u32 s38, s38, {64*6144}")
    stamp(a, 1)
    E0 = int(os.environ.get("K1_E0", "14"))
    dma(0); dma(1, 0, E0)
    stamp(a, 2)
    a(f"s_waitcnt vmcnt({E0})")
    a("s_barrier")
    if E0 < 14: dma(1, E0, 14)
    dma(2)
    RW = int(os.environ.get("K1_RW", "0"))
    PON = int(os.environ.get("PON", "6"))
    POI = int(os.environ.get("POI", "6")) if int(os.environ.get("SPEC3", "1")) else -9
    def pstage(s, do_dma, vm, extra=None):
        if do_dma: dma((s+2) % NS)
        if s == RW: rows_load(51)
        if s in (RW+2, RW+3, RW+4): rows_stats(s - RW - 2)
        if s == RW+4: rows_local()
        if s == 0: spre_setup()
        if s == POI:
            srd(a, 24, 16, 16384, add_imm=WS_H - WS_O)
            for i in range(4): a(f"v_mov_b32 v{128+i}, -1")
            a("s_mul_i32 s28, s47, 5120")
        npo = lambda t: 6//PON if POI <= t < POI + PON else 0
        for q in range(npo(s)):
            a("buffer_store_dwordx4 v[128:131], v10, s[24:27], s28 offen sc1")
            a("s_add_u32 s28, s28, 1024")
        if vm is not None: vm += npo(s) + npo(s-1)
        wpre(s)
        if max(SPS, RW+4) <= s <= SPE: spre()
        if vm is not None: a(f"s_waitcnt vmcnt({vm + (4 if s == RW else 0)})")
        a("s_barrier")
    for s in range(14): pstage(s, s > 0, 14)
    pstage(14, False, 0)
    pstage(15, False, None)
    Lw4 = a.label("Lx"); Lw5 = a.label("Lx"); Lwe = a.label("Lx")
    a("s_cmp_eq_u32 s47, 0")
    a(f"s_cbranch_scc1 {Lw4}")
    a("s_cmp_eq_u32 s47, 1")
    a(f"s_cbranch_scc1 {Lw5}")
    warm_jump(a, ("Lp", 2))
    a(f"s_branch {Lwe}")
    a(f"{Lw5}:")
    warm_jump(a, ("Lp", 1))
    a(f"s_branch {Lwe}")
    a(f"{Lw4}:")
    warm_jump(a, ("LG1", 0))
    a(f"{Lwe}:")
    a("s_waitcnt lgkmcnt(0)")
    att_setup()
    a(f"s_branch {Latt}")

    a(";@@W7")
    a(f"{Lpf}:")
    PFM = os.environ.get("K1_PF", "mall1")
    PF = PFM == "l2"
    a(f"s_load_dwordx2 s[26:27], s[0:1], {KA_DBG}")
    Lz = a.label("Lz")
    a("s_or_b32 s43, s34, s35")
    a("s_cmp_lg_u32 s43, 0")
    a(f"s_cbranch_scc1 {Lz}")
    flag_srd(a, 84)
    a("v_lshlrev_b32 v14, 7, v1")
    a("v_mov_b32 v36, 0")
    a("v_mov_b32 v37, 0")
    for q in range(4):
        a(f"s_mov_b32 s43, {q*8192}")
        a("buffer_store_dwordx2 v[36:37], v14, s[84:87], s43 offen sc1")
    a(f"{Lz}:")
    if RW == 0: rows_load(51)
    a("v_min_u32 v14, 23, v1")
    a("v_lshrrev_b32 v15, 3, v14")
    a(f"v_mul_u32_u24 v15, {STG1}, v15")
    a("v_and_b32 v14, 7, v14")
    a("v_lshl_add_u32 v15, v14, 4, v15")
    for i in range(4): a(f"v_mov_b32 v{32+i}, 0x3f803f80")
    a("ds_write_b128 v15, v[32:35]")
    PER = 64 // MX
    NPI = (3*PER + 63) // 64
    for q in range(NPI):
        a(f"v_add_u32 v14, {64*q}, v1")
        a(f"v_min_u32 v14, {3*PER-1}, v14")
        a("v_mul_u32_u24 v15, 21846, v14")
        a("v_lshrrev_b32 v15, 16, v15")
        a("v_mul_u32_u24 v16, 3, v15")
        a("v_sub_u32 v16, v14, v16")
        a(f"s_mul_i32 s43, s48, {PER}")
        a("v_add_u32 v15, s43, v15")
        a("v_mul_u32_u24 v15, 6144, v15")
        a(f"v_lshl_add_u32 v{2+q}, v16, 11, v15")
    vm = []
    def wait_for(tag):
        idx = max(i for i, t in enumerate(vm) if t == tag)
        a(f"s_waitcnt vmcnt({len(vm) - 1 - idx})")
    def l2pf(st):
        if not PF or st >= nst: return
        a(f"s_mov_b32 s43, {st*64*6144}")
        for q in range(NPI):
            a(f"buffer_load_dword v31, v{2+q}, s[12:15], s43 offen"); vm.append("pf")
    a("s_waitcnt lgkmcnt(0)")
    srd(a, 56, 26, 256)
    a("v_lshlrev_b32 v14, 7, v1")
    vm.append("rows")
    def mallpf():
        srd(a, 84, 6, 6291456)
        a("s_mul_i32 s43, s2, 24576")
        for q in range(3):
            a(f"buffer_load_dword v31, v14, s[84:87], s43 offen"); vm.append("pf")
            if q < 2: a("s_add_u32 s43, s43, 8192")
    def slowpf(which=None):
        srd(a, 84, 6, 6291456)
        a("s_lshr_b32 s44, s2, 3")
        if (SPF if which is None else which) & 1:
            a("s_and_b32 s43, s35, 8")
            a("s_or_b32 s43, s43, 3")
            a("s_lshl_b32 s43, s43, 7")
            a("s_mul_i32 s45, s44, %d" % (32*6144))
            a("s_add_u32 s43, s43, s45")
            for q in range(2):
                a(f"v_add_u32 v15, {64*q}, v1")
                a("v_min_u32 v15, 95, v15")
                a("v_mul_u32_u24 v16, 21846, v15")
                a("v_lshrrev_b32 v16, 16, v16")
                a("v_mul_u32_u24 v17, 3, v16")
                a("v_sub_u32 v15, v15, v17")
                a("v_mul_u32_u24 v16, 6144, v16")
                a("v_lshl_add_u32 v15, v15, 11, v16")
                a("buffer_load_dword v31, v15, s[84:87], s43 offen"); vm.append("pf")
        if (SPF if which is None else which) & 2:
            a("s_xor_b32 s43, s63, 64")
            a("s_lshl_b32 s43, s43, 11")
            a("buffer_load_dword v31, v14, s[8:11], s43 offen"); vm.append("pf")
            a("s_add_u32 s43, s43, 8192")
            a("buffer_load_dword v31, v14, s[8:11], s43 offen"); vm.append("pf")
    SPF = int(os.environ.get("K1_SPF", "4"))
    SPAT = int(os.environ.get("K1_SPAT", "0"))
    if PFM == "mall0": mallpf()
    if SPAT < 0: slowpf()
    stampc(a, "k1", 0)
    a("s_barrier")
    def mallpf2():
        srd(a, 84, 6, 6291456)
        a("s_mul_i32 s43, s2, 9216")
        a(f"s_add_u32 s43, s43, {192*6144}")
        a("buffer_load_dword v31, v14, s[84:87], s43 offen"); vm.append("pf")
        a("v_min_u32 v15, 7, v1")
        a("v_lshlrev_b32 v15, 7, v15")
        a("s_add_u32 s43, s43, 8192")
        a("buffer_load_dword v31, v15, s[84:87], s43 offen"); vm.append("pf")
    if PFM == "hyb": mallpf2()
    MST = int(os.environ.get("K1_MST", "1"))
    if PFM == "mall1" and not MST: mallpf()
    stampc(a, "k1", 1)
    GS = int(os.environ.get("K1_GS", "10" if RW < 2 else "11"))
    SS = int(os.environ.get("K1_SS", str(7 + RW)))
    PFN = int(os.environ.get("K1_PFN", "4"))
    CS0 = int(os.environ.get("K1_CS0", "14")); WOP = int(os.environ.get("K1_WOP", "13")); WOM = os.environ.get("K1_WOM", "mall")
    Lgd = a.label("Lgd")
    nxt = [3]
    for s in range(nst):
        if PFM == "mall1" and MST and s in (0, MST):
            Lm = a.label("Lm")
            a("s_cmp_ge_u32 s2, 128")
            a(f"s_cbranch_scc{1 if s == 0 else 0} {Lm}")
            n0 = len(vm); mallpf(); del vm[n0:]
            a(f"{Lm}:")
        if s in ICW:
            code_warm(a, 88); vm.append("pf")
        if s == SP2 and SPF & 4:
            Lm = a.label("Lm")
            a("s_cmp_lt_u32 s2, 128")
            a(f"s_cbranch_scc1 {Lm}")
            n0 = len(vm); slowpf(1); del vm[n0:]
            a(f"{Lm}:")
        if s == SPAT: slowpf()
        if s == 0: spre_setup()
        if s == RW and RW > 0:
            rows_load(51); vm.extend(["rows"]*4)
        if s == 2:
            Lz = a.label("Lz")
            a("s_or_b32 s43, s34, s35")
            a("s_cmp_lg_u32 s43, 0")
            a(f"s_cbranch_scc1 {Lz}")
            a("s_waitcnt vmcnt(0)")
            a("v_mov_b32 v5, 1")
            a("v_mov_b32 v6, 0")
            a("s_mov_b64 exec, 1")
            a("buffer_store_dword v5, v6, s[56:59], 0 offen sc1")
            a("s_mov_b64 exec, -1")
            a(f"{Lz}:")
        if s == RW + 2:
            wait_for("rows")
            rows_stats(0)
        if s == RW + 3: rows_stats(1)
        if s == RW + 4:
            rows_stats(2); rows_local()
        if s == RW + 5:
            a("v_lshlrev_b32 v5, 4, v1")
            a("v_and_b32 v5, 63, v5")
            a(f"v_add_u32 v6, {LST}, v5")
            a("ds_read_b128 v[112:115], v6")
            a("s_lshl_b32 s43, s63, 3")
            a("v_add_u32 v5, s43, v5")
            a("s_waitcnt lgkmcnt(0)")
            a("s_mov_b64 exec, 15")
            a(f"buffer_store_dwordx4 v[112:115], v5, s[20:23], 0 offen sc1"); vm.append("store")
            a("s_mov_b64 exec, -1")
        if s < SS - 2:
            for q in range(PFN):
                l2pf(nxt[0]); nxt[0] += 1
        if s == int(os.environ.get("K1_X11", "99")):
            a(f"s_andn2_b32 s43, s34, {MX-1}")
            a("s_lshl_b32 s43, s43, 7")
            a("s_lshr_b32 s44, s2, 3")
            a("s_mul_i32 s44, s44, 17")
            a("s_add_u32 s43, s43, s44")
            a("s_sub_u32 s43, s43, 16")
            a("v_min_u32 v15, 16, v1")
            a("v_add_u32 v15, s43, v15")
            a("v_max_i32 v15, 0, v15")
            a("v_lshlrev_b32 v15, 11, v15")
            a("buffer_load_dword v31, v15, s[8:11], 0 offen offset:1408"); vm.append("pf")
        if s == WOP:
            if WOM == "l2":
                n = pf_w64(a, KA_WO, 1024, list(range(16//MX)), 84, 29, 30); vm.extend(["pf"]*n)
            elif WOM == "mall":
                a(f"s_load_dwordx2 s[88:89], s[0:1], {KA_WO}")
                a("v_lshlrev_b32 v29, 7, v1")
                a("s_lshl_b32 s43, s2, 13")
                a("s_waitcnt lgkmcnt(0)")
                srd(a, 84, 88, 2097152)
                a("buffer_load_dword v30, v29, s[84:87], s43 offen"); vm.append("pf")
                if int(os.environ.get("K2_SPF", "1")):
                    a("v_and_b32 v29, 31, v1")
                    a("v_lshlrev_b32 v29, 11, v29")
                    a("s_and_b32 s43, s35, 8")
                    a("s_or_b32 s43, s43, 3")
                    a("s_lshl_b32 s43, s43, 7")
                    a("s_lshr_b32 s44, s2, 3")
                    a("s_lshl_b32 s44, s44, 16")
                    a("s_add_u32 s43, s43, s44")
                    a("buffer_load_dword v30, v29, s[84:87], s43 offen"); vm.append("pf")
        if s == SS - 2:
            a("v_mov_b32 v7, 0")
            a("v_mov_b32 v9, 1")
            a("buffer_load_dword v8, v7, s[56:59], 0 offen sc1"); vm.append("z")
        if s == SS:
            flag_poll_finish(a, 56, v=7)
            flag_srd(a, 56)
            flag_signal(a, 56, "ln", 34); vm.append("at")
        if s == GS:
            a("s_sub_u32 s44, s34, 1")
            a("s_max_i32 s44, s44, 0")
            a("v_mov_b32 v5, s44")
            a("v_mov_b32 v6, s34")
            a("v_cmp_eq_u32 vcc, 0, v1")
            a("s_nop 1")
            a("v_cndmask_b32 v5, v5, v6, vcc")
            a(f"v_add_u32 v5, {FLG['ln'][0]}, v5")
            a("v_lshlrev_b32 v5, 7, v5")
            a("buffer_load_dword v6, v5, s[56:59], 0 offen sc1"); vm.append("poll")
        if s == GS + 2:
            Lpoll = a.label("Lpoll"); Lok = a.label("Lok"); Lfb = a.label("Lfb")
            a("s_mov_b32 s41, 200")
            a("s_mov_b32 s62, 0")
            wait_for("poll")
            a(f"{Lpoll}:")
            a("v_cmp_ne_u32 vcc, 16, v6")
            a("s_nop 4")
            a(f"s_cbranch_vccz {Lok}")
            a("buffer_load_dword v6, v5, s[56:59], 0 offen sc1")
            a("s_waitcnt vmcnt(0)")
            a("s_sub_u32 s41, s41, 1")
            a("s_cmp_lg_u32 s41, 0")
            a(f"s_cbranch_scc1 {Lpoll}")
            a("s_mov_b32 s41, 0")
            a(f"{Lfb}:")
            a("s_add_u32 s62, s50, s41")
            a("s_max_i32 s62, s62, 0")
            rows_load(62)
            a("s_waitcnt vmcnt(0)")
            rows_stats()
            a("s_lshl_b32 s43, s41, 3")
            a(f"s_add_u32 s43, s43, {RST}")
            a("v_mov_b32 v5, s43")
            a("ds_write_b128 v5, v[112:115]")
            a("s_add_u32 s41, s41, 2")
            a("s_cmp_lt_u32 s41, 144")
            a(f"s_cbranch_scc1 {Lfb}")
            a("s_mov_b32 s62, 1")
            a(f"{Lok}:")
            for q in range(3):
                a(f"v_add_u32 v5, {64*q}, v1")
                a("v_min_u32 v5, 143, v5")
                a(f"v_lshlrev_b32 v{20+q}, 3, v5")
                a("v_add_u32 v5, s50, v5")
                a("v_max_i32 v5, 0, v5")
                a("v_lshlrev_b32 v5, 3, v5")
                a(f"buffer_load_dwordx2 v[{32+2*q}:{33+2*q}], v5, s[20:23], 0 offen sc1"); vm.append("gather")
        if s == GS + 4:
            wait_for("gather")
            a("s_cmp_eq_u32 s62, 1")
            a(f"s_cbranch_scc1 {Lgd}")
            for q in range(3):
                a(f"v_add_u32 v{20+q}, {RST}, v{20+q}")
                a(f"ds_write_b64 v{20+q}, v[{32+2*q}:{33+2*q}]")
            a(f"{Lgd}:")
            a("s_waitcnt lgkmcnt(0)")
        if s in (CS0, CS0+1):
            Lnj = a.label("Lnj")
            cs_setup(a, Lnj, 84, 28)
            for q in range(16*(s-CS0), 16*(s-CS0+1)): cs_issue(a, q, 84, 28)
            a(f"{Lnj}:")
        if STAMPC != "k1": wpre(s)
        if max(RW + 5, SPS) <= s <= (11 if CSM == "d" else SPE) and STAMPC != "k1": spre()
        a("s_barrier")
        stampc(a, "k1", s+2)
    stampc(a, "k1", 18)
    warm_jump(a, ("L7", 0))
    warm_jump(a, ("Lnojob", 0))
    a("s_waitcnt lgkmcnt(0)")
    att_setup()

    a(f"{Latt}:")
    a("s_barrier")
    stampc(a, "k1", 19)
    stamp(a, 3)
    U = 32*QP
    for u in range(2):
        B = 32 + 48*u
        uo = u*U
        a(f"ds_read_b128 v[{B}:{B+3}], v20 offset:{QKV + uo}")
        a(f"ds_read_b128 v[{B+4}:{B+7}], v20 offset:{QKV + uo + 128}")
        if u == 0: a(f"ds_read_b128 v[{B+8}:{B+11}], v21 offset:{QKV + 128}")
        else: a(f"ds_read_b128 v[{B+8}:{B+11}], v20 offset:{QKV + 128}")
    for u in range(2):
        B = 32 + 48*u
        uo = u*U
        for dh in range(2):
            if u == 0: a(f"ds_read_b64_tr_b16 v[{B+12+4*dh}:{B+13+4*dh}], v23 offset:{QKV + 256 + dh*32}")
            else: a(f"ds_read_b64_tr_b16 v[{B+12+4*dh}:{B+13+4*dh}], v22 offset:{QKV + 256 + dh*32}")
            a(f"ds_read_b64_tr_b16 v[{B+14+4*dh}:{B+15+4*dh}], v22 offset:{QKV + uo + 256 + dh*32}")
    for u in range(2):
        B = 32 + 48*u
        a(f"s_waitcnt lgkmcnt({11 if u == 0 else 8})")
        a(f"v_mfma_f32_16x16x32_bf16 v[{B+20}:{B+23}], v[{B+8}:{B+11}], v[{B}:{B+3}], 0")
        a(f"v_mfma_f32_16x16x32_bf16 v[{B+24}:{B+27}], v[{B+4}:{B+7}], v[{B}:{B+3}], 0")
    a("s_nop 7")
    def soft(u):
        B = 32 + 48*u
        S = B + 20; M = B + 28; T = B + 29; P = B + 32
        r_ = []
        am = 64 if u == 0 else 84
        for r in range(4): r_.append(f"v_cndmask_b32 v{S+r}, v28, v{S+r}, s[{am+2*r}:{am+2*r+1}]")
        for r in range(4): r_.append(f"v_cndmask_b32 v{S+4+r}, v28, v{S+4+r}, s[{52+2*r}:{53+2*r}]")
        r_.append(f"v_max3_f32 v{M}, v{S}, v{S+1}, v{S+2}")
        r_.append(f"v_max3_f32 v{T}, v{S+3}, v{S+4}, v{S+5}")
        r_.append(f"v_max3_f32 v{M}, v{M}, v{S+6}, v{S+7}")
        r_.append(f"v_max_f32 v{M}, v{M}, v{T}")
        for sw in ("32", "16"):
            r_.append(f"v_mov_b32 v{T}, v{M}")
            r_.append("s_nop 0")
            r_.append(f"v_permlane{sw}_swap_b32 v{M}, v{T}")
            r_.append(f"v_max_f32 v{M}, v{M}, v{T}")
        r_.append(f"v_mul_f32 v{M}, s61, v{M}")
        for r in range(8): r_.append(f"v_fma_f32 v{S+r}, v{S+r}, s61, -v{M}")
        for r in range(8): r_.append(f"v_exp_f32 v{S+r}, v{S+r}")
        for q in range(4): r_.append(f"v_cvt_pk_bf16_f32 v{P+q}, v{S+2*q}, v{S+2*q+1}")
        return r_
    def zip2(x, y):
        for i, j in zip(x, y):
            a(i)
            if not (i == j and i.startswith("s_nop")): a(j)
    zip2(soft(0), soft(1))
    a("s_waitcnt lgkmcnt(0)")
    for u in range(2):
        B = 32 + 48*u
        for dh in range(2):
            a(f"v_mfma_f32_16x16x32_bf16 v[{B+36+4*dh}:{B+39+4*dh}], v[{B+12+4*dh}:{B+15+4*dh}], v[{B+32}:{B+35}], 0")
    a(f"s_load_dwordx4 s[4:7], s[0:1], {KA_WG}")
    a(f"s_load_dwordx2 s[28:29], s[0:1], {KA_WO}")
    a(f"s_load_dwordx4 s[60:63], s[0:1], {KA_WD}")
    def rsum(u):
        B = 32 + 48*u
        S = B + 20; M = B + 28; T = B + 29
        r_ = [f"v_add_f32 v{M}, v{S}, v{S+1}", f"v_add_f32 v{T}, v{S+2}, v{S+3}", f"v_add_f32 v{S+4}, v{S+4}, v{S+5}", f"v_add_f32 v{S+6}, v{S+6}, v{S+7}",
              f"v_add_f32 v{M}, v{M}, v{T}", f"v_add_f32 v{S+4}, v{S+4}, v{S+6}", f"v_add_f32 v{M}, v{M}, v{S+4}"]
        for sw in ("32", "16"):
            r_.append(f"v_mov_b32 v{T}, v{M}")
            r_.append("s_nop 0")
            r_.append(f"v_permlane{sw}_swap_b32 v{M}, v{T}")
            r_.append(f"v_add_f32 v{M}, v{M}, v{T}")
        r_.append(f"v_rcp_f32 v{M}, v{M}")
        return r_
    zip2(rsum(0), rsum(1))
    a("s_nop 0")
    for u in range(2):
        B = 32 + 48*u
        M = B + 28; O = B + 36
        for r in range(0, 8, 2): a(f"v_pk_mul_f32 v[{O+r}:{O+r+1}], v[{M}:{M+1}], v[{O+r}:{O+r+1}] op_sel_hi:[0,1]")
        for q in range(4): a(f"v_cvt_pk_bf16_f32 v{O+q}, v{O+2*q}, v{O+2*q+1}")
        a(f"buffer_store_dwordx4 v[{O}:{O+3}], v27, s[16:19], 0 offen offset:{512*u} sc1")
    stamp(a, 4)
    ic, ip, iw = a.L.index(";@@CONS"), a.L.index(";@@PROD"), a.L.index(";@@W7")
    a.L[ic:iw] = a.L[ip:iw] + a.L[ic:ip]
```

```python
import os, struct
from common import *

def fh(x): return "0x%08x" % struct.unpack("<I", struct.pack("<f", x))[0]
def env(k, d): return int(os.environ.get(k, str(d)))

C0_ = -2.0*0.7978845608028654*1.4426950408889634
C1_ = C0_*0.044715
NBM = env("NBM", 2)
XF = os.environ.get("XF", " sc1")
SET = [32, 80]
ACC = 128
NST4 = 56


class VM:
    def __init__(self, a): self.a = a; self.q = []
    def add(self, tag, n=1): self.q += [tag]*n
    def cnt(self, tag):
        idx = max(i for i, t in enumerate(self.q) if t == tag)
        return len(self.q) - 1 - idx
    def wait(self, tag):
        return f"s_waitcnt vmcnt({min(63, self.cnt(tag))})"
    def reset(self): self.q = []


def spread(main, items, frac=100):
    if frac < 100:
        c = len(main)*frac//100
        return spread(main[:c], items) + main[c:]
    out = []
    n, k = len(main), len(items)
    j = 0
    for i in range(n + 1):
        while j < k and j*n <= i*k:
            out += items[j]; j += 1
        if i < n: out.append(main[i])
    while j < k: out += items[j]; j += 1
    return out


def lane_ig(a):
    a("v_and_b32 v17, 15, v1")
    a("v_lshrrev_b32 v18, 4, v1")


def g2_addrs():
    r = []
    r.append("v_lshlrev_b32 v19, 11, v18")
    r.append("v_lshl_add_u32 v19, v17, 4, v19")
    r.append("s_lshl_b32 s43, s36, 9")
    r.append("v_add_u32 v2, s43, v19")
    r.append(f"v_add_u32 v3, {REG}, v2")
    r.append(f"v_add_u32 v4, {2*REG}, v2")
    r.append("v_lshrrev_b32 v19, 2, v17")
    r.append("v_lshl_add_u32 v20, v18, 2, v19")
    r.append("v_bfe_u32 v21, v20, 1, 2")
    r.append("v_lshlrev_b32 v20, 7, v20")
    r.append("v_lshl_add_u32 v20, v21, 5, v20")
    r.append("v_and_b32 v19, 3, v1")
    r.append("v_lshl_add_u32 v20, v19, 3, v20")
    r.append("v_add_u32 v5, 16384, v20")
    for t in range(1, 4): r.append(f"v_xor_b32 v{5+t}, {32*t}, v5")
    for rg in range(1, 3):
        for t in range(4): r.append(f"v_add_u32 v{5+4*rg+t}, {rg*REG}, v{5+t}")
    return r

def g2_reads(slot, base):
    rg, so = slot >> 1, (slot & 1)*SLOT
    def xr(kb, tl): return f"ds_read_b128 v[{base+(kb*2+tl)*4}:{base+(kb*2+tl)*4+3}], v{2+rg} offset:{so + kb*8192 + tl*256}"
    def wr(kb, t, h):
        d = base + 16 + (kb*4+t)*4 + 2*h
        return f"ds_read_b64_tr_b16 v[{d}:{d+1}], v{5+4*rg+t} offset:{so + kb*4096 + h*2048}"
    r = []
    for kb in range(2):
        r += [xr(kb, 0), wr(kb, 0, 0), wr(kb, 0, 1), wr(kb, 1, 0), wr(kb, 1, 1), xr(kb, 1), wr(kb, 2, 0), wr(kb, 2, 1), wr(kb, 3, 0), wr(kb, 3, 1)]
    return r

def g2_mfmas(base):
    r = []
    for kb in range(2):
        for tl in range(2):
            for t in range(4):
                acc = ACC + (tl*4+t)*4
                w = base + 16 + (kb*4+t)*4; x = base + (kb*2+tl)*4
                r.append(f"v_mfma_f32_16x16x32_bf16 v[{acc}:{acc+3}], v[{w}:{w+3}], v[{x}:{x+3}], v[{acc}:{acc+3}]")
    return r

def g2_stage(a, s, slot_next, pre=None):
    a("s_waitcnt lgkmcnt(0)" if pre is None else f"s_waitcnt vmcnt({pre}) lgkmcnt(0)")
    a("s_barrier")
    m = g2_mfmas(SET[s & 1])
    rd = [] if slot_next is None else g2_reads(slot_next, SET[(s+1) & 1])
    k = 0
    for i in range(16):
        a(m[i])
        for q in range(2 if i < 6 else 1):
            if k < len(rd): a(rd[k]); k += 1

def g2_loop(a, s0, nst, off, pres={}):
    s = s0
    while s in pres or (s % 6 != 0 and False):
        g2_stage(a, s, (s+1+off) % 6, pres[s]); s += 1
    nl = (nst - 1 - s)//6
    if nl > 0:
        L = a.label("Lg2")
        a(f"s_mov_b32 s41, {nl}")
        a(f"{L}:")
        for q in range(6): g2_stage(a, s+q, (s+q+1+off) % 6)
        a("s_sub_u32 s41, s41, 1")
        a("s_cmp_lg_u32 s41, 0")
        a(f"s_cbranch_scc1 {L}")
        s += 6*nl
    while s < nst:
        g2_stage(a, s, None if s == nst-1 else (s+1+off) % 6); s += 1


def k2_addrs():
    r = g2_addrs()
    r = [i for i in r if not i.startswith("v_add_u32 v3,")][:16]
    r = [i.replace("v_add_u32 v5, 16384,", "v_add_u32 v5, 0x10000,") for i in r]
    return r + [f"v_add_u32 v{9+t}, 0x10000, v{5+t}" for t in range(4)]
def k2_reads(s):
    base = SET[s & 1]; xo = (s % 4)*16384; ws = s % 10
    def xr(kb, tl): return f"ds_read_b128 v[{base+(kb*2+tl)*4}:{base+(kb*2+tl)*4+3}], v2 offset:{xo + kb*8192 + tl*256}"
    def wr(kb, t, h):
        d = base + 16 + (kb*4+t)*4 + 2*h
        return f"ds_read_b64_tr_b16 v[{d}:{d+1}], v{5 + 4*(ws >> 3) + t} offset:{(ws & 7)*8192 + kb*4096 + h*2048}"
    r = []
    for kb in range(2):
        r += [xr(kb, 0), wr(kb, 0, 0), wr(kb, 0, 1), wr(kb, 1, 0), wr(kb, 1, 1), xr(kb, 1), wr(kb, 2, 0), wr(kb, 2, 1), wr(kb, 3, 0), wr(kb, 3, 1)]
    return r
def k2_items(s, isw, vA=23):
    m0 = 65536 - 16384 + (s % 10)*8192 if isw else (s % 4)*16384
    r = [[f"s_add_u32 m0, s39, {m0 + k*1024}", "s_add_u32 s37, s37, s38", f"buffer_load_dwordx4 v{vA}, s[8:11], s37 offen{XF} lds"] for k in range(8)]
    r[0] = ["s_add_u32 s42, s42, 1", "s_and_b32 s42, s42, 15", r[0][0], f"s_lshl_b32 s37, s42, {17 if isw else 14}", r[0][2]]
    return r


def k3_addrs(nj, t0):
    r = []
    r.append("v_lshlrev_b32 v19, 11, v18")
    r.append("v_lshl_add_u32 v19, v17, 4, v19")
    r.append("s_lshl_b32 s43, s46, 10")
    r.append("v_add_u32 v2, s43, v19")
    r.append(f"v_add_u32 v3, {REG}, v2")
    r.append(f"v_add_u32 v4, {2*REG}, v2")
    r.append("v_lshrrev_b32 v19, 2, v17")
    r.append("v_lshl_add_u32 v20, v18, 2, v19")
    r.append("v_and_b32 v21, 7, v20")
    r.append("v_lshlrev_b32 v20, 8, v20")
    r.append("v_and_b32 v19, 3, v1")
    r.append("v_lshl_add_u32 v20, v19, 3, v20")
    for j in range(nj):
        r.append(f"s_add_u32 s43, s{t0}, {j}")
        r.append("v_xor_b32 v19, s43, v21")
        r.append(f"v_lshl_add_u32 v{5+j}, v19, 5, v20")
    for rg in range(1, 3):
        for j in range(nj): r.append(f"v_add_u32 v{5+4*rg+j}, {rg*REG}, v{5+j}")
    return r

def k3_acc(nj, mat, j, tl): return ACC + ((mat*nj + j)*4 + tl)*4

def k3_reads(nj, sig, kk, base):
    rg = (sig + 2) % 3
    def xr(tl): return f"ds_read_b128 v[{base+4*tl}:{base+4*tl+3}], v{2+rg} offset:{kk*8192 + tl*256}"
    def wr(mat, j, h):
        d = base + 16 + (mat*nj+j)*4 + 2*h
        return f"ds_read_b64_tr_b16 v[{d}:{d+1}], v{5+4*rg+j} offset:{16384*(1+mat) + kk*8192 + h*4096}"
    r = [xr(0), wr(0, 0, 0), wr(0, 0, 1), xr(1), xr(2), xr(3), wr(1, 0, 0), wr(1, 0, 1)]
    for j in range(1, nj): r += [wr(0, j, 0), wr(0, j, 1), wr(1, j, 0), wr(1, j, 1)]
    return r

def k3_mfmas(nj, base):
    r = []
    order = [(j, mat, tl) for j in range(nj) for mat in range(2) for tl in range(4)]
    if env("MORD", 2) == 1: order = [(j, mat, tl) for tl in range(4) for j in range(nj) for mat in range(2)]
    if env("MORD", 2) == 2:
        order = [(j, mat, tl if (2*j + mat) % 2 == 0 else 3 - tl) for j in range(nj) for mat in range(2) for tl in range(4)]
    for (j, mat, tl) in order:
        if True:
            if True:
                acc = k3_acc(nj, mat, j, tl)
                w = base + 16 + (mat*nj+j)*4; x = base + 4*tl
                r.append(f"v_mfma_f32_16x16x32_bf16 v[{acc}:{acc+3}], v[{w}:{w+3}], v[{x}:{x+3}], v[{acc}:{acc+3}]")
    return r

def chk_ops(regs, t=19):
    r = [f"v_max3_u32 v{t}, v{regs[0]}, v{regs[1]}, v{regs[2]}"]
    rest = regs[3:]
    while len(rest) >= 2:
        r.append(f"v_max3_u32 v{t}, v{t}, v{rest[0]}, v{rest[1]}"); rest = rest[2:]
    if rest: r.append(f"v_max_u32 v{t}, v{t}, v{rest[0]}")
    r.append(f"v_cmp_eq_u32 vcc, -1, v{t}")
    return r
def chk_fix(a, regs, pre, loads):
    Lo = a.label("Lok"); Lr = a.label("Lre")
    a(f"s_cbranch_vccz {Lo}")
    for i in pre: a(i)
    a("s_mov_b32 s45, 0x20000")
    a(f"{Lr}:")
    for i in loads: a(i)
    a("s_waitcnt vmcnt(0)")
    for i in chk_ops(regs): a(i)
    a("s_sub_u32 s45, s45, 1")
    a("s_cmp_eq_u32 s45, 0")
    a(f"s_cbranch_scc1 {Lo}")
    a("s_nop 2")
    a(f"s_cbranch_vccnz {Lr}")
    a(f"{Lo}:")
def k3_fix(a, sig, kk, base):
    chk_fix(a, list(range(base, base+16)),
            [f"s_add_u32 s44, s35, {sig}", "s_and_b32 s44, s44, 15", "s_lshl_b32 s44, s44, 14", f"s_add_u32 s44, s44, {kk*8192}"],
            [f"buffer_load_dwordx4 v[{base+4*tl}:{base+4*tl+3}], v2, s[12:15], s44 offen offset:{tl*256} sc1" for tl in range(4)])
def k3_half_chk(a, nj, cur, sig, kk, nxt):
    m = k3_mfmas(nj, cur); rd = k3_reads(nj, sig, kk, nxt)
    for i in interleave(m[:len(rd)], rd): a(i)
    a(f"s_waitcnt lgkmcnt({len(rd) - 6})")
    for i in interleave(m[len(rd):], chk_ops(list(range(nxt, nxt+16)))): a(i)
    a("s_nop 1")
    k3_fix(a, sig, kk, nxt)

def k3_half1(a, nj, sig, vmw=None):
    a("s_waitcnt lgkmcnt(0)")
    for i in interleave(k3_mfmas(nj, SET[0]), k3_reads(nj, sig, 1, SET[1])): a(i)
    a("s_waitcnt lgkmcnt(0)" if vmw is None else f"s_waitcnt vmcnt({vmw}) lgkmcnt(0)")
    a("s_barrier")
def k3_half2(a, nj, sig):
    for i in interleave(k3_mfmas(nj, SET[1]), k3_reads(nj, sig+1, 0, SET[0])): a(i)

def k3_consumer(a, nj, sig0, vmw, n=16):
    L = a.label("Lk3")
    a(f"s_mov_b32 s41, {(n-1)//3}")
    a(f"{L}:")
    for q in range(3):
        k3_half1(a, nj, sig0+q, vmw[q] if q < len(vmw) else None)
        k3_half2(a, nj, sig0+q)
    a("s_sub_u32 s41, s41, 1")
    a("s_cmp_lg_u32 s41, 0")
    a(f"s_cbranch_scc1 {L}")
    for q in range((n-1)//3*3, n-1):
        k3_half1(a, nj, sig0+q)
        k3_half2(a, nj, sig0+q)
    k3_half1(a, nj, sig0+n-1)


def k3_dma_setup(part, psg, vE=22, first=0):
    r = []
    if part == 0: r.append("s_lshl_b32 s43, s35, 8")
    else:
        r.append("s_mul_i32 s43, s49, 192")
        r.append("s_and_b32 s43, s43, 0xffffff80")
        r.append("s_add_u32 s43, s43, 4096")
    r.append(f"s_cmp_eq_u32 s{psg}, 1")
    r.append("s_cselect_b32 s8, s4, s6")
    r.append("s_cselect_b32 s9, s5, s7")
    r.append("s_sub_u32 s10, 7340032, s43")
    r.append("s_lshl_b32 s44, s34, 18")
    r.append(f"s_add_u32 s44, s44, {WS_H}")
    r.append("s_movk_i32 s38, 28672")
    r.append(f"s_cmp_eq_u32 s{psg}, 0")
    r.append("s_cselect_b32 s8, s32, s8")
    r.append("s_cselect_b32 s9, s33, s9")
    r.append("s_cselect_b32 s10, 262144, s10")
    r.append("s_cselect_b32 s43, s44, s43")
    r.append("s_cselect_b32 s38, 1024, s38")
    r.append("s_cselect_b32 s45, 0, -1")
    r.append("s_add_u32 s8, s8, s43")
    r.append("s_addc_u32 s9, s9, 0")
    r.append("s_mov_b32 s11, 0x20000")
    r.append("s_lshl_b32 s40, s38, 4")
    r.append(f"s_add_u32 s42, s35, {first + 15}")
    r.append(f"s_lshl_b32 s39, s{psg}, 14")
    r.append("v_lshrrev_b32 v19, 4, v1")
    r.append("v_lshlrev_b32 v20, 5, v19")
    r.append("v_mul_u32_u24 v19, 6912, v19")
    r.append("v_and_b32 v19, s45, v19")
    r.append("v_and_b32 v20, s45, v20")
    r.append("v_lshlrev_b32 v21, 4, v1")
    r.append("v_xor_b32 v21, v21, v20")
    r.append(f"v_add_u32 v{vE}, v21, v19")
    r.append("s_and_b32 s45, s45, 128")
    r.append(f"v_xor_b32 v{vE+1}, s45, v{vE}")
    return r

def k3_items(sig, vE=22):
    rg = (sig + 2) % 3
    r = [[f"s_add_u32 m0, s39, {rg*REG + j*1024}", "s_add_u32 s37, s37, s38",
          f"buffer_load_dwordx4 v{vE + (j & 1)}, s[8:11], s37 offen{XF} lds"] for j in range(16)]
    r[0] = ["s_add_u32 s42, s42, 1", "s_and_b32 s42, s42, 15", r[0][0], "s_mul_i32 s37, s42, s40", r[0][2]]
    return r

def g2_dma_setup(psg, A_off, A_mul, A_bytes, K, wreg, vA=21, hop=8):
    r = []
    r.append(f"s_mul_i32 s44, s34, {A_mul}")
    r.append(f"s_lshl_b32 s39, s{psg}, 13")
    r.append("s_add_u32 s44, s44, s39")
    r.append(f"s_add_u32 s44, s44, {A_off}")
    r.append("s_lshl_b32 s43, s35, 7")
    r.append(f"s_mov_b32 s10, {A_bytes - 8192}")
    r.append("s_movk_i32 s38, 1024")
    r.append("s_movk_i32 s40, 9216")
    r.append(f"s_cmp_eq_u32 s{psg}, 2")
    r.append(f"s_cselect_b32 s8, s{wreg}, s32")
    r.append(f"s_cselect_b32 s9, s{wreg+1}, s33")
    r.append(f"s_cselect_b32 s10, {K*2048 - 1920}, s10")
    r.append("s_cselect_b32 s43, s43, s44")
    r.append("s_cselect_b32 s38, 16384, s38")
    r.append(f"s_cselect_b32 s40, {hop*2048}, s40")
    r.append(f"s_cselect_b32 s55, {hop*2048}, s38")
    r.append("s_cselect_b32 s45, -1, 0")
    r.append("s_add_u32 s8, s8, s43")
    r.append("s_addc_u32 s9, s9, 0")
    r.append("s_mov_b32 s11, 0x20000")
    r.append("s_sub_u32 s37, 0, s40")
    r.append("v_lshrrev_b32 v19, 3, v1")
    r.append("v_mul_u32_u24 v19, 1920, v19")
    r.append("v_lshrrev_b32 v20, 4, v1")
    r.append("v_lshlrev_b32 v20, 5, v20")
    r.append("v_and_b32 v19, s45, v19")
    r.append("v_and_b32 v20, s45, v20")
    r.append(f"v_lshlrev_b32 v{vA}, 4, v1")
    r.append(f"v_xor_b32 v{vA}, v{vA}, v20")
    r.append(f"v_add_u32 v{vA}, v{vA}, v19")
    return r

def g2_items(slot, vA=21, wrows=None):
    r = []
    for k in range(8):
        if wrows is None: inc = f"s_add_u32 s37, s37, s{40 if k == 0 else 55 if k == 4 else 38}"
        else: inc = f"s_add_u32 s37, s37, {(wrows[k]*2048) & 0xffffffff}"
        r.append([f"s_add_u32 m0, s39, {slot*SLOT + k*1024}", inc, f"buffer_load_dwordx4 v{vA}, s[8:11], s37 offen{XF} lds"])
    return r

def wd_row(item):
    if item < 256:
        s, k = item >> 3, item & 7
        return 128*(s & 15) + 32*(s >> 4) + 64*(k >> 2) + 8*(k & 3)
    q = item - 256
    return 2048 + 96*(q // 12) + [0, 8, 16, 24, 48, 56, 64, 72, 32, 80, 40, 88][q % 12]


CSR = 48
TT = 80
def epi_reads(nj, csbase, TT=TT):
    rd = []
    rd.append("s_lshl_b32 s43, s46, 9")
    rd.append(f"s_add_u32 s43, s43, {STATS}")
    rd.append("v_lshl_add_u32 v19, v17, 3, s43")
    for tl in range(4): rd.append(f"ds_read_b64 v[{TT+2*tl}:{TT+2*tl+1}], v19 offset:{tl*128}")
    rd.append(f"s_mul_i32 s43, s47, {nj*64}")
    rd.append(f"s_add_u32 s43, s43, {CSF + csbase*4}")
    rd.append("v_lshl_add_u32 v19, v18, 4, s43")
    for mat in range(2):
        for j in range(nj):
            d = CSR + (mat*nj+j)*4
            rd.append(f"ds_read_b128 v[{d}:{d+3}], v19 offset:{mat*896 + j*64}")
    return rd
def epi_consts(KB, mean=True, SR=TT):
    c = []
    for tl in range(4):
        mn, rs = SR+2*tl, SR+2*tl+1
        if mean: c.append(f"v_mov_b32 v{KB+tl}, v{mn}")
        c.append(f"v_mul_f32 v{TT+8}, v{rs}, v{rs}")
        c.append(f"v_mul_f32 v{KB+4+tl}, {fh(C0_)}, v{rs}")
        c.append(f"v_mul_f32 v{TT+9}, {fh(C1_)}, v{rs}")
        c.append(f"v_rcp_f32 v{KB+12+tl}, v{TT+8}")
        c.append(f"v_mul_f32 v{KB+8+tl}, v{TT+9}, v{TT+8}")
    return c

def epi_group(nj, tl, j, out, KB, ln=True):
    G = k3_acc(nj, 0, j, tl); U = k3_acc(nj, 1, j, tl)
    cg = CSR + j*4; cu = CSR + (nj+j)*4
    KM, K0, K1, KI = KB+tl, KB+4+tl, KB+8+tl, KB+12+tl
    T = TT + 4*(j & 1)
    r = []
    if ln:
        for q in range(4): r.append(f"v_fma_f32 v{G+q}, -v{KM}, v{cg+q}, v{G+q}")
        for q in range(4): r.append(f"v_fma_f32 v{U+q}, -v{KM}, v{cu+q}, v{U+q}")
    for q in range(4): r.append(f"v_mul_f32 v{T+q}, v{G+q}, v{G+q}")
    for q in range(4): r.append(f"v_fma_f32 v{T+q}, v{T+q}, v{K1}, v{K0}")
    for q in range(4): r.append(f"v_mul_f32 v{T+q}, v{T+q}, v{G+q}")
    for q in range(4): r.append(f"v_exp_f32 v{T+q}, v{T+q}")
    for q in range(4): r.append(f"v_mul_f32 v{U+q}, v{G+q}, v{U+q}")
    for q in range(4): r.append(f"v_fma_f32 v{T+q}, v{T+q}, v{KI}, v{KI}")
    for q in range(4): r.append(f"v_rcp_f32 v{T+q}, v{T+q}")
    for q in range(4): r.append(f"v_mul_f32 v{U+q}, v{U+q}, v{T+q}")
    r.append(f"v_cvt_pk_bf16_f32 v{out}, v{U}, v{U+1}")
    r.append(f"v_cvt_pk_bf16_f32 v{out+1}, v{U+2}, v{U+3}")
    return r

ST = "#ST "
KA, KBB = 32, 224
def epi_a():
    r = []
    for q in range(2):
        for tl in range(4):
            o = 96 + 4*tl
            r += epi_group(4, tl, 2*q, o, KA) + epi_group(4, tl, 2*q+1, o+2, KA)
            r.append(ST + f"{q}buffer_store_dwordx4 v[{o}:{o+3}], v27, s[24:27], {'s53' if q else '0'} offen offset:{tl*256} sc1")
    return r
def epi_b():
    r = []
    for tp in range(2):
        lo = 112 + 4*tp
        for tl in (2*tp, 2*tp+1):
            o = 96 + 4*tl
            r += epi_group(3, tl, 0, o, KBB, False) + epi_group(3, tl, 1, o+2, KBB, False)
            r.append(ST + f"0buffer_store_dwordx4 v[{o}:{o+3}], v27, s[24:27], 0 offen offset:{tl*256} sc1")
            r += epi_group(3, tl, 2, lo + 2*(tl & 1), KBB, False)
        r.append("s_nop 1")
        r.append(f"v_permlane32_swap_b32 v{lo}, v{lo+2}")
        r.append(f"v_permlane32_swap_b32 v{lo+1}, v{lo+3}")
        r.append(ST + f"0buffer_store_dwordx4 v[{lo}:{lo+3}], v28, s[24:27], 0 offen offset:{tp*512} sc1")
    return r

def epi_store_setup(part):
    r = []
    r.append(f"s_mul_i32 s43, s34, {HH_M}")
    r.append(f"s_mul_i32 s44, s{35 if part == 0 else 49}, {16384 if part == 0 else 24576}")
    r.append("s_add_u32 s43, s43, s44")
    r.append(f"s_add_u32 s43, s43, {WS_HH + (0 if part == 0 else 524288)}")
    r.append("s_add_u32 s24, s32, s43")
    r.append("s_addc_u32 s25, s33, 0")
    r.append(f"s_mov_b32 s26, {262144 + 16384 if part == 0 else 24576}")
    r.append("s_mov_b32 s27, 0x20000")
    r.append("s_mov_b32 s53, 262144")
    r.append("s_lshl_b32 s43, s47, 13")
    r.append("s_lshl_b32 s44, s46, 10")
    r.append("s_add_u32 s43, s43, s44")
    r.append("v_lshlrev_b32 v19, 11, v18")
    r.append("v_lshl_add_u32 v19, v17, 4, v19")
    r.append("v_add_u32 v27, s43, v19")
    if part == 1:
        r.append("s_lshl_b32 s43, s47, 12")
        r.append("s_add_u32 s43, s43, s44")
        r.append("s_add_u32 s43, s43, 16384")
        r.append("v_and_b32 v19, 1, v18")
        r.append("v_lshlrev_b32 v19, 11, v19")
        r.append("v_lshrrev_b32 v20, 1, v18")
        r.append("v_lshl_add_u32 v19, v20, 8, v19")
        r.append("v_lshl_add_u32 v19, v17, 4, v19")
        r.append("v_add_u32 v28, s43, v19")
    return r

STRIP = os.environ.get("STRIP", "").split(",")
def strip(lst, key):
    return [("s_nop 0" if key in STRIP else i) for i in lst]
_k3_mfmas, _k3_reads, _k3_items, _g2_mfmas, _g2_reads, _g2_items = k3_mfmas, k3_reads, k3_items, g2_mfmas, g2_reads, g2_items
def k3_mfmas(*x): return strip(_k3_mfmas(*x), "m3")
def k3_reads(*x): return strip(_k3_reads(*x), "r3")
def g2_mfmas(*x): return strip(_g2_mfmas(*x), "m4")
def g2_reads(*x): return strip(_g2_reads(*x), "r4")
def k3_items(*x, **k):
    r = _k3_items(*x, **k)
    if "d3" in STRIP: r = [g[:-1] + ["s_nop 0 ;buffer_load lds"] for g in r]
    if "h3" in STRIP: r[0][3] = "s_mov_b32 s37, 0"
    return r
def g2_items(*x, **k):
    r = _g2_items(*x, **k)
    if "d4" in STRIP: r = [g[:2] + ["s_nop 0 ;buffer_load lds"] for g in r]
    if "h4" in STRIP: r[0][1] = "s_mov_b32 s37, 0x20000"
    return r


T1 = env("T1", 4); LB = env("LB", 6)
H4 = env("H4", 0)
HH = env("HH", 0)
assert not HH or (T1 == 4 and not H4)
A0B = (16 - T1)//2
PA1 = T1 + A0B; PB = PA1 + 8; EB4 = PB + LB; NP4 = EB4 + 24 - 2*LB
assert T1 % 2 == 0 and LB % 3 == 0
SX, SW = [32, 96], [64, 160]
AK, AS, RECV = 128, 192, 224
def both(pos): return T1 <= pos < EB4
def k4_stage_of(pos, kh):
    if pos < T1: return pos
    if pos < PA1: return T1 + A0B*kh + pos - T1
    if pos < PB: return 16 + 8*kh + pos - PA1
    if pos < EB4: return 32 + LB*kh + pos - PB
    return 32 + 2*LB + pos - EB4
def k4_addrs():
    r = []
    r.append("v_lshlrev_b32 v19, 11, v18")
    r.append("v_lshl_add_u32 v19, v17, 4, v19")
    r.append("s_lshl_b32 s43, s46, 10")
    r.append("v_add_u32 v2, s43, v19")
    r.append("v_add_u32 v3, 0x10000, v2")
    r.append("v_lshrrev_b32 v19, 2, v17")
    r.append("v_lshl_add_u32 v20, v18, 2, v19")
    r.append("v_bfe_u32 v21, v20, 1, 2")
    r.append("s_lshl_b32 s43, s47, 1")
    r.append("v_xor_b32 v21, s43, v21")
    r.append("v_lshlrev_b32 v20, 7, v20")
    r.append("v_lshl_add_u32 v20, v21, 5, v20")
    r.append("v_and_b32 v19, 3, v1")
    r.append("v_lshl_add_u32 v20, v19, 3, v20")
    r.append("v_add_u32 v5, 16384, v20")
    r.append("v_xor_b32 v6, 32, v5")
    r.append("v_add_u32 v7, 0x10000, v5")
    r.append("v_add_u32 v8, 0x10000, v6")
    r.append(f"s_lshl_b32 s43, s36, {12 if env('XBF', 1) else 13}")
    r.append("v_lshl_add_u32 v9, v1, 4, s43")
    r.append("s_mov_b32 s54, 0x10000")
    r.append("s_movk_i32 s52, 0x1000")
    return r
def k4_reads(pos):
    slot = (pos + 2) % 4; hi, so = slot >> 1, (slot & 1)*32768
    bx, bw = SX[pos & 1], SW[pos & 1]
    def xr(kb, tl): return f"ds_read_b128 v[{bx+(kb*4+tl)*4}:{bx+(kb*4+tl)*4+3}], v{2+hi} offset:{so + kb*8192 + tl*256}"
    def wr(c, kb, e, h):
        d = bw + ((c*2+kb)*2+e)*4 + 2*h
        return f"ds_read_b64_tr_b16 v[{d}:{d+1}], v{5+2*hi+e} offset:{so + c*8192 + kb*4096 + h*2048}"
    r = []
    for kb in range(2):
        w = [wr(c, kb, e, h) for c in range(2 if both(pos) else 1) for e in range(2) for h in range(2)]
        r += interleave(w, [xr(kb, tl) for tl in range(4)])
    return strip(r, "r4")
def k4_mfmas(pos):
    bx, bw = SX[pos & 1], SW[pos & 1]
    r = []
    for kb in range(2):
        for tl in range(4):
            for c in range(2 if both(pos) else 1):
                for e in range(2):
                    acc = (AS if c else AK) + (tl*2+e)*4
                    w = bw + ((c*2+kb)*2+e)*4; x = bx + (kb*4+tl)*4
                    r.append(f"v_mfma_f32_16x16x32_bf16 v[{acc}:{acc+3}], v[{w}:{w+3}], v[{x}:{x+3}], v[{acc}:{acc+3}]")
    return strip(r, "m4")
def k4_half(pos, hi):
    it = k4_items(pos)
    if not hi: return it[:3] + [it[3] + ["s_add_u32 s37, s37, s28"]]
    return [it[0][:-3] + ["s_add_u32 s37, s37, s28"] + it[4]] + it[5:]
def k4_masked(pos):
    it = k4_items(pos)
    if both(pos): return it
    return [g[:-1] + ["s_mov_b64 exec, s[72:73]", g[-1], "s_mov_b64 exec, -1"] for g in it]
def k4_stage(a, pos, pre=None, extra=[], items=None):
    a("s_waitcnt lgkmcnt(0)" if pre is None else f"s_waitcnt vmcnt({pre}) lgkmcnt(0)")
    a("s_barrier")
    rd = k4_reads(pos+1) if pos + 1 < NP4 else []
    seq = interleave(k4_mfmas(pos), rd)
    if items: seq = seq[:2] + spread(seq[2:], items, env("FRH", 80))
    if extra: seq = seq[:8] + spread(seq[8:], [[i] for i in extra])
    for i in seq: a(i)
def k4_dma_setup(first, vA=21):
    r = []
    r.append(f"s_mul_i32 s44, s34, {HH_M}")
    r.append("s_lshl_b32 s39, s51, 13")
    r.append("s_add_u32 s44, s44, s39")
    r.append(f"s_add_u32 s44, s44, {WS_HH}")
    r.append("s_and_b32 s43, s51, 1")
    r.append("s_xor_b32 s43, s43, s35")
    r.append("s_lshl_b32 s43, s43, 7")
    r.append(f"s_mov_b32 s10, {HH_M - 8192}")
    r.append("s_movk_i32 s38, 1024")
    r.append("s_movk_i32 s40, 9216")
    r.append("s_movk_i32 s37, 0x4000")
    r.append("s_cmp_ge_u32 s51, 2")
    r.append("s_cselect_b32 s8, s60, s32")
    r.append("s_cselect_b32 s9, s61, s33")
    r.append(f"s_cselect_b32 s10, {3584*2048 - 1920}, s10")
    r.append("s_cselect_b32 s43, s43, s44")
    r.append("s_cselect_b32 s38, 16384, s38")
    r.append(f"s_cselect_b32 s40, {40*2048}, s40")
    r.append(f"s_cselect_b32 s55, {40*2048}, s38")
    r.append(f"s_cselect_b32 s37, {128*2048}, s37")
    r.append("s_cselect_b32 s45, -1, 0")
    r.append("s_add_u32 s8, s8, s43")
    r.append("s_addc_u32 s9, s9, 0")
    r.append("s_mov_b32 s11, 0x20000")
    r.append("s_and_b32 s53, s35, 1")
    r.append(f"s_mul_i32 s54, s53, {A0B}")
    r.append("s_mul_i32 s54, s54, s37")
    r.append(f"s_mul_i32 s29, s53, {8 - A0B}")
    r.append(f"s_add_u32 s29, s29, {A0B}")
    r.append("s_mul_i32 s29, s29, s37")
    r.append(f"s_and_b32 s43, s45, {((32 - 2048)*2048) & 0xffffffff}")
    r.append("s_add_u32 s29, s29, s43")
    r.append(f"s_mul_i32 s37, s37, {first}")
    r.append("s_sub_u32 s37, s37, s40")
    r.append("v_lshrrev_b32 v19, 3, v1")
    r.append("v_mul_u32_u24 v19, 1920, v19")
    r.append("v_lshrrev_b32 v20, 4, v1")
    r.append("v_lshlrev_b32 v20, 5, v20")
    r.append("v_and_b32 v19, s45, v19")
    r.append("v_and_b32 v20, s45, v20")
    r.append(f"v_lshlrev_b32 v{vA}, 4, v1")
    r.append(f"v_xor_b32 v{vA}, v{vA}, v20")
    r.append(f"v_add_u32 v{vA}, v{vA}, v19")
    return r
def k4_items(pos, kind=None, vA=21):
    slot = (pos + 2) % 4
    r = []
    for k in range(8):
        if kind is None: inc = f"s_add_u32 s37, s37, s{40 if k == 0 else 55 if k == 4 else 38}"
        else:
            st = k4_stage_of(pos, 0)
            off = st*16384 + k*1024 if kind == 'x' else wd_row(8*st + k)*2048
            inc = f"s_add_u32 s37, s40, {off}" if pos < EB4 else f"s_mov_b32 s37, {off}"
        g = [f"s_add_u32 m0, s39, {slot*32768 + k*1024}", inc, f"buffer_load_dwordx4 v{vA}, s[8:11], s37 offen{XF} lds"]
        if "d4" in STRIP: g[2] = "s_nop 0 ;buffer_load lds"
        r.append(g)
    if kind is None and pos == T1: r[0] = ["s_add_u32 s37, s37, s54"] + r[0]
    if kind is None and pos == PA1: r[0] = ["s_add_u32 s37, s37, s29"] + r[0]
    return r


def emit(a, vm, seq, tag):
    for i in seq:
        if i.startswith(ST):
            t = i[len(ST)+1:]
            if "st" in STRIP: t = "s_nop 0"
            if "stp" in STRIP: t = t.replace(" sc1", "")
            a(t); vm.add("st" + i[len(ST)])
        else:
            a(i)
            if "buffer_load" in i and i.endswith("lds"): vm.add(tag)
            elif i.startswith("buffer_"): vm.add("x")

def st_last(seq):
    if not env("STLAST", 1): return seq
    return [i for i in seq if not i.startswith(ST)] + [i for i in seq if i.startswith(ST)]
def chunks(lst, n):
    return [lst[len(lst)*k//n:len(lst)*(k+1)//n] for k in range(n)]
def flat(g): return sum(g, [])
def last_with(cs, tag): return max(k for k, c in enumerate(cs) if any(i.startswith(ST + tag) for i in c))


def phase_234(a, Ld):
    PRIO = env("PRIO", 1)
    SPEC3 = env("SPEC3", 1); NV3 = env("NV3", 7)
    XSN = env("XSN", 1)
    XSIG = EB4 + XSN + env("XSD", 2); XRCV = NP4 - env("XRD", 3)
    SPECX = env("SPECX", 0)
    if SPECX: XSIG = -1; XRCV = NP4 - env("XRD", 2)
    LG1 = a.label("LG1")
    def k1_tail(young, signal=False):
        a(f"s_waitcnt vmcnt({young})")
        a("s_barrier")
        if signal: flag_signal(a, 56, "o", 34, v=13)
        for u in range(2):
            a(f"ds_write_b128 v27, v[{68+48*u}:{71+48*u}] offset:{512*u}")
        stamp(a, 5)
        stampc(a, "k1", 20)
    flag_srd(a, 56)
    lane_ig(a)
    a("s_lshr_b32 s46, s36, 1")
    a("s_and_b32 s46, s46, 1")
    a("s_and_b32 s47, s36, 1")
    a("s_and_b32 s51, s36, 3")
    if NBM:
        a("s_bfe_u32 s49, s35, 0x20001")
        if NBM == 2:
            a("s_sub_u32 s43, 0, s49")
            a("s_and_b32 s43, s43, 3")
            a("s_cmp_ge_u32 s35, 8")
            a("s_cselect_b32 s49, s43, s49")
        a("s_lshl_b32 s49, s49, 2")
        a("s_lshr_b32 s43, s35, 3")
        a("s_lshl_b32 s43, s43, 1")
        a("s_add_u32 s49, s49, s43")
        a("s_and_b32 s43, s35, 1")
        a("s_add_u32 s49, s49, s43")
    else:
        a("s_mov_b32 s49, s35")
    a("s_waitcnt lgkmcnt(0)")
    a("s_cmp_ge_u32 s36, 4")
    a(f"s_cbranch_scc1 {LG1}")

    def o_first_setup():
        a("s_lshl_b32 s43, s34, 18")
        srd(a, 12, 32, 262144, add_lo=43, add_imm=WS_O)
        a("v_lshlrev_b32 v21, 4, v1")
        a("s_lshl_b32 s54, s36, 11")
        for sg in (1, 2):
            a(f"s_add_u32 s43, s35, {sg}")
            a("s_and_b32 s43, s43, 15")
            a("s_lshl_b32 s43, s43, 14")
            a(f"s_add_u32 s{29+sg}, s43, s54")
    def o_first():
        for sg in (1, 2):
            for e in range(2):
                a(f"s_add_u32 m0, s54, {sg*16384 + e*1024}")
                a(f"s_add_u32 s43, s{29+sg}, {e*1024}")
                a(f"buffer_load_dwordx4 v21, s[12:15], s43 offen{XF} lds")
    for i in k2_addrs(): a(i)
    a("s_lshl_b32 s43, s34, 18")
    a("s_lshl_b32 s44, s35, 14")
    a("s_add_u32 s43, s43, s44")
    srd(a, 20, 32, 16384, add_lo=43, add_imm=WS_H)
    a("s_lshl_b32 s43, s34, 14")
    a("s_lshl_b32 s44, s35, 10")
    a("s_add_u32 s43, s43, s44")
    srd(a, 24, 32, 1024, add_lo=43, add_imm=WS_ST2)
    a("s_movk_i32 s50, 0x2000")
    a("v_lshrrev_b32 v19, 1, v18")
    a("v_lshl_add_u32 v19, v19, 4, v17")
    a("s_lshl_b32 s43, s36, 5")
    a("v_add_u32 v19, s43, v19")
    a("v_and_b32 v20, 1, v18")
    a("v_lshlrev_b32 v20, 2, v20")
    a("v_lshl_add_u32 v22, v19, 3, v20")
    o_first_setup()
    k1_tail(0)
    for k in range(4):
        a(f"v_permlane16_swap_b32 v{240+4*k}, v{242+4*k}")
        a(f"v_permlane16_swap_b32 v{241+4*k}, v{243+4*k}")
    for k in range(8):
        for h in range(2):
            a(f"v_lshlrev_b32 v{ACC+4*k+2*h}, 16, v{240+2*k+h}")
            a(f"v_and_b32 v{ACC+4*k+2*h+1}, 0xffff0000, v{240+2*k+h}")
    a("s_waitcnt lgkmcnt(0)")
    a("s_barrier")
    o_first()
    for i in k2_reads(0): a(i)
    a("s_waitcnt lgkmcnt(0)")
    for i in g2_mfmas(SET[0]): a(i)
    a("s_waitcnt vmcnt(2)")
    a("s_barrier")
    stamp(a, 6)
    for i in k2_reads(1): a(i)
    for st in range(1, 16):
        a("s_waitcnt vmcnt(0) lgkmcnt(0)" if st == 1 else "s_waitcnt lgkmcnt(0)")
        a("s_barrier")
        m = g2_mfmas(SET[st & 1]); rd = k2_reads(st+1) if st < 15 else []
        for i in spread(rd, [[x] for x in m], 100) if rd else m: a(i)
    stamp(a, 7)
    a("s_nop 4")
    P = 96
    for tl in range(2):
        for kb in range(2):
            o = P + (tl*2+kb)*4
            for hf in range(2):
                s = ACC + (tl*4 + 2*kb + hf)*4
                a(f"v_cvt_pk_bf16_f32 v{o+2*hf}, v{s}, v{s+1}")
                a(f"v_cvt_pk_bf16_f32 v{o+2*hf+1}, v{s+2}, v{s+3}")
            a(f"buffer_store_dwordx4 v[{o}:{o+3}], v2, s[20:23], {'s50' if kb else '0'} offen offset:{tl*256} sc1")
            a(f"ds_write_b128 v4, v[{o}:{o+3}] offset:{kb*8192 + tl*256}")
    for q in range(8):
        for tl in range(2):
            x = ACC + 16*tl + 2*q; sm = 116 + 4*tl; sq = sm + 2
            if q == 0:
                a(f"v_pk_mul_f32 v[{sq}:{sq+1}], v[{x}:{x+1}], v[{x}:{x+1}]")
            else:
                a(f"v_pk_fma_f32 v[{sq}:{sq+1}], v[{x}:{x+1}], v[{x}:{x+1}], v[{sq}:{sq+1}]")
                y = ACC + 16*tl if q == 1 else sm
                a(f"v_pk_add_f32 v[{sm}:{sm+1}], v[{x}:{x+1}], v[{y}:{y+1}]")
    for tl in range(2):
        a(f"v_add_f32 v{112+2*tl}, v{116+4*tl}, v{117+4*tl}")
        a(f"v_add_f32 v{113+2*tl}, v{118+4*tl}, v{119+4*tl}")
    a("s_nop 1")
    a("v_permlane32_swap_b32 v112, v114")
    a("v_permlane32_swap_b32 v113, v115")
    a("v_add_f32 v112, v112, v114")
    a("v_add_f32 v113, v113, v115")
    a("s_nop 1")
    a("v_permlane16_swap_b32 v112, v113")
    a("v_add_f32 v112, v112, v113")
    a("buffer_store_dword v112, v22, s[24:27], 0 offen sc1")
    if SPEC3:
        a("s_waitcnt lgkmcnt(0)")
        a("s_barrier")
        stamp(a, 8)
    else:
        a("s_waitcnt vmcnt(0) lgkmcnt(0)")
        a("s_barrier")
        Ls = a.label("Lsig")
        a("s_cmp_lg_u32 s36, 0")
        a(f"s_cbranch_scc1 {Ls}")
        flag_signal(a, 56, "h", 34, v=19)
        a(f"{Ls}:")
        if env("OPF", 2) & 2:
            Lo = a.label("Lopf")
            a("s_cmp_lt_u32 s36, 2")
            a(f"s_cbranch_scc1 {Lo}")
            a("s_and_b32 s43, s36, 1")
            a("s_lshl_b32 s43, s43, 13")
            a("v_lshlrev_b32 v19, 7, v1")
            a("buffer_load_dword v31, v19, s[20:23], s43 offen sc1")
            a(f"{Lo}:")
        stamp(a, 8)

    a("s_lshl_b32 s53, s47, 2")
    for i in k3_addrs(4, 53): a(i)
    def stage0():
        for i in k3_reads(4, 0, 0, SET[0]): a(i)
        a("s_waitcnt lgkmcnt(0)")
        for i in interleave([x[:x.rindex(",")] + ", 0" if x.startswith("v_mfma") else x for x in k3_mfmas(4, SET[0])], k3_reads(4, 0, 1, SET[1])): a(i)
        a("s_waitcnt lgkmcnt(0)")
        for i in k3_mfmas(4, SET[1]): a(i)
    stage0()
    for i in k3_dma_setup(1, 51, first=2): a(i)
    for i in epi_store_setup(0): a(i)
    def out_setup():
        r = ["s_lshl_b32 s43, s34, 18", "s_lshl_b32 s44, s35, 7", "s_add_u32 s43, s43, s44",
             "s_add_u32 s16, s62, s43", "s_addc_u32 s17, s63, 0", f"s_mov_b32 s18, {127*2048 + 128}", "s_mov_b32 s19, 0x20000",
             "s_lshl_b32 s43, s46, 6", "v_lshl_add_u32 v19, v17, 1, s43", "v_lshlrev_b32 v19, 11, v19",
             "v_and_b32 v20, 1, v18", "v_lshl_add_u32 v19, v20, 5, v19", "v_lshrrev_b32 v20, 1, v18", "v_lshl_add_u32 v19, v20, 4, v19",
             "s_lshl_b32 s43, s47, 6", "v_add_u32 v28, s43, v19"]
        for d, flip in ((64, 0), (68, 1)):
            r += ["s_lshl_b32 s43, s34, 4", "s_add_u32 s43, s43, s35", f"s_xor_b32 s43, s43, {flip}", "s_lshl_b32 s43, s43, 15", f"s_add_u32 s43, s43, {WS_X}",
                  f"s_add_u32 s{d}, s32, s43", f"s_addc_u32 s{d+1}, s33, 0", f"s_mov_b32 s{d+2}, 32768", f"s_mov_b32 s{d+3}, 0x20000"]
        return r
    for i in out_setup(): a(i)
    def x_first_setup():
        a("s_lshl_b32 s43, s34, 18")
        srd(a, 12, 32, 262144, add_lo=43, add_imm=WS_H)
        a("v_lshlrev_b32 v21, 4, v1")
        a("s_lshl_b32 s54, s36, 11")
        for sg in (1, 2):
            a(f"s_add_u32 s43, s35, {sg}")
            a("s_and_b32 s43, s43, 15")
            a("s_lshl_b32 s43, s43, 14")
            a(f"s_add_u32 s{29+sg}, s43, s54")
    def x_first():
        for sg in (1, 2):
            for e in range(2):
                a(f"s_add_u32 m0, s54, {((sg+2) % 3)*REG + e*1024}")
                a(f"s_add_u32 s43, s{29+sg}, {e*1024}")
                a(f"buffer_load_dwordx4 v21, s[12:15], s43 offen{XF} lds")
    x_first_setup()
    if SPEC3:
        a("s_waitcnt vmcnt(0)")
        a("s_barrier")
        stamp(a, 9)
        if PRIO: a("s_setprio 1")
        for i in k3_reads(4, 1, 0, SET[0]): a(i)
        a("s_waitcnt lgkmcnt(14)")
        for i in chk_ops(list(range(SET[0], SET[0]+16))): a(i)
        a("s_nop 4")
        k3_fix(a, 1, 0, SET[0])
        for sg in range(1, NV3 + 1):
            a("s_waitcnt lgkmcnt(0)")
            k3_half_chk(a, 4, SET[0], sg, 1, SET[1])
            a("s_waitcnt lgkmcnt(0)")
            a("s_barrier")
            if sg < NV3: k3_half_chk(a, 4, SET[1], sg+1, 0, SET[0])
            else: k3_half2(a, 4, sg)
        k3_consumer(a, 4, NV3 + 1, [], n=15 - NV3)
    else:
        a("s_barrier")
        x_first()
        a("s_waitcnt vmcnt(2)")
        a("s_barrier")
        stamp(a, 9)
        if PRIO: a("s_setprio 1")
        for i in k3_reads(4, 1, 0, SET[0]): a(i)
        k3_consumer(a, 4, 1, [0], n=15)
    stamp(a, 10)
    EA = epi_a()
    def batch(l, nb):
        return flat([[i for i in c if not i.startswith(ST)] + [i for i in c if i.startswith(ST)] for c in chunks(l, nb)])
    if env("STBA", 0): EA = batch(EA, env("STBA", 0))
    if "e" in STRIP: EA = [i for i in EA if i.startswith(ST)]
    ea = chunks(EA, env("EA_N", 13))
    SIG_A0 = 16 + last_with(ea, "0") + 2
    SIG_A1 = 16 + last_with(ea, "1") + 2
    HL = SIG_A0 - 1
    assert 16 + len(ea) <= 31 and SIG_A0 <= 28 and HL <= 27 and SIG_A1 in (29, 30)
    L3h = a.label("L3h"); LK4 = a.label("LK4")
    RD = 192
    def resid_loads():
        r = ["v_lshlrev_b32 v19, 11, v18", "v_lshl_add_u32 v19, v17, 4, v19", "s_lshl_b32 s43, s46, 10", "s_lshl_b32 s44, s47, 13",
             f"v_add3_u32 v{RD+16}, v19, s43, 0", f"v_add_u32 v{RD+16}, s44, v{RD+16}"]
        for tl in range(4):
            r.append(f"buffer_load_dwordx4 v[{RD+4*tl}:{RD+4*tl+3}], v{RD+16}, s[20:23], 0 offen offset:{tl*256} sc1")
        return r
    def resid_unpack():
        r = []
        for k in range(4):
            for q in range(4):
                r.append(f"v_lshlrev_b32 v{ACC+8*k+2*q}, 16, v{RD+4*k+q}")
                r.append(f"v_and_b32 v{ACC+8*k+2*q+1}, 0xffff0000, v{RD+4*k+q}")
        return r
    extra = {HL: resid_loads(), 17: k4_addrs(), 29: resid_unpack(), 30: [f"v_mov_b32 v{AS+i}, 0" for i in range(32)]}
    assert HL + 2 <= 28 and HL > 19
    a("s_cmp_eq_u32 s36, 3")
    a(f"s_cbranch_scc1 {L3h}")
    for helper in (False, True):
        vm = VM(a)
        if helper: a(f"{L3h}:")
        m = k3_mfmas(4, SET[1])
        if env("ERI", 1):
            m = interleave(m, epi_reads(4, 0, TT=2))
            emit(a, vm, m if helper else spread(m, k3_items(18)), 18)
            if PRIO: a("s_setprio 0")
            emit(a, vm, ["s_waitcnt lgkmcnt(0)"] + epi_consts(KA, SR=2), None)
        else:
            emit(a, vm, m if helper else spread(m, k3_items(18)), 18)
            if PRIO: a("s_setprio 0")
            emit(a, vm, epi_reads(4, 0) + ["s_waitcnt lgkmcnt(0)"] + epi_consts(KA), None)
        if helper and env("K3PF", 0):
            k3pf = K3PF(a, 1)
            k3pf.setup()
            for s in range(3, env("K3PD", 6)): k3pf.issue(s)
        a("s_barrier")
        if helper: stampc(a, "k3", 16)
        for sig in range(16, 31):
            body = (list(ea[sig-16]) if sig-16 < len(ea) else []) + extra.get(sig, [])
            if helper:
                if sig == SIG_A0: flag_signal(a, 56, "hha0", 34, v=21)
                if sig == SIG_A1: flag_signal(a, 56, "hha1", 34, v=22)
                if sig == env("PA0", 27): flag_poll_issue(a, 56, "hha0", 34, v=21); vm.add("p")
                if env("K3PF", 0) and sig - 16 + env("K3PD", 6) < 16: k3pf.issue(sig - 16 + env("K3PD", 6))
                if 100 + sig in ICW: code_warm(a, 78, 19, 30)
                if sig == 30: warm_jump(a, ("L7b", 0))
                if env("K3_SPF", 1) and (sig in S3R if S3F else sig == env("S3C", 18)):
                    sp = SPF3(a); sp.setup(1); sp.issue(S3R[sig][1] if S3F else 8)
                if env("K4_SPF", 1) and sig == env("S4A", 25):
                    sp = SPF4(a); sp.setup(); sp.issue(0)
                if sig == 25 and env("K4PF", 0):
                    pf_w64(a, KA_WD, 3584, list(range(env("K4PF0", 0), env("K4PF", 0)//MX)), 80, 29, 30)
                assert T1 >= 4
                if sig == 29 and HH:
                    emit(a, vm, k4_dma_setup(4) + ["s_mul_i32 s28, s38, 3", "s_add_u32 s28, s28, s55"], None)
                if sig == 29 and H4:
                    emit(a, vm, k4_dma_setup(2), None)
                    a("s_mov_b64 s[72:73], 0")
                emit(a, vm, body, None)
                if sig == SIG_A0 - 1: a(vm.wait("st0"))
                if sig == SIG_A1 - 1: a(vm.wait("st1"))
                if sig == HL + 2: a(vm.wait("x"))
                if sig == 28: flag_poll_finish(a, 56, v=21, first=vm.cnt("p"))
            else:
                if sig + 3 <= 31:
                    emit(a, vm, st_last(spread(body, k3_items(sig+3), env("FR3", 100))), sig+3)
                else:
                    if sig == 29:
                        emit(a, vm, k4_dma_setup(0), None)
                        a("s_mov_b64 s[72:73], -1")
                    emit(a, vm, spread(body, k4_items(sig - 29)), ("k4", sig - 29))
                if sig == 30 and HH:
                    emit(a, vm, ["s_mul_i32 s28, s38, 3", "s_add_u32 s28, s28, s55", "s_mul_i32 s43, s38, 3", "s_add_u32 s43, s43, s40", "s_add_u32 s43, s43, s28",
                                 "s_lshl_b32 s43, s43, 1", "s_add_u32 s37, s37, s43"], None)
                w = vm.cnt(sig+2) if sig + 2 <= 31 else vm.cnt(("k4", 0))
                if sig == SIG_A0 - 1: w = min(w, vm.cnt("st0"))
                if sig == SIG_A1 - 1: w = min(w, vm.cnt("st1"))
                if sig == HL + 2: w = min(w, vm.cnt("x"))
                a(f"s_waitcnt vmcnt({w})")
            a("s_barrier")
            if helper: stampc(a, "k3", sig+1)
        if not helper: a(f"s_branch {LK4}")
    a(f"{LK4}:")
    stamp(a, 11)
    if PRIO: a("s_setprio 1")
    for i in k4_reads(0): a(i)
    if H4:
        for i in flat(k4_masked(2) + k4_masked(3)): a(i)
    XB = env("XBF", 1)
    def xch(op, reg, sd, n=8):
        return [f"buffer_{op}_dwordx4 v[{reg+4*t}:{reg+4*t+3}], v9, s[{sd}:{sd+3}], {'s52' if t >= 4 else '0'} offen offset:{(t & 3)*1024} sc1" for t in range(n)]
    if XB:
        st_ = xch("store", RECV, 64, 4)
        xs = chunks([[f"v_cvt_pk_bf16_f32 v{RECV+4*tl+q}, v{AS+8*tl+2*q}, v{AS+8*tl+2*q+1}" for q in range(4)] + [st_[tl]] for tl in range(4)], XSN)
        xs = [flat(c) for c in xs]
        xl = xch("load", AS, 68, 4)
        xu = ["s_waitcnt vmcnt(0)"]
        for k in range(16): xu += [f"v_lshlrev_b32 v{RECV+2*k}, 16, v{AS+k}", f"v_and_b32 v{RECV+2*k+1}, 0xffff0000, v{AS+k}"]
    else:
        xs = chunks(xch("store", AS, 64), XSN); xl = xch("load", RECV, 68); xu = []
    pos = 0
    R0 = max(T1, H4 + 3, HH + 3 if HH else 0)
    def pre4(pos):
        if pos == XSIG: return 0
        if HH and 3 <= pos <= HH + 2: return 4*(min(pos + 3, HH + 3) - (pos + 1))
        if not H4: return 0 if pos == 0 else None
        if pos <= H4: return 16
        return {H4 + 1: 8, H4 + 2: 0}.get(pos)
    while pos < NP4:
        if pos == R0:
            nl = (EB4 - 1 - R0)//4
            L = a.label("Lk4")
            a(f"s_mov_b32 s41, {nl}")
            a(f"{L}:")
            for q in range(4): k4_stage(a, pos + q)
            a("s_sub_u32 s41, s41, 1")
            a("s_cmp_lg_u32 s41, 0")
            a(f"s_cbranch_scc1 {L}")
            pos += 4*nl
        if pos == EB4: a("s_mov_b32 s54, 0x10000")
        if SPECX and pos == NP4 - 1:
            a("s_waitcnt lgkmcnt(0)")
            a("s_barrier")
            m = k4_mfmas(pos)
            a(m[0]); a(m[1])
            a("s_waitcnt vmcnt(0)")
            regs = list(range(AS, AS + 16))
            for i in interleave(m[2:], chk_ops(regs)): a(i)
            chk_fix(a, regs, [], xl)
            for i in xu[1:]: a(i)
            break
        k4_stage(a, pos, pre=pre4(pos), items=k4_masked(pos + 4) if pos < H4 else k4_half(pos + 4, 0) if pos < HH else None,
                 extra=xs[pos - EB4] if EB4 <= pos < EB4 + XSN else xl if pos == XRCV else xu if pos == NP4 - 1 else [])
        pos += 1
    stamp(a, 12)
    a("s_waitcnt vmcnt(0)")
    a("s_nop 4")
    for tl in range(4):
        b = AK + 8*tl; o = 32 + 4*tl
        for q in range(0, 8, 2): a(f"v_pk_add_f32 v[{b+q}:{b+q+1}], v[{b+q}:{b+q+1}], v[{RECV+8*tl+q}:{RECV+8*tl+q+1}]")
        for q in range(4): a(f"v_cvt_pk_bf16_f32 v{o+q}, v{b+2*q}, v{b+2*q+1}")
    for tl in range(4):
        o = 32 + 4*tl
        a(f"v_permlane16_swap_b32 v{o}, v{o+2}")
        a(f"v_permlane16_swap_b32 v{o+1}, v{o+3}")
        a(f"buffer_store_dwordx4 v[{o}:{o+3}], v28, s[16:19], {'s54' if tl >= 2 else '0'} offen offset:{(tl & 1)*2048}{os.environ.get('OSF', '')}")
    if STAMP:
        a("s_waitcnt vmcnt(0)")
        stamp(a, 13)
        stamp_flush(a)
    a(f"s_branch {Ld}")

    a(f"{LG1}:")
    L7 = a.label("L7"); LK3b = a.label("LK3b"); LP3 = a.label("LP3")
    a("s_cmp_eq_u32 s36, 7")
    a(f"s_cbranch_scc1 {L7}")
    for i in g2_dma_setup(51, WS_O, 262144, 262144, 1024, 28, vA=23): a(i)
    o_first_setup()
    Lp = [a.label("Lp") for _ in range(3)]
    for p in range(1, 3):
        a(f"s_cmp_eq_u32 s51, {p}")
        a(f"s_cbranch_scc1 {Lp[p]}")
    for p in range(3):
        a(f"{Lp[p]}:")
        vm = VM(a)
        def st2(s): emit(a, vm, flat(k2_items(s, p == 2)), s)
        a(f"s_add_u32 s42, s35, {15 if p == 2 else 2}")
        k1_tail(0, p == 1)
        WE = env("K2_WE", 4)
        wn_ = [0]
        def wst(upto, n):
            while wn_[0] <= min(upto, 15) and n > 0:
                st2(wn_[0]); wn_[0] += 1; n -= 1
        if p == 2: wst(9, WE)
        stamp(a, 6)
        if p == 0: flag_poll(a, 56, "o", 34, v=8)
        if p == 2: a(vm.wait(0))
        a("s_waitcnt lgkmcnt(0)")
        stamp(a, 7)
        a("s_barrier")
        stamp(a, 8)
        o_first(); vm.add(1, 2); vm.add(2, 2)
        if p < 2: st2(3)
        else: wst(9, 1)
        a(vm.wait(1))
        a("s_barrier")
        stamp(a, 9)
        if p < 2: st2(4)
        else: wst(9, 1)
        for s in range(1, 16):
            if s < 15: a(vm.wait(s+1))
            a("s_barrier")
            if p == 2: wst(s + 9, env("K2_WN", 1))
            elif s + 4 < 16: st2(s + 4)
            rest = SPR - 3 - 2*(SPE - 2) - (s-1)*env("CS_RPS", 2)
            if rest > 0 and CSM == "d": cs_spre(a, min(rest, env("CS_RPS", 2)))
            if s == 11:
                assert p < 2 or wn_[0] == 16
                for i in k3_dma_setup(0, 51): a(i)
            if s in (12, 14)[:env("EW", 2)] and p > 0:
                emit(a, vm, flat(k3_items((s-12)//2)), "w%d" % ((s-12)//2))
        if p > 0: a(vm.wait("w0"))
        a("s_barrier")
        if p == 0 and SPEC3:
            for q in range(env("SPD3", 2)):
                flag_poll_issue(a, 56, "h", 34, v=8)
                a("s_waitcnt vmcnt(0)")
            a("s_add_u32 s42, s42, 1")
            for w in (1, 2): emit(a, vm, flat(k3_items(w)), "w")
        elif p == 0:
            a("s_add_u32 s42, s42, 3")
            flag_poll(a, 56, "h", 34, v=8)
        else:
            for w in range(env("EW", 2), 3): emit(a, vm, flat(k3_items(w)), "w")
        if p < 2: a(f"s_branch {LP3}")
    a(f"{LP3}:")
    SWD = env("SWD", 1)
    W7SKIP = max(7, NV3 if SPEC3 else 0) - 1
    wd_base = ["s_mul_i32 s43, s2, 28672", "s_mul_i32 s44, s51, 7168", "s_add_u32 s43, s43, s44", "s_add_u32 s80, s60, s43", "s_addc_u32 s81, s61, 0"]
    def swd(sig, w7=False):
        n = 9 if sig <= 8 else 8 if 10 <= sig <= 12 else 7 if sig == 13 else 0
        if w7: n = 0 if sig in (W7SKIP, 9) or sig > 12 else 11 if sig <= 8 else 8
        if not SWD or not n: return []
        return [f"s_load_dword s{64+q}, s[80:81], {64*q}" for q in range(n)] + [f"s_add_u32 s80, s80, {64*n}", "s_addc_u32 s81, s81, 0"]
    for i in wd_base: a(i)
    if SPEC3:
        assert env("EW", 2) == 2
        a("s_waitcnt vmcnt(16)")
        a("s_barrier")
        for i in flat(k3_items(3)) + swd(0): a(i)
        a("s_waitcnt vmcnt(16)")
        a("s_barrier")
    else:
        x_first_setup()
        a("s_barrier")
        x_first()
        for i in flat(k3_items(3)) + swd(0): a(i)
        a("s_waitcnt vmcnt(18)")
        a("s_barrier")
        a("s_waitcnt vmcnt(16)")
        a("s_barrier")
    def xpo(sig):
        if not SPECX or not 9 <= sig <= 14: return []
        r = []
        if sig == 9:
            r = ["s_lshl_b32 s43, s34, 4", "s_add_u32 s43, s43, s35", "s_lshl_b32 s43, s43, 15", f"s_add_u32 s43, s43, {WS_X}",
                 "s_add_u32 s12, s32, s43", "s_addc_u32 s13, s33, 0", "s_mov_b32 s14, 16384", "s_mov_b32 s15, 0x20000",
                 "s_mul_i32 s30, s51, 5120", "v_lshlrev_b32 v29, 4, v1"] + [f"v_mov_b32 v{240+i}, -1" for i in range(4)]
        return r + ["buffer_store_dwordx4 v[240:243], v29, s[12:15], s30 offen sc1", "s_add_u32 s30, s30, 1024"]
    def pst(sig, body=[], pre=[], post=[]):
        for i in pre + spread(body, k3_items(sig+3)) + post + xpo(sig) + swd(sig): a(i)
        a(f"s_waitcnt vmcnt({16 + bool(xpo(sig)) + bool(xpo(sig-1))})")
        a("s_barrier")
    L = a.label("Lp3")
    a("s_mov_b32 s41, 2")
    a(f"{L}:")
    for sig in range(1, 4): pst(sig)
    a("s_sub_u32 s41, s41, 1")
    a("s_cmp_lg_u32 s41, 0")
    a(f"s_cbranch_scc1 {L}")
    pst(7); pst(8)
    bs = ["s_and_b32 s53, s35, 1", "s_lshl_b32 s53, s53, 1", "s_mul_i32 s43, s47, 3", "s_add_u32 s53, s53, s43"] + k3_addrs(3, 53)
    binit = []
    for mat in range(2):
        for j in range(3):
            for tl in range(4):
                for q in range(4):
                    binit.append(f"v_mul_f32 v{k3_acc(3, mat, j, tl)+q}, -v{TT+2*tl}, v{CSR+(mat*3+j)*4+q}")
    bi = chunks(binit, 3)
    BODY = {9: bs + epi_reads(3, 128), 10: ["s_waitcnt lgkmcnt(0)"] + epi_consts(KBB, False), 11: bi[0], 12: bi[1], 13: bi[2]}
    k4set = k4_dma_setup(2 if not H4 else H4 + 4)
    if HH: k4set += ["s_mul_i32 s28, s38, 3", "s_add_u32 s28, s28, s40"]
    if H4:
        assert T1 <= H4 + 4 <= PA1
        if H4 + 4 > T1: k4set += ["s_add_u32 s37, s37, s54"]
    for sig in range(9, 15):
        pst(sig, BODY.get(sig, []), pre=k3_dma_setup(1, 51) if sig == 13 else [], post={14: k4set, 10: epi_store_setup(1)}.get(sig, []))
    a(f"s_branch {LK3b}")

    a(f"{L7}:")
    NB2 = 18
    Lno = a.label("Lnojob"); Lcs = a.label("Lcsd")
    stampc(a, "k2", 0)
    cs_setup(a, Lno, 64, 4, ptrs=True)
    EREG = [56, 60, 64] + list(range(72, 116, 4)) + [120, 124]
    def ld2(reg, q):
        a(f"s_mov_b32 s43, {q*4*7168}")
        a(f"buffer_load_dwordx4 v[{reg}:{reg+3}], v4, s[64:67], s43 offen")
    a("s_lshl_b32 s55, s45, 1")
    a("s_add_u32 s55, s55, s44")
    a("s_mul_i32 s55, s55, 14336")
    a("s_lshl_b32 s45, s46, 9")
    a("s_mov_b32 s50, s46")
    a("s_add_u32 s55, s55, s45")
    a("v_lshl_add_u32 v5, v5, 5, s55")
    srd(a, 72, 32, 8*14336, add_imm=WS_CS)
    for i in range(8): a(f"v_mov_b32 v{32+i}, 0")
    o_first_setup()
    k1_tail(0)
    EAT = env("CS_EAT", -2)
    if EAT == -2:
        for n in range(16): ld2(EREG[n], 32 + n)
    npr = [0]
    def proc(reg):
        t = 40 + 8*(npr[0] & 1); npr[0] += 1
        for d in range(4):
            a(f"v_lshlrev_b32 v{t+2*d}, 16, v{reg+d}")
            a(f"v_and_b32 v{t+2*d+1}, 0xffff0000, v{reg+d}")
        for d in range(4): a(f"v_pk_add_f32 v[{32+2*d}:{33+2*d}], v[{32+2*d}:{33+2*d}], v[{t+2*d}:{t+2*d+1}]")
    def mpf():
        if env("MPF", 0):
            a("s_mul_i32 s43, s2, 28672")
            srd(a, 76, 60, 28672, add_lo=43)
            a("v_lshlrev_b32 v19, 7, v1")
            for q in range(4):
                a(f"s_mov_b32 s43, {q*8192}")
                a("buffer_load_dword v30, v19, s[76:79], s43 offen")
    def cs_finish():
        a("s_nop 2")
        for sw in ("16", "32"):
            for d in range(8): a(f"v_mov_b32 v{40+d}, v{32+d}")
            a("s_nop 0")
            for d in range(8): a(f"v_permlane{sw}_swap_b32 v{32+d}, v{40+d}")
            for d in range(8): a(f"v_add_f32 v{32+d}, v{32+d}, v{40+d}")
        a("s_mov_b64 exec, 0xffff")
        a("buffer_store_dwordx4 v[32:35], v5, s[72:75], 0 offen sc1")
        a("buffer_store_dwordx4 v[36:39], v5, s[72:75], 0 offen offset:16 sc1")
        a("s_mov_b64 exec, -1")
    LT = env("CS_LT", 7); PRE = env("CS_PRE", 8); CLN = env("CS_LN", 4)
    todo = [128 + 4*n for n in range(32)] + EREG
    for r in todo[:PRE]: proc(r)
    todo = todo[PRE:]
    a("s_waitcnt lgkmcnt(0)")
    stamp(a, 7)
    for q in range(NB2):
        st = q - 2
        if q == 1:
            o_first()
            a("s_waitcnt vmcnt(2)")
        if q == 2: a("s_waitcnt vmcnt(0)")
        if st == EAT and EAT >= 0:
            for n in range(16): ld2(EREG[n], 32 + n)
        if EAT >= 0 and todo and todo[0] == EREG[0]: a(f"s_waitcnt vmcnt({16 if st > LT else 0})")
        if st == LT:
            assert npr[0] >= 16
            for n in range(16): ld2(128 + 4*n, 48 + n)
        elif st >= 1:
            if not todo and st >= LT + 4 and npr[0] == 48:
                a("s_waitcnt vmcnt(0)")
                todo = [128 + 4*n for n in range(16)]
            for r in todo[:CLN]: proc(r)
            todo = todo[CLN:]
        a("s_barrier")
        stampc(a, "k2", q+1)
    if npr[0] == 48:
        a("s_waitcnt vmcnt(0)")
        todo = [128 + 4*n for n in range(16)]
    for r in todo: proc(r)
    assert npr[0] == 64
    cs_finish()
    a("s_waitcnt vmcnt(0)")
    flag_signal(a, 56, "cs", 50, v=12)
    mpf()
    a(f"s_branch {Lcs}")
    a(f"{Lno}:")
    o_first_setup()
    k1_tail(0)
    a("s_waitcnt lgkmcnt(0)")
    for q in range(NB2):
        if q == 1:
            o_first()
            a("s_waitcnt vmcnt(2)")
        if q == 2: a("s_waitcnt vmcnt(0)")
        a("s_barrier")
        stampc(a, "k2", q+1)
    mpf()
    a(f"{Lcs}:")
    a("s_mov_b32 s46, 1")
    x_first_setup()
    k3pf = K3PF(a, 0)
    PD = env("K3PD", 6)
    if env("K3PF", 0) or env("K3PF0", 0):
        k3pf.setup()
        for s in range(3, max(PD, env("K3PF0", 0))): k3pf.issue(s)
    S3 = env("K3_SPF", 1); S4 = env("K4_SPF", 1)
    sp3 = SPF3(a)
    if S3:
        sp3.setup(0); sp3.issue(3)
    a("s_lshl_b32 s43, s34, 14")
    srd(a, 64, 32, 16384, add_lo=43, add_imm=WS_ST2)
    srd(a, 72, 32, 8*14336, add_imm=WS_CS)
    if not SPEC3:
        a("s_barrier")
        stampc(a, "k2", 20)
        x_first()
        a("s_waitcnt vmcnt(2)")
    a("s_barrier")
    stampc(a, "k2", 21)
    stampc(a, "k3", 31)
    stampc(a, "k3", 0)
    def w7dst(i):
        if not i.startswith("s_load_dword"): return i
        q = int(i.split()[1][1:-1]) - 64
        return i.replace(f"s{64+q},", f"s{82 + q % 6},")
    STL = env("STL", 1); CSP = STL + 3
    for sig in range(15):
        if sig == 0:
            if SPEC3: flag_signal(a, 56, "h", 34, v=8)
            else: a("s_waitcnt vmcnt(0)")
        if SPEC3 and sig == NV3 - 3 - env("PL3", 1): flag_poll_issue(a, 56, "h", 34, v=8)
        if SPEC3 and sig == NV3 - 3: flag_poll_finish(a, 56, v=8)
        if 100 + sig in ICW: code_warm(a, 78, 19, 30)
        if sig == 14: warm_jump(a, ("L3h", 0))
        if S3 and S3F:
            if sig in S3R:
                if S3R[sig] == (1, 0): sp3.setup(1)
                sp3.issue(S3R[sig][1])
        elif S3:
            if sig == env("S3A", 5): sp3.issue(8)
            if sig == env("S3B", 10):
                sp3.setup(1); sp3.issue(0)
        if sig == STL + 1:
            a("s_mul_i32 s43, s49, 96")
            a("s_add_u32 s44, s43, 95")
            a("s_lshr_b32 s43, s43, 7")
            a("s_lshr_b32 s44, s44, 7")
            a("s_add_u32 s43, s43, 16")
            a("s_add_u32 s44, s44, 16")
            a("v_mov_b32 v12, s44")
            a("v_writelane_b32 v12, s35, 0")
            a("v_writelane_b32 v12, s43, 1")
            a(f"v_add_u32 v12, {FLG['cs'][0]}, v12")
            a("v_lshlrev_b32 v12, 7, v12")
            a(f"v_mov_b32 v14, {FLG['cs'][1]}")
            a("buffer_load_dword v13, v12, s[56:59], 0 offen sc1")
        if sig == (NV3 - 2 if SPEC3 else STL):
            for n in range(16):
                a(f"s_mov_b32 s43, {n*1024}")
                a(f"buffer_load_dwordx4 v[{128+4*n}:{128+4*n+3}], v21, s[64:67], s43 offen sc1")
        if env("K3PF", 0) and sig >= 1:
            if sig + PD - 1 < 16: k3pf.issue(sig + PD - 1)
            elif sig + PD - 1 == 16:
                k3pf.part = 1; k3pf.setup()
            if 16 <= sig + PD - 1 < 19: k3pf.issue(sig + PD - 1 - 16)
        if sig == CSP:
            flag_poll_finish(a, 56, v=12)
            a("v_min_u32 v12, 55, v1")
            a("v_lshlrev_b32 v13, 4, v12")
            a("s_lshl_b32 s43, s35, 9")
            a("s_mul_i32 s44, s49, 384")
            a(f"s_add_u32 s44, s44, {8192 - 512}")
            a("v_mov_b32 v14, s44")
            a("v_mov_b32 v15, s43")
            a("v_cmp_gt_u32 vcc, 32, v12")
            a("s_nop 1")
            a("v_cndmask_b32 v14, v14, v15, vcc")
            a("v_add_u32 v14, v14, v13")
            a(f"v_add_u32 v13, {CSF}, v13")
            for mat in range(2):
                for sl in range(4):
                    d = 192 + (mat*4+sl)*4
                    a(f"s_mov_b32 s43, {(sl*2+mat)*14336}")
                    a(f"buffer_load_dwordx4 v[{d}:{d+3}], v14, s[72:75], s43 offen sc1")
        SRD_ = max(CSP + 1, NV3) if SPEC3 else CSP + 1
        LAST_ = max(CSP + 3, SRD_)
        if sig == SRD_:
            if SPEC3: a("s_waitcnt vmcnt(0)")
            for n in range(1, 16):
                for q in range(4): a(f"v_add_f32 v{128+q}, v{128+q}, v{128+4*n+q}")
            for b in (128, 130):
                a(f"v_mul_f32 v{b}, 0x3a800000, v{b}")
                a(f"v_mul_f32 v{b+1}, 0x3a800000, v{b+1}")
                a(f"v_fma_f32 v{b+1}, -v{b}, v{b}, v{b+1}")
                a(f"v_max_f32 v{b+1}, 0, v{b+1}")
                a(f"v_add_f32 v{b+1}, 0x3727c5ac, v{b+1}")
                a(f"v_rsq_f32 v{b+1}, v{b+1}")
            a(f"v_add_u32 v19, {STATS}, v21")
            a("ds_write_b128 v19, v[128:131]")
        if sig == (CSP + 3 if SRD_ != CSP + 3 else CSP + 2):
            a("s_waitcnt vmcnt(0)" if not (SPEC3 and NV3 - 2 > CSP) else "s_waitcnt vmcnt(16)")
            for mat in range(2):
                b = 192 + mat*16
                for q in range(4):
                    a(f"v_add_f32 v{b+q}, v{b+q}, v{b+4+q}")
                    a(f"v_add_f32 v{b+8+q}, v{b+8+q}, v{b+12+q}")
                for q in range(4): a(f"v_add_f32 v{b+q}, v{b+q}, v{b+8+q}")
                a(f"ds_write_b128 v13, v[{b}:{b+3}] offset:{mat*896}")
        if sig == LAST_:
            a("s_waitcnt lgkmcnt(0)")
            assert sig < 9
        for i in BODY.get(sig, []) + (epi_store_setup(1) if sig == 10 else []) + (wd_base if sig == 0 else []) + (k4set if sig == 14 else []): a(i)
        assert LAST_ - 1 == W7SKIP
        if STAMPC != "k3":
            for i in swd(sig, True): a(w7dst(i))
        a("s_barrier")
        stampc(a, "k3", sig+1)

    a(f"{LK3b}:")
    stamp(a, 10)
    if PRIO: a("s_setprio 1")
    for i in k3_reads(3, 16, 0, SET[0]): a(i)
    k3_consumer(a, 3, 16, [0])
    stamp(a, 11)
    EB = epi_b()
    if env("STBB", 0): EB = batch(EB, env("STBB", 0))
    if "e" in STRIP: EB = [i for i in EB if i.startswith(ST)]
    eb = chunks(EB, env("EB_N", 8))
    SIG_B = last_with(eb, "0") + env("SIGB_D", 2)
    POLL_A1 = PA1 - 5; POLL_B = PB - 5
    UNI = PB - 4
    assert len(eb) <= UNI and SIG_B < POLL_B
    L7b = a.label("L7b")
    a("s_cmp_eq_u32 s36, 7")
    a(f"s_cbranch_scc1 {L7b}")
    for helper in (False, True):
        vm = VM(a)
        if helper: a(f"{L7b}:")
        m = k3_mfmas(3, SET[1])
        if H4: emit(a, vm, m, None)
        elif helper:
            emit(a, vm, m, None)
            a(f"s_mul_i32 s43, s38, {16*(T1-2)}")
            a("s_add_u32 s37, s37, s43")
        else:
            emit(a, vm, spread(m[:12], k4_items(2)), 2)
            emit(a, vm, spread(m[12:], k4_items(3)), 3)
        if PRIO: a("s_setprio 0")
        a("s_barrier")
        if helper: stampc(a, "k4", 0 - env("K4O", 0))
        def pslice(s, kind):
            body = eb[s] if s < len(eb) else []
            dma = (both(s + 4) if helper else s + 4 < NP4) and s >= H4
            if helper:
                if s == UNI - 1: warm_jump(a, ("LW4", 0))
                if s == SIG_B: flag_signal(a, 56, "hhb", 34, v=10); vm.add("f")
                if s == POLL_A1 - env("PLA", 2): flag_poll_issue(a, 56, "hha1", 34, v=10); vm.add("p")
                if s == POLL_B - env("PLB", 2): flag_poll_issue(a, 56, "hhb", 34, v=10); vm.add("p")
                if env("K4_SPF", 1):
                    if s == 0: sp4.setup()
                    for G, at in ((1, PA1 - env("S4B", 9)), (2, PB - env("S4C", 8)), (3, EB4 - env("S4D", 6))):
                        if s == at: sp4.issue(G); vm.add("f")
                if s == XSIG:
                    xflag_addr(a, 10, 0)
                    a("v_mov_b32 v11, 1")
                    a("s_mov_b64 exec, 1")
                    a("buffer_store_dword v11, v10, s[56:59], 0 offen sc1"); vm.add("f")
                    a("s_mov_b64 exec, -1")
                if s == XRCV - 1 - env("PLX", 2) and not SPECX:
                    xflag_addr(a, 10, 1)
                    a("v_mov_b32 v12, 1")
                    a("buffer_load_dword v11, v10, s[56:59], 0 offen sc1"); vm.add("p")
            if s == UNI: a(f"s_mul_i32 s40, s53, {LB*16384 if kind == 'x' else LB*64*2048}")
            emit(a, vm, st_last(spread(body, k4_half(s+4, 1) if s < HH else k4_items(s+4, kind if s >= UNI else None), env("FR4", 100))) if dma else body, s+4)
            w = vm.cnt(s+2) if s + 2 in vm.q else 63
            if s == SIG_B - 1: w = min(w, vm.cnt("st0"))
            if w < 63: a(f"s_waitcnt vmcnt({w})")
            if helper and s in (POLL_A1, POLL_B, -1 if SPECX else XRCV - 1): flag_poll_finish(a, 56, v=10, first=vm.cnt("p"))
            a("s_barrier")
            if helper: stampc(a, "k4", s+1 - env("K4O", 0))
        if helper:
            sp4 = SPF4(a)
            for s in range(NP4 - 1 if STAMPC == "k4" else EB4 - 2 if SPECX else XRCV): pslice(s, 'w')
            stamp(a, 12)
            stamp_flush(a)
            a(f"s_branch {Ld}")
        else:
            for s in range(UNI): pslice(s, None)
            LW = a.label("LW4")
            a("s_cmp_eq_u32 s51, 2")
            a(f"s_cbranch_scc1 {LW}")
            q0 = list(vm.q)
            for kind in ('x', 'w'):
                vm.q = list(q0)
                if kind == 'w': a(f"{LW}:")
                for s in range(UNI, NP4 - 2): pslice(s, kind)
                if STAMP:
                    stamp(a, 12)
                    stamp_flush(a)
                a(f"s_branch {Ld}")


NXS = 32 // MX
class XPF:
    G = NXS // 2
    def __init__(self, a, off, mul, sd=68, v=23):
        self.a = a; self.off = off; self.mul = mul; self.sd = sd; self.v = v
    def setup(self):
        a = self.a; v = self.v
        per = 128 // NXS
        a(f"s_mul_i32 s43, s34, {self.mul}")
        srd(a, self.sd, 32, self.mul, add_lo=43, add_imm=self.off)
        a(f"v_and_b32 v{v}, {per-1}, v1")
        a(f"s_mul_i32 s43, s49, {per}")
        a(f"v_add_u32 v{v}, s43, v{v}")
        a(f"v_lshlrev_b32 v{v}, 7, v{v}")
        a(f"v_lshrrev_b32 v19, {per.bit_length()-1}, v1")
        a(f"v_lshl_add_u32 v{v}, v19, 14, v{v}")
    def issue(self, st):
        a = self.a
        a(f"s_mov_b32 s43, {st*16384}")
        a(f"buffer_load_dword v30, v{self.v}, s[{self.sd}:{self.sd+3}], s43 offen sc1")


class K3PF:
    def __init__(self, a, part): self.a = a; self.part = part
    def setup(self):
        a = self.a
        if self.part == 0: a("s_lshl_b32 s43, s35, 8")
        else:
            a("s_mul_i32 s43, s49, 192")
            a("s_and_b32 s43, s43, 0xffffff80")
            a("s_add_u32 s43, s43, 4096")
        a("s_sub_u32 s44, 7340032, s43")
        for d, b in ((88, 4), (92, 6)):
            a(f"s_add_u32 s{d}, s{b}, s43")
            a(f"s_addc_u32 s{d+1}, s{b+1}, 0")
            a(f"s_mov_b32 s{d+2}, s44")
            a(f"s_mov_b32 s{d+3}, 0x20000")
        per = 64 // MX
        a("v_lshrrev_b32 v31, 1, v1")
        a(f"v_min_u32 v31, {min(per, 32)-1}, v31")
        a(f"s_mul_i32 s43, s48, {per}")
        a("v_add_u32 v31, s43, v31")
        a("v_mul_u32_u24 v31, 7168, v31")
        a("v_and_b32 v19, 1, v1")
        a("v_lshl_add_u32 v31, v19, 7, v31")
    def issue(self, st):
        a = self.a
        a(f"s_mov_b32 s43, {st*64*7168}")
        a("buffer_load_dword v30, v31, s[88:91], s43 offen")
        a("buffer_load_dword v30, v31, s[92:95], s43 offen")


S3F = env("S3F", 1)
S3R = {2: (0, 7), 6: (0, 11), 9: (0, 15), 10: (1, 0), 14: (1, 4), 18: (1, 8), 22: (1, 12)}
class SPF3:
    def __init__(self, a): self.a = a
    def setup(self, part):
        a = self.a
        for d, b in ((88, 4), (92, 6)): srd(a, d, b, 7340032)
        a("s_lshr_b32 s43, s35, 3")
        a("v_and_b32 v19, 1, v1")
        a(f"v_bfe_u32 v23, v1, 2, {2 if S3F else 3}")
        if part == 0:
            a("s_lshl_b32 s44, s43, 3")
            a("s_add_u32 s44, s44, 1")
            a("v_lshl_add_u32 v23, v19, 2, v23")
            a("v_add_u32 v23, s44, v23")
            a("s_lshl_b32 s43, s43, 11")
            a("s_add_u32 s43, s43, 384")
            a("s_movk_i32 s44, 1024")
        elif NBM:
            a("s_lshl_b32 s44, s43, 1")
            a("s_add_u32 s44, s44, 6")
            a("v_add_u32 v23, s44, v23")
            a(f"s_mul_i32 s44, s43, {2 if NBM == 1 else 6}")
            a("s_add_u32 s44, s44, 1")
            a("v_mad_u32_u24 v23, v19, s44, v23")
            a("s_lshl_b32 s44, s43, 10")
            a("s_lshl_b32 s43, s43, 11")
            a(f"s_sub_u32 s43, {51*128}, s43")
        else:
            a("s_mul_i32 s44, s43, 10")
            a("s_add_u32 s44, s44, 2")
            a("v_add_u32 v23, s44, v23")
            a("s_lshl_b32 s44, s43, 2")
            a("s_sub_u32 s44, 5, s44")
            a("v_mad_u32_u24 v23, v19, s44, v23")
            a("s_lshl_b32 s44, s43, 10")
            a("s_xor_b32 s44, s44, 1024")
            a("s_lshl_b32 s43, s43, 11")
            a(f"s_add_u32 s43, s43, {35*128}")
        a("s_lshr_b32 s45, s2, 3")
        a("s_mul_i32 s45, s45, 14336")
        a("s_add_u32 s43, s43, s45")
        a("v_mul_lo_u32 v31, v19, s44")
        a("v_bfe_u32 v19, v1, 1, 1")
        a("v_mul_u32_u24 v19, 7168, v19")
        a("v_add3_u32 v31, v31, v19, s43")
    def issue(self, st):
        a = self.a
        a(f"v_add_u32 v19, {st}, v23")
        a("v_and_b32 v19, 15, v19")
        a(f"v_mul_u32_u24 v19, {64*7168}, v19")
        a("v_add_u32 v19, v19, v31")
        a("buffer_load_dword v30, v19, s[88:91], 0 offen")
        a("buffer_load_dword v30, v19, s[92:95], 0 offen")


class SPF4:
    def __init__(self, a): self.a = a
    def setup(self):
        a = self.a
        srd(a, 80, 60, 7340032)
        a("v_and_b32 v29, 31, v1")
        a("v_lshlrev_b32 v29, 11, v29")
        a("s_and_b32 s43, s35, 8")
        a("s_or_b32 s43, s43, 3")
        a("s_lshl_b32 s43, s43, 7")
        a("v_add_u32 v29, s43, v29")
    def issue(self, G):
        a = self.a
        a("s_lshr_b32 s44, s2, 3")
        if G == 3: a("s_and_b32 s44, s44, 15")
        a(f"s_lshl_b32 s44, s44, {17 if G < 2 else 16}")
        a(f"s_add_u32 s43, s44, {[0, 32, 2048, 3072][G]*2048}")
        a("buffer_load_dword v30, v29, s[80:83], s43 offen")
```

```python
import os, struct
from common import *

NS = 3
XB_ = 18432
STG1 = XB_ + 3*8192
RST = NS*STG1
CSUM = RST + 1152
LST = CSUM
LDS_K1 = CSUM + 768
QKV = 0
QP = 400

def fh(x): return "0x%08x" % struct.unpack("<I", struct.pack("<f", x))[0]

VGPR_K1 = 240
def phase_k1(a):
    strip = os.environ.get("K1_STRIP", "")
    nst = 16
    a(f"s_load_dwordx4 s[4:7], s[0:1], {KA_X}")
    a(f"s_load_dwordx2 s[32:33], s[0:1], {KA_WS}")
    a(f"s_load_dwordx2 s[80:81], s[0:1], {KA_WG}")
    mapping(a)
    a("v_lshrrev_b32 v12, 6, v0")
    a("v_and_b32 v1, 63, v0")
    a("v_readfirstlane_b32 s36, v12")
    a("s_nop 3")
    stamp_init(a)
    stamp(a, 0)
    a("s_lshl_b32 s44, s34, 18")
    a("s_lshl_b32 s45, s35, 14")
    a("s_add_u32 s45, s45, s44")
    a("s_lshl_b32 s50, s34, 7")
    a("s_sub_u32 s50, s50, 16")
    a("s_and_b32 s47, s36, 3")
    a("s_lshl_b32 s43, s34, 7")
    a("s_lshl_b32 s44, s35, 3")
    a("s_add_u32 s43, s43, s44")
    a("s_mov_b32 s63, s43")
    a("s_lshl_b32 s44, s47, 1")
    a("s_add_u32 s51, s43, s44")
    a("v_lshlrev_b32 v10, 4, v1")
    a("v_lshrrev_b32 v14, 3, v1")
    a("v_and_b32 v15, 7, v1")
    a("v_and_b32 v16, 2, v14")
    a("v_xor_b32 v16, v15, v16")
    a("v_lshlrev_b32 v16, 4, v16")
    a("v_mul_u32_u24 v17, 6144, v14")
    a("s_lshl_b32 s43, s47, 11")
    a("v_add3_u32 v2, v17, v16, s43")
    a("v_xor_b32 v3, 64, v2")
    a("v_lshrrev_b32 v16, 1, v14")
    a("v_xor_b32 v16, v15, v16")
    a("v_lshlrev_b32 v16, 4, v16")
    a("s_lshl_b32 s43, s47, 3")
    a("s_add_u32 s43, s43, s50")
    a("v_add_u32 v17, s43, v14")
    a("s_and_b32 s44, s47, 1")
    a("s_lshl_b32 s44, s44, 6")
    for i in range(6):
        a(f"v_add_u32 v18, {24*i}, v17")
        a("v_max_i32 v18, 0, v18")
        a("v_lshl_add_u32 v18, v18, 11, v16")
        a("v_xor_b32 v18, s44, v18")
        if i & 1: a(f"v_xor_b32 v{4+i}, 64, v18")
        else: a(f"v_mov_b32 v{4+i}, v18")
    a("s_lshl_b32 s39, s47, 10")
    a("s_lshl_b32 s40, s47, 13")
    a(f"s_add_u32 s40, s40, {XB_}")
    a("s_mov_b32 s37, 0")
    a("s_mov_b32 s38, 0")
    a("s_bfm_b64 s[60:61], 56, 8")
    a("s_cmp_eq_u32 s47, 0")
    a("s_cselect_b64 s[60:61], s[60:61], -1")
    a("s_mov_b32 s53, 0x3f803f80")
    a("v_and_b32 v12, 15, v1")
    a("v_lshrrev_b32 v13, 4, v1")
    a("s_lshl_b32 s43, s35, 7")
    a("s_waitcnt lgkmcnt(0)")
    srd(a, 8, 4, 2048*2048)
    srd(a, 12, 6, 1023*6144 + 4096 + 128, add_lo=43)
    srd(a, 16, 32, 16384, add_lo=45, add_imm=WS_O)
    srd(a, 20, 32, 2048*8, add_imm=WS_ST1)
    Lcons = a.label("Lcons"); Lpf = a.label("Lpf"); Latt = a.label("Latt")
    a("s_cmp_lt_u32 s36, 4")
    a(f"s_cbranch_scc1 {Lcons}")
    a("s_cmp_eq_u32 s36, 7")
    a(f"s_cbranch_scc1 {Lpf}")
    a(";@@CONS")
    a(f"{Lcons}:")

    SP2 = int(os.environ.get("K1_SP2", "3"))
    def att_setup():
        a("s_and_b32 s43, s36, 1")
        a("s_lshr_b32 s44, s36, 1")
        a("s_and_b32 s44, s44, 1")
        a("s_lshr_b32 s45, s36, 2")
        a("v_lshlrev_b32 v14, 2, v13")
        a("v_sub_u32 v14, v12, v14")
        for r in range(4):
            a(f"v_subrev_u32 v15, {r}, v14")
            a(f"v_cmp_ge_u32 s[{52+2*r}:{53+2*r}], 7, v15")
            a(f"v_add_u32 v15, 16, v15")
            a(f"v_cmp_ge_u32 s[{84+2*r}:{85+2*r}], 7, v15")
        a("s_lshl_b32 s46, s45, 6")
        a("s_add_u32 s46, s46, s44")
        a("s_add_u32 s46, s46, 16")
        a("v_lshl_add_u32 v14, v12, 1, s46")
        a("s_lshl_b32 s47, s43, 6")
        a("v_lshl_add_u32 v15, v13, 4, s47")
        a(f"v_mul_u32_u24 v20, {QP}, v14")
        a("v_add_u32 v20, v20, v15")
        a("v_subrev_u32 v16, 32, v14")
        a("v_max_i32 v16, 0, v16")
        a(f"v_mul_u32_u24 v21, {QP}, v16")
        a("v_add_u32 v21, v21, v15")
        a("v_lshrrev_b32 v16, 2, v12")
        a("v_lshl_add_u32 v16, v13, 2, v16")
        a("v_lshl_add_u32 v16, v16, 1, s46")
        a("v_and_b32 v17, 3, v1")
        a("v_lshl_add_u32 v17, v17, 3, s47")
        a(f"v_mul_u32_u24 v22, {QP}, v16")
        a("v_add_u32 v22, v22, v17")
        a("v_subrev_u32 v16, 32, v16")
        a("v_max_i32 v16, 0, v16")
        a(f"v_mul_u32_u24 v23, {QP}, v16")
        a("v_add_u32 v23, v23, v17")
        a("s_lshl_b32 s60, s43, 13")
        a("s_lshl_b32 s61, s45, 10")
        a("s_add_u32 s60, s60, s61")
        a("s_lshl_b32 s61, s44, 8")
        a("s_add_u32 s60, s60, s61")
        a("v_lshlrev_b32 v27, 11, v13")
        a("v_lshl_add_u32 v27, v12, 4, v27")
        a("v_add_u32 v27, s60, v27")
        a("v_mov_b32 v28, 0xff800000")
        CS = (32 ** -0.5) * 1.4426950408889634
        a(f"s_mov_b32 s61, {fh(CS)}")
        a("s_nop 2")
        a("s_or_b32 s62, s34, s45")
        a("s_cmp_lg_u32 s62, 0")
        for r in range(4): a(f"s_cselect_b64 s[{64+2*r}:{65+2*r}], s[{84+2*r}:{85+2*r}], 0")

    if int(os.environ.get("K1_SPF", "4")) & 4:
        Lsp = a.label("Lsp")
        a("s_cmp_ge_u32 s36, 2")
        a(f"s_cbranch_scc1 {Lsp}")
        if SP2 >= 0:
            a("s_cmp_ge_u32 s2, 128")
            a(f"s_cbranch_scc1 {Lsp}")
        srd(a, 84, 6, 6291456)
        a("s_and_b32 s43, s35, 8")
        a("s_or_b32 s43, s43, 3")
        a("s_lshl_b32 s43, s43, 7")
        a("s_lshr_b32 s44, s2, 3")
        a("s_mul_i32 s44, s44, %d" % (32*6144))
        a("s_add_u32 s43, s43, s44")
        a("s_lshl_b32 s44, s36, 6")
        a("v_add_u32 v15, s44, v1")
        a("v_min_u32 v15, 95, v15")
        a("v_mul_u32_u24 v16, 21846, v15")
        a("v_lshrrev_b32 v16, 16, v16")
        a("v_mul_u32_u24 v17, 3, v16")
        a("v_sub_u32 v15, v15, v17")
        a("v_mul_u32_u24 v16, 6144, v16")
        a("v_lshl_add_u32 v15, v15, 11, v16")
        a("buffer_load_dword v31, v15, s[84:87], s43 offen")
        a(f"{Lsp}:")
    a("v_lshrrev_b32 v16, 1, v12")
    a("v_xor_b32 v15, v13, v16")
    a("v_lshlrev_b32 v15, 4, v15")
    a("v_lshl_add_u32 v2, v12, 7, v15")
    a("v_xor_b32 v3, 64, v2")
    a(f"v_add_u32 v4, {2*STG1}, v2")
    a(f"v_add_u32 v5, {2*STG1}, v3")
    a("v_lshrrev_b32 v15, 2, v12")
    a("v_and_b32 v16, 3, v1")
    a("v_lshl_add_u32 v19, v13, 3, v15")
    a("v_lshlrev_b32 v19, 7, v19")
    a("v_and_b32 v15, 2, v15")
    a("v_and_b32 v17, 1, v13")
    a("v_lshl_add_u32 v15, v17, 2, v15")
    a("v_lshrrev_b32 v17, 1, v16")
    a("s_lshl_b32 s43, s36, 1")
    a("v_add_u32 v17, s43, v17")
    a("v_xor_b32 v15, v15, v17")
    a("v_lshl_add_u32 v19, v15, 4, v19")
    a("v_and_b32 v16, 1, v16")
    a("v_lshl_add_u32 v19, v16, 3, v19")
    for sl in range(3):
        a(f"v_add_u32 v{6+sl}, {XB_ + sl*STG1}, v19")
    ACC = 128
    def accreg(seg, mt):
        return ACC + 36*seg + 4*mt
    for i in range(108): a(f"v_mov_b32 v{ACC+i}, 0")
    SET = [32, 80]
    def reads(s, kk, base):
        sl = s % NS
        xb = (2 + kk) if sl < 2 else (4 + kk)
        xo = (sl % 2)*STG1 if sl < 2 else 0
        def xr(mt): return f"ds_read_b128 v[{base+4*mt}:{base+4*mt+3}], v{xb} offset:{xo + mt*2048}"
        def wr(sg, h): return f"ds_read_b64_tr_b16 v[{base+36+4*sg+2*h}:{base+36+4*sg+2*h+1}], v{6+sl} offset:{sg*8192 + kk*4096 + h*512}"
        return [xr(0), wr(1,0), wr(1,1), wr(2,0), wr(2,1), wr(0,0), wr(0,1)] + [xr(m) for m in range(1, 9)]
    def mfmas(base):
        r = []
        for mt in range(9):
            for sg in (1, 2, 0):
                acc = accreg(sg, mt)
                r.append(f"v_mfma_f32_16x16x32_bf16 v[{acc}:{acc+3}], v[{base+36+4*sg}:{base+36+4*sg+3}], v[{base+4*mt}:{base+4*mt+3}], v[{acc}:{acc+3}]")
        return r
    def emit(seq):
        for i in seq:
            if "m" in strip and i.startswith("v_mfma"): continue
            if "r" in strip and i.startswith("ds_read"): continue
            a(i)
    att_setup()
    a("s_lshl_b32 s43, s36, 5")
    a("s_add_u32 s43, s43, 16")
    a("v_lshl_add_u32 v10, v12, 1, s43")
    a("v_lshlrev_b32 v10, 7, v10")
    a("v_and_b32 v16, 1, v13")
    a("v_lshlrev_b32 v16, 1, v16")
    a("v_lshrrev_b32 v17, 1, v13")
    a("v_add_u32 v16, v16, v17")
    a("v_and_b32 v17, 7, v12")
    a("v_xor_b32 v16, v16, v17")
    a("v_lshl_add_u32 v10, v16, 4, v10")
    a("s_mov_b32 s42, s35")
    a(f"v_lshlrev_b32 v9, 3, v12")
    a(f"v_add_u32 v9, {RST}, v9")
    a(f"v_mul_u32_u24 v14, {QP}, v12")
    a("v_lshl_add_u32 v14, v13, 3, v14")
    a("s_lshl_b32 s43, s36, 5")
    a("v_add_u32 v14, s43, v14")
    a("s_barrier")
    stamp(a, 1)
    for i in reads(0, 0, SET[0]): a(i)
    def ln_group(mt, sg, pk):
        acc = accreg(sg, mt); r_ = []
        if pk:
            for r in (0, 2):
                r_.append(f"v_pk_fma_f32 v[{acc+r}:{acc+r+1}], v[{32+2*mt}:{33+2*mt}], v[{52+4*sg+r}:{53+4*sg+r}], v[{acc+r}:{acc+r+1}] op_sel_hi:[0,1,1] neg_lo:[1,0,0] neg_hi:[1,0,0]")
            for r in (0, 2):
                r_.append(f"v_pk_mul_f32 v[{acc+r}:{acc+r+1}], v[{32+2*mt}:{33+2*mt}], v[{acc+r}:{acc+r+1}] op_sel:[1,0] op_sel_hi:[1,1]")
        else:
            for r in range(4): r_.append(f"v_fma_f32 v{acc+r}, -v{32+2*mt}, v{52+4*sg+r}, v{acc+r}")
            for r in range(4): r_.append(f"v_mul_f32 v{acc+r}, v{33+2*mt}, v{acc+r}")
        r_.append(f"v_cvt_pk_bf16_f32 v{acc}, v{acc}, v{acc+1}")
        r_.append(f"v_cvt_pk_bf16_f32 v{acc+1}, v{acc+2}, v{acc+3}")
        r_.append(f"ds_write_b64 v14, v[{acc}:{acc+1}] offset:{QKV + mt*16*QP + sg*128}")
        return r_
    GROUPS = [(mt, sg) for mt in range(9) for sg in ((1, 2) if mt == 0 else (0, 1, 2))]
    NEARLY = int(os.environ.get("K1_LNE", "3"))
    bc = [f"v_mov_b32_dpp v{52+4*sg+r}, v{accreg(sg,0)+r} row_newbcast:0 row_mask:0xf bank_mask:0xf" for sg in range(3) for r in range(4)]
    def xres(s):
        L = a.label("Lxr")
        a("s_sub_u32 s42, s42, 1")
        a(f"s_cbranch_scc0 {L}")
        a(f"v_add_u32 v15, {(s % NS)*STG1}, v10")
        a("v_xor_b32 v16, 64, v15")
        for tl in range(2):
            for kb in range(2):
                d = 240 + (tl*2+kb)*4
                a(f"ds_read_b128 v[{d}:{d+3}], v{15+kb} offset:{tl*128}")
        a(f"{L}:")
    def cstage(s, last):
        xres(s)
        a("s_waitcnt lgkmcnt(0)")
        emit(interleave(mfmas(SET[0]), reads(s, 1, SET[1]), 0, 1))
        a("s_waitcnt lgkmcnt(0)")
        a("s_barrier")
        if not last:
            emit(interleave(mfmas(SET[1]), reads(s+1, 0, SET[0]), 0, 1))
            return
        m = mfmas(SET[1])
        emit(interleave(m[:9], [f"ds_read_b64 v[{32+2*mt}:{33+2*mt}], v9 offset:{mt*128}" for mt in range(9)]))
        fill = bc + ["s_waitcnt lgkmcnt(0)"] + sum((ln_group(mt, sg, False) for mt, sg in GROUPS[:NEARLY]), [])
        for i, x in enumerate(m[9:]):
            a(x)
            for y in fill[2*i:2*i+2]: a(y)
        for y in fill[2*len(m[9:]):]: a(y)
    nl = (nst-1)//NS
    a(f"s_mov_b32 s41, {nl}")
    Ll = a.label("Lcl")
    a(f"{Ll}:")
    for s in range(NS): cstage(s, False)
    a("s_sub_u32 s41, s41, 1")
    a("s_cmp_lg_u32 s41, 0")
    a(f"s_cbranch_scc1 {Ll}")
    for s in range(nl*NS, nst): cstage(s, s == nst-1)
    stamp(a, 2)
    for mt, sg in GROUPS[NEARLY:]:
        for i in ln_group(mt, sg, True): a(i)
    a("s_waitcnt lgkmcnt(0)")
    a(f"s_branch {Latt}")

    a(";@@PROD")
    def rows_load(srow, dst=96, add=0):
        a(f"s_lshl_b32 s43, s{srow}, 11")
        if add: a(f"s_add_u32 s43, s43, {add*2048}")
        for q in range(4):
            a(f"buffer_load_dwordx4 v[{dst+4*q}:{dst+4*q+3}], v10, s[8:11], s43 offen offset:{q*1024}")
    def rows_stats_l(srcb=96):
        o = []
        R = [116, 118, 120, 122]
        for r in range(2):
            sa, qa = 116+4*r, 118+4*r
            for i in range(8):
                src = srcb + 8*r + i
                t = 124 + 2*(i & 1)
                o.append(f"v_lshlrev_b32 v{t if i else sa}, 16, v{src}")
                o.append(f"v_and_b32 v{t+1 if i else sa+1}, 0xffff0000, v{src}")
                if i == 0:
                    o.append(f"v_mul_f32 v{qa}, v{sa}, v{sa}"); o.append(f"v_mul_f32 v{qa+1}, v{sa+1}, v{sa+1}")
                else:
                    o.append(f"v_add_f32 v{sa}, v{sa}, v{t}"); o.append(f"v_add_f32 v{sa+1}, v{sa+1}, v{t+1}")
                    o.append(f"v_fmac_f32 v{qa}, v{t}, v{t}"); o.append(f"v_fmac_f32 v{qa+1}, v{t+1}, v{t+1}")
        for x in R: o.append(f"v_add_f32 v{x}, v{x}, v{x+1}")
        for sh in (8, 4, 2, 1):
            for x in R: o.append(f"v_add_f32_dpp v{x}, v{x}, v{x} row_ror:{sh} row_mask:0xf bank_mask:0xf")
        for sw in ("16", "32"):
            for x in R: o.append(f"v_mov_b32 v{x+1}, v{x}")
            o.append("s_nop 0")
            for x in R: o.append(f"v_permlane{sw}_swap_b32 v{x}, v{x+1}")
            for x in R: o.append(f"v_add_f32 v{x}, v{x}, v{x+1}")
        for r in range(2):
            sv, qv, d = 116+4*r, 118+4*r, 112+2*r
            o.append(f"v_mul_f32 v{d}, 0x3a800000, v{sv}")
            o.append(f"v_mul_f32 v{d+1}, 0x3a800000, v{qv}")
            o.append(f"v_fma_f32 v{d+1}, -v{d}, v{d}, v{d+1}")
            o.append(f"v_max_f32 v{d+1}, 0, v{d+1}")
            o.append(f"v_add_f32 v{d+1}, 0x3727c5ac, v{d+1}")
            o.append(f"v_rsq_f32 v{d+1}, v{d+1}")
        o.append("s_nop 0")
        return o
    def rows_stats(part=None):
        l = rows_stats_l()
        for i in (l if part is None else l[len(l)*part//3:len(l)*(part+1)//3]): a(i)
    def rows_local():
        a("s_lshl_b32 s43, s47, 4")
        a(f"s_add_u32 s43, s43, {LST}")
        a("v_mov_b32 v11, s43")
        a("ds_write_b128 v11, v[112:115]")
        a("s_waitcnt lgkmcnt(0)")
    HYB = os.environ.get("K1_PF", "mall1") == "hyb"
    def wpre(s):
        if not HYB or s > 4: return
        if s == 0:
            a("s_mul_i32 s43, s2, 10752")
            a("s_mul_i32 s44, s47, 2688")
            a("s_add_u32 s43, s43, s44")
            a(f"s_add_u32 s43, s43, {576*6144}")
            a("s_add_u32 s82, s6, s43")
            a("s_addc_u32 s83, s7, 0")
        lo = [0, 10, 18, 26, 34, 42]
        for q in range(lo[s], lo[s+1]): a(f"s_load_dword s{64 + q % 16}, s[82:83], {64*q}")
    def spre_setup():
        if not NPS: return
        Lj = a.label("Lsj")
        cs_sbase(a, Lj, 80, 47)
        a(f"{Lj}:")
    def spre(n=2): cs_spre(a, n)
    def dma(slot, lo=0, hi=14):
        xs, ws = [], []
        for i in range(6):
            g = [f"s_add_u32 m0, s39, {slot*STG1 + i*3072}", "s_mov_b64 exec, s[60:61]" if i == 0 else "s_nop 0",
                 f"buffer_load_dwordx4 v{4+i}, s[8:11], s37 offen lds"]
            if i == 0: g.append("s_mov_b64 exec, -1")
            xs.append(g)
        for j in range(8):
            ws.append([f"s_add_u32 m0, s40, {slot*STG1 + j*1024}", f"s_add_u32 s43, s38, {8*j*6144}",
                       f"buffer_load_dwordx4 v{2+(j&1)}, s[12:15], s43 offen lds"])
        gs = interleave(ws, xs) if int(os.environ.get("K1_ILV", "0")) else xs + ws
        for g in gs[lo:hi]:
            for i in g: a(i)
        if hi == 14:
            a("s_add_u32 s37, s37, 128")
            a(f"s_add_u32 s38, s38, {64*6144}")
    stamp(a, 1)
    E0 = int(os.environ.get("K1_E0", "14"))
    dma(0); dma(1, 0, E0)
    stamp(a, 2)
    a(f"s_waitcnt vmcnt({E0})")
    a("s_barrier")
    if E0 < 14: dma(1, E0, 14)
    dma(2)
    RW = int(os.environ.get("K1_RW", "0"))
    SPEC2 = int(os.environ.get("SPEC2", "1"))
    PO2 = int(os.environ.get("PO2", "3")) if SPEC2 else -9
    PON = int(os.environ.get("PON", "6"))
    POI = int(os.environ.get("POI", "6")) if int(os.environ.get("SPEC3", "1")) else -9
    def pstage(s, do_dma, vm, extra=None):
        if do_dma: dma((s+2) % NS)
        if s == RW: rows_load(51)
        if s in (RW+2, RW+3, RW+4): rows_stats(s - RW - 2)
        if s == RW+4: rows_local()
        if s == 0: spre_setup()
        if s == min(x for x in (POI, PO2) if x >= 0) if max(POI, PO2) >= 0 else False:
            for i in range(4): a(f"v_mov_b32 v{128+i}, -1")
        if s == POI: srd(a, 24, 16, 16384, add_imm=WS_H - WS_O)
        if s in (POI, PO2): a("s_mul_i32 s28, s47, 5120")
        npo = lambda t: 6//PON if POI <= t < POI + PON else 2 if PO2 <= t < PO2 + 3 else 0
        for q in range(npo(s)):
            a(f"buffer_store_dwordx4 v[128:131], v10, s[{24 if s >= POI >= 0 else 16}:{27 if s >= POI >= 0 else 19}], s28 offen sc1")
            a("s_add_u32 s28, s28, 1024")
        if vm is not None: vm += npo(s) + npo(s-1)
        wpre(s)
        if max(SPS, RW+4) <= s <= SPE: spre()
        if vm is not None: a(f"s_waitcnt vmcnt({vm + (4 if s == RW else 0)})")
        a("s_barrier")
    for s in range(14): pstage(s, s > 0, 14)
    pstage(14, False, 0)
    pstage(15, False, None)
    Lw4 = a.label("Lx"); Lw5 = a.label("Lx"); Lwe = a.label("Lx")
    a("s_cmp_eq_u32 s47, 0")
    a(f"s_cbranch_scc1 {Lw4}")
    a("s_cmp_eq_u32 s47, 1")
    a(f"s_cbranch_scc1 {Lw5}")
    warm_jump(a, ("Lp", 2))
    a(f"s_branch {Lwe}")
    a(f"{Lw5}:")
    warm_jump(a, ("Lp", 1))
    a(f"s_branch {Lwe}")
    a(f"{Lw4}:")
    warm_jump(a, ("LG1", 0))
    a(f"{Lwe}:")
    a("s_waitcnt lgkmcnt(0)")
    att_setup()
    a(f"s_branch {Latt}")

    a(";@@W7")
    a(f"{Lpf}:")
    PFM = os.environ.get("K1_PF", "mall1")
    PF = PFM == "l2"
    a(f"s_load_dwordx2 s[26:27], s[0:1], {KA_DBG}")
    Lz = a.label("Lz")
    a("s_or_b32 s43, s34, s35")
    a("s_cmp_lg_u32 s43, 0")
    a(f"s_cbranch_scc1 {Lz}")
    flag_srd(a, 84)
    a("v_lshlrev_b32 v14, 7, v1")
    a("v_mov_b32 v36, 0")
    a("v_mov_b32 v37, 0")
    for q in range(4):
        a(f"s_mov_b32 s43, {q*8192}")
        a("buffer_store_dwordx2 v[36:37], v14, s[84:87], s43 offen sc1")
    a(f"{Lz}:")
    if RW == 0: rows_load(51)
    a("v_min_u32 v14, 23, v1")
    a("v_lshrrev_b32 v15, 3, v14")
    a(f"v_mul_u32_u24 v15, {STG1}, v15")
    a("v_and_b32 v14, 7, v14")
    a("v_lshl_add_u32 v15, v14, 4, v15")
    for i in range(4): a(f"v_mov_b32 v{32+i}, 0x3f803f80")
    a("ds_write_b128 v15, v[32:35]")
    PER = 64 // MX
    NPI = (3*PER + 63) // 64
    for q in range(NPI):
        a(f"v_add_u32 v14, {64*q}, v1")
        a(f"v_min_u32 v14, {3*PER-1}, v14")
        a("v_mul_u32_u24 v15, 21846, v14")
        a("v_lshrrev_b32 v15, 16, v15")
        a("v_mul_u32_u24 v16, 3, v15")
        a("v_sub_u32 v16, v14, v16")
        a(f"s_mul_i32 s43, s48, {PER}")
        a("v_add_u32 v15, s43, v15")
        a("v_mul_u32_u24 v15, 6144, v15")
        a(f"v_lshl_add_u32 v{2+q}, v16, 11, v15")
    vm = []
    def wait_for(tag):
        idx = max(i for i, t in enumerate(vm) if t == tag)
        a(f"s_waitcnt vmcnt({len(vm) - 1 - idx})")
    def l2pf(st):
        if not PF or st >= nst: return
        a(f"s_mov_b32 s43, {st*64*6144}")
        for q in range(NPI):
            a(f"buffer_load_dword v31, v{2+q}, s[12:15], s43 offen"); vm.append("pf")
    a("s_waitcnt lgkmcnt(0)")
    srd(a, 56, 26, 256)
    a("v_lshlrev_b32 v14, 7, v1")
    vm.append("rows")
    def mallpf():
        srd(a, 84, 6, 6291456)
        a("s_mul_i32 s43, s2, 24576")
        for q in range(3):
            a(f"buffer_load_dword v31, v14, s[84:87], s43 offen"); vm.append("pf")
            if q < 2: a("s_add_u32 s43, s43, 8192")
    def slowpf(which=None):
        srd(a, 84, 6, 6291456)
        a("s_lshr_b32 s44, s2, 3")
        if (SPF if which is None else which) & 1:
            a("s_and_b32 s43, s35, 8")
            a("s_or_b32 s43, s43, 3")
            a("s_lshl_b32 s43, s43, 7")
            a("s_mul_i32 s45, s44, %d" % (32*6144))
            a("s_add_u32 s43, s43, s45")
            for q in range(2):
                a(f"v_add_u32 v15, {64*q}, v1")
                a("v_min_u32 v15, 95, v15")
                a("v_mul_u32_u24 v16, 21846, v15")
                a("v_lshrrev_b32 v16, 16, v16")
                a("v_mul_u32_u24 v17, 3, v16")
                a("v_sub_u32 v15, v15, v17")
                a("v_mul_u32_u24 v16, 6144, v16")
                a("v_lshl_add_u32 v15, v15, 11, v16")
                a("buffer_load_dword v31, v15, s[84:87], s43 offen"); vm.append("pf")
        if (SPF if which is None else which) & 2:
            a("s_xor_b32 s43, s63, 64")
            a("s_lshl_b32 s43, s43, 11")
            a("buffer_load_dword v31, v14, s[8:11], s43 offen"); vm.append("pf")
            a("s_add_u32 s43, s43, 8192")
            a("buffer_load_dword v31, v14, s[8:11], s43 offen"); vm.append("pf")
    SPF = int(os.environ.get("K1_SPF", "4"))
    SPAT = int(os.environ.get("K1_SPAT", "0"))
    if PFM == "mall0": mallpf()
    if SPAT < 0: slowpf()
    stampc(a, "k1", 0)
    a("s_barrier")
    def mallpf2():
        srd(a, 84, 6, 6291456)
        a("s_mul_i32 s43, s2, 9216")
        a(f"s_add_u32 s43, s43, {192*6144}")
        a("buffer_load_dword v31, v14, s[84:87], s43 offen"); vm.append("pf")
        a("v_min_u32 v15, 7, v1")
        a("v_lshlrev_b32 v15, 7, v15")
        a("s_add_u32 s43, s43, 8192")
        a("buffer_load_dword v31, v15, s[84:87], s43 offen"); vm.append("pf")
    if PFM == "hyb": mallpf2()
    MST = int(os.environ.get("K1_MST", "1"))
    if PFM == "mall1" and not MST: mallpf()
    stampc(a, "k1", 1)
    GS = int(os.environ.get("K1_GS", "10" if RW < 2 else "11"))
    SS = int(os.environ.get("K1_SS", str(max(7 + RW, PO2 + 5))))
    assert PO2 + 2 <= SS - 3 and (POI < 0 or PO2 + 3 <= POI)
    PFN = int(os.environ.get("K1_PFN", "4"))
    CS0 = int(os.environ.get("K1_CS0", "14")); WOP = int(os.environ.get("K1_WOP", "13")); WOM = os.environ.get("K1_WOM", "mall")
    Lgd = a.label("Lgd")
    nxt = [3]
    for s in range(nst):
        if PFM == "mall1" and MST and s in (0, MST):
            Lm = a.label("Lm")
            a("s_cmp_ge_u32 s2, 128")
            a(f"s_cbranch_scc{1 if s == 0 else 0} {Lm}")
            n0 = len(vm); mallpf(); del vm[n0:]
            a(f"{Lm}:")
        if s in ICW:
            code_warm(a, 88); vm.append("pf")
        if s == SP2 and SPF & 4:
            Lm = a.label("Lm")
            a("s_cmp_lt_u32 s2, 128")
            a(f"s_cbranch_scc1 {Lm}")
            n0 = len(vm); slowpf(1); del vm[n0:]
            a(f"{Lm}:")
        if s == SPAT: slowpf()
        if s == 0: spre_setup()
        if s == RW and RW > 0:
            rows_load(51); vm.extend(["rows"]*4)
        if s == 2:
            Lz = a.label("Lz")
            a("s_or_b32 s43, s34, s35")
            a("s_cmp_lg_u32 s43, 0")
            a(f"s_cbranch_scc1 {Lz}")
            a("s_waitcnt vmcnt(0)")
            a("v_mov_b32 v5, 1")
            a("v_mov_b32 v6, 0")
            a("s_mov_b64 exec, 1")
            a("buffer_store_dword v5, v6, s[56:59], 0 offen sc1")
            a("s_mov_b64 exec, -1")
            a(f"{Lz}:")
        if s == RW + 2:
            wait_for("rows")
            rows_stats(0)
        if s == RW + 3: rows_stats(1)
        if s == RW + 4:
            rows_stats(2); rows_local()
        if s == RW + 5:
            a("v_lshlrev_b32 v5, 4, v1")
            a("v_and_b32 v5, 63, v5")
            a(f"v_add_u32 v6, {LST}, v5")
            a("ds_read_b128 v[112:115], v6")
            a("s_lshl_b32 s43, s63, 3")
            a("v_add_u32 v5, s43, v5")
            a("s_waitcnt lgkmcnt(0)")
            a("s_mov_b64 exec, 15")
            a(f"buffer_store_dwordx4 v[112:115], v5, s[20:23], 0 offen sc1"); vm.append("store")
            a("s_mov_b64 exec, -1")
        if s < SS - 2:
            for q in range(PFN):
                l2pf(nxt[0]); nxt[0] += 1
        if s == int(os.environ.get("K1_X11", "99")):
            a(f"s_andn2_b32 s43, s34, {MX-1}")
            a("s_lshl_b32 s43, s43, 7")
            a("s_lshr_b32 s44, s2, 3")
            a("s_mul_i32 s44, s44, 17")
            a("s_add_u32 s43, s43, s44")
            a("s_sub_u32 s43, s43, 16")
            a("v_min_u32 v15, 16, v1")
            a("v_add_u32 v15, s43, v15")
            a("v_max_i32 v15, 0, v15")
            a("v_lshlrev_b32 v15, 11, v15")
            a("buffer_load_dword v31, v15, s[8:11], 0 offen offset:1408"); vm.append("pf")
        if s == WOP:
            if WOM == "l2":
                n = pf_w64(a, KA_WO, 1024, list(range(16//MX)), 84, 29, 30); vm.extend(["pf"]*n)
            elif WOM == "mall":
                a(f"s_load_dwordx2 s[88:89], s[0:1], {KA_WO}")
                a("v_lshlrev_b32 v29, 7, v1")
                a("s_lshl_b32 s43, s2, 13")
                a("s_waitcnt lgkmcnt(0)")
                srd(a, 84, 88, 2097152)
                a("buffer_load_dword v30, v29, s[84:87], s43 offen"); vm.append("pf")
                if int(os.environ.get("K2_SPF", "1")):
                    a("v_and_b32 v29, 31, v1")
                    a("v_lshlrev_b32 v29, 11, v29")
                    a("s_and_b32 s43, s35, 8")
                    a("s_or_b32 s43, s43, 3")
                    a("s_lshl_b32 s43, s43, 7")
                    a("s_lshr_b32 s44, s2, 3")
                    a("s_lshl_b32 s44, s44, 16")
                    a("s_add_u32 s43, s43, s44")
                    a("buffer_load_dword v30, v29, s[84:87], s43 offen"); vm.append("pf")
        if s == SS - 2:
            a("v_mov_b32 v7, 0")
            a("v_mov_b32 v9, 1")
            a("buffer_load_dword v8, v7, s[56:59], 0 offen sc1"); vm.append("z")
        if s == SS:
            flag_poll_finish(a, 56, v=7)
            flag_srd(a, 56)
            flag_signal(a, 56, "ln", 34); vm.append("at")
        if s == GS:
            a("s_sub_u32 s44, s34, 1")
            a("s_max_i32 s44, s44, 0")
            a("v_mov_b32 v5, s44")
            a("v_mov_b32 v6, s34")
            a("v_cmp_eq_u32 vcc, 0, v1")
            a("s_nop 1")
            a("v_cndmask_b32 v5, v5, v6, vcc")
            a(f"v_add_u32 v5, {FLG['ln'][0]}, v5")
            a("v_lshlrev_b32 v5, 7, v5")
            a("buffer_load_dword v6, v5, s[56:59], 0 offen sc1"); vm.append("poll")
        if s == GS + 2:
            a("v_mov_b32 v7, 16")
            flag_poll_finish(a, 56, v=5, first=len(vm) - 1 - max(i for i, t in enumerate(vm) if t == "poll"))
            for q in range(3):
                a(f"v_add_u32 v5, {64*q}, v1")
                a("v_min_u32 v5, 143, v5")
                a(f"v_lshlrev_b32 v{20+q}, 3, v5")
                a("v_add_u32 v5, s50, v5")
                a("v_max_i32 v5, 0, v5")
                a("v_lshlrev_b32 v5, 3, v5")
                a(f"buffer_load_dwordx2 v[{32+2*q}:{33+2*q}], v5, s[20:23], 0 offen sc1"); vm.append("gather")
        if s == GS + 4:
            wait_for("gather")
            for q in range(3):
                a(f"v_add_u32 v{20+q}, {RST}, v{20+q}")
                a(f"ds_write_b64 v{20+q}, v[{32+2*q}:{33+2*q}]")
            a("s_waitcnt lgkmcnt(0)")
        if s in (CS0, CS0+1):
            Lnj = a.label("Lnj")
            cs_setup(a, Lnj, 84, 28)
            for q in range(16*(s-CS0), 16*(s-CS0+1)): cs_issue(a, q, 84, 28)
            a(f"{Lnj}:")
        if STAMPC != "k1": wpre(s)
        if max(RW + 5, SPS) <= s <= (11 if CSM == "d" else SPE) and STAMPC != "k1": spre()
        a("s_barrier")
        stampc(a, "k1", s+2)
    stampc(a, "k1", 18)
    warm_jump(a, ("L7", 0))
    warm_jump(a, ("Lnojob", 0))
    a("s_waitcnt lgkmcnt(0)")
    att_setup()

    a(f"{Latt}:")
    a("s_barrier")
    stampc(a, "k1", 19)
    stamp(a, 3)
    U = 32*QP
    for u in range(2):
        B = 32 + 48*u
        uo = u*U
        a(f"ds_read_b128 v[{B}:{B+3}], v20 offset:{QKV + uo}")
        a(f"ds_read_b128 v[{B+4}:{B+7}], v20 offset:{QKV + uo + 128}")
        if u == 0: a(f"ds_read_b128 v[{B+8}:{B+11}], v21 offset:{QKV + 128}")
        else: a(f"ds_read_b128 v[{B+8}:{B+11}], v20 offset:{QKV + 128}")
    for u in range(2):
        B = 32 + 48*u
        uo = u*U
        for dh in range(2):
            if u == 0: a(f"ds_read_b64_tr_b16 v[{B+12+4*dh}:{B+13+4*dh}], v23 offset:{QKV + 256 + dh*32}")
            else: a(f"ds_read_b64_tr_b16 v[{B+12+4*dh}:{B+13+4*dh}], v22 offset:{QKV + 256 + dh*32}")
            a(f"ds_read_b64_tr_b16 v[{B+14+4*dh}:{B+15+4*dh}], v22 offset:{QKV + uo + 256 + dh*32}")
    for u in range(2):
        B = 32 + 48*u
        a(f"s_waitcnt lgkmcnt({11 if u == 0 else 8})")
        a(f"v_mfma_f32_16x16x32_bf16 v[{B+20}:{B+23}], v[{B+8}:{B+11}], v[{B}:{B+3}], 0")
        a(f"v_mfma_f32_16x16x32_bf16 v[{B+24}:{B+27}], v[{B+4}:{B+7}], v[{B}:{B+3}], 0")
    a("s_nop 7")
    def soft(u):
        B = 32 + 48*u
        S = B + 20; M = B + 28; T = B + 29; P = B + 32
        r_ = []
        am = 64 if u == 0 else 84
        for r in range(4): r_.append(f"v_cndmask_b32 v{S+r}, v28, v{S+r}, s[{am+2*r}:{am+2*r+1}]")
        for r in range(4): r_.append(f"v_cndmask_b32 v{S+4+r}, v28, v{S+4+r}, s[{52+2*r}:{53+2*r}]")
        r_.append(f"v_max3_f32 v{M}, v{S}, v{S+1}, v{S+2}")
        r_.append(f"v_max3_f32 v{T}, v{S+3}, v{S+4}, v{S+5}")
        r_.append(f"v_max3_f32 v{M}, v{M}, v{S+6}, v{S+7}")
        r_.append(f"v_max_f32 v{M}, v{M}, v{T}")
        for sw in ("32", "16"):
            r_.append(f"v_mov_b32 v{T}, v{M}")
            r_.append("s_nop 0")
            r_.append(f"v_permlane{sw}_swap_b32 v{M}, v{T}")
            r_.append(f"v_max_f32 v{M}, v{M}, v{T}")
        r_.append(f"v_mul_f32 v{M}, s61, v{M}")
        for r in range(8): r_.append(f"v_fma_f32 v{S+r}, v{S+r}, s61, -v{M}")
        for r in range(8): r_.append(f"v_exp_f32 v{S+r}, v{S+r}")
        for q in range(4): r_.append(f"v_cvt_pk_bf16_f32 v{P+q}, v{S+2*q}, v{S+2*q+1}")
        return r_
    def zip2(x, y):
        for i, j in zip(x, y):
            a(i)
            if not (i == j and i.startswith("s_nop")): a(j)
    zip2(soft(0), soft(1))
    a("s_waitcnt lgkmcnt(0)")
    for u in range(2):
        B = 32 + 48*u
        for dh in range(2):
            a(f"v_mfma_f32_16x16x32_bf16 v[{B+36+4*dh}:{B+39+4*dh}], v[{B+12+4*dh}:{B+15+4*dh}], v[{B+32}:{B+35}], 0")
    a(f"s_load_dwordx4 s[4:7], s[0:1], {KA_WG}")
    a(f"s_load_dwordx2 s[28:29], s[0:1], {KA_WO}")
    a(f"s_load_dwordx4 s[60:63], s[0:1], {KA_WD}")
    def rsum(u):
        B = 32 + 48*u
        S = B + 20; M = B + 28; T = B + 29
        r_ = [f"v_add_f32 v{M}, v{S}, v{S+1}", f"v_add_f32 v{T}, v{S+2}, v{S+3}", f"v_add_f32 v{S+4}, v{S+4}, v{S+5}", f"v_add_f32 v{S+6}, v{S+6}, v{S+7}",
              f"v_add_f32 v{M}, v{M}, v{T}", f"v_add_f32 v{S+4}, v{S+4}, v{S+6}", f"v_add_f32 v{M}, v{M}, v{S+4}"]
        for sw in ("32", "16"):
            r_.append(f"v_mov_b32 v{T}, v{M}")
            r_.append("s_nop 0")
            r_.append(f"v_permlane{sw}_swap_b32 v{M}, v{T}")
            r_.append(f"v_add_f32 v{M}, v{M}, v{T}")
        r_.append(f"v_rcp_f32 v{M}, v{M}")
        return r_
    zip2(rsum(0), rsum(1))
    a("s_nop 0")
    for u in range(2):
        B = 32 + 48*u
        M = B + 28; O = B + 36
        for r in range(0, 8, 2): a(f"v_pk_mul_f32 v[{O+r}:{O+r+1}], v[{M}:{M+1}], v[{O+r}:{O+r+1}] op_sel_hi:[0,1]")
        for q in range(4): a(f"v_cvt_pk_bf16_f32 v{O+q}, v{O+2*q}, v{O+2*q+1}")
        a(f"buffer_store_dwordx4 v[{O}:{O+3}], v27, s[16:19], 0 offen offset:{512*u} sc1")
    stamp(a, 4)
    ic, ip, iw = a.L.index(";@@CONS"), a.L.index(";@@PROD"), a.L.index(";@@W7")
    a.L[ic:iw] = a.L[ip:iw] + a.L[ic:ip]
```

```python
import os, struct
from common import *

def fh(x): return "0x%08x" % struct.unpack("<I", struct.pack("<f", x))[0]
def env(k, d): return int(os.environ.get(k, str(d)))

C0_ = -2.0*0.7978845608028654*1.4426950408889634
C1_ = C0_*0.044715
NBM = env("NBM", 2)
XF = os.environ.get("XF", " sc1")
SET = [32, 80]
ACC = 128
NST4 = 56


class VM:
    def __init__(self, a): self.a = a; self.q = []
    def add(self, tag, n=1): self.q += [tag]*n
    def cnt(self, tag):
        idx = max(i for i, t in enumerate(self.q) if t == tag)
        return len(self.q) - 1 - idx
    def wait(self, tag):
        return f"s_waitcnt vmcnt({min(63, self.cnt(tag))})"
    def reset(self): self.q = []


def spread(main, items, frac=100):
    if frac < 100:
        c = len(main)*frac//100
        return spread(main[:c], items) + main[c:]
    out = []
    n, k = len(main), len(items)
    j = 0
    for i in range(n + 1):
        while j < k and j*n <= i*k:
            out += items[j]; j += 1
        if i < n: out.append(main[i])
    while j < k: out += items[j]; j += 1
    return out


def lane_ig(a):
    a("v_and_b32 v17, 15, v1")
    a("v_lshrrev_b32 v18, 4, v1")


def g2_addrs():
    r = []
    r.append("v_lshlrev_b32 v19, 11, v18")
    r.append("v_lshl_add_u32 v19, v17, 4, v19")
    r.append("s_lshl_b32 s43, s36, 9")
    r.append("v_add_u32 v2, s43, v19")
    r.append(f"v_add_u32 v3, {REG}, v2")
    r.append(f"v_add_u32 v4, {2*REG}, v2")
    r.append("v_lshrrev_b32 v19, 2, v17")
    r.append("v_lshl_add_u32 v20, v18, 2, v19")
    r.append("v_bfe_u32 v21, v20, 1, 2")
    r.append("v_lshlrev_b32 v20, 7, v20")
    r.append("v_lshl_add_u32 v20, v21, 5, v20")
    r.append("v_and_b32 v19, 3, v1")
    r.append("v_lshl_add_u32 v20, v19, 3, v20")
    r.append("v_add_u32 v5, 16384, v20")
    for t in range(1, 4): r.append(f"v_xor_b32 v{5+t}, {32*t}, v5")
    for rg in range(1, 3):
        for t in range(4): r.append(f"v_add_u32 v{5+4*rg+t}, {rg*REG}, v{5+t}")
    return r

def g2_reads(slot, base):
    rg, so = slot >> 1, (slot & 1)*SLOT
    def xr(kb, tl): return f"ds_read_b128 v[{base+(kb*2+tl)*4}:{base+(kb*2+tl)*4+3}], v{2+rg} offset:{so + kb*8192 + tl*256}"
    def wr(kb, t, h):
        d = base + 16 + (kb*4+t)*4 + 2*h
        return f"ds_read_b64_tr_b16 v[{d}:{d+1}], v{5+4*rg+t} offset:{so + kb*4096 + h*2048}"
    r = []
    for kb in range(2):
        r += [xr(kb, 0), wr(kb, 0, 0), wr(kb, 0, 1), wr(kb, 1, 0), wr(kb, 1, 1), xr(kb, 1), wr(kb, 2, 0), wr(kb, 2, 1), wr(kb, 3, 0), wr(kb, 3, 1)]
    return r

def g2_mfmas(base):
    r = []
    for kb in range(2):
        for tl in range(2):
            for t in range(4):
                acc = ACC + (tl*4+t)*4
                w = base + 16 + (kb*4+t)*4; x = base + (kb*2+tl)*4
                r.append(f"v_mfma_f32_16x16x32_bf16 v[{acc}:{acc+3}], v[{w}:{w+3}], v[{x}:{x+3}], v[{acc}:{acc+3}]")
    return r

def g2_stage(a, s, slot_next, pre=None):
    a("s_waitcnt lgkmcnt(0)" if pre is None else f"s_waitcnt vmcnt({pre}) lgkmcnt(0)")
    a("s_barrier")
    m = g2_mfmas(SET[s & 1])
    rd = [] if slot_next is None else g2_reads(slot_next, SET[(s+1) & 1])
    k = 0
    for i in range(16):
        a(m[i])
        for q in range(2 if i < 6 else 1):
            if k < len(rd): a(rd[k]); k += 1

def g2_loop(a, s0, nst, off, pres={}):
    s = s0
    while s in pres or (s % 6 != 0 and False):
        g2_stage(a, s, (s+1+off) % 6, pres[s]); s += 1
    nl = (nst - 1 - s)//6
    if nl > 0:
        L = a.label("Lg2")
        a(f"s_mov_b32 s41, {nl}")
        a(f"{L}:")
        for q in range(6): g2_stage(a, s+q, (s+q+1+off) % 6)
        a("s_sub_u32 s41, s41, 1")
        a("s_cmp_lg_u32 s41, 0")
        a(f"s_cbranch_scc1 {L}")
        s += 6*nl
    while s < nst:
        g2_stage(a, s, None if s == nst-1 else (s+1+off) % 6); s += 1


def k2_addrs():
    r = g2_addrs()
    r = [i for i in r if not i.startswith("v_add_u32 v3,")][:16]
    r = [i.replace("v_add_u32 v5, 16384,", "v_add_u32 v5, 0x10000,") for i in r]
    return r + [f"v_add_u32 v{9+t}, 0x10000, v{5+t}" for t in range(4)]
def k2_reads(s):
    base = SET[s & 1]; xo = (s % 4)*16384; ws = s % 10
    def xr(kb, tl): return f"ds_read_b128 v[{base+(kb*2+tl)*4}:{base+(kb*2+tl)*4+3}], v2 offset:{xo + kb*8192 + tl*256}"
    def wr(kb, t, h):
        d = base + 16 + (kb*4+t)*4 + 2*h
        return f"ds_read_b64_tr_b16 v[{d}:{d+1}], v{5 + 4*(ws >> 3) + t} offset:{(ws & 7)*8192 + kb*4096 + h*2048}"
    r = []
    for kb in range(2):
        r += [xr(kb, 0), wr(kb, 0, 0), wr(kb, 0, 1), wr(kb, 1, 0), wr(kb, 1, 1), xr(kb, 1), wr(kb, 2, 0), wr(kb, 2, 1), wr(kb, 3, 0), wr(kb, 3, 1)]
    return r
def k2_items(s, isw, vA=23):
    m0 = 65536 - 16384 + (s % 10)*8192 if isw else (s % 4)*16384
    r = [[f"s_add_u32 m0, s39, {m0 + k*1024}", "s_add_u32 s37, s37, s38", f"buffer_load_dwordx4 v{vA}, s[8:11], s37 offen{XF} lds"] for k in range(8)]
    r[0] = ["s_add_u32 s42, s42, 1", "s_and_b32 s42, s42, 15", r[0][0], f"s_lshl_b32 s37, s42, {17 if isw else 14}", r[0][2]]
    return r


def k3_addrs(nj, t0):
    r = []
    r.append("v_lshlrev_b32 v19, 11, v18")
    r.append("v_lshl_add_u32 v19, v17, 4, v19")
    r.append("s_lshl_b32 s43, s46, 10")
    r.append("v_add_u32 v2, s43, v19")
    r.append(f"v_add_u32 v3, {REG}, v2")
    r.append(f"v_add_u32 v4, {2*REG}, v2")
    r.append("v_lshrrev_b32 v19, 2, v17")
    r.append("v_lshl_add_u32 v20, v18, 2, v19")
    r.append("v_and_b32 v21, 7, v20")
    r.append("v_lshlrev_b32 v20, 8, v20")
    r.append("v_and_b32 v19, 3, v1")
    r.append("v_lshl_add_u32 v20, v19, 3, v20")
    for j in range(nj):
        r.append(f"s_add_u32 s43, s{t0}, {j}")
        r.append("v_xor_b32 v19, s43, v21")
        r.append(f"v_lshl_add_u32 v{5+j}, v19, 5, v20")
    for rg in range(1, 3):
        for j in range(nj): r.append(f"v_add_u32 v{5+4*rg+j}, {rg*REG}, v{5+j}")
    return r

def k3_acc(nj, mat, j, tl): return ACC + ((mat*nj + j)*4 + tl)*4

def k3_reads(nj, sig, kk, base):
    rg = (sig + 2) % 3
    def xr(tl): return f"ds_read_b128 v[{base+4*tl}:{base+4*tl+3}], v{2+rg} offset:{kk*8192 + tl*256}"
    def wr(mat, j, h):
        d = base + 16 + (mat*nj+j)*4 + 2*h
        return f"ds_read_b64_tr_b16 v[{d}:{d+1}], v{5+4*rg+j} offset:{16384*(1+mat) + kk*8192 + h*4096}"
    r = [xr(0), wr(0, 0, 0), wr(0, 0, 1), xr(1), xr(2), xr(3), wr(1, 0, 0), wr(1, 0, 1)]
    for j in range(1, nj): r += [wr(0, j, 0), wr(0, j, 1), wr(1, j, 0), wr(1, j, 1)]
    return r

def k3_mfmas(nj, base):
    r = []
    order = [(j, mat, tl) for j in range(nj) for mat in range(2) for tl in range(4)]
    if env("MORD", 2) == 1: order = [(j, mat, tl) for tl in range(4) for j in range(nj) for mat in range(2)]
    if env("MORD", 2) == 2:
        order = [(j, mat, tl if (2*j + mat) % 2 == 0 else 3 - tl) for j in range(nj) for mat in range(2) for tl in range(4)]
    for (j, mat, tl) in order:
        if True:
            if True:
                acc = k3_acc(nj, mat, j, tl)
                w = base + 16 + (mat*nj+j)*4; x = base + 4*tl
                r.append(f"v_mfma_f32_16x16x32_bf16 v[{acc}:{acc+3}], v[{w}:{w+3}], v[{x}:{x+3}], v[{acc}:{acc+3}]")
    return r

def chk_ops(regs, t=19):
    r = [f"v_max3_u32 v{t}, v{regs[0]}, v{regs[1]}, v{regs[2]}"]
    rest = regs[3:]
    while len(rest) >= 2:
        r.append(f"v_max3_u32 v{t}, v{t}, v{rest[0]}, v{rest[1]}"); rest = rest[2:]
    if rest: r.append(f"v_max_u32 v{t}, v{t}, v{rest[0]}")
    r.append(f"v_cmp_eq_u32 vcc, -1, v{t}")
    return r
def chk_fix(a, regs, pre, loads):
    Lo = a.label("Lok"); Lr = a.label("Lre")
    a(f"s_cbranch_vccz {Lo}")
    for i in pre: a(i)
    a("s_mov_b32 s45, 0x20000")
    a(f"{Lr}:")
    for i in loads: a(i)
    a("s_waitcnt vmcnt(0)")
    for i in chk_ops(regs): a(i)
    a("s_sub_u32 s45, s45, 1")
    a("s_cmp_eq_u32 s45, 0")
    a(f"s_cbranch_scc1 {Lo}")
    a("s_nop 2")
    a(f"s_cbranch_vccnz {Lr}")
    a(f"{Lo}:")
def k3_fix(a, sig, kk, base):
    chk_fix(a, list(range(base, base+16)),
            [f"s_add_u32 s44, s35, {sig}", "s_and_b32 s44, s44, 15", "s_lshl_b32 s44, s44, 14", f"s_add_u32 s44, s44, {kk*8192}"],
            [f"buffer_load_dwordx4 v[{base+4*tl}:{base+4*tl+3}], v2, s[12:15], s44 offen offset:{tl*256} sc1" for tl in range(4)])
def k3_half_chk(a, nj, cur, sig, kk, nxt):
    m = k3_mfmas(nj, cur); rd = k3_reads(nj, sig, kk, nxt)
    for i in interleave(m[:len(rd)], rd): a(i)
    a(f"s_waitcnt lgkmcnt({len(rd) - 6})")
    for i in interleave(m[len(rd):], chk_ops(list(range(nxt, nxt+16)))): a(i)
    a("s_nop 1")
    k3_fix(a, sig, kk, nxt)

def k3_half1(a, nj, sig, vmw=None):
    a("s_waitcnt lgkmcnt(0)")
    for i in interleave(k3_mfmas(nj, SET[0]), k3_reads(nj, sig, 1, SET[1])): a(i)
    a("s_waitcnt lgkmcnt(0)" if vmw is None else f"s_waitcnt vmcnt({vmw}) lgkmcnt(0)")
    a("s_barrier")
def k3_half2(a, nj, sig):
    for i in interleave(k3_mfmas(nj, SET[1]), k3_reads(nj, sig+1, 0, SET[0])): a(i)

def k3_consumer(a, nj, sig0, vmw, n=16):
    L = a.label("Lk3")
    a(f"s_mov_b32 s41, {(n-1)//3}")
    a(f"{L}:")
    for q in range(3):
        k3_half1(a, nj, sig0+q, vmw[q] if q < len(vmw) else None)
        k3_half2(a, nj, sig0+q)
    a("s_sub_u32 s41, s41, 1")
    a("s_cmp_lg_u32 s41, 0")
    a(f"s_cbranch_scc1 {L}")
    for q in range((n-1)//3*3, n-1):
        k3_half1(a, nj, sig0+q)
        k3_half2(a, nj, sig0+q)
    k3_half1(a, nj, sig0+n-1)


def k3_dma_setup(part, psg, vE=22, first=0):
    r = []
    if part == 0: r.append("s_lshl_b32 s43, s35, 8")
    else:
        r.append("s_mul_i32 s43, s49, 192")
        r.append("s_and_b32 s43, s43, 0xffffff80")
        r.append("s_add_u32 s43, s43, 4096")
    r.append(f"s_cmp_eq_u32 s{psg}, 1")
    r.append("s_cselect_b32 s8, s4, s6")
    r.append("s_cselect_b32 s9, s5, s7")
    r.append("s_sub_u32 s10, 7340032, s43")
    r.append("s_lshl_b32 s44, s34, 18")
    r.append(f"s_add_u32 s44, s44, {WS_H}")
    r.append("s_movk_i32 s38, 28672")
    r.append(f"s_cmp_eq_u32 s{psg}, 0")
    r.append("s_cselect_b32 s8, s32, s8")
    r.append("s_cselect_b32 s9, s33, s9")
    r.append("s_cselect_b32 s10, 262144, s10")
    r.append("s_cselect_b32 s43, s44, s43")
    r.append("s_cselect_b32 s38, 1024, s38")
    r.append("s_cselect_b32 s45, 0, -1")
    r.append("s_add_u32 s8, s8, s43")
    r.append("s_addc_u32 s9, s9, 0")
    r.append("s_mov_b32 s11, 0x20000")
    r.append("s_lshl_b32 s40, s38, 4")
    r.append(f"s_add_u32 s42, s35, {first + 15}")
    r.append(f"s_lshl_b32 s39, s{psg}, 14")
    r.append("v_lshrrev_b32 v19, 4, v1")
    r.append("v_lshlrev_b32 v20, 5, v19")
    r.append("v_mul_u32_u24 v19, 6912, v19")
    r.append("v_and_b32 v19, s45, v19")
    r.append("v_and_b32 v20, s45, v20")
    r.append("v_lshlrev_b32 v21, 4, v1")
    r.append("v_xor_b32 v21, v21, v20")
    r.append(f"v_add_u32 v{vE}, v21, v19")
    r.append("s_and_b32 s45, s45, 128")
    r.append(f"v_xor_b32 v{vE+1}, s45, v{vE}")
    return r

def k3_items(sig, vE=22):
    rg = (sig + 2) % 3
    r = [[f"s_add_u32 m0, s39, {rg*REG + j*1024}", "s_add_u32 s37, s37, s38",
          f"buffer_load_dwordx4 v{vE + (j & 1)}, s[8:11], s37 offen{XF} lds"] for j in range(16)]
    r[0] = ["s_add_u32 s42, s42, 1", "s_and_b32 s42, s42, 15", r[0][0], "s_mul_i32 s37, s42, s40", r[0][2]]
    return r

def g2_dma_setup(psg, A_off, A_mul, A_bytes, K, wreg, vA=21, hop=8):
    r = []
    r.append(f"s_mul_i32 s44, s34, {A_mul}")
    r.append(f"s_lshl_b32 s39, s{psg}, 13")
    r.append("s_add_u32 s44, s44, s39")
    r.append(f"s_add_u32 s44, s44, {A_off}")
    r.append("s_lshl_b32 s43, s35, 7")
    r.append(f"s_mov_b32 s10, {A_bytes - 8192}")
    r.append("s_movk_i32 s38, 1024")
    r.append("s_movk_i32 s40, 9216")
    r.append(f"s_cmp_eq_u32 s{psg}, 2")
    r.append(f"s_cselect_b32 s8, s{wreg}, s32")
    r.append(f"s_cselect_b32 s9, s{wreg+1}, s33")
    r.append(f"s_cselect_b32 s10, {K*2048 - 1920}, s10")
    r.append("s_cselect_b32 s43, s43, s44")
    r.append("s_cselect_b32 s38, 16384, s38")
    r.append(f"s_cselect_b32 s40, {hop*2048}, s40")
    r.append(f"s_cselect_b32 s55, {hop*2048}, s38")
    r.append("s_cselect_b32 s45, -1, 0")
    r.append("s_add_u32 s8, s8, s43")
    r.append("s_addc_u32 s9, s9, 0")
    r.append("s_mov_b32 s11, 0x20000")
    r.append("s_sub_u32 s37, 0, s40")
    r.append("v_lshrrev_b32 v19, 3, v1")
    r.append("v_mul_u32_u24 v19, 1920, v19")
    r.append("v_lshrrev_b32 v20, 4, v1")
    r.append("v_lshlrev_b32 v20, 5, v20")
    r.append("v_and_b32 v19, s45, v19")
    r.append("v_and_b32 v20, s45, v20")
    r.append(f"v_lshlrev_b32 v{vA}, 4, v1")
    r.append(f"v_xor_b32 v{vA}, v{vA}, v20")
    r.append(f"v_add_u32 v{vA}, v{vA}, v19")
    return r

def g2_items(slot, vA=21, wrows=None):
    r = []
    for k in range(8):
        if wrows is None: inc = f"s_add_u32 s37, s37, s{40 if k == 0 else 55 if k == 4 else 38}"
        else: inc = f"s_add_u32 s37, s37, {(wrows[k]*2048) & 0xffffffff}"
        r.append([f"s_add_u32 m0, s39, {slot*SLOT + k*1024}", inc, f"buffer_load_dwordx4 v{vA}, s[8:11], s37 offen{XF} lds"])
    return r

def wd_row(item):
    if item < 256:
        s, k = item >> 3, item & 7
        return 128*(s & 15) + 32*(s >> 4) + 64*(k >> 2) + 8*(k & 3)
    q = item - 256
    return 2048 + 96*(q // 12) + [0, 8, 16, 24, 48, 56, 64, 72, 32, 80, 40, 88][q % 12]


CSR = 48
TT = 80
def epi_reads(nj, csbase, TT=TT):
    rd = []
    rd.append("s_lshl_b32 s43, s46, 9")
    rd.append(f"s_add_u32 s43, s43, {STATS}")
    rd.append("v_lshl_add_u32 v19, v17, 3, s43")
    for tl in range(4): rd.append(f"ds_read_b64 v[{TT+2*tl}:{TT+2*tl+1}], v19 offset:{tl*128}")
    rd.append(f"s_mul_i32 s43, s47, {nj*64}")
    rd.append(f"s_add_u32 s43, s43, {CSF + csbase*4}")
    rd.append("v_lshl_add_u32 v19, v18, 4, s43")
    for mat in range(2):
        for j in range(nj):
            d = CSR + (mat*nj+j)*4
            rd.append(f"ds_read_b128 v[{d}:{d+3}], v19 offset:{mat*896 + j*64}")
    return rd
def epi_consts(KB, mean=True, SR=TT):
    c = []
    for tl in range(4):
        mn, rs = SR+2*tl, SR+2*tl+1
        if mean: c.append(f"v_mov_b32 v{KB+tl}, v{mn}")
        c.append(f"v_mul_f32 v{TT+8}, v{rs}, v{rs}")
        c.append(f"v_mul_f32 v{KB+4+tl}, {fh(C0_)}, v{rs}")
        c.append(f"v_mul_f32 v{TT+9}, {fh(C1_)}, v{rs}")
        c.append(f"v_rcp_f32 v{KB+12+tl}, v{TT+8}")
        c.append(f"v_mul_f32 v{KB+8+tl}, v{TT+9}, v{TT+8}")
    return c

def epi_group(nj, tl, j, out, KB, ln=True):
    G = k3_acc(nj, 0, j, tl); U = k3_acc(nj, 1, j, tl)
    cg = CSR + j*4; cu = CSR + (nj+j)*4
    KM, K0, K1, KI = KB+tl, KB+4+tl, KB+8+tl, KB+12+tl
    T = TT + 4*(j & 1)
    r = []
    if ln:
        for q in range(4): r.append(f"v_fma_f32 v{G+q}, -v{KM}, v{cg+q}, v{G+q}")
        for q in range(4): r.append(f"v_fma_f32 v{U+q}, -v{KM}, v{cu+q}, v{U+q}")
    for q in range(4): r.append(f"v_mul_f32 v{T+q}, v{G+q}, v{G+q}")
    for q in range(4): r.append(f"v_fma_f32 v{T+q}, v{T+q}, v{K1}, v{K0}")
    for q in range(4): r.append(f"v_mul_f32 v{T+q}, v{T+q}, v{G+q}")
    for q in range(4): r.append(f"v_exp_f32 v{T+q}, v{T+q}")
    for q in range(4): r.append(f"v_mul_f32 v{U+q}, v{G+q}, v{U+q}")
    for q in range(4): r.append(f"v_fma_f32 v{T+q}, v{T+q}, v{KI}, v{KI}")
    for q in range(4): r.append(f"v_rcp_f32 v{T+q}, v{T+q}")
    for q in range(4): r.append(f"v_mul_f32 v{U+q}, v{U+q}, v{T+q}")
    r.append(f"v_cvt_pk_bf16_f32 v{out}, v{U}, v{U+1}")
    r.append(f"v_cvt_pk_bf16_f32 v{out+1}, v{U+2}, v{U+3}")
    return r

ST = "#ST "
KA, KBB = 32, 224
def epi_a():
    r = []
    for q in range(2):
        for tl in range(4):
            o = 96 + 4*tl
            r += epi_group(4, tl, 2*q, o, KA) + epi_group(4, tl, 2*q+1, o+2, KA)
            r.append(ST + f"{q}buffer_store_dwordx4 v[{o}:{o+3}], v27, s[24:27], {'s53' if q else '0'} offen offset:{tl*256} sc1")
    return r
def epi_b():
    r = []
    for tp in range(2):
        lo = 112 + 4*tp
        for tl in (2*tp, 2*tp+1):
            o = 96 + 4*tl
            r += epi_group(3, tl, 0, o, KBB, False) + epi_group(3, tl, 1, o+2, KBB, False)
            r.append(ST + f"0buffer_store_dwordx4 v[{o}:{o+3}], v27, s[24:27], 0 offen offset:{tl*256} sc1")
            r += epi_group(3, tl, 2, lo + 2*(tl & 1), KBB, False)
        r.append("s_nop 1")
        r.append(f"v_permlane32_swap_b32 v{lo}, v{lo+2}")
        r.append(f"v_permlane32_swap_b32 v{lo+1}, v{lo+3}")
        r.append(ST + f"0buffer_store_dwordx4 v[{lo}:{lo+3}], v28, s[24:27], 0 offen offset:{tp*512} sc1")
    return r

def epi_store_setup(part):
    r = []
    r.append(f"s_mul_i32 s43, s34, {HH_M}")
    r.append(f"s_mul_i32 s44, s{35 if part == 0 else 49}, {16384 if part == 0 else 24576}")
    r.append("s_add_u32 s43, s43, s44")
    r.append(f"s_add_u32 s43, s43, {WS_HH + (0 if part == 0 else 524288)}")
    r.append("s_add_u32 s24, s32, s43")
    r.append("s_addc_u32 s25, s33, 0")
    r.append(f"s_mov_b32 s26, {262144 + 16384 if part == 0 else 24576}")
    r.append("s_mov_b32 s27, 0x20000")
    r.append("s_mov_b32 s53, 262144")
    r.append("s_lshl_b32 s43, s47, 13")
    r.append("s_lshl_b32 s44, s46, 10")
    r.append("s_add_u32 s43, s43, s44")
    r.append("v_lshlrev_b32 v19, 11, v18")
    r.append("v_lshl_add_u32 v19, v17, 4, v19")
    r.append("v_add_u32 v27, s43, v19")
    if part == 1:
        r.append("s_lshl_b32 s43, s47, 12")
        r.append("s_add_u32 s43, s43, s44")
        r.append("s_add_u32 s43, s43, 16384")
        r.append("v_and_b32 v19, 1, v18")
        r.append("v_lshlrev_b32 v19, 11, v19")
        r.append("v_lshrrev_b32 v20, 1, v18")
        r.append("v_lshl_add_u32 v19, v20, 8, v19")
        r.append("v_lshl_add_u32 v19, v17, 4, v19")
        r.append("v_add_u32 v28, s43, v19")
    return r

STRIP = os.environ.get("STRIP", "").split(",")
def strip(lst, key):
    return [("s_nop 0" if key in STRIP else i) for i in lst]
_k3_mfmas, _k3_reads, _k3_items, _g2_mfmas, _g2_reads, _g2_items = k3_mfmas, k3_reads, k3_items, g2_mfmas, g2_reads, g2_items
def k3_mfmas(*x): return strip(_k3_mfmas(*x), "m3")
def k3_reads(*x): return strip(_k3_reads(*x), "r3")
def g2_mfmas(*x): return strip(_g2_mfmas(*x), "m4")
def g2_reads(*x): return strip(_g2_reads(*x), "r4")
def k3_items(*x, **k):
    r = _k3_items(*x, **k)
    if "d3" in STRIP: r = [g[:-1] + ["s_nop 0 ;buffer_load lds"] for g in r]
    if "h3" in STRIP: r[0][3] = "s_mov_b32 s37, 0"
    return r
def g2_items(*x, **k):
    r = _g2_items(*x, **k)
    if "d4" in STRIP: r = [g[:2] + ["s_nop 0 ;buffer_load lds"] for g in r]
    if "h4" in STRIP: r[0][1] = "s_mov_b32 s37, 0x20000"
    return r


T1 = env("T1", 4); LB = env("LB", 6)
H4 = env("H4", 0)
HH = env("HH", 0)
assert not HH or (T1 == 4 and not H4)
A0B = (16 - T1)//2
PA1 = T1 + A0B; PB = PA1 + 8; EB4 = PB + LB; NP4 = EB4 + 24 - 2*LB
assert T1 % 2 == 0 and LB % 3 == 0
SX, SW = [32, 96], [64, 160]
AK, AS, RECV = 128, 192, 224
def both(pos): return T1 <= pos < EB4
def k4_stage_of(pos, kh):
    if pos < T1: return pos
    if pos < PA1: return T1 + A0B*kh + pos - T1
    if pos < PB: return 16 + 8*kh + pos - PA1
    if pos < EB4: return 32 + LB*kh + pos - PB
    return 32 + 2*LB + pos - EB4
def k4_addrs():
    r = []
    r.append("v_lshlrev_b32 v19, 11, v18")
    r.append("v_lshl_add_u32 v19, v17, 4, v19")
    r.append("s_lshl_b32 s43, s46, 10")
    r.append("v_add_u32 v2, s43, v19")
    r.append("v_add_u32 v3, 0x10000, v2")
    r.append("v_lshrrev_b32 v19, 2, v17")
    r.append("v_lshl_add_u32 v20, v18, 2, v19")
    r.append("v_bfe_u32 v21, v20, 1, 2")
    r.append("s_lshl_b32 s43, s47, 1")
    r.append("v_xor_b32 v21, s43, v21")
    r.append("v_lshlrev_b32 v20, 7, v20")
    r.append("v_lshl_add_u32 v20, v21, 5, v20")
    r.append("v_and_b32 v19, 3, v1")
    r.append("v_lshl_add_u32 v20, v19, 3, v20")
    r.append("v_add_u32 v5, 16384, v20")
    r.append("v_xor_b32 v6, 32, v5")
    r.append("v_add_u32 v7, 0x10000, v5")
    r.append("v_add_u32 v8, 0x10000, v6")
    r.append(f"s_lshl_b32 s43, s36, {12 if env('XBF', 1) else 13}")
    r.append("v_lshl_add_u32 v9, v1, 4, s43")
    r.append("s_mov_b32 s54, 0x10000")
    r.append("s_movk_i32 s52, 0x1000")
    return r
def k4_reads(pos):
    slot = (pos + 2) % 4; hi, so = slot >> 1, (slot & 1)*32768
    bx, bw = SX[pos & 1], SW[pos & 1]
    def xr(kb, tl): return f"ds_read_b128 v[{bx+(kb*4+tl)*4}:{bx+(kb*4+tl)*4+3}], v{2+hi} offset:{so + kb*8192 + tl*256}"
    def wr(c, kb, e, h):
        d = bw + ((c*2+kb)*2+e)*4 + 2*h
        return f"ds_read_b64_tr_b16 v[{d}:{d+1}], v{5+2*hi+e} offset:{so + c*8192 + kb*4096 + h*2048}"
    r = []
    for kb in range(2):
        w = [wr(c, kb, e, h) for c in range(2 if both(pos) else 1) for e in range(2) for h in range(2)]
        r += interleave(w, [xr(kb, tl) for tl in range(4)])
    return strip(r, "r4")
def k4_mfmas(pos):
    bx, bw = SX[pos & 1], SW[pos & 1]
    r = []
    for kb in range(2):
        for tl in range(4):
            for c in range(2 if both(pos) else 1):
                for e in range(2):
                    acc = (AS if c else AK) + (tl*2+e)*4
                    w = bw + ((c*2+kb)*2+e)*4; x = bx + (kb*4+tl)*4
                    r.append(f"v_mfma_f32_16x16x32_bf16 v[{acc}:{acc+3}], v[{w}:{w+3}], v[{x}:{x+3}], v[{acc}:{acc+3}]")
    return strip(r, "m4")
def k4_half(pos, hi):
    it = k4_items(pos)
    if not hi: return it[:3] + [it[3] + ["s_add_u32 s37, s37, s28"]]
    return [it[0][:-3] + ["s_add_u32 s37, s37, s28"] + it[4]] + it[5:]
def k4_masked(pos):
    it = k4_items(pos)
    if both(pos): return it
    return [g[:-1] + ["s_mov_b64 exec, s[72:73]", g[-1], "s_mov_b64 exec, -1"] for g in it]
def k4_stage(a, pos, pre=None, extra=[], items=None):
    a("s_waitcnt lgkmcnt(0)" if pre is None else f"s_waitcnt vmcnt({pre}) lgkmcnt(0)")
    a("s_barrier")
    rd = k4_reads(pos+1) if pos + 1 < NP4 else []
    seq = interleave(k4_mfmas(pos), rd)
    if items: seq = seq[:2] + spread(seq[2:], items, env("FRH", 80))
    if extra: seq = seq[:8] + spread(seq[8:], [[i] for i in extra])
    for i in seq: a(i)
def k4_dma_setup(first, vA=21):
    r = []
    r.append(f"s_mul_i32 s44, s34, {HH_M}")
    r.append("s_lshl_b32 s39, s51, 13")
    r.append("s_add_u32 s44, s44, s39")
    r.append(f"s_add_u32 s44, s44, {WS_HH}")
    r.append("s_and_b32 s43, s51, 1")
    r.append("s_xor_b32 s43, s43, s35")
    r.append("s_lshl_b32 s43, s43, 7")
    r.append(f"s_mov_b32 s10, {HH_M - 8192}")
    r.append("s_movk_i32 s38, 1024")
    r.append("s_movk_i32 s40, 9216")
    r.append("s_movk_i32 s37, 0x4000")
    r.append("s_cmp_ge_u32 s51, 2")
    r.append("s_cselect_b32 s8, s60, s32")
    r.append("s_cselect_b32 s9, s61, s33")
    r.append(f"s_cselect_b32 s10, {3584*2048 - 1920}, s10")
    r.append("s_cselect_b32 s43, s43, s44")
    r.append("s_cselect_b32 s38, 16384, s38")
    r.append(f"s_cselect_b32 s40, {40*2048}, s40")
    r.append(f"s_cselect_b32 s55, {40*2048}, s38")
    r.append(f"s_cselect_b32 s37, {128*2048}, s37")
    r.append("s_cselect_b32 s45, -1, 0")
    r.append("s_add_u32 s8, s8, s43")
    r.append("s_addc_u32 s9, s9, 0")
    r.append("s_mov_b32 s11, 0x20000")
    r.append("s_and_b32 s53, s35, 1")
    r.append(f"s_mul_i32 s54, s53, {A0B}")
    r.append("s_mul_i32 s54, s54, s37")
    r.append(f"s_mul_i32 s29, s53, {8 - A0B}")
    r.append(f"s_add_u32 s29, s29, {A0B}")
    r.append("s_mul_i32 s29, s29, s37")
    r.append(f"s_and_b32 s43, s45, {((32 - 2048)*2048) & 0xffffffff}")
    r.append("s_add_u32 s29, s29, s43")
    r.append(f"s_mul_i32 s37, s37, {first}")
    r.append("s_sub_u32 s37, s37, s40")
    r.append("v_lshrrev_b32 v19, 3, v1")
    r.append("v_mul_u32_u24 v19, 1920, v19")
    r.append("v_lshrrev_b32 v20, 4, v1")
    r.append("v_lshlrev_b32 v20, 5, v20")
    r.append("v_and_b32 v19, s45, v19")
    r.append("v_and_b32 v20, s45, v20")
    r.append(f"v_lshlrev_b32 v{vA}, 4, v1")
    r.append(f"v_xor_b32 v{vA}, v{vA}, v20")
    r.append(f"v_add_u32 v{vA}, v{vA}, v19")
    return r
def k4_items(pos, kind=None, vA=21):
    slot = (pos + 2) % 4
    r = []
    for k in range(8):
        if kind is None: inc = f"s_add_u32 s37, s37, s{40 if k == 0 else 55 if k == 4 else 38}"
        else:
            st = k4_stage_of(pos, 0)
            off = st*16384 + k*1024 if kind == 'x' else wd_row(8*st + k)*2048
            inc = f"s_add_u32 s37, s40, {off}" if pos < EB4 else f"s_mov_b32 s37, {off}"
        g = [f"s_add_u32 m0, s39, {slot*32768 + k*1024}", inc, f"buffer_load_dwordx4 v{vA}, s[8:11], s37 offen{XF} lds"]
        if "d4" in STRIP: g[2] = "s_nop 0 ;buffer_load lds"
        r.append(g)
    if kind is None and pos == T1: r[0] = ["s_add_u32 s37, s37, s54"] + r[0]
    if kind is None and pos == PA1: r[0] = ["s_add_u32 s37, s37, s29"] + r[0]
    return r


def emit(a, vm, seq, tag):
    for i in seq:
        if i.startswith(ST):
            t = i[len(ST)+1:]
            if "st" in STRIP: t = "s_nop 0"
            if "stp" in STRIP: t = t.replace(" sc1", "")
            a(t); vm.add("st" + i[len(ST)])
        else:
            a(i)
            if "buffer_load" in i and i.endswith("lds"): vm.add(tag)
            elif i.startswith("buffer_"): vm.add("x")

def st_last(seq):
    if not env("STLAST", 1): return seq
    return [i for i in seq if not i.startswith(ST)] + [i for i in seq if i.startswith(ST)]
def chunks(lst, n):
    return [lst[len(lst)*k//n:len(lst)*(k+1)//n] for k in range(n)]
def flat(g): return sum(g, [])
def last_with(cs, tag): return max(k for k, c in enumerate(cs) if any(i.startswith(ST + tag) for i in c))


def phase_234(a, Ld):
    PRIO = env("PRIO", 1)
    SPEC3 = env("SPEC3", 1); NV3 = env("NV3", 7)
    SPEC2 = env("SPEC2", 1); PB2 = env("PB2", 7)
    XSN = env("XSN", 1)
    XSIG = EB4 + XSN + env("XSD", 2); XRCV = NP4 - env("XRD", 3)
    SPECX = env("SPECX", 0)
    if SPECX: XSIG = -1; XRCV = NP4 - env("XRD", 2)
    LG1 = a.label("LG1")
    def k1_tail(young, signal=False):
        a(f"s_waitcnt vmcnt({young})")
        a("s_barrier")
        if signal: flag_signal(a, 56, "o", 34, v=13)
        for u in range(2):
            a(f"ds_write_b128 v27, v[{68+48*u}:{71+48*u}] offset:{512*u}")
        stamp(a, 5)
        stampc(a, "k1", 20)
    flag_srd(a, 56)
    lane_ig(a)
    a("s_lshr_b32 s46, s36, 1")
    a("s_and_b32 s46, s46, 1")
    a("s_and_b32 s47, s36, 1")
    a("s_and_b32 s51, s36, 3")
    if NBM:
        a("s_bfe_u32 s49, s35, 0x20001")
        if NBM == 2:
            a("s_sub_u32 s43, 0, s49")
            a("s_and_b32 s43, s43, 3")
            a("s_cmp_ge_u32 s35, 8")
            a("s_cselect_b32 s49, s43, s49")
        a("s_lshl_b32 s49, s49, 2")
        a("s_lshr_b32 s43, s35, 3")
        a("s_lshl_b32 s43, s43, 1")
        a("s_add_u32 s49, s49, s43")
        a("s_and_b32 s43, s35, 1")
        a("s_add_u32 s49, s49, s43")
    else:
        a("s_mov_b32 s49, s35")
    a("s_waitcnt lgkmcnt(0)")
    a("s_cmp_ge_u32 s36, 4")
    a(f"s_cbranch_scc1 {LG1}")

    def o_first_setup():
        a("s_lshl_b32 s43, s34, 18")
        srd(a, 12, 32, 262144, add_lo=43, add_imm=WS_O)
        a("v_lshlrev_b32 v21, 4, v1")
        a("s_lshl_b32 s54, s36, 11")
        for sg in (1, 2):
            a(f"s_add_u32 s43, s35, {sg}")
            a("s_and_b32 s43, s43, 15")
            a("s_lshl_b32 s43, s43, 14")
            a(f"s_add_u32 s{29+sg}, s43, s54")
    def o_first():
        for sg in (1, 2):
            for e in range(2):
                a(f"s_add_u32 m0, s54, {sg*16384 + e*1024}")
                a(f"s_add_u32 s43, s{29+sg}, {e*1024}")
                a(f"buffer_load_dwordx4 v21, s[12:15], s43 offen{XF} lds")
    for i in k2_addrs(): a(i)
    a("s_lshl_b32 s43, s34, 18")
    a("s_lshl_b32 s44, s35, 14")
    a("s_add_u32 s43, s43, s44")
    srd(a, 20, 32, 16384, add_lo=43, add_imm=WS_H)
    a("s_lshl_b32 s43, s34, 14")
    a("s_lshl_b32 s44, s35, 10")
    a("s_add_u32 s43, s43, s44")
    srd(a, 24, 32, 1024, add_lo=43, add_imm=WS_ST2)
    a("s_movk_i32 s50, 0x2000")
    a("v_lshrrev_b32 v19, 1, v18")
    a("v_lshl_add_u32 v19, v19, 4, v17")
    a("s_lshl_b32 s43, s36, 5")
    a("v_add_u32 v19, s43, v19")
    a("v_and_b32 v20, 1, v18")
    a("v_lshlrev_b32 v20, 2, v20")
    a("v_lshl_add_u32 v22, v19, 3, v20")
    o_first_setup()
    k1_tail(0)
    for k in range(4):
        a(f"v_permlane16_swap_b32 v{240+4*k}, v{242+4*k}")
        a(f"v_permlane16_swap_b32 v{241+4*k}, v{243+4*k}")
    for k in range(8):
        for h in range(2):
            a(f"v_lshlrev_b32 v{ACC+4*k+2*h}, 16, v{240+2*k+h}")
            a(f"v_and_b32 v{ACC+4*k+2*h+1}, 0xffff0000, v{240+2*k+h}")
    a("s_waitcnt lgkmcnt(0)")
    a("s_barrier")
    o_first()
    for i in k2_reads(0): a(i)
    a("s_waitcnt lgkmcnt(0)")
    for i in g2_mfmas(SET[0]): a(i)
    a("s_waitcnt vmcnt(2)")
    a("s_barrier")
    stamp(a, 6)
    for i in k2_reads(1): a(i)
    for st in range(1, 16):
        a("s_waitcnt vmcnt(0) lgkmcnt(0)" if st == 1 else "s_waitcnt lgkmcnt(0)")
        if SPEC2 and st <= PB2 + 3:
            b = SET[st & 1]; regs = list(range(b, b + 16))
            for i in chk_ops(regs): a(i)
            a("s_nop 4")
            chk_fix(a, regs, [f"s_add_u32 s44, s35, {st}", "s_and_b32 s44, s44, 15", "s_lshl_b32 s44, s44, 14", "s_add_u32 s43, s44, 0x2000"],
                    [f"buffer_load_dwordx4 v[{b+(kb*2+tl)*4}:{b+(kb*2+tl)*4+3}], v2, s[12:15], s{43 if kb else 44} offen offset:{tl*256} sc1" for kb in range(2) for tl in range(2)])
        a("s_barrier")
        m = g2_mfmas(SET[st & 1]); rd = k2_reads(st+1) if st < 15 else []
        for i in spread(rd, [[x] for x in m], 100) if rd else m: a(i)
    stamp(a, 7)
    a("s_nop 4")
    P = 96
    for tl in range(2):
        for kb in range(2):
            o = P + (tl*2+kb)*4
            for hf in range(2):
                s = ACC + (tl*4 + 2*kb + hf)*4
                a(f"v_cvt_pk_bf16_f32 v{o+2*hf}, v{s}, v{s+1}")
                a(f"v_cvt_pk_bf16_f32 v{o+2*hf+1}, v{s+2}, v{s+3}")
            a(f"buffer_store_dwordx4 v[{o}:{o+3}], v2, s[20:23], {'s50' if kb else '0'} offen offset:{tl*256} sc1")
            a(f"ds_write_b128 v4, v[{o}:{o+3}] offset:{kb*8192 + tl*256}")
    for q in range(8):
        for tl in range(2):
            x = ACC + 16*tl + 2*q; sm = 116 + 4*tl; sq = sm + 2
            if q == 0:
                a(f"v_pk_mul_f32 v[{sq}:{sq+1}], v[{x}:{x+1}], v[{x}:{x+1}]")
            else:
                a(f"v_pk_fma_f32 v[{sq}:{sq+1}], v[{x}:{x+1}], v[{x}:{x+1}], v[{sq}:{sq+1}]")
                y = ACC + 16*tl if q == 1 else sm
                a(f"v_pk_add_f32 v[{sm}:{sm+1}], v[{x}:{x+1}], v[{y}:{y+1}]")
    for tl in range(2):
        a(f"v_add_f32 v{112+2*tl}, v{116+4*tl}, v{117+4*tl}")
        a(f"v_add_f32 v{113+2*tl}, v{118+4*tl}, v{119+4*tl}")
    a("s_nop 1")
    a("v_permlane32_swap_b32 v112, v114")
    a("v_permlane32_swap_b32 v113, v115")
    a("v_add_f32 v112, v112, v114")
    a("v_add_f32 v113, v113, v115")
    a("s_nop 1")
    a("v_permlane16_swap_b32 v112, v113")
    a("v_add_f32 v112, v112, v113")
    a("buffer_store_dword v112, v22, s[24:27], 0 offen sc1")
    if SPEC3:
        a("s_waitcnt lgkmcnt(0)")
        a("s_barrier")
        stamp(a, 8)
    else:
        a("s_waitcnt vmcnt(0) lgkmcnt(0)")
        a("s_barrier")
        Ls = a.label("Lsig")
        a("s_cmp_lg_u32 s36, 0")
        a(f"s_cbranch_scc1 {Ls}")
        flag_signal(a, 56, "h", 34, v=19)
        a(f"{Ls}:")
        if env("OPF", 2) & 2:
            Lo = a.label("Lopf")
            a("s_cmp_lt_u32 s36, 2")
            a(f"s_cbranch_scc1 {Lo}")
            a("s_and_b32 s43, s36, 1")
            a("s_lshl_b32 s43, s43, 13")
            a("v_lshlrev_b32 v19, 7, v1")
            a("buffer_load_dword v31, v19, s[20:23], s43 offen sc1")
            a(f"{Lo}:")
        stamp(a, 8)

    a("s_lshl_b32 s53, s47, 2")
    for i in k3_addrs(4, 53): a(i)
    def stage0():
        for i in k3_reads(4, 0, 0, SET[0]): a(i)
        a("s_waitcnt lgkmcnt(0)")
        for i in interleave([x[:x.rindex(",")] + ", 0" if x.startswith("v_mfma") else x for x in k3_mfmas(4, SET[0])], k3_reads(4, 0, 1, SET[1])): a(i)
        a("s_waitcnt lgkmcnt(0)")
        for i in k3_mfmas(4, SET[1]): a(i)
    stage0()
    for i in k3_dma_setup(1, 51, first=2): a(i)
    for i in epi_store_setup(0): a(i)
    def out_setup():
        r = ["s_lshl_b32 s43, s34, 18", "s_lshl_b32 s44, s35, 7", "s_add_u32 s43, s43, s44",
             "s_add_u32 s16, s62, s43", "s_addc_u32 s17, s63, 0", f"s_mov_b32 s18, {127*2048 + 128}", "s_mov_b32 s19, 0x20000",
             "s_lshl_b32 s43, s46, 6", "v_lshl_add_u32 v19, v17, 1, s43", "v_lshlrev_b32 v19, 11, v19",
             "v_and_b32 v20, 1, v18", "v_lshl_add_u32 v19, v20, 5, v19", "v_lshrrev_b32 v20, 1, v18", "v_lshl_add_u32 v19, v20, 4, v19",
             "s_lshl_b32 s43, s47, 6", "v_add_u32 v28, s43, v19"]
        for d, flip in ((64, 0), (68, 1)):
            r += ["s_lshl_b32 s43, s34, 4", "s_add_u32 s43, s43, s35", f"s_xor_b32 s43, s43, {flip}", "s_lshl_b32 s43, s43, 15", f"s_add_u32 s43, s43, {WS_X}",
                  f"s_add_u32 s{d}, s32, s43", f"s_addc_u32 s{d+1}, s33, 0", f"s_mov_b32 s{d+2}, 32768", f"s_mov_b32 s{d+3}, 0x20000"]
        return r
    for i in out_setup(): a(i)
    def x_first_setup():
        a("s_lshl_b32 s43, s34, 18")
        srd(a, 12, 32, 262144, add_lo=43, add_imm=WS_H)
        a("v_lshlrev_b32 v21, 4, v1")
        a("s_lshl_b32 s54, s36, 11")
        for sg in (1, 2):
            a(f"s_add_u32 s43, s35, {sg}")
            a("s_and_b32 s43, s43, 15")
            a("s_lshl_b32 s43, s43, 14")
            a(f"s_add_u32 s{29+sg}, s43, s54")
    def x_first():
        for sg in (1, 2):
            for e in range(2):
                a(f"s_add_u32 m0, s54, {((sg+2) % 3)*REG + e*1024}")
                a(f"s_add_u32 s43, s{29+sg}, {e*1024}")
                a(f"buffer_load_dwordx4 v21, s[12:15], s43 offen{XF} lds")
    x_first_setup()
    if SPEC3:
        a("s_waitcnt vmcnt(0)")
        a("s_barrier")
        stamp(a, 9)
        if PRIO: a("s_setprio 1")
        for i in k3_reads(4, 1, 0, SET[0]): a(i)
        a("s_waitcnt lgkmcnt(14)")
        for i in chk_ops(list(range(SET[0], SET[0]+16))): a(i)
        a("s_nop 4")
        k3_fix(a, 1, 0, SET[0])
        for sg in range(1, NV3 + 1):
            a("s_waitcnt lgkmcnt(0)")
            k3_half_chk(a, 4, SET[0], sg, 1, SET[1])
            a("s_waitcnt lgkmcnt(0)")
            a("s_barrier")
            if sg < NV3: k3_half_chk(a, 4, SET[1], sg+1, 0, SET[0])
            else: k3_half2(a, 4, sg)
        k3_consumer(a, 4, NV3 + 1, [], n=15 - NV3)
    else:
        a("s_barrier")
        x_first()
        a("s_waitcnt vmcnt(2)")
        a("s_barrier")
        stamp(a, 9)
        if PRIO: a("s_setprio 1")
        for i in k3_reads(4, 1, 0, SET[0]): a(i)
        k3_consumer(a, 4, 1, [0], n=15)
    stamp(a, 10)
    EA = epi_a()
    def batch(l, nb):
        return flat([[i for i in c if not i.startswith(ST)] + [i for i in c if i.startswith(ST)] for c in chunks(l, nb)])
    if env("STBA", 0): EA = batch(EA, env("STBA", 0))
    if "e" in STRIP: EA = [i for i in EA if i.startswith(ST)]
    ea = chunks(EA, env("EA_N", 13))
    SIG_A0 = 16 + last_with(ea, "0") + 2
    SIG_A1 = 16 + last_with(ea, "1") + 2
    HL = SIG_A0 - 1
    assert 16 + len(ea) <= 31 and SIG_A0 <= 28 and HL <= 27 and SIG_A1 in (29, 30)
    L3h = a.label("L3h"); LK4 = a.label("LK4")
    RD = 192
    def resid_loads():
        r = ["v_lshlrev_b32 v19, 11, v18", "v_lshl_add_u32 v19, v17, 4, v19", "s_lshl_b32 s43, s46, 10", "s_lshl_b32 s44, s47, 13",
             f"v_add3_u32 v{RD+16}, v19, s43, 0", f"v_add_u32 v{RD+16}, s44, v{RD+16}"]
        for tl in range(4):
            r.append(f"buffer_load_dwordx4 v[{RD+4*tl}:{RD+4*tl+3}], v{RD+16}, s[20:23], 0 offen offset:{tl*256} sc1")
        return r
    def resid_unpack():
        r = []
        for k in range(4):
            for q in range(4):
                r.append(f"v_lshlrev_b32 v{ACC+8*k+2*q}, 16, v{RD+4*k+q}")
                r.append(f"v_and_b32 v{ACC+8*k+2*q+1}, 0xffff0000, v{RD+4*k+q}")
        return r
    extra = {HL: resid_loads(), 17: k4_addrs(), 29: resid_unpack(), 30: [f"v_mov_b32 v{AS+i}, 0" for i in range(32)]}
    assert HL + 2 <= 28 and HL > 19
    a("s_cmp_eq_u32 s36, 3")
    a(f"s_cbranch_scc1 {L3h}")
    for helper in (False, True):
        vm = VM(a)
        if helper: a(f"{L3h}:")
        m = k3_mfmas(4, SET[1])
        if env("ERI", 1):
            m = interleave(m, epi_reads(4, 0, TT=2))
            emit(a, vm, m if helper else spread(m, k3_items(18)), 18)
            if PRIO: a("s_setprio 0")
            emit(a, vm, ["s_waitcnt lgkmcnt(0)"] + epi_consts(KA, SR=2), None)
        else:
            emit(a, vm, m if helper else spread(m, k3_items(18)), 18)
            if PRIO: a("s_setprio 0")
            emit(a, vm, epi_reads(4, 0) + ["s_waitcnt lgkmcnt(0)"] + epi_consts(KA), None)
        if helper and env("K3PF", 0):
            k3pf = K3PF(a, 1)
            k3pf.setup()
            for s in range(3, env("K3PD", 6)): k3pf.issue(s)
        a("s_barrier")
        if helper: stampc(a, "k3", 16)
        for sig in range(16, 31):
            body = (list(ea[sig-16]) if sig-16 < len(ea) else []) + extra.get(sig, [])
            if helper:
                if sig == SIG_A0: flag_signal(a, 56, "hha0", 34, v=21)
                if sig == SIG_A1: flag_signal(a, 56, "hha1", 34, v=22)
                if sig == env("PA0", 27): flag_poll_issue(a, 56, "hha0", 34, v=21); vm.add("p")
                if env("K3PF", 0) and sig - 16 + env("K3PD", 6) < 16: k3pf.issue(sig - 16 + env("K3PD", 6))
                if 100 + sig in ICW: code_warm(a, 78, 19, 30)
                if sig == 30: warm_jump(a, ("L7b", 0))
                if env("K3_SPF", 1) and (sig in S3R if S3F else sig == env("S3C", 18)):
                    sp = SPF3(a); sp.setup(1); sp.issue(S3R[sig][1] if S3F else 8)
                if env("K4_SPF", 1) and sig == env("S4A", 25):
                    sp = SPF4(a); sp.setup(); sp.issue(0)
                if sig == 25 and env("K4PF", 0):
                    pf_w64(a, KA_WD, 3584, list(range(env("K4PF0", 0), env("K4PF", 0)//MX)), 80, 29, 30)
                assert T1 >= 4
                if sig == 29 and HH:
                    emit(a, vm, k4_dma_setup(4) + ["s_mul_i32 s28, s38, 3", "s_add_u32 s28, s28, s55"], None)
                if sig == 29 and H4:
                    emit(a, vm, k4_dma_setup(2), None)
                    a("s_mov_b64 s[72:73], 0")
                emit(a, vm, body, None)
                if sig == SIG_A0 - 1: a(vm.wait("st0"))
                if sig == SIG_A1 - 1: a(vm.wait("st1"))
                if sig == HL + 2: a(vm.wait("x"))
                if sig == 28: flag_poll_finish(a, 56, v=21, first=vm.cnt("p"))
            else:
                if sig + 3 <= 31:
                    emit(a, vm, st_last(spread(body, k3_items(sig+3), env("FR3", 100))), sig+3)
                else:
                    if sig == 29:
                        emit(a, vm, k4_dma_setup(0), None)
                        a("s_mov_b64 s[72:73], -1")
                    emit(a, vm, spread(body, k4_items(sig - 29)), ("k4", sig - 29))
                if sig == 30 and HH:
                    emit(a, vm, ["s_mul_i32 s28, s38, 3", "s_add_u32 s28, s28, s55", "s_mul_i32 s43, s38, 3", "s_add_u32 s43, s43, s40", "s_add_u32 s43, s43, s28",
                                 "s_lshl_b32 s43, s43, 1", "s_add_u32 s37, s37, s43"], None)
                w = vm.cnt(sig+2) if sig + 2 <= 31 else vm.cnt(("k4", 0))
                if sig == SIG_A0 - 1: w = min(w, vm.cnt("st0"))
                if sig == SIG_A1 - 1: w = min(w, vm.cnt("st1"))
                if sig == HL + 2: w = min(w, vm.cnt("x"))
                a(f"s_waitcnt vmcnt({w})")
            a("s_barrier")
            if helper: stampc(a, "k3", sig+1)
        if not helper: a(f"s_branch {LK4}")
    a(f"{LK4}:")
    stamp(a, 11)
    if PRIO: a("s_setprio 1")
    for i in k4_reads(0): a(i)
    if H4:
        for i in flat(k4_masked(2) + k4_masked(3)): a(i)
    XB = env("XBF", 1)
    def xch(op, reg, sd, n=8):
        return [f"buffer_{op}_dwordx4 v[{reg+4*t}:{reg+4*t+3}], v9, s[{sd}:{sd+3}], {'s52' if t >= 4 else '0'} offen offset:{(t & 3)*1024} sc1" for t in range(n)]
    if XB:
        st_ = xch("store", RECV, 64, 4)
        xs = chunks([[f"v_cvt_pk_bf16_f32 v{RECV+4*tl+q}, v{AS+8*tl+2*q}, v{AS+8*tl+2*q+1}" for q in range(4)] + [st_[tl]] for tl in range(4)], XSN)
        xs = [flat(c) for c in xs]
        xl = xch("load", AS, 68, 4)
        xu = ["s_waitcnt vmcnt(0)"]
        for k in range(16): xu += [f"v_lshlrev_b32 v{RECV+2*k}, 16, v{AS+k}", f"v_and_b32 v{RECV+2*k+1}, 0xffff0000, v{AS+k}"]
    else:
        xs = chunks(xch("store", AS, 64), XSN); xl = xch("load", RECV, 68); xu = []
    pos = 0
    R0 = max(T1, H4 + 3, HH + 3 if HH else 0)
    def pre4(pos):
        if pos == XSIG: return 0
        if HH and 3 <= pos <= HH + 2: return 4*(min(pos + 3, HH + 3) - (pos + 1))
        if not H4: return 0 if pos == 0 else None
        if pos <= H4: return 16
        return {H4 + 1: 8, H4 + 2: 0}.get(pos)
    while pos < NP4:
        if pos == R0:
            nl = (EB4 - 1 - R0)//4
            L = a.label("Lk4")
            a(f"s_mov_b32 s41, {nl}")
            a(f"{L}:")
            for q in range(4): k4_stage(a, pos + q)
            a("s_sub_u32 s41, s41, 1")
            a("s_cmp_lg_u32 s41, 0")
            a(f"s_cbranch_scc1 {L}")
            pos += 4*nl
        if pos == EB4: a("s_mov_b32 s54, 0x10000")
        if SPECX and pos == NP4 - 1:
            a("s_waitcnt lgkmcnt(0)")
            a("s_barrier")
            m = k4_mfmas(pos)
            a(m[0]); a(m[1])
            a("s_waitcnt vmcnt(0)")
            regs = list(range(AS, AS + 16))
            for i in interleave(m[2:], chk_ops(regs)): a(i)
            chk_fix(a, regs, [], xl)
            for i in xu[1:]: a(i)
            break
        k4_stage(a, pos, pre=pre4(pos), items=k4_masked(pos + 4) if pos < H4 else k4_half(pos + 4, 0) if pos < HH else None,
                 extra=xs[pos - EB4] if EB4 <= pos < EB4 + XSN else xl if pos == XRCV else xu if pos == NP4 - 1 else [])
        pos += 1
    stamp(a, 12)
    a("s_waitcnt vmcnt(0)")
    a("s_nop 4")
    for tl in range(4):
        b = AK + 8*tl; o = 32 + 4*tl
        for q in range(0, 8, 2): a(f"v_pk_add_f32 v[{b+q}:{b+q+1}], v[{b+q}:{b+q+1}], v[{RECV+8*tl+q}:{RECV+8*tl+q+1}]")
        for q in range(4): a(f"v_cvt_pk_bf16_f32 v{o+q}, v{b+2*q}, v{b+2*q+1}")
    for tl in range(4):
        o = 32 + 4*tl
        a(f"v_permlane16_swap_b32 v{o}, v{o+2}")
        a(f"v_permlane16_swap_b32 v{o+1}, v{o+3}")
        a(f"buffer_store_dwordx4 v[{o}:{o+3}], v28, s[16:19], {'s54' if tl >= 2 else '0'} offen offset:{(tl & 1)*2048}{os.environ.get('OSF', '')}")
    if STAMP:
        a("s_waitcnt vmcnt(0)")
        stamp(a, 13)
        stamp_flush(a)
    a(f"s_branch {Ld}")

    a(f"{LG1}:")
    L7 = a.label("L7"); LK3b = a.label("LK3b"); LP3 = a.label("LP3")
    a("s_cmp_eq_u32 s36, 7")
    a(f"s_cbranch_scc1 {L7}")
    for i in g2_dma_setup(51, WS_O, 262144, 262144, 1024, 28, vA=23): a(i)
    o_first_setup()
    Lp = [a.label("Lp") for _ in range(3)]
    for p in range(1, 3):
        a(f"s_cmp_eq_u32 s51, {p}")
        a(f"s_cbranch_scc1 {Lp[p]}")
    for p in range(3):
        a(f"{Lp[p]}:")
        vm = VM(a)
        def st2(s): emit(a, vm, flat(k2_items(s, p == 2)), s)
        a(f"s_add_u32 s42, s35, {15 if p == 2 else 2}")
        k1_tail(0, p == 1)
        WE = env("K2_WE", 2)
        wn_ = [0]
        def wst(upto, n):
            while wn_[0] <= min(upto, 15) and n > 0:
                st2(wn_[0]); wn_[0] += 1; n -= 1
        if p == 2: wst(9, WE)
        stamp(a, 6)
        if p == 0 and SPEC2:
            for q in range(env("SPD2", 0)):
                flag_poll_issue(a, 56, "o", 34, v=8)
                a("s_waitcnt vmcnt(0)")
        elif p == 0: flag_poll(a, 56, "o", 34, v=8)
        if p == 2: a(vm.wait(0))
        a("s_waitcnt lgkmcnt(0)")
        stamp(a, 7)
        a("s_barrier")
        stamp(a, 8)
        o_first(); vm.add(1, 2); vm.add(2, 2)
        if p < 2: st2(3)
        else: wst(9, 1)
        a(vm.wait(1))
        a("s_barrier")
        stamp(a, 9)
        if p < 2: st2(4)
        else: wst(9, 1)
        for s in range(1, 16):
            if s < 15: a(vm.wait(s+1))
            a("s_barrier")
            if p == 2: wst(s + 9, env("K2_WN", 2))
            elif s + 4 < 16: st2(s + 4)
            rest = SPR - 3 - 2*(SPE - 2) - (s-1)*env("CS_RPS", 2)
            if rest > 0 and CSM == "d": cs_spre(a, min(rest, env("CS_RPS", 2)))
            if s == 11:
                assert p < 2 or wn_[0] == 16
                for i in k3_dma_setup(0, 51): a(i)
            if s in (12, 14)[:env("EW", 2)] and p > 0:
                emit(a, vm, flat(k3_items((s-12)//2)), "w%d" % ((s-12)//2))
        if p > 0: a(vm.wait("w0"))
        a("s_barrier")
        if p == 0 and SPEC3:
            for q in range(env("SPD3", 2)):
                flag_poll_issue(a, 56, "h", 34, v=8)
                a("s_waitcnt vmcnt(0)")
            a("s_add_u32 s42, s42, 1")
            for w in (1, 2): emit(a, vm, flat(k3_items(w)), "w")
        elif p == 0:
            a("s_add_u32 s42, s42, 3")
            flag_poll(a, 56, "h", 34, v=8)
        else:
            for w in range(env("EW", 2), 3): emit(a, vm, flat(k3_items(w)), "w")
        if p < 2: a(f"s_branch {LP3}")
    a(f"{LP3}:")
    SWD = env("SWD", 1)
    W7SKIP = max(7, NV3 if SPEC3 else 0) - 1
    wd_base = ["s_mul_i32 s43, s2, 28672", "s_mul_i32 s44, s51, 7168", "s_add_u32 s43, s43, s44", "s_add_u32 s80, s60, s43", "s_addc_u32 s81, s61, 0"]
    def swd(sig, w7=False):
        n = 9 if sig <= 8 else 8 if 10 <= sig <= 12 else 7 if sig == 13 else 0
        if w7: n = 0 if sig in (W7SKIP, 9) or sig > 12 else 11 if sig <= 8 else 8
        if not SWD or not n: return []
        return [f"s_load_dword s{64+q}, s[80:81], {64*q}" for q in range(n)] + [f"s_add_u32 s80, s80, {64*n}", "s_addc_u32 s81, s81, 0"]
    for i in wd_base: a(i)
    if SPEC3:
        assert env("EW", 2) == 2
        a("s_waitcnt vmcnt(16)")
        a("s_barrier")
        for i in flat(k3_items(3)) + swd(0): a(i)
        a("s_waitcnt vmcnt(16)")
        a("s_barrier")
    else:
        x_first_setup()
        a("s_barrier")
        x_first()
        for i in flat(k3_items(3)) + swd(0): a(i)
        a("s_waitcnt vmcnt(18)")
        a("s_barrier")
        a("s_waitcnt vmcnt(16)")
        a("s_barrier")
    def xpo(sig):
        if not SPECX or not 9 <= sig <= 14: return []
        r = []
        if sig == 9:
            r = ["s_lshl_b32 s43, s34, 4", "s_add_u32 s43, s43, s35", "s_lshl_b32 s43, s43, 15", f"s_add_u32 s43, s43, {WS_X}",
                 "s_add_u32 s12, s32, s43", "s_addc_u32 s13, s33, 0", "s_mov_b32 s14, 16384", "s_mov_b32 s15, 0x20000",
                 "s_mul_i32 s30, s51, 5120", "v_lshlrev_b32 v29, 4, v1"] + [f"v_mov_b32 v{240+i}, -1" for i in range(4)]
        return r + ["buffer_store_dwordx4 v[240:243], v29, s[12:15], s30 offen sc1", "s_add_u32 s30, s30, 1024"]
    def pst(sig, body=[], pre=[], post=[]):
        for i in pre + spread(body, k3_items(sig+3)) + post + xpo(sig) + swd(sig): a(i)
        a(f"s_waitcnt vmcnt({16 + bool(xpo(sig)) + bool(xpo(sig-1))})")
        a("s_barrier")
    L = a.label("Lp3")
    a("s_mov_b32 s41, 2")
    a(f"{L}:")
    for sig in range(1, 4): pst(sig)
    a("s_sub_u32 s41, s41, 1")
    a("s_cmp_lg_u32 s41, 0")
    a(f"s_cbranch_scc1 {L}")
    pst(7); pst(8)
    bs = ["s_and_b32 s53, s35, 1", "s_lshl_b32 s53, s53, 1", "s_mul_i32 s43, s47, 3", "s_add_u32 s53, s53, s43"] + k3_addrs(3, 53)
    binit = []
    for mat in range(2):
        for j in range(3):
            for tl in range(4):
                for q in range(4):
                    binit.append(f"v_mul_f32 v{k3_acc(3, mat, j, tl)+q}, -v{TT+2*tl}, v{CSR+(mat*3+j)*4+q}")
    bi = chunks(binit, 3)
    BODY = {9: bs + epi_reads(3, 128), 10: ["s_waitcnt lgkmcnt(0)"] + epi_consts(KBB, False), 11: bi[0], 12: bi[1], 13: bi[2]}
    k4set = k4_dma_setup(2 if not H4 else H4 + 4)
    if HH: k4set += ["s_mul_i32 s28, s38, 3", "s_add_u32 s28, s28, s40"]
    if H4:
        assert T1 <= H4 + 4 <= PA1
        if H4 + 4 > T1: k4set += ["s_add_u32 s37, s37, s54"]
    for sig in range(9, 15):
        pst(sig, BODY.get(sig, []), pre=k3_dma_setup(1, 51) if sig == 13 else [], post={14: k4set, 10: epi_store_setup(1)}.get(sig, []))
    a(f"s_branch {LK3b}")

    a(f"{L7}:")
    NB2 = 18
    Lno = a.label("Lnojob"); Lcs = a.label("Lcsd")
    stampc(a, "k2", 0)
    def opoll(st):
        if SPEC2 and st == PB2 - 1 - env("PL2", 3): flag_poll_issue(a, 56, "o", 34, v=8)
        if SPEC2 and st == PB2 - 1: flag_poll_finish(a, 56, v=8)
    assert not SPEC2 or env("CS_LT", 7) >= PB2
    cs_setup(a, Lno, 64, 4, ptrs=True)
    EREG = [56, 60, 64] + list(range(72, 116, 4)) + [120, 124]
    def ld2(reg, q):
        a(f"s_mov_b32 s43, {q*4*7168}")
        a(f"buffer_load_dwordx4 v[{reg}:{reg+3}], v4, s[64:67], s43 offen")
    a("s_lshl_b32 s55, s45, 1")
    a("s_add_u32 s55, s55, s44")
    a("s_mul_i32 s55, s55, 14336")
    a("s_lshl_b32 s45, s46, 9")
    a("s_mov_b32 s50, s46")
    a("s_add_u32 s55, s55, s45")
    a("v_lshl_add_u32 v5, v5, 5, s55")
    srd(a, 72, 32, 8*14336, add_imm=WS_CS)
    for i in range(8): a(f"v_mov_b32 v{32+i}, 0")
    o_first_setup()
    k1_tail(0)
    EAT = env("CS_EAT", -2)
    if EAT == -2:
        for n in range(16): ld2(EREG[n], 32 + n)
    npr = [0]
    def proc(reg):
        t = 40 + 8*(npr[0] & 1); npr[0] += 1
        for d in range(4):
            a(f"v_lshlrev_b32 v{t+2*d}, 16, v{reg+d}")
            a(f"v_and_b32 v{t+2*d+1}, 0xffff0000, v{reg+d}")
        for d in range(4): a(f"v_pk_add_f32 v[{32+2*d}:{33+2*d}], v[{32+2*d}:{33+2*d}], v[{t+2*d}:{t+2*d+1}]")
    def mpf():
        if env("MPF", 0):
            a("s_mul_i32 s43, s2, 28672")
            srd(a, 76, 60, 28672, add_lo=43)
            a("v_lshlrev_b32 v19, 7, v1")
            for q in range(4):
                a(f"s_mov_b32 s43, {q*8192}")
                a("buffer_load_dword v30, v19, s[76:79], s43 offen")
    def cs_finish():
        a("s_nop 2")
        for sw in ("16", "32"):
            for d in range(8): a(f"v_mov_b32 v{40+d}, v{32+d}")
            a("s_nop 0")
            for d in range(8): a(f"v_permlane{sw}_swap_b32 v{32+d}, v{40+d}")
            for d in range(8): a(f"v_add_f32 v{32+d}, v{32+d}, v{40+d}")
        a("s_mov_b64 exec, 0xffff")
        a("buffer_store_dwordx4 v[32:35], v5, s[72:75], 0 offen sc1")
        a("buffer_store_dwordx4 v[36:39], v5, s[72:75], 0 offen offset:16 sc1")
        a("s_mov_b64 exec, -1")
    LT = env("CS_LT", 7); PRE = env("CS_PRE", 8); CLN = env("CS_LN", 4)
    todo = [128 + 4*n for n in range(32)] + EREG
    for r in todo[:PRE]: proc(r)
    todo = todo[PRE:]
    a("s_waitcnt lgkmcnt(0)")
    stamp(a, 7)
    for q in range(NB2):
        st = q - 2
        if q == 1:
            o_first()
            a("s_waitcnt vmcnt(2)")
        if q == 2: a("s_waitcnt vmcnt(0)")
        opoll(st)
        if st == EAT and EAT >= 0:
            for n in range(16): ld2(EREG[n], 32 + n)
        if EAT >= 0 and todo and todo[0] == EREG[0]: a(f"s_waitcnt vmcnt({16 if st > LT else 0})")
        if st == LT:
            assert npr[0] >= 16
            for n in range(16): ld2(128 + 4*n, 48 + n)
        elif st >= 1:
            if not todo and st >= LT + 4 and npr[0] == 48:
                a("s_waitcnt vmcnt(0)")
                todo = [128 + 4*n for n in range(16)]
            for r in todo[:CLN]: proc(r)
            todo = todo[CLN:]
        a("s_barrier")
        stampc(a, "k2", q+1)
    if npr[0] == 48:
        a("s_waitcnt vmcnt(0)")
        todo = [128 + 4*n for n in range(16)]
    for r in todo: proc(r)
    assert npr[0] == 64
    cs_finish()
    a("s_waitcnt vmcnt(0)")
    flag_signal(a, 56, "cs", 50, v=12)
    mpf()
    a(f"s_branch {Lcs}")
    a(f"{Lno}:")
    o_first_setup()
    k1_tail(0)
    a("s_waitcnt lgkmcnt(0)")
    for q in range(NB2):
        if q == 1:
            o_first()
            a("s_waitcnt vmcnt(2)")
        if q == 2: a("s_waitcnt vmcnt(0)")
        opoll(q - 2)
        a("s_barrier")
        stampc(a, "k2", q+1)
    mpf()
    a(f"{Lcs}:")
    a("s_mov_b32 s46, 1")
    x_first_setup()
    k3pf = K3PF(a, 0)
    PD = env("K3PD", 6)
    if env("K3PF", 0) or env("K3PF0", 0):
        k3pf.setup()
        for s in range(3, max(PD, env("K3PF0", 0))): k3pf.issue(s)
    S3 = env("K3_SPF", 1); S4 = env("K4_SPF", 1)
    sp3 = SPF3(a)
    if S3:
        sp3.setup(0); sp3.issue(3)
    a("s_lshl_b32 s43, s34, 14")
    srd(a, 64, 32, 16384, add_lo=43, add_imm=WS_ST2)
    srd(a, 72, 32, 8*14336, add_imm=WS_CS)
    if not SPEC3:
        a("s_barrier")
        stampc(a, "k2", 20)
        x_first()
        a("s_waitcnt vmcnt(2)")
    a("s_barrier")
    stampc(a, "k2", 21)
    stampc(a, "k3", 31)
    stampc(a, "k3", 0)
    def w7dst(i):
        if not i.startswith("s_load_dword"): return i
        q = int(i.split()[1][1:-1]) - 64
        return i.replace(f"s{64+q},", f"s{82 + q % 6},")
    STL = env("STL", 1); CSP = STL + 3
    for sig in range(15):
        if sig == 0:
            if SPEC3: flag_signal(a, 56, "h", 34, v=8)
            else: a("s_waitcnt vmcnt(0)")
        if SPEC3 and sig == NV3 - 3 - env("PL3", 1): flag_poll_issue(a, 56, "h", 34, v=8)
        if SPEC3 and sig == NV3 - 3: flag_poll_finish(a, 56, v=8)
        if 100 + sig in ICW: code_warm(a, 78, 19, 30)
        if sig == 14: warm_jump(a, ("L3h", 0))
        if S3 and S3F:
            if sig in S3R:
                if S3R[sig] == (1, 0): sp3.setup(1)
                sp3.issue(S3R[sig][1])
        elif S3:
            if sig == env("S3A", 5): sp3.issue(8)
            if sig == env("S3B", 10):
                sp3.setup(1); sp3.issue(0)
        if sig == STL + 1:
            a("s_mul_i32 s43, s49, 96")
            a("s_add_u32 s44, s43, 95")
            a("s_lshr_b32 s43, s43, 7")
            a("s_lshr_b32 s44, s44, 7")
            a("s_add_u32 s43, s43, 16")
            a("s_add_u32 s44, s44, 16")
            a("v_mov_b32 v12, s44")
            a("v_writelane_b32 v12, s35, 0")
            a("v_writelane_b32 v12, s43, 1")
            a(f"v_add_u32 v12, {FLG['cs'][0]}, v12")
            a("v_lshlrev_b32 v12, 7, v12")
            a(f"v_mov_b32 v14, {FLG['cs'][1]}")
            a("buffer_load_dword v13, v12, s[56:59], 0 offen sc1")
        if sig == (NV3 - 2 if SPEC3 else STL):
            for n in range(16):
                a(f"s_mov_b32 s43, {n*1024}")
                a(f"buffer_load_dwordx4 v[{128+4*n}:{128+4*n+3}], v21, s[64:67], s43 offen sc1")
        if env("K3PF", 0) and sig >= 1:
            if sig + PD - 1 < 16: k3pf.issue(sig + PD - 1)
            elif sig + PD - 1 == 16:
                k3pf.part = 1; k3pf.setup()
            if 16 <= sig + PD - 1 < 19: k3pf.issue(sig + PD - 1 - 16)
        if sig == CSP:
            flag_poll_finish(a, 56, v=12)
            a("v_min_u32 v12, 55, v1")
            a("v_lshlrev_b32 v13, 4, v12")
            a("s_lshl_b32 s43, s35, 9")
            a("s_mul_i32 s44, s49, 384")
            a(f"s_add_u32 s44, s44, {8192 - 512}")
            a("v_mov_b32 v14, s44")
            a("v_mov_b32 v15, s43")
            a("v_cmp_gt_u32 vcc, 32, v12")
            a("s_nop 1")
            a("v_cndmask_b32 v14, v14, v15, vcc")
            a("v_add_u32 v14, v14, v13")
            a(f"v_add_u32 v13, {CSF}, v13")
            for mat in range(2):
                for sl in range(4):
                    d = 192 + (mat*4+sl)*4
                    a(f"s_mov_b32 s43, {(sl*2+mat)*14336}")
                    a(f"buffer_load_dwordx4 v[{d}:{d+3}], v14, s[72:75], s43 offen sc1")
        SRD_ = max(CSP + 1, NV3) if SPEC3 else CSP + 1
        LAST_ = max(CSP + 3, SRD_)
        if sig == SRD_:
            if SPEC3: a("s_waitcnt vmcnt(0)")
            for n in range(1, 16):
                for q in range(4): a(f"v_add_f32 v{128+q}, v{128+q}, v{128+4*n+q}")
            for b in (128, 130):
                a(f"v_mul_f32 v{b}, 0x3a800000, v{b}")
                a(f"v_mul_f32 v{b+1}, 0x3a800000, v{b+1}")
                a(f"v_fma_f32 v{b+1}, -v{b}, v{b}, v{b+1}")
                a(f"v_max_f32 v{b+1}, 0, v{b+1}")
                a(f"v_add_f32 v{b+1}, 0x3727c5ac, v{b+1}")
                a(f"v_rsq_f32 v{b+1}, v{b+1}")
            a(f"v_add_u32 v19, {STATS}, v21")
            a("ds_write_b128 v19, v[128:131]")
        if sig == (CSP + 3 if SRD_ != CSP + 3 else CSP + 2):
            a("s_waitcnt vmcnt(0)" if not (SPEC3 and NV3 - 2 > CSP) else "s_waitcnt vmcnt(16)")
            for mat in range(2):
                b = 192 + mat*16
                for q in range(4):
                    a(f"v_add_f32 v{b+q}, v{b+q}, v{b+4+q}")
                    a(f"v_add_f32 v{b+8+q}, v{b+8+q}, v{b+12+q}")
                for q in range(4): a(f"v_add_f32 v{b+q}, v{b+q}, v{b+8+q}")
                a(f"ds_write_b128 v13, v[{b}:{b+3}] offset:{mat*896}")
        if sig == LAST_:
            a("s_waitcnt lgkmcnt(0)")
            assert sig < 9
        for i in BODY.get(sig, []) + (epi_store_setup(1) if sig == 10 else []) + (wd_base if sig == 0 else []) + (k4set if sig == 14 else []): a(i)
        assert LAST_ - 1 == W7SKIP
        if STAMPC != "k3":
            for i in swd(sig, True): a(w7dst(i))
        a("s_barrier")
        stampc(a, "k3", sig+1)

    a(f"{LK3b}:")
    stamp(a, 10)
    if PRIO: a("s_setprio 1")
    for i in k3_reads(3, 16, 0, SET[0]): a(i)
    k3_consumer(a, 3, 16, [0])
    stamp(a, 11)
    EB = epi_b()
    if env("STBB", 0): EB = batch(EB, env("STBB", 0))
    if "e" in STRIP: EB = [i for i in EB if i.startswith(ST)]
    eb = chunks(EB, env("EB_N", 8))
    SIG_B = last_with(eb, "0") + env("SIGB_D", 2)
    POLL_A1 = PA1 - 5; POLL_B = PB - 5
    UNI = PB - 4
    assert len(eb) <= UNI and SIG_B < POLL_B
    L7b = a.label("L7b")
    a("s_cmp_eq_u32 s36, 7")
    a(f"s_cbranch_scc1 {L7b}")
    for helper in (False, True):
        vm = VM(a)
        if helper: a(f"{L7b}:")
        m = k3_mfmas(3, SET[1])
        if H4: emit(a, vm, m, None)
        elif helper:
            emit(a, vm, m, None)
            a(f"s_mul_i32 s43, s38, {16*(T1-2)}")
            a("s_add_u32 s37, s37, s43")
        else:
            emit(a, vm, spread(m[:12], k4_items(2)), 2)
            emit(a, vm, spread(m[12:], k4_items(3)), 3)
        if PRIO: a("s_setprio 0")
        a("s_barrier")
        if helper: stampc(a, "k4", 0 - env("K4O", 0))
        def pslice(s, kind):
            body = eb[s] if s < len(eb) else []
            dma = (both(s + 4) if helper else s + 4 < NP4) and s >= H4
            if helper:
                if s == UNI - 1: warm_jump(a, ("LW4", 0))
                if s == SIG_B: flag_signal(a, 56, "hhb", 34, v=10); vm.add("f")
                if s == POLL_A1 - env("PLA", 2): flag_poll_issue(a, 56, "hha1", 34, v=10); vm.add("p")
                if s == POLL_B - env("PLB", 2): flag_poll_issue(a, 56, "hhb", 34, v=10); vm.add("p")
                if env("K4_SPF", 1):
                    if s == 0: sp4.setup()
                    for G, at in ((1, PA1 - env("S4B", 9)), (2, PB - env("S4C", 8)), (3, EB4 - env("S4D", 6))):
                        if s == at: sp4.issue(G); vm.add("f")
                if s == XSIG:
                    xflag_addr(a, 10, 0)
                    a("v_mov_b32 v11, 1")
                    a("s_mov_b64 exec, 1")
                    a("buffer_store_dword v11, v10, s[56:59], 0 offen sc1"); vm.add("f")
                    a("s_mov_b64 exec, -1")
                if s == XRCV - 1 - env("PLX", 2) and not SPECX:
                    xflag_addr(a, 10, 1)
                    a("v_mov_b32 v12, 1")
                    a("buffer_load_dword v11, v10, s[56:59], 0 offen sc1"); vm.add("p")
            if s == UNI: a(f"s_mul_i32 s40, s53, {LB*16384 if kind == 'x' else LB*64*2048}")
            emit(a, vm, st_last(spread(body, k4_half(s+4, 1) if s < HH else k4_items(s+4, kind if s >= UNI else None), env("FR4", 100))) if dma else body, s+4)
            w = vm.cnt(s+2) if s + 2 in vm.q else 63
            if s == SIG_B - 1: w = min(w, vm.cnt("st0"))
            if w < 63: a(f"s_waitcnt vmcnt({w})")
            if helper and s in (POLL_A1, POLL_B, -1 if SPECX else XRCV - 1): flag_poll_finish(a, 56, v=10, first=vm.cnt("p"))
            a("s_barrier")
            if helper: stampc(a, "k4", s+1 - env("K4O", 0))
        if helper:
            sp4 = SPF4(a)
            for s in range(NP4 - 1 if STAMPC == "k4" else EB4 - 2 if SPECX else XRCV): pslice(s, 'w')
            stamp(a, 12)
            stamp_flush(a)
            a(f"s_branch {Ld}")
        else:
            for s in range(UNI): pslice(s, None)
            LW = a.label("LW4")
            a("s_cmp_eq_u32 s51, 2")
            a(f"s_cbranch_scc1 {LW}")
            q0 = list(vm.q)
            for kind in ('x', 'w'):
                vm.q = list(q0)
                if kind == 'w': a(f"{LW}:")
                for s in range(UNI, NP4 - 2): pslice(s, kind)
                if STAMP:
                    stamp(a, 12)
                    stamp_flush(a)
                a(f"s_branch {Ld}")


NXS = 32 // MX
class XPF:
    G = NXS // 2
    def __init__(self, a, off, mul, sd=68, v=23):
        self.a = a; self.off = off; self.mul = mul; self.sd = sd; self.v = v
    def setup(self):
        a = self.a; v = self.v
        per = 128 // NXS
        a(f"s_mul_i32 s43, s34, {self.mul}")
        srd(a, self.sd, 32, self.mul, add_lo=43, add_imm=self.off)
        a(f"v_and_b32 v{v}, {per-1}, v1")
        a(f"s_mul_i32 s43, s49, {per}")
        a(f"v_add_u32 v{v}, s43, v{v}")
        a(f"v_lshlrev_b32 v{v}, 7, v{v}")
        a(f"v_lshrrev_b32 v19, {per.bit_length()-1}, v1")
        a(f"v_lshl_add_u32 v{v}, v19, 14, v{v}")
    def issue(self, st):
        a = self.a
        a(f"s_mov_b32 s43, {st*16384}")
        a(f"buffer_load_dword v30, v{self.v}, s[{self.sd}:{self.sd+3}], s43 offen sc1")


class K3PF:
    def __init__(self, a, part): self.a = a; self.part = part
    def setup(self):
        a = self.a
        if self.part == 0: a("s_lshl_b32 s43, s35, 8")
        else:
            a("s_mul_i32 s43, s49, 192")
            a("s_and_b32 s43, s43, 0xffffff80")
            a("s_add_u32 s43, s43, 4096")
        a("s_sub_u32 s44, 7340032, s43")
        for d, b in ((88, 4), (92, 6)):
            a(f"s_add_u32 s{d}, s{b}, s43")
            a(f"s_addc_u32 s{d+1}, s{b+1}, 0")
            a(f"s_mov_b32 s{d+2}, s44")
            a(f"s_mov_b32 s{d+3}, 0x20000")
        per = 64 // MX
        a("v_lshrrev_b32 v31, 1, v1")
        a(f"v_min_u32 v31, {min(per, 32)-1}, v31")
        a(f"s_mul_i32 s43, s48, {per}")
        a("v_add_u32 v31, s43, v31")
        a("v_mul_u32_u24 v31, 7168, v31")
        a("v_and_b32 v19, 1, v1")
        a("v_lshl_add_u32 v31, v19, 7, v31")
    def issue(self, st):
        a = self.a
        a(f"s_mov_b32 s43, {st*64*7168}")
        a("buffer_load_dword v30, v31, s[88:91], s43 offen")
        a("buffer_load_dword v30, v31, s[92:95], s43 offen")


S3F = env("S3F", 1)
S3R = {2: (0, 7), 6: (0, 11), 9: (0, 15), 10: (1, 0), 14: (1, 4), 18: (1, 8), 22: (1, 12)}
class SPF3:
    def __init__(self, a): self.a = a
    def setup(self, part):
        a = self.a
        for d, b in ((88, 4), (92, 6)): srd(a, d, b, 7340032)
        a("s_lshr_b32 s43, s35, 3")
        a("v_and_b32 v19, 1, v1")
        a(f"v_bfe_u32 v23, v1, 2, {2 if S3F else 3}")
        if part == 0:
            a("s_lshl_b32 s44, s43, 3")
            a("s_add_u32 s44, s44, 1")
            a("v_lshl_add_u32 v23, v19, 2, v23")
            a("v_add_u32 v23, s44, v23")
            a("s_lshl_b32 s43, s43, 11")
            a("s_add_u32 s43, s43, 384")
            a("s_movk_i32 s44, 1024")
        elif NBM:
            a("s_lshl_b32 s44, s43, 1")
            a("s_add_u32 s44, s44, 6")
            a("v_add_u32 v23, s44, v23")
            a(f"s_mul_i32 s44, s43, {2 if NBM == 1 else 6}")
            a("s_add_u32 s44, s44, 1")
            a("v_mad_u32_u24 v23, v19, s44, v23")
            a("s_lshl_b32 s44, s43, 10")
            a("s_lshl_b32 s43, s43, 11")
            a(f"s_sub_u32 s43, {51*128}, s43")
        else:
            a("s_mul_i32 s44, s43, 10")
            a("s_add_u32 s44, s44, 2")
            a("v_add_u32 v23, s44, v23")
            a("s_lshl_b32 s44, s43, 2")
            a("s_sub_u32 s44, 5, s44")
            a("v_mad_u32_u24 v23, v19, s44, v23")
            a("s_lshl_b32 s44, s43, 10")
            a("s_xor_b32 s44, s44, 1024")
            a("s_lshl_b32 s43, s43, 11")
            a(f"s_add_u32 s43, s43, {35*128}")
        a("s_lshr_b32 s45, s2, 3")
        a("s_mul_i32 s45, s45, 14336")
        a("s_add_u32 s43, s43, s45")
        a("v_mul_lo_u32 v31, v19, s44")
        a("v_bfe_u32 v19, v1, 1, 1")
        a("v_mul_u32_u24 v19, 7168, v19")
        a("v_add3_u32 v31, v31, v19, s43")
    def issue(self, st):
        a = self.a
        a(f"v_add_u32 v19, {st}, v23")
        a("v_and_b32 v19, 15, v19")
        a(f"v_mul_u32_u24 v19, {64*7168}, v19")
        a("v_add_u32 v19, v19, v31")
        a("buffer_load_dword v30, v19, s[88:91], 0 offen")
        a("buffer_load_dword v30, v19, s[92:95], 0 offen")


class SPF4:
    def __init__(self, a): self.a = a
    def setup(self):
        a = self.a
        srd(a, 80, 60, 7340032)
        a("v_and_b32 v29, 31, v1")
        a("v_lshlrev_b32 v29, 11, v29")
        a("s_and_b32 s43, s35, 8")
        a("s_or_b32 s43, s43, 3")
        a("s_lshl_b32 s43, s43, 7")
        a("v_add_u32 v29, s43, v29")
    def issue(self, G):
        a = self.a
        a("s_lshr_b32 s44, s2, 3")
        if G == 3: a("s_and_b32 s44, s44, 15")
        a(f"s_lshl_b32 s44, s44, {17 if G < 2 else 16}")
        a(f"s_add_u32 s43, s44, {[0, 32, 2048, 3072][G]*2048}")
        a("buffer_load_dword v30, v29, s[80:83], s43 offen")
```

```python
WS_O   = 0
WS_H   = 4 << 20
WS_HH  = 8 << 20
WS_ST2 = 24 << 20
WS_ST1 = 25 << 20
WS_CS  = 26 << 20
WS_BYTES = 268435456

KA_X, KA_WQKV, KA_WO, KA_BX, KA_WG, KA_WU, KA_WD, KA_OUT, KA_DBG, KA_WS = [8*i for i in range(10)]


class Asm:
    def __init__(self):
        self.L = []
        self.uid = 0
    def __call__(self, s):
        for line in s.split("\n"):
            line = line.strip()
            if line:
                self.L.append(line)
    def label(self, base="L"):
        self.uid += 1
        return f"{base}_{self.uid}"
    def comment(self, s):
        self.L.append("; " + s)
    def text(self):
        return "\n".join(self.L) + "\n"


def kernel_header(a, name):
    a(f".globl {name}")
    a(".p2align 8")
    a(f".type {name},@function")
    a(f"{name}:")


def kernel_desc(name, vgpr, sgpr, accum):
    return f""".p2align 6
.amdhsa_kernel {name}
  .amdhsa_next_free_vgpr {vgpr}
  .amdhsa_next_free_sgpr {sgpr}
  .amdhsa_accum_offset {accum}
  .amdhsa_group_segment_fixed_size 0
  .amdhsa_kernarg_size 80
  .amdhsa_user_sgpr_count 2
  .amdhsa_user_sgpr_kernarg_segment_ptr 1
  .amdhsa_system_sgpr_workgroup_id_x 1
  .amdhsa_float_denorm_mode_32 3
  .amdhsa_float_denorm_mode_16_64 3
.end_amdhsa_kernel
"""


def srd(a, d, base, nbytes, add_lo=None, add_imm=0):
    if add_lo is not None:
        a(f"s_add_u32 s{d}, s{base}, s{add_lo}")
        a(f"s_addc_u32 s{d+1}, s{base+1}, 0")
        if add_imm:
            a(f"s_add_u32 s{d}, s{d}, {add_imm}")
            a(f"s_addc_u32 s{d+1}, s{d+1}, 0")
    elif add_imm:
        a(f"s_add_u32 s{d}, s{base}, {add_imm}")
        a(f"s_addc_u32 s{d+1}, s{base+1}, 0")
    else:
        a(f"s_mov_b32 s{d}, s{base}")
        a(f"s_mov_b32 s{d+1}, s{base+1}")
    a(f"s_mov_b32 s{d+2}, {nbytes}")
    a(f"s_mov_b32 s{d+3}, 0x20000")


def interleave(main, fill, start=0, every=1):
    out = []
    fi = 0
    for i, m in enumerate(main):
        out.append(m)
        if i >= start and (i - start) % every == 0 and fi < len(fill):
            out.append(fill[fi]); fi += 1
    out.extend(fill[fi:])
    return out


import os
STAMP = bool(os.environ.get("STAMP"))
REG = 49152
SLOT = 24576
STATS = 147456
CSF = 148480
DBG = 150528
LDS_TOTAL = 151552
WS_DBG = 28 << 20
HH_M = 448 * 2048

def stamp_init(a):
    if not STAMP: return
    a("s_lshl_b32 s96, s36, 7")
    a(f"s_add_u32 s96, s96, {DBG}")
    a("v_mov_b32 v26, s96")
STAMPC = os.environ.get("STAMPC", "")
def stampc(a, kind, idx):
    if kind != STAMPC or not 0 <= idx < 32: return
    a("s_memtime s[96:97]")
    a("s_waitcnt lgkmcnt(0)")
    a("v_mov_b32 v24, s96")
    a(f"ds_write_b32 v26, v24 offset:{4*idx}")
def stamp(a, idx):
    if not STAMP or STAMPC: return
    a("s_memtime s[96:97]")
    a("s_memrealtime s[98:99]")
    a("s_waitcnt lgkmcnt(0)")
    a("v_mov_b32 v24, s96")
    a("v_mov_b32 v25, s98")
    a(f"ds_write_b64 v26, v[24:25] offset:{8*idx}")
def stamp_flush(a):
    if not STAMP: return
    a("s_waitcnt lgkmcnt(0)")
    a("v_and_b32 v24, 31, v1")
    a("v_lshlrev_b32 v24, 2, v24")
    a("v_add_u32 v25, v26, v24")
    a("ds_read_b32 v25, v25")
    a(f"s_add_u32 s96, s32, {WS_DBG}")
    a("s_addc_u32 s97, s33, 0")
    a("s_mov_b32 s98, 262144")
    a("s_mov_b32 s99, 0x20000")
    a("s_lshl_b32 s94, s2, 3")
    a("s_add_u32 s94, s94, s36")
    a("s_lshl_b32 s94, s94, 7")
    a("s_waitcnt lgkmcnt(0)")
    a("buffer_store_dword v25, v24, s[96:99], s94 offen")

WS_FLG = 27 << 20
FLG = {"o": (0, 16), "h": (16, 16), "hha0": (32, 16), "hha1": (48, 16), "hhb": (64, 12), "hhc": (128, 4), "cs": (96, 8), "ln": (80, 16)}

def flag_srd(a, d, ws_pair=32):
    srd(a, d, ws_pair, 320*128, add_imm=WS_FLG)

def flag_addr(a, kind, idx_sgpr, v):
    if idx_sgpr is None: a(f"v_mov_b32 v{v}, {FLG[kind][0] << 7}")
    else:
        a(f"s_add_u32 s43, s{idx_sgpr}, {FLG[kind][0]}")
        a("s_lshl_b32 s43, s43, 7")
        a(f"v_mov_b32 v{v}, s43")

def flag_signal(a, d, kind, idx_sgpr, v=5):
    flag_addr(a, kind, idx_sgpr, v)
    a(f"v_mov_b32 v{v+1}, 1")
    a("s_mov_b64 exec, 1")
    a(f"buffer_atomic_add v{v+1}, v{v}, s[{d}:{d+3}], 0 offen sc1")
    a("s_mov_b64 exec, -1")

def flag_poll_issue(a, d, kind, idx_sgpr, v=8):
    flag_addr(a, kind, idx_sgpr, v)
    a(f"v_mov_b32 v{v+2}, {FLG[kind][1]}")
    a(f"buffer_load_dword v{v+1}, v{v}, s[{d}:{d+3}], 0 offen sc1")

def flag_poll_finish(a, d, v=8, first=0):
    Lp = a.label("Lpoll"); Lo = a.label("Lpok"); Lf = a.label("Lpf")
    a("s_mov_b32 s41, 0x10000")
    if first:
        a(f"s_waitcnt vmcnt({first})")
        a(f"s_branch {Lf}")
    a(f"{Lp}:")
    a("s_waitcnt vmcnt(0)")
    a(f"{Lf}:")
    a(f"v_cmp_ne_u32 vcc, v{v+2}, v{v+1}")
    a("s_nop 4")
    a(f"s_cbranch_vccz {Lo}")
    a(f"buffer_load_dword v{v+1}, v{v}, s[{d}:{d+3}], 0 offen sc1")
    a("s_sub_u32 s41, s41, 1")
    a("s_cmp_lg_u32 s41, 0")
    a(f"s_cbranch_scc1 {Lp}")
    a("s_waitcnt vmcnt(0)")
    a(f"{Lo}:")

def flag_poll(a, d, kind, idx_sgpr, v=8):
    NP = int(os.environ.get("NPOLL", "1"))
    if NP <= 1:
        flag_poll_issue(a, d, kind, idx_sgpr, v)
        flag_poll_finish(a, d, v)
        return
    flag_addr(a, kind, idx_sgpr, v)
    a(f"v_mov_b32 v{v+1}, {FLG[kind][1]}")
    Lp = a.label("Lpoll"); Lo = a.label("Lpok")
    a("s_mov_b32 s41, 0x8000")
    for q in range(NP - 1):
        a(f"buffer_load_dword v{v+2+q}, v{v}, s[{d}:{d+3}], 0 offen sc1")
        a(f"s_sleep {int(os.environ.get('PSLEEP', '3'))}")
    a(f"{Lp}:")
    for q in range(NP):
        a(f"buffer_load_dword v{v+2+(q+NP-1) % NP}, v{v}, s[{d}:{d+3}], 0 offen sc1")
        a(f"s_waitcnt vmcnt({NP-1})")
        a(f"v_cmp_ne_u32 vcc, v{v+1}, v{v+2+q}")
        a("s_nop 4")
        a(f"s_cbranch_vccz {Lo}")
    a("s_sub_u32 s41, s41, 1")
    a("s_cmp_lg_u32 s41, 0")
    a(f"s_cbranch_scc1 {Lp}")
    a(f"{Lo}:")

MX = int(os.environ.get("MX", "4"))
def mapping(a):
    lg = MX.bit_length() - 1
    a("s_and_b32 s3, s2, 7")
    a("s_lshr_b32 s42, s2, 3")
    if os.environ.get("MAPSWAP"):
        a(f"s_lshr_b32 s48, s42, {5-lg}")
        a(f"s_and_b32 s49, s42, {32//MX-1}")
    else:
        a(f"s_and_b32 s48, s42, {MX-1}")
        a(f"s_lshr_b32 s49, s42, {lg}")
    a(f"s_and_b32 s34, s3, {16//MX - 1}")
    a(f"s_lshl_b32 s34, s34, {lg}")
    a("s_add_u32 s34, s34, s48")
    a(f"s_lshr_b32 s35, s3, {4-lg}")
    a(f"s_lshl_b32 s35, s35, {5-lg}")
    a("s_add_u32 s35, s35, s49")

def pf_w64(a, W_ka, K, groups, sd, v, vd, lane=1):
    per = 64 // MX
    lgp = per.bit_length() - 1
    a(f"s_load_dwordx2 s[{sd+4}:{sd+5}], s[0:1], {W_ka}")
    a("s_lshl_b32 s43, s35, 7")
    a(f"s_lshl_b32 s44, s48, {lgp}")
    a(f"v_and_b32 v{v}, {per-1}, v{lane}")
    a(f"v_add_u32 v{v}, s44, v{v}")
    a(f"v_lshrrev_b32 v19, {lgp}, v{lane}")
    a(f"v_lshl_add_u32 v{v}, v19, 6, v{v}")
    a(f"v_lshlrev_b32 v{v}, 11, v{v}")
    a("s_waitcnt lgkmcnt(0)")
    srd(a, sd, sd+4, K*2048 - 1920, add_lo=43)
    for g in groups: pf_w64_issue(a, g, sd, v, vd)
    return len(groups)
def pf_w64_issue(a, g, sd, v, vd):
    a(f"s_mov_b32 s43, {g*MX*131072}")
    a(f"buffer_load_dword v{vd}, v{v}, s[{sd}:{sd+3}], s43 offen")

CS_NF = 32
def cs_setup(a, Lno, sd, va, ptrs=False):
    a("s_lshr_b32 s43, s2, 5")
    a("s_cmp_eq_u32 s43, 3")
    a(f"s_cbranch_scc1 {Lno}")
    a("s_cmp_gt_u32 s43, 3")
    a("s_cselect_b32 s43, 32, 0")
    a("s_sub_u32 s43, s2, s43")
    a("s_lshr_b32 s43, s43, 1")
    a("s_and_b32 s44, s2, 1")
    if ptrs:
        a("s_cmp_eq_u32 s44, 0")
        a(f"s_cselect_b32 s{sd+4}, s4, s6")
        a(f"s_cselect_b32 s{sd+5}, s5, s7")
    else:
        a("s_lshl_b32 s45, s44, 3")
        a(f"s_add_u32 s45, s45, {KA_WG}")
        a(f"s_load_dwordx2 s[{sd+4}:{sd+5}], s[0:1], s45")
    a("s_mul_i32 s45, s43, 2341")
    a("s_lshr_b32 s45, s45, 16")
    a("s_mul_i32 s46, s45, 28")
    a("s_sub_u32 s46, s43, s46")
    a(f"v_lshrrev_b32 v{va}, 4, v1")
    a("s_lshl_b32 s43, s45, 8")
    a(f"v_add_u32 v{va}, s43, v{va}")
    a(f"v_mul_u32_u24 v{va}, 7168, v{va}")
    a(f"v_and_b32 v{va+1}, 15, v1")
    a(f"v_lshl_add_u32 v{va}, v{va+1}, 4, v{va}")
    a("s_lshl_b32 s43, s46, 8")
    a(f"v_add_u32 v{va}, s43, v{va}")
    if not ptrs: a("s_waitcnt lgkmcnt(0)")
    srd(a, sd, sd+4, 7340032)

def cs_issue(a, n, sd, va):
    i = n % CS_NF
    a(f"s_mov_b32 s43, {n*4*7168}")
    a(f"buffer_load_dwordx4 v[{128+4*i}:{128+4*i+3}], v{va}, s[{sd}:{sd+3}], s43 offen")


CSM = os.environ.get("CSM", "e")
SPE = int(os.environ.get("K1_SPE", "13" if CSM == "d" else "12"))
SPS = int(os.environ.get("K1_SPS", "4"))
SPR = 36 if CSM == "d" else 2*(SPE - SPS + 1)
def cs_sbase(a, Lno, d, wsg):
    a("s_lshr_b32 s43, s2, 5")
    a("s_cmp_eq_u32 s43, 3")
    a(f"s_cbranch_scc1 {Lno}")
    a("s_cmp_gt_u32 s43, 3")
    a("s_cselect_b32 s43, 32, 0")
    a("s_sub_u32 s43, s2, s43")
    a("s_lshr_b32 s43, s43, 1")
    a("s_and_b32 s44, s2, 1")
    a("s_lshl_b32 s44, s44, 3")
    a(f"s_add_u32 s44, s44, {KA_WG}")
    a(f"s_load_dwordx2 s[{d}:{d+1}], s[0:1], s44")
    a("s_mul_i32 s45, s43, 2341")
    a("s_lshr_b32 s45, s45, 16")
    a("s_mul_i32 s46, s45, 28")
    a("s_sub_u32 s46, s43, s46")
    a("s_lshl_b32 s45, s45, 8")
    a(f"s_mul_i32 s44, s{wsg}, {SPR}")
    a("s_add_u32 s45, s45, s44")
    a(f"s_add_u32 s45, s45, {128 if CSM == 'd' else 256 - 4*SPR}")
    a("s_mul_i32 s45, s45, 7168")
    a("s_lshl_b32 s46, s46, 8")
    a("s_add_u32 s45, s45, s46")
    a("s_waitcnt lgkmcnt(0)")
    a(f"s_add_u32 s{d}, s{d}, s45")
    a(f"s_addc_u32 s{d+1}, s{d+1}, 0")

NPS = int(os.environ.get("K1_NPS", "2"))
def cs_spre(a, n, d0=64, nd=16):
    if not NPS: return
    for r in range(n):
        for q in range(4): a(f"s_load_dword s{d0 + (4*r+q) % nd}, s[80:81], {r*7168 + q*64}")
    a(f"s_add_u32 s80, s80, {n*7168}")
    a("s_addc_u32 s81, s81, 0")

WS_X = 32 << 20
XFLG = 144
def xflag_addr(a, v, flip):
    a("s_lshl_b32 s43, s34, 4")
    a("s_add_u32 s43, s43, s35")
    if flip: a("s_xor_b32 s43, s43, 1")
    a("s_and_b32 s44, s43, 1")
    a("s_lshl_b32 s44, s44, 2")
    a("s_lshr_b32 s43, s43, 1")
    a(f"s_add_u32 s43, s43, {XFLG}")
    a("s_lshl_b32 s43, s43, 7")
    a("s_add_u32 s43, s43, s44")
    a(f"v_mov_b32 v{v}, s43")


KNAME = [None, None]
def code_warm(a, sp=84, v=15, vd=31):
    L = a.label("Lpc")
    a(f"s_getpc_b64 s[{sp}:{sp+1}]")
    a(f"{L}:")
    a(f"s_sub_u32 s{sp}, s{sp}, {L}-{KNAME[0]}")
    a(f"s_subb_u32 s{sp+1}, s{sp+1}, 0")
    a("s_lshr_b32 s43, s2, 3")
    a("s_mul_i32 s43, s43, 3840")
    a(f"v_min_u32 v{v}, 29, v1")
    a(f"v_lshl_add_u32 v{v}, v{v}, 7, s43")
    a(f"v_min_u32 v{v}, {KNAME[1]}-{KNAME[0]}, v{v}")
    a(f"global_load_dword v{vd}, v{v}, s[{sp}:{sp+1}]")
ICW = [int(x) for x in os.environ.get("ICW", "2,10,102,122").split(",") if x]

WARM = []
def warm_jump(a, target):
    if not int(os.environ.get("WJ", "1")): return
    w = a.label("Lw"); r = a.label("Lr")
    a(f"s_branch {w}")
    a(f"{r}:")
    WARM.append((target, w, r))
def warm_place(a):
    for t, w, r in WARM:
        i = [k for k, l in enumerate(a.L) if l.endswith(":") and l[:-1].rsplit("_", 1)[0] == t[0]][t[1]]
        assert a.L[i-1].startswith("s_branch"), a.L[i-1]
        a.L[i:i] = [".p2align 6", f"{w}:", f"s_branch {r}", "s_nop 0"]

COLD = []
```

```python
import os, struct
from common import *

NS = 3
XB_ = 18432
STG1 = XB_ + 3*8192
RST = NS*STG1
CSUM = RST + 1152
LST = CSUM
LDS_K1 = CSUM + 768
QKV = 0
QP = 400

def fh(x): return "0x%08x" % struct.unpack("<I", struct.pack("<f", x))[0]

VGPR_K1 = 240
def phase_k1(a):
    strip = os.environ.get("K1_STRIP", "")
    nst = 16
    a(f"s_load_dwordx4 s[4:7], s[0:1], {KA_X}")
    a(f"s_load_dwordx2 s[32:33], s[0:1], {KA_WS}")
    a(f"s_load_dwordx2 s[80:81], s[0:1], {KA_WG}")
    mapping(a)
    a("v_lshrrev_b32 v12, 6, v0")
    a("v_and_b32 v1, 63, v0")
    a("v_readfirstlane_b32 s36, v12")
    a("s_nop 3")
    stamp_init(a)
    stamp(a, 0)
    a("s_lshl_b32 s44, s34, 18")
    a("s_lshl_b32 s45, s35, 14")
    a("s_add_u32 s45, s45, s44")
    a("s_lshl_b32 s50, s34, 7")
    a("s_sub_u32 s50, s50, 16")
    a("s_and_b32 s47, s36, 3")
    a("s_lshl_b32 s43, s34, 7")
    a("s_lshl_b32 s44, s35, 3")
    a("s_add_u32 s43, s43, s44")
    a("s_mov_b32 s63, s43")
    a("s_lshl_b32 s44, s47, 1")
    a("s_add_u32 s51, s43, s44")
    a("v_lshlrev_b32 v10, 4, v1")
    a("v_lshrrev_b32 v14, 3, v1")
    a("v_and_b32 v15, 7, v1")
    a("v_and_b32 v16, 2, v14")
    a("v_xor_b32 v16, v15, v16")
    a("v_lshlrev_b32 v16, 4, v16")
    a("v_mul_u32_u24 v17, 6144, v14")
    a("s_lshl_b32 s43, s47, 11")
    a("v_add3_u32 v2, v17, v16, s43")
    a("v_xor_b32 v3, 64, v2")
    a("v_lshrrev_b32 v16, 1, v14")
    a("v_xor_b32 v16, v15, v16")
    a("v_lshlrev_b32 v16, 4, v16")
    a("s_lshl_b32 s43, s47, 3")
    a("s_add_u32 s43, s43, s50")
    a("v_add_u32 v17, s43, v14")
    a("s_and_b32 s44, s47, 1")
    a("s_lshl_b32 s44, s44, 6")
    for i in range(6):
        a(f"v_add_u32 v18, {24*i}, v17")
        a("v_max_i32 v18, 0, v18")
        a("v_lshl_add_u32 v18, v18, 11, v16")
        a("v_xor_b32 v18, s44, v18")
        if i & 1: a(f"v_xor_b32 v{4+i}, 64, v18")
        else: a(f"v_mov_b32 v{4+i}, v18")
    a("s_lshl_b32 s39, s47, 10")
    a("s_lshl_b32 s40, s47, 13")
    a(f"s_add_u32 s40, s40, {XB_}")
    a("s_mov_b32 s37, 0")
    a("s_mov_b32 s38, 0")
    a("s_bfm_b64 s[60:61], 56, 8")
    a("s_cmp_eq_u32 s47, 0")
    a("s_cselect_b64 s[60:61], s[60:61], -1")
    a("s_mov_b32 s53, 0x3f803f80")
    a("v_and_b32 v12, 15, v1")
    a("v_lshrrev_b32 v13, 4, v1")
    a("s_lshl_b32 s43, s35, 7")
    a("s_waitcnt lgkmcnt(0)")
    srd(a, 8, 4, 2048*2048)
    srd(a, 12, 6, 1023*6144 + 4096 + 128, add_lo=43)
    srd(a, 16, 32, 16384, add_lo=45, add_imm=WS_O)
    srd(a, 20, 32, 2048*8, add_imm=WS_ST1)
    Lcons = a.label("Lcons"); Lpf = a.label("Lpf"); Latt = a.label("Latt")
    a("s_cmp_lt_u32 s36, 4")
    a(f"s_cbranch_scc1 {Lcons}")
    a("s_cmp_eq_u32 s36, 7")
    a(f"s_cbranch_scc1 {Lpf}")
    a(";@@CONS")
    a(f"{Lcons}:")

    SP2 = int(os.environ.get("K1_SP2", "3"))
    def att_setup():
        a("s_and_b32 s43, s36, 1")
        a("s_lshr_b32 s44, s36, 1")
        a("s_and_b32 s44, s44, 1")
        a("s_lshr_b32 s45, s36, 2")
        a("v_lshlrev_b32 v14, 2, v13")
        a("v_sub_u32 v14, v12, v14")
        for r in range(4):
            a(f"v_subrev_u32 v15, {r}, v14")
            a(f"v_cmp_ge_u32 s[{52+2*r}:{53+2*r}], 7, v15")
            a(f"v_add_u32 v15, 16, v15")
            a(f"v_cmp_ge_u32 s[{84+2*r}:{85+2*r}], 7, v15")
        a("s_lshl_b32 s46, s45, 6")
        a("s_add_u32 s46, s46, s44")
        a("s_add_u32 s46, s46, 16")
        a("v_lshl_add_u32 v14, v12, 1, s46")
        a("s_lshl_b32 s47, s43, 6")
        a("v_lshl_add_u32 v15, v13, 4, s47")
        a(f"v_mul_u32_u24 v20, {QP}, v14")
        a("v_add_u32 v20, v20, v15")
        a("v_subrev_u32 v16, 32, v14")
        a("v_max_i32 v16, 0, v16")
        a(f"v_mul_u32_u24 v21, {QP}, v16")
        a("v_add_u32 v21, v21, v15")
        a("v_lshrrev_b32 v16, 2, v12")
        a("v_lshl_add_u32 v16, v13, 2, v16")
        a("v_lshl_add_u32 v16, v16, 1, s46")
        a("v_and_b32 v17, 3, v1")
        a("v_lshl_add_u32 v17, v17, 3, s47")
        a(f"v_mul_u32_u24 v22, {QP}, v16")
        a("v_add_u32 v22, v22, v17")
        a("v_subrev_u32 v16, 32, v16")
        a("v_max_i32 v16, 0, v16")
        a(f"v_mul_u32_u24 v23, {QP}, v16")
        a("v_add_u32 v23, v23, v17")
        a("s_lshl_b32 s60, s43, 13")
        a("s_lshl_b32 s61, s45, 10")
        a("s_add_u32 s60, s60, s61")
        a("s_lshl_b32 s61, s44, 8")
        a("s_add_u32 s60, s60, s61")
        a("v_lshlrev_b32 v27, 11, v13")
        a("v_lshl_add_u32 v27, v12, 4, v27")
        a("v_add_u32 v27, s60, v27")
        a("v_mov_b32 v28, 0xff800000")
        CS = (32 ** -0.5) * 1.4426950408889634
        a(f"s_mov_b32 s61, {fh(CS)}")
        a("s_nop 2")
        a("s_or_b32 s62, s34, s45")
        a("s_cmp_lg_u32 s62, 0")
        for r in range(4): a(f"s_cselect_b64 s[{64+2*r}:{65+2*r}], s[{84+2*r}:{85+2*r}], 0")

    if int(os.environ.get("K1_SPF", "4")) & 4:
        Lsp = a.label("Lsp")
        a("s_cmp_ge_u32 s36, 2")
        a(f"s_cbranch_scc1 {Lsp}")
        if SP2 >= 0:
            a("s_cmp_ge_u32 s2, 128")
            a(f"s_cbranch_scc1 {Lsp}")
        srd(a, 84, 6, 6291456)
        a("s_and_b32 s43, s35, 8")
        a("s_or_b32 s43, s43, 3")
        a("s_lshl_b32 s43, s43, 7")
        a("s_lshr_b32 s44, s2, 3")
        a("s_mul_i32 s44, s44, %d" % (32*6144))
        a("s_add_u32 s43, s43, s44")
        a("s_lshl_b32 s44, s36, 6")
        a("v_add_u32 v15, s44, v1")
        a("v_min_u32 v15, 95, v15")
        a("v_mul_u32_u24 v16, 21846, v15")
        a("v_lshrrev_b32 v16, 16, v16")
        a("v_mul_u32_u24 v17, 3, v16")
        a("v_sub_u32 v15, v15, v17")
        a("v_mul_u32_u24 v16, 6144, v16")
        a("v_lshl_add_u32 v15, v15, 11, v16")
        a("buffer_load_dword v31, v15, s[84:87], s43 offen")
        a(f"{Lsp}:")
    a("v_lshrrev_b32 v16, 1, v12")
    a("v_xor_b32 v15, v13, v16")
    a("v_lshlrev_b32 v15, 4, v15")
    a("v_lshl_add_u32 v2, v12, 7, v15")
    a("v_xor_b32 v3, 64, v2")
    a(f"v_add_u32 v4, {2*STG1}, v2")
    a(f"v_add_u32 v5, {2*STG1}, v3")
    a("v_lshrrev_b32 v15, 2, v12")
    a("v_and_b32 v16, 3, v1")
    a("v_lshl_add_u32 v19, v13, 3, v15")
    a("v_lshlrev_b32 v19, 7, v19")
    a("v_and_b32 v15, 2, v15")
    a("v_and_b32 v17, 1, v13")
    a("v_lshl_add_u32 v15, v17, 2, v15")
    a("v_lshrrev_b32 v17, 1, v16")
    a("s_lshl_b32 s43, s36, 1")
    a("v_add_u32 v17, s43, v17")
    a("v_xor_b32 v15, v15, v17")
    a("v_lshl_add_u32 v19, v15, 4, v19")
    a("v_and_b32 v16, 1, v16")
    a("v_lshl_add_u32 v19, v16, 3, v19")
    for sl in range(3):
        a(f"v_add_u32 v{6+sl}, {XB_ + sl*STG1}, v19")
    ACC = 128
    def accreg(seg, mt):
        return ACC + 36*seg + 4*mt
    for i in range(108): a(f"v_mov_b32 v{ACC+i}, 0")
    SET = [32, 80]
    def reads(s, kk, base):
        sl = s % NS
        xb = (2 + kk) if sl < 2 else (4 + kk)
        xo = (sl % 2)*STG1 if sl < 2 else 0
        def xr(mt): return f"ds_read_b128 v[{base+4*mt}:{base+4*mt+3}], v{xb} offset:{xo + mt*2048}"
        def wr(sg, h): return f"ds_read_b64_tr_b16 v[{base+36+4*sg+2*h}:{base+36+4*sg+2*h+1}], v{6+sl} offset:{sg*8192 + kk*4096 + h*512}"
        return [xr(0), wr(1,0), wr(1,1), wr(2,0), wr(2,1), wr(0,0), wr(0,1)] + [xr(m) for m in range(1, 9)]
    def mfmas(base):
        r = []
        for mt in range(9):
            for sg in (1, 2, 0):
                acc = accreg(sg, mt)
                r.append(f"v_mfma_f32_16x16x32_bf16 v[{acc}:{acc+3}], v[{base+36+4*sg}:{base+36+4*sg+3}], v[{base+4*mt}:{base+4*mt+3}], v[{acc}:{acc+3}]")
        return r
    def emit(seq):
        for i in seq:
            if "m" in strip and i.startswith("v_mfma"): continue
            if "r" in strip and i.startswith("ds_read"): continue
            a(i)
    att_setup()
    a("s_lshl_b32 s43, s36, 5")
    a("s_add_u32 s43, s43, 16")
    a("v_lshl_add_u32 v10, v12, 1, s43")
    a("v_lshlrev_b32 v10, 7, v10")
    a("v_and_b32 v16, 1, v13")
    a("v_lshlrev_b32 v16, 1, v16")
    a("v_lshrrev_b32 v17, 1, v13")
    a("v_add_u32 v16, v16, v17")
    a("v_and_b32 v17, 7, v12")
    a("v_xor_b32 v16, v16, v17")
    a("v_lshl_add_u32 v10, v16, 4, v10")
    a("s_mov_b32 s42, s35")
    a(f"v_lshlrev_b32 v9, 3, v12")
    a(f"v_add_u32 v9, {RST}, v9")
    a(f"v_mul_u32_u24 v14, {QP}, v12")
    a("v_lshl_add_u32 v14, v13, 3, v14")
    a("s_lshl_b32 s43, s36, 5")
    a("v_add_u32 v14, s43, v14")
    a("s_barrier")
    stamp(a, 1)
    for i in reads(0, 0, SET[0]): a(i)
    def ln_group(mt, sg, pk):
        acc = accreg(sg, mt); r_ = []
        if pk:
            for r in (0, 2):
                r_.append(f"v_pk_fma_f32 v[{acc+r}:{acc+r+1}], v[{32+2*mt}:{33+2*mt}], v[{52+4*sg+r}:{53+4*sg+r}], v[{acc+r}:{acc+r+1}] op_sel_hi:[0,1,1] neg_lo:[1,0,0] neg_hi:[1,0,0]")
            for r in (0, 2):
                r_.append(f"v_pk_mul_f32 v[{acc+r}:{acc+r+1}], v[{32+2*mt}:{33+2*mt}], v[{acc+r}:{acc+r+1}] op_sel:[1,0] op_sel_hi:[1,1]")
        else:
            for r in range(4): r_.append(f"v_fma_f32 v{acc+r}, -v{32+2*mt}, v{52+4*sg+r}, v{acc+r}")
            for r in range(4): r_.append(f"v_mul_f32 v{acc+r}, v{33+2*mt}, v{acc+r}")
        r_.append(f"v_cvt_pk_bf16_f32 v{acc}, v{acc}, v{acc+1}")
        r_.append(f"v_cvt_pk_bf16_f32 v{acc+1}, v{acc+2}, v{acc+3}")
        r_.append(f"ds_write_b64 v14, v[{acc}:{acc+1}] offset:{QKV + mt*16*QP + sg*128}")
        return r_
    GROUPS = [(mt, sg) for mt in range(9) for sg in ((1, 2) if mt == 0 else (0, 1, 2))]
    NEARLY = int(os.environ.get("K1_LNE", "3"))
    bc = [f"v_mov_b32_dpp v{52+4*sg+r}, v{accreg(sg,0)+r} row_newbcast:0 row_mask:0xf bank_mask:0xf" for sg in range(3) for r in range(4)]
    def xres(s):
        L = a.label("Lxr"); R = a.label("Lxb")
        a("s_sub_u32 s42, s42, 1")
        a(f"s_cbranch_scc1 {L}")
        a(f"{R}:")
        COLD.extend([f"{L}:", f"v_add_u32 v15, {(s % NS)*STG1}, v10", "v_xor_b32 v16, 64, v15"] +
                    [f"ds_read_b128 v[{240+(tl*2+kb)*4}:{243+(tl*2+kb)*4}], v{15+kb} offset:{tl*128}" for tl in range(2) for kb in range(2)] + [f"s_branch {R}"])
    def cstage(s, last):
        a("s_waitcnt lgkmcnt(0)")
        seq = interleave(mfmas(SET[0]), reads(s, 1, SET[1]), 0, 1)
        emit(seq[:-4])
        xres(s)
        emit(seq[-4:])
        a("s_waitcnt lgkmcnt(0)")
        a("s_barrier")
        if not last:
            emit(interleave(mfmas(SET[1]), reads(s+1, 0, SET[0]), 0, 1))
            return
        m = mfmas(SET[1])
        emit(interleave(m[:9], [f"ds_read_b64 v[{32+2*mt}:{33+2*mt}], v9 offset:{mt*128}" for mt in range(9)]))
        fill = bc + ["s_waitcnt lgkmcnt(0)"] + sum((ln_group(mt, sg, False) for mt, sg in GROUPS[:NEARLY]), [])
        for i, x in enumerate(m[9:]):
            a(x)
            for y in fill[2*i:2*i+2]: a(y)
        for y in fill[2*len(m[9:]):]: a(y)
    nl = (nst-1)//NS
    a(f"s_mov_b32 s41, {nl}")
    Ll = a.label("Lcl")
    a(f"{Ll}:")
    for s in range(NS): cstage(s, False)
    a("s_sub_u32 s41, s41, 1")
    a("s_cmp_lg_u32 s41, 0")
    a(f"s_cbranch_scc1 {Ll}")
    for s in range(nl*NS, nst): cstage(s, s == nst-1)
    stamp(a, 2)
    for mt, sg in GROUPS[NEARLY:]:
        for i in ln_group(mt, sg, True): a(i)
    a("s_waitcnt lgkmcnt(0)")
    a(f"s_branch {Latt}")

    a(";@@PROD")
    def rows_load(srow, dst=96, add=0):
        a(f"s_lshl_b32 s43, s{srow}, 11")
        if add: a(f"s_add_u32 s43, s43, {add*2048}")
        for q in range(4):
            a(f"buffer_load_dwordx4 v[{dst+4*q}:{dst+4*q+3}], v10, s[8:11], s43 offen offset:{q*1024}")
    def rows_stats_l(srcb=96):
        o = []
        R = [116, 118, 120, 122]
        for r in range(2):
            sa, qa = 116+4*r, 118+4*r
            for i in range(8):
                src = srcb + 8*r + i
                t = 124 + 2*(i & 1)
                o.append(f"v_lshlrev_b32 v{t if i else sa}, 16, v{src}")
                o.append(f"v_and_b32 v{t+1 if i else sa+1}, 0xffff0000, v{src}")
                if i == 0:
                    o.append(f"v_mul_f32 v{qa}, v{sa}, v{sa}"); o.append(f"v_mul_f32 v{qa+1}, v{sa+1}, v{sa+1}")
                else:
                    o.append(f"v_add_f32 v{sa}, v{sa}, v{t}"); o.append(f"v_add_f32 v{sa+1}, v{sa+1}, v{t+1}")
                    o.append(f"v_fmac_f32 v{qa}, v{t}, v{t}"); o.append(f"v_fmac_f32 v{qa+1}, v{t+1}, v{t+1}")
        for x in R: o.append(f"v_add_f32 v{x}, v{x}, v{x+1}")
        for sh in (8, 4, 2, 1):
            for x in R: o.append(f"v_add_f32_dpp v{x}, v{x}, v{x} row_ror:{sh} row_mask:0xf bank_mask:0xf")
        for sw in ("16", "32"):
            for x in R: o.append(f"v_mov_b32 v{x+1}, v{x}")
            o.append("s_nop 0")
            for x in R: o.append(f"v_permlane{sw}_swap_b32 v{x}, v{x+1}")
            for x in R: o.append(f"v_add_f32 v{x}, v{x}, v{x+1}")
        for r in range(2):
            sv, qv, d = 116+4*r, 118+4*r, 112+2*r
            o.append(f"v_mul_f32 v{d}, 0x3a800000, v{sv}")
            o.append(f"v_mul_f32 v{d+1}, 0x3a800000, v{qv}")
            o.append(f"v_fma_f32 v{d+1}, -v{d}, v{d}, v{d+1}")
            o.append(f"v_max_f32 v{d+1}, 0, v{d+1}")
            o.append(f"v_add_f32 v{d+1}, 0x3727c5ac, v{d+1}")
            o.append(f"v_rsq_f32 v{d+1}, v{d+1}")
        o.append("s_nop 0")
        return o
    def rows_stats(part=None):
        l = rows_stats_l()
        for i in (l if part is None else l[len(l)*part//3:len(l)*(part+1)//3]): a(i)
    def rows_local():
        a("s_lshl_b32 s43, s47, 4")
        a(f"s_add_u32 s43, s43, {LST}")
        a("v_mov_b32 v11, s43")
        a("ds_write_b128 v11, v[112:115]")
        a("s_waitcnt lgkmcnt(0)")
    HYB = os.environ.get("K1_PF", "mall1") == "hyb"
    def wpre(s):
        if not HYB or s > 4: return
        if s == 0:
            a("s_mul_i32 s43, s2, 10752")
            a("s_mul_i32 s44, s47, 2688")
            a("s_add_u32 s43, s43, s44")
            a(f"s_add_u32 s43, s43, {576*6144}")
            a("s_add_u32 s82, s6, s43")
            a("s_addc_u32 s83, s7, 0")
        lo = [0, 10, 18, 26, 34, 42]
        for q in range(lo[s], lo[s+1]): a(f"s_load_dword s{64 + q % 16}, s[82:83], {64*q}")
    def spre_setup():
        if not NPS: return
        Lj = a.label("Lsj")
        cs_sbase(a, Lj, 80, 47)
        a(f"{Lj}:")
    def spre(n=2): cs_spre(a, n)
    def dma(slot, lo=0, hi=14):
        xs, ws = [], []
        for i in range(6):
            g = [f"s_add_u32 m0, s39, {slot*STG1 + i*3072}", "s_mov_b64 exec, s[60:61]" if i == 0 else "s_nop 0",
                 f"buffer_load_dwordx4 v{4+i}, s[8:11], s37 offen lds"]
            if i == 0: g.append("s_mov_b64 exec, -1")
            xs.append(g)
        for j in range(8):
            ws.append([f"s_add_u32 m0, s40, {slot*STG1 + j*1024}", f"s_add_u32 s43, s38, {8*j*6144}",
                       f"buffer_load_dwordx4 v{2+(j&1)}, s[12:15], s43 offen lds"])
        gs = interleave(ws, xs) if int(os.environ.get("K1_ILV", "0")) else xs + ws
        for g in gs[lo:hi]:
            for i in g: a(i)
        if hi == 14:
            a("s_add_u32 s37, s37, 128")
            a(f"s_add_u32 s38, s38, {64*6144}")
    stamp(a, 1)
    E0 = int(os.environ.get("K1_E0", "14"))
    dma(0); dma(1, 0, E0)
    stamp(a, 2)
    a(f"s_waitcnt vmcnt({E0})")
    a("s_barrier")
    if E0 < 14: dma(1, E0, 14)
    dma(2)
    RW = int(os.environ.get("K1_RW", "0"))
    SPEC2 = int(os.environ.get("SPEC2", "1"))
    PO2 = int(os.environ.get("PO2", "3")) if SPEC2 else -9
    PON = int(os.environ.get("PON", "6"))
    POI = int(os.environ.get("POI", "6")) if int(os.environ.get("SPEC3", "1")) else -9
    def pstage(s, do_dma, vm, extra=None):
        if do_dma: dma((s+2) % NS)
        if s == RW: rows_load(51)
        if s in (RW+2, RW+3, RW+4): rows_stats(s - RW - 2)
        if s == RW+4: rows_local()
        if s == 0: spre_setup()
        if s == min(x for x in (POI, PO2) if x >= 0) if max(POI, PO2) >= 0 else False:
            for i in range(4): a(f"v_mov_b32 v{128+i}, -1")
        if s == POI: srd(a, 24, 16, 16384, add_imm=WS_H - WS_O)
        if s in (POI, PO2): a("s_mul_i32 s28, s47, 5120")
        npo = lambda t: 6//PON if POI <= t < POI + PON else 2 if PO2 <= t < PO2 + 3 else 0
        for q in range(npo(s)):
            a(f"buffer_store_dwordx4 v[128:131], v10, s[{24 if s >= POI >= 0 else 16}:{27 if s >= POI >= 0 else 19}], s28 offen sc1")
            a("s_add_u32 s28, s28, 1024")
        if vm is not None: vm += npo(s) + npo(s-1)
        wpre(s)
        if max(SPS, RW+4) <= s <= SPE: spre()
        if vm is not None: a(f"s_waitcnt vmcnt({vm + (4 if s == RW else 0)})")
        a("s_barrier")
    for s in range(14): pstage(s, s > 0, 14)
    pstage(14, False, 0)
    pstage(15, False, None)
    Lw4 = a.label("Lx"); Lw5 = a.label("Lx"); Lwe = a.label("Lx")
    a("s_cmp_eq_u32 s47, 0")
    a(f"s_cbranch_scc1 {Lw4}")
    a("s_cmp_eq_u32 s47, 1")
    a(f"s_cbranch_scc1 {Lw5}")
    warm_jump(a, ("Lp", 2))
    a(f"s_branch {Lwe}")
    a(f"{Lw5}:")
    warm_jump(a, ("Lp", 1))
    a(f"s_branch {Lwe}")
    a(f"{Lw4}:")
    warm_jump(a, ("LG1", 0))
    a(f"{Lwe}:")
    a("s_waitcnt lgkmcnt(0)")
    att_setup()
    a(f"s_branch {Latt}")

    a(";@@W7")
    a(f"{Lpf}:")
    PFM = os.environ.get("K1_PF", "mall1")
    PF = PFM == "l2"
    a(f"s_load_dwordx2 s[26:27], s[0:1], {KA_DBG}")
    Lz = a.label("Lz")
    a("s_or_b32 s43, s34, s35")
    a("s_cmp_lg_u32 s43, 0")
    a(f"s_cbranch_scc1 {Lz}")
    flag_srd(a, 84)
    a("v_lshlrev_b32 v14, 7, v1")
    a("v_mov_b32 v36, 0")
    a("v_mov_b32 v37, 0")
    for q in range(5):
        a(f"s_mov_b32 s43, {q*8192}")
        a("buffer_store_dwordx2 v[36:37], v14, s[84:87], s43 offen sc1")
    a(f"{Lz}:")
    if RW == 0: rows_load(51)
    a("v_min_u32 v14, 23, v1")
    a("v_lshrrev_b32 v15, 3, v14")
    a(f"v_mul_u32_u24 v15, {STG1}, v15")
    a("v_and_b32 v14, 7, v14")
    a("v_lshl_add_u32 v15, v14, 4, v15")
    for i in range(4): a(f"v_mov_b32 v{32+i}, 0x3f803f80")
    a("ds_write_b128 v15, v[32:35]")
    PER = 64 // MX
    NPI = (3*PER + 63) // 64
    for q in range(NPI):
        a(f"v_add_u32 v14, {64*q}, v1")
        a(f"v_min_u32 v14, {3*PER-1}, v14")
        a("v_mul_u32_u24 v15, 21846, v14")
        a("v_lshrrev_b32 v15, 16, v15")
        a("v_mul_u32_u24 v16, 3, v15")
        a("v_sub_u32 v16, v14, v16")
        a(f"s_mul_i32 s43, s48, {PER}")
        a("v_add_u32 v15, s43, v15")
        a("v_mul_u32_u24 v15, 6144, v15")
        a(f"v_lshl_add_u32 v{2+q}, v16, 11, v15")
    vm = []
    def wait_for(tag):
        idx = max(i for i, t in enumerate(vm) if t == tag)
        a(f"s_waitcnt vmcnt({len(vm) - 1 - idx})")
    def l2pf(st):
        if not PF or st >= nst: return
        a(f"s_mov_b32 s43, {st*64*6144}")
        for q in range(NPI):
            a(f"buffer_load_dword v31, v{2+q}, s[12:15], s43 offen"); vm.append("pf")
    a("s_waitcnt lgkmcnt(0)")
    srd(a, 56, 26, 256)
    a("v_lshlrev_b32 v14, 7, v1")
    vm.append("rows")
    def mallpf():
        srd(a, 84, 6, 6291456)
        a("s_mul_i32 s43, s2, 24576")
        for q in range(3):
            a(f"buffer_load_dword v31, v14, s[84:87], s43 offen"); vm.append("pf")
            if q < 2: a("s_add_u32 s43, s43, 8192")
    def slowpf(which=None):
        srd(a, 84, 6, 6291456)
        a("s_lshr_b32 s44, s2, 3")
        if (SPF if which is None else which) & 1:
            a("s_and_b32 s43, s35, 8")
            a("s_or_b32 s43, s43, 3")
            a("s_lshl_b32 s43, s43, 7")
            a("s_mul_i32 s45, s44, %d" % (32*6144))
            a("s_add_u32 s43, s43, s45")
            for q in range(2):
                a(f"v_add_u32 v15, {64*q}, v1")
                a("v_min_u32 v15, 95, v15")
                a("v_mul_u32_u24 v16, 21846, v15")
                a("v_lshrrev_b32 v16, 16, v16")
                a("v_mul_u32_u24 v17, 3, v16")
                a("v_sub_u32 v15, v15, v17")
                a("v_mul_u32_u24 v16, 6144, v16")
                a("v_lshl_add_u32 v15, v15, 11, v16")
                a("buffer_load_dword v31, v15, s[84:87], s43 offen"); vm.append("pf")
        if (SPF if which is None else which) & 2:
            a("s_xor_b32 s43, s63, 64")
            a("s_lshl_b32 s43, s43, 11")
            a("buffer_load_dword v31, v14, s[8:11], s43 offen"); vm.append("pf")
            a("s_add_u32 s43, s43, 8192")
            a("buffer_load_dword v31, v14, s[8:11], s43 offen"); vm.append("pf")
    SPF = int(os.environ.get("K1_SPF", "4"))
    SPAT = int(os.environ.get("K1_SPAT", "0"))
    if PFM == "mall0": mallpf()
    if SPAT < 0: slowpf()
    stampc(a, "k1", 0)
    a("s_barrier")
    def mallpf2():
        srd(a, 84, 6, 6291456)
        a("s_mul_i32 s43, s2, 9216")
        a(f"s_add_u32 s43, s43, {192*6144}")
        a("buffer_load_dword v31, v14, s[84:87], s43 offen"); vm.append("pf")
        a("v_min_u32 v15, 7, v1")
        a("v_lshlrev_b32 v15, 7, v15")
        a("s_add_u32 s43, s43, 8192")
        a("buffer_load_dword v31, v15, s[84:87], s43 offen"); vm.append("pf")
    if PFM == "hyb": mallpf2()
    MST = int(os.environ.get("K1_MST", "1"))
    if PFM == "mall1" and not MST: mallpf()
    stampc(a, "k1", 1)
    GS = int(os.environ.get("K1_GS", "10" if RW < 2 else "11"))
    SS = int(os.environ.get("K1_SS", str(max(7 + RW, PO2 + 5))))
    assert PO2 + 2 <= SS - 3 and (POI < 0 or PO2 + 3 <= POI)
    PFN = int(os.environ.get("K1_PFN", "4"))
    CS0 = int(os.environ.get("K1_CS0", "14")); WOP = int(os.environ.get("K1_WOP", "13")); WOM = os.environ.get("K1_WOM", "mall")
    Lgd = a.label("Lgd")
    nxt = [3]
    for s in range(nst):
        if PFM == "mall1" and MST and s in (0, MST):
            Lm = a.label("Lm")
            a("s_cmp_ge_u32 s2, 128")
            a(f"s_cbranch_scc{1 if s == 0 else 0} {Lm}")
            n0 = len(vm); mallpf(); del vm[n0:]
            a(f"{Lm}:")
        if s in ICW:
            code_warm(a, 88); vm.append("pf")
        if s == SP2 and SPF & 4:
            Lm = a.label("Lm")
            a("s_cmp_lt_u32 s2, 128")
            a(f"s_cbranch_scc1 {Lm}")
            n0 = len(vm); slowpf(1); del vm[n0:]
            a(f"{Lm}:")
        if s == SPAT: slowpf()
        if s == 0: spre_setup()
        if s == RW and RW > 0:
            rows_load(51); vm.extend(["rows"]*4)
        if s == 2:
            Lz = a.label("Lz")
            a("s_or_b32 s43, s34, s35")
            a("s_cmp_lg_u32 s43, 0")
            a(f"s_cbranch_scc1 {Lz}")
            a("s_waitcnt vmcnt(0)")
            a("v_mov_b32 v5, 1")
            a("v_mov_b32 v6, 0")
            a("s_mov_b64 exec, 1")
            a("buffer_store_dword v5, v6, s[56:59], 0 offen sc1")
            a("s_mov_b64 exec, -1")
            a(f"{Lz}:")
        if s == RW + 2:
            wait_for("rows")
            rows_stats(0)
        if s == RW + 3: rows_stats(1)
        if s == RW + 4:
            rows_stats(2); rows_local()
        if s == RW + 5:
            a("v_lshlrev_b32 v5, 4, v1")
            a("v_and_b32 v5, 63, v5")
            a(f"v_add_u32 v6, {LST}, v5")
            a("ds_read_b128 v[112:115], v6")
            a("s_lshl_b32 s43, s63, 3")
            a("v_add_u32 v5, s43, v5")
            a("s_waitcnt lgkmcnt(0)")
            a("s_mov_b64 exec, 15")
            a(f"buffer_store_dwordx4 v[112:115], v5, s[20:23], 0 offen sc1"); vm.append("store")
            a("s_mov_b64 exec, -1")
        if s < SS - 2:
            for q in range(PFN):
                l2pf(nxt[0]); nxt[0] += 1
        if s == int(os.environ.get("K1_X11", "99")):
            a(f"s_andn2_b32 s43, s34, {MX-1}")
            a("s_lshl_b32 s43, s43, 7")
            a("s_lshr_b32 s44, s2, 3")
            a("s_mul_i32 s44, s44, 17")
            a("s_add_u32 s43, s43, s44")
            a("s_sub_u32 s43, s43, 16")
            a("v_min_u32 v15, 16, v1")
            a("v_add_u32 v15, s43, v15")
            a("v_max_i32 v15, 0, v15")
            a("v_lshlrev_b32 v15, 11, v15")
            a("buffer_load_dword v31, v15, s[8:11], 0 offen offset:1408"); vm.append("pf")
        if s == WOP:
            if WOM == "l2":
                n = pf_w64(a, KA_WO, 1024, list(range(16//MX)), 84, 29, 30); vm.extend(["pf"]*n)
            elif WOM == "mall":
                a(f"s_load_dwordx2 s[88:89], s[0:1], {KA_WO}")
                a("v_lshlrev_b32 v29, 7, v1")
                a("s_lshl_b32 s43, s2, 13")
                a("s_waitcnt lgkmcnt(0)")
                srd(a, 84, 88, 2097152)
                a("buffer_load_dword v30, v29, s[84:87], s43 offen"); vm.append("pf")
                if int(os.environ.get("K2_SPF", "1")):
                    a("v_and_b32 v29, 31, v1")
                    a("v_lshlrev_b32 v29, 11, v29")
                    a("s_and_b32 s43, s35, 8")
                    a("s_or_b32 s43, s43, 3")
                    a("s_lshl_b32 s43, s43, 7")
                    a("s_lshr_b32 s44, s2, 3")
                    a("s_lshl_b32 s44, s44, 16")
                    a("s_add_u32 s43, s43, s44")
                    a("buffer_load_dword v30, v29, s[84:87], s43 offen"); vm.append("pf")
        if s == SS - 2:
            a("v_mov_b32 v7, 0")
            a("v_mov_b32 v9, 1")
            a("buffer_load_dword v8, v7, s[56:59], 0 offen sc1"); vm.append("z")
        if s == SS:
            flag_poll_finish(a, 56, v=7)
            flag_srd(a, 56)
            flag_signal(a, 56, "ln", 34); vm.append("at")
        if s == GS:
            a("s_sub_u32 s44, s34, 1")
            a("s_max_i32 s44, s44, 0")
            a("v_mov_b32 v5, s44")
            a("v_mov_b32 v6, s34")
            a("v_cmp_eq_u32 vcc, 0, v1")
            a("s_nop 1")
            a("v_cndmask_b32 v5, v5, v6, vcc")
            a(f"v_add_u32 v5, {FLG['ln'][0]}, v5")
            a("v_lshlrev_b32 v5, 7, v5")
            a("buffer_load_dword v6, v5, s[56:59], 0 offen sc1"); vm.append("poll")
        if s == GS + 2:
            a("v_mov_b32 v7, 16")
            flag_poll_finish(a, 56, v=5, first=len(vm) - 1 - max(i for i, t in enumerate(vm) if t == "poll"))
            for q in range(3):
                a(f"v_add_u32 v5, {64*q}, v1")
                a("v_min_u32 v5, 143, v5")
                a(f"v_lshlrev_b32 v{20+q}, 3, v5")
                a("v_add_u32 v5, s50, v5")
                a("v_max_i32 v5, 0, v5")
                a("v_lshlrev_b32 v5, 3, v5")
                a(f"buffer_load_dwordx2 v[{32+2*q}:{33+2*q}], v5, s[20:23], 0 offen sc1"); vm.append("gather")
        if s == GS + 4:
            wait_for("gather")
            for q in range(3):
                a(f"v_add_u32 v{20+q}, {RST}, v{20+q}")
                a(f"ds_write_b64 v{20+q}, v[{32+2*q}:{33+2*q}]")
            a("s_waitcnt lgkmcnt(0)")
        if s in (CS0, CS0+1):
            Lnj = a.label("Lnj")
            cs_setup(a, Lnj, 84, 28)
            for q in range(16*(s-CS0), 16*(s-CS0+1)): cs_issue(a, q, 84, 28)
            a(f"{Lnj}:")
        if STAMPC != "k1": wpre(s)
        if max(RW + 5, SPS) <= s <= (11 if CSM == "d" else SPE) and STAMPC != "k1": spre()
        a("s_barrier")
        stampc(a, "k1", s+2)
    stampc(a, "k1", 18)
    warm_jump(a, ("L7", 0))
    warm_jump(a, ("Lnojob", 0))
    a("s_waitcnt lgkmcnt(0)")
    att_setup()

    a(f"{Latt}:")
    a("s_barrier")
    stampc(a, "k1", 19)
    stamp(a, 3)
    U = 32*QP
    for u in range(2):
        B = 32 + 48*u
        uo = u*U
        a(f"ds_read_b128 v[{B}:{B+3}], v20 offset:{QKV + uo}")
        a(f"ds_read_b128 v[{B+4}:{B+7}], v20 offset:{QKV + uo + 128}")
        if u == 0: a(f"ds_read_b128 v[{B+8}:{B+11}], v21 offset:{QKV + 128}")
        else: a(f"ds_read_b128 v[{B+8}:{B+11}], v20 offset:{QKV + 128}")
    for u in range(2):
        B = 32 + 48*u
        uo = u*U
        for dh in range(2):
            if u == 0: a(f"ds_read_b64_tr_b16 v[{B+12+4*dh}:{B+13+4*dh}], v23 offset:{QKV + 256 + dh*32}")
            else: a(f"ds_read_b64_tr_b16 v[{B+12+4*dh}:{B+13+4*dh}], v22 offset:{QKV + 256 + dh*32}")
            a(f"ds_read_b64_tr_b16 v[{B+14+4*dh}:{B+15+4*dh}], v22 offset:{QKV + uo + 256 + dh*32}")
    for u in range(2):
        B = 32 + 48*u
        a(f"s_waitcnt lgkmcnt({11 if u == 0 else 8})")
        a(f"v_mfma_f32_16x16x32_bf16 v[{B+20}:{B+23}], v[{B+8}:{B+11}], v[{B}:{B+3}], 0")
        a(f"v_mfma_f32_16x16x32_bf16 v[{B+24}:{B+27}], v[{B+4}:{B+7}], v[{B}:{B+3}], 0")
    a("s_nop 7")
    def soft(u):
        B = 32 + 48*u
        S = B + 20; M = B + 28; T = B + 29; P = B + 32
        r_ = []
        am = 64 if u == 0 else 84
        for r in range(4): r_.append(f"v_cndmask_b32 v{S+r}, v28, v{S+r}, s[{am+2*r}:{am+2*r+1}]")
        for r in range(4): r_.append(f"v_cndmask_b32 v{S+4+r}, v28, v{S+4+r}, s[{52+2*r}:{53+2*r}]")
        r_.append(f"v_max3_f32 v{M}, v{S}, v{S+1}, v{S+2}")
        r_.append(f"v_max3_f32 v{T}, v{S+3}, v{S+4}, v{S+5}")
        r_.append(f"v_max3_f32 v{M}, v{M}, v{S+6}, v{S+7}")
        r_.append(f"v_max_f32 v{M}, v{M}, v{T}")
        for sw in ("32", "16"):
            r_.append(f"v_mov_b32 v{T}, v{M}")
            r_.append("s_nop 0")
            r_.append(f"v_permlane{sw}_swap_b32 v{M}, v{T}")
            r_.append(f"v_max_f32 v{M}, v{M}, v{T}")
        r_.append(f"v_mul_f32 v{M}, s61, v{M}")
        for r in range(8): r_.append(f"v_fma_f32 v{S+r}, v{S+r}, s61, -v{M}")
        for r in range(8): r_.append(f"v_exp_f32 v{S+r}, v{S+r}")
        for q in range(4): r_.append(f"v_cvt_pk_bf16_f32 v{P+q}, v{S+2*q}, v{S+2*q+1}")
        return r_
    def zip2(x, y):
        for i, j in zip(x, y):
            a(i)
            if not (i == j and i.startswith("s_nop")): a(j)
    zip2(soft(0), soft(1))
    a("s_waitcnt lgkmcnt(0)")
    for u in range(2):
        B = 32 + 48*u
        for dh in range(2):
            a(f"v_mfma_f32_16x16x32_bf16 v[{B+36+4*dh}:{B+39+4*dh}], v[{B+12+4*dh}:{B+15+4*dh}], v[{B+32}:{B+35}], 0")
    a(f"s_load_dwordx4 s[4:7], s[0:1], {KA_WG}")
    a(f"s_load_dwordx2 s[28:29], s[0:1], {KA_WO}")
    a(f"s_load_dwordx4 s[60:63], s[0:1], {KA_WD}")
    def rsum(u):
        B = 32 + 48*u
        S = B + 20; M = B + 28; T = B + 29
        r_ = [f"v_add_f32 v{M}, v{S}, v{S+1}", f"v_add_f32 v{T}, v{S+2}, v{S+3}", f"v_add_f32 v{S+4}, v{S+4}, v{S+5}", f"v_add_f32 v{S+6}, v{S+6}, v{S+7}",
              f"v_add_f32 v{M}, v{M}, v{T}", f"v_add_f32 v{S+4}, v{S+4}, v{S+6}", f"v_add_f32 v{M}, v{M}, v{S+4}"]
        for sw in ("32", "16"):
            r_.append(f"v_mov_b32 v{T}, v{M}")
            r_.append("s_nop 0")
            r_.append(f"v_permlane{sw}_swap_b32 v{M}, v{T}")
            r_.append(f"v_add_f32 v{M}, v{M}, v{T}")
        r_.append(f"v_rcp_f32 v{M}, v{M}")
        return r_
    zip2(rsum(0), rsum(1))
    a("s_nop 0")
    for u in range(2):
        B = 32 + 48*u
        M = B + 28; O = B + 36
        for r in range(0, 8, 2): a(f"v_pk_mul_f32 v[{O+r}:{O+r+1}], v[{M}:{M+1}], v[{O+r}:{O+r+1}] op_sel_hi:[0,1]")
        for q in range(4): a(f"v_cvt_pk_bf16_f32 v{O+q}, v{O+2*q}, v{O+2*q+1}")
        a(f"buffer_store_dwordx4 v[{O}:{O+3}], v27, s[16:19], 0 offen offset:{512*u} sc1")
    stamp(a, 4)
    ic, ip, iw = a.L.index(";@@CONS"), a.L.index(";@@PROD"), a.L.index(";@@W7")
    a.L[ic:iw] = a.L[ip:iw] + a.L[ic:ip]
```

```python
import os, struct
from common import *

def fh(x): return "0x%08x" % struct.unpack("<I", struct.pack("<f", x))[0]
def env(k, d): return int(os.environ.get(k, str(d)))

C0_ = -2.0*0.7978845608028654*1.4426950408889634
C1_ = C0_*0.044715
NBM = env("NBM", 2)
XF = os.environ.get("XF", " sc1")
SET = [32, 80]
ACC = 128
NST4 = 56


class VM:
    def __init__(self, a): self.a = a; self.q = []
    def add(self, tag, n=1): self.q += [tag]*n
    def cnt(self, tag):
        idx = max(i for i, t in enumerate(self.q) if t == tag)
        return len(self.q) - 1 - idx
    def wait(self, tag):
        return f"s_waitcnt vmcnt({min(63, self.cnt(tag))})"
    def reset(self): self.q = []


def spread(main, items, frac=100):
    if frac < 100:
        c = len(main)*frac//100
        return spread(main[:c], items) + main[c:]
    out = []
    n, k = len(main), len(items)
    j = 0
    for i in range(n + 1):
        while j < k and j*n <= i*k:
            out += items[j]; j += 1
        if i < n: out.append(main[i])
    while j < k: out += items[j]; j += 1
    return out


def lane_ig(a):
    a("v_and_b32 v17, 15, v1")
    a("v_lshrrev_b32 v18, 4, v1")


def g2_addrs():
    r = []
    r.append("v_lshlrev_b32 v19, 11, v18")
    r.append("v_lshl_add_u32 v19, v17, 4, v19")
    r.append("s_lshl_b32 s43, s36, 9")
    r.append("v_add_u32 v2, s43, v19")
    r.append(f"v_add_u32 v3, {REG}, v2")
    r.append(f"v_add_u32 v4, {2*REG}, v2")
    r.append("v_lshrrev_b32 v19, 2, v17")
    r.append("v_lshl_add_u32 v20, v18, 2, v19")
    r.append("v_bfe_u32 v21, v20, 1, 2")
    r.append("v_lshlrev_b32 v20, 7, v20")
    r.append("v_lshl_add_u32 v20, v21, 5, v20")
    r.append("v_and_b32 v19, 3, v1")
    r.append("v_lshl_add_u32 v20, v19, 3, v20")
    r.append("v_add_u32 v5, 16384, v20")
    for t in range(1, 4): r.append(f"v_xor_b32 v{5+t}, {32*t}, v5")
    for rg in range(1, 3):
        for t in range(4): r.append(f"v_add_u32 v{5+4*rg+t}, {rg*REG}, v{5+t}")
    return r

def g2_reads(slot, base):
    rg, so = slot >> 1, (slot & 1)*SLOT
    def xr(kb, tl): return f"ds_read_b128 v[{base+(kb*2+tl)*4}:{base+(kb*2+tl)*4+3}], v{2+rg} offset:{so + kb*8192 + tl*256}"
    def wr(kb, t, h):
        d = base + 16 + (kb*4+t)*4 + 2*h
        return f"ds_read_b64_tr_b16 v[{d}:{d+1}], v{5+4*rg+t} offset:{so + kb*4096 + h*2048}"
    r = []
    for kb in range(2):
        r += [xr(kb, 0), wr(kb, 0, 0), wr(kb, 0, 1), wr(kb, 1, 0), wr(kb, 1, 1), xr(kb, 1), wr(kb, 2, 0), wr(kb, 2, 1), wr(kb, 3, 0), wr(kb, 3, 1)]
    return r

def g2_mfmas(base):
    r = []
    for kb in range(2):
        for tl in range(2):
            for t in range(4):
                acc = ACC + (tl*4+t)*4
                w = base + 16 + (kb*4+t)*4; x = base + (kb*2+tl)*4
                r.append(f"v_mfma_f32_16x16x32_bf16 v[{acc}:{acc+3}], v[{w}:{w+3}], v[{x}:{x+3}], v[{acc}:{acc+3}]")
    return r

def g2_stage(a, s, slot_next, pre=None):
    a("s_waitcnt lgkmcnt(0)" if pre is None else f"s_waitcnt vmcnt({pre}) lgkmcnt(0)")
    a("s_barrier")
    m = g2_mfmas(SET[s & 1])
    rd = [] if slot_next is None else g2_reads(slot_next, SET[(s+1) & 1])
    k = 0
    for i in range(16):
        a(m[i])
        for q in range(2 if i < 6 else 1):
            if k < len(rd): a(rd[k]); k += 1

def g2_loop(a, s0, nst, off, pres={}):
    s = s0
    while s in pres or (s % 6 != 0 and False):
        g2_stage(a, s, (s+1+off) % 6, pres[s]); s += 1
    nl = (nst - 1 - s)//6
    if nl > 0:
        L = a.label("Lg2")
        a(f"s_mov_b32 s41, {nl}")
        a(f"{L}:")
        for q in range(6): g2_stage(a, s+q, (s+q+1+off) % 6)
        a("s_sub_u32 s41, s41, 1")
        a("s_cmp_lg_u32 s41, 0")
        a(f"s_cbranch_scc1 {L}")
        s += 6*nl
    while s < nst:
        g2_stage(a, s, None if s == nst-1 else (s+1+off) % 6); s += 1


def k2_addrs():
    r = g2_addrs()
    r = [i for i in r if not i.startswith("v_add_u32 v3,")][:16]
    r = [i.replace("v_add_u32 v5, 16384,", "v_add_u32 v5, 0x10000,") for i in r]
    return r + [f"v_add_u32 v{9+t}, 0x10000, v{5+t}" for t in range(4)]
def k2_reads(s):
    base = SET[s & 1]; xo = (s % 4)*16384; ws = s % 10
    def xr(kb, tl): return f"ds_read_b128 v[{base+(kb*2+tl)*4}:{base+(kb*2+tl)*4+3}], v2 offset:{xo + kb*8192 + tl*256}"
    def wr(kb, t, h):
        d = base + 16 + (kb*4+t)*4 + 2*h
        return f"ds_read_b64_tr_b16 v[{d}:{d+1}], v{5 + 4*(ws >> 3) + t} offset:{(ws & 7)*8192 + kb*4096 + h*2048}"
    r = []
    for kb in range(2):
        r += [xr(kb, 0), wr(kb, 0, 0), wr(kb, 0, 1), wr(kb, 1, 0), wr(kb, 1, 1), xr(kb, 1), wr(kb, 2, 0), wr(kb, 2, 1), wr(kb, 3, 0), wr(kb, 3, 1)]
    return r
def k2_items(s, isw, vA=23):
    m0 = 65536 - 16384 + (s % 10)*8192 if isw else (s % 4)*16384
    r = [[f"s_add_u32 m0, s39, {m0 + k*1024}", "s_add_u32 s37, s37, s38", f"buffer_load_dwordx4 v{vA}, s[8:11], s37 offen{XF} lds"] for k in range(8)]
    r[0] = ["s_add_u32 s42, s42, 1", "s_and_b32 s42, s42, 15", r[0][0], f"s_lshl_b32 s37, s42, {17 if isw else 14}", r[0][2]]
    return r


def k3_addrs(nj, t0):
    r = []
    r.append("v_lshlrev_b32 v19, 11, v18")
    r.append("v_lshl_add_u32 v19, v17, 4, v19")
    r.append("s_lshl_b32 s43, s46, 10")
    r.append("v_add_u32 v2, s43, v19")
    r.append(f"v_add_u32 v3, {REG}, v2")
    r.append(f"v_add_u32 v4, {2*REG}, v2")
    r.append("v_lshrrev_b32 v19, 2, v17")
    r.append("v_lshl_add_u32 v20, v18, 2, v19")
    r.append("v_and_b32 v21, 7, v20")
    r.append("v_lshlrev_b32 v20, 8, v20")
    r.append("v_and_b32 v19, 3, v1")
    r.append("v_lshl_add_u32 v20, v19, 3, v20")
    for j in range(nj):
        r.append(f"s_add_u32 s43, s{t0}, {j}")
        r.append("v_xor_b32 v19, s43, v21")
        r.append(f"v_lshl_add_u32 v{5+j}, v19, 5, v20")
    for rg in range(1, 3):
        for j in range(nj): r.append(f"v_add_u32 v{5+4*rg+j}, {rg*REG}, v{5+j}")
    return r

def k3_acc(nj, mat, j, tl): return ACC + ((mat*nj + j)*4 + tl)*4

def k3_reads(nj, sig, kk, base):
    rg = (sig + 2) % 3
    def xr(tl): return f"ds_read_b128 v[{base+4*tl}:{base+4*tl+3}], v{2+rg} offset:{kk*8192 + tl*256}"
    def wr(mat, j, h):
        d = base + 16 + (mat*nj+j)*4 + 2*h
        return f"ds_read_b64_tr_b16 v[{d}:{d+1}], v{5+4*rg+j} offset:{16384*(1+mat) + kk*8192 + h*4096}"
    r = [xr(0), wr(0, 0, 0), wr(0, 0, 1), xr(1), xr(2), xr(3), wr(1, 0, 0), wr(1, 0, 1)]
    for j in range(1, nj): r += [wr(0, j, 0), wr(0, j, 1), wr(1, j, 0), wr(1, j, 1)]
    return r

def k3_mfmas(nj, base):
    r = []
    order = [(j, mat, tl) for j in range(nj) for mat in range(2) for tl in range(4)]
    if env("MORD", 2) == 1: order = [(j, mat, tl) for tl in range(4) for j in range(nj) for mat in range(2)]
    if env("MORD", 2) == 2:
        order = [(j, mat, tl if (2*j + mat) % 2 == 0 else 3 - tl) for j in range(nj) for mat in range(2) for tl in range(4)]
    for (j, mat, tl) in order:
        if True:
            if True:
                acc = k3_acc(nj, mat, j, tl)
                w = base + 16 + (mat*nj+j)*4; x = base + 4*tl
                r.append(f"v_mfma_f32_16x16x32_bf16 v[{acc}:{acc+3}], v[{w}:{w+3}], v[{x}:{x+3}], v[{acc}:{acc+3}]")
    return r

def chk_ops(regs, t=19):
    r = [f"v_max3_u32 v{t}, v{regs[0]}, v{regs[1]}, v{regs[2]}"]
    rest = regs[3:]
    while len(rest) >= 2:
        r.append(f"v_max3_u32 v{t}, v{t}, v{rest[0]}, v{rest[1]}"); rest = rest[2:]
    if rest: r.append(f"v_max_u32 v{t}, v{t}, v{rest[0]}")
    r.append(f"v_cmp_eq_u32 vcc, -1, v{t}")
    return r
def chk_fix(a, regs, pre, loads):
    Lo = a.label("Lok"); Lr = a.label("Lre"); Lf = a.label("Lfx")
    a(f"s_cbranch_vccnz {Lf}")
    a(f"{Lo}:")
    COLD.extend([f"{Lf}:"] + pre + ["s_mov_b32 s45, 0x20000", f"{Lr}:"] + loads + ["s_waitcnt vmcnt(0)"] + chk_ops(regs) +
                ["s_sub_u32 s45, s45, 1", "s_cmp_eq_u32 s45, 0", f"s_cbranch_scc1 {Lo}", "s_nop 2", f"s_cbranch_vccnz {Lr}", f"s_branch {Lo}"])
def k3_fix(a, sig, kk, base):
    chk_fix(a, list(range(base, base+16)),
            [f"s_add_u32 s44, s35, {sig}", "s_and_b32 s44, s44, 15", "s_lshl_b32 s44, s44, 14", f"s_add_u32 s44, s44, {kk*8192}"],
            [f"buffer_load_dwordx4 v[{base+4*tl}:{base+4*tl+3}], v2, s[12:15], s44 offen offset:{tl*256} sc1" for tl in range(4)])
def k3_half_chk(a, nj, cur, sig, kk, nxt):
    m = k3_mfmas(nj, cur); rd = k3_reads(nj, sig, kk, nxt)
    for i in interleave(m[:len(rd)], rd): a(i)
    a(f"s_waitcnt lgkmcnt({len(rd) - 6})")
    for i in interleave(m[len(rd):], chk_ops(list(range(nxt, nxt+16)))): a(i)
    a("s_nop 1")
    k3_fix(a, sig, kk, nxt)

def k3_half1(a, nj, sig, vmw=None):
    a("s_waitcnt lgkmcnt(0)")
    for i in interleave(k3_mfmas(nj, SET[0]), k3_reads(nj, sig, 1, SET[1])): a(i)
    a("s_waitcnt lgkmcnt(0)" if vmw is None else f"s_waitcnt vmcnt({vmw}) lgkmcnt(0)")
    a("s_barrier")
def k3_half2(a, nj, sig):
    for i in interleave(k3_mfmas(nj, SET[1]), k3_reads(nj, sig+1, 0, SET[0])): a(i)

def k3_consumer(a, nj, sig0, vmw, n=16):
    L = a.label("Lk3")
    a(f"s_mov_b32 s41, {(n-1)//3}")
    a(f"{L}:")
    for q in range(3):
        k3_half1(a, nj, sig0+q, vmw[q] if q < len(vmw) else None)
        k3_half2(a, nj, sig0+q)
    a("s_sub_u32 s41, s41, 1")
    a("s_cmp_lg_u32 s41, 0")
    a(f"s_cbranch_scc1 {L}")
    for q in range((n-1)//3*3, n-1):
        k3_half1(a, nj, sig0+q)
        k3_half2(a, nj, sig0+q)
    k3_half1(a, nj, sig0+n-1)


def k3_dma_setup(part, psg, vE=22, first=0):
    r = []
    if part == 0: r.append("s_lshl_b32 s43, s35, 8")
    else:
        r.append("s_mul_i32 s43, s49, 192")
        r.append("s_and_b32 s43, s43, 0xffffff80")
        r.append("s_add_u32 s43, s43, 4096")
    r.append(f"s_cmp_eq_u32 s{psg}, 1")
    r.append("s_cselect_b32 s8, s4, s6")
    r.append("s_cselect_b32 s9, s5, s7")
    r.append("s_sub_u32 s10, 7340032, s43")
    r.append("s_lshl_b32 s44, s34, 18")
    r.append(f"s_add_u32 s44, s44, {WS_H}")
    r.append("s_movk_i32 s38, 28672")
    r.append(f"s_cmp_eq_u32 s{psg}, 0")
    r.append("s_cselect_b32 s8, s32, s8")
    r.append("s_cselect_b32 s9, s33, s9")
    r.append("s_cselect_b32 s10, 262144, s10")
    r.append("s_cselect_b32 s43, s44, s43")
    r.append("s_cselect_b32 s38, 1024, s38")
    r.append("s_cselect_b32 s45, 0, -1")
    r.append("s_add_u32 s8, s8, s43")
    r.append("s_addc_u32 s9, s9, 0")
    r.append("s_mov_b32 s11, 0x20000")
    r.append("s_lshl_b32 s40, s38, 4")
    r.append(f"s_add_u32 s42, s35, {first + 15}")
    r.append(f"s_lshl_b32 s39, s{psg}, 14")
    r.append("v_lshrrev_b32 v19, 4, v1")
    r.append("v_lshlrev_b32 v20, 5, v19")
    r.append("v_mul_u32_u24 v19, 6912, v19")
    r.append("v_and_b32 v19, s45, v19")
    r.append("v_and_b32 v20, s45, v20")
    r.append("v_lshlrev_b32 v21, 4, v1")
    r.append("v_xor_b32 v21, v21, v20")
    r.append(f"v_add_u32 v{vE}, v21, v19")
    r.append("s_and_b32 s45, s45, 128")
    r.append(f"v_xor_b32 v{vE+1}, s45, v{vE}")
    return r

def k3_items(sig, vE=22):
    rg = (sig + 2) % 3
    r = [[f"s_add_u32 m0, s39, {rg*REG + j*1024}", "s_add_u32 s37, s37, s38",
          f"buffer_load_dwordx4 v{vE + (j & 1)}, s[8:11], s37 offen{XF} lds"] for j in range(16)]
    r[0] = ["s_add_u32 s42, s42, 1", "s_and_b32 s42, s42, 15", r[0][0], "s_mul_i32 s37, s42, s40", r[0][2]]
    return r

def g2_dma_setup(psg, A_off, A_mul, A_bytes, K, wreg, vA=21, hop=8):
    r = []
    r.append(f"s_mul_i32 s44, s34, {A_mul}")
    r.append(f"s_lshl_b32 s39, s{psg}, 13")
    r.append("s_add_u32 s44, s44, s39")
    r.append(f"s_add_u32 s44, s44, {A_off}")
    r.append("s_lshl_b32 s43, s35, 7")
    r.append(f"s_mov_b32 s10, {A_bytes - 8192}")
    r.append("s_movk_i32 s38, 1024")
    r.append("s_movk_i32 s40, 9216")
    r.append(f"s_cmp_eq_u32 s{psg}, 2")
    r.append(f"s_cselect_b32 s8, s{wreg}, s32")
    r.append(f"s_cselect_b32 s9, s{wreg+1}, s33")
    r.append(f"s_cselect_b32 s10, {K*2048 - 1920}, s10")
    r.append("s_cselect_b32 s43, s43, s44")
    r.append("s_cselect_b32 s38, 16384, s38")
    r.append(f"s_cselect_b32 s40, {hop*2048}, s40")
    r.append(f"s_cselect_b32 s55, {hop*2048}, s38")
    r.append("s_cselect_b32 s45, -1, 0")
    r.append("s_add_u32 s8, s8, s43")
    r.append("s_addc_u32 s9, s9, 0")
    r.append("s_mov_b32 s11, 0x20000")
    r.append("s_sub_u32 s37, 0, s40")
    r.append("v_lshrrev_b32 v19, 3, v1")
    r.append("v_mul_u32_u24 v19, 1920, v19")
    r.append("v_lshrrev_b32 v20, 4, v1")
    r.append("v_lshlrev_b32 v20, 5, v20")
    r.append("v_and_b32 v19, s45, v19")
    r.append("v_and_b32 v20, s45, v20")
    r.append(f"v_lshlrev_b32 v{vA}, 4, v1")
    r.append(f"v_xor_b32 v{vA}, v{vA}, v20")
    r.append(f"v_add_u32 v{vA}, v{vA}, v19")
    return r

def g2_items(slot, vA=21, wrows=None):
    r = []
    for k in range(8):
        if wrows is None: inc = f"s_add_u32 s37, s37, s{40 if k == 0 else 55 if k == 4 else 38}"
        else: inc = f"s_add_u32 s37, s37, {(wrows[k]*2048) & 0xffffffff}"
        r.append([f"s_add_u32 m0, s39, {slot*SLOT + k*1024}", inc, f"buffer_load_dwordx4 v{vA}, s[8:11], s37 offen{XF} lds"])
    return r

BORD = [0, 1, 3, 4, 5, 6, 8, 9, 10, 11, 14, 15, 2, 7, 12, 13]
def wd_row(item):
    if item < 256:
        s, k = item >> 3, item & 7
        return 128*(s & 15) + 32*(s >> 4) + 64*(k >> 2) + 8*(k & 3)
    q = item - 256
    return 2048 + 96*BORD[q // 12] + [0, 8, 16, 24, 48, 56, 64, 72, 32, 80, 40, 88][q % 12]


CSR = 48
TT = 80
def epi_reads(nj, csbase, TT=TT):
    rd = []
    rd.append("s_lshl_b32 s43, s46, 9")
    rd.append(f"s_add_u32 s43, s43, {STATS}")
    rd.append("v_lshl_add_u32 v19, v17, 3, s43")
    for tl in range(4): rd.append(f"ds_read_b64 v[{TT+2*tl}:{TT+2*tl+1}], v19 offset:{tl*128}")
    rd.append(f"s_mul_i32 s43, s47, {nj*64}")
    rd.append(f"s_add_u32 s43, s43, {CSF + csbase*4}")
    rd.append("v_lshl_add_u32 v19, v18, 4, s43")
    for mat in range(2):
        for j in range(nj):
            d = CSR + (mat*nj+j)*4
            rd.append(f"ds_read_b128 v[{d}:{d+3}], v19 offset:{mat*896 + j*64}")
    return rd
def epi_consts(KB, mean=True, SR=TT):
    c = []
    for tl in range(4):
        mn, rs = SR+2*tl, SR+2*tl+1
        if mean: c.append(f"v_mov_b32 v{KB+tl}, v{mn}")
        c.append(f"v_mul_f32 v{TT+8}, v{rs}, v{rs}")
        c.append(f"v_mul_f32 v{KB+4+tl}, {fh(C0_)}, v{rs}")
        c.append(f"v_mul_f32 v{TT+9}, {fh(C1_)}, v{rs}")
        c.append(f"v_rcp_f32 v{KB+12+tl}, v{TT+8}")
        c.append(f"v_mul_f32 v{KB+8+tl}, v{TT+9}, v{TT+8}")
    return c

def epi_group(nj, tl, j, out, KB, ln=True):
    G = k3_acc(nj, 0, j, tl); U = k3_acc(nj, 1, j, tl)
    cg = CSR + j*4; cu = CSR + (nj+j)*4
    KM, K0, K1, KI = KB+tl, KB+4+tl, KB+8+tl, KB+12+tl
    T = TT + 4*(j & 1)
    r = []
    if ln:
        for q in range(4): r.append(f"v_fma_f32 v{G+q}, -v{KM}, v{cg+q}, v{G+q}")
        for q in range(4): r.append(f"v_fma_f32 v{U+q}, -v{KM}, v{cu+q}, v{U+q}")
    for q in range(4): r.append(f"v_mul_f32 v{T+q}, v{G+q}, v{G+q}")
    for q in range(4): r.append(f"v_fma_f32 v{T+q}, v{T+q}, v{K1}, v{K0}")
    for q in range(4): r.append(f"v_mul_f32 v{T+q}, v{T+q}, v{G+q}")
    for q in range(4): r.append(f"v_exp_f32 v{T+q}, v{T+q}")
    for q in range(4): r.append(f"v_mul_f32 v{U+q}, v{G+q}, v{U+q}")
    for q in range(4): r.append(f"v_fma_f32 v{T+q}, v{T+q}, v{KI}, v{KI}")
    for q in range(4): r.append(f"v_rcp_f32 v{T+q}, v{T+q}")
    for q in range(4): r.append(f"v_mul_f32 v{U+q}, v{U+q}, v{T+q}")
    r.append(f"v_cvt_pk_bf16_f32 v{out}, v{U}, v{U+1}")
    r.append(f"v_cvt_pk_bf16_f32 v{out+1}, v{U+2}, v{U+3}")
    return r

ST = "#ST "
KA, KBB = 32, 224
def epi_a():
    r = []
    for q in range(2):
        for tl in range(4):
            o = 96 + 4*tl
            r += epi_group(4, tl, 2*q, o, KA) + epi_group(4, tl, 2*q+1, o+2, KA)
            r.append(ST + f"{q}buffer_store_dwordx4 v[{o}:{o+3}], v27, s[24:27], {'s53' if q else '0'} offen offset:{tl*256} sc1")
    return r
def epi_b():
    r = []
    for tp in range(2):
        lo = 112 + 4*tp
        for tl in (2*tp, 2*tp+1):
            o = 96 + 4*tl
            r += epi_group(3, tl, 0, o, KBB, False) + epi_group(3, tl, 1, o+2, KBB, False)
            r.append(ST + f"0buffer_store_dwordx4 v[{o}:{o+3}], v27, s[24:27], 0 offen offset:{tl*256} sc1")
            r += epi_group(3, tl, 2, lo + 2*(tl & 1), KBB, False)
        r.append("s_nop 1")
        r.append(f"v_permlane32_swap_b32 v{lo}, v{lo+2}")
        r.append(f"v_permlane32_swap_b32 v{lo+1}, v{lo+3}")
        r.append(ST + f"0buffer_store_dwordx4 v[{lo}:{lo+3}], v28, s[24:27], 0 offen offset:{tp*512} sc1")
    return r

def epi_store_setup(part):
    r = []
    r.append(f"s_mul_i32 s43, s34, {HH_M}")
    if part == 1:
        tab = sum(BORD.index(t) << (4*t) for t in range(16))
        r += [f"s_mov_b32 s44, {tab & 0xffffffff}", f"s_mov_b32 s45, {tab >> 32}", "s_lshl_b32 s50, s49, 2", "s_lshr_b64 s[44:45], s[44:45], s50", "s_and_b32 s50, s44, 15"]
    r.append(f"s_mul_i32 s44, s{35 if part == 0 else 50}, {16384 if part == 0 else 24576}")
    r.append("s_add_u32 s43, s43, s44")
    r.append(f"s_add_u32 s43, s43, {WS_HH + (0 if part == 0 else 524288)}")
    r.append("s_add_u32 s24, s32, s43")
    r.append("s_addc_u32 s25, s33, 0")
    r.append(f"s_mov_b32 s26, {262144 + 16384 if part == 0 else 24576}")
    r.append("s_mov_b32 s27, 0x20000")
    r.append("s_mov_b32 s53, 262144")
    r.append("s_lshl_b32 s43, s47, 13")
    r.append("s_lshl_b32 s44, s46, 10")
    r.append("s_add_u32 s43, s43, s44")
    r.append("v_lshlrev_b32 v19, 11, v18")
    r.append("v_lshl_add_u32 v19, v17, 4, v19")
    r.append("v_add_u32 v27, s43, v19")
    if part == 1:
        r.append("s_lshl_b32 s43, s47, 12")
        r.append("s_add_u32 s43, s43, s44")
        r.append("s_add_u32 s43, s43, 16384")
        r.append("v_and_b32 v19, 1, v18")
        r.append("v_lshlrev_b32 v19, 11, v19")
        r.append("v_lshrrev_b32 v20, 1, v18")
        r.append("v_lshl_add_u32 v19, v20, 8, v19")
        r.append("v_lshl_add_u32 v19, v17, 4, v19")
        r.append("v_add_u32 v28, s43, v19")
    return r

STRIP = os.environ.get("STRIP", "").split(",")
def strip(lst, key):
    return [("s_nop 0" if key in STRIP else i) for i in lst]
_k3_mfmas, _k3_reads, _k3_items, _g2_mfmas, _g2_reads, _g2_items = k3_mfmas, k3_reads, k3_items, g2_mfmas, g2_reads, g2_items
def k3_mfmas(*x): return strip(_k3_mfmas(*x), "m3")
def k3_reads(*x): return strip(_k3_reads(*x), "r3")
def g2_mfmas(*x): return strip(_g2_mfmas(*x), "m4")
def g2_reads(*x): return strip(_g2_reads(*x), "r4")
def k3_items(*x, **k):
    r = _k3_items(*x, **k)
    if "d3" in STRIP: r = [g[:-1] + ["s_nop 0 ;buffer_load lds"] for g in r]
    if "h3" in STRIP: r[0][3] = "s_mov_b32 s37, 0"
    return r
def g2_items(*x, **k):
    r = _g2_items(*x, **k)
    if "d4" in STRIP: r = [g[:2] + ["s_nop 0 ;buffer_load lds"] for g in r]
    if "h4" in STRIP: r[0][1] = "s_mov_b32 s37, 0x20000"
    return r


T1 = env("T1", 4); LB = env("LB", 6)
H4 = env("H4", 0)
HH = env("HH", 0)
assert not HH or (T1 == 4 and not H4)
A0B = (16 - T1)//2
PA1 = T1 + A0B; PB = PA1 + 8; EB4 = PB + LB; NP4 = EB4 + 24 - 2*LB
assert T1 % 2 == 0 and LB % 3 == 0
SX, SW = [32, 96], [64, 160]
AK, AS, RECV = 128, 192, 224
def both(pos): return T1 <= pos < EB4
def k4_stage_of(pos, kh):
    if pos < T1: return pos
    if pos < PA1: return T1 + A0B*kh + pos - T1
    if pos < PB: return 16 + 8*kh + pos - PA1
    if pos < EB4: return 32 + LB*kh + pos - PB
    return 32 + 2*LB + pos - EB4
def k4_addrs():
    r = []
    r.append("v_lshlrev_b32 v19, 11, v18")
    r.append("v_lshl_add_u32 v19, v17, 4, v19")
    r.append("s_lshl_b32 s43, s46, 10")
    r.append("v_add_u32 v2, s43, v19")
    r.append("v_add_u32 v3, 0x10000, v2")
    r.append("v_lshrrev_b32 v19, 2, v17")
    r.append("v_lshl_add_u32 v20, v18, 2, v19")
    r.append("v_bfe_u32 v21, v20, 1, 2")
    r.append("s_lshl_b32 s43, s47, 1")
    r.append("v_xor_b32 v21, s43, v21")
    r.append("v_lshlrev_b32 v20, 7, v20")
    r.append("v_lshl_add_u32 v20, v21, 5, v20")
    r.append("v_and_b32 v19, 3, v1")
    r.append("v_lshl_add_u32 v20, v19, 3, v20")
    r.append("v_add_u32 v5, 16384, v20")
    r.append("v_xor_b32 v6, 32, v5")
    r.append("v_add_u32 v7, 0x10000, v5")
    r.append("v_add_u32 v8, 0x10000, v6")
    r.append(f"s_lshl_b32 s43, s36, {12 if env('XBF', 1) else 13}")
    r.append("v_lshl_add_u32 v9, v1, 4, s43")
    r.append("s_mov_b32 s54, 0x10000")
    r.append("s_movk_i32 s52, 0x1000")
    return r
def k4_reads(pos):
    slot = (pos + 2) % 4; hi, so = slot >> 1, (slot & 1)*32768
    bx, bw = SX[pos & 1], SW[pos & 1]
    def xr(kb, tl): return f"ds_read_b128 v[{bx+(kb*4+tl)*4}:{bx+(kb*4+tl)*4+3}], v{2+hi} offset:{so + kb*8192 + tl*256}"
    def wr(c, kb, e, h):
        d = bw + ((c*2+kb)*2+e)*4 + 2*h
        return f"ds_read_b64_tr_b16 v[{d}:{d+1}], v{5+2*hi+e} offset:{so + c*8192 + kb*4096 + h*2048}"
    r = []
    for kb in range(2):
        w = [wr(c, kb, e, h) for c in range(2 if both(pos) else 1) for e in range(2) for h in range(2)]
        r += interleave(w, [xr(kb, tl) for tl in range(4)])
    return strip(r, "r4")
def k4_mfmas(pos):
    bx, bw = SX[pos & 1], SW[pos & 1]
    r = []
    for kb in range(2):
        for tl in range(4):
            for c in range(2 if both(pos) else 1):
                for e in range(2):
                    acc = (AS if c else AK) + (tl*2+e)*4
                    w = bw + ((c*2+kb)*2+e)*4; x = bx + (kb*4+tl)*4
                    r.append(f"v_mfma_f32_16x16x32_bf16 v[{acc}:{acc+3}], v[{w}:{w+3}], v[{x}:{x+3}], v[{acc}:{acc+3}]")
    return strip(r, "m4")
def k4_half(pos, hi):
    it = k4_items(pos)
    if not hi: return it[:3] + [it[3] + ["s_add_u32 s37, s37, s28"]]
    return [it[0][:-3] + ["s_add_u32 s37, s37, s28"] + it[4]] + it[5:]
def k4_masked(pos):
    it = k4_items(pos)
    if both(pos): return it
    return [g[:-1] + ["s_mov_b64 exec, s[72:73]", g[-1], "s_mov_b64 exec, -1"] for g in it]
def k4_stage(a, pos, pre=None, extra=[], items=None):
    a("s_waitcnt lgkmcnt(0)" if pre is None else f"s_waitcnt vmcnt({pre}) lgkmcnt(0)")
    a("s_barrier")
    rd = k4_reads(pos+1) if pos + 1 < NP4 else []
    seq = interleave(k4_mfmas(pos), rd)
    if items: seq = seq[:2] + spread(seq[2:], items, env("FRH", 80))
    if extra: seq = seq[:8] + spread(seq[8:], [[i] for i in extra])
    for i in seq: a(i)
def k4_dma_setup(first, vA=21):
    r = []
    r.append(f"s_mul_i32 s44, s34, {HH_M}")
    r.append("s_lshl_b32 s39, s51, 13")
    r.append("s_add_u32 s44, s44, s39")
    r.append(f"s_add_u32 s44, s44, {WS_HH}")
    r.append("s_and_b32 s43, s51, 1")
    r.append("s_xor_b32 s43, s43, s35")
    r.append("s_lshl_b32 s43, s43, 7")
    r.append(f"s_mov_b32 s10, {HH_M - 8192}")
    r.append("s_movk_i32 s38, 1024")
    r.append("s_movk_i32 s40, 9216")
    r.append("s_movk_i32 s37, 0x4000")
    r.append("s_cmp_ge_u32 s51, 2")
    r.append("s_cselect_b32 s8, s60, s32")
    r.append("s_cselect_b32 s9, s61, s33")
    r.append(f"s_cselect_b32 s10, {3584*2048 - 1920}, s10")
    r.append("s_cselect_b32 s43, s43, s44")
    r.append("s_cselect_b32 s38, 16384, s38")
    r.append(f"s_cselect_b32 s40, {40*2048}, s40")
    r.append(f"s_cselect_b32 s55, {40*2048}, s38")
    r.append(f"s_cselect_b32 s37, {128*2048}, s37")
    r.append("s_cselect_b32 s45, -1, 0")
    r.append("s_add_u32 s8, s8, s43")
    r.append("s_addc_u32 s9, s9, 0")
    r.append("s_mov_b32 s11, 0x20000")
    r.append("s_and_b32 s53, s35, 1")
    r.append(f"s_mul_i32 s54, s53, {A0B}")
    r.append("s_mul_i32 s54, s54, s37")
    r.append(f"s_mul_i32 s29, s53, {8 - A0B}")
    r.append(f"s_add_u32 s29, s29, {A0B}")
    r.append("s_mul_i32 s29, s29, s37")
    r.append(f"s_and_b32 s43, s45, {((32 - 2048)*2048) & 0xffffffff}")
    r.append("s_add_u32 s29, s29, s43")
    r.append(f"s_mul_i32 s37, s37, {first}")
    r.append("s_sub_u32 s37, s37, s40")
    r.append("v_lshrrev_b32 v19, 3, v1")
    r.append("v_mul_u32_u24 v19, 1920, v19")
    r.append("v_lshrrev_b32 v20, 4, v1")
    r.append("v_lshlrev_b32 v20, 5, v20")
    r.append("v_and_b32 v19, s45, v19")
    r.append("v_and_b32 v20, s45, v20")
    r.append(f"v_lshlrev_b32 v{vA}, 4, v1")
    r.append(f"v_xor_b32 v{vA}, v{vA}, v20")
    r.append(f"v_add_u32 v{vA}, v{vA}, v19")
    return r
assert all(wd_row(8*(32 + LB) + i) - wd_row(8*32 + i) == wd_row(8*(32 + LB)) - wd_row(8*32) for i in range(8*LB))
def k4_items(pos, kind=None, vA=21):
    slot = (pos + 2) % 4
    r = []
    for k in range(8):
        if kind is None: inc = f"s_add_u32 s37, s37, s{40 if k == 0 else 55 if k == 4 else 38}"
        else:
            st = k4_stage_of(pos, 0)
            off = st*16384 + k*1024 if kind == 'x' else wd_row(8*st + k)*2048
            inc = f"s_add_u32 s37, s40, {off}" if pos < EB4 else f"s_mov_b32 s37, {off}"
        g = [f"s_add_u32 m0, s39, {slot*32768 + k*1024}", inc, f"buffer_load_dwordx4 v{vA}, s[8:11], s37 offen{XF} lds"]
        if "d4" in STRIP: g[2] = "s_nop 0 ;buffer_load lds"
        r.append(g)
    if kind is None and pos == T1: r[0] = ["s_add_u32 s37, s37, s54"] + r[0]
    if kind is None and pos == PA1: r[0] = ["s_add_u32 s37, s37, s29"] + r[0]
    return r


def emit(a, vm, seq, tag):
    for i in seq:
        if i.startswith(ST):
            t = i[len(ST)+1:]
            if "st" in STRIP: t = "s_nop 0"
            if "stp" in STRIP: t = t.replace(" sc1", "")
            a(t); vm.add("st" + i[len(ST)])
        else:
            a(i)
            if "buffer_load" in i and i.endswith("lds"): vm.add(tag)
            elif i.startswith("buffer_"): vm.add("x")

def st_last(seq):
    if not env("STLAST", 1): return seq
    return [i for i in seq if not i.startswith(ST)] + [i for i in seq if i.startswith(ST)]
def chunks(lst, n):
    return [lst[len(lst)*k//n:len(lst)*(k+1)//n] for k in range(n)]
def flat(g): return sum(g, [])
def last_with(cs, tag): return max(k for k, c in enumerate(cs) if any(i.startswith(ST + tag) for i in c))


def phase_234(a, Ld):
    PRIO = env("PRIO", 1)
    SPEC3 = env("SPEC3", 1); NV3 = env("NV3", 7)
    SPEC2 = env("SPEC2", 1); PB2 = env("PB2", 7)
    XSN = env("XSN", 1)
    XSIG = EB4 + XSN + env("XSD", 2); XRCV = NP4 - env("XRD", 3)
    SPECX = env("SPECX", 0)
    if SPECX: XSIG = -1; XRCV = NP4 - env("XRD", 2)
    LG1 = a.label("LG1")
    def k1_tail(young, signal=False):
        a(f"s_waitcnt vmcnt({young})")
        a("s_barrier")
        if signal: flag_signal(a, 56, "o", 34, v=13)
        for u in range(2):
            a(f"ds_write_b128 v27, v[{68+48*u}:{71+48*u}] offset:{512*u}")
        stamp(a, 5)
        stampc(a, "k1", 20)
    flag_srd(a, 56)
    lane_ig(a)
    a("s_lshr_b32 s46, s36, 1")
    a("s_and_b32 s46, s46, 1")
    a("s_and_b32 s47, s36, 1")
    a("s_and_b32 s51, s36, 3")
    if NBM:
        a("s_bfe_u32 s49, s35, 0x20001")
        if NBM == 2:
            a("s_sub_u32 s43, 0, s49")
            a("s_and_b32 s43, s43, 3")
            a("s_cmp_ge_u32 s35, 8")
            a("s_cselect_b32 s49, s43, s49")
        a("s_lshl_b32 s49, s49, 2")
        a("s_lshr_b32 s43, s35, 3")
        a("s_lshl_b32 s43, s43, 1")
        a("s_add_u32 s49, s49, s43")
        a("s_and_b32 s43, s35, 1")
        a("s_add_u32 s49, s49, s43")
    else:
        a("s_mov_b32 s49, s35")
    a("s_waitcnt lgkmcnt(0)")
    a("s_cmp_ge_u32 s36, 4")
    a(f"s_cbranch_scc1 {LG1}")

    def o_first_setup():
        a("s_lshl_b32 s43, s34, 18")
        srd(a, 12, 32, 262144, add_lo=43, add_imm=WS_O)
        a("v_lshlrev_b32 v21, 4, v1")
        a("s_lshl_b32 s54, s36, 11")
        for sg in (1, 2):
            a(f"s_add_u32 s43, s35, {sg}")
            a("s_and_b32 s43, s43, 15")
            a("s_lshl_b32 s43, s43, 14")
            a(f"s_add_u32 s{29+sg}, s43, s54")
    def o_first():
        for sg in (1, 2):
            for e in range(2):
                a(f"s_add_u32 m0, s54, {sg*16384 + e*1024}")
                a(f"s_add_u32 s43, s{29+sg}, {e*1024}")
                a(f"buffer_load_dwordx4 v21, s[12:15], s43 offen{XF} lds")
    for i in k2_addrs(): a(i)
    a("s_lshl_b32 s43, s34, 18")
    a("s_lshl_b32 s44, s35, 14")
    a("s_add_u32 s43, s43, s44")
    srd(a, 20, 32, 16384, add_lo=43, add_imm=WS_H)
    a("s_lshl_b32 s43, s34, 14")
    a("s_lshl_b32 s44, s35, 10")
    a("s_add_u32 s43, s43, s44")
    srd(a, 24, 32, 1024, add_lo=43, add_imm=WS_ST2)
    a("s_movk_i32 s50, 0x2000")
    a("v_lshrrev_b32 v19, 1, v18")
    a("v_lshl_add_u32 v19, v19, 4, v17")
    a("s_lshl_b32 s43, s36, 5")
    a("v_add_u32 v19, s43, v19")
    a("v_and_b32 v20, 1, v18")
    a("v_lshlrev_b32 v20, 2, v20")
    a("v_lshl_add_u32 v22, v19, 3, v20")
    o_first_setup()
    k1_tail(0)
    for k in range(4):
        a(f"v_permlane16_swap_b32 v{240+4*k}, v{242+4*k}")
        a(f"v_permlane16_swap_b32 v{241+4*k}, v{243+4*k}")
    for k in range(8):
        for h in range(2):
            a(f"v_lshlrev_b32 v{ACC+4*k+2*h}, 16, v{240+2*k+h}")
            a(f"v_and_b32 v{ACC+4*k+2*h+1}, 0xffff0000, v{240+2*k+h}")
    a("s_waitcnt lgkmcnt(0)")
    a("s_barrier")
    o_first()
    for i in k2_reads(0): a(i)
    a("s_waitcnt lgkmcnt(0)")
    for i in g2_mfmas(SET[0]): a(i)
    a("s_waitcnt vmcnt(2)")
    a("s_barrier")
    stamp(a, 6)
    for i in k2_reads(1): a(i)
    for st in range(1, 16):
        a("s_waitcnt vmcnt(0) lgkmcnt(0)" if st == 1 else "s_waitcnt lgkmcnt(0)")
        if SPEC2 and st <= PB2 + 3:
            b = SET[st & 1]; regs = list(range(b, b + 16))
            for i in chk_ops(regs): a(i)
            a("s_nop 4")
            chk_fix(a, regs, [f"s_add_u32 s44, s35, {st}", "s_and_b32 s44, s44, 15", "s_lshl_b32 s44, s44, 14", "s_add_u32 s43, s44, 0x2000"],
                    [f"buffer_load_dwordx4 v[{b+(kb*2+tl)*4}:{b+(kb*2+tl)*4+3}], v2, s[12:15], s{43 if kb else 44} offen offset:{tl*256} sc1" for kb in range(2) for tl in range(2)])
        a("s_barrier")
        m = g2_mfmas(SET[st & 1]); rd = k2_reads(st+1) if st < 15 else []
        for i in spread(rd, [[x] for x in m], 100) if rd else m: a(i)
    stamp(a, 7)
    a("s_nop 4")
    P = 96
    for tl in range(2):
        for kb in range(2):
            o = P + (tl*2+kb)*4
            for hf in range(2):
                s = ACC + (tl*4 + 2*kb + hf)*4
                a(f"v_cvt_pk_bf16_f32 v{o+2*hf}, v{s}, v{s+1}")
                a(f"v_cvt_pk_bf16_f32 v{o+2*hf+1}, v{s+2}, v{s+3}")
            a(f"buffer_store_dwordx4 v[{o}:{o+3}], v2, s[20:23], {'s50' if kb else '0'} offen offset:{tl*256} sc1")
            a(f"ds_write_b128 v4, v[{o}:{o+3}] offset:{kb*8192 + tl*256}")
    for q in range(8):
        for tl in range(2):
            x = ACC + 16*tl + 2*q; sm = 116 + 4*tl; sq = sm + 2
            if q == 0:
                a(f"v_pk_mul_f32 v[{sq}:{sq+1}], v[{x}:{x+1}], v[{x}:{x+1}]")
            else:
                a(f"v_pk_fma_f32 v[{sq}:{sq+1}], v[{x}:{x+1}], v[{x}:{x+1}], v[{sq}:{sq+1}]")
                y = ACC + 16*tl if q == 1 else sm
                a(f"v_pk_add_f32 v[{sm}:{sm+1}], v[{x}:{x+1}], v[{y}:{y+1}]")
    for tl in range(2):
        a(f"v_add_f32 v{112+2*tl}, v{116+4*tl}, v{117+4*tl}")
        a(f"v_add_f32 v{113+2*tl}, v{118+4*tl}, v{119+4*tl}")
    a("s_nop 1")
    a("v_permlane32_swap_b32 v112, v114")
    a("v_permlane32_swap_b32 v113, v115")
    a("v_add_f32 v112, v112, v114")
    a("v_add_f32 v113, v113, v115")
    a("s_nop 1")
    a("v_permlane16_swap_b32 v112, v113")
    a("v_add_f32 v112, v112, v113")
    a("buffer_store_dword v112, v22, s[24:27], 0 offen sc1")
    if SPEC3:
        a("s_waitcnt lgkmcnt(0)")
        a("s_barrier")
        stamp(a, 8)
    else:
        a("s_waitcnt vmcnt(0) lgkmcnt(0)")
        a("s_barrier")
        Ls = a.label("Lsig")
        a("s_cmp_lg_u32 s36, 0")
        a(f"s_cbranch_scc1 {Ls}")
        flag_signal(a, 56, "h", 34, v=19)
        a(f"{Ls}:")
        if env("OPF", 2) & 2:
            Lo = a.label("Lopf")
            a("s_cmp_lt_u32 s36, 2")
            a(f"s_cbranch_scc1 {Lo}")
            a("s_and_b32 s43, s36, 1")
            a("s_lshl_b32 s43, s43, 13")
            a("v_lshlrev_b32 v19, 7, v1")
            a("buffer_load_dword v31, v19, s[20:23], s43 offen sc1")
            a(f"{Lo}:")
        stamp(a, 8)

    a("s_lshl_b32 s53, s47, 2")
    for i in k3_addrs(4, 53): a(i)
    def stage0():
        for i in k3_reads(4, 0, 0, SET[0]): a(i)
        a("s_waitcnt lgkmcnt(0)")
        for i in interleave([x[:x.rindex(",")] + ", 0" if x.startswith("v_mfma") else x for x in k3_mfmas(4, SET[0])], k3_reads(4, 0, 1, SET[1])): a(i)
        a("s_waitcnt lgkmcnt(0)")
        for i in k3_mfmas(4, SET[1]): a(i)
    stage0()
    for i in k3_dma_setup(1, 51, first=2): a(i)
    for i in epi_store_setup(0): a(i)
    def out_setup():
        r = ["s_lshl_b32 s43, s34, 18", "s_lshl_b32 s44, s35, 7", "s_add_u32 s43, s43, s44",
             "s_add_u32 s16, s62, s43", "s_addc_u32 s17, s63, 0", f"s_mov_b32 s18, {127*2048 + 128}", "s_mov_b32 s19, 0x20000",
             "s_lshl_b32 s43, s46, 6", "v_lshl_add_u32 v19, v17, 1, s43", "v_lshlrev_b32 v19, 11, v19",
             "v_and_b32 v20, 1, v18", "v_lshl_add_u32 v19, v20, 5, v19", "v_lshrrev_b32 v20, 1, v18", "v_lshl_add_u32 v19, v20, 4, v19",
             "s_lshl_b32 s43, s47, 6", "v_add_u32 v28, s43, v19"]
        for d, flip in ((64, 0), (68, 1)):
            r += ["s_lshl_b32 s43, s34, 4", "s_add_u32 s43, s43, s35", f"s_xor_b32 s43, s43, {flip}", "s_lshl_b32 s43, s43, 15", f"s_add_u32 s43, s43, {WS_X}",
                  f"s_add_u32 s{d}, s32, s43", f"s_addc_u32 s{d+1}, s33, 0", f"s_mov_b32 s{d+2}, 32768", f"s_mov_b32 s{d+3}, 0x20000"]
        return r
    for i in out_setup(): a(i)
    def x_first_setup():
        a("s_lshl_b32 s43, s34, 18")
        srd(a, 12, 32, 262144, add_lo=43, add_imm=WS_H)
        a("v_lshlrev_b32 v21, 4, v1")
        a("s_lshl_b32 s54, s36, 11")
        for sg in (1, 2):
            a(f"s_add_u32 s43, s35, {sg}")
            a("s_and_b32 s43, s43, 15")
            a("s_lshl_b32 s43, s43, 14")
            a(f"s_add_u32 s{29+sg}, s43, s54")
    def x_first():
        for sg in (1, 2):
            for e in range(2):
                a(f"s_add_u32 m0, s54, {((sg+2) % 3)*REG + e*1024}")
                a(f"s_add_u32 s43, s{29+sg}, {e*1024}")
                a(f"buffer_load_dwordx4 v21, s[12:15], s43 offen{XF} lds")
    x_first_setup()
    if SPEC3:
        a("s_waitcnt vmcnt(0)")
        a("s_barrier")
        stamp(a, 9)
        if PRIO: a("s_setprio 1")
        for i in k3_reads(4, 1, 0, SET[0]): a(i)
        a("s_waitcnt lgkmcnt(14)")
        for i in chk_ops(list(range(SET[0], SET[0]+16))): a(i)
        a("s_nop 4")
        k3_fix(a, 1, 0, SET[0])
        for sg in range(1, NV3 + 1):
            a("s_waitcnt lgkmcnt(0)")
            k3_half_chk(a, 4, SET[0], sg, 1, SET[1])
            a("s_waitcnt lgkmcnt(0)")
            a("s_barrier")
            if sg < NV3: k3_half_chk(a, 4, SET[1], sg+1, 0, SET[0])
            else: k3_half2(a, 4, sg)
        k3_consumer(a, 4, NV3 + 1, [], n=15 - NV3)
    else:
        a("s_barrier")
        x_first()
        a("s_waitcnt vmcnt(2)")
        a("s_barrier")
        stamp(a, 9)
        if PRIO: a("s_setprio 1")
        for i in k3_reads(4, 1, 0, SET[0]): a(i)
        k3_consumer(a, 4, 1, [0], n=15)
    stamp(a, 10)
    EA = epi_a()
    def batch(l, nb):
        return flat([[i for i in c if not i.startswith(ST)] + [i for i in c if i.startswith(ST)] for c in chunks(l, nb)])
    if env("STBA", 0): EA = batch(EA, env("STBA", 0))
    if "e" in STRIP: EA = [i for i in EA if i.startswith(ST)]
    ea = chunks(EA, env("EA_N", 13))
    SIG_A0 = 16 + last_with(ea, "0") + 2
    SIG_A1 = 16 + last_with(ea, "1") + 2
    HL = SIG_A0 - 1
    assert 16 + len(ea) <= 31 and SIG_A0 <= 28 and HL <= 27 and SIG_A1 in (29, 30)
    L3h = a.label("L3h"); LK4 = a.label("LK4")
    RD = 192
    def resid_loads():
        r = ["v_lshlrev_b32 v19, 11, v18", "v_lshl_add_u32 v19, v17, 4, v19", "s_lshl_b32 s43, s46, 10", "s_lshl_b32 s44, s47, 13",
             f"v_add3_u32 v{RD+16}, v19, s43, 0", f"v_add_u32 v{RD+16}, s44, v{RD+16}"]
        for tl in range(4):
            r.append(f"buffer_load_dwordx4 v[{RD+4*tl}:{RD+4*tl+3}], v{RD+16}, s[20:23], 0 offen offset:{tl*256} sc1")
        return r
    def resid_unpack():
        r = []
        for k in range(4):
            for q in range(4):
                r.append(f"v_lshlrev_b32 v{ACC+8*k+2*q}, 16, v{RD+4*k+q}")
                r.append(f"v_and_b32 v{ACC+8*k+2*q+1}, 0xffff0000, v{RD+4*k+q}")
        return r
    extra = {HL: resid_loads(), 17: k4_addrs(), 29: resid_unpack(), 30: [f"v_mov_b32 v{AS+i}, 0" for i in range(32)]}
    assert HL + 2 <= 28 and HL > 19
    a("s_cmp_eq_u32 s36, 3")
    a(f"s_cbranch_scc1 {L3h}")
    for helper in (False, True):
        vm = VM(a)
        if helper: a(f"{L3h}:")
        m = k3_mfmas(4, SET[1])
        if env("ERI", 1):
            m = interleave(m, epi_reads(4, 0, TT=2))
            emit(a, vm, m if helper else spread(m, k3_items(18)), 18)
            if PRIO: a("s_setprio 0")
            emit(a, vm, ["s_waitcnt lgkmcnt(0)"] + epi_consts(KA, SR=2), None)
        else:
            emit(a, vm, m if helper else spread(m, k3_items(18)), 18)
            if PRIO: a("s_setprio 0")
            emit(a, vm, epi_reads(4, 0) + ["s_waitcnt lgkmcnt(0)"] + epi_consts(KA), None)
        if helper and env("K3PF", 0):
            k3pf = K3PF(a, 1)
            k3pf.setup()
            for s in range(3, env("K3PD", 6)): k3pf.issue(s)
        a("s_barrier")
        if helper: stampc(a, "k3", 16)
        for sig in range(16, 31):
            body = (list(ea[sig-16]) if sig-16 < len(ea) else []) + extra.get(sig, [])
            if helper:
                if sig == SIG_A0: flag_signal(a, 56, "hha0", 34, v=21)
                if sig == SIG_A1: flag_signal(a, 56, "hha1", 34, v=22)
                if sig == env("PA0", 27): flag_poll_issue(a, 56, "hha0", 34, v=21); vm.add("p")
                if env("K3PF", 0) and sig - 16 + env("K3PD", 6) < 16: k3pf.issue(sig - 16 + env("K3PD", 6))
                if 100 + sig in ICW: code_warm(a, 78, 19, 30)
                if sig == 30: warm_jump(a, ("L7b", 0))
                if env("K3_SPF", 1) and (sig in S3R if S3F else sig == env("S3C", 18)):
                    sp = SPF3(a); sp.setup(1); sp.issue(S3R[sig][1] if S3F else 8)
                if env("K4_SPF", 1) and sig == env("S4A", 25):
                    sp = SPF4(a); sp.setup(); sp.issue(0)
                if sig == 25 and env("K4PF", 0):
                    pf_w64(a, KA_WD, 3584, list(range(env("K4PF0", 0), env("K4PF", 0)//MX)), 80, 29, 30)
                assert T1 >= 4
                if sig == 29 and HH:
                    emit(a, vm, k4_dma_setup(4) + ["s_mul_i32 s28, s38, 3", "s_add_u32 s28, s28, s55"], None)
                if sig == 29 and H4:
                    emit(a, vm, k4_dma_setup(2), None)
                    a("s_mov_b64 s[72:73], 0")
                emit(a, vm, body, None)
                if sig == SIG_A0 - 1: a(vm.wait("st0"))
                if sig == SIG_A1 - 1: a(vm.wait("st1"))
                if sig == HL + 2: a(vm.wait("x"))
                if sig == 28: flag_poll_finish(a, 56, v=21, first=vm.cnt("p"))
            else:
                if sig + 3 <= 31:
                    emit(a, vm, st_last(spread(body, k3_items(sig+3), env("FR3", 100))), sig+3)
                else:
                    if sig == 29:
                        emit(a, vm, k4_dma_setup(0), None)
                        a("s_mov_b64 s[72:73], -1")
                    emit(a, vm, spread(body, k4_items(sig - 29)), ("k4", sig - 29))
                if sig == 30 and HH:
                    emit(a, vm, ["s_mul_i32 s28, s38, 3", "s_add_u32 s28, s28, s55", "s_mul_i32 s43, s38, 3", "s_add_u32 s43, s43, s40", "s_add_u32 s43, s43, s28",
                                 "s_lshl_b32 s43, s43, 1", "s_add_u32 s37, s37, s43"], None)
                w = vm.cnt(sig+2) if sig + 2 <= 31 else vm.cnt(("k4", 0))
                if sig == SIG_A0 - 1: w = min(w, vm.cnt("st0"))
                if sig == SIG_A1 - 1: w = min(w, vm.cnt("st1"))
                if sig == HL + 2: w = min(w, vm.cnt("x"))
                a(f"s_waitcnt vmcnt({w})")
            a("s_barrier")
            if helper: stampc(a, "k3", sig+1)
        if not helper: a(f"s_branch {LK4}")
    a(f"{LK4}:")
    stamp(a, 11)
    if PRIO: a("s_setprio 1")
    for i in k4_reads(0): a(i)
    if H4:
        for i in flat(k4_masked(2) + k4_masked(3)): a(i)
    XB = env("XBF", 1)
    def xch(op, reg, sd, n=8):
        return [f"buffer_{op}_dwordx4 v[{reg+4*t}:{reg+4*t+3}], v9, s[{sd}:{sd+3}], {'s52' if t >= 4 else '0'} offen offset:{(t & 3)*1024} sc1" for t in range(n)]
    if XB:
        st_ = xch("store", RECV, 64, 4)
        xs = chunks([[f"v_cvt_pk_bf16_f32 v{RECV+4*tl+q}, v{AS+8*tl+2*q}, v{AS+8*tl+2*q+1}" for q in range(4)] + [st_[tl]] for tl in range(4)], XSN)
        xs = [flat(c) for c in xs]
        xl = xch("load", AS, 68, 4)
        xu = ["s_waitcnt vmcnt(0)"]
        for k in range(16): xu += [f"v_lshlrev_b32 v{RECV+2*k}, 16, v{AS+k}", f"v_and_b32 v{RECV+2*k+1}, 0xffff0000, v{AS+k}"]
    else:
        xs = chunks(xch("store", AS, 64), XSN); xl = xch("load", RECV, 68); xu = []
    pos = 0
    R0 = max(T1, H4 + 3, HH + 3 if HH else 0)
    def pre4(pos):
        if pos == XSIG: return 0
        if HH and 3 <= pos <= HH + 2: return 4*(min(pos + 3, HH + 3) - (pos + 1))
        if not H4: return 0 if pos == 0 else None
        if pos <= H4: return 16
        return {H4 + 1: 8, H4 + 2: 0}.get(pos)
    while pos < NP4:
        if pos == R0:
            nl = (EB4 - 1 - R0)//4
            L = a.label("Lk4")
            a(f"s_mov_b32 s41, {nl}")
            a(f"{L}:")
            for q in range(4): k4_stage(a, pos + q)
            a("s_sub_u32 s41, s41, 1")
            a("s_cmp_lg_u32 s41, 0")
            a(f"s_cbranch_scc1 {L}")
            pos += 4*nl
        if pos == EB4: a("s_mov_b32 s54, 0x10000")
        if SPECX and pos == NP4 - 1:
            a("s_waitcnt lgkmcnt(0)")
            a("s_barrier")
            m = k4_mfmas(pos)
            a(m[0]); a(m[1])
            a("s_waitcnt vmcnt(0)")
            regs = list(range(AS, AS + 16))
            for i in interleave(m[2:], chk_ops(regs)): a(i)
            chk_fix(a, regs, [], xl)
            for i in xu[1:]: a(i)
            break
        k4_stage(a, pos, pre=pre4(pos), items=k4_masked(pos + 4) if pos < H4 else k4_half(pos + 4, 0) if pos < HH else None,
                 extra=xs[pos - EB4] if EB4 <= pos < EB4 + XSN else xl if pos == XRCV else xu if pos == NP4 - 1 else [])
        pos += 1
    stamp(a, 12)
    a("s_waitcnt vmcnt(0)")
    a("s_nop 4")
    for tl in range(4):
        b = AK + 8*tl; o = 32 + 4*tl
        for q in range(0, 8, 2): a(f"v_pk_add_f32 v[{b+q}:{b+q+1}], v[{b+q}:{b+q+1}], v[{RECV+8*tl+q}:{RECV+8*tl+q+1}]")
        for q in range(4): a(f"v_cvt_pk_bf16_f32 v{o+q}, v{b+2*q}, v{b+2*q+1}")
    for tl in range(4):
        o = 32 + 4*tl
        a(f"v_permlane16_swap_b32 v{o}, v{o+2}")
        a(f"v_permlane16_swap_b32 v{o+1}, v{o+3}")
        a(f"buffer_store_dwordx4 v[{o}:{o+3}], v28, s[16:19], {'s54' if tl >= 2 else '0'} offen offset:{(tl & 1)*2048}{os.environ.get('OSF', '')}")
    if STAMP:
        a("s_waitcnt vmcnt(0)")
        stamp(a, 13)
        stamp_flush(a)
    a(f"s_branch {Ld}")

    a(f"{LG1}:")
    L7 = a.label("L7"); LK3b = a.label("LK3b"); LP3 = a.label("LP3")
    a("s_cmp_eq_u32 s36, 7")
    a(f"s_cbranch_scc1 {L7}")
    for i in g2_dma_setup(51, WS_O, 262144, 262144, 1024, 28, vA=23): a(i)
    o_first_setup()
    Lp = [a.label("Lp") for _ in range(3)]
    for p in range(1, 3):
        a(f"s_cmp_eq_u32 s51, {p}")
        a(f"s_cbranch_scc1 {Lp[p]}")
    for p in range(3):
        a(f"{Lp[p]}:")
        vm = VM(a)
        def st2(s): emit(a, vm, flat(k2_items(s, p == 2)), s)
        a(f"s_add_u32 s42, s35, {15 if p == 2 else 2}")
        k1_tail(0, p == 1)
        WE = env("K2_WE", 2)
        wn_ = [0]
        def wst(upto, n):
            while wn_[0] <= min(upto, 15) and n > 0:
                st2(wn_[0]); wn_[0] += 1; n -= 1
        if p == 2: wst(9, WE)
        stamp(a, 6)
        if p == 0 and SPEC2:
            for q in range(env("SPD2", 0)):
                flag_poll_issue(a, 56, "o", 34, v=8)
                a("s_waitcnt vmcnt(0)")
        elif p == 0: flag_poll(a, 56, "o", 34, v=8)
        if p == 2: a(vm.wait(0))
        a("s_waitcnt lgkmcnt(0)")
        stamp(a, 7)
        a("s_barrier")
        stamp(a, 8)
        o_first(); vm.add(1, 2); vm.add(2, 2)
        if p < 2: st2(3)
        else: wst(9, 1)
        a(vm.wait(1))
        a("s_barrier")
        stamp(a, 9)
        if p < 2: st2(4)
        else: wst(9, 1)
        for s in range(1, 16):
            if s < 15: a(vm.wait(s+1))
            a("s_barrier")
            if p == 2: wst(s + 9, env("K2_WN", 2))
            elif s + 4 < 16: st2(s + 4)
            rest = SPR - 3 - 2*(SPE - 2) - (s-1)*env("CS_RPS", 2)
            if rest > 0 and CSM == "d": cs_spre(a, min(rest, env("CS_RPS", 2)))
            if s == 11:
                assert p < 2 or wn_[0] == 16
                for i in k3_dma_setup(0, 51): a(i)
            if s in (12, 14)[:env("EW", 2)] and p > 0:
                emit(a, vm, flat(k3_items((s-12)//2)), "w%d" % ((s-12)//2))
        if p > 0: a(vm.wait("w0"))
        a("s_barrier")
        if p == 0 and SPEC3:
            for q in range(env("SPD3", 2)):
                flag_poll_issue(a, 56, "h", 34, v=8)
                a("s_waitcnt vmcnt(0)")
            a("s_add_u32 s42, s42, 1")
            for w in (1, 2): emit(a, vm, flat(k3_items(w)), "w")
        elif p == 0:
            a("s_add_u32 s42, s42, 3")
            flag_poll(a, 56, "h", 34, v=8)
        else:
            for w in range(env("EW", 2), 3): emit(a, vm, flat(k3_items(w)), "w")
        if p < 2: a(f"s_branch {LP3}")
    a(f"{LP3}:")
    SWD = env("SWD", 1)
    W7SKIP = max(7, NV3 if SPEC3 else 0) - 1
    wd_base = ["s_mul_i32 s43, s2, 28672", "s_mul_i32 s44, s51, 7168", "s_add_u32 s43, s43, s44", "s_add_u32 s80, s60, s43", "s_addc_u32 s81, s61, 0"]
    def swd(sig, w7=False):
        n = 9 if sig <= 8 else 8 if 10 <= sig <= 12 else 7 if sig == 13 else 0
        if w7: n = 0 if sig in (W7SKIP, 9) or sig > 12 else 11 if sig <= 8 else 8
        if not SWD or not n: return []
        return [f"s_load_dword s{64+q}, s[80:81], {64*q}" for q in range(n)] + [f"s_add_u32 s80, s80, {64*n}", "s_addc_u32 s81, s81, 0"]
    for i in wd_base: a(i)
    if SPEC3:
        assert env("EW", 2) == 2
        a("s_waitcnt vmcnt(16)")
        a("s_barrier")
        for i in flat(k3_items(3)) + swd(0): a(i)
        a("s_waitcnt vmcnt(16)")
        a("s_barrier")
    else:
        x_first_setup()
        a("s_barrier")
        x_first()
        for i in flat(k3_items(3)) + swd(0): a(i)
        a("s_waitcnt vmcnt(18)")
        a("s_barrier")
        a("s_waitcnt vmcnt(16)")
        a("s_barrier")
    def xpo(sig):
        if not SPECX or not 9 <= sig <= 14: return []
        r = []
        if sig == 9:
            r = ["s_lshl_b32 s43, s34, 4", "s_add_u32 s43, s43, s35", "s_lshl_b32 s43, s43, 15", f"s_add_u32 s43, s43, {WS_X}",
                 "s_add_u32 s12, s32, s43", "s_addc_u32 s13, s33, 0", "s_mov_b32 s14, 16384", "s_mov_b32 s15, 0x20000",
                 "s_mul_i32 s30, s51, 5120", "v_lshlrev_b32 v29, 4, v1"] + [f"v_mov_b32 v{240+i}, -1" for i in range(4)]
        return r + ["buffer_store_dwordx4 v[240:243], v29, s[12:15], s30 offen sc1", "s_add_u32 s30, s30, 1024"]
    def pst(sig, body=[], pre=[], post=[]):
        for i in pre + spread(body, k3_items(sig+3)) + post + xpo(sig) + swd(sig): a(i)
        a(f"s_waitcnt vmcnt({16 + bool(xpo(sig)) + bool(xpo(sig-1))})")
        a("s_barrier")
    L = a.label("Lp3")
    a("s_mov_b32 s41, 2")
    a(f"{L}:")
    for sig in range(1, 4): pst(sig)
    a("s_sub_u32 s41, s41, 1")
    a("s_cmp_lg_u32 s41, 0")
    a(f"s_cbranch_scc1 {L}")
    pst(7); pst(8)
    bs = ["s_and_b32 s53, s35, 1", "s_lshl_b32 s53, s53, 1", "s_mul_i32 s43, s47, 3", "s_add_u32 s53, s53, s43"] + k3_addrs(3, 53)
    binit = []
    for mat in range(2):
        for j in range(3):
            for tl in range(4):
                for q in range(4):
                    binit.append(f"v_mul_f32 v{k3_acc(3, mat, j, tl)+q}, -v{TT+2*tl}, v{CSR+(mat*3+j)*4+q}")
    bi = chunks(binit, 3)
    BODY = {9: bs + epi_reads(3, 128), 10: ["s_waitcnt lgkmcnt(0)"] + epi_consts(KBB, False), 11: bi[0], 12: bi[1], 13: bi[2]}
    k4set = k4_dma_setup(2 if not H4 else H4 + 4)
    if HH: k4set += ["s_mul_i32 s28, s38, 3", "s_add_u32 s28, s28, s40"]
    if H4:
        assert T1 <= H4 + 4 <= PA1
        if H4 + 4 > T1: k4set += ["s_add_u32 s37, s37, s54"]
    for sig in range(9, 15):
        pst(sig, BODY.get(sig, []), pre=k3_dma_setup(1, 51) if sig == 13 else [], post={14: k4set, 10: epi_store_setup(1)}.get(sig, []))
    a(f"s_branch {LK3b}")

    a(f"{L7}:")
    NB2 = 18
    Lno = a.label("Lnojob"); Lcs = a.label("Lcsd")
    stampc(a, "k2", 0)
    def opoll(st):
        if SPEC2 and st == PB2 - 1 - env("PL2", 3): flag_poll_issue(a, 56, "o", 34, v=8)
        if SPEC2 and st == PB2 - 1: flag_poll_finish(a, 56, v=8)
    assert not SPEC2 or env("CS_LT", 7) >= PB2
    cs_setup(a, Lno, 64, 4, ptrs=True)
    EREG = [56, 60, 64] + list(range(72, 116, 4)) + [120, 124]
    def ld2(reg, q):
        a(f"s_mov_b32 s43, {q*4*7168}")
        a(f"buffer_load_dwordx4 v[{reg}:{reg+3}], v4, s[64:67], s43 offen")
    a("s_lshl_b32 s55, s45, 1")
    a("s_add_u32 s55, s55, s44")
    a("s_mul_i32 s55, s55, 14336")
    a("s_lshl_b32 s45, s46, 9")
    a("s_mov_b32 s50, s46")
    a("s_add_u32 s55, s55, s45")
    a("v_lshl_add_u32 v5, v5, 5, s55")
    srd(a, 72, 32, 8*14336, add_imm=WS_CS)
    for i in range(8): a(f"v_mov_b32 v{32+i}, 0")
    o_first_setup()
    k1_tail(0)
    EAT = env("CS_EAT", -2)
    if EAT == -2:
        for n in range(16): ld2(EREG[n], 32 + n)
    npr = [0]
    def proc(reg):
        t = 40 + 8*(npr[0] & 1); npr[0] += 1
        for d in range(4):
            a(f"v_lshlrev_b32 v{t+2*d}, 16, v{reg+d}")
            a(f"v_and_b32 v{t+2*d+1}, 0xffff0000, v{reg+d}")
        for d in range(4): a(f"v_pk_add_f32 v[{32+2*d}:{33+2*d}], v[{32+2*d}:{33+2*d}], v[{t+2*d}:{t+2*d+1}]")
    def mpf():
        if env("MPF", 0):
            a("s_mul_i32 s43, s2, 28672")
            srd(a, 76, 60, 28672, add_lo=43)
            a("v_lshlrev_b32 v19, 7, v1")
            for q in range(4):
                a(f"s_mov_b32 s43, {q*8192}")
                a("buffer_load_dword v30, v19, s[76:79], s43 offen")
    def cs_finish():
        a("s_nop 2")
        for sw in ("16", "32"):
            for d in range(8): a(f"v_mov_b32 v{40+d}, v{32+d}")
            a("s_nop 0")
            for d in range(8): a(f"v_permlane{sw}_swap_b32 v{32+d}, v{40+d}")
            for d in range(8): a(f"v_add_f32 v{32+d}, v{32+d}, v{40+d}")
        a("s_mov_b64 exec, 0xffff")
        a("buffer_store_dwordx4 v[32:35], v5, s[72:75], 0 offen sc1")
        a("buffer_store_dwordx4 v[36:39], v5, s[72:75], 0 offen offset:16 sc1")
        a("s_mov_b64 exec, -1")
    LT = env("CS_LT", 7); PRE = env("CS_PRE", 8); CLN = env("CS_LN", 4)
    todo = [128 + 4*n for n in range(32)] + EREG
    for r in todo[:PRE]: proc(r)
    todo = todo[PRE:]
    a("s_waitcnt lgkmcnt(0)")
    stamp(a, 7)
    for q in range(NB2):
        st = q - 2
        if q == 1:
            o_first()
            a("s_waitcnt vmcnt(2)")
        if q == 2: a("s_waitcnt vmcnt(0)")
        opoll(st)
        if st == EAT and EAT >= 0:
            for n in range(16): ld2(EREG[n], 32 + n)
        if EAT >= 0 and todo and todo[0] == EREG[0]: a(f"s_waitcnt vmcnt({16 if st > LT else 0})")
        if st == LT:
            assert npr[0] >= 16
            for n in range(16): ld2(128 + 4*n, 48 + n)
        elif st >= 1:
            if not todo and st >= LT + 4 and npr[0] == 48:
                a("s_waitcnt vmcnt(0)")
                todo = [128 + 4*n for n in range(16)]
            for r in todo[:CLN]: proc(r)
            todo = todo[CLN:]
        a("s_barrier")
        stampc(a, "k2", q+1)
    if npr[0] == 48:
        a("s_waitcnt vmcnt(0)")
        todo = [128 + 4*n for n in range(16)]
    for r in todo: proc(r)
    assert npr[0] == 64
    cs_finish()
    a("s_waitcnt vmcnt(0)")
    flag_signal(a, 56, "cs", 50, v=12)
    mpf()
    a(f"s_branch {Lcs}")
    a(f"{Lno}:")
    o_first_setup()
    k1_tail(0)
    a("s_waitcnt lgkmcnt(0)")
    for q in range(NB2):
        if q == 1:
            o_first()
            a("s_waitcnt vmcnt(2)")
        if q == 2: a("s_waitcnt vmcnt(0)")
        opoll(q - 2)
        a("s_barrier")
        stampc(a, "k2", q+1)
    mpf()
    a(f"{Lcs}:")
    a("s_mov_b32 s46, 1")
    x_first_setup()
    k3pf = K3PF(a, 0)
    PD = env("K3PD", 6)
    if env("K3PF", 0) or env("K3PF0", 0):
        k3pf.setup()
        for s in range(3, max(PD, env("K3PF0", 0))): k3pf.issue(s)
    S3 = env("K3_SPF", 1); S4 = env("K4_SPF", 1)
    sp3 = SPF3(a)
    if S3:
        sp3.setup(0); sp3.issue(3)
    a("s_lshl_b32 s43, s34, 14")
    srd(a, 64, 32, 16384, add_lo=43, add_imm=WS_ST2)
    srd(a, 72, 32, 8*14336, add_imm=WS_CS)
    if not SPEC3:
        a("s_barrier")
        stampc(a, "k2", 20)
        x_first()
        a("s_waitcnt vmcnt(2)")
    a("s_barrier")
    stampc(a, "k2", 21)
    stampc(a, "k3", 31)
    stampc(a, "k3", 0)
    def w7dst(i):
        if not i.startswith("s_load_dword"): return i
        q = int(i.split()[1][1:-1]) - 64
        return i.replace(f"s{64+q},", f"s{82 + q % 6},")
    STL = env("STL", 1); CSP = STL + 3
    for sig in range(15):
        if sig == 0:
            if SPEC3: flag_signal(a, 56, "h", 34, v=8)
            else: a("s_waitcnt vmcnt(0)")
        if SPEC3 and sig == NV3 - 3 - env("PL3", 1): flag_poll_issue(a, 56, "h", 34, v=8)
        if SPEC3 and sig == NV3 - 3: flag_poll_finish(a, 56, v=8)
        if 100 + sig in ICW: code_warm(a, 78, 19, 30)
        if sig == 14: warm_jump(a, ("L3h", 0))
        if S3 and S3F:
            if sig in S3R:
                if S3R[sig] == (1, 0): sp3.setup(1)
                sp3.issue(S3R[sig][1])
        elif S3:
            if sig == env("S3A", 5): sp3.issue(8)
            if sig == env("S3B", 10):
                sp3.setup(1); sp3.issue(0)
        if sig == STL + 1:
            a("s_mul_i32 s43, s49, 96")
            a("s_add_u32 s44, s43, 95")
            a("s_lshr_b32 s43, s43, 7")
            a("s_lshr_b32 s44, s44, 7")
            a("s_add_u32 s43, s43, 16")
            a("s_add_u32 s44, s44, 16")
            a("v_mov_b32 v12, s44")
            a("v_writelane_b32 v12, s35, 0")
            a("v_writelane_b32 v12, s43, 1")
            a(f"v_add_u32 v12, {FLG['cs'][0]}, v12")
            a("v_lshlrev_b32 v12, 7, v12")
            a(f"v_mov_b32 v14, {FLG['cs'][1]}")
            a("buffer_load_dword v13, v12, s[56:59], 0 offen sc1")
        if sig == (NV3 - 2 if SPEC3 else STL):
            for n in range(16):
                a(f"s_mov_b32 s43, {n*1024}")
                a(f"buffer_load_dwordx4 v[{128+4*n}:{128+4*n+3}], v21, s[64:67], s43 offen sc1")
        if env("K3PF", 0) and sig >= 1:
            if sig + PD - 1 < 16: k3pf.issue(sig + PD - 1)
            elif sig + PD - 1 == 16:
                k3pf.part = 1; k3pf.setup()
            if 16 <= sig + PD - 1 < 19: k3pf.issue(sig + PD - 1 - 16)
        if sig == CSP:
            flag_poll_finish(a, 56, v=12)
            a("v_min_u32 v12, 55, v1")
            a("v_lshlrev_b32 v13, 4, v12")
            a("s_lshl_b32 s43, s35, 9")
            a("s_mul_i32 s44, s49, 384")
            a(f"s_add_u32 s44, s44, {8192 - 512}")
            a("v_mov_b32 v14, s44")
            a("v_mov_b32 v15, s43")
            a("v_cmp_gt_u32 vcc, 32, v12")
            a("s_nop 1")
            a("v_cndmask_b32 v14, v14, v15, vcc")
            a("v_add_u32 v14, v14, v13")
            a(f"v_add_u32 v13, {CSF}, v13")
            for mat in range(2):
                for sl in range(4):
                    d = 192 + (mat*4+sl)*4
                    a(f"s_mov_b32 s43, {(sl*2+mat)*14336}")
                    a(f"buffer_load_dwordx4 v[{d}:{d+3}], v14, s[72:75], s43 offen sc1")
        SRD_ = max(CSP + 1, NV3) if SPEC3 else CSP + 1
        LAST_ = max(CSP + 3, SRD_)
        if sig == SRD_:
            if SPEC3: a("s_waitcnt vmcnt(0)")
            for n in range(1, 16):
                for q in range(4): a(f"v_add_f32 v{128+q}, v{128+q}, v{128+4*n+q}")
            for b in (128, 130):
                a(f"v_mul_f32 v{b}, 0x3a800000, v{b}")
                a(f"v_mul_f32 v{b+1}, 0x3a800000, v{b+1}")
                a(f"v_fma_f32 v{b+1}, -v{b}, v{b}, v{b+1}")
                a(f"v_max_f32 v{b+1}, 0, v{b+1}")
                a(f"v_add_f32 v{b+1}, 0x3727c5ac, v{b+1}")
                a(f"v_rsq_f32 v{b+1}, v{b+1}")
            a(f"v_add_u32 v19, {STATS}, v21")
            a("ds_write_b128 v19, v[128:131]")
        if sig == (CSP + 3 if SRD_ != CSP + 3 else CSP + 2):
            a("s_waitcnt vmcnt(0)" if not (SPEC3 and NV3 - 2 > CSP) else "s_waitcnt vmcnt(16)")
            for mat in range(2):
                b = 192 + mat*16
                for q in range(4):
                    a(f"v_add_f32 v{b+q}, v{b+q}, v{b+4+q}")
                    a(f"v_add_f32 v{b+8+q}, v{b+8+q}, v{b+12+q}")
                for q in range(4): a(f"v_add_f32 v{b+q}, v{b+q}, v{b+8+q}")
                a(f"ds_write_b128 v13, v[{b}:{b+3}] offset:{mat*896}")
        if sig == LAST_:
            a("s_waitcnt lgkmcnt(0)")
            assert sig < 9
        for i in BODY.get(sig, []) + (epi_store_setup(1) if sig == 10 else []) + (wd_base if sig == 0 else []) + (k4set if sig == 14 else []): a(i)
        assert LAST_ - 1 == W7SKIP
        if STAMPC != "k3":
            for i in swd(sig, True): a(w7dst(i))
        a("s_barrier")
        stampc(a, "k3", sig+1)

    a(f"{LK3b}:")
    stamp(a, 10)
    if PRIO: a("s_setprio 1")
    for i in k3_reads(3, 16, 0, SET[0]): a(i)
    k3_consumer(a, 3, 16, [0])
    stamp(a, 11)
    EB = epi_b()
    if env("STBB", 0): EB = batch(EB, env("STBB", 0))
    if "e" in STRIP: EB = [i for i in EB if i.startswith(ST)]
    eb = chunks(EB, env("EB_N", 8))
    SIG_B = last_with(eb, "0") + env("SIGB_D", 2)
    POLL_A1 = PA1 - 5; POLL_B = PB - 5
    POLL_C = NP4 - 6 - 5
    assert LB == 6 and not SPECX
    UNI = PB - 4
    assert len(eb) <= UNI and SIG_B < POLL_B
    L7b = a.label("L7b")
    a("s_cmp_eq_u32 s36, 7")
    a(f"s_cbranch_scc1 {L7b}")
    for helper in (False, True):
        vm = VM(a)
        if helper: a(f"{L7b}:")
        m = k3_mfmas(3, SET[1])
        if H4: emit(a, vm, m, None)
        elif helper:
            emit(a, vm, m, None)
            a(f"s_mul_i32 s43, s38, {16*(T1-2)}")
            a("s_add_u32 s37, s37, s43")
        else:
            emit(a, vm, spread(m[:12], k4_items(2)), 2)
            emit(a, vm, spread(m[12:], k4_items(3)), 3)
        if PRIO: a("s_setprio 0")
        a("s_barrier")
        if helper: stampc(a, "k4", 0 - env("K4O", 0))
        def pslice(s, kind):
            body = eb[s] if s < len(eb) else []
            dma = (both(s + 4) if helper else s + 4 < NP4) and s >= H4
            if helper:
                if s == UNI - 1: warm_jump(a, ("LW4", 0))
                if s == SIG_B:
                    a("s_cmp_ge_u32 s50, 12")
                    a(f"s_cselect_b32 s44, {FLG['hhc'][0] - FLG['hhb'][0]}, 0")
                    a("s_add_u32 s44, s44, s34")
                    flag_signal(a, 56, "hhb", 44, v=10); vm.add("f")
                if s == POLL_C - 2: flag_poll_issue(a, 56, "hhc", 34, v=13); vm.add("q")
                if s == POLL_A1 - env("PLA", 2): flag_poll_issue(a, 56, "hha1", 34, v=10); vm.add("p")
                if s == POLL_B - env("PLB", 2): flag_poll_issue(a, 56, "hhb", 34, v=10); vm.add("p")
                if env("K4_SPF", 1):
                    if s == 0: sp4.setup()
                    for G, at in ((1, PA1 - env("S4B", 9)), (2, PB - env("S4C", 8)), (3, EB4 - env("S4D", 6))):
                        if s == at: sp4.issue(G); vm.add("f")
                if s == XSIG:
                    xflag_addr(a, 10, 0)
                    a("v_mov_b32 v11, 1")
                    a("s_mov_b64 exec, 1")
                    a("buffer_store_dword v11, v10, s[56:59], 0 offen sc1"); vm.add("f")
                    a("s_mov_b64 exec, -1")
                if s == XRCV - 1 - env("PLX", 2) and not SPECX:
                    xflag_addr(a, 10, 1)
                    a("v_mov_b32 v12, 1")
                    a("buffer_load_dword v11, v10, s[56:59], 0 offen sc1"); vm.add("p")
            if s == UNI: a(f"s_mul_i32 s40, s53, {LB*16384 if kind == 'x' else (wd_row(8*(32 + LB)) - wd_row(8*32))*2048}")
            emit(a, vm, st_last(spread(body, k4_half(s+4, 1) if s < HH else k4_items(s+4, kind if s >= UNI else None), env("FR4", 100))) if dma else body, s+4)
            w = vm.cnt(s+2) if s + 2 in vm.q else 63
            if s == SIG_B - 1: w = min(w, vm.cnt("st0"))
            if w < 63: a(f"s_waitcnt vmcnt({w})")
            if helper and s == POLL_C: flag_poll_finish(a, 56, v=13, first=vm.cnt("q"))
            if helper and s in (POLL_A1, POLL_B, -1 if SPECX else XRCV - 1): flag_poll_finish(a, 56, v=10, first=vm.cnt("p"))
            a("s_barrier")
            if helper: stampc(a, "k4", s+1 - env("K4O", 0))
        if helper:
            sp4 = SPF4(a)
            for s in range(NP4 - 1 if STAMPC == "k4" else EB4 - 2 if SPECX else XRCV): pslice(s, 'w')
            stamp(a, 12)
            stamp_flush(a)
            a(f"s_branch {Ld}")
        else:
            for s in range(UNI): pslice(s, None)
            LW = a.label("LW4")
            a("s_cmp_eq_u32 s51, 2")
            a(f"s_cbranch_scc1 {LW}")
            q0 = list(vm.q)
            for kind in ('x', 'w'):
                vm.q = list(q0)
                if kind == 'w': a(f"{LW}:")
                for s in range(UNI, NP4 - 2): pslice(s, kind)
                if STAMP:
                    stamp(a, 12)
                    stamp_flush(a)
                a(f"s_branch {Ld}")


NXS = 32 // MX
class XPF:
    G = NXS // 2
    def __init__(self, a, off, mul, sd=68, v=23):
        self.a = a; self.off = off; self.mul = mul; self.sd = sd; self.v = v
    def setup(self):
        a = self.a; v = self.v
        per = 128 // NXS
        a(f"s_mul_i32 s43, s34, {self.mul}")
        srd(a, self.sd, 32, self.mul, add_lo=43, add_imm=self.off)
        a(f"v_and_b32 v{v}, {per-1}, v1")
        a(f"s_mul_i32 s43, s49, {per}")
        a(f"v_add_u32 v{v}, s43, v{v}")
        a(f"v_lshlrev_b32 v{v}, 7, v{v}")
        a(f"v_lshrrev_b32 v19, {per.bit_length()-1}, v1")
        a(f"v_lshl_add_u32 v{v}, v19, 14, v{v}")
    def issue(self, st):
        a = self.a
        a(f"s_mov_b32 s43, {st*16384}")
        a(f"buffer_load_dword v30, v{self.v}, s[{self.sd}:{self.sd+3}], s43 offen sc1")


class K3PF:
    def __init__(self, a, part): self.a = a; self.part = part
    def setup(self):
        a = self.a
        if self.part == 0: a("s_lshl_b32 s43, s35, 8")
        else:
            a("s_mul_i32 s43, s49, 192")
            a("s_and_b32 s43, s43, 0xffffff80")
            a("s_add_u32 s43, s43, 4096")
        a("s_sub_u32 s44, 7340032, s43")
        for d, b in ((88, 4), (92, 6)):
            a(f"s_add_u32 s{d}, s{b}, s43")
            a(f"s_addc_u32 s{d+1}, s{b+1}, 0")
            a(f"s_mov_b32 s{d+2}, s44")
            a(f"s_mov_b32 s{d+3}, 0x20000")
        per = 64 // MX
        a("v_lshrrev_b32 v31, 1, v1")
        a(f"v_min_u32 v31, {min(per, 32)-1}, v31")
        a(f"s_mul_i32 s43, s48, {per}")
        a("v_add_u32 v31, s43, v31")
        a("v_mul_u32_u24 v31, 7168, v31")
        a("v_and_b32 v19, 1, v1")
        a("v_lshl_add_u32 v31, v19, 7, v31")
    def issue(self, st):
        a = self.a
        a(f"s_mov_b32 s43, {st*64*7168}")
        a("buffer_load_dword v30, v31, s[88:91], s43 offen")
        a("buffer_load_dword v30, v31, s[92:95], s43 offen")


S3F = env("S3F", 1)
S3R = {2: (0, 7), 6: (0, 11), 9: (0, 15), 10: (1, 0), 14: (1, 4), 18: (1, 8), 22: (1, 12)}
class SPF3:
    def __init__(self, a): self.a = a
    def setup(self, part):
        a = self.a
        for d, b in ((88, 4), (92, 6)): srd(a, d, b, 7340032)
        a("s_lshr_b32 s43, s35, 3")
        a("v_and_b32 v19, 1, v1")
        a(f"v_bfe_u32 v23, v1, 2, {2 if S3F else 3}")
        if part == 0:
            a("s_lshl_b32 s44, s43, 3")
            a("s_add_u32 s44, s44, 1")
            a("v_lshl_add_u32 v23, v19, 2, v23")
            a("v_add_u32 v23, s44, v23")
            a("s_lshl_b32 s43, s43, 11")
            a("s_add_u32 s43, s43, 384")
            a("s_movk_i32 s44, 1024")
        elif NBM:
            a("s_lshl_b32 s44, s43, 1")
            a("s_add_u32 s44, s44, 6")
            a("v_add_u32 v23, s44, v23")
            a(f"s_mul_i32 s44, s43, {2 if NBM == 1 else 6}")
            a("s_add_u32 s44, s44, 1")
            a("v_mad_u32_u24 v23, v19, s44, v23")
            a("s_lshl_b32 s44, s43, 10")
            a("s_lshl_b32 s43, s43, 11")
            a(f"s_sub_u32 s43, {51*128}, s43")
        else:
            a("s_mul_i32 s44, s43, 10")
            a("s_add_u32 s44, s44, 2")
            a("v_add_u32 v23, s44, v23")
            a("s_lshl_b32 s44, s43, 2")
            a("s_sub_u32 s44, 5, s44")
            a("v_mad_u32_u24 v23, v19, s44, v23")
            a("s_lshl_b32 s44, s43, 10")
            a("s_xor_b32 s44, s44, 1024")
            a("s_lshl_b32 s43, s43, 11")
            a(f"s_add_u32 s43, s43, {35*128}")
        a("s_lshr_b32 s45, s2, 3")
        a("s_mul_i32 s45, s45, 14336")
        a("s_add_u32 s43, s43, s45")
        a("v_mul_lo_u32 v31, v19, s44")
        a("v_bfe_u32 v19, v1, 1, 1")
        a("v_mul_u32_u24 v19, 7168, v19")
        a("v_add3_u32 v31, v31, v19, s43")
    def issue(self, st):
        a = self.a
        a(f"v_add_u32 v19, {st}, v23")
        a("v_and_b32 v19, 15, v19")
        a(f"v_mul_u32_u24 v19, {64*7168}, v19")
        a("v_add_u32 v19, v19, v31")
        a("buffer_load_dword v30, v19, s[88:91], 0 offen")
        a("buffer_load_dword v30, v19, s[92:95], 0 offen")


class SPF4:
    def __init__(self, a): self.a = a
    def setup(self):
        a = self.a
        srd(a, 80, 60, 7340032)
        a("v_and_b32 v29, 31, v1")
        a("v_lshlrev_b32 v29, 11, v29")
        a("s_and_b32 s43, s35, 8")
        a("s_or_b32 s43, s43, 3")
        a("s_lshl_b32 s43, s43, 7")
        a("v_add_u32 v29, s43, v29")
    def issue(self, G):
        a = self.a
        a("s_lshr_b32 s44, s2, 3")
        if G == 3: a("s_and_b32 s44, s44, 15")
        a(f"s_lshl_b32 s44, s44, {17 if G < 2 else 16}")
        a(f"s_add_u32 s43, s44, {[0, 32, 2048, 3072][G]*2048}")
        a("buffer_load_dword v30, v29, s[80:83], s43 offen")
```

```python
import os, struct
from common import *

NS = 3
XB_ = 18432
STG1 = XB_ + 3*8192
RST = NS*STG1
CSUM = RST + 1152
LST = CSUM
LDS_K1 = CSUM + 768
QKV = 0
QP = 400

def fh(x): return "0x%08x" % struct.unpack("<I", struct.pack("<f", x))[0]

VGPR_K1 = 240
def phase_k1(a):
    strip = os.environ.get("K1_STRIP", "")
    nst = 16
    a(f"s_load_dwordx4 s[4:7], s[0:1], {KA_X}")
    a(f"s_load_dwordx2 s[32:33], s[0:1], {KA_WS}")
    a(f"s_load_dwordx2 s[80:81], s[0:1], {KA_WG}")
    mapping(a)
    a("v_lshrrev_b32 v12, 6, v0")
    a("v_and_b32 v1, 63, v0")
    a("v_readfirstlane_b32 s36, v12")
    a("s_nop 3")
    stamp_init(a)
    stamp(a, 0)
    a("s_lshl_b32 s44, s34, 18")
    a("s_lshl_b32 s45, s35, 14")
    a("s_add_u32 s45, s45, s44")
    a("s_lshl_b32 s50, s34, 7")
    a("s_sub_u32 s50, s50, 16")
    a("s_and_b32 s47, s36, 3")
    a("s_lshl_b32 s43, s34, 7")
    a("s_lshl_b32 s44, s35, 3")
    a("s_add_u32 s43, s43, s44")
    a("s_mov_b32 s63, s43")
    a("s_lshl_b32 s44, s47, 1")
    a("s_add_u32 s51, s43, s44")
    a("v_lshlrev_b32 v10, 4, v1")
    a("v_lshrrev_b32 v14, 3, v1")
    a("v_and_b32 v15, 7, v1")
    a("v_and_b32 v16, 2, v14")
    a("v_xor_b32 v16, v15, v16")
    a("v_lshlrev_b32 v16, 4, v16")
    a("v_mul_u32_u24 v17, 6144, v14")
    a("s_lshl_b32 s43, s47, 11")
    a("v_add3_u32 v2, v17, v16, s43")
    a("v_xor_b32 v3, 64, v2")
    a("v_lshrrev_b32 v16, 1, v14")
    a("v_xor_b32 v16, v15, v16")
    a("v_lshlrev_b32 v16, 4, v16")
    a("s_lshl_b32 s43, s47, 3")
    a("s_add_u32 s43, s43, s50")
    a("v_add_u32 v17, s43, v14")
    a("s_and_b32 s44, s47, 1")
    a("s_lshl_b32 s44, s44, 6")
    for i in range(6):
        a(f"v_add_u32 v18, {24*i}, v17")
        a("v_max_i32 v18, 0, v18")
        a("v_lshl_add_u32 v18, v18, 11, v16")
        a("v_xor_b32 v18, s44, v18")
        if i & 1: a(f"v_xor_b32 v{4+i}, 64, v18")
        else: a(f"v_mov_b32 v{4+i}, v18")
    a("s_lshl_b32 s39, s47, 10")
    a("s_lshl_b32 s40, s47, 13")
    a(f"s_add_u32 s40, s40, {XB_}")
    a("s_mov_b32 s37, 0")
    a("s_mov_b32 s38, 0")
    a("s_bfm_b64 s[60:61], 56, 8")
    a("s_cmp_eq_u32 s47, 0")
    a("s_cselect_b64 s[60:61], s[60:61], -1")
    a("s_mov_b32 s53, 0x3f803f80")
    a("v_and_b32 v12, 15, v1")
    a("v_lshrrev_b32 v13, 4, v1")
    a("s_lshl_b32 s43, s35, 7")
    a("s_waitcnt lgkmcnt(0)")
    srd(a, 8, 4, 2048*2048)
    srd(a, 12, 6, 1023*6144 + 4096 + 128, add_lo=43)
    srd(a, 16, 32, 16384, add_lo=45, add_imm=WS_O)
    srd(a, 20, 32, 2048*8, add_imm=WS_ST1)
    Lcons = a.label("Lcons"); Lpf = a.label("Lpf"); Latt = a.label("Latt"); Latt1 = a.label("Latt")
    a("s_cmp_lt_u32 s36, 4")
    a(f"s_cbranch_scc1 {Lcons}")
    a("s_cmp_eq_u32 s36, 7")
    a(f"s_cbranch_scc1 {Lpf}")
    a(";@@CONS")
    a(f"{Lcons}:")

    ASP = int(os.environ.get("K1_ASP", "1"))
    OFL = int(os.environ.get("K1_OFL", "1"))
    SP2 = int(os.environ.get("K1_SP2", "3"))
    def att_setup():
        a("s_and_b32 s43, s36, 1")
        a("s_lshr_b32 s44, s36, 1")
        a("s_and_b32 s44, s44, 1")
        a("s_lshr_b32 s45, s36, 2")
        if ASP: a("s_xor_b32 s45, s45, 1")
        a("v_lshlrev_b32 v14, 2, v13")
        a("v_sub_u32 v14, v12, v14")
        for r in range(4):
            a(f"v_subrev_u32 v15, {r}, v14")
            a(f"v_cmp_ge_u32 s[{52+2*r}:{53+2*r}], 7, v15")
            a(f"v_add_u32 v15, 16, v15")
            a(f"v_cmp_ge_u32 s[{84+2*r}:{85+2*r}], 7, v15")
        a("s_lshl_b32 s46, s45, 6")
        a("s_add_u32 s46, s46, s44")
        a("s_add_u32 s46, s46, 16")
        a("v_lshl_add_u32 v14, v12, 1, s46")
        a("s_lshl_b32 s47, s43, 6")
        a("v_lshl_add_u32 v15, v13, 4, s47")
        a(f"v_mul_u32_u24 v20, {QP}, v14")
        a("v_add_u32 v20, v20, v15")
        a("v_subrev_u32 v16, 32, v14")
        a("v_max_i32 v16, 0, v16")
        a(f"v_mul_u32_u24 v21, {QP}, v16")
        a("v_add_u32 v21, v21, v15")
        a("v_lshrrev_b32 v16, 2, v12")
        a("v_lshl_add_u32 v16, v13, 2, v16")
        a("v_lshl_add_u32 v16, v16, 1, s46")
        a("v_and_b32 v17, 3, v1")
        a("v_lshl_add_u32 v17, v17, 3, s47")
        a(f"v_mul_u32_u24 v22, {QP}, v16")
        a("v_add_u32 v22, v22, v17")
        a("v_subrev_u32 v16, 32, v16")
        a("v_max_i32 v16, 0, v16")
        a(f"v_mul_u32_u24 v23, {QP}, v16")
        a("v_add_u32 v23, v23, v17")
        a("s_lshl_b32 s60, s43, 13")
        a("s_lshl_b32 s61, s45, 10")
        a("s_add_u32 s60, s60, s61")
        a("s_lshl_b32 s61, s44, 8")
        a("s_add_u32 s60, s60, s61")
        a("v_lshlrev_b32 v27, 11, v13")
        a("v_lshl_add_u32 v27, v12, 4, v27")
        a("v_add_u32 v27, s60, v27")
        a("v_mov_b32 v28, 0xff800000")
        CS = (32 ** -0.5) * 1.4426950408889634
        a(f"s_mov_b32 s61, {fh(CS)}")
        a("s_nop 2")
        a("s_or_b32 s62, s34, s45")
        a("s_cmp_lg_u32 s62, 0")
        for r in range(4): a(f"s_cselect_b64 s[{64+2*r}:{65+2*r}], s[{84+2*r}:{85+2*r}], 0")

    if int(os.environ.get("K1_SPF", "4")) & 4:
        Lsp = a.label("Lsp")
        a("s_lshr_b32 s44, s2, 3")
        if OFL:
            a("s_lshr_b32 s43, s36, 1")
            a("s_lshl_b32 s43, s43, 2")
            a("s_add_u32 s43, s43, s44")
            a("s_lshr_b32 s46, s43, 2")
            a("s_cmp_eq_u32 s46, 3")
            a("s_cselect_b32 s46, 1, 0")
            a("s_lshr_b32 s44, s36, 1")
            a("s_cmp_lg_u32 s46, s44")
            a(f"s_cbranch_scc1 {Lsp}")
            a("s_mov_b32 s44, s43")
        else:
            a("s_cmp_ge_u32 s36, 2")
            a(f"s_cbranch_scc1 {Lsp}")
        if SP2 >= 0:
            a("s_cmp_ge_u32 s2, 128")
            a(f"s_cbranch_scc1 {Lsp}")
        srd(a, 84, 6, 6291456)
        a("s_and_b32 s43, s35, 8")
        a("s_or_b32 s43, s43, 3")
        a("s_lshl_b32 s43, s43, 7")
        a("s_mul_i32 s44, s44, %d" % (32*6144))
        a("s_add_u32 s43, s43, s44")
        a("s_and_b32 s44, s36, 1")
        a("s_lshl_b32 s44, s44, 6")
        a("v_add_u32 v15, s44, v1")
        a("v_min_u32 v15, 95, v15")
        a("v_mul_u32_u24 v16, 21846, v15")
        a("v_lshrrev_b32 v16, 16, v16")
        a("v_mul_u32_u24 v17, 3, v16")
        a("v_sub_u32 v15, v15, v17")
        a("v_mul_u32_u24 v16, 6144, v16")
        a("v_lshl_add_u32 v15, v15, 11, v16")
        a("buffer_load_dword v31, v15, s[84:87], s43 offen")
        a(f"{Lsp}:")
    a("v_lshrrev_b32 v16, 1, v12")
    a("v_xor_b32 v15, v13, v16")
    a("v_lshlrev_b32 v15, 4, v15")
    a("v_lshl_add_u32 v2, v12, 7, v15")
    a("v_xor_b32 v3, 64, v2")
    a(f"v_add_u32 v4, {2*STG1}, v2")
    a(f"v_add_u32 v5, {2*STG1}, v3")
    a("v_lshrrev_b32 v15, 2, v12")
    a("v_and_b32 v16, 3, v1")
    a("v_lshl_add_u32 v19, v13, 3, v15")
    a("v_lshlrev_b32 v19, 7, v19")
    a("v_and_b32 v15, 2, v15")
    a("v_and_b32 v17, 1, v13")
    a("v_lshl_add_u32 v15, v17, 2, v15")
    a("v_lshrrev_b32 v17, 1, v16")
    a("s_lshl_b32 s43, s36, 1")
    a("v_add_u32 v17, s43, v17")
    a("v_xor_b32 v15, v15, v17")
    a("v_lshl_add_u32 v19, v15, 4, v19")
    a("v_and_b32 v16, 1, v16")
    a("v_lshl_add_u32 v19, v16, 3, v19")
    for sl in range(3):
        a(f"v_add_u32 v{6+sl}, {XB_ + sl*STG1}, v19")
    ACC = 128
    def accreg(seg, mt):
        return ACC + 36*seg + 4*mt
    for i in range(108): a(f"v_mov_b32 v{ACC+i}, 0")
    SET = [32, 80]
    def reads(s, kk, base):
        sl = s % NS
        xb = (2 + kk) if sl < 2 else (4 + kk)
        xo = (sl % 2)*STG1 if sl < 2 else 0
        def xr(mt): return f"ds_read_b128 v[{base+4*mt}:{base+4*mt+3}], v{xb} offset:{xo + mt*2048}"
        def wr(sg, h): return f"ds_read_b64_tr_b16 v[{base+36+4*sg+2*h}:{base+36+4*sg+2*h+1}], v{6+sl} offset:{sg*8192 + kk*4096 + h*512}"
        return [xr(0), wr(1,0), wr(1,1), wr(2,0), wr(2,1), wr(0,0), wr(0,1)] + [xr(m) for m in range(1, 9)]
    def mfmas(base):
        r = []
        for mt in range(9):
            for sg in (1, 2, 0):
                acc = accreg(sg, mt)
                r.append(f"v_mfma_f32_16x16x32_bf16 v[{acc}:{acc+3}], v[{base+36+4*sg}:{base+36+4*sg+3}], v[{base+4*mt}:{base+4*mt+3}], v[{acc}:{acc+3}]")
        return r
    def emit(seq):
        for i in seq:
            if "m" in strip and i.startswith("v_mfma"): continue
            if "r" in strip and i.startswith("ds_read"): continue
            a(i)
    att_setup()
    a("s_lshl_b32 s43, s36, 5")
    a("s_add_u32 s43, s43, 16")
    a("v_lshl_add_u32 v10, v12, 1, s43")
    a("v_lshlrev_b32 v10, 7, v10")
    a("v_and_b32 v16, 1, v13")
    a("v_lshlrev_b32 v16, 1, v16")
    a("v_lshrrev_b32 v17, 1, v13")
    a("v_add_u32 v16, v16, v17")
    a("v_and_b32 v17, 7, v12")
    a("v_xor_b32 v16, v16, v17")
    a("v_lshl_add_u32 v10, v16, 4, v10")
    a("s_mov_b32 s42, s35")
    a(f"v_lshlrev_b32 v9, 3, v12")
    a(f"v_add_u32 v9, {RST}, v9")
    a(f"v_mul_u32_u24 v14, {QP}, v12")
    a("v_lshl_add_u32 v14, v13, 3, v14")
    a("s_lshl_b32 s43, s36, 5")
    a("v_add_u32 v14, s43, v14")
    a("s_barrier")
    stamp(a, 1)
    for i in reads(0, 0, SET[0]): a(i)
    def ln_group(mt, sg, pk):
        acc = accreg(sg, mt); r_ = []
        if pk:
            for r in (0, 2):
                r_.append(f"v_pk_fma_f32 v[{acc+r}:{acc+r+1}], v[{32+2*mt}:{33+2*mt}], v[{52+4*sg+r}:{53+4*sg+r}], v[{acc+r}:{acc+r+1}] op_sel_hi:[0,1,1] neg_lo:[1,0,0] neg_hi:[1,0,0]")
            for r in (0, 2):
                r_.append(f"v_pk_mul_f32 v[{acc+r}:{acc+r+1}], v[{32+2*mt}:{33+2*mt}], v[{acc+r}:{acc+r+1}] op_sel:[1,0] op_sel_hi:[1,1]")
        else:
            for r in range(4): r_.append(f"v_fma_f32 v{acc+r}, -v{32+2*mt}, v{52+4*sg+r}, v{acc+r}")
            for r in range(4): r_.append(f"v_mul_f32 v{acc+r}, v{33+2*mt}, v{acc+r}")
        r_.append(f"v_cvt_pk_bf16_f32 v{acc}, v{acc}, v{acc+1}")
        r_.append(f"v_cvt_pk_bf16_f32 v{acc+1}, v{acc+2}, v{acc+3}")
        r_.append(f"ds_write_b64 v14, v[{acc}:{acc+1}] offset:{QKV + mt*16*QP + sg*128}")
        return r_
    GROUPS = [(mt, sg) for mt in range(9) for sg in ((1, 2) if mt == 0 else (0, 1, 2))]
    NEARLY = int(os.environ.get("K1_LNE", "3"))
    bc = [f"v_mov_b32_dpp v{52+4*sg+r}, v{accreg(sg,0)+r} row_newbcast:0 row_mask:0xf bank_mask:0xf" for sg in range(3) for r in range(4)]
    def xres(s):
        L = a.label("Lxr"); R = a.label("Lxb")
        a("s_sub_u32 s42, s42, 1")
        a(f"s_cbranch_scc1 {L}")
        a(f"{R}:")
        COLD.extend([f"{L}:", f"v_add_u32 v15, {(s % NS)*STG1}, v10", "v_xor_b32 v16, 64, v15"] +
                    [f"ds_read_b128 v[{240+(tl*2+kb)*4}:{243+(tl*2+kb)*4}], v{15+kb} offset:{tl*128}" for tl in range(2) for kb in range(2)] + [f"s_branch {R}"])
    def cstage(s, last):
        a("s_waitcnt lgkmcnt(0)")
        seq = interleave(mfmas(SET[0]), reads(s, 1, SET[1]), 0, 1)
        emit(seq[:-4])
        xres(s)
        emit(seq[-4:])
        a("s_waitcnt lgkmcnt(0)")
        a("s_barrier")
        if not last:
            emit(interleave(mfmas(SET[1]), reads(s+1, 0, SET[0]), 0, 1))
            return
        m = mfmas(SET[1])
        emit(interleave(m[:9], [f"ds_read_b64 v[{32+2*mt}:{33+2*mt}], v9 offset:{mt*128}" for mt in range(9)]))
        fill = bc + ["s_waitcnt lgkmcnt(0)"] + sum((ln_group(mt, sg, False) for mt, sg in GROUPS[:NEARLY]), [])
        for i, x in enumerate(m[9:]):
            a(x)
            for y in fill[2*i:2*i+2]: a(y)
        for y in fill[2*len(m[9:]):]: a(y)
    nl = (nst-1)//NS
    a(f"s_mov_b32 s41, {nl}")
    Ll = a.label("Lcl")
    a(f"{Ll}:")
    for s in range(NS): cstage(s, False)
    a("s_sub_u32 s41, s41, 1")
    a("s_cmp_lg_u32 s41, 0")
    a(f"s_cbranch_scc1 {Ll}")
    for s in range(nl*NS, nst): cstage(s, s == nst-1)
    stamp(a, 2)
    for mt, sg in GROUPS[NEARLY:]:
        if ASP and (mt, sg) == (5, 0):
            a("s_waitcnt lgkmcnt(0)")
            a("s_barrier")
        for i in ln_group(mt, sg, True): a(i)
    a("s_waitcnt lgkmcnt(0)")
    a(f"s_branch {Latt}")

    a(";@@PROD")
    def rows_load(srow, dst=96, add=0):
        a(f"s_lshl_b32 s43, s{srow}, 11")
        if add: a(f"s_add_u32 s43, s43, {add*2048}")
        for q in range(4):
            a(f"buffer_load_dwordx4 v[{dst+4*q}:{dst+4*q+3}], v10, s[8:11], s43 offen offset:{q*1024}")
    def rows_stats_l(srcb=96):
        o = []
        R = [116, 118, 120, 122]
        for r in range(2):
            sa, qa = 116+4*r, 118+4*r
            for i in range(8):
                src = srcb + 8*r + i
                t = 124 + 2*(i & 1)
                o.append(f"v_lshlrev_b32 v{t if i else sa}, 16, v{src}")
                o.append(f"v_and_b32 v{t+1 if i else sa+1}, 0xffff0000, v{src}")
                if i == 0:
                    o.append(f"v_mul_f32 v{qa}, v{sa}, v{sa}"); o.append(f"v_mul_f32 v{qa+1}, v{sa+1}, v{sa+1}")
                else:
                    o.append(f"v_add_f32 v{sa}, v{sa}, v{t}"); o.append(f"v_add_f32 v{sa+1}, v{sa+1}, v{t+1}")
                    o.append(f"v_fmac_f32 v{qa}, v{t}, v{t}"); o.append(f"v_fmac_f32 v{qa+1}, v{t+1}, v{t+1}")
        for x in R: o.append(f"v_add_f32 v{x}, v{x}, v{x+1}")
        for sh in (8, 4, 2, 1):
            for x in R: o.append(f"v_add_f32_dpp v{x}, v{x}, v{x} row_ror:{sh} row_mask:0xf bank_mask:0xf")
        for sw in ("16", "32"):
            for x in R: o.append(f"v_mov_b32 v{x+1}, v{x}")
            o.append("s_nop 0")
            for x in R: o.append(f"v_permlane{sw}_swap_b32 v{x}, v{x+1}")
            for x in R: o.append(f"v_add_f32 v{x}, v{x}, v{x+1}")
        for r in range(2):
            sv, qv, d = 116+4*r, 118+4*r, 112+2*r
            o.append(f"v_mul_f32 v{d}, 0x3a800000, v{sv}")
            o.append(f"v_mul_f32 v{d+1}, 0x3a800000, v{qv}")
            o.append(f"v_fma_f32 v{d+1}, -v{d}, v{d}, v{d+1}")
            o.append(f"v_max_f32 v{d+1}, 0, v{d+1}")
            o.append(f"v_add_f32 v{d+1}, 0x3727c5ac, v{d+1}")
            o.append(f"v_rsq_f32 v{d+1}, v{d+1}")
        o.append("s_nop 0")
        return o
    def rows_stats(part=None):
        l = rows_stats_l()
        for i in (l if part is None else l[len(l)*part//3:len(l)*(part+1)//3]): a(i)
    def rows_local():
        a("s_lshl_b32 s43, s47, 4")
        a(f"s_add_u32 s43, s43, {LST}")
        a("v_mov_b32 v11, s43")
        a("ds_write_b128 v11, v[112:115]")
        a("s_waitcnt lgkmcnt(0)")
    HYB = os.environ.get("K1_PF", "mall1") == "hyb"
    def wpre(s):
        if not HYB or s > 4: return
        if s == 0:
            a("s_mul_i32 s43, s2, 10752")
            a("s_mul_i32 s44, s47, 2688")
            a("s_add_u32 s43, s43, s44")
            a(f"s_add_u32 s43, s43, {576*6144}")
            a("s_add_u32 s82, s6, s43")
            a("s_addc_u32 s83, s7, 0")
        lo = [0, 10, 18, 26, 34, 42]
        for q in range(lo[s], lo[s+1]): a(f"s_load_dword s{64 + q % 16}, s[82:83], {64*q}")
    def spre_setup():
        if not NPS: return
        Lj = a.label("Lsj")
        cs_sbase(a, Lj, 80, 47)
        a(f"{Lj}:")
    def spre(n=2): cs_spre(a, n)
    def dma(slot, lo=0, hi=14):
        xs, ws = [], []
        for i in range(6):
            g = [f"s_add_u32 m0, s39, {slot*STG1 + i*3072}", "s_mov_b64 exec, s[60:61]" if i == 0 else "s_nop 0",
                 f"buffer_load_dwordx4 v{4+i}, s[8:11], s37 offen lds"]
            if i == 0: g.append("s_mov_b64 exec, -1")
            xs.append(g)
        for j in range(8):
            ws.append([f"s_add_u32 m0, s40, {slot*STG1 + j*1024}", f"s_add_u32 s43, s38, {8*j*6144}",
                       f"buffer_load_dwordx4 v{2+(j&1)}, s[12:15], s43 offen lds"])
        gs = interleave(ws, xs) if int(os.environ.get("K1_ILV", "0")) else xs + ws
        for g in gs[lo:hi]:
            for i in g: a(i)
        if hi == 14:
            a("s_add_u32 s37, s37, 128")
            a(f"s_add_u32 s38, s38, {64*6144}")
    stamp(a, 1)
    E0 = int(os.environ.get("K1_E0", "14"))
    dma(0); dma(1, 0, E0)
    stamp(a, 2)
    a(f"s_waitcnt vmcnt({E0})")
    a("s_barrier")
    if E0 < 14: dma(1, E0, 14)
    dma(2)
    RW = int(os.environ.get("K1_RW", "0"))
    SPEC2 = int(os.environ.get("SPEC2", "1"))
    PO2 = int(os.environ.get("PO2", "3")) if SPEC2 else -9
    PON = int(os.environ.get("PON", "6"))
    POI = int(os.environ.get("POI", "6")) if int(os.environ.get("SPEC3", "1")) else -9
    def pstage(s, do_dma, vm, extra=None):
        if do_dma: dma((s+2) % NS)
        if s == RW: rows_load(51)
        if s in (RW+2, RW+3, RW+4): rows_stats(s - RW - 2)
        if s == RW+4: rows_local()
        if s == 0: spre_setup()
        if s == min(x for x in (POI, PO2) if x >= 0) if max(POI, PO2) >= 0 else False:
            for i in range(4): a(f"v_mov_b32 v{128+i}, -1")
        if s == POI: srd(a, 24, 16, 16384, add_imm=WS_H - WS_O)
        if s in (POI, PO2): a("s_mul_i32 s28, s47, 5120")
        npo = lambda t: 6//PON if POI <= t < POI + PON else 2 if PO2 <= t < PO2 + 3 else 0
        for q in range(npo(s)):
            a(f"buffer_store_dwordx4 v[128:131], v10, s[{24 if s >= POI >= 0 else 16}:{27 if s >= POI >= 0 else 19}], s28 offen sc1")
            a("s_add_u32 s28, s28, 1024")
        if vm is not None: vm += npo(s) + npo(s-1)
        wpre(s)
        if max(SPS, RW+4) <= s <= SPE: spre()
        if vm is not None: a(f"s_waitcnt vmcnt({vm + (4 if s == RW else 0)})")
        a("s_barrier")
    for s in range(14): pstage(s, s > 0, 14)
    pstage(14, False, 0)
    pstage(15, False, None)
    Lw4 = a.label("Lx"); Lw5 = a.label("Lx"); Lwe = a.label("Lx")
    a("s_cmp_eq_u32 s47, 0")
    a(f"s_cbranch_scc1 {Lw4}")
    a("s_cmp_eq_u32 s47, 1")
    a(f"s_cbranch_scc1 {Lw5}")
    warm_jump(a, ("Lp", 2))
    a(f"s_branch {Lwe}")
    a(f"{Lw5}:")
    warm_jump(a, ("Lp", 1))
    a(f"s_branch {Lwe}")
    a(f"{Lw4}:")
    warm_jump(a, ("LG1", 0))
    a(f"{Lwe}:")
    a("s_waitcnt lgkmcnt(0)")
    att_setup()
    a(f"s_branch {Latt1}")

    a(";@@W7")
    a(f"{Lpf}:")
    PFM = os.environ.get("K1_PF", "mall1")
    PF = PFM == "l2"
    a(f"s_load_dwordx2 s[26:27], s[0:1], {KA_DBG}")
    Lz = a.label("Lz")
    a("s_or_b32 s43, s34, s35")
    a("s_cmp_lg_u32 s43, 0")
    a(f"s_cbranch_scc1 {Lz}")
    flag_srd(a, 84)
    a("v_lshlrev_b32 v14, 7, v1")
    a("v_mov_b32 v36, 0")
    a("v_mov_b32 v37, 0")
    for q in range(5):
        a(f"s_mov_b32 s43, {q*8192}")
        a("buffer_store_dwordx2 v[36:37], v14, s[84:87], s43 offen sc1")
    a(f"{Lz}:")
    if RW == 0: rows_load(51)
    a("v_min_u32 v14, 23, v1")
    a("v_lshrrev_b32 v15, 3, v14")
    a(f"v_mul_u32_u24 v15, {STG1}, v15")
    a("v_and_b32 v14, 7, v14")
    a("v_lshl_add_u32 v15, v14, 4, v15")
    for i in range(4): a(f"v_mov_b32 v{32+i}, 0x3f803f80")
    a("ds_write_b128 v15, v[32:35]")
    PER = 64 // MX
    NPI = (3*PER + 63) // 64
    for q in range(NPI):
        a(f"v_add_u32 v14, {64*q}, v1")
        a(f"v_min_u32 v14, {3*PER-1}, v14")
        a("v_mul_u32_u24 v15, 21846, v14")
        a("v_lshrrev_b32 v15, 16, v15")
        a("v_mul_u32_u24 v16, 3, v15")
        a("v_sub_u32 v16, v14, v16")
        a(f"s_mul_i32 s43, s48, {PER}")
        a("v_add_u32 v15, s43, v15")
        a("v_mul_u32_u24 v15, 6144, v15")
        a(f"v_lshl_add_u32 v{2+q}, v16, 11, v15")
    vm = []
    def wait_for(tag):
        idx = max(i for i, t in enumerate(vm) if t == tag)
        a(f"s_waitcnt vmcnt({len(vm) - 1 - idx})")
    def l2pf(st):
        if not PF or st >= nst: return
        a(f"s_mov_b32 s43, {st*64*6144}")
        for q in range(NPI):
            a(f"buffer_load_dword v31, v{2+q}, s[12:15], s43 offen"); vm.append("pf")
    a("s_waitcnt lgkmcnt(0)")
    srd(a, 56, 26, 256)
    a("v_lshlrev_b32 v14, 7, v1")
    vm.append("rows")
    def mallpf():
        srd(a, 84, 6, 6291456)
        if OFL:
            a("s_cmp_lt_u32 s2, 32")
            a("s_cselect_b32 s43, 96, 0")
            a("s_add_u32 s43, s43, s2")
            a("s_mul_i32 s43, s43, 24576")
        else: a("s_mul_i32 s43, s2, 24576")
        for q in range(3):
            a(f"buffer_load_dword v31, v14, s[84:87], s43 offen"); vm.append("pf")
            if q < 2: a("s_add_u32 s43, s43, 8192")
    def slowpf(which=None):
        srd(a, 84, 6, 6291456)
        a("s_lshr_b32 s44, s2, 3")
        if (SPF if which is None else which) & 1:
            a("s_and_b32 s43, s35, 8")
            a("s_or_b32 s43, s43, 3")
            a("s_lshl_b32 s43, s43, 7")
            a("s_mul_i32 s45, s44, %d" % (32*6144))
            a("s_add_u32 s43, s43, s45")
            for q in range(2):
                a(f"v_add_u32 v15, {64*q}, v1")
                a("v_min_u32 v15, 95, v15")
                a("v_mul_u32_u24 v16, 21846, v15")
                a("v_lshrrev_b32 v16, 16, v16")
                a("v_mul_u32_u24 v17, 3, v16")
                a("v_sub_u32 v15, v15, v17")
                a("v_mul_u32_u24 v16, 6144, v16")
                a("v_lshl_add_u32 v15, v15, 11, v16")
                a("buffer_load_dword v31, v15, s[84:87], s43 offen"); vm.append("pf")
        if (SPF if which is None else which) & 2:
            a("s_xor_b32 s43, s63, 64")
            a("s_lshl_b32 s43, s43, 11")
            a("buffer_load_dword v31, v14, s[8:11], s43 offen"); vm.append("pf")
            a("s_add_u32 s43, s43, 8192")
            a("buffer_load_dword v31, v14, s[8:11], s43 offen"); vm.append("pf")
    SPF = int(os.environ.get("K1_SPF", "4"))
    SPAT = int(os.environ.get("K1_SPAT", "0"))
    if PFM == "mall0": mallpf()
    if SPAT < 0: slowpf()
    stampc(a, "k1", 0)
    a("s_barrier")
    def mallpf2():
        srd(a, 84, 6, 6291456)
        a("s_mul_i32 s43, s2, 9216")
        a(f"s_add_u32 s43, s43, {192*6144}")
        a("buffer_load_dword v31, v14, s[84:87], s43 offen"); vm.append("pf")
        a("v_min_u32 v15, 7, v1")
        a("v_lshlrev_b32 v15, 7, v15")
        a("s_add_u32 s43, s43, 8192")
        a("buffer_load_dword v31, v15, s[84:87], s43 offen"); vm.append("pf")
    if PFM == "hyb": mallpf2()
    MST = int(os.environ.get("K1_MST", "1"))
    if PFM == "mall1" and not MST: mallpf()
    stampc(a, "k1", 1)
    GD = int(os.environ.get("K1_GD", "2"))
    GS = int(os.environ.get("K1_GS", "10" if RW < 2 else "11"))
    SS = int(os.environ.get("K1_SS", str(max(7 + RW, PO2 + 5))))
    assert PO2 + 2 <= SS - 3 and (POI < 0 or PO2 + 3 <= POI)
    PFN = int(os.environ.get("K1_PFN", "4"))
    CS0 = int(os.environ.get("K1_CS0", "14")); WOP = int(os.environ.get("K1_WOP", "13")); WOM = os.environ.get("K1_WOM", "mall")
    Lgd = a.label("Lgd")
    nxt = [3]
    for s in range(nst):
        if PFM == "mall1" and MST and s in (0, MST):
            Lm = a.label("Lm")
            a("s_cmp_ge_u32 s2, 128")
            a(f"s_cbranch_scc{1 if s == 0 else 0} {Lm}")
            if OFL and s == 0:
                a("s_lshr_b32 s44, s2, 4")
                a("s_cmp_eq_u32 s44, 2")
                a(f"s_cbranch_scc1 {Lm}")
                a("s_lshr_b32 s44, s2, 5")
                a("s_cmp_eq_u32 s44, 3")
                a(f"s_cbranch_scc1 {Lm}")
            n0 = len(vm); mallpf(); del vm[n0:]
            a(f"{Lm}:")
        if s in ICW:
            code_warm(a, 88); vm.append("pf")
        if s == SP2 and SPF & 4:
            Lm = a.label("Lm")
            a("s_cmp_lt_u32 s2, 128")
            a(f"s_cbranch_scc1 {Lm}")
            n0 = len(vm); slowpf(1); del vm[n0:]
            a(f"{Lm}:")
        if s == SPAT: slowpf()
        if s == 0: spre_setup()
        if s == RW and RW > 0:
            rows_load(51); vm.extend(["rows"]*4)
        if s == 2:
            Lz = a.label("Lz")
            a("s_or_b32 s43, s34, s35")
            a("s_cmp_lg_u32 s43, 0")
            a(f"s_cbranch_scc1 {Lz}")
            a("s_waitcnt vmcnt(0)")
            a("v_mov_b32 v5, 1")
            a("v_mov_b32 v6, 0")
            a("s_mov_b64 exec, 1")
            a("buffer_store_dword v5, v6, s[56:59], 0 offen sc1")
            a("s_mov_b64 exec, -1")
            a(f"{Lz}:")
        if s == RW + 2:
            wait_for("rows")
            rows_stats(0)
        if s == RW + 3: rows_stats(1)
        if s == RW + 4:
            rows_stats(2); rows_local()
        if s == RW + 5:
            a("v_lshlrev_b32 v5, 4, v1")
            a("v_and_b32 v5, 63, v5")
            a(f"v_add_u32 v6, {LST}, v5")
            a("ds_read_b128 v[112:115], v6")
            a("s_lshl_b32 s43, s63, 3")
            a("v_add_u32 v5, s43, v5")
            a("s_waitcnt lgkmcnt(0)")
            a("s_mov_b64 exec, 15")
            a(f"buffer_store_dwordx4 v[112:115], v5, s[20:23], 0 offen sc1"); vm.append("store")
            a("s_mov_b64 exec, -1")
        if s < SS - 2:
            for q in range(PFN):
                l2pf(nxt[0]); nxt[0] += 1
        if s == int(os.environ.get("K1_X11", "99")):
            a(f"s_andn2_b32 s43, s34, {MX-1}")
            a("s_lshl_b32 s43, s43, 7")
            a("s_lshr_b32 s44, s2, 3")
            a("s_mul_i32 s44, s44, 17")
            a("s_add_u32 s43, s43, s44")
            a("s_sub_u32 s43, s43, 16")
            a("v_min_u32 v15, 16, v1")
            a("v_add_u32 v15, s43, v15")
            a("v_max_i32 v15, 0, v15")
            a("v_lshlrev_b32 v15, 11, v15")
            a("buffer_load_dword v31, v15, s[8:11], 0 offen offset:1408"); vm.append("pf")
        if s == WOP:
            if WOM == "l2":
                n = pf_w64(a, KA_WO, 1024, list(range(16//MX)), 84, 29, 30); vm.extend(["pf"]*n)
            elif WOM == "mall":
                a(f"s_load_dwordx2 s[88:89], s[0:1], {KA_WO}")
                a("v_lshlrev_b32 v29, 7, v1")
                a("s_lshl_b32 s43, s2, 13")
                a("s_waitcnt lgkmcnt(0)")
                srd(a, 84, 88, 2097152)
                a("buffer_load_dword v30, v29, s[84:87], s43 offen"); vm.append("pf")
                if int(os.environ.get("K2_SPF", "1")):
                    a("v_and_b32 v29, 31, v1")
                    a("v_lshlrev_b32 v29, 11, v29")
                    a("s_and_b32 s43, s35, 8")
                    a("s_or_b32 s43, s43, 3")
                    a("s_lshl_b32 s43, s43, 7")
                    a("s_lshr_b32 s44, s2, 3")
                    a("s_lshl_b32 s44, s44, 16")
                    a("s_add_u32 s43, s43, s44")
                    a("buffer_load_dword v30, v29, s[84:87], s43 offen"); vm.append("pf")
        if s == SS - 2:
            a("v_mov_b32 v7, 0")
            a("v_mov_b32 v9, 1")
            a("buffer_load_dword v8, v7, s[56:59], 0 offen sc1"); vm.append("z")
        if s == SS:
            flag_poll_finish(a, 56, v=7)
            flag_srd(a, 56)
            flag_signal(a, 56, "ln", 34); vm.append("at")
        if s == GS:
            a("s_sub_u32 s44, s34, 1")
            a("s_max_i32 s44, s44, 0")
            a("v_mov_b32 v5, s44")
            a("v_mov_b32 v6, s34")
            a("v_cmp_eq_u32 vcc, 0, v1")
            a("s_nop 1")
            a("v_cndmask_b32 v5, v5, v6, vcc")
            a(f"v_add_u32 v5, {FLG['ln'][0]}, v5")
            a("v_lshlrev_b32 v5, 7, v5")
            a("buffer_load_dword v6, v5, s[56:59], 0 offen sc1"); vm.append("poll")
        if s == GS + 2:
            a("v_mov_b32 v7, 16")
            flag_poll_finish(a, 56, v=5, first=len(vm) - 1 - max(i for i, t in enumerate(vm) if t == "poll"))
            for q in range(3):
                a(f"v_add_u32 v5, {64*q}, v1")
                a("v_min_u32 v5, 143, v5")
                a(f"v_lshlrev_b32 v{20+q}, 3, v5")
                a("v_add_u32 v5, s50, v5")
                a("v_max_i32 v5, 0, v5")
                a("v_lshlrev_b32 v5, 3, v5")
                a(f"buffer_load_dwordx2 v[{32+2*q}:{33+2*q}], v5, s[20:23], 0 offen sc1"); vm.append("gather")
        if s == GS + 2 + GD:
            wait_for("gather")
            for q in range(3):
                a(f"v_add_u32 v{20+q}, {RST}, v{20+q}")
                a(f"ds_write_b64 v{20+q}, v[{32+2*q}:{33+2*q}]")
            a("s_waitcnt lgkmcnt(0)")
        if s in (CS0, CS0+1):
            Lnj = a.label("Lnj")
            cs_setup(a, Lnj, 84, 28)
            for q in range(16*(s-CS0), 16*(s-CS0+1)): cs_issue(a, q, 84, 28)
            a(f"{Lnj}:")
        if STAMPC != "k1": wpre(s)
        if max(RW + 5, SPS) <= s <= (11 if CSM == "d" else SPE) and STAMPC != "k1": spre()
        a("s_barrier")
        stampc(a, "k1", s+2)
    stampc(a, "k1", 18)
    warm_jump(a, ("L7", 0))
    warm_jump(a, ("Lnojob", 0))
    if ASP: warm_jump(a, ("Latt", 1))
    a("s_waitcnt lgkmcnt(0)")
    att_setup()

    def attention(mid):
        a("s_barrier")
        stampc(a, "k1", 19)
        stamp(a, 3)
        U = 32*QP
        for u in range(2):
            B = 32 + 48*u
            uo = u*U
            a(f"ds_read_b128 v[{B}:{B+3}], v20 offset:{QKV + uo}")
            a(f"ds_read_b128 v[{B+4}:{B+7}], v20 offset:{QKV + uo + 128}")
            if u == 0: a(f"ds_read_b128 v[{B+8}:{B+11}], v21 offset:{QKV + 128}")
            else: a(f"ds_read_b128 v[{B+8}:{B+11}], v20 offset:{QKV + 128}")
        for u in range(2):
            B = 32 + 48*u
            uo = u*U
            for dh in range(2):
                if u == 0: a(f"ds_read_b64_tr_b16 v[{B+12+4*dh}:{B+13+4*dh}], v23 offset:{QKV + 256 + dh*32}")
                else: a(f"ds_read_b64_tr_b16 v[{B+12+4*dh}:{B+13+4*dh}], v22 offset:{QKV + 256 + dh*32}")
                a(f"ds_read_b64_tr_b16 v[{B+14+4*dh}:{B+15+4*dh}], v22 offset:{QKV + uo + 256 + dh*32}")
        for u in range(2):
            B = 32 + 48*u
            a(f"s_waitcnt lgkmcnt({11 if u == 0 else 8})")
            a(f"v_mfma_f32_16x16x32_bf16 v[{B+20}:{B+23}], v[{B+8}:{B+11}], v[{B}:{B+3}], 0")
            a(f"v_mfma_f32_16x16x32_bf16 v[{B+24}:{B+27}], v[{B+4}:{B+7}], v[{B}:{B+3}], 0")
        a("s_nop 7")
        def soft(u):
            B = 32 + 48*u
            S = B + 20; M = B + 28; T = B + 29; P = B + 32
            r_ = []
            am = 64 if u == 0 else 84
            for r in range(4): r_.append(f"v_cndmask_b32 v{S+r}, v28, v{S+r}, s[{am+2*r}:{am+2*r+1}]")
            for r in range(4): r_.append(f"v_cndmask_b32 v{S+4+r}, v28, v{S+4+r}, s[{52+2*r}:{53+2*r}]")
            r_.append(f"v_max3_f32 v{M}, v{S}, v{S+1}, v{S+2}")
            r_.append(f"v_max3_f32 v{T}, v{S+3}, v{S+4}, v{S+5}")
            r_.append(f"v_max3_f32 v{M}, v{M}, v{S+6}, v{S+7}")
            r_.append(f"v_max_f32 v{M}, v{M}, v{T}")
            for sw in ("32", "16"):
                r_.append(f"v_mov_b32 v{T}, v{M}")
                r_.append("s_nop 0")
                r_.append(f"v_permlane{sw}_swap_b32 v{M}, v{T}")
                r_.append(f"v_max_f32 v{M}, v{M}, v{T}")
            r_.append(f"v_mul_f32 v{M}, s61, v{M}")
            for r in range(8): r_.append(f"v_fma_f32 v{S+r}, v{S+r}, s61, -v{M}")
            for r in range(8): r_.append(f"v_exp_f32 v{S+r}, v{S+r}")
            for q in range(4): r_.append(f"v_cvt_pk_bf16_f32 v{P+q}, v{S+2*q}, v{S+2*q+1}")
            return r_
        def zip2(x, y):
            for i, j in zip(x, y):
                a(i)
                if not (i == j and i.startswith("s_nop")): a(j)
        s0, s1 = soft(0), soft(1); cut = int(os.environ.get("K1_ASC", "30")) if mid else 0
        zip2(s0[:cut], s1[:cut])
        if mid: a("s_barrier")
        zip2(s0[cut:], s1[cut:])
        a("s_waitcnt lgkmcnt(0)")
        for u in range(2):
            B = 32 + 48*u
            for dh in range(2):
                a(f"v_mfma_f32_16x16x32_bf16 v[{B+36+4*dh}:{B+39+4*dh}], v[{B+12+4*dh}:{B+15+4*dh}], v[{B+32}:{B+35}], 0")
        a(f"s_load_dwordx4 s[4:7], s[0:1], {KA_WG}")
        a(f"s_load_dwordx2 s[28:29], s[0:1], {KA_WO}")
        a(f"s_load_dwordx4 s[60:63], s[0:1], {KA_WD}")
        def rsum(u):
            B = 32 + 48*u
            S = B + 20; M = B + 28; T = B + 29
            r_ = [f"v_add_f32 v{M}, v{S}, v{S+1}", f"v_add_f32 v{T}, v{S+2}, v{S+3}", f"v_add_f32 v{S+4}, v{S+4}, v{S+5}", f"v_add_f32 v{S+6}, v{S+6}, v{S+7}",
                  f"v_add_f32 v{M}, v{M}, v{T}", f"v_add_f32 v{S+4}, v{S+4}, v{S+6}", f"v_add_f32 v{M}, v{M}, v{S+4}"]
            for sw in ("32", "16"):
                r_.append(f"v_mov_b32 v{T}, v{M}")
                r_.append("s_nop 0")
                r_.append(f"v_permlane{sw}_swap_b32 v{M}, v{T}")
                r_.append(f"v_add_f32 v{M}, v{M}, v{T}")
            r_.append(f"v_rcp_f32 v{M}, v{M}")
            return r_
        zip2(rsum(0), rsum(1))
        a("s_nop 0")
        for u in range(2):
            B = 32 + 48*u
            M = B + 28; O = B + 36
            for r in range(0, 8, 2): a(f"v_pk_mul_f32 v[{O+r}:{O+r+1}], v[{M}:{M+1}], v[{O+r}:{O+r+1}] op_sel_hi:[0,1]")
            for q in range(4): a(f"v_cvt_pk_bf16_f32 v{O+q}, v{O+2*q}, v{O+2*q+1}")
            a(f"buffer_store_dwordx4 v[{O}:{O+3}], v27, s[16:19], 0 offen offset:{512*u} sc1")
        stamp(a, 4)

    if ASP:
        Lend = a.label("Lk1e")
        a(f"{Latt1}:")
        attention(True)
        a(f"s_branch {Lend}")
        a(f"{Latt}:")
        attention(False)
        a(f"{Lend}:")
    else:
        a(f"{Latt1}:")
        a(f"{Latt}:")
        attention(False)
    ic, ip, iw = a.L.index(";@@CONS"), a.L.index(";@@PROD"), a.L.index(";@@W7")
    a.L[ic:iw] = a.L[ip:iw] + a.L[ic:ip]
```

```python
import os, struct
from common import *

def fh(x): return "0x%08x" % struct.unpack("<I", struct.pack("<f", x))[0]
def env(k, d): return int(os.environ.get(k, str(d)))

C0_ = -2.0*0.7978845608028654*1.4426950408889634
C1_ = C0_*0.044715
NBM = env("NBM", 2)
XF = os.environ.get("XF", " sc1")
SET = [32, 80]
ACC = 128
NST4 = 56


class VM:
    def __init__(self, a): self.a = a; self.q = []
    def add(self, tag, n=1): self.q += [tag]*n
    def cnt(self, tag):
        idx = max(i for i, t in enumerate(self.q) if t == tag)
        return len(self.q) - 1 - idx
    def wait(self, tag):
        return f"s_waitcnt vmcnt({min(63, self.cnt(tag))})"
    def reset(self): self.q = []


def spread(main, items, frac=100):
    if frac < 100:
        c = len(main)*frac//100
        return spread(main[:c], items) + main[c:]
    out = []
    n, k = len(main), len(items)
    j = 0
    for i in range(n + 1):
        while j < k and j*n <= i*k:
            out += items[j]; j += 1
        if i < n: out.append(main[i])
    while j < k: out += items[j]; j += 1
    return out


def lane_ig(a):
    a("v_and_b32 v17, 15, v1")
    a("v_lshrrev_b32 v18, 4, v1")


def g2_addrs():
    r = []
    r.append("v_lshlrev_b32 v19, 11, v18")
    r.append("v_lshl_add_u32 v19, v17, 4, v19")
    r.append("s_lshl_b32 s43, s36, 9")
    r.append("v_add_u32 v2, s43, v19")
    r.append(f"v_add_u32 v3, {REG}, v2")
    r.append(f"v_add_u32 v4, {2*REG}, v2")
    r.append("v_lshrrev_b32 v19, 2, v17")
    r.append("v_lshl_add_u32 v20, v18, 2, v19")
    r.append("v_bfe_u32 v21, v20, 1, 2")
    r.append("v_lshlrev_b32 v20, 7, v20")
    r.append("v_lshl_add_u32 v20, v21, 5, v20")
    r.append("v_and_b32 v19, 3, v1")
    r.append("v_lshl_add_u32 v20, v19, 3, v20")
    r.append("v_add_u32 v5, 16384, v20")
    for t in range(1, 4): r.append(f"v_xor_b32 v{5+t}, {32*t}, v5")
    for rg in range(1, 3):
        for t in range(4): r.append(f"v_add_u32 v{5+4*rg+t}, {rg*REG}, v{5+t}")
    return r

def g2_reads(slot, base):
    rg, so = slot >> 1, (slot & 1)*SLOT
    def xr(kb, tl): return f"ds_read_b128 v[{base+(kb*2+tl)*4}:{base+(kb*2+tl)*4+3}], v{2+rg} offset:{so + kb*8192 + tl*256}"
    def wr(kb, t, h):
        d = base + 16 + (kb*4+t)*4 + 2*h
        return f"ds_read_b64_tr_b16 v[{d}:{d+1}], v{5+4*rg+t} offset:{so + kb*4096 + h*2048}"
    r = []
    for kb in range(2):
        r += [xr(kb, 0), wr(kb, 0, 0), wr(kb, 0, 1), wr(kb, 1, 0), wr(kb, 1, 1), xr(kb, 1), wr(kb, 2, 0), wr(kb, 2, 1), wr(kb, 3, 0), wr(kb, 3, 1)]
    return r

def g2_mfmas(base):
    r = []
    for kb in range(2):
        for tl in range(2):
            for t in range(4):
                acc = ACC + (tl*4+t)*4
                w = base + 16 + (kb*4+t)*4; x = base + (kb*2+tl)*4
                r.append(f"v_mfma_f32_16x16x32_bf16 v[{acc}:{acc+3}], v[{w}:{w+3}], v[{x}:{x+3}], v[{acc}:{acc+3}]")
    return r

def g2_stage(a, s, slot_next, pre=None):
    a("s_waitcnt lgkmcnt(0)" if pre is None else f"s_waitcnt vmcnt({pre}) lgkmcnt(0)")
    a("s_barrier")
    m = g2_mfmas(SET[s & 1])
    rd = [] if slot_next is None else g2_reads(slot_next, SET[(s+1) & 1])
    k = 0
    for i in range(16):
        a(m[i])
        for q in range(2 if i < 6 else 1):
            if k < len(rd): a(rd[k]); k += 1

def g2_loop(a, s0, nst, off, pres={}):
    s = s0
    while s in pres or (s % 6 != 0 and False):
        g2_stage(a, s, (s+1+off) % 6, pres[s]); s += 1
    nl = (nst - 1 - s)//6
    if nl > 0:
        L = a.label("Lg2")
        a(f"s_mov_b32 s41, {nl}")
        a(f"{L}:")
        for q in range(6): g2_stage(a, s+q, (s+q+1+off) % 6)
        a("s_sub_u32 s41, s41, 1")
        a("s_cmp_lg_u32 s41, 0")
        a(f"s_cbranch_scc1 {L}")
        s += 6*nl
    while s < nst:
        g2_stage(a, s, None if s == nst-1 else (s+1+off) % 6); s += 1


def k2_addrs():
    r = g2_addrs()
    r = [i for i in r if not i.startswith("v_add_u32 v3,")][:16]
    r = [i.replace("v_add_u32 v5, 16384,", "v_add_u32 v5, 0x10000,") for i in r]
    return r + [f"v_add_u32 v{9+t}, 0x10000, v{5+t}" for t in range(4)]
def k2_reads(s):
    base = SET[s & 1]; xo = (s % 4)*16384; ws = s % 10
    def xr(kb, tl): return f"ds_read_b128 v[{base+(kb*2+tl)*4}:{base+(kb*2+tl)*4+3}], v2 offset:{xo + kb*8192 + tl*256}"
    def wr(kb, t, h):
        d = base + 16 + (kb*4+t)*4 + 2*h
        return f"ds_read_b64_tr_b16 v[{d}:{d+1}], v{5 + 4*(ws >> 3) + t} offset:{(ws & 7)*8192 + kb*4096 + h*2048}"
    r = []
    for kb in range(2):
        r += [xr(kb, 0), wr(kb, 0, 0), wr(kb, 0, 1), wr(kb, 1, 0), wr(kb, 1, 1), xr(kb, 1), wr(kb, 2, 0), wr(kb, 2, 1), wr(kb, 3, 0), wr(kb, 3, 1)]
    return r
def k2_items(s, isw, vA=23):
    m0 = 65536 - 16384 + (s % 10)*8192 if isw else (s % 4)*16384
    r = [[f"s_add_u32 m0, s39, {m0 + k*1024}", "s_add_u32 s37, s37, s38", f"buffer_load_dwordx4 v{vA}, s[8:11], s37 offen{XF} lds"] for k in range(8)]
    r[0] = ["s_add_u32 s42, s42, 1", "s_and_b32 s42, s42, 15", r[0][0], f"s_lshl_b32 s37, s42, {17 if isw else 14}", r[0][2]]
    return r


def k3_addrs(nj, t0):
    r = []
    r.append("v_lshlrev_b32 v19, 11, v18")
    r.append("v_lshl_add_u32 v19, v17, 4, v19")
    r.append("s_lshl_b32 s43, s46, 10")
    r.append("v_add_u32 v2, s43, v19")
    r.append(f"v_add_u32 v3, {REG}, v2")
    r.append(f"v_add_u32 v4, {2*REG}, v2")
    r.append("v_lshrrev_b32 v19, 2, v17")
    r.append("v_lshl_add_u32 v20, v18, 2, v19")
    r.append("v_and_b32 v21, 7, v20")
    r.append("v_lshlrev_b32 v20, 8, v20")
    r.append("v_and_b32 v19, 3, v1")
    r.append("v_lshl_add_u32 v20, v19, 3, v20")
    for j in range(nj):
        r.append(f"s_add_u32 s43, s{t0}, {j}")
        r.append("v_xor_b32 v19, s43, v21")
        r.append(f"v_lshl_add_u32 v{5+j}, v19, 5, v20")
    for rg in range(1, 3):
        for j in range(nj): r.append(f"v_add_u32 v{5+4*rg+j}, {rg*REG}, v{5+j}")
    return r

def k3_acc(nj, mat, j, tl): return ACC + ((mat*nj + j)*4 + tl)*4

def k3_reads(nj, sig, kk, base):
    rg = (sig + 2) % 3
    def xr(tl): return f"ds_read_b128 v[{base+4*tl}:{base+4*tl+3}], v{2+rg} offset:{kk*8192 + tl*256}"
    def wr(mat, j, h):
        d = base + 16 + (mat*nj+j)*4 + 2*h
        return f"ds_read_b64_tr_b16 v[{d}:{d+1}], v{5+4*rg+j} offset:{16384*(1+mat) + kk*8192 + h*4096}"
    r = [xr(0), wr(0, 0, 0), wr(0, 0, 1), xr(1), xr(2), xr(3), wr(1, 0, 0), wr(1, 0, 1)]
    for j in range(1, nj): r += [wr(0, j, 0), wr(0, j, 1), wr(1, j, 0), wr(1, j, 1)]
    return r

def k3_mfmas(nj, base):
    r = []
    order = [(j, mat, tl) for j in range(nj) for mat in range(2) for tl in range(4)]
    if env("MORD", 2) == 1: order = [(j, mat, tl) for tl in range(4) for j in range(nj) for mat in range(2)]
    if env("MORD", 2) == 2:
        order = [(j, mat, tl if (2*j + mat) % 2 == 0 else 3 - tl) for j in range(nj) for mat in range(2) for tl in range(4)]
    for (j, mat, tl) in order:
        if True:
            if True:
                acc = k3_acc(nj, mat, j, tl)
                w = base + 16 + (mat*nj+j)*4; x = base + 4*tl
                r.append(f"v_mfma_f32_16x16x32_bf16 v[{acc}:{acc+3}], v[{w}:{w+3}], v[{x}:{x+3}], v[{acc}:{acc+3}]")
    return r

def chk_ops(regs, t=19):
    r = [f"v_max3_u32 v{t}, v{regs[0]}, v{regs[1]}, v{regs[2]}"]
    rest = regs[3:]
    while len(rest) >= 2:
        r.append(f"v_max3_u32 v{t}, v{t}, v{rest[0]}, v{rest[1]}"); rest = rest[2:]
    if rest: r.append(f"v_max_u32 v{t}, v{t}, v{rest[0]}")
    r.append(f"v_cmp_eq_u32 vcc, -1, v{t}")
    return r
def chk_fix(a, regs, pre, loads):
    Lo = a.label("Lok"); Lr = a.label("Lre"); Lf = a.label("Lfx")
    a(f"s_cbranch_vccnz {Lf}")
    a(f"{Lo}:")
    COLD.extend([f"{Lf}:"] + pre + ["s_mov_b32 s45, 0x20000", f"{Lr}:"] + loads + ["s_waitcnt vmcnt(0)"] + chk_ops(regs) +
                ["s_sub_u32 s45, s45, 1", "s_cmp_eq_u32 s45, 0", f"s_cbranch_scc1 {Lo}", "s_nop 2", f"s_cbranch_vccnz {Lr}", f"s_branch {Lo}"])
def k3_fix(a, sig, kk, base):
    chk_fix(a, list(range(base, base+16)),
            [f"s_add_u32 s44, s35, {sig}", "s_and_b32 s44, s44, 15", "s_lshl_b32 s44, s44, 14", f"s_add_u32 s44, s44, {kk*8192}"],
            [f"buffer_load_dwordx4 v[{base+4*tl}:{base+4*tl+3}], v2, s[12:15], s44 offen offset:{tl*256} sc1" for tl in range(4)])
def k3_half_chk(a, nj, cur, sig, kk, nxt):
    m = k3_mfmas(nj, cur); rd = k3_reads(nj, sig, kk, nxt)
    for i in interleave(m[:len(rd)], rd): a(i)
    a(f"s_waitcnt lgkmcnt({len(rd) - 6})")
    for i in interleave(m[len(rd):], chk_ops(list(range(nxt, nxt+16)))): a(i)
    a("s_nop 1")
    k3_fix(a, sig, kk, nxt)

def k3_half1(a, nj, sig, vmw=None):
    a("s_waitcnt lgkmcnt(0)")
    for i in interleave(k3_mfmas(nj, SET[0]), k3_reads(nj, sig, 1, SET[1])): a(i)
    a("s_waitcnt lgkmcnt(0)" if vmw is None else f"s_waitcnt vmcnt({vmw}) lgkmcnt(0)")
    a("s_barrier")
def k3_half2(a, nj, sig):
    for i in interleave(k3_mfmas(nj, SET[1]), k3_reads(nj, sig+1, 0, SET[0])): a(i)

def k3_consumer(a, nj, sig0, vmw, n=16):
    L = a.label("Lk3")
    a(f"s_mov_b32 s41, {(n-1)//3}")
    a(f"{L}:")
    for q in range(3):
        k3_half1(a, nj, sig0+q, vmw[q] if q < len(vmw) else None)
        k3_half2(a, nj, sig0+q)
    a("s_sub_u32 s41, s41, 1")
    a("s_cmp_lg_u32 s41, 0")
    a(f"s_cbranch_scc1 {L}")
    for q in range((n-1)//3*3, n-1):
        k3_half1(a, nj, sig0+q)
        k3_half2(a, nj, sig0+q)
    k3_half1(a, nj, sig0+n-1)


def k3_dma_setup(part, psg, vE=22, first=0):
    r = []
    if part == 0: r.append("s_lshl_b32 s43, s35, 8")
    else:
        r.append("s_mul_i32 s43, s49, 192")
        r.append("s_and_b32 s43, s43, 0xffffff80")
        r.append("s_add_u32 s43, s43, 4096")
    r.append(f"s_cmp_eq_u32 s{psg}, 1")
    r.append("s_cselect_b32 s8, s4, s6")
    r.append("s_cselect_b32 s9, s5, s7")
    r.append("s_sub_u32 s10, 7340032, s43")
    r.append("s_lshl_b32 s44, s34, 18")
    r.append(f"s_add_u32 s44, s44, {WS_H}")
    r.append("s_movk_i32 s38, 28672")
    r.append(f"s_cmp_eq_u32 s{psg}, 0")
    r.append("s_cselect_b32 s8, s32, s8")
    r.append("s_cselect_b32 s9, s33, s9")
    r.append("s_cselect_b32 s10, 262144, s10")
    r.append("s_cselect_b32 s43, s44, s43")
    r.append("s_cselect_b32 s38, 1024, s38")
    r.append("s_cselect_b32 s45, 0, -1")
    r.append("s_add_u32 s8, s8, s43")
    r.append("s_addc_u32 s9, s9, 0")
    r.append("s_mov_b32 s11, 0x20000")
    r.append("s_lshl_b32 s40, s38, 4")
    r.append(f"s_add_u32 s42, s35, {first + 15}")
    r.append(f"s_lshl_b32 s39, s{psg}, 14")
    r.append("v_lshrrev_b32 v19, 4, v1")
    r.append("v_lshlrev_b32 v20, 5, v19")
    r.append("v_mul_u32_u24 v19, 6912, v19")
    r.append("v_and_b32 v19, s45, v19")
    r.append("v_and_b32 v20, s45, v20")
    r.append("v_lshlrev_b32 v21, 4, v1")
    r.append("v_xor_b32 v21, v21, v20")
    r.append(f"v_add_u32 v{vE}, v21, v19")
    r.append("s_and_b32 s45, s45, 128")
    r.append(f"v_xor_b32 v{vE+1}, s45, v{vE}")
    return r

def k3_items(sig, vE=22):
    rg = (sig + 2) % 3
    r = [[f"s_add_u32 m0, s39, {rg*REG + j*1024}", "s_add_u32 s37, s37, s38",
          f"buffer_load_dwordx4 v{vE + (j & 1)}, s[8:11], s37 offen{XF} lds"] for j in range(16)]
    r[0] = ["s_add_u32 s42, s42, 1", "s_and_b32 s42, s42, 15", r[0][0], "s_mul_i32 s37, s42, s40", r[0][2]]
    return r

def g2_dma_setup(psg, A_off, A_mul, A_bytes, K, wreg, vA=21, hop=8):
    r = []
    r.append(f"s_mul_i32 s44, s34, {A_mul}")
    r.append(f"s_lshl_b32 s39, s{psg}, 13")
    r.append("s_add_u32 s44, s44, s39")
    r.append(f"s_add_u32 s44, s44, {A_off}")
    r.append("s_lshl_b32 s43, s35, 7")
    r.append(f"s_mov_b32 s10, {A_bytes - 8192}")
    r.append("s_movk_i32 s38, 1024")
    r.append("s_movk_i32 s40, 9216")
    r.append(f"s_cmp_eq_u32 s{psg}, 2")
    r.append(f"s_cselect_b32 s8, s{wreg}, s32")
    r.append(f"s_cselect_b32 s9, s{wreg+1}, s33")
    r.append(f"s_cselect_b32 s10, {K*2048 - 1920}, s10")
    r.append("s_cselect_b32 s43, s43, s44")
    r.append("s_cselect_b32 s38, 16384, s38")
    r.append(f"s_cselect_b32 s40, {hop*2048}, s40")
    r.append(f"s_cselect_b32 s55, {hop*2048}, s38")
    r.append("s_cselect_b32 s45, -1, 0")
    r.append("s_add_u32 s8, s8, s43")
    r.append("s_addc_u32 s9, s9, 0")
    r.append("s_mov_b32 s11, 0x20000")
    r.append("s_sub_u32 s37, 0, s40")
    r.append("v_lshrrev_b32 v19, 3, v1")
    r.append("v_mul_u32_u24 v19, 1920, v19")
    r.append("v_lshrrev_b32 v20, 4, v1")
    r.append("v_lshlrev_b32 v20, 5, v20")
    r.append("v_and_b32 v19, s45, v19")
    r.append("v_and_b32 v20, s45, v20")
    r.append(f"v_lshlrev_b32 v{vA}, 4, v1")
    r.append(f"v_xor_b32 v{vA}, v{vA}, v20")
    r.append(f"v_add_u32 v{vA}, v{vA}, v19")
    return r

def g2_items(slot, vA=21, wrows=None):
    r = []
    for k in range(8):
        if wrows is None: inc = f"s_add_u32 s37, s37, s{40 if k == 0 else 55 if k == 4 else 38}"
        else: inc = f"s_add_u32 s37, s37, {(wrows[k]*2048) & 0xffffffff}"
        r.append([f"s_add_u32 m0, s39, {slot*SLOT + k*1024}", inc, f"buffer_load_dwordx4 v{vA}, s[8:11], s37 offen{XF} lds"])
    return r

BORD = [0, 1, 3, 4, 5, 6, 8, 9, 10, 11, 14, 15, 2, 7, 12, 13]
def wd_row(item):
    if item < 256:
        s, k = item >> 3, item & 7
        return 128*(s & 15) + 32*(s >> 4) + 64*(k >> 2) + 8*(k & 3)
    q = item - 256
    return 2048 + 96*BORD[q // 12] + [0, 8, 16, 24, 48, 56, 64, 72, 32, 80, 40, 88][q % 12]


CSR = 48
TT = 80
def epi_reads(nj, csbase, TT=TT):
    rd = []
    rd.append("s_lshl_b32 s43, s46, 9")
    rd.append(f"s_add_u32 s43, s43, {STATS}")
    rd.append("v_lshl_add_u32 v19, v17, 3, s43")
    for tl in range(4): rd.append(f"ds_read_b64 v[{TT+2*tl}:{TT+2*tl+1}], v19 offset:{tl*128}")
    rd.append(f"s_mul_i32 s43, s47, {nj*64}")
    rd.append(f"s_add_u32 s43, s43, {CSF + csbase*4}")
    rd.append("v_lshl_add_u32 v19, v18, 4, s43")
    for mat in range(2):
        for j in range(nj):
            d = CSR + (mat*nj+j)*4
            rd.append(f"ds_read_b128 v[{d}:{d+3}], v19 offset:{mat*896 + j*64}")
    return rd
def epi_consts(KB, mean=True, SR=TT):
    c = []
    for tl in range(4):
        mn, rs = SR+2*tl, SR+2*tl+1
        if mean: c.append(f"v_mov_b32 v{KB+tl}, v{mn}")
        c.append(f"v_mul_f32 v{TT+8}, v{rs}, v{rs}")
        c.append(f"v_mul_f32 v{KB+4+tl}, {fh(C0_)}, v{rs}")
        c.append(f"v_mul_f32 v{TT+9}, {fh(C1_)}, v{rs}")
        c.append(f"v_rcp_f32 v{KB+12+tl}, v{TT+8}")
        c.append(f"v_mul_f32 v{KB+8+tl}, v{TT+9}, v{TT+8}")
    return c

def epi_group(nj, tl, j, out, KB, ln=True):
    G = k3_acc(nj, 0, j, tl); U = k3_acc(nj, 1, j, tl)
    cg = CSR + j*4; cu = CSR + (nj+j)*4
    KM, K0, K1, KI = KB+tl, KB+4+tl, KB+8+tl, KB+12+tl
    T = TT + 4*(j & 1)
    r = []
    if ln:
        for q in range(4): r.append(f"v_fma_f32 v{G+q}, -v{KM}, v{cg+q}, v{G+q}")
        for q in range(4): r.append(f"v_fma_f32 v{U+q}, -v{KM}, v{cu+q}, v{U+q}")
    for q in range(4): r.append(f"v_mul_f32 v{T+q}, v{G+q}, v{G+q}")
    for q in range(4): r.append(f"v_fma_f32 v{T+q}, v{T+q}, v{K1}, v{K0}")
    for q in range(4): r.append(f"v_mul_f32 v{T+q}, v{T+q}, v{G+q}")
    for q in range(4): r.append(f"v_exp_f32 v{T+q}, v{T+q}")
    for q in range(4): r.append(f"v_mul_f32 v{U+q}, v{G+q}, v{U+q}")
    for q in range(4): r.append(f"v_fma_f32 v{T+q}, v{T+q}, v{KI}, v{KI}")
    for q in range(4): r.append(f"v_rcp_f32 v{T+q}, v{T+q}")
    for q in range(4): r.append(f"v_mul_f32 v{U+q}, v{U+q}, v{T+q}")
    r.append(f"v_cvt_pk_bf16_f32 v{out}, v{U}, v{U+1}")
    r.append(f"v_cvt_pk_bf16_f32 v{out+1}, v{U+2}, v{U+3}")
    return r

ST = "#ST "
KA, KBB = 32, 224
def epi_a():
    r = []
    for q in range(2):
        for tl in range(4):
            o = 96 + 4*tl
            r += epi_group(4, tl, 2*q, o, KA) + epi_group(4, tl, 2*q+1, o+2, KA)
            r.append(ST + f"{q}buffer_store_dwordx4 v[{o}:{o+3}], v27, s[24:27], {'s53' if q else '0'} offen offset:{tl*256} sc1")
    return r
def epi_b():
    r = []
    for tp in range(2):
        lo = 112 + 4*tp
        for tl in (2*tp, 2*tp+1):
            o = 96 + 4*tl
            r += epi_group(3, tl, 0, o, KBB, False) + epi_group(3, tl, 1, o+2, KBB, False)
            r.append(ST + f"0buffer_store_dwordx4 v[{o}:{o+3}], v27, s[24:27], 0 offen offset:{tl*256} sc1")
            r += epi_group(3, tl, 2, lo + 2*(tl & 1), KBB, False)
        r.append("s_nop 1")
        r.append(f"v_permlane32_swap_b32 v{lo}, v{lo+2}")
        r.append(f"v_permlane32_swap_b32 v{lo+1}, v{lo+3}")
        r.append(ST + f"0buffer_store_dwordx4 v[{lo}:{lo+3}], v28, s[24:27], 0 offen offset:{tp*512} sc1")
    return r

def epi_store_setup(part):
    r = []
    r.append(f"s_mul_i32 s43, s34, {HH_M}")
    if part == 1:
        tab = sum(BORD.index(t) << (4*t) for t in range(16))
        r += [f"s_mov_b32 s44, {tab & 0xffffffff}", f"s_mov_b32 s45, {tab >> 32}", "s_lshl_b32 s50, s49, 2", "s_lshr_b64 s[44:45], s[44:45], s50", "s_and_b32 s50, s44, 15"]
    r.append(f"s_mul_i32 s44, s{35 if part == 0 else 50}, {16384 if part == 0 else 24576}")
    r.append("s_add_u32 s43, s43, s44")
    r.append(f"s_add_u32 s43, s43, {WS_HH + (0 if part == 0 else 524288)}")
    r.append("s_add_u32 s24, s32, s43")
    r.append("s_addc_u32 s25, s33, 0")
    r.append(f"s_mov_b32 s26, {262144 + 16384 if part == 0 else 24576}")
    r.append("s_mov_b32 s27, 0x20000")
    r.append("s_mov_b32 s53, 262144")
    r.append("s_lshl_b32 s43, s47, 13")
    r.append("s_lshl_b32 s44, s46, 10")
    r.append("s_add_u32 s43, s43, s44")
    r.append("v_lshlrev_b32 v19, 11, v18")
    r.append("v_lshl_add_u32 v19, v17, 4, v19")
    r.append("v_add_u32 v27, s43, v19")
    if part == 1:
        r.append("s_lshl_b32 s43, s47, 12")
        r.append("s_add_u32 s43, s43, s44")
        r.append("s_add_u32 s43, s43, 16384")
        r.append("v_and_b32 v19, 1, v18")
        r.append("v_lshlrev_b32 v19, 11, v19")
        r.append("v_lshrrev_b32 v20, 1, v18")
        r.append("v_lshl_add_u32 v19, v20, 8, v19")
        r.append("v_lshl_add_u32 v19, v17, 4, v19")
        r.append("v_add_u32 v28, s43, v19")
    return r

STRIP = os.environ.get("STRIP", "").split(",")
def strip(lst, key):
    return [("s_nop 0" if key in STRIP else i) for i in lst]
_k3_mfmas, _k3_reads, _k3_items, _g2_mfmas, _g2_reads, _g2_items = k3_mfmas, k3_reads, k3_items, g2_mfmas, g2_reads, g2_items
def k3_mfmas(*x): return strip(_k3_mfmas(*x), "m3")
def k3_reads(*x): return strip(_k3_reads(*x), "r3")
def g2_mfmas(*x): return strip(_g2_mfmas(*x), "m4")
def g2_reads(*x): return strip(_g2_reads(*x), "r4")
def k3_items(*x, **k):
    r = _k3_items(*x, **k)
    if "d3" in STRIP: r = [g[:-1] + ["s_nop 0 ;buffer_load lds"] for g in r]
    if "h3" in STRIP: r[0][3] = "s_mov_b32 s37, 0"
    return r
def g2_items(*x, **k):
    r = _g2_items(*x, **k)
    if "d4" in STRIP: r = [g[:2] + ["s_nop 0 ;buffer_load lds"] for g in r]
    if "h4" in STRIP: r[0][1] = "s_mov_b32 s37, 0x20000"
    return r


T1 = env("T1", 4); LB = env("LB", 6)
H4 = env("H4", 0)
HH = env("HH", 0)
assert not HH or (T1 == 4 and not H4)
A0B = (16 - T1)//2
PA1 = T1 + A0B; PB = PA1 + 8; EB4 = PB + LB; NP4 = EB4 + 24 - 2*LB
assert T1 % 2 == 0 and LB % 3 == 0
SX, SW = [32, 96], [64, 160]
AK, AS, RECV = 128, 192, 224
def both(pos): return T1 <= pos < EB4
def k4_stage_of(pos, kh):
    if pos < T1: return pos
    if pos < PA1: return T1 + A0B*kh + pos - T1
    if pos < PB: return 16 + 8*kh + pos - PA1
    if pos < EB4: return 32 + LB*kh + pos - PB
    return 32 + 2*LB + pos - EB4
def k4_addrs():
    r = []
    r.append("v_lshlrev_b32 v19, 11, v18")
    r.append("v_lshl_add_u32 v19, v17, 4, v19")
    r.append("s_lshl_b32 s43, s46, 10")
    r.append("v_add_u32 v2, s43, v19")
    r.append("v_add_u32 v3, 0x10000, v2")
    r.append("v_lshrrev_b32 v19, 2, v17")
    r.append("v_lshl_add_u32 v20, v18, 2, v19")
    r.append("v_bfe_u32 v21, v20, 1, 2")
    r.append("s_lshl_b32 s43, s47, 1")
    r.append("v_xor_b32 v21, s43, v21")
    r.append("v_lshlrev_b32 v20, 7, v20")
    r.append("v_lshl_add_u32 v20, v21, 5, v20")
    r.append("v_and_b32 v19, 3, v1")
    r.append("v_lshl_add_u32 v20, v19, 3, v20")
    r.append("v_add_u32 v5, 16384, v20")
    r.append("v_xor_b32 v6, 32, v5")
    r.append("v_add_u32 v7, 0x10000, v5")
    r.append("v_add_u32 v8, 0x10000, v6")
    r.append(f"s_lshl_b32 s43, s36, {12 if env('XBF', 1) else 13}")
    r.append("v_lshl_add_u32 v9, v1, 4, s43")
    r.append("s_mov_b32 s54, 0x10000")
    r.append("s_movk_i32 s52, 0x1000")
    return r
def k4_reads(pos):
    slot = (pos + 2) % 4; hi, so = slot >> 1, (slot & 1)*32768
    bx, bw = SX[pos & 1], SW[pos & 1]
    def xr(kb, tl): return f"ds_read_b128 v[{bx+(kb*4+tl)*4}:{bx+(kb*4+tl)*4+3}], v{2+hi} offset:{so + kb*8192 + tl*256}"
    def wr(c, kb, e, h):
        d = bw + ((c*2+kb)*2+e)*4 + 2*h
        return f"ds_read_b64_tr_b16 v[{d}:{d+1}], v{5+2*hi+e} offset:{so + c*8192 + kb*4096 + h*2048}"
    r = []
    for kb in range(2):
        w = [wr(c, kb, e, h) for c in range(2 if both(pos) else 1) for e in range(2) for h in range(2)]
        r += interleave(w, [xr(kb, tl) for tl in range(4)])
    return strip(r, "r4")
def k4_mfmas(pos):
    bx, bw = SX[pos & 1], SW[pos & 1]
    r = []
    for kb in range(2):
        for tl in range(4):
            for c in range(2 if both(pos) else 1):
                for e in range(2):
                    acc = (AS if c else AK) + (tl*2+e)*4
                    w = bw + ((c*2+kb)*2+e)*4; x = bx + (kb*4+tl)*4
                    r.append(f"v_mfma_f32_16x16x32_bf16 v[{acc}:{acc+3}], v[{w}:{w+3}], v[{x}:{x+3}], v[{acc}:{acc+3}]")
    return strip(r, "m4")
def k4_half(pos, hi):
    it = k4_items(pos)
    if not hi: return it[:3] + [it[3] + ["s_add_u32 s37, s37, s28"]]
    return [it[0][:-3] + ["s_add_u32 s37, s37, s28"] + it[4]] + it[5:]
def k4_masked(pos):
    it = k4_items(pos)
    if both(pos): return it
    return [g[:-1] + ["s_mov_b64 exec, s[72:73]", g[-1], "s_mov_b64 exec, -1"] for g in it]
def k4_stage(a, pos, pre=None, extra=[], items=None):
    a("s_waitcnt lgkmcnt(0)" if pre is None else f"s_waitcnt vmcnt({pre}) lgkmcnt(0)")
    a("s_barrier")
    rd = k4_reads(pos+1) if pos + 1 < NP4 else []
    seq = interleave(k4_mfmas(pos), rd)
    if items: seq = seq[:2] + spread(seq[2:], items, env("FRH", 80))
    if extra: seq = seq[:8] + spread(seq[8:], [[i] for i in extra])
    for i in seq: a(i)
def k4_dma_setup(first, vA=21):
    r = []
    r.append(f"s_mul_i32 s44, s34, {HH_M}")
    r.append("s_lshl_b32 s39, s51, 13")
    r.append("s_add_u32 s44, s44, s39")
    r.append(f"s_add_u32 s44, s44, {WS_HH}")
    r.append("s_and_b32 s43, s51, 1")
    r.append("s_xor_b32 s43, s43, s35")
    r.append("s_lshl_b32 s43, s43, 7")
    r.append(f"s_mov_b32 s10, {HH_M - 8192}")
    r.append("s_movk_i32 s38, 1024")
    r.append("s_movk_i32 s40, 9216")
    r.append("s_movk_i32 s37, 0x4000")
    r.append("s_cmp_ge_u32 s51, 2")
    r.append("s_cselect_b32 s8, s60, s32")
    r.append("s_cselect_b32 s9, s61, s33")
    r.append(f"s_cselect_b32 s10, {3584*2048 - 1920}, s10")
    r.append("s_cselect_b32 s43, s43, s44")
    r.append("s_cselect_b32 s38, 16384, s38")
    r.append(f"s_cselect_b32 s40, {40*2048}, s40")
    r.append(f"s_cselect_b32 s55, {40*2048}, s38")
    r.append(f"s_cselect_b32 s37, {128*2048}, s37")
    r.append("s_cselect_b32 s45, -1, 0")
    r.append("s_add_u32 s8, s8, s43")
    r.append("s_addc_u32 s9, s9, 0")
    r.append("s_mov_b32 s11, 0x20000")
    r.append("s_and_b32 s53, s35, 1")
    r.append(f"s_mul_i32 s54, s53, {A0B}")
    r.append("s_mul_i32 s54, s54, s37")
    r.append(f"s_mul_i32 s29, s53, {8 - A0B}")
    r.append(f"s_add_u32 s29, s29, {A0B}")
    r.append("s_mul_i32 s29, s29, s37")
    r.append(f"s_and_b32 s43, s45, {((32 - 2048)*2048) & 0xffffffff}")
    r.append("s_add_u32 s29, s29, s43")
    r.append(f"s_mul_i32 s37, s37, {first}")
    r.append("s_sub_u32 s37, s37, s40")
    r.append("v_lshrrev_b32 v19, 3, v1")
    r.append("v_mul_u32_u24 v19, 1920, v19")
    r.append("v_lshrrev_b32 v20, 4, v1")
    r.append("v_lshlrev_b32 v20, 5, v20")
    r.append("v_and_b32 v19, s45, v19")
    r.append("v_and_b32 v20, s45, v20")
    r.append(f"v_lshlrev_b32 v{vA}, 4, v1")
    r.append(f"v_xor_b32 v{vA}, v{vA}, v20")
    r.append(f"v_add_u32 v{vA}, v{vA}, v19")
    return r
assert all(wd_row(8*(32 + LB) + i) - wd_row(8*32 + i) == wd_row(8*(32 + LB)) - wd_row(8*32) for i in range(8*LB))
def k4_items(pos, kind=None, vA=21):
    slot = (pos + 2) % 4
    r = []
    for k in range(8):
        if kind is None: inc = f"s_add_u32 s37, s37, s{40 if k == 0 else 55 if k == 4 else 38}"
        else:
            st = k4_stage_of(pos, 0)
            off = st*16384 + k*1024 if kind == 'x' else wd_row(8*st + k)*2048
            inc = f"s_add_u32 s37, s40, {off}" if pos < EB4 else f"s_mov_b32 s37, {off}"
        g = [f"s_add_u32 m0, s39, {slot*32768 + k*1024}", inc, f"buffer_load_dwordx4 v{vA}, s[8:11], s37 offen{XF} lds"]
        if "d4" in STRIP: g[2] = "s_nop 0 ;buffer_load lds"
        r.append(g)
    if kind is None and pos == T1: r[0] = ["s_add_u32 s37, s37, s54"] + r[0]
    if kind is None and pos == PA1: r[0] = ["s_add_u32 s37, s37, s29"] + r[0]
    return r


def emit(a, vm, seq, tag):
    for i in seq:
        if i.startswith(ST):
            t = i[len(ST)+1:]
            if "st" in STRIP: t = "s_nop 0"
            if "stp" in STRIP: t = t.replace(" sc1", "")
            a(t); vm.add("st" + i[len(ST)])
        else:
            a(i)
            if "buffer_load" in i and i.endswith("lds"): vm.add(tag)
            elif i.startswith("buffer_"): vm.add("x")

def st_last(seq):
    if not env("STLAST", 1): return seq
    return [i for i in seq if not i.startswith(ST)] + [i for i in seq if i.startswith(ST)]
def chunks(lst, n):
    return [lst[len(lst)*k//n:len(lst)*(k+1)//n] for k in range(n)]
def flat(g): return sum(g, [])
def last_with(cs, tag): return max(k for k, c in enumerate(cs) if any(i.startswith(ST + tag) for i in c))


def phase_234(a, Ld):
    PRIO = env("PRIO", 1)
    SPEC3 = env("SPEC3", 1); NV3 = env("NV3", 7)
    SPEC2 = env("SPEC2", 0); PB2 = env("PB2", 7)
    XSN = env("XSN", 1)
    XSIG = EB4 + XSN + env("XSD", 2); XRCV = NP4 - env("XRD", 3)
    SPECX = env("SPECX", 0)
    if SPECX: XSIG = -1; XRCV = NP4 - env("XRD", 2)
    LG1 = a.label("LG1")
    def k1_tail(young, signal=False):
        a(f"s_waitcnt vmcnt({young})")
        a("s_barrier")
        if signal: flag_signal(a, 56, "o", 34, v=13)
        for u in range(2):
            a(f"ds_write_b128 v27, v[{68+48*u}:{71+48*u}] offset:{512*u}")
        stamp(a, 5)
        stampc(a, "k1", 20)
    flag_srd(a, 56)
    lane_ig(a)
    a("s_lshr_b32 s46, s36, 1")
    a("s_and_b32 s46, s46, 1")
    a("s_and_b32 s47, s36, 1")
    a("s_and_b32 s51, s36, 3")
    if NBM:
        a("s_bfe_u32 s49, s35, 0x20001")
        if NBM == 2:
            a("s_sub_u32 s43, 0, s49")
            a("s_and_b32 s43, s43, 3")
            a("s_cmp_ge_u32 s35, 8")
            a("s_cselect_b32 s49, s43, s49")
        a("s_lshl_b32 s49, s49, 2")
        a("s_lshr_b32 s43, s35, 3")
        a("s_lshl_b32 s43, s43, 1")
        a("s_add_u32 s49, s49, s43")
        a("s_and_b32 s43, s35, 1")
        a("s_add_u32 s49, s49, s43")
    else:
        a("s_mov_b32 s49, s35")
    a("s_waitcnt lgkmcnt(0)")
    a("s_cmp_ge_u32 s36, 4")
    a(f"s_cbranch_scc1 {LG1}")

    def o_first_setup():
        a("s_lshl_b32 s43, s34, 18")
        srd(a, 12, 32, 262144, add_lo=43, add_imm=WS_O)
        a("v_lshlrev_b32 v21, 4, v1")
        a("s_lshl_b32 s54, s36, 11")
        for sg in (1, 2):
            a(f"s_add_u32 s43, s35, {sg}")
            a("s_and_b32 s43, s43, 15")
            a("s_lshl_b32 s43, s43, 14")
            a(f"s_add_u32 s{29+sg}, s43, s54")
    def o_first():
        for sg in (1, 2):
            for e in range(2):
                a(f"s_add_u32 m0, s54, {sg*16384 + e*1024}")
                a(f"s_add_u32 s43, s{29+sg}, {e*1024}")
                a(f"buffer_load_dwordx4 v21, s[12:15], s43 offen{XF} lds")
    for i in k2_addrs(): a(i)
    a("s_lshl_b32 s43, s34, 18")
    a("s_lshl_b32 s44, s35, 14")
    a("s_add_u32 s43, s43, s44")
    srd(a, 20, 32, 16384, add_lo=43, add_imm=WS_H)
    a("s_lshl_b32 s43, s34, 14")
    a("s_lshl_b32 s44, s35, 10")
    a("s_add_u32 s43, s43, s44")
    srd(a, 24, 32, 1024, add_lo=43, add_imm=WS_ST2)
    a("s_movk_i32 s50, 0x2000")
    a("v_lshrrev_b32 v19, 1, v18")
    a("v_lshl_add_u32 v19, v19, 4, v17")
    a("s_lshl_b32 s43, s36, 5")
    a("v_add_u32 v19, s43, v19")
    a("v_and_b32 v20, 1, v18")
    a("v_lshlrev_b32 v20, 2, v20")
    a("v_lshl_add_u32 v22, v19, 3, v20")
    o_first_setup()
    k1_tail(0)
    for k in range(4):
        a(f"v_permlane16_swap_b32 v{240+4*k}, v{242+4*k}")
        a(f"v_permlane16_swap_b32 v{241+4*k}, v{243+4*k}")
    for k in range(8):
        for h in range(2):
            a(f"v_lshlrev_b32 v{ACC+4*k+2*h}, 16, v{240+2*k+h}")
            a(f"v_and_b32 v{ACC+4*k+2*h+1}, 0xffff0000, v{240+2*k+h}")
    a("s_waitcnt lgkmcnt(0)")
    a("s_barrier")
    o_first()
    for i in k2_reads(0): a(i)
    a("s_waitcnt lgkmcnt(0)")
    for i in g2_mfmas(SET[0]): a(i)
    a("s_waitcnt vmcnt(2)")
    a("s_barrier")
    stamp(a, 6)
    for i in k2_reads(1): a(i)
    for st in range(1, 16):
        a("s_waitcnt vmcnt(0) lgkmcnt(0)" if st == 1 else "s_waitcnt lgkmcnt(0)")
        if SPEC2 and st <= PB2 + 3:
            b = SET[st & 1]; regs = list(range(b, b + 16))
            for i in chk_ops(regs): a(i)
            a("s_nop 4")
            chk_fix(a, regs, [f"s_add_u32 s44, s35, {st}", "s_and_b32 s44, s44, 15", "s_lshl_b32 s44, s44, 14", "s_add_u32 s43, s44, 0x2000"],
                    [f"buffer_load_dwordx4 v[{b+(kb*2+tl)*4}:{b+(kb*2+tl)*4+3}], v2, s[12:15], s{43 if kb else 44} offen offset:{tl*256} sc1" for kb in range(2) for tl in range(2)])
        a("s_barrier")
        m = g2_mfmas(SET[st & 1]); rd = k2_reads(st+1) if st < 15 else []
        for i in spread(rd, [[x] for x in m], 100) if rd else m: a(i)
    stamp(a, 7)
    a("s_nop 4")
    P = 96
    for tl in range(2):
        for kb in range(2):
            o = P + (tl*2+kb)*4
            for hf in range(2):
                s = ACC + (tl*4 + 2*kb + hf)*4
                a(f"v_cvt_pk_bf16_f32 v{o+2*hf}, v{s}, v{s+1}")
                a(f"v_cvt_pk_bf16_f32 v{o+2*hf+1}, v{s+2}, v{s+3}")
            a(f"buffer_store_dwordx4 v[{o}:{o+3}], v2, s[20:23], {'s50' if kb else '0'} offen offset:{tl*256} sc1")
            a(f"ds_write_b128 v4, v[{o}:{o+3}] offset:{kb*8192 + tl*256}")
    for q in range(8):
        for tl in range(2):
            x = ACC + 16*tl + 2*q; sm = 116 + 4*tl; sq = sm + 2
            if q == 0:
                a(f"v_pk_mul_f32 v[{sq}:{sq+1}], v[{x}:{x+1}], v[{x}:{x+1}]")
            else:
                a(f"v_pk_fma_f32 v[{sq}:{sq+1}], v[{x}:{x+1}], v[{x}:{x+1}], v[{sq}:{sq+1}]")
                y = ACC + 16*tl if q == 1 else sm
                a(f"v_pk_add_f32 v[{sm}:{sm+1}], v[{x}:{x+1}], v[{y}:{y+1}]")
    for tl in range(2):
        a(f"v_add_f32 v{112+2*tl}, v{116+4*tl}, v{117+4*tl}")
        a(f"v_add_f32 v{113+2*tl}, v{118+4*tl}, v{119+4*tl}")
    a("s_nop 1")
    a("v_permlane32_swap_b32 v112, v114")
    a("v_permlane32_swap_b32 v113, v115")
    a("v_add_f32 v112, v112, v114")
    a("v_add_f32 v113, v113, v115")
    a("s_nop 1")
    a("v_permlane16_swap_b32 v112, v113")
    a("v_add_f32 v112, v112, v113")
    a("buffer_store_dword v112, v22, s[24:27], 0 offen sc1")
    if SPEC3:
        a("s_waitcnt lgkmcnt(0)")
        a("s_barrier")
        stamp(a, 8)
    else:
        a("s_waitcnt vmcnt(0) lgkmcnt(0)")
        a("s_barrier")
        Ls = a.label("Lsig")
        a("s_cmp_lg_u32 s36, 0")
        a(f"s_cbranch_scc1 {Ls}")
        flag_signal(a, 56, "h", 34, v=19)
        a(f"{Ls}:")
        if env("OPF", 2) & 2:
            Lo = a.label("Lopf")
            a("s_cmp_lt_u32 s36, 2")
            a(f"s_cbranch_scc1 {Lo}")
            a("s_and_b32 s43, s36, 1")
            a("s_lshl_b32 s43, s43, 13")
            a("v_lshlrev_b32 v19, 7, v1")
            a("buffer_load_dword v31, v19, s[20:23], s43 offen sc1")
            a(f"{Lo}:")
        stamp(a, 8)

    a("s_lshl_b32 s53, s47, 2")
    for i in k3_addrs(4, 53): a(i)
    def stage0():
        for i in k3_reads(4, 0, 0, SET[0]): a(i)
        a("s_waitcnt lgkmcnt(0)")
        for i in interleave([x[:x.rindex(",")] + ", 0" if x.startswith("v_mfma") else x for x in k3_mfmas(4, SET[0])], k3_reads(4, 0, 1, SET[1])): a(i)
        a("s_waitcnt lgkmcnt(0)")
        for i in k3_mfmas(4, SET[1]): a(i)
    stage0()
    for i in k3_dma_setup(1, 51, first=2): a(i)
    for i in epi_store_setup(0): a(i)
    def out_setup():
        r = ["s_lshl_b32 s43, s34, 18", "s_lshl_b32 s44, s35, 7", "s_add_u32 s43, s43, s44",
             "s_add_u32 s16, s62, s43", "s_addc_u32 s17, s63, 0", f"s_mov_b32 s18, {127*2048 + 128}", "s_mov_b32 s19, 0x20000",
             "s_lshl_b32 s43, s46, 6", "v_lshl_add_u32 v19, v17, 1, s43", "v_lshlrev_b32 v19, 11, v19",
             "v_and_b32 v20, 1, v18", "v_lshl_add_u32 v19, v20, 5, v19", "v_lshrrev_b32 v20, 1, v18", "v_lshl_add_u32 v19, v20, 4, v19",
             "s_lshl_b32 s43, s47, 6", "v_add_u32 v28, s43, v19"]
        for d, flip in ((64, 0), (68, 1)):
            r += ["s_lshl_b32 s43, s34, 4", "s_add_u32 s43, s43, s35", f"s_xor_b32 s43, s43, {flip}", "s_lshl_b32 s43, s43, 15", f"s_add_u32 s43, s43, {WS_X}",
                  f"s_add_u32 s{d}, s32, s43", f"s_addc_u32 s{d+1}, s33, 0", f"s_mov_b32 s{d+2}, 32768", f"s_mov_b32 s{d+3}, 0x20000"]
        return r
    for i in out_setup(): a(i)
    def x_first_setup():
        a("s_lshl_b32 s43, s34, 18")
        srd(a, 12, 32, 262144, add_lo=43, add_imm=WS_H)
        a("v_lshlrev_b32 v21, 4, v1")
        a("s_lshl_b32 s54, s36, 11")
        for sg in (1, 2):
            a(f"s_add_u32 s43, s35, {sg}")
            a("s_and_b32 s43, s43, 15")
            a("s_lshl_b32 s43, s43, 14")
            a(f"s_add_u32 s{29+sg}, s43, s54")
    def x_first():
        for sg in (1, 2):
            for e in range(2):
                a(f"s_add_u32 m0, s54, {((sg+2) % 3)*REG + e*1024}")
                a(f"s_add_u32 s43, s{29+sg}, {e*1024}")
                a(f"buffer_load_dwordx4 v21, s[12:15], s43 offen{XF} lds")
    x_first_setup()
    if SPEC3:
        a("s_waitcnt vmcnt(0)")
        a("s_barrier")
        stamp(a, 9)
        if PRIO: a("s_setprio 1")
        for i in k3_reads(4, 1, 0, SET[0]): a(i)
        a("s_waitcnt lgkmcnt(14)")
        for i in chk_ops(list(range(SET[0], SET[0]+16))): a(i)
        a("s_nop 4")
        k3_fix(a, 1, 0, SET[0])
        for sg in range(1, NV3 + 1):
            a("s_waitcnt lgkmcnt(0)")
            k3_half_chk(a, 4, SET[0], sg, 1, SET[1])
            a("s_waitcnt lgkmcnt(0)")
            a("s_barrier")
            if sg < NV3: k3_half_chk(a, 4, SET[1], sg+1, 0, SET[0])
            else: k3_half2(a, 4, sg)
        k3_consumer(a, 4, NV3 + 1, [], n=15 - NV3)
    else:
        a("s_barrier")
        x_first()
        a("s_waitcnt vmcnt(2)")
        a("s_barrier")
        stamp(a, 9)
        if PRIO: a("s_setprio 1")
        for i in k3_reads(4, 1, 0, SET[0]): a(i)
        k3_consumer(a, 4, 1, [0], n=15)
    stamp(a, 10)
    EA = epi_a()
    def batch(l, nb):
        return flat([[i for i in c if not i.startswith(ST)] + [i for i in c if i.startswith(ST)] for c in chunks(l, nb)])
    if env("STBA", 0): EA = batch(EA, env("STBA", 0))
    if "e" in STRIP: EA = [i for i in EA if i.startswith(ST)]
    ea = chunks(EA, env("EA_N", 13))
    SIG_A0 = 16 + last_with(ea, "0") + 2
    SIG_A1 = 16 + last_with(ea, "1") + 2
    HL = SIG_A0 - 1
    assert 16 + len(ea) <= 31 and SIG_A0 <= 28 and HL <= 27 and SIG_A1 in (29, 30)
    L3h = a.label("L3h"); LK4 = a.label("LK4")
    RD = 192
    def resid_loads():
        r = ["v_lshlrev_b32 v19, 11, v18", "v_lshl_add_u32 v19, v17, 4, v19", "s_lshl_b32 s43, s46, 10", "s_lshl_b32 s44, s47, 13",
             f"v_add3_u32 v{RD+16}, v19, s43, 0", f"v_add_u32 v{RD+16}, s44, v{RD+16}"]
        for tl in range(4):
            r.append(f"buffer_load_dwordx4 v[{RD+4*tl}:{RD+4*tl+3}], v{RD+16}, s[20:23], 0 offen offset:{tl*256} sc1")
        return r
    def resid_unpack():
        r = []
        for k in range(4):
            for q in range(4):
                r.append(f"v_lshlrev_b32 v{ACC+8*k+2*q}, 16, v{RD+4*k+q}")
                r.append(f"v_and_b32 v{ACC+8*k+2*q+1}, 0xffff0000, v{RD+4*k+q}")
        return r
    extra = {HL: resid_loads(), 17: k4_addrs(), 29: resid_unpack(), 30: [f"v_mov_b32 v{AS+i}, 0" for i in range(32)]}
    assert HL + 2 <= 28 and HL > 19
    a("s_cmp_eq_u32 s36, 3")
    a(f"s_cbranch_scc1 {L3h}")
    for helper in (False, True):
        vm = VM(a)
        if helper: a(f"{L3h}:")
        m = k3_mfmas(4, SET[1])
        if env("ERI", 1):
            m = interleave(m, epi_reads(4, 0, TT=2))
            emit(a, vm, m if helper else spread(m, k3_items(18)), 18)
            if PRIO: a("s_setprio 0")
            emit(a, vm, ["s_waitcnt lgkmcnt(0)"] + epi_consts(KA, SR=2), None)
        else:
            emit(a, vm, m if helper else spread(m, k3_items(18)), 18)
            if PRIO: a("s_setprio 0")
            emit(a, vm, epi_reads(4, 0) + ["s_waitcnt lgkmcnt(0)"] + epi_consts(KA), None)
        if helper and env("K3PF", 0):
            k3pf = K3PF(a, 1)
            k3pf.setup()
            for s in range(3, env("K3PD", 6)): k3pf.issue(s)
        a("s_barrier")
        if helper: stampc(a, "k3", 16)
        for sig in range(16, 31):
            body = (list(ea[sig-16]) if sig-16 < len(ea) else []) + extra.get(sig, [])
            if helper:
                if sig == SIG_A0: flag_signal(a, 56, "hha0", 34, v=21)
                if sig == SIG_A1: flag_signal(a, 56, "hha1", 34, v=22)
                if sig == env("PA0", 27): flag_poll_issue(a, 56, "hha0", 34, v=21); vm.add("p")
                if env("K3PF", 0) and sig - 16 + env("K3PD", 6) < 16: k3pf.issue(sig - 16 + env("K3PD", 6))
                if 100 + sig in ICW: code_warm(a, 78, 19, 30)
                if sig == 30: warm_jump(a, ("L7b", 0))
                if env("K3_SPF", 1) and (sig in S3R if S3F else sig == env("S3C", 18)):
                    sp = SPF3(a); sp.setup(1); sp.issue(S3R[sig][1] if S3F else 8)
                if env("K4_SPF", 1) and sig == env("S4A", 25):
                    sp = SPF4(a); sp.setup(); sp.issue(0)
                if sig == 25 and env("K4PF", 0):
                    pf_w64(a, KA_WD, 3584, list(range(env("K4PF0", 0), env("K4PF", 0)//MX)), 80, 29, 30)
                assert T1 >= 4
                if sig == 29 and HH:
                    emit(a, vm, k4_dma_setup(4) + ["s_mul_i32 s28, s38, 3", "s_add_u32 s28, s28, s55"], None)
                if sig == 29 and H4:
                    emit(a, vm, k4_dma_setup(2), None)
                    a("s_mov_b64 s[72:73], 0")
                emit(a, vm, body, None)
                if sig == SIG_A0 - 1: a(vm.wait("st0"))
                if sig == SIG_A1 - 1: a(vm.wait("st1"))
                if sig == HL + 2: a(vm.wait("x"))
                if sig == 28: flag_poll_finish(a, 56, v=21, first=vm.cnt("p"))
            else:
                if sig + 3 <= 31:
                    emit(a, vm, st_last(spread(body, k3_items(sig+3), env("FR3", 100))), sig+3)
                else:
                    if sig == 29:
                        emit(a, vm, k4_dma_setup(0), None)
                        a("s_mov_b64 s[72:73], -1")
                    emit(a, vm, spread(body, k4_items(sig - 29)), ("k4", sig - 29))
                if sig == 30 and HH:
                    emit(a, vm, ["s_mul_i32 s28, s38, 3", "s_add_u32 s28, s28, s55", "s_mul_i32 s43, s38, 3", "s_add_u32 s43, s43, s40", "s_add_u32 s43, s43, s28",
                                 "s_lshl_b32 s43, s43, 1", "s_add_u32 s37, s37, s43"], None)
                w = vm.cnt(sig+2) if sig + 2 <= 31 else vm.cnt(("k4", 0))
                if sig == SIG_A0 - 1: w = min(w, vm.cnt("st0"))
                if sig == SIG_A1 - 1: w = min(w, vm.cnt("st1"))
                if sig == HL + 2: w = min(w, vm.cnt("x"))
                a(f"s_waitcnt vmcnt({w})")
            a("s_barrier")
            if helper: stampc(a, "k3", sig+1)
        if not helper: a(f"s_branch {LK4}")
    a(f"{LK4}:")
    stamp(a, 11)
    if PRIO: a("s_setprio 1")
    for i in k4_reads(0): a(i)
    if H4:
        for i in flat(k4_masked(2) + k4_masked(3)): a(i)
    XB = env("XBF", 1)
    def xch(op, reg, sd, n=8):
        return [f"buffer_{op}_dwordx4 v[{reg+4*t}:{reg+4*t+3}], v9, s[{sd}:{sd+3}], {'s52' if t >= 4 else '0'} offen offset:{(t & 3)*1024} sc1" for t in range(n)]
    if XB:
        st_ = xch("store", RECV, 64, 4)
        xs = chunks([[f"v_cvt_pk_bf16_f32 v{RECV+4*tl+q}, v{AS+8*tl+2*q}, v{AS+8*tl+2*q+1}" for q in range(4)] + [st_[tl]] for tl in range(4)], XSN)
        xs = [flat(c) for c in xs]
        xl = xch("load", AS, 68, 4)
        xu = ["s_waitcnt vmcnt(0)"]
        for k in range(16): xu += [f"v_lshlrev_b32 v{RECV+2*k}, 16, v{AS+k}", f"v_and_b32 v{RECV+2*k+1}, 0xffff0000, v{AS+k}"]
    else:
        xs = chunks(xch("store", AS, 64), XSN); xl = xch("load", RECV, 68); xu = []
    pos = 0
    R0 = max(T1, H4 + 3, HH + 3 if HH else 0)
    def pre4(pos):
        if pos == XSIG: return 0
        if HH and 3 <= pos <= HH + 2: return 4*(min(pos + 3, HH + 3) - (pos + 1))
        if not H4: return 0 if pos == 0 else None
        if pos <= H4: return 16
        return {H4 + 1: 8, H4 + 2: 0}.get(pos)
    while pos < NP4:
        if pos == R0:
            nl = (EB4 - 1 - R0)//4
            L = a.label("Lk4")
            a(f"s_mov_b32 s41, {nl}")
            a(f"{L}:")
            for q in range(4): k4_stage(a, pos + q)
            a("s_sub_u32 s41, s41, 1")
            a("s_cmp_lg_u32 s41, 0")
            a(f"s_cbranch_scc1 {L}")
            pos += 4*nl
        if pos == EB4: a("s_mov_b32 s54, 0x10000")
        if SPECX and pos == NP4 - 1:
            a("s_waitcnt lgkmcnt(0)")
            a("s_barrier")
            m = k4_mfmas(pos)
            a(m[0]); a(m[1])
            a("s_waitcnt vmcnt(0)")
            regs = list(range(AS, AS + 16))
            for i in interleave(m[2:], chk_ops(regs)): a(i)
            chk_fix(a, regs, [], xl)
            for i in xu[1:]: a(i)
            break
        k4_stage(a, pos, pre=pre4(pos), items=k4_masked(pos + 4) if pos < H4 else k4_half(pos + 4, 0) if pos < HH else None,
                 extra=xs[pos - EB4] if EB4 <= pos < EB4 + XSN else xl if pos == XRCV else xu if pos == NP4 - 1 else [])
        pos += 1
    stamp(a, 12)
    a("s_waitcnt vmcnt(0)")
    a("s_nop 4")
    for tl in range(4):
        b = AK + 8*tl; o = 32 + 4*tl
        for q in range(0, 8, 2): a(f"v_pk_add_f32 v[{b+q}:{b+q+1}], v[{b+q}:{b+q+1}], v[{RECV+8*tl+q}:{RECV+8*tl+q+1}]")
        for q in range(4): a(f"v_cvt_pk_bf16_f32 v{o+q}, v{b+2*q}, v{b+2*q+1}")
    for tl in range(4):
        o = 32 + 4*tl
        a(f"v_permlane16_swap_b32 v{o}, v{o+2}")
        a(f"v_permlane16_swap_b32 v{o+1}, v{o+3}")
        a(f"buffer_store_dwordx4 v[{o}:{o+3}], v28, s[16:19], {'s54' if tl >= 2 else '0'} offen offset:{(tl & 1)*2048}{os.environ.get('OSF', '')}")
    if STAMP:
        a("s_waitcnt vmcnt(0)")
        stamp(a, 13)
        stamp_flush(a)
    a(f"s_branch {Ld}")

    a(f"{LG1}:")
    L7 = a.label("L7"); LK3b = a.label("LK3b"); LP3 = a.label("LP3")
    a("s_cmp_eq_u32 s36, 7")
    a(f"s_cbranch_scc1 {L7}")
    for i in g2_dma_setup(51, WS_O, 262144, 262144, 1024, 28, vA=23): a(i)
    o_first_setup()
    Lp = [a.label("Lp") for _ in range(3)]
    for p in range(1, 3):
        a(f"s_cmp_eq_u32 s51, {p}")
        a(f"s_cbranch_scc1 {Lp[p]}")
    for p in range(3):
        a(f"{Lp[p]}:")
        vm = VM(a)
        def st2(s): emit(a, vm, flat(k2_items(s, p == 2)), s)
        a(f"s_add_u32 s42, s35, {15 if p == 2 else 2}")
        k1_tail(0, p == 1)
        WE = env("K2_WE", 4)
        wn_ = [0]
        def wst(upto, n):
            while wn_[0] <= min(upto, 15) and n > 0:
                st2(wn_[0]); wn_[0] += 1; n -= 1
        if p == 2: wst(9, WE)
        stamp(a, 6)
        if p == 0 and SPEC2:
            for q in range(env("SPD2", 0)):
                flag_poll_issue(a, 56, "o", 34, v=8)
                a("s_waitcnt vmcnt(0)")
        elif p == 0: flag_poll(a, 56, "o", 34, v=8)
        if p == 2: a(vm.wait(0))
        a("s_waitcnt lgkmcnt(0)")
        stamp(a, 7)
        a("s_barrier")
        stamp(a, 8)
        o_first(); vm.add(1, 2); vm.add(2, 2)
        if p < 2: st2(3)
        else: wst(9, 1)
        a(vm.wait(1))
        a("s_barrier")
        stamp(a, 9)
        if p < 2: st2(4)
        else: wst(9, 1)
        for s in range(1, 16):
            if s < 15: a(vm.wait(s+1))
            a("s_barrier")
            if p == 2: wst(s + 9, env("K2_WN", 1))
            elif s + 4 < 16: st2(s + 4)
            rest = SPR - 3 - 2*(SPE - 2) - (s-1)*env("CS_RPS", 2)
            if rest > 0 and CSM == "d": cs_spre(a, min(rest, env("CS_RPS", 2)))
            if s == 11:
                assert p < 2 or wn_[0] == 16
                for i in k3_dma_setup(0, 51): a(i)
            if s in (12, 14)[:env("EW", 2)] and p > 0:
                emit(a, vm, flat(k3_items((s-12)//2)), "w%d" % ((s-12)//2))
        if p > 0: a(vm.wait("w0"))
        a("s_barrier")
        if p == 0 and SPEC3:
            for q in range(env("SPD3", 2)):
                flag_poll_issue(a, 56, "h", 34, v=8)
                a("s_waitcnt vmcnt(0)")
            a("s_add_u32 s42, s42, 1")
            for w in (1, 2): emit(a, vm, flat(k3_items(w)), "w")
        elif p == 0:
            a("s_add_u32 s42, s42, 3")
            flag_poll(a, 56, "h", 34, v=8)
        else:
            for w in range(env("EW", 2), 3): emit(a, vm, flat(k3_items(w)), "w")
        if p < 2: a(f"s_branch {LP3}")
    a(f"{LP3}:")
    SWD = env("SWD", 1)
    W7SKIP = max(7, NV3 if SPEC3 else 0) - 1
    wd_base = ["s_mul_i32 s43, s2, 28672", "s_mul_i32 s44, s51, 7168", "s_add_u32 s43, s43, s44", "s_add_u32 s80, s60, s43", "s_addc_u32 s81, s61, 0"]
    def swd(sig, w7=False):
        n = 9 if sig <= 8 else 8 if 10 <= sig <= 12 else 7 if sig == 13 else 0
        if w7: n = 0 if sig in (W7SKIP, 9) or sig > 12 else 11 if sig <= 8 else 8
        if not SWD or not n: return []
        return [f"s_load_dword s{64+q}, s[80:81], {64*q}" for q in range(n)] + [f"s_add_u32 s80, s80, {64*n}", "s_addc_u32 s81, s81, 0"]
    for i in wd_base: a(i)
    if SPEC3:
        assert env("EW", 2) == 2
        a("s_waitcnt vmcnt(16)")
        a("s_barrier")
        for i in flat(k3_items(3)) + swd(0): a(i)
        a("s_waitcnt vmcnt(16)")
        a("s_barrier")
    else:
        x_first_setup()
        a("s_barrier")
        x_first()
        for i in flat(k3_items(3)) + swd(0): a(i)
        a("s_waitcnt vmcnt(18)")
        a("s_barrier")
        a("s_waitcnt vmcnt(16)")
        a("s_barrier")
    def xpo(sig):
        if not SPECX or not 9 <= sig <= 14: return []
        r = []
        if sig == 9:
            r = ["s_lshl_b32 s43, s34, 4", "s_add_u32 s43, s43, s35", "s_lshl_b32 s43, s43, 15", f"s_add_u32 s43, s43, {WS_X}",
                 "s_add_u32 s12, s32, s43", "s_addc_u32 s13, s33, 0", "s_mov_b32 s14, 16384", "s_mov_b32 s15, 0x20000",
                 "s_mul_i32 s30, s51, 5120", "v_lshlrev_b32 v29, 4, v1"] + [f"v_mov_b32 v{240+i}, -1" for i in range(4)]
        return r + ["buffer_store_dwordx4 v[240:243], v29, s[12:15], s30 offen sc1", "s_add_u32 s30, s30, 1024"]
    def pst(sig, body=[], pre=[], post=[]):
        for i in pre + spread(body, k3_items(sig+3)) + post + xpo(sig) + swd(sig): a(i)
        a(f"s_waitcnt vmcnt({16 + bool(xpo(sig)) + bool(xpo(sig-1))})")
        a("s_barrier")
    L = a.label("Lp3")
    a("s_mov_b32 s41, 2")
    a(f"{L}:")
    for sig in range(1, 4): pst(sig)
    a("s_sub_u32 s41, s41, 1")
    a("s_cmp_lg_u32 s41, 0")
    a(f"s_cbranch_scc1 {L}")
    pst(7); pst(8)
    bs = ["s_and_b32 s53, s35, 1", "s_lshl_b32 s53, s53, 1", "s_mul_i32 s43, s47, 3", "s_add_u32 s53, s53, s43"] + k3_addrs(3, 53)
    binit = []
    for mat in range(2):
        for j in range(3):
            for tl in range(4):
                for q in range(4):
                    binit.append(f"v_mul_f32 v{k3_acc(3, mat, j, tl)+q}, -v{TT+2*tl}, v{CSR+(mat*3+j)*4+q}")
    bi = chunks(binit, 3)
    BODY = {9: bs + epi_reads(3, 128), 10: ["s_waitcnt lgkmcnt(0)"] + epi_consts(KBB, False), 11: bi[0], 12: bi[1], 13: bi[2]}
    k4set = k4_dma_setup(2 if not H4 else H4 + 4)
    if HH: k4set += ["s_mul_i32 s28, s38, 3", "s_add_u32 s28, s28, s40"]
    if H4:
        assert T1 <= H4 + 4 <= PA1
        if H4 + 4 > T1: k4set += ["s_add_u32 s37, s37, s54"]
    for sig in range(9, 15):
        pst(sig, BODY.get(sig, []), pre=k3_dma_setup(1, 51) if sig == 13 else [], post={14: k4set, 10: epi_store_setup(1)}.get(sig, []))
    a(f"s_branch {LK3b}")

    a(f"{L7}:")
    NB2 = 18
    Lno = a.label("Lnojob"); Lcs = a.label("Lcsd")
    stampc(a, "k2", 0)
    def opoll(st):
        if SPEC2 and st == PB2 - 1 - env("PL2", 3): flag_poll_issue(a, 56, "o", 34, v=8)
        if SPEC2 and st == PB2 - 1: flag_poll_finish(a, 56, v=8)
    assert not SPEC2 or env("CS_LT", 7) >= PB2
    cs_setup(a, Lno, 64, 4, ptrs=True)
    EREG = [56, 60, 64] + list(range(72, 116, 4)) + [120, 124]
    def ld2(reg, q):
        a(f"s_mov_b32 s43, {q*4*7168}")
        a(f"buffer_load_dwordx4 v[{reg}:{reg+3}], v4, s[64:67], s43 offen")
    a("s_lshl_b32 s55, s45, 1")
    a("s_add_u32 s55, s55, s44")
    a("s_mul_i32 s55, s55, 14336")
    a("s_lshl_b32 s45, s46, 9")
    a("s_mov_b32 s50, s46")
    a("s_add_u32 s55, s55, s45")
    a("v_lshl_add_u32 v5, v5, 5, s55")
    srd(a, 72, 32, 8*14336, add_imm=WS_CS)
    for i in range(8): a(f"v_mov_b32 v{32+i}, 0")
    o_first_setup()
    k1_tail(0)
    EAT = env("CS_EAT", -2)
    if EAT == -2:
        for n in range(16): ld2(EREG[n], 32 + n)
    npr = [0]
    def proc(reg):
        t = 40 + 8*(npr[0] & 1); npr[0] += 1
        for d in range(4):
            a(f"v_lshlrev_b32 v{t+2*d}, 16, v{reg+d}")
            a(f"v_and_b32 v{t+2*d+1}, 0xffff0000, v{reg+d}")
        for d in range(4): a(f"v_pk_add_f32 v[{32+2*d}:{33+2*d}], v[{32+2*d}:{33+2*d}], v[{t+2*d}:{t+2*d+1}]")
    def mpf():
        if env("MPF", 0):
            a("s_mul_i32 s43, s2, 28672")
            srd(a, 76, 60, 28672, add_lo=43)
            a("v_lshlrev_b32 v19, 7, v1")
            for q in range(4):
                a(f"s_mov_b32 s43, {q*8192}")
                a("buffer_load_dword v30, v19, s[76:79], s43 offen")
    def cs_finish():
        a("s_nop 2")
        for sw in ("16", "32"):
            for d in range(8): a(f"v_mov_b32 v{40+d}, v{32+d}")
            a("s_nop 0")
            for d in range(8): a(f"v_permlane{sw}_swap_b32 v{32+d}, v{40+d}")
            for d in range(8): a(f"v_add_f32 v{32+d}, v{32+d}, v{40+d}")
        a("s_mov_b64 exec, 0xffff")
        a("buffer_store_dwordx4 v[32:35], v5, s[72:75], 0 offen sc1")
        a("buffer_store_dwordx4 v[36:39], v5, s[72:75], 0 offen offset:16 sc1")
        a("s_mov_b64 exec, -1")
    LT = env("CS_LT", 7); PRE = env("CS_PRE", 8); CLN = env("CS_LN", 4)
    todo = [128 + 4*n for n in range(32)] + EREG
    for r in todo[:PRE]: proc(r)
    todo = todo[PRE:]
    a("s_waitcnt lgkmcnt(0)")
    stamp(a, 7)
    for q in range(NB2):
        st = q - 2
        if q == 1:
            o_first()
            a("s_waitcnt vmcnt(2)")
        if q == 2: a("s_waitcnt vmcnt(0)")
        opoll(st)
        if st == EAT and EAT >= 0:
            for n in range(16): ld2(EREG[n], 32 + n)
        if EAT >= 0 and todo and todo[0] == EREG[0]: a(f"s_waitcnt vmcnt({16 if st > LT else 0})")
        if st == LT:
            assert npr[0] >= 16
            for n in range(16): ld2(128 + 4*n, 48 + n)
        elif st >= 1:
            if not todo and st >= LT + 4 and npr[0] == 48:
                a("s_waitcnt vmcnt(0)")
                todo = [128 + 4*n for n in range(16)]
            for r in todo[:CLN]: proc(r)
            todo = todo[CLN:]
        a("s_barrier")
        stampc(a, "k2", q+1)
    if LT > 16:
        for n in range(16): ld2(128 + 4*n, 48 + n)
    if npr[0] == 48:
        todo = [128 + 4*n for n in range(16)]
        for n, r in enumerate(todo):
            if n % 4 == 0: a(f"s_waitcnt vmcnt({12 - n})")
            proc(r)
    else:
        for r in todo: proc(r)
    assert npr[0] == 64
    cs_finish()
    if LT > 16: a("s_mov_b32 s55, 1")
    else:
        a("s_waitcnt vmcnt(0)")
        flag_signal(a, 56, "cs", 50, v=12)
    mpf()
    a(f"s_branch {Lcs}")
    a(f"{Lno}:")
    o_first_setup()
    k1_tail(0)
    a("s_waitcnt lgkmcnt(0)")
    for q in range(NB2):
        if q == 1:
            o_first()
            a("s_waitcnt vmcnt(2)")
        if q == 2: a("s_waitcnt vmcnt(0)")
        opoll(q - 2)
        a("s_barrier")
        stampc(a, "k2", q+1)
    mpf()
    a("s_mov_b32 s55, 0")
    a(f"{Lcs}:")
    a("s_mov_b32 s46, 1")
    x_first_setup()
    k3pf = K3PF(a, 0)
    PD = env("K3PD", 6)
    if env("K3PF", 0) or env("K3PF0", 0):
        k3pf.setup()
        for s in range(3, max(PD, env("K3PF0", 0))): k3pf.issue(s)
    S3 = env("K3_SPF", 1); S4 = env("K4_SPF", 1)
    sp3 = SPF3(a)
    if S3:
        sp3.setup(0); sp3.issue(3)
    a("s_lshl_b32 s43, s34, 14")
    srd(a, 64, 32, 16384, add_lo=43, add_imm=WS_ST2)
    srd(a, 72, 32, 8*14336, add_imm=WS_CS)
    if not SPEC3:
        a("s_barrier")
        stampc(a, "k2", 20)
        x_first()
        a("s_waitcnt vmcnt(2)")
    a("s_barrier")
    stampc(a, "k2", 21)
    stampc(a, "k3", 31)
    stampc(a, "k3", 0)
    def w7dst(i):
        if not i.startswith("s_load_dword"): return i
        q = int(i.split()[1][1:-1]) - 64
        return i.replace(f"s{64+q},", f"s{82 + q % 6},")
    STL = env("STL", 1); CSP = STL + 3
    for sig in range(15):
        if sig == 0:
            if SPEC3: flag_signal(a, 56, "h", 34, v=8)
            if LT > 16:
                Lq = a.label("Lq")
                a("s_cmp_eq_u32 s55, 0")
                a(f"s_cbranch_scc1 {Lq}")
                a("s_waitcnt vmcnt(0)")
                flag_signal(a, 56, "cs", 50, v=12)
                a(f"{Lq}:")
            else: a("s_waitcnt vmcnt(0)")
        if SPEC3 and sig == NV3 - 3 - env("PL3", 1): flag_poll_issue(a, 56, "h", 34, v=8)
        if SPEC3 and sig == NV3 - 3: flag_poll_finish(a, 56, v=8)
        if 100 + sig in ICW: code_warm(a, 78, 19, 30)
        if sig == 14: warm_jump(a, ("L3h", 0))
        if S3 and S3F:
            if sig in S3R:
                if S3R[sig] == (1, 0): sp3.setup(1)
                sp3.issue(S3R[sig][1])
        elif S3:
            if sig == env("S3A", 5): sp3.issue(8)
            if sig == env("S3B", 10):
                sp3.setup(1); sp3.issue(0)
        if sig == STL + 1:
            a("s_mul_i32 s43, s49, 96")
            a("s_add_u32 s44, s43, 95")
            a("s_lshr_b32 s43, s43, 7")
            a("s_lshr_b32 s44, s44, 7")
            a("s_add_u32 s43, s43, 16")
            a("s_add_u32 s44, s44, 16")
            a("v_mov_b32 v12, s44")
            a("v_writelane_b32 v12, s35, 0")
            a("v_writelane_b32 v12, s43, 1")
            a(f"v_add_u32 v12, {FLG['cs'][0]}, v12")
            a("v_lshlrev_b32 v12, 7, v12")
            a(f"v_mov_b32 v14, {FLG['cs'][1]}")
            a("buffer_load_dword v13, v12, s[56:59], 0 offen sc1")
        if sig == (NV3 - 2 if SPEC3 else STL):
            for n in range(16):
                a(f"s_mov_b32 s43, {n*1024}")
                a(f"buffer_load_dwordx4 v[{128+4*n}:{128+4*n+3}], v21, s[64:67], s43 offen sc1")
        if env("K3PF", 0) and sig >= 1:
            if sig + PD - 1 < 16: k3pf.issue(sig + PD - 1)
            elif sig + PD - 1 == 16:
                k3pf.part = 1; k3pf.setup()
            if 16 <= sig + PD - 1 < 19: k3pf.issue(sig + PD - 1 - 16)
        if sig == CSP:
            flag_poll_finish(a, 56, v=12)
            a("v_min_u32 v12, 55, v1")
            a("v_lshlrev_b32 v13, 4, v12")
            a("s_lshl_b32 s43, s35, 9")
            a("s_mul_i32 s44, s49, 384")
            a(f"s_add_u32 s44, s44, {8192 - 512}")
            a("v_mov_b32 v14, s44")
            a("v_mov_b32 v15, s43")
            a("v_cmp_gt_u32 vcc, 32, v12")
            a("s_nop 1")
            a("v_cndmask_b32 v14, v14, v15, vcc")
            a("v_add_u32 v14, v14, v13")
            a(f"v_add_u32 v13, {CSF}, v13")
            for mat in range(2):
                for sl in range(4):
                    d = 192 + (mat*4+sl)*4
                    a(f"s_mov_b32 s43, {(sl*2+mat)*14336}")
                    a(f"buffer_load_dwordx4 v[{d}:{d+3}], v14, s[72:75], s43 offen sc1")
        SRD_ = max(CSP + 1, NV3) if SPEC3 else CSP + 1
        LAST_ = max(CSP + 3, SRD_)
        if sig == SRD_:
            if SPEC3: a("s_waitcnt vmcnt(0)")
            for n in range(1, 16):
                for q in range(4): a(f"v_add_f32 v{128+q}, v{128+q}, v{128+4*n+q}")
            for b in (128, 130):
                a(f"v_mul_f32 v{b}, 0x3a800000, v{b}")
                a(f"v_mul_f32 v{b+1}, 0x3a800000, v{b+1}")
                a(f"v_fma_f32 v{b+1}, -v{b}, v{b}, v{b+1}")
                a(f"v_max_f32 v{b+1}, 0, v{b+1}")
                a(f"v_add_f32 v{b+1}, 0x3727c5ac, v{b+1}")
                a(f"v_rsq_f32 v{b+1}, v{b+1}")
            a(f"v_add_u32 v19, {STATS}, v21")
            a("ds_write_b128 v19, v[128:131]")
        if sig == (CSP + 3 if SRD_ != CSP + 3 else CSP + 2):
            a("s_waitcnt vmcnt(0)" if not (SPEC3 and NV3 - 2 > CSP) else "s_waitcnt vmcnt(16)")
            for mat in range(2):
                b = 192 + mat*16
                for q in range(4):
                    a(f"v_add_f32 v{b+q}, v{b+q}, v{b+4+q}")
                    a(f"v_add_f32 v{b+8+q}, v{b+8+q}, v{b+12+q}")
                for q in range(4): a(f"v_add_f32 v{b+q}, v{b+q}, v{b+8+q}")
                a(f"ds_write_b128 v13, v[{b}:{b+3}] offset:{mat*896}")
        if sig == LAST_:
            a("s_waitcnt lgkmcnt(0)")
            assert sig < 9
        for i in BODY.get(sig, []) + (epi_store_setup(1) if sig == 10 else []) + (wd_base if sig == 0 else []) + (k4set if sig == 14 else []): a(i)
        assert LAST_ - 1 == W7SKIP
        if STAMPC != "k3":
            for i in swd(sig, True): a(w7dst(i))
        a("s_barrier")
        stampc(a, "k3", sig+1)

    a(f"{LK3b}:")
    stamp(a, 10)
    if PRIO: a("s_setprio 1")
    for i in k3_reads(3, 16, 0, SET[0]): a(i)
    k3_consumer(a, 3, 16, [0])
    stamp(a, 11)
    EB = epi_b()
    if env("STBB", 0): EB = batch(EB, env("STBB", 0))
    if "e" in STRIP: EB = [i for i in EB if i.startswith(ST)]
    eb = chunks(EB, env("EB_N", 8))
    SIG_B = last_with(eb, "0") + env("SIGB_D", 2)
    POLL_A1 = PA1 - 5; POLL_B = PB - 5
    POLL_C = NP4 - 6 - 5
    assert LB == 6 and not SPECX
    UNI = PB - 4
    assert len(eb) <= UNI and SIG_B < POLL_B
    L7b = a.label("L7b")
    a("s_cmp_eq_u32 s36, 7")
    a(f"s_cbranch_scc1 {L7b}")
    for helper in (False, True):
        vm = VM(a)
        if helper: a(f"{L7b}:")
        m = k3_mfmas(3, SET[1])
        if H4: emit(a, vm, m, None)
        elif helper:
            emit(a, vm, m, None)
            a(f"s_mul_i32 s43, s38, {16*(T1-2)}")
            a("s_add_u32 s37, s37, s43")
        else:
            emit(a, vm, spread(m[:12], k4_items(2)), 2)
            emit(a, vm, spread(m[12:], k4_items(3)), 3)
        if PRIO: a("s_setprio 0")
        a("s_barrier")
        if helper: stampc(a, "k4", 0 - env("K4O", 0))
        def pslice(s, kind):
            body = eb[s] if s < len(eb) else []
            dma = (both(s + 4) if helper else s + 4 < NP4) and s >= H4
            if helper:
                if s == UNI - 1: warm_jump(a, ("LW4", 0))
                if s == SIG_B:
                    a("s_cmp_ge_u32 s50, 12")
                    a(f"s_cselect_b32 s44, {FLG['hhc'][0] - FLG['hhb'][0]}, 0")
                    a("s_add_u32 s44, s44, s34")
                    flag_signal(a, 56, "hhb", 44, v=10); vm.add("f")
                if s == POLL_C - 2: flag_poll_issue(a, 56, "hhc", 34, v=13); vm.add("q")
                if s == POLL_A1 - env("PLA", 2): flag_poll_issue(a, 56, "hha1", 34, v=10); vm.add("p")
                if s == POLL_B - env("PLB", 2): flag_poll_issue(a, 56, "hhb", 34, v=10); vm.add("p")
                if env("K4_SPF", 1):
                    if s == 0: sp4.setup()
                    for G, at in ((1, PA1 - env("S4B", 9)), (2, PB - env("S4C", 8)), (3, EB4 - env("S4D", 6))):
                        if s == at: sp4.issue(G); vm.add("f")
                if s == XSIG:
                    xflag_addr(a, 10, 0)
                    a("v_mov_b32 v11, 1")
                    a("s_mov_b64 exec, 1")
                    a("buffer_store_dword v11, v10, s[56:59], 0 offen sc1"); vm.add("f")
                    a("s_mov_b64 exec, -1")
                if s == XRCV - 1 - env("PLX", 2) and not SPECX:
                    xflag_addr(a, 10, 1)
                    a("v_mov_b32 v12, 1")
                    a("buffer_load_dword v11, v10, s[56:59], 0 offen sc1"); vm.add("p")
            if s == UNI: a(f"s_mul_i32 s40, s53, {LB*16384 if kind == 'x' else (wd_row(8*(32 + LB)) - wd_row(8*32))*2048}")
            emit(a, vm, st_last(spread(body, k4_half(s+4, 1) if s < HH else k4_items(s+4, kind if s >= UNI else None), env("FR4", 100))) if dma else body, s+4)
            w = vm.cnt(s+2) if s + 2 in vm.q else 63
            if s == SIG_B - 1: w = min(w, vm.cnt("st0"))
            if w < 63: a(f"s_waitcnt vmcnt({w})")
            if helper and s == POLL_C: flag_poll_finish(a, 56, v=13, first=vm.cnt("q"))
            if helper and s in (POLL_A1, POLL_B, -1 if SPECX else XRCV - 1): flag_poll_finish(a, 56, v=10, first=vm.cnt("p"))
            a("s_barrier")
            if helper: stampc(a, "k4", s+1 - env("K4O", 0))
        if helper:
            sp4 = SPF4(a)
            for s in range(NP4 - 1 if STAMPC == "k4" else EB4 - 2 if SPECX else XRCV): pslice(s, 'w')
            stamp(a, 12)
            stamp_flush(a)
            a(f"s_branch {Ld}")
        else:
            for s in range(UNI): pslice(s, None)
            LW = a.label("LW4")
            a("s_cmp_eq_u32 s51, 2")
            a(f"s_cbranch_scc1 {LW}")
            q0 = list(vm.q)
            for kind in ('x', 'w'):
                vm.q = list(q0)
                if kind == 'w': a(f"{LW}:")
                for s in range(UNI, NP4 - 2): pslice(s, kind)
                if STAMP:
                    stamp(a, 12)
                    stamp_flush(a)
                a(f"s_branch {Ld}")


NXS = 32 // MX
class XPF:
    G = NXS // 2
    def __init__(self, a, off, mul, sd=68, v=23):
        self.a = a; self.off = off; self.mul = mul; self.sd = sd; self.v = v
    def setup(self):
        a = self.a; v = self.v
        per = 128 // NXS
        a(f"s_mul_i32 s43, s34, {self.mul}")
        srd(a, self.sd, 32, self.mul, add_lo=43, add_imm=self.off)
        a(f"v_and_b32 v{v}, {per-1}, v1")
        a(f"s_mul_i32 s43, s49, {per}")
        a(f"v_add_u32 v{v}, s43, v{v}")
        a(f"v_lshlrev_b32 v{v}, 7, v{v}")
        a(f"v_lshrrev_b32 v19, {per.bit_length()-1}, v1")
        a(f"v_lshl_add_u32 v{v}, v19, 14, v{v}")
    def issue(self, st):
        a = self.a
        a(f"s_mov_b32 s43, {st*16384}")
        a(f"buffer_load_dword v30, v{self.v}, s[{self.sd}:{self.sd+3}], s43 offen sc1")


class K3PF:
    def __init__(self, a, part): self.a = a; self.part = part
    def setup(self):
        a = self.a
        if self.part == 0: a("s_lshl_b32 s43, s35, 8")
        else:
            a("s_mul_i32 s43, s49, 192")
            a("s_and_b32 s43, s43, 0xffffff80")
            a("s_add_u32 s43, s43, 4096")
        a("s_sub_u32 s44, 7340032, s43")
        for d, b in ((88, 4), (92, 6)):
            a(f"s_add_u32 s{d}, s{b}, s43")
            a(f"s_addc_u32 s{d+1}, s{b+1}, 0")
            a(f"s_mov_b32 s{d+2}, s44")
            a(f"s_mov_b32 s{d+3}, 0x20000")
        per = 64 // MX
        a("v_lshrrev_b32 v31, 1, v1")
        a(f"v_min_u32 v31, {min(per, 32)-1}, v31")
        a(f"s_mul_i32 s43, s48, {per}")
        a("v_add_u32 v31, s43, v31")
        a("v_mul_u32_u24 v31, 7168, v31")
        a("v_and_b32 v19, 1, v1")
        a("v_lshl_add_u32 v31, v19, 7, v31")
    def issue(self, st):
        a = self.a
        a(f"s_mov_b32 s43, {st*64*7168}")
        a("buffer_load_dword v30, v31, s[88:91], s43 offen")
        a("buffer_load_dword v30, v31, s[92:95], s43 offen")


S3F = env("S3F", 1)
S3R = {2: (0, 7), 6: (0, 11), 9: (0, 15), 10: (1, 0), 14: (1, 4), 18: (1, 8), 22: (1, 12)}
class SPF3:
    def __init__(self, a): self.a = a
    def setup(self, part):
        a = self.a
        for d, b in ((88, 4), (92, 6)): srd(a, d, b, 7340032)
        a("s_lshr_b32 s43, s35, 3")
        a("v_and_b32 v19, 1, v1")
        a(f"v_bfe_u32 v23, v1, 2, {2 if S3F else 3}")
        if part == 0:
            a("s_lshl_b32 s44, s43, 3")
            a("s_add_u32 s44, s44, 1")
            a("v_lshl_add_u32 v23, v19, 2, v23")
            a("v_add_u32 v23, s44, v23")
            a("s_lshl_b32 s43, s43, 11")
            a("s_add_u32 s43, s43, 384")
            a("s_movk_i32 s44, 1024")
        elif NBM:
            a("s_lshl_b32 s44, s43, 1")
            a("s_add_u32 s44, s44, 6")
            a("v_add_u32 v23, s44, v23")
            a(f"s_mul_i32 s44, s43, {2 if NBM == 1 else 6}")
            a("s_add_u32 s44, s44, 1")
            a("v_mad_u32_u24 v23, v19, s44, v23")
            a("s_lshl_b32 s44, s43, 10")
            a("s_lshl_b32 s43, s43, 11")
            a(f"s_sub_u32 s43, {51*128}, s43")
        else:
            a("s_mul_i32 s44, s43, 10")
            a("s_add_u32 s44, s44, 2")
            a("v_add_u32 v23, s44, v23")
            a("s_lshl_b32 s44, s43, 2")
            a("s_sub_u32 s44, 5, s44")
            a("v_mad_u32_u24 v23, v19, s44, v23")
            a("s_lshl_b32 s44, s43, 10")
            a("s_xor_b32 s44, s44, 1024")
            a("s_lshl_b32 s43, s43, 11")
            a(f"s_add_u32 s43, s43, {35*128}")
        a("s_lshr_b32 s45, s2, 3")
        a("s_mul_i32 s45, s45, 14336")
        a("s_add_u32 s43, s43, s45")
        a("v_mul_lo_u32 v31, v19, s44")
        a("v_bfe_u32 v19, v1, 1, 1")
        a("v_mul_u32_u24 v19, 7168, v19")
        a("v_add3_u32 v31, v31, v19, s43")
    def issue(self, st):
        a = self.a
        a(f"v_add_u32 v19, {st}, v23")
        a("v_and_b32 v19, 15, v19")
        a(f"v_mul_u32_u24 v19, {64*7168}, v19")
        a("v_add_u32 v19, v19, v31")
        a("buffer_load_dword v30, v19, s[88:91], 0 offen")
        a("buffer_load_dword v30, v19, s[92:95], 0 offen")


class SPF4:
    def __init__(self, a): self.a = a
    def setup(self):
        a = self.a
        srd(a, 80, 60, 7340032)
        a("v_and_b32 v29, 31, v1")
        a("v_lshlrev_b32 v29, 11, v29")
        a("s_and_b32 s43, s35, 8")
        a("s_or_b32 s43, s43, 3")
        a("s_lshl_b32 s43, s43, 7")
        a("v_add_u32 v29, s43, v29")
    def issue(self, G):
        a = self.a
        a("s_lshr_b32 s44, s2, 3")
        if G == 3: a("s_and_b32 s44, s44, 15")
        a(f"s_lshl_b32 s44, s44, {17 if G < 2 else 16}")
        a(f"s_add_u32 s43, s44, {[0, 32, 2048, 3072][G]*2048}")
        a("buffer_load_dword v30, v29, s[80:83], s43 offen")
```

```python
import os, struct
from common import *

def fh(x): return "0x%08x" % struct.unpack("<I", struct.pack("<f", x))[0]
def env(k, d): return int(os.environ.get(k, str(d)))

C0_ = -2.0*0.7978845608028654*1.4426950408889634
C1_ = C0_*0.044715
XOR = env("XOR", 1)
NBM = env("NBM", 2)
XF = os.environ.get("XF", " sc1")
SET = [32, 80]
ACC = 128
NST4 = 56


class VM:
    def __init__(self, a): self.a = a; self.q = []
    def add(self, tag, n=1): self.q += [tag]*n
    def cnt(self, tag):
        idx = max(i for i, t in enumerate(self.q) if t == tag)
        return len(self.q) - 1 - idx
    def wait(self, tag):
        return f"s_waitcnt vmcnt({min(63, self.cnt(tag))})"
    def reset(self): self.q = []


def spread(main, items, frac=100):
    if frac < 100:
        c = len(main)*frac//100
        return spread(main[:c], items) + main[c:]
    out = []
    n, k = len(main), len(items)
    j = 0
    for i in range(n + 1):
        while j < k and j*n <= i*k:
            out += items[j]; j += 1
        if i < n: out.append(main[i])
    while j < k: out += items[j]; j += 1
    return out


def lane_ig(a):
    a("v_and_b32 v17, 15, v1")
    a("v_lshrrev_b32 v18, 4, v1")


def g2_addrs():
    r = []
    r.append("v_lshlrev_b32 v19, 11, v18")
    r.append("v_lshl_add_u32 v19, v17, 4, v19")
    r.append("s_lshl_b32 s43, s36, 9")
    r.append("v_add_u32 v2, s43, v19")
    r.append(f"v_add_u32 v3, {REG}, v2")
    r.append(f"v_add_u32 v4, {2*REG}, v2")
    r.append("v_lshrrev_b32 v19, 2, v17")
    r.append("v_lshl_add_u32 v20, v18, 2, v19")
    r.append("v_bfe_u32 v21, v20, 1, 2")
    r.append("v_lshlrev_b32 v20, 7, v20")
    r.append("v_lshl_add_u32 v20, v21, 5, v20")
    r.append("v_and_b32 v19, 3, v1")
    r.append("v_lshl_add_u32 v20, v19, 3, v20")
    r.append("v_add_u32 v5, 16384, v20")
    for t in range(1, 4): r.append(f"v_xor_b32 v{5+t}, {32*t}, v5")
    for rg in range(1, 3):
        for t in range(4): r.append(f"v_add_u32 v{5+4*rg+t}, {rg*REG}, v{5+t}")
    return r

def g2_reads(slot, base):
    rg, so = slot >> 1, (slot & 1)*SLOT
    def xr(kb, tl): return f"ds_read_b128 v[{base+(kb*2+tl)*4}:{base+(kb*2+tl)*4+3}], v{2+rg} offset:{so + kb*8192 + tl*256}"
    def wr(kb, t, h):
        d = base + 16 + (kb*4+t)*4 + 2*h
        return f"ds_read_b64_tr_b16 v[{d}:{d+1}], v{5+4*rg+t} offset:{so + kb*4096 + h*2048}"
    r = []
    for kb in range(2):
        r += [xr(kb, 0), wr(kb, 0, 0), wr(kb, 0, 1), wr(kb, 1, 0), wr(kb, 1, 1), xr(kb, 1), wr(kb, 2, 0), wr(kb, 2, 1), wr(kb, 3, 0), wr(kb, 3, 1)]
    return r

def g2_mfmas(base):
    r = []
    for kb in range(2):
        for tl in range(2):
            for t in range(4):
                acc = ACC + (tl*4+t)*4
                w = base + 16 + (kb*4+t)*4; x = base + (kb*2+tl)*4
                r.append(f"v_mfma_f32_16x16x32_bf16 v[{acc}:{acc+3}], v[{w}:{w+3}], v[{x}:{x+3}], v[{acc}:{acc+3}]")
    return r

def g2_stage(a, s, slot_next, pre=None):
    a("s_waitcnt lgkmcnt(0)" if pre is None else f"s_waitcnt vmcnt({pre}) lgkmcnt(0)")
    a("s_barrier")
    m = g2_mfmas(SET[s & 1])
    rd = [] if slot_next is None else g2_reads(slot_next, SET[(s+1) & 1])
    k = 0
    for i in range(16):
        a(m[i])
        for q in range(2 if i < 6 else 1):
            if k < len(rd): a(rd[k]); k += 1

def g2_loop(a, s0, nst, off, pres={}):
    s = s0
    while s in pres or (s % 6 != 0 and False):
        g2_stage(a, s, (s+1+off) % 6, pres[s]); s += 1
    nl = (nst - 1 - s)//6
    if nl > 0:
        L = a.label("Lg2")
        a(f"s_mov_b32 s41, {nl}")
        a(f"{L}:")
        for q in range(6): g2_stage(a, s+q, (s+q+1+off) % 6)
        a("s_sub_u32 s41, s41, 1")
        a("s_cmp_lg_u32 s41, 0")
        a(f"s_cbranch_scc1 {L}")
        s += 6*nl
    while s < nst:
        g2_stage(a, s, None if s == nst-1 else (s+1+off) % 6); s += 1


def k2_addrs():
    r = g2_addrs()
    r = [i for i in r if not i.startswith("v_add_u32 v3,")][:16]
    r = [i.replace("v_add_u32 v5, 16384,", "v_add_u32 v5, 0x10000,") for i in r]
    return r + [f"v_add_u32 v{9+t}, 0x10000, v{5+t}" for t in range(4)]
def k2_reads(s):
    base = SET[s & 1]; xo = (s % 4)*16384; ws = s % 10
    def xr(kb, tl): return f"ds_read_b128 v[{base+(kb*2+tl)*4}:{base+(kb*2+tl)*4+3}], v2 offset:{xo + kb*8192 + tl*256}"
    def wr(kb, t, h):
        d = base + 16 + (kb*4+t)*4 + 2*h
        return f"ds_read_b64_tr_b16 v[{d}:{d+1}], v{5 + 4*(ws >> 3) + t} offset:{(ws & 7)*8192 + kb*4096 + h*2048}"
    r = []
    for kb in range(2):
        r += [xr(kb, 0), wr(kb, 0, 0), wr(kb, 0, 1), wr(kb, 1, 0), wr(kb, 1, 1), xr(kb, 1), wr(kb, 2, 0), wr(kb, 2, 1), wr(kb, 3, 0), wr(kb, 3, 1)]
    return r
def k2_items(s, isw, vA=23):
    m0 = 65536 - 16384 + (s % 10)*8192 if isw else (s % 4)*16384
    r = [[f"s_add_u32 m0, s39, {m0 + k*1024}", "s_add_u32 s37, s37, s38", f"buffer_load_dwordx4 v{vA}, s[8:11], s37 offen{XF} lds"] for k in range(8)]
    r[0] = ["s_add_u32 s42, s42, 1", "s_xor_b32 s37, s42, s35" if XOR else "s_and_b32 s37, s42, 15", r[0][0], f"s_lshl_b32 s37, s37, {17 if isw else 14}", r[0][2]]
    return r


def k3_addrs(nj, t0):
    r = []
    r.append("v_lshlrev_b32 v19, 11, v18")
    r.append("v_lshl_add_u32 v19, v17, 4, v19")
    r.append("s_lshl_b32 s43, s46, 10")
    r.append("v_add_u32 v2, s43, v19")
    r.append(f"v_add_u32 v3, {REG}, v2")
    r.append(f"v_add_u32 v4, {2*REG}, v2")
    r.append("v_lshrrev_b32 v19, 2, v17")
    r.append("v_lshl_add_u32 v20, v18, 2, v19")
    r.append("v_and_b32 v21, 7, v20")
    r.append("v_lshlrev_b32 v20, 8, v20")
    r.append("v_and_b32 v19, 3, v1")
    r.append("v_lshl_add_u32 v20, v19, 3, v20")
    for j in range(nj):
        r.append(f"s_add_u32 s43, s{t0}, {j}")
        r.append("v_xor_b32 v19, s43, v21")
        r.append(f"v_lshl_add_u32 v{5+j}, v19, 5, v20")
    for rg in range(1, 3):
        for j in range(nj): r.append(f"v_add_u32 v{5+4*rg+j}, {rg*REG}, v{5+j}")
    return r

def k3_acc(nj, mat, j, tl): return ACC + ((mat*nj + j)*4 + tl)*4

def k3_reads(nj, sig, kk, base):
    rg = (sig + 2) % 3
    def xr(tl): return f"ds_read_b128 v[{base+4*tl}:{base+4*tl+3}], v{2+rg} offset:{kk*8192 + tl*256}"
    def wr(mat, j, h):
        d = base + 16 + (mat*nj+j)*4 + 2*h
        return f"ds_read_b64_tr_b16 v[{d}:{d+1}], v{5+4*rg+j} offset:{16384*(1+mat) + kk*8192 + h*4096}"
    r = [xr(0), wr(0, 0, 0), wr(0, 0, 1), xr(1), xr(2), xr(3), wr(1, 0, 0), wr(1, 0, 1)]
    for j in range(1, nj): r += [wr(0, j, 0), wr(0, j, 1), wr(1, j, 0), wr(1, j, 1)]
    return r

def k3_mfmas(nj, base):
    r = []
    order = [(j, mat, tl) for j in range(nj) for mat in range(2) for tl in range(4)]
    if env("MORD", 2) == 1: order = [(j, mat, tl) for tl in range(4) for j in range(nj) for mat in range(2)]
    if env("MORD", 2) == 2:
        order = [(j, mat, tl if (2*j + mat) % 2 == 0 else 3 - tl) for j in range(nj) for mat in range(2) for tl in range(4)]
    for (j, mat, tl) in order:
        if True:
            if True:
                acc = k3_acc(nj, mat, j, tl)
                w = base + 16 + (mat*nj+j)*4; x = base + 4*tl
                r.append(f"v_mfma_f32_16x16x32_bf16 v[{acc}:{acc+3}], v[{w}:{w+3}], v[{x}:{x+3}], v[{acc}:{acc+3}]")
    return r

def chk_ops(regs, t=19):
    r = [f"v_max3_u32 v{t}, v{regs[0]}, v{regs[1]}, v{regs[2]}"]
    rest = regs[3:]
    while len(rest) >= 2:
        r.append(f"v_max3_u32 v{t}, v{t}, v{rest[0]}, v{rest[1]}"); rest = rest[2:]
    if rest: r.append(f"v_max_u32 v{t}, v{t}, v{rest[0]}")
    r.append(f"v_cmp_eq_u32 vcc, -1, v{t}")
    return r
def chk_fix(a, regs, pre, loads):
    Lo = a.label("Lok"); Lr = a.label("Lre"); Lf = a.label("Lfx")
    a(f"s_cbranch_vccnz {Lf}")
    a(f"{Lo}:")
    COLD.extend([f"{Lf}:"] + pre + ["s_mov_b32 s45, 0x20000", f"{Lr}:"] + loads + ["s_waitcnt vmcnt(0)"] + chk_ops(regs) +
                ["s_sub_u32 s45, s45, 1", "s_cmp_eq_u32 s45, 0", f"s_cbranch_scc1 {Lo}", "s_nop 2", f"s_cbranch_vccnz {Lr}", f"s_branch {Lo}"])
def k3_fix(a, sig, kk, base):
    chk_fix(a, list(range(base, base+16)),
            [f"s_{'xor_b32' if XOR else 'add_u32'} s44, s35, {sig}", "s_and_b32 s44, s44, 15", "s_lshl_b32 s44, s44, 14", f"s_add_u32 s44, s44, {kk*8192}"],
            [f"buffer_load_dwordx4 v[{base+4*tl}:{base+4*tl+3}], v2, s[12:15], s44 offen offset:{tl*256} sc1" for tl in range(4)])
def k3_half_chk(a, nj, cur, sig, kk, nxt):
    m = k3_mfmas(nj, cur); rd = k3_reads(nj, sig, kk, nxt)
    for i in interleave(m[:len(rd)], rd): a(i)
    a(f"s_waitcnt lgkmcnt({len(rd) - 6})")
    for i in interleave(m[len(rd):], chk_ops(list(range(nxt, nxt+16)))): a(i)
    a("s_nop 1")
    k3_fix(a, sig, kk, nxt)

def k3_half1(a, nj, sig, vmw=None):
    a("s_waitcnt lgkmcnt(0)")
    for i in interleave(k3_mfmas(nj, SET[0]), k3_reads(nj, sig, 1, SET[1])): a(i)
    a("s_waitcnt lgkmcnt(0)" if vmw is None else f"s_waitcnt vmcnt({vmw}) lgkmcnt(0)")
    a("s_barrier")
def k3_half2(a, nj, sig):
    for i in interleave(k3_mfmas(nj, SET[1]), k3_reads(nj, sig+1, 0, SET[0])): a(i)

def k3_consumer(a, nj, sig0, vmw, n=16):
    L = a.label("Lk3")
    a(f"s_mov_b32 s41, {(n-1)//3}")
    a(f"{L}:")
    for q in range(3):
        k3_half1(a, nj, sig0+q, vmw[q] if q < len(vmw) else None)
        k3_half2(a, nj, sig0+q)
    a("s_sub_u32 s41, s41, 1")
    a("s_cmp_lg_u32 s41, 0")
    a(f"s_cbranch_scc1 {L}")
    for q in range((n-1)//3*3, n-1):
        k3_half1(a, nj, sig0+q)
        k3_half2(a, nj, sig0+q)
    k3_half1(a, nj, sig0+n-1)


def k3_dma_setup(part, psg, vE=22, first=0):
    r = []
    if part == 0: r.append("s_lshl_b32 s43, s35, 8")
    else:
        r.append("s_mul_i32 s43, s49, 192")
        r.append("s_and_b32 s43, s43, 0xffffff80")
        r.append("s_add_u32 s43, s43, 4096")
    r.append(f"s_cmp_eq_u32 s{psg}, 1")
    r.append("s_cselect_b32 s8, s4, s6")
    r.append("s_cselect_b32 s9, s5, s7")
    r.append("s_sub_u32 s10, 7340032, s43")
    r.append("s_lshl_b32 s44, s34, 18")
    r.append(f"s_add_u32 s44, s44, {WS_H}")
    r.append("s_movk_i32 s38, 28672")
    r.append(f"s_cmp_eq_u32 s{psg}, 0")
    r.append("s_cselect_b32 s8, s32, s8")
    r.append("s_cselect_b32 s9, s33, s9")
    r.append("s_cselect_b32 s10, 262144, s10")
    r.append("s_cselect_b32 s43, s44, s43")
    r.append("s_cselect_b32 s38, 1024, s38")
    r.append("s_cselect_b32 s45, 0, -1")
    r.append("s_add_u32 s8, s8, s43")
    r.append("s_addc_u32 s9, s9, 0")
    r.append("s_mov_b32 s11, 0x20000")
    r.append("s_lshl_b32 s40, s38, 4")
    r.append(f"s_mov_b32 s42, {first - 1}" if XOR else f"s_add_u32 s42, s35, {first + 15}")
    r.append(f"s_lshl_b32 s39, s{psg}, 14")
    r.append("v_lshrrev_b32 v19, 4, v1")
    r.append("v_lshlrev_b32 v20, 5, v19")
    r.append("v_mul_u32_u24 v19, 6912, v19")
    r.append("v_and_b32 v19, s45, v19")
    r.append("v_and_b32 v20, s45, v20")
    r.append("v_lshlrev_b32 v21, 4, v1")
    r.append("v_xor_b32 v21, v21, v20")
    r.append(f"v_add_u32 v{vE}, v21, v19")
    r.append("s_and_b32 s45, s45, 128")
    r.append(f"v_xor_b32 v{vE+1}, s45, v{vE}")
    return r

def k3_items(sig, vE=22):
    rg = (sig + 2) % 3
    r = [[f"s_add_u32 m0, s39, {rg*REG + j*1024}", "s_add_u32 s37, s37, s38",
          f"buffer_load_dwordx4 v{vE + (j & 1)}, s[8:11], s37 offen{XF} lds"] for j in range(16)]
    r[0] = ["s_add_u32 s42, s42, 1", "s_xor_b32 s37, s42, s35" if XOR else "s_and_b32 s37, s42, 15", r[0][0], "s_mul_i32 s37, s37, s40", r[0][2]]
    return r

def g2_dma_setup(psg, A_off, A_mul, A_bytes, K, wreg, vA=21, hop=8):
    r = []
    r.append(f"s_mul_i32 s44, s34, {A_mul}")
    r.append(f"s_lshl_b32 s39, s{psg}, 13")
    r.append("s_add_u32 s44, s44, s39")
    r.append(f"s_add_u32 s44, s44, {A_off}")
    r.append("s_lshl_b32 s43, s35, 7")
    r.append(f"s_mov_b32 s10, {A_bytes - 8192}")
    r.append("s_movk_i32 s38, 1024")
    r.append("s_movk_i32 s40, 9216")
    r.append(f"s_cmp_eq_u32 s{psg}, 2")
    r.append(f"s_cselect_b32 s8, s{wreg}, s32")
    r.append(f"s_cselect_b32 s9, s{wreg+1}, s33")
    r.append(f"s_cselect_b32 s10, {K*2048 - 1920}, s10")
    r.append("s_cselect_b32 s43, s43, s44")
    r.append("s_cselect_b32 s38, 16384, s38")
    r.append(f"s_cselect_b32 s40, {hop*2048}, s40")
    r.append(f"s_cselect_b32 s55, {hop*2048}, s38")
    r.append("s_cselect_b32 s45, -1, 0")
    r.append("s_add_u32 s8, s8, s43")
    r.append("s_addc_u32 s9, s9, 0")
    r.append("s_mov_b32 s11, 0x20000")
    r.append("s_sub_u32 s37, 0, s40")
    r.append("v_lshrrev_b32 v19, 3, v1")
    r.append("v_mul_u32_u24 v19, 1920, v19")
    r.append("v_lshrrev_b32 v20, 4, v1")
    r.append("v_lshlrev_b32 v20, 5, v20")
    r.append("v_and_b32 v19, s45, v19")
    r.append("v_and_b32 v20, s45, v20")
    r.append(f"v_lshlrev_b32 v{vA}, 4, v1")
    r.append(f"v_xor_b32 v{vA}, v{vA}, v20")
    r.append(f"v_add_u32 v{vA}, v{vA}, v19")
    return r

def g2_items(slot, vA=21, wrows=None):
    r = []
    for k in range(8):
        if wrows is None: inc = f"s_add_u32 s37, s37, s{40 if k == 0 else 55 if k == 4 else 38}"
        else: inc = f"s_add_u32 s37, s37, {(wrows[k]*2048) & 0xffffffff}"
        r.append([f"s_add_u32 m0, s39, {slot*SLOT + k*1024}", inc, f"buffer_load_dwordx4 v{vA}, s[8:11], s37 offen{XF} lds"])
    return r

BORD = [0, 1, 3, 4, 5, 6, 8, 9, 10, 11, 14, 15, 2, 7, 12, 13]
def wd_row(item):
    if item < 256:
        s, k = item >> 3, item & 7
        return 128*(s & 15) + 32*(s >> 4) + 64*(k >> 2) + 8*(k & 3)
    q = item - 256
    return 2048 + 96*BORD[q // 12] + [0, 8, 16, 24, 48, 56, 64, 72, 32, 80, 40, 88][q % 12]


CSR = 48
TT = 80
def epi_reads(nj, csbase, TT=TT):
    rd = []
    rd.append("s_lshl_b32 s43, s46, 9")
    rd.append(f"s_add_u32 s43, s43, {STATS}")
    rd.append("v_lshl_add_u32 v19, v17, 3, s43")
    for tl in range(4): rd.append(f"ds_read_b64 v[{TT+2*tl}:{TT+2*tl+1}], v19 offset:{tl*128}")
    rd.append(f"s_mul_i32 s43, s47, {nj*64}")
    rd.append(f"s_add_u32 s43, s43, {CSF + csbase*4}")
    rd.append("v_lshl_add_u32 v19, v18, 4, s43")
    for mat in range(2):
        for j in range(nj):
            d = CSR + (mat*nj+j)*4
            rd.append(f"ds_read_b128 v[{d}:{d+3}], v19 offset:{mat*896 + j*64}")
    return rd
def epi_consts(KB, mean=True, SR=TT):
    c = []
    for tl in range(4):
        mn, rs = SR+2*tl, SR+2*tl+1
        if mean: c.append(f"v_mov_b32 v{KB+tl}, v{mn}")
        c.append(f"v_mul_f32 v{TT+8}, v{rs}, v{rs}")
        c.append(f"v_mul_f32 v{KB+4+tl}, {fh(C0_)}, v{rs}")
        c.append(f"v_mul_f32 v{TT+9}, {fh(C1_)}, v{rs}")
        c.append(f"v_rcp_f32 v{KB+12+tl}, v{TT+8}")
        c.append(f"v_mul_f32 v{KB+8+tl}, v{TT+9}, v{TT+8}")
    return c

def epi_group(nj, tl, j, out, KB, ln=True):
    G = k3_acc(nj, 0, j, tl); U = k3_acc(nj, 1, j, tl)
    cg = CSR + j*4; cu = CSR + (nj+j)*4
    KM, K0, K1, KI = KB+tl, KB+4+tl, KB+8+tl, KB+12+tl
    T = TT + 4*(j & 1)
    r = []
    if ln:
        for q in range(4): r.append(f"v_fma_f32 v{G+q}, -v{KM}, v{cg+q}, v{G+q}")
        for q in range(4): r.append(f"v_fma_f32 v{U+q}, -v{KM}, v{cu+q}, v{U+q}")
    for q in range(4): r.append(f"v_mul_f32 v{T+q}, v{G+q}, v{G+q}")
    for q in range(4): r.append(f"v_fma_f32 v{T+q}, v{T+q}, v{K1}, v{K0}")
    for q in range(4): r.append(f"v_mul_f32 v{T+q}, v{T+q}, v{G+q}")
    for q in range(4): r.append(f"v_exp_f32 v{T+q}, v{T+q}")
    for q in range(4): r.append(f"v_mul_f32 v{U+q}, v{G+q}, v{U+q}")
    for q in range(4): r.append(f"v_fma_f32 v{T+q}, v{T+q}, v{KI}, v{KI}")
    for q in range(4): r.append(f"v_rcp_f32 v{T+q}, v{T+q}")
    for q in range(4): r.append(f"v_mul_f32 v{U+q}, v{U+q}, v{T+q}")
    r.append(f"v_cvt_pk_bf16_f32 v{out}, v{U}, v{U+1}")
    r.append(f"v_cvt_pk_bf16_f32 v{out+1}, v{U+2}, v{U+3}")
    return r

ST = "#ST "
KA, KBB = 32, 224
def epi_a():
    r = []
    for q in range(2):
        for tl in range(4):
            o = 96 + 4*tl
            r += epi_group(4, tl, 2*q, o, KA) + epi_group(4, tl, 2*q+1, o+2, KA)
            r.append(ST + f"{q}buffer_store_dwordx4 v[{o}:{o+3}], v27, s[24:27], {'s53' if q else '0'} offen offset:{tl*256} sc1")
    return r
def epi_b():
    r = []
    for tp in range(2):
        lo = 112 + 4*tp
        for tl in (2*tp, 2*tp+1):
            o = 96 + 4*tl
            r += epi_group(3, tl, 0, o, KBB, False) + epi_group(3, tl, 1, o+2, KBB, False)
            r.append(ST + f"0buffer_store_dwordx4 v[{o}:{o+3}], v27, s[24:27], 0 offen offset:{tl*256} sc1")
            r += epi_group(3, tl, 2, lo + 2*(tl & 1), KBB, False)
        r.append("s_nop 1")
        r.append(f"v_permlane32_swap_b32 v{lo}, v{lo+2}")
        r.append(f"v_permlane32_swap_b32 v{lo+1}, v{lo+3}")
        r.append(ST + f"0buffer_store_dwordx4 v[{lo}:{lo+3}], v28, s[24:27], 0 offen offset:{tp*512} sc1")
    return r

def epi_store_setup(part):
    r = []
    r.append(f"s_mul_i32 s43, s34, {HH_M}")
    if part == 1:
        tab = sum(BORD.index(t) << (4*t) for t in range(16))
        r += [f"s_mov_b32 s44, {tab & 0xffffffff}", f"s_mov_b32 s45, {tab >> 32}", "s_lshl_b32 s50, s49, 2", "s_lshr_b64 s[44:45], s[44:45], s50", "s_and_b32 s50, s44, 15"]
    r.append(f"s_mul_i32 s44, s{35 if part == 0 else 50}, {16384 if part == 0 else 24576}")
    r.append("s_add_u32 s43, s43, s44")
    r.append(f"s_add_u32 s43, s43, {WS_HH + (0 if part == 0 else 524288)}")
    r.append("s_add_u32 s24, s32, s43")
    r.append("s_addc_u32 s25, s33, 0")
    r.append(f"s_mov_b32 s26, {262144 + 16384 if part == 0 else 24576}")
    r.append("s_mov_b32 s27, 0x20000")
    r.append("s_mov_b32 s53, 262144")
    r.append("s_lshl_b32 s43, s47, 13")
    r.append("s_lshl_b32 s44, s46, 10")
    r.append("s_add_u32 s43, s43, s44")
    r.append("v_lshlrev_b32 v19, 11, v18")
    r.append("v_lshl_add_u32 v19, v17, 4, v19")
    r.append("v_add_u32 v27, s43, v19")
    if part == 1:
        r.append("s_lshl_b32 s43, s47, 12")
        r.append("s_add_u32 s43, s43, s44")
        r.append("s_add_u32 s43, s43, 16384")
        r.append("v_and_b32 v19, 1, v18")
        r.append("v_lshlrev_b32 v19, 11, v19")
        r.append("v_lshrrev_b32 v20, 1, v18")
        r.append("v_lshl_add_u32 v19, v20, 8, v19")
        r.append("v_lshl_add_u32 v19, v17, 4, v19")
        r.append("v_add_u32 v28, s43, v19")
    return r

STRIP = os.environ.get("STRIP", "").split(",")
def strip(lst, key):
    return [("s_nop 0" if key in STRIP else i) for i in lst]
_k3_mfmas, _k3_reads, _k3_items, _g2_mfmas, _g2_reads, _g2_items = k3_mfmas, k3_reads, k3_items, g2_mfmas, g2_reads, g2_items
def k3_mfmas(*x): return strip(_k3_mfmas(*x), "m3")
def k3_reads(*x): return strip(_k3_reads(*x), "r3")
def g2_mfmas(*x): return strip(_g2_mfmas(*x), "m4")
def g2_reads(*x): return strip(_g2_reads(*x), "r4")
def k3_items(*x, **k):
    r = _k3_items(*x, **k)
    if "d3" in STRIP: r = [g[:-1] + ["s_nop 0 ;buffer_load lds"] for g in r]
    if "h3" in STRIP: r[0][3] = "s_mov_b32 s37, 0"
    return r
def g2_items(*x, **k):
    r = _g2_items(*x, **k)
    if "d4" in STRIP: r = [g[:2] + ["s_nop 0 ;buffer_load lds"] for g in r]
    if "h4" in STRIP: r[0][1] = "s_mov_b32 s37, 0x20000"
    return r


T1 = env("T1", 4); LB = env("LB", 6)
H4 = env("H4", 0)
HH = env("HH", 0)
assert not HH or (T1 == 4 and not H4)
A0B = (16 - T1)//2
PA1 = T1 + A0B; PB = PA1 + 8; EB4 = PB + LB; NP4 = EB4 + 24 - 2*LB
assert T1 % 2 == 0 and LB % 3 == 0
SX, SW = [32, 96], [64, 160]
AK, AS, RECV = 128, 192, 224
def both(pos): return T1 <= pos < EB4
def k4_stage_of(pos, kh):
    if pos < T1: return pos
    if pos < PA1: return T1 + A0B*kh + pos - T1
    if pos < PB: return 16 + 8*kh + pos - PA1
    if pos < EB4: return 32 + LB*kh + pos - PB
    return 32 + 2*LB + pos - EB4
def k4_addrs():
    r = []
    r.append("v_lshlrev_b32 v19, 11, v18")
    r.append("v_lshl_add_u32 v19, v17, 4, v19")
    r.append("s_lshl_b32 s43, s46, 10")
    r.append("v_add_u32 v2, s43, v19")
    r.append("v_add_u32 v3, 0x10000, v2")
    r.append("v_lshrrev_b32 v19, 2, v17")
    r.append("v_lshl_add_u32 v20, v18, 2, v19")
    r.append("v_bfe_u32 v21, v20, 1, 2")
    r.append("s_lshl_b32 s43, s47, 1")
    r.append("v_xor_b32 v21, s43, v21")
    r.append("v_lshlrev_b32 v20, 7, v20")
    r.append("v_lshl_add_u32 v20, v21, 5, v20")
    r.append("v_and_b32 v19, 3, v1")
    r.append("v_lshl_add_u32 v20, v19, 3, v20")
    r.append("v_add_u32 v5, 16384, v20")
    r.append("v_xor_b32 v6, 32, v5")
    r.append("v_add_u32 v7, 0x10000, v5")
    r.append("v_add_u32 v8, 0x10000, v6")
    r.append(f"s_lshl_b32 s43, s36, {12 if env('XBF', 1) else 13}")
    r.append("v_lshl_add_u32 v9, v1, 4, s43")
    r.append("s_mov_b32 s54, 0x10000")
    r.append("s_movk_i32 s52, 0x1000")
    return r
def k4_reads(pos):
    slot = (pos + 2) % 4; hi, so = slot >> 1, (slot & 1)*32768
    bx, bw = SX[pos & 1], SW[pos & 1]
    def xr(kb, tl): return f"ds_read_b128 v[{bx+(kb*4+tl)*4}:{bx+(kb*4+tl)*4+3}], v{2+hi} offset:{so + kb*8192 + tl*256}"
    def wr(c, kb, e, h):
        d = bw + ((c*2+kb)*2+e)*4 + 2*h
        return f"ds_read_b64_tr_b16 v[{d}:{d+1}], v{5+2*hi+e} offset:{so + c*8192 + kb*4096 + h*2048}"
    r = []
    for kb in range(2):
        w = [wr(c, kb, e, h) for c in range(2 if both(pos) else 1) for e in range(2) for h in range(2)]
        r += interleave(w, [xr(kb, tl) for tl in range(4)])
    return strip(r, "r4")
def k4_mfmas(pos):
    bx, bw = SX[pos & 1], SW[pos & 1]
    r = []
    for kb in range(2):
        for tl in range(4):
            for c in range(2 if both(pos) else 1):
                for e in range(2):
                    acc = (AS if c else AK) + (tl*2+e)*4
                    w = bw + ((c*2+kb)*2+e)*4; x = bx + (kb*4+tl)*4
                    r.append(f"v_mfma_f32_16x16x32_bf16 v[{acc}:{acc+3}], v[{w}:{w+3}], v[{x}:{x+3}], v[{acc}:{acc+3}]")
    return strip(r, "m4")
def k4_half(pos, hi):
    it = k4_items(pos)
    if not hi: return it[:3] + [it[3] + ["s_add_u32 s37, s37, s28"]]
    return [it[0][:-3] + ["s_add_u32 s37, s37, s28"] + it[4]] + it[5:]
def k4_masked(pos):
    it = k4_items(pos)
    if both(pos): return it
    return [g[:-1] + ["s_mov_b64 exec, s[72:73]", g[-1], "s_mov_b64 exec, -1"] for g in it]
def k4_stage(a, pos, pre=None, extra=[], items=None):
    a("s_waitcnt lgkmcnt(0)" if pre is None else f"s_waitcnt vmcnt({pre}) lgkmcnt(0)")
    a("s_barrier")
    rd = k4_reads(pos+1) if pos + 1 < NP4 else []
    seq = interleave(k4_mfmas(pos), rd)
    if items: seq = seq[:2] + spread(seq[2:], items, env("FRH", 80))
    if extra: seq = seq[:8] + spread(seq[8:], [[i] for i in extra])
    for i in seq: a(i)
def k4_dma_setup(first, vA=21):
    r = []
    r.append(f"s_mul_i32 s44, s34, {HH_M}")
    r.append("s_lshl_b32 s39, s51, 13")
    r.append("s_add_u32 s44, s44, s39")
    r.append(f"s_add_u32 s44, s44, {WS_HH}")
    r.append("s_and_b32 s43, s51, 1")
    r.append("s_xor_b32 s43, s43, s35")
    r.append("s_lshl_b32 s43, s43, 7")
    r.append(f"s_mov_b32 s10, {HH_M - 8192}")
    r.append("s_movk_i32 s38, 1024")
    r.append("s_movk_i32 s40, 9216")
    r.append("s_movk_i32 s37, 0x4000")
    r.append("s_cmp_ge_u32 s51, 2")
    r.append("s_cselect_b32 s8, s60, s32")
    r.append("s_cselect_b32 s9, s61, s33")
    r.append(f"s_cselect_b32 s10, {3584*2048 - 1920}, s10")
    r.append("s_cselect_b32 s43, s43, s44")
    r.append("s_cselect_b32 s38, 16384, s38")
    r.append(f"s_cselect_b32 s40, {40*2048}, s40")
    r.append(f"s_cselect_b32 s55, {40*2048}, s38")
    r.append(f"s_cselect_b32 s37, {128*2048}, s37")
    r.append("s_cselect_b32 s45, -1, 0")
    r.append("s_add_u32 s8, s8, s43")
    r.append("s_addc_u32 s9, s9, 0")
    r.append("s_mov_b32 s11, 0x20000")
    r.append("s_and_b32 s53, s35, 1")
    r.append(f"s_mul_i32 s54, s53, {A0B}")
    r.append("s_mul_i32 s54, s54, s37")
    r.append(f"s_mul_i32 s29, s53, {8 - A0B}")
    r.append(f"s_add_u32 s29, s29, {A0B}")
    r.append("s_mul_i32 s29, s29, s37")
    r.append(f"s_and_b32 s43, s45, {((32 - 2048)*2048) & 0xffffffff}")
    r.append("s_add_u32 s29, s29, s43")
    r.append(f"s_mul_i32 s37, s37, {first}")
    r.append("s_sub_u32 s37, s37, s40")
    r.append("v_lshrrev_b32 v19, 3, v1")
    r.append("v_mul_u32_u24 v19, 1920, v19")
    r.append("v_lshrrev_b32 v20, 4, v1")
    r.append("v_lshlrev_b32 v20, 5, v20")
    r.append("v_and_b32 v19, s45, v19")
    r.append("v_and_b32 v20, s45, v20")
    r.append(f"v_lshlrev_b32 v{vA}, 4, v1")
    r.append(f"v_xor_b32 v{vA}, v{vA}, v20")
    r.append(f"v_add_u32 v{vA}, v{vA}, v19")
    return r
assert all(wd_row(8*(32 + LB) + i) - wd_row(8*32 + i) == wd_row(8*(32 + LB)) - wd_row(8*32) for i in range(8*LB))
def k4_items(pos, kind=None, vA=21):
    slot = (pos + 2) % 4
    r = []
    for k in range(8):
        if kind is None: inc = f"s_add_u32 s37, s37, s{40 if k == 0 else 55 if k == 4 else 38}"
        else:
            st = k4_stage_of(pos, 0)
            off = st*16384 + k*1024 if kind == 'x' else wd_row(8*st + k)*2048
            inc = f"s_add_u32 s37, s40, {off}" if pos < EB4 else f"s_mov_b32 s37, {off}"
        g = [f"s_add_u32 m0, s39, {slot*32768 + k*1024}", inc, f"buffer_load_dwordx4 v{vA}, s[8:11], s37 offen{XF} lds"]
        if "d4" in STRIP: g[2] = "s_nop 0 ;buffer_load lds"
        r.append(g)
    if kind is None and pos == T1: r[0] = ["s_add_u32 s37, s37, s54"] + r[0]
    if kind is None and pos == PA1: r[0] = ["s_add_u32 s37, s37, s29"] + r[0]
    return r


def emit(a, vm, seq, tag):
    for i in seq:
        if i.startswith(ST):
            t = i[len(ST)+1:]
            if "st" in STRIP: t = "s_nop 0"
            if "stp" in STRIP: t = t.replace(" sc1", "")
            a(t); vm.add("st" + i[len(ST)])
        else:
            a(i)
            if "buffer_load" in i and i.endswith("lds"): vm.add(tag)
            elif i.startswith("buffer_"): vm.add("x")

def st_last(seq):
    if not env("STLAST", 1): return seq
    return [i for i in seq if not i.startswith(ST)] + [i for i in seq if i.startswith(ST)]
def chunks(lst, n):
    return [lst[len(lst)*k//n:len(lst)*(k+1)//n] for k in range(n)]
def flat(g): return sum(g, [])
def last_with(cs, tag): return max(k for k, c in enumerate(cs) if any(i.startswith(ST + tag) for i in c))


def phase_234(a, Ld):
    PRIO = env("PRIO", 1)
    SPEC3 = env("SPEC3", 1); NV3 = env("NV3", 7)
    SPEC2 = env("SPEC2", 1); PB2 = env("PB2", 7)
    XSN = env("XSN", 1)
    XSIG = EB4 + XSN + env("XSD", 2); XRCV = NP4 - env("XRD", 3)
    SPECX = env("SPECX", 0)
    if SPECX: XSIG = -1; XRCV = NP4 - env("XRD", 2)
    LG1 = a.label("LG1")
    def k1_tail(young, signal=False):
        stamp(a, 14)
        a(f"s_waitcnt vmcnt({young})")
        stamp(a, 15)
        a("s_barrier")
        if signal: flag_signal(a, 56, "o", 34, v=13)
        for u in range(2):
            a(f"ds_write_b128 v27, v[{68+48*u}:{71+48*u}] offset:{512*u}")
        stamp(a, 5)
        stampc(a, "k1", 20)
    flag_srd(a, 56)
    lane_ig(a)
    a("s_lshr_b32 s46, s36, 1")
    a("s_and_b32 s46, s46, 1")
    a("s_and_b32 s47, s36, 1")
    a("s_and_b32 s51, s36, 3")
    if NBM:
        a("s_bfe_u32 s49, s35, 0x20001")
        if NBM == 2:
            a("s_sub_u32 s43, 0, s49")
            a("s_and_b32 s43, s43, 3")
            a("s_cmp_ge_u32 s35, 8")
            a("s_cselect_b32 s49, s43, s49")
        a("s_lshl_b32 s49, s49, 2")
        a("s_lshr_b32 s43, s35, 3")
        a("s_lshl_b32 s43, s43, 1")
        a("s_add_u32 s49, s49, s43")
        a("s_and_b32 s43, s35, 1")
        a("s_add_u32 s49, s49, s43")
    else:
        a("s_mov_b32 s49, s35")
    a("s_waitcnt lgkmcnt(0)")
    a("s_cmp_ge_u32 s36, 4")
    a(f"s_cbranch_scc1 {LG1}")

    def o_first_setup():
        a("s_lshl_b32 s43, s34, 18")
        srd(a, 12, 32, 262144, add_lo=43, add_imm=WS_O)
        a("v_lshlrev_b32 v21, 4, v1")
        a("s_lshl_b32 s54, s36, 11")
        for sg in (1, 2):
            a(f"s_{'xor_b32' if XOR else 'add_u32'} s43, s35, {sg}")
            a("s_and_b32 s43, s43, 15")
            a("s_lshl_b32 s43, s43, 14")
            a(f"s_add_u32 s{29+sg}, s43, s54")
    def o_first():
        for sg in (1, 2):
            for e in range(2):
                a(f"s_add_u32 m0, s54, {sg*16384 + e*1024}")
                a(f"s_add_u32 s43, s{29+sg}, {e*1024}")
                a(f"buffer_load_dwordx4 v21, s[12:15], s43 offen{XF} lds")
    for i in k2_addrs(): a(i)
    a("s_lshl_b32 s43, s34, 18")
    a("s_lshl_b32 s44, s35, 14")
    a("s_add_u32 s43, s43, s44")
    srd(a, 20, 32, 16384, add_lo=43, add_imm=WS_H)
    a("s_lshl_b32 s43, s34, 14")
    a("s_lshl_b32 s44, s35, 10")
    a("s_add_u32 s43, s43, s44")
    srd(a, 24, 32, 1024, add_lo=43, add_imm=WS_ST2)
    a("s_movk_i32 s50, 0x2000")
    a("v_lshrrev_b32 v19, 1, v18")
    a("v_lshl_add_u32 v19, v19, 4, v17")
    a("s_lshl_b32 s43, s36, 5")
    a("v_add_u32 v19, s43, v19")
    a("v_and_b32 v20, 1, v18")
    a("v_lshlrev_b32 v20, 2, v20")
    a("v_lshl_add_u32 v22, v19, 3, v20")
    o_first_setup()
    k1_tail(0)
    for k in range(4):
        a(f"v_permlane16_swap_b32 v{240+4*k}, v{242+4*k}")
        a(f"v_permlane16_swap_b32 v{241+4*k}, v{243+4*k}")
    for k in range(8):
        for h in range(2):
            a(f"v_lshlrev_b32 v{ACC+4*k+2*h}, 16, v{240+2*k+h}")
            a(f"v_and_b32 v{ACC+4*k+2*h+1}, 0xffff0000, v{240+2*k+h}")
    a("s_waitcnt lgkmcnt(0)")
    a("s_barrier")
    o_first()
    for i in k2_reads(0): a(i)
    a("s_waitcnt lgkmcnt(0)")
    for i in g2_mfmas(SET[0]): a(i)
    a("s_waitcnt vmcnt(2)")
    a("s_barrier")
    stamp(a, 6)
    for i in k2_reads(1): a(i)
    for st in range(1, 16):
        a("s_waitcnt vmcnt(0) lgkmcnt(0)" if st == 1 else "s_waitcnt lgkmcnt(0)")
        if SPEC2 and st <= PB2 + 3:
            b = SET[st & 1]; regs = list(range(b, b + 16))
            for i in chk_ops(regs): a(i)
            a("s_nop 4")
            chk_fix(a, regs, [f"s_{'xor_b32' if XOR else 'add_u32'} s44, s35, {st}", "s_and_b32 s44, s44, 15", "s_lshl_b32 s44, s44, 14", "s_add_u32 s43, s44, 0x2000"],
                    [f"buffer_load_dwordx4 v[{b+(kb*2+tl)*4}:{b+(kb*2+tl)*4+3}], v2, s[12:15], s{43 if kb else 44} offen offset:{tl*256} sc1" for kb in range(2) for tl in range(2)])
        a("s_barrier")
        m = g2_mfmas(SET[st & 1]); rd = k2_reads(st+1) if st < 15 else []
        for i in spread(rd, [[x] for x in m], 100) if rd else m: a(i)
    stamp(a, 7)
    a("s_nop 4")
    P = 96
    for tl in range(2):
        for kb in range(2):
            o = P + (tl*2+kb)*4
            for hf in range(2):
                s = ACC + (tl*4 + 2*kb + hf)*4
                a(f"v_cvt_pk_bf16_f32 v{o+2*hf}, v{s}, v{s+1}")
                a(f"v_cvt_pk_bf16_f32 v{o+2*hf+1}, v{s+2}, v{s+3}")
            a(f"buffer_store_dwordx4 v[{o}:{o+3}], v2, s[20:23], {'s50' if kb else '0'} offen offset:{tl*256} sc1")
            a(f"ds_write_b128 v4, v[{o}:{o+3}] offset:{kb*8192 + tl*256}")
    for q in range(8):
        for tl in range(2):
            x = ACC + 16*tl + 2*q; sm = 116 + 4*tl; sq = sm + 2
            if q == 0:
                a(f"v_pk_mul_f32 v[{sq}:{sq+1}], v[{x}:{x+1}], v[{x}:{x+1}]")
            else:
                a(f"v_pk_fma_f32 v[{sq}:{sq+1}], v[{x}:{x+1}], v[{x}:{x+1}], v[{sq}:{sq+1}]")
                y = ACC + 16*tl if q == 1 else sm
                a(f"v_pk_add_f32 v[{sm}:{sm+1}], v[{x}:{x+1}], v[{y}:{y+1}]")
    for tl in range(2):
        a(f"v_add_f32 v{112+2*tl}, v{116+4*tl}, v{117+4*tl}")
        a(f"v_add_f32 v{113+2*tl}, v{118+4*tl}, v{119+4*tl}")
    a("s_nop 1")
    a("v_permlane32_swap_b32 v112, v114")
    a("v_permlane32_swap_b32 v113, v115")
    a("v_add_f32 v112, v112, v114")
    a("v_add_f32 v113, v113, v115")
    a("s_nop 1")
    a("v_permlane16_swap_b32 v112, v113")
    a("v_add_f32 v112, v112, v113")
    a("buffer_store_dword v112, v22, s[24:27], 0 offen sc1")
    if SPEC3:
        a("s_waitcnt lgkmcnt(0)")
        a("s_barrier")
        stamp(a, 8)
    else:
        a("s_waitcnt vmcnt(0) lgkmcnt(0)")
        a("s_barrier")
        Ls = a.label("Lsig")
        a("s_cmp_lg_u32 s36, 0")
        a(f"s_cbranch_scc1 {Ls}")
        flag_signal(a, 56, "h", 34, v=19)
        a(f"{Ls}:")
        if env("OPF", 2) & 2:
            Lo = a.label("Lopf")
            a("s_cmp_lt_u32 s36, 2")
            a(f"s_cbranch_scc1 {Lo}")
            a("s_and_b32 s43, s36, 1")
            a("s_lshl_b32 s43, s43, 13")
            a("v_lshlrev_b32 v19, 7, v1")
            a("buffer_load_dword v31, v19, s[20:23], s43 offen sc1")
            a(f"{Lo}:")
        stamp(a, 8)

    a("s_lshl_b32 s53, s47, 2")
    for i in k3_addrs(4, 53): a(i)
    def stage0():
        for i in k3_reads(4, 0, 0, SET[0]): a(i)
        a("s_waitcnt lgkmcnt(0)")
        for i in interleave([x[:x.rindex(",")] + ", 0" if x.startswith("v_mfma") else x for x in k3_mfmas(4, SET[0])], k3_reads(4, 0, 1, SET[1])): a(i)
        a("s_waitcnt lgkmcnt(0)")
        for i in k3_mfmas(4, SET[1]): a(i)
    stage0()
    for i in k3_dma_setup(1, 51, first=2): a(i)
    for i in epi_store_setup(0): a(i)
    def out_setup():
        r = ["s_lshl_b32 s43, s34, 18", "s_lshl_b32 s44, s35, 7", "s_add_u32 s43, s43, s44",
             "s_add_u32 s16, s62, s43", "s_addc_u32 s17, s63, 0", f"s_mov_b32 s18, {127*2048 + 128}", "s_mov_b32 s19, 0x20000",
             "s_lshl_b32 s43, s46, 6", "v_lshl_add_u32 v19, v17, 1, s43", "v_lshlrev_b32 v19, 11, v19",
             "v_and_b32 v20, 1, v18", "v_lshl_add_u32 v19, v20, 5, v19", "v_lshrrev_b32 v20, 1, v18", "v_lshl_add_u32 v19, v20, 4, v19",
             "s_lshl_b32 s43, s47, 6", "v_add_u32 v28, s43, v19"]
        for d, flip in ((64, 0), (68, 1)):
            r += ["s_lshl_b32 s43, s34, 4", "s_add_u32 s43, s43, s35", f"s_xor_b32 s43, s43, {flip}", "s_lshl_b32 s43, s43, 15", f"s_add_u32 s43, s43, {WS_X}",
                  f"s_add_u32 s{d}, s32, s43", f"s_addc_u32 s{d+1}, s33, 0", f"s_mov_b32 s{d+2}, 32768", f"s_mov_b32 s{d+3}, 0x20000"]
        return r
    for i in out_setup(): a(i)
    def x_first_setup():
        a("s_lshl_b32 s43, s34, 18")
        srd(a, 12, 32, 262144, add_lo=43, add_imm=WS_H)
        a("v_lshlrev_b32 v21, 4, v1")
        a("s_lshl_b32 s54, s36, 11")
        for sg in (1, 2):
            a(f"s_{'xor_b32' if XOR else 'add_u32'} s43, s35, {sg}")
            a("s_and_b32 s43, s43, 15")
            a("s_lshl_b32 s43, s43, 14")
            a(f"s_add_u32 s{29+sg}, s43, s54")
    def x_first():
        for sg in (1, 2):
            for e in range(2):
                a(f"s_add_u32 m0, s54, {((sg+2) % 3)*REG + e*1024}")
                a(f"s_add_u32 s43, s{29+sg}, {e*1024}")
                a(f"buffer_load_dwordx4 v21, s[12:15], s43 offen{XF} lds")
    x_first_setup()
    if SPEC3:
        a("s_waitcnt vmcnt(0)")
        a("s_barrier")
        stamp(a, 9)
        if PRIO: a("s_setprio 1")
        for i in k3_reads(4, 1, 0, SET[0]): a(i)
        a("s_waitcnt lgkmcnt(14)")
        for i in chk_ops(list(range(SET[0], SET[0]+16))): a(i)
        a("s_nop 4")
        k3_fix(a, 1, 0, SET[0])
        for sg in range(1, NV3 + 1):
            a("s_waitcnt lgkmcnt(0)")
            k3_half_chk(a, 4, SET[0], sg, 1, SET[1])
            a("s_waitcnt lgkmcnt(0)")
            a("s_barrier")
            if sg < NV3: k3_half_chk(a, 4, SET[1], sg+1, 0, SET[0])
            else: k3_half2(a, 4, sg)
        k3_consumer(a, 4, NV3 + 1, [], n=15 - NV3)
    else:
        a("s_barrier")
        x_first()
        a("s_waitcnt vmcnt(2)")
        a("s_barrier")
        stamp(a, 9)
        if PRIO: a("s_setprio 1")
        for i in k3_reads(4, 1, 0, SET[0]): a(i)
        k3_consumer(a, 4, 1, [0], n=15)
    stamp(a, 10)
    EA = epi_a()
    def batch(l, nb):
        return flat([[i for i in c if not i.startswith(ST)] + [i for i in c if i.startswith(ST)] for c in chunks(l, nb)])
    if env("STBA", 0): EA = batch(EA, env("STBA", 0))
    if "e" in STRIP: EA = [i for i in EA if i.startswith(ST)]
    ea = chunks(EA, env("EA_N", 13))
    SIG_A0 = 16 + last_with(ea, "0") + 2
    SIG_A1 = 16 + last_with(ea, "1") + 2
    HL = SIG_A0 - 1
    assert 16 + len(ea) <= 31 and SIG_A0 <= 28 and HL <= 27 and SIG_A1 in (29, 30)
    L3h = a.label("L3h"); LK4 = a.label("LK4")
    RD = 192
    def resid_loads():
        r = ["v_lshlrev_b32 v19, 11, v18", "v_lshl_add_u32 v19, v17, 4, v19", "s_lshl_b32 s43, s46, 10", "s_lshl_b32 s44, s47, 13",
             f"v_add3_u32 v{RD+16}, v19, s43, 0", f"v_add_u32 v{RD+16}, s44, v{RD+16}"]
        for tl in range(4):
            r.append(f"buffer_load_dwordx4 v[{RD+4*tl}:{RD+4*tl+3}], v{RD+16}, s[20:23], 0 offen offset:{tl*256} sc1")
        return r
    def resid_unpack():
        r = []
        for k in range(4):
            for q in range(4):
                r.append(f"v_lshlrev_b32 v{ACC+8*k+2*q}, 16, v{RD+4*k+q}")
                r.append(f"v_and_b32 v{ACC+8*k+2*q+1}, 0xffff0000, v{RD+4*k+q}")
        return r
    extra = {HL: resid_loads(), 17: k4_addrs(), 29: resid_unpack(), 30: [f"v_mov_b32 v{AS+i}, 0" for i in range(32)]}
    assert HL + 2 <= 28 and HL > 19
    a("s_cmp_eq_u32 s36, 3")
    a(f"s_cbranch_scc1 {L3h}")
    for helper in (False, True):
        vm = VM(a)
        if helper: a(f"{L3h}:")
        m = k3_mfmas(4, SET[1])
        if env("ERI", 1):
            m = interleave(m, epi_reads(4, 0, TT=2))
            emit(a, vm, m if helper else spread(m, k3_items(18)), 18)
            if PRIO: a("s_setprio 0")
            emit(a, vm, ["s_waitcnt lgkmcnt(0)"] + epi_consts(KA, SR=2), None)
        else:
            emit(a, vm, m if helper else spread(m, k3_items(18)), 18)
            if PRIO: a("s_setprio 0")
            emit(a, vm, epi_reads(4, 0) + ["s_waitcnt lgkmcnt(0)"] + epi_consts(KA), None)
        if helper and env("K3PF", 0):
            k3pf = K3PF(a, 1)
            k3pf.setup()
            for s in range(3, env("K3PD", 6)): k3pf.issue(s)
        a("s_barrier")
        if helper: stampc(a, "k3", 16)
        for sig in range(16, 31):
            body = (list(ea[sig-16]) if sig-16 < len(ea) else []) + extra.get(sig, [])
            if helper:
                if sig == SIG_A0: flag_signal(a, 56, "hha0", 34, v=21)
                if sig == SIG_A1: flag_signal(a, 56, "hha1", 34, v=22)
                if sig == env("PA0", 27): flag_poll_issue(a, 56, "hha0", 34, v=21); vm.add("p")
                if env("K3PF", 0) and sig - 16 + env("K3PD", 6) < 16: k3pf.issue(sig - 16 + env("K3PD", 6))
                if 100 + sig in ICW: code_warm(a, 78, 19, 30)
                if sig == 30: warm_jump(a, ("L7b", 0))
                if env("K3_SPF", 0) and (sig in S3R if S3F else sig == env("S3C", 18)):
                    sp = SPF3(a); sp.setup(1); sp.issue(S3R[sig][1] if S3F else 8)
                if env("K4_SPF", 1) and sig == env("S4A", 25):
                    sp = SPF4(a); sp.setup(); sp.issue(0)
                if sig == 25 and env("K4PF", 0):
                    pf_w64(a, KA_WD, 3584, list(range(env("K4PF0", 0), env("K4PF", 0)//MX)), 80, 29, 30)
                assert T1 >= 4
                if sig == 29 and HH:
                    emit(a, vm, k4_dma_setup(4) + ["s_mul_i32 s28, s38, 3", "s_add_u32 s28, s28, s55"], None)
                if sig == 29 and H4:
                    emit(a, vm, k4_dma_setup(2), None)
                    a("s_mov_b64 s[72:73], 0")
                emit(a, vm, body, None)
                if sig == SIG_A0 - 1: a(vm.wait("st0"))
                if sig == SIG_A1 - 1: a(vm.wait("st1"))
                if sig == HL + 2: a(vm.wait("x"))
                if sig == 28: flag_poll_finish(a, 56, v=21, first=vm.cnt("p"))
            else:
                if sig + 3 <= 31:
                    emit(a, vm, st_last(spread(body, k3_items(sig+3), env("FR3", 100))), sig+3)
                else:
                    if sig == 29:
                        emit(a, vm, k4_dma_setup(0), None)
                        a("s_mov_b64 s[72:73], -1")
                    emit(a, vm, spread(body, k4_items(sig - 29)), ("k4", sig - 29))
                if sig == 30 and HH:
                    emit(a, vm, ["s_mul_i32 s28, s38, 3", "s_add_u32 s28, s28, s55", "s_mul_i32 s43, s38, 3", "s_add_u32 s43, s43, s40", "s_add_u32 s43, s43, s28",
                                 "s_lshl_b32 s43, s43, 1", "s_add_u32 s37, s37, s43"], None)
                w = vm.cnt(sig+2) if sig + 2 <= 31 else vm.cnt(("k4", 0))
                if sig == SIG_A0 - 1: w = min(w, vm.cnt("st0"))
                if sig == SIG_A1 - 1: w = min(w, vm.cnt("st1"))
                if sig == HL + 2: w = min(w, vm.cnt("x"))
                a(f"s_waitcnt vmcnt({w})")
            a("s_barrier")
            if helper: stampc(a, "k3", sig+1)
        if not helper: a(f"s_branch {LK4}")
    a(f"{LK4}:")
    stamp(a, 11)
    if PRIO: a("s_setprio 1")
    for i in k4_reads(0): a(i)
    if H4:
        for i in flat(k4_masked(2) + k4_masked(3)): a(i)
    XB = env("XBF", 1)
    def xch(op, reg, sd, n=8):
        return [f"buffer_{op}_dwordx4 v[{reg+4*t}:{reg+4*t+3}], v9, s[{sd}:{sd+3}], {'s52' if t >= 4 else '0'} offen offset:{(t & 3)*1024} sc1" for t in range(n)]
    if XB:
        st_ = xch("store", RECV, 64, 4)
        xs = chunks([[f"v_cvt_pk_bf16_f32 v{RECV+4*tl+q}, v{AS+8*tl+2*q}, v{AS+8*tl+2*q+1}" for q in range(4)] + [st_[tl]] for tl in range(4)], XSN)
        xs = [flat(c) for c in xs]
        xl = xch("load", AS, 68, 4)
        xu = ["s_waitcnt vmcnt(0)"]
        for k in range(16): xu += [f"v_lshlrev_b32 v{RECV+2*k}, 16, v{AS+k}", f"v_and_b32 v{RECV+2*k+1}, 0xffff0000, v{AS+k}"]
    else:
        xs = chunks(xch("store", AS, 64), XSN); xl = xch("load", RECV, 68); xu = []
    pos = 0
    R0 = max(T1, H4 + 3, HH + 3 if HH else 0)
    def pre4(pos):
        if pos == XSIG: return 0
        if HH and 3 <= pos <= HH + 2: return 4*(min(pos + 3, HH + 3) - (pos + 1))
        if not H4: return 0 if pos == 0 else None
        if pos <= H4: return 16
        return {H4 + 1: 8, H4 + 2: 0}.get(pos)
    while pos < NP4:
        if pos == R0:
            nl = (EB4 - 1 - R0)//4
            L = a.label("Lk4")
            a(f"s_mov_b32 s41, {nl}")
            a(f"{L}:")
            for q in range(4): k4_stage(a, pos + q)
            a("s_sub_u32 s41, s41, 1")
            a("s_cmp_lg_u32 s41, 0")
            a(f"s_cbranch_scc1 {L}")
            pos += 4*nl
        if pos == EB4: a("s_mov_b32 s54, 0x10000")
        if SPECX and pos == NP4 - 1:
            a("s_waitcnt lgkmcnt(0)")
            a("s_barrier")
            m = k4_mfmas(pos)
            a(m[0]); a(m[1])
            a("s_waitcnt vmcnt(0)")
            regs = list(range(AS, AS + 16))
            for i in interleave(m[2:], chk_ops(regs)): a(i)
            chk_fix(a, regs, [], xl)
            for i in xu[1:]: a(i)
            break
        k4_stage(a, pos, pre=pre4(pos), items=k4_masked(pos + 4) if pos < H4 else k4_half(pos + 4, 0) if pos < HH else None,
                 extra=xs[pos - EB4] if EB4 <= pos < EB4 + XSN else xl if pos == XRCV else xu if pos == NP4 - 1 else [])
        pos += 1
    stamp(a, 12)
    a("s_waitcnt vmcnt(0)")
    a("s_nop 4")
    for tl in range(4):
        b = AK + 8*tl; o = 32 + 4*tl
        for q in range(0, 8, 2): a(f"v_pk_add_f32 v[{b+q}:{b+q+1}], v[{b+q}:{b+q+1}], v[{RECV+8*tl+q}:{RECV+8*tl+q+1}]")
        for q in range(4): a(f"v_cvt_pk_bf16_f32 v{o+q}, v{b+2*q}, v{b+2*q+1}")
    for tl in range(4):
        o = 32 + 4*tl
        a(f"v_permlane16_swap_b32 v{o}, v{o+2}")
        a(f"v_permlane16_swap_b32 v{o+1}, v{o+3}")
        a(f"buffer_store_dwordx4 v[{o}:{o+3}], v28, s[16:19], {'s54' if tl >= 2 else '0'} offen offset:{(tl & 1)*2048}{os.environ.get('OSF', '')}")
    if STAMP:
        a("s_waitcnt vmcnt(0)")
        stamp(a, 13)
        stamp_flush(a)
    a(f"s_branch {Ld}")

    a(f"{LG1}:")
    L7 = a.label("L7"); LK3b = a.label("LK3b"); LP3 = a.label("LP3")
    a("s_cmp_eq_u32 s36, 7")
    a(f"s_cbranch_scc1 {L7}")
    for i in g2_dma_setup(51, WS_O, 262144, 262144, 1024, 28, vA=23): a(i)
    o_first_setup()
    Lp = [a.label("Lp") for _ in range(3)]
    for p in range(1, 3):
        a(f"s_cmp_eq_u32 s51, {p}")
        a(f"s_cbranch_scc1 {Lp[p]}")
    for p in range(3):
        a(f"{Lp[p]}:")
        vm = VM(a)
        def st2(s): emit(a, vm, flat(k2_items(s, p == 2)), s)
        a(f"s_mov_b32 s42, {-1 if p == 2 else 2}" if XOR else f"s_add_u32 s42, s35, {15 if p == 2 else 2}")
        k1_tail(0, p == 1)
        WE = env("K2_WE", 2)
        wn_ = [0]
        def wst(upto, n):
            while wn_[0] <= min(upto, 15) and n > 0:
                st2(wn_[0]); wn_[0] += 1; n -= 1
        if p == 2: wst(9, WE)
        stamp(a, 6)
        if p == 0 and SPEC2:
            for q in range(env("SPD2", 0)):
                flag_poll_issue(a, 56, "o", 34, v=8)
                a("s_waitcnt vmcnt(0)")
        elif p == 0: flag_poll(a, 56, "o", 34, v=8)
        if p == 2: a(vm.wait(0))
        a("s_waitcnt lgkmcnt(0)")
        stamp(a, 7)
        a("s_barrier")
        stamp(a, 8)
        o_first(); vm.add(1, 2); vm.add(2, 2)
        if p < 2: st2(3)
        else: wst(9, 1)
        a(vm.wait(1))
        a("s_barrier")
        stamp(a, 9)
        if p < 2: st2(4)
        else: wst(9, 1)
        for s in range(1, 16):
            if s < 15: a(vm.wait(s+1))
            a("s_barrier")
            if p == 2: wst(s + 9, env("K2_WN", 2))
            elif s + 4 < 16: st2(s + 4)
            rest = SPR - 3 - 2*(SPE - 2) - (s-1)*env("CS_RPS", 2)
            if rest > 0 and CSM == "d": cs_spre(a, min(rest, env("CS_RPS", 2)))
            if s == 11:
                assert p < 2 or wn_[0] == 16
                for i in k3_dma_setup(0, 51): a(i)
            if s in (12, 14)[:env("EW", 2)] and p > 0:
                emit(a, vm, flat(k3_items((s-12)//2)), "w%d" % ((s-12)//2))
        if p > 0: a(vm.wait("w0"))
        a("s_barrier")
        if p == 0 and SPEC3:
            for q in range(env("SPD3", 2)):
                flag_poll_issue(a, 56, "h", 34, v=8)
                a("s_waitcnt vmcnt(0)")
            a("s_add_u32 s42, s42, 1")
            for w in (1, 2): emit(a, vm, flat(k3_items(w)), "w")
        elif p == 0:
            a("s_add_u32 s42, s42, 3")
            flag_poll(a, 56, "h", 34, v=8)
        else:
            for w in range(env("EW", 2), 3): emit(a, vm, flat(k3_items(w)), "w")
        if p < 2: a(f"s_branch {LP3}")
    a(f"{LP3}:")
    SWD = env("SWD", 1)
    W7SKIP = max(7, NV3 if SPEC3 else 0) - 1
    wd_base = ["s_mul_i32 s43, s2, 28672", "s_mul_i32 s44, s51, 7168", "s_add_u32 s43, s43, s44", "s_add_u32 s80, s60, s43", "s_addc_u32 s81, s61, 0"]
    def swd(sig, w7=False):
        n = 9 if sig <= 8 else 8 if 10 <= sig <= 12 else 7 if sig == 13 else 0
        if w7: n = 0 if sig in (W7SKIP, 9) or sig > 12 else 11 if sig <= 8 else 8
        if not SWD or not n: return []
        return [f"s_load_dword s{64+q}, s[80:81], {64*q}" for q in range(n)] + [f"s_add_u32 s80, s80, {64*n}", "s_addc_u32 s81, s81, 0"]
    for i in wd_base: a(i)
    if SPEC3:
        assert env("EW", 2) == 2
        a("s_waitcnt vmcnt(16)")
        a("s_barrier")
        for i in flat(k3_items(3)) + swd(0): a(i)
        a("s_waitcnt vmcnt(16)")
        a("s_barrier")
    else:
        x_first_setup()
        a("s_barrier")
        x_first()
        for i in flat(k3_items(3)) + swd(0): a(i)
        a("s_waitcnt vmcnt(18)")
        a("s_barrier")
        a("s_waitcnt vmcnt(16)")
        a("s_barrier")
    def xpo(sig):
        if not SPECX or not 9 <= sig <= 14: return []
        r = []
        if sig == 9:
            r = ["s_lshl_b32 s43, s34, 4", "s_add_u32 s43, s43, s35", "s_lshl_b32 s43, s43, 15", f"s_add_u32 s43, s43, {WS_X}",
                 "s_add_u32 s12, s32, s43", "s_addc_u32 s13, s33, 0", "s_mov_b32 s14, 16384", "s_mov_b32 s15, 0x20000",
                 "s_mul_i32 s30, s51, 5120", "v_lshlrev_b32 v29, 4, v1"] + [f"v_mov_b32 v{240+i}, -1" for i in range(4)]
        return r + ["buffer_store_dwordx4 v[240:243], v29, s[12:15], s30 offen sc1", "s_add_u32 s30, s30, 1024"]
    def pst(sig, body=[], pre=[], post=[]):
        for i in pre + spread(body, k3_items(sig+3)) + post + xpo(sig) + swd(sig): a(i)
        a(f"s_waitcnt vmcnt({16 + bool(xpo(sig)) + bool(xpo(sig-1))})")
        a("s_barrier")
    L = a.label("Lp3")
    a("s_mov_b32 s41, 2")
    a(f"{L}:")
    for sig in range(1, 4): pst(sig)
    a("s_sub_u32 s41, s41, 1")
    a("s_cmp_lg_u32 s41, 0")
    a(f"s_cbranch_scc1 {L}")
    pst(7); pst(8)
    bs = ["s_and_b32 s53, s35, 1", "s_lshl_b32 s53, s53, 1", "s_mul_i32 s43, s47, 3", "s_add_u32 s53, s53, s43"] + k3_addrs(3, 53)
    binit = []
    for mat in range(2):
        for j in range(3):
            for tl in range(4):
                for q in range(4):
                    binit.append(f"v_mul_f32 v{k3_acc(3, mat, j, tl)+q}, -v{TT+2*tl}, v{CSR+(mat*3+j)*4+q}")
    bi = chunks(binit, 3)
    BODY = {9: bs + epi_reads(3, 128), 10: ["s_waitcnt lgkmcnt(0)"] + epi_consts(KBB, False), 11: bi[0], 12: bi[1], 13: bi[2]}
    k4set = k4_dma_setup(2 if not H4 else H4 + 4)
    if HH: k4set += ["s_mul_i32 s28, s38, 3", "s_add_u32 s28, s28, s40"]
    if H4:
        assert T1 <= H4 + 4 <= PA1
        if H4 + 4 > T1: k4set += ["s_add_u32 s37, s37, s54"]
    for sig in range(9, 15):
        pst(sig, BODY.get(sig, []), pre=k3_dma_setup(1, 51) if sig == 13 else [], post={14: k4set, 10: epi_store_setup(1)}.get(sig, []))
    a(f"s_branch {LK3b}")

    a(f"{L7}:")
    NB2 = 18
    Lno = a.label("Lnojob"); Lcs = a.label("Lcsd")
    stampc(a, "k2", 0)
    def opoll(st):
        if SPEC2 and st == PB2 - 1 - env("PL2", 3): flag_poll_issue(a, 56, "o", 34, v=8)
        if SPEC2 and st == PB2 - 1: flag_poll_finish(a, 56, v=8)
    assert not SPEC2 or env("CS_LT", 7) >= PB2
    cs_setup(a, Lno, 64, 4, ptrs=True)
    EREG = [56, 60, 64] + list(range(72, 116, 4)) + [120, 124]
    def ld2(reg, q):
        a(f"s_mov_b32 s43, {q*4*7168}")
        a(f"buffer_load_dwordx4 v[{reg}:{reg+3}], v4, s[64:67], s43 offen")
    a("s_lshl_b32 s55, s45, 1")
    a("s_add_u32 s55, s55, s44")
    a("s_mul_i32 s55, s55, 14336")
    a("s_lshl_b32 s45, s46, 9")
    a("s_mov_b32 s50, s46")
    a("s_add_u32 s55, s55, s45")
    a("v_lshl_add_u32 v5, v5, 5, s55")
    srd(a, 72, 32, 8*14336, add_imm=WS_CS)
    for i in range(8): a(f"v_mov_b32 v{32+i}, 0")
    o_first_setup()
    k1_tail(0)
    EAT = env("CS_EAT", -2)
    if EAT == -2:
        for n in range(16): ld2(EREG[n], 32 + n)
    npr = [0]
    def proc(reg):
        t = 40 + 8*(npr[0] & 1); npr[0] += 1
        for d in range(4):
            a(f"v_lshlrev_b32 v{t+2*d}, 16, v{reg+d}")
            a(f"v_and_b32 v{t+2*d+1}, 0xffff0000, v{reg+d}")
        for d in range(4): a(f"v_pk_add_f32 v[{32+2*d}:{33+2*d}], v[{32+2*d}:{33+2*d}], v[{t+2*d}:{t+2*d+1}]")
    def mpf():
        if env("MPF", 0):
            a("s_mul_i32 s43, s2, 28672")
            srd(a, 76, 60, 28672, add_lo=43)
            a("v_lshlrev_b32 v19, 7, v1")
            for q in range(4):
                a(f"s_mov_b32 s43, {q*8192}")
                a("buffer_load_dword v30, v19, s[76:79], s43 offen")
    def cs_finish():
        a("s_nop 2")
        for sw in ("16", "32"):
            for d in range(8): a(f"v_mov_b32 v{40+d}, v{32+d}")
            a("s_nop 0")
            for d in range(8): a(f"v_permlane{sw}_swap_b32 v{32+d}, v{40+d}")
            for d in range(8): a(f"v_add_f32 v{32+d}, v{32+d}, v{40+d}")
        a("s_mov_b64 exec, 0xffff")
        a("buffer_store_dwordx4 v[32:35], v5, s[72:75], 0 offen sc1")
        a("buffer_store_dwordx4 v[36:39], v5, s[72:75], 0 offen offset:16 sc1")
        a("s_mov_b64 exec, -1")
    LT = env("CS_LT", 7); PRE = env("CS_PRE", 8); CLN = env("CS_LN", 4)
    todo = [128 + 4*n for n in range(32)] + EREG
    for r in todo[:PRE]: proc(r)
    todo = todo[PRE:]
    a("s_waitcnt lgkmcnt(0)")
    stamp(a, 7)
    for q in range(NB2):
        st = q - 2
        if q == 1:
            o_first()
            a("s_waitcnt vmcnt(2)")
        if q == 2: a("s_waitcnt vmcnt(0)")
        opoll(st)
        if st == EAT and EAT >= 0:
            for n in range(16): ld2(EREG[n], 32 + n)
        if EAT >= 0 and todo and todo[0] == EREG[0]: a(f"s_waitcnt vmcnt({16 if st > LT else 0})")
        if st == LT:
            assert npr[0] >= 16
            for n in range(16): ld2(128 + 4*n, 48 + n)
        elif st >= 1:
            if not todo and st >= LT + 4 and npr[0] == 48:
                a("s_waitcnt vmcnt(0)")
                todo = [128 + 4*n for n in range(16)]
            for r in todo[:CLN]: proc(r)
            todo = todo[CLN:]
        a("s_barrier")
        stampc(a, "k2", q+1)
    if LT > 16:
        for n in range(16): ld2(128 + 4*n, 48 + n)
    if npr[0] == 48:
        todo = [128 + 4*n for n in range(16)]
        for n, r in enumerate(todo):
            if n % 4 == 0: a(f"s_waitcnt vmcnt({12 - n})")
            proc(r)
    else:
        for r in todo: proc(r)
    assert npr[0] == 64
    cs_finish()
    if LT > 16: a("s_mov_b32 s55, 1")
    else:
        a("s_waitcnt vmcnt(0)")
        flag_signal(a, 56, "cs", 50, v=12)
    mpf()
    a(f"s_branch {Lcs}")
    a(f"{Lno}:")
    o_first_setup()
    k1_tail(0)
    a("s_waitcnt lgkmcnt(0)")
    for q in range(NB2):
        if q == 1:
            o_first()
            a("s_waitcnt vmcnt(2)")
        if q == 2: a("s_waitcnt vmcnt(0)")
        opoll(q - 2)
        a("s_barrier")
        stampc(a, "k2", q+1)
    mpf()
    a("s_mov_b32 s55, 0")
    a(f"{Lcs}:")
    a("s_mov_b32 s46, 1")
    x_first_setup()
    k3pf = K3PF(a, 0)
    PD = env("K3PD", 6)
    if env("K3PF", 0) or env("K3PF0", 0):
        k3pf.setup()
        for s in range(3, max(PD, env("K3PF0", 0))): k3pf.issue(s)
    S3 = env("K3_SPF", 0); S4 = env("K4_SPF", 1)
    sp3 = SPF3(a)
    if S3:
        sp3.setup(0); sp3.issue(3)
    a("s_lshl_b32 s43, s34, 14")
    srd(a, 64, 32, 16384, add_lo=43, add_imm=WS_ST2)
    srd(a, 72, 32, 8*14336, add_imm=WS_CS)
    if not SPEC3:
        a("s_barrier")
        stampc(a, "k2", 20)
        x_first()
        a("s_waitcnt vmcnt(2)")
    a("s_barrier")
    stampc(a, "k2", 21)
    stampc(a, "k3", 31)
    stampc(a, "k3", 0)
    def w7dst(i):
        if not i.startswith("s_load_dword"): return i
        q = int(i.split()[1][1:-1]) - 64
        return i.replace(f"s{64+q},", f"s{82 + q % 6},")
    STL = env("STL", 1); CSP = STL + 3
    for sig in range(15):
        if sig == 0:
            if SPEC3: flag_signal(a, 56, "h", 34, v=8)
            if LT > 16:
                Lq = a.label("Lq")
                a("s_cmp_eq_u32 s55, 0")
                a(f"s_cbranch_scc1 {Lq}")
                a("s_waitcnt vmcnt(0)")
                flag_signal(a, 56, "cs", 50, v=12)
                a(f"{Lq}:")
            else: a("s_waitcnt vmcnt(0)")
        if SPEC3 and sig == NV3 - 3 - env("PL3", 1): flag_poll_issue(a, 56, "h", 34, v=8)
        if SPEC3 and sig == NV3 - 3: flag_poll_finish(a, 56, v=8)
        if 100 + sig in ICW: code_warm(a, 78, 19, 30)
        if sig == 14: warm_jump(a, ("L3h", 0))
        if S3 and S3F:
            if sig in S3R:
                if S3R[sig] == (1, 0): sp3.setup(1)
                sp3.issue(S3R[sig][1])
        elif S3:
            if sig == env("S3A", 5): sp3.issue(8)
            if sig == env("S3B", 10):
                sp3.setup(1); sp3.issue(0)
        if sig == STL + 1:
            a("s_mul_i32 s43, s49, 96")
            a("s_add_u32 s44, s43, 95")
            a("s_lshr_b32 s43, s43, 7")
            a("s_lshr_b32 s44, s44, 7")
            a("s_add_u32 s43, s43, 16")
            a("s_add_u32 s44, s44, 16")
            a("v_mov_b32 v12, s44")
            a("v_writelane_b32 v12, s35, 0")
            a("v_writelane_b32 v12, s43, 1")
            a(f"v_add_u32 v12, {FLG['cs'][0]}, v12")
            a("v_lshlrev_b32 v12, 7, v12")
            a(f"v_mov_b32 v14, {FLG['cs'][1]}")
            a("buffer_load_dword v13, v12, s[56:59], 0 offen sc1")
        if sig == (NV3 - 2 if SPEC3 else STL):
            for n in range(16):
                a(f"s_mov_b32 s43, {n*1024}")
                a(f"buffer_load_dwordx4 v[{128+4*n}:{128+4*n+3}], v21, s[64:67], s43 offen sc1")
        if env("K3PF", 0) and sig >= 1:
            if sig + PD - 1 < 16: k3pf.issue(sig + PD - 1)
            elif sig + PD - 1 == 16:
                k3pf.part = 1; k3pf.setup()
            if 16 <= sig + PD - 1 < 19: k3pf.issue(sig + PD - 1 - 16)
        if sig == CSP:
            flag_poll_finish(a, 56, v=12)
            a("v_min_u32 v12, 55, v1")
            a("v_lshlrev_b32 v13, 4, v12")
            a("s_lshl_b32 s43, s35, 9")
            a("s_mul_i32 s44, s49, 384")
            a(f"s_add_u32 s44, s44, {8192 - 512}")
            a("v_mov_b32 v14, s44")
            a("v_mov_b32 v15, s43")
            a("v_cmp_gt_u32 vcc, 32, v12")
            a("s_nop 1")
            a("v_cndmask_b32 v14, v14, v15, vcc")
            a("v_add_u32 v14, v14, v13")
            a(f"v_add_u32 v13, {CSF}, v13")
            for mat in range(2):
                for sl in range(4):
                    d = 192 + (mat*4+sl)*4
                    a(f"s_mov_b32 s43, {(sl*2+mat)*14336}")
                    a(f"buffer_load_dwordx4 v[{d}:{d+3}], v14, s[72:75], s43 offen sc1")
        SRD_ = max(CSP + 1, NV3) if SPEC3 else CSP + 1
        LAST_ = max(CSP + 3, SRD_)
        if sig == SRD_:
            if SPEC3: a("s_waitcnt vmcnt(0)")
            for n in range(1, 16):
                for q in range(0, 4, 2) if 0 else range(4): a(f"v_add_f32 v{128+q}, v{128+q}, v{128+4*n+q}")
            for b in (128, 130):
                a(f"v_mul_f32 v{b}, 0x3a800000, v{b}")
                a(f"v_mul_f32 v{b+1}, 0x3a800000, v{b+1}")
                a(f"v_fma_f32 v{b+1}, -v{b}, v{b}, v{b+1}")
                a(f"v_max_f32 v{b+1}, 0, v{b+1}")
                a(f"v_add_f32 v{b+1}, 0x3727c5ac, v{b+1}")
                a(f"v_rsq_f32 v{b+1}, v{b+1}")
            a(f"v_add_u32 v19, {STATS}, v21")
            a("ds_write_b128 v19, v[128:131]")
        if sig == (CSP + 3 if SRD_ != CSP + 3 else CSP + 2):
            a("s_waitcnt vmcnt(0)" if not (SPEC3 and NV3 - 2 > CSP) else "s_waitcnt vmcnt(16)")
            for mat in range(2):
                b = 192 + mat*16
                for q in range(4):
                    a(f"v_add_f32 v{b+q}, v{b+q}, v{b+4+q}")
                    a(f"v_add_f32 v{b+8+q}, v{b+8+q}, v{b+12+q}")
                for q in range(4): a(f"v_add_f32 v{b+q}, v{b+q}, v{b+8+q}")
                a(f"ds_write_b128 v13, v[{b}:{b+3}] offset:{mat*896}")
        if sig == LAST_:
            a("s_waitcnt lgkmcnt(0)")
            assert sig < 9
        for i in BODY.get(sig, []) + (epi_store_setup(1) if sig == 10 else []) + (wd_base if sig == 0 else []) + (k4set if sig == 14 else []): a(i)
        assert LAST_ - 1 == W7SKIP
        if STAMPC != "k3":
            for i in swd(sig, True): a(w7dst(i))
        a("s_barrier")
        stampc(a, "k3", sig+1)

    a(f"{LK3b}:")
    stamp(a, 10)
    if PRIO: a("s_setprio 1")
    for i in k3_reads(3, 16, 0, SET[0]): a(i)
    k3_consumer(a, 3, 16, [0])
    stamp(a, 11)
    EB = epi_b()
    if env("STBB", 0): EB = batch(EB, env("STBB", 0))
    if "e" in STRIP: EB = [i for i in EB if i.startswith(ST)]
    eb = chunks(EB, env("EB_N", 8))
    SIG_B = last_with(eb, "0") + env("SIGB_D", 2)
    POLL_A1 = PA1 - 5; POLL_B = PB - 5
    POLL_C = NP4 - 6 - 5
    assert LB == 6 and not SPECX
    UNI = PB - 4
    assert len(eb) <= UNI and SIG_B < POLL_B
    L7b = a.label("L7b")
    a("s_cmp_eq_u32 s36, 7")
    a(f"s_cbranch_scc1 {L7b}")
    for helper in (False, True):
        vm = VM(a)
        if helper: a(f"{L7b}:")
        m = k3_mfmas(3, SET[1])
        if H4: emit(a, vm, m, None)
        elif helper:
            emit(a, vm, m, None)
            a(f"s_mul_i32 s43, s38, {16*(T1-2)}")
            a("s_add_u32 s37, s37, s43")
        else:
            emit(a, vm, spread(m[:12], k4_items(2)), 2)
            emit(a, vm, spread(m[12:], k4_items(3)), 3)
        if PRIO: a("s_setprio 0")
        a("s_barrier")
        if helper: stampc(a, "k4", 0 - env("K4O", 0))
        def pslice(s, kind):
            body = eb[s] if s < len(eb) else []
            dma = (both(s + 4) if helper else s + 4 < NP4) and s >= H4
            if helper:
                if s == UNI - 1: warm_jump(a, ("LW4", 0))
                if s == SIG_B:
                    a("s_cmp_ge_u32 s50, 12")
                    a(f"s_cselect_b32 s44, {FLG['hhc'][0] - FLG['hhb'][0]}, 0")
                    a("s_add_u32 s44, s44, s34")
                    flag_signal(a, 56, "hhb", 44, v=10); vm.add("f")
                if s == POLL_C - 2: flag_poll_issue(a, 56, "hhc", 34, v=13); vm.add("q")
                if s == POLL_A1 - env("PLA", 2): flag_poll_issue(a, 56, "hha1", 34, v=10); vm.add("p")
                if s == POLL_B - env("PLB", 2): flag_poll_issue(a, 56, "hhb", 34, v=10); vm.add("p")
                if env("K4_SPF", 1):
                    if s == 0: sp4.setup()
                    for G, at in ((1, PA1 - env("S4B", 9)), (2, PB - env("S4C", 8)), (3, EB4 - env("S4D", 6))):
                        if s == at: sp4.issue(G); vm.add("f")
                if s == XSIG:
                    xflag_addr(a, 10, 0)
                    a("v_mov_b32 v11, 1")
                    a("s_mov_b64 exec, 1")
                    a("buffer_store_dword v11, v10, s[56:59], 0 offen sc1"); vm.add("f")
                    a("s_mov_b64 exec, -1")
                if s == XRCV - 1 - env("PLX", 2) and not SPECX:
                    xflag_addr(a, 10, 1)
                    a("v_mov_b32 v12, 1")
                    a("buffer_load_dword v11, v10, s[56:59], 0 offen sc1"); vm.add("p")
            if s == UNI: a(f"s_mul_i32 s40, s53, {LB*16384 if kind == 'x' else (wd_row(8*(32 + LB)) - wd_row(8*32))*2048}")
            emit(a, vm, st_last(spread(body, k4_half(s+4, 1) if s < HH else k4_items(s+4, kind if s >= UNI else None), env("FR4", 100))) if dma else body, s+4)
            w = vm.cnt(s+2) if s + 2 in vm.q else 63
            if s == SIG_B - 1: w = min(w, vm.cnt("st0"))
            if w < 63: a(f"s_waitcnt vmcnt({w})")
            if helper and s == POLL_C: flag_poll_finish(a, 56, v=13, first=vm.cnt("q"))
            if helper and s in (POLL_A1, POLL_B, -1 if SPECX else XRCV - 1): flag_poll_finish(a, 56, v=10, first=vm.cnt("p"))
            a("s_barrier")
            if helper: stampc(a, "k4", s+1 - env("K4O", 0))
        if helper:
            sp4 = SPF4(a)
            for s in range(NP4 - 1 if STAMPC == "k4" else EB4 - 2 if SPECX else XRCV): pslice(s, 'w')
            stamp(a, 12)
            stamp_flush(a)
            a(f"s_branch {Ld}")
        else:
            for s in range(UNI): pslice(s, None)
            LW = a.label("LW4")
            a("s_cmp_eq_u32 s51, 2")
            a(f"s_cbranch_scc1 {LW}")
            q0 = list(vm.q)
            for kind in ('x', 'w'):
                vm.q = list(q0)
                if kind == 'w': a(f"{LW}:")
                for s in range(UNI, NP4 - 2): pslice(s, kind)
                if STAMP:
                    stamp(a, 12)
                    stamp_flush(a)
                a(f"s_branch {Ld}")


NXS = 32 // MX
class XPF:
    G = NXS // 2
    def __init__(self, a, off, mul, sd=68, v=23):
        self.a = a; self.off = off; self.mul = mul; self.sd = sd; self.v = v
    def setup(self):
        a = self.a; v = self.v
        per = 128 // NXS
        a(f"s_mul_i32 s43, s34, {self.mul}")
        srd(a, self.sd, 32, self.mul, add_lo=43, add_imm=self.off)
        a(f"v_and_b32 v{v}, {per-1}, v1")
        a(f"s_mul_i32 s43, s49, {per}")
        a(f"v_add_u32 v{v}, s43, v{v}")
        a(f"v_lshlrev_b32 v{v}, 7, v{v}")
        a(f"v_lshrrev_b32 v19, {per.bit_length()-1}, v1")
        a(f"v_lshl_add_u32 v{v}, v19, 14, v{v}")
    def issue(self, st):
        a = self.a
        a(f"s_mov_b32 s43, {st*16384}")
        a(f"buffer_load_dword v30, v{self.v}, s[{self.sd}:{self.sd+3}], s43 offen sc1")


class K3PF:
    def __init__(self, a, part): self.a = a; self.part = part
    def setup(self):
        a = self.a
        if self.part == 0: a("s_lshl_b32 s43, s35, 8")
        else:
            a("s_mul_i32 s43, s49, 192")
            a("s_and_b32 s43, s43, 0xffffff80")
            a("s_add_u32 s43, s43, 4096")
        a("s_sub_u32 s44, 7340032, s43")
        for d, b in ((88, 4), (92, 6)):
            a(f"s_add_u32 s{d}, s{b}, s43")
            a(f"s_addc_u32 s{d+1}, s{b+1}, 0")
            a(f"s_mov_b32 s{d+2}, s44")
            a(f"s_mov_b32 s{d+3}, 0x20000")
        per = 64 // MX
        a("v_lshrrev_b32 v31, 1, v1")
        a(f"v_min_u32 v31, {min(per, 32)-1}, v31")
        a(f"s_mul_i32 s43, s48, {per}")
        a("v_add_u32 v31, s43, v31")
        a("v_mul_u32_u24 v31, 7168, v31")
        a("v_and_b32 v19, 1, v1")
        a("v_lshl_add_u32 v31, v19, 7, v31")
    def issue(self, st):
        a = self.a
        a(f"s_mov_b32 s43, {st*64*7168}")
        a("buffer_load_dword v30, v31, s[88:91], s43 offen")
        a("buffer_load_dword v30, v31, s[92:95], s43 offen")


S3F = env("S3F", 1)
S3R = {2: (0, 7), 6: (0, 11), 9: (0, 15), 10: (1, 0), 14: (1, 4), 18: (1, 8), 22: (1, 12)}
class SPF3:
    def __init__(self, a): self.a = a
    def setup(self, part):
        a = self.a
        for d, b in ((88, 4), (92, 6)): srd(a, d, b, 7340032)
        a("s_lshr_b32 s43, s35, 3")
        a("v_and_b32 v19, 1, v1")
        a("v_mov_b32 v23, 0")
        if part == 0:
            a("s_lshl_b32 s44, s43, 3")
            a("s_add_u32 s44, s44, 1")
            a("v_lshl_add_u32 v23, v19, 2, v23")
            a("v_add_u32 v23, s44, v23")
            a("s_lshl_b32 s43, s43, 11")
            a("s_add_u32 s43, s43, 384")
            a("s_movk_i32 s44, 1024")
        elif NBM:
            a("s_lshl_b32 s44, s43, 1")
            a("s_add_u32 s44, s44, 6")
            a("v_add_u32 v23, s44, v23")
            a(f"s_mul_i32 s44, s43, {2 if NBM == 1 else 6}")
            a("s_add_u32 s44, s44, 1")
            a("v_mad_u32_u24 v23, v19, s44, v23")
            a("s_lshl_b32 s44, s43, 10")
            a("s_lshl_b32 s43, s43, 11")
            a(f"s_sub_u32 s43, {51*128}, s43")
        else:
            a("s_mul_i32 s44, s43, 10")
            a("s_add_u32 s44, s44, 2")
            a("v_add_u32 v23, s44, v23")
            a("s_lshl_b32 s44, s43, 2")
            a("s_sub_u32 s44, 5, s44")
            a("v_mad_u32_u24 v23, v19, s44, v23")
            a("s_lshl_b32 s44, s43, 10")
            a("s_xor_b32 s44, s44, 1024")
            a("s_lshl_b32 s43, s43, 11")
            a(f"s_add_u32 s43, s43, {35*128}")
        a("s_lshr_b32 s45, s2, 3")
        a("s_mul_i32 s45, s45, 14336")
        a("s_add_u32 s43, s43, s45")
        a("v_mul_lo_u32 v31, v19, s44")
        if S3F and env("S3O", 0):
            if part == 1:
                a("s_lshr_b32 s44, s35, 3")
                a("v_xor_b32 v19, s44, v19")
                a("v_lshlrev_b32 v19, 8, v19")
                a("v_subrev_u32 v19, 128, v19")
            else: a("v_mov_b32 v19, -128")
            a("v_bfe_i32 v20, v1, 4, 1")
            a("v_and_b32 v19, v19, v20")
            a("v_add_u32 v31, v31, v19")
        a("v_bfe_u32 v19, v1, 1, 1")
        a("v_mul_u32_u24 v19, 7168, v19")
        a("v_add3_u32 v31, v31, v19, s43")
    def issue(self, st):
        a = self.a
        a(f"v_bfe_u32 v19, v1, 2, {2 if S3F else 3}")
        a(f"v_add_u32 v19, {st}, v19")
        a(f"v_{'xor_b32' if XOR else 'add_u32'} v19, v19, v23")
        a("v_and_b32 v19, 15, v19")
        a(f"v_mul_u32_u24 v19, {64*7168}, v19")
        a("v_add_u32 v19, v19, v31")
        a("buffer_load_dword v30, v19, s[88:91], 0 offen")
        a("buffer_load_dword v30, v19, s[92:95], 0 offen")


class SPF4:
    def __init__(self, a): self.a = a
    def setup(self):
        a = self.a
        srd(a, 80, 60, 7340032)
        a("v_and_b32 v29, 31, v1")
        a("v_lshlrev_b32 v29, 11, v29")
        a("s_and_b32 s43, s35, 8")
        a("s_or_b32 s43, s43, 3")
        a("s_lshl_b32 s43, s43, 7")
        a("v_add_u32 v29, s43, v29")
    def issue(self, G):
        a = self.a
        a("s_lshr_b32 s44, s2, 3")
        if G == 3: a("s_and_b32 s44, s44, 15")
        a(f"s_lshl_b32 s44, s44, {17 if G < 2 else 16}")
        a(f"s_add_u32 s43, s44, {[0, 32, 2048, 3072][G]*2048}")
        a("buffer_load_dword v30, v29, s[80:83], s43 offen")
```

```python
import os, struct
from common import *

def fh(x): return "0x%08x" % struct.unpack("<I", struct.pack("<f", x))[0]
def env(k, d): return int(os.environ.get(k, str(d)))

C0_ = -2.0*0.7978845608028654*1.4426950408889634
C1_ = C0_*0.044715
XOR = env("XOR", 1)
NBM = env("NBM", 2)
XF = os.environ.get("XF", " sc1")
SET = [32, 80]
ACC = 128
NST4 = 56


class VM:
    def __init__(self, a): self.a = a; self.q = []
    def add(self, tag, n=1): self.q += [tag]*n
    def cnt(self, tag):
        idx = max(i for i, t in enumerate(self.q) if t == tag)
        return len(self.q) - 1 - idx
    def wait(self, tag):
        return f"s_waitcnt vmcnt({min(63, self.cnt(tag))})"
    def reset(self): self.q = []


def spread(main, items, frac=100):
    if frac < 100:
        c = len(main)*frac//100
        return spread(main[:c], items) + main[c:]
    out = []
    n, k = len(main), len(items)
    j = 0
    for i in range(n + 1):
        while j < k and j*n <= i*k:
            out += items[j]; j += 1
        if i < n: out.append(main[i])
    while j < k: out += items[j]; j += 1
    return out


def lane_ig(a):
    a("v_and_b32 v17, 15, v1")
    a("v_lshrrev_b32 v18, 4, v1")


def g2_addrs():
    r = []
    r.append("v_lshlrev_b32 v19, 11, v18")
    r.append("v_lshl_add_u32 v19, v17, 4, v19")
    r.append("s_lshl_b32 s43, s36, 9")
    r.append("v_add_u32 v2, s43, v19")
    r.append(f"v_add_u32 v3, {REG}, v2")
    r.append(f"v_add_u32 v4, {2*REG}, v2")
    r.append("v_lshrrev_b32 v19, 2, v17")
    r.append("v_lshl_add_u32 v20, v18, 2, v19")
    r.append("v_bfe_u32 v21, v20, 1, 2")
    r.append("v_lshlrev_b32 v20, 7, v20")
    r.append("v_lshl_add_u32 v20, v21, 5, v20")
    r.append("v_and_b32 v19, 3, v1")
    r.append("v_lshl_add_u32 v20, v19, 3, v20")
    r.append("v_add_u32 v5, 16384, v20")
    for t in range(1, 4): r.append(f"v_xor_b32 v{5+t}, {32*t}, v5")
    for rg in range(1, 3):
        for t in range(4): r.append(f"v_add_u32 v{5+4*rg+t}, {rg*REG}, v{5+t}")
    return r

def g2_reads(slot, base):
    rg, so = slot >> 1, (slot & 1)*SLOT
    def xr(kb, tl): return f"ds_read_b128 v[{base+(kb*2+tl)*4}:{base+(kb*2+tl)*4+3}], v{2+rg} offset:{so + kb*8192 + tl*256}"
    def wr(kb, t, h):
        d = base + 16 + (kb*4+t)*4 + 2*h
        return f"ds_read_b64_tr_b16 v[{d}:{d+1}], v{5+4*rg+t} offset:{so + kb*4096 + h*2048}"
    r = []
    for kb in range(2):
        r += [xr(kb, 0), wr(kb, 0, 0), wr(kb, 0, 1), wr(kb, 1, 0), wr(kb, 1, 1), xr(kb, 1), wr(kb, 2, 0), wr(kb, 2, 1), wr(kb, 3, 0), wr(kb, 3, 1)]
    return r

def g2_mfmas(base):
    r = []
    for kb in range(2):
        for tl in range(2):
            for t in range(4):
                acc = ACC + (tl*4+t)*4
                w = base + 16 + (kb*4+t)*4; x = base + (kb*2+tl)*4
                r.append(f"v_mfma_f32_16x16x32_bf16 v[{acc}:{acc+3}], v[{w}:{w+3}], v[{x}:{x+3}], v[{acc}:{acc+3}]")
    return r

def g2_stage(a, s, slot_next, pre=None):
    a("s_waitcnt lgkmcnt(0)" if pre is None else f"s_waitcnt vmcnt({pre}) lgkmcnt(0)")
    a("s_barrier")
    m = g2_mfmas(SET[s & 1])
    rd = [] if slot_next is None else g2_reads(slot_next, SET[(s+1) & 1])
    k = 0
    for i in range(16):
        a(m[i])
        for q in range(2 if i < 6 else 1):
            if k < len(rd): a(rd[k]); k += 1

def g2_loop(a, s0, nst, off, pres={}):
    s = s0
    while s in pres or (s % 6 != 0 and False):
        g2_stage(a, s, (s+1+off) % 6, pres[s]); s += 1
    nl = (nst - 1 - s)//6
    if nl > 0:
        L = a.label("Lg2")
        a(f"s_mov_b32 s41, {nl}")
        a(f"{L}:")
        for q in range(6): g2_stage(a, s+q, (s+q+1+off) % 6)
        a("s_sub_u32 s41, s41, 1")
        a("s_cmp_lg_u32 s41, 0")
        a(f"s_cbranch_scc1 {L}")
        s += 6*nl
    while s < nst:
        g2_stage(a, s, None if s == nst-1 else (s+1+off) % 6); s += 1


def k2_addrs():
    r = g2_addrs()
    r = [i for i in r if not i.startswith("v_add_u32 v3,")][:16]
    r = [i.replace("v_add_u32 v5, 16384,", "v_add_u32 v5, 0x10000,") for i in r]
    return r + [f"v_add_u32 v{9+t}, 0x10000, v{5+t}" for t in range(4)]
def k2_reads(s):
    base = SET[s & 1]; xo = (s % 4)*16384; ws = s % 10
    def xr(kb, tl): return f"ds_read_b128 v[{base+(kb*2+tl)*4}:{base+(kb*2+tl)*4+3}], v2 offset:{xo + kb*8192 + tl*256}"
    def wr(kb, t, h):
        d = base + 16 + (kb*4+t)*4 + 2*h
        return f"ds_read_b64_tr_b16 v[{d}:{d+1}], v{5 + 4*(ws >> 3) + t} offset:{(ws & 7)*8192 + kb*4096 + h*2048}"
    r = []
    for kb in range(2):
        r += [xr(kb, 0), wr(kb, 0, 0), wr(kb, 0, 1), wr(kb, 1, 0), wr(kb, 1, 1), xr(kb, 1), wr(kb, 2, 0), wr(kb, 2, 1), wr(kb, 3, 0), wr(kb, 3, 1)]
    return r
def k2_items(s, isw, vA=23):
    m0 = 65536 - 16384 + (s % 10)*8192 if isw else (s % 4)*16384
    r = [[f"s_add_u32 m0, s39, {m0 + k*1024}", "s_add_u32 s37, s37, s38", f"buffer_load_dwordx4 v{vA}, s[8:11], s37 offen{XF} lds"] for k in range(8)]
    r[0] = ["s_add_u32 s42, s42, 1", "s_xor_b32 s37, s42, s35" if XOR else "s_and_b32 s37, s42, 15", r[0][0], f"s_lshl_b32 s37, s37, {17 if isw else 14}", r[0][2]]
    return r


def k3_addrs(nj, t0):
    r = []
    r.append("v_lshlrev_b32 v19, 11, v18")
    r.append("v_lshl_add_u32 v19, v17, 4, v19")
    r.append("s_lshl_b32 s43, s46, 10")
    r.append("v_add_u32 v2, s43, v19")
    r.append(f"v_add_u32 v3, {REG}, v2")
    r.append(f"v_add_u32 v4, {2*REG}, v2")
    r.append("v_lshrrev_b32 v19, 2, v17")
    r.append("v_lshl_add_u32 v20, v18, 2, v19")
    r.append("v_and_b32 v21, 7, v20")
    r.append("v_lshlrev_b32 v20, 8, v20")
    r.append("v_and_b32 v19, 3, v1")
    r.append("v_lshl_add_u32 v20, v19, 3, v20")
    for j in range(nj):
        r.append(f"s_add_u32 s43, s{t0}, {j}")
        r.append("v_xor_b32 v19, s43, v21")
        r.append(f"v_lshl_add_u32 v{5+j}, v19, 5, v20")
    for rg in range(1, 3):
        for j in range(nj): r.append(f"v_add_u32 v{5+4*rg+j}, {rg*REG}, v{5+j}")
    return r

def k3_acc(nj, mat, j, tl): return ACC + ((mat*nj + j)*4 + tl)*4

def k3_reads(nj, sig, kk, base):
    rg = (sig + 2) % 3
    def xr(tl): return f"ds_read_b128 v[{base+4*tl}:{base+4*tl+3}], v{2+rg} offset:{kk*8192 + tl*256}"
    def wr(mat, j, h):
        d = base + 16 + (mat*nj+j)*4 + 2*h
        return f"ds_read_b64_tr_b16 v[{d}:{d+1}], v{5+4*rg+j} offset:{16384*(1+mat) + kk*8192 + h*4096}"
    r = [xr(0), wr(0, 0, 0), wr(0, 0, 1), xr(1), xr(2), xr(3), wr(1, 0, 0), wr(1, 0, 1)]
    for j in range(1, nj): r += [wr(0, j, 0), wr(0, j, 1), wr(1, j, 0), wr(1, j, 1)]
    return r

def k3_mfmas(nj, base):
    r = []
    order = [(j, mat, tl) for j in range(nj) for mat in range(2) for tl in range(4)]
    if env("MORD", 2) == 1: order = [(j, mat, tl) for tl in range(4) for j in range(nj) for mat in range(2)]
    if env("MORD", 2) == 2:
        order = [(j, mat, tl if (2*j + mat) % 2 == 0 else 3 - tl) for j in range(nj) for mat in range(2) for tl in range(4)]
    for (j, mat, tl) in order:
        if True:
            if True:
                acc = k3_acc(nj, mat, j, tl)
                w = base + 16 + (mat*nj+j)*4; x = base + 4*tl
                r.append(f"v_mfma_f32_16x16x32_bf16 v[{acc}:{acc+3}], v[{w}:{w+3}], v[{x}:{x+3}], v[{acc}:{acc+3}]")
    return r

def chk_ops(regs, t=19):
    r = [f"v_max3_u32 v{t}, v{regs[0]}, v{regs[1]}, v{regs[2]}"]
    rest = regs[3:]
    while len(rest) >= 2:
        r.append(f"v_max3_u32 v{t}, v{t}, v{rest[0]}, v{rest[1]}"); rest = rest[2:]
    if rest: r.append(f"v_max_u32 v{t}, v{t}, v{rest[0]}")
    r.append(f"v_cmp_eq_u32 vcc, -1, v{t}")
    return r
def chk_fix(a, regs, pre, loads):
    Lo = a.label("Lok"); Lr = a.label("Lre"); Lf = a.label("Lfx")
    a(f"s_cbranch_vccnz {Lf}")
    a(f"{Lo}:")
    COLD.extend([f"{Lf}:"] + pre + ["s_mov_b32 s45, 0x20000", f"{Lr}:"] + loads + ["s_waitcnt vmcnt(0)"] + chk_ops(regs) +
                ["s_sub_u32 s45, s45, 1", "s_cmp_eq_u32 s45, 0", f"s_cbranch_scc1 {Lo}", "s_nop 2", f"s_cbranch_vccnz {Lr}", f"s_branch {Lo}"])
def k3_fix(a, sig, kk, base):
    chk_fix(a, list(range(base, base+16)),
            [f"s_{'xor_b32' if XOR else 'add_u32'} s44, s35, {sig}", "s_and_b32 s44, s44, 15", "s_lshl_b32 s44, s44, 14", f"s_add_u32 s44, s44, {kk*8192}"],
            [f"buffer_load_dwordx4 v[{base+4*tl}:{base+4*tl+3}], v2, s[12:15], s44 offen offset:{tl*256} sc1" for tl in range(4)])
def k3_half_chk(a, nj, cur, sig, kk, nxt):
    m = k3_mfmas(nj, cur); rd = k3_reads(nj, sig, kk, nxt)
    for i in interleave(m[:len(rd)], rd): a(i)
    a(f"s_waitcnt lgkmcnt({len(rd) - 6})")
    for i in interleave(m[len(rd):], chk_ops(list(range(nxt, nxt+16)))): a(i)
    a("s_nop 1")
    k3_fix(a, sig, kk, nxt)

def k3_half1(a, nj, sig, vmw=None):
    a("s_waitcnt lgkmcnt(0)")
    for i in interleave(k3_mfmas(nj, SET[0]), k3_reads(nj, sig, 1, SET[1])): a(i)
    a("s_waitcnt lgkmcnt(0)" if vmw is None else f"s_waitcnt vmcnt({vmw}) lgkmcnt(0)")
    a("s_barrier")
def k3_half2(a, nj, sig):
    for i in interleave(k3_mfmas(nj, SET[1]), k3_reads(nj, sig+1, 0, SET[0])): a(i)

def k3_consumer(a, nj, sig0, vmw, n=16):
    L = a.label("Lk3")
    a(f"s_mov_b32 s41, {(n-1)//3}")
    a(f"{L}:")
    for q in range(3):
        k3_half1(a, nj, sig0+q, vmw[q] if q < len(vmw) else None)
        k3_half2(a, nj, sig0+q)
    a("s_sub_u32 s41, s41, 1")
    a("s_cmp_lg_u32 s41, 0")
    a(f"s_cbranch_scc1 {L}")
    for q in range((n-1)//3*3, n-1):
        k3_half1(a, nj, sig0+q)
        k3_half2(a, nj, sig0+q)
    k3_half1(a, nj, sig0+n-1)


def k3_dma_setup(part, psg, vE=22, first=0):
    r = []
    if part == 0: r.append("s_lshl_b32 s43, s35, 8")
    else:
        r.append("s_mul_i32 s43, s49, 192")
        r.append("s_and_b32 s43, s43, 0xffffff80")
        r.append("s_add_u32 s43, s43, 4096")
    r.append(f"s_cmp_eq_u32 s{psg}, 1")
    r.append("s_cselect_b32 s8, s4, s6")
    r.append("s_cselect_b32 s9, s5, s7")
    r.append("s_sub_u32 s10, 7340032, s43")
    r.append("s_lshl_b32 s44, s34, 18")
    r.append(f"s_add_u32 s44, s44, {WS_H}")
    r.append("s_movk_i32 s38, 28672")
    r.append(f"s_cmp_eq_u32 s{psg}, 0")
    r.append("s_cselect_b32 s8, s32, s8")
    r.append("s_cselect_b32 s9, s33, s9")
    r.append("s_cselect_b32 s10, 262144, s10")
    r.append("s_cselect_b32 s43, s44, s43")
    r.append("s_cselect_b32 s38, 1024, s38")
    r.append("s_cselect_b32 s45, 0, -1")
    r.append("s_add_u32 s8, s8, s43")
    r.append("s_addc_u32 s9, s9, 0")
    r.append("s_mov_b32 s11, 0x20000")
    r.append("s_lshl_b32 s40, s38, 4")
    r.append(f"s_mov_b32 s42, {first - 1}" if XOR else f"s_add_u32 s42, s35, {first + 15}")
    r.append(f"s_lshl_b32 s39, s{psg}, 14")
    r.append("v_lshrrev_b32 v19, 4, v1")
    r.append("v_lshlrev_b32 v20, 5, v19")
    r.append("v_mul_u32_u24 v19, 6912, v19")
    r.append("v_and_b32 v19, s45, v19")
    r.append("v_and_b32 v20, s45, v20")
    r.append("v_lshlrev_b32 v21, 4, v1")
    r.append("v_xor_b32 v21, v21, v20")
    r.append(f"v_add_u32 v{vE}, v21, v19")
    r.append("s_and_b32 s45, s45, 128")
    r.append(f"v_xor_b32 v{vE+1}, s45, v{vE}")
    return r

def k3_items(sig, vE=22):
    rg = (sig + 2) % 3
    r = [[f"s_add_u32 m0, s39, {rg*REG + j*1024}", "s_add_u32 s37, s37, s38",
          f"buffer_load_dwordx4 v{vE + (j & 1)}, s[8:11], s37 offen{XF} lds"] for j in range(16)]
    r[0] = ["s_add_u32 s42, s42, 1", "s_xor_b32 s37, s42, s35" if XOR else "s_and_b32 s37, s42, 15", r[0][0], "s_mul_i32 s37, s37, s40", r[0][2]]
    return r

def g2_dma_setup(psg, A_off, A_mul, A_bytes, K, wreg, vA=21, hop=8):
    r = []
    r.append(f"s_mul_i32 s44, s34, {A_mul}")
    r.append(f"s_lshl_b32 s39, s{psg}, 13")
    r.append("s_add_u32 s44, s44, s39")
    r.append(f"s_add_u32 s44, s44, {A_off}")
    r.append("s_lshl_b32 s43, s35, 7")
    r.append(f"s_mov_b32 s10, {A_bytes - 8192}")
    r.append("s_movk_i32 s38, 1024")
    r.append("s_movk_i32 s40, 9216")
    r.append(f"s_cmp_eq_u32 s{psg}, 2")
    r.append(f"s_cselect_b32 s8, s{wreg}, s32")
    r.append(f"s_cselect_b32 s9, s{wreg+1}, s33")
    r.append(f"s_cselect_b32 s10, {K*2048 - 1920}, s10")
    r.append("s_cselect_b32 s43, s43, s44")
    r.append("s_cselect_b32 s38, 16384, s38")
    r.append(f"s_cselect_b32 s40, {hop*2048}, s40")
    r.append(f"s_cselect_b32 s55, {hop*2048}, s38")
    r.append("s_cselect_b32 s45, -1, 0")
    r.append("s_add_u32 s8, s8, s43")
    r.append("s_addc_u32 s9, s9, 0")
    r.append("s_mov_b32 s11, 0x20000")
    r.append("s_sub_u32 s37, 0, s40")
    r.append("v_lshrrev_b32 v19, 3, v1")
    r.append("v_mul_u32_u24 v19, 1920, v19")
    r.append("v_lshrrev_b32 v20, 4, v1")
    r.append("v_lshlrev_b32 v20, 5, v20")
    r.append("v_and_b32 v19, s45, v19")
    r.append("v_and_b32 v20, s45, v20")
    r.append(f"v_lshlrev_b32 v{vA}, 4, v1")
    r.append(f"v_xor_b32 v{vA}, v{vA}, v20")
    r.append(f"v_add_u32 v{vA}, v{vA}, v19")
    return r

def g2_items(slot, vA=21, wrows=None):
    r = []
    for k in range(8):
        if wrows is None: inc = f"s_add_u32 s37, s37, s{40 if k == 0 else 55 if k == 4 else 38}"
        else: inc = f"s_add_u32 s37, s37, {(wrows[k]*2048) & 0xffffffff}"
        r.append([f"s_add_u32 m0, s39, {slot*SLOT + k*1024}", inc, f"buffer_load_dwordx4 v{vA}, s[8:11], s37 offen{XF} lds"])
    return r

BORD = [0, 1, 3, 4, 5, 6, 8, 9, 10, 11, 14, 15, 2, 7, 12, 13]
def wd_row(item):
    if item < 256:
        s, k = item >> 3, item & 7
        return 128*(s & 15) + 32*(s >> 4) + 64*(k >> 2) + 8*(k & 3)
    q = item - 256
    return 2048 + 96*BORD[q // 12] + [0, 8, 16, 24, 48, 56, 64, 72, 32, 80, 40, 88][q % 12]


CSR = 48
TT = 80
def epi_reads(nj, csbase, TT=TT):
    rd = []
    rd.append("s_lshl_b32 s43, s46, 9")
    rd.append(f"s_add_u32 s43, s43, {STATS}")
    rd.append("v_lshl_add_u32 v19, v17, 3, s43")
    for tl in range(4): rd.append(f"ds_read_b64 v[{TT+2*tl}:{TT+2*tl+1}], v19 offset:{tl*128}")
    rd.append(f"s_mul_i32 s43, s47, {nj*64}")
    rd.append(f"s_add_u32 s43, s43, {CSF + csbase*4}")
    rd.append("v_lshl_add_u32 v19, v18, 4, s43")
    for mat in range(2):
        for j in range(nj):
            d = CSR + (mat*nj+j)*4
            rd.append(f"ds_read_b128 v[{d}:{d+3}], v19 offset:{mat*896 + j*64}")
    return rd
def epi_consts(KB, mean=True, SR=TT):
    c = []
    for tl in range(4):
        mn, rs = SR+2*tl, SR+2*tl+1
        if mean: c.append(f"v_mov_b32 v{KB+tl}, v{mn}")
        c.append(f"v_mul_f32 v{TT+8}, v{rs}, v{rs}")
        c.append(f"v_mul_f32 v{KB+4+tl}, {fh(C0_)}, v{rs}")
        c.append(f"v_mul_f32 v{TT+9}, {fh(C1_)}, v{rs}")
        c.append(f"v_rcp_f32 v{KB+12+tl}, v{TT+8}")
        c.append(f"v_mul_f32 v{KB+8+tl}, v{TT+9}, v{TT+8}")
    return c

def epi_group(nj, tl, j, out, KB, ln=True):
    G = k3_acc(nj, 0, j, tl); U = k3_acc(nj, 1, j, tl)
    cg = CSR + j*4; cu = CSR + (nj+j)*4
    KM, K0, K1, KI = KB+tl, KB+4+tl, KB+8+tl, KB+12+tl
    T = TT + 4*(j & 1)
    r = []
    if ln:
        for q in range(4): r.append(f"v_fma_f32 v{G+q}, -v{KM}, v{cg+q}, v{G+q}")
        for q in range(4): r.append(f"v_fma_f32 v{U+q}, -v{KM}, v{cu+q}, v{U+q}")
    for q in range(4): r.append(f"v_mul_f32 v{T+q}, v{G+q}, v{G+q}")
    for q in range(4): r.append(f"v_fma_f32 v{T+q}, v{T+q}, v{K1}, v{K0}")
    for q in range(4): r.append(f"v_mul_f32 v{T+q}, v{T+q}, v{G+q}")
    for q in range(4): r.append(f"v_exp_f32 v{T+q}, v{T+q}")
    for q in range(4): r.append(f"v_mul_f32 v{U+q}, v{G+q}, v{U+q}")
    for q in range(4): r.append(f"v_fma_f32 v{T+q}, v{T+q}, v{KI}, v{KI}")
    for q in range(4): r.append(f"v_rcp_f32 v{T+q}, v{T+q}")
    for q in range(4): r.append(f"v_mul_f32 v{U+q}, v{U+q}, v{T+q}")
    r.append(f"v_cvt_pk_bf16_f32 v{out}, v{U}, v{U+1}")
    r.append(f"v_cvt_pk_bf16_f32 v{out+1}, v{U+2}, v{U+3}")
    return r

ST = "#ST "
KA, KBB = 32, 224
def epi_a():
    r = []
    for q in range(2):
        for tl in range(4):
            o = 96 + 4*tl
            r += epi_group(4, tl, 2*q, o, KA) + epi_group(4, tl, 2*q+1, o+2, KA)
            r.append(ST + f"{q}buffer_store_dwordx4 v[{o}:{o+3}], v27, s[24:27], {'s53' if q else '0'} offen offset:{tl*256} sc1")
    return r
def epi_b():
    r = []
    for tp in range(2):
        lo = 112 + 4*tp
        for tl in (2*tp, 2*tp+1):
            o = 96 + 4*tl
            r += epi_group(3, tl, 0, o, KBB, False) + epi_group(3, tl, 1, o+2, KBB, False)
            r.append(ST + f"0buffer_store_dwordx4 v[{o}:{o+3}], v27, s[24:27], 0 offen offset:{tl*256} sc1")
            r += epi_group(3, tl, 2, lo + 2*(tl & 1), KBB, False)
        r.append("s_nop 1")
        r.append(f"v_permlane32_swap_b32 v{lo}, v{lo+2}")
        r.append(f"v_permlane32_swap_b32 v{lo+1}, v{lo+3}")
        r.append(ST + f"0buffer_store_dwordx4 v[{lo}:{lo+3}], v28, s[24:27], 0 offen offset:{tp*512} sc1")
    return r

def epi_store_setup(part):
    r = []
    r.append(f"s_mul_i32 s43, s34, {HH_M}")
    if part == 1:
        tab = sum(BORD.index(t) << (4*t) for t in range(16))
        r += [f"s_mov_b32 s44, {tab & 0xffffffff}", f"s_mov_b32 s45, {tab >> 32}", "s_lshl_b32 s50, s49, 2", "s_lshr_b64 s[44:45], s[44:45], s50", "s_and_b32 s50, s44, 15"]
    r.append(f"s_mul_i32 s44, s{35 if part == 0 else 50}, {16384 if part == 0 else 24576}")
    r.append("s_add_u32 s43, s43, s44")
    r.append(f"s_add_u32 s43, s43, {WS_HH + (0 if part == 0 else 524288)}")
    r.append("s_add_u32 s24, s32, s43")
    r.append("s_addc_u32 s25, s33, 0")
    r.append(f"s_mov_b32 s26, {262144 + 16384 if part == 0 else 24576}")
    r.append("s_mov_b32 s27, 0x20000")
    r.append("s_mov_b32 s53, 262144")
    r.append("s_lshl_b32 s43, s47, 13")
    r.append("s_lshl_b32 s44, s46, 10")
    r.append("s_add_u32 s43, s43, s44")
    r.append("v_lshlrev_b32 v19, 11, v18")
    r.append("v_lshl_add_u32 v19, v17, 4, v19")
    r.append("v_add_u32 v27, s43, v19")
    if part == 1:
        r.append("s_lshl_b32 s43, s47, 12")
        r.append("s_add_u32 s43, s43, s44")
        r.append("s_add_u32 s43, s43, 16384")
        r.append("v_and_b32 v19, 1, v18")
        r.append("v_lshlrev_b32 v19, 11, v19")
        r.append("v_lshrrev_b32 v20, 1, v18")
        r.append("v_lshl_add_u32 v19, v20, 8, v19")
        r.append("v_lshl_add_u32 v19, v17, 4, v19")
        r.append("v_add_u32 v28, s43, v19")
    return r

STRIP = os.environ.get("STRIP", "").split(",")
def strip(lst, key):
    return [("s_nop 0" if key in STRIP else i) for i in lst]
_k3_mfmas, _k3_reads, _k3_items, _g2_mfmas, _g2_reads, _g2_items = k3_mfmas, k3_reads, k3_items, g2_mfmas, g2_reads, g2_items
def k3_mfmas(*x): return strip(_k3_mfmas(*x), "m3")
def k3_reads(*x): return strip(_k3_reads(*x), "r3")
def g2_mfmas(*x): return strip(_g2_mfmas(*x), "m4")
def g2_reads(*x): return strip(_g2_reads(*x), "r4")
def k3_items(*x, **k):
    r = _k3_items(*x, **k)
    if "d3" in STRIP: r = [g[:-1] + ["s_nop 0 ;buffer_load lds"] for g in r]
    if "h3" in STRIP: r[0][3] = "s_mov_b32 s37, 0"
    return r
def g2_items(*x, **k):
    r = _g2_items(*x, **k)
    if "d4" in STRIP: r = [g[:2] + ["s_nop 0 ;buffer_load lds"] for g in r]
    if "h4" in STRIP: r[0][1] = "s_mov_b32 s37, 0x20000"
    return r


T1 = env("T1", 4); LB = env("LB", 6)
H4 = env("H4", 0)
HH = env("HH", 0)
assert not HH or (T1 == 4 and not H4)
A0B = (16 - T1)//2
PA1 = T1 + A0B; PB = PA1 + 8; EB4 = PB + LB; NP4 = EB4 + 24 - 2*LB
assert T1 % 2 == 0 and LB % 3 == 0
SX, SW = [32, 96], [64, 160]
AK, AS, RECV = 128, 192, 224
def both(pos): return T1 <= pos < EB4
def k4_stage_of(pos, kh):
    if pos < T1: return pos
    if pos < PA1: return T1 + A0B*kh + pos - T1
    if pos < PB: return 16 + 8*kh + pos - PA1
    if pos < EB4: return 32 + LB*kh + pos - PB
    return 32 + 2*LB + pos - EB4
def k4_addrs():
    r = []
    r.append("v_lshlrev_b32 v19, 11, v18")
    r.append("v_lshl_add_u32 v19, v17, 4, v19")
    r.append("s_lshl_b32 s43, s46, 10")
    r.append("v_add_u32 v2, s43, v19")
    r.append("v_add_u32 v3, 0x10000, v2")
    r.append("v_lshrrev_b32 v19, 2, v17")
    r.append("v_lshl_add_u32 v20, v18, 2, v19")
    r.append("v_bfe_u32 v21, v20, 1, 2")
    r.append("s_lshl_b32 s43, s47, 1")
    r.append("v_xor_b32 v21, s43, v21")
    r.append("v_lshlrev_b32 v20, 7, v20")
    r.append("v_lshl_add_u32 v20, v21, 5, v20")
    r.append("v_and_b32 v19, 3, v1")
    r.append("v_lshl_add_u32 v20, v19, 3, v20")
    r.append("v_add_u32 v5, 16384, v20")
    r.append("v_xor_b32 v6, 32, v5")
    r.append("v_add_u32 v7, 0x10000, v5")
    r.append("v_add_u32 v8, 0x10000, v6")
    r.append(f"s_lshl_b32 s43, s36, {12 if env('XBF', 1) else 13}")
    r.append("v_lshl_add_u32 v9, v1, 4, s43")
    r.append("s_mov_b32 s54, 0x10000")
    r.append("s_movk_i32 s52, 0x1000")
    return r
def k4_reads(pos):
    slot = (pos + 2) % 4; hi, so = slot >> 1, (slot & 1)*32768
    bx, bw = SX[pos & 1], SW[pos & 1]
    def xr(kb, tl): return f"ds_read_b128 v[{bx+(kb*4+tl)*4}:{bx+(kb*4+tl)*4+3}], v{2+hi} offset:{so + kb*8192 + tl*256}"
    def wr(c, kb, e, h):
        d = bw + ((c*2+kb)*2+e)*4 + 2*h
        return f"ds_read_b64_tr_b16 v[{d}:{d+1}], v{5+2*hi+e} offset:{so + c*8192 + kb*4096 + h*2048}"
    r = []
    for kb in range(2):
        w = [wr(c, kb, e, h) for c in range(2 if both(pos) else 1) for e in range(2) for h in range(2)]
        r += interleave(w, [xr(kb, tl) for tl in range(4)])
    return strip(r, "r4")
def k4_mfmas(pos):
    bx, bw = SX[pos & 1], SW[pos & 1]
    r = []
    for kb in range(2):
        for tl in range(4):
            for c in range(2 if both(pos) else 1):
                for e in range(2):
                    acc = (AS if c else AK) + (tl*2+e)*4
                    w = bw + ((c*2+kb)*2+e)*4; x = bx + (kb*4+tl)*4
                    r.append(f"v_mfma_f32_16x16x32_bf16 v[{acc}:{acc+3}], v[{w}:{w+3}], v[{x}:{x+3}], v[{acc}:{acc+3}]")
    return strip(r, "m4")
def k4_half(pos, hi):
    it = k4_items(pos)
    if not hi: return it[:3] + [it[3] + ["s_add_u32 s37, s37, s28"]]
    return [it[0][:-3] + ["s_add_u32 s37, s37, s28"] + it[4]] + it[5:]
def k4_masked(pos):
    it = k4_items(pos)
    if both(pos): return it
    return [g[:-1] + ["s_mov_b64 exec, s[72:73]", g[-1], "s_mov_b64 exec, -1"] for g in it]
def k4_stage(a, pos, pre=None, extra=[], items=None):
    a("s_waitcnt lgkmcnt(0)" if pre is None else f"s_waitcnt vmcnt({pre}) lgkmcnt(0)")
    a("s_barrier")
    rd = k4_reads(pos+1) if pos + 1 < NP4 else []
    seq = interleave(k4_mfmas(pos), rd)
    if items: seq = seq[:2] + spread(seq[2:], items, env("FRH", 80))
    if extra: seq = seq[:8] + spread(seq[8:], [[i] for i in extra])
    for i in seq: a(i)
def k4_dma_setup(first, vA=21):
    r = []
    r.append(f"s_mul_i32 s44, s34, {HH_M}")
    r.append("s_lshl_b32 s39, s51, 13")
    r.append("s_add_u32 s44, s44, s39")
    r.append(f"s_add_u32 s44, s44, {WS_HH}")
    r.append("s_and_b32 s43, s51, 1")
    r.append("s_xor_b32 s43, s43, s35")
    r.append("s_lshl_b32 s43, s43, 7")
    r.append(f"s_mov_b32 s10, {HH_M - 8192}")
    r.append("s_movk_i32 s38, 1024")
    r.append("s_movk_i32 s40, 9216")
    r.append("s_movk_i32 s37, 0x4000")
    r.append("s_cmp_ge_u32 s51, 2")
    r.append("s_cselect_b32 s8, s60, s32")
    r.append("s_cselect_b32 s9, s61, s33")
    r.append(f"s_cselect_b32 s10, {3584*2048 - 1920}, s10")
    r.append("s_cselect_b32 s43, s43, s44")
    r.append("s_cselect_b32 s38, 16384, s38")
    r.append(f"s_cselect_b32 s40, {40*2048}, s40")
    r.append(f"s_cselect_b32 s55, {40*2048}, s38")
    r.append(f"s_cselect_b32 s37, {128*2048}, s37")
    r.append("s_cselect_b32 s45, -1, 0")
    r.append("s_add_u32 s8, s8, s43")
    r.append("s_addc_u32 s9, s9, 0")
    r.append("s_mov_b32 s11, 0x20000")
    r.append("s_and_b32 s53, s35, 1")
    r.append(f"s_mul_i32 s54, s53, {A0B}")
    r.append("s_mul_i32 s54, s54, s37")
    r.append(f"s_mul_i32 s29, s53, {8 - A0B}")
    r.append(f"s_add_u32 s29, s29, {A0B}")
    r.append("s_mul_i32 s29, s29, s37")
    r.append(f"s_and_b32 s43, s45, {((32 - 2048)*2048) & 0xffffffff}")
    r.append("s_add_u32 s29, s29, s43")
    r.append(f"s_mul_i32 s37, s37, {first}")
    r.append("s_sub_u32 s37, s37, s40")
    r.append("v_lshrrev_b32 v19, 3, v1")
    r.append("v_mul_u32_u24 v19, 1920, v19")
    r.append("v_lshrrev_b32 v20, 4, v1")
    r.append("v_lshlrev_b32 v20, 5, v20")
    r.append("v_and_b32 v19, s45, v19")
    r.append("v_and_b32 v20, s45, v20")
    r.append(f"v_lshlrev_b32 v{vA}, 4, v1")
    r.append(f"v_xor_b32 v{vA}, v{vA}, v20")
    r.append(f"v_add_u32 v{vA}, v{vA}, v19")
    return r
assert all(wd_row(8*(32 + LB) + i) - wd_row(8*32 + i) == wd_row(8*(32 + LB)) - wd_row(8*32) for i in range(8*LB))
def k4_items(pos, kind=None, vA=21):
    slot = (pos + 2) % 4
    r = []
    for k in range(8):
        if kind is None: inc = f"s_add_u32 s37, s37, s{40 if k == 0 else 55 if k == 4 else 38}"
        else:
            st = k4_stage_of(pos, 0)
            off = st*16384 + k*1024 if kind == 'x' else wd_row(8*st + k)*2048
            inc = f"s_add_u32 s37, s40, {off}" if pos < EB4 else f"s_mov_b32 s37, {off}"
        g = [f"s_add_u32 m0, s39, {slot*32768 + k*1024}", inc, f"buffer_load_dwordx4 v{vA}, s[8:11], s37 offen{XF} lds"]
        if "d4" in STRIP: g[2] = "s_nop 0 ;buffer_load lds"
        r.append(g)
    if kind is None and pos == T1: r[0] = ["s_add_u32 s37, s37, s54"] + r[0]
    if kind is None and pos == PA1: r[0] = ["s_add_u32 s37, s37, s29"] + r[0]
    return r


def emit(a, vm, seq, tag):
    for i in seq:
        if i.startswith(ST):
            t = i[len(ST)+1:]
            if "st" in STRIP: t = "s_nop 0"
            if "stp" in STRIP: t = t.replace(" sc1", "")
            a(t); vm.add("st" + i[len(ST)])
        else:
            a(i)
            if "buffer_load" in i and i.endswith("lds"): vm.add(tag)
            elif i.startswith("buffer_"): vm.add("x")

def st_last(seq):
    if not env("STLAST", 1): return seq
    return [i for i in seq if not i.startswith(ST)] + [i for i in seq if i.startswith(ST)]
def chunks(lst, n):
    return [lst[len(lst)*k//n:len(lst)*(k+1)//n] for k in range(n)]
def flat(g): return sum(g, [])
def last_with(cs, tag): return max(k for k, c in enumerate(cs) if any(i.startswith(ST + tag) for i in c))


def phase_234(a, Ld):
    PRIO = env("PRIO", 1)
    SPEC3 = env("SPEC3", 1); NV3 = env("NV3", 7)
    SPEC2 = env("SPEC2", 1); PB2 = env("PB2", 7)
    XSN = env("XSN", 1)
    XSIG = EB4 + XSN + env("XSD", 2); XRCV = NP4 - env("XRD", 3)
    SPECX = env("SPECX", 0)
    if SPECX: XSIG = -1; XRCV = NP4 - env("XRD", 2)
    LG1 = a.label("LG1")
    def k1_tail(young, signal=False):
        stamp(a, 14)
        a(f"s_waitcnt vmcnt({young})")
        stamp(a, 15)
        a("s_barrier")
        if signal: flag_signal(a, 56, "o", 34, v=13)
        for u in range(2):
            a(f"ds_write_b128 v27, v[{68+48*u}:{71+48*u}] offset:{512*u}")
        stamp(a, 5)
        stampc(a, "k1", 20)
    flag_srd(a, 56)
    lane_ig(a)
    a("s_lshr_b32 s46, s36, 1")
    a("s_and_b32 s46, s46, 1")
    a("s_and_b32 s47, s36, 1")
    a("s_and_b32 s51, s36, 3")
    if NBM:
        a("s_bfe_u32 s49, s35, 0x20001")
        if NBM == 2:
            a("s_sub_u32 s43, 0, s49")
            a("s_and_b32 s43, s43, 3")
            a("s_cmp_ge_u32 s35, 8")
            a("s_cselect_b32 s49, s43, s49")
        a("s_lshl_b32 s49, s49, 2")
        a("s_lshr_b32 s43, s35, 3")
        a("s_lshl_b32 s43, s43, 1")
        a("s_add_u32 s49, s49, s43")
        a("s_and_b32 s43, s35, 1")
        a("s_add_u32 s49, s49, s43")
    else:
        a("s_mov_b32 s49, s35")
    a("s_waitcnt lgkmcnt(0)")
    a("s_cmp_ge_u32 s36, 4")
    a(f"s_cbranch_scc1 {LG1}")

    def o_first_setup():
        a("s_lshl_b32 s43, s34, 18")
        srd(a, 12, 32, 262144, add_lo=43, add_imm=WS_O)
        a("v_lshlrev_b32 v21, 4, v1")
        a("s_lshl_b32 s54, s36, 11")
        for sg in (1, 2):
            a(f"s_{'xor_b32' if XOR else 'add_u32'} s43, s35, {sg}")
            a("s_and_b32 s43, s43, 15")
            a("s_lshl_b32 s43, s43, 14")
            a(f"s_add_u32 s{29+sg}, s43, s54")
    def o_first():
        for sg in (1, 2):
            for e in range(2):
                a(f"s_add_u32 m0, s54, {sg*16384 + e*1024}")
                a(f"s_add_u32 s43, s{29+sg}, {e*1024}")
                a(f"buffer_load_dwordx4 v21, s[12:15], s43 offen{XF} lds")
    for i in k2_addrs(): a(i)
    a("s_lshl_b32 s43, s34, 18")
    a("s_lshl_b32 s44, s35, 14")
    a("s_add_u32 s43, s43, s44")
    srd(a, 20, 32, 16384, add_lo=43, add_imm=WS_H)
    a("s_lshl_b32 s43, s34, 14")
    a("s_lshl_b32 s44, s35, 10")
    a("s_add_u32 s43, s43, s44")
    srd(a, 24, 32, 1024, add_lo=43, add_imm=WS_ST2)
    a("s_movk_i32 s50, 0x2000")
    a("v_lshrrev_b32 v19, 1, v18")
    a("v_lshl_add_u32 v19, v19, 4, v17")
    a("s_lshl_b32 s43, s36, 5")
    a("v_add_u32 v19, s43, v19")
    a("v_and_b32 v20, 1, v18")
    a("v_lshlrev_b32 v20, 2, v20")
    a("v_lshl_add_u32 v22, v19, 3, v20")
    o_first_setup()
    k1_tail(0)
    for k in range(4):
        a(f"v_permlane16_swap_b32 v{240+4*k}, v{242+4*k}")
        a(f"v_permlane16_swap_b32 v{241+4*k}, v{243+4*k}")
    for k in range(8):
        for h in range(2):
            a(f"v_lshlrev_b32 v{ACC+4*k+2*h}, 16, v{240+2*k+h}")
            a(f"v_and_b32 v{ACC+4*k+2*h+1}, 0xffff0000, v{240+2*k+h}")
    a("s_waitcnt lgkmcnt(0)")
    a("s_barrier")
    o_first()
    for i in k2_reads(0): a(i)
    a("s_waitcnt lgkmcnt(0)")
    for i in g2_mfmas(SET[0]): a(i)
    a("s_waitcnt vmcnt(2)")
    a("s_barrier")
    stamp(a, 6)
    for i in k2_reads(1): a(i)
    for st in range(1, 16):
        a("s_waitcnt vmcnt(0) lgkmcnt(0)" if st == 1 else "s_waitcnt lgkmcnt(0)")
        if SPEC2 and st <= PB2 + 3:
            b = SET[st & 1]; regs = list(range(b, b + 16))
            for i in chk_ops(regs): a(i)
            a("s_nop 4")
            chk_fix(a, regs, [f"s_{'xor_b32' if XOR else 'add_u32'} s44, s35, {st}", "s_and_b32 s44, s44, 15", "s_lshl_b32 s44, s44, 14", "s_add_u32 s43, s44, 0x2000"],
                    [f"buffer_load_dwordx4 v[{b+(kb*2+tl)*4}:{b+(kb*2+tl)*4+3}], v2, s[12:15], s{43 if kb else 44} offen offset:{tl*256} sc1" for kb in range(2) for tl in range(2)])
        a("s_barrier")
        m = g2_mfmas(SET[st & 1]); rd = k2_reads(st+1) if st < 15 else []
        for i in spread(rd, [[x] for x in m], 100) if rd else m: a(i)
    stamp(a, 7)
    a("s_nop 4")
    P = 96
    for tl in range(2):
        for kb in range(2):
            o = P + (tl*2+kb)*4
            for hf in range(2):
                s = ACC + (tl*4 + 2*kb + hf)*4
                a(f"v_cvt_pk_bf16_f32 v{o+2*hf}, v{s}, v{s+1}")
                a(f"v_cvt_pk_bf16_f32 v{o+2*hf+1}, v{s+2}, v{s+3}")
            a(f"buffer_store_dwordx4 v[{o}:{o+3}], v2, s[20:23], {'s50' if kb else '0'} offen offset:{tl*256} sc1")
            a(f"ds_write_b128 v4, v[{o}:{o+3}] offset:{kb*8192 + tl*256}")
    for q in range(8):
        for tl in range(2):
            x = ACC + 16*tl + 2*q; sm = 116 + 4*tl; sq = sm + 2
            if q == 0:
                a(f"v_pk_mul_f32 v[{sq}:{sq+1}], v[{x}:{x+1}], v[{x}:{x+1}]")
            else:
                a(f"v_pk_fma_f32 v[{sq}:{sq+1}], v[{x}:{x+1}], v[{x}:{x+1}], v[{sq}:{sq+1}]")
                y = ACC + 16*tl if q == 1 else sm
                a(f"v_pk_add_f32 v[{sm}:{sm+1}], v[{x}:{x+1}], v[{y}:{y+1}]")
    for tl in range(2):
        a(f"v_add_f32 v{112+2*tl}, v{116+4*tl}, v{117+4*tl}")
        a(f"v_add_f32 v{113+2*tl}, v{118+4*tl}, v{119+4*tl}")
    a("s_nop 1")
    a("v_permlane32_swap_b32 v112, v114")
    a("v_permlane32_swap_b32 v113, v115")
    a("v_add_f32 v112, v112, v114")
    a("v_add_f32 v113, v113, v115")
    a("s_nop 1")
    a("v_permlane16_swap_b32 v112, v113")
    a("v_add_f32 v112, v112, v113")
    a("buffer_store_dword v112, v22, s[24:27], 0 offen sc1")
    if SPEC3:
        a("s_waitcnt lgkmcnt(0)")
        a("s_barrier")
        stamp(a, 8)
    else:
        a("s_waitcnt vmcnt(0) lgkmcnt(0)")
        a("s_barrier")
        Ls = a.label("Lsig")
        a("s_cmp_lg_u32 s36, 0")
        a(f"s_cbranch_scc1 {Ls}")
        flag_signal(a, 56, "h", 34, v=19)
        a(f"{Ls}:")
        if env("OPF", 2) & 2:
            Lo = a.label("Lopf")
            a("s_cmp_lt_u32 s36, 2")
            a(f"s_cbranch_scc1 {Lo}")
            a("s_and_b32 s43, s36, 1")
            a("s_lshl_b32 s43, s43, 13")
            a("v_lshlrev_b32 v19, 7, v1")
            a("buffer_load_dword v31, v19, s[20:23], s43 offen sc1")
            a(f"{Lo}:")
        stamp(a, 8)

    a("s_lshl_b32 s53, s47, 2")
    for i in k3_addrs(4, 53): a(i)
    def stage0():
        for i in k3_reads(4, 0, 0, SET[0]): a(i)
        a("s_waitcnt lgkmcnt(0)")
        for i in interleave([x[:x.rindex(",")] + ", 0" if x.startswith("v_mfma") else x for x in k3_mfmas(4, SET[0])], k3_reads(4, 0, 1, SET[1])): a(i)
        a("s_waitcnt lgkmcnt(0)")
        for i in k3_mfmas(4, SET[1]): a(i)
    stage0()
    for i in k3_dma_setup(1, 51, first=2): a(i)
    for i in epi_store_setup(0): a(i)
    def out_setup():
        r = ["s_lshl_b32 s43, s34, 18", "s_lshl_b32 s44, s35, 7", "s_add_u32 s43, s43, s44",
             "s_add_u32 s16, s62, s43", "s_addc_u32 s17, s63, 0", f"s_mov_b32 s18, {127*2048 + 128}", "s_mov_b32 s19, 0x20000",
             "s_lshl_b32 s43, s46, 6", "v_lshl_add_u32 v19, v17, 1, s43", "v_lshlrev_b32 v19, 11, v19",
             "v_and_b32 v20, 1, v18", "v_lshl_add_u32 v19, v20, 5, v19", "v_lshrrev_b32 v20, 1, v18", "v_lshl_add_u32 v19, v20, 4, v19",
             "s_lshl_b32 s43, s47, 6", "v_add_u32 v28, s43, v19"]
        for d, flip in ((64, 0), (68, 1)):
            r += ["s_lshl_b32 s43, s34, 4", "s_add_u32 s43, s43, s35", f"s_xor_b32 s43, s43, {flip}", "s_lshl_b32 s43, s43, 15", f"s_add_u32 s43, s43, {WS_X}",
                  f"s_add_u32 s{d}, s32, s43", f"s_addc_u32 s{d+1}, s33, 0", f"s_mov_b32 s{d+2}, 32768", f"s_mov_b32 s{d+3}, 0x20000"]
        return r
    for i in out_setup(): a(i)
    def x_first_setup():
        a("s_lshl_b32 s43, s34, 18")
        srd(a, 12, 32, 262144, add_lo=43, add_imm=WS_H)
        a("v_lshlrev_b32 v21, 4, v1")
        a("s_lshl_b32 s54, s36, 11")
        for sg in (1, 2):
            a(f"s_{'xor_b32' if XOR else 'add_u32'} s43, s35, {sg}")
            a("s_and_b32 s43, s43, 15")
            a("s_lshl_b32 s43, s43, 14")
            a(f"s_add_u32 s{29+sg}, s43, s54")
    def x_first():
        for sg in (1, 2):
            for e in range(2):
                a(f"s_add_u32 m0, s54, {((sg+2) % 3)*REG + e*1024}")
                a(f"s_add_u32 s43, s{29+sg}, {e*1024}")
                a(f"buffer_load_dwordx4 v21, s[12:15], s43 offen{XF} lds")
    x_first_setup()
    if SPEC3:
        a("s_waitcnt vmcnt(0)")
        a("s_barrier")
        stamp(a, 9)
        if PRIO: a("s_setprio 1")
        for i in k3_reads(4, 1, 0, SET[0]): a(i)
        a("s_waitcnt lgkmcnt(14)")
        for i in chk_ops(list(range(SET[0], SET[0]+16))): a(i)
        a("s_nop 4")
        k3_fix(a, 1, 0, SET[0])
        for sg in range(1, NV3 + 1):
            a("s_waitcnt lgkmcnt(0)")
            k3_half_chk(a, 4, SET[0], sg, 1, SET[1])
            a("s_waitcnt lgkmcnt(0)")
            a("s_barrier")
            if sg < NV3: k3_half_chk(a, 4, SET[1], sg+1, 0, SET[0])
            else: k3_half2(a, 4, sg)
        k3_consumer(a, 4, NV3 + 1, [], n=15 - NV3)
    else:
        a("s_barrier")
        x_first()
        a("s_waitcnt vmcnt(2)")
        a("s_barrier")
        stamp(a, 9)
        if PRIO: a("s_setprio 1")
        for i in k3_reads(4, 1, 0, SET[0]): a(i)
        k3_consumer(a, 4, 1, [0], n=15)
    stamp(a, 10)
    EA = epi_a()
    def batch(l, nb):
        return flat([[i for i in c if not i.startswith(ST)] + [i for i in c if i.startswith(ST)] for c in chunks(l, nb)])
    if env("STBA", 0): EA = batch(EA, env("STBA", 0))
    if "e" in STRIP: EA = [i for i in EA if i.startswith(ST)]
    ea = chunks(EA, env("EA_N", 13))
    SIG_A0 = 16 + last_with(ea, "0") + 2
    SIG_A1 = 16 + last_with(ea, "1") + 2
    HL = SIG_A0 - 1
    assert 16 + len(ea) <= 31 and SIG_A0 <= 28 and HL <= 27 and SIG_A1 in (29, 30)
    L3h = a.label("L3h"); LK4 = a.label("LK4")
    RD = 192
    def resid_loads():
        r = ["v_lshlrev_b32 v19, 11, v18", "v_lshl_add_u32 v19, v17, 4, v19", "s_lshl_b32 s43, s46, 10", "s_lshl_b32 s44, s47, 13",
             f"v_add3_u32 v{RD+16}, v19, s43, 0", f"v_add_u32 v{RD+16}, s44, v{RD+16}"]
        for tl in range(4):
            r.append(f"buffer_load_dwordx4 v[{RD+4*tl}:{RD+4*tl+3}], v{RD+16}, s[20:23], 0 offen offset:{tl*256} sc1")
        return r
    def resid_unpack():
        r = []
        for k in range(4):
            for q in range(4):
                r.append(f"v_lshlrev_b32 v{ACC+8*k+2*q}, 16, v{RD+4*k+q}")
                r.append(f"v_and_b32 v{ACC+8*k+2*q+1}, 0xffff0000, v{RD+4*k+q}")
        return r
    extra = {HL: resid_loads(), 17: k4_addrs(), 29: resid_unpack(), 30: [f"v_mov_b32 v{AS+i}, 0" for i in range(32)]}
    assert HL + 2 <= 28 and HL > 19
    a("s_cmp_eq_u32 s36, 3")
    a(f"s_cbranch_scc1 {L3h}")
    for helper in (False, True):
        vm = VM(a)
        if helper: a(f"{L3h}:")
        m = k3_mfmas(4, SET[1])
        if env("ERI", 1):
            m = interleave(m, epi_reads(4, 0, TT=2))
            emit(a, vm, m if helper else spread(m, k3_items(18)), 18)
            if PRIO: a(f"s_setprio {env('PP3', 0)}")
            emit(a, vm, ["s_waitcnt lgkmcnt(0)"] + epi_consts(KA, SR=2), None)
        else:
            emit(a, vm, m if helper else spread(m, k3_items(18)), 18)
            if PRIO: a("s_setprio 0")
            emit(a, vm, epi_reads(4, 0) + ["s_waitcnt lgkmcnt(0)"] + epi_consts(KA), None)
        if helper and env("K3PF", 0):
            k3pf = K3PF(a, 1)
            k3pf.setup()
            for s in range(3, env("K3PD", 6)): k3pf.issue(s)
        a("s_barrier")
        if helper: stampc(a, "k3", 16)
        for sig in range(16, 31):
            body = (list(ea[sig-16]) if sig-16 < len(ea) else []) + extra.get(sig, [])
            if helper:
                if sig == SIG_A0: flag_signal(a, 56, "hha0", 34, v=21)
                if sig == SIG_A1: flag_signal(a, 56, "hha1", 34, v=22)
                if sig == env("PA0", 27): flag_poll_issue(a, 56, "hha0", 34, v=21); vm.add("p")
                if env("K3PF", 0) and sig - 16 + env("K3PD", 6) < 16: k3pf.issue(sig - 16 + env("K3PD", 6))
                if 100 + sig in ICW: code_warm(a, 78, 19, 30)
                if sig == 30: warm_jump(a, ("L7b", 0))
                if env("K3_SPF", 0) and (sig in S3R if S3F else sig == env("S3C", 18)):
                    sp = SPF3(a); sp.setup(1); sp.issue(S3R[sig][1] if S3F else 8)
                if env("K4_SPF", 1) and sig == env("S4A", 25):
                    sp = SPF4(a); sp.setup(); sp.issue(0)
                if sig == 25 and env("K4PF", 0):
                    pf_w64(a, KA_WD, 3584, list(range(env("K4PF0", 0), env("K4PF", 0)//MX)), 80, 29, 30)
                assert T1 >= 4
                if sig == 29 and HH:
                    emit(a, vm, k4_dma_setup(4) + ["s_mul_i32 s28, s38, 3", "s_add_u32 s28, s28, s55"], None)
                if sig == 29 and H4:
                    emit(a, vm, k4_dma_setup(2), None)
                    a("s_mov_b64 s[72:73], 0")
                emit(a, vm, body, None)
                if sig == SIG_A0 - 1: a(vm.wait("st0"))
                if sig == SIG_A1 - 1: a(vm.wait("st1"))
                if sig == HL + 2: a(vm.wait("x"))
                if sig == 28: flag_poll_finish(a, 56, v=21, first=vm.cnt("p"))
            else:
                if sig + 3 <= 31:
                    emit(a, vm, st_last(spread(body, k3_items(sig+3), env("FR3", 100))), sig+3)
                else:
                    if sig == 29:
                        emit(a, vm, k4_dma_setup(0), None)
                        a("s_mov_b64 s[72:73], -1")
                    emit(a, vm, spread(body, k4_items(sig - 29)), ("k4", sig - 29))
                if sig == 30 and HH:
                    emit(a, vm, ["s_mul_i32 s28, s38, 3", "s_add_u32 s28, s28, s55", "s_mul_i32 s43, s38, 3", "s_add_u32 s43, s43, s40", "s_add_u32 s43, s43, s28",
                                 "s_lshl_b32 s43, s43, 1", "s_add_u32 s37, s37, s43"], None)
                w = vm.cnt(sig+2) if sig + 2 <= 31 else vm.cnt(("k4", 0))
                if sig == SIG_A0 - 1: w = min(w, vm.cnt("st0"))
                if sig == SIG_A1 - 1: w = min(w, vm.cnt("st1"))
                if sig == HL + 2: w = min(w, vm.cnt("x"))
                a(f"s_waitcnt vmcnt({w})")
            a("s_barrier")
            if helper: stampc(a, "k3", sig+1)
        if not helper: a(f"s_branch {LK4}")
    a(f"{LK4}:")
    stamp(a, 11)
    if PRIO: a("s_setprio 1")
    for i in k4_reads(0): a(i)
    if H4:
        for i in flat(k4_masked(2) + k4_masked(3)): a(i)
    XB = env("XBF", 1)
    def xch(op, reg, sd, n=8):
        return [f"buffer_{op}_dwordx4 v[{reg+4*t}:{reg+4*t+3}], v9, s[{sd}:{sd+3}], {'s52' if t >= 4 else '0'} offen offset:{(t & 3)*1024} sc1" for t in range(n)]
    if XB:
        st_ = xch("store", RECV, 64, 4)
        xs = chunks([[f"v_cvt_pk_bf16_f32 v{RECV+4*tl+q}, v{AS+8*tl+2*q}, v{AS+8*tl+2*q+1}" for q in range(4)] + [st_[tl]] for tl in range(4)], XSN)
        xs = [flat(c) for c in xs]
        xl = xch("load", AS, 68, 4)
        xu = ["s_waitcnt vmcnt(0)"]
        for k in range(16): xu += [f"v_lshlrev_b32 v{RECV+2*k}, 16, v{AS+k}", f"v_and_b32 v{RECV+2*k+1}, 0xffff0000, v{AS+k}"]
    else:
        xs = chunks(xch("store", AS, 64), XSN); xl = xch("load", RECV, 68); xu = []
    pos = 0
    R0 = max(T1, H4 + 3, HH + 3 if HH else 0)
    def pre4(pos):
        if pos == XSIG: return 0
        if HH and 3 <= pos <= HH + 2: return 4*(min(pos + 3, HH + 3) - (pos + 1))
        if not H4: return 0 if pos == 0 else None
        if pos <= H4: return 16
        return {H4 + 1: 8, H4 + 2: 0}.get(pos)
    while pos < NP4:
        if pos == R0:
            nl = (EB4 - 1 - R0)//4
            L = a.label("Lk4")
            a(f"s_mov_b32 s41, {nl}")
            a(f"{L}:")
            for q in range(4): k4_stage(a, pos + q)
            a("s_sub_u32 s41, s41, 1")
            a("s_cmp_lg_u32 s41, 0")
            a(f"s_cbranch_scc1 {L}")
            pos += 4*nl
        if pos == EB4: a("s_mov_b32 s54, 0x10000")
        if SPECX and pos == NP4 - 1:
            a("s_waitcnt lgkmcnt(0)")
            a("s_barrier")
            m = k4_mfmas(pos)
            a(m[0]); a(m[1])
            a("s_waitcnt vmcnt(0)")
            regs = list(range(AS, AS + 16))
            for i in interleave(m[2:], chk_ops(regs)): a(i)
            chk_fix(a, regs, [], xl)
            for i in xu[1:]: a(i)
            break
        k4_stage(a, pos, pre=pre4(pos), items=k4_masked(pos + 4) if pos < H4 else k4_half(pos + 4, 0) if pos < HH else None,
                 extra=xs[pos - EB4] if EB4 <= pos < EB4 + XSN else xl if pos == XRCV else xu if pos == NP4 - 1 else [])
        pos += 1
    stamp(a, 12)
    a("s_waitcnt vmcnt(0)")
    a("s_nop 4")
    for tl in range(4):
        b = AK + 8*tl; o = 32 + 4*tl
        for q in range(0, 8, 2): a(f"v_pk_add_f32 v[{b+q}:{b+q+1}], v[{b+q}:{b+q+1}], v[{RECV+8*tl+q}:{RECV+8*tl+q+1}]")
        for q in range(4): a(f"v_cvt_pk_bf16_f32 v{o+q}, v{b+2*q}, v{b+2*q+1}")
    for tl in range(4):
        o = 32 + 4*tl
        a(f"v_permlane16_swap_b32 v{o}, v{o+2}")
        a(f"v_permlane16_swap_b32 v{o+1}, v{o+3}")
        a(f"buffer_store_dwordx4 v[{o}:{o+3}], v28, s[16:19], {'s54' if tl >= 2 else '0'} offen offset:{(tl & 1)*2048}{os.environ.get('OSF', '')}")
    if STAMP:
        a("s_waitcnt vmcnt(0)")
        stamp(a, 13)
        stamp_flush(a)
    a(f"s_branch {Ld}")

    a(f"{LG1}:")
    L7 = a.label("L7"); LK3b = a.label("LK3b"); LP3 = a.label("LP3")
    a("s_cmp_eq_u32 s36, 7")
    a(f"s_cbranch_scc1 {L7}")
    for i in g2_dma_setup(51, WS_O, 262144, 262144, 1024, 28, vA=23): a(i)
    o_first_setup()
    Lp = [a.label("Lp") for _ in range(3)]
    for p in range(1, 3):
        a(f"s_cmp_eq_u32 s51, {p}")
        a(f"s_cbranch_scc1 {Lp[p]}")
    for p in range(3):
        a(f"{Lp[p]}:")
        vm = VM(a)
        def st2(s): emit(a, vm, flat(k2_items(s, p == 2)), s)
        a(f"s_mov_b32 s42, {-1 if p == 2 else 2}" if XOR else f"s_add_u32 s42, s35, {15 if p == 2 else 2}")
        k1_tail(0, p == 1)
        WE = env("K2_WE", 2)
        wn_ = [0]
        def wst(upto, n):
            while wn_[0] <= min(upto, 15) and n > 0:
                st2(wn_[0]); wn_[0] += 1; n -= 1
        if p == 2: wst(9, WE)
        stamp(a, 6)
        if p == 0 and SPEC2:
            for q in range(env("SPD2", 0)):
                flag_poll_issue(a, 56, "o", 34, v=8)
                a("s_waitcnt vmcnt(0)")
        elif p == 0: flag_poll(a, 56, "o", 34, v=8)
        if p == 2: a(vm.wait(0))
        a("s_waitcnt lgkmcnt(0)")
        stamp(a, 7)
        a("s_barrier")
        stamp(a, 8)
        o_first(); vm.add(1, 2); vm.add(2, 2)
        if p < 2: st2(3)
        else: wst(9, 1)
        a(vm.wait(1))
        a("s_barrier")
        stamp(a, 9)
        if p < 2: st2(4)
        else: wst(9, 1)
        for s in range(1, 16):
            if s < 15: a(vm.wait(s+1))
            a("s_barrier")
            if p == 2: wst(s + 9, env("K2_WN", 2))
            elif s + 4 < 16: st2(s + 4)
            rest = SPR - 3 - 2*(SPE - 2) - (s-1)*env("CS_RPS", 2)
            if rest > 0 and CSM == "d": cs_spre(a, min(rest, env("CS_RPS", 2)))
            if s == 11:
                assert p < 2 or wn_[0] == 16
                for i in k3_dma_setup(0, 51): a(i)
            if s in (12, 14)[:env("EW", 2)] and p > 0:
                emit(a, vm, flat(k3_items((s-12)//2)), "w%d" % ((s-12)//2))
        if p > 0: a(vm.wait("w0"))
        a("s_barrier")
        if p == 0 and SPEC3:
            for q in range(env("SPD3", 2)):
                flag_poll_issue(a, 56, "h", 34, v=8)
                a("s_waitcnt vmcnt(0)")
            a("s_add_u32 s42, s42, 1")
            for w in (1, 2): emit(a, vm, flat(k3_items(w)), "w")
        elif p == 0:
            a("s_add_u32 s42, s42, 3")
            flag_poll(a, 56, "h", 34, v=8)
        else:
            for w in range(env("EW", 2), 3): emit(a, vm, flat(k3_items(w)), "w")
        if p < 2: a(f"s_branch {LP3}")
    a(f"{LP3}:")
    SWD = env("SWD", 1)
    W7SKIP = max(7, NV3 + env("STS", 1) if SPEC3 else 0) - 1
    wd_base = ["s_mul_i32 s43, s2, 28672", "s_mul_i32 s44, s51, 7168", "s_add_u32 s43, s43, s44", "s_add_u32 s80, s60, s43", "s_addc_u32 s81, s61, 0"]
    def swd(sig, w7=False):
        n = 9 if sig <= 8 else 8 if 10 <= sig <= 12 else 7 if sig == 13 else 0
        if w7: n = 0 if sig in (W7SKIP, 9) or sig > 12 else 11 if sig <= 8 else 8
        if not SWD or not n: return []
        return [f"s_load_dword s{64+q}, s[80:81], {64*q}" for q in range(n)] + [f"s_add_u32 s80, s80, {64*n}", "s_addc_u32 s81, s81, 0"]
    for i in wd_base: a(i)
    if SPEC3:
        assert env("EW", 2) == 2
        a("s_waitcnt vmcnt(16)")
        a("s_barrier")
        for i in flat(k3_items(3)) + swd(0): a(i)
        a("s_waitcnt vmcnt(16)")
        a("s_barrier")
    else:
        x_first_setup()
        a("s_barrier")
        x_first()
        for i in flat(k3_items(3)) + swd(0): a(i)
        a("s_waitcnt vmcnt(18)")
        a("s_barrier")
        a("s_waitcnt vmcnt(16)")
        a("s_barrier")
    def xpo(sig):
        if not SPECX or not 9 <= sig <= 14: return []
        r = []
        if sig == 9:
            r = ["s_lshl_b32 s43, s34, 4", "s_add_u32 s43, s43, s35", "s_lshl_b32 s43, s43, 15", f"s_add_u32 s43, s43, {WS_X}",
                 "s_add_u32 s12, s32, s43", "s_addc_u32 s13, s33, 0", "s_mov_b32 s14, 16384", "s_mov_b32 s15, 0x20000",
                 "s_mul_i32 s30, s51, 5120", "v_lshlrev_b32 v29, 4, v1"] + [f"v_mov_b32 v{240+i}, -1" for i in range(4)]
        return r + ["buffer_store_dwordx4 v[240:243], v29, s[12:15], s30 offen sc1", "s_add_u32 s30, s30, 1024"]
    def pst(sig, body=[], pre=[], post=[]):
        for i in pre + spread(body, k3_items(sig+3)) + post + xpo(sig) + swd(sig): a(i)
        a(f"s_waitcnt vmcnt({16 + bool(xpo(sig)) + bool(xpo(sig-1))})")
        a("s_barrier")
    L = a.label("Lp3")
    a("s_mov_b32 s41, 2")
    a(f"{L}:")
    for sig in range(1, 4): pst(sig)
    a("s_sub_u32 s41, s41, 1")
    a("s_cmp_lg_u32 s41, 0")
    a(f"s_cbranch_scc1 {L}")
    pst(7); pst(8)
    bs = ["s_and_b32 s53, s35, 1", "s_lshl_b32 s53, s53, 1", "s_mul_i32 s43, s47, 3", "s_add_u32 s53, s53, s43"] + k3_addrs(3, 53)
    binit = []
    for mat in range(2):
        for j in range(3):
            for tl in range(4):
                for q in range(4):
                    binit.append(f"v_mul_f32 v{k3_acc(3, mat, j, tl)+q}, -v{TT+2*tl}, v{CSR+(mat*3+j)*4+q}")
    bi = chunks(binit, 3)
    BODY = {9: bs + epi_reads(3, 128), 10: ["s_waitcnt lgkmcnt(0)"] + epi_consts(KBB, False), 11: bi[0], 12: bi[1], 13: bi[2]}
    k4set = k4_dma_setup(2 if not H4 else H4 + 4)
    if HH: k4set += ["s_mul_i32 s28, s38, 3", "s_add_u32 s28, s28, s40"]
    if H4:
        assert T1 <= H4 + 4 <= PA1
        if H4 + 4 > T1: k4set += ["s_add_u32 s37, s37, s54"]
    for sig in range(9, 15):
        pst(sig, BODY.get(sig, []), pre=k3_dma_setup(1, 51) if sig == 13 else [], post={14: k4set, 10: epi_store_setup(1)}.get(sig, []))
    a(f"s_branch {LK3b}")

    a(f"{L7}:")
    NB2 = 18
    Lno = a.label("Lnojob"); Lcs = a.label("Lcsd")
    stampc(a, "k2", 0)
    def opoll(st):
        if SPEC2 and st == PB2 - 1 - env("PL2", 3): flag_poll_issue(a, 56, "o", 34, v=8)
        if SPEC2 and st == PB2 - 1: flag_poll_finish(a, 56, v=8)
    assert not SPEC2 or env("CS_LT", 7) >= PB2
    cs_setup(a, Lno, 64, 4, ptrs=True)
    EREG = [56, 60, 64] + list(range(72, 116, 4)) + [120, 124]
    def ld2(reg, q):
        a(f"s_mov_b32 s43, {q*4*7168}")
        a(f"buffer_load_dwordx4 v[{reg}:{reg+3}], v4, s[64:67], s43 offen")
    a("s_lshl_b32 s55, s45, 1")
    a("s_add_u32 s55, s55, s44")
    a("s_mul_i32 s55, s55, 14336")
    a("s_lshl_b32 s45, s46, 9")
    a("s_mov_b32 s50, s46")
    a("s_add_u32 s55, s55, s45")
    a("v_lshl_add_u32 v5, v5, 5, s55")
    srd(a, 72, 32, 8*14336, add_imm=WS_CS)
    for i in range(8): a(f"v_mov_b32 v{32+i}, 0")
    o_first_setup()
    k1_tail(0)
    EAT = env("CS_EAT", -2)
    if EAT == -2:
        for n in range(16): ld2(EREG[n], 32 + n)
    npr = [0]
    def proc(reg):
        t = 40 + 8*(npr[0] & 1); npr[0] += 1
        for d in range(4):
            a(f"v_lshlrev_b32 v{t+2*d}, 16, v{reg+d}")
            a(f"v_and_b32 v{t+2*d+1}, 0xffff0000, v{reg+d}")
        for d in range(4): a(f"v_pk_add_f32 v[{32+2*d}:{33+2*d}], v[{32+2*d}:{33+2*d}], v[{t+2*d}:{t+2*d+1}]")
    def mpf():
        if env("MPF", 0):
            a("s_mul_i32 s43, s2, 28672")
            srd(a, 76, 60, 28672, add_lo=43)
            a("v_lshlrev_b32 v19, 7, v1")
            for q in range(4):
                a(f"s_mov_b32 s43, {q*8192}")
                a("buffer_load_dword v30, v19, s[76:79], s43 offen")
    def cs_finish():
        a("s_nop 2")
        for sw in ("16", "32"):
            for d in range(8): a(f"v_mov_b32 v{40+d}, v{32+d}")
            a("s_nop 0")
            for d in range(8): a(f"v_permlane{sw}_swap_b32 v{32+d}, v{40+d}")
            for d in range(8): a(f"v_add_f32 v{32+d}, v{32+d}, v{40+d}")
        a("s_mov_b64 exec, 0xffff")
        a("buffer_store_dwordx4 v[32:35], v5, s[72:75], 0 offen sc1")
        a("buffer_store_dwordx4 v[36:39], v5, s[72:75], 0 offen offset:16 sc1")
        a("s_mov_b64 exec, -1")
    LT = env("CS_LT", 7); PRE = env("CS_PRE", 8); CLN = env("CS_LN", 4)
    todo = [128 + 4*n for n in range(32)] + EREG
    for r in todo[:PRE]: proc(r)
    todo = todo[PRE:]
    a("s_waitcnt lgkmcnt(0)")
    stamp(a, 7)
    for q in range(NB2):
        st = q - 2
        if q == 1:
            o_first()
            a("s_waitcnt vmcnt(2)")
        if q == 2: a("s_waitcnt vmcnt(0)")
        opoll(st)
        if st == EAT and EAT >= 0:
            for n in range(16): ld2(EREG[n], 32 + n)
        if EAT >= 0 and todo and todo[0] == EREG[0]: a(f"s_waitcnt vmcnt({16 if st > LT else 0})")
        if st == LT:
            assert npr[0] >= 16
            for n in range(16): ld2(128 + 4*n, 48 + n)
        elif st >= 1:
            if not todo and st >= LT + 4 and npr[0] == 48:
                a("s_waitcnt vmcnt(0)")
                todo = [128 + 4*n for n in range(16)]
            for r in todo[:CLN]: proc(r)
            todo = todo[CLN:]
        a("s_barrier")
        stampc(a, "k2", q+1)
    if LT > 16:
        for n in range(16): ld2(128 + 4*n, 48 + n)
    if npr[0] == 48:
        todo = [128 + 4*n for n in range(16)]
        for n, r in enumerate(todo):
            if n % 4 == 0: a(f"s_waitcnt vmcnt({12 - n})")
            proc(r)
    else:
        for r in todo: proc(r)
    assert npr[0] == 64
    cs_finish()
    if LT > 16: a("s_mov_b32 s55, 1")
    else:
        a("s_waitcnt vmcnt(0)")
        flag_signal(a, 56, "cs", 50, v=12)
    mpf()
    a(f"s_branch {Lcs}")
    a(f"{Lno}:")
    o_first_setup()
    k1_tail(0)
    a("s_waitcnt lgkmcnt(0)")
    for q in range(NB2):
        if q == 1:
            o_first()
            a("s_waitcnt vmcnt(2)")
        if q == 2: a("s_waitcnt vmcnt(0)")
        opoll(q - 2)
        a("s_barrier")
        stampc(a, "k2", q+1)
    mpf()
    a("s_mov_b32 s55, 0")
    a(f"{Lcs}:")
    a("s_mov_b32 s46, 1")
    x_first_setup()
    k3pf = K3PF(a, 0)
    PD = env("K3PD", 6)
    if env("K3PF", 0) or env("K3PF0", 0):
        k3pf.setup()
        for s in range(3, max(PD, env("K3PF0", 0))): k3pf.issue(s)
    S3 = env("K3_SPF", 0); S4 = env("K4_SPF", 1)
    sp3 = SPF3(a)
    if S3:
        sp3.setup(0); sp3.issue(3)
    a("s_lshl_b32 s43, s34, 14")
    srd(a, 64, 32, 16384, add_lo=43, add_imm=WS_ST2)
    srd(a, 72, 32, 8*14336, add_imm=WS_CS)
    if not SPEC3:
        a("s_barrier")
        stampc(a, "k2", 20)
        x_first()
        a("s_waitcnt vmcnt(2)")
    a("s_barrier")
    stampc(a, "k2", 21)
    stampc(a, "k3", 31)
    stampc(a, "k3", 0)
    def w7dst(i):
        if not i.startswith("s_load_dword"): return i
        q = int(i.split()[1][1:-1]) - 64
        return i.replace(f"s{64+q},", f"s{82 + q % 6},")
    STL = env("STL", 1); CSP = STL + 3
    for sig in range(15):
        if sig == 0:
            if SPEC3: flag_signal(a, 56, "h", 34, v=8)
            if LT > 16:
                Lq = a.label("Lq")
                a("s_cmp_eq_u32 s55, 0")
                a(f"s_cbranch_scc1 {Lq}")
                a("s_waitcnt vmcnt(0)")
                flag_signal(a, 56, "cs", 50, v=12)
                a(f"{Lq}:")
            else: a("s_waitcnt vmcnt(0)")
        if SPEC3 and sig == NV3 - 3 - env("PL3", 1): flag_poll_issue(a, 56, "h", 34, v=8)
        if SPEC3 and sig == NV3 - 3: flag_poll_finish(a, 56, v=8)
        if 100 + sig in ICW: code_warm(a, 78, 19, 30)
        if sig == 14: warm_jump(a, ("L3h", 0))
        if S3 and S3F:
            if sig in S3R:
                if S3R[sig] == (1, 0): sp3.setup(1)
                sp3.issue(S3R[sig][1])
        elif S3:
            if sig == env("S3A", 5): sp3.issue(8)
            if sig == env("S3B", 10):
                sp3.setup(1); sp3.issue(0)
        if sig == STL + 1:
            a("s_mul_i32 s43, s49, 96")
            a("s_add_u32 s44, s43, 95")
            a("s_lshr_b32 s43, s43, 7")
            a("s_lshr_b32 s44, s44, 7")
            a("s_add_u32 s43, s43, 16")
            a("s_add_u32 s44, s44, 16")
            a("v_mov_b32 v12, s44")
            a("v_writelane_b32 v12, s35, 0")
            a("v_writelane_b32 v12, s43, 1")
            a(f"v_add_u32 v12, {FLG['cs'][0]}, v12")
            a("v_lshlrev_b32 v12, 7, v12")
            a(f"v_mov_b32 v14, {FLG['cs'][1]}")
            a("buffer_load_dword v13, v12, s[56:59], 0 offen sc1")
        SL0 = NV3 - 2 if SPEC3 else STL
        if sig in (SL0, SL0 + 1):
            for n in (range(16) if sig == SL0 else []) if not env("STS", 1) else range(8*(sig - SL0), 8*(sig - SL0) + 8):
                a(f"s_mov_b32 s43, {n*1024}")
                a(f"buffer_load_dwordx4 v[{128+4*n}:{128+4*n+3}], v21, s[64:67], s43 offen sc1")
        if env("K3PF", 0) and sig >= 1:
            if sig + PD - 1 < 16: k3pf.issue(sig + PD - 1)
            elif sig + PD - 1 == 16:
                k3pf.part = 1; k3pf.setup()
            if 16 <= sig + PD - 1 < 19: k3pf.issue(sig + PD - 1 - 16)
        if sig == CSP:
            flag_poll_finish(a, 56, v=12)
            a("v_min_u32 v12, 55, v1")
            a("v_lshlrev_b32 v13, 4, v12")
            a("s_lshl_b32 s43, s35, 9")
            a("s_mul_i32 s44, s49, 384")
            a(f"s_add_u32 s44, s44, {8192 - 512}")
            a("v_mov_b32 v14, s44")
            a("v_mov_b32 v15, s43")
            a("v_cmp_gt_u32 vcc, 32, v12")
            a("s_nop 1")
            a("v_cndmask_b32 v14, v14, v15, vcc")
            a("v_add_u32 v14, v14, v13")
            a(f"v_add_u32 v13, {CSF}, v13")
            for mat in range(2):
                for sl in range(4):
                    d = 192 + (mat*4+sl)*4
                    a(f"s_mov_b32 s43, {(sl*2+mat)*14336}")
                    a(f"buffer_load_dwordx4 v[{d}:{d+3}], v14, s[72:75], s43 offen sc1")
        SRD_ = max(CSP + 1, NV3 + env("STS", 1)) if SPEC3 else CSP + 1
        LAST_ = max(CSP + 3, SRD_)
        if sig == SRD_:
            if SPEC3: a("s_waitcnt vmcnt(0)")
            for n in range(1, 16):
                for q in range(0, 4, 2) if 0 else range(4): a(f"v_add_f32 v{128+q}, v{128+q}, v{128+4*n+q}")
            for b in (128, 130):
                a(f"v_mul_f32 v{b}, 0x3a800000, v{b}")
                a(f"v_mul_f32 v{b+1}, 0x3a800000, v{b+1}")
                a(f"v_fma_f32 v{b+1}, -v{b}, v{b}, v{b+1}")
                a(f"v_max_f32 v{b+1}, 0, v{b+1}")
                a(f"v_add_f32 v{b+1}, 0x3727c5ac, v{b+1}")
                a(f"v_rsq_f32 v{b+1}, v{b+1}")
            a(f"v_add_u32 v19, {STATS}, v21")
            a("ds_write_b128 v19, v[128:131]")
        if sig == (CSP + 3 if SRD_ != CSP + 3 else CSP + 2):
            a("s_waitcnt vmcnt(0)" if not (SPEC3 and NV3 - 2 > CSP) else "s_waitcnt vmcnt(16)")
            for mat in range(2):
                b = 192 + mat*16
                for q in range(4):
                    a(f"v_add_f32 v{b+q}, v{b+q}, v{b+4+q}")
                    a(f"v_add_f32 v{b+8+q}, v{b+8+q}, v{b+12+q}")
                for q in range(4): a(f"v_add_f32 v{b+q}, v{b+q}, v{b+8+q}")
                a(f"ds_write_b128 v13, v[{b}:{b+3}] offset:{mat*896}")
        if sig == LAST_:
            a("s_waitcnt lgkmcnt(0)")
            assert sig < 9
        for i in BODY.get(sig, []) + (epi_store_setup(1) if sig == 13 else []) + (wd_base if sig == 0 else []) + (k4set if sig == 14 else []): a(i)
        assert LAST_ - 1 == W7SKIP
        if STAMPC != "k3":
            for i in swd(sig, True): a(w7dst(i))
        a("s_barrier")
        stampc(a, "k3", sig+1)

    a(f"{LK3b}:")
    stamp(a, 10)
    if PRIO: a("s_setprio 1")
    for i in k3_reads(3, 16, 0, SET[0]): a(i)
    k3_consumer(a, 3, 16, [0])
    stamp(a, 11)
    EB = epi_b()
    if env("STBB", 0): EB = batch(EB, env("STBB", 0))
    if "e" in STRIP: EB = [i for i in EB if i.startswith(ST)]
    eb = chunks(EB, env("EB_N", 8))
    SIG_B = last_with(eb, "0") + env("SIGB_D", 2)
    POLL_A1 = PA1 - 5; POLL_B = PB - 5
    POLL_C = NP4 - 6 - 5
    assert LB == 6 and not SPECX
    UNI = PB - 4
    assert len(eb) <= UNI and SIG_B < POLL_B
    L7b = a.label("L7b")
    a("s_cmp_eq_u32 s36, 7")
    a(f"s_cbranch_scc1 {L7b}")
    for helper in (False, True):
        vm = VM(a)
        if helper: a(f"{L7b}:")
        m = k3_mfmas(3, SET[1])
        if H4: emit(a, vm, m, None)
        elif helper:
            emit(a, vm, m, None)
            a(f"s_mul_i32 s43, s38, {16*(T1-2)}")
            a("s_add_u32 s37, s37, s43")
        else:
            emit(a, vm, spread(m[:12], k4_items(2)), 2)
            emit(a, vm, spread(m[12:], k4_items(3)), 3)
        if PRIO: a(f"s_setprio {env('PP4', 0)}")
        a("s_barrier")
        if helper: stampc(a, "k4", 0 - env("K4O", 0))
        def pslice(s, kind):
            body = eb[s] if s < len(eb) else []
            dma = (both(s + 4) if helper else s + 4 < NP4) and s >= H4
            if helper:
                if s == UNI - 1: warm_jump(a, ("LW4", 0))
                if s == SIG_B:
                    a("s_cmp_ge_u32 s50, 12")
                    a(f"s_cselect_b32 s44, {FLG['hhc'][0] - FLG['hhb'][0]}, 0")
                    a("s_add_u32 s44, s44, s34")
                    flag_signal(a, 56, "hhb", 44, v=10); vm.add("f")
                if s == POLL_C - 2: flag_poll_issue(a, 56, "hhc", 34, v=13); vm.add("q")
                if s == POLL_A1 - env("PLA", 2): flag_poll_issue(a, 56, "hha1", 34, v=10); vm.add("p")
                if s == POLL_B - env("PLB", 2): flag_poll_issue(a, 56, "hhb", 34, v=10); vm.add("p")
                if env("K4_SPF", 1):
                    if s == 0: sp4.setup()
                    for G, at in ((1, PA1 - env("S4B", 9)), (2, PB - env("S4C", 8)), (3, EB4 - env("S4D", 6))):
                        if s == at: sp4.issue(G); vm.add("f")
                if s == XSIG:
                    xflag_addr(a, 10, 0)
                    a("v_mov_b32 v11, 1")
                    a("s_mov_b64 exec, 1")
                    a("buffer_store_dword v11, v10, s[56:59], 0 offen sc1"); vm.add("f")
                    a("s_mov_b64 exec, -1")
                if s == XRCV - 1 - env("PLX", 2) and not SPECX:
                    xflag_addr(a, 10, 1)
                    a("v_mov_b32 v12, 1")
                    a("buffer_load_dword v11, v10, s[56:59], 0 offen sc1"); vm.add("p")
            if s == UNI: a(f"s_mul_i32 s40, s53, {LB*16384 if kind == 'x' else (wd_row(8*(32 + LB)) - wd_row(8*32))*2048}")
            emit(a, vm, st_last(spread(body, k4_half(s+4, 1) if s < HH else k4_items(s+4, kind if s >= UNI else None), env("FR4", 100))) if dma else body, s+4)
            w = vm.cnt(s+2) if s + 2 in vm.q else 63
            if s == SIG_B - 1: w = min(w, vm.cnt("st0"))
            if w < 63: a(f"s_waitcnt vmcnt({w})")
            if helper and s == POLL_C: flag_poll_finish(a, 56, v=13, first=vm.cnt("q"))
            if helper and s in (POLL_A1, POLL_B, -1 if SPECX else XRCV - 1): flag_poll_finish(a, 56, v=10, first=vm.cnt("p"))
            a("s_barrier")
            if helper: stampc(a, "k4", s+1 - env("K4O", 0))
        if helper:
            sp4 = SPF4(a)
            for s in range(NP4 - 1 if STAMPC == "k4" else EB4 - 2 if SPECX else XRCV): pslice(s, 'w')
            stamp(a, 12)
            stamp_flush(a)
            a(f"s_branch {Ld}")
        else:
            for s in range(UNI): pslice(s, None)
            LW = a.label("LW4")
            a("s_cmp_eq_u32 s51, 2")
            a(f"s_cbranch_scc1 {LW}")
            q0 = list(vm.q)
            for kind in ('x', 'w'):
                vm.q = list(q0)
                if kind == 'w': a(f"{LW}:")
                for s in range(UNI, NP4 - 2): pslice(s, kind)
                if STAMP:
                    stamp(a, 12)
                    stamp_flush(a)
                a(f"s_branch {Ld}")


NXS = 32 // MX
class XPF:
    G = NXS // 2
    def __init__(self, a, off, mul, sd=68, v=23):
        self.a = a; self.off = off; self.mul = mul; self.sd = sd; self.v = v
    def setup(self):
        a = self.a; v = self.v
        per = 128 // NXS
        a(f"s_mul_i32 s43, s34, {self.mul}")
        srd(a, self.sd, 32, self.mul, add_lo=43, add_imm=self.off)
        a(f"v_and_b32 v{v}, {per-1}, v1")
        a(f"s_mul_i32 s43, s49, {per}")
        a(f"v_add_u32 v{v}, s43, v{v}")
        a(f"v_lshlrev_b32 v{v}, 7, v{v}")
        a(f"v_lshrrev_b32 v19, {per.bit_length()-1}, v1")
        a(f"v_lshl_add_u32 v{v}, v19, 14, v{v}")
    def issue(self, st):
        a = self.a
        a(f"s_mov_b32 s43, {st*16384}")
        a(f"buffer_load_dword v30, v{self.v}, s[{self.sd}:{self.sd+3}], s43 offen sc1")


class K3PF:
    def __init__(self, a, part): self.a = a; self.part = part
    def setup(self):
        a = self.a
        if self.part == 0: a("s_lshl_b32 s43, s35, 8")
        else:
            a("s_mul_i32 s43, s49, 192")
            a("s_and_b32 s43, s43, 0xffffff80")
            a("s_add_u32 s43, s43, 4096")
        a("s_sub_u32 s44, 7340032, s43")
        for d, b in ((88, 4), (92, 6)):
            a(f"s_add_u32 s{d}, s{b}, s43")
            a(f"s_addc_u32 s{d+1}, s{b+1}, 0")
            a(f"s_mov_b32 s{d+2}, s44")
            a(f"s_mov_b32 s{d+3}, 0x20000")
        per = 64 // MX
        a("v_lshrrev_b32 v31, 1, v1")
        a(f"v_min_u32 v31, {min(per, 32)-1}, v31")
        a(f"s_mul_i32 s43, s48, {per}")
        a("v_add_u32 v31, s43, v31")
        a("v_mul_u32_u24 v31, 7168, v31")
        a("v_and_b32 v19, 1, v1")
        a("v_lshl_add_u32 v31, v19, 7, v31")
    def issue(self, st):
        a = self.a
        a(f"s_mov_b32 s43, {st*64*7168}")
        a("buffer_load_dword v30, v31, s[88:91], s43 offen")
        a("buffer_load_dword v30, v31, s[92:95], s43 offen")


S3F = env("S3F", 1)
S3R = {2: (0, 7), 6: (0, 11), 9: (0, 15), 10: (1, 0), 14: (1, 4), 18: (1, 8), 22: (1, 12)}
class SPF3:
    def __init__(self, a): self.a = a
    def setup(self, part):
        a = self.a
        for d, b in ((88, 4), (92, 6)): srd(a, d, b, 7340032)
        a("s_lshr_b32 s43, s35, 3")
        a("v_and_b32 v19, 1, v1")
        a("v_mov_b32 v23, 0")
        if part == 0:
            a("s_lshl_b32 s44, s43, 3")
            a("s_add_u32 s44, s44, 1")
            a("v_lshl_add_u32 v23, v19, 2, v23")
            a("v_add_u32 v23, s44, v23")
            a("s_lshl_b32 s43, s43, 11")
            a("s_add_u32 s43, s43, 384")
            a("s_movk_i32 s44, 1024")
        elif NBM:
            a("s_lshl_b32 s44, s43, 1")
            a("s_add_u32 s44, s44, 6")
            a("v_add_u32 v23, s44, v23")
            a(f"s_mul_i32 s44, s43, {2 if NBM == 1 else 6}")
            a("s_add_u32 s44, s44, 1")
            a("v_mad_u32_u24 v23, v19, s44, v23")
            a("s_lshl_b32 s44, s43, 10")
            a("s_lshl_b32 s43, s43, 11")
            a(f"s_sub_u32 s43, {51*128}, s43")
        else:
            a("s_mul_i32 s44, s43, 10")
            a("s_add_u32 s44, s44, 2")
            a("v_add_u32 v23, s44, v23")
            a("s_lshl_b32 s44, s43, 2")
            a("s_sub_u32 s44, 5, s44")
            a("v_mad_u32_u24 v23, v19, s44, v23")
            a("s_lshl_b32 s44, s43, 10")
            a("s_xor_b32 s44, s44, 1024")
            a("s_lshl_b32 s43, s43, 11")
            a(f"s_add_u32 s43, s43, {35*128}")
        a("s_lshr_b32 s45, s2, 3")
        a("s_mul_i32 s45, s45, 14336")
        a("s_add_u32 s43, s43, s45")
        a("v_mul_lo_u32 v31, v19, s44")
        if S3F and env("S3O", 0):
            if part == 1:
                a("s_lshr_b32 s44, s35, 3")
                a("v_xor_b32 v19, s44, v19")
                a("v_lshlrev_b32 v19, 8, v19")
                a("v_subrev_u32 v19, 128, v19")
            else: a("v_mov_b32 v19, -128")
            a("v_bfe_i32 v20, v1, 4, 1")
            a("v_and_b32 v19, v19, v20")
            a("v_add_u32 v31, v31, v19")
        a("v_bfe_u32 v19, v1, 1, 1")
        a("v_mul_u32_u24 v19, 7168, v19")
        a("v_add3_u32 v31, v31, v19, s43")
    def issue(self, st):
        a = self.a
        a(f"v_bfe_u32 v19, v1, 2, {2 if S3F else 3}")
        a(f"v_add_u32 v19, {st}, v19")
        a(f"v_{'xor_b32' if XOR else 'add_u32'} v19, v19, v23")
        a("v_and_b32 v19, 15, v19")
        a(f"v_mul_u32_u24 v19, {64*7168}, v19")
        a("v_add_u32 v19, v19, v31")
        a("buffer_load_dword v30, v19, s[88:91], 0 offen")
        a("buffer_load_dword v30, v19, s[92:95], 0 offen")


class SPF4:
    def __init__(self, a): self.a = a
    def setup(self):
        a = self.a
        srd(a, 80, 60, 7340032)
        a("v_and_b32 v29, 31, v1")
        a("v_lshlrev_b32 v29, 11, v29")
        a("s_and_b32 s43, s35, 8")
        a("s_or_b32 s43, s43, 3")
        a("s_lshl_b32 s43, s43, 7")
        a("v_add_u32 v29, s43, v29")
    def issue(self, G):
        a = self.a
        a("s_lshr_b32 s44, s2, 3")
        if G == 3: a("s_and_b32 s44, s44, 15")
        a(f"s_lshl_b32 s44, s44, {17 if G < 2 else 16}")
        a(f"s_add_u32 s43, s44, {[0, 32, 2048, 3072][G]*2048}")
        a("buffer_load_dword v30, v29, s[80:83], s43 offen")
```

```python
import os, struct
from common import *

NS = 3
XB_ = 18432
STG1 = XB_ + 3*8192
RST = NS*STG1
CSUM = RST + 1152
LST = CSUM
LDS_K1 = CSUM + 768
QKV = 0
QP = 400

def fh(x): return "0x%08x" % struct.unpack("<I", struct.pack("<f", x))[0]

VGPR_K1 = 240
def phase_k1(a):
    strip = os.environ.get("K1_STRIP", "")
    nst = 16
    a(f"s_load_dwordx4 s[4:7], s[0:1], {KA_X}")
    a(f"s_load_dwordx2 s[32:33], s[0:1], {KA_WS}")
    a(f"s_load_dwordx2 s[80:81], s[0:1], {KA_WG}")
    mapping(a)
    a("v_lshrrev_b32 v12, 6, v0")
    a("v_and_b32 v1, 63, v0")
    a("v_readfirstlane_b32 s36, v12")
    a("s_nop 3")
    stamp_init(a)
    stamp(a, 0)
    a("s_lshl_b32 s44, s34, 18")
    a("s_lshl_b32 s45, s35, 14")
    a("s_add_u32 s45, s45, s44")
    a("s_lshl_b32 s50, s34, 7")
    a("s_sub_u32 s50, s50, 16")
    a("s_and_b32 s47, s36, 3")
    a("s_lshl_b32 s43, s34, 7")
    a("s_lshl_b32 s44, s35, 3")
    a("s_add_u32 s43, s43, s44")
    a("s_mov_b32 s63, s43")
    a("s_lshl_b32 s44, s47, 1")
    a("s_add_u32 s51, s43, s44")
    a("v_lshlrev_b32 v10, 4, v1")
    a("v_lshrrev_b32 v14, 3, v1")
    a("v_and_b32 v15, 7, v1")
    a("v_and_b32 v16, 2, v14")
    a("v_xor_b32 v16, v15, v16")
    a("v_lshlrev_b32 v16, 4, v16")
    a("v_mul_u32_u24 v17, 6144, v14")
    a("s_lshl_b32 s43, s47, 11")
    a("v_add3_u32 v2, v17, v16, s43")
    a("v_xor_b32 v3, 64, v2")
    a("v_lshrrev_b32 v16, 1, v14")
    a("v_xor_b32 v16, v15, v16")
    a("v_lshlrev_b32 v16, 4, v16")
    a("s_lshl_b32 s43, s47, 3")
    a("s_add_u32 s43, s43, s50")
    a("v_add_u32 v17, s43, v14")
    a("s_and_b32 s44, s47, 1")
    a("s_lshl_b32 s44, s44, 6")
    for i in range(6):
        a(f"v_add_u32 v18, {24*i}, v17")
        a("v_max_i32 v18, 0, v18")
        a("v_lshl_add_u32 v18, v18, 11, v16")
        a("v_xor_b32 v18, s44, v18")
        if i & 1: a(f"v_xor_b32 v{4+i}, 64, v18")
        else: a(f"v_mov_b32 v{4+i}, v18")
    a("s_lshl_b32 s39, s47, 10")
    a("s_lshl_b32 s40, s47, 13")
    a(f"s_add_u32 s40, s40, {XB_}")
    KX = int(os.environ.get("K1_KX", "0"))
    if KX:
        a(f"s_lshl_b32 s52, s48, {1 if KX == 7 else 0}")
        a("s_xor_b32 s52, s52, s49")
        a(f"s_and_b32 s52, s52, {KX}")
        a("s_mov_b32 s54, 0")
        a("s_lshl_b32 s37, s52, 7")
        a(f"s_mul_i32 s38, s52, {64*6144}")
    else:
        a("s_mov_b32 s37, 0")
        a("s_mov_b32 s38, 0")
    a("s_bfm_b64 s[60:61], 56, 8")
    a("s_cmp_eq_u32 s47, 0")
    a("s_cselect_b64 s[60:61], s[60:61], -1")
    a("s_mov_b32 s53, 0x3f803f80")
    a("v_and_b32 v12, 15, v1")
    a("v_lshrrev_b32 v13, 4, v1")
    a("s_lshl_b32 s43, s35, 7")
    a("s_waitcnt lgkmcnt(0)")
    srd(a, 8, 4, 2048*2048)
    srd(a, 12, 6, 1023*6144 + 4096 + 128, add_lo=43)
    srd(a, 16, 32, 16384, add_lo=45, add_imm=WS_O)
    srd(a, 20, 32, 2048*8, add_imm=WS_ST1)
    Lcons = a.label("Lcons"); Lpf = a.label("Lpf"); Latt = a.label("Latt"); Latt1 = a.label("Latt")
    a("s_cmp_lt_u32 s36, 4")
    a(f"s_cbranch_scc1 {Lcons}")
    a("s_cmp_eq_u32 s36, 7")
    a(f"s_cbranch_scc1 {Lpf}")
    a(";@@CONS")
    a(f"{Lcons}:")

    ASP = int(os.environ.get("K1_ASP", "1"))
    OFL = int(os.environ.get("K1_OFL", "1"))
    SP2 = int(os.environ.get("K1_SP2", "3"))
    def att_setup():
        a("s_and_b32 s43, s36, 1")
        a("s_lshr_b32 s44, s36, 1")
        a("s_and_b32 s44, s44, 1")
        a("s_lshr_b32 s45, s36, 2")
        if ASP: a("s_xor_b32 s45, s45, 1")
        a("v_lshlrev_b32 v14, 2, v13")
        a("v_sub_u32 v14, v12, v14")
        for r in range(4):
            a(f"v_subrev_u32 v15, {r}, v14")
            a(f"v_cmp_ge_u32 s[{52+2*r}:{53+2*r}], 7, v15")
            a(f"v_add_u32 v15, 16, v15")
            a(f"v_cmp_ge_u32 s[{84+2*r}:{85+2*r}], 7, v15")
        a("s_lshl_b32 s46, s45, 6")
        a("s_add_u32 s46, s46, s44")
        a("s_add_u32 s46, s46, 16")
        a("v_lshl_add_u32 v14, v12, 1, s46")
        a("s_lshl_b32 s47, s43, 6")
        a("v_lshl_add_u32 v15, v13, 4, s47")
        a(f"v_mul_u32_u24 v20, {QP}, v14")
        a("v_add_u32 v20, v20, v15")
        a("v_subrev_u32 v16, 32, v14")
        a("v_max_i32 v16, 0, v16")
        a(f"v_mul_u32_u24 v21, {QP}, v16")
        a("v_add_u32 v21, v21, v15")
        a("v_lshrrev_b32 v16, 2, v12")
        a("v_lshl_add_u32 v16, v13, 2, v16")
        a("v_lshl_add_u32 v16, v16, 1, s46")
        a("v_and_b32 v17, 3, v1")
        a("v_lshl_add_u32 v17, v17, 3, s47")
        a(f"v_mul_u32_u24 v22, {QP}, v16")
        a("v_add_u32 v22, v22, v17")
        a("v_subrev_u32 v16, 32, v16")
        a("v_max_i32 v16, 0, v16")
        a(f"v_mul_u32_u24 v23, {QP}, v16")
        a("v_add_u32 v23, v23, v17")
        a("s_lshl_b32 s60, s43, 13")
        a("s_lshl_b32 s61, s45, 10")
        a("s_add_u32 s60, s60, s61")
        a("s_lshl_b32 s61, s44, 8")
        a("s_add_u32 s60, s60, s61")
        a("v_lshlrev_b32 v27, 11, v13")
        a("v_lshl_add_u32 v27, v12, 4, v27")
        a("v_add_u32 v27, s60, v27")
        a("v_mov_b32 v28, 0xff800000")
        CS = (32 ** -0.5) * 1.4426950408889634
        a(f"s_mov_b32 s61, {fh(CS)}")
        a("s_nop 2")
        a("s_or_b32 s62, s34, s45")
        a("s_cmp_lg_u32 s62, 0")
        for r in range(4): a(f"s_cselect_b64 s[{64+2*r}:{65+2*r}], s[{84+2*r}:{85+2*r}], 0")

    if int(os.environ.get("K1_SPF", "4")) & 4:
        Lsp = a.label("Lsp")
        a("s_lshr_b32 s44, s2, 3")
        if OFL:
            a("s_lshr_b32 s43, s36, 1")
            a("s_lshl_b32 s43, s43, 2")
            a("s_add_u32 s43, s43, s44")
            a("s_lshr_b32 s46, s43, 2")
            a("s_cmp_eq_u32 s46, 3")
            a("s_cselect_b32 s46, 1, 0")
            a("s_lshr_b32 s44, s36, 1")
            a("s_cmp_lg_u32 s46, s44")
            a(f"s_cbranch_scc1 {Lsp}")
            a("s_mov_b32 s44, s43")
        else:
            a("s_cmp_ge_u32 s36, 2")
            a(f"s_cbranch_scc1 {Lsp}")
        if SP2 >= 0:
            a("s_cmp_ge_u32 s2, 128")
            a(f"s_cbranch_scc1 {Lsp}")
        srd(a, 84, 6, 6291456)
        a("s_and_b32 s43, s35, 8")
        a("s_or_b32 s43, s43, 3")
        a("s_lshl_b32 s43, s43, 7")
        a("s_mul_i32 s44, s44, %d" % (32*6144))
        a("s_add_u32 s43, s43, s44")
        a("s_and_b32 s44, s36, 1")
        a("s_lshl_b32 s44, s44, 6")
        a("v_add_u32 v15, s44, v1")
        a("v_min_u32 v15, 95, v15")
        a("v_mul_u32_u24 v16, 21846, v15")
        a("v_lshrrev_b32 v16, 16, v16")
        a("v_mul_u32_u24 v17, 3, v16")
        a("v_sub_u32 v15, v15, v17")
        a("v_mul_u32_u24 v16, 6144, v16")
        a("v_lshl_add_u32 v15, v15, 11, v16")
        a("buffer_load_dword v31, v15, s[84:87], s43 offen")
        a(f"{Lsp}:")
    a("v_lshrrev_b32 v16, 1, v12")
    a("v_xor_b32 v15, v13, v16")
    a("v_lshlrev_b32 v15, 4, v15")
    a("v_lshl_add_u32 v2, v12, 7, v15")
    a("v_xor_b32 v3, 64, v2")
    a(f"v_add_u32 v4, {2*STG1}, v2")
    a(f"v_add_u32 v5, {2*STG1}, v3")
    a("v_lshrrev_b32 v15, 2, v12")
    a("v_and_b32 v16, 3, v1")
    a("v_lshl_add_u32 v19, v13, 3, v15")
    a("v_lshlrev_b32 v19, 7, v19")
    a("v_and_b32 v15, 2, v15")
    a("v_and_b32 v17, 1, v13")
    a("v_lshl_add_u32 v15, v17, 2, v15")
    a("v_lshrrev_b32 v17, 1, v16")
    a("s_lshl_b32 s43, s36, 1")
    a("v_add_u32 v17, s43, v17")
    a("v_xor_b32 v15, v15, v17")
    a("v_lshl_add_u32 v19, v15, 4, v19")
    a("v_and_b32 v16, 1, v16")
    a("v_lshl_add_u32 v19, v16, 3, v19")
    for sl in range(3):
        a(f"v_add_u32 v{6+sl}, {XB_ + sl*STG1}, v19")
    ACC = 128
    def accreg(seg, mt):
        return ACC + 36*seg + 4*mt
    for i in range(108): a(f"v_mov_b32 v{ACC+i}, 0")
    SET = [32, 80]
    def reads(s, kk, base):
        sl = s % NS
        xb = (2 + kk) if sl < 2 else (4 + kk)
        xo = (sl % 2)*STG1 if sl < 2 else 0
        def xr(mt): return f"ds_read_b128 v[{base+4*mt}:{base+4*mt+3}], v{xb} offset:{xo + mt*2048}"
        def wr(sg, h): return f"ds_read_b64_tr_b16 v[{base+36+4*sg+2*h}:{base+36+4*sg+2*h+1}], v{6+sl} offset:{sg*8192 + kk*4096 + h*512}"
        return [xr(0), wr(1,0), wr(1,1), wr(2,0), wr(2,1), wr(0,0), wr(0,1)] + [xr(m) for m in range(1, 9)]
    def mfmas(base):
        r = []
        for mt in range(9):
            for sg in (1, 2, 0):
                acc = accreg(sg, mt)
                r.append(f"v_mfma_f32_16x16x32_bf16 v[{acc}:{acc+3}], v[{base+36+4*sg}:{base+36+4*sg+3}], v[{base+4*mt}:{base+4*mt+3}], v[{acc}:{acc+3}]")
        return r
    def emit(seq):
        for i in seq:
            if "m" in strip and i.startswith("v_mfma"): continue
            if "r" in strip and i.startswith("ds_read"): continue
            a(i)
    if KX: a("s_mov_b32 s29, s52")
    att_setup()
    a("s_lshl_b32 s43, s36, 5")
    a("s_add_u32 s43, s43, 16")
    a("v_lshl_add_u32 v10, v12, 1, s43")
    a("v_lshlrev_b32 v10, 7, v10")
    a("v_and_b32 v16, 1, v13")
    a("v_lshlrev_b32 v16, 1, v16")
    a("v_lshrrev_b32 v17, 1, v13")
    a("v_add_u32 v16, v16, v17")
    a("v_and_b32 v17, 7, v12")
    a("v_xor_b32 v16, v16, v17")
    a("v_lshl_add_u32 v10, v16, 4, v10")
    a("s_xor_b32 s42, s35, s29" if KX else "s_mov_b32 s42, s35")
    a(f"v_lshlrev_b32 v9, 3, v12")
    a(f"v_add_u32 v9, {RST}, v9")
    a(f"v_mul_u32_u24 v14, {QP}, v12")
    a("v_lshl_add_u32 v14, v13, 3, v14")
    a("s_lshl_b32 s43, s36, 5")
    a("v_add_u32 v14, s43, v14")
    a("s_barrier")
    stamp(a, 1)
    for i in reads(0, 0, SET[0]): a(i)
    def ln_group(mt, sg, pk):
        acc = accreg(sg, mt); r_ = []
        if pk:
            for r in (0, 2):
                r_.append(f"v_pk_fma_f32 v[{acc+r}:{acc+r+1}], v[{32+2*mt}:{33+2*mt}], v[{52+4*sg+r}:{53+4*sg+r}], v[{acc+r}:{acc+r+1}] op_sel_hi:[0,1,1] neg_lo:[1,0,0] neg_hi:[1,0,0]")
            for r in (0, 2):
                r_.append(f"v_pk_mul_f32 v[{acc+r}:{acc+r+1}], v[{32+2*mt}:{33+2*mt}], v[{acc+r}:{acc+r+1}] op_sel:[1,0] op_sel_hi:[1,1]")
        else:
            for r in range(4): r_.append(f"v_fma_f32 v{acc+r}, -v{32+2*mt}, v{52+4*sg+r}, v{acc+r}")
            for r in range(4): r_.append(f"v_mul_f32 v{acc+r}, v{33+2*mt}, v{acc+r}")
        r_.append(f"v_cvt_pk_bf16_f32 v{acc}, v{acc}, v{acc+1}")
        r_.append(f"v_cvt_pk_bf16_f32 v{acc+1}, v{acc+2}, v{acc+3}")
        r_.append(f"ds_write_b64 v14, v[{acc}:{acc+1}] offset:{QKV + mt*16*QP + sg*128}")
        return r_
    GROUPS = [(mt, sg) for mt in range(9) for sg in ((1, 2) if mt == 0 else (0, 1, 2))]
    NEARLY = int(os.environ.get("K1_LNE", "3"))
    bc = [f"v_mov_b32_dpp v{52+4*sg+r}, v{accreg(sg,0)+r} row_newbcast:0 row_mask:0xf bank_mask:0xf" for sg in range(3) for r in range(4)]
    def xres(s):
        L = a.label("Lxr"); R = a.label("Lxb")
        a("s_sub_u32 s42, s42, 1")
        a(f"s_cbranch_scc1 {L}")
        a(f"{R}:")
        COLD.extend([f"{L}:", f"v_add_u32 v15, {(s % NS)*STG1}, v10", "v_xor_b32 v16, 64, v15"] +
                    [f"ds_read_b128 v[{240+(tl*2+kb)*4}:{243+(tl*2+kb)*4}], v{15+kb} offset:{tl*128}" for tl in range(2) for kb in range(2)] + [f"s_branch {R}"])
    def cstage(s, last):
        a("s_waitcnt lgkmcnt(0)")
        seq = interleave(mfmas(SET[0]), reads(s, 1, SET[1]), 0, 1)
        emit(seq[:-4])
        xres(s)
        emit(seq[-4:])
        a("s_waitcnt lgkmcnt(0)")
        a("s_barrier")
        if not last:
            emit(interleave(mfmas(SET[1]), reads(s+1, 0, SET[0]), 0, 1))
            return
        m = mfmas(SET[1])
        emit(interleave(m[:9], [f"ds_read_b64 v[{32+2*mt}:{33+2*mt}], v9 offset:{mt*128}" for mt in range(9)]))
        fill = bc + ["s_waitcnt lgkmcnt(0)"] + sum((ln_group(mt, sg, False) for mt, sg in GROUPS[:NEARLY]), [])
        for i, x in enumerate(m[9:]):
            a(x)
            for y in fill[2*i:2*i+2]: a(y)
        for y in fill[2*len(m[9:]):]: a(y)
    nl = (nst-1)//NS
    a(f"s_mov_b32 s41, {nl}")
    Ll = a.label("Lcl")
    a(f"{Ll}:")
    for s in range(NS): cstage(s, False)
    a("s_sub_u32 s41, s41, 1")
    a("s_cmp_lg_u32 s41, 0")
    a(f"s_cbranch_scc1 {Ll}")
    for s in range(nl*NS, nst): cstage(s, s == nst-1)
    stamp(a, 2)
    for mt, sg in GROUPS[NEARLY:]:
        if ASP and (mt, sg) == (5, 0):
            a("s_waitcnt lgkmcnt(0)")
            a("s_barrier")
        for i in ln_group(mt, sg, True): a(i)
    a("s_waitcnt lgkmcnt(0)")
    a(f"s_branch {Latt}")

    a(";@@PROD")
    def rows_load(srow, dst=96, add=0):
        a(f"s_lshl_b32 s43, s{srow}, 11")
        if add: a(f"s_add_u32 s43, s43, {add*2048}")
        for q in range(4):
            a(f"buffer_load_dwordx4 v[{dst+4*q}:{dst+4*q+3}], v10, s[8:11], s43 offen offset:{q*1024}")
    def rows_stats_l(srcb=96):
        o = []
        R = [116, 118, 120, 122]
        for r in range(2):
            sa, qa = 116+4*r, 118+4*r
            for i in range(8):
                src = srcb + 8*r + i
                t = 124 + 2*(i & 1)
                o.append(f"v_lshlrev_b32 v{t if i else sa}, 16, v{src}")
                o.append(f"v_and_b32 v{t+1 if i else sa+1}, 0xffff0000, v{src}")
                if i == 0:
                    o.append(f"v_mul_f32 v{qa}, v{sa}, v{sa}"); o.append(f"v_mul_f32 v{qa+1}, v{sa+1}, v{sa+1}")
                else:
                    o.append(f"v_add_f32 v{sa}, v{sa}, v{t}"); o.append(f"v_add_f32 v{sa+1}, v{sa+1}, v{t+1}")
                    o.append(f"v_fmac_f32 v{qa}, v{t}, v{t}"); o.append(f"v_fmac_f32 v{qa+1}, v{t+1}, v{t+1}")
        for x in R: o.append(f"v_add_f32 v{x}, v{x}, v{x+1}")
        for sh in (8, 4, 2, 1):
            for x in R: o.append(f"v_add_f32_dpp v{x}, v{x}, v{x} row_ror:{sh} row_mask:0xf bank_mask:0xf")
        for sw in ("16", "32"):
            for x in R: o.append(f"v_mov_b32 v{x+1}, v{x}")
            o.append("s_nop 0")
            for x in R: o.append(f"v_permlane{sw}_swap_b32 v{x}, v{x+1}")
            for x in R: o.append(f"v_add_f32 v{x}, v{x}, v{x+1}")
        for r in range(2):
            sv, qv, d = 116+4*r, 118+4*r, 112+2*r
            o.append(f"v_mul_f32 v{d}, 0x3a800000, v{sv}")
            o.append(f"v_mul_f32 v{d+1}, 0x3a800000, v{qv}")
            o.append(f"v_fma_f32 v{d+1}, -v{d}, v{d}, v{d+1}")
            o.append(f"v_max_f32 v{d+1}, 0, v{d+1}")
            o.append(f"v_add_f32 v{d+1}, 0x3727c5ac, v{d+1}")
            o.append(f"v_rsq_f32 v{d+1}, v{d+1}")
        o.append("s_nop 0")
        return o
    def rows_stats(part=None):
        l = rows_stats_l()
        for i in (l if part is None else l[len(l)*part//3:len(l)*(part+1)//3]): a(i)
    def rows_local():
        a("s_lshl_b32 s43, s47, 4")
        a(f"s_add_u32 s43, s43, {LST}")
        a("v_mov_b32 v11, s43")
        a("ds_write_b128 v11, v[112:115]")
        a("s_waitcnt lgkmcnt(0)")
    HYB = os.environ.get("K1_PF", "mall1") == "hyb"
    def wpre(s):
        if not HYB or s > 4: return
        if s == 0:
            a("s_mul_i32 s43, s2, 10752")
            a("s_mul_i32 s44, s47, 2688")
            a("s_add_u32 s43, s43, s44")
            a(f"s_add_u32 s43, s43, {576*6144}")
            a("s_add_u32 s82, s6, s43")
            a("s_addc_u32 s83, s7, 0")
        lo = [0, 10, 18, 26, 34, 42]
        for q in range(lo[s], lo[s+1]): a(f"s_load_dword s{64 + q % 16}, s[82:83], {64*q}")
    def spre_setup():
        if not NPS: return
        Lj = a.label("Lsj")
        cs_sbase(a, Lj, 80, 47)
        a(f"{Lj}:")
    def spre(n=2): cs_spre(a, n)
    def dma(slot, lo=0, hi=14):
        xs, ws = [], []
        for i in range(6):
            g = [f"s_add_u32 m0, s39, {slot*STG1 + i*3072}", "s_mov_b64 exec, s[60:61]" if i == 0 else "s_nop 0",
                 f"buffer_load_dwordx4 v{4+i}, s[8:11], s37 offen lds"]
            if i == 0: g.append("s_mov_b64 exec, -1")
            xs.append(g)
        for j in range(8):
            ws.append([f"s_add_u32 m0, s40, {slot*STG1 + j*1024}", f"s_add_u32 s43, s38, {8*j*6144}",
                       f"buffer_load_dwordx4 v{2+(j&1)}, s[12:15], s43 offen lds"])
        gs = interleave(ws, xs) if int(os.environ.get("K1_ILV", "0")) else xs + ws
        for g in gs[lo:hi]:
            for i in g: a(i)
        if hi == 14 and KX:
            a("s_add_u32 s54, s54, 1")
            a("s_xor_b32 s38, s54, s52")
            a("s_lshl_b32 s37, s38, 7")
            a(f"s_mul_i32 s38, s38, {64*6144}")
        elif hi == 14:
            a("s_add_u32 s37, s37, 128")
            a(f"s_add_u32 s38, s38, {64*6144}")
    stamp(a, 1)
    E0 = int(os.environ.get("K1_E0", "14"))
    dma(0); dma(1, 0, E0)
    stamp(a, 2)
    a(f"s_waitcnt vmcnt({E0})")
    a("s_barrier")
    if E0 < 14: dma(1, E0, 14)
    dma(2)
    RW = int(os.environ.get("K1_RW", "0"))
    SPEC2 = int(os.environ.get("SPEC2", "1"))
    PO2 = int(os.environ.get("PO2", "3")) if SPEC2 else -9
    PON = int(os.environ.get("PON", "6"))
    POI = int(os.environ.get("POI", "6")) if int(os.environ.get("SPEC3", "1")) else -9
    def pstage(s, do_dma, vm, extra=None):
        if do_dma: dma((s+2) % NS)
        if s == RW: rows_load(51)
        if s in (RW+2, RW+3, RW+4): rows_stats(s - RW - 2)
        if s == RW+4: rows_local()
        if s == 0: spre_setup()
        if s == min(x for x in (POI, PO2) if x >= 0) if max(POI, PO2) >= 0 else False:
            for i in range(4): a(f"v_mov_b32 v{128+i}, -1")
        if s == POI: srd(a, 24, 16, 16384, add_imm=WS_H - WS_O)
        if s in (POI, PO2): a("s_mul_i32 s28, s47, 5120")
        npo = lambda t: 6//PON if POI <= t < POI + PON else 2 if PO2 <= t < PO2 + 3 else 0
        for q in range(npo(s)):
            a(f"buffer_store_dwordx4 v[128:131], v10, s[{24 if s >= POI >= 0 else 16}:{27 if s >= POI >= 0 else 19}], s28 offen sc1")
            a("s_add_u32 s28, s28, 1024")
        if vm is not None: vm += npo(s) + npo(s-1)
        wpre(s)
        if max(SPS, RW+4) <= s <= SPE: spre()
        if vm is not None: a(f"s_waitcnt vmcnt({vm + (4 if s == RW else 0)})")
        a("s_barrier")
    for s in range(14): pstage(s, s > 0, 14)
    pstage(14, False, 0)
    pstage(15, False, None)
    Lw4 = a.label("Lx"); Lw5 = a.label("Lx"); Lwe = a.label("Lx")
    a("s_cmp_eq_u32 s47, 0")
    a(f"s_cbranch_scc1 {Lw4}")
    a("s_cmp_eq_u32 s47, 1")
    a(f"s_cbranch_scc1 {Lw5}")
    warm_jump(a, ("Lp", 2))
    a(f"s_branch {Lwe}")
    a(f"{Lw5}:")
    warm_jump(a, ("Lp", 1))
    a(f"s_branch {Lwe}")
    a(f"{Lw4}:")
    warm_jump(a, ("LG1", 0))
    a(f"{Lwe}:")
    a("s_waitcnt lgkmcnt(0)")
    att_setup()
    a(f"s_branch {Latt1}")

    a(";@@W7")
    a(f"{Lpf}:")
    PFM = os.environ.get("K1_PF", "mall1")
    PF = PFM == "l2"
    a(f"s_load_dwordx2 s[26:27], s[0:1], {KA_DBG}")
    Lz = a.label("Lz")
    a("s_or_b32 s43, s34, s35")
    a("s_cmp_lg_u32 s43, 0")
    a(f"s_cbranch_scc1 {Lz}")
    flag_srd(a, 84)
    a("v_lshlrev_b32 v14, 7, v1")
    a("v_mov_b32 v36, 0")
    a("v_mov_b32 v37, 0")
    for q in range(5):
        a(f"s_mov_b32 s43, {q*8192}")
        a("buffer_store_dwordx2 v[36:37], v14, s[84:87], s43 offen sc1")
    a(f"{Lz}:")
    if RW == 0: rows_load(51)
    a("v_min_u32 v14, 23, v1")
    a("v_lshrrev_b32 v15, 3, v14")
    a(f"v_mul_u32_u24 v15, {STG1}, v15")
    a("v_and_b32 v14, 7, v14")
    a("v_lshl_add_u32 v15, v14, 4, v15")
    for i in range(4): a(f"v_mov_b32 v{32+i}, 0x3f803f80")
    a("ds_write_b128 v15, v[32:35]")
    PER = 64 // MX
    NPI = (3*PER + 63) // 64
    for q in range(NPI):
        a(f"v_add_u32 v14, {64*q}, v1")
        a(f"v_min_u32 v14, {3*PER-1}, v14")
        a("v_mul_u32_u24 v15, 21846, v14")
        a("v_lshrrev_b32 v15, 16, v15")
        a("v_mul_u32_u24 v16, 3, v15")
        a("v_sub_u32 v16, v14, v16")
        a(f"s_mul_i32 s43, s48, {PER}")
        a("v_add_u32 v15, s43, v15")
        a("v_mul_u32_u24 v15, 6144, v15")
        a(f"v_lshl_add_u32 v{2+q}, v16, 11, v15")
    vm = []
    def wait_for(tag):
        idx = max(i for i, t in enumerate(vm) if t == tag)
        a(f"s_waitcnt vmcnt({len(vm) - 1 - idx})")
    def l2pf(st):
        if not PF or st >= nst: return
        a(f"s_mov_b32 s43, {st*64*6144}")
        for q in range(NPI):
            a(f"buffer_load_dword v31, v{2+q}, s[12:15], s43 offen"); vm.append("pf")
    a("s_waitcnt lgkmcnt(0)")
    srd(a, 56, 26, 256)
    a("v_lshlrev_b32 v14, 7, v1")
    vm.append("rows")
    def mallpf():
        srd(a, 84, 6, 6291456)
        if OFL:
            a("s_cmp_lt_u32 s2, 32")
            a("s_cselect_b32 s43, 96, 0")
            a("s_add_u32 s43, s43, s2")
            a("s_mul_i32 s43, s43, 24576")
        else: a("s_mul_i32 s43, s2, 24576")
        for q in range(3):
            a(f"buffer_load_dword v31, v14, s[84:87], s43 offen"); vm.append("pf")
            if q < 2: a("s_add_u32 s43, s43, 8192")
    def slowpf(which=None):
        srd(a, 84, 6, 6291456)
        a("s_lshr_b32 s44, s2, 3")
        if (SPF if which is None else which) & 1:
            a("s_and_b32 s43, s35, 8")
            a("s_or_b32 s43, s43, 3")
            a("s_lshl_b32 s43, s43, 7")
            a("s_mul_i32 s45, s44, %d" % (32*6144))
            a("s_add_u32 s43, s43, s45")
            for q in range(2):
                a(f"v_add_u32 v15, {64*q}, v1")
                a("v_min_u32 v15, 95, v15")
                a("v_mul_u32_u24 v16, 21846, v15")
                a("v_lshrrev_b32 v16, 16, v16")
                a("v_mul_u32_u24 v17, 3, v16")
                a("v_sub_u32 v15, v15, v17")
                a("v_mul_u32_u24 v16, 6144, v16")
                a("v_lshl_add_u32 v15, v15, 11, v16")
                a("buffer_load_dword v31, v15, s[84:87], s43 offen"); vm.append("pf")
        if (SPF if which is None else which) & 2:
            a("s_xor_b32 s43, s63, 64")
            a("s_lshl_b32 s43, s43, 11")
            a("buffer_load_dword v31, v14, s[8:11], s43 offen"); vm.append("pf")
            a("s_add_u32 s43, s43, 8192")
            a("buffer_load_dword v31, v14, s[8:11], s43 offen"); vm.append("pf")
    SPF = int(os.environ.get("K1_SPF", "4"))
    SPAT = int(os.environ.get("K1_SPAT", "0"))
    if PFM == "mall0": mallpf()
    if SPAT < 0: slowpf()
    stampc(a, "k1", 0)
    a("s_barrier")
    def mallpf2():
        srd(a, 84, 6, 6291456)
        a("s_mul_i32 s43, s2, 9216")
        a(f"s_add_u32 s43, s43, {192*6144}")
        a("buffer_load_dword v31, v14, s[84:87], s43 offen"); vm.append("pf")
        a("v_min_u32 v15, 7, v1")
        a("v_lshlrev_b32 v15, 7, v15")
        a("s_add_u32 s43, s43, 8192")
        a("buffer_load_dword v31, v15, s[84:87], s43 offen"); vm.append("pf")
    if PFM == "hyb": mallpf2()
    MH = int(os.environ.get("K1_MH", "1"))
    MST = int(os.environ.get("K1_MST", "1"))
    if PFM == "mall1" and not MST: mallpf()
    stampc(a, "k1", 1)
    GD = int(os.environ.get("K1_GD", "2"))
    GS = int(os.environ.get("K1_GS", "10" if RW < 2 else "11"))
    SS = int(os.environ.get("K1_SS", str(max(7 + RW, PO2 + 5))))
    assert PO2 + 2 <= SS - 3 and (POI < 0 or PO2 + 3 <= POI)
    PFN = int(os.environ.get("K1_PFN", "4"))
    CS0 = int(os.environ.get("K1_CS0", "14")); WOP = int(os.environ.get("K1_WOP", "13")); WOM = os.environ.get("K1_WOM", "mall")
    Lgd = a.label("Lgd")
    nxt = [3]
    for s in range(nst):
        if PFM == "mall1" and MST and s in (0, MST):
            Lm = a.label("Lm")
            a("s_cmp_ge_u32 s2, 128")
            a(f"s_cbranch_scc{1 if s == 0 else 0} {Lm}")
            if KX == 7 and MH and s == 0: a(f"s_branch {Lm}")
            if OFL and s == 0:
                a("s_lshr_b32 s44, s2, 4")
                a("s_cmp_eq_u32 s44, 2")
                a(f"s_cbranch_scc1 {Lm}")
                a("s_lshr_b32 s44, s2, 5")
                a("s_cmp_eq_u32 s44, 3")
                a(f"s_cbranch_scc1 {Lm}")
            n0 = len(vm); mallpf(); del vm[n0:]
            a(f"{Lm}:")
        if s in ICW:
            code_warm(a, 88); vm.append("pf")
        if s == SP2 and SPF & 4:
            Lm = a.label("Lm")
            a("s_cmp_lt_u32 s2, 128")
            a(f"s_cbranch_scc1 {Lm}")
            n0 = len(vm); slowpf(1); del vm[n0:]
            a(f"{Lm}:")
        if s == SPAT: slowpf()
        if s == 0: spre_setup()
        if s == RW and RW > 0:
            rows_load(51); vm.extend(["rows"]*4)
        if s == 2:
            Lz = a.label("Lz")
            a("s_or_b32 s43, s34, s35")
            a("s_cmp_lg_u32 s43, 0")
            a(f"s_cbranch_scc1 {Lz}")
            a("s_waitcnt vmcnt(0)")
            a("v_mov_b32 v5, 1")
            a("v_mov_b32 v6, 0")
            a("s_mov_b64 exec, 1")
            a("buffer_store_dword v5, v6, s[56:59], 0 offen sc1")
            a("s_mov_b64 exec, -1")
            a(f"{Lz}:")
        if s == RW + 2:
            wait_for("rows")
            rows_stats(0)
        if s == RW + 3: rows_stats(1)
        if s == RW + 4:
            rows_stats(2); rows_local()
        if s == RW + 5:
            a("v_lshlrev_b32 v5, 4, v1")
            a("v_and_b32 v5, 63, v5")
            a(f"v_add_u32 v6, {LST}, v5")
            a("ds_read_b128 v[112:115], v6")
            a("s_lshl_b32 s43, s63, 3")
            a("v_add_u32 v5, s43, v5")
            a("s_waitcnt lgkmcnt(0)")
            a("s_mov_b64 exec, 15")
            a(f"buffer_store_dwordx4 v[112:115], v5, s[20:23], 0 offen sc1"); vm.append("store")
            a("s_mov_b64 exec, -1")
        if s < SS - 2:
            for q in range(PFN):
                l2pf(nxt[0]); nxt[0] += 1
        if s == int(os.environ.get("K1_X11", "99")):
            a(f"s_andn2_b32 s43, s34, {MX-1}")
            a("s_lshl_b32 s43, s43, 7")
            a("s_lshr_b32 s44, s2, 3")
            a("s_mul_i32 s44, s44, 17")
            a("s_add_u32 s43, s43, s44")
            a("s_sub_u32 s43, s43, 16")
            a("v_min_u32 v15, 16, v1")
            a("v_add_u32 v15, s43, v15")
            a("v_max_i32 v15, 0, v15")
            a("v_lshlrev_b32 v15, 11, v15")
            a("buffer_load_dword v31, v15, s[8:11], 0 offen offset:1408"); vm.append("pf")
        if s == WOP:
            if WOM == "l2":
                n = pf_w64(a, KA_WO, 1024, list(range(16//MX)), 84, 29, 30); vm.extend(["pf"]*n)
            elif WOM == "mall":
                a(f"s_load_dwordx2 s[88:89], s[0:1], {KA_WO}")
                a("v_lshlrev_b32 v29, 7, v1")
                a("s_lshl_b32 s43, s2, 13")
                a("s_waitcnt lgkmcnt(0)")
                srd(a, 84, 88, 2097152)
                a("buffer_load_dword v30, v29, s[84:87], s43 offen"); vm.append("pf")
                if int(os.environ.get("K2_SPF", "1")):
                    a("v_and_b32 v29, 31, v1")
                    a("v_lshlrev_b32 v29, 11, v29")
                    a("s_and_b32 s43, s35, 8")
                    a("s_or_b32 s43, s43, 3")
                    a("s_lshl_b32 s43, s43, 7")
                    a("s_lshr_b32 s44, s2, 3")
                    a("s_lshl_b32 s44, s44, 16")
                    a("s_add_u32 s43, s43, s44")
                    a("buffer_load_dword v30, v29, s[84:87], s43 offen"); vm.append("pf")
        if s == SS - 2:
            a("v_mov_b32 v7, 0")
            a("v_mov_b32 v9, 1")
            a("buffer_load_dword v8, v7, s[56:59], 0 offen sc1"); vm.append("z")
        if s == SS:
            flag_poll_finish(a, 56, v=7)
            flag_srd(a, 56)
            flag_signal(a, 56, "ln", 34); vm.append("at")
        if s == GS:
            a("s_sub_u32 s44, s34, 1")
            a("s_max_i32 s44, s44, 0")
            a("v_mov_b32 v5, s44")
            a("v_mov_b32 v6, s34")
            a("v_cmp_eq_u32 vcc, 0, v1")
            a("s_nop 1")
            a("v_cndmask_b32 v5, v5, v6, vcc")
            a(f"v_add_u32 v5, {FLG['ln'][0]}, v5")
            a("v_lshlrev_b32 v5, 7, v5")
            a("buffer_load_dword v6, v5, s[56:59], 0 offen sc1"); vm.append("poll")
        if s == GS + 2:
            a("v_mov_b32 v7, 16")
            flag_poll_finish(a, 56, v=5, first=len(vm) - 1 - max(i for i, t in enumerate(vm) if t == "poll"))
            for q in range(3):
                a(f"v_add_u32 v5, {64*q}, v1")
                a("v_min_u32 v5, 143, v5")
                a(f"v_lshlrev_b32 v{20+q}, 3, v5")
                a("v_add_u32 v5, s50, v5")
                a("v_max_i32 v5, 0, v5")
                a("v_lshlrev_b32 v5, 3, v5")
                a(f"buffer_load_dwordx2 v[{32+2*q}:{33+2*q}], v5, s[20:23], 0 offen sc1"); vm.append("gather")
        if s == GS + 2 + GD:
            wait_for("gather")
            for q in range(3):
                a(f"v_add_u32 v{20+q}, {RST}, v{20+q}")
                a(f"ds_write_b64 v{20+q}, v[{32+2*q}:{33+2*q}]")
            a("s_waitcnt lgkmcnt(0)")
        if s in (CS0, CS0+1):
            Lnj = a.label("Lnj")
            cs_setup(a, Lnj, 84, 28)
            for q in range(16*(s-CS0), 16*(s-CS0+1)): cs_issue(a, q, 84, 28)
            a(f"{Lnj}:")
        if STAMPC != "k1": wpre(s)
        if max(RW + 5, SPS) <= s <= (11 if CSM == "d" else SPE) and STAMPC != "k1": spre()
        a("s_barrier")
        stampc(a, "k1", s+2)
    stampc(a, "k1", 18)
    warm_jump(a, ("L7", 0))
    warm_jump(a, ("Lnojob", 0))
    if ASP: warm_jump(a, ("Latt", 1))
    a("s_waitcnt lgkmcnt(0)")
    att_setup()

    def attention(mid):
        a("s_barrier")
        stampc(a, "k1", 19)
        stamp(a, 3)
        U = 32*QP
        for u in range(2):
            B = 32 + 48*u
            uo = u*U
            a(f"ds_read_b128 v[{B}:{B+3}], v20 offset:{QKV + uo}")
            a(f"ds_read_b128 v[{B+4}:{B+7}], v20 offset:{QKV + uo + 128}")
            if u == 0: a(f"ds_read_b128 v[{B+8}:{B+11}], v21 offset:{QKV + 128}")
            else: a(f"ds_read_b128 v[{B+8}:{B+11}], v20 offset:{QKV + 128}")
        for u in range(2):
            B = 32 + 48*u
            uo = u*U
            for dh in range(2):
                if u == 0: a(f"ds_read_b64_tr_b16 v[{B+12+4*dh}:{B+13+4*dh}], v23 offset:{QKV + 256 + dh*32}")
                else: a(f"ds_read_b64_tr_b16 v[{B+12+4*dh}:{B+13+4*dh}], v22 offset:{QKV + 256 + dh*32}")
                a(f"ds_read_b64_tr_b16 v[{B+14+4*dh}:{B+15+4*dh}], v22 offset:{QKV + uo + 256 + dh*32}")
        for u in range(2):
            B = 32 + 48*u
            a(f"s_waitcnt lgkmcnt({11 if u == 0 else 8})")
            a(f"v_mfma_f32_16x16x32_bf16 v[{B+20}:{B+23}], v[{B+8}:{B+11}], v[{B}:{B+3}], 0")
            a(f"v_mfma_f32_16x16x32_bf16 v[{B+24}:{B+27}], v[{B+4}:{B+7}], v[{B}:{B+3}], 0")
        a("s_nop 7")
        def soft(u):
            B = 32 + 48*u
            S = B + 20; M = B + 28; T = B + 29; P = B + 32
            r_ = []
            am = 64 if u == 0 else 84
            for r in range(4): r_.append(f"v_cndmask_b32 v{S+r}, v28, v{S+r}, s[{am+2*r}:{am+2*r+1}]")
            for r in range(4): r_.append(f"v_cndmask_b32 v{S+4+r}, v28, v{S+4+r}, s[{52+2*r}:{53+2*r}]")
            r_.append(f"v_max3_f32 v{M}, v{S}, v{S+1}, v{S+2}")
            r_.append(f"v_max3_f32 v{T}, v{S+3}, v{S+4}, v{S+5}")
            r_.append(f"v_max3_f32 v{M}, v{M}, v{S+6}, v{S+7}")
            r_.append(f"v_max_f32 v{M}, v{M}, v{T}")
            for sw in ("32", "16"):
                r_.append(f"v_mov_b32 v{T}, v{M}")
                r_.append("s_nop 0")
                r_.append(f"v_permlane{sw}_swap_b32 v{M}, v{T}")
                r_.append(f"v_max_f32 v{M}, v{M}, v{T}")
            r_.append(f"v_mul_f32 v{M}, s61, v{M}")
            for r in range(8): r_.append(f"v_fma_f32 v{S+r}, v{S+r}, s61, -v{M}")
            for r in range(8): r_.append(f"v_exp_f32 v{S+r}, v{S+r}")
            for q in range(4): r_.append(f"v_cvt_pk_bf16_f32 v{P+q}, v{S+2*q}, v{S+2*q+1}")
            return r_
        def zip2(x, y):
            for i, j in zip(x, y):
                a(i)
                if not (i == j and i.startswith("s_nop")): a(j)
        s0, s1 = soft(0), soft(1); cut = int(os.environ.get("K1_ASC", "30")) if mid else 0
        zip2(s0[:cut], s1[:cut])
        if mid: a("s_barrier")
        zip2(s0[cut:], s1[cut:])
        a("s_waitcnt lgkmcnt(0)")
        for u in range(2):
            B = 32 + 48*u
            for dh in range(2):
                a(f"v_mfma_f32_16x16x32_bf16 v[{B+36+4*dh}:{B+39+4*dh}], v[{B+12+4*dh}:{B+15+4*dh}], v[{B+32}:{B+35}], 0")
        a(f"s_load_dwordx4 s[4:7], s[0:1], {KA_WG}")
        a(f"s_load_dwordx2 s[28:29], s[0:1], {KA_WO}")
        a(f"s_load_dwordx4 s[60:63], s[0:1], {KA_WD}")
        def rsum(u):
            B = 32 + 48*u
            S = B + 20; M = B + 28; T = B + 29
            r_ = [f"v_add_f32 v{M}, v{S}, v{S+1}", f"v_add_f32 v{T}, v{S+2}, v{S+3}", f"v_add_f32 v{S+4}, v{S+4}, v{S+5}", f"v_add_f32 v{S+6}, v{S+6}, v{S+7}",
                  f"v_add_f32 v{M}, v{M}, v{T}", f"v_add_f32 v{S+4}, v{S+4}, v{S+6}", f"v_add_f32 v{M}, v{M}, v{S+4}"]
            for sw in ("32", "16"):
                r_.append(f"v_mov_b32 v{T}, v{M}")
                r_.append("s_nop 0")
                r_.append(f"v_permlane{sw}_swap_b32 v{M}, v{T}")
                r_.append(f"v_add_f32 v{M}, v{M}, v{T}")
            r_.append(f"v_rcp_f32 v{M}, v{M}")
            return r_
        zip2(rsum(0), rsum(1))
        a("s_nop 0")
        for u in range(2):
            B = 32 + 48*u
            M = B + 28; O = B + 36
            for r in range(0, 8, 2): a(f"v_pk_mul_f32 v[{O+r}:{O+r+1}], v[{M}:{M+1}], v[{O+r}:{O+r+1}] op_sel_hi:[0,1]")
            for q in range(4): a(f"v_cvt_pk_bf16_f32 v{O+q}, v{O+2*q}, v{O+2*q+1}")
            a(f"buffer_store_dwordx4 v[{O}:{O+3}], v27, s[16:19], 0 offen offset:{512*u} sc1")
        stamp(a, 4)

    if ASP:
        Lend = a.label("Lk1e")
        a(f"{Latt1}:")
        attention(True)
        a(f"s_branch {Lend}")
        a(f"{Latt}:")
        attention(False)
        a(f"{Lend}:")
    else:
        a(f"{Latt1}:")
        a(f"{Latt}:")
        attention(False)
    ic, ip, iw = a.L.index(";@@CONS"), a.L.index(";@@PROD"), a.L.index(";@@W7")
    a.L[ic:iw] = a.L[ip:iw] + a.L[ic:ip]
```
